```python
import torch

def _softmax(x, axis=-1):
    return torch.softmax(x, dim=axis)
def _gelu(x):
    return torch.nn.functional.gelu(x, approximate="tanh")
def _silu(x):
    return torch.nn.functional.silu(x)
def _sigmoid(x):
    return torch.sigmoid(x)
def _layernorm(x, axis=-1, eps=1e-5):
    m = x.mean(dim=axis, keepdim=True)
    v = x.var(dim=axis, keepdim=True, unbiased=False)
    return (x - m) / torch.sqrt(v + eps)
def _scatter_add(tgt, idx, src, axis=0):
    return tgt.clone().index_add_(axis, idx, src)
def _segment_sum(src, seg, n):
    out = torch.zeros((n,) + src.shape[1:], dtype=src.dtype)
    return out.index_add_(0, seg, src)
def _pad(x, pw):
    flat = tuple(v for pair in reversed(pw) for v in pair)
    return torch.nn.functional.pad(x, flat)

kernel_name = 'sequential_preLN__ssm_conv_s4d__moe_arch_mod__prompt'

def setup_inputs():

    _w = (lambda a: (lambda t: t.to(torch.bfloat16) if t.is_floating_point() else t)(torch.as_tensor(a)))
    def _A_setup():
        Bsz, L, D, N = 1, 2048, 512, 128
        return {
            "u": _w((lambda *s: torch.randn(*s, dtype=torch.bfloat16) * 0.05)(Bsz, L, D)),
            "log_A_real": _w((lambda *s: torch.randn(*s, dtype=torch.bfloat16) * 6.4)(D, N) * 0.5),
            "A_imag": _w((lambda *s: torch.randn(*s, dtype=torch.bfloat16) * 0.05)(D, N) * 3.14),
            "C_real": _w((lambda *s: torch.randn(*s, dtype=torch.bfloat16) * 0.05)(D, N) / N ** 0.5),
            "C_imag": _w((lambda *s: torch.randn(*s, dtype=torch.bfloat16) * 0.05)(D, N) / N ** 0.5),
            "log_dt": _w((lambda *s: torch.randn(*s, dtype=torch.bfloat16) * 0.05)(D) * 0.5 - 4.0),
            "D_skip": _w((lambda *s: torch.randn(*s, dtype=torch.bfloat16) * 0.05)(D)),
        }
    _A_in = _A_setup()

    def _B_setup():
        B, S, D, F, C = 1, 2048, 512, 1792, 1
        return {
            "x": _w((lambda *s: torch.randn(*s, dtype=torch.bfloat16) * 0.05)(B, S, D)),
            "w_r": _w((lambda *s: torch.randn(*s, dtype=torch.bfloat16) * 0.05)(D)),
            "w_gate": _w((lambda *s: torch.randn(*s, dtype=torch.bfloat16) * 0.05)(D, F)),
            "w_up": _w((lambda *s: torch.randn(*s, dtype=torch.bfloat16) * 0.05)(D, F)),
            "w_down": _w((lambda *s: torch.randn(*s, dtype=torch.bfloat16) * 0.05)(F, D)),
        }
    _B_in = _B_setup()

    return {
        "A_u": _A_in["u"],
        "A_log_A_real": _A_in["log_A_real"],
        "A_A_imag": _A_in["A_imag"],
        "A_C_real": _A_in["C_real"],
        "A_C_imag": _A_in["C_imag"],
        "A_log_dt": _A_in["log_dt"],
        "A_D_skip": _A_in["D_skip"],
        "B_x": _B_in["x"],
        "B_w_r": _B_in["w_r"],
        "B_w_gate": _B_in["w_gate"],
        "B_w_up": _B_in["w_up"],
        "B_w_down": _B_in["w_down"],
    }

def reference(A_u, A_log_A_real, A_A_imag, A_C_real, A_C_imag, A_log_dt, A_D_skip, B_x, B_w_r, B_w_gate, B_w_up, B_w_down):
    def _A_ref(u, log_A_real, A_imag, C_real, C_imag, log_dt, D_skip):
        L = u.shape[1]
        dt = torch.exp(log_dt)
        A = -torch.exp(log_A_real) + 1j * A_imag
        C = (C_real + 1j * C_imag) * dt[:, None]
        pos = (lambda x, dt: x.to(dt))(torch.arange(L), log_dt.dtype)
        P = torch.exp((A * dt[:, None])[:, :, None] * pos[None, None, :])
        K = 2.0 * torch.einsum("dn,dnl->dl", C, P).real
        L2 = 2 * L
        u_t = (lambda x, *d: x.permute(*d))(u, 0, 2, 1)
        Kf = (lambda x, *a, **k: torch.fft.rfft(x.float(), *a, **k))(K, L2)
        Uf = (lambda x, *a, **k: torch.fft.rfft(x.float(), *a, **k))(u_t, L2)
        y = (lambda x, *a, **k: torch.fft.irfft(x, *a, **k).to(torch.bfloat16))(Uf * Kf[None, :, :], L2)[:, :, :L]
        y = (lambda x, *d: x.permute(*d))(y, 0, 2, 1)
        return y + u * D_skip[None, None, :]

    def _B_ref(x, w_r, w_gate, w_up, w_down):
        B, S, D = x.shape
        C = 1
        r = x @ w_r
        idx = torch.argsort(-r, axis=-1)[:, :C]
        idx_e = (lambda x, n, axis: torch.repeat_interleave(x, n, dim=axis))(idx.reshape(B, C, 1), D, axis=2)
        x_sel = (lambda x, i, axis: torch.take_along_dim(x, i, dim=axis))(x, idx_e, axis=1)
        g = _silu(x_sel @ w_gate)
        u = x_sel @ w_up
        y = (g * u) @ w_down
        r_sel = _sigmoid((lambda x, i, axis: torch.take_along_dim(x, i, dim=axis))(r, idx, axis=1))
        y = y * r_sel.reshape(B, C, 1)
        b_off = (torch.arange(B) * S).reshape(B, 1)
        flat_idx = (idx + b_off).reshape(B * C)
        zero = (x * 0.0).reshape(B * S, D)
        upd = _scatter_add(zero, flat_idx, y.reshape(B * C, D), axis=0)
        return x + upd.reshape(B, S, D)

    x = A_u
    h = x + _A_ref(_layernorm(x, axis=-1), A_log_A_real, A_A_imag, A_C_real, A_C_imag, A_log_dt, A_D_skip)
    h2 = h + _B_ref(_layernorm(h, axis=-1), B_w_r, B_w_gate, B_w_up, B_w_down)
    return h2
```

```python
import re
import subprocess

TRANS = ("v_exp_f32", "v_log_f32", "v_rcp_f32", "v_rsq_f32", "v_sqrt_f32", "v_sin_f32", "v_cos_f32")


def _regs(tok):
    tok = tok.strip()
    tok = tok.lstrip("-")
    m = re.fullmatch(r"abs\((.*)\)|\|(.*)\|", tok)
    if m:
        tok = m.group(1) or m.group(2)
    m = re.fullmatch(r"([vsa])(\d+)", tok)
    if m:
        return [m.group(1) + m.group(2)]
    m = re.fullmatch(r"([vsa])\[(\d+):(\d+)\]", tok)
    if m:
        return [m.group(1) + str(i) for i in range(int(m.group(2)), int(m.group(3)) + 1)]
    if tok == "vcc":
        return ["vcc"]
    if tok in ("vcc_lo", "vcc_hi"):
        return ["vcc"]
    if tok == "exec" or tok in ("exec_lo", "exec_hi"):
        return ["exec"]
    if tok == "m0":
        return ["m0"]
    return []


class Ins:
    def __init__(self, text):
        self.text = text
        t = text.split(";")[0].strip()
        self.label = t.endswith(":")
        self.directive = t.startswith(".")
        self.op = ""
        self.w = set()
        self.r = set()
        self.srcs = []
        if self.label or self.directive or not t:
            return
        parts = t.split(None, 1)
        self.op = parts[0]
        rest = parts[1] if len(parts) > 1 else ""
        ops = []
        depth = 0
        cur = ""
        for ch in rest:
            if ch in "[(":
                depth += 1
            if ch in "])":
                depth -= 1
            if ch == "," and depth == 0:
                ops.append(cur.strip())
                cur = ""
            else:
                cur += ch
        if cur.strip():
            ops.append(cur.strip())
        mods = ""
        if ops:
            last = ops[-1].split(None, 1)
            ops[-1] = last[0]
            mods = last[1] if len(last) > 1 else ""
        self.mods = mods
        op = self.op
        base = re.sub(r"_(e32|e64|dpp|sdwa)$", "", op)
        self.base = base
        self.dpp = op.endswith("_dpp")
        self.valu = op.startswith("v_") and not op.startswith("v_mfma")
        self.mfma = op.startswith("v_mfma")
        self.salu = op.startswith("s_")
        self.ds = op.startswith("ds_")
        self.vmem = op.startswith("global_") or op.startswith("buffer_")
        self.trans = base in TRANS
        self.dot = base.startswith("v_dot")
        R = [_regs(o) for o in ops]
        if op.startswith("v_permlane"):
            for x in R:
                self.w.update(x)
                self.r.update(x)
            self.srcs = R
        elif op.startswith("v_"):
            self.w.update(R[0])
            k = 1
            if base in ("v_add_co_u32", "v_addc_co_u32", "v_sub_co_u32", "v_subb_co_u32"):
                self.w.update(R[1])
                k = 2
            for x in R[k:]:
                self.r.update(x)
            self.srcs = R[k:]
            if base in ("v_fmac_f32", "v_dot2c_f32_bf16", "v_writelane_b32") or self.dpp:
                self.r.update(R[0])
            if base == "v_cndmask_b32" and len(ops) == 3:
                self.r.add("vcc")
        elif self.ds:
            if op.startswith("ds_read") or op.startswith("ds_bpermute") or op.startswith("ds_permute") or op.startswith("ds_swizzle"):
                self.w.update(R[0])
                for x in R[1:]:
                    self.r.update(x)
            else:
                for x in R:
                    self.r.update(x)
            if "addtid" in op:
                self.r.add("m0")
        elif self.vmem:
            if "load" in op and "lds" not in op:
                self.w.update(R[0])
                for x in R[1:]:
                    self.r.update(x)
            else:
                for x in R:
                    self.r.update(x)
            self.srcs = R
        elif self.salu:
            if base.startswith(("s_cmp", "s_cbranch", "s_branch", "s_waitcnt", "s_barrier", "s_nop", "s_endpgm", "s_setprio", "s_sleep", "s_set_gpr_idx", "s_bitcmp")):
                for x in R:
                    self.r.update(x)
            else:
                if R:
                    self.w.update(R[0])
                for x in R[1:]:
                    self.r.update(x)
                if "saveexec" in op:
                    self.w.add("exec")

    def states(self):
        if self.label or self.directive or not self.op:
            return 0
        if self.op == "s_nop":
            return int(self.text.split()[1]) + 1
        return 1


def need(p, c):
    n = 0
    vw = {x for x in p.w if x[0] in "va" and x != "vcc"}
    sw = {x for x in p.w if x[0] == "s" or x == "vcc"}
    if p.valu:
        if vw & c.r:
            if c.op.startswith("v_") and c.dpp:
                n = max(n, 2)
            if c.op.startswith("v_permlane"):
                n = max(n, 2)
            if c.base in ("v_readlane_b32", "v_readfirstlane_b32"):
                n = max(n, 1)
            if c.mfma:
                n = max(n, 2)
            if p.trans and c.op.startswith("v_"):
                n = max(n, 1)
            if "sdwa" in p.op and c.op.startswith("v_"):
                n = max(n, 1)
        if p.dot and (vw & (c.r | c.w)):
            same_c = c.base == p.base and (not any(vw & set(s) for s in c.srcs[:2]))
            if not same_c:
                n = max(n, 3)
        if sw & c.r:
            if c.valu:
                n = max(n, 4 if c.base in ("v_readlane_b32", "v_writelane_b32") else 2)
            if c.vmem:
                n = max(n, 5)
    if p.mfma:
        passes = 8 if "32x32" in p.op else 4
        big = {4: 8, 8: 12}[passes]
        mid = {4: 6, 8: 10}[passes]
        war = {4: 3, 8: 7}[passes]
        if c.mfma:
            if vw & (set(c.srcs[0]) | set(c.srcs[1])):
                n = max(n, big)
            cs = set(c.srcs[2])
            if vw & cs and cs != vw:
                n = max(n, mid)
            if vw & c.w and not (vw & cs):
                n = max(n, big)
        elif vw & (c.r | c.w):
            n = max(n, big)
        if c.valu and set(p.srcs[2]) & c.w:
            n = max(n, war)
    if p.vmem and "store" in p.op and ("x4" in p.op or "x3" in p.op):
        data = set(p.srcs[1]) if p.op.startswith("global_") else set(p.srcs[0])
        if data & c.w:
            n = max(n, 2)
    if p.salu and "m0" in p.w and ("m0" in c.r and (c.ds or c.vmem)):
        n = max(n, 1)
    return n


class Asm:
    def __init__(self):
        self.L = []

    def __call__(self, text):
        for line in text.split("\n"):
            line = line.strip()
            if line:
                self.L.append(line)

    def padded(self):
        out = []
        nops = 0
        for text in self.L:
            c = Ins(text)
            if c.op:
                dist = 0
                pad = 0
                for p in reversed(out):
                    if dist >= 12:
                        break
                    if p.op:
                        pad = max(pad, need(p, c) - dist)
                    dist += p.states()
                if pad > 0:
                    out.append(Ins(f"s_nop {pad - 1}"))
                    nops += pad
            out.append(c)
        return [i.text for i in out], nops


E32_OK = ("v_mov_b32", "v_add_f32", "v_sub_f32", "v_subrev_f32", "v_mul_f32", "v_max_f32", "v_min_f32", "v_add_u32", "v_sub_u32",
          "v_subrev_u32", "v_lshlrev_b32", "v_lshrrev_b32", "v_ashrrev_i32", "v_and_b32", "v_or_b32", "v_xor_b32", "v_max_u32",
          "v_min_u32", "v_mul_u32_u24", "v_fract_f32", "v_exp_f32", "v_sin_f32", "v_cos_f32", "v_rcp_f32", "v_sqrt_f32",
          "v_cndmask_b32", "v_cmp_eq_u32", "v_cmp_gt_u32", "v_cmp_lt_u32", "v_cmp_ne_u32", "v_fmac_f32", "v_log_f32")


def sizes(lines):
    src = '.amdgcn_target "amdgcn-amd-amdhsa--gfx950"\n.text\n' + "\n".join(lines) + "\n"
    r = subprocess.run(["llvm-mc", "-triple=amdgcn-amd-amdhsa", "-mcpu=gfx950", "-show-encoding"],
                       input=src, capture_output=True, text=True)
    if r.returncode:
        raise SystemExit(r.stderr)
    enc = [len(m.group(1).split(",")) for m in re.finditer(r"encoding: \[(.*?)\]", r.stdout)]
    return enc


def align8(lines):
    ins = [Ins(t) for t in lines]
    sz = sizes(lines)
    idx = [k for k, i in enumerate(ins) if i.op]
    assert len(idx) == len(sz), (len(idx), len(sz))
    size = dict(zip(idx, sz))
    out = list(lines)
    off = 0
    last4 = None
    promoted = 0
    missed = 0
    for k, i in enumerate(ins):
        if i.directive:
            m = re.match(r"\.p2align\s+(\d+)", i.text.strip())
            if m:
                a = 1 << int(m.group(1))
                off = (off + a - 1) // a * a
                last4 = None
            continue
        if not i.op:
            continue
        s = size[k]
        if s >= 8 and off % 8 == 4:
            if last4 is not None:
                j = last4
                out[j] = out[j].replace(ins[j].op, ins[j].op + "_e64", 1)
                off += 4
                promoted += 1
            else:
                missed += 1
        if s == 4:
            ok = i.op in E32_OK
            last4 = k if ok else last4
        else:
            last4 = None
        off += s
    return out, off, promoted, missed
```

```python
import sys
import struct
from asmlib import Asm, align8

KNAME = "sequential_preLN__ssm_conv_s4d__moe_arch_mod__prompt_kernel"


def f2u(x):
    return struct.unpack("<I", struct.pack("<f", x))[0]


W_FLAG = 0x1000
W_KEY = 0x4000
W_REG = 0x8000
RS = 20608
O_X1, O_X2, O_SLOT, O_PART = 0, 8192, 16384, 18432
W_STAMP = 0x800000
ROWB = 544
TABC = 63 * ROWB
L_TAB = 0
L_P = 68608
PC = 8256
L_U = L_P + 2 * PC
UC = 4608
L_RED1 = (L_U + 2 * UC + 255) // 256 * 256
L_RED2 = L_RED1 + 256
L_SUMW = L_RED2 + 384
L_REDK = L_SUMW + 16
L_REDF = L_REDK + 16
LDS_BYTES = L_REDF + 256
L_EPI = 0
TBS = 1152
sX, sLA, sAI, sCR, sCI, sLDT, sD = 4, 6, 8, 10, 12, 14, 16
sWR, sWG, sWU, sWD, sOUT, sDBG, sWS = 20, 22, 24, 26, 28, 30, 32
sL, sPOS, sXCD, sWAVE, sG, sDT, sT0, sT1, sSPIN, sF = 34, 35, 36, 37, 38, 39, 40, 41, 42, 43
sODD = 44
sSELLO, sSELHI, sONES, sMASK = 46, 47, 48, 49
sWSEL = 50
sBEST, sWIN, sRP0, sRP1 = 52, 53, 54, 55
sH = 56
sE = 64
sTMP = 66
sSTAMP = 72


def sp(r):
    return f"s[{r}:{r + 1}]"


def v(r, n=1):
    return f"v{r}" if n == 1 else f"v[{r}:{r + n - 1}]"


class Gen:
    def __init__(self, stamp=False, opts=None):
        self.A = Asm()
        self.tail = Asm()
        self.stamp_on = stamp
        self.nstamp = 0
        self.names = []
        self.o = dict(opts or {})

    def stamp(self, name):
        if not self.stamp_on:
            return
        k = self.nstamp
        self.nstamp += 1
        self.names.append(name)
        assert sSTAMP + k <= 100
        self.A(f"s_memrealtime {sp(sTMP + 4)}")
        self.A("s_waitcnt lgkmcnt(0)")
        self.A(f"s_mov_b32 s{sSTAMP + k}, s{sTMP + 4}")

    def poll(self, name, loads, check, base_exec="-1"):
        A = self.A
        for c in check:
            A(c)
        A(f"s_cbranch_vccnz L_retry_{name}")
        A(f"L_ok_{name}:")
        T = self.tail
        T(f"L_retry_{name}:")
        T(f"s_mov_b32 s{sSPIN}, 0x40000")
        T(f"L_again_{name}:")
        T(f"s_sub_u32 s{sSPIN}, s{sSPIN}, 1")
        T(f"s_cbranch_scc1 L_ok_{name}")
        T("s_mov_b64 exec, vcc")
        for l in loads:
            T(l)
        T("s_waitcnt vmcnt(0)")
        for c in check:
            T(c)
        T(f"s_mov_b64 exec, {base_exec}")
        T(f"s_cbranch_vccnz L_again_{name}")
        T(f"s_branch L_ok_{name}")

    def cmul(self, d, x, y, t):
        return [f"v_pk_mul_f32 {v(t, 2)}, {v(x, 2)}, {v(y, 2)} op_sel:[0,0] op_sel_hi:[0,1]",
                f"v_pk_fma_f32 {v(d, 2)}, {v(x, 2)}, {v(y, 2)}, {v(t, 2)} op_sel:[1,1,0] op_sel_hi:[1,0,1] neg_lo:[1,0,0]"]

    def reduce8(self, V, t):
        A = self.A
        for i in range(4):
            A(f"v_add_f32_dpp {v(V[i])}, {v(V[i])}, {v(V[i])} row_ror:8 row_mask:0xf bank_mask:0x3")
        for i in range(4):
            A(f"v_add_f32_dpp {v(V[i])}, {v(V[i + 4])}, {v(V[i + 4])} row_ror:8 row_mask:0xf bank_mask:0xc")
        for i in range(2):
            A(f"v_add_f32_dpp {v(V[i])}, {v(V[i])}, {v(V[i])} row_shl:4 row_mask:0xf bank_mask:0x5")
        for i in range(2):
            A(f"v_add_f32_dpp {v(V[i])}, {v(V[i + 2])}, {v(V[i + 2])} row_shr:4 row_mask:0xf bank_mask:0xa")
        A(f"v_permlane32_swap_b32 {v(V[0])}, {v(V[1])}")
        A(f"v_add_f32 {v(V[0])}, {v(V[0])}, {v(V[1])}")
        A(f"v_add_f32_dpp {v(V[0])}, {v(V[0])}, {v(V[0])} quad_perm:[2,3,0,1] row_mask:0xf bank_mask:0xf")
        A(f"v_mov_b32 {v(t)}, {v(V[0])}")
        A(f"v_permlane16_swap_b32 {v(V[0])}, {v(t)}")
        A(f"v_add_f32 {v(V[0])}, {v(V[0])}, {v(t)}")

    def row_stats(self, S, Q, negm, rinv, t):
        A = self.A
        A(f"v_pk_add_f32 {v(S, 2)}, {v(S, 2)}, {v(S + 2, 2)}")
        A(f"v_pk_add_f32 {v(Q, 2)}, {v(Q, 2)}, {v(Q + 2, 2)}")
        A(f"v_add_f32 {v(S)}, {v(S)}, {v(S + 1)}")
        A(f"v_add_f32 {v(Q)}, {v(Q)}, {v(Q + 1)}")
        A(f"v_mul_f32 {v(S)}, {hex(f2u(1 / 512))}, {v(S)}")
        A(f"v_mul_f32 {v(Q)}, {hex(f2u(1 / 512))}, {v(Q)}")
        A(f"v_fma_f32 {v(Q)}, -{v(S)}, {v(S)}, {v(Q)}")
        A(f"v_max_f32 {v(Q)}, 0, {v(Q)}")
        A(f"v_cvt_pk_bf16_f32 {v(t)}, -{v(S)}, {v(Q)}")
        A(f"v_and_b32 {v(Q)}, s{sMASK}, {v(t)}")
        A(f"v_add_f32 {v(Q)}, {hex(f2u(1e-5))}, {v(Q)}")
        A(f"v_cvt_pk_bf16_f32 {v(Q)}, {v(Q)}, {v(Q)}")
        A(f"v_and_b32 {v(Q)}, s{sMASK}, {v(Q)}")
        A(f"v_sqrt_f32 {v(Q)}, {v(Q)}")
        A(f"v_lshlrev_b32 {v(negm)}, 16, {v(t)}")
        A(f"v_cvt_pk_bf16_f32 {v(Q)}, {v(Q)}, {v(Q)}")
        A(f"v_and_b32 {v(Q)}, s{sMASK}, {v(Q)}")
        A(f"v_rcp_f32 {v(rinv)}, {v(Q)}")

    def spread(self, val, dst, t):
        A = self.A
        for r in range(4):
            A(f"v_mov_b32_dpp {v(t + r)}, {v(val)} row_newbcast:{4 + r} row_mask:0xf bank_mask:0xf")
        for r in range(4):
            A(f"v_cndmask_b32_dpp {v(dst + r)}, {v(val)}, {v(t + r)}, vcc row_newbcast:{r} row_mask:0xf bank_mask:0xf")

    def build(self):
        A = self.A
        o = self.o
        vX, vU, vD, vWR = 2, 10, 18, 20
        vLANE, vREG, vRD, vAUX = 1, 22, 23, 24
        vAA = 28
        vBA = 36
        vEW, vER = 37, 38
        vRA = 39
        vWG, vWD = 40, 72
        vACC = 88
        vA0, vA1, vB0, vB1 = 120, 152, 184, 216
        vT = 248
        K = 120

        A(f"{KNAME}:")
        A("s_cmp_ge_u32 s2, 256")
        A("s_cbranch_scc1 L_end")
        self.stamp("start")
        A("s_load_dwordx16 s[4:19], s[0:1], 0")
        A("s_load_dwordx8 s[20:27], s[0:1], 64")
        A("s_load_dwordx4 s[28:31], s[0:1], 96")
        A("s_load_dwordx2 s[32:33], s[0:1], 112")
        A(f"v_lshrrev_b32 {v(vT)}, 6, v0")
        A(f"s_and_b32 s{sXCD}, s2, 7")
        A(f"v_readfirstlane_b32 s{sWAVE}, {v(vT)}")
        A(f"s_lshr_b32 s{sPOS}, s2, 3")
        A(f"s_lshl_b32 s{sL}, s{sXCD}, 5")
        A(f"s_add_u32 s{sL}, s{sL}, s{sPOS}")
        A(f"v_and_b32 {v(vLANE)}, 63, v0")
        A(f"s_mov_b32 s{sONES}, 0x3f803f80")
        A(f"s_cmp_eq_u32 s{sWAVE}, 4")
        A("s_cbranch_scc1 L_helper")
        A(f"v_lshrrev_b32 {v(vT)}, 1, v0")
        A(f"v_and_b32 {v(vT + 1)}, 1, v0")
        A(f"v_lshlrev_b32 {v(vT + 2)}, 3, {v(vT)}")
        A(f"s_lshl_b32 s{sT0}, s{sL}, 13")
        A(f"v_lshl_add_u32 {v(vRD)}, {v(vT + 1)}, 12, {v(vT + 2)}")
        A(f"v_add_u32 {v(vRD)}, s{sT0}, {v(vRD)}")
        A(f"s_lshl_b32 s{sT0}, s{sL}, 9")
        A(f"v_lshl_add_u32 {v(vT + 3)}, v0, 1, s{sT0}")
        A(f"s_mul_i32 s{sT0}, s{sL}, {RS}")
        A(f"s_add_u32 s{sT0}, s{sT0}, {W_REG + 4096}")
        A(f"v_lshl_add_u32 {v(vREG)}, v0, 4, s{sT0}")
        A(f"s_lshl_b32 s{sT1}, s{sL}, 2")
        for k in range(4):
            A(f"v_mov_b32 {v(K + 120 + k)}, -1")
        A("s_waitcnt lgkmcnt(0)")
        self.stamp("karg")
        for r in range(4):
            A(f"global_load_dwordx2 {v(vX + 2 * r, 2)}, {v(vRD)}, {sp(sX)} offset:{1024 * r}")
        A(f"s_load_dword s{sG}, {sp(sWS)}, 0")
        A(f"s_load_dword s{sDT}, {sp(sLDT)}, s{sT1}")
        vP = K + 112
        for k, s in enumerate((sLA, sAI, sCR, sCI)):
            A(f"global_load_ushort {v(vP + k)}, {v(vT + 3)}, {sp(s)}")
        A(f"global_load_dwordx2 {v(vD, 2)}, {v(vT + 2)}, {sp(sD)}")
        A(f"global_load_dwordx2 {v(vWR, 2)}, {v(vT + 2)}, {sp(sWR)}")
        A(f"v_add_u32 {v(vAUX)}, 8192, {v(vREG)}")
        A(f"v_add_u32 {v(vAUX + 1)}, 12288, {v(vREG)}")
        ones = v(K + 120, 4)
        A(f"global_store_dwordx4 {v(vREG)}, {ones}, {sp(sWS)} offset:-4096 sc1")
        A(f"global_store_dwordx4 {v(vREG)}, {ones}, {sp(sWS)} sc1")
        A(f"global_store_dwordx4 {v(vAUX)}, {ones}, {sp(sWS)} offset:-4096 sc1")
        A(f"global_store_dwordx4 {v(vAUX)}, {ones}, {sp(sWS)} sc1")
        A(f"global_store_dwordx4 {v(vAUX + 1)}, {ones}, {sp(sWS)} sc1")
        A(f"s_lshl_b32 s{sT0}, s{sL}, 5")
        A(f"s_add_u32 s{sT0}, s{sT0}, {W_KEY}")
        A(f"v_mov_b32 {v(vAUX + 2)}, s{sT0}")
        A("s_mov_b64 exec, 1")
        A(f"global_store_dword {v(vAUX + 2)}, {v(K + 120)}, {sp(sWS)} sc1")
        A("s_mov_b64 exec, -1")
        NYOUNG = 6 + 6
        A(f"s_mov_b32 s{sODD}, 0xaaaaaaaa")
        A(f"s_mov_b32 s{sODD + 1}, 0xaaaaaaaa")
        A(f"s_mov_b32 s{sSELLO}, 0x3f80")
        A(f"s_mov_b32 s{sSELHI}, 0x3f800000")
        A(f"s_mov_b32 s{sMASK}, 0xffff0000")
        vJ, vGq = vT + 4, vT + 5
        A(f"v_and_b32 {v(vJ)}, 15, {v(vLANE)}")
        A(f"v_lshrrev_b32 {v(vGq)}, 4, {v(vLANE)}")
        A(f"s_lshr_b32 s{sT0}, s{sWAVE}, 1")
        A(f"s_and_b32 s{sT1}, s{sWAVE}, 1")
        vSW = vAUX + 3
        A(f"v_and_b32 {v(vT)}, 1, {v(vLANE)}")
        A(f"v_lshlrev_b32 {v(vSW)}, 6, {v(vT)}")
        A(f"v_and_b32 {v(vT)}, 4, {v(vLANE)}")
        A(f"v_lshl_add_u32 {v(vSW)}, {v(vT)}, 3, {v(vSW)}")
        A(f"v_and_b32 {v(vT)}, 8, {v(vLANE)}")
        A(f"v_lshl_add_u32 {v(vSW)}, {v(vT)}, 4, {v(vSW)}")
        A(f"v_lshrrev_b32 {v(vT)}, 5, {v(vLANE)}")
        A(f"v_lshl_add_u32 {v(vSW)}, {v(vT)}, 4, {v(vSW)}")
        A(f"s_lshl_b32 s{sTMP}, s{sWAVE}, 2")
        A(f"s_add_u32 s{sTMP}, s{sTMP}, {L_RED1}")
        A(f"v_add_u32 {v(vSW)}, s{sTMP}, {v(vSW)}")
        A(f"v_and_b32 {v(vT)}, 7, {v(vLANE)}")
        A(f"v_lshlrev_b32 {v(vRA)}, 4, {v(vT)}")
        A(f"v_add_u32 {v(vRA)}, {L_RED1}, {v(vRA)}")
        A(f"s_mul_i32 s{sTMP}, s{sT0}, {PC}")
        A(f"s_lshl_b32 s{sTMP + 1}, s{sT1}, 7")
        A(f"s_add_u32 s{sTMP}, s{sTMP}, s{sTMP + 1}")
        A(f"s_add_u32 s{sTMP}, s{sTMP}, {L_P + 4 * 26}")
        A(f"v_lshlrev_b32 {v(vT)}, 3, {v(vGq)}")
        A(f"v_sub_u32 {v(vT)}, {v(vJ)}, {v(vT)}")
        A(f"v_lshl_add_u32 {v(vAA)}, {v(vT)}, 2, s{sTMP}")
        for m in range(1, 8):
            A(f"v_add_u32 {v(vAA + m)}, {1024 * m}, {v(vAA)}")
        A(f"s_mul_i32 s{sTMP}, s{sT0}, {UC}")
        A(f"s_lshl_b32 s{sTMP + 1}, s{sT1}, 6")
        A(f"s_sub_u32 s{sTMP}, s{sTMP}, s{sTMP + 1}")
        A(f"s_add_u32 s{sTMP}, s{sTMP}, {L_U + 64}")
        A(f"v_lshl_add_u32 {v(vT)}, {v(vJ)}, 1, {v(vGq)}")
        A(f"v_lshl_add_u32 {v(vBA)}, {v(vT)}, 4, s{sTMP}")
        A(f"v_lshl_add_u32 {v(vT)}, {v(vJ)}, 2, {v(vGq)}")
        A(f"v_lshrrev_b32 {v(vT + 1)}, 3, {v(vT)}")
        A(f"v_add_u32 {v(vT)}, {v(vT)}, {v(vT + 1)}")
        A(f"s_mul_i32 s{sTMP}, s{sWAVE}, {8 * TBS}")
        A(f"v_lshl_add_u32 {v(vEW)}, {v(vT)}, 4, s{sTMP}")
        A(f"v_lshrrev_b32 {v(vT + 1)}, 3, {v(vLANE)}")
        A(f"v_add_u32 {v(vT)}, {v(vLANE)}, {v(vT + 1)}")
        A(f"s_mul_i32 s{sTMP}, s{sWAVE}, {2 * TBS}")
        A(f"v_lshl_add_u32 {v(vER)}, {v(vT)}, 4, s{sTMP}")
        vKA0, vKA1, vKB, vPW0, vPW1 = vWG, vWG + 1, vWG + 2, vWG + 3, vWG + 4
        vg, vr = vT, vT + 1
        A(f"v_lshrrev_b32 {v(vg)}, 2, {v(vJ)}")
        A(f"v_and_b32 {v(vr)}, 3, {v(vJ)}")
        A(f"s_cmp_eq_u32 s{sT1}, 0")
        A("s_cbranch_scc0 L_rows_hi")
        A(f"v_mov_b32 {v(vKA0)}, {v(vJ)}")
        A(f"v_lshl_add_u32 {v(vKA1)}, {v(vg)}, 1, {v(vr)}")
        A(f"v_add_u32 {v(vKA1)}, 16, {v(vKA1)}")
        A(f"v_add_u32 {v(vT + 2)}, -4, {v(vJ)}")
        A(f"v_and_b32 {v(vT + 2)}, 15, {v(vT + 2)}")
        A(f"v_cmp_eq_u32 vcc, 3, {v(vr)}")
        A(f"v_cndmask_b32 {v(vKA1)}, {v(vKA1)}, {v(vT + 2)}, vcc")
        A(f"v_lshl_add_u32 {v(vPW0)}, {v(vJ)}, 2, {v(vGq)}")
        A(f"v_lshlrev_b32 {v(vPW0)}, 4, {v(vPW0)}")
        A(f"v_add_u32 {v(vPW1)}, 1024, {v(vPW0)}")
        A("s_branch L_rows_done")
        A("L_rows_hi:")
        A(f"v_lshrrev_b32 {v(vT + 2)}, 1, {v(vg)}")
        A(f"v_lshl_add_u32 {v(vKA0)}, {v(vg)}, 1, {v(vr)}")
        A(f"v_add3_u32 {v(vKA0)}, {v(vKA0)}, {v(vT + 2)}, 25")
        A(f"v_sub_u32 {v(vKA1)}, {v(vJ)}, {v(vg)}")
        A(f"v_add_u32 {v(vKA1)}, 35, {v(vKA1)}")
        A(f"v_lshrrev_b32 {v(vT + 2)}, 1, {v(vGq)}")
        A(f"v_lshl_add_u32 {v(vPW0)}, {v(vT + 2)}, 4, {v(vJ)}")
        A(f"v_and_b32 {v(vT + 2)}, 1, {v(vGq)}")
        A(f"v_lshl_add_u32 {v(vPW0)}, {v(vPW0)}, 1, {v(vT + 2)}")
        A(f"v_lshlrev_b32 {v(vPW0)}, 5, {v(vPW0)}")
        A(f"v_add_u32 {v(vPW0)}, 2048, {v(vPW0)}")
        A(f"v_lshlrev_b32 {v(vPW1)}, 6, {v(vLANE)}")
        A(f"v_add_u32 {v(vPW1)}, 4096, {v(vPW1)}")
        A("L_rows_done:")
        A(f"s_mul_i32 s{sTMP}, s{sT0}, {PC}")
        A(f"s_add_u32 s{sTMP}, s{sTMP}, {L_P + 64}")
        A(f"v_add_u32 {v(vPW0)}, s{sTMP}, {v(vPW0)}")
        A(f"v_add_u32 {v(vPW1)}, s{sTMP}, {v(vPW1)}")
        A(f"s_mul_i32 s{sTMP}, s{sT0}, {TABC}")
        A(f"v_lshl_add_u32 {v(vT + 2)}, {v(vGq)}, 4, s{sTMP}")
        A(f"s_movk_i32 s{sTMP + 1}, {ROWB}")
        A(f"v_mad_u32_u24 {v(vKA0)}, {v(vKA0)}, s{sTMP + 1}, {v(vT + 2)}")
        A(f"v_mad_u32_u24 {v(vKA1)}, {v(vKA1)}, s{sTMP + 1}, {v(vT + 2)}")
        A(f"v_mad_u32_u24 {v(vKB)}, {v(vJ)}, s{sTMP + 1}, {v(vT + 2)}")
        A(f"s_lshl_b32 s{sTMP + 1}, s{sT1}, 8")
        A(f"s_add_u32 m0, s{sTMP}, s{sTMP + 1}")

        V = [K + i for i in range(8)]
        A(f"s_waitcnt vmcnt({NYOUNG})")
        self.stamp("x")
        for r in range(4):
            A(f"v_dot2_f32_bf16 {v(V[r])}, {v(vX + 2 * r)}, s{sONES}, 0")
        for r in range(4):
            A(f"v_dot2_f32_bf16 {v(V[4 + r])}, {v(vX + 2 * r)}, {v(vX + 2 * r)}, 0")
        for r in range(4):
            A(f"v_dot2_f32_bf16 {v(V[r])}, {v(vX + 2 * r + 1)}, s{sONES}, {v(V[r])}")
        for r in range(4):
            A(f"v_dot2_f32_bf16 {v(V[4 + r])}, {v(vX + 2 * r + 1)}, {v(vX + 2 * r + 1)}, {v(V[4 + r])}")
        self.reduce8(V, K + 8)
        A(f"ds_write_b32 {v(vSW)}, {v(V[0])}")
        A("s_waitcnt vmcnt(0) lgkmcnt(0)")
        A("s_barrier")
        A(f"ds_read_b128 {v(K, 4)}, {v(vRA)}")
        A(f"ds_read_b128 {v(K + 4, 4)}, {v(vRA)} offset:128")
        A(f"s_add_u32 s{sG}, s{sG}, 0x9e3779b9")
        A(f"v_mov_b32 {v(K + 8)}, s{sG}")
        A(f"v_add_u32 {v(K + 9)}, {W_FLAG - W_KEY}, {v(vAUX + 2)}")
        A(f"s_cmp_eq_u32 s{sWAVE}, 0")
        A("s_cselect_b64 exec, 1, 0")
        A(f"global_store_dword {v(K + 9)}, {v(K + 8)}, {sp(sWS)} sc1")
        A("s_mov_b64 exec, -1")
        A(f"s_mov_b64 vcc, {sp(sODD)}")
        A("s_waitcnt lgkmcnt(0)")
        vNM, vRI = K + 16, K + 20
        self.row_stats(K, K + 4, K + 10, K + 11, K + 12)
        self.spread(K + 10, vNM, K + 24)
        Dd = K + 32
        for c in range(4):
            for r in range(4):
                A(f"v_dot2_f32_bf16 {v(Dd + 4 * c + r)}, {v(vX + 2 * r + (c >> 1))}, s{sSELHI if c & 1 else sSELLO}, {v(vNM + r)}")
        self.spread(K + 11, vRI, K + 24)
        Pk = K + 48
        for k in range(8):
            A(f"v_cvt_pk_bf16_f32 {v(Pk + k)}, {v(Dd + 2 * k)}, {v(Dd + 2 * k + 1)}")
        for k in range(8):
            A(f"v_lshlrev_b32 {v(Dd + 2 * k)}, 16, {v(Pk + k)}")
            A(f"v_and_b32 {v(Dd + 2 * k + 1)}, s{sMASK}, {v(Pk + k)}")
        for k in range(8):
            A(f"v_pk_mul_f32 {v(Dd + 2 * k, 2)}, {v(Dd + 2 * k, 2)}, {v(vRI + 2 * (k & 1), 2)}")
        for k in range(4):
            A(f"v_cvt_pk_bf16_f32 {v(vU + k)}, {v(Dd + 2 * k)}, {v(Dd + 2 * k + 1)}")
        A(f"global_store_dwordx4 {v(vREG)}, {v(vU, 4)}, {sp(sWS)} offset:-4096 sc1")
        for k in range(4, 8):
            A(f"v_cvt_pk_bf16_f32 {v(vU + k)}, {v(Dd + 2 * k)}, {v(Dd + 2 * k + 1)}")
        A(f"global_store_dwordx4 {v(vREG)}, {v(vU + 4, 4)}, {sp(sWS)} sc1")
        self.stamp("x1st")

        L2E = 1.4426950408889634
        l2e_hi = struct.unpack("<f", struct.pack("<f", L2E))[0]
        l2e_lo = L2E - l2e_hi
        a, b = K, K + 2
        A(f"s_lshl_b32 s{sTMP}, s{sDT}, 16")
        A(f"s_and_b32 s{sTMP + 1}, s{sDT}, s{sMASK}")
        A(f"s_cmp_lt_u32 s{sWAVE}, 2")
        A(f"s_cselect_b32 s{sDT}, s{sTMP}, s{sTMP + 1}")
        A(f"s_mov_b32 s{sE}, {hex(f2u(l2e_hi))}")
        A(f"s_mov_b32 s{sE + 1}, {hex(f2u(l2e_lo))}")
        A(f"v_lshlrev_b32 {v(a)}, 16, {v(vP)}")
        A(f"v_mov_b32 {v(a + 1)}, s{sDT}")
        A(f"v_pk_mul_f32 {v(b, 2)}, {v(a, 2)}, {sp(sE)} op_sel_hi:[1,0]")
        A(f"v_pk_fma_f32 {v(b + 2, 2)}, {v(a, 2)}, {sp(sE)}, {v(b, 2)} op_sel_hi:[1,0,1] neg_lo:[0,0,1] neg_hi:[0,0,1]")
        A(f"v_exp_f32 {v(b)}, {v(b)}")
        A(f"v_exp_f32 {v(b + 1)}, {v(b + 1)}")
        A(f"v_pk_fma_f32 {v(b + 2, 2)}, {v(a, 2)}, {sp(sE)}, {v(b + 2, 2)} op_sel:[0,1,0] op_sel_hi:[1,1,1]")
        A(f"v_mul_f32 {v(b + 2)}, {hex(f2u(0.6931471805599453))}, {v(b + 2)}")
        A(f"v_mul_f32 {v(b + 3)}, {hex(f2u(0.6931471805599453))}, {v(b + 3)}")
        A(f"v_pk_fma_f32 {v(b, 2)}, {v(b, 2)}, {v(b + 2, 2)}, {v(b, 2)}")
        A(f"v_cvt_pk_bf16_f32 {v(a)}, {v(b)}, {v(b + 1)}")
        vdt, va2, vph = K + 6, K + 7, K + 8
        A(f"v_and_b32 {v(vdt)}, s{sMASK}, {v(a)}")
        A(f"v_lshlrev_b32 {v(va2)}, 16, {v(a)}")
        A(f"v_lshlrev_b32 {v(vph)}, 16, {v(vP + 1)}")
        A(f"v_mul_f32 {v(va2)}, {v(va2)}, {v(vdt)}")
        A(f"v_mul_f32 {v(vph)}, {v(vph)}, {v(vdt)}")
        A(f"v_mul_f32 {v(va2)}, {hex(f2u(-l2e_hi))}, {v(va2)}")
        A(f"v_mul_f32 {v(vph)}, 0.15915494, {v(vph)}")
        Wp = {p: K + 10 + 2 * p for p in range(1, 17)}
        Zp = {p: K + 42 + 2 * p for p in range(1, 8)}
        G = [K + 58, K + 60]
        TT = [K + 62, K + 64, K + 66, K + 68]
        RR = [K + 70, K + 72, K + 74, K + 76]
        CV = K + 80
        A(f"v_add_f32 {v(vdt)}, {v(vdt)}, {v(vdt)}")
        A(f"v_lshlrev_b32 {v(G[0])}, 16, {v(vP + 2)}")
        A(f"v_lshlrev_b32 {v(G[0] + 1)}, 16, {v(vP + 3)}")
        A(f"v_mul_f32 {v(G[0])}, {v(G[0])}, {v(vdt)}")
        A(f"v_mul_f32 {v(G[0] + 1)}, {v(G[0] + 1)}, {v(vdt)}")
        for n, (dst, sc) in enumerate(((Wp[1], 1.0), (Wp[16], 16.0), (Zp[1], 256.0))):
            t = TT[n]
            if sc == 1.0:
                A(f"v_exp_f32 {v(t)}, {v(va2)}")
                A(f"v_fract_f32 {v(t + 1)}, {v(vph)}")
            else:
                A(f"v_mul_f32 {v(t)}, {hex(f2u(sc))}, {v(va2)}")
                A(f"v_mul_f32 {v(t + 1)}, {hex(f2u(sc))}, {v(vph)}")
                A(f"v_exp_f32 {v(t)}, {v(t)}")
                A(f"v_fract_f32 {v(t + 1)}, {v(t + 1)}")
            A(f"v_cos_f32 {v(dst)}, {v(t + 1)}")
            A(f"v_sin_f32 {v(dst + 1)}, {v(t + 1)}")
        for n, dst in enumerate((Wp[1], Wp[16], Zp[1])):
            A(f"v_pk_mul_f32 {v(dst, 2)}, {v(dst, 2)}, {v(TT[n], 2)} op_sel_hi:[1,0]")
        jobs = [(1, Wp[1], None, None, 0), (16, Zp[1], None, None, 0), (47, G[0], None, None, 1)]
        wj = []
        for p in range(2, 16):
            hb = 1 << (p.bit_length() - 1)
            x, y = (p // 2, p // 2) if hb == p else (hb, p - hb)
            wj.append((p, Wp[p], Wp[x], Wp[y], 0))
        gj = [(47 + j, G[j & 1], G[(j - 1) & 1], Wp[16], 1) for j in range(1, 16)]
        zrow = {2: 25, 3: 30, 4: 35, 5: 38, 6: 41, 7: 44}
        zj = []
        for p in range(2, 8):
            hb = 1 << (p.bit_length() - 1)
            x, y = (p // 2, p // 2) if hb == p else (hb, p - hb)
            zj.append((zrow[p], Zp[p], Zp[x], Zp[y], 0))
        tj = [(16 + k, None, Zp[1], Wp[2 * k], 0) for k in range(1, 9)]
        for z in (2, 3):
            tj += [(zrow[z] + k, None, Zp[z], Wp[4 * k], 0) for k in range(1, 5)]
        for z in (4, 5, 6, 7):
            tj += [(zrow[z] + k, None, Zp[z], Wp[8 * k], 0) for k in range(1, 3)]
        first = []
        for i in range(max(len(wj), len(gj), len(zj))):
            for q in (wj, gj, zj):
                if i < len(q):
                    first.append(q[i])
        jobs += first + tj
        A(f"v_mov_b32 {v(CV + 15)}, s{sSELLO}")
        pend = [(0, CV + 15)]
        slot = 0
        flag_at = o.get("flag_at", 3)
        nb = 0
        for n, (row, dst, x, y, conj) in enumerate(jobs):
            if x is not None:
                if dst is None:
                    dst = RR[n & 3]
                for ins in self.cmul(dst, x, y, TT[n & 3]):
                    A(ins)
            A(f"v_cvt_pk_bf16_f32 {v(CV + slot)}, {v(dst)}, {'-' if conj else ''}{v(dst + 1)}")
            pend.append((row, CV + slot))
            slot = (slot + 1) % 15
            if len(pend) >= 6 or n == len(jobs) - 1:
                for row_, reg in pend:
                    A(f"ds_write_addtid_b32 {v(reg)} offset:{row_ * ROWB}")
                pend = []
                nb += 1
                if nb == flag_at:
                    A(f"v_lshrrev_b32 {v(vT)}, 1, v0")
                    A(f"v_lshlrev_b32 {v(vT + 1)}, 5, {v(vT)}")
                    A(f"v_add_u32 {v(vT + 1)}, {W_FLAG + 4096}, {v(vT + 1)}")
                    fl = [f"global_load_dword {v(vT + 2)}, {v(vT + 1)}, {sp(sWS)} offset:-4096 sc1",
                          f"global_load_dword {v(vT + 3)}, {v(vT + 1)}, {sp(sWS)} sc1"]
                    for l in fl:
                        A(l)
                    A(f"s_and_b32 s{sTMP}, s{sL}, 1")
                    A(f"s_lshl_b32 s{sTMP}, s{sTMP}, 12")
                    A(f"s_lshr_b32 s{sTMP + 1}, s{sL}, 1")
                    A(f"s_lshl_b32 s{sTMP + 1}, s{sTMP + 1}, 5")
                    A(f"s_add_u32 s{sTMP}, s{sTMP}, s{sTMP + 1}")
                    A(f"s_add_u32 s{sTMP}, s{sTMP}, {W_REG + O_X1}")
                    A(f"v_mul_u32_u24 {v(vAUX)}, {RS}, {v(vT)}")
                    A(f"v_and_b32 {v(vT)}, 1, v0")
                    A(f"v_lshl_add_u32 {v(vAUX)}, {v(vT)}, 4, {v(vAUX)}")
                    A(f"v_add_u32 {v(vAUX)}, s{sTMP}, {v(vAUX)}")
                    A(f"v_add_u32 {v(vAUX + 1)}, {128 * RS}, {v(vAUX)}")
        self.stamp("kgen1")
        A("s_waitcnt vmcnt(0)")
        self.poll("flag", fl, [f"v_xor_b32 {v(vT + 4)}, s{sG}, {v(vT + 2)}",
                               f"v_xor_b32 {v(vT + 5)}, s{sG}, {v(vT + 3)}",
                               f"v_or_b32 {v(vT + 4)}, {v(vT + 4)}, {v(vT + 5)}",
                               f"v_cmp_ne_u32 vcc, 0, {v(vT + 4)}"])
        vY = vACC + 24
        x1l = [f"global_load_dwordx4 {v(vY, 4)}, {v(vAUX)}, {sp(sWS)} sc1",
               f"global_load_dwordx4 {v(vY + 4, 4)}, {v(vAUX + 1)}, {sp(sWS)} sc1"]
        for l in x1l:
            A(l)
        self.stamp("flag")
        A("s_waitcnt lgkmcnt(0)")
        A("s_barrier")
        fB, fA0, fA1 = K, K + 32, K + 64
        for s in range(8):
            A(f"ds_read_b128 {v(fB + 4 * s, 4)}, {v(vKB)} offset:{47 * ROWB + 64 * s}")
            A(f"ds_read_b128 {v(fA0 + 4 * s, 4)}, {v(vKA0)} offset:{64 * s}")
            A(f"ds_read_b128 {v(fA1 + 4 * s, 4)}, {v(vKA1)} offset:{64 * s}")
            if s == 3:
                break
        D0, D1 = vACC, vACC + 4
        for s in range(8):
            if s + 4 < 8:
                s2 = s + 4
                A(f"s_waitcnt lgkmcnt(9)")
            else:
                A(f"s_waitcnt lgkmcnt({3 * (7 - s)})")
            c0 = "0" if s == 0 else v(D0, 4)
            c1 = "0" if s == 0 else v(D1, 4)
            A(f"v_mfma_f32_16x16x32_bf16 {v(D0, 4)}, {v(fA0 + 4 * s, 4)}, {v(fB + 4 * s, 4)}, {c0}")
            A(f"v_mfma_f32_16x16x32_bf16 {v(D1, 4)}, {v(fA1 + 4 * s, 4)}, {v(fB + 4 * s, 4)}, {c1}")
            if s + 4 < 8:
                A(f"ds_read_b128 {v(fB + 4 * s2, 4)}, {v(vKB)} offset:{47 * ROWB + 64 * s2}")
                A(f"ds_read_b128 {v(fA0 + 4 * s2, 4)}, {v(vKA0)} offset:{64 * s2}")
                A(f"ds_read_b128 {v(fA1 + 4 * s2, 4)}, {v(vKA1)} offset:{64 * s2}")
        E = K + 96
        A(f"s_bitcmp1_b32 s{sWAVE}, 0")
        A(f"v_cmp_eq_u32 vcc, 0, {v(vLANE)}")
        A("s_nop 5")
        A("s_cbranch_scc1 L_exp_hi")
        A(f"v_mov_b32_dpp {v(D1 + 3)}, {v(D1 + 3)} row_ror:1 row_mask:0x1 bank_mask:0xf")
        A(f"v_cvt_pk_bf16_f32 {v(E + 1)}, {v(D0 + 1)}, {v(D0)}")
        A(f"v_cvt_pk_bf16_f32 {v(E + 2)}, {v(D0 + 2)}, {v(D0 + 1)}")
        A(f"v_cvt_pk_bf16_f32 {v(E + 3)}, {v(D0 + 3)}, {v(D0 + 2)}")
        A(f"v_cndmask_b32 {v(E + 8)}, {v(D1 + 3)}, 0, vcc")
        A(f"v_cndmask_b32 {v(E + 9)}, {v(D1)}, {v(D1 + 3)}, vcc")
        A(f"v_cvt_pk_bf16_f32 {v(E)}, {v(D0)}, {v(E + 8)}")
        A(f"v_cvt_pk_bf16_f32 {v(E + 4)}, {v(D1)}, {v(E + 9)}")
        A(f"v_cvt_pk_bf16_f32 {v(E + 5)}, {v(D1)}, {v(D1)}")
        A(f"v_cvt_pk_bf16_f32 {v(E + 6)}, {v(D1 + 1)}, {v(D1)}")
        A(f"v_cvt_pk_bf16_f32 {v(E + 7)}, {v(D1 + 2)}, {v(D1 + 1)}")
        A(f"ds_write_b128 {v(vPW0)}, {v(E, 4)}")
        A(f"ds_write_b128 {v(vPW1)}, {v(E + 4, 4)}")
        A("s_branch L_exp_done")
        A("L_exp_hi:")
        seq2 = ["aa", "aa", "aa", "ba", "bb", "bb", "cb", "cc"]
        seq3 = ["aa", "aa", "aa", "aa", "aa", "ba", "bb", "bb", "bb", "bb", "cb", "cc", "cc", "cc"]
        ix = {"a": 0, "b": 1, "c": 2}
        for k, s in enumerate(seq2):
            A(f"v_cvt_pk_bf16_f32 {v(E + k)}, {v(D0 + ix[s[0]])}, {v(D0 + ix[s[1]])}")
        A(f"ds_write_b128 {v(vPW0)}, {v(E, 4)}")
        A(f"ds_write_b128 {v(vPW0)}, {v(E + 4, 4)} offset:16")
        for k, s in enumerate(seq3):
            A(f"v_cvt_pk_bf16_f32 {v(E + 8 + k)}, {v(D1 + ix[s[0]])}, {v(D1 + ix[s[1]])}")
        for k, w in enumerate((0, 4, 6, 10)):
            A(f"ds_write_b128 {v(vPW1)}, {v(E + 8 + w, 4)} offset:{16 * k}")
        A("L_exp_done:")
        A("s_waitcnt lgkmcnt(0)")
        A("s_barrier")
        self.stamp("kgen2")

        def rdA(buf, rho, m):
            return [f"ds_read2_b32 {v(buf + 4 * m, 2)}, {v(vAA + m)} offset0:{64 * rho + 6} offset1:{64 * rho + 4}",
                    f"ds_read2_b32 {v(buf + 4 * m + 2, 2)}, {v(vAA + m)} offset0:{64 * rho + 2} offset1:{64 * rho}"]

        def rdB(buf, rho, n):
            return [f"ds_read_b128 {v(buf + 4 * n, 4)}, {v(vBA)} offset:{128 * (3 - rho) + 512 * (7 - n)}"]

        for m in range(8):
            for l in rdA(vA0, 0, m):
                A(l)
        for m in range(8):
            for l in rdA(vA1, 1, m):
                A(l)
        A(f"s_mul_i32 s{sF}, s{sXCD}, 14")
        A(f"s_add_u32 s{sF}, s{sF}, s{sPOS}")
        A(f"s_bitcmp1_b32 s{sWAVE}, 0")
        A(f"s_cselect_b64 {sp(sWSEL)}, {sp(sWU)}, {sp(sWG)}")
        A(f"s_cmp_lt_u32 s{sPOS}, 14")
        A(f"s_cselect_b32 s{sF}, s{sF}, 0")
        A(f"s_cselect_b32 s{sTMP}, -1, 0")
        A(f"s_lshr_b32 s{sTMP + 1}, s{sWAVE}, 1")
        A(f"s_mul_i32 s{sTMP + 1}, s{sTMP + 1}, {256 * 3584}")
        A(f"s_lshl_b32 s{sTMP + 2}, s{sF}, 5")
        A(f"s_add_u32 s{sTMP + 1}, s{sTMP + 1}, s{sTMP + 2}")
        A(f"v_lshrrev_b32 {v(vT)}, 1, {v(vLANE)}")
        A(f"v_mul_u32_u24 {v(vT)}, {8 * 3584}, {v(vT)}")
        A(f"v_and_b32 {v(vT + 1)}, 1, {v(vLANE)}")
        A(f"v_lshl_add_u32 {v(vT)}, {v(vT + 1)}, 4, {v(vT)}")
        A(f"v_add_u32 {v(vT)}, s{sTMP + 1}, {v(vT)}")
        A(f"v_and_b32 {v(vT)}, s{sTMP}, {v(vT)}")
        A(f"v_add_u32 {v(vT + 2)}, {7 * 3584}, {v(vT)}")
        A(f"v_add_u32 {v(vT + 1)}, {4 * 3584}, {v(vT)}")
        A(f"v_add_u32 {v(vT)}, 3584, {v(vT)}")
        A(f"s_lshl_b32 s{sTMP + 1}, s{sF}, 14")
        A(f"s_add_u32 s{sTMP + 1}, s{sTMP + 1}, 4096")
        A(f"v_and_b32 {v(vT + 3)}, s{sTMP}, v0")
        A(f"v_lshl_add_u32 {v(vT + 3)}, {v(vT + 3)}, 2, s{sTMP + 1}")
        A(f"v_add_u32 {v(vT + 4)}, 8192, {v(vT + 3)}")
        wl = []
        for k in range(8):
            base, off = (vT + (k // 3), (k % 3 - 1) * 3584)
            wl.append(f"global_load_dwordx4 {v(vWG + 4 * k, 4)}, {v(base)}, {sp(sWSEL)} offset:{off}")
        for k in range(16):
            wl.append(f"global_load_dword {v(vWD + k)}, {v(vT + 3 + (k >> 3))}, {sp(sWD)} offset:{((k & 7) - 4) * 1024}")
        A(f"v_lshlrev_b32 {v(vT + 5)}, 3, v0")
        A(f"v_add_u32 {v(vT + 5)}, {L_U + 480}, {v(vT + 5)}")
        A("s_waitcnt vmcnt(0)")
        chk8 = [f"v_max3_u32 {v(vT + 6)}, {v(vY)}, {v(vY + 1)}, {v(vY + 2)}",
                f"v_max3_u32 {v(vT + 7)}, {v(vY + 3)}, {v(vY + 4)}, {v(vY + 5)}",
                f"v_max3_u32 {v(vT + 6)}, {v(vT + 6)}, {v(vY + 6)}, {v(vY + 7)}",
                f"v_max_u32 {v(vT + 6)}, {v(vT + 6)}, {v(vT + 7)}",
                f"v_cmp_eq_u32 vcc, -1, {v(vT + 6)}"]
        self.poll("x1", x1l, chk8)
        self.stamp("x1ld")
        A(f"ds_write2st64_b64 {v(vT + 5)}, {v(vY, 2)}, {v(vY + 2, 2)} offset0:0 offset1:9")
        A(f"ds_write2st64_b64 {v(vT + 5)}, {v(vY + 4, 2)}, {v(vY + 6, 2)} offset0:4 offset1:13")
        A("s_waitcnt lgkmcnt(0)")
        A("s_barrier")

        bufA, bufB = [vA0, vA1], [vB0, vB1]
        for n in range(7, -1, -1):
            for l in rdB(vB0, 0, n):
                A(l)
        A(f"s_or_b32 s{sTMP}, s{sL}, s{sWAVE}")
        A(f"s_cmp_eq_u32 s{sTMP}, 0")
        A("s_cselect_b64 exec, 1, 0")
        A(f"v_mov_b32 {v(vT + 6)}, s{sG}")
        A(f"v_mov_b32 {v(vT + 7)}, 0")
        A(f"global_store_dword {v(vT + 7)}, {v(vT + 6)}, {sp(sWS)} sc1")
        A("s_mov_b64 exec, -1")
        started = set()
        for rho in range(4):
            a_, b_ = bufA[rho & 1], bufB[rho & 1]
            order = [(n - 7 + tb, tb, n) for n in range(7, -1, -1) for tb in range(7 - n, 8)]
            fill = []
            if rho + 1 < 4:
                nb_ = bufB[(rho + 1) & 1]
                for n in range(7, -1, -1):
                    fill += rdB(nb_, rho + 1, n)
                if rho >= 1:
                    na_ = bufA[(rho + 1) & 1]
                    for m in range(8):
                        fill += rdA(na_, rho + 1, m)
            nw = {0: 8, 1: 4, 2: 4, 3: 8}[rho]
            wfill = [wl.pop(0) for _ in range(nw)]
            issued = 0
            seen = set()
            for i, (m, tb, n) in enumerate(order):
                if rho == 0 and n not in seen:
                    A(f"s_waitcnt lgkmcnt({min(15, n + issued)})")
                    seen.add(n)
                elif i == 0:
                    A("s_waitcnt lgkmcnt(0)")
                acc = v(vACC + 4 * tb, 4)
                c = acc if tb in started else "0"
                started.add(tb)
                A(f"v_mfma_f32_16x16x32_bf16 {acc}, {v(a_ + 4 * m, 4)}, {v(b_ + 4 * n, 4)}, {c}")
                if i >= 1 and fill:
                    A(fill.pop(0))
                    issued += 1
                if i % 4 == 2 and wfill:
                    A(wfill.pop(0))
            assert not fill and not wfill
        self.stamp("conv")
        for tb in range(8):
            A(f"ds_write_b128 {v(vEW)}, {v(vACC + 4 * tb, 4)} offset:{tb * TBS}")
        A(f"s_mul_i32 s{sTMP}, s{sL}, {RS}")
        A(f"s_lshl_b32 s{sTMP + 1}, s{sWAVE}, 11")
        A(f"s_add_u32 s{sTMP}, s{sTMP}, s{sTMP + 1}")
        A(f"s_add_u32 s{sTMP}, s{sTMP}, {W_REG + O_X2}")
        A(f"v_lshl_add_u32 {v(vT)}, {v(vLANE)}, 4, s{sTMP}")
        A("s_waitcnt lgkmcnt(0)")
        A("s_barrier")
        for i in range(2):
            for s in range(4):
                A(f"ds_read_b128 {v(K + 16 * i + 4 * s, 4)}, {v(vER)} offset:{s * 8 * TBS + i * TBS}")
        for i in range(2):
            A(f"s_waitcnt lgkmcnt({4 * (1 - i)})")
            b0 = K + 16 * i
            for c in range(2):
                for h in range(2):
                    A(f"v_pk_add_f32 {v(b0 + 8 * c + 2 * h, 2)}, {v(b0 + 8 * c + 2 * h, 2)}, {v(b0 + 8 * c + 4 + 2 * h, 2)}")
            for c in range(2):
                for h in range(2):
                    A(f"v_cvt_pk_bf16_f32 {v(K + 32 + 4 * i + 2 * c + h)}, {v(b0 + 8 * c + 2 * h)}, {v(b0 + 8 * c + 2 * h + 1)}")
            A(f"global_store_dwordx4 {v(vT)}, {v(K + 32 + 4 * i, 4)}, {sp(sWS)} offset:{1024 * i} sc1")
        self.stamp("x2st")

        Tt, Xf = K + 40, K + 56
        Df = K + 72
        A(f"v_lshlrev_b32 {v(Df)}, 16, {v(vD)}")
        A(f"v_and_b32 {v(Df + 1)}, s{sMASK}, {v(vD)}")
        A(f"v_lshlrev_b32 {v(Df + 2)}, 16, {v(vD + 1)}")
        A(f"v_and_b32 {v(Df + 3)}, s{sMASK}, {v(vD + 1)}")
        for k in range(8):
            A(f"v_lshlrev_b32 {v(Tt + 2 * k)}, 16, {v(vU + k)}")
            A(f"v_and_b32 {v(Tt + 2 * k + 1)}, s{sMASK}, {v(vU + k)}")
        for k in range(8):
            c = k >> 1
            sel = "op_sel:[0,1] op_sel_hi:[1,1]" if c & 1 else "op_sel_hi:[1,0]"
            A(f"v_pk_mul_f32 {v(Tt + 2 * k, 2)}, {v(Tt + 2 * k, 2)}, {v(Df + (c & 2), 2)} {sel}")
        for k in range(8):
            A(f"v_cvt_pk_bf16_f32 {v(Xf + k)}, {v(Tt + 2 * k)}, {v(Tt + 2 * k + 1)}")
        for k in range(8):
            A(f"v_lshlrev_b32 {v(Tt + 2 * k)}, 16, {v(Xf + k)}")
            A(f"v_and_b32 {v(Tt + 2 * k + 1)}, s{sMASK}, {v(Xf + k)}")
        for r in range(4):
            for c in range(4):
                src = v(vX + 2 * r + (c >> 1))
                if c & 1:
                    A(f"v_and_b32 {v(Xf + 4 * c + r)}, s{sMASK}, {src}")
                else:
                    A(f"v_lshlrev_b32 {v(Xf + 4 * c + r)}, 16, {src}")
        A(f"v_and_b32 {v(vT)}, 0xfe, v0")
        A(f"v_mul_u32_u24 {v(vAUX)}, {RS}, {v(vT)}")
        A(f"v_and_b32 {v(vT)}, 1, v0")
        A(f"v_lshl_add_u32 {v(vAUX)}, {v(vT)}, 4, {v(vAUX)}")
        A(f"s_lshl_b32 s{sTMP}, s{sL}, 5")
        A(f"s_add_u32 s{sTMP}, s{sTMP}, {W_REG + O_X2}")
        A(f"v_add_u32 {v(vAUX)}, s{sTMP}, {v(vAUX)}")
        A(f"v_add_u32 {v(vAUX + 1)}, {RS}, {v(vAUX)}")
        A("s_waitcnt vmcnt(0)")
        self.stamp("x2dr")
        for l in x1l:
            A(l)
        A(f"s_mov_b32 s{sRP0}, 0x05040100")
        A(f"s_mov_b32 s{sRP1}, 0x07060302")
        WGp = K + 88
        for kp in range(4):
            for d in range(4):
                lo, hi = vWG + 8 * kp + d, vWG + 8 * kp + 4 + d
                A(f"v_perm_b32 {v(WGp + 8 * kp + 2 * d)}, {v(hi)}, {v(lo)}, s{sRP0}")
                A(f"v_perm_b32 {v(WGp + 8 * kp + 2 * d + 1)}, {v(hi)}, {v(lo)}, s{sRP1}")
        WDp = vWG
        for kp in range(8):
            lo, hi = vWD + 2 * kp, vWD + 2 * kp + 1
            A(f"v_perm_b32 {v(WDp + 2 * kp)}, {v(hi)}, {v(lo)}, s{sRP0}")
            A(f"v_perm_b32 {v(WDp + 2 * kp + 1)}, {v(hi)}, {v(lo)}, s{sRP1}")
        A("s_waitcnt vmcnt(0)")
        self.poll("x2", x1l, chk8)
        self.stamp("x2ld")

        for k in range(8):
            A(f"v_dot2_f32_bf16 {v(Tt + 2 * k)}, {v(vY + k)}, s{sSELLO}, {v(Tt + 2 * k)}")
            A(f"v_dot2_f32_bf16 {v(Tt + 2 * k + 1)}, {v(vY + k)}, s{sSELHI}, {v(Tt + 2 * k + 1)}")
        for k in range(8):
            A(f"v_cvt_pk_bf16_f32 {v(vY + k)}, {v(Tt + 2 * k)}, {v(Tt + 2 * k + 1)}")
        for k in range(8):
            A(f"v_dot2_f32_bf16 {v(Xf + 2 * k)}, {v(vY + k)}, s{sSELLO}, {v(Xf + 2 * k)}")
            A(f"v_dot2_f32_bf16 {v(Xf + 2 * k + 1)}, {v(vY + k)}, s{sSELHI}, {v(Xf + 2 * k + 1)}")
        vH = vX
        for r in range(4):
            for cp in range(2):
                A(f"v_cvt_pk_bf16_f32 {v(vH + 2 * r + cp)}, {v(Xf + 8 * cp + r)}, {v(Xf + 8 * cp + 4 + r)}")
        Rr = [K + 8 + i for i in range(4)]
        for cp in range(2):
            for r in range(4):
                A(f"v_dot2_f32_bf16 {v(V[r])}, {v(vH + 2 * r + cp)}, s{sONES}, {v(V[r]) if cp else 0}")
            for r in range(4):
                A(f"v_dot2_f32_bf16 {v(V[4 + r])}, {v(vH + 2 * r + cp)}, {v(vH + 2 * r + cp)}, {v(V[4 + r]) if cp else 0}")
            for r in range(4):
                A(f"v_dot2_f32_bf16 {v(Rr[r])}, {v(vH + 2 * r + cp)}, {v(vWR + cp)}, {v(Rr[r]) if cp else 0}")
        self.reduce8(V, K + 12)
        for i in range(4):
            A(f"v_add_f32_dpp {v(Rr[i])}, {v(Rr[i])}, {v(Rr[i])} row_ror:8 row_mask:0xf bank_mask:0xf")
        for i in range(2):
            A(f"v_add_f32_dpp {v(Rr[i])}, {v(Rr[i])}, {v(Rr[i])} row_shl:4 row_mask:0xf bank_mask:0x5")
        for i in range(2):
            A(f"v_add_f32_dpp {v(Rr[i])}, {v(Rr[i + 2])}, {v(Rr[i + 2])} row_shr:4 row_mask:0xf bank_mask:0xa")
        A(f"ds_write_b32 {v(vSW)}, {v(V[0])} offset:{L_RED2 - L_RED1}")
        A(f"v_permlane32_swap_b32 {v(Rr[0])}, {v(Rr[1])}")
        A(f"v_add_f32 {v(Rr[0])}, {v(Rr[0])}, {v(Rr[1])}")
        A(f"v_and_b32 {v(K + 13)}, 0xffffff7f, {v(vSW)}")
        A(f"v_add_f32_dpp {v(Rr[0])}, {v(Rr[0])}, {v(Rr[0])} quad_perm:[2,3,0,1] row_mask:0xf bank_mask:0xf")
        A(f"v_mov_b32 {v(K + 12)}, {v(Rr[0])}")
        A(f"v_permlane16_swap_b32 {v(Rr[0])}, {v(K + 12)}")
        A(f"v_add_f32 {v(Rr[0])}, {v(Rr[0])}, {v(K + 12)}")
        assert L_RED1 % 256 == 0
        A(f"ds_write_b32 {v(K + 13)}, {v(Rr[0])} offset:{L_RED2 - L_RED1 + 256}")
        A(f"v_mov_b32 {v(K + 14)}, {L_SUMW}")
        A("s_waitcnt lgkmcnt(0)")
        A("s_barrier")
        A(f"ds_read_b128 {v(K, 4)}, {v(vRA)} offset:{L_RED2 - L_RED1}")
        A(f"ds_read_b128 {v(K + 4, 4)}, {v(vRA)} offset:{L_RED2 - L_RED1 + 128}")
        A(f"ds_read_b128 {v(K + 8, 4)}, {v(vRA)} offset:{L_RED2 - L_RED1 + 256}")
        A(f"ds_read_b32 {v(K + 15)}, {v(K + 14)}")
        A(f"s_lshl_b32 s{sTMP}, s{sL}, 3")
        A(f"s_sub_u32 s{sTMP}, 2047, s{sTMP}")
        A(f"v_and_b32 {v(K + 14)}, 7, {v(vLANE)}")
        A(f"v_sub_u32 {v(K + 14)}, s{sTMP}, {v(K + 14)}")
        A(f"s_mov_b64 vcc, {sp(sODD)}")
        A("s_waitcnt lgkmcnt(2)")
        self.row_stats(K, K + 4, K + 12, K + 13, K + 28)
        A("s_waitcnt lgkmcnt(0)")
        A(f"v_pk_add_f32 {v(K + 8, 2)}, {v(K + 8, 2)}, {v(K + 10, 2)}")
        A(f"v_add_f32 {v(K + 8)}, {v(K + 8)}, {v(K + 9)}")
        A(f"v_fmac_f32 {v(K + 8)}, {v(K + 12)}, {v(K + 15)}")
        A(f"v_mul_f32 {v(K + 8)}, {v(K + 8)}, {v(K + 13)}")
        A(f"v_ashrrev_i32 {v(K + 9)}, 31, {v(K + 8)}")
        A(f"v_or_b32 {v(K + 9)}, 0x80000000, {v(K + 9)}")
        A(f"v_xor_b32 {v(K + 8)}, {v(K + 8)}, {v(K + 9)}")
        A(f"v_and_b32 {v(K + 8)}, 0xfffff800, {v(K + 8)}")
        A(f"v_or_b32 {v(K + 8)}, {v(K + 8)}, {v(K + 14)}")
        A(f"v_min_u32 {v(K + 8)}, -2, {v(K + 8)}")
        A(f"v_max_u32_dpp {v(K + 8)}, {v(K + 8)}, {v(K + 8)} quad_perm:[1,0,3,2] row_mask:0xf bank_mask:0xf")
        A(f"v_max_u32_dpp {v(K + 8)}, {v(K + 8)}, {v(K + 8)} quad_perm:[2,3,0,1] row_mask:0xf bank_mask:0xf")
        A(f"v_max_u32_dpp {v(K + 8)}, {v(K + 8)}, {v(K + 8)} row_half_mirror row_mask:0xf bank_mask:0xf")
        A(f"s_cmp_eq_u32 s{sWAVE}, 0")
        A("s_cselect_b64 exec, 1, 0")
        A(f"global_store_dword {v(vAUX + 2)}, {v(K + 8)}, {sp(sWS)} sc1")
        A("s_mov_b64 exec, -1")
        self.stamp("key")
        A(f"v_readfirstlane_b32 s{sBEST}, {v(K + 8)}")
        self.spread(K + 12, vNM, K + 24)
        Hf, Dd = Xf, Tt
        for r in range(4):
            for cp in range(2):
                A(f"v_lshlrev_b32 {v(Hf + 4 * r + 2 * cp)}, 16, {v(vH + 2 * r + cp)}")
                A(f"v_and_b32 {v(Hf + 4 * r + 2 * cp + 1)}, s{sMASK}, {v(vH + 2 * r + cp)}")
        self.spread(K + 13, vRI, K + 24)
        for k in range(8):
            r = k >> 1
            sel = "op_sel:[0,1] op_sel_hi:[1,1]" if r & 1 else "op_sel_hi:[1,0]"
            A(f"v_pk_add_f32 {v(Dd + 2 * k, 2)}, {v(Hf + 2 * k, 2)}, {v(vNM + (r & 2), 2)} {sel}")
        vX2 = vU
        for k in range(8):
            A(f"v_cvt_pk_bf16_f32 {v(vX2 + k)}, {v(Dd + 2 * k)}, {v(Dd + 2 * k + 1)}")
        for k in range(8):
            A(f"v_lshlrev_b32 {v(Dd + 2 * k)}, 16, {v(vX2 + k)}")
            A(f"v_and_b32 {v(Dd + 2 * k + 1)}, s{sMASK}, {v(vX2 + k)}")
        for k in range(8):
            r = k >> 1
            sel = "op_sel:[0,1] op_sel_hi:[1,1]" if r & 1 else "op_sel_hi:[1,0]"
            A(f"v_pk_mul_f32 {v(Dd + 2 * k, 2)}, {v(Dd + 2 * k, 2)}, {v(vRI + (r & 2), 2)} {sel}")
        for k in range(8):
            A(f"v_cvt_pk_bf16_f32 {v(vX2 + k)}, {v(Dd + 2 * k)}, {v(Dd + 2 * k + 1)}")
        A(f"s_andn2_b32 s{sTMP}, 7, s{sBEST}")
        A(f"s_and_b32 s{sTMP + 1}, s{sTMP}, 3")
        A(f"s_lshl_b32 s{sTMP + 2}, s{sTMP + 1}, 1")
        A(f"s_not_b64 {sp(sE)}, {sp(sODD)}")
        A(f"s_cmp_ge_u32 s{sTMP}, 4")
        A(f"s_cselect_b64 {sp(sE)}, {sp(sODD)}, {sp(sE)}")
        vC = K + 24
        A(f"s_set_gpr_idx_on s{sTMP + 2}, gpr_idx(SRC0)")
        A(f"v_mov_b32 {v(vC)}, {v(vX2)}")
        A(f"v_mov_b32 {v(vC + 1)}, {v(vX2 + 1)}")
        A(f"v_mov_b32 {v(vC + 2)}, {v(vH)}")
        A(f"v_mov_b32 {v(vC + 3)}, {v(vH + 1)}")
        A("s_set_gpr_idx_off")
        A(f"s_mul_i32 s{sTMP + 3}, s{sL}, {RS}")
        A(f"s_add_u32 s{sTMP + 3}, s{sTMP + 3}, {W_REG + O_SLOT}")
        A(f"v_lshrrev_b32 {v(vT)}, 1, v0")
        A(f"v_lshl_add_u32 {v(vT)}, {v(vT)}, 3, s{sTMP + 3}")
        A(f"s_mov_b64 exec, {sp(sE)}")
        A(f"global_store_dwordx2 {v(vT)}, {v(vC, 2)}, {sp(sWS)} sc1")
        A(f"global_store_dwordx2 {v(vT)}, {v(vC + 2, 2)}, {sp(sWS)} offset:1024 sc1")
        A("s_mov_b64 exec, -1")
        for k in range(8):
            A(f"v_dot2_f32_bf16 {v(Hf + 2 * k)}, {v(vX2 + k)}, s{sSELLO}, {v(Hf + 2 * k)}")
            A(f"v_dot2_f32_bf16 {v(Hf + 2 * k + 1)}, {v(vX2 + k)}, s{sSELHI}, {v(Hf + 2 * k + 1)}")
        vO = vY
        A(f"v_lshlrev_b32 {v(vT + 1)}, 5, v0")
        A(f"v_add_u32 {v(vT + 1)}, {W_KEY}, {v(vT + 1)}")
        for k in range(8):
            A(f"v_cvt_pk_bf16_f32 {v(vO + k)}, {v(Hf + 2 * k)}, {v(Hf + 2 * k + 1)}")
        A("s_waitcnt vmcnt(0)")
        self.stamp("keydr")
        kl = [f"global_load_dword {v(vT + 2)}, {v(vT + 1)}, {sp(sWS)} sc1"]
        A(kl[0])
        for r in range(4):
            A(f"s_cmp_eq_u32 s{sTMP + 1}, {r}")
            A(f"s_cselect_b64 vcc, {sp(sE)}, 0")
            A("s_not_b64 exec, vcc")
            A(f"global_store_dwordx2 {v(vRD)}, {v(vO + 2 * r, 2)}, {sp(sOUT)} offset:{1024 * r}")
        A("s_mov_b64 exec, -1")
        A(f"s_set_gpr_idx_on s{sTMP + 2}, gpr_idx(SRC0)")
        A(f"v_mov_b32 {v(vC)}, {v(vO)}")
        A(f"v_mov_b32 {v(vC + 1)}, {v(vO + 1)}")
        A("s_set_gpr_idx_off")
        A(f"s_lshl_b32 s{sTMP + 1}, s{sTMP + 1}, 10")
        A(f"v_add_u32 {v(vRD)}, s{sTMP + 1}, {v(vRD)}")
        A(f"s_lshl_b32 s{sTMP}, s{sWAVE}, 2")
        A(f"s_add_u32 s{sTMP}, s{sTMP}, {L_REDK}")
        A(f"v_mov_b32 {v(vT + 3)}, s{sTMP}")
        A(f"v_mov_b32 {v(vT + 4)}, {L_REDK}")
        A("s_waitcnt vmcnt(4)")
        self.poll("key", kl, [f"v_cmp_eq_u32 vcc, -1, {v(vT + 2)}"])
        k2 = vT + 2
        A(f"v_max_u32_dpp {v(k2)}, {v(k2)}, {v(k2)} quad_perm:[1,0,3,2] row_mask:0xf bank_mask:0xf")
        A(f"v_max_u32_dpp {v(k2)}, {v(k2)}, {v(k2)} quad_perm:[2,3,0,1] row_mask:0xf bank_mask:0xf")
        A(f"v_max_u32_dpp {v(k2)}, {v(k2)}, {v(k2)} row_half_mirror row_mask:0xf bank_mask:0xf")
        A(f"v_max_u32_dpp {v(k2)}, {v(k2)}, {v(k2)} row_mirror row_mask:0xf bank_mask:0xf")
        A(f"v_max_u32_dpp {v(k2)}, {v(k2)}, {v(k2)} row_bcast:15 row_mask:0xa bank_mask:0xf")
        A(f"v_max_u32_dpp {v(k2)}, {v(k2)}, {v(k2)} row_bcast:31 row_mask:0xc bank_mask:0xf")
        A("s_mov_b32 exec_lo, 0")
        A("s_brev_b32 exec_hi, 1")
        A(f"ds_write_b32 {v(vT + 3)}, {v(k2)}")
        A("s_mov_b64 exec, -1")
        A("s_waitcnt lgkmcnt(0)")
        A("s_barrier")
        A(f"ds_read_b128 {v(K, 4)}, {v(vT + 4)}")
        A("s_waitcnt lgkmcnt(0)")
        A(f"v_max3_u32 {v(K)}, {v(K)}, {v(K + 1)}, {v(K + 2)}")
        A(f"v_max_u32 {v(K)}, {v(K)}, {v(K + 3)}")
        A(f"v_readfirstlane_b32 s{sWIN}, {v(K)}")
        self.stamp("win")
        A(f"s_andn2_b32 s{sT0}, 2047, s{sWIN}")
        A(f"s_lshr_b32 s{sT1}, s{sT0}, 3")
        A(f"s_mul_i32 s{sT1}, s{sT1}, {RS}")
        A(f"s_add_u32 s{sT1}, s{sT1}, {W_REG + O_SLOT}")
        A(f"s_cmp_lt_u32 s{sPOS}, 14")
        A("s_cbranch_scc0 L_noffn")
        A(f"s_lshr_b32 s{sTMP}, s{sWAVE}, 1")
        A(f"s_lshl_b32 s{sTMP}, s{sTMP}, 9")
        A(f"s_add_u32 s{sTMP}, s{sTMP}, s{sT1}")
        A(f"v_lshrrev_b32 {v(vT)}, 1, {v(vLANE)}")
        A(f"v_lshl_add_u32 {v(vT)}, {v(vT)}, 4, s{sTMP}")
        sl = [f"global_load_dwordx4 {v(K, 4)}, {v(vT)}, {sp(sWS)} sc1"]
        A(sl[0])
        A("L_noffn:")
        A(f"s_cmp_eq_u32 s{sWIN}, s{sBEST}")
        A(f"s_cselect_b64 exec, 0, {sp(sE)}")
        A(f"global_store_dwordx2 {v(vRD)}, {v(vC, 2)}, {sp(sOUT)}")
        A("s_mov_b64 exec, -1")
        A(f"s_cmp_lt_u32 s{sPOS}, 14")
        A("s_cbranch_scc0 L_fin")

        A(f"v_and_b32 {v(vT + 1)}, 1, {v(vLANE)}")
        A(f"v_lshlrev_b32 {v(vT + 1)}, 6, {v(vT + 1)}")
        A(f"v_and_b32 {v(vT + 2)}, 12, {v(vLANE)}")
        A(f"v_lshl_add_u32 {v(vT + 1)}, {v(vT + 2)}, 2, {v(vT + 1)}")
        A(f"v_lshrrev_b32 {v(vT + 2)}, 5, {v(vLANE)}")
        A(f"v_lshl_add_u32 {v(vT + 1)}, {v(vT + 2)}, 3, {v(vT + 1)}")
        A(f"s_and_b32 s{sTMP}, s{sWAVE}, 1")
        A(f"s_lshl_b32 s{sTMP}, s{sTMP}, 7")
        A(f"s_lshr_b32 s{sTMP + 1}, s{sWAVE}, 1")
        A(f"s_lshl_b32 s{sTMP + 1}, s{sTMP + 1}, 2")
        A(f"s_add_u32 s{sTMP}, s{sTMP}, s{sTMP + 1}")
        A(f"s_add_u32 s{sTMP}, s{sTMP}, {L_REDF}")
        A(f"v_add_u32 {v(vT + 1)}, s{sTMP}, {v(vT + 1)}")
        A(f"v_and_b32 {v(vT + 2)}, 15, {v(vLANE)}")
        A(f"v_lshlrev_b32 {v(vT + 2)}, 3, {v(vT + 2)}")
        A(f"v_add_u32 {v(vT + 2)}, {L_REDF}, {v(vT + 2)}")
        A(f"s_mul_i32 s{sTMP}, s{sL}, {RS}")
        A(f"s_add_u32 s{sTMP}, s{sTMP}, {W_REG + O_PART}")
        A(f"v_lshl_add_u32 {v(vT + 3)}, v0, 3, s{sTMP}")
        A("s_waitcnt vmcnt(1)")
        self.poll("sel", sl, [f"v_max3_u32 {v(vT + 6)}, {v(K)}, {v(K + 1)}, {v(K + 2)}",
                              f"v_max_u32 {v(vT + 6)}, {v(vT + 6)}, {v(K + 3)}",
                              f"v_cmp_eq_u32 vcc, -1, {v(vT + 6)}"])
        self.stamp("sel")
        V2 = [K + 8 + i for i in range(8)]
        for kp in range(4):
            for c in range(8):
                A(f"v_dot2_f32_bf16 {v(V2[c])}, {v(K + kp)}, {v(WGp + 8 * kp + c)}, {v(V2[c]) if kp else 0}")
        self.reduce8(V2, K + 16)
        A(f"ds_write_b32 {v(vT + 1)}, {v(V2[0])}")
        A("s_waitcnt lgkmcnt(0)")
        A("s_barrier")
        A(f"ds_read_b64 {v(K, 2)}, {v(vT + 2)}")
        A(f"ds_read_b64 {v(K + 2, 2)}, {v(vT + 2)} offset:128")
        A("s_waitcnt lgkmcnt(0)")
        A(f"v_add_f32 {v(K)}, {v(K)}, {v(K + 1)}")
        A(f"v_add_f32 {v(K + 2)}, {v(K + 2)}, {v(K + 3)}")
        A(f"v_cvt_pk_bf16_f32 {v(K + 1)}, {v(K)}, {v(K + 2)}")
        A(f"v_lshlrev_b32 {v(K)}, 16, {v(K + 1)}")
        A(f"v_mul_f32 {v(K + 3)}, {hex(f2u(-l2e_hi))}, {v(K)}")
        A(f"v_exp_f32 {v(K + 3)}, {v(K + 3)}")
        A(f"v_and_b32 {v(K + 2)}, s{sMASK}, {v(K + 1)}")
        A(f"v_add_f32 {v(K + 3)}, 1.0, {v(K + 3)}")
        A(f"v_rcp_f32 {v(K + 3)}, {v(K + 3)}")
        A(f"v_mul_f32 {v(K)}, {v(K)}, {v(K + 3)}")
        A(f"v_cvt_pk_bf16_f32 {v(K)}, {v(K)}, {v(K)}")
        A(f"v_and_b32 {v(K)}, s{sMASK}, {v(K)}")
        A(f"v_mul_f32 {v(K)}, {v(K)}, {v(K + 2)}")
        A(f"v_mov_b32_dpp {v(K + 1)}, {v(K)} quad_perm:[1,1,3,3] row_mask:0xf bank_mask:0xf")
        A(f"v_cvt_pk_bf16_f32 {v(K)}, {v(K)}, {v(K + 1)}")
        for kp in range(8):
            A(f"v_readlane_b32 s{sH + kp}, {v(K)}, {2 * kp}")
        for kp in range(8):
            for c in range(2):
                A(f"v_dot2_f32_bf16 {v(K + 4 + c)}, s{sH + kp}, {v(WDp + 2 * kp + c)}, {v(K + 4 + c) if kp else 0}")
        A(f"global_store_dwordx2 {v(vT + 3)}, {v(K + 4, 2)}, {sp(sWS)} sc1")
        self.stamp("part")
        A(f"s_cmp_lt_u32 s{sPOS}, 8")
        A("s_cbranch_scc0 L_fin")
        A(f"s_cmp_lt_u32 s{sWAVE}, 2")
        A("s_cbranch_scc0 L_fin")
        A(f"s_lshl_b32 s{sTMP}, s{sXCD}, 3")
        A(f"s_add_u32 s{sTMP}, s{sTMP}, s{sPOS}")
        A(f"s_lshl_b32 s{sTMP}, s{sTMP}, 1")
        A(f"s_add_u32 s{sTMP}, s{sTMP}, s{sWAVE}")
        A(f"v_lshrrev_b32 {v(vT)}, 5, {v(vLANE)}")
        A(f"v_bfe_u32 {v(vT + 1)}, {v(vLANE)}, 4, 1")
        A(f"v_lshl_add_u32 {v(vT)}, {v(vT + 1)}, 1, {v(vT)}")
        A(f"s_lshl_b32 s{sTMP + 1}, s{sTMP}, 3")
        A(f"v_lshl_add_u32 {v(vT)}, {v(vT)}, 1, s{sTMP + 1}")
        A(f"v_add_u32 {v(vT + 1)}, s{sT1}, {v(vT)}")
        A(f"global_load_ushort {v(K + 20)}, {v(vT + 1)}, {sp(sWS)} sc1")
        A(f"global_load_ushort {v(K + 21)}, {v(vT + 1)}, {sp(sWS)} offset:1024 sc1")
        A(f"s_lshl_b32 s{sTMP + 1}, s{sT0}, 10")
        A(f"v_add_u32 {v(vT)}, s{sTMP + 1}, {v(vT)}")
        A(f"v_min_u32 {v(vT + 2)}, 55, {v(vLANE)}")
        A(f"v_mul_u32_u24 {v(vT + 3)}, 4682, {v(vT + 2)}")
        A(f"v_lshrrev_b32 {v(vT + 3)}, 16, {v(vT + 3)}")
        A(f"v_mad_u32_u24 {v(vT + 2)}, {v(vT + 3)}, 18, {v(vT + 2)}")
        A(f"v_mul_u32_u24 {v(vT + 2)}, {RS}, {v(vT + 2)}")
        A(f"s_lshl_b32 s{sTMP + 1}, s{sTMP}, 4")
        A(f"s_add_u32 s{sTMP + 1}, s{sTMP + 1}, {W_REG + O_PART}")
        A(f"v_add_u32 {v(vT + 2)}, s{sTMP + 1}, {v(vT + 2)}")
        A(f"v_add_u32 {v(vT + 3)}, {128 * RS}, {v(vT + 2)}")
        A(f"s_ashr_i32 s{sTMP + 2}, s{sWIN}, 31")
        A(f"s_not_b32 s{sTMP + 2}, s{sTMP + 2}")
        A(f"s_or_b32 s{sTMP + 2}, s{sTMP + 2}, 0x80000000")
        A(f"s_xor_b32 s{sTMP + 2}, s{sTMP + 2}, s{sWIN}")
        A(f"s_and_b32 s{sTMP + 2}, s{sTMP + 2}, 0xfffff800")
        A(f"s_or_b32 s{sTMP + 2}, s{sTMP + 2}, 0x400")
        A(f"v_cvt_pk_bf16_f32 {v(K + 22)}, s{sTMP + 2}, s{sTMP + 2}")
        A(f"v_and_b32 {v(K + 22)}, s{sMASK}, {v(K + 22)}")
        A(f"v_mul_f32 {v(K + 22)}, {hex(f2u(-l2e_hi))}, {v(K + 22)}")
        A(f"v_exp_f32 {v(K + 22)}, {v(K + 22)}")
        A(f"v_add_f32 {v(K + 22)}, 1.0, {v(K + 22)}")
        A(f"v_rcp_f32 {v(K + 22)}, {v(K + 22)}")
        A(f"v_cvt_pk_bf16_f32 {v(K + 22)}, {v(K + 22)}, {v(K + 22)}")
        A(f"v_and_b32 {v(K + 22)}, s{sMASK}, {v(K + 22)}")
        A("s_waitcnt vmcnt(0)")
        self.stamp("partdr")
        pl = [f"global_load_dwordx4 {v(vY, 4)}, {v(vT + 2)}, {sp(sWS)} sc1",
              f"global_load_dwordx4 {v(vY + 4, 4)}, {v(vT + 3)}, {sp(sWS)} sc1"]
        for l in pl:
            A(l)
        self.poll("xh", [f"global_load_ushort {v(K + 20)}, {v(vT + 1)}, {sp(sWS)} sc1",
                         f"global_load_ushort {v(K + 21)}, {v(vT + 1)}, {sp(sWS)} offset:1024 sc1"],
                  [f"v_max_u32 {v(vT + 6)}, {v(K + 20)}, {v(K + 21)}",
                   f"v_cmp_eq_u32 vcc, 0xffff, {v(vT + 6)}"])
        A(f"v_lshlrev_b32 {v(K + 20)}, 16, {v(K + 20)}")
        A(f"v_lshlrev_b32 {v(K + 21)}, 16, {v(K + 21)}")
        A("s_waitcnt vmcnt(0)")
        self.poll("part", pl, chk8)
        self.stamp("partld")
        A(f"v_cmp_gt_u32 vcc, 56, {v(vLANE)}")
        A(f"v_pk_add_f32 {v(vY, 2)}, {v(vY, 2)}, {v(vY + 4, 2)}")
        A(f"v_pk_add_f32 {v(vY + 2, 2)}, {v(vY + 2, 2)}, {v(vY + 6, 2)}")
        for c in range(4):
            A(f"v_cndmask_b32 {v(vY + c)}, 0, {v(vY + c)}, vcc")
        A(f"v_permlane32_swap_b32 {v(vY)}, {v(vY + 1)}")
        A(f"v_permlane32_swap_b32 {v(vY + 2)}, {v(vY + 3)}")
        A(f"v_add_f32 {v(vY)}, {v(vY)}, {v(vY + 1)}")
        A(f"v_add_f32 {v(vY + 2)}, {v(vY + 2)}, {v(vY + 3)}")
        A(f"v_permlane16_swap_b32 {v(vY)}, {v(vY + 2)}")
        A(f"v_add_f32 {v(vY)}, {v(vY)}, {v(vY + 2)}")
        for sh in (8, 4, 2, 1):
            A(f"v_add_f32_dpp {v(vY)}, {v(vY)}, {v(vY)} row_ror:{sh} row_mask:0xf bank_mask:0xf")
        y = vY
        A(f"v_cvt_pk_bf16_f32 {v(y)}, {v(y)}, {v(y)}")
        A(f"v_and_b32 {v(y)}, s{sMASK}, {v(y)}")
        A(f"v_mul_f32 {v(y)}, {v(y)}, {v(K + 22)}")
        A(f"v_cvt_pk_bf16_f32 {v(y)}, {v(y)}, {v(y)}")
        A(f"v_and_b32 {v(y)}, s{sMASK}, {v(y)}")
        A(f"v_add_f32 {v(y)}, {v(y)}, {v(K + 20)}")
        A(f"v_cvt_pk_bf16_f32 {v(y)}, {v(y)}, {v(y)}")
        A(f"v_and_b32 {v(y)}, s{sMASK}, {v(y)}")
        A(f"v_add_f32 {v(y)}, {v(y)}, {v(K + 21)}")
        A(f"v_cvt_pk_bf16_f32 {v(y)}, {v(y)}, {v(y)}")
        A("s_mov_b32 exec_lo, 0x00010001")
        A("s_mov_b32 exec_hi, 0x00010001")
        A(f"global_store_short {v(vT)}, {v(y)}, {sp(sOUT)}")
        A("L_fin:")
        if self.stamp_on:
            self.stamp("end")
            A("s_mov_b64 exec, 1")
            A(f"s_lshl_b32 s{sTMP}, s2, 2")
            A(f"s_add_u32 s{sTMP}, s{sTMP}, s{sWAVE}")
            A(f"s_lshl_b32 s{sTMP}, s{sTMP}, 7")
            A(f"s_add_u32 s{sTMP}, s{sTMP}, {W_STAMP}")
            A(f"v_mov_b32 v1, s{sTMP}")
            for k in range(self.nstamp):
                A(f"v_mov_b32 v2, s{sSTAMP + k}")
                A(f"global_store_dword v1, v2, {sp(sWS)} offset:{4 * k}")
        A("L_end:")
        A("s_endpgm")

        A("L_helper:")
        A(f"s_getpc_b64 {sp(sE)}")
        A("L_pc:")
        A(f"s_sub_u32 s{sE}, s{sE}, L_pc-{KNAME}")
        A(f"s_subb_u32 s{sE + 1}, s{sE + 1}, 0")
        A(f"v_lshlrev_b32 v2, 7, {v(vLANE)}")
        A("v_add_u32 v3, 8192, v2")
        A(f"v_min_u32 v3, L_codeend-{KNAME}-4, v3")
        if o.get("codepf", 1):
            A(f"global_load_dword v10, v2, {sp(sE)}")
            A(f"global_load_dword v11, v3, {sp(sE)}")
        A(f"v_lshlrev_b32 v4, 4, {v(vLANE)}")
        A("s_waitcnt lgkmcnt(0)")
        A(f"global_load_dwordx4 v[16:19], v4, {sp(sWR)}")
        A("v_mov_b32 v20, 0")
        A("v_mov_b32 v21, 0")
        A(f"v_lshlrev_b32 v5, 3, {v(vLANE)}")
        A(f"v_min_u32 v6, 472, v5")
        A(f"v_add_u32 v6, {L_U}, v6")
        A("ds_write2st64_b64 v6, v[20:21], v[20:21] offset0:0 offset1:9")
        A(f"v_min_u32 v6, 56, v5")
        A(f"v_add_u32 v6, {L_P}, v6")
        A("ds_write_b64 v6, v[20:21]")
        A(f"ds_write_b64 v6, v[20:21] offset:{PC}")
        A(f"s_mul_i32 s{sTMP}, s{sXCD}, 448")
        A(f"s_and_b32 s{sTMP}, s{sTMP}, 0xffffff80")
        A(f"s_mul_i32 s{sTMP + 1}, s{sPOS}, {16 * 3584}")
        A(f"s_add_u32 s{sTMP}, s{sTMP}, s{sTMP + 1}")
        A(f"v_lshrrev_b32 v6, 2, {v(vLANE)}")
        A("v_mul_u32_u24 v6, 3584, v6")
        A(f"v_and_b32 v7, 3, {v(vLANE)}")
        A("v_lshl_add_u32 v6, v7, 7, v6")
        A(f"v_add_u32 v6, s{sTMP}, v6")
        A(f"s_mul_i32 s{sTMP}, s{sL}, 7168")
        A(f"v_min_u32 v7, 55, {v(vLANE)}")
        A(f"v_lshl_add_u32 v7, v7, 7, s{sTMP}")
        A("s_waitcnt vmcnt(0)")
        if o.get("wpf", 1):
            A(f"global_load_dword v12, v6, {sp(sWG)}")
            A(f"global_load_dword v13, v6, {sp(sWU)}")
            A(f"global_load_dword v14, v7, {sp(sWD)}")
        A(f"v_dot2_f32_bf16 v22, v16, s{sONES}, 0")
        for k in range(1, 4):
            A(f"v_dot2_f32_bf16 v22, v{16 + k}, s{sONES}, v22")
        for sh in (8, 4, 2, 1):
            A(f"v_add_f32_dpp v22, v22, v22 row_ror:{sh} row_mask:0xf bank_mask:0xf")
        A("v_add_f32_dpp v22, v22, v22 row_bcast:15 row_mask:0xa bank_mask:0xf")
        A("v_add_f32_dpp v22, v22, v22 row_bcast:31 row_mask:0xc bank_mask:0xf")
        A(f"v_mov_b32 v23, {L_SUMW}")
        A("s_mov_b32 exec_lo, 0")
        A("s_brev_b32 exec_hi, 1")
        A("ds_write_b32 v23, v22")
        A("s_waitcnt lgkmcnt(0)")
        for _ in range(4):
            A("s_barrier")
        A("s_endpgm")
        for l in self.tail.L:
            A(l)
        A("L_codeend:")
        lines, nops = A.padded()
        lines, nbytes, promoted, missed = align8(lines)
        self.info = dict(nops=nops, bytes=nbytes, promoted=promoted, missed=missed, lines=len(lines))
        return lines

    def text(self):
        lines = self.build()
        src = open("sequential_preLN__ssm_conv_s4d__moe_arch_mod__prompt.s.ref").read()
        head = [l for l in src.split("\n") if l.startswith(";") and "@launch" not in l]
        head = head[:head.index("; Override launch geometry by editing the next line (default: block=256,")]
        out = head + [f"; @launch grid=(256,1,1) block=(320,1,1) lds={LDS_BYTES}",
                      '.amdgcn_target "amdgcn-amd-amdhsa--gfx950"', ".text", f".globl {KNAME}", ".p2align 8",
                      f".type {KNAME},@function"]
        out += [l if l.endswith(":") else "    " + l for l in lines]
        out += [".section .rodata,\"a\"", ".p2align 6", f".amdhsa_kernel {KNAME}",
                "  .amdhsa_next_free_vgpr 256", "  .amdhsa_next_free_sgpr 102", "  .amdhsa_accum_offset 256",
                "  .amdhsa_group_segment_fixed_size 0", "  .amdhsa_kernarg_size 120", "  .amdhsa_user_sgpr_count 2",
                "  .amdhsa_user_sgpr_kernarg_segment_ptr 1", "  .amdhsa_system_sgpr_workgroup_id_x 1",
                ".end_amdhsa_kernel", ""]
        return "\n".join(out)


if __name__ == "__main__":
    out = sys.argv[1]
    opts = {}
    stamp = False
    for a in sys.argv[2:]:
        if a == "stamp":
            stamp = True
        else:
            k, val = a.split("=")
            opts[k] = int(val)
    g = Gen(stamp, opts)
    open(out, "w").write(g.text())
    if stamp:
        open(out + ".names", "w").write(" ".join(g.names))
    print(g.info, "lds", LDS_BYTES)
```

```python
import sys
import struct
from asmlib import Asm, align8

KNAME = "sequential_preLN__ssm_conv_s4d__moe_arch_mod__prompt_kernel"


def f2u(x):
    return struct.unpack("<I", struct.pack("<f", x))[0]


W_FLAG = 0x1000
W_KEY = 0x4000
W_REG = 0x8000
RS = 20608
O_X1, O_X2, O_SLOT, O_PART = 0, 8192, 16384, 18432
W_STAMP = 0x800000
ROWB = 544
TABC = 63 * ROWB
L_TAB = 0
L_P = 68608
PC = 8256
L_U = L_P + 2 * PC
UC = 4608
L_RED1 = (L_U + 2 * UC + 255) // 256 * 256
L_RED2 = L_RED1 + 256
L_SUMW = L_RED2 + 384
L_REDK = L_SUMW + 16
L_REDF = L_REDK + 16
LDS_BYTES = L_REDF + 256
L_EPI = 0
TBS = 1152
sX, sLA, sAI, sCR, sCI, sLDT, sD = 4, 6, 8, 10, 12, 14, 16
sWR, sWG, sWU, sWD, sOUT, sDBG, sWS = 20, 22, 24, 26, 28, 30, 32
sL, sPOS, sXCD, sWAVE, sG, sDT, sT0, sT1, sSPIN, sF = 34, 35, 36, 37, 38, 39, 40, 41, 42, 43
sODD = 44
sSELLO, sSELHI, sONES, sMASK = 46, 47, 48, 49
sWSEL = 50
sBEST, sWIN, sRP0, sRP1 = 52, 53, 54, 55
sH = 56
sE = 64
sTMP = 66
sSTAMP = 72


def sp(r):
    return f"s[{r}:{r + 1}]"


def v(r, n=1):
    return f"v{r}" if n == 1 else f"v[{r}:{r + n - 1}]"


class Gen:
    def __init__(self, stamp=False, opts=None):
        self.A = Asm()
        self.tail = Asm()
        self.stamp_on = stamp
        self.nstamp = 0
        self.names = []
        self.o = dict(opts or {})

    def stamp(self, name):
        if not self.stamp_on:
            return
        k = self.nstamp
        self.nstamp += 1
        self.names.append(name)
        assert sSTAMP + k <= 100
        self.A(f"s_memrealtime {sp(sTMP + 4)}")
        self.A("s_waitcnt lgkmcnt(0)")
        self.A(f"s_mov_b32 s{sSTAMP + k}, s{sTMP + 4}")

    def poll(self, name, loads, check, base_exec="-1"):
        A = self.A
        for c in check:
            A(c)
        A(f"s_cbranch_vccnz L_retry_{name}")
        A(f"L_ok_{name}:")
        T = self.tail
        T(f"L_retry_{name}:")
        T(f"s_mov_b32 s{sSPIN}, 0x40000")
        T(f"L_again_{name}:")
        T(f"s_sub_u32 s{sSPIN}, s{sSPIN}, 1")
        T(f"s_cbranch_scc1 L_ok_{name}")
        T("s_mov_b64 exec, vcc")
        for l in loads:
            T(l)
        T("s_waitcnt vmcnt(0)")
        for c in check:
            T(c)
        T(f"s_mov_b64 exec, {base_exec}")
        T(f"s_cbranch_vccnz L_again_{name}")
        T(f"s_branch L_ok_{name}")

    def cmul(self, d, x, y, t):
        return [f"v_pk_mul_f32 {v(t, 2)}, {v(x, 2)}, {v(y, 2)} op_sel:[0,0] op_sel_hi:[0,1]",
                f"v_pk_fma_f32 {v(d, 2)}, {v(x, 2)}, {v(y, 2)}, {v(t, 2)} op_sel:[1,1,0] op_sel_hi:[1,0,1] neg_lo:[1,0,0]"]

    def reduce8(self, V, t):
        A = self.A
        for i in range(4):
            A(f"v_add_f32_dpp {v(V[i])}, {v(V[i])}, {v(V[i])} row_ror:8 row_mask:0xf bank_mask:0x3")
        for i in range(4):
            A(f"v_add_f32_dpp {v(V[i])}, {v(V[i + 4])}, {v(V[i + 4])} row_ror:8 row_mask:0xf bank_mask:0xc")
        for i in range(2):
            A(f"v_add_f32_dpp {v(V[i])}, {v(V[i])}, {v(V[i])} row_shl:4 row_mask:0xf bank_mask:0x5")
        for i in range(2):
            A(f"v_add_f32_dpp {v(V[i])}, {v(V[i + 2])}, {v(V[i + 2])} row_shr:4 row_mask:0xf bank_mask:0xa")
        A(f"v_permlane32_swap_b32 {v(V[0])}, {v(V[1])}")
        A(f"v_add_f32 {v(V[0])}, {v(V[0])}, {v(V[1])}")
        A(f"v_add_f32_dpp {v(V[0])}, {v(V[0])}, {v(V[0])} quad_perm:[2,3,0,1] row_mask:0xf bank_mask:0xf")
        A(f"v_mov_b32 {v(t)}, {v(V[0])}")
        A(f"v_permlane16_swap_b32 {v(V[0])}, {v(t)}")
        A(f"v_add_f32 {v(V[0])}, {v(V[0])}, {v(t)}")

    def row_stats(self, S, Q, negm, rinv, t):
        A = self.A
        A(f"v_pk_add_f32 {v(S, 2)}, {v(S, 2)}, {v(S + 2, 2)}")
        A(f"v_pk_add_f32 {v(Q, 2)}, {v(Q, 2)}, {v(Q + 2, 2)}")
        A(f"v_add_f32 {v(S)}, {v(S)}, {v(S + 1)}")
        A(f"v_add_f32 {v(Q)}, {v(Q)}, {v(Q + 1)}")
        A(f"v_mul_f32 {v(S)}, {hex(f2u(1 / 512))}, {v(S)}")
        A(f"v_mul_f32 {v(Q)}, {hex(f2u(1 / 512))}, {v(Q)}")
        A(f"v_fma_f32 {v(Q)}, -{v(S)}, {v(S)}, {v(Q)}")
        A(f"v_max_f32 {v(Q)}, 0, {v(Q)}")
        A(f"v_cvt_pk_bf16_f32 {v(t)}, -{v(S)}, {v(Q)}")
        A(f"v_and_b32 {v(Q)}, s{sMASK}, {v(t)}")
        A(f"v_add_f32 {v(Q)}, {hex(f2u(1e-5))}, {v(Q)}")
        A(f"v_cvt_pk_bf16_f32 {v(Q)}, {v(Q)}, {v(Q)}")
        A(f"v_and_b32 {v(Q)}, s{sMASK}, {v(Q)}")
        A(f"v_sqrt_f32 {v(Q)}, {v(Q)}")
        A(f"v_lshlrev_b32 {v(negm)}, 16, {v(t)}")
        A(f"v_cvt_pk_bf16_f32 {v(Q)}, {v(Q)}, {v(Q)}")
        A(f"v_and_b32 {v(Q)}, s{sMASK}, {v(Q)}")
        A(f"v_rcp_f32 {v(rinv)}, {v(Q)}")

    def spread(self, val, dst, t):
        A = self.A
        for r in range(4):
            A(f"v_mov_b32_dpp {v(t + r)}, {v(val)} row_newbcast:{4 + r} row_mask:0xf bank_mask:0xf")
        for r in range(4):
            A(f"v_cndmask_b32_dpp {v(dst + r)}, {v(val)}, {v(t + r)}, vcc row_newbcast:{r} row_mask:0xf bank_mask:0xf")

    def build(self):
        A = self.A
        o = self.o
        vX, vU, vD, vWR = 2, 10, 18, 20
        vLANE, vREG, vRD, vAUX = 1, 22, 23, 24
        vAA = 28
        vBA = 36
        vEW, vER = 37, 38
        vRA = 39
        vWG, vWD = 40, 72
        vACC = 88
        vA0, vA1, vB0, vB1 = 120, 152, 184, 216
        vT = 248
        K = 120

        A(f"{KNAME}:")
        A("s_cmp_ge_u32 s2, 256")
        A("s_cbranch_scc1 L_end")
        self.stamp("start")
        A("s_load_dwordx16 s[4:19], s[0:1], 0")
        A("s_load_dwordx8 s[20:27], s[0:1], 64")
        A("s_load_dwordx4 s[28:31], s[0:1], 96")
        A("s_load_dwordx2 s[32:33], s[0:1], 112")
        A(f"v_lshrrev_b32 {v(vT)}, 6, v0")
        A(f"s_and_b32 s{sXCD}, s2, 7")
        A(f"v_readfirstlane_b32 s{sWAVE}, {v(vT)}")
        A(f"s_lshr_b32 s{sPOS}, s2, 3")
        A(f"s_lshl_b32 s{sL}, s{sXCD}, 5")
        A(f"s_add_u32 s{sL}, s{sL}, s{sPOS}")
        A(f"v_and_b32 {v(vLANE)}, 63, v0")
        A(f"s_mov_b32 s{sONES}, 0x3f803f80")
        A(f"s_cmp_eq_u32 s{sWAVE}, 4")
        A("s_cbranch_scc1 L_helper")
        A(f"v_lshrrev_b32 {v(vT)}, 1, v0")
        A(f"v_and_b32 {v(vT + 1)}, 1, v0")
        A(f"v_lshlrev_b32 {v(vT + 2)}, 3, {v(vT)}")
        A(f"s_lshl_b32 s{sT0}, s{sL}, 13")
        A(f"v_lshl_add_u32 {v(vRD)}, {v(vT + 1)}, 12, {v(vT + 2)}")
        A(f"v_add_u32 {v(vRD)}, s{sT0}, {v(vRD)}")
        A(f"s_lshl_b32 s{sT0}, s{sL}, 9")
        A(f"v_lshl_add_u32 {v(vT + 3)}, v0, 1, s{sT0}")
        A(f"s_mul_i32 s{sT0}, s{sL}, {RS}")
        A(f"s_add_u32 s{sT0}, s{sT0}, {W_REG + 4096}")
        A(f"v_lshl_add_u32 {v(vREG)}, v0, 4, s{sT0}")
        A(f"s_lshl_b32 s{sT1}, s{sL}, 2")
        for k in range(4):
            A(f"v_mov_b32 {v(K + 120 + k)}, -1")
        A("s_waitcnt lgkmcnt(0)")
        self.stamp("karg")
        for r in range(4):
            A(f"global_load_dwordx2 {v(vX + 2 * r, 2)}, {v(vRD)}, {sp(sX)} offset:{1024 * r}")
        A(f"s_load_dword s{sG}, {sp(sWS)}, 0")
        A(f"s_load_dword s{sDT}, {sp(sLDT)}, s{sT1}")
        vP = K + 112
        for k, s in enumerate((sLA, sAI, sCR, sCI)):
            A(f"global_load_ushort {v(vP + k)}, {v(vT + 3)}, {sp(s)}")
        A(f"global_load_dwordx2 {v(vD, 2)}, {v(vT + 2)}, {sp(sD)}")
        A(f"global_load_dwordx2 {v(vWR, 2)}, {v(vT + 2)}, {sp(sWR)}")
        A(f"v_add_u32 {v(vAUX)}, 8192, {v(vREG)}")
        A(f"v_add_u32 {v(vAUX + 1)}, 12288, {v(vREG)}")
        ones = v(K + 120, 4)
        A(f"global_store_dwordx4 {v(vREG)}, {ones}, {sp(sWS)} offset:-4096 sc1")
        A(f"global_store_dwordx4 {v(vREG)}, {ones}, {sp(sWS)} sc1")
        A(f"global_store_dwordx4 {v(vAUX)}, {ones}, {sp(sWS)} offset:-4096 sc1")
        A(f"global_store_dwordx4 {v(vAUX)}, {ones}, {sp(sWS)} sc1")
        A(f"global_store_dwordx4 {v(vAUX + 1)}, {ones}, {sp(sWS)} sc1")
        A(f"s_lshl_b32 s{sT0}, s{sL}, 5")
        A(f"s_add_u32 s{sT0}, s{sT0}, {W_KEY}")
        A(f"v_mov_b32 {v(vAUX + 2)}, s{sT0}")
        A("s_mov_b64 exec, 1")
        A(f"global_store_dword {v(vAUX + 2)}, {v(K + 120)}, {sp(sWS)} sc1")
        A("s_mov_b64 exec, -1")
        NYOUNG = 6 + 6
        A(f"s_mov_b32 s{sODD}, 0xaaaaaaaa")
        A(f"s_mov_b32 s{sODD + 1}, 0xaaaaaaaa")
        A(f"s_mov_b32 s{sSELLO}, 0x3f80")
        A(f"s_mov_b32 s{sSELHI}, 0x3f800000")
        A(f"s_mov_b32 s{sMASK}, 0xffff0000")
        vJ, vGq = vT + 4, vT + 5
        A(f"v_and_b32 {v(vJ)}, 15, {v(vLANE)}")
        A(f"v_lshrrev_b32 {v(vGq)}, 4, {v(vLANE)}")
        A(f"s_lshr_b32 s{sT0}, s{sWAVE}, 1")
        A(f"s_and_b32 s{sT1}, s{sWAVE}, 1")
        vSW = vAUX + 3
        A(f"v_and_b32 {v(vT)}, 1, {v(vLANE)}")
        A(f"v_lshlrev_b32 {v(vSW)}, 6, {v(vT)}")
        A(f"v_and_b32 {v(vT)}, 4, {v(vLANE)}")
        A(f"v_lshl_add_u32 {v(vSW)}, {v(vT)}, 3, {v(vSW)}")
        A(f"v_and_b32 {v(vT)}, 8, {v(vLANE)}")
        A(f"v_lshl_add_u32 {v(vSW)}, {v(vT)}, 4, {v(vSW)}")
        A(f"v_lshrrev_b32 {v(vT)}, 5, {v(vLANE)}")
        A(f"v_lshl_add_u32 {v(vSW)}, {v(vT)}, 4, {v(vSW)}")
        A(f"s_lshl_b32 s{sTMP}, s{sWAVE}, 2")
        A(f"s_add_u32 s{sTMP}, s{sTMP}, {L_RED1}")
        A(f"v_add_u32 {v(vSW)}, s{sTMP}, {v(vSW)}")
        A(f"v_and_b32 {v(vT)}, 7, {v(vLANE)}")
        A(f"v_lshlrev_b32 {v(vRA)}, 4, {v(vT)}")
        A(f"v_add_u32 {v(vRA)}, {L_RED1}, {v(vRA)}")
        A(f"s_mul_i32 s{sTMP}, s{sT0}, {PC}")
        A(f"s_lshl_b32 s{sTMP + 1}, s{sT1}, 7")
        A(f"s_add_u32 s{sTMP}, s{sTMP}, s{sTMP + 1}")
        A(f"s_add_u32 s{sTMP}, s{sTMP}, {L_P + 4 * 26}")
        A(f"v_lshlrev_b32 {v(vT)}, 3, {v(vGq)}")
        A(f"v_sub_u32 {v(vT)}, {v(vJ)}, {v(vT)}")
        A(f"v_lshl_add_u32 {v(vAA)}, {v(vT)}, 2, s{sTMP}")
        for m in range(1, 8):
            A(f"v_add_u32 {v(vAA + m)}, {1024 * m}, {v(vAA)}")
        A(f"s_mul_i32 s{sTMP}, s{sT0}, {UC}")
        A(f"s_lshl_b32 s{sTMP + 1}, s{sT1}, 6")
        A(f"s_sub_u32 s{sTMP}, s{sTMP}, s{sTMP + 1}")
        A(f"s_add_u32 s{sTMP}, s{sTMP}, {L_U + 64}")
        A(f"v_lshl_add_u32 {v(vT)}, {v(vJ)}, 1, {v(vGq)}")
        A(f"v_lshl_add_u32 {v(vBA)}, {v(vT)}, 4, s{sTMP}")
        A(f"v_lshl_add_u32 {v(vT)}, {v(vJ)}, 2, {v(vGq)}")
        A(f"v_lshrrev_b32 {v(vT + 1)}, 3, {v(vT)}")
        A(f"v_add_u32 {v(vT)}, {v(vT)}, {v(vT + 1)}")
        A(f"s_mul_i32 s{sTMP}, s{sWAVE}, {8 * TBS}")
        A(f"v_lshl_add_u32 {v(vEW)}, {v(vT)}, 4, s{sTMP}")
        A(f"v_lshrrev_b32 {v(vT + 1)}, 3, {v(vLANE)}")
        A(f"v_add_u32 {v(vT)}, {v(vLANE)}, {v(vT + 1)}")
        A(f"s_mul_i32 s{sTMP}, s{sWAVE}, {2 * TBS}")
        A(f"v_lshl_add_u32 {v(vER)}, {v(vT)}, 4, s{sTMP}")
        vKA0, vKA1, vKB, vPW0, vPW1 = vWG, vWG + 1, vWG + 2, vWG + 3, vWG + 4
        vg, vr = vT, vT + 1
        A(f"v_lshrrev_b32 {v(vg)}, 2, {v(vJ)}")
        A(f"v_and_b32 {v(vr)}, 3, {v(vJ)}")
        A(f"s_cmp_eq_u32 s{sT1}, 0")
        A("s_cbranch_scc0 L_rows_hi")
        A(f"v_mov_b32 {v(vKA0)}, {v(vJ)}")
        A(f"v_lshl_add_u32 {v(vKA1)}, {v(vg)}, 1, {v(vr)}")
        A(f"v_add_u32 {v(vKA1)}, 16, {v(vKA1)}")
        A(f"v_add_u32 {v(vT + 2)}, -4, {v(vJ)}")
        A(f"v_and_b32 {v(vT + 2)}, 15, {v(vT + 2)}")
        A(f"v_cmp_eq_u32 vcc, 3, {v(vr)}")
        A(f"v_cndmask_b32 {v(vKA1)}, {v(vKA1)}, {v(vT + 2)}, vcc")
        A(f"v_lshl_add_u32 {v(vPW0)}, {v(vJ)}, 2, {v(vGq)}")
        A(f"v_lshlrev_b32 {v(vPW0)}, 4, {v(vPW0)}")
        A(f"v_add_u32 {v(vPW1)}, 1024, {v(vPW0)}")
        A("s_branch L_rows_done")
        A("L_rows_hi:")
        A(f"v_lshrrev_b32 {v(vT + 2)}, 1, {v(vg)}")
        A(f"v_lshl_add_u32 {v(vKA0)}, {v(vg)}, 1, {v(vr)}")
        A(f"v_add3_u32 {v(vKA0)}, {v(vKA0)}, {v(vT + 2)}, 25")
        A(f"v_sub_u32 {v(vKA1)}, {v(vJ)}, {v(vg)}")
        A(f"v_add_u32 {v(vKA1)}, 35, {v(vKA1)}")
        A(f"v_lshrrev_b32 {v(vT + 2)}, 1, {v(vGq)}")
        A(f"v_lshl_add_u32 {v(vPW0)}, {v(vT + 2)}, 4, {v(vJ)}")
        A(f"v_and_b32 {v(vT + 2)}, 1, {v(vGq)}")
        A(f"v_lshl_add_u32 {v(vPW0)}, {v(vPW0)}, 1, {v(vT + 2)}")
        A(f"v_lshlrev_b32 {v(vPW0)}, 5, {v(vPW0)}")
        A(f"v_add_u32 {v(vPW0)}, 2048, {v(vPW0)}")
        A(f"v_lshlrev_b32 {v(vPW1)}, 6, {v(vLANE)}")
        A(f"v_add_u32 {v(vPW1)}, 4096, {v(vPW1)}")
        A("L_rows_done:")
        A(f"s_mul_i32 s{sTMP}, s{sT0}, {PC}")
        A(f"s_add_u32 s{sTMP}, s{sTMP}, {L_P + 64}")
        A(f"v_add_u32 {v(vPW0)}, s{sTMP}, {v(vPW0)}")
        A(f"v_add_u32 {v(vPW1)}, s{sTMP}, {v(vPW1)}")
        A(f"s_mul_i32 s{sTMP}, s{sT0}, {TABC}")
        A(f"v_lshl_add_u32 {v(vT + 2)}, {v(vGq)}, 4, s{sTMP}")
        A(f"s_movk_i32 s{sTMP + 1}, {ROWB}")
        A(f"v_mad_u32_u24 {v(vKA0)}, {v(vKA0)}, s{sTMP + 1}, {v(vT + 2)}")
        A(f"v_mad_u32_u24 {v(vKA1)}, {v(vKA1)}, s{sTMP + 1}, {v(vT + 2)}")
        A(f"v_mad_u32_u24 {v(vKB)}, {v(vJ)}, s{sTMP + 1}, {v(vT + 2)}")
        A(f"s_lshl_b32 s{sTMP + 1}, s{sT1}, 8")
        A(f"s_add_u32 m0, s{sTMP}, s{sTMP + 1}")

        V = [K + i for i in range(8)]
        A(f"s_waitcnt vmcnt({NYOUNG})")
        self.stamp("x")
        for r in range(4):
            A(f"v_dot2_f32_bf16 {v(V[r])}, {v(vX + 2 * r)}, s{sONES}, 0")
        for r in range(4):
            A(f"v_dot2_f32_bf16 {v(V[4 + r])}, {v(vX + 2 * r)}, {v(vX + 2 * r)}, 0")
        for r in range(4):
            A(f"v_dot2_f32_bf16 {v(V[r])}, {v(vX + 2 * r + 1)}, s{sONES}, {v(V[r])}")
        for r in range(4):
            A(f"v_dot2_f32_bf16 {v(V[4 + r])}, {v(vX + 2 * r + 1)}, {v(vX + 2 * r + 1)}, {v(V[4 + r])}")
        self.reduce8(V, K + 8)
        A(f"ds_write_b32 {v(vSW)}, {v(V[0])}")
        A("s_waitcnt vmcnt(0) lgkmcnt(0)")
        A("s_barrier")
        A(f"ds_read_b128 {v(K, 4)}, {v(vRA)}")
        A(f"ds_read_b128 {v(K + 4, 4)}, {v(vRA)} offset:128")
        A(f"s_add_u32 s{sG}, s{sG}, 0x9e3779b9")
        A(f"v_mov_b32 {v(K + 8)}, s{sG}")
        A(f"v_add_u32 {v(K + 9)}, {W_FLAG - W_KEY}, {v(vAUX + 2)}")
        A(f"s_cmp_eq_u32 s{sWAVE}, 0")
        A("s_cselect_b64 exec, 1, 0")
        A(f"global_store_dword {v(K + 9)}, {v(K + 8)}, {sp(sWS)} sc1")
        A("s_mov_b64 exec, -1")
        A(f"s_mov_b64 vcc, {sp(sODD)}")
        A("s_waitcnt lgkmcnt(0)")
        vNM, vRI = K + 16, K + 20
        self.row_stats(K, K + 4, K + 10, K + 11, K + 12)
        self.spread(K + 10, vNM, K + 24)
        Dd = K + 32
        for c in range(4):
            for r in range(4):
                A(f"v_dot2_f32_bf16 {v(Dd + 4 * c + r)}, {v(vX + 2 * r + (c >> 1))}, s{sSELHI if c & 1 else sSELLO}, {v(vNM + r)}")
        self.spread(K + 11, vRI, K + 24)
        Pk = K + 48
        for k in range(8):
            A(f"v_cvt_pk_bf16_f32 {v(Pk + k)}, {v(Dd + 2 * k)}, {v(Dd + 2 * k + 1)}")
        for k in range(8):
            A(f"v_lshlrev_b32 {v(Dd + 2 * k)}, 16, {v(Pk + k)}")
            A(f"v_and_b32 {v(Dd + 2 * k + 1)}, s{sMASK}, {v(Pk + k)}")
        for k in range(8):
            A(f"v_pk_mul_f32 {v(Dd + 2 * k, 2)}, {v(Dd + 2 * k, 2)}, {v(vRI + 2 * (k & 1), 2)}")
        for k in range(4):
            A(f"v_cvt_pk_bf16_f32 {v(vU + k)}, {v(Dd + 2 * k)}, {v(Dd + 2 * k + 1)}")
        A(f"global_store_dwordx4 {v(vREG)}, {v(vU, 4)}, {sp(sWS)} offset:-4096 sc1")
        for k in range(4, 8):
            A(f"v_cvt_pk_bf16_f32 {v(vU + k)}, {v(Dd + 2 * k)}, {v(Dd + 2 * k + 1)}")
        A(f"global_store_dwordx4 {v(vREG)}, {v(vU + 4, 4)}, {sp(sWS)} sc1")
        self.stamp("x1st")

        L2E = 1.4426950408889634
        l2e_hi = struct.unpack("<f", struct.pack("<f", L2E))[0]
        l2e_lo = L2E - l2e_hi
        a, b = K, K + 2
        A(f"s_lshl_b32 s{sTMP}, s{sDT}, 16")
        A(f"s_and_b32 s{sTMP + 1}, s{sDT}, s{sMASK}")
        A(f"s_cmp_lt_u32 s{sWAVE}, 2")
        A(f"s_cselect_b32 s{sDT}, s{sTMP}, s{sTMP + 1}")
        A(f"s_mov_b32 s{sE}, {hex(f2u(l2e_hi))}")
        A(f"s_mov_b32 s{sE + 1}, {hex(f2u(l2e_lo))}")
        A(f"v_lshlrev_b32 {v(a)}, 16, {v(vP)}")
        A(f"v_mov_b32 {v(a + 1)}, s{sDT}")
        A(f"v_pk_mul_f32 {v(b, 2)}, {v(a, 2)}, {sp(sE)} op_sel_hi:[1,0]")
        A(f"v_pk_fma_f32 {v(b + 2, 2)}, {v(a, 2)}, {sp(sE)}, {v(b, 2)} op_sel_hi:[1,0,1] neg_lo:[0,0,1] neg_hi:[0,0,1]")
        A(f"v_exp_f32 {v(b)}, {v(b)}")
        A(f"v_exp_f32 {v(b + 1)}, {v(b + 1)}")
        A(f"v_pk_fma_f32 {v(b + 2, 2)}, {v(a, 2)}, {sp(sE)}, {v(b + 2, 2)} op_sel:[0,1,0] op_sel_hi:[1,1,1]")
        A(f"v_mul_f32 {v(b + 2)}, {hex(f2u(0.6931471805599453))}, {v(b + 2)}")
        A(f"v_mul_f32 {v(b + 3)}, {hex(f2u(0.6931471805599453))}, {v(b + 3)}")
        A(f"v_pk_fma_f32 {v(b, 2)}, {v(b, 2)}, {v(b + 2, 2)}, {v(b, 2)}")
        A(f"v_cvt_pk_bf16_f32 {v(a)}, {v(b)}, {v(b + 1)}")
        vdt, va2, vph = K + 6, K + 7, K + 8
        A(f"v_and_b32 {v(vdt)}, s{sMASK}, {v(a)}")
        A(f"v_lshlrev_b32 {v(va2)}, 16, {v(a)}")
        A(f"v_lshlrev_b32 {v(vph)}, 16, {v(vP + 1)}")
        A(f"v_mul_f32 {v(va2)}, {v(va2)}, {v(vdt)}")
        A(f"v_mul_f32 {v(vph)}, {v(vph)}, {v(vdt)}")
        A(f"v_mul_f32 {v(va2)}, {hex(f2u(-l2e_hi))}, {v(va2)}")
        A(f"v_mul_f32 {v(vph)}, 0.15915494, {v(vph)}")
        Wp = {p: K + 10 + 2 * p for p in range(1, 17)}
        Zp = {p: K + 42 + 2 * p for p in range(1, 8)}
        G = [K + 58, K + 60]
        TT = [K + 62, K + 64, K + 66, K + 68]
        RR = [K + 70, K + 72, K + 74, K + 76]
        CV = K + 80
        A(f"v_add_f32 {v(vdt)}, {v(vdt)}, {v(vdt)}")
        A(f"v_lshlrev_b32 {v(G[0])}, 16, {v(vP + 2)}")
        A(f"v_lshlrev_b32 {v(G[0] + 1)}, 16, {v(vP + 3)}")
        A(f"v_mul_f32 {v(G[0])}, {v(G[0])}, {v(vdt)}")
        A(f"v_mul_f32 {v(G[0] + 1)}, {v(G[0] + 1)}, {v(vdt)}")
        for n, (dst, sc) in enumerate(((Wp[1], 1.0), (Wp[16], 16.0), (Zp[1], 256.0))):
            t = TT[n]
            if sc == 1.0:
                A(f"v_exp_f32 {v(t)}, {v(va2)}")
                A(f"v_fract_f32 {v(t + 1)}, {v(vph)}")
            else:
                A(f"v_mul_f32 {v(t)}, {hex(f2u(sc))}, {v(va2)}")
                A(f"v_mul_f32 {v(t + 1)}, {hex(f2u(sc))}, {v(vph)}")
                A(f"v_exp_f32 {v(t)}, {v(t)}")
                A(f"v_fract_f32 {v(t + 1)}, {v(t + 1)}")
            A(f"v_cos_f32 {v(dst)}, {v(t + 1)}")
            A(f"v_sin_f32 {v(dst + 1)}, {v(t + 1)}")
        for n, dst in enumerate((Wp[1], Wp[16], Zp[1])):
            A(f"v_pk_mul_f32 {v(dst, 2)}, {v(dst, 2)}, {v(TT[n], 2)} op_sel_hi:[1,0]")
        jobs = [(1, Wp[1], None, None, 0), (16, Zp[1], None, None, 0), (47, G[0], None, None, 1)]
        wj = []
        for p in range(2, 16):
            hb = 1 << (p.bit_length() - 1)
            x, y = (p // 2, p // 2) if hb == p else (hb, p - hb)
            wj.append((p, Wp[p], Wp[x], Wp[y], 0))
        gj = [(47 + j, G[j & 1], G[(j - 1) & 1], Wp[16], 1) for j in range(1, 16)]
        zrow = {2: 25, 3: 30, 4: 35, 5: 38, 6: 41, 7: 44}
        zj = []
        for p in range(2, 8):
            hb = 1 << (p.bit_length() - 1)
            x, y = (p // 2, p // 2) if hb == p else (hb, p - hb)
            zj.append((zrow[p], Zp[p], Zp[x], Zp[y], 0))
        tj = [(16 + k, None, Zp[1], Wp[2 * k], 0) for k in range(1, 9)]
        for z in (2, 3):
            tj += [(zrow[z] + k, None, Zp[z], Wp[4 * k], 0) for k in range(1, 5)]
        for z in (4, 5, 6, 7):
            tj += [(zrow[z] + k, None, Zp[z], Wp[8 * k], 0) for k in range(1, 3)]
        first = []
        for i in range(max(len(wj), len(gj), len(zj))):
            for q in (wj, gj, zj):
                if i < len(q):
                    first.append(q[i])
        jobs += first + tj
        A(f"v_mov_b32 {v(CV + 15)}, s{sSELLO}")
        pend = [(0, CV + 15)]
        slot = 0
        flag_at = o.get("flag_at", 3)
        nb = 0
        for n, (row, dst, x, y, conj) in enumerate(jobs):
            if x is not None:
                if dst is None:
                    dst = RR[n & 3]
                for ins in self.cmul(dst, x, y, TT[n & 3]):
                    A(ins)
            A(f"v_cvt_pk_bf16_f32 {v(CV + slot)}, {v(dst)}, {'-' if conj else ''}{v(dst + 1)}")
            pend.append((row, CV + slot))
            slot = (slot + 1) % 15
            if len(pend) >= 6 or n == len(jobs) - 1:
                for row_, reg in pend:
                    A(f"ds_write_addtid_b32 {v(reg)} offset:{row_ * ROWB}")
                pend = []
                nb += 1
                if nb == flag_at:
                    A(f"v_lshrrev_b32 {v(vT)}, 1, v0")
                    A(f"v_lshlrev_b32 {v(vT + 1)}, 5, {v(vT)}")
                    A(f"v_add_u32 {v(vT + 1)}, {W_FLAG + 4096}, {v(vT + 1)}")
                    fl = [f"global_load_dword {v(vT + 2)}, {v(vT + 1)}, {sp(sWS)} offset:-4096 sc1",
                          f"global_load_dword {v(vT + 3)}, {v(vT + 1)}, {sp(sWS)} sc1"]
                    for l in fl:
                        A(l)
                    A(f"s_and_b32 s{sTMP}, s{sL}, 1")
                    A(f"s_lshl_b32 s{sTMP}, s{sTMP}, 12")
                    A(f"s_lshr_b32 s{sTMP + 1}, s{sL}, 1")
                    A(f"s_lshl_b32 s{sTMP + 1}, s{sTMP + 1}, 5")
                    A(f"s_add_u32 s{sTMP}, s{sTMP}, s{sTMP + 1}")
                    A(f"s_add_u32 s{sTMP}, s{sTMP}, {W_REG + O_X1}")
                    A(f"v_mul_u32_u24 {v(vAUX)}, {RS}, {v(vT)}")
                    A(f"v_and_b32 {v(vT)}, 1, v0")
                    A(f"v_lshl_add_u32 {v(vAUX)}, {v(vT)}, 4, {v(vAUX)}")
                    A(f"v_add_u32 {v(vAUX)}, s{sTMP}, {v(vAUX)}")
                    A(f"v_add_u32 {v(vAUX + 1)}, {128 * RS}, {v(vAUX)}")
        self.stamp("kgen1")
        A("s_waitcnt vmcnt(0)")
        self.poll("flag", fl, [f"v_xor_b32 {v(vT + 4)}, s{sG}, {v(vT + 2)}",
                               f"v_xor_b32 {v(vT + 5)}, s{sG}, {v(vT + 3)}",
                               f"v_or_b32 {v(vT + 4)}, {v(vT + 4)}, {v(vT + 5)}",
                               f"v_cmp_ne_u32 vcc, 0, {v(vT + 4)}"])
        vY = vACC + 24
        x1l = [f"global_load_dwordx4 {v(vY, 4)}, {v(vAUX)}, {sp(sWS)} sc1",
               f"global_load_dwordx4 {v(vY + 4, 4)}, {v(vAUX + 1)}, {sp(sWS)} sc1"]
        for l in x1l:
            A(l)
        self.stamp("flag")
        A("s_waitcnt lgkmcnt(0)")
        A("s_barrier")
        fB, fA0, fA1 = K, K + 32, K + 64
        for s in range(8):
            A(f"ds_read_b128 {v(fB + 4 * s, 4)}, {v(vKB)} offset:{47 * ROWB + 64 * s}")
            A(f"ds_read_b128 {v(fA0 + 4 * s, 4)}, {v(vKA0)} offset:{64 * s}")
            A(f"ds_read_b128 {v(fA1 + 4 * s, 4)}, {v(vKA1)} offset:{64 * s}")
            if s == 3:
                break
        D0, D1 = vACC, vACC + 4
        for s in range(8):
            if s + 4 < 8:
                s2 = s + 4
                A(f"s_waitcnt lgkmcnt(9)")
            else:
                A(f"s_waitcnt lgkmcnt({3 * (7 - s)})")
            c0 = "0" if s == 0 else v(D0, 4)
            c1 = "0" if s == 0 else v(D1, 4)
            A(f"v_mfma_f32_16x16x32_bf16 {v(D0, 4)}, {v(fA0 + 4 * s, 4)}, {v(fB + 4 * s, 4)}, {c0}")
            A(f"v_mfma_f32_16x16x32_bf16 {v(D1, 4)}, {v(fA1 + 4 * s, 4)}, {v(fB + 4 * s, 4)}, {c1}")
            if s + 4 < 8:
                A(f"ds_read_b128 {v(fB + 4 * s2, 4)}, {v(vKB)} offset:{47 * ROWB + 64 * s2}")
                A(f"ds_read_b128 {v(fA0 + 4 * s2, 4)}, {v(vKA0)} offset:{64 * s2}")
                A(f"ds_read_b128 {v(fA1 + 4 * s2, 4)}, {v(vKA1)} offset:{64 * s2}")
        E = K + 96
        A(f"s_bitcmp1_b32 s{sWAVE}, 0")
        A(f"v_cmp_eq_u32 vcc, 0, {v(vLANE)}")
        A("s_nop 5")
        A("s_cbranch_scc1 L_exp_hi")
        A(f"v_mov_b32_dpp {v(D1 + 3)}, {v(D1 + 3)} row_ror:1 row_mask:0x1 bank_mask:0xf")
        A(f"v_cvt_pk_bf16_f32 {v(E + 1)}, {v(D0 + 1)}, {v(D0)}")
        A(f"v_cvt_pk_bf16_f32 {v(E + 2)}, {v(D0 + 2)}, {v(D0 + 1)}")
        A(f"v_cvt_pk_bf16_f32 {v(E + 3)}, {v(D0 + 3)}, {v(D0 + 2)}")
        A(f"v_cndmask_b32 {v(E + 8)}, {v(D1 + 3)}, 0, vcc")
        A(f"v_cndmask_b32 {v(E + 9)}, {v(D1)}, {v(D1 + 3)}, vcc")
        A(f"v_cvt_pk_bf16_f32 {v(E)}, {v(D0)}, {v(E + 8)}")
        A(f"v_cvt_pk_bf16_f32 {v(E + 4)}, {v(D1)}, {v(E + 9)}")
        A(f"v_cvt_pk_bf16_f32 {v(E + 5)}, {v(D1)}, {v(D1)}")
        A(f"v_cvt_pk_bf16_f32 {v(E + 6)}, {v(D1 + 1)}, {v(D1)}")
        A(f"v_cvt_pk_bf16_f32 {v(E + 7)}, {v(D1 + 2)}, {v(D1 + 1)}")
        A(f"ds_write_b128 {v(vPW0)}, {v(E, 4)}")
        A(f"ds_write_b128 {v(vPW1)}, {v(E + 4, 4)}")
        A("s_branch L_exp_done")
        A("L_exp_hi:")
        seq2 = ["aa", "aa", "aa", "ba", "bb", "bb", "cb", "cc"]
        seq3 = ["aa", "aa", "aa", "aa", "aa", "ba", "bb", "bb", "bb", "bb", "cb", "cc", "cc", "cc"]
        ix = {"a": 0, "b": 1, "c": 2}
        for k, s in enumerate(seq2):
            A(f"v_cvt_pk_bf16_f32 {v(E + k)}, {v(D0 + ix[s[0]])}, {v(D0 + ix[s[1]])}")
        A(f"ds_write_b128 {v(vPW0)}, {v(E, 4)}")
        A(f"ds_write_b128 {v(vPW0)}, {v(E + 4, 4)} offset:16")
        for k, s in enumerate(seq3):
            A(f"v_cvt_pk_bf16_f32 {v(E + 8 + k)}, {v(D1 + ix[s[0]])}, {v(D1 + ix[s[1]])}")
        for k, w in enumerate((0, 4, 6, 10)):
            A(f"ds_write_b128 {v(vPW1)}, {v(E + 8 + w, 4)} offset:{16 * k}")
        A("L_exp_done:")
        A("s_waitcnt lgkmcnt(0)")
        A("s_barrier")
        self.stamp("kgen2")

        def rdA(buf, rho, m):
            return [f"ds_read2_b32 {v(buf + 4 * m, 2)}, {v(vAA + m)} offset0:{64 * rho + 6} offset1:{64 * rho + 4}",
                    f"ds_read2_b32 {v(buf + 4 * m + 2, 2)}, {v(vAA + m)} offset0:{64 * rho + 2} offset1:{64 * rho}"]

        def rdB(buf, rho, n):
            return [f"ds_read_b128 {v(buf + 4 * n, 4)}, {v(vBA)} offset:{128 * (3 - rho) + 512 * (7 - n)}"]

        for m in range(8):
            for l in rdA(vA0, 0, m):
                A(l)
        for m in range(8):
            for l in rdA(vA1, 1, m):
                A(l)
        A(f"s_mul_i32 s{sF}, s{sXCD}, 14")
        A(f"s_add_u32 s{sF}, s{sF}, s{sPOS}")
        A(f"s_bitcmp1_b32 s{sWAVE}, 0")
        A(f"s_cselect_b64 {sp(sWSEL)}, {sp(sWU)}, {sp(sWG)}")
        A(f"s_cmp_lt_u32 s{sPOS}, 14")
        A(f"s_cselect_b32 s{sF}, s{sF}, 0")
        A(f"s_cselect_b32 s{sTMP}, -1, 0")
        A(f"s_lshr_b32 s{sTMP + 1}, s{sWAVE}, 1")
        A(f"s_mul_i32 s{sTMP + 1}, s{sTMP + 1}, {256 * 3584}")
        A(f"s_lshl_b32 s{sTMP + 2}, s{sF}, 5")
        A(f"s_add_u32 s{sTMP + 1}, s{sTMP + 1}, s{sTMP + 2}")
        A(f"v_lshrrev_b32 {v(vT)}, 1, {v(vLANE)}")
        A(f"v_mul_u32_u24 {v(vT)}, {8 * 3584}, {v(vT)}")
        A(f"v_and_b32 {v(vT + 1)}, 1, {v(vLANE)}")
        A(f"v_lshl_add_u32 {v(vT)}, {v(vT + 1)}, 4, {v(vT)}")
        A(f"v_add_u32 {v(vT)}, s{sTMP + 1}, {v(vT)}")
        A(f"v_and_b32 {v(vT)}, s{sTMP}, {v(vT)}")
        A(f"v_add_u32 {v(vT + 2)}, {7 * 3584}, {v(vT)}")
        A(f"v_add_u32 {v(vT + 1)}, {4 * 3584}, {v(vT)}")
        A(f"v_add_u32 {v(vT)}, 3584, {v(vT)}")
        A(f"s_lshl_b32 s{sTMP + 1}, s{sF}, 14")
        A(f"s_add_u32 s{sTMP + 1}, s{sTMP + 1}, 4096")
        A(f"v_and_b32 {v(vT + 3)}, s{sTMP}, v0")
        A(f"v_lshl_add_u32 {v(vT + 3)}, {v(vT + 3)}, 2, s{sTMP + 1}")
        A(f"v_add_u32 {v(vT + 4)}, 8192, {v(vT + 3)}")
        wl = []
        for k in range(8):
            base, off = (vT + (k // 3), (k % 3 - 1) * 3584)
            wl.append(f"global_load_dwordx4 {v(vWG + 4 * k, 4)}, {v(base)}, {sp(sWSEL)} offset:{off}")
        for k in range(16):
            wl.append(f"global_load_dword {v(vWD + k)}, {v(vT + 3 + (k >> 3))}, {sp(sWD)} offset:{((k & 7) - 4) * 1024}")
        A(f"v_lshlrev_b32 {v(vT + 5)}, 3, v0")
        A(f"v_add_u32 {v(vT + 5)}, {L_U + 480}, {v(vT + 5)}")
        A("s_waitcnt vmcnt(0)")
        chk8 = [f"v_max3_u32 {v(vT + 6)}, {v(vY)}, {v(vY + 1)}, {v(vY + 2)}",
                f"v_max3_u32 {v(vT + 7)}, {v(vY + 3)}, {v(vY + 4)}, {v(vY + 5)}",
                f"v_max3_u32 {v(vT + 6)}, {v(vT + 6)}, {v(vY + 6)}, {v(vY + 7)}",
                f"v_max_u32 {v(vT + 6)}, {v(vT + 6)}, {v(vT + 7)}",
                f"v_cmp_eq_u32 vcc, -1, {v(vT + 6)}"]
        self.poll("x1", x1l, chk8)
        self.stamp("x1ld")
        A(f"ds_write2st64_b64 {v(vT + 5)}, {v(vY, 2)}, {v(vY + 2, 2)} offset0:0 offset1:9")
        A(f"ds_write2st64_b64 {v(vT + 5)}, {v(vY + 4, 2)}, {v(vY + 6, 2)} offset0:4 offset1:13")
        A("s_waitcnt lgkmcnt(0)")
        A("s_barrier")

        bufA, bufB = [vA0, vA1], [vB0, vB1]
        for n in range(7, -1, -1):
            for l in rdB(vB0, 0, n):
                A(l)
        A(f"s_or_b32 s{sTMP}, s{sL}, s{sWAVE}")
        A(f"s_cmp_eq_u32 s{sTMP}, 0")
        A("s_cselect_b64 exec, 1, 0")
        A(f"v_mov_b32 {v(vT + 6)}, s{sG}")
        A(f"v_mov_b32 {v(vT + 7)}, 0")
        A(f"global_store_dword {v(vT + 7)}, {v(vT + 6)}, {sp(sWS)} sc1")
        A("s_mov_b64 exec, -1")
        started = set()
        for rho in range(4):
            a_, b_ = bufA[rho & 1], bufB[rho & 1]
            order = [(n - 7 + tb, tb, n) for n in range(7, -1, -1) for tb in range(7 - n, 8)]
            fill = []
            if rho + 1 < 4:
                nb_ = bufB[(rho + 1) & 1]
                for n in range(7, -1, -1):
                    fill += rdB(nb_, rho + 1, n)
                if rho >= 1:
                    na_ = bufA[(rho + 1) & 1]
                    for m in range(8):
                        fill += rdA(na_, rho + 1, m)
            nw = {0: 8, 1: 4, 2: 4, 3: 8}[rho]
            wfill = [wl.pop(0) for _ in range(nw)]
            issued = 0
            seen = set()
            for i, (m, tb, n) in enumerate(order):
                if rho == 0 and n not in seen:
                    A(f"s_waitcnt lgkmcnt({min(15, n + issued)})")
                    seen.add(n)
                elif i == 0:
                    A("s_waitcnt lgkmcnt(0)")
                acc = v(vACC + 4 * tb, 4)
                c = acc if tb in started else "0"
                started.add(tb)
                A(f"v_mfma_f32_16x16x32_bf16 {acc}, {v(a_ + 4 * m, 4)}, {v(b_ + 4 * n, 4)}, {c}")
                if i >= 1 and fill:
                    A(fill.pop(0))
                    issued += 1
                if i % 4 == 2 and wfill:
                    A(wfill.pop(0))
            assert not fill and not wfill
        self.stamp("conv")
        for tb in range(8):
            A(f"ds_write_b128 {v(vEW)}, {v(vACC + 4 * tb, 4)} offset:{tb * TBS}")
        A(f"s_mul_i32 s{sTMP}, s{sL}, {RS}")
        A(f"s_lshl_b32 s{sTMP + 1}, s{sWAVE}, 11")
        A(f"s_add_u32 s{sTMP}, s{sTMP}, s{sTMP + 1}")
        A(f"s_add_u32 s{sTMP}, s{sTMP}, {W_REG + O_X2}")
        A(f"v_lshl_add_u32 {v(vT)}, {v(vLANE)}, 4, s{sTMP}")
        A("s_waitcnt lgkmcnt(0)")
        A("s_barrier")
        for i in range(2):
            for s in range(4):
                A(f"ds_read_b128 {v(K + 16 * i + 4 * s, 4)}, {v(vER)} offset:{s * 8 * TBS + i * TBS}")
        for i in range(2):
            A(f"s_waitcnt lgkmcnt({4 * (1 - i)})")
            b0 = K + 16 * i
            for c in range(2):
                for h in range(2):
                    A(f"v_pk_add_f32 {v(b0 + 8 * c + 2 * h, 2)}, {v(b0 + 8 * c + 2 * h, 2)}, {v(b0 + 8 * c + 4 + 2 * h, 2)}")
            for c in range(2):
                for h in range(2):
                    A(f"v_cvt_pk_bf16_f32 {v(K + 32 + 4 * i + 2 * c + h)}, {v(b0 + 8 * c + 2 * h)}, {v(b0 + 8 * c + 2 * h + 1)}")
            A(f"global_store_dwordx4 {v(vT)}, {v(K + 32 + 4 * i, 4)}, {sp(sWS)} offset:{1024 * i} sc1")
        self.stamp("x2st")

        Tt, Xf = K + 40, K + 56
        Df = K + 72
        A(f"v_lshlrev_b32 {v(Df)}, 16, {v(vD)}")
        A(f"v_and_b32 {v(Df + 1)}, s{sMASK}, {v(vD)}")
        A(f"v_lshlrev_b32 {v(Df + 2)}, 16, {v(vD + 1)}")
        A(f"v_and_b32 {v(Df + 3)}, s{sMASK}, {v(vD + 1)}")
        for k in range(8):
            A(f"v_lshlrev_b32 {v(Tt + 2 * k)}, 16, {v(vU + k)}")
            A(f"v_and_b32 {v(Tt + 2 * k + 1)}, s{sMASK}, {v(vU + k)}")
        for k in range(8):
            c = k >> 1
            sel = "op_sel:[0,1] op_sel_hi:[1,1]" if c & 1 else "op_sel_hi:[1,0]"
            A(f"v_pk_mul_f32 {v(Tt + 2 * k, 2)}, {v(Tt + 2 * k, 2)}, {v(Df + (c & 2), 2)} {sel}")
        for k in range(8):
            A(f"v_cvt_pk_bf16_f32 {v(Xf + k)}, {v(Tt + 2 * k)}, {v(Tt + 2 * k + 1)}")
        for k in range(8):
            A(f"v_lshlrev_b32 {v(Tt + 2 * k)}, 16, {v(Xf + k)}")
            A(f"v_and_b32 {v(Tt + 2 * k + 1)}, s{sMASK}, {v(Xf + k)}")
        for r in range(4):
            for c in range(4):
                src = v(vX + 2 * r + (c >> 1))
                if c & 1:
                    A(f"v_and_b32 {v(Xf + 4 * c + r)}, s{sMASK}, {src}")
                else:
                    A(f"v_lshlrev_b32 {v(Xf + 4 * c + r)}, 16, {src}")
        A(f"v_and_b32 {v(vT)}, 0xfe, v0")
        A(f"v_mul_u32_u24 {v(vAUX)}, {RS}, {v(vT)}")
        A(f"v_and_b32 {v(vT)}, 1, v0")
        A(f"v_lshl_add_u32 {v(vAUX)}, {v(vT)}, 4, {v(vAUX)}")
        A(f"s_lshl_b32 s{sTMP}, s{sL}, 5")
        A(f"s_add_u32 s{sTMP}, s{sTMP}, {W_REG + O_X2}")
        A(f"v_add_u32 {v(vAUX)}, s{sTMP}, {v(vAUX)}")
        A(f"v_add_u32 {v(vAUX + 1)}, {RS}, {v(vAUX)}")
        A("s_waitcnt vmcnt(0)")
        self.stamp("x2dr")
        for l in x1l:
            A(l)
        A(f"s_mov_b32 s{sRP0}, 0x05040100")
        A(f"s_mov_b32 s{sRP1}, 0x07060302")
        WGp = K + 88
        for kp in range(4):
            for d in range(4):
                lo, hi = vWG + 8 * kp + d, vWG + 8 * kp + 4 + d
                A(f"v_perm_b32 {v(WGp + 8 * kp + 2 * d)}, {v(hi)}, {v(lo)}, s{sRP0}")
                A(f"v_perm_b32 {v(WGp + 8 * kp + 2 * d + 1)}, {v(hi)}, {v(lo)}, s{sRP1}")
        WDp = vWG
        for kp in range(8):
            lo, hi = vWD + 2 * kp, vWD + 2 * kp + 1
            A(f"v_perm_b32 {v(WDp + 2 * kp)}, {v(hi)}, {v(lo)}, s{sRP0}")
            A(f"v_perm_b32 {v(WDp + 2 * kp + 1)}, {v(hi)}, {v(lo)}, s{sRP1}")
        A("s_waitcnt vmcnt(0)")
        self.poll("x2", x1l, chk8)
        self.stamp("x2ld")

        for k in range(8):
            A(f"v_dot2_f32_bf16 {v(Tt + 2 * k)}, {v(vY + k)}, s{sSELLO}, {v(Tt + 2 * k)}")
            A(f"v_dot2_f32_bf16 {v(Tt + 2 * k + 1)}, {v(vY + k)}, s{sSELHI}, {v(Tt + 2 * k + 1)}")
        for k in range(8):
            A(f"v_cvt_pk_bf16_f32 {v(vY + k)}, {v(Tt + 2 * k)}, {v(Tt + 2 * k + 1)}")
        for k in range(8):
            A(f"v_dot2_f32_bf16 {v(Xf + 2 * k)}, {v(vY + k)}, s{sSELLO}, {v(Xf + 2 * k)}")
            A(f"v_dot2_f32_bf16 {v(Xf + 2 * k + 1)}, {v(vY + k)}, s{sSELHI}, {v(Xf + 2 * k + 1)}")
        vH = vX
        for r in range(4):
            for cp in range(2):
                A(f"v_cvt_pk_bf16_f32 {v(vH + 2 * r + cp)}, {v(Xf + 8 * cp + r)}, {v(Xf + 8 * cp + 4 + r)}")
        Rr = [K + 8 + i for i in range(4)]
        for cp in range(2):
            for r in range(4):
                A(f"v_dot2_f32_bf16 {v(V[r])}, {v(vH + 2 * r + cp)}, s{sONES}, {v(V[r]) if cp else 0}")
            for r in range(4):
                A(f"v_dot2_f32_bf16 {v(V[4 + r])}, {v(vH + 2 * r + cp)}, {v(vH + 2 * r + cp)}, {v(V[4 + r]) if cp else 0}")
            for r in range(4):
                A(f"v_dot2_f32_bf16 {v(Rr[r])}, {v(vH + 2 * r + cp)}, {v(vWR + cp)}, {v(Rr[r]) if cp else 0}")
        self.reduce8(V, K + 12)
        for i in range(4):
            A(f"v_add_f32_dpp {v(Rr[i])}, {v(Rr[i])}, {v(Rr[i])} row_ror:8 row_mask:0xf bank_mask:0xf")
        for i in range(2):
            A(f"v_add_f32_dpp {v(Rr[i])}, {v(Rr[i])}, {v(Rr[i])} row_shl:4 row_mask:0xf bank_mask:0x5")
        for i in range(2):
            A(f"v_add_f32_dpp {v(Rr[i])}, {v(Rr[i + 2])}, {v(Rr[i + 2])} row_shr:4 row_mask:0xf bank_mask:0xa")
        A(f"ds_write_b32 {v(vSW)}, {v(V[0])} offset:{L_RED2 - L_RED1}")
        A(f"v_permlane32_swap_b32 {v(Rr[0])}, {v(Rr[1])}")
        A(f"v_add_f32 {v(Rr[0])}, {v(Rr[0])}, {v(Rr[1])}")
        A(f"v_and_b32 {v(K + 13)}, 0xffffff7f, {v(vSW)}")
        A(f"v_add_f32_dpp {v(Rr[0])}, {v(Rr[0])}, {v(Rr[0])} quad_perm:[2,3,0,1] row_mask:0xf bank_mask:0xf")
        A(f"v_mov_b32 {v(K + 12)}, {v(Rr[0])}")
        A(f"v_permlane16_swap_b32 {v(Rr[0])}, {v(K + 12)}")
        A(f"v_add_f32 {v(Rr[0])}, {v(Rr[0])}, {v(K + 12)}")
        assert L_RED1 % 256 == 0
        A(f"ds_write_b32 {v(K + 13)}, {v(Rr[0])} offset:{L_RED2 - L_RED1 + 256}")
        A(f"v_mov_b32 {v(K + 14)}, {L_SUMW}")
        A("s_waitcnt lgkmcnt(0)")
        A("s_barrier")
        A(f"ds_read_b128 {v(K, 4)}, {v(vRA)} offset:{L_RED2 - L_RED1}")
        A(f"ds_read_b128 {v(K + 4, 4)}, {v(vRA)} offset:{L_RED2 - L_RED1 + 128}")
        A(f"ds_read_b128 {v(K + 8, 4)}, {v(vRA)} offset:{L_RED2 - L_RED1 + 256}")
        A(f"ds_read_b32 {v(K + 15)}, {v(K + 14)}")
        A(f"s_lshl_b32 s{sTMP}, s{sL}, 3")
        A(f"s_sub_u32 s{sTMP}, 2047, s{sTMP}")
        A(f"v_and_b32 {v(K + 14)}, 7, {v(vLANE)}")
        A(f"v_sub_u32 {v(K + 14)}, s{sTMP}, {v(K + 14)}")
        A(f"s_mov_b64 vcc, {sp(sODD)}")
        A("s_waitcnt lgkmcnt(2)")
        self.row_stats(K, K + 4, K + 12, K + 13, K + 28)
        A("s_waitcnt lgkmcnt(0)")
        A(f"v_pk_add_f32 {v(K + 8, 2)}, {v(K + 8, 2)}, {v(K + 10, 2)}")
        A(f"v_add_f32 {v(K + 8)}, {v(K + 8)}, {v(K + 9)}")
        A(f"v_fmac_f32 {v(K + 8)}, {v(K + 12)}, {v(K + 15)}")
        A(f"v_mul_f32 {v(K + 8)}, {v(K + 8)}, {v(K + 13)}")
        A(f"v_ashrrev_i32 {v(K + 9)}, 31, {v(K + 8)}")
        A(f"v_or_b32 {v(K + 9)}, 0x80000000, {v(K + 9)}")
        A(f"v_xor_b32 {v(K + 8)}, {v(K + 8)}, {v(K + 9)}")
        A(f"v_and_b32 {v(K + 8)}, 0xfffff800, {v(K + 8)}")
        A(f"v_or_b32 {v(K + 8)}, {v(K + 8)}, {v(K + 14)}")
        A(f"v_min_u32 {v(K + 8)}, -2, {v(K + 8)}")
        A(f"v_max_u32_dpp {v(K + 8)}, {v(K + 8)}, {v(K + 8)} quad_perm:[1,0,3,2] row_mask:0xf bank_mask:0xf")
        A(f"v_max_u32_dpp {v(K + 8)}, {v(K + 8)}, {v(K + 8)} quad_perm:[2,3,0,1] row_mask:0xf bank_mask:0xf")
        A(f"v_max_u32_dpp {v(K + 8)}, {v(K + 8)}, {v(K + 8)} row_half_mirror row_mask:0xf bank_mask:0xf")
        A(f"s_cmp_eq_u32 s{sWAVE}, 0")
        A("s_cselect_b64 exec, 1, 0")
        A(f"global_store_dword {v(vAUX + 2)}, {v(K + 8)}, {sp(sWS)} sc1")
        A("s_mov_b64 exec, -1")
        self.stamp("key")
        A(f"v_readfirstlane_b32 s{sBEST}, {v(K + 8)}")
        self.spread(K + 12, vNM, K + 24)
        Hf, Dd = Xf, Tt
        for r in range(4):
            for cp in range(2):
                A(f"v_lshlrev_b32 {v(Hf + 4 * r + 2 * cp)}, 16, {v(vH + 2 * r + cp)}")
                A(f"v_and_b32 {v(Hf + 4 * r + 2 * cp + 1)}, s{sMASK}, {v(vH + 2 * r + cp)}")
        self.spread(K + 13, vRI, K + 24)
        for k in range(8):
            r = k >> 1
            sel = "op_sel:[0,1] op_sel_hi:[1,1]" if r & 1 else "op_sel_hi:[1,0]"
            A(f"v_pk_add_f32 {v(Dd + 2 * k, 2)}, {v(Hf + 2 * k, 2)}, {v(vNM + (r & 2), 2)} {sel}")
        vX2 = vU
        for k in range(8):
            A(f"v_cvt_pk_bf16_f32 {v(vX2 + k)}, {v(Dd + 2 * k)}, {v(Dd + 2 * k + 1)}")
        for k in range(8):
            A(f"v_lshlrev_b32 {v(Dd + 2 * k)}, 16, {v(vX2 + k)}")
            A(f"v_and_b32 {v(Dd + 2 * k + 1)}, s{sMASK}, {v(vX2 + k)}")
        for k in range(8):
            r = k >> 1
            sel = "op_sel:[0,1] op_sel_hi:[1,1]" if r & 1 else "op_sel_hi:[1,0]"
            A(f"v_pk_mul_f32 {v(Dd + 2 * k, 2)}, {v(Dd + 2 * k, 2)}, {v(vRI + (r & 2), 2)} {sel}")
        for k in range(8):
            A(f"v_cvt_pk_bf16_f32 {v(vX2 + k)}, {v(Dd + 2 * k)}, {v(Dd + 2 * k + 1)}")
        A(f"s_andn2_b32 s{sTMP}, 7, s{sBEST}")
        A(f"s_and_b32 s{sTMP + 1}, s{sTMP}, 3")
        A(f"s_lshl_b32 s{sTMP + 2}, s{sTMP + 1}, 1")
        A(f"s_not_b64 {sp(sE)}, {sp(sODD)}")
        A(f"s_cmp_ge_u32 s{sTMP}, 4")
        A(f"s_cselect_b64 {sp(sE)}, {sp(sODD)}, {sp(sE)}")
        vC = K + 24
        A(f"s_set_gpr_idx_on s{sTMP + 2}, gpr_idx(SRC0)")
        A(f"v_mov_b32 {v(vC)}, {v(vX2)}")
        A(f"v_mov_b32 {v(vC + 1)}, {v(vX2 + 1)}")
        A(f"v_mov_b32 {v(vC + 2)}, {v(vH)}")
        A(f"v_mov_b32 {v(vC + 3)}, {v(vH + 1)}")
        A("s_set_gpr_idx_off")
        A(f"s_mul_i32 s{sTMP + 3}, s{sL}, {RS}")
        A(f"s_add_u32 s{sTMP + 3}, s{sTMP + 3}, {W_REG + O_SLOT}")
        A(f"v_lshrrev_b32 {v(vT)}, 1, v0")
        A(f"v_lshl_add_u32 {v(vT)}, {v(vT)}, 3, s{sTMP + 3}")
        A(f"s_mov_b64 exec, {sp(sE)}")
        A(f"global_store_dwordx2 {v(vT)}, {v(vC, 2)}, {sp(sWS)} sc1")
        A(f"global_store_dwordx2 {v(vT)}, {v(vC + 2, 2)}, {sp(sWS)} offset:1024 sc1")
        A("s_mov_b64 exec, -1")
        for k in range(8):
            A(f"v_dot2_f32_bf16 {v(Hf + 2 * k)}, {v(vX2 + k)}, s{sSELLO}, {v(Hf + 2 * k)}")
            A(f"v_dot2_f32_bf16 {v(Hf + 2 * k + 1)}, {v(vX2 + k)}, s{sSELHI}, {v(Hf + 2 * k + 1)}")
        vO = vY
        A(f"v_lshlrev_b32 {v(vT + 1)}, 5, v0")
        A(f"v_add_u32 {v(vT + 1)}, {W_KEY}, {v(vT + 1)}")
        for k in range(8):
            A(f"v_cvt_pk_bf16_f32 {v(vO + k)}, {v(Hf + 2 * k)}, {v(Hf + 2 * k + 1)}")
        A("s_waitcnt vmcnt(0)")
        self.stamp("keydr")
        kl = [f"global_load_dword {v(vT + 2)}, {v(vT + 1)}, {sp(sWS)} sc1"]
        A(kl[0])
        for r in range(4):
            A(f"s_cmp_eq_u32 s{sTMP + 1}, {r}")
            A(f"s_cselect_b64 vcc, {sp(sE)}, 0")
            A("s_not_b64 exec, vcc")
            A(f"global_store_dwordx2 {v(vRD)}, {v(vO + 2 * r, 2)}, {sp(sOUT)} offset:{1024 * r}")
        A("s_mov_b64 exec, -1")
        A(f"s_set_gpr_idx_on s{sTMP + 2}, gpr_idx(SRC0)")
        A(f"v_mov_b32 {v(vC)}, {v(vO)}")
        A(f"v_mov_b32 {v(vC + 1)}, {v(vO + 1)}")
        A("s_set_gpr_idx_off")
        A(f"s_lshl_b32 s{sTMP + 1}, s{sTMP + 1}, 10")
        A(f"v_add_u32 {v(vRD)}, s{sTMP + 1}, {v(vRD)}")
        A(f"s_lshl_b32 s{sTMP}, s{sWAVE}, 2")
        A(f"s_add_u32 s{sTMP}, s{sTMP}, {L_REDK}")
        A(f"v_mov_b32 {v(vT + 3)}, s{sTMP}")
        A(f"v_mov_b32 {v(vT + 4)}, {L_REDK}")
        A("s_waitcnt vmcnt(4)")
        self.poll("key", kl, [f"v_cmp_eq_u32 vcc, -1, {v(vT + 2)}"])
        k2 = vT + 2
        A(f"v_max_u32_dpp {v(k2)}, {v(k2)}, {v(k2)} quad_perm:[1,0,3,2] row_mask:0xf bank_mask:0xf")
        A(f"v_max_u32_dpp {v(k2)}, {v(k2)}, {v(k2)} quad_perm:[2,3,0,1] row_mask:0xf bank_mask:0xf")
        A(f"v_max_u32_dpp {v(k2)}, {v(k2)}, {v(k2)} row_half_mirror row_mask:0xf bank_mask:0xf")
        A(f"v_max_u32_dpp {v(k2)}, {v(k2)}, {v(k2)} row_mirror row_mask:0xf bank_mask:0xf")
        A(f"v_max_u32_dpp {v(k2)}, {v(k2)}, {v(k2)} row_bcast:15 row_mask:0xa bank_mask:0xf")
        A(f"v_max_u32_dpp {v(k2)}, {v(k2)}, {v(k2)} row_bcast:31 row_mask:0xc bank_mask:0xf")
        A("s_mov_b32 exec_lo, 0")
        A("s_brev_b32 exec_hi, 1")
        A(f"ds_write_b32 {v(vT + 3)}, {v(k2)}")
        A("s_mov_b64 exec, -1")
        A("s_waitcnt lgkmcnt(0)")
        A("s_barrier")
        A(f"ds_read_b128 {v(K, 4)}, {v(vT + 4)}")
        A("s_waitcnt lgkmcnt(0)")
        A(f"v_max3_u32 {v(K)}, {v(K)}, {v(K + 1)}, {v(K + 2)}")
        A(f"v_max_u32 {v(K)}, {v(K)}, {v(K + 3)}")
        A(f"v_readfirstlane_b32 s{sWIN}, {v(K)}")
        self.stamp("win")
        A(f"s_andn2_b32 s{sT0}, 2047, s{sWIN}")
        A(f"s_lshr_b32 s{sT1}, s{sT0}, 3")
        A(f"s_mul_i32 s{sT1}, s{sT1}, {RS}")
        A(f"s_add_u32 s{sT1}, s{sT1}, {W_REG + O_SLOT}")
        A(f"s_cmp_lt_u32 s{sPOS}, 14")
        A("s_cbranch_scc0 L_noffn")
        A(f"s_lshr_b32 s{sTMP}, s{sWAVE}, 1")
        A(f"s_lshl_b32 s{sTMP}, s{sTMP}, 9")
        A(f"s_add_u32 s{sTMP}, s{sTMP}, s{sT1}")
        A(f"v_lshrrev_b32 {v(vT)}, 1, {v(vLANE)}")
        A(f"v_lshl_add_u32 {v(vT)}, {v(vT)}, 4, s{sTMP}")
        sl = [f"global_load_dwordx4 {v(K, 4)}, {v(vT)}, {sp(sWS)} sc1"]
        A(sl[0])
        A("L_noffn:")
        A(f"s_cmp_eq_u32 s{sWIN}, s{sBEST}")
        A(f"s_cselect_b64 exec, 0, {sp(sE)}")
        A(f"global_store_dwordx2 {v(vRD)}, {v(vC, 2)}, {sp(sOUT)}")
        A("s_mov_b64 exec, -1")
        A(f"s_cmp_lt_u32 s{sPOS}, 14")
        A("s_cbranch_scc0 L_fin")

        A(f"v_and_b32 {v(vT + 1)}, 1, {v(vLANE)}")
        A(f"v_lshlrev_b32 {v(vT + 1)}, 6, {v(vT + 1)}")
        A(f"v_and_b32 {v(vT + 2)}, 12, {v(vLANE)}")
        A(f"v_lshl_add_u32 {v(vT + 1)}, {v(vT + 2)}, 2, {v(vT + 1)}")
        A(f"v_lshrrev_b32 {v(vT + 2)}, 5, {v(vLANE)}")
        A(f"v_lshl_add_u32 {v(vT + 1)}, {v(vT + 2)}, 3, {v(vT + 1)}")
        A(f"s_and_b32 s{sTMP}, s{sWAVE}, 1")
        A(f"s_lshl_b32 s{sTMP}, s{sTMP}, 7")
        A(f"s_lshr_b32 s{sTMP + 1}, s{sWAVE}, 1")
        A(f"s_lshl_b32 s{sTMP + 1}, s{sTMP + 1}, 2")
        A(f"s_add_u32 s{sTMP}, s{sTMP}, s{sTMP + 1}")
        A(f"s_add_u32 s{sTMP}, s{sTMP}, {L_REDF}")
        A(f"v_add_u32 {v(vT + 1)}, s{sTMP}, {v(vT + 1)}")
        A(f"v_and_b32 {v(vT + 2)}, 15, {v(vLANE)}")
        A(f"v_lshlrev_b32 {v(vT + 2)}, 3, {v(vT + 2)}")
        A(f"v_add_u32 {v(vT + 2)}, {L_REDF}, {v(vT + 2)}")
        A(f"s_mul_i32 s{sTMP}, s{sL}, {RS}")
        A(f"s_add_u32 s{sTMP}, s{sTMP}, {W_REG + O_PART}")
        A(f"v_lshl_add_u32 {v(vT + 3)}, v0, 3, s{sTMP}")
        A("s_waitcnt vmcnt(1)")
        self.poll("sel", sl, [f"v_max3_u32 {v(vT + 6)}, {v(K)}, {v(K + 1)}, {v(K + 2)}",
                              f"v_max_u32 {v(vT + 6)}, {v(vT + 6)}, {v(K + 3)}",
                              f"v_cmp_eq_u32 vcc, -1, {v(vT + 6)}"])
        self.stamp("sel")
        V2 = [K + 8 + i for i in range(8)]
        for kp in range(4):
            for c in range(8):
                A(f"v_dot2_f32_bf16 {v(V2[c])}, {v(K + kp)}, {v(WGp + 8 * kp + c)}, {v(V2[c]) if kp else 0}")
        self.reduce8(V2, K + 16)
        A(f"ds_write_b32 {v(vT + 1)}, {v(V2[0])}")
        A("s_waitcnt lgkmcnt(0)")
        A("s_barrier")
        A(f"ds_read_b64 {v(K, 2)}, {v(vT + 2)}")
        A(f"ds_read_b64 {v(K + 2, 2)}, {v(vT + 2)} offset:128")
        A("s_waitcnt lgkmcnt(0)")
        A(f"v_add_f32 {v(K)}, {v(K)}, {v(K + 1)}")
        A(f"v_add_f32 {v(K + 2)}, {v(K + 2)}, {v(K + 3)}")
        A(f"v_cvt_pk_bf16_f32 {v(K + 1)}, {v(K)}, {v(K + 2)}")
        A(f"v_lshlrev_b32 {v(K)}, 16, {v(K + 1)}")
        A(f"v_mul_f32 {v(K + 3)}, {hex(f2u(-l2e_hi))}, {v(K)}")
        A(f"v_exp_f32 {v(K + 3)}, {v(K + 3)}")
        A(f"v_and_b32 {v(K + 2)}, s{sMASK}, {v(K + 1)}")
        A(f"v_add_f32 {v(K + 3)}, 1.0, {v(K + 3)}")
        A(f"v_rcp_f32 {v(K + 3)}, {v(K + 3)}")
        A(f"v_mul_f32 {v(K)}, {v(K)}, {v(K + 3)}")
        A(f"v_cvt_pk_bf16_f32 {v(K)}, {v(K)}, {v(K)}")
        A(f"v_and_b32 {v(K)}, s{sMASK}, {v(K)}")
        A(f"v_mul_f32 {v(K)}, {v(K)}, {v(K + 2)}")
        A(f"v_mov_b32_dpp {v(K + 1)}, {v(K)} quad_perm:[1,1,3,3] row_mask:0xf bank_mask:0xf")
        A(f"v_cvt_pk_bf16_f32 {v(K)}, {v(K)}, {v(K + 1)}")
        for kp in range(8):
            A(f"v_readlane_b32 s{sH + kp}, {v(K)}, {2 * kp}")
        for kp in range(8):
            for c in range(2):
                A(f"v_dot2_f32_bf16 {v(K + 4 + c)}, s{sH + kp}, {v(WDp + 2 * kp + c)}, {v(K + 4 + c) if kp else 0}")
        A(f"global_store_dwordx2 {v(vT + 3)}, {v(K + 4, 2)}, {sp(sWS)} sc1")
        self.stamp("part")
        A(f"s_cmp_lt_u32 s{sPOS}, 8")
        A("s_cbranch_scc0 L_fin")
        A(f"s_cmp_lt_u32 s{sWAVE}, 2")
        A("s_cbranch_scc0 L_fin")
        A(f"s_lshl_b32 s{sTMP}, s{sXCD}, 3")
        A(f"s_add_u32 s{sTMP}, s{sTMP}, s{sPOS}")
        A(f"s_lshl_b32 s{sTMP}, s{sTMP}, 1")
        A(f"s_add_u32 s{sTMP}, s{sTMP}, s{sWAVE}")
        A(f"v_lshrrev_b32 {v(vT)}, 5, {v(vLANE)}")
        A(f"v_bfe_u32 {v(vT + 1)}, {v(vLANE)}, 4, 1")
        A(f"v_lshl_add_u32 {v(vT)}, {v(vT + 1)}, 1, {v(vT)}")
        A(f"s_lshl_b32 s{sTMP + 1}, s{sTMP}, 3")
        A(f"v_lshl_add_u32 {v(vT)}, {v(vT)}, 1, s{sTMP + 1}")
        A(f"v_add_u32 {v(vT + 1)}, s{sT1}, {v(vT)}")
        A(f"global_load_ushort {v(K + 20)}, {v(vT + 1)}, {sp(sWS)} sc1")
        A(f"global_load_ushort {v(K + 21)}, {v(vT + 1)}, {sp(sWS)} offset:1024 sc1")
        A(f"s_lshl_b32 s{sTMP + 1}, s{sT0}, 10")
        A(f"v_add_u32 {v(vT)}, s{sTMP + 1}, {v(vT)}")
        A(f"v_min_u32 {v(vT + 2)}, 55, {v(vLANE)}")
        A(f"v_mul_u32_u24 {v(vT + 3)}, 4682, {v(vT + 2)}")
        A(f"v_lshrrev_b32 {v(vT + 3)}, 16, {v(vT + 3)}")
        A(f"v_mad_u32_u24 {v(vT + 2)}, {v(vT + 3)}, 18, {v(vT + 2)}")
        A(f"v_mul_u32_u24 {v(vT + 2)}, {RS}, {v(vT + 2)}")
        A(f"s_lshl_b32 s{sTMP + 1}, s{sTMP}, 4")
        A(f"s_add_u32 s{sTMP + 1}, s{sTMP + 1}, {W_REG + O_PART}")
        A(f"v_add_u32 {v(vT + 2)}, s{sTMP + 1}, {v(vT + 2)}")
        A(f"v_add_u32 {v(vT + 3)}, {128 * RS}, {v(vT + 2)}")
        A(f"s_ashr_i32 s{sTMP + 2}, s{sWIN}, 31")
        A(f"s_not_b32 s{sTMP + 2}, s{sTMP + 2}")
        A(f"s_or_b32 s{sTMP + 2}, s{sTMP + 2}, 0x80000000")
        A(f"s_xor_b32 s{sTMP + 2}, s{sTMP + 2}, s{sWIN}")
        A(f"s_and_b32 s{sTMP + 2}, s{sTMP + 2}, 0xfffff800")
        A(f"s_or_b32 s{sTMP + 2}, s{sTMP + 2}, 0x400")
        A(f"v_cvt_pk_bf16_f32 {v(K + 22)}, s{sTMP + 2}, s{sTMP + 2}")
        A(f"v_and_b32 {v(K + 22)}, s{sMASK}, {v(K + 22)}")
        A(f"v_mul_f32 {v(K + 22)}, {hex(f2u(-l2e_hi))}, {v(K + 22)}")
        A(f"v_exp_f32 {v(K + 22)}, {v(K + 22)}")
        A(f"v_add_f32 {v(K + 22)}, 1.0, {v(K + 22)}")
        A(f"v_rcp_f32 {v(K + 22)}, {v(K + 22)}")
        A(f"v_cvt_pk_bf16_f32 {v(K + 22)}, {v(K + 22)}, {v(K + 22)}")
        A(f"v_and_b32 {v(K + 22)}, s{sMASK}, {v(K + 22)}")
        A("s_waitcnt vmcnt(0)")
        self.stamp("partdr")
        pl = [f"global_load_dwordx4 {v(vY, 4)}, {v(vT + 2)}, {sp(sWS)} sc1",
              f"global_load_dwordx4 {v(vY + 4, 4)}, {v(vT + 3)}, {sp(sWS)} sc1"]
        for l in pl:
            A(l)
        self.poll("xh", [f"global_load_ushort {v(K + 20)}, {v(vT + 1)}, {sp(sWS)} sc1",
                         f"global_load_ushort {v(K + 21)}, {v(vT + 1)}, {sp(sWS)} offset:1024 sc1"],
                  [f"v_max_u32 {v(vT + 6)}, {v(K + 20)}, {v(K + 21)}",
                   f"v_cmp_eq_u32 vcc, 0xffff, {v(vT + 6)}"])
        A(f"v_lshlrev_b32 {v(K + 20)}, 16, {v(K + 20)}")
        A(f"v_lshlrev_b32 {v(K + 21)}, 16, {v(K + 21)}")
        A("s_waitcnt vmcnt(0)")
        self.poll("part", pl, chk8)
        self.stamp("partld")
        A(f"v_cmp_gt_u32 vcc, 56, {v(vLANE)}")
        A(f"v_pk_add_f32 {v(vY, 2)}, {v(vY, 2)}, {v(vY + 4, 2)}")
        A(f"v_pk_add_f32 {v(vY + 2, 2)}, {v(vY + 2, 2)}, {v(vY + 6, 2)}")
        for c in range(4):
            A(f"v_cndmask_b32 {v(vY + c)}, 0, {v(vY + c)}, vcc")
        A(f"v_permlane32_swap_b32 {v(vY)}, {v(vY + 1)}")
        A(f"v_permlane32_swap_b32 {v(vY + 2)}, {v(vY + 3)}")
        A(f"v_add_f32 {v(vY)}, {v(vY)}, {v(vY + 1)}")
        A(f"v_add_f32 {v(vY + 2)}, {v(vY + 2)}, {v(vY + 3)}")
        A(f"v_permlane16_swap_b32 {v(vY)}, {v(vY + 2)}")
        A(f"v_add_f32 {v(vY)}, {v(vY)}, {v(vY + 2)}")
        for sh in (8, 4, 2, 1):
            A(f"v_add_f32_dpp {v(vY)}, {v(vY)}, {v(vY)} row_ror:{sh} row_mask:0xf bank_mask:0xf")
        y = vY
        A(f"v_cvt_pk_bf16_f32 {v(y)}, {v(y)}, {v(y)}")
        A(f"v_and_b32 {v(y)}, s{sMASK}, {v(y)}")
        A(f"v_mul_f32 {v(y)}, {v(y)}, {v(K + 22)}")
        A(f"v_cvt_pk_bf16_f32 {v(y)}, {v(y)}, {v(y)}")
        A(f"v_and_b32 {v(y)}, s{sMASK}, {v(y)}")
        A(f"v_add_f32 {v(y)}, {v(y)}, {v(K + 20)}")
        A(f"v_cvt_pk_bf16_f32 {v(y)}, {v(y)}, {v(y)}")
        A(f"v_and_b32 {v(y)}, s{sMASK}, {v(y)}")
        A(f"v_add_f32 {v(y)}, {v(y)}, {v(K + 21)}")
        A(f"v_cvt_pk_bf16_f32 {v(y)}, {v(y)}, {v(y)}")
        A("s_mov_b32 exec_lo, 0x00010001")
        A("s_mov_b32 exec_hi, 0x00010001")
        A(f"global_store_short {v(vT)}, {v(y)}, {sp(sOUT)}")
        A("L_fin:")
        if self.stamp_on and "probe" in o:
            self.stamp("end")
            k = o["probe"]
            if k < 0:
                A(f"s_mov_b32 s{sTMP}, {-k}")
            else:
                A(f"s_sub_u32 s{sTMP}, s{sSTAMP + k}, s{sSTAMP}")
                A(f"s_min_u32 s{sTMP}, s{sTMP}, 5000")
                A(f"s_mul_i32 s{sTMP}, s{sTMP}, 4")
                A(f"s_add_u32 s{sTMP}, s{sTMP}, 4000")
            A("L_spin:")
            A(f"s_memrealtime {sp(sTMP + 4)}")
            A("s_waitcnt lgkmcnt(0)")
            A(f"s_sub_u32 s{sTMP + 4}, s{sTMP + 4}, s{sSTAMP}")
            A(f"s_cmp_lt_u32 s{sTMP + 4}, s{sTMP}")
            A("s_cbranch_scc1 L_spin")
        elif self.stamp_on:
            self.stamp("end")
            A("s_mov_b64 exec, 1")
            A(f"s_lshl_b32 s{sTMP}, s2, 2")
            A(f"s_add_u32 s{sTMP}, s{sTMP}, s{sWAVE}")
            A(f"s_lshl_b32 s{sTMP}, s{sTMP}, 7")
            A(f"s_add_u32 s{sTMP}, s{sTMP}, {W_STAMP}")
            A(f"v_mov_b32 v1, s{sTMP}")
            for k in range(self.nstamp):
                A(f"v_mov_b32 v2, s{sSTAMP + k}")
                A(f"global_store_dword v1, v2, {sp(sWS)} offset:{4 * k}")
        A("L_end:")
        A("s_endpgm")

        A("L_helper:")
        A(f"s_getpc_b64 {sp(sE)}")
        A("L_pc:")
        A(f"s_sub_u32 s{sE}, s{sE}, L_pc-{KNAME}")
        A(f"s_subb_u32 s{sE + 1}, s{sE + 1}, 0")
        A(f"v_lshlrev_b32 v2, 7, {v(vLANE)}")
        A("v_add_u32 v3, 8192, v2")
        A(f"v_min_u32 v3, L_codeend-{KNAME}-4, v3")
        if o.get("codepf", 1):
            A(f"global_load_dword v10, v2, {sp(sE)}")
            A(f"global_load_dword v11, v3, {sp(sE)}")
        A(f"v_lshlrev_b32 v4, 4, {v(vLANE)}")
        A("s_waitcnt lgkmcnt(0)")
        A(f"global_load_dwordx4 v[16:19], v4, {sp(sWR)}")
        A("v_mov_b32 v20, 0")
        A("v_mov_b32 v21, 0")
        A(f"v_lshlrev_b32 v5, 3, {v(vLANE)}")
        A(f"v_min_u32 v6, 472, v5")
        A(f"v_add_u32 v6, {L_U}, v6")
        A("ds_write2st64_b64 v6, v[20:21], v[20:21] offset0:0 offset1:9")
        A(f"v_min_u32 v6, 56, v5")
        A(f"v_add_u32 v6, {L_P}, v6")
        A("ds_write_b64 v6, v[20:21]")
        A(f"ds_write_b64 v6, v[20:21] offset:{PC}")
        A(f"s_mul_i32 s{sTMP}, s{sXCD}, 448")
        A(f"s_and_b32 s{sTMP}, s{sTMP}, 0xffffff80")
        A(f"s_mul_i32 s{sTMP + 1}, s{sPOS}, {16 * 3584}")
        A(f"s_add_u32 s{sTMP}, s{sTMP}, s{sTMP + 1}")
        A(f"v_lshrrev_b32 v6, 2, {v(vLANE)}")
        A("v_mul_u32_u24 v6, 3584, v6")
        A(f"v_and_b32 v7, 3, {v(vLANE)}")
        A("v_lshl_add_u32 v6, v7, 7, v6")
        A(f"v_add_u32 v6, s{sTMP}, v6")
        A(f"s_mul_i32 s{sTMP}, s{sL}, 7168")
        A(f"v_min_u32 v7, 55, {v(vLANE)}")
        A(f"v_lshl_add_u32 v7, v7, 7, s{sTMP}")
        A("s_waitcnt vmcnt(0)")
        if o.get("wpf", 1):
            A(f"global_load_dword v12, v6, {sp(sWG)}")
            A(f"global_load_dword v13, v6, {sp(sWU)}")
            A(f"global_load_dword v14, v7, {sp(sWD)}")
        A(f"v_dot2_f32_bf16 v22, v16, s{sONES}, 0")
        for k in range(1, 4):
            A(f"v_dot2_f32_bf16 v22, v{16 + k}, s{sONES}, v22")
        for sh in (8, 4, 2, 1):
            A(f"v_add_f32_dpp v22, v22, v22 row_ror:{sh} row_mask:0xf bank_mask:0xf")
        A("v_add_f32_dpp v22, v22, v22 row_bcast:15 row_mask:0xa bank_mask:0xf")
        A("v_add_f32_dpp v22, v22, v22 row_bcast:31 row_mask:0xc bank_mask:0xf")
        A(f"v_mov_b32 v23, {L_SUMW}")
        A("s_mov_b32 exec_lo, 0")
        A("s_brev_b32 exec_hi, 1")
        A("ds_write_b32 v23, v22")
        A("s_waitcnt lgkmcnt(0)")
        for _ in range(4):
            A("s_barrier")
        A("s_endpgm")
        for l in self.tail.L:
            A(l)
        A("L_codeend:")
        lines, nops = A.padded()
        lines, nbytes, promoted, missed = align8(lines)
        self.info = dict(nops=nops, bytes=nbytes, promoted=promoted, missed=missed, lines=len(lines))
        return lines

    def text(self):
        lines = self.build()
        src = open("sequential_preLN__ssm_conv_s4d__moe_arch_mod__prompt.s.ref").read()
        head = [l for l in src.split("\n") if l.startswith(";") and "@launch" not in l]
        head = head[:head.index("; Override launch geometry by editing the next line (default: block=256,")]
        out = head + [f"; @launch grid=(256,1,1) block=(320,1,1) lds={LDS_BYTES}",
                      '.amdgcn_target "amdgcn-amd-amdhsa--gfx950"', ".text", f".globl {KNAME}", ".p2align 8",
                      f".type {KNAME},@function"]
        out += [l if l.endswith(":") else "    " + l for l in lines]
        out += [".section .rodata,\"a\"", ".p2align 6", f".amdhsa_kernel {KNAME}",
                "  .amdhsa_next_free_vgpr 256", "  .amdhsa_next_free_sgpr 102", "  .amdhsa_accum_offset 256",
                "  .amdhsa_group_segment_fixed_size 0", "  .amdhsa_kernarg_size 120", "  .amdhsa_user_sgpr_count 2",
                "  .amdhsa_user_sgpr_kernarg_segment_ptr 1", "  .amdhsa_system_sgpr_workgroup_id_x 1",
                ".end_amdhsa_kernel", ""]
        return "\n".join(out)


if __name__ == "__main__":
    out = sys.argv[1]
    opts = {}
    stamp = False
    for a in sys.argv[2:]:
        if a == "stamp":
            stamp = True
        else:
            k, val = a.split("=")
            opts[k] = int(val)
    g = Gen(stamp, opts)
    open(out, "w").write(g.text())
    if stamp:
        open(out + ".names", "w").write(" ".join(g.names))
    print(g.info, "lds", LDS_BYTES)
```

```python
import sys
import struct
from asmlib import Asm, align8

KNAME = "sequential_preLN__ssm_conv_s4d__moe_arch_mod__prompt_kernel"


def f2u(x):
    return struct.unpack("<I", struct.pack("<f", x))[0]


W_FLAG = 0x1000
W_KEY = 0x4000
W_REG = 0x8000
RS = 20608
O_X1, O_X2, O_SLOT, O_PART = 0, 8192, 16384, 18432
W_STAMP = 0x800000
ROWB = 544
TABC = 63 * ROWB
L_TAB = 0
L_P = 68608
PC = 8256
L_U = L_P + 2 * PC
UC = 4608
L_RED1 = (L_U + 2 * UC + 255) // 256 * 256
L_RED2 = L_RED1 + 256
L_SUMW = L_RED2 + 384
L_REDK = L_SUMW + 16
L_REDF = L_REDK + 16
LDS_BYTES = L_REDF + 256
L_EPI = 0
TBS = 1152
sX, sLA, sAI, sCR, sCI, sLDT, sD = 4, 6, 8, 10, 12, 14, 16
sWR, sWG, sWU, sWD, sOUT, sDBG, sWS = 20, 22, 24, 26, 28, 30, 32
sL, sPOS, sXCD, sWAVE, sG, sDT, sT0, sT1, sSPIN, sF = 34, 35, 36, 37, 38, 39, 40, 41, 42, 43
sODD = 44
sSELLO, sSELHI, sONES, sMASK = 46, 47, 48, 49
sWSEL = 50
sBEST, sWIN, sRP0, sRP1 = 52, 53, 54, 55
sH = 56
sE = 64
sTMP = 66
sSTAMP = 72


def sp(r):
    return f"s[{r}:{r + 1}]"


def v(r, n=1):
    return f"v{r}" if n == 1 else f"v[{r}:{r + n - 1}]"


class Gen:
    def __init__(self, stamp=False, opts=None):
        self.A = Asm()
        self.tail = Asm()
        self.stamp_on = stamp
        self.nstamp = 0
        self.names = []
        self.o = dict(opts or {})

    def stamp(self, name):
        if not self.stamp_on:
            return
        k = self.nstamp
        self.nstamp += 1
        self.names.append(name)
        assert sSTAMP + k <= 100
        self.A(f"s_memrealtime {sp(sTMP + 4)}")
        self.A("s_waitcnt lgkmcnt(0)")
        self.A(f"s_mov_b32 s{sSTAMP + k}, s{sTMP + 4}")

    def poll(self, name, loads, check, base_exec="-1"):
        A = self.A
        for c in check:
            A(c)
        A(f"s_cbranch_vccnz L_retry_{name}")
        A(f"L_ok_{name}:")
        T = self.tail
        T(f"L_retry_{name}:")
        T(f"s_mov_b32 s{sSPIN}, 0x40000")
        T(f"L_again_{name}:")
        T(f"s_sub_u32 s{sSPIN}, s{sSPIN}, 1")
        T(f"s_cbranch_scc1 L_ok_{name}")
        T("s_mov_b64 exec, vcc")
        for l in loads:
            T(l)
        T("s_waitcnt vmcnt(0)")
        for c in check:
            T(c)
        T(f"s_mov_b64 exec, {base_exec}")
        T(f"s_cbranch_vccnz L_again_{name}")
        T(f"s_branch L_ok_{name}")

    def cmul(self, d, x, y, t):
        return [f"v_pk_mul_f32 {v(t, 2)}, {v(x, 2)}, {v(y, 2)} op_sel:[0,0] op_sel_hi:[0,1]",
                f"v_pk_fma_f32 {v(d, 2)}, {v(x, 2)}, {v(y, 2)}, {v(t, 2)} op_sel:[1,1,0] op_sel_hi:[1,0,1] neg_lo:[1,0,0]"]

    def reduce8(self, V, t):
        A = self.A
        for i in range(4):
            A(f"v_add_f32_dpp {v(V[i])}, {v(V[i])}, {v(V[i])} row_ror:8 row_mask:0xf bank_mask:0x3")
        for i in range(4):
            A(f"v_add_f32_dpp {v(V[i])}, {v(V[i + 4])}, {v(V[i + 4])} row_ror:8 row_mask:0xf bank_mask:0xc")
        for i in range(2):
            A(f"v_add_f32_dpp {v(V[i])}, {v(V[i])}, {v(V[i])} row_shl:4 row_mask:0xf bank_mask:0x5")
        for i in range(2):
            A(f"v_add_f32_dpp {v(V[i])}, {v(V[i + 2])}, {v(V[i + 2])} row_shr:4 row_mask:0xf bank_mask:0xa")
        A(f"v_permlane32_swap_b32 {v(V[0])}, {v(V[1])}")
        A(f"v_add_f32 {v(V[0])}, {v(V[0])}, {v(V[1])}")
        A(f"v_add_f32_dpp {v(V[0])}, {v(V[0])}, {v(V[0])} quad_perm:[2,3,0,1] row_mask:0xf bank_mask:0xf")
        A(f"v_mov_b32 {v(t)}, {v(V[0])}")
        A(f"v_permlane16_swap_b32 {v(V[0])}, {v(t)}")
        A(f"v_add_f32 {v(V[0])}, {v(V[0])}, {v(t)}")

    def row_stats(self, S, Q, negm, rinv, t):
        A = self.A
        A(f"v_pk_add_f32 {v(S, 2)}, {v(S, 2)}, {v(S + 2, 2)}")
        A(f"v_pk_add_f32 {v(Q, 2)}, {v(Q, 2)}, {v(Q + 2, 2)}")
        A(f"v_add_f32 {v(S)}, {v(S)}, {v(S + 1)}")
        A(f"v_add_f32 {v(Q)}, {v(Q)}, {v(Q + 1)}")
        A(f"v_mul_f32 {v(S)}, {hex(f2u(1 / 512))}, {v(S)}")
        A(f"v_mul_f32 {v(Q)}, {hex(f2u(1 / 512))}, {v(Q)}")
        A(f"v_fma_f32 {v(Q)}, -{v(S)}, {v(S)}, {v(Q)}")
        A(f"v_max_f32 {v(Q)}, 0, {v(Q)}")
        A(f"v_cvt_pk_bf16_f32 {v(t)}, -{v(S)}, {v(Q)}")
        A(f"v_and_b32 {v(Q)}, s{sMASK}, {v(t)}")
        A(f"v_add_f32 {v(Q)}, {hex(f2u(1e-5))}, {v(Q)}")
        A(f"v_cvt_pk_bf16_f32 {v(Q)}, {v(Q)}, {v(Q)}")
        A(f"v_and_b32 {v(Q)}, s{sMASK}, {v(Q)}")
        A(f"v_sqrt_f32 {v(Q)}, {v(Q)}")
        A(f"v_lshlrev_b32 {v(negm)}, 16, {v(t)}")
        A(f"v_cvt_pk_bf16_f32 {v(Q)}, {v(Q)}, {v(Q)}")
        A(f"v_and_b32 {v(Q)}, s{sMASK}, {v(Q)}")
        A(f"v_rcp_f32 {v(rinv)}, {v(Q)}")

    def spread(self, val, dst, t):
        A = self.A
        for r in range(4):
            A(f"v_mov_b32_dpp {v(t + r)}, {v(val)} row_newbcast:{4 + r} row_mask:0xf bank_mask:0xf")
        for r in range(4):
            A(f"v_cndmask_b32_dpp {v(dst + r)}, {v(val)}, {v(t + r)}, vcc row_newbcast:{r} row_mask:0xf bank_mask:0xf")

    def build(self):
        A = self.A
        o = self.o
        vX, vU, vD, vWR = 2, 10, 18, 20
        vLANE, vREG, vRD, vAUX = 1, 22, 23, 24
        vAA = 28
        vBA = 36
        vEW, vER = 37, 38
        vRA = 39
        vWG, vWD = 40, 72
        vACC = 88
        vA0, vA1, vB0, vB1 = 120, 152, 184, 216
        vT = 248
        K = 120

        A(f"{KNAME}:")
        A("s_cmp_ge_u32 s2, 256")
        A("s_cbranch_scc1 L_end")
        self.stamp("start")
        A("s_load_dwordx16 s[4:19], s[0:1], 0")
        A("s_load_dwordx8 s[20:27], s[0:1], 64")
        A("s_load_dwordx4 s[28:31], s[0:1], 96")
        A("s_load_dwordx2 s[32:33], s[0:1], 112")
        A(f"v_lshrrev_b32 {v(vT)}, 6, v0")
        A(f"s_and_b32 s{sXCD}, s2, 7")
        A(f"v_readfirstlane_b32 s{sWAVE}, {v(vT)}")
        A(f"s_lshr_b32 s{sPOS}, s2, 3")
        A(f"s_lshl_b32 s{sL}, s{sXCD}, 5")
        A(f"s_add_u32 s{sL}, s{sL}, s{sPOS}")
        A(f"v_and_b32 {v(vLANE)}, 63, v0")
        A(f"s_mov_b32 s{sONES}, 0x3f803f80")
        A(f"s_cmp_eq_u32 s{sWAVE}, 4")
        A("s_cbranch_scc1 L_helper")
        A(f"v_lshrrev_b32 {v(vT)}, 1, v0")
        A(f"v_and_b32 {v(vT + 1)}, 1, v0")
        A(f"v_lshlrev_b32 {v(vT + 2)}, 3, {v(vT)}")
        A(f"s_lshl_b32 s{sT0}, s{sL}, 13")
        A(f"v_lshl_add_u32 {v(vRD)}, {v(vT + 1)}, 12, {v(vT + 2)}")
        A(f"v_add_u32 {v(vRD)}, s{sT0}, {v(vRD)}")
        A(f"s_lshl_b32 s{sT0}, s{sL}, 9")
        A(f"v_lshl_add_u32 {v(vT + 3)}, v0, 1, s{sT0}")
        A(f"s_mul_i32 s{sT0}, s{sL}, {RS}")
        A(f"s_add_u32 s{sT0}, s{sT0}, {W_REG + 4096}")
        A(f"v_lshl_add_u32 {v(vREG)}, v0, 4, s{sT0}")
        A(f"s_lshl_b32 s{sT1}, s{sL}, 2")
        for k in range(4):
            A(f"v_mov_b32 {v(K + 120 + k)}, -1")
        A("s_waitcnt lgkmcnt(0)")
        self.stamp("karg")
        for r in range(4):
            A(f"global_load_dwordx2 {v(vX + 2 * r, 2)}, {v(vRD)}, {sp(sX)} offset:{1024 * r}")
        A(f"s_load_dword s{sG}, {sp(sWS)}, 0")
        A(f"s_load_dword s{sDT}, {sp(sLDT)}, s{sT1}")
        vP = K + 112
        for k, s in enumerate((sLA, sAI, sCR, sCI)):
            A(f"global_load_ushort {v(vP + k)}, {v(vT + 3)}, {sp(s)}")
        A(f"global_load_dwordx2 {v(vD, 2)}, {v(vT + 2)}, {sp(sD)}")
        A(f"global_load_dwordx2 {v(vWR, 2)}, {v(vT + 2)}, {sp(sWR)}")
        A(f"v_add_u32 {v(vAUX)}, 8192, {v(vREG)}")
        A(f"v_add_u32 {v(vAUX + 1)}, 12288, {v(vREG)}")
        ones = v(K + 120, 4)
        inits = [f"global_store_dwordx4 {v(vREG)}, {ones}, {sp(sWS)} offset:-4096 sc1",
                 f"global_store_dwordx4 {v(vREG)}, {ones}, {sp(sWS)} sc1",
                 f"global_store_dwordx4 {v(vAUX)}, {ones}, {sp(sWS)} offset:-4096 sc1",
                 f"global_store_dwordx4 {v(vAUX)}, {ones}, {sp(sWS)} sc1",
                 f"global_store_dwordx4 {v(vAUX + 1)}, {ones}, {sp(sWS)} sc1"][:o.get("ninit", 5)]
        for l in inits:
            A(l)
        A(f"s_lshl_b32 s{sT0}, s{sL}, 5")
        A(f"s_add_u32 s{sT0}, s{sT0}, {W_KEY}")
        A(f"v_mov_b32 {v(vAUX + 2)}, s{sT0}")
        A("s_mov_b64 exec, 1")
        A(f"global_store_dword {v(vAUX + 2)}, {v(K + 120)}, {sp(sWS)} sc1")
        A("s_mov_b64 exec, -1")
        NYOUNG = 6 + 1 + len(inits)
        A(f"s_mov_b32 s{sODD}, 0xaaaaaaaa")
        A(f"s_mov_b32 s{sODD + 1}, 0xaaaaaaaa")
        A(f"s_mov_b32 s{sSELLO}, 0x3f80")
        A(f"s_mov_b32 s{sSELHI}, 0x3f800000")
        A(f"s_mov_b32 s{sMASK}, 0xffff0000")
        vJ, vGq = vT + 4, vT + 5
        A(f"v_and_b32 {v(vJ)}, 15, {v(vLANE)}")
        A(f"v_lshrrev_b32 {v(vGq)}, 4, {v(vLANE)}")
        A(f"s_lshr_b32 s{sT0}, s{sWAVE}, 1")
        A(f"s_and_b32 s{sT1}, s{sWAVE}, 1")
        vSW = vAUX + 3
        A(f"v_and_b32 {v(vT)}, 1, {v(vLANE)}")
        A(f"v_lshlrev_b32 {v(vSW)}, 6, {v(vT)}")
        A(f"v_and_b32 {v(vT)}, 4, {v(vLANE)}")
        A(f"v_lshl_add_u32 {v(vSW)}, {v(vT)}, 3, {v(vSW)}")
        A(f"v_and_b32 {v(vT)}, 8, {v(vLANE)}")
        A(f"v_lshl_add_u32 {v(vSW)}, {v(vT)}, 4, {v(vSW)}")
        A(f"v_lshrrev_b32 {v(vT)}, 5, {v(vLANE)}")
        A(f"v_lshl_add_u32 {v(vSW)}, {v(vT)}, 4, {v(vSW)}")
        A(f"s_lshl_b32 s{sTMP}, s{sWAVE}, 2")
        A(f"s_add_u32 s{sTMP}, s{sTMP}, {L_RED1}")
        A(f"v_add_u32 {v(vSW)}, s{sTMP}, {v(vSW)}")
        A(f"v_and_b32 {v(vT)}, 7, {v(vLANE)}")
        A(f"v_lshlrev_b32 {v(vRA)}, 4, {v(vT)}")
        A(f"v_add_u32 {v(vRA)}, {L_RED1}, {v(vRA)}")
        A(f"s_mul_i32 s{sTMP}, s{sT0}, {PC}")
        A(f"s_lshl_b32 s{sTMP + 1}, s{sT1}, 7")
        A(f"s_add_u32 s{sTMP}, s{sTMP}, s{sTMP + 1}")
        A(f"s_add_u32 s{sTMP}, s{sTMP}, {L_P + 4 * 26}")
        A(f"v_lshlrev_b32 {v(vT)}, 3, {v(vGq)}")
        A(f"v_sub_u32 {v(vT)}, {v(vJ)}, {v(vT)}")
        A(f"v_lshl_add_u32 {v(vAA)}, {v(vT)}, 2, s{sTMP}")
        for m in range(1, 8):
            A(f"v_add_u32 {v(vAA + m)}, {1024 * m}, {v(vAA)}")
        A(f"s_mul_i32 s{sTMP}, s{sT0}, {UC}")
        A(f"s_lshl_b32 s{sTMP + 1}, s{sT1}, 6")
        A(f"s_sub_u32 s{sTMP}, s{sTMP}, s{sTMP + 1}")
        A(f"s_add_u32 s{sTMP}, s{sTMP}, {L_U + 64}")
        A(f"v_lshl_add_u32 {v(vT)}, {v(vJ)}, 1, {v(vGq)}")
        A(f"v_lshl_add_u32 {v(vBA)}, {v(vT)}, 4, s{sTMP}")
        A(f"v_lshl_add_u32 {v(vT)}, {v(vJ)}, 2, {v(vGq)}")
        A(f"v_lshrrev_b32 {v(vT + 1)}, 3, {v(vT)}")
        A(f"v_add_u32 {v(vT)}, {v(vT)}, {v(vT + 1)}")
        A(f"s_mul_i32 s{sTMP}, s{sWAVE}, {8 * TBS}")
        A(f"v_lshl_add_u32 {v(vEW)}, {v(vT)}, 4, s{sTMP}")
        A(f"v_lshrrev_b32 {v(vT + 1)}, 3, {v(vLANE)}")
        A(f"v_add_u32 {v(vT)}, {v(vLANE)}, {v(vT + 1)}")
        A(f"s_mul_i32 s{sTMP}, s{sWAVE}, {2 * TBS}")
        A(f"v_lshl_add_u32 {v(vER)}, {v(vT)}, 4, s{sTMP}")
        vKA0, vKA1, vKB, vPW0, vPW1 = vWG, vWG + 1, vWG + 2, vWG + 3, vWG + 4
        vg, vr = vT, vT + 1
        A(f"v_lshrrev_b32 {v(vg)}, 2, {v(vJ)}")
        A(f"v_and_b32 {v(vr)}, 3, {v(vJ)}")
        A(f"s_cmp_eq_u32 s{sT1}, 0")
        A("s_cbranch_scc0 L_rows_hi")
        A(f"v_mov_b32 {v(vKA0)}, {v(vJ)}")
        A(f"v_lshl_add_u32 {v(vKA1)}, {v(vg)}, 1, {v(vr)}")
        A(f"v_add_u32 {v(vKA1)}, 16, {v(vKA1)}")
        A(f"v_add_u32 {v(vT + 2)}, -4, {v(vJ)}")
        A(f"v_and_b32 {v(vT + 2)}, 15, {v(vT + 2)}")
        A(f"v_cmp_eq_u32 vcc, 3, {v(vr)}")
        A(f"v_cndmask_b32 {v(vKA1)}, {v(vKA1)}, {v(vT + 2)}, vcc")
        A(f"v_lshl_add_u32 {v(vPW0)}, {v(vJ)}, 2, {v(vGq)}")
        A(f"v_lshlrev_b32 {v(vPW0)}, 4, {v(vPW0)}")
        A(f"v_add_u32 {v(vPW1)}, 1024, {v(vPW0)}")
        A("s_branch L_rows_done")
        A("L_rows_hi:")
        A(f"v_lshrrev_b32 {v(vT + 2)}, 1, {v(vg)}")
        A(f"v_lshl_add_u32 {v(vKA0)}, {v(vg)}, 1, {v(vr)}")
        A(f"v_add3_u32 {v(vKA0)}, {v(vKA0)}, {v(vT + 2)}, 25")
        A(f"v_sub_u32 {v(vKA1)}, {v(vJ)}, {v(vg)}")
        A(f"v_add_u32 {v(vKA1)}, 35, {v(vKA1)}")
        A(f"v_lshrrev_b32 {v(vT + 2)}, 1, {v(vGq)}")
        A(f"v_lshl_add_u32 {v(vPW0)}, {v(vT + 2)}, 4, {v(vJ)}")
        A(f"v_and_b32 {v(vT + 2)}, 1, {v(vGq)}")
        A(f"v_lshl_add_u32 {v(vPW0)}, {v(vPW0)}, 1, {v(vT + 2)}")
        A(f"v_lshlrev_b32 {v(vPW0)}, 5, {v(vPW0)}")
        A(f"v_add_u32 {v(vPW0)}, 2048, {v(vPW0)}")
        A(f"v_lshlrev_b32 {v(vPW1)}, 6, {v(vLANE)}")
        A(f"v_add_u32 {v(vPW1)}, 4096, {v(vPW1)}")
        A("L_rows_done:")
        A(f"s_mul_i32 s{sTMP}, s{sT0}, {PC}")
        A(f"s_add_u32 s{sTMP}, s{sTMP}, {L_P + 64}")
        A(f"v_add_u32 {v(vPW0)}, s{sTMP}, {v(vPW0)}")
        A(f"v_add_u32 {v(vPW1)}, s{sTMP}, {v(vPW1)}")
        A(f"s_mul_i32 s{sTMP}, s{sT0}, {TABC}")
        A(f"v_lshl_add_u32 {v(vT + 2)}, {v(vGq)}, 4, s{sTMP}")
        A(f"s_movk_i32 s{sTMP + 1}, {ROWB}")
        A(f"v_mad_u32_u24 {v(vKA0)}, {v(vKA0)}, s{sTMP + 1}, {v(vT + 2)}")
        A(f"v_mad_u32_u24 {v(vKA1)}, {v(vKA1)}, s{sTMP + 1}, {v(vT + 2)}")
        A(f"v_mad_u32_u24 {v(vKB)}, {v(vJ)}, s{sTMP + 1}, {v(vT + 2)}")
        A(f"s_lshl_b32 s{sTMP + 1}, s{sT1}, 8")
        A(f"s_add_u32 m0, s{sTMP}, s{sTMP + 1}")

        V = [K + i for i in range(8)]
        A(f"s_waitcnt vmcnt({NYOUNG})")
        self.stamp("x")
        for r in range(4):
            A(f"v_dot2_f32_bf16 {v(V[r])}, {v(vX + 2 * r)}, s{sONES}, 0")
        for r in range(4):
            A(f"v_dot2_f32_bf16 {v(V[4 + r])}, {v(vX + 2 * r)}, {v(vX + 2 * r)}, 0")
        for r in range(4):
            A(f"v_dot2_f32_bf16 {v(V[r])}, {v(vX + 2 * r + 1)}, s{sONES}, {v(V[r])}")
        for r in range(4):
            A(f"v_dot2_f32_bf16 {v(V[4 + r])}, {v(vX + 2 * r + 1)}, {v(vX + 2 * r + 1)}, {v(V[4 + r])}")
        self.reduce8(V, K + 8)
        A(f"ds_write_b32 {v(vSW)}, {v(V[0])}")
        self.stamp("red")
        A("s_waitcnt vmcnt(0) lgkmcnt(0)")
        self.stamp("idr")
        A("s_barrier")
        self.stamp("b1")
        A(f"ds_read_b128 {v(K, 4)}, {v(vRA)}")
        A(f"ds_read_b128 {v(K + 4, 4)}, {v(vRA)} offset:128")
        A(f"s_add_u32 s{sG}, s{sG}, 0x9e3779b9")
        A(f"v_mov_b32 {v(K + 8)}, s{sG}")
        A(f"v_add_u32 {v(K + 9)}, {W_FLAG - W_KEY}, {v(vAUX + 2)}")
        A(f"s_cmp_eq_u32 s{sWAVE}, 0")
        A("s_cselect_b64 exec, 1, 0")
        A(f"global_store_dword {v(K + 9)}, {v(K + 8)}, {sp(sWS)} sc1")
        A("s_mov_b64 exec, -1")
        A(f"s_mov_b64 vcc, {sp(sODD)}")
        A("s_waitcnt lgkmcnt(0)")
        vNM, vRI = K + 16, K + 20
        self.row_stats(K, K + 4, K + 10, K + 11, K + 12)
        self.spread(K + 10, vNM, K + 24)
        Dd = K + 32
        for c in range(4):
            for r in range(4):
                A(f"v_dot2_f32_bf16 {v(Dd + 4 * c + r)}, {v(vX + 2 * r + (c >> 1))}, s{sSELHI if c & 1 else sSELLO}, {v(vNM + r)}")
        self.spread(K + 11, vRI, K + 24)
        Pk = K + 48
        for k in range(8):
            A(f"v_cvt_pk_bf16_f32 {v(Pk + k)}, {v(Dd + 2 * k)}, {v(Dd + 2 * k + 1)}")
        for k in range(8):
            A(f"v_lshlrev_b32 {v(Dd + 2 * k)}, 16, {v(Pk + k)}")
            A(f"v_and_b32 {v(Dd + 2 * k + 1)}, s{sMASK}, {v(Pk + k)}")
        for k in range(8):
            A(f"v_pk_mul_f32 {v(Dd + 2 * k, 2)}, {v(Dd + 2 * k, 2)}, {v(vRI + 2 * (k & 1), 2)}")
        for k in range(4):
            A(f"v_cvt_pk_bf16_f32 {v(vU + k)}, {v(Dd + 2 * k)}, {v(Dd + 2 * k + 1)}")
        A(f"global_store_dwordx4 {v(vREG)}, {v(vU, 4)}, {sp(sWS)} offset:-4096 sc1")
        for k in range(4, 8):
            A(f"v_cvt_pk_bf16_f32 {v(vU + k)}, {v(Dd + 2 * k)}, {v(Dd + 2 * k + 1)}")
        A(f"global_store_dwordx4 {v(vREG)}, {v(vU + 4, 4)}, {sp(sWS)} sc1")
        self.stamp("x1st")

        L2E = 1.4426950408889634
        l2e_hi = struct.unpack("<f", struct.pack("<f", L2E))[0]
        l2e_lo = L2E - l2e_hi
        a, b = K, K + 2
        A(f"s_lshl_b32 s{sTMP}, s{sDT}, 16")
        A(f"s_and_b32 s{sTMP + 1}, s{sDT}, s{sMASK}")
        A(f"s_cmp_lt_u32 s{sWAVE}, 2")
        A(f"s_cselect_b32 s{sDT}, s{sTMP}, s{sTMP + 1}")
        A(f"s_mov_b32 s{sE}, {hex(f2u(l2e_hi))}")
        A(f"s_mov_b32 s{sE + 1}, {hex(f2u(l2e_lo))}")
        A(f"v_lshlrev_b32 {v(a)}, 16, {v(vP)}")
        A(f"v_mov_b32 {v(a + 1)}, s{sDT}")
        A(f"v_pk_mul_f32 {v(b, 2)}, {v(a, 2)}, {sp(sE)} op_sel_hi:[1,0]")
        A(f"v_pk_fma_f32 {v(b + 2, 2)}, {v(a, 2)}, {sp(sE)}, {v(b, 2)} op_sel_hi:[1,0,1] neg_lo:[0,0,1] neg_hi:[0,0,1]")
        A(f"v_exp_f32 {v(b)}, {v(b)}")
        A(f"v_exp_f32 {v(b + 1)}, {v(b + 1)}")
        A(f"v_pk_fma_f32 {v(b + 2, 2)}, {v(a, 2)}, {sp(sE)}, {v(b + 2, 2)} op_sel:[0,1,0] op_sel_hi:[1,1,1]")
        A(f"v_mul_f32 {v(b + 2)}, {hex(f2u(0.6931471805599453))}, {v(b + 2)}")
        A(f"v_mul_f32 {v(b + 3)}, {hex(f2u(0.6931471805599453))}, {v(b + 3)}")
        A(f"v_pk_fma_f32 {v(b, 2)}, {v(b, 2)}, {v(b + 2, 2)}, {v(b, 2)}")
        A(f"v_cvt_pk_bf16_f32 {v(a)}, {v(b)}, {v(b + 1)}")
        vdt, va2, vph = K + 6, K + 7, K + 8
        A(f"v_and_b32 {v(vdt)}, s{sMASK}, {v(a)}")
        A(f"v_lshlrev_b32 {v(va2)}, 16, {v(a)}")
        A(f"v_lshlrev_b32 {v(vph)}, 16, {v(vP + 1)}")
        A(f"v_mul_f32 {v(va2)}, {v(va2)}, {v(vdt)}")
        A(f"v_mul_f32 {v(vph)}, {v(vph)}, {v(vdt)}")
        A(f"v_mul_f32 {v(va2)}, {hex(f2u(-l2e_hi))}, {v(va2)}")
        A(f"v_mul_f32 {v(vph)}, 0.15915494, {v(vph)}")
        Wp = {p: K + 10 + 2 * p for p in range(1, 17)}
        Zp = {p: K + 42 + 2 * p for p in range(1, 8)}
        G = [K + 58, K + 60]
        TT = [K + 62, K + 64, K + 66, K + 68]
        RR = [K + 70, K + 72, K + 74, K + 76]
        CV = K + 80
        A(f"v_add_f32 {v(vdt)}, {v(vdt)}, {v(vdt)}")
        A(f"v_lshlrev_b32 {v(G[0])}, 16, {v(vP + 2)}")
        A(f"v_lshlrev_b32 {v(G[0] + 1)}, 16, {v(vP + 3)}")
        A(f"v_mul_f32 {v(G[0])}, {v(G[0])}, {v(vdt)}")
        A(f"v_mul_f32 {v(G[0] + 1)}, {v(G[0] + 1)}, {v(vdt)}")
        for n, (dst, sc) in enumerate(((Wp[1], 1.0), (Wp[16], 16.0), (Zp[1], 256.0))):
            t = TT[n]
            if sc == 1.0:
                A(f"v_exp_f32 {v(t)}, {v(va2)}")
                A(f"v_fract_f32 {v(t + 1)}, {v(vph)}")
            else:
                A(f"v_mul_f32 {v(t)}, {hex(f2u(sc))}, {v(va2)}")
                A(f"v_mul_f32 {v(t + 1)}, {hex(f2u(sc))}, {v(vph)}")
                A(f"v_exp_f32 {v(t)}, {v(t)}")
                A(f"v_fract_f32 {v(t + 1)}, {v(t + 1)}")
            A(f"v_cos_f32 {v(dst)}, {v(t + 1)}")
            A(f"v_sin_f32 {v(dst + 1)}, {v(t + 1)}")
        for n, dst in enumerate((Wp[1], Wp[16], Zp[1])):
            A(f"v_pk_mul_f32 {v(dst, 2)}, {v(dst, 2)}, {v(TT[n], 2)} op_sel_hi:[1,0]")
        jobs = [(1, Wp[1], None, None, 0), (16, Zp[1], None, None, 0), (47, G[0], None, None, 1)]
        wj = []
        for p in range(2, 16):
            hb = 1 << (p.bit_length() - 1)
            x, y = (p // 2, p // 2) if hb == p else (hb, p - hb)
            wj.append((p, Wp[p], Wp[x], Wp[y], 0))
        gj = [(47 + j, G[j & 1], G[(j - 1) & 1], Wp[16], 1) for j in range(1, 16)]
        zrow = {2: 25, 3: 30, 4: 35, 5: 38, 6: 41, 7: 44}
        zj = []
        for p in range(2, 8):
            hb = 1 << (p.bit_length() - 1)
            x, y = (p // 2, p // 2) if hb == p else (hb, p - hb)
            zj.append((zrow[p], Zp[p], Zp[x], Zp[y], 0))
        tj = [(16 + k, None, Zp[1], Wp[2 * k], 0) for k in range(1, 9)]
        for z in (2, 3):
            tj += [(zrow[z] + k, None, Zp[z], Wp[4 * k], 0) for k in range(1, 5)]
        for z in (4, 5, 6, 7):
            tj += [(zrow[z] + k, None, Zp[z], Wp[8 * k], 0) for k in range(1, 3)]
        first = []
        for i in range(max(len(wj), len(gj), len(zj))):
            for q in (wj, gj, zj):
                if i < len(q):
                    first.append(q[i])
        jobs += first + tj
        A(f"v_mov_b32 {v(CV + 15)}, s{sSELLO}")
        pend = [(0, CV + 15)]
        slot = 0
        flag_at = o.get("flag_at", 3)
        nb = 0
        for n, (row, dst, x, y, conj) in enumerate(jobs):
            if x is not None:
                if dst is None:
                    dst = RR[n & 3]
                for ins in self.cmul(dst, x, y, TT[n & 3]):
                    A(ins)
            A(f"v_cvt_pk_bf16_f32 {v(CV + slot)}, {v(dst)}, {'-' if conj else ''}{v(dst + 1)}")
            pend.append((row, CV + slot))
            slot = (slot + 1) % 15
            if len(pend) >= 6 or n == len(jobs) - 1:
                for row_, reg in pend:
                    A(f"ds_write_addtid_b32 {v(reg)} offset:{row_ * ROWB}")
                pend = []
                nb += 1
                if nb == flag_at:
                    A(f"v_lshrrev_b32 {v(vT)}, 1, v0")
                    A(f"v_lshlrev_b32 {v(vT + 1)}, 5, {v(vT)}")
                    A(f"v_add_u32 {v(vT + 1)}, {W_FLAG + 4096}, {v(vT + 1)}")
                    fl = [f"global_load_dword {v(vT + 2)}, {v(vT + 1)}, {sp(sWS)} offset:-4096 sc1",
                          f"global_load_dword {v(vT + 3)}, {v(vT + 1)}, {sp(sWS)} sc1"]
                    for l in fl:
                        A(l)
                    A(f"s_and_b32 s{sTMP}, s{sL}, 1")
                    A(f"s_lshl_b32 s{sTMP}, s{sTMP}, 12")
                    A(f"s_lshr_b32 s{sTMP + 1}, s{sL}, 1")
                    A(f"s_lshl_b32 s{sTMP + 1}, s{sTMP + 1}, 5")
                    A(f"s_add_u32 s{sTMP}, s{sTMP}, s{sTMP + 1}")
                    A(f"s_add_u32 s{sTMP}, s{sTMP}, {W_REG + O_X1}")
                    A(f"v_mul_u32_u24 {v(vAUX)}, {RS}, {v(vT)}")
                    A(f"v_and_b32 {v(vT)}, 1, v0")
                    A(f"v_lshl_add_u32 {v(vAUX)}, {v(vT)}, 4, {v(vAUX)}")
                    A(f"v_add_u32 {v(vAUX)}, s{sTMP}, {v(vAUX)}")
                    A(f"v_add_u32 {v(vAUX + 1)}, {128 * RS}, {v(vAUX)}")
        self.stamp("kgen1")
        A("s_waitcnt vmcnt(0)")
        self.poll("flag", fl, [f"v_xor_b32 {v(vT + 4)}, s{sG}, {v(vT + 2)}",
                               f"v_xor_b32 {v(vT + 5)}, s{sG}, {v(vT + 3)}",
                               f"v_or_b32 {v(vT + 4)}, {v(vT + 4)}, {v(vT + 5)}",
                               f"v_cmp_ne_u32 vcc, 0, {v(vT + 4)}"])
        vY = vACC + 24
        x1l = [f"global_load_dwordx4 {v(vY, 4)}, {v(vAUX)}, {sp(sWS)} sc1",
               f"global_load_dwordx4 {v(vY + 4, 4)}, {v(vAUX + 1)}, {sp(sWS)} sc1"]
        for l in x1l:
            A(l)
        self.stamp("flag")
        A("s_waitcnt lgkmcnt(0)")
        A("s_barrier")
        fB, fA0, fA1 = K, K + 32, K + 64
        for s in range(8):
            A(f"ds_read_b128 {v(fB + 4 * s, 4)}, {v(vKB)} offset:{47 * ROWB + 64 * s}")
            A(f"ds_read_b128 {v(fA0 + 4 * s, 4)}, {v(vKA0)} offset:{64 * s}")
            A(f"ds_read_b128 {v(fA1 + 4 * s, 4)}, {v(vKA1)} offset:{64 * s}")
            if s == 3:
                break
        D0, D1 = vACC, vACC + 4
        for s in range(8):
            if s + 4 < 8:
                s2 = s + 4
                A(f"s_waitcnt lgkmcnt(9)")
            else:
                A(f"s_waitcnt lgkmcnt({3 * (7 - s)})")
            c0 = "0" if s == 0 else v(D0, 4)
            c1 = "0" if s == 0 else v(D1, 4)
            A(f"v_mfma_f32_16x16x32_bf16 {v(D0, 4)}, {v(fA0 + 4 * s, 4)}, {v(fB + 4 * s, 4)}, {c0}")
            A(f"v_mfma_f32_16x16x32_bf16 {v(D1, 4)}, {v(fA1 + 4 * s, 4)}, {v(fB + 4 * s, 4)}, {c1}")
            if s + 4 < 8:
                A(f"ds_read_b128 {v(fB + 4 * s2, 4)}, {v(vKB)} offset:{47 * ROWB + 64 * s2}")
                A(f"ds_read_b128 {v(fA0 + 4 * s2, 4)}, {v(vKA0)} offset:{64 * s2}")
                A(f"ds_read_b128 {v(fA1 + 4 * s2, 4)}, {v(vKA1)} offset:{64 * s2}")
        E = K + 96
        A(f"s_bitcmp1_b32 s{sWAVE}, 0")
        A(f"v_cmp_eq_u32 vcc, 0, {v(vLANE)}")
        A("s_nop 5")
        A("s_cbranch_scc1 L_exp_hi")
        A(f"v_mov_b32_dpp {v(D1 + 3)}, {v(D1 + 3)} row_ror:1 row_mask:0x1 bank_mask:0xf")
        A(f"v_cvt_pk_bf16_f32 {v(E + 1)}, {v(D0 + 1)}, {v(D0)}")
        A(f"v_cvt_pk_bf16_f32 {v(E + 2)}, {v(D0 + 2)}, {v(D0 + 1)}")
        A(f"v_cvt_pk_bf16_f32 {v(E + 3)}, {v(D0 + 3)}, {v(D0 + 2)}")
        A(f"v_cndmask_b32 {v(E + 8)}, {v(D1 + 3)}, 0, vcc")
        A(f"v_cndmask_b32 {v(E + 9)}, {v(D1)}, {v(D1 + 3)}, vcc")
        A(f"v_cvt_pk_bf16_f32 {v(E)}, {v(D0)}, {v(E + 8)}")
        A(f"v_cvt_pk_bf16_f32 {v(E + 4)}, {v(D1)}, {v(E + 9)}")
        A(f"v_cvt_pk_bf16_f32 {v(E + 5)}, {v(D1)}, {v(D1)}")
        A(f"v_cvt_pk_bf16_f32 {v(E + 6)}, {v(D1 + 1)}, {v(D1)}")
        A(f"v_cvt_pk_bf16_f32 {v(E + 7)}, {v(D1 + 2)}, {v(D1 + 1)}")
        A(f"ds_write_b128 {v(vPW0)}, {v(E, 4)}")
        A(f"ds_write_b128 {v(vPW1)}, {v(E + 4, 4)}")
        A("s_branch L_exp_done")
        A("L_exp_hi:")
        seq2 = ["aa", "aa", "aa", "ba", "bb", "bb", "cb", "cc"]
        seq3 = ["aa", "aa", "aa", "aa", "aa", "ba", "bb", "bb", "bb", "bb", "cb", "cc", "cc", "cc"]
        ix = {"a": 0, "b": 1, "c": 2}
        for k, s in enumerate(seq2):
            A(f"v_cvt_pk_bf16_f32 {v(E + k)}, {v(D0 + ix[s[0]])}, {v(D0 + ix[s[1]])}")
        A(f"ds_write_b128 {v(vPW0)}, {v(E, 4)}")
        A(f"ds_write_b128 {v(vPW0)}, {v(E + 4, 4)} offset:16")
        for k, s in enumerate(seq3):
            A(f"v_cvt_pk_bf16_f32 {v(E + 8 + k)}, {v(D1 + ix[s[0]])}, {v(D1 + ix[s[1]])}")
        for k, w in enumerate((0, 4, 6, 10)):
            A(f"ds_write_b128 {v(vPW1)}, {v(E + 8 + w, 4)} offset:{16 * k}")
        A("L_exp_done:")
        A("s_waitcnt lgkmcnt(0)")
        A("s_barrier")
        self.stamp("kgen2")

        def rdA(buf, rho, m):
            return [f"ds_read2_b32 {v(buf + 4 * m, 2)}, {v(vAA + m)} offset0:{64 * rho + 6} offset1:{64 * rho + 4}",
                    f"ds_read2_b32 {v(buf + 4 * m + 2, 2)}, {v(vAA + m)} offset0:{64 * rho + 2} offset1:{64 * rho}"]

        def rdB(buf, rho, n):
            return [f"ds_read_b128 {v(buf + 4 * n, 4)}, {v(vBA)} offset:{128 * (3 - rho) + 512 * (7 - n)}"]

        for m in range(8):
            for l in rdA(vA0, 0, m):
                A(l)
        for m in range(8):
            for l in rdA(vA1, 1, m):
                A(l)
        A(f"s_mul_i32 s{sF}, s{sXCD}, 14")
        A(f"s_add_u32 s{sF}, s{sF}, s{sPOS}")
        A(f"s_bitcmp1_b32 s{sWAVE}, 0")
        A(f"s_cselect_b64 {sp(sWSEL)}, {sp(sWU)}, {sp(sWG)}")
        A(f"s_cmp_lt_u32 s{sPOS}, 14")
        A(f"s_cselect_b32 s{sF}, s{sF}, 0")
        A(f"s_cselect_b32 s{sTMP}, -1, 0")
        A(f"s_lshr_b32 s{sTMP + 1}, s{sWAVE}, 1")
        A(f"s_mul_i32 s{sTMP + 1}, s{sTMP + 1}, {256 * 3584}")
        A(f"s_lshl_b32 s{sTMP + 2}, s{sF}, 5")
        A(f"s_add_u32 s{sTMP + 1}, s{sTMP + 1}, s{sTMP + 2}")
        A(f"v_lshrrev_b32 {v(vT)}, 1, {v(vLANE)}")
        A(f"v_mul_u32_u24 {v(vT)}, {8 * 3584}, {v(vT)}")
        A(f"v_and_b32 {v(vT + 1)}, 1, {v(vLANE)}")
        A(f"v_lshl_add_u32 {v(vT)}, {v(vT + 1)}, 4, {v(vT)}")
        A(f"v_add_u32 {v(vT)}, s{sTMP + 1}, {v(vT)}")
        A(f"v_and_b32 {v(vT)}, s{sTMP}, {v(vT)}")
        A(f"v_add_u32 {v(vT + 2)}, {7 * 3584}, {v(vT)}")
        A(f"v_add_u32 {v(vT + 1)}, {4 * 3584}, {v(vT)}")
        A(f"v_add_u32 {v(vT)}, 3584, {v(vT)}")
        A(f"s_lshl_b32 s{sTMP + 1}, s{sF}, 14")
        A(f"s_add_u32 s{sTMP + 1}, s{sTMP + 1}, 4096")
        A(f"v_and_b32 {v(vT + 3)}, s{sTMP}, v0")
        A(f"v_lshl_add_u32 {v(vT + 3)}, {v(vT + 3)}, 2, s{sTMP + 1}")
        A(f"v_add_u32 {v(vT + 4)}, 8192, {v(vT + 3)}")
        wl = []
        for k in range(8):
            base, off = (vT + (k // 3), (k % 3 - 1) * 3584)
            wl.append(f"global_load_dwordx4 {v(vWG + 4 * k, 4)}, {v(base)}, {sp(sWSEL)} offset:{off}")
        for k in range(16):
            wl.append(f"global_load_dword {v(vWD + k)}, {v(vT + 3 + (k >> 3))}, {sp(sWD)} offset:{((k & 7) - 4) * 1024}")
        A(f"v_lshlrev_b32 {v(vT + 5)}, 3, v0")
        A(f"v_add_u32 {v(vT + 5)}, {L_U + 480}, {v(vT + 5)}")
        A("s_waitcnt vmcnt(0)")
        chk8 = [f"v_max3_u32 {v(vT + 6)}, {v(vY)}, {v(vY + 1)}, {v(vY + 2)}",
                f"v_max3_u32 {v(vT + 7)}, {v(vY + 3)}, {v(vY + 4)}, {v(vY + 5)}",
                f"v_max3_u32 {v(vT + 6)}, {v(vT + 6)}, {v(vY + 6)}, {v(vY + 7)}",
                f"v_max_u32 {v(vT + 6)}, {v(vT + 6)}, {v(vT + 7)}",
                f"v_cmp_eq_u32 vcc, -1, {v(vT + 6)}"]
        self.poll("x1", x1l, chk8)
        self.stamp("x1ld")
        A(f"ds_write2st64_b64 {v(vT + 5)}, {v(vY, 2)}, {v(vY + 2, 2)} offset0:0 offset1:9")
        A(f"ds_write2st64_b64 {v(vT + 5)}, {v(vY + 4, 2)}, {v(vY + 6, 2)} offset0:4 offset1:13")
        A("s_waitcnt lgkmcnt(0)")
        A("s_barrier")

        bufA, bufB = [vA0, vA1], [vB0, vB1]
        for n in range(7, -1, -1):
            for l in rdB(vB0, 0, n):
                A(l)
        A(f"s_or_b32 s{sTMP}, s{sL}, s{sWAVE}")
        A(f"s_cmp_eq_u32 s{sTMP}, 0")
        A("s_cselect_b64 exec, 1, 0")
        A(f"v_mov_b32 {v(vT + 6)}, s{sG}")
        A(f"v_mov_b32 {v(vT + 7)}, 0")
        A(f"global_store_dword {v(vT + 7)}, {v(vT + 6)}, {sp(sWS)} sc1")
        A("s_mov_b64 exec, -1")
        started = set()
        for rho in range(4):
            a_, b_ = bufA[rho & 1], bufB[rho & 1]
            order = [(n - 7 + tb, tb, n) for n in range(7, -1, -1) for tb in range(7 - n, 8)]
            fill = []
            if rho + 1 < 4:
                nb_ = bufB[(rho + 1) & 1]
                for n in range(7, -1, -1):
                    fill += rdB(nb_, rho + 1, n)
                if rho >= 1:
                    na_ = bufA[(rho + 1) & 1]
                    for m in range(8):
                        fill += rdA(na_, rho + 1, m)
            nw = {0: 8, 1: 4, 2: 4, 3: 8}[rho]
            wfill = [wl.pop(0) for _ in range(nw)]
            issued = 0
            seen = set()
            for i, (m, tb, n) in enumerate(order):
                if rho == 0 and n not in seen:
                    A(f"s_waitcnt lgkmcnt({min(15, n + issued)})")
                    seen.add(n)
                elif i == 0:
                    A("s_waitcnt lgkmcnt(0)")
                acc = v(vACC + 4 * tb, 4)
                c = acc if tb in started else "0"
                started.add(tb)
                A(f"v_mfma_f32_16x16x32_bf16 {acc}, {v(a_ + 4 * m, 4)}, {v(b_ + 4 * n, 4)}, {c}")
                if i >= 1 and fill:
                    A(fill.pop(0))
                    issued += 1
                if i % 4 == 2 and wfill:
                    A(wfill.pop(0))
            assert not fill and not wfill
        self.stamp("conv")
        for tb in range(8):
            A(f"ds_write_b128 {v(vEW)}, {v(vACC + 4 * tb, 4)} offset:{tb * TBS}")
        A(f"s_mul_i32 s{sTMP}, s{sL}, {RS}")
        A(f"s_lshl_b32 s{sTMP + 1}, s{sWAVE}, 11")
        A(f"s_add_u32 s{sTMP}, s{sTMP}, s{sTMP + 1}")
        A(f"s_add_u32 s{sTMP}, s{sTMP}, {W_REG + O_X2}")
        A(f"v_lshl_add_u32 {v(vT)}, {v(vLANE)}, 4, s{sTMP}")
        A("s_waitcnt lgkmcnt(0)")
        A("s_barrier")
        for i in range(2):
            for s in range(4):
                A(f"ds_read_b128 {v(K + 16 * i + 4 * s, 4)}, {v(vER)} offset:{s * 8 * TBS + i * TBS}")
        for i in range(2):
            A(f"s_waitcnt lgkmcnt({4 * (1 - i)})")
            b0 = K + 16 * i
            for c in range(2):
                for h in range(2):
                    A(f"v_pk_add_f32 {v(b0 + 8 * c + 2 * h, 2)}, {v(b0 + 8 * c + 2 * h, 2)}, {v(b0 + 8 * c + 4 + 2 * h, 2)}")
            for c in range(2):
                for h in range(2):
                    A(f"v_cvt_pk_bf16_f32 {v(K + 32 + 4 * i + 2 * c + h)}, {v(b0 + 8 * c + 2 * h)}, {v(b0 + 8 * c + 2 * h + 1)}")
            A(f"global_store_dwordx4 {v(vT)}, {v(K + 32 + 4 * i, 4)}, {sp(sWS)} offset:{1024 * i} sc1")
        self.stamp("x2st")

        Tt, Xf = K + 40, K + 56
        Df = K + 72
        A(f"v_lshlrev_b32 {v(Df)}, 16, {v(vD)}")
        A(f"v_and_b32 {v(Df + 1)}, s{sMASK}, {v(vD)}")
        A(f"v_lshlrev_b32 {v(Df + 2)}, 16, {v(vD + 1)}")
        A(f"v_and_b32 {v(Df + 3)}, s{sMASK}, {v(vD + 1)}")
        for k in range(8):
            A(f"v_lshlrev_b32 {v(Tt + 2 * k)}, 16, {v(vU + k)}")
            A(f"v_and_b32 {v(Tt + 2 * k + 1)}, s{sMASK}, {v(vU + k)}")
        for k in range(8):
            c = k >> 1
            sel = "op_sel:[0,1] op_sel_hi:[1,1]" if c & 1 else "op_sel_hi:[1,0]"
            A(f"v_pk_mul_f32 {v(Tt + 2 * k, 2)}, {v(Tt + 2 * k, 2)}, {v(Df + (c & 2), 2)} {sel}")
        for k in range(8):
            A(f"v_cvt_pk_bf16_f32 {v(Xf + k)}, {v(Tt + 2 * k)}, {v(Tt + 2 * k + 1)}")
        for k in range(8):
            A(f"v_lshlrev_b32 {v(Tt + 2 * k)}, 16, {v(Xf + k)}")
            A(f"v_and_b32 {v(Tt + 2 * k + 1)}, s{sMASK}, {v(Xf + k)}")
        for r in range(4):
            for c in range(4):
                src = v(vX + 2 * r + (c >> 1))
                if c & 1:
                    A(f"v_and_b32 {v(Xf + 4 * c + r)}, s{sMASK}, {src}")
                else:
                    A(f"v_lshlrev_b32 {v(Xf + 4 * c + r)}, 16, {src}")
        A(f"v_and_b32 {v(vT)}, 0xfe, v0")
        A(f"v_mul_u32_u24 {v(vAUX)}, {RS}, {v(vT)}")
        A(f"v_and_b32 {v(vT)}, 1, v0")
        A(f"v_lshl_add_u32 {v(vAUX)}, {v(vT)}, 4, {v(vAUX)}")
        A(f"s_lshl_b32 s{sTMP}, s{sL}, 5")
        A(f"s_add_u32 s{sTMP}, s{sTMP}, {W_REG + O_X2}")
        A(f"v_add_u32 {v(vAUX)}, s{sTMP}, {v(vAUX)}")
        A(f"v_add_u32 {v(vAUX + 1)}, {RS}, {v(vAUX)}")
        A("s_waitcnt vmcnt(0)")
        self.stamp("x2dr")
        for l in x1l:
            A(l)
        A(f"s_mov_b32 s{sRP0}, 0x05040100")
        A(f"s_mov_b32 s{sRP1}, 0x07060302")
        WGp = K + 88
        for kp in range(4):
            for d in range(4):
                lo, hi = vWG + 8 * kp + d, vWG + 8 * kp + 4 + d
                A(f"v_perm_b32 {v(WGp + 8 * kp + 2 * d)}, {v(hi)}, {v(lo)}, s{sRP0}")
                A(f"v_perm_b32 {v(WGp + 8 * kp + 2 * d + 1)}, {v(hi)}, {v(lo)}, s{sRP1}")
        WDp = vWG
        for kp in range(8):
            lo, hi = vWD + 2 * kp, vWD + 2 * kp + 1
            A(f"v_perm_b32 {v(WDp + 2 * kp)}, {v(hi)}, {v(lo)}, s{sRP0}")
            A(f"v_perm_b32 {v(WDp + 2 * kp + 1)}, {v(hi)}, {v(lo)}, s{sRP1}")
        A("s_waitcnt vmcnt(0)")
        self.poll("x2", x1l, chk8)
        self.stamp("x2ld")

        for k in range(8):
            A(f"v_dot2_f32_bf16 {v(Tt + 2 * k)}, {v(vY + k)}, s{sSELLO}, {v(Tt + 2 * k)}")
            A(f"v_dot2_f32_bf16 {v(Tt + 2 * k + 1)}, {v(vY + k)}, s{sSELHI}, {v(Tt + 2 * k + 1)}")
        for k in range(8):
            A(f"v_cvt_pk_bf16_f32 {v(vY + k)}, {v(Tt + 2 * k)}, {v(Tt + 2 * k + 1)}")
        for k in range(8):
            A(f"v_dot2_f32_bf16 {v(Xf + 2 * k)}, {v(vY + k)}, s{sSELLO}, {v(Xf + 2 * k)}")
            A(f"v_dot2_f32_bf16 {v(Xf + 2 * k + 1)}, {v(vY + k)}, s{sSELHI}, {v(Xf + 2 * k + 1)}")
        vH = vX
        for r in range(4):
            for cp in range(2):
                A(f"v_cvt_pk_bf16_f32 {v(vH + 2 * r + cp)}, {v(Xf + 8 * cp + r)}, {v(Xf + 8 * cp + 4 + r)}")
        Rr = [K + 8 + i for i in range(4)]
        for cp in range(2):
            for r in range(4):
                A(f"v_dot2_f32_bf16 {v(V[r])}, {v(vH + 2 * r + cp)}, s{sONES}, {v(V[r]) if cp else 0}")
            for r in range(4):
                A(f"v_dot2_f32_bf16 {v(V[4 + r])}, {v(vH + 2 * r + cp)}, {v(vH + 2 * r + cp)}, {v(V[4 + r]) if cp else 0}")
            for r in range(4):
                A(f"v_dot2_f32_bf16 {v(Rr[r])}, {v(vH + 2 * r + cp)}, {v(vWR + cp)}, {v(Rr[r]) if cp else 0}")
        self.reduce8(V, K + 12)
        for i in range(4):
            A(f"v_add_f32_dpp {v(Rr[i])}, {v(Rr[i])}, {v(Rr[i])} row_ror:8 row_mask:0xf bank_mask:0xf")
        for i in range(2):
            A(f"v_add_f32_dpp {v(Rr[i])}, {v(Rr[i])}, {v(Rr[i])} row_shl:4 row_mask:0xf bank_mask:0x5")
        for i in range(2):
            A(f"v_add_f32_dpp {v(Rr[i])}, {v(Rr[i + 2])}, {v(Rr[i + 2])} row_shr:4 row_mask:0xf bank_mask:0xa")
        A(f"ds_write_b32 {v(vSW)}, {v(V[0])} offset:{L_RED2 - L_RED1}")
        A(f"v_permlane32_swap_b32 {v(Rr[0])}, {v(Rr[1])}")
        A(f"v_add_f32 {v(Rr[0])}, {v(Rr[0])}, {v(Rr[1])}")
        A(f"v_and_b32 {v(K + 13)}, 0xffffff7f, {v(vSW)}")
        A(f"v_add_f32_dpp {v(Rr[0])}, {v(Rr[0])}, {v(Rr[0])} quad_perm:[2,3,0,1] row_mask:0xf bank_mask:0xf")
        A(f"v_mov_b32 {v(K + 12)}, {v(Rr[0])}")
        A(f"v_permlane16_swap_b32 {v(Rr[0])}, {v(K + 12)}")
        A(f"v_add_f32 {v(Rr[0])}, {v(Rr[0])}, {v(K + 12)}")
        assert L_RED1 % 256 == 0
        A(f"ds_write_b32 {v(K + 13)}, {v(Rr[0])} offset:{L_RED2 - L_RED1 + 256}")
        A(f"v_mov_b32 {v(K + 14)}, {L_SUMW}")
        A("s_waitcnt lgkmcnt(0)")
        A("s_barrier")
        A(f"ds_read_b128 {v(K, 4)}, {v(vRA)} offset:{L_RED2 - L_RED1}")
        A(f"ds_read_b128 {v(K + 4, 4)}, {v(vRA)} offset:{L_RED2 - L_RED1 + 128}")
        A(f"ds_read_b128 {v(K + 8, 4)}, {v(vRA)} offset:{L_RED2 - L_RED1 + 256}")
        A(f"ds_read_b32 {v(K + 15)}, {v(K + 14)}")
        A(f"s_lshl_b32 s{sTMP}, s{sL}, 3")
        A(f"s_sub_u32 s{sTMP}, 2047, s{sTMP}")
        A(f"v_and_b32 {v(K + 14)}, 7, {v(vLANE)}")
        A(f"v_sub_u32 {v(K + 14)}, s{sTMP}, {v(K + 14)}")
        A(f"s_mov_b64 vcc, {sp(sODD)}")
        A("s_waitcnt lgkmcnt(2)")
        self.row_stats(K, K + 4, K + 12, K + 13, K + 28)
        A("s_waitcnt lgkmcnt(0)")
        A(f"v_pk_add_f32 {v(K + 8, 2)}, {v(K + 8, 2)}, {v(K + 10, 2)}")
        A(f"v_add_f32 {v(K + 8)}, {v(K + 8)}, {v(K + 9)}")
        A(f"v_fmac_f32 {v(K + 8)}, {v(K + 12)}, {v(K + 15)}")
        A(f"v_mul_f32 {v(K + 8)}, {v(K + 8)}, {v(K + 13)}")
        A(f"v_ashrrev_i32 {v(K + 9)}, 31, {v(K + 8)}")
        A(f"v_or_b32 {v(K + 9)}, 0x80000000, {v(K + 9)}")
        A(f"v_xor_b32 {v(K + 8)}, {v(K + 8)}, {v(K + 9)}")
        A(f"v_and_b32 {v(K + 8)}, 0xfffff800, {v(K + 8)}")
        A(f"v_or_b32 {v(K + 8)}, {v(K + 8)}, {v(K + 14)}")
        A(f"v_min_u32 {v(K + 8)}, -2, {v(K + 8)}")
        A(f"v_max_u32_dpp {v(K + 8)}, {v(K + 8)}, {v(K + 8)} quad_perm:[1,0,3,2] row_mask:0xf bank_mask:0xf")
        A(f"v_max_u32_dpp {v(K + 8)}, {v(K + 8)}, {v(K + 8)} quad_perm:[2,3,0,1] row_mask:0xf bank_mask:0xf")
        A(f"v_max_u32_dpp {v(K + 8)}, {v(K + 8)}, {v(K + 8)} row_half_mirror row_mask:0xf bank_mask:0xf")
        A(f"s_cmp_eq_u32 s{sWAVE}, 0")
        A("s_cselect_b64 exec, 1, 0")
        A(f"global_store_dword {v(vAUX + 2)}, {v(K + 8)}, {sp(sWS)} sc1")
        A("s_mov_b64 exec, -1")
        self.stamp("key")
        A(f"v_readfirstlane_b32 s{sBEST}, {v(K + 8)}")
        self.spread(K + 12, vNM, K + 24)
        Hf, Dd = Xf, Tt
        for r in range(4):
            for cp in range(2):
                A(f"v_lshlrev_b32 {v(Hf + 4 * r + 2 * cp)}, 16, {v(vH + 2 * r + cp)}")
                A(f"v_and_b32 {v(Hf + 4 * r + 2 * cp + 1)}, s{sMASK}, {v(vH + 2 * r + cp)}")
        self.spread(K + 13, vRI, K + 24)
        for k in range(8):
            r = k >> 1
            sel = "op_sel:[0,1] op_sel_hi:[1,1]" if r & 1 else "op_sel_hi:[1,0]"
            A(f"v_pk_add_f32 {v(Dd + 2 * k, 2)}, {v(Hf + 2 * k, 2)}, {v(vNM + (r & 2), 2)} {sel}")
        vX2 = vU
        for k in range(8):
            A(f"v_cvt_pk_bf16_f32 {v(vX2 + k)}, {v(Dd + 2 * k)}, {v(Dd + 2 * k + 1)}")
        for k in range(8):
            A(f"v_lshlrev_b32 {v(Dd + 2 * k)}, 16, {v(vX2 + k)}")
            A(f"v_and_b32 {v(Dd + 2 * k + 1)}, s{sMASK}, {v(vX2 + k)}")
        for k in range(8):
            r = k >> 1
            sel = "op_sel:[0,1] op_sel_hi:[1,1]" if r & 1 else "op_sel_hi:[1,0]"
            A(f"v_pk_mul_f32 {v(Dd + 2 * k, 2)}, {v(Dd + 2 * k, 2)}, {v(vRI + (r & 2), 2)} {sel}")
        for k in range(8):
            A(f"v_cvt_pk_bf16_f32 {v(vX2 + k)}, {v(Dd + 2 * k)}, {v(Dd + 2 * k + 1)}")
        A(f"s_andn2_b32 s{sTMP}, 7, s{sBEST}")
        A(f"s_and_b32 s{sTMP + 1}, s{sTMP}, 3")
        A(f"s_lshl_b32 s{sTMP + 2}, s{sTMP + 1}, 1")
        A(f"s_not_b64 {sp(sE)}, {sp(sODD)}")
        A(f"s_cmp_ge_u32 s{sTMP}, 4")
        A(f"s_cselect_b64 {sp(sE)}, {sp(sODD)}, {sp(sE)}")
        vC = K + 24
        A(f"s_set_gpr_idx_on s{sTMP + 2}, gpr_idx(SRC0)")
        A(f"v_mov_b32 {v(vC)}, {v(vX2)}")
        A(f"v_mov_b32 {v(vC + 1)}, {v(vX2 + 1)}")
        A(f"v_mov_b32 {v(vC + 2)}, {v(vH)}")
        A(f"v_mov_b32 {v(vC + 3)}, {v(vH + 1)}")
        A("s_set_gpr_idx_off")
        A(f"s_mul_i32 s{sTMP + 3}, s{sL}, {RS}")
        A(f"s_add_u32 s{sTMP + 3}, s{sTMP + 3}, {W_REG + O_SLOT}")
        A(f"v_lshrrev_b32 {v(vT)}, 1, v0")
        A(f"v_lshl_add_u32 {v(vT)}, {v(vT)}, 3, s{sTMP + 3}")
        A(f"s_mov_b64 exec, {sp(sE)}")
        A(f"global_store_dwordx2 {v(vT)}, {v(vC, 2)}, {sp(sWS)} sc1")
        A(f"global_store_dwordx2 {v(vT)}, {v(vC + 2, 2)}, {sp(sWS)} offset:1024 sc1")
        A("s_mov_b64 exec, -1")
        for k in range(8):
            A(f"v_dot2_f32_bf16 {v(Hf + 2 * k)}, {v(vX2 + k)}, s{sSELLO}, {v(Hf + 2 * k)}")
            A(f"v_dot2_f32_bf16 {v(Hf + 2 * k + 1)}, {v(vX2 + k)}, s{sSELHI}, {v(Hf + 2 * k + 1)}")
        vO = vY
        A(f"v_lshlrev_b32 {v(vT + 1)}, 5, v0")
        A(f"v_add_u32 {v(vT + 1)}, {W_KEY}, {v(vT + 1)}")
        for k in range(8):
            A(f"v_cvt_pk_bf16_f32 {v(vO + k)}, {v(Hf + 2 * k)}, {v(Hf + 2 * k + 1)}")
        A("s_waitcnt vmcnt(0)")
        self.stamp("keydr")
        kl = [f"global_load_dword {v(vT + 2)}, {v(vT + 1)}, {sp(sWS)} sc1"]
        A(kl[0])
        for r in range(4):
            A(f"s_cmp_eq_u32 s{sTMP + 1}, {r}")
            A(f"s_cselect_b64 vcc, {sp(sE)}, 0")
            A("s_not_b64 exec, vcc")
            A(f"global_store_dwordx2 {v(vRD)}, {v(vO + 2 * r, 2)}, {sp(sOUT)} offset:{1024 * r}")
        A("s_mov_b64 exec, -1")
        A(f"s_set_gpr_idx_on s{sTMP + 2}, gpr_idx(SRC0)")
        A(f"v_mov_b32 {v(vC)}, {v(vO)}")
        A(f"v_mov_b32 {v(vC + 1)}, {v(vO + 1)}")
        A("s_set_gpr_idx_off")
        A(f"s_lshl_b32 s{sTMP + 1}, s{sTMP + 1}, 10")
        A(f"v_add_u32 {v(vRD)}, s{sTMP + 1}, {v(vRD)}")
        A(f"s_lshl_b32 s{sTMP}, s{sWAVE}, 2")
        A(f"s_add_u32 s{sTMP}, s{sTMP}, {L_REDK}")
        A(f"v_mov_b32 {v(vT + 3)}, s{sTMP}")
        A(f"v_mov_b32 {v(vT + 4)}, {L_REDK}")
        A("s_waitcnt vmcnt(4)")
        self.poll("key", kl, [f"v_cmp_eq_u32 vcc, -1, {v(vT + 2)}"])
        k2 = vT + 2
        A(f"v_max_u32_dpp {v(k2)}, {v(k2)}, {v(k2)} quad_perm:[1,0,3,2] row_mask:0xf bank_mask:0xf")
        A(f"v_max_u32_dpp {v(k2)}, {v(k2)}, {v(k2)} quad_perm:[2,3,0,1] row_mask:0xf bank_mask:0xf")
        A(f"v_max_u32_dpp {v(k2)}, {v(k2)}, {v(k2)} row_half_mirror row_mask:0xf bank_mask:0xf")
        A(f"v_max_u32_dpp {v(k2)}, {v(k2)}, {v(k2)} row_mirror row_mask:0xf bank_mask:0xf")
        A(f"v_max_u32_dpp {v(k2)}, {v(k2)}, {v(k2)} row_bcast:15 row_mask:0xa bank_mask:0xf")
        A(f"v_max_u32_dpp {v(k2)}, {v(k2)}, {v(k2)} row_bcast:31 row_mask:0xc bank_mask:0xf")
        A("s_mov_b32 exec_lo, 0")
        A("s_brev_b32 exec_hi, 1")
        A(f"ds_write_b32 {v(vT + 3)}, {v(k2)}")
        A("s_mov_b64 exec, -1")
        A("s_waitcnt lgkmcnt(0)")
        A("s_barrier")
        A(f"ds_read_b128 {v(K, 4)}, {v(vT + 4)}")
        A("s_waitcnt lgkmcnt(0)")
        A(f"v_max3_u32 {v(K)}, {v(K)}, {v(K + 1)}, {v(K + 2)}")
        A(f"v_max_u32 {v(K)}, {v(K)}, {v(K + 3)}")
        A(f"v_readfirstlane_b32 s{sWIN}, {v(K)}")
        self.stamp("win")
        A(f"s_andn2_b32 s{sT0}, 2047, s{sWIN}")
        A(f"s_lshr_b32 s{sT1}, s{sT0}, 3")
        A(f"s_mul_i32 s{sT1}, s{sT1}, {RS}")
        A(f"s_add_u32 s{sT1}, s{sT1}, {W_REG + O_SLOT}")
        A(f"s_cmp_lt_u32 s{sPOS}, 14")
        A("s_cbranch_scc0 L_noffn")
        A(f"s_lshr_b32 s{sTMP}, s{sWAVE}, 1")
        A(f"s_lshl_b32 s{sTMP}, s{sTMP}, 9")
        A(f"s_add_u32 s{sTMP}, s{sTMP}, s{sT1}")
        A(f"v_lshrrev_b32 {v(vT)}, 1, {v(vLANE)}")
        A(f"v_lshl_add_u32 {v(vT)}, {v(vT)}, 4, s{sTMP}")
        sl = [f"global_load_dwordx4 {v(K, 4)}, {v(vT)}, {sp(sWS)} sc1"]
        A(sl[0])
        A("L_noffn:")
        A(f"s_cmp_eq_u32 s{sWIN}, s{sBEST}")
        A(f"s_cselect_b64 exec, 0, {sp(sE)}")
        A(f"global_store_dwordx2 {v(vRD)}, {v(vC, 2)}, {sp(sOUT)}")
        A("s_mov_b64 exec, -1")
        A(f"s_cmp_lt_u32 s{sPOS}, 14")
        A("s_cbranch_scc0 L_fin")

        A(f"v_and_b32 {v(vT + 1)}, 1, {v(vLANE)}")
        A(f"v_lshlrev_b32 {v(vT + 1)}, 6, {v(vT + 1)}")
        A(f"v_and_b32 {v(vT + 2)}, 12, {v(vLANE)}")
        A(f"v_lshl_add_u32 {v(vT + 1)}, {v(vT + 2)}, 2, {v(vT + 1)}")
        A(f"v_lshrrev_b32 {v(vT + 2)}, 5, {v(vLANE)}")
        A(f"v_lshl_add_u32 {v(vT + 1)}, {v(vT + 2)}, 3, {v(vT + 1)}")
        A(f"s_and_b32 s{sTMP}, s{sWAVE}, 1")
        A(f"s_lshl_b32 s{sTMP}, s{sTMP}, 7")
        A(f"s_lshr_b32 s{sTMP + 1}, s{sWAVE}, 1")
        A(f"s_lshl_b32 s{sTMP + 1}, s{sTMP + 1}, 2")
        A(f"s_add_u32 s{sTMP}, s{sTMP}, s{sTMP + 1}")
        A(f"s_add_u32 s{sTMP}, s{sTMP}, {L_REDF}")
        A(f"v_add_u32 {v(vT + 1)}, s{sTMP}, {v(vT + 1)}")
        A(f"v_and_b32 {v(vT + 2)}, 15, {v(vLANE)}")
        A(f"v_lshlrev_b32 {v(vT + 2)}, 3, {v(vT + 2)}")
        A(f"v_add_u32 {v(vT + 2)}, {L_REDF}, {v(vT + 2)}")
        A(f"s_mul_i32 s{sTMP}, s{sL}, {RS}")
        A(f"s_add_u32 s{sTMP}, s{sTMP}, {W_REG + O_PART}")
        A(f"v_lshl_add_u32 {v(vT + 3)}, v0, 3, s{sTMP}")
        A("s_waitcnt vmcnt(1)")
        self.poll("sel", sl, [f"v_max3_u32 {v(vT + 6)}, {v(K)}, {v(K + 1)}, {v(K + 2)}",
                              f"v_max_u32 {v(vT + 6)}, {v(vT + 6)}, {v(K + 3)}",
                              f"v_cmp_eq_u32 vcc, -1, {v(vT + 6)}"])
        self.stamp("sel")
        V2 = [K + 8 + i for i in range(8)]
        for kp in range(4):
            for c in range(8):
                A(f"v_dot2_f32_bf16 {v(V2[c])}, {v(K + kp)}, {v(WGp + 8 * kp + c)}, {v(V2[c]) if kp else 0}")
        self.reduce8(V2, K + 16)
        A(f"ds_write_b32 {v(vT + 1)}, {v(V2[0])}")
        A("s_waitcnt lgkmcnt(0)")
        A("s_barrier")
        A(f"ds_read_b64 {v(K, 2)}, {v(vT + 2)}")
        A(f"ds_read_b64 {v(K + 2, 2)}, {v(vT + 2)} offset:128")
        A("s_waitcnt lgkmcnt(0)")
        A(f"v_add_f32 {v(K)}, {v(K)}, {v(K + 1)}")
        A(f"v_add_f32 {v(K + 2)}, {v(K + 2)}, {v(K + 3)}")
        A(f"v_cvt_pk_bf16_f32 {v(K + 1)}, {v(K)}, {v(K + 2)}")
        A(f"v_lshlrev_b32 {v(K)}, 16, {v(K + 1)}")
        A(f"v_mul_f32 {v(K + 3)}, {hex(f2u(-l2e_hi))}, {v(K)}")
        A(f"v_exp_f32 {v(K + 3)}, {v(K + 3)}")
        A(f"v_and_b32 {v(K + 2)}, s{sMASK}, {v(K + 1)}")
        A(f"v_add_f32 {v(K + 3)}, 1.0, {v(K + 3)}")
        A(f"v_rcp_f32 {v(K + 3)}, {v(K + 3)}")
        A(f"v_mul_f32 {v(K)}, {v(K)}, {v(K + 3)}")
        A(f"v_cvt_pk_bf16_f32 {v(K)}, {v(K)}, {v(K)}")
        A(f"v_and_b32 {v(K)}, s{sMASK}, {v(K)}")
        A(f"v_mul_f32 {v(K)}, {v(K)}, {v(K + 2)}")
        A(f"v_mov_b32_dpp {v(K + 1)}, {v(K)} quad_perm:[1,1,3,3] row_mask:0xf bank_mask:0xf")
        A(f"v_cvt_pk_bf16_f32 {v(K)}, {v(K)}, {v(K + 1)}")
        for kp in range(8):
            A(f"v_readlane_b32 s{sH + kp}, {v(K)}, {2 * kp}")
        for kp in range(8):
            for c in range(2):
                A(f"v_dot2_f32_bf16 {v(K + 4 + c)}, s{sH + kp}, {v(WDp + 2 * kp + c)}, {v(K + 4 + c) if kp else 0}")
        A(f"global_store_dwordx2 {v(vT + 3)}, {v(K + 4, 2)}, {sp(sWS)} sc1")
        self.stamp("part")
        A(f"s_cmp_lt_u32 s{sPOS}, 8")
        A("s_cbranch_scc0 L_fin")
        A(f"s_cmp_lt_u32 s{sWAVE}, 2")
        A("s_cbranch_scc0 L_fin")
        A(f"s_lshl_b32 s{sTMP}, s{sXCD}, 3")
        A(f"s_add_u32 s{sTMP}, s{sTMP}, s{sPOS}")
        A(f"s_lshl_b32 s{sTMP}, s{sTMP}, 1")
        A(f"s_add_u32 s{sTMP}, s{sTMP}, s{sWAVE}")
        A(f"v_lshrrev_b32 {v(vT)}, 5, {v(vLANE)}")
        A(f"v_bfe_u32 {v(vT + 1)}, {v(vLANE)}, 4, 1")
        A(f"v_lshl_add_u32 {v(vT)}, {v(vT + 1)}, 1, {v(vT)}")
        A(f"s_lshl_b32 s{sTMP + 1}, s{sTMP}, 3")
        A(f"v_lshl_add_u32 {v(vT)}, {v(vT)}, 1, s{sTMP + 1}")
        A(f"v_add_u32 {v(vT + 1)}, s{sT1}, {v(vT)}")
        A(f"global_load_ushort {v(K + 20)}, {v(vT + 1)}, {sp(sWS)} sc1")
        A(f"global_load_ushort {v(K + 21)}, {v(vT + 1)}, {sp(sWS)} offset:1024 sc1")
        A(f"s_lshl_b32 s{sTMP + 1}, s{sT0}, 10")
        A(f"v_add_u32 {v(vT)}, s{sTMP + 1}, {v(vT)}")
        A(f"v_min_u32 {v(vT + 2)}, 55, {v(vLANE)}")
        A(f"v_mul_u32_u24 {v(vT + 3)}, 4682, {v(vT + 2)}")
        A(f"v_lshrrev_b32 {v(vT + 3)}, 16, {v(vT + 3)}")
        A(f"v_mad_u32_u24 {v(vT + 2)}, {v(vT + 3)}, 18, {v(vT + 2)}")
        A(f"v_mul_u32_u24 {v(vT + 2)}, {RS}, {v(vT + 2)}")
        A(f"s_lshl_b32 s{sTMP + 1}, s{sTMP}, 4")
        A(f"s_add_u32 s{sTMP + 1}, s{sTMP + 1}, {W_REG + O_PART}")
        A(f"v_add_u32 {v(vT + 2)}, s{sTMP + 1}, {v(vT + 2)}")
        A(f"v_add_u32 {v(vT + 3)}, {128 * RS}, {v(vT + 2)}")
        A(f"s_ashr_i32 s{sTMP + 2}, s{sWIN}, 31")
        A(f"s_not_b32 s{sTMP + 2}, s{sTMP + 2}")
        A(f"s_or_b32 s{sTMP + 2}, s{sTMP + 2}, 0x80000000")
        A(f"s_xor_b32 s{sTMP + 2}, s{sTMP + 2}, s{sWIN}")
        A(f"s_and_b32 s{sTMP + 2}, s{sTMP + 2}, 0xfffff800")
        A(f"s_or_b32 s{sTMP + 2}, s{sTMP + 2}, 0x400")
        A(f"v_cvt_pk_bf16_f32 {v(K + 22)}, s{sTMP + 2}, s{sTMP + 2}")
        A(f"v_and_b32 {v(K + 22)}, s{sMASK}, {v(K + 22)}")
        A(f"v_mul_f32 {v(K + 22)}, {hex(f2u(-l2e_hi))}, {v(K + 22)}")
        A(f"v_exp_f32 {v(K + 22)}, {v(K + 22)}")
        A(f"v_add_f32 {v(K + 22)}, 1.0, {v(K + 22)}")
        A(f"v_rcp_f32 {v(K + 22)}, {v(K + 22)}")
        A(f"v_cvt_pk_bf16_f32 {v(K + 22)}, {v(K + 22)}, {v(K + 22)}")
        A(f"v_and_b32 {v(K + 22)}, s{sMASK}, {v(K + 22)}")
        A("s_waitcnt vmcnt(0)")
        self.stamp("partdr")
        pl = [f"global_load_dwordx4 {v(vY, 4)}, {v(vT + 2)}, {sp(sWS)} sc1",
              f"global_load_dwordx4 {v(vY + 4, 4)}, {v(vT + 3)}, {sp(sWS)} sc1"]
        for l in pl:
            A(l)
        self.poll("xh", [f"global_load_ushort {v(K + 20)}, {v(vT + 1)}, {sp(sWS)} sc1",
                         f"global_load_ushort {v(K + 21)}, {v(vT + 1)}, {sp(sWS)} offset:1024 sc1"],
                  [f"v_max_u32 {v(vT + 6)}, {v(K + 20)}, {v(K + 21)}",
                   f"v_cmp_eq_u32 vcc, 0xffff, {v(vT + 6)}"])
        A(f"v_lshlrev_b32 {v(K + 20)}, 16, {v(K + 20)}")
        A(f"v_lshlrev_b32 {v(K + 21)}, 16, {v(K + 21)}")
        A("s_waitcnt vmcnt(0)")
        self.poll("part", pl, chk8)
        self.stamp("partld")
        A(f"v_cmp_gt_u32 vcc, 56, {v(vLANE)}")
        A(f"v_pk_add_f32 {v(vY, 2)}, {v(vY, 2)}, {v(vY + 4, 2)}")
        A(f"v_pk_add_f32 {v(vY + 2, 2)}, {v(vY + 2, 2)}, {v(vY + 6, 2)}")
        for c in range(4):
            A(f"v_cndmask_b32 {v(vY + c)}, 0, {v(vY + c)}, vcc")
        A(f"v_permlane32_swap_b32 {v(vY)}, {v(vY + 1)}")
        A(f"v_permlane32_swap_b32 {v(vY + 2)}, {v(vY + 3)}")
        A(f"v_add_f32 {v(vY)}, {v(vY)}, {v(vY + 1)}")
        A(f"v_add_f32 {v(vY + 2)}, {v(vY + 2)}, {v(vY + 3)}")
        A(f"v_permlane16_swap_b32 {v(vY)}, {v(vY + 2)}")
        A(f"v_add_f32 {v(vY)}, {v(vY)}, {v(vY + 2)}")
        for sh in (8, 4, 2, 1):
            A(f"v_add_f32_dpp {v(vY)}, {v(vY)}, {v(vY)} row_ror:{sh} row_mask:0xf bank_mask:0xf")
        y = vY
        A(f"v_cvt_pk_bf16_f32 {v(y)}, {v(y)}, {v(y)}")
        A(f"v_and_b32 {v(y)}, s{sMASK}, {v(y)}")
        A(f"v_mul_f32 {v(y)}, {v(y)}, {v(K + 22)}")
        A(f"v_cvt_pk_bf16_f32 {v(y)}, {v(y)}, {v(y)}")
        A(f"v_and_b32 {v(y)}, s{sMASK}, {v(y)}")
        A(f"v_add_f32 {v(y)}, {v(y)}, {v(K + 20)}")
        A(f"v_cvt_pk_bf16_f32 {v(y)}, {v(y)}, {v(y)}")
        A(f"v_and_b32 {v(y)}, s{sMASK}, {v(y)}")
        A(f"v_add_f32 {v(y)}, {v(y)}, {v(K + 21)}")
        A(f"v_cvt_pk_bf16_f32 {v(y)}, {v(y)}, {v(y)}")
        A("s_mov_b32 exec_lo, 0x00010001")
        A("s_mov_b32 exec_hi, 0x00010001")
        A(f"global_store_short {v(vT)}, {v(y)}, {sp(sOUT)}")
        A("L_fin:")
        if self.stamp_on and "probe" in o:
            self.stamp("end")
            k = o["probe"]
            if k < 0:
                A(f"s_mov_b32 s{sTMP}, {-k}")
            else:
                A(f"s_sub_u32 s{sTMP}, s{sSTAMP + k}, s{sSTAMP}")
                A(f"s_min_u32 s{sTMP}, s{sTMP}, 5000")
                A(f"s_mul_i32 s{sTMP}, s{sTMP}, 4")
                A(f"s_add_u32 s{sTMP}, s{sTMP}, 4000")
            A("L_spin:")
            A(f"s_memrealtime {sp(sTMP + 4)}")
            A("s_waitcnt lgkmcnt(0)")
            A(f"s_sub_u32 s{sTMP + 4}, s{sTMP + 4}, s{sSTAMP}")
            A(f"s_cmp_lt_u32 s{sTMP + 4}, s{sTMP}")
            A("s_cbranch_scc1 L_spin")
        elif self.stamp_on:
            self.stamp("end")
            A("s_mov_b64 exec, 1")
            A(f"s_lshl_b32 s{sTMP}, s2, 2")
            A(f"s_add_u32 s{sTMP}, s{sTMP}, s{sWAVE}")
            A(f"s_lshl_b32 s{sTMP}, s{sTMP}, 7")
            A(f"s_add_u32 s{sTMP}, s{sTMP}, {W_STAMP}")
            A(f"v_mov_b32 v1, s{sTMP}")
            for k in range(self.nstamp):
                A(f"v_mov_b32 v2, s{sSTAMP + k}")
                A(f"global_store_dword v1, v2, {sp(sWS)} offset:{4 * k}")
        A("L_end:")
        A("s_endpgm")

        A("L_helper:")
        A(f"s_getpc_b64 {sp(sE)}")
        A("L_pc:")
        A(f"s_sub_u32 s{sE}, s{sE}, L_pc-{KNAME}")
        A(f"s_subb_u32 s{sE + 1}, s{sE + 1}, 0")
        A(f"v_lshlrev_b32 v2, 7, {v(vLANE)}")
        A("v_add_u32 v3, 8192, v2")
        A(f"v_min_u32 v3, L_codeend-{KNAME}-4, v3")
        if o.get("codepf", 1):
            A(f"global_load_dword v10, v2, {sp(sE)}")
            A(f"global_load_dword v11, v3, {sp(sE)}")
        A(f"v_lshlrev_b32 v4, 4, {v(vLANE)}")
        A("s_waitcnt lgkmcnt(0)")
        A(f"global_load_dwordx4 v[16:19], v4, {sp(sWR)}")
        A("v_mov_b32 v20, 0")
        A("v_mov_b32 v21, 0")
        A(f"v_lshlrev_b32 v5, 3, {v(vLANE)}")
        A(f"v_min_u32 v6, 472, v5")
        A(f"v_add_u32 v6, {L_U}, v6")
        A("ds_write2st64_b64 v6, v[20:21], v[20:21] offset0:0 offset1:9")
        A(f"v_min_u32 v6, 56, v5")
        A(f"v_add_u32 v6, {L_P}, v6")
        A("ds_write_b64 v6, v[20:21]")
        A(f"ds_write_b64 v6, v[20:21] offset:{PC}")
        A(f"s_mul_i32 s{sTMP}, s{sXCD}, 448")
        A(f"s_and_b32 s{sTMP}, s{sTMP}, 0xffffff80")
        A(f"s_mul_i32 s{sTMP + 1}, s{sPOS}, {16 * 3584}")
        A(f"s_add_u32 s{sTMP}, s{sTMP}, s{sTMP + 1}")
        A(f"v_lshrrev_b32 v6, 2, {v(vLANE)}")
        A("v_mul_u32_u24 v6, 3584, v6")
        A(f"v_and_b32 v7, 3, {v(vLANE)}")
        A("v_lshl_add_u32 v6, v7, 7, v6")
        A(f"v_add_u32 v6, s{sTMP}, v6")
        A(f"s_mul_i32 s{sTMP}, s{sL}, 7168")
        A(f"v_min_u32 v7, 55, {v(vLANE)}")
        A(f"v_lshl_add_u32 v7, v7, 7, s{sTMP}")
        A("s_waitcnt vmcnt(0)")
        if o.get("wpf", 1):
            A(f"global_load_dword v12, v6, {sp(sWG)}")
            A(f"global_load_dword v13, v6, {sp(sWU)}")
            A(f"global_load_dword v14, v7, {sp(sWD)}")
        A(f"v_dot2_f32_bf16 v22, v16, s{sONES}, 0")
        for k in range(1, 4):
            A(f"v_dot2_f32_bf16 v22, v{16 + k}, s{sONES}, v22")
        for sh in (8, 4, 2, 1):
            A(f"v_add_f32_dpp v22, v22, v22 row_ror:{sh} row_mask:0xf bank_mask:0xf")
        A("v_add_f32_dpp v22, v22, v22 row_bcast:15 row_mask:0xa bank_mask:0xf")
        A("v_add_f32_dpp v22, v22, v22 row_bcast:31 row_mask:0xc bank_mask:0xf")
        A(f"v_mov_b32 v23, {L_SUMW}")
        A("s_mov_b32 exec_lo, 0")
        A("s_brev_b32 exec_hi, 1")
        A("ds_write_b32 v23, v22")
        A("s_waitcnt lgkmcnt(0)")
        for _ in range(4):
            A("s_barrier")
        A("s_endpgm")
        for l in self.tail.L:
            A(l)
        A("L_codeend:")
        lines, nops = A.padded()
        lines, nbytes, promoted, missed = align8(lines)
        self.info = dict(nops=nops, bytes=nbytes, promoted=promoted, missed=missed, lines=len(lines))
        return lines

    def text(self):
        lines = self.build()
        src = open("sequential_preLN__ssm_conv_s4d__moe_arch_mod__prompt.s.ref").read()
        head = [l for l in src.split("\n") if l.startswith(";") and "@launch" not in l]
        head = head[:head.index("; Override launch geometry by editing the next line (default: block=256,")]
        out = head + [f"; @launch grid=(256,1,1) block=(320,1,1) lds={LDS_BYTES}",
                      '.amdgcn_target "amdgcn-amd-amdhsa--gfx950"', ".text", f".globl {KNAME}", ".p2align 8",
                      f".type {KNAME},@function"]
        out += [l if l.endswith(":") else "    " + l for l in lines]
        out += [".section .rodata,\"a\"", ".p2align 6", f".amdhsa_kernel {KNAME}",
                "  .amdhsa_next_free_vgpr 256", "  .amdhsa_next_free_sgpr 102", "  .amdhsa_accum_offset 256",
                "  .amdhsa_group_segment_fixed_size 0", "  .amdhsa_kernarg_size 120", "  .amdhsa_user_sgpr_count 2",
                "  .amdhsa_user_sgpr_kernarg_segment_ptr 1", "  .amdhsa_system_sgpr_workgroup_id_x 1",
                ".end_amdhsa_kernel", ""]
        return "\n".join(out)


if __name__ == "__main__":
    out = sys.argv[1]
    opts = {}
    stamp = False
    for a in sys.argv[2:]:
        if a == "stamp":
            stamp = True
        else:
            k, val = a.split("=")
            opts[k] = int(val)
    g = Gen(stamp, opts)
    open(out, "w").write(g.text())
    if stamp:
        open(out + ".names", "w").write(" ".join(g.names))
    print(g.info, "lds", LDS_BYTES)
```

```python
import re
import subprocess

TRANS = ("v_exp_f32", "v_log_f32", "v_rcp_f32", "v_rsq_f32", "v_sqrt_f32", "v_sin_f32", "v_cos_f32")


def _regs(tok):
    tok = tok.strip()
    tok = tok.lstrip("-")
    m = re.fullmatch(r"abs\((.*)\)|\|(.*)\|", tok)
    if m:
        tok = m.group(1) or m.group(2)
    m = re.fullmatch(r"([vsa])(\d+)", tok)
    if m:
        return [m.group(1) + m.group(2)]
    m = re.fullmatch(r"([vsa])\[(\d+):(\d+)\]", tok)
    if m:
        return [m.group(1) + str(i) for i in range(int(m.group(2)), int(m.group(3)) + 1)]
    if tok == "vcc":
        return ["vcc"]
    if tok in ("vcc_lo", "vcc_hi"):
        return ["vcc"]
    if tok == "exec" or tok in ("exec_lo", "exec_hi"):
        return ["exec"]
    if tok == "m0":
        return ["m0"]
    return []


class Ins:
    def __init__(self, text):
        self.text = text
        t = text.split(";")[0].strip()
        self.label = t.endswith(":")
        self.directive = t.startswith(".")
        self.op = ""
        self.w = set()
        self.r = set()
        self.srcs = []
        if self.label or self.directive or not t:
            return
        parts = t.split(None, 1)
        self.op = parts[0]
        rest = parts[1] if len(parts) > 1 else ""
        ops = []
        depth = 0
        cur = ""
        for ch in rest:
            if ch in "[(":
                depth += 1
            if ch in "])":
                depth -= 1
            if ch == "," and depth == 0:
                ops.append(cur.strip())
                cur = ""
            else:
                cur += ch
        if cur.strip():
            ops.append(cur.strip())
        mods = ""
        if ops:
            last = ops[-1].split(None, 1)
            ops[-1] = last[0]
            mods = last[1] if len(last) > 1 else ""
        self.mods = mods
        op = self.op
        base = re.sub(r"_(e32|e64|dpp|sdwa)$", "", op)
        self.base = base
        self.dpp = op.endswith("_dpp")
        self.valu = op.startswith("v_") and not op.startswith("v_mfma")
        self.mfma = op.startswith("v_mfma")
        self.salu = op.startswith("s_")
        self.ds = op.startswith("ds_")
        self.vmem = op.startswith("global_") or op.startswith("buffer_")
        self.trans = base in TRANS
        self.dot = base.startswith("v_dot")
        R = [_regs(o) for o in ops]
        if op.startswith("v_permlane"):
            for x in R:
                self.w.update(x)
                self.r.update(x)
            self.srcs = R
        elif op.startswith("v_"):
            self.w.update(R[0])
            k = 1
            if base in ("v_add_co_u32", "v_addc_co_u32", "v_sub_co_u32", "v_subb_co_u32"):
                self.w.update(R[1])
                k = 2
            for x in R[k:]:
                self.r.update(x)
            self.srcs = R[k:]
            if base in ("v_fmac_f32", "v_dot2c_f32_bf16", "v_writelane_b32") or self.dpp:
                self.r.update(R[0])
            if base == "v_cndmask_b32" and len(ops) == 3:
                self.r.add("vcc")
        elif self.ds:
            if op.startswith("ds_read") or op.startswith("ds_bpermute") or op.startswith("ds_permute") or op.startswith("ds_swizzle"):
                self.w.update(R[0])
                for x in R[1:]:
                    self.r.update(x)
            else:
                for x in R:
                    self.r.update(x)
            if "addtid" in op:
                self.r.add("m0")
        elif self.vmem:
            if "load" in op and "lds" not in op:
                self.w.update(R[0])
                for x in R[1:]:
                    self.r.update(x)
            else:
                for x in R:
                    self.r.update(x)
            self.srcs = R
        elif self.salu:
            if base.startswith(("s_cmp", "s_cbranch", "s_branch", "s_waitcnt", "s_barrier", "s_nop", "s_endpgm", "s_setprio", "s_sleep", "s_set_gpr_idx", "s_bitcmp")):
                for x in R:
                    self.r.update(x)
            else:
                if R:
                    self.w.update(R[0])
                for x in R[1:]:
                    self.r.update(x)
                if "saveexec" in op:
                    self.w.add("exec")

    def states(self):
        if self.label or self.directive or not self.op:
            return 0
        if self.op == "s_nop":
            return int(self.text.split()[1]) + 1
        return 1


def need(p, c):
    n = 0
    vw = {x for x in p.w if x[0] in "va" and x != "vcc"}
    sw = {x for x in p.w if x[0] == "s" or x == "vcc"}
    if p.valu:
        if vw & c.r:
            if c.op.startswith("v_") and c.dpp:
                n = max(n, 2)
            if c.op.startswith("v_permlane"):
                n = max(n, 2)
            if c.base in ("v_readlane_b32", "v_readfirstlane_b32"):
                n = max(n, 1)
            if c.mfma:
                n = max(n, 2)
            if p.trans and c.op.startswith("v_"):
                n = max(n, 1)
            if "sdwa" in p.op and c.op.startswith("v_"):
                n = max(n, 1)
        if p.dot and (vw & (c.r | c.w)):
            same_c = c.base == p.base and (not any(vw & set(s) for s in c.srcs[:2]))
            if not same_c:
                n = max(n, 3)
        if sw & c.r:
            if c.valu:
                n = max(n, 4 if c.base in ("v_readlane_b32", "v_writelane_b32") else 2)
            if c.vmem:
                n = max(n, 5)
    if p.mfma:
        passes = 8 if "32x32" in p.op else 4
        big = {4: 8, 8: 12}[passes]
        mid = {4: 6, 8: 10}[passes]
        war = {4: 3, 8: 7}[passes]
        if c.mfma:
            if vw & (set(c.srcs[0]) | set(c.srcs[1])):
                n = max(n, big)
            cs = set(c.srcs[2])
            if vw & cs and cs != vw:
                n = max(n, mid)
            if vw & c.w and not (vw & cs):
                n = max(n, big)
        elif vw & (c.r | c.w):
            n = max(n, big)
        if c.valu and set(p.srcs[2]) & c.w:
            n = max(n, war)
    if p.vmem and "store" in p.op and ("x4" in p.op or "x3" in p.op):
        data = set(p.srcs[1]) if p.op.startswith("global_") else set(p.srcs[0])
        if data & c.w:
            n = max(n, 2)
    if p.salu and "m0" in p.w and ("m0" in c.r and (c.ds or c.vmem)):
        n = max(n, 1)
    return n


class Asm:
    def __init__(self):
        self.L = []

    def __call__(self, text):
        for line in text.split("\n"):
            line = line.strip()
            if line:
                assert not (line.startswith("v_pk_") and "op_sel:[0,1" in line), line
                self.L.append(line)

    def padded(self):
        out = []
        nops = 0
        for text in self.L:
            c = Ins(text)
            if c.op:
                dist = 0
                pad = 0
                for p in reversed(out):
                    if dist >= 12:
                        break
                    if p.op:
                        pad = max(pad, need(p, c) - dist)
                    dist += p.states()
                if pad > 0:
                    out.append(Ins(f"s_nop {pad - 1}"))
                    nops += pad
            out.append(c)
        return [i.text for i in out], nops


E32_OK = ("v_mov_b32", "v_add_f32", "v_sub_f32", "v_subrev_f32", "v_mul_f32", "v_max_f32", "v_min_f32", "v_add_u32", "v_sub_u32",
          "v_subrev_u32", "v_lshlrev_b32", "v_lshrrev_b32", "v_ashrrev_i32", "v_and_b32", "v_or_b32", "v_xor_b32", "v_max_u32",
          "v_min_u32", "v_mul_u32_u24", "v_fract_f32", "v_exp_f32", "v_sin_f32", "v_cos_f32", "v_rcp_f32", "v_sqrt_f32",
          "v_cndmask_b32", "v_cmp_eq_u32", "v_cmp_gt_u32", "v_cmp_lt_u32", "v_cmp_ne_u32", "v_fmac_f32", "v_log_f32")


def sizes(lines):
    src = '.amdgcn_target "amdgcn-amd-amdhsa--gfx950"\n.text\n' + "\n".join(lines) + "\n"
    r = subprocess.run(["llvm-mc", "-triple=amdgcn-amd-amdhsa", "-mcpu=gfx950", "-show-encoding"],
                       input=src, capture_output=True, text=True)
    if r.returncode:
        raise SystemExit(r.stderr)
    enc = [len(m.group(1).split(",")) for m in re.finditer(r"encoding: \[(.*?)\]", r.stdout)]
    return enc


def align8(lines, min_run=4):
    ins = [Ins(t) for t in lines]
    sz = sizes(lines)
    idx = [k for k, i in enumerate(ins) if i.op]
    assert len(idx) == len(sz), (len(idx), len(sz))
    size = dict(zip(idx, sz))
    out = [[t] for t in lines]
    off = 0
    last4 = None
    promoted = 0
    missed = 0
    for pos, k in enumerate(range(len(ins))):
        i = ins[k]
        if i.directive:
            m = re.match(r"\.p2align\s+(\d+)", i.text.strip())
            if m:
                a = 1 << int(m.group(1))
                off = (off + a - 1) // a * a
                last4 = None
            continue
        if not i.op:
            continue
        s = size[k]
        if s >= 8 and off % 8 == 4:
            if last4 is not None:
                j = last4
                out[j][-1] = out[j][-1].replace(ins[j].op, ins[j].op + "_e64", 1)
                off += 4
                promoted += 1
            else:
                run = 0
                nm = 0
                for q in range(k, len(ins)):
                    if not ins[q].op:
                        continue
                    if size[q] != 8:
                        break
                    run += 1
                    nm += ins[q].mfma
                if run >= min_run and nm * 3 < run:
                    out[k].insert(0, "s_nop 0")
                    off += 4
                    promoted += 1
                else:
                    missed += 1
        if s == 4:
            ok = i.op in E32_OK
            last4 = k if ok else last4
        else:
            last4 = None
        off += s
    return [t for o in out for t in o], off, promoted, missed
```

```python
import sys
import struct
from asmlib import Asm, align8

KNAME = "sequential_preLN__ssm_conv_s4d__moe_arch_mod__prompt_kernel"


def f2u(x):
    return struct.unpack("<I", struct.pack("<f", x))[0]


W_FLAG = 0x1000 + (int(__import__('os').environ.get('WOFF', '0')) << 20)
W_KEY = 0x9000 + (int(__import__('os').environ.get('WOFF', '0')) << 20)
W_FLAG2 = 0x11000 + (int(__import__('os').environ.get('WOFF', '0')) << 20)
import os
WOFF = int(os.environ.get('WOFF', '0')) << 20
W_REG = 0x38000 + WOFF
RS = 20608
O_X1, O_X2, O_SLOT, O_PART = 0, 8192, 16384, 18432
W_STAMP = 0x800000
ROWB = 544
TABC = 63 * ROWB
L_TAB = 0
L_P = 68608
PC = 8256
L_U = L_P + 2 * PC
UC = 4608
L_RED1 = (L_U + 2 * UC + 255) // 256 * 256
L_RED2 = L_RED1 + 256
L_SUMW = L_RED2 + 384
L_REDK = L_SUMW + 16
L_REDF = L_REDK + 16
LDS_BYTES = L_REDF + 256
L_EPI = 0
TBS = 1152
sX, sLA, sAI, sCR, sCI, sLDT, sD = 4, 6, 8, 10, 12, 14, 16
sWR, sWG, sWU, sWD, sOUT, sDBG, sWS = 20, 22, 24, 26, 28, 30, 32
sL, sPOS, sXCD, sWAVE, sG, sDT, sT0, sT1, sSPIN, sF = 34, 35, 36, 37, 38, 39, 40, 41, 42, 43
sODD = 44
sSELLO, sSELHI, sONES, sMASK = 46, 47, 48, 49
sWSEL = 50
sBEST, sWIN, sRP0, sRP1 = 52, 53, 54, 55
sH = 56
sE = 64
sTMP = 66
sOWN = 71
sSTAMP = 72


def sp(r):
    return f"s[{r}:{r + 1}]"


def v(r, n=1):
    return f"v{r}" if n == 1 else f"v[{r}:{r + n - 1}]"


class Gen:
    def __init__(self, stamp=False, opts=None):
        self.A = Asm()
        self.tail = Asm()
        self.stamp_on = stamp
        self.nstamp = 0
        self.names = []
        self.o = dict(opts or {})

    def stamp(self, name):
        if not self.stamp_on:
            return
        k = self.nstamp
        self.nstamp += 1
        self.names.append(name)
        assert sSTAMP + k < 100
        self.A(f"s_memrealtime s[100:101]")
        self.A("s_waitcnt lgkmcnt(0)")
        self.A(f"s_mov_b32 s{sSTAMP + k}, s100")

    def poll(self, name, loads, check, base_exec="-1"):
        A = self.A
        for c in check:
            A(c)
        A(f"s_cbranch_vccnz L_retry_{name}")
        A(f"L_ok_{name}:")
        T = self.tail
        T(f"L_retry_{name}:")
        T(f"s_mov_b32 s{sSPIN}, 0x40000")
        T(f"L_again_{name}:")
        T(f"s_sub_u32 s{sSPIN}, s{sSPIN}, 1")
        T(f"s_cbranch_scc1 L_ok_{name}")
        T("s_mov_b64 exec, vcc")
        for l in loads:
            T(l)
        T("s_waitcnt vmcnt(0)")
        for c in check:
            T(c)
        T(f"s_mov_b64 exec, {base_exec}")
        T(f"s_cbranch_vccnz L_again_{name}")
        T(f"s_branch L_ok_{name}")

    def cmul(self, d, x, y, t):
        return [f"v_pk_mul_f32 {v(t, 2)}, {v(x, 2)}, {v(y, 2)} op_sel:[0,0] op_sel_hi:[0,1]",
                f"v_pk_fma_f32 {v(d, 2)}, {v(x, 2)}, {v(y, 2)}, {v(t, 2)} op_sel:[1,1,0] op_sel_hi:[1,0,1] neg_lo:[1,0,0]"]

    def reduce8(self, V, t):
        A = self.A
        for i in range(4):
            A(f"v_add_f32_dpp {v(V[i])}, {v(V[i])}, {v(V[i])} row_ror:8 row_mask:0xf bank_mask:0x3")
        for i in range(4):
            A(f"v_add_f32_dpp {v(V[i])}, {v(V[i + 4])}, {v(V[i + 4])} row_ror:8 row_mask:0xf bank_mask:0xc")
        for i in range(2):
            A(f"v_add_f32_dpp {v(V[i])}, {v(V[i])}, {v(V[i])} row_shl:4 row_mask:0xf bank_mask:0x5")
        for i in range(2):
            A(f"v_add_f32_dpp {v(V[i])}, {v(V[i + 2])}, {v(V[i + 2])} row_shr:4 row_mask:0xf bank_mask:0xa")
        A(f"v_permlane32_swap_b32 {v(V[0])}, {v(V[1])}")
        A(f"v_add_f32 {v(V[0])}, {v(V[0])}, {v(V[1])}")
        A(f"v_add_f32_dpp {v(V[0])}, {v(V[0])}, {v(V[0])} quad_perm:[2,3,0,1] row_mask:0xf bank_mask:0xf")
        A(f"v_mov_b32 {v(t)}, {v(V[0])}")
        A(f"v_permlane16_swap_b32 {v(V[0])}, {v(t)}")
        A(f"v_add_f32 {v(V[0])}, {v(V[0])}, {v(t)}")

    def row_stats(self, S, Q, negm, rinv, t):
        A = self.A
        A(f"v_pk_add_f32 {v(S, 2)}, {v(S, 2)}, {v(S + 2, 2)}")
        A(f"v_pk_add_f32 {v(Q, 2)}, {v(Q, 2)}, {v(Q + 2, 2)}")
        A(f"v_add_f32 {v(S)}, {v(S)}, {v(S + 1)}")
        A(f"v_add_f32 {v(Q)}, {v(Q)}, {v(Q + 1)}")
        A(f"v_mul_f32 {v(S)}, {hex(f2u(1 / 512))}, {v(S)}")
        A(f"v_mul_f32 {v(Q)}, {hex(f2u(1 / 512))}, {v(Q)}")
        A(f"v_fma_f32 {v(Q)}, -{v(S)}, {v(S)}, {v(Q)}")
        A(f"v_max_f32 {v(Q)}, 0, {v(Q)}")
        A(f"v_cvt_pk_bf16_f32 {v(t)}, -{v(S)}, {v(Q)}")
        A(f"v_and_b32 {v(Q)}, s{sMASK}, {v(t)}")
        A(f"v_add_f32 {v(Q)}, {hex(f2u(1e-5))}, {v(Q)}")
        A(f"v_cvt_pk_bf16_f32 {v(Q)}, {v(Q)}, {v(Q)}")
        A(f"v_and_b32 {v(Q)}, s{sMASK}, {v(Q)}")
        A(f"v_sqrt_f32 {v(Q)}, {v(Q)}")
        A(f"v_lshlrev_b32 {v(negm)}, 16, {v(t)}")
        A(f"v_cvt_pk_bf16_f32 {v(Q)}, {v(Q)}, {v(Q)}")
        A(f"v_and_b32 {v(Q)}, s{sMASK}, {v(Q)}")
        A(f"v_rcp_f32 {v(rinv)}, {v(Q)}")

    def spread(self, val, dst, t):
        A = self.A
        for r in range(4):
            A(f"v_mov_b32_dpp {v(t + r)}, {v(val)} row_newbcast:{4 + r} row_mask:0xf bank_mask:0xf")
        for r in range(4):
            A(f"v_cndmask_b32_dpp {v(dst + r)}, {v(val)}, {v(t + r)}, vcc row_newbcast:{r} row_mask:0xf bank_mask:0xf")

    def key_calc(self, K, vRA, vLANE):
        A = self.A
        A(f"v_mov_b32 {v(K + 14)}, {L_SUMW}")
        A(f"ds_read_b128 {v(K, 4)}, {v(vRA)} offset:{L_RED2 - L_RED1}")
        A(f"ds_read_b128 {v(K + 4, 4)}, {v(vRA)} offset:{L_RED2 - L_RED1 + 128}")
        A(f"ds_read_b128 {v(K + 8, 4)}, {v(vRA)} offset:{L_RED2 - L_RED1 + 256}")
        A(f"ds_read_b32 {v(K + 15)}, {v(K + 14)}")
        A(f"s_lshl_b32 s{sTMP}, s{sL}, 3")
        A(f"s_sub_u32 s{sTMP}, 2047, s{sTMP}")
        A(f"v_and_b32 {v(K + 14)}, 7, {v(vLANE)}")
        A(f"v_sub_u32 {v(K + 14)}, s{sTMP}, {v(K + 14)}")
        A("s_waitcnt lgkmcnt(2)")
        self.row_stats(K, K + 4, K + 12, K + 13, K + 28)
        A("s_waitcnt lgkmcnt(0)")
        A(f"v_pk_add_f32 {v(K + 8, 2)}, {v(K + 8, 2)}, {v(K + 10, 2)}")
        A(f"v_add_f32 {v(K + 8)}, {v(K + 8)}, {v(K + 9)}")
        A(f"v_fmac_f32 {v(K + 8)}, {v(K + 12)}, {v(K + 15)}")
        A(f"v_mul_f32 {v(K + 8)}, {v(K + 8)}, {v(K + 13)}")
        A(f"v_ashrrev_i32 {v(K + 9)}, 31, {v(K + 8)}")
        A(f"v_or_b32 {v(K + 9)}, 0x80000000, {v(K + 9)}")
        A(f"v_xor_b32 {v(K + 8)}, {v(K + 8)}, {v(K + 9)}")
        A(f"v_and_b32 {v(K + 8)}, 0xfffff800, {v(K + 8)}")
        A(f"v_or_b32 {v(K + 8)}, {v(K + 8)}, {v(K + 14)}")
        A(f"v_min_u32 {v(K + 8)}, -2, {v(K + 8)}")
        A(f"v_max_u32_dpp {v(K + 8)}, {v(K + 8)}, {v(K + 8)} quad_perm:[1,0,3,2] row_mask:0xf bank_mask:0xf")
        A(f"v_max_u32_dpp {v(K + 8)}, {v(K + 8)}, {v(K + 8)} quad_perm:[2,3,0,1] row_mask:0xf bank_mask:0xf")
        A(f"v_max_u32_dpp {v(K + 8)}, {v(K + 8)}, {v(K + 8)} row_half_mirror row_mask:0xf bank_mask:0xf")

    def finish(self, role):
        A = self.A
        o = self.o
        if self.stamp_on:
            self.stamp("end")
            self.allnames[role] = self.names
        if self.stamp_on and "probe" in o:
            k = o["probe"]
            if k < 0:
                A(f"s_mov_b32 s{sTMP}, {-k}")
            elif (k >= 100) == (role == "C"):
                A(f"s_sub_u32 s{sTMP}, s{sSTAMP + k % 100}, s{sSTAMP}")
                A(f"s_min_u32 s{sTMP}, s{sTMP}, 5000")
                A(f"s_mul_i32 s{sTMP}, s{sTMP}, 4")
                A(f"s_add_u32 s{sTMP}, s{sTMP}, 4000")
            else:
                A(f"s_mov_b32 s{sTMP}, 0")
            A(f"L_spin{role}:")
            A("s_memrealtime s[100:101]")
            A("s_waitcnt lgkmcnt(0)")
            A(f"s_sub_u32 s100, s100, s{sSTAMP}")
            A(f"s_cmp_lt_u32 s100, s{sTMP}")
            A(f"s_cbranch_scc1 L_spin{role}")
        elif self.stamp_on:
            A("s_mov_b64 exec, 1")
            A(f"s_lshl_b32 s{sTMP}, s2, 3")
            A(f"s_add_u32 s{sTMP}, s{sTMP}, s{sWAVE}")
            if role == "C":
                A(f"s_add_u32 s{sTMP}, s{sTMP}, 4")
            A(f"s_lshl_b32 s{sTMP}, s{sTMP}, 7")
            A(f"s_add_u32 s{sTMP}, s{sTMP}, {W_STAMP}")
            A(f"v_mov_b32 v1, s{sTMP}")
            for k in range(self.nstamp):
                A(f"v_mov_b32 v2, s{sSTAMP + k}")
                A(f"global_store_dword v1, v2, {sp(sWS)} offset:{4 * k}")
        A("s_endpgm")

    def build(self):
        A = self.A
        self.allnames = {}
        A(f"{KNAME}:")
        A("s_cmp_ge_u32 s2, 256")
        A("s_cbranch_scc1 L_end")
        self.stamp("start")
        if self.o.get("codepf", 1):
            A(f"s_getpc_b64 {sp(sE)}")
            A("L_pc:")
            A("v_lshlrev_b32 v2, 5, v0")
            A(f"v_min_u32 v2, L_codeend-L_pc-4, v2")
            A(f"global_load_dword v3, v2, {sp(sE)}")
        A("s_load_dwordx16 s[4:19], s[0:1], 0")
        A("s_load_dwordx8 s[20:27], s[0:1], 64")
        A("s_load_dwordx4 s[28:31], s[0:1], 96")
        A("s_load_dwordx2 s[32:33], s[0:1], 112")
        A("v_lshrrev_b32 v4, 6, v0")
        A(f"s_and_b32 s{sXCD}, s2, 7")
        A(f"v_readfirstlane_b32 s{sWAVE}, v4")
        A(f"s_lshr_b32 s{sPOS}, s2, 3")
        A(f"s_lshl_b32 s{sL}, s{sXCD}, 5")
        A(f"s_add_u32 s{sL}, s{sL}, s{sPOS}")
        A("v_and_b32 v1, 63, v0")
        A(f"s_mov_b32 s{sMASK}, 0xffff0000")
        A(f"s_cmp_ge_u32 s{sWAVE}, 4")
        A("s_cbranch_scc1 L_chan")
        self.rows()
        self.names = self.names[:1]
        self.nstamp = min(self.nstamp, 1)
        A(".p2align 6")
        self.chans()
        A("L_end:")
        A("s_endpgm")
        for l in self.tail.L:
            A(l)
        A("L_codeend:")
        lines, nops = A.padded()
        lines, nbytes, promoted, missed = align8(lines)
        self.info = dict(nops=nops, bytes=nbytes, promoted=promoted, missed=missed, lines=len(lines))
        return lines

    def rows(self):
        A = self.A
        o = self.o
        vLANE = 1
        vX, vU, vD, vWR = 212, 10, 18, 20
        vREG, vRD, vAUX = 22, 23, 24
        vKEY, vSW, vRA, vFL, vUW = 26, 27, 28, 29, 30
        vT = 32
        vWG, vWD = 40, 72
        vY = 88
        vONE = 96
        K = 100
        L2E = 1.4426950408889634
        A(f"v_lshrrev_b32 {v(vT)}, 1, v0")
        A(f"v_and_b32 {v(vT + 1)}, 1, v0")
        A(f"v_lshlrev_b32 {v(vT + 2)}, 3, {v(vT)}")
        A(f"s_lshl_b32 s{sT0}, s{sL}, 13")
        A(f"v_lshl_add_u32 {v(vRD)}, {v(vT + 1)}, 12, {v(vT + 2)}")
        A(f"v_add_u32 {v(vRD)}, s{sT0}, {v(vRD)}")
        A(f"s_mul_i32 s{sOWN}, s{sL}, {RS}")
        A(f"s_add_u32 s{sOWN}, s{sOWN}, {W_REG}")
        A(f"s_add_u32 s{sT0}, s{sOWN}, 4096")
        A(f"v_lshl_add_u32 {v(vREG)}, v0, 4, s{sT0}")
        A(f"v_lshlrev_b32 {v(vT + 3)}, 4, {v(vLANE)}")
        nt = ' nt' if o.get('ntx', 1) else ''
        A("s_waitcnt lgkmcnt(0)")
        self.stamp("karg")
        for r in range(4):
            A(f"global_load_dwordx2 {v(vX + 2 * r, 2)}, {v(vRD)}, {sp(sX)} offset:{1024 * r}{nt}")
        A(f"s_load_dword s{sG}, {sp(sWS)}, 0")
        A(f"global_load_dwordx2 {v(vD, 2)}, {v(vT + 2)}, {sp(sD)}")
        A(f"global_load_dwordx2 {v(vWR, 2)}, {v(vT + 2)}, {sp(sWR)}")
        A(f"global_load_dwordx4 {v(vONE, 4)}, {v(vT + 3)}, {sp(sWR)}")
        A(f"s_mov_b32 s{sODD}, 0xaaaaaaaa")
        A(f"s_mov_b32 s{sODD + 1}, 0xaaaaaaaa")
        A(f"s_mov_b32 s{sSELLO}, 0x3f80")
        A(f"s_mov_b32 s{sSELHI}, 0x3f800000")
        A(f"s_mov_b32 s{sONES}, 0x3f803f80")
        A(f"s_and_b32 s{sTMP}, s{sL}, 1")
        A(f"s_lshl_b32 s{sTMP}, s{sTMP}, 12")
        A(f"s_lshr_b32 s{sTMP + 1}, s{sL}, 1")
        A(f"s_lshl_b32 s{sTMP + 1}, s{sTMP + 1}, 5")
        A(f"s_add_u32 s{sTMP}, s{sTMP}, s{sTMP + 1}")
        A(f"s_add_u32 s{sTMP}, s{sTMP}, {W_REG + O_X1}")
        A(f"v_mul_u32_u24 {v(vAUX)}, {RS}, {v(vT)}")
        A(f"v_lshl_add_u32 {v(vAUX)}, {v(vT + 1)}, 4, {v(vAUX)}")
        A(f"v_add_u32 {v(vAUX)}, s{sTMP}, {v(vAUX)}")
        A(f"v_add_u32 {v(vAUX + 1)}, {128 * RS}, {v(vAUX)}")
        FS = o.get("fs", 5)
        KS = o.get("ks", 5)
        A(f"v_lshlrev_b32 {v(vFL)}, {FS}, {v(vT)}")
        A(f"v_add_u32 {v(vFL)}, {W_FLAG}, {v(vFL)}")
        A(f"v_add_u32 {v(vFL + 2)}, {128 << FS}, {v(vFL)}")
        A(f"s_lshl_b32 s{sT0}, s{sL}, {FS}")
        A(f"s_add_u32 s{sT0}, s{sT0}, {W_FLAG}")
        A(f"v_mov_b32 {v(vKEY)}, s{sT0}")
        A(f"v_lshlrev_b32 {v(vSW)}, 6, {v(vT + 1)}")
        A(f"v_and_b32 {v(vT + 3)}, 4, {v(vLANE)}")
        A(f"v_lshl_add_u32 {v(vSW)}, {v(vT + 3)}, 3, {v(vSW)}")
        A(f"v_and_b32 {v(vT + 3)}, 8, {v(vLANE)}")
        A(f"v_lshl_add_u32 {v(vSW)}, {v(vT + 3)}, 4, {v(vSW)}")
        A(f"v_lshrrev_b32 {v(vT + 3)}, 5, {v(vLANE)}")
        A(f"v_lshl_add_u32 {v(vSW)}, {v(vT + 3)}, 4, {v(vSW)}")
        A(f"s_lshl_b32 s{sTMP}, s{sWAVE}, 2")
        A(f"s_add_u32 s{sTMP}, s{sTMP}, {L_RED1}")
        A(f"v_add_u32 {v(vSW)}, s{sTMP}, {v(vSW)}")
        A(f"v_and_b32 {v(vT + 3)}, 7, {v(vLANE)}")
        A(f"v_lshlrev_b32 {v(vRA)}, 4, {v(vT + 3)}")
        A(f"v_add_u32 {v(vRA)}, {L_RED1}, {v(vRA)}")
        A(f"v_lshlrev_b32 {v(vUW)}, 3, v0")
        A(f"v_mov_b32 {v(K)}, 0")
        A(f"v_mov_b32 {v(K + 1)}, 0")
        A(f"v_min_u32 {v(vT + 3)}, 472, {v(vUW)}")
        A(f"v_add_u32 {v(vT + 3)}, {L_U}, {v(vT + 3)}")
        A(f"v_min_u32 {v(vT + 4)}, 56, {v(vUW)}")
        A(f"v_add_u32 {v(vT + 4)}, {L_P}, {v(vT + 4)}")
        A(f"ds_write2st64_b64 {v(vT + 3)}, {v(K, 2)}, {v(K, 2)} offset0:0 offset1:9")
        A(f"ds_write_b64 {v(vT + 4)}, {v(K, 2)}")
        A(f"ds_write_b64 {v(vT + 4)}, {v(K, 2)} offset:{PC}")
        A(f"v_add_u32 {v(vUW)}, {L_U + 480}, {v(vUW)}")

        V = [K + i for i in range(8)]
        A("s_waitcnt vmcnt(3)")
        self.stamp("x")
        for r in range(4):
            A(f"v_dot2_f32_bf16 {v(V[r])}, {v(vX + 2 * r)}, s{sONES}, 0")
        for r in range(4):
            A(f"v_dot2_f32_bf16 {v(V[4 + r])}, {v(vX + 2 * r)}, {v(vX + 2 * r)}, 0")
        for r in range(4):
            A(f"v_dot2_f32_bf16 {v(V[r])}, {v(vX + 2 * r + 1)}, s{sONES}, {v(V[r])}")
        for r in range(4):
            A(f"v_dot2_f32_bf16 {v(V[4 + r])}, {v(vX + 2 * r + 1)}, {v(vX + 2 * r + 1)}, {v(V[4 + r])}")
        self.reduce8(V, K + 8)
        A(f"ds_write_b32 {v(vSW)}, {v(V[0])}")
        A("s_waitcnt lgkmcnt(0)")
        A("s_barrier")
        self.stamp("b1")
        A(f"ds_read_b128 {v(K, 4)}, {v(vRA)}")
        A(f"ds_read_b128 {v(K + 4, 4)}, {v(vRA)} offset:128")
        A(f"s_add_u32 s{sG}, s{sG}, 0x9e3779b9")
        A(f"v_mov_b32 {v(K + 8)}, s{sG}")
        A(f"s_cmp_eq_u32 s{sWAVE}, 0")
        A("s_cselect_b64 exec, 1, 0")
        A(f"global_store_dword {v(vKEY)}, {v(K + 8)}, {sp(sWS)} sc1")
        A("s_mov_b64 exec, -1")
        A(f"s_mov_b64 vcc, {sp(sODD)}")
        A("s_waitcnt lgkmcnt(0)")
        vNM, vRI = K + 16, K + 20
        self.row_stats(K, K + 4, K + 10, K + 11, K + 12)
        self.spread(K + 10, vNM, K + 24)
        Dd = K + 32
        for c in range(4):
            for r in range(4):
                A(f"v_dot2_f32_bf16 {v(Dd + 4 * c + r)}, {v(vX + 2 * r + (c >> 1))}, s{sSELHI if c & 1 else sSELLO}, {v(vNM + r)}")
        self.spread(K + 11, vRI, K + 24)
        Pk = K + 48
        for half in range(2):
            ks = range(4 * half, 4 * half + 4)
            for k in ks:
                A(f"v_cvt_pk_bf16_f32 {v(Pk + k)}, {v(Dd + 2 * k)}, {v(Dd + 2 * k + 1)}")
            for k in ks:
                A(f"v_lshlrev_b32 {v(Dd + 2 * k)}, 16, {v(Pk + k)}")
                A(f"v_and_b32 {v(Dd + 2 * k + 1)}, s{sMASK}, {v(Pk + k)}")
            for k in ks:
                A(f"v_pk_mul_f32 {v(Dd + 2 * k, 2)}, {v(Dd + 2 * k, 2)}, {v(vRI + 2 * (k & 1), 2)}")
            for k in ks:
                A(f"v_cvt_pk_bf16_f32 {v(vU + k)}, {v(Dd + 2 * k)}, {v(Dd + 2 * k + 1)}")
            A(f"global_store_dwordx4 {v(vREG)}, {v(vU + 4 * half, 4)}, {sp(sWS)} offset:{-4096 + 4096 * half} sc1")
        self.stamp("x1st")
        fl = [f"global_load_dword {v(vT + 4)}, {v(vFL)}, {sp(sWS)} sc1",
              f"global_load_dword {v(vT + 5)}, {v(vFL + 2)}, {sp(sWS)} sc1"]
        flchk = [f"v_xor_b32 {v(vT + 6)}, s{sG}, {v(vT + 4)}",
                 f"v_xor_b32 {v(vT + 7)}, s{sG}, {v(vT + 5)}",
                 f"v_or_b32 {v(vT + 6)}, {v(vT + 6)}, {v(vT + 7)}",
                 f"v_cmp_ne_u32 vcc, 0, {v(vT + 6)}"]
        flmode = o.get("flmode", 0)
        if flmode == 1:
            A("s_waitcnt vmcnt(0)")
        if flmode < 2:
            for l in fl:
                A(l)
        A("s_barrier")
        if flmode == 2:
            for l in fl:
                A(l)
        A("s_waitcnt vmcnt(0)")
        self.stamp("x1dr")
        self.poll("flag", fl, flchk)
        xl = [f"global_load_dwordx4 {v(vY, 4)}, {v(vAUX)}, {sp(sWS)} sc1",
              f"global_load_dwordx4 {v(vY + 4, 4)}, {v(vAUX + 1)}, {sp(sWS)} sc1"]
        for l in xl:
            A(l)
        self.stamp("flag")
        A(f"s_mul_i32 s{sF}, s{sXCD}, 14")
        A(f"s_add_u32 s{sF}, s{sF}, s{sPOS}")
        A(f"s_bitcmp1_b32 s{sWAVE}, 0")
        A(f"s_cselect_b64 {sp(sWSEL)}, {sp(sWU)}, {sp(sWG)}")
        A(f"s_lshr_b32 s{sTMP + 1}, s{sWAVE}, 1")
        A(f"s_mul_i32 s{sTMP + 1}, s{sTMP + 1}, {256 * 3584}")
        A(f"s_lshl_b32 s{sTMP + 2}, s{sF}, 5")
        A(f"s_add_u32 s{sTMP + 1}, s{sTMP + 1}, s{sTMP + 2}")
        vWA = K + 8
        A(f"v_lshrrev_b32 {v(vWA)}, 1, {v(vLANE)}")
        A(f"v_mul_u32_u24 {v(vWA)}, {8 * 3584}, {v(vWA)}")
        A(f"v_lshl_add_u32 {v(vWA)}, {v(vT + 1)}, 4, {v(vWA)}")
        A(f"v_add_u32 {v(vWA)}, s{sTMP + 1}, {v(vWA)}")
        A(f"v_add_u32 {v(vWA + 2)}, {7 * 3584}, {v(vWA)}")
        A(f"v_add_u32 {v(vWA + 1)}, {4 * 3584}, {v(vWA)}")
        A(f"v_add_u32 {v(vWA)}, 3584, {v(vWA)}")
        A(f"s_lshl_b32 s{sTMP + 1}, s{sF}, 14")
        A(f"s_add_u32 s{sTMP + 1}, s{sTMP + 1}, 4096")
        A(f"v_lshl_add_u32 {v(vWA + 3)}, v0, 2, s{sTMP + 1}")
        A(f"v_add_u32 {v(vWA + 4)}, 8192, {v(vWA + 3)}")
        A(f"v_dot2_f32_bf16 {v(K + 4)}, {v(vONE)}, s{sONES}, 0")
        for k in range(1, 4):
            A(f"v_dot2_f32_bf16 {v(K + 4)}, {v(vONE + k)}, s{sONES}, {v(K + 4)}")
        A(f"v_mov_b32 {v(K + 5)}, {L_SUMW}")
        A(f"s_mov_b32 s{sRP0}, 0x05040100")
        A(f"s_mov_b32 s{sRP1}, 0x07060302")
        for sh in (8, 4, 2, 1):
            A(f"v_add_f32_dpp {v(K + 4)}, {v(K + 4)}, {v(K + 4)} row_ror:{sh} row_mask:0xf bank_mask:0xf")
        A(f"v_add_f32_dpp {v(K + 4)}, {v(K + 4)}, {v(K + 4)} row_bcast:15 row_mask:0xa bank_mask:0xf")
        A(f"v_add_f32_dpp {v(K + 4)}, {v(K + 4)}, {v(K + 4)} row_bcast:31 row_mask:0xc bank_mask:0xf")
        A("s_mov_b32 exec_lo, 0")
        A("s_brev_b32 exec_hi, 1")
        A(f"ds_write_b32 {v(K + 5)}, {v(K + 4)}")
        A("s_mov_b64 exec, -1")
        A("s_barrier")
        A("s_waitcnt vmcnt(0)")
        chk8 = [f"v_max3_u32 {v(vT + 6)}, {v(vY)}, {v(vY + 1)}, {v(vY + 2)}",
                f"v_max3_u32 {v(vT + 7)}, {v(vY + 3)}, {v(vY + 4)}, {v(vY + 5)}",
                f"v_max3_u32 {v(vT + 6)}, {v(vT + 6)}, {v(vY + 6)}, {v(vY + 7)}",
                f"v_max_u32 {v(vT + 6)}, {v(vT + 6)}, {v(vT + 7)}",
                f"v_cmp_eq_u32 vcc, -1, {v(vT + 6)}"]
        self.poll("x1", xl, chk8)
        self.stamp("x1ld")
        A(f"ds_write2st64_b64 {v(vUW)}, {v(vY, 2)}, {v(vY + 2, 2)} offset0:0 offset1:9")
        A(f"ds_write2st64_b64 {v(vUW)}, {v(vY + 4, 2)}, {v(vY + 6, 2)} offset0:4 offset1:13")
        A("s_waitcnt lgkmcnt(0)")
        A("s_barrier")

        A(f"s_cmp_lt_u32 s{sPOS}, 14")
        A("s_cbranch_scc0 L_now")
        for k in range(8):
            A(f"global_load_dwordx4 {v(vWG + 4 * k, 4)}, {v(vWA + k // 3)}, {sp(sWSEL)} offset:{(k % 3 - 1) * 3584}")
        for k in range(16):
            A(f"global_load_dword {v(vWD + k)}, {v(vWA + 3 + (k >> 3))}, {sp(sWD)} offset:{((k & 7) - 4) * 1024}")
        A("L_now:")
        A(f"v_and_b32 {v(vT + 3)}, 0xfe, v0")
        A(f"v_mul_u32_u24 {v(vAUX)}, {RS}, {v(vT + 3)}")
        A(f"v_lshl_add_u32 {v(vAUX)}, {v(vT + 1)}, 4, {v(vAUX)}")
        A(f"s_lshl_b32 s{sTMP}, s{sL}, 5")
        A(f"s_add_u32 s{sTMP}, s{sTMP}, {W_REG + O_X2}")
        A(f"v_add_u32 {v(vAUX)}, s{sTMP}, {v(vAUX)}")
        A(f"v_add_u32 {v(vAUX + 1)}, {RS}, {v(vAUX)}")
        Tt, Xf = K + 40, K + 56
        Df = K + 72
        for k in range(8):
            A(f"v_lshlrev_b32 {v(Tt + 2 * k)}, 16, {v(vU + k)}")
            A(f"v_and_b32 {v(Tt + 2 * k + 1)}, s{sMASK}, {v(vU + k)}")
        A(f"v_lshlrev_b32 {v(Df)}, 16, {v(vD)}")
        A(f"v_and_b32 {v(Df + 1)}, s{sMASK}, {v(vD)}")
        A(f"v_lshlrev_b32 {v(Df + 2)}, 16, {v(vD + 1)}")
        A(f"v_and_b32 {v(Df + 3)}, s{sMASK}, {v(vD + 1)}")
        for k in range(8):
            c = k >> 1
            sel = "op_sel:[0,1] op_sel_hi:[1,1]" if c & 1 else "op_sel_hi:[1,0]"
            A(f"v_pk_mul_f32 {v(Tt + 2 * k, 2)}, {v(Tt + 2 * k, 2)}, {v(Df + (c & 2), 2)} {sel}")
        for k in range(8):
            A(f"v_cvt_pk_bf16_f32 {v(Xf + k)}, {v(Tt + 2 * k)}, {v(Tt + 2 * k + 1)}")
        for k in range(8):
            A(f"v_lshlrev_b32 {v(Tt + 2 * k)}, 16, {v(Xf + k)}")
            A(f"v_and_b32 {v(Tt + 2 * k + 1)}, s{sMASK}, {v(Xf + k)}")
        for r in range(4):
            for c in range(4):
                src = v(vX + 2 * r + (c >> 1))
                if c & 1:
                    A(f"v_and_b32 {v(Xf + 4 * c + r)}, s{sMASK}, {src}")
                else:
                    A(f"v_lshlrev_b32 {v(Xf + 4 * c + r)}, 16, {src}")
        self.stamp("shadow")
        A("s_barrier")
        A("s_barrier")
        self.stamp("b4b")
        for l in xl:
            A(l)
        A("s_waitcnt vmcnt(0)")
        self.poll("x2", xl, chk8)
        self.stamp("x2ld")

        for k in range(8):
            A(f"v_dot2_f32_bf16 {v(Tt + 2 * k)}, {v(vY + k)}, s{sSELLO}, {v(Tt + 2 * k)}")
            A(f"v_dot2_f32_bf16 {v(Tt + 2 * k + 1)}, {v(vY + k)}, s{sSELHI}, {v(Tt + 2 * k + 1)}")
        for k in range(8):
            A(f"v_cvt_pk_bf16_f32 {v(vY + k)}, {v(Tt + 2 * k)}, {v(Tt + 2 * k + 1)}")
        for k in range(8):
            A(f"v_dot2_f32_bf16 {v(Xf + 2 * k)}, {v(vY + k)}, s{sSELLO}, {v(Xf + 2 * k)}")
            A(f"v_dot2_f32_bf16 {v(Xf + 2 * k + 1)}, {v(vY + k)}, s{sSELHI}, {v(Xf + 2 * k + 1)}")
        vH = vX
        for cp in range(2):
            for r in range(4):
                A(f"v_cvt_pk_bf16_f32 {v(vH + 2 * r + cp)}, {v(Xf + 8 * cp + r)}, {v(Xf + 8 * cp + 4 + r)}")
        Rr = [K + 8 + i for i in range(4)]
        for cp in range(2):
            for r in range(4):
                A(f"v_dot2_f32_bf16 {v(V[r])}, {v(vH + 2 * r + cp)}, s{sONES}, {v(V[r]) if cp else 0}")
            for r in range(4):
                A(f"v_dot2_f32_bf16 {v(V[4 + r])}, {v(vH + 2 * r + cp)}, {v(vH + 2 * r + cp)}, {v(V[4 + r]) if cp else 0}")
            for r in range(4):
                A(f"v_dot2_f32_bf16 {v(Rr[r])}, {v(vH + 2 * r + cp)}, {v(vWR + cp)}, {v(Rr[r]) if cp else 0}")
        for i in range(4):
            A(f"v_add_f32_dpp {v(V[i])}, {v(V[i])}, {v(V[i])} row_ror:8 row_mask:0xf bank_mask:0x3")
        for i in range(4):
            A(f"v_add_f32_dpp {v(V[i])}, {v(V[i + 4])}, {v(V[i + 4])} row_ror:8 row_mask:0xf bank_mask:0xc")
        for i in range(2):
            A(f"v_add_f32_dpp {v(Rr[i])}, {v(Rr[i])}, {v(Rr[i])} row_shl:4 row_mask:0xf bank_mask:0x5")
        for i in range(2):
            A(f"v_add_f32_dpp {v(Rr[i])}, {v(Rr[i + 2])}, {v(Rr[i + 2])} row_shr:4 row_mask:0xf bank_mask:0xa")
        for i in range(2):
            A(f"v_add_f32_dpp {v(V[i])}, {v(V[i])}, {v(V[i])} row_shl:4 row_mask:0xf bank_mask:0x5")
        for i in range(2):
            A(f"v_add_f32_dpp {v(V[i])}, {v(V[i + 2])}, {v(V[i + 2])} row_shr:4 row_mask:0xf bank_mask:0xa")
        A(f"v_permlane32_swap_b32 {v(Rr[0])}, {v(Rr[1])}")
        A(f"v_and_b32 {v(K + 13)}, 0xffffff7f, {v(vSW)}")
        A(f"v_permlane32_swap_b32 {v(V[0])}, {v(V[1])}")
        A(f"v_add_f32 {v(Rr[0])}, {v(Rr[0])}, {v(Rr[1])}")
        A(f"v_add_f32 {v(V[0])}, {v(V[0])}, {v(V[1])}")
        A(f"s_mov_b64 vcc, {sp(sODD)}")
        A(f"v_add_f32_dpp {v(Rr[0])}, {v(Rr[0])}, {v(Rr[0])} row_ror:8 row_mask:0xf bank_mask:0xf")
        A(f"v_add_f32_dpp {v(V[0])}, {v(V[0])}, {v(V[0])} quad_perm:[2,3,0,1] row_mask:0xf bank_mask:0xf")
        A(f"v_mov_b32 {v(V[1])}, {v(V[0])}")
        A(f"v_add_f32_dpp {v(Rr[0])}, {v(Rr[0])}, {v(Rr[0])} quad_perm:[2,3,0,1] row_mask:0xf bank_mask:0xf")
        A(f"v_mov_b32 {v(Rr[1])}, {v(Rr[0])}")
        A(f"v_permlane16_swap_b32 {v(V[0])}, {v(V[1])}")
        A(f"v_add_f32 {v(V[0])}, {v(V[0])}, {v(V[1])}")
        A(f"v_permlane16_swap_b32 {v(Rr[0])}, {v(Rr[1])}")
        A(f"v_add_f32 {v(Rr[0])}, {v(Rr[0])}, {v(Rr[1])}")
        A(f"ds_write_b32 {v(vSW)}, {v(V[0])} offset:{L_RED2 - L_RED1}")
        A(f"ds_write_b32 {v(K + 13)}, {v(Rr[0])} offset:{L_RED2 - L_RED1 + 256}")
        A("s_waitcnt lgkmcnt(0)")
        A("s_barrier")
        self.stamp("b5")
        Hf, Dd = Xf, Tt
        self.key_calc(K, vRA, vLANE)
        self.spread(K + 12, vNM, K + 24)
        A(f"v_readfirstlane_b32 s{sBEST}, {v(K + 8)}")
        for r in range(4):
            for cp in range(2):
                A(f"v_lshlrev_b32 {v(Hf + 4 * r + 2 * cp)}, 16, {v(vH + 2 * r + cp)}")
                A(f"v_and_b32 {v(Hf + 4 * r + 2 * cp + 1)}, s{sMASK}, {v(vH + 2 * r + cp)}")
        self.spread(K + 13, vRI, K + 24)
        for k in range(8):
            r = k >> 1
            sel = "op_sel:[0,1] op_sel_hi:[1,1]" if r & 1 else "op_sel_hi:[1,0]"
            A(f"v_pk_add_f32 {v(Dd + 2 * k, 2)}, {v(Hf + 2 * k, 2)}, {v(vNM + (r & 2), 2)} {sel}")
        vX2 = vU
        for k in range(8):
            A(f"v_cvt_pk_bf16_f32 {v(vX2 + k)}, {v(Dd + 2 * k)}, {v(Dd + 2 * k + 1)}")
        for k in range(8):
            A(f"v_lshlrev_b32 {v(Dd + 2 * k)}, 16, {v(vX2 + k)}")
            A(f"v_and_b32 {v(Dd + 2 * k + 1)}, s{sMASK}, {v(vX2 + k)}")
        for k in range(8):
            r = k >> 1
            sel = "op_sel:[0,1] op_sel_hi:[1,1]" if r & 1 else "op_sel_hi:[1,0]"
            A(f"v_pk_mul_f32 {v(Dd + 2 * k, 2)}, {v(Dd + 2 * k, 2)}, {v(vRI + (r & 2), 2)} {sel}")
        for k in range(8):
            A(f"v_cvt_pk_bf16_f32 {v(vX2 + k)}, {v(Dd + 2 * k)}, {v(Dd + 2 * k + 1)}")
        A(f"s_andn2_b32 s{sTMP}, 7, s{sBEST}")
        A(f"s_and_b32 s{sTMP + 1}, s{sTMP}, 3")
        A(f"s_lshl_b32 s{sTMP + 2}, s{sTMP + 1}, 1")
        A(f"s_not_b64 {sp(sE)}, {sp(sODD)}")
        A(f"s_cmp_ge_u32 s{sTMP}, 4")
        A(f"s_cselect_b64 {sp(sE)}, {sp(sODD)}, {sp(sE)}")
        vC = K + 24
        A(f"s_set_gpr_idx_on s{sTMP + 2}, gpr_idx(SRC0)")
        A(f"v_mov_b32 {v(vC)}, {v(vX2)}")
        A(f"v_mov_b32 {v(vC + 1)}, {v(vX2 + 1)}")
        A(f"v_mov_b32 {v(vC + 2)}, {v(vH)}")
        A(f"v_mov_b32 {v(vC + 3)}, {v(vH + 1)}")
        A("s_set_gpr_idx_off")
        A(f"s_add_u32 s{sTMP + 3}, s{sOWN}, {O_SLOT}")
        A(f"v_add_u32 {v(vT)}, s{sTMP + 3}, {v(vT + 2)}")
        A(f"s_mov_b64 exec, {sp(sE)}")
        A(f"global_store_dwordx2 {v(vT)}, {v(vC, 2)}, {sp(sWS)} sc1")
        A(f"global_store_dwordx2 {v(vT)}, {v(vC + 2, 2)}, {sp(sWS)} offset:1024 sc1")
        A("s_mov_b64 exec, -1")
        self.stamp("slot")
        for k in range(8):
            A(f"v_dot2_f32_bf16 {v(Hf + 2 * k)}, {v(vX2 + k)}, s{sSELLO}, {v(Hf + 2 * k)}")
            A(f"v_dot2_f32_bf16 {v(Hf + 2 * k + 1)}, {v(vX2 + k)}, s{sSELHI}, {v(Hf + 2 * k + 1)}")
        vO = vY
        A(f"v_mov_b32 {v(vT + 4)}, {L_REDK}")
        for k in range(8):
            A(f"v_cvt_pk_bf16_f32 {v(vO + k)}, {v(Hf + 2 * k)}, {v(Hf + 2 * k + 1)}")
        osc = " sc1" if o.get("outsc", 0) == 1 else (" nt" if o.get("outsc", 0) == 2 else "")
        for r in range(4):
            A(f"s_cmp_eq_u32 s{sTMP + 1}, {r}")
            A(f"s_cselect_b64 vcc, {sp(sE)}, 0")
            A("s_not_b64 exec, vcc")
            A(f"global_store_dwordx2 {v(vRD)}, {v(vO + 2 * r, 2)}, {sp(sOUT)} offset:{1024 * r}{osc}")
        A("s_mov_b64 exec, -1")
        A(f"s_set_gpr_idx_on s{sTMP + 2}, gpr_idx(SRC0)")
        A(f"v_mov_b32 {v(vC + 4)}, {v(vO)}")
        A(f"v_mov_b32 {v(vC + 5)}, {v(vO + 1)}")
        A("s_set_gpr_idx_off")
        A(f"s_lshl_b32 s{sTMP + 1}, s{sTMP + 1}, 10")
        A(f"v_add_u32 {v(vRD)}, s{sTMP + 1}, {v(vRD)}")
        A(f"s_lshr_b32 s{sTMP}, s{sWAVE}, 1")
        A(f"s_lshl_b32 s{sTMP}, s{sTMP}, 9")
        A(f"s_add_u32 s{sTMP}, s{sTMP}, {W_REG + O_SLOT}")
        A(f"v_lshrrev_b32 {v(vT)}, 1, {v(vLANE)}")
        A(f"v_lshl_add_u32 {v(vT)}, {v(vT)}, 4, s{sTMP}")
        A(f"v_lshlrev_b32 {v(vT + 1)}, 6, {v(vT + 1)}")
        A(f"v_and_b32 {v(vT + 2)}, 12, {v(vLANE)}")
        A(f"v_lshl_add_u32 {v(vT + 1)}, {v(vT + 2)}, 2, {v(vT + 1)}")
        A(f"v_lshrrev_b32 {v(vT + 2)}, 5, {v(vLANE)}")
        A(f"v_lshl_add_u32 {v(vT + 1)}, {v(vT + 2)}, 3, {v(vT + 1)}")
        A(f"s_and_b32 s{sTMP}, s{sWAVE}, 1")
        A(f"s_lshl_b32 s{sTMP}, s{sTMP}, 7")
        A(f"s_lshr_b32 s{sTMP + 1}, s{sWAVE}, 1")
        A(f"s_lshl_b32 s{sTMP + 1}, s{sTMP + 1}, 2")
        A(f"s_add_u32 s{sTMP}, s{sTMP}, s{sTMP + 1}")
        A(f"s_add_u32 s{sTMP}, s{sTMP}, {L_REDF}")
        A(f"v_add_u32 {v(vT + 1)}, s{sTMP}, {v(vT + 1)}")
        A(f"v_and_b32 {v(vT + 2)}, 15, {v(vLANE)}")
        A(f"v_lshlrev_b32 {v(vT + 2)}, 3, {v(vT + 2)}")
        A(f"v_add_u32 {v(vT + 2)}, {L_REDF}, {v(vT + 2)}")
        A(f"s_add_u32 s{sTMP}, s{sOWN}, {O_PART}")
        A(f"v_lshl_add_u32 {v(vT + 3)}, v0, 3, s{sTMP}")
        WGp = K + 80
        for kp in range(4):
            for d in range(4):
                lo, hi = vWG + 8 * kp + d, vWG + 8 * kp + 4 + d
                A(f"v_perm_b32 {v(WGp + 8 * kp + 2 * d)}, {v(hi)}, {v(lo)}, s{sRP0}")
                A(f"v_perm_b32 {v(WGp + 8 * kp + 2 * d + 1)}, {v(hi)}, {v(lo)}, s{sRP1}")
        WDp = vWG
        for kp in range(8):
            lo, hi = vWD + 2 * kp, vWD + 2 * kp + 1
            A(f"v_perm_b32 {v(WDp + 2 * kp)}, {v(hi)}, {v(lo)}, s{sRP0}")
            A(f"v_perm_b32 {v(WDp + 2 * kp + 1)}, {v(hi)}, {v(lo)}, s{sRP1}")
        self.stamp("outst")
        A("s_barrier")
        A(f"ds_read_b32 {v(K)}, {v(vT + 4)}")
        A("s_waitcnt lgkmcnt(0)")
        A(f"v_readfirstlane_b32 s{sWIN}, {v(K)}")
        A(f"s_andn2_b32 s{sT0}, 2047, s{sWIN}")
        A(f"s_lshr_b32 s{sT1}, s{sT0}, 3")
        A(f"s_mul_i32 s{sT1}, s{sT1}, {RS}")
        A(f"s_cmp_lt_u32 s{sPOS}, 14")
        A("s_cbranch_scc0 L_noffn")
        A(f"v_add_u32 {v(vT)}, s{sT1}, {v(vT)}")
        sl = [f"global_load_dwordx4 {v(K, 4)}, {v(vT)}, {sp(sWS)} sc1"]
        A(sl[0])
        self.stamp("win")
        A("s_waitcnt vmcnt(0)")
        self.poll("sel", sl, [f"v_max3_u32 {v(vT + 6)}, {v(K)}, {v(K + 1)}, {v(K + 2)}",
                              f"v_max_u32 {v(vT + 6)}, {v(vT + 6)}, {v(K + 3)}",
                              f"v_cmp_eq_u32 vcc, -1, {v(vT + 6)}"])
        self.stamp("sel")
        V2 = [K + 8 + i for i in range(8)]
        for kp in range(4):
            for c in range(8):
                A(f"v_dot2_f32_bf16 {v(V2[c])}, {v(K + kp)}, {v(WGp + 8 * kp + c)}, {v(V2[c]) if kp else 0}")
        self.reduce8(V2, K + 16)
        A(f"ds_write_b32 {v(vT + 1)}, {v(V2[0])}")
        A("s_waitcnt lgkmcnt(0)")
        A("s_barrier")
        A(f"ds_read_b64 {v(K, 2)}, {v(vT + 2)}")
        A(f"ds_read_b64 {v(K + 2, 2)}, {v(vT + 2)} offset:128")
        A("s_waitcnt lgkmcnt(0)")
        A(f"v_add_f32 {v(K)}, {v(K)}, {v(K + 1)}")
        A(f"v_add_f32 {v(K + 2)}, {v(K + 2)}, {v(K + 3)}")
        A(f"v_cvt_pk_bf16_f32 {v(K + 1)}, {v(K)}, {v(K + 2)}")
        A(f"v_lshlrev_b32 {v(K)}, 16, {v(K + 1)}")
        A(f"v_mul_f32 {v(K + 3)}, {hex(f2u(-L2E))}, {v(K)}")
        A(f"v_exp_f32 {v(K + 3)}, {v(K + 3)}")
        A(f"v_and_b32 {v(K + 2)}, s{sMASK}, {v(K + 1)}")
        A(f"v_add_f32 {v(K + 3)}, 1.0, {v(K + 3)}")
        A(f"v_rcp_f32 {v(K + 3)}, {v(K + 3)}")
        A(f"v_mul_f32 {v(K)}, {v(K)}, {v(K + 3)}")
        A(f"v_cvt_pk_bf16_f32 {v(K)}, {v(K)}, {v(K)}")
        A(f"v_and_b32 {v(K)}, s{sMASK}, {v(K)}")
        A(f"v_mul_f32 {v(K)}, {v(K)}, {v(K + 2)}")
        A(f"v_mov_b32_dpp {v(K + 1)}, {v(K)} quad_perm:[1,1,3,3] row_mask:0xf bank_mask:0xf")
        A(f"v_cvt_pk_bf16_f32 {v(K)}, {v(K)}, {v(K + 1)}")
        for kp in range(8):
            A(f"v_readlane_b32 s{sH + kp}, {v(K)}, {2 * kp}")
        for kp in range(8):
            for c in range(2):
                A(f"v_dot2_f32_bf16 {v(K + 4 + c)}, s{sH + kp}, {v(WDp + 2 * kp + c)}, {v(K + 4 + c) if kp else 0}")
        A(f"global_store_dwordx2 {v(vT + 3)}, {v(K + 4, 2)}, {sp(sWS)} sc1")
        self.stamp("part")
        held = [f"s_cmp_eq_u32 s{sWIN}, s{sBEST}",
                f"s_cselect_b64 exec, 0, {sp(sE)}",
                f"global_store_dwordx2 {v(vRD)}, {v(vC + 4, 2)}, {sp(sOUT)}{osc}",
                f"s_or_b32 s{sTMP}, s{sL}, s{sWAVE}",
                f"s_cmp_eq_u32 s{sTMP}, 0",
                "s_cselect_b64 exec, 1, 0",
                f"v_mov_b32 {v(vT + 4)}, s{sG}",
                f"v_mov_b32 {v(vT + 5)}, 0",
                f"global_store_dword {v(vT + 5)}, {v(vT + 4)}, {sp(sWS)}",
                "s_mov_b64 exec, -1"]
        T = self.tail
        T("L_noffn:")
        for l in held:
            T(l)
        T("s_branch L_fin")
        for l in held:
            A(l)
        A(f"s_cmp_lt_u32 s{sPOS}, 8")
        A("s_cbranch_scc0 L_fin")
        A(f"s_cmp_lt_u32 s{sWAVE}, 2")
        A("s_cbranch_scc0 L_fin")
        A(f"s_lshl_b32 s{sTMP}, s{sXCD}, 3")
        A(f"s_add_u32 s{sTMP}, s{sTMP}, s{sPOS}")
        A(f"s_lshl_b32 s{sTMP}, s{sTMP}, 1")
        A(f"s_add_u32 s{sTMP}, s{sTMP}, s{sWAVE}")
        A(f"v_lshrrev_b32 {v(vT)}, 5, {v(vLANE)}")
        A(f"v_bfe_u32 {v(vT + 1)}, {v(vLANE)}, 4, 1")
        A(f"v_lshl_add_u32 {v(vT)}, {v(vT + 1)}, 1, {v(vT)}")
        A(f"s_lshl_b32 s{sTMP + 1}, s{sTMP}, 3")
        A(f"v_lshl_add_u32 {v(vT)}, {v(vT)}, 1, s{sTMP + 1}")
        A(f"s_add_u32 s{sT1}, s{sT1}, {W_REG + O_SLOT}")
        A(f"v_add_u32 {v(vT + 1)}, s{sT1}, {v(vT)}")
        xh = [f"global_load_ushort {v(K + 20)}, {v(vT + 1)}, {sp(sWS)} sc1",
              f"global_load_ushort {v(K + 21)}, {v(vT + 1)}, {sp(sWS)} offset:1024 sc1"]
        for l in xh:
            A(l)
        A(f"s_lshl_b32 s{sTMP + 1}, s{sT0}, 10")
        A(f"v_add_u32 {v(vT)}, s{sTMP + 1}, {v(vT)}")
        A(f"v_min_u32 {v(vT + 2)}, 55, {v(vLANE)}")
        A(f"v_mul_u32_u24 {v(vT + 3)}, 4682, {v(vT + 2)}")
        A(f"v_lshrrev_b32 {v(vT + 3)}, 16, {v(vT + 3)}")
        A(f"v_mad_u32_u24 {v(vT + 2)}, {v(vT + 3)}, 18, {v(vT + 2)}")
        A(f"v_mul_u32_u24 {v(vT + 2)}, {RS}, {v(vT + 2)}")
        A(f"s_lshl_b32 s{sTMP + 1}, s{sTMP}, 4")
        A(f"s_add_u32 s{sTMP + 1}, s{sTMP + 1}, {W_REG + O_PART}")
        A(f"v_add_u32 {v(vT + 2)}, s{sTMP + 1}, {v(vT + 2)}")
        A(f"v_add_u32 {v(vT + 3)}, {128 * RS}, {v(vT + 2)}")
        A(f"s_ashr_i32 s{sTMP + 2}, s{sWIN}, 31")
        A(f"s_not_b32 s{sTMP + 2}, s{sTMP + 2}")
        A(f"s_or_b32 s{sTMP + 2}, s{sTMP + 2}, 0x80000000")
        A(f"s_xor_b32 s{sTMP + 2}, s{sTMP + 2}, s{sWIN}")
        A(f"s_and_b32 s{sTMP + 2}, s{sTMP + 2}, 0xfffff800")
        A(f"s_or_b32 s{sTMP + 2}, s{sTMP + 2}, 0x400")
        A(f"v_cvt_pk_bf16_f32 {v(K + 22)}, s{sTMP + 2}, s{sTMP + 2}")
        A(f"v_and_b32 {v(K + 22)}, s{sMASK}, {v(K + 22)}")
        A(f"v_mul_f32 {v(K + 22)}, {hex(f2u(-L2E))}, {v(K + 22)}")
        A(f"v_exp_f32 {v(K + 22)}, {v(K + 22)}")
        A(f"v_add_f32 {v(K + 22)}, 1.0, {v(K + 22)}")
        A(f"v_rcp_f32 {v(K + 22)}, {v(K + 22)}")
        A(f"v_cvt_pk_bf16_f32 {v(K + 22)}, {v(K + 22)}, {v(K + 22)}")
        A(f"v_and_b32 {v(K + 22)}, s{sMASK}, {v(K + 22)}")
        A("s_waitcnt vmcnt(0)")
        self.stamp("partdr")
        pl = [f"global_load_dwordx4 {v(vY, 4)}, {v(vT + 2)}, {sp(sWS)} sc1",
              f"global_load_dwordx4 {v(vY + 4, 4)}, {v(vT + 3)}, {sp(sWS)} sc1"]
        for l in pl:
            A(l)
        self.poll("xh", xh, [f"v_max_u32 {v(vT + 6)}, {v(K + 20)}, {v(K + 21)}",
                             f"v_cmp_eq_u32 vcc, 0xffff, {v(vT + 6)}"])
        A(f"v_lshlrev_b32 {v(K + 20)}, 16, {v(K + 20)}")
        A(f"v_lshlrev_b32 {v(K + 21)}, 16, {v(K + 21)}")
        A("s_waitcnt vmcnt(0)")
        self.poll("part", pl, chk8)
        self.stamp("partld")
        A(f"v_cmp_gt_u32 vcc, 56, {v(vLANE)}")
        A(f"v_pk_add_f32 {v(vY, 2)}, {v(vY, 2)}, {v(vY + 4, 2)}")
        A(f"v_pk_add_f32 {v(vY + 2, 2)}, {v(vY + 2, 2)}, {v(vY + 6, 2)}")
        for c in range(4):
            A(f"v_cndmask_b32 {v(vY + c)}, 0, {v(vY + c)}, vcc")
        A(f"v_permlane32_swap_b32 {v(vY)}, {v(vY + 1)}")
        A(f"v_permlane32_swap_b32 {v(vY + 2)}, {v(vY + 3)}")
        A(f"v_add_f32 {v(vY)}, {v(vY)}, {v(vY + 1)}")
        A(f"v_add_f32 {v(vY + 2)}, {v(vY + 2)}, {v(vY + 3)}")
        A(f"v_permlane16_swap_b32 {v(vY)}, {v(vY + 2)}")
        A(f"v_add_f32 {v(vY)}, {v(vY)}, {v(vY + 2)}")
        for sh in (8, 4, 2, 1):
            A(f"v_add_f32_dpp {v(vY)}, {v(vY)}, {v(vY)} row_ror:{sh} row_mask:0xf bank_mask:0xf")
        y = vY
        A(f"v_cvt_pk_bf16_f32 {v(y)}, {v(y)}, {v(y)}")
        A(f"v_and_b32 {v(y)}, s{sMASK}, {v(y)}")
        A(f"v_mul_f32 {v(y)}, {v(y)}, {v(K + 22)}")
        A(f"v_cvt_pk_bf16_f32 {v(y)}, {v(y)}, {v(y)}")
        A(f"v_and_b32 {v(y)}, s{sMASK}, {v(y)}")
        A(f"v_add_f32 {v(y)}, {v(y)}, {v(K + 20)}")
        A(f"v_cvt_pk_bf16_f32 {v(y)}, {v(y)}, {v(y)}")
        A(f"v_and_b32 {v(y)}, s{sMASK}, {v(y)}")
        A(f"v_add_f32 {v(y)}, {v(y)}, {v(K + 21)}")
        A(f"v_cvt_pk_bf16_f32 {v(y)}, {v(y)}, {v(y)}")
        A("s_mov_b32 exec_lo, 0x00010001")
        A("s_mov_b32 exec_hi, 0x00010001")
        A(f"global_store_short {v(vT)}, {v(y)}, {sp(sOUT)}")
        A("L_fin:")
        self.finish("R")

    def chans(self):
        A = self.A
        o = self.o
        vLANE = 1
        vAA, vBA, vEW, vER, vRA = 4, 12, 13, 14, 15
        vKA0, vKA1, vKB, vPW0, vPW1 = 16, 17, 18, 19, 20
        vP = 24
        vT = 28
        vACC = 40
        vA0, vA1, vB0, vB1 = 72, 104, 136, 168
        K = 72
        A("L_chan:")
        A("v_and_b32 v0, 0xff, v0")
        A(f"s_sub_u32 s{sWAVE}, s{sWAVE}, 4")
        A(f"s_lshl_b32 s{sT0}, s{sL}, 9")
        A(f"v_lshl_add_u32 {v(vT)}, v0, 1, s{sT0}")
        A(f"s_lshl_b32 s{sT1}, s{sL}, 2")
        A("s_waitcnt lgkmcnt(0)")
        self.stamp("karg")
        for k, s in enumerate((sLA, sAI, sCR, sCI)):
            A(f"global_load_ushort {v(vP + k)}, {v(vT)}, {sp(s)}{' nt' if o.get('ntx', 1) else ''}")
        A(f"s_load_dword s{sDT}, {sp(sLDT)}, s{sT1}")
        vJ, vGq = vT + 4, vT + 5
        A(f"v_and_b32 {v(vJ)}, 15, {v(vLANE)}")
        A(f"v_lshrrev_b32 {v(vGq)}, 4, {v(vLANE)}")
        A(f"s_lshr_b32 s{sT0}, s{sWAVE}, 1")
        A(f"s_and_b32 s{sT1}, s{sWAVE}, 1")
        A(f"v_and_b32 {v(vT)}, 7, {v(vLANE)}")
        A(f"v_lshlrev_b32 {v(vRA)}, 4, {v(vT)}")
        A(f"v_add_u32 {v(vRA)}, {L_RED1}, {v(vRA)}")
        A(f"s_mul_i32 s{sTMP}, s{sT0}, {PC}")
        A(f"s_lshl_b32 s{sTMP + 1}, s{sT1}, 7")
        A(f"s_add_u32 s{sTMP}, s{sTMP}, s{sTMP + 1}")
        A(f"s_add_u32 s{sTMP}, s{sTMP}, {L_P + 4 * 26}")
        A(f"v_lshlrev_b32 {v(vT)}, 3, {v(vGq)}")
        A(f"v_sub_u32 {v(vT)}, {v(vJ)}, {v(vT)}")
        A(f"v_lshl_add_u32 {v(vAA)}, {v(vT)}, 2, s{sTMP}")
        for m in range(1, 8):
            A(f"v_add_u32 {v(vAA + m)}, {1024 * m}, {v(vAA)}")
        A(f"s_mul_i32 s{sTMP}, s{sT0}, {UC}")
        A(f"s_lshl_b32 s{sTMP + 1}, s{sT1}, 6")
        A(f"s_sub_u32 s{sTMP}, s{sTMP}, s{sTMP + 1}")
        A(f"s_add_u32 s{sTMP}, s{sTMP}, {L_U + 64}")
        A(f"v_lshl_add_u32 {v(vT)}, {v(vJ)}, 1, {v(vGq)}")
        A(f"v_lshl_add_u32 {v(vBA)}, {v(vT)}, 4, s{sTMP}")
        A(f"v_lshl_add_u32 {v(vT)}, {v(vJ)}, 2, {v(vGq)}")
        A(f"v_lshrrev_b32 {v(vT + 1)}, 3, {v(vT)}")
        A(f"v_add_u32 {v(vT)}, {v(vT)}, {v(vT + 1)}")
        A(f"s_mul_i32 s{sTMP}, s{sWAVE}, {8 * TBS}")
        A(f"v_lshl_add_u32 {v(vEW)}, {v(vT)}, 4, s{sTMP}")
        A(f"v_lshrrev_b32 {v(vT + 1)}, 3, {v(vLANE)}")
        A(f"v_add_u32 {v(vT)}, {v(vLANE)}, {v(vT + 1)}")
        A(f"s_mul_i32 s{sTMP}, s{sWAVE}, {2 * TBS}")
        A(f"v_lshl_add_u32 {v(vER)}, {v(vT)}, 4, s{sTMP}")
        KS = o.get("ks", 5)
        for k in range(4):
            A(f"v_mov_b32 {v(vACC + k)}, -1")
        A(f"s_mul_i32 s{sTMP}, s{sL}, {RS}")
        A(f"s_add_u32 s{sTMP}, s{sTMP}, {W_REG + 4096}")
        A(f"v_lshl_add_u32 {v(vACC + 4)}, v0, 4, s{sTMP}")
        A(f"v_add_u32 {v(vACC + 5)}, 8192, {v(vACC + 4)}")
        A(f"v_add_u32 {v(vACC + 6)}, 12288, {v(vACC + 4)}")
        A(f"s_lshl_b32 s{sTMP}, s{sL}, {KS}")
        A(f"s_add_u32 s{sTMP}, s{sTMP}, {W_KEY}")
        A(f"v_mov_b32 {v(22)}, s{sTMP}")
        ones = v(vACC, 4)
        A(f"s_cmp_eq_u32 s{sWAVE}, 0")
        A("s_cselect_b64 exec, 1, 0")
        A(f"global_store_dword {v(22)}, {v(vACC)}, {sp(sWS)} sc1")
        A("s_mov_b64 exec, -1")
        A(f"global_store_dwordx4 {v(vACC + 4)}, {ones}, {sp(sWS)} offset:-4096 sc1")
        A(f"global_store_dwordx4 {v(vACC + 4)}, {ones}, {sp(sWS)} sc1")
        A(f"global_store_dwordx4 {v(vACC + 5)}, {ones}, {sp(sWS)} offset:-4096 sc1")
        A(f"global_store_dwordx4 {v(vACC + 5)}, {ones}, {sp(sWS)} sc1")
        A(f"global_store_dwordx4 {v(vACC + 6)}, {ones}, {sp(sWS)} sc1")
        vg, vr = vT, vT + 1
        A(f"v_lshrrev_b32 {v(vg)}, 2, {v(vJ)}")
        A(f"v_and_b32 {v(vr)}, 3, {v(vJ)}")
        A(f"s_cmp_eq_u32 s{sT1}, 0")
        A("s_cbranch_scc0 L_rows_hi")
        A(f"v_mov_b32 {v(vKA0)}, {v(vJ)}")
        A(f"v_lshl_add_u32 {v(vKA1)}, {v(vg)}, 1, {v(vr)}")
        A(f"v_add_u32 {v(vKA1)}, 16, {v(vKA1)}")
        A(f"v_add_u32 {v(vT + 2)}, -4, {v(vJ)}")
        A(f"v_and_b32 {v(vT + 2)}, 15, {v(vT + 2)}")
        A(f"v_cmp_eq_u32 vcc, 3, {v(vr)}")
        A(f"v_cndmask_b32 {v(vKA1)}, {v(vKA1)}, {v(vT + 2)}, vcc")
        A(f"v_lshl_add_u32 {v(vPW0)}, {v(vJ)}, 2, {v(vGq)}")
        A(f"v_lshlrev_b32 {v(vPW0)}, 4, {v(vPW0)}")
        A(f"v_add_u32 {v(vPW1)}, 1024, {v(vPW0)}")
        A("s_branch L_rows_done")
        A("L_rows_hi:")
        A(f"v_lshrrev_b32 {v(vT + 2)}, 1, {v(vg)}")
        A(f"v_lshl_add_u32 {v(vKA0)}, {v(vg)}, 1, {v(vr)}")
        A(f"v_add3_u32 {v(vKA0)}, {v(vKA0)}, {v(vT + 2)}, 25")
        A(f"v_sub_u32 {v(vKA1)}, {v(vJ)}, {v(vg)}")
        A(f"v_add_u32 {v(vKA1)}, 35, {v(vKA1)}")
        A(f"v_lshrrev_b32 {v(vT + 2)}, 1, {v(vGq)}")
        A(f"v_lshl_add_u32 {v(vPW0)}, {v(vT + 2)}, 4, {v(vJ)}")
        A(f"v_and_b32 {v(vT + 2)}, 1, {v(vGq)}")
        A(f"v_lshl_add_u32 {v(vPW0)}, {v(vPW0)}, 1, {v(vT + 2)}")
        A(f"v_lshlrev_b32 {v(vPW0)}, 5, {v(vPW0)}")
        A(f"v_add_u32 {v(vPW0)}, 2048, {v(vPW0)}")
        A(f"v_lshlrev_b32 {v(vPW1)}, 6, {v(vLANE)}")
        A(f"v_add_u32 {v(vPW1)}, 4096, {v(vPW1)}")
        A("L_rows_done:")
        A(f"s_mul_i32 s{sTMP}, s{sT0}, {PC}")
        A(f"s_add_u32 s{sTMP}, s{sTMP}, {L_P + 64}")
        A(f"v_add_u32 {v(vPW0)}, s{sTMP}, {v(vPW0)}")
        A(f"v_add_u32 {v(vPW1)}, s{sTMP}, {v(vPW1)}")
        A(f"s_mul_i32 s{sTMP}, s{sT0}, {TABC}")
        A(f"v_lshl_add_u32 {v(vT + 2)}, {v(vGq)}, 4, s{sTMP}")
        A(f"s_movk_i32 s{sTMP + 1}, {ROWB}")
        A(f"v_mad_u32_u24 {v(vKA0)}, {v(vKA0)}, s{sTMP + 1}, {v(vT + 2)}")
        A(f"v_mad_u32_u24 {v(vKA1)}, {v(vKA1)}, s{sTMP + 1}, {v(vT + 2)}")
        A(f"v_mad_u32_u24 {v(vKB)}, {v(vJ)}, s{sTMP + 1}, {v(vT + 2)}")
        A(f"s_lshl_b32 s{sTMP + 1}, s{sT1}, 8")
        A(f"s_add_u32 m0, s{sTMP}, s{sTMP + 1}")
        A(f"s_mul_i32 s{sTMP}, s{sXCD}, 448")
        A(f"s_and_b32 s{sTMP}, s{sTMP}, 0xffffff80")
        A(f"s_mul_i32 s{sTMP + 1}, s{sPOS}, {16 * 3584}")
        A(f"s_add_u32 s{sTMP}, s{sTMP}, s{sTMP + 1}")
        A(f"v_lshrrev_b32 {v(vT + 2)}, 2, {v(vLANE)}")
        A(f"v_mul_u32_u24 {v(vT + 2)}, 3584, {v(vT + 2)}")
        A(f"v_and_b32 {v(vT + 3)}, 3, {v(vLANE)}")
        A(f"v_lshl_add_u32 {v(vT + 2)}, {v(vT + 3)}, 7, {v(vT + 2)}")
        A(f"v_add_u32 {v(vT + 2)}, s{sTMP}, {v(vT + 2)}")
        A(f"s_mul_i32 s{sTMP}, s{sL}, 7168")
        A(f"s_mul_i32 s{sTMP + 1}, s{sT1}, 3584")
        A(f"s_add_u32 s{sTMP}, s{sTMP}, s{sTMP + 1}")
        A(f"v_min_u32 {v(vT + 3)}, 27, {v(vLANE)}")
        A(f"v_lshl_add_u32 {v(vT + 3)}, {v(vT + 3)}, 7, s{sTMP}")
        A(f"s_cmp_eq_u32 s{sT1}, 0")
        A(f"s_cselect_b64 {sp(sWSEL)}, {sp(sWG)}, {sp(sWU)}")
        A(f"s_cmp_eq_u32 s{sT0}, 0")
        A(f"s_cselect_b64 {sp(sWSEL)}, {sp(sWSEL)}, {sp(sWD)}")
        A("s_cselect_b64 vcc, -1, 0")
        A(f"v_cndmask_b32 {v(21)}, {v(vT + 3)}, {v(vT + 2)}, vcc")
        wpf = f"global_load_dword v3, v21, {sp(sWSEL)}{' nt' if o.get('ntw', 1) else ''}"
        if o.get("wpf", 1) == 2:
            A(wpf)

        L2E = 1.4426950408889634
        l2e_hi = struct.unpack("<f", struct.pack("<f", L2E))[0]
        l2e_lo = L2E - l2e_hi
        a, b = K, K + 2
        A(f"s_mov_b32 s{sE}, {hex(f2u(l2e_hi))}")
        A(f"s_mov_b32 s{sE + 1}, {hex(f2u(l2e_lo))}")
        A(f"s_waitcnt vmcnt({6 if o.get('wpf', 1) == 2 else 5}) lgkmcnt(0)")
        self.stamp("par")
        A(f"s_lshl_b32 s{sTMP}, s{sDT}, 16")
        A(f"s_and_b32 s{sTMP + 1}, s{sDT}, s{sMASK}")
        A(f"s_cmp_lt_u32 s{sWAVE}, 2")
        A(f"s_cselect_b32 s{sDT}, s{sTMP}, s{sTMP + 1}")
        A(f"v_lshlrev_b32 {v(a)}, 16, {v(vP)}")
        A(f"v_mov_b32 {v(a + 1)}, s{sDT}")
        A(f"v_pk_mul_f32 {v(b, 2)}, {v(a, 2)}, {sp(sE)} op_sel_hi:[1,0]")
        A(f"v_pk_fma_f32 {v(b + 2, 2)}, {v(a, 2)}, {sp(sE)}, {v(b, 2)} op_sel_hi:[1,0,1] neg_lo:[0,0,1] neg_hi:[0,0,1]")
        A(f"v_exp_f32 {v(b)}, {v(b)}")
        A(f"v_exp_f32 {v(b + 1)}, {v(b + 1)}")
        A(f"v_pk_fma_f32 {v(b + 2, 2)}, {v(a, 2)}, {sp(sE)}, {v(b + 2, 2)} op_sel:[0,1,0] op_sel_hi:[1,1,1]")
        A(f"v_mul_f32 {v(b + 2)}, {hex(f2u(0.6931471805599453))}, {v(b + 2)}")
        A(f"v_mul_f32 {v(b + 3)}, {hex(f2u(0.6931471805599453))}, {v(b + 3)}")
        A(f"v_pk_fma_f32 {v(b, 2)}, {v(b, 2)}, {v(b + 2, 2)}, {v(b, 2)}")
        A(f"v_cvt_pk_bf16_f32 {v(a)}, {v(b)}, {v(b + 1)}")
        vdt, va2, vph = K + 6, K + 7, K + 8
        A(f"v_and_b32 {v(vdt)}, s{sMASK}, {v(a)}")
        A(f"v_lshlrev_b32 {v(va2)}, 16, {v(a)}")
        A(f"v_lshlrev_b32 {v(vph)}, 16, {v(vP + 1)}")
        A(f"v_mul_f32 {v(va2)}, {v(va2)}, {v(vdt)}")
        A(f"v_mul_f32 {v(vph)}, {v(vph)}, {v(vdt)}")
        A(f"v_mul_f32 {v(va2)}, {hex(f2u(-l2e_hi))}, {v(va2)}")
        A(f"v_mul_f32 {v(vph)}, 0.15915494, {v(vph)}")
        Wp = {p: K + 10 + 2 * p for p in range(1, 17)}
        Zp = {p: K + 42 + 2 * p for p in range(1, 8)}
        G = [K + 58, K + 60]
        TT = [K + 62, K + 64, K + 66, K + 68]
        RR = [K + 70, K + 72, K + 74, K + 76]
        CV = K + 80
        A(f"v_add_f32 {v(vdt)}, {v(vdt)}, {v(vdt)}")
        A(f"v_lshlrev_b32 {v(G[0])}, 16, {v(vP + 2)}")
        A(f"v_lshlrev_b32 {v(G[0] + 1)}, 16, {v(vP + 3)}")
        A(f"v_mul_f32 {v(G[0])}, {v(G[0])}, {v(vdt)}")
        A(f"v_mul_f32 {v(G[0] + 1)}, {v(G[0] + 1)}, {v(vdt)}")
        for n, (dst, sc) in enumerate(((Wp[1], 1.0), (Wp[16], 16.0), (Zp[1], 256.0))):
            t = TT[n]
            if sc == 1.0:
                A(f"v_exp_f32 {v(t)}, {v(va2)}")
                A(f"v_fract_f32 {v(t + 1)}, {v(vph)}")
            else:
                A(f"v_mul_f32 {v(t)}, {hex(f2u(sc))}, {v(va2)}")
                A(f"v_mul_f32 {v(t + 1)}, {hex(f2u(sc))}, {v(vph)}")
                A(f"v_exp_f32 {v(t)}, {v(t)}")
                A(f"v_fract_f32 {v(t + 1)}, {v(t + 1)}")
            A(f"v_cos_f32 {v(dst)}, {v(t + 1)}")
            A(f"v_sin_f32 {v(dst + 1)}, {v(t + 1)}")
        for n, dst in enumerate((Wp[1], Wp[16], Zp[1])):
            A(f"v_pk_mul_f32 {v(dst, 2)}, {v(dst, 2)}, {v(TT[n], 2)} op_sel_hi:[1,0]")
        jobs = [(1, Wp[1], None, None, 0), (16, Zp[1], None, None, 0), (47, G[0], None, None, 1)]
        wj = []
        for p in range(2, 16):
            hb = 1 << (p.bit_length() - 1)
            x, y = (p // 2, p // 2) if hb == p else (hb, p - hb)
            wj.append((p, Wp[p], Wp[x], Wp[y], 0))
        gj = [(47 + j, G[j & 1], G[(j - 1) & 1], Wp[16], 1) for j in range(1, 16)]
        zrow = {2: 25, 3: 30, 4: 35, 5: 38, 6: 41, 7: 44}
        zj = []
        for p in range(2, 8):
            hb = 1 << (p.bit_length() - 1)
            x, y = (p // 2, p // 2) if hb == p else (hb, p - hb)
            zj.append((zrow[p], Zp[p], Zp[x], Zp[y], 0))
        tj = [(16 + k, None, Zp[1], Wp[2 * k], 0) for k in range(1, 9)]
        for z in (2, 3):
            tj += [(zrow[z] + k, None, Zp[z], Wp[4 * k], 0) for k in range(1, 5)]
        for z in (4, 5, 6, 7):
            tj += [(zrow[z] + k, None, Zp[z], Wp[8 * k], 0) for k in range(1, 3)]
        first = []
        for i in range(max(len(wj), len(gj), len(zj))):
            for q in (wj, gj, zj):
                if i < len(q):
                    first.append(q[i])
        jobs += first + tj
        A(f"v_mov_b32 {v(CV + 15)}, 0x3f80")
        pend = [(0, CV + 15)]
        slot = 0
        nb = 0
        b1_at = o.get("b1_at", 0)
        batch = o.get("batch", 6)

        def do_b1():
            self.stamp("setup")
            A(f"s_waitcnt vmcnt({1 if o.get('wpf', 1) == 2 else 0})")
            self.stamp("idr")
            A("s_barrier")
            self.stamp("b1")
            if o.get("wpf", 1) == 1:
                A(wpf)
        if b1_at == 0:
            do_b1()
        for n, (row, dst, x, y, conj) in enumerate(jobs):
            if x is not None:
                if dst is None:
                    dst = RR[n & 3]
                for ins in self.cmul(dst, x, y, TT[n & 3]):
                    A(ins)
            A(f"v_cvt_pk_bf16_f32 {v(CV + slot)}, {v(dst)}, {'-' if conj else ''}{v(dst + 1)}")
            pend.append((row, CV + slot))
            slot = (slot + 1) % 15
            if len(pend) >= batch or n == len(jobs) - 1:
                for row_, reg in pend:
                    A(f"ds_write_addtid_b32 {v(reg)} offset:{row_ * ROWB}")
                pend = []
                nb += 1
                if nb == b1_at:
                    do_b1()
        A("s_waitcnt lgkmcnt(0)")
        self.stamp("kgen1")
        A("s_barrier")
        if o.get("wpf", 1) == 3:
            A(wpf)
        fB, fA0, fA1 = K, K + 32, K + 64
        for s in range(4):
            A(f"ds_read_b128 {v(fB + 4 * s, 4)}, {v(vKB)} offset:{47 * ROWB + 64 * s}")
            A(f"ds_read_b128 {v(fA0 + 4 * s, 4)}, {v(vKA0)} offset:{64 * s}")
            A(f"ds_read_b128 {v(fA1 + 4 * s, 4)}, {v(vKA1)} offset:{64 * s}")
        D0, D1 = vACC, vACC + 4
        for s in range(8):
            s2 = s + 4
            A(f"s_waitcnt lgkmcnt({9 if s2 < 8 else 3 * (7 - s)})")
            c0 = "0" if s == 0 else v(D0, 4)
            c1 = "0" if s == 0 else v(D1, 4)
            A(f"v_mfma_f32_16x16x32_bf16 {v(D0, 4)}, {v(fA0 + 4 * s, 4)}, {v(fB + 4 * s, 4)}, {c0}")
            if s2 < 8:
                A(f"ds_read_b128 {v(fB + 4 * s2, 4)}, {v(vKB)} offset:{47 * ROWB + 64 * s2}")
                A(f"ds_read_b128 {v(fA0 + 4 * s2, 4)}, {v(vKA0)} offset:{64 * s2}")
            A(f"v_mfma_f32_16x16x32_bf16 {v(D1, 4)}, {v(fA1 + 4 * s, 4)}, {v(fB + 4 * s, 4)}, {c1}")
            if s2 < 8:
                A(f"ds_read_b128 {v(fA1 + 4 * s2, 4)}, {v(vKA1)} offset:{64 * s2}")
        E = K + 96
        A(f"s_bitcmp1_b32 s{sWAVE}, 0")
        A(f"v_cmp_eq_u32 vcc, 0, {v(vLANE)}")
        A("s_nop 5")
        A("s_cbranch_scc0 L_exp_lo")
        seq2 = ["aa", "aa", "aa", "ba", "bb", "bb", "cb", "cc"]
        seq3 = ["aa", "aa", "aa", "aa", "aa", "ba", "bb", "bb", "bb", "bb", "cb", "cc", "cc", "cc"]
        ix = {"a": 0, "b": 1, "c": 2}
        for k, s in enumerate(seq3):
            A(f"v_cvt_pk_bf16_f32 {v(E + 8 + k)}, {v(D1 + ix[s[0]])}, {v(D1 + ix[s[1]])}")
        for k, w in enumerate((0, 4, 6, 10)):
            A(f"ds_write_b128 {v(vPW1)}, {v(E + 8 + w, 4)} offset:{16 * k}")
        for k, s in enumerate(seq2):
            A(f"v_cvt_pk_bf16_f32 {v(E + k)}, {v(D0 + ix[s[0]])}, {v(D0 + ix[s[1]])}")
        A(f"ds_write_b128 {v(vPW0)}, {v(E, 4)}")
        A(f"ds_write_b128 {v(vPW0)}, {v(E + 4, 4)} offset:16")
        A("L_exp_done:")
        T = self.tail
        T("L_exp_lo:")
        T(f"v_mov_b32_dpp {v(D1 + 3)}, {v(D1 + 3)} row_ror:1 row_mask:0x1 bank_mask:0xf")
        T(f"v_cvt_pk_bf16_f32 {v(E + 1)}, {v(D0 + 1)}, {v(D0)}")
        T(f"v_cvt_pk_bf16_f32 {v(E + 2)}, {v(D0 + 2)}, {v(D0 + 1)}")
        T(f"v_cvt_pk_bf16_f32 {v(E + 3)}, {v(D0 + 3)}, {v(D0 + 2)}")
        T(f"v_cndmask_b32 {v(E + 8)}, {v(D1 + 3)}, 0, vcc")
        T(f"v_cndmask_b32 {v(E + 9)}, {v(D1)}, {v(D1 + 3)}, vcc")
        T(f"v_cvt_pk_bf16_f32 {v(E)}, {v(D0)}, {v(E + 8)}")
        T(f"v_cvt_pk_bf16_f32 {v(E + 4)}, {v(D1)}, {v(E + 9)}")
        T(f"v_cvt_pk_bf16_f32 {v(E + 5)}, {v(D1)}, {v(D1)}")
        T(f"v_cvt_pk_bf16_f32 {v(E + 6)}, {v(D1 + 1)}, {v(D1)}")
        T(f"v_cvt_pk_bf16_f32 {v(E + 7)}, {v(D1 + 2)}, {v(D1 + 1)}")
        T(f"ds_write_b128 {v(vPW0)}, {v(E, 4)}")
        T(f"ds_write_b128 {v(vPW1)}, {v(E + 4, 4)}")
        T("s_branch L_exp_done")
        A("s_waitcnt lgkmcnt(0)")
        self.stamp("kgen2")
        A("s_barrier")
        if o.get("wpf", 1) == 4:
            A(wpf)

        def rdA(buf, rho, m):
            return [f"ds_read2_b32 {v(buf + 4 * m, 2)}, {v(vAA + m)} offset0:{64 * rho + 6} offset1:{64 * rho + 4}",
                    f"ds_read2_b32 {v(buf + 4 * m + 2, 2)}, {v(vAA + m)} offset0:{64 * rho + 2} offset1:{64 * rho}"]

        def rdB(buf, rho, n):
            return [f"ds_read_b128 {v(buf + 4 * n, 4)}, {v(vBA)} offset:{128 * (3 - rho) + 512 * (7 - n)}"]

        for m in range(8):
            for l in rdA(vA0, 0, m):
                A(l)
        A(f"s_mul_i32 s{sTMP}, s{sL}, {RS}")
        A(f"s_lshl_b32 s{sTMP + 1}, s{sWAVE}, 11")
        A(f"s_add_u32 s{sTMP}, s{sTMP}, s{sTMP + 1}")
        A(f"s_add_u32 s{sTMP}, s{sTMP}, {W_REG + O_X2}")
        A(f"v_lshl_add_u32 {v(vT)}, {v(vLANE)}, 4, s{sTMP}")
        A(f"v_lshlrev_b32 {v(vT + 1)}, {KS}, v0")
        A(f"v_add_u32 {v(vT + 1)}, {W_KEY}, {v(vT + 1)}")
        A(f"s_lshl_b32 s{sTMP}, s{sWAVE}, 2")
        A(f"s_add_u32 s{sTMP}, s{sTMP}, {L_REDK}")
        A(f"v_mov_b32 {v(vT + 3)}, s{sTMP}")
        A("s_waitcnt lgkmcnt(0)")
        self.stamp("apre")
        A("s_barrier")
        self.stamp("b3")
        if o.get("wpf", 1) == 5:
            A(wpf)
        if o.get("prio", 1):
            A("s_setprio 2")

        bufA, bufB = [vA0, vA1], [vB0, vB1]
        for n in range(7, -1, -1):
            for l in rdB(vB0, 0, n):
                A(l)
        started = set()
        for rho in range(4):
            a_, b_ = bufA[rho & 1], bufB[rho & 1]
            order = [(n - 7 + tb, tb, n) for n in range(7, -1, -1) for tb in range(7 - n, 8)]
            if rho == 3:
                order = [(n - 7 + tb, tb, n) for tb in range(8) for n in range(7 - tb, 8)]
            fill = []
            if rho + 1 < 4:
                nb_, na_ = bufB[(rho + 1) & 1], bufA[(rho + 1) & 1]
                for m in range(8):
                    fill += rdB(nb_, rho + 1, 7 - m)
                    fill += rdA(na_, rho + 1, m)
            issued = 0
            seen = set()
            done_at = {}
            for i, (m, tb, n) in enumerate(order):
                done_at[tb] = i
            for i, (m, tb, n) in enumerate(order):
                if rho == 0 and n not in seen:
                    A(f"s_waitcnt lgkmcnt({min(15, n + issued)})")
                    seen.add(n)
                elif i == 0:
                    A("s_waitcnt lgkmcnt(0)")
                acc = v(vACC + 4 * tb, 4)
                c = acc if tb in started else "0"
                started.add(tb)
                A(f"v_mfma_f32_16x16x32_bf16 {acc}, {v(a_ + 4 * m, 4)}, {v(b_ + 4 * n, 4)}, {c}")
                if i >= 1 and fill:
                    A(fill.pop(0))
                    issued += 1
                if rho == 3:
                    for t in range(7):
                        if done_at[t] + 8 == i or (i == len(order) - 1 and done_at[t] + 8 > i):
                            A(f"ds_write_b128 {v(vEW)}, {v(vACC + 4 * t, 4)} offset:{t * TBS}")
            assert not fill
        A(f"ds_write_b128 {v(vEW)}, {v(vACC + 28, 4)} offset:{7 * TBS}")
        self.stamp("conv")
        A("s_waitcnt lgkmcnt(0)")
        A("s_barrier")
        for i in range(2):
            for s in range(4):
                A(f"ds_read_b128 {v(K + 16 * i + 4 * s, 4)}, {v(vER)} offset:{s * 8 * TBS + i * TBS}")
        for i in range(2):
            A(f"s_waitcnt lgkmcnt({4 * (1 - i)})")
            b0 = K + 16 * i
            for c in range(2):
                for h in range(2):
                    A(f"v_pk_add_f32 {v(b0 + 8 * c + 2 * h, 2)}, {v(b0 + 8 * c + 2 * h, 2)}, {v(b0 + 8 * c + 4 + 2 * h, 2)}")
            for c in range(2):
                for h in range(2):
                    A(f"v_cvt_pk_bf16_f32 {v(K + 32 + 4 * i + 2 * c + h)}, {v(b0 + 8 * c + 2 * h)}, {v(b0 + 8 * c + 2 * h + 1)}")
            A(f"global_store_dwordx4 {v(vT)}, {v(K + 32 + 4 * i, 4)}, {sp(sWS)} offset:{1024 * i} sc1")
        self.stamp("x2st")
        A("s_waitcnt vmcnt(0)")
        self.stamp("x2dr")
        A("s_barrier")
        A(f"s_cmp_eq_u32 s{sWAVE}, 0")
        A("s_cbranch_scc0 L_cfin")
        for q in range(1, 4):
            A(f"v_add_u32 {v(vT + 8 + q)}, {(64 * q) << KS}, {v(vT + 1)}")
        A("s_barrier")
        self.key_calc(K, vRA, vLANE)
        A("s_mov_b64 exec, 1")
        A(f"global_store_dword {v(22)}, {v(K + 8)}, {sp(sWS)} sc1")
        A("s_mov_b64 exec, -1")
        self.stamp("key")
        A("s_waitcnt vmcnt(0)")
        self.stamp("keydr")
        k2 = vT + 4
        kl = [f"global_load_dword {v(K + q)}, {v(vT + 8 + q) if q else v(vT + 1)}, {sp(sWS)} sc1" for q in range(4)]
        for l in kl:
            A(l)
        A("s_waitcnt vmcnt(0)")
        self.poll("key", kl, [f"v_max3_u32 {v(k2)}, {v(K)}, {v(K + 1)}, {v(K + 2)}",
                              f"v_max_u32 {v(k2)}, {v(k2)}, {v(K + 3)}",
                              f"v_cmp_eq_u32 vcc, -1, {v(k2)}"])
        self.stamp("keyld")
        A(f"v_max_u32_dpp {v(k2)}, {v(k2)}, {v(k2)} quad_perm:[1,0,3,2] row_mask:0xf bank_mask:0xf")
        A(f"v_max_u32_dpp {v(k2)}, {v(k2)}, {v(k2)} quad_perm:[2,3,0,1] row_mask:0xf bank_mask:0xf")
        A(f"v_max_u32_dpp {v(k2)}, {v(k2)}, {v(k2)} row_half_mirror row_mask:0xf bank_mask:0xf")
        A(f"v_max_u32_dpp {v(k2)}, {v(k2)}, {v(k2)} row_mirror row_mask:0xf bank_mask:0xf")
        A(f"v_max_u32_dpp {v(k2)}, {v(k2)}, {v(k2)} row_bcast:15 row_mask:0xa bank_mask:0xf")
        A(f"v_max_u32_dpp {v(k2)}, {v(k2)}, {v(k2)} row_bcast:31 row_mask:0xc bank_mask:0xf")
        A("s_mov_b32 exec_lo, 0")
        A("s_brev_b32 exec_hi, 1")
        A(f"ds_write_b32 {v(vT + 3)}, {v(k2)}")
        A("s_waitcnt lgkmcnt(0)")
        A("s_barrier")
        A("L_cfin:")
        self.finish("C")

    def text(self):
        lines = self.build()
        src = open("sequential_preLN__ssm_conv_s4d__moe_arch_mod__prompt.s.ref").read()
        head = [l for l in src.split("\n") if l.startswith(";") and "@launch" not in l]
        head = head[:head.index("; Override launch geometry by editing the next line (default: block=256,")]
        out = head + [f"; @launch grid=(256,1,1) block=(512,1,1) lds={LDS_BYTES}",
                      '.amdgcn_target "amdgcn-amd-amdhsa--gfx950"', ".text", f".globl {KNAME}", ".p2align 8",
                      f".type {KNAME},@function"]
        out += [l if l.endswith(":") else "    " + l for l in lines]
        out += [".section .rodata,\"a\"", ".p2align 6", f".amdhsa_kernel {KNAME}",
                "  .amdhsa_next_free_vgpr 224", "  .amdhsa_next_free_sgpr 102", "  .amdhsa_accum_offset 224",
                "  .amdhsa_group_segment_fixed_size 0", "  .amdhsa_kernarg_size 120", "  .amdhsa_user_sgpr_count 2",
                "  .amdhsa_user_sgpr_kernarg_segment_ptr 1", "  .amdhsa_system_sgpr_workgroup_id_x 1",
                ".end_amdhsa_kernel", ""]
        return "\n".join(out)


if __name__ == "__main__":
    out = sys.argv[1]
    opts = {}
    stamp = False
    for a in sys.argv[2:]:
        if a == "stamp":
            stamp = True
        else:
            k, val = a.split("=")
            opts[k] = int(val)
    g = Gen(stamp, opts)
    open(out, "w").write(g.text())
    if stamp:
        open(out + ".names", "w").write(" ".join(g.allnames["R"]) + "\n" + " ".join(g.allnames["C"]))
    print(g.info, "lds", LDS_BYTES)
```

```python
import sys
import struct
from asmlib import Asm, align8

KNAME = "sequential_preLN__ssm_conv_s4d__moe_arch_mod__prompt_kernel"


def f2u(x):
    return struct.unpack("<I", struct.pack("<f", x))[0]


W_FLAG = 0x1000 + (int(__import__('os').environ.get('WOFF', '0')) << 20)
W_KEY = 0x9000 + (int(__import__('os').environ.get('WOFF', '0')) << 20)
W_FLAG2 = 0x11000 + (int(__import__('os').environ.get('WOFF', '0')) << 20)
import os
WOFF = int(os.environ.get('WOFF', '0')) << 20
W_REG = 0x38000 + WOFF
RS = 20608
O_X1, O_X2, O_SLOT, O_PART = 0, 8192, 16384, 18432
W_STAMP = 0x800000
ROWB = 544
TABC = 63 * ROWB
L_TAB = 0
L_P = 68608
PC = 8256
L_U = L_P + 2 * PC
UC = 4608
L_RED1 = (L_U + 2 * UC + 255) // 256 * 256
L_RED2 = L_RED1 + 256
L_SUMW = L_RED2 + 384
L_REDK = L_SUMW + 16
L_REDF = L_REDK + 16
LDS_BYTES = L_REDF + 256
L_EPI = 0
TBS = 1152
sX, sLA, sAI, sCR, sCI, sLDT, sD = 4, 6, 8, 10, 12, 14, 16
sWR, sWG, sWU, sWD, sOUT, sDBG, sWS = 20, 22, 24, 26, 28, 30, 32
sL, sPOS, sXCD, sWAVE, sG, sDT, sT0, sT1, sSPIN, sF = 34, 35, 36, 37, 38, 39, 40, 41, 42, 43
sODD = 44
sSELLO, sSELHI, sONES, sMASK = 46, 47, 48, 49
sWSEL = 50
sBEST, sWIN, sRP0, sRP1 = 52, 53, 54, 55
sH = 56
sE = 64
sTMP = 66
sOWN = 71
sSTAMP = 72


def sp(r):
    return f"s[{r}:{r + 1}]"


def v(r, n=1):
    return f"v{r}" if n == 1 else f"v[{r}:{r + n - 1}]"


class Gen:
    def __init__(self, stamp=False, opts=None):
        self.A = Asm()
        self.tail = Asm()
        self.stamp_on = stamp
        self.nstamp = 0
        self.names = []
        self.o = dict(opts or {})

    def stamp(self, name):
        if not self.stamp_on:
            return
        k = self.nstamp
        self.nstamp += 1
        self.names.append(name)
        assert sSTAMP + k < 100
        self.A(f"s_memrealtime s[100:101]")
        self.A("s_waitcnt lgkmcnt(0)")
        self.A(f"s_mov_b32 s{sSTAMP + k}, s100")

    def poll(self, name, loads, check, base_exec="-1"):
        A = self.A
        for c in check:
            A(c)
        A(f"s_cbranch_vccnz L_retry_{name}")
        A(f"L_ok_{name}:")
        T = self.tail
        T(f"L_retry_{name}:")
        T(f"s_mov_b32 s{sSPIN}, 0x40000")
        T(f"L_again_{name}:")
        T(f"s_sub_u32 s{sSPIN}, s{sSPIN}, 1")
        T(f"s_cbranch_scc1 L_ok_{name}")
        T("s_mov_b64 exec, vcc")
        for l in loads:
            T(l)
        T("s_waitcnt vmcnt(0)")
        for c in check:
            T(c)
        T(f"s_mov_b64 exec, {base_exec}")
        T(f"s_cbranch_vccnz L_again_{name}")
        T(f"s_branch L_ok_{name}")

    def cmul(self, d, x, y, t):
        return [f"v_pk_mul_f32 {v(t, 2)}, {v(x, 2)}, {v(y, 2)} op_sel:[0,0] op_sel_hi:[0,1]",
                f"v_pk_fma_f32 {v(d, 2)}, {v(x, 2)}, {v(y, 2)}, {v(t, 2)} op_sel:[1,1,0] op_sel_hi:[1,0,1] neg_lo:[1,0,0]"]

    def reduce8(self, V, t):
        A = self.A
        for i in range(4):
            A(f"v_add_f32_dpp {v(V[i])}, {v(V[i])}, {v(V[i])} row_ror:8 row_mask:0xf bank_mask:0x3")
        for i in range(4):
            A(f"v_add_f32_dpp {v(V[i])}, {v(V[i + 4])}, {v(V[i + 4])} row_ror:8 row_mask:0xf bank_mask:0xc")
        for i in range(2):
            A(f"v_add_f32_dpp {v(V[i])}, {v(V[i])}, {v(V[i])} row_shl:4 row_mask:0xf bank_mask:0x5")
        for i in range(2):
            A(f"v_add_f32_dpp {v(V[i])}, {v(V[i + 2])}, {v(V[i + 2])} row_shr:4 row_mask:0xf bank_mask:0xa")
        A(f"v_permlane32_swap_b32 {v(V[0])}, {v(V[1])}")
        A(f"v_add_f32 {v(V[0])}, {v(V[0])}, {v(V[1])}")
        A(f"v_add_f32_dpp {v(V[0])}, {v(V[0])}, {v(V[0])} quad_perm:[2,3,0,1] row_mask:0xf bank_mask:0xf")
        A(f"v_mov_b32 {v(t)}, {v(V[0])}")
        A(f"v_permlane16_swap_b32 {v(V[0])}, {v(t)}")
        A(f"v_add_f32 {v(V[0])}, {v(V[0])}, {v(t)}")

    def row_stats(self, S, Q, negm, rinv, t):
        A = self.A
        A(f"v_pk_add_f32 {v(S, 2)}, {v(S, 2)}, {v(S + 2, 2)}")
        A(f"v_pk_add_f32 {v(Q, 2)}, {v(Q, 2)}, {v(Q + 2, 2)}")
        A(f"v_add_f32 {v(S)}, {v(S)}, {v(S + 1)}")
        A(f"v_add_f32 {v(Q)}, {v(Q)}, {v(Q + 1)}")
        A(f"v_mul_f32 {v(S)}, {hex(f2u(1 / 512))}, {v(S)}")
        A(f"v_mul_f32 {v(Q)}, {hex(f2u(1 / 512))}, {v(Q)}")
        A(f"v_fma_f32 {v(Q)}, -{v(S)}, {v(S)}, {v(Q)}")
        A(f"v_max_f32 {v(Q)}, 0, {v(Q)}")
        A(f"v_cvt_pk_bf16_f32 {v(t)}, -{v(S)}, {v(Q)}")
        A(f"v_and_b32 {v(Q)}, s{sMASK}, {v(t)}")
        A(f"v_add_f32 {v(Q)}, {hex(f2u(1e-5))}, {v(Q)}")
        A(f"v_cvt_pk_bf16_f32 {v(Q)}, {v(Q)}, {v(Q)}")
        A(f"v_and_b32 {v(Q)}, s{sMASK}, {v(Q)}")
        A(f"v_sqrt_f32 {v(Q)}, {v(Q)}")
        A(f"v_lshlrev_b32 {v(negm)}, 16, {v(t)}")
        A(f"v_cvt_pk_bf16_f32 {v(Q)}, {v(Q)}, {v(Q)}")
        A(f"v_and_b32 {v(Q)}, s{sMASK}, {v(Q)}")
        A(f"v_rcp_f32 {v(rinv)}, {v(Q)}")

    def spread(self, val, dst, t):
        A = self.A
        for r in range(4):
            A(f"v_mov_b32_dpp {v(t + r)}, {v(val)} row_newbcast:{4 + r} row_mask:0xf bank_mask:0xf")
        for r in range(4):
            A(f"v_cndmask_b32_dpp {v(dst + r)}, {v(val)}, {v(t + r)}, vcc row_newbcast:{r} row_mask:0xf bank_mask:0xf")

    def key_calc(self, K, vRA, vLANE):
        A = self.A
        A(f"v_mov_b32 {v(K + 14)}, {L_SUMW}")
        A(f"ds_read_b128 {v(K, 4)}, {v(vRA)} offset:{L_RED2 - L_RED1}")
        A(f"ds_read_b128 {v(K + 4, 4)}, {v(vRA)} offset:{L_RED2 - L_RED1 + 128}")
        A(f"ds_read_b128 {v(K + 8, 4)}, {v(vRA)} offset:{L_RED2 - L_RED1 + 256}")
        A(f"ds_read_b32 {v(K + 15)}, {v(K + 14)}")
        A(f"s_lshl_b32 s{sTMP}, s{sL}, 3")
        A(f"s_sub_u32 s{sTMP}, 2047, s{sTMP}")
        A(f"v_and_b32 {v(K + 14)}, 7, {v(vLANE)}")
        A(f"v_sub_u32 {v(K + 14)}, s{sTMP}, {v(K + 14)}")
        A("s_waitcnt lgkmcnt(2)")
        self.row_stats(K, K + 4, K + 12, K + 13, K + 28)
        A("s_waitcnt lgkmcnt(0)")
        A(f"v_pk_add_f32 {v(K + 8, 2)}, {v(K + 8, 2)}, {v(K + 10, 2)}")
        A(f"v_add_f32 {v(K + 8)}, {v(K + 8)}, {v(K + 9)}")
        A(f"v_fmac_f32 {v(K + 8)}, {v(K + 12)}, {v(K + 15)}")
        A(f"v_mul_f32 {v(K + 8)}, {v(K + 8)}, {v(K + 13)}")
        A(f"v_ashrrev_i32 {v(K + 9)}, 31, {v(K + 8)}")
        A(f"v_or_b32 {v(K + 9)}, 0x80000000, {v(K + 9)}")
        A(f"v_xor_b32 {v(K + 8)}, {v(K + 8)}, {v(K + 9)}")
        A(f"v_and_b32 {v(K + 8)}, 0xfffff800, {v(K + 8)}")
        A(f"v_or_b32 {v(K + 8)}, {v(K + 8)}, {v(K + 14)}")
        A(f"v_min_u32 {v(K + 8)}, -2, {v(K + 8)}")
        A(f"v_max_u32_dpp {v(K + 8)}, {v(K + 8)}, {v(K + 8)} quad_perm:[1,0,3,2] row_mask:0xf bank_mask:0xf")
        A(f"v_max_u32_dpp {v(K + 8)}, {v(K + 8)}, {v(K + 8)} quad_perm:[2,3,0,1] row_mask:0xf bank_mask:0xf")
        A(f"v_max_u32_dpp {v(K + 8)}, {v(K + 8)}, {v(K + 8)} row_half_mirror row_mask:0xf bank_mask:0xf")

    def finish(self, role):
        A = self.A
        o = self.o
        if self.stamp_on:
            self.stamp("end")
            self.allnames[role] = self.names
        if self.stamp_on and "probe" in o:
            k = o["probe"]
            if k < 0:
                A(f"s_mov_b32 s{sTMP}, {-k}")
            elif (k >= 100) == (role == "C"):
                A(f"s_sub_u32 s{sTMP}, s{sSTAMP + k % 100}, s{sSTAMP}")
                A(f"s_min_u32 s{sTMP}, s{sTMP}, 5000")
                A(f"s_mul_i32 s{sTMP}, s{sTMP}, 4")
                A(f"s_add_u32 s{sTMP}, s{sTMP}, 4000")
            else:
                A(f"s_mov_b32 s{sTMP}, 0")
            A(f"L_spin{role}:")
            A("s_memrealtime s[100:101]")
            A("s_waitcnt lgkmcnt(0)")
            A(f"s_sub_u32 s100, s100, s{sSTAMP}")
            A(f"s_cmp_lt_u32 s100, s{sTMP}")
            A(f"s_cbranch_scc1 L_spin{role}")
        elif self.stamp_on:
            A("s_mov_b64 exec, 1")
            A(f"s_lshl_b32 s{sTMP}, s2, 3")
            A(f"s_add_u32 s{sTMP}, s{sTMP}, s{sWAVE}")
            if role == "C":
                A(f"s_add_u32 s{sTMP}, s{sTMP}, 4")
            A(f"s_lshl_b32 s{sTMP}, s{sTMP}, 7")
            A(f"s_add_u32 s{sTMP}, s{sTMP}, {W_STAMP}")
            A(f"v_mov_b32 v1, s{sTMP}")
            for k in range(self.nstamp):
                A(f"v_mov_b32 v2, s{sSTAMP + k}")
                A(f"global_store_dword v1, v2, {sp(sWS)} offset:{4 * k}")
        A("s_endpgm")

    def build(self):
        A = self.A
        self.allnames = {}
        A(f"{KNAME}:")
        A("s_cmp_ge_u32 s2, 256")
        A("s_cbranch_scc1 L_end")
        self.stamp("start")
        if self.o.get("codepf", 1):
            A(f"s_getpc_b64 {sp(sE)}")
            A("L_pc:")
            A("v_lshlrev_b32 v2, 5, v0")
            A(f"v_min_u32 v2, L_codeend-L_pc-4, v2")
            A(f"global_load_dword v3, v2, {sp(sE)}")
        A("s_load_dwordx16 s[4:19], s[0:1], 0")
        A("s_load_dwordx8 s[20:27], s[0:1], 64")
        A("s_load_dwordx4 s[28:31], s[0:1], 96")
        A("s_load_dwordx2 s[32:33], s[0:1], 112")
        A("v_lshrrev_b32 v4, 6, v0")
        A(f"s_and_b32 s{sXCD}, s2, 7")
        A(f"v_readfirstlane_b32 s{sWAVE}, v4")
        A(f"s_lshr_b32 s{sPOS}, s2, 3")
        A(f"s_lshl_b32 s{sL}, s{sXCD}, 5")
        A(f"s_add_u32 s{sL}, s{sL}, s{sPOS}")
        A("v_and_b32 v1, 63, v0")
        A(f"s_mov_b32 s{sMASK}, 0xffff0000")
        A(f"s_cmp_ge_u32 s{sWAVE}, 4")
        A("s_cbranch_scc1 L_chan")
        self.rows()
        self.names = self.names[:1]
        self.nstamp = min(self.nstamp, 1)
        A(".p2align 6")
        self.chans()
        A("L_end:")
        A("s_endpgm")
        for l in self.tail.L:
            A(l)
        A("L_codeend:")
        lines, nops = A.padded()
        lines, nbytes, promoted, missed = align8(lines)
        self.info = dict(nops=nops, bytes=nbytes, promoted=promoted, missed=missed, lines=len(lines))
        return lines

    def rows(self):
        A = self.A
        o = self.o
        vLANE = 1
        vX, vU, vD, vWR = 212, 10, 18, 20
        vREG, vRD, vAUX = 22, 23, 24
        vKEY, vSW, vRA, vFL, vUW = 26, 27, 28, 29, 30
        vT = 32
        vWG, vWD = 40, 72
        vY = 88
        vONE = 96
        K = 100
        L2E = 1.4426950408889634
        A(f"v_lshrrev_b32 {v(vT)}, 1, v0")
        A(f"v_and_b32 {v(vT + 1)}, 1, v0")
        A(f"v_lshlrev_b32 {v(vT + 2)}, 3, {v(vT)}")
        A(f"s_lshl_b32 s{sT0}, s{sL}, 13")
        A(f"v_lshl_add_u32 {v(vRD)}, {v(vT + 1)}, 12, {v(vT + 2)}")
        A(f"v_add_u32 {v(vRD)}, s{sT0}, {v(vRD)}")
        A(f"s_mul_i32 s{sOWN}, s{sL}, {RS}")
        A(f"s_add_u32 s{sOWN}, s{sOWN}, {W_REG}")
        A(f"s_add_u32 s{sT0}, s{sOWN}, 4096")
        A(f"v_lshl_add_u32 {v(vREG)}, v0, 4, s{sT0}")
        A(f"v_lshlrev_b32 {v(vT + 3)}, 4, {v(vLANE)}")
        nt = ' nt' if o.get('ntx', 1) else ''
        A("s_waitcnt lgkmcnt(0)")
        self.stamp("karg")
        for r in range(4):
            A(f"global_load_dwordx2 {v(vX + 2 * r, 2)}, {v(vRD)}, {sp(sX)} offset:{1024 * r}{nt}")
        A(f"s_load_dword s{sG}, {sp(sWS)}, 0")
        A(f"global_load_dwordx2 {v(vD, 2)}, {v(vT + 2)}, {sp(sD)}")
        A(f"global_load_dwordx2 {v(vWR, 2)}, {v(vT + 2)}, {sp(sWR)}")
        A(f"global_load_dwordx4 {v(vONE, 4)}, {v(vT + 3)}, {sp(sWR)}")
        A(f"s_mov_b32 s{sODD}, 0xaaaaaaaa")
        A(f"s_mov_b32 s{sODD + 1}, 0xaaaaaaaa")
        A(f"s_mov_b32 s{sSELLO}, 0x3f80")
        A(f"s_mov_b32 s{sSELHI}, 0x3f800000")
        A(f"s_mov_b32 s{sONES}, 0x3f803f80")
        A(f"s_and_b32 s{sTMP}, s{sL}, 1")
        A(f"s_lshl_b32 s{sTMP}, s{sTMP}, 12")
        A(f"s_lshr_b32 s{sTMP + 1}, s{sL}, 1")
        A(f"s_lshl_b32 s{sTMP + 1}, s{sTMP + 1}, 5")
        A(f"s_add_u32 s{sTMP}, s{sTMP}, s{sTMP + 1}")
        A(f"s_add_u32 s{sTMP}, s{sTMP}, {W_REG + O_X1}")
        A(f"v_mul_u32_u24 {v(vAUX)}, {RS}, {v(vT)}")
        A(f"v_lshl_add_u32 {v(vAUX)}, {v(vT + 1)}, 4, {v(vAUX)}")
        A(f"v_add_u32 {v(vAUX)}, s{sTMP}, {v(vAUX)}")
        A(f"v_add_u32 {v(vAUX + 1)}, {128 * RS}, {v(vAUX)}")
        FS = o.get("fs", 5)
        KS = o.get("ks", 5)
        A(f"v_lshlrev_b32 {v(vFL)}, {FS}, {v(vT)}")
        A(f"v_add_u32 {v(vFL)}, {W_FLAG}, {v(vFL)}")
        A(f"v_add_u32 {v(vFL + 2)}, {128 << FS}, {v(vFL)}")
        A(f"s_lshl_b32 s{sT0}, s{sL}, {FS}")
        A(f"s_add_u32 s{sT0}, s{sT0}, {W_FLAG}")
        A(f"v_mov_b32 {v(vKEY)}, s{sT0}")
        A(f"v_lshlrev_b32 {v(vSW)}, 6, {v(vT + 1)}")
        A(f"v_and_b32 {v(vT + 3)}, 4, {v(vLANE)}")
        A(f"v_lshl_add_u32 {v(vSW)}, {v(vT + 3)}, 3, {v(vSW)}")
        A(f"v_and_b32 {v(vT + 3)}, 8, {v(vLANE)}")
        A(f"v_lshl_add_u32 {v(vSW)}, {v(vT + 3)}, 4, {v(vSW)}")
        A(f"v_lshrrev_b32 {v(vT + 3)}, 5, {v(vLANE)}")
        A(f"v_lshl_add_u32 {v(vSW)}, {v(vT + 3)}, 4, {v(vSW)}")
        A(f"s_lshl_b32 s{sTMP}, s{sWAVE}, 2")
        A(f"s_add_u32 s{sTMP}, s{sTMP}, {L_RED1}")
        A(f"v_add_u32 {v(vSW)}, s{sTMP}, {v(vSW)}")
        A(f"v_and_b32 {v(vT + 3)}, 7, {v(vLANE)}")
        A(f"v_lshlrev_b32 {v(vRA)}, 4, {v(vT + 3)}")
        A(f"v_add_u32 {v(vRA)}, {L_RED1}, {v(vRA)}")
        A(f"v_lshlrev_b32 {v(vUW)}, 3, v0")
        A(f"v_mov_b32 {v(K)}, 0")
        A(f"v_mov_b32 {v(K + 1)}, 0")
        A(f"v_min_u32 {v(vT + 3)}, 472, {v(vUW)}")
        A(f"v_add_u32 {v(vT + 3)}, {L_U}, {v(vT + 3)}")
        A(f"v_min_u32 {v(vT + 4)}, 56, {v(vUW)}")
        A(f"v_add_u32 {v(vT + 4)}, {L_P}, {v(vT + 4)}")
        A(f"ds_write2st64_b64 {v(vT + 3)}, {v(K, 2)}, {v(K, 2)} offset0:0 offset1:9")
        A(f"ds_write_b64 {v(vT + 4)}, {v(K, 2)}")
        A(f"ds_write_b64 {v(vT + 4)}, {v(K, 2)} offset:{PC}")
        A(f"v_add_u32 {v(vUW)}, {L_U + 480}, {v(vUW)}")

        V = [K + i for i in range(8)]
        A("s_waitcnt vmcnt(3)")
        self.stamp("x")
        for r in range(4):
            A(f"v_dot2_f32_bf16 {v(V[r])}, {v(vX + 2 * r)}, s{sONES}, 0")
        for r in range(4):
            A(f"v_dot2_f32_bf16 {v(V[4 + r])}, {v(vX + 2 * r)}, {v(vX + 2 * r)}, 0")
        for r in range(4):
            A(f"v_dot2_f32_bf16 {v(V[r])}, {v(vX + 2 * r + 1)}, s{sONES}, {v(V[r])}")
        for r in range(4):
            A(f"v_dot2_f32_bf16 {v(V[4 + r])}, {v(vX + 2 * r + 1)}, {v(vX + 2 * r + 1)}, {v(V[4 + r])}")
        self.reduce8(V, K + 8)
        A(f"ds_write_b32 {v(vSW)}, {v(V[0])}")
        A("s_waitcnt lgkmcnt(0)")
        A("s_barrier")
        self.stamp("b1")
        A(f"ds_read_b128 {v(K, 4)}, {v(vRA)}")
        A(f"ds_read_b128 {v(K + 4, 4)}, {v(vRA)} offset:128")
        A(f"s_add_u32 s{sG}, s{sG}, 0x9e3779b9")
        A(f"v_mov_b32 {v(K + 8)}, s{sG}")
        A(f"s_cmp_eq_u32 s{sWAVE}, 0")
        A("s_cselect_b64 exec, 1, 0")
        A(f"global_store_dword {v(vKEY)}, {v(K + 8)}, {sp(sWS)} sc1")
        A("s_mov_b64 exec, -1")
        A(f"s_mov_b64 vcc, {sp(sODD)}")
        A("s_waitcnt lgkmcnt(0)")
        vNM, vRI = K + 16, K + 20
        self.row_stats(K, K + 4, K + 10, K + 11, K + 12)
        self.spread(K + 10, vNM, K + 24)
        Dd = K + 32
        for c in range(4):
            for r in range(4):
                A(f"v_dot2_f32_bf16 {v(Dd + 4 * c + r)}, {v(vX + 2 * r + (c >> 1))}, s{sSELHI if c & 1 else sSELLO}, {v(vNM + r)}")
        self.spread(K + 11, vRI, K + 24)
        Pk = K + 48
        for half in range(2):
            ks = range(4 * half, 4 * half + 4)
            for k in ks:
                A(f"v_cvt_pk_bf16_f32 {v(Pk + k)}, {v(Dd + 2 * k)}, {v(Dd + 2 * k + 1)}")
            for k in ks:
                A(f"v_lshlrev_b32 {v(Dd + 2 * k)}, 16, {v(Pk + k)}")
                A(f"v_and_b32 {v(Dd + 2 * k + 1)}, s{sMASK}, {v(Pk + k)}")
            for k in ks:
                A(f"v_pk_mul_f32 {v(Dd + 2 * k, 2)}, {v(Dd + 2 * k, 2)}, {v(vRI + 2 * (k & 1), 2)}")
            for k in ks:
                A(f"v_cvt_pk_bf16_f32 {v(vU + k)}, {v(Dd + 2 * k)}, {v(Dd + 2 * k + 1)}")
            A(f"global_store_dwordx4 {v(vREG)}, {v(vU + 4 * half, 4)}, {sp(sWS)} offset:{-4096 + 4096 * half} sc1")
        self.stamp("x1st")
        fl = [f"global_load_dword {v(vT + 4)}, {v(vFL)}, {sp(sWS)} sc1",
              f"global_load_dword {v(vT + 5)}, {v(vFL + 2)}, {sp(sWS)} sc1"]
        flchk = [f"v_xor_b32 {v(vT + 6)}, s{sG}, {v(vT + 4)}",
                 f"v_xor_b32 {v(vT + 7)}, s{sG}, {v(vT + 5)}",
                 f"v_or_b32 {v(vT + 6)}, {v(vT + 6)}, {v(vT + 7)}",
                 f"v_cmp_ne_u32 vcc, 0, {v(vT + 6)}"]
        flmode = o.get("flmode", 1)
        if flmode == 1:
            A("s_waitcnt vmcnt(0)")
        if flmode < 2:
            for l in fl:
                A(l)
        A("s_barrier")
        if flmode == 2:
            for l in fl:
                A(l)
        A("s_waitcnt vmcnt(0)")
        self.stamp("x1dr")
        self.poll("flag", fl, flchk)
        xl = [f"global_load_dwordx4 {v(vY, 4)}, {v(vAUX)}, {sp(sWS)} sc1",
              f"global_load_dwordx4 {v(vY + 4, 4)}, {v(vAUX + 1)}, {sp(sWS)} sc1"]
        for l in xl:
            A(l)
        self.stamp("flag")
        A(f"s_mul_i32 s{sF}, s{sXCD}, 14")
        A(f"s_add_u32 s{sF}, s{sF}, s{sPOS}")
        A(f"s_bitcmp1_b32 s{sWAVE}, 0")
        A(f"s_cselect_b64 {sp(sWSEL)}, {sp(sWU)}, {sp(sWG)}")
        A(f"s_lshr_b32 s{sTMP + 1}, s{sWAVE}, 1")
        A(f"s_mul_i32 s{sTMP + 1}, s{sTMP + 1}, {256 * 3584}")
        A(f"s_lshl_b32 s{sTMP + 2}, s{sF}, 5")
        A(f"s_add_u32 s{sTMP + 1}, s{sTMP + 1}, s{sTMP + 2}")
        vWA = K + 8
        A(f"v_lshrrev_b32 {v(vWA)}, 1, {v(vLANE)}")
        A(f"v_mul_u32_u24 {v(vWA)}, {8 * 3584}, {v(vWA)}")
        A(f"v_lshl_add_u32 {v(vWA)}, {v(vT + 1)}, 4, {v(vWA)}")
        A(f"v_add_u32 {v(vWA)}, s{sTMP + 1}, {v(vWA)}")
        A(f"v_add_u32 {v(vWA + 2)}, {7 * 3584}, {v(vWA)}")
        A(f"v_add_u32 {v(vWA + 1)}, {4 * 3584}, {v(vWA)}")
        A(f"v_add_u32 {v(vWA)}, 3584, {v(vWA)}")
        A(f"s_lshl_b32 s{sTMP + 1}, s{sF}, 14")
        A(f"s_add_u32 s{sTMP + 1}, s{sTMP + 1}, 4096")
        A(f"v_lshl_add_u32 {v(vWA + 3)}, v0, 2, s{sTMP + 1}")
        A(f"v_add_u32 {v(vWA + 4)}, 8192, {v(vWA + 3)}")
        A(f"v_dot2_f32_bf16 {v(K + 4)}, {v(vONE)}, s{sONES}, 0")
        for k in range(1, 4):
            A(f"v_dot2_f32_bf16 {v(K + 4)}, {v(vONE + k)}, s{sONES}, {v(K + 4)}")
        A(f"v_mov_b32 {v(K + 5)}, {L_SUMW}")
        A(f"s_mov_b32 s{sRP0}, 0x05040100")
        A(f"s_mov_b32 s{sRP1}, 0x07060302")
        for sh in (8, 4, 2, 1):
            A(f"v_add_f32_dpp {v(K + 4)}, {v(K + 4)}, {v(K + 4)} row_ror:{sh} row_mask:0xf bank_mask:0xf")
        A(f"v_add_f32_dpp {v(K + 4)}, {v(K + 4)}, {v(K + 4)} row_bcast:15 row_mask:0xa bank_mask:0xf")
        A(f"v_add_f32_dpp {v(K + 4)}, {v(K + 4)}, {v(K + 4)} row_bcast:31 row_mask:0xc bank_mask:0xf")
        A("s_mov_b32 exec_lo, 0")
        A("s_brev_b32 exec_hi, 1")
        A(f"ds_write_b32 {v(K + 5)}, {v(K + 4)}")
        A("s_mov_b64 exec, -1")
        A("s_barrier")
        A("s_waitcnt vmcnt(0)")
        chk8 = [f"v_max3_u32 {v(vT + 6)}, {v(vY)}, {v(vY + 1)}, {v(vY + 2)}",
                f"v_max3_u32 {v(vT + 7)}, {v(vY + 3)}, {v(vY + 4)}, {v(vY + 5)}",
                f"v_max3_u32 {v(vT + 6)}, {v(vT + 6)}, {v(vY + 6)}, {v(vY + 7)}",
                f"v_max_u32 {v(vT + 6)}, {v(vT + 6)}, {v(vT + 7)}",
                f"v_cmp_eq_u32 vcc, -1, {v(vT + 6)}"]
        self.poll("x1", xl, chk8)
        self.stamp("x1ld")
        A(f"ds_write2st64_b64 {v(vUW)}, {v(vY, 2)}, {v(vY + 2, 2)} offset0:0 offset1:9")
        A(f"ds_write2st64_b64 {v(vUW)}, {v(vY + 4, 2)}, {v(vY + 6, 2)} offset0:4 offset1:13")
        A("s_waitcnt lgkmcnt(0)")
        A("s_barrier")

        A(f"s_cmp_lt_u32 s{sPOS}, 14")
        A("s_cbranch_scc0 L_now")
        for k in range(8):
            A(f"global_load_dwordx4 {v(vWG + 4 * k, 4)}, {v(vWA + k // 3)}, {sp(sWSEL)} offset:{(k % 3 - 1) * 3584}")
        for k in range(16):
            A(f"global_load_dword {v(vWD + k)}, {v(vWA + 3 + (k >> 3))}, {sp(sWD)} offset:{((k & 7) - 4) * 1024}")
        A("L_now:")
        A(f"v_and_b32 {v(vT + 3)}, 0xfe, v0")
        A(f"v_mul_u32_u24 {v(vAUX)}, {RS}, {v(vT + 3)}")
        A(f"v_lshl_add_u32 {v(vAUX)}, {v(vT + 1)}, 4, {v(vAUX)}")
        A(f"s_lshl_b32 s{sTMP}, s{sL}, 5")
        A(f"s_add_u32 s{sTMP}, s{sTMP}, {W_REG + O_X2}")
        A(f"v_add_u32 {v(vAUX)}, s{sTMP}, {v(vAUX)}")
        A(f"v_add_u32 {v(vAUX + 1)}, {RS}, {v(vAUX)}")
        Tt, Xf = K + 40, K + 56
        Df = K + 72
        for k in range(8):
            A(f"v_lshlrev_b32 {v(Tt + 2 * k)}, 16, {v(vU + k)}")
            A(f"v_and_b32 {v(Tt + 2 * k + 1)}, s{sMASK}, {v(vU + k)}")
        A(f"v_lshlrev_b32 {v(Df)}, 16, {v(vD)}")
        A(f"v_and_b32 {v(Df + 1)}, s{sMASK}, {v(vD)}")
        A(f"v_lshlrev_b32 {v(Df + 2)}, 16, {v(vD + 1)}")
        A(f"v_and_b32 {v(Df + 3)}, s{sMASK}, {v(vD + 1)}")
        for k in range(8):
            c = k >> 1
            sel = "op_sel:[1,0] op_sel_hi:[1,1]" if c & 1 else "op_sel_hi:[0,1]"
            A(f"v_pk_mul_f32 {v(Tt + 2 * k, 2)}, {v(Df + (c & 2), 2)}, {v(Tt + 2 * k, 2)} {sel}")
        for k in range(8):
            A(f"v_cvt_pk_bf16_f32 {v(Xf + k)}, {v(Tt + 2 * k)}, {v(Tt + 2 * k + 1)}")
        for k in range(8):
            A(f"v_lshlrev_b32 {v(Tt + 2 * k)}, 16, {v(Xf + k)}")
            A(f"v_and_b32 {v(Tt + 2 * k + 1)}, s{sMASK}, {v(Xf + k)}")
        for r in range(4):
            for c in range(4):
                src = v(vX + 2 * r + (c >> 1))
                if c & 1:
                    A(f"v_and_b32 {v(Xf + 4 * c + r)}, s{sMASK}, {src}")
                else:
                    A(f"v_lshlrev_b32 {v(Xf + 4 * c + r)}, 16, {src}")
        self.stamp("shadow")
        A("s_barrier")
        A("s_barrier")
        self.stamp("b4b")
        for l in xl:
            A(l)
        A("s_waitcnt vmcnt(0)")
        self.poll("x2", xl, chk8)
        self.stamp("x2ld")

        for k in range(8):
            A(f"v_dot2_f32_bf16 {v(Tt + 2 * k)}, {v(vY + k)}, s{sSELLO}, {v(Tt + 2 * k)}")
            A(f"v_dot2_f32_bf16 {v(Tt + 2 * k + 1)}, {v(vY + k)}, s{sSELHI}, {v(Tt + 2 * k + 1)}")
        for k in range(8):
            A(f"v_cvt_pk_bf16_f32 {v(vY + k)}, {v(Tt + 2 * k)}, {v(Tt + 2 * k + 1)}")
        for k in range(8):
            A(f"v_dot2_f32_bf16 {v(Xf + 2 * k)}, {v(vY + k)}, s{sSELLO}, {v(Xf + 2 * k)}")
            A(f"v_dot2_f32_bf16 {v(Xf + 2 * k + 1)}, {v(vY + k)}, s{sSELHI}, {v(Xf + 2 * k + 1)}")
        vH = vX
        for cp in range(2):
            for r in range(4):
                A(f"v_cvt_pk_bf16_f32 {v(vH + 2 * r + cp)}, {v(Xf + 8 * cp + r)}, {v(Xf + 8 * cp + 4 + r)}")
        Rr = [K + 8 + i for i in range(4)]
        for cp in range(2):
            for r in range(4):
                A(f"v_dot2_f32_bf16 {v(V[r])}, {v(vH + 2 * r + cp)}, s{sONES}, {v(V[r]) if cp else 0}")
            for r in range(4):
                A(f"v_dot2_f32_bf16 {v(V[4 + r])}, {v(vH + 2 * r + cp)}, {v(vH + 2 * r + cp)}, {v(V[4 + r]) if cp else 0}")
            for r in range(4):
                A(f"v_dot2_f32_bf16 {v(Rr[r])}, {v(vH + 2 * r + cp)}, {v(vWR + cp)}, {v(Rr[r]) if cp else 0}")
        for i in range(4):
            A(f"v_add_f32_dpp {v(V[i])}, {v(V[i])}, {v(V[i])} row_ror:8 row_mask:0xf bank_mask:0x3")
        for i in range(4):
            A(f"v_add_f32_dpp {v(V[i])}, {v(V[i + 4])}, {v(V[i + 4])} row_ror:8 row_mask:0xf bank_mask:0xc")
        for i in range(2):
            A(f"v_add_f32_dpp {v(Rr[i])}, {v(Rr[i])}, {v(Rr[i])} row_shl:4 row_mask:0xf bank_mask:0x5")
        for i in range(2):
            A(f"v_add_f32_dpp {v(Rr[i])}, {v(Rr[i + 2])}, {v(Rr[i + 2])} row_shr:4 row_mask:0xf bank_mask:0xa")
        for i in range(2):
            A(f"v_add_f32_dpp {v(V[i])}, {v(V[i])}, {v(V[i])} row_shl:4 row_mask:0xf bank_mask:0x5")
        for i in range(2):
            A(f"v_add_f32_dpp {v(V[i])}, {v(V[i + 2])}, {v(V[i + 2])} row_shr:4 row_mask:0xf bank_mask:0xa")
        A(f"v_permlane32_swap_b32 {v(Rr[0])}, {v(Rr[1])}")
        A(f"v_and_b32 {v(K + 13)}, 0xffffff7f, {v(vSW)}")
        A(f"v_permlane32_swap_b32 {v(V[0])}, {v(V[1])}")
        A(f"v_add_f32 {v(Rr[0])}, {v(Rr[0])}, {v(Rr[1])}")
        A(f"v_add_f32 {v(V[0])}, {v(V[0])}, {v(V[1])}")
        A(f"s_mov_b64 vcc, {sp(sODD)}")
        A(f"v_add_f32_dpp {v(Rr[0])}, {v(Rr[0])}, {v(Rr[0])} row_ror:8 row_mask:0xf bank_mask:0xf")
        A(f"v_add_f32_dpp {v(V[0])}, {v(V[0])}, {v(V[0])} quad_perm:[2,3,0,1] row_mask:0xf bank_mask:0xf")
        A(f"v_mov_b32 {v(V[1])}, {v(V[0])}")
        A(f"v_add_f32_dpp {v(Rr[0])}, {v(Rr[0])}, {v(Rr[0])} quad_perm:[2,3,0,1] row_mask:0xf bank_mask:0xf")
        A(f"v_mov_b32 {v(Rr[1])}, {v(Rr[0])}")
        A(f"v_permlane16_swap_b32 {v(V[0])}, {v(V[1])}")
        A(f"v_add_f32 {v(V[0])}, {v(V[0])}, {v(V[1])}")
        A(f"v_permlane16_swap_b32 {v(Rr[0])}, {v(Rr[1])}")
        A(f"v_add_f32 {v(Rr[0])}, {v(Rr[0])}, {v(Rr[1])}")
        A(f"ds_write_b32 {v(vSW)}, {v(V[0])} offset:{L_RED2 - L_RED1}")
        A(f"ds_write_b32 {v(K + 13)}, {v(Rr[0])} offset:{L_RED2 - L_RED1 + 256}")
        A("s_waitcnt lgkmcnt(0)")
        A("s_barrier")
        self.stamp("b5")
        Hf, Dd = Xf, Tt
        self.key_calc(K, vRA, vLANE)
        self.spread(K + 12, vNM, K + 24)
        A(f"v_readfirstlane_b32 s{sBEST}, {v(K + 8)}")
        for r in range(4):
            for cp in range(2):
                A(f"v_lshlrev_b32 {v(Hf + 4 * r + 2 * cp)}, 16, {v(vH + 2 * r + cp)}")
                A(f"v_and_b32 {v(Hf + 4 * r + 2 * cp + 1)}, s{sMASK}, {v(vH + 2 * r + cp)}")
        self.spread(K + 13, vRI, K + 24)
        for k in range(8):
            r = k >> 1
            sel = "op_sel:[1,0] op_sel_hi:[1,1]" if r & 1 else "op_sel_hi:[0,1]"
            A(f"v_pk_add_f32 {v(Dd + 2 * k, 2)}, {v(vNM + (r & 2), 2)}, {v(Hf + 2 * k, 2)} {sel}")
        vX2 = vU
        for k in range(8):
            A(f"v_cvt_pk_bf16_f32 {v(vX2 + k)}, {v(Dd + 2 * k)}, {v(Dd + 2 * k + 1)}")
        for k in range(8):
            A(f"v_lshlrev_b32 {v(Dd + 2 * k)}, 16, {v(vX2 + k)}")
            A(f"v_and_b32 {v(Dd + 2 * k + 1)}, s{sMASK}, {v(vX2 + k)}")
        for k in range(8):
            r = k >> 1
            sel = "op_sel:[1,0] op_sel_hi:[1,1]" if r & 1 else "op_sel_hi:[0,1]"
            A(f"v_pk_mul_f32 {v(Dd + 2 * k, 2)}, {v(vRI + (r & 2), 2)}, {v(Dd + 2 * k, 2)} {sel}")
        for k in range(8):
            A(f"v_cvt_pk_bf16_f32 {v(vX2 + k)}, {v(Dd + 2 * k)}, {v(Dd + 2 * k + 1)}")
        A(f"s_andn2_b32 s{sTMP}, 7, s{sBEST}")
        A(f"s_and_b32 s{sTMP + 1}, s{sTMP}, 3")
        A(f"s_lshl_b32 s{sTMP + 2}, s{sTMP + 1}, 1")
        A(f"s_not_b64 {sp(sE)}, {sp(sODD)}")
        A(f"s_cmp_ge_u32 s{sTMP}, 4")
        A(f"s_cselect_b64 {sp(sE)}, {sp(sODD)}, {sp(sE)}")
        vC = K + 24
        A(f"s_set_gpr_idx_on s{sTMP + 2}, gpr_idx(SRC0)")
        A(f"v_mov_b32 {v(vC)}, {v(vX2)}")
        A(f"v_mov_b32 {v(vC + 1)}, {v(vX2 + 1)}")
        A(f"v_mov_b32 {v(vC + 2)}, {v(vH)}")
        A(f"v_mov_b32 {v(vC + 3)}, {v(vH + 1)}")
        A("s_set_gpr_idx_off")
        A(f"s_add_u32 s{sTMP + 3}, s{sOWN}, {O_SLOT}")
        A(f"v_add_u32 {v(vT)}, s{sTMP + 3}, {v(vT + 2)}")
        A(f"s_mov_b64 exec, {sp(sE)}")
        A(f"global_store_dwordx2 {v(vT)}, {v(vC, 2)}, {sp(sWS)} sc1")
        A(f"global_store_dwordx2 {v(vT)}, {v(vC + 2, 2)}, {sp(sWS)} offset:1024 sc1")
        A("s_mov_b64 exec, -1")
        self.stamp("slot")
        for k in range(8):
            A(f"v_dot2_f32_bf16 {v(Hf + 2 * k)}, {v(vX2 + k)}, s{sSELLO}, {v(Hf + 2 * k)}")
            A(f"v_dot2_f32_bf16 {v(Hf + 2 * k + 1)}, {v(vX2 + k)}, s{sSELHI}, {v(Hf + 2 * k + 1)}")
        vO = vY
        A(f"v_mov_b32 {v(vT + 4)}, {L_REDK}")
        for k in range(8):
            A(f"v_cvt_pk_bf16_f32 {v(vO + k)}, {v(Hf + 2 * k)}, {v(Hf + 2 * k + 1)}")
        osc = " sc1" if o.get("outsc", 0) == 1 else (" nt" if o.get("outsc", 0) == 2 else "")
        for r in range(4):
            A(f"s_cmp_eq_u32 s{sTMP + 1}, {r}")
            A(f"s_cselect_b64 vcc, {sp(sE)}, 0")
            A("s_not_b64 exec, vcc")
            A(f"global_store_dwordx2 {v(vRD)}, {v(vO + 2 * r, 2)}, {sp(sOUT)} offset:{1024 * r}{osc}")
        A("s_mov_b64 exec, -1")
        A(f"s_set_gpr_idx_on s{sTMP + 2}, gpr_idx(SRC0)")
        A(f"v_mov_b32 {v(vC + 4)}, {v(vO)}")
        A(f"v_mov_b32 {v(vC + 5)}, {v(vO + 1)}")
        A("s_set_gpr_idx_off")
        A(f"s_lshl_b32 s{sTMP + 1}, s{sTMP + 1}, 10")
        A(f"v_add_u32 {v(vRD)}, s{sTMP + 1}, {v(vRD)}")
        A(f"s_lshr_b32 s{sTMP}, s{sWAVE}, 1")
        A(f"s_lshl_b32 s{sTMP}, s{sTMP}, 9")
        A(f"s_add_u32 s{sTMP}, s{sTMP}, {W_REG + O_SLOT}")
        A(f"v_lshrrev_b32 {v(vT)}, 1, {v(vLANE)}")
        A(f"v_lshl_add_u32 {v(vT)}, {v(vT)}, 4, s{sTMP}")
        A(f"v_lshlrev_b32 {v(vT + 1)}, 6, {v(vT + 1)}")
        A(f"v_and_b32 {v(vT + 2)}, 12, {v(vLANE)}")
        A(f"v_lshl_add_u32 {v(vT + 1)}, {v(vT + 2)}, 2, {v(vT + 1)}")
        A(f"v_lshrrev_b32 {v(vT + 2)}, 5, {v(vLANE)}")
        A(f"v_lshl_add_u32 {v(vT + 1)}, {v(vT + 2)}, 3, {v(vT + 1)}")
        A(f"s_and_b32 s{sTMP}, s{sWAVE}, 1")
        A(f"s_lshl_b32 s{sTMP}, s{sTMP}, 7")
        A(f"s_lshr_b32 s{sTMP + 1}, s{sWAVE}, 1")
        A(f"s_lshl_b32 s{sTMP + 1}, s{sTMP + 1}, 2")
        A(f"s_add_u32 s{sTMP}, s{sTMP}, s{sTMP + 1}")
        A(f"s_add_u32 s{sTMP}, s{sTMP}, {L_REDF}")
        A(f"v_add_u32 {v(vT + 1)}, s{sTMP}, {v(vT + 1)}")
        A(f"v_and_b32 {v(vT + 2)}, 15, {v(vLANE)}")
        A(f"v_lshlrev_b32 {v(vT + 2)}, 3, {v(vT + 2)}")
        A(f"v_add_u32 {v(vT + 2)}, {L_REDF}, {v(vT + 2)}")
        A(f"s_add_u32 s{sTMP}, s{sOWN}, {O_PART}")
        A(f"v_lshl_add_u32 {v(vT + 3)}, v0, 3, s{sTMP}")
        WGp = K + 80
        for kp in range(4):
            for d in range(4):
                lo, hi = vWG + 8 * kp + d, vWG + 8 * kp + 4 + d
                A(f"v_perm_b32 {v(WGp + 8 * kp + 2 * d)}, {v(hi)}, {v(lo)}, s{sRP0}")
                A(f"v_perm_b32 {v(WGp + 8 * kp + 2 * d + 1)}, {v(hi)}, {v(lo)}, s{sRP1}")
        WDp = vWG
        for kp in range(8):
            lo, hi = vWD + 2 * kp, vWD + 2 * kp + 1
            A(f"v_perm_b32 {v(WDp + 2 * kp)}, {v(hi)}, {v(lo)}, s{sRP0}")
            A(f"v_perm_b32 {v(WDp + 2 * kp + 1)}, {v(hi)}, {v(lo)}, s{sRP1}")
        self.stamp("outst")
        A("s_barrier")
        A(f"ds_read_b32 {v(K)}, {v(vT + 4)}")
        A("s_waitcnt lgkmcnt(0)")
        A(f"v_readfirstlane_b32 s{sWIN}, {v(K)}")
        A(f"s_andn2_b32 s{sT0}, 2047, s{sWIN}")
        A(f"s_lshr_b32 s{sT1}, s{sT0}, 3")
        A(f"s_mul_i32 s{sT1}, s{sT1}, {RS}")
        A(f"s_cmp_lt_u32 s{sPOS}, 14")
        A("s_cbranch_scc0 L_noffn")
        A(f"v_add_u32 {v(vT)}, s{sT1}, {v(vT)}")
        sl = [f"global_load_dwordx4 {v(K, 4)}, {v(vT)}, {sp(sWS)} sc1"]
        A(sl[0])
        self.stamp("win")
        A("s_waitcnt vmcnt(0)")
        self.poll("sel", sl, [f"v_max3_u32 {v(vT + 6)}, {v(K)}, {v(K + 1)}, {v(K + 2)}",
                              f"v_max_u32 {v(vT + 6)}, {v(vT + 6)}, {v(K + 3)}",
                              f"v_cmp_eq_u32 vcc, -1, {v(vT + 6)}"])
        self.stamp("sel")
        V2 = [K + 8 + i for i in range(8)]
        for kp in range(4):
            for c in range(8):
                A(f"v_dot2_f32_bf16 {v(V2[c])}, {v(K + kp)}, {v(WGp + 8 * kp + c)}, {v(V2[c]) if kp else 0}")
        self.reduce8(V2, K + 16)
        A(f"ds_write_b32 {v(vT + 1)}, {v(V2[0])}")
        A("s_waitcnt lgkmcnt(0)")
        A("s_barrier")
        A(f"ds_read_b64 {v(K, 2)}, {v(vT + 2)}")
        A(f"ds_read_b64 {v(K + 2, 2)}, {v(vT + 2)} offset:128")
        A("s_waitcnt lgkmcnt(0)")
        A(f"v_add_f32 {v(K)}, {v(K)}, {v(K + 1)}")
        A(f"v_add_f32 {v(K + 2)}, {v(K + 2)}, {v(K + 3)}")
        A(f"v_cvt_pk_bf16_f32 {v(K + 1)}, {v(K)}, {v(K + 2)}")
        A(f"v_lshlrev_b32 {v(K)}, 16, {v(K + 1)}")
        A(f"v_mul_f32 {v(K + 3)}, {hex(f2u(-L2E))}, {v(K)}")
        A(f"v_exp_f32 {v(K + 3)}, {v(K + 3)}")
        A(f"v_and_b32 {v(K + 2)}, s{sMASK}, {v(K + 1)}")
        A(f"v_add_f32 {v(K + 3)}, 1.0, {v(K + 3)}")
        A(f"v_rcp_f32 {v(K + 3)}, {v(K + 3)}")
        A(f"v_mul_f32 {v(K)}, {v(K)}, {v(K + 3)}")
        A(f"v_cvt_pk_bf16_f32 {v(K)}, {v(K)}, {v(K)}")
        A(f"v_and_b32 {v(K)}, s{sMASK}, {v(K)}")
        A(f"v_mul_f32 {v(K)}, {v(K)}, {v(K + 2)}")
        A(f"v_mov_b32_dpp {v(K + 1)}, {v(K)} quad_perm:[1,1,3,3] row_mask:0xf bank_mask:0xf")
        A(f"v_cvt_pk_bf16_f32 {v(K)}, {v(K)}, {v(K + 1)}")
        for kp in range(8):
            A(f"v_readlane_b32 s{sH + kp}, {v(K)}, {2 * kp}")
        for kp in range(8):
            for c in range(2):
                A(f"v_dot2_f32_bf16 {v(K + 4 + c)}, s{sH + kp}, {v(WDp + 2 * kp + c)}, {v(K + 4 + c) if kp else 0}")
        A(f"global_store_dwordx2 {v(vT + 3)}, {v(K + 4, 2)}, {sp(sWS)} sc1")
        self.stamp("part")
        held = [f"s_cmp_eq_u32 s{sWIN}, s{sBEST}",
                f"s_cselect_b64 exec, 0, {sp(sE)}",
                f"global_store_dwordx2 {v(vRD)}, {v(vC + 4, 2)}, {sp(sOUT)}{osc}",
                f"s_or_b32 s{sTMP}, s{sL}, s{sWAVE}",
                f"s_cmp_eq_u32 s{sTMP}, 0",
                "s_cselect_b64 exec, 1, 0",
                f"v_mov_b32 {v(vT + 4)}, s{sG}",
                f"v_mov_b32 {v(vT + 5)}, 0",
                f"global_store_dword {v(vT + 5)}, {v(vT + 4)}, {sp(sWS)} sc1",
                "s_mov_b64 exec, -1"]
        T = self.tail
        T("L_noffn:")
        for l in held:
            T(l)
        T("s_branch L_fin")
        for l in held:
            A(l)
        A(f"s_cmp_lt_u32 s{sPOS}, 8")
        A("s_cbranch_scc0 L_fin")
        A(f"s_cmp_lt_u32 s{sWAVE}, 2")
        A("s_cbranch_scc0 L_fin")
        A(f"s_lshl_b32 s{sTMP}, s{sXCD}, 3")
        A(f"s_add_u32 s{sTMP}, s{sTMP}, s{sPOS}")
        A(f"s_lshl_b32 s{sTMP}, s{sTMP}, 1")
        A(f"s_add_u32 s{sTMP}, s{sTMP}, s{sWAVE}")
        A(f"v_lshrrev_b32 {v(vT)}, 5, {v(vLANE)}")
        A(f"v_bfe_u32 {v(vT + 1)}, {v(vLANE)}, 4, 1")
        A(f"v_lshl_add_u32 {v(vT)}, {v(vT + 1)}, 1, {v(vT)}")
        A(f"s_lshl_b32 s{sTMP + 1}, s{sTMP}, 3")
        A(f"v_lshl_add_u32 {v(vT)}, {v(vT)}, 1, s{sTMP + 1}")
        A(f"s_add_u32 s{sT1}, s{sT1}, {W_REG + O_SLOT}")
        A(f"v_add_u32 {v(vT + 1)}, s{sT1}, {v(vT)}")
        xh = [f"global_load_ushort {v(K + 20)}, {v(vT + 1)}, {sp(sWS)} sc1",
              f"global_load_ushort {v(K + 21)}, {v(vT + 1)}, {sp(sWS)} offset:1024 sc1"]
        for l in xh:
            A(l)
        A(f"s_lshl_b32 s{sTMP + 1}, s{sT0}, 10")
        A(f"v_add_u32 {v(vT)}, s{sTMP + 1}, {v(vT)}")
        A(f"v_min_u32 {v(vT + 2)}, 55, {v(vLANE)}")
        A(f"v_mul_u32_u24 {v(vT + 3)}, 4682, {v(vT + 2)}")
        A(f"v_lshrrev_b32 {v(vT + 3)}, 16, {v(vT + 3)}")
        A(f"v_mad_u32_u24 {v(vT + 2)}, {v(vT + 3)}, 18, {v(vT + 2)}")
        A(f"v_mul_u32_u24 {v(vT + 2)}, {RS}, {v(vT + 2)}")
        A(f"s_lshl_b32 s{sTMP + 1}, s{sTMP}, 4")
        A(f"s_add_u32 s{sTMP + 1}, s{sTMP + 1}, {W_REG + O_PART}")
        A(f"v_add_u32 {v(vT + 2)}, s{sTMP + 1}, {v(vT + 2)}")
        A(f"v_add_u32 {v(vT + 3)}, {128 * RS}, {v(vT + 2)}")
        A(f"s_ashr_i32 s{sTMP + 2}, s{sWIN}, 31")
        A(f"s_not_b32 s{sTMP + 2}, s{sTMP + 2}")
        A(f"s_or_b32 s{sTMP + 2}, s{sTMP + 2}, 0x80000000")
        A(f"s_xor_b32 s{sTMP + 2}, s{sTMP + 2}, s{sWIN}")
        A(f"s_and_b32 s{sTMP + 2}, s{sTMP + 2}, 0xfffff800")
        A(f"s_or_b32 s{sTMP + 2}, s{sTMP + 2}, 0x400")
        A(f"v_cvt_pk_bf16_f32 {v(K + 22)}, s{sTMP + 2}, s{sTMP + 2}")
        A(f"v_and_b32 {v(K + 22)}, s{sMASK}, {v(K + 22)}")
        A(f"v_mul_f32 {v(K + 22)}, {hex(f2u(-L2E))}, {v(K + 22)}")
        A(f"v_exp_f32 {v(K + 22)}, {v(K + 22)}")
        A(f"v_add_f32 {v(K + 22)}, 1.0, {v(K + 22)}")
        A(f"v_rcp_f32 {v(K + 22)}, {v(K + 22)}")
        A(f"v_cvt_pk_bf16_f32 {v(K + 22)}, {v(K + 22)}, {v(K + 22)}")
        A(f"v_and_b32 {v(K + 22)}, s{sMASK}, {v(K + 22)}")
        A("s_waitcnt vmcnt(0)")
        self.stamp("partdr")
        pl = [f"global_load_dwordx4 {v(vY, 4)}, {v(vT + 2)}, {sp(sWS)} sc1",
              f"global_load_dwordx4 {v(vY + 4, 4)}, {v(vT + 3)}, {sp(sWS)} sc1"]
        for l in pl:
            A(l)
        self.poll("xh", xh, [f"v_max_u32 {v(vT + 6)}, {v(K + 20)}, {v(K + 21)}",
                             f"v_cmp_eq_u32 vcc, 0xffff, {v(vT + 6)}"])
        A(f"v_lshlrev_b32 {v(K + 20)}, 16, {v(K + 20)}")
        A(f"v_lshlrev_b32 {v(K + 21)}, 16, {v(K + 21)}")
        A("s_waitcnt vmcnt(0)")
        self.poll("part", pl, chk8)
        self.stamp("partld")
        A(f"v_cmp_gt_u32 vcc, 56, {v(vLANE)}")
        A(f"v_pk_add_f32 {v(vY, 2)}, {v(vY, 2)}, {v(vY + 4, 2)}")
        A(f"v_pk_add_f32 {v(vY + 2, 2)}, {v(vY + 2, 2)}, {v(vY + 6, 2)}")
        for c in range(4):
            A(f"v_cndmask_b32 {v(vY + c)}, 0, {v(vY + c)}, vcc")
        A(f"v_permlane32_swap_b32 {v(vY)}, {v(vY + 1)}")
        A(f"v_permlane32_swap_b32 {v(vY + 2)}, {v(vY + 3)}")
        A(f"v_add_f32 {v(vY)}, {v(vY)}, {v(vY + 1)}")
        A(f"v_add_f32 {v(vY + 2)}, {v(vY + 2)}, {v(vY + 3)}")
        A(f"v_permlane16_swap_b32 {v(vY)}, {v(vY + 2)}")
        A(f"v_add_f32 {v(vY)}, {v(vY)}, {v(vY + 2)}")
        for sh in (8, 4, 2, 1):
            A(f"v_add_f32_dpp {v(vY)}, {v(vY)}, {v(vY)} row_ror:{sh} row_mask:0xf bank_mask:0xf")
        y = vY
        A(f"v_cvt_pk_bf16_f32 {v(y)}, {v(y)}, {v(y)}")
        A(f"v_and_b32 {v(y)}, s{sMASK}, {v(y)}")
        A(f"v_mul_f32 {v(y)}, {v(y)}, {v(K + 22)}")
        A(f"v_cvt_pk_bf16_f32 {v(y)}, {v(y)}, {v(y)}")
        A(f"v_and_b32 {v(y)}, s{sMASK}, {v(y)}")
        A(f"v_add_f32 {v(y)}, {v(y)}, {v(K + 20)}")
        A(f"v_cvt_pk_bf16_f32 {v(y)}, {v(y)}, {v(y)}")
        A(f"v_and_b32 {v(y)}, s{sMASK}, {v(y)}")
        A(f"v_add_f32 {v(y)}, {v(y)}, {v(K + 21)}")
        A(f"v_cvt_pk_bf16_f32 {v(y)}, {v(y)}, {v(y)}")
        A("s_mov_b32 exec_lo, 0x00010001")
        A("s_mov_b32 exec_hi, 0x00010001")
        A(f"global_store_short {v(vT)}, {v(y)}, {sp(sOUT)}")
        A("L_fin:")
        self.finish("R")

    def chans(self):
        A = self.A
        o = self.o
        vLANE = 1
        vAA, vBA, vEW, vER, vRA = 4, 12, 13, 14, 15
        vKA0, vKA1, vKB, vPW0, vPW1 = 16, 17, 18, 19, 20
        vP = 24
        vT = 28
        vACC = 40
        vA0, vA1, vB0, vB1 = 72, 104, 136, 168
        K = 72
        A("L_chan:")
        A("v_and_b32 v0, 0xff, v0")
        A(f"s_sub_u32 s{sWAVE}, s{sWAVE}, 4")
        A(f"s_lshl_b32 s{sT0}, s{sL}, 9")
        A(f"v_lshl_add_u32 {v(vT)}, v0, 1, s{sT0}")
        A(f"s_lshl_b32 s{sT1}, s{sL}, 2")
        A("s_waitcnt lgkmcnt(0)")
        self.stamp("karg")
        for k, s in enumerate((sLA, sAI, sCR, sCI)):
            A(f"global_load_ushort {v(vP + k)}, {v(vT)}, {sp(s)}{' nt' if o.get('ntx', 1) else ''}")
        A(f"s_load_dword s{sDT}, {sp(sLDT)}, s{sT1}")
        vJ, vGq = vT + 4, vT + 5
        A(f"v_and_b32 {v(vJ)}, 15, {v(vLANE)}")
        A(f"v_lshrrev_b32 {v(vGq)}, 4, {v(vLANE)}")
        A(f"s_lshr_b32 s{sT0}, s{sWAVE}, 1")
        A(f"s_and_b32 s{sT1}, s{sWAVE}, 1")
        A(f"v_and_b32 {v(vT)}, 7, {v(vLANE)}")
        A(f"v_lshlrev_b32 {v(vRA)}, 4, {v(vT)}")
        A(f"v_add_u32 {v(vRA)}, {L_RED1}, {v(vRA)}")
        A(f"s_mul_i32 s{sTMP}, s{sT0}, {PC}")
        A(f"s_lshl_b32 s{sTMP + 1}, s{sT1}, 7")
        A(f"s_add_u32 s{sTMP}, s{sTMP}, s{sTMP + 1}")
        A(f"s_add_u32 s{sTMP}, s{sTMP}, {L_P + 4 * 26}")
        A(f"v_lshlrev_b32 {v(vT)}, 3, {v(vGq)}")
        A(f"v_sub_u32 {v(vT)}, {v(vJ)}, {v(vT)}")
        A(f"v_lshl_add_u32 {v(vAA)}, {v(vT)}, 2, s{sTMP}")
        for m in range(1, 8):
            A(f"v_add_u32 {v(vAA + m)}, {1024 * m}, {v(vAA)}")
        A(f"s_mul_i32 s{sTMP}, s{sT0}, {UC}")
        A(f"s_lshl_b32 s{sTMP + 1}, s{sT1}, 6")
        A(f"s_sub_u32 s{sTMP}, s{sTMP}, s{sTMP + 1}")
        A(f"s_add_u32 s{sTMP}, s{sTMP}, {L_U + 64}")
        A(f"v_lshl_add_u32 {v(vT)}, {v(vJ)}, 1, {v(vGq)}")
        A(f"v_lshl_add_u32 {v(vBA)}, {v(vT)}, 4, s{sTMP}")
        A(f"v_lshl_add_u32 {v(vT)}, {v(vJ)}, 2, {v(vGq)}")
        A(f"v_lshrrev_b32 {v(vT + 1)}, 3, {v(vT)}")
        A(f"v_add_u32 {v(vT)}, {v(vT)}, {v(vT + 1)}")
        A(f"s_mul_i32 s{sTMP}, s{sWAVE}, {8 * TBS}")
        A(f"v_lshl_add_u32 {v(vEW)}, {v(vT)}, 4, s{sTMP}")
        A(f"v_lshrrev_b32 {v(vT + 1)}, 3, {v(vLANE)}")
        A(f"v_add_u32 {v(vT)}, {v(vLANE)}, {v(vT + 1)}")
        A(f"s_mul_i32 s{sTMP}, s{sWAVE}, {2 * TBS}")
        A(f"v_lshl_add_u32 {v(vER)}, {v(vT)}, 4, s{sTMP}")
        KS = o.get("ks", 5)
        for k in range(4):
            A(f"v_mov_b32 {v(vACC + k)}, -1")
        A(f"s_mul_i32 s{sTMP}, s{sL}, {RS}")
        A(f"s_add_u32 s{sTMP}, s{sTMP}, {W_REG + 4096}")
        A(f"v_lshl_add_u32 {v(vACC + 4)}, v0, 4, s{sTMP}")
        A(f"v_add_u32 {v(vACC + 5)}, 8192, {v(vACC + 4)}")
        A(f"v_add_u32 {v(vACC + 6)}, 12288, {v(vACC + 4)}")
        A(f"s_lshl_b32 s{sTMP}, s{sL}, {KS}")
        A(f"s_add_u32 s{sTMP}, s{sTMP}, {W_KEY}")
        A(f"v_mov_b32 {v(22)}, s{sTMP}")
        ones = v(vACC, 4)
        A(f"s_cmp_eq_u32 s{sWAVE}, 0")
        A("s_cselect_b64 exec, 1, 0")
        A(f"global_store_dword {v(22)}, {v(vACC)}, {sp(sWS)} sc1")
        A("s_mov_b64 exec, -1")
        A(f"global_store_dwordx4 {v(vACC + 4)}, {ones}, {sp(sWS)} offset:-4096 sc1")
        A(f"global_store_dwordx4 {v(vACC + 4)}, {ones}, {sp(sWS)} sc1")
        A(f"global_store_dwordx4 {v(vACC + 5)}, {ones}, {sp(sWS)} offset:-4096 sc1")
        A(f"global_store_dwordx4 {v(vACC + 5)}, {ones}, {sp(sWS)} sc1")
        A(f"global_store_dwordx4 {v(vACC + 6)}, {ones}, {sp(sWS)} sc1")
        vg, vr = vT, vT + 1
        A(f"v_lshrrev_b32 {v(vg)}, 2, {v(vJ)}")
        A(f"v_and_b32 {v(vr)}, 3, {v(vJ)}")
        A(f"s_cmp_eq_u32 s{sT1}, 0")
        A("s_cbranch_scc0 L_rows_hi")
        A(f"v_mov_b32 {v(vKA0)}, {v(vJ)}")
        A(f"v_lshl_add_u32 {v(vKA1)}, {v(vg)}, 1, {v(vr)}")
        A(f"v_add_u32 {v(vKA1)}, 16, {v(vKA1)}")
        A(f"v_add_u32 {v(vT + 2)}, -4, {v(vJ)}")
        A(f"v_and_b32 {v(vT + 2)}, 15, {v(vT + 2)}")
        A(f"v_cmp_eq_u32 vcc, 3, {v(vr)}")
        A(f"v_cndmask_b32 {v(vKA1)}, {v(vKA1)}, {v(vT + 2)}, vcc")
        A(f"v_lshl_add_u32 {v(vPW0)}, {v(vJ)}, 2, {v(vGq)}")
        A(f"v_lshlrev_b32 {v(vPW0)}, 4, {v(vPW0)}")
        A(f"v_add_u32 {v(vPW1)}, 1024, {v(vPW0)}")
        A("s_branch L_rows_done")
        A("L_rows_hi:")
        A(f"v_lshrrev_b32 {v(vT + 2)}, 1, {v(vg)}")
        A(f"v_lshl_add_u32 {v(vKA0)}, {v(vg)}, 1, {v(vr)}")
        A(f"v_add3_u32 {v(vKA0)}, {v(vKA0)}, {v(vT + 2)}, 25")
        A(f"v_sub_u32 {v(vKA1)}, {v(vJ)}, {v(vg)}")
        A(f"v_add_u32 {v(vKA1)}, 35, {v(vKA1)}")
        A(f"v_lshrrev_b32 {v(vT + 2)}, 1, {v(vGq)}")
        A(f"v_lshl_add_u32 {v(vPW0)}, {v(vT + 2)}, 4, {v(vJ)}")
        A(f"v_and_b32 {v(vT + 2)}, 1, {v(vGq)}")
        A(f"v_lshl_add_u32 {v(vPW0)}, {v(vPW0)}, 1, {v(vT + 2)}")
        A(f"v_lshlrev_b32 {v(vPW0)}, 5, {v(vPW0)}")
        A(f"v_add_u32 {v(vPW0)}, 2048, {v(vPW0)}")
        A(f"v_lshlrev_b32 {v(vPW1)}, 6, {v(vLANE)}")
        A(f"v_add_u32 {v(vPW1)}, 4096, {v(vPW1)}")
        A("L_rows_done:")
        A(f"s_mul_i32 s{sTMP}, s{sT0}, {PC}")
        A(f"s_add_u32 s{sTMP}, s{sTMP}, {L_P + 64}")
        A(f"v_add_u32 {v(vPW0)}, s{sTMP}, {v(vPW0)}")
        A(f"v_add_u32 {v(vPW1)}, s{sTMP}, {v(vPW1)}")
        A(f"s_mul_i32 s{sTMP}, s{sT0}, {TABC}")
        A(f"v_lshl_add_u32 {v(vT + 2)}, {v(vGq)}, 4, s{sTMP}")
        A(f"s_movk_i32 s{sTMP + 1}, {ROWB}")
        A(f"v_mad_u32_u24 {v(vKA0)}, {v(vKA0)}, s{sTMP + 1}, {v(vT + 2)}")
        A(f"v_mad_u32_u24 {v(vKA1)}, {v(vKA1)}, s{sTMP + 1}, {v(vT + 2)}")
        A(f"v_mad_u32_u24 {v(vKB)}, {v(vJ)}, s{sTMP + 1}, {v(vT + 2)}")
        A(f"s_lshl_b32 s{sTMP + 1}, s{sT1}, 8")
        A(f"s_add_u32 m0, s{sTMP}, s{sTMP + 1}")
        A(f"s_mul_i32 s{sTMP}, s{sXCD}, 448")
        A(f"s_and_b32 s{sTMP}, s{sTMP}, 0xffffff80")
        A(f"s_mul_i32 s{sTMP + 1}, s{sPOS}, {16 * 3584}")
        A(f"s_add_u32 s{sTMP}, s{sTMP}, s{sTMP + 1}")
        A(f"v_lshrrev_b32 {v(vT + 2)}, 2, {v(vLANE)}")
        A(f"v_mul_u32_u24 {v(vT + 2)}, 3584, {v(vT + 2)}")
        A(f"v_and_b32 {v(vT + 3)}, 3, {v(vLANE)}")
        A(f"v_lshl_add_u32 {v(vT + 2)}, {v(vT + 3)}, 7, {v(vT + 2)}")
        A(f"v_add_u32 {v(vT + 2)}, s{sTMP}, {v(vT + 2)}")
        A(f"s_mul_i32 s{sTMP}, s{sL}, 7168")
        A(f"s_mul_i32 s{sTMP + 1}, s{sT1}, 3584")
        A(f"s_add_u32 s{sTMP}, s{sTMP}, s{sTMP + 1}")
        A(f"v_min_u32 {v(vT + 3)}, 27, {v(vLANE)}")
        A(f"v_lshl_add_u32 {v(vT + 3)}, {v(vT + 3)}, 7, s{sTMP}")
        A(f"s_cmp_eq_u32 s{sT1}, 0")
        A(f"s_cselect_b64 {sp(sWSEL)}, {sp(sWG)}, {sp(sWU)}")
        A(f"s_cmp_eq_u32 s{sT0}, 0")
        A(f"s_cselect_b64 {sp(sWSEL)}, {sp(sWSEL)}, {sp(sWD)}")
        A("s_cselect_b64 vcc, -1, 0")
        A(f"v_cndmask_b32 {v(21)}, {v(vT + 3)}, {v(vT + 2)}, vcc")
        wpf = f"global_load_dword v3, v21, {sp(sWSEL)}{' nt' if o.get('ntw', 1) else ''}"
        if o.get("wpf", 1) == 2:
            A(wpf)

        L2E = 1.4426950408889634
        l2e_hi = struct.unpack("<f", struct.pack("<f", L2E))[0]
        l2e_lo = L2E - l2e_hi
        a, b = K, K + 2
        A(f"s_mov_b32 s{sE}, {hex(f2u(l2e_hi))}")
        A(f"s_mov_b32 s{sE + 1}, {hex(f2u(l2e_lo))}")
        A(f"s_waitcnt vmcnt({6 if o.get('wpf', 1) == 2 else 5}) lgkmcnt(0)")
        self.stamp("par")
        A(f"s_lshl_b32 s{sTMP}, s{sDT}, 16")
        A(f"s_and_b32 s{sTMP + 1}, s{sDT}, s{sMASK}")
        A(f"s_cmp_lt_u32 s{sWAVE}, 2")
        A(f"s_cselect_b32 s{sDT}, s{sTMP}, s{sTMP + 1}")
        A(f"v_lshlrev_b32 {v(a)}, 16, {v(vP)}")
        A(f"v_mov_b32 {v(a + 1)}, s{sDT}")
        A(f"v_pk_mul_f32 {v(b, 2)}, {v(a, 2)}, {sp(sE)} op_sel_hi:[1,0]")
        A(f"v_pk_fma_f32 {v(b + 2, 2)}, {v(a, 2)}, {sp(sE)}, {v(b, 2)} op_sel_hi:[1,0,1] neg_lo:[0,0,1] neg_hi:[0,0,1]")
        A(f"v_exp_f32 {v(b)}, {v(b)}")
        A(f"v_exp_f32 {v(b + 1)}, {v(b + 1)}")
        A(f"v_pk_fma_f32 {v(b + 2, 2)}, {sp(sE)}, {v(a, 2)}, {v(b + 2, 2)} op_sel:[1,0,0] op_sel_hi:[1,1,1]")
        A(f"v_mul_f32 {v(b + 2)}, {hex(f2u(0.6931471805599453))}, {v(b + 2)}")
        A(f"v_mul_f32 {v(b + 3)}, {hex(f2u(0.6931471805599453))}, {v(b + 3)}")
        A(f"v_pk_fma_f32 {v(b, 2)}, {v(b, 2)}, {v(b + 2, 2)}, {v(b, 2)}")
        A(f"v_cvt_pk_bf16_f32 {v(a)}, {v(b)}, {v(b + 1)}")
        vdt, va2, vph = K + 6, K + 7, K + 8
        A(f"v_and_b32 {v(vdt)}, s{sMASK}, {v(a)}")
        A(f"v_lshlrev_b32 {v(va2)}, 16, {v(a)}")
        A(f"v_lshlrev_b32 {v(vph)}, 16, {v(vP + 1)}")
        A(f"v_mul_f32 {v(va2)}, {v(va2)}, {v(vdt)}")
        A(f"v_mul_f32 {v(vph)}, {v(vph)}, {v(vdt)}")
        A(f"v_mul_f32 {v(va2)}, {hex(f2u(-l2e_hi))}, {v(va2)}")
        A(f"v_mul_f32 {v(vph)}, 0.15915494, {v(vph)}")
        Wp = {p: K + 10 + 2 * p for p in range(1, 17)}
        Zp = {p: K + 42 + 2 * p for p in range(1, 8)}
        G = [K + 58, K + 60]
        TT = [K + 62, K + 64, K + 66, K + 68]
        RR = [K + 70, K + 72, K + 74, K + 76]
        CV = K + 80
        A(f"v_add_f32 {v(vdt)}, {v(vdt)}, {v(vdt)}")
        A(f"v_lshlrev_b32 {v(G[0])}, 16, {v(vP + 2)}")
        A(f"v_lshlrev_b32 {v(G[0] + 1)}, 16, {v(vP + 3)}")
        A(f"v_mul_f32 {v(G[0])}, {v(G[0])}, {v(vdt)}")
        A(f"v_mul_f32 {v(G[0] + 1)}, {v(G[0] + 1)}, {v(vdt)}")
        for n, (dst, sc) in enumerate(((Wp[1], 1.0), (Wp[16], 16.0), (Zp[1], 256.0))):
            t = TT[n]
            if sc == 1.0:
                A(f"v_exp_f32 {v(t)}, {v(va2)}")
                A(f"v_fract_f32 {v(t + 1)}, {v(vph)}")
            else:
                A(f"v_mul_f32 {v(t)}, {hex(f2u(sc))}, {v(va2)}")
                A(f"v_mul_f32 {v(t + 1)}, {hex(f2u(sc))}, {v(vph)}")
                A(f"v_exp_f32 {v(t)}, {v(t)}")
                A(f"v_fract_f32 {v(t + 1)}, {v(t + 1)}")
            A(f"v_cos_f32 {v(dst)}, {v(t + 1)}")
            A(f"v_sin_f32 {v(dst + 1)}, {v(t + 1)}")
        for n, dst in enumerate((Wp[1], Wp[16], Zp[1])):
            A(f"v_pk_mul_f32 {v(dst, 2)}, {v(dst, 2)}, {v(TT[n], 2)} op_sel_hi:[1,0]")
        jobs = [(1, Wp[1], None, None, 0), (16, Zp[1], None, None, 0), (47, G[0], None, None, 1)]
        wj = []
        for p in range(2, 16):
            hb = 1 << (p.bit_length() - 1)
            x, y = (p // 2, p // 2) if hb == p else (hb, p - hb)
            wj.append((p, Wp[p], Wp[x], Wp[y], 0))
        gj = [(47 + j, G[j & 1], G[(j - 1) & 1], Wp[16], 1) for j in range(1, 16)]
        zrow = {2: 25, 3: 30, 4: 35, 5: 38, 6: 41, 7: 44}
        zj = []
        for p in range(2, 8):
            hb = 1 << (p.bit_length() - 1)
            x, y = (p // 2, p // 2) if hb == p else (hb, p - hb)
            zj.append((zrow[p], Zp[p], Zp[x], Zp[y], 0))
        tj = [(16 + k, None, Zp[1], Wp[2 * k], 0) for k in range(1, 9)]
        for z in (2, 3):
            tj += [(zrow[z] + k, None, Zp[z], Wp[4 * k], 0) for k in range(1, 5)]
        for z in (4, 5, 6, 7):
            tj += [(zrow[z] + k, None, Zp[z], Wp[8 * k], 0) for k in range(1, 3)]
        first = []
        for i in range(max(len(wj), len(gj), len(zj))):
            for q in (wj, gj, zj):
                if i < len(q):
                    first.append(q[i])
        jobs += first + tj
        A(f"v_mov_b32 {v(CV + 15)}, 0x3f80")
        pend = [(0, CV + 15)]
        slot = 0
        nb = 0
        b1_at = o.get("b1_at", 0)
        batch = o.get("batch", 6)

        def do_b1():
            self.stamp("setup")
            A(f"s_waitcnt vmcnt({1 if o.get('wpf', 1) == 2 else 0})")
            self.stamp("idr")
            A("s_barrier")
            self.stamp("b1")
            if o.get("wpf", 1) == 1:
                A(wpf)
        if b1_at == 0:
            do_b1()
        for n, (row, dst, x, y, conj) in enumerate(jobs):
            if x is not None:
                if dst is None:
                    dst = RR[n & 3]
                for ins in self.cmul(dst, x, y, TT[n & 3]):
                    A(ins)
            A(f"v_cvt_pk_bf16_f32 {v(CV + slot)}, {v(dst)}, {'-' if conj else ''}{v(dst + 1)}")
            pend.append((row, CV + slot))
            slot = (slot + 1) % 15
            if len(pend) >= batch or n == len(jobs) - 1:
                for row_, reg in pend:
                    A(f"ds_write_addtid_b32 {v(reg)} offset:{row_ * ROWB}")
                pend = []
                nb += 1
                if nb == b1_at:
                    do_b1()
        A("s_waitcnt lgkmcnt(0)")
        self.stamp("kgen1")
        A("s_barrier")
        if o.get("wpf", 1) == 3:
            A(wpf)
        fB, fA0, fA1 = K, K + 32, K + 64
        for s in range(4):
            A(f"ds_read_b128 {v(fB + 4 * s, 4)}, {v(vKB)} offset:{47 * ROWB + 64 * s}")
            A(f"ds_read_b128 {v(fA0 + 4 * s, 4)}, {v(vKA0)} offset:{64 * s}")
            A(f"ds_read_b128 {v(fA1 + 4 * s, 4)}, {v(vKA1)} offset:{64 * s}")
        D0, D1 = vACC, vACC + 4
        for s in range(8):
            s2 = s + 4
            A(f"s_waitcnt lgkmcnt({9 if s2 < 8 else 3 * (7 - s)})")
            c0 = "0" if s == 0 else v(D0, 4)
            c1 = "0" if s == 0 else v(D1, 4)
            A(f"v_mfma_f32_16x16x32_bf16 {v(D0, 4)}, {v(fA0 + 4 * s, 4)}, {v(fB + 4 * s, 4)}, {c0}")
            if s2 < 8:
                A(f"ds_read_b128 {v(fB + 4 * s2, 4)}, {v(vKB)} offset:{47 * ROWB + 64 * s2}")
                A(f"ds_read_b128 {v(fA0 + 4 * s2, 4)}, {v(vKA0)} offset:{64 * s2}")
            A(f"v_mfma_f32_16x16x32_bf16 {v(D1, 4)}, {v(fA1 + 4 * s, 4)}, {v(fB + 4 * s, 4)}, {c1}")
            if s2 < 8:
                A(f"ds_read_b128 {v(fA1 + 4 * s2, 4)}, {v(vKA1)} offset:{64 * s2}")
        E = K + 96
        A(f"s_bitcmp1_b32 s{sWAVE}, 0")
        A(f"v_cmp_eq_u32 vcc, 0, {v(vLANE)}")
        A("s_nop 5")
        A("s_cbranch_scc0 L_exp_lo")
        seq2 = ["aa", "aa", "aa", "ba", "bb", "bb", "cb", "cc"]
        seq3 = ["aa", "aa", "aa", "aa", "aa", "ba", "bb", "bb", "bb", "bb", "cb", "cc", "cc", "cc"]
        ix = {"a": 0, "b": 1, "c": 2}
        for k, s in enumerate(seq3):
            A(f"v_cvt_pk_bf16_f32 {v(E + 8 + k)}, {v(D1 + ix[s[0]])}, {v(D1 + ix[s[1]])}")
        for k, w in enumerate((0, 4, 6, 10)):
            A(f"ds_write_b128 {v(vPW1)}, {v(E + 8 + w, 4)} offset:{16 * k}")
        for k, s in enumerate(seq2):
            A(f"v_cvt_pk_bf16_f32 {v(E + k)}, {v(D0 + ix[s[0]])}, {v(D0 + ix[s[1]])}")
        A(f"ds_write_b128 {v(vPW0)}, {v(E, 4)}")
        A(f"ds_write_b128 {v(vPW0)}, {v(E + 4, 4)} offset:16")
        A("L_exp_done:")
        T = self.tail
        T("L_exp_lo:")
        T(f"v_mov_b32_dpp {v(D1 + 3)}, {v(D1 + 3)} row_ror:1 row_mask:0x1 bank_mask:0xf")
        T(f"v_cvt_pk_bf16_f32 {v(E + 1)}, {v(D0 + 1)}, {v(D0)}")
        T(f"v_cvt_pk_bf16_f32 {v(E + 2)}, {v(D0 + 2)}, {v(D0 + 1)}")
        T(f"v_cvt_pk_bf16_f32 {v(E + 3)}, {v(D0 + 3)}, {v(D0 + 2)}")
        T(f"v_cndmask_b32 {v(E + 8)}, {v(D1 + 3)}, 0, vcc")
        T(f"v_cndmask_b32 {v(E + 9)}, {v(D1)}, {v(D1 + 3)}, vcc")
        T(f"v_cvt_pk_bf16_f32 {v(E)}, {v(D0)}, {v(E + 8)}")
        T(f"v_cvt_pk_bf16_f32 {v(E + 4)}, {v(D1)}, {v(E + 9)}")
        T(f"v_cvt_pk_bf16_f32 {v(E + 5)}, {v(D1)}, {v(D1)}")
        T(f"v_cvt_pk_bf16_f32 {v(E + 6)}, {v(D1 + 1)}, {v(D1)}")
        T(f"v_cvt_pk_bf16_f32 {v(E + 7)}, {v(D1 + 2)}, {v(D1 + 1)}")
        T(f"ds_write_b128 {v(vPW0)}, {v(E, 4)}")
        T(f"ds_write_b128 {v(vPW1)}, {v(E + 4, 4)}")
        T("s_branch L_exp_done")
        A("s_waitcnt lgkmcnt(0)")
        self.stamp("kgen2")
        A("s_barrier")
        if o.get("wpf", 1) == 4:
            A(wpf)

        def rdA(buf, rho, m):
            return [f"ds_read2_b32 {v(buf + 4 * m, 2)}, {v(vAA + m)} offset0:{64 * rho + 6} offset1:{64 * rho + 4}",
                    f"ds_read2_b32 {v(buf + 4 * m + 2, 2)}, {v(vAA + m)} offset0:{64 * rho + 2} offset1:{64 * rho}"]

        def rdB(buf, rho, n):
            return [f"ds_read_b128 {v(buf + 4 * n, 4)}, {v(vBA)} offset:{128 * (3 - rho) + 512 * (7 - n)}"]

        for m in range(8):
            for l in rdA(vA0, 0, m):
                A(l)
        A(f"s_mul_i32 s{sTMP}, s{sL}, {RS}")
        A(f"s_lshl_b32 s{sTMP + 1}, s{sWAVE}, 11")
        A(f"s_add_u32 s{sTMP}, s{sTMP}, s{sTMP + 1}")
        A(f"s_add_u32 s{sTMP}, s{sTMP}, {W_REG + O_X2}")
        A(f"v_lshl_add_u32 {v(vT)}, {v(vLANE)}, 4, s{sTMP}")
        A(f"v_lshlrev_b32 {v(vT + 1)}, {KS}, v0")
        A(f"v_add_u32 {v(vT + 1)}, {W_KEY}, {v(vT + 1)}")
        A(f"s_lshl_b32 s{sTMP}, s{sWAVE}, 2")
        A(f"s_add_u32 s{sTMP}, s{sTMP}, {L_REDK}")
        A(f"v_mov_b32 {v(vT + 3)}, s{sTMP}")
        A("s_waitcnt lgkmcnt(0)")
        self.stamp("apre")
        A("s_barrier")
        self.stamp("b3")
        if o.get("wpf", 1) == 5:
            A(wpf)
        if o.get("prio", 1):
            A("s_setprio 2")

        bufA, bufB = [vA0, vA1], [vB0, vB1]
        for n in range(7, -1, -1):
            for l in rdB(vB0, 0, n):
                A(l)
        started = set()
        for rho in range(4):
            a_, b_ = bufA[rho & 1], bufB[rho & 1]
            order = [(n - 7 + tb, tb, n) for n in range(7, -1, -1) for tb in range(7 - n, 8)]
            if rho == 3:
                order = [(n - 7 + tb, tb, n) for tb in range(8) for n in range(7 - tb, 8)]
            fill = []
            if rho + 1 < 4:
                nb_, na_ = bufB[(rho + 1) & 1], bufA[(rho + 1) & 1]
                for m in range(8):
                    fill += rdB(nb_, rho + 1, 7 - m)
                    fill += rdA(na_, rho + 1, m)
            issued = 0
            seen = set()
            done_at = {}
            for i, (m, tb, n) in enumerate(order):
                done_at[tb] = i
            for i, (m, tb, n) in enumerate(order):
                if rho == 0 and n not in seen:
                    A(f"s_waitcnt lgkmcnt({min(15, n + issued)})")
                    seen.add(n)
                elif i == 0:
                    A("s_waitcnt lgkmcnt(0)")
                acc = v(vACC + 4 * tb, 4)
                c = acc if tb in started else "0"
                started.add(tb)
                A(f"v_mfma_f32_16x16x32_bf16 {acc}, {v(a_ + 4 * m, 4)}, {v(b_ + 4 * n, 4)}, {c}")
                if i >= 1 and fill:
                    A(fill.pop(0))
                    issued += 1
                if rho == 3:
                    for t in range(7):
                        if done_at[t] + 8 == i or (i == len(order) - 1 and done_at[t] + 8 > i):
                            A(f"ds_write_b128 {v(vEW)}, {v(vACC + 4 * t, 4)} offset:{t * TBS}")
            assert not fill
        A(f"ds_write_b128 {v(vEW)}, {v(vACC + 28, 4)} offset:{7 * TBS}")
        self.stamp("conv")
        A("s_waitcnt lgkmcnt(0)")
        A("s_barrier")
        for i in range(2):
            for s in range(4):
                A(f"ds_read_b128 {v(K + 16 * i + 4 * s, 4)}, {v(vER)} offset:{s * 8 * TBS + i * TBS}")
        for i in range(2):
            A(f"s_waitcnt lgkmcnt({4 * (1 - i)})")
            b0 = K + 16 * i
            for c in range(2):
                for h in range(2):
                    A(f"v_pk_add_f32 {v(b0 + 8 * c + 2 * h, 2)}, {v(b0 + 8 * c + 2 * h, 2)}, {v(b0 + 8 * c + 4 + 2 * h, 2)}")
            for c in range(2):
                for h in range(2):
                    A(f"v_cvt_pk_bf16_f32 {v(K + 32 + 4 * i + 2 * c + h)}, {v(b0 + 8 * c + 2 * h)}, {v(b0 + 8 * c + 2 * h + 1)}")
            A(f"global_store_dwordx4 {v(vT)}, {v(K + 32 + 4 * i, 4)}, {sp(sWS)} offset:{1024 * i} sc1")
        self.stamp("x2st")
        A("s_waitcnt vmcnt(0)")
        self.stamp("x2dr")
        A("s_barrier")
        A(f"s_cmp_eq_u32 s{sWAVE}, 0")
        A("s_cbranch_scc0 L_cfin")
        for q in range(1, 4):
            A(f"v_add_u32 {v(vT + 8 + q)}, {(64 * q) << KS}, {v(vT + 1)}")
        A("s_barrier")
        self.key_calc(K, vRA, vLANE)
        A("s_mov_b64 exec, 1")
        A(f"global_store_dword {v(22)}, {v(K + 8)}, {sp(sWS)} sc1")
        A("s_mov_b64 exec, -1")
        self.stamp("key")
        A("s_waitcnt vmcnt(0)")
        self.stamp("keydr")
        k2 = vT + 4
        kl = [f"global_load_dword {v(K + q)}, {v(vT + 8 + q) if q else v(vT + 1)}, {sp(sWS)} sc1" for q in range(4)]
        for l in kl:
            A(l)
        A("s_waitcnt vmcnt(0)")
        self.poll("key", kl, [f"v_max3_u32 {v(k2)}, {v(K)}, {v(K + 1)}, {v(K + 2)}",
                              f"v_max_u32 {v(k2)}, {v(k2)}, {v(K + 3)}",
                              f"v_cmp_eq_u32 vcc, -1, {v(k2)}"])
        self.stamp("keyld")
        A(f"v_max_u32_dpp {v(k2)}, {v(k2)}, {v(k2)} quad_perm:[1,0,3,2] row_mask:0xf bank_mask:0xf")
        A(f"v_max_u32_dpp {v(k2)}, {v(k2)}, {v(k2)} quad_perm:[2,3,0,1] row_mask:0xf bank_mask:0xf")
        A(f"v_max_u32_dpp {v(k2)}, {v(k2)}, {v(k2)} row_half_mirror row_mask:0xf bank_mask:0xf")
        A(f"v_max_u32_dpp {v(k2)}, {v(k2)}, {v(k2)} row_mirror row_mask:0xf bank_mask:0xf")
        A(f"v_max_u32_dpp {v(k2)}, {v(k2)}, {v(k2)} row_bcast:15 row_mask:0xa bank_mask:0xf")
        A(f"v_max_u32_dpp {v(k2)}, {v(k2)}, {v(k2)} row_bcast:31 row_mask:0xc bank_mask:0xf")
        A("s_mov_b32 exec_lo, 0")
        A("s_brev_b32 exec_hi, 1")
        A(f"ds_write_b32 {v(vT + 3)}, {v(k2)}")
        A("s_waitcnt lgkmcnt(0)")
        A("s_barrier")
        A("L_cfin:")
        self.finish("C")

    def text(self):
        lines = self.build()
        src = open("sequential_preLN__ssm_conv_s4d__moe_arch_mod__prompt.s.ref").read()
        head = [l for l in src.split("\n") if l.startswith(";") and "@launch" not in l]
        head = head[:head.index("; Override launch geometry by editing the next line (default: block=256,")]
        out = head + [f"; @launch grid=(256,1,1) block=(512,1,1) lds={LDS_BYTES}",
                      '.amdgcn_target "amdgcn-amd-amdhsa--gfx950"', ".text", f".globl {KNAME}", ".p2align 8",
                      f".type {KNAME},@function"]
        out += [l if l.endswith(":") else "    " + l for l in lines]
        out += [".section .rodata,\"a\"", ".p2align 6", f".amdhsa_kernel {KNAME}",
                "  .amdhsa_next_free_vgpr 224", "  .amdhsa_next_free_sgpr 102", "  .amdhsa_accum_offset 224",
                "  .amdhsa_group_segment_fixed_size 0", "  .amdhsa_kernarg_size 120", "  .amdhsa_user_sgpr_count 2",
                "  .amdhsa_user_sgpr_kernarg_segment_ptr 1", "  .amdhsa_system_sgpr_workgroup_id_x 1",
                ".end_amdhsa_kernel", ""]
        return "\n".join(out)


if __name__ == "__main__":
    out = sys.argv[1]
    opts = {}
    stamp = False
    for a in sys.argv[2:]:
        if a == "stamp":
            stamp = True
        else:
            k, val = a.split("=")
            opts[k] = int(val)
    g = Gen(stamp, opts)
    open(out, "w").write(g.text())
    if stamp:
        open(out + ".names", "w").write(" ".join(g.allnames["R"]) + "\n" + " ".join(g.allnames["C"]))
    print(g.info, "lds", LDS_BYTES)
```

```python
import sys
import struct
from asmlib import Asm, align8

KNAME = "sequential_preLN__ssm_conv_s4d__moe_arch_mod__prompt_kernel"


def f2u(x):
    return struct.unpack("<I", struct.pack("<f", x))[0]


W_FLAG = 0x1000 + (int(__import__('os').environ.get('WOFF', '0')) << 20)
W_KEY = 0x9000 + (int(__import__('os').environ.get('WOFF', '0')) << 20)
W_FLAG2 = 0x11000 + (int(__import__('os').environ.get('WOFF', '0')) << 20)
import os
WOFF = int(os.environ.get('WOFF', '0')) << 20
W_REG = 0x38000 + WOFF
RS = 20608
O_X1, O_X2, O_SLOT, O_PART = 0, 8192, 16384, 18432
W_STAMP = 0x800000
ROWB = 544
TABC = 63 * ROWB
L_TAB = 0
L_P = 68608
PC = 8256
L_U = L_P + 2 * PC
UC = 4608
L_RED1 = (L_U + 2 * UC + 255) // 256 * 256
L_RED2 = L_RED1 + 256
L_SUMW = L_RED2 + 384
L_REDK = L_SUMW + 16
L_REDF = L_REDK + 16
LDS_BYTES = L_REDF + 256
L_EPI = 0
TBS = 1152
sX, sLA, sAI, sCR, sCI, sLDT, sD = 4, 6, 8, 10, 12, 14, 16
sWR, sWG, sWU, sWD, sOUT, sDBG, sWS = 20, 22, 24, 26, 28, 30, 32
sL, sPOS, sXCD, sWAVE, sG, sDT, sT0, sT1, sSPIN, sF = 34, 35, 36, 37, 38, 39, 40, 41, 42, 43
sODD = 44
sSELLO, sSELHI, sONES, sMASK = 46, 47, 48, 49
sWSEL = 50
sBEST, sWIN, sRP0, sRP1 = 52, 53, 54, 55
sH = 56
sE = 64
sTMP = 66
sOWN = 71
sSTAMP = 72


def sp(r):
    return f"s[{r}:{r + 1}]"


def v(r, n=1):
    return f"v{r}" if n == 1 else f"v[{r}:{r + n - 1}]"


class Gen:
    def __init__(self, stamp=False, opts=None):
        self.A = Asm()
        self.tail = Asm()
        self.stamp_on = stamp
        self.nstamp = 0
        self.names = []
        self.o = dict(opts or {})

    def stamp(self, name):
        if not self.stamp_on:
            return
        k = self.nstamp
        self.nstamp += 1
        self.names.append(name)
        assert sSTAMP + k < 100
        self.A(f"s_memrealtime s[100:101]")
        self.A("s_waitcnt lgkmcnt(0)")
        self.A(f"s_mov_b32 s{sSTAMP + k}, s100")

    def poll(self, name, loads, check, base_exec="-1"):
        A = self.A
        for c in check:
            A(c)
        A(f"s_cbranch_vccnz L_retry_{name}")
        A(f"L_ok_{name}:")
        T = self.tail
        T(f"L_retry_{name}:")
        T(f"s_mov_b32 s{sSPIN}, 0x40000")
        T(f"L_again_{name}:")
        T(f"s_sub_u32 s{sSPIN}, s{sSPIN}, 1")
        T(f"s_cbranch_scc1 L_ok_{name}")
        T("s_mov_b64 exec, vcc")
        for l in loads:
            T(l)
        T("s_waitcnt vmcnt(0)")
        for c in check:
            T(c)
        T(f"s_mov_b64 exec, {base_exec}")
        T(f"s_cbranch_vccnz L_again_{name}")
        T(f"s_branch L_ok_{name}")

    def cmul(self, d, x, y, t):
        return [f"v_pk_mul_f32 {v(t, 2)}, {v(x, 2)}, {v(y, 2)} op_sel:[0,0] op_sel_hi:[0,1]",
                f"v_pk_fma_f32 {v(d, 2)}, {v(x, 2)}, {v(y, 2)}, {v(t, 2)} op_sel:[1,1,0] op_sel_hi:[1,0,1] neg_lo:[1,0,0]"]

    def reduce8(self, V, t):
        A = self.A
        for i in range(4):
            A(f"v_add_f32_dpp {v(V[i])}, {v(V[i])}, {v(V[i])} row_ror:8 row_mask:0xf bank_mask:0x3")
        for i in range(4):
            A(f"v_add_f32_dpp {v(V[i])}, {v(V[i + 4])}, {v(V[i + 4])} row_ror:8 row_mask:0xf bank_mask:0xc")
        for i in range(2):
            A(f"v_add_f32_dpp {v(V[i])}, {v(V[i])}, {v(V[i])} row_shl:4 row_mask:0xf bank_mask:0x5")
        for i in range(2):
            A(f"v_add_f32_dpp {v(V[i])}, {v(V[i + 2])}, {v(V[i + 2])} row_shr:4 row_mask:0xf bank_mask:0xa")
        A(f"v_permlane32_swap_b32 {v(V[0])}, {v(V[1])}")
        A(f"v_add_f32 {v(V[0])}, {v(V[0])}, {v(V[1])}")
        A(f"v_add_f32_dpp {v(V[0])}, {v(V[0])}, {v(V[0])} quad_perm:[2,3,0,1] row_mask:0xf bank_mask:0xf")
        A(f"v_mov_b32 {v(t)}, {v(V[0])}")
        A(f"v_permlane16_swap_b32 {v(V[0])}, {v(t)}")
        A(f"v_add_f32 {v(V[0])}, {v(V[0])}, {v(t)}")

    def row_stats(self, S, Q, negm, rinv, t):
        A = self.A
        A(f"v_pk_add_f32 {v(S, 2)}, {v(S, 2)}, {v(S + 2, 2)}")
        A(f"v_pk_add_f32 {v(Q, 2)}, {v(Q, 2)}, {v(Q + 2, 2)}")
        A(f"v_add_f32 {v(S)}, {v(S)}, {v(S + 1)}")
        A(f"v_add_f32 {v(Q)}, {v(Q)}, {v(Q + 1)}")
        A(f"v_mul_f32 {v(S)}, {hex(f2u(1 / 512))}, {v(S)}")
        A(f"v_mul_f32 {v(Q)}, {hex(f2u(1 / 512))}, {v(Q)}")
        A(f"v_fma_f32 {v(Q)}, -{v(S)}, {v(S)}, {v(Q)}")
        A(f"v_max_f32 {v(Q)}, 0, {v(Q)}")
        A(f"v_cvt_pk_bf16_f32 {v(t)}, -{v(S)}, {v(Q)}")
        A(f"v_and_b32 {v(Q)}, s{sMASK}, {v(t)}")
        A(f"v_add_f32 {v(Q)}, {hex(f2u(1e-5))}, {v(Q)}")
        A(f"v_cvt_pk_bf16_f32 {v(Q)}, {v(Q)}, {v(Q)}")
        A(f"v_and_b32 {v(Q)}, s{sMASK}, {v(Q)}")
        A(f"v_sqrt_f32 {v(Q)}, {v(Q)}")
        A(f"v_lshlrev_b32 {v(negm)}, 16, {v(t)}")
        A(f"v_cvt_pk_bf16_f32 {v(Q)}, {v(Q)}, {v(Q)}")
        A(f"v_and_b32 {v(Q)}, s{sMASK}, {v(Q)}")
        A(f"v_rcp_f32 {v(rinv)}, {v(Q)}")

    def spread(self, val, dst, t):
        A = self.A
        for r in range(4):
            A(f"v_mov_b32_dpp {v(t + r)}, {v(val)} row_newbcast:{4 + r} row_mask:0xf bank_mask:0xf")
        for r in range(4):
            A(f"v_cndmask_b32_dpp {v(dst + r)}, {v(val)}, {v(t + r)}, vcc row_newbcast:{r} row_mask:0xf bank_mask:0xf")

    def key_calc(self, K, vRA, vLANE):
        A = self.A
        A(f"v_mov_b32 {v(K + 14)}, {L_SUMW}")
        A(f"ds_read_b128 {v(K, 4)}, {v(vRA)} offset:{L_RED2 - L_RED1}")
        A(f"ds_read_b128 {v(K + 4, 4)}, {v(vRA)} offset:{L_RED2 - L_RED1 + 128}")
        A(f"ds_read_b128 {v(K + 8, 4)}, {v(vRA)} offset:{L_RED2 - L_RED1 + 256}")
        A(f"ds_read_b32 {v(K + 15)}, {v(K + 14)}")
        A(f"s_lshl_b32 s{sTMP}, s{sL}, 3")
        A(f"s_sub_u32 s{sTMP}, 2047, s{sTMP}")
        A(f"v_and_b32 {v(K + 14)}, 7, {v(vLANE)}")
        A(f"v_sub_u32 {v(K + 14)}, s{sTMP}, {v(K + 14)}")
        A("s_waitcnt lgkmcnt(2)")
        self.row_stats(K, K + 4, K + 12, K + 13, K + 28)
        A("s_waitcnt lgkmcnt(0)")
        A(f"v_pk_add_f32 {v(K + 8, 2)}, {v(K + 8, 2)}, {v(K + 10, 2)}")
        A(f"v_add_f32 {v(K + 8)}, {v(K + 8)}, {v(K + 9)}")
        A(f"v_fmac_f32 {v(K + 8)}, {v(K + 12)}, {v(K + 15)}")
        A(f"v_mul_f32 {v(K + 8)}, {v(K + 8)}, {v(K + 13)}")
        A(f"v_ashrrev_i32 {v(K + 9)}, 31, {v(K + 8)}")
        A(f"v_or_b32 {v(K + 9)}, 0x80000000, {v(K + 9)}")
        A(f"v_xor_b32 {v(K + 8)}, {v(K + 8)}, {v(K + 9)}")
        A(f"v_and_b32 {v(K + 8)}, 0xfffff800, {v(K + 8)}")
        A(f"v_or_b32 {v(K + 8)}, {v(K + 8)}, {v(K + 14)}")
        A(f"v_min_u32 {v(K + 8)}, -2, {v(K + 8)}")
        A(f"v_max_u32_dpp {v(K + 8)}, {v(K + 8)}, {v(K + 8)} quad_perm:[1,0,3,2] row_mask:0xf bank_mask:0xf")
        A(f"v_max_u32_dpp {v(K + 8)}, {v(K + 8)}, {v(K + 8)} quad_perm:[2,3,0,1] row_mask:0xf bank_mask:0xf")
        A(f"v_max_u32_dpp {v(K + 8)}, {v(K + 8)}, {v(K + 8)} row_half_mirror row_mask:0xf bank_mask:0xf")

    def finish(self, role):
        A = self.A
        o = self.o
        if self.stamp_on:
            self.stamp("end")
            self.allnames[role] = self.names
        if self.stamp_on and "probe" in o:
            k = o["probe"]
            if k < 0 and role == "R":
                A(f"s_mov_b32 s{sTMP}, {-k}")
            elif k >= 0 and (k >= 100) == (role == "C"):
                A(f"s_sub_u32 s{sTMP}, s{sSTAMP + k % 100}, s{sSTAMP}")
                A(f"s_cmp_lt_u32 s{sTMP}, 3000")
                A(f"s_cselect_b32 s{sTMP}, s{sTMP}, 0")
                A(f"s_mul_i32 s{sTMP}, s{sTMP}, 20")
                A(f"s_add_u32 s{sTMP}, s{sTMP}, 2000")
                if role == "C":
                    A(f"s_cmp_eq_u32 s{sWAVE}, 0")
                    A(f"s_cselect_b32 s{sTMP}, s{sTMP}, 0")
            else:
                A(f"s_mov_b32 s{sTMP}, 0")
            A(f"L_spin{role}:")
            A("s_memrealtime s[100:101]")
            A("s_waitcnt lgkmcnt(0)")
            A(f"s_sub_u32 s100, s100, s{sSTAMP}")
            A(f"s_cmp_lt_u32 s100, s{sTMP}")
            A(f"s_cbranch_scc1 L_spin{role}")
        elif self.stamp_on:
            A("s_mov_b64 exec, 1")
            A(f"s_lshl_b32 s{sTMP}, s2, 3")
            A(f"s_add_u32 s{sTMP}, s{sTMP}, s{sWAVE}")
            if role == "C":
                A(f"s_add_u32 s{sTMP}, s{sTMP}, 4")
            A(f"s_lshl_b32 s{sTMP}, s{sTMP}, 7")
            A(f"s_add_u32 s{sTMP}, s{sTMP}, {W_STAMP}")
            A(f"v_mov_b32 v1, s{sTMP}")
            for k in range(self.nstamp):
                A(f"v_mov_b32 v2, s{sSTAMP + k}")
                A(f"global_store_dword v1, v2, {sp(sWS)} offset:{4 * k}")
        A("s_endpgm")

    def build(self):
        A = self.A
        self.allnames = {}
        A(f"{KNAME}:")
        A("s_cmp_ge_u32 s2, 256")
        A("s_cbranch_scc1 L_end")
        self.stamp("start")
        if self.o.get("codepf", 1):
            A(f"s_getpc_b64 {sp(sE)}")
            A("L_pc:")
            A("v_lshlrev_b32 v2, 5, v0")
            A(f"v_min_u32 v2, L_codeend-L_pc-4, v2")
            A(f"global_load_dword v3, v2, {sp(sE)}")
        A("s_load_dwordx16 s[4:19], s[0:1], 0")
        A("s_load_dwordx8 s[20:27], s[0:1], 64")
        A("s_load_dwordx4 s[28:31], s[0:1], 96")
        A("s_load_dwordx2 s[32:33], s[0:1], 112")
        A("v_lshrrev_b32 v4, 6, v0")
        A(f"s_and_b32 s{sXCD}, s2, 7")
        A(f"v_readfirstlane_b32 s{sWAVE}, v4")
        A(f"s_lshr_b32 s{sPOS}, s2, 3")
        A(f"s_lshl_b32 s{sL}, s{sXCD}, 5")
        A(f"s_add_u32 s{sL}, s{sL}, s{sPOS}")
        A("v_and_b32 v1, 63, v0")
        A(f"s_mov_b32 s{sMASK}, 0xffff0000")
        A(f"s_cmp_ge_u32 s{sWAVE}, 4")
        A("s_cbranch_scc1 L_chan")
        self.rows()
        self.names = self.names[:1]
        self.nstamp = min(self.nstamp, 1)
        A(".p2align 6")
        self.chans()
        A("L_end:")
        A("s_endpgm")
        for l in self.tail.L:
            A(l)
        A("L_codeend:")
        lines, nops = A.padded()
        lines, nbytes, promoted, missed = align8(lines)
        self.info = dict(nops=nops, bytes=nbytes, promoted=promoted, missed=missed, lines=len(lines))
        return lines

    def rows(self):
        A = self.A
        o = self.o
        vLANE = 1
        vX, vU, vD, vWR = 212, 10, 18, 20
        vREG, vRD, vAUX = 22, 23, 24
        vKEY, vSW, vRA, vFL, vUW = 26, 27, 28, 29, 30
        vT = 32
        vWG, vWD = 40, 72
        vY = 88
        vONE = 96
        K = 100
        L2E = 1.4426950408889634
        A(f"v_lshrrev_b32 {v(vT)}, 1, v0")
        A(f"v_and_b32 {v(vT + 1)}, 1, v0")
        A(f"v_lshlrev_b32 {v(vT + 2)}, 3, {v(vT)}")
        A(f"s_lshl_b32 s{sT0}, s{sL}, 13")
        A(f"v_lshl_add_u32 {v(vRD)}, {v(vT + 1)}, 12, {v(vT + 2)}")
        A(f"v_add_u32 {v(vRD)}, s{sT0}, {v(vRD)}")
        A(f"s_mul_i32 s{sOWN}, s{sL}, {RS}")
        A(f"s_add_u32 s{sOWN}, s{sOWN}, {W_REG}")
        A(f"s_add_u32 s{sT0}, s{sOWN}, 4096")
        A(f"v_lshl_add_u32 {v(vREG)}, v0, 4, s{sT0}")
        A(f"v_lshlrev_b32 {v(vT + 3)}, 4, {v(vLANE)}")
        nt = ' nt' if o.get('ntx', 1) else ''
        A("s_waitcnt lgkmcnt(0)")
        self.stamp("karg")
        for r in range(4):
            A(f"global_load_dwordx2 {v(vX + 2 * r, 2)}, {v(vRD)}, {sp(sX)} offset:{1024 * r}{nt}")
        A(f"s_load_dword s{sG}, {sp(sWS)}, 0")
        A(f"global_load_dwordx2 {v(vD, 2)}, {v(vT + 2)}, {sp(sD)}")
        A(f"global_load_dwordx2 {v(vWR, 2)}, {v(vT + 2)}, {sp(sWR)}")
        A(f"global_load_dwordx4 {v(vONE, 4)}, {v(vT + 3)}, {sp(sWR)}")
        A(f"s_mov_b32 s{sODD}, 0xaaaaaaaa")
        A(f"s_mov_b32 s{sODD + 1}, 0xaaaaaaaa")
        A(f"s_mov_b32 s{sSELLO}, 0x3f80")
        A(f"s_mov_b32 s{sSELHI}, 0x3f800000")
        A(f"s_mov_b32 s{sONES}, 0x3f803f80")
        A(f"s_and_b32 s{sTMP}, s{sL}, 1")
        A(f"s_lshl_b32 s{sTMP}, s{sTMP}, 12")
        A(f"s_lshr_b32 s{sTMP + 1}, s{sL}, 1")
        A(f"s_lshl_b32 s{sTMP + 1}, s{sTMP + 1}, 5")
        A(f"s_add_u32 s{sTMP}, s{sTMP}, s{sTMP + 1}")
        A(f"s_add_u32 s{sTMP}, s{sTMP}, {W_REG + O_X1}")
        A(f"v_mul_u32_u24 {v(vAUX)}, {RS}, {v(vT)}")
        A(f"v_lshl_add_u32 {v(vAUX)}, {v(vT + 1)}, 4, {v(vAUX)}")
        A(f"v_add_u32 {v(vAUX)}, s{sTMP}, {v(vAUX)}")
        A(f"v_add_u32 {v(vAUX + 1)}, {128 * RS}, {v(vAUX)}")
        FS = o.get("fs", 5)
        KS = o.get("ks", 5)
        A(f"v_lshlrev_b32 {v(vFL)}, {FS}, {v(vT)}")
        A(f"v_add_u32 {v(vFL)}, {W_FLAG}, {v(vFL)}")
        A(f"v_add_u32 {v(vFL + 2)}, {128 << FS}, {v(vFL)}")
        A(f"s_lshl_b32 s{sT0}, s{sL}, {FS}")
        A(f"s_add_u32 s{sT0}, s{sT0}, {W_FLAG}")
        A(f"v_mov_b32 {v(vKEY)}, s{sT0}")
        A(f"v_lshlrev_b32 {v(vSW)}, 6, {v(vT + 1)}")
        A(f"v_and_b32 {v(vT + 3)}, 4, {v(vLANE)}")
        A(f"v_lshl_add_u32 {v(vSW)}, {v(vT + 3)}, 3, {v(vSW)}")
        A(f"v_and_b32 {v(vT + 3)}, 8, {v(vLANE)}")
        A(f"v_lshl_add_u32 {v(vSW)}, {v(vT + 3)}, 4, {v(vSW)}")
        A(f"v_lshrrev_b32 {v(vT + 3)}, 5, {v(vLANE)}")
        A(f"v_lshl_add_u32 {v(vSW)}, {v(vT + 3)}, 4, {v(vSW)}")
        A(f"s_lshl_b32 s{sTMP}, s{sWAVE}, 2")
        A(f"s_add_u32 s{sTMP}, s{sTMP}, {L_RED1}")
        A(f"v_add_u32 {v(vSW)}, s{sTMP}, {v(vSW)}")
        A(f"v_and_b32 {v(vT + 3)}, 7, {v(vLANE)}")
        A(f"v_lshlrev_b32 {v(vRA)}, 4, {v(vT + 3)}")
        A(f"v_add_u32 {v(vRA)}, {L_RED1}, {v(vRA)}")
        A(f"v_lshlrev_b32 {v(vUW)}, 3, v0")
        A(f"v_mov_b32 {v(K)}, 0")
        A(f"v_mov_b32 {v(K + 1)}, 0")
        A(f"v_min_u32 {v(vT + 3)}, 472, {v(vUW)}")
        A(f"v_add_u32 {v(vT + 3)}, {L_U}, {v(vT + 3)}")
        A(f"v_min_u32 {v(vT + 4)}, 56, {v(vUW)}")
        A(f"v_add_u32 {v(vT + 4)}, {L_P}, {v(vT + 4)}")
        A(f"ds_write2st64_b64 {v(vT + 3)}, {v(K, 2)}, {v(K, 2)} offset0:0 offset1:9")
        A(f"ds_write_b64 {v(vT + 4)}, {v(K, 2)}")
        A(f"ds_write_b64 {v(vT + 4)}, {v(K, 2)} offset:{PC}")
        A(f"v_add_u32 {v(vUW)}, {L_U + 480}, {v(vUW)}")

        V = [K + i for i in range(8)]
        A("s_waitcnt vmcnt(3)")
        self.stamp("x")
        for r in range(4):
            A(f"v_dot2_f32_bf16 {v(V[r])}, {v(vX + 2 * r)}, s{sONES}, 0")
        for r in range(4):
            A(f"v_dot2_f32_bf16 {v(V[4 + r])}, {v(vX + 2 * r)}, {v(vX + 2 * r)}, 0")
        for r in range(4):
            A(f"v_dot2_f32_bf16 {v(V[r])}, {v(vX + 2 * r + 1)}, s{sONES}, {v(V[r])}")
        for r in range(4):
            A(f"v_dot2_f32_bf16 {v(V[4 + r])}, {v(vX + 2 * r + 1)}, {v(vX + 2 * r + 1)}, {v(V[4 + r])}")
        self.reduce8(V, K + 8)
        A(f"ds_write_b32 {v(vSW)}, {v(V[0])}")
        A("s_waitcnt lgkmcnt(0)")
        A("s_barrier")
        self.stamp("b1")
        A(f"ds_read_b128 {v(K, 4)}, {v(vRA)}")
        A(f"ds_read_b128 {v(K + 4, 4)}, {v(vRA)} offset:128")
        A(f"s_add_u32 s{sG}, s{sG}, 0x9e3779b9")
        A(f"v_mov_b32 {v(K + 8)}, s{sG}")
        A(f"s_cmp_eq_u32 s{sWAVE}, 0")
        A("s_cselect_b64 exec, 1, 0")
        A(f"global_store_dword {v(vKEY)}, {v(K + 8)}, {sp(sWS)} sc1")
        A("s_mov_b64 exec, -1")
        A(f"s_mov_b64 vcc, {sp(sODD)}")
        A("s_waitcnt lgkmcnt(0)")
        vNM, vRI = K + 16, K + 20
        self.row_stats(K, K + 4, K + 10, K + 11, K + 12)
        self.spread(K + 10, vNM, K + 24)
        Dd = K + 32
        for c in range(4):
            for r in range(4):
                A(f"v_dot2_f32_bf16 {v(Dd + 4 * c + r)}, {v(vX + 2 * r + (c >> 1))}, s{sSELHI if c & 1 else sSELLO}, {v(vNM + r)}")
        self.spread(K + 11, vRI, K + 24)
        Pk = K + 48
        for half in range(2):
            ks = range(4 * half, 4 * half + 4)
            for k in ks:
                A(f"v_cvt_pk_bf16_f32 {v(Pk + k)}, {v(Dd + 2 * k)}, {v(Dd + 2 * k + 1)}")
            for k in ks:
                A(f"v_lshlrev_b32 {v(Dd + 2 * k)}, 16, {v(Pk + k)}")
                A(f"v_and_b32 {v(Dd + 2 * k + 1)}, s{sMASK}, {v(Pk + k)}")
            for k in ks:
                A(f"v_pk_mul_f32 {v(Dd + 2 * k, 2)}, {v(Dd + 2 * k, 2)}, {v(vRI + 2 * (k & 1), 2)}")
            for k in ks:
                A(f"v_cvt_pk_bf16_f32 {v(vU + k)}, {v(Dd + 2 * k)}, {v(Dd + 2 * k + 1)}")
            A(f"global_store_dwordx4 {v(vREG)}, {v(vU + 4 * half, 4)}, {sp(sWS)} offset:{-4096 + 4096 * half} sc1")
        self.stamp("x1st")
        fl = [f"global_load_dword {v(vT + 4)}, {v(vFL)}, {sp(sWS)} sc1",
              f"global_load_dword {v(vT + 5)}, {v(vFL + 2)}, {sp(sWS)} sc1"]
        flchk = [f"v_xor_b32 {v(vT + 6)}, s{sG}, {v(vT + 4)}",
                 f"v_xor_b32 {v(vT + 7)}, s{sG}, {v(vT + 5)}",
                 f"v_or_b32 {v(vT + 6)}, {v(vT + 6)}, {v(vT + 7)}",
                 f"v_cmp_ne_u32 vcc, 0, {v(vT + 6)}"]
        flmode = o.get("flmode", 1)
        if flmode == 1:
            A("s_waitcnt vmcnt(0)")
        if flmode < 2:
            for l in fl:
                A(l)
        A("s_barrier")
        if flmode == 2:
            for l in fl:
                A(l)
        A("s_waitcnt vmcnt(0)")
        self.stamp("x1dr")
        self.poll("flag", fl, flchk)
        xl = [f"global_load_dwordx4 {v(vY, 4)}, {v(vAUX)}, {sp(sWS)} sc1",
              f"global_load_dwordx4 {v(vY + 4, 4)}, {v(vAUX + 1)}, {sp(sWS)} sc1"]
        for l in xl:
            A(l)
        self.stamp("flag")
        A(f"s_mul_i32 s{sF}, s{sXCD}, 14")
        A(f"s_add_u32 s{sF}, s{sF}, s{sPOS}")
        A(f"s_bitcmp1_b32 s{sWAVE}, 0")
        A(f"s_cselect_b64 {sp(sWSEL)}, {sp(sWU)}, {sp(sWG)}")
        A(f"s_lshr_b32 s{sTMP + 1}, s{sWAVE}, 1")
        A(f"s_mul_i32 s{sTMP + 1}, s{sTMP + 1}, {256 * 3584}")
        A(f"s_lshl_b32 s{sTMP + 2}, s{sF}, 5")
        A(f"s_add_u32 s{sTMP + 1}, s{sTMP + 1}, s{sTMP + 2}")
        vWA = K + 8
        A(f"v_lshrrev_b32 {v(vWA)}, 1, {v(vLANE)}")
        A(f"v_mul_u32_u24 {v(vWA)}, {8 * 3584}, {v(vWA)}")
        A(f"v_lshl_add_u32 {v(vWA)}, {v(vT + 1)}, 4, {v(vWA)}")
        A(f"v_add_u32 {v(vWA)}, s{sTMP + 1}, {v(vWA)}")
        A(f"v_add_u32 {v(vWA + 2)}, {7 * 3584}, {v(vWA)}")
        A(f"v_add_u32 {v(vWA + 1)}, {4 * 3584}, {v(vWA)}")
        A(f"v_add_u32 {v(vWA)}, 3584, {v(vWA)}")
        A(f"s_lshl_b32 s{sTMP + 1}, s{sF}, 14")
        A(f"s_add_u32 s{sTMP + 1}, s{sTMP + 1}, 4096")
        A(f"v_lshl_add_u32 {v(vWA + 3)}, v0, 2, s{sTMP + 1}")
        A(f"v_add_u32 {v(vWA + 4)}, 8192, {v(vWA + 3)}")
        A(f"v_dot2_f32_bf16 {v(K + 4)}, {v(vONE)}, s{sONES}, 0")
        for k in range(1, 4):
            A(f"v_dot2_f32_bf16 {v(K + 4)}, {v(vONE + k)}, s{sONES}, {v(K + 4)}")
        A(f"v_mov_b32 {v(K + 5)}, {L_SUMW}")
        A(f"s_mov_b32 s{sRP0}, 0x05040100")
        A(f"s_mov_b32 s{sRP1}, 0x07060302")
        for sh in (8, 4, 2, 1):
            A(f"v_add_f32_dpp {v(K + 4)}, {v(K + 4)}, {v(K + 4)} row_ror:{sh} row_mask:0xf bank_mask:0xf")
        A(f"v_add_f32_dpp {v(K + 4)}, {v(K + 4)}, {v(K + 4)} row_bcast:15 row_mask:0xa bank_mask:0xf")
        A(f"v_add_f32_dpp {v(K + 4)}, {v(K + 4)}, {v(K + 4)} row_bcast:31 row_mask:0xc bank_mask:0xf")
        A("s_mov_b32 exec_lo, 0")
        A("s_brev_b32 exec_hi, 1")
        A(f"ds_write_b32 {v(K + 5)}, {v(K + 4)}")
        A("s_mov_b64 exec, -1")
        A("s_barrier")
        A("s_waitcnt vmcnt(0)")
        chk8 = [f"v_max3_u32 {v(vT + 6)}, {v(vY)}, {v(vY + 1)}, {v(vY + 2)}",
                f"v_max3_u32 {v(vT + 7)}, {v(vY + 3)}, {v(vY + 4)}, {v(vY + 5)}",
                f"v_max3_u32 {v(vT + 6)}, {v(vT + 6)}, {v(vY + 6)}, {v(vY + 7)}",
                f"v_max_u32 {v(vT + 6)}, {v(vT + 6)}, {v(vT + 7)}",
                f"v_cmp_eq_u32 vcc, -1, {v(vT + 6)}"]
        self.poll("x1", xl, chk8)
        self.stamp("x1ld")
        A(f"ds_write2st64_b64 {v(vUW)}, {v(vY, 2)}, {v(vY + 2, 2)} offset0:0 offset1:9")
        A(f"ds_write2st64_b64 {v(vUW)}, {v(vY + 4, 2)}, {v(vY + 6, 2)} offset0:4 offset1:13")
        A("s_waitcnt lgkmcnt(0)")
        A("s_barrier")

        A(f"s_cmp_lt_u32 s{sPOS}, 14")
        A("s_cbranch_scc0 L_now")
        for k in range(8):
            A(f"global_load_dwordx4 {v(vWG + 4 * k, 4)}, {v(vWA + k // 3)}, {sp(sWSEL)} offset:{(k % 3 - 1) * 3584}")
        for k in range(16):
            A(f"global_load_dword {v(vWD + k)}, {v(vWA + 3 + (k >> 3))}, {sp(sWD)} offset:{((k & 7) - 4) * 1024}")
        A("L_now:")
        A(f"v_and_b32 {v(vT + 3)}, 0xfe, v0")
        A(f"v_mul_u32_u24 {v(vAUX)}, {RS}, {v(vT + 3)}")
        A(f"v_lshl_add_u32 {v(vAUX)}, {v(vT + 1)}, 4, {v(vAUX)}")
        A(f"s_lshl_b32 s{sTMP}, s{sL}, 5")
        A(f"s_add_u32 s{sTMP}, s{sTMP}, {W_REG + O_X2}")
        A(f"v_add_u32 {v(vAUX)}, s{sTMP}, {v(vAUX)}")
        A(f"v_add_u32 {v(vAUX + 1)}, {RS}, {v(vAUX)}")
        Tt, Xf = K + 40, K + 56
        Df = K + 72
        for k in range(8):
            A(f"v_lshlrev_b32 {v(Tt + 2 * k)}, 16, {v(vU + k)}")
            A(f"v_and_b32 {v(Tt + 2 * k + 1)}, s{sMASK}, {v(vU + k)}")
        A(f"v_lshlrev_b32 {v(Df)}, 16, {v(vD)}")
        A(f"v_and_b32 {v(Df + 1)}, s{sMASK}, {v(vD)}")
        A(f"v_lshlrev_b32 {v(Df + 2)}, 16, {v(vD + 1)}")
        A(f"v_and_b32 {v(Df + 3)}, s{sMASK}, {v(vD + 1)}")
        for k in range(8):
            c = k >> 1
            sel = "op_sel:[1,0] op_sel_hi:[1,1]" if c & 1 else "op_sel_hi:[0,1]"
            A(f"v_pk_mul_f32 {v(Tt + 2 * k, 2)}, {v(Df + (c & 2), 2)}, {v(Tt + 2 * k, 2)} {sel}")
        for k in range(8):
            A(f"v_cvt_pk_bf16_f32 {v(Xf + k)}, {v(Tt + 2 * k)}, {v(Tt + 2 * k + 1)}")
        for k in range(8):
            A(f"v_lshlrev_b32 {v(Tt + 2 * k)}, 16, {v(Xf + k)}")
            A(f"v_and_b32 {v(Tt + 2 * k + 1)}, s{sMASK}, {v(Xf + k)}")
        for r in range(4):
            for c in range(4):
                src = v(vX + 2 * r + (c >> 1))
                if c & 1:
                    A(f"v_and_b32 {v(Xf + 4 * c + r)}, s{sMASK}, {src}")
                else:
                    A(f"v_lshlrev_b32 {v(Xf + 4 * c + r)}, 16, {src}")
        self.stamp("shadow")
        A("s_barrier")
        A("s_barrier")
        self.stamp("b4b")
        for l in xl:
            A(l)
        A("s_waitcnt vmcnt(0)")
        self.poll("x2", xl, chk8)
        self.stamp("x2ld")

        for k in range(8):
            A(f"v_dot2_f32_bf16 {v(Tt + 2 * k)}, {v(vY + k)}, s{sSELLO}, {v(Tt + 2 * k)}")
            A(f"v_dot2_f32_bf16 {v(Tt + 2 * k + 1)}, {v(vY + k)}, s{sSELHI}, {v(Tt + 2 * k + 1)}")
        for k in range(8):
            A(f"v_cvt_pk_bf16_f32 {v(vY + k)}, {v(Tt + 2 * k)}, {v(Tt + 2 * k + 1)}")
        for k in range(8):
            A(f"v_dot2_f32_bf16 {v(Xf + 2 * k)}, {v(vY + k)}, s{sSELLO}, {v(Xf + 2 * k)}")
            A(f"v_dot2_f32_bf16 {v(Xf + 2 * k + 1)}, {v(vY + k)}, s{sSELHI}, {v(Xf + 2 * k + 1)}")
        vH = vX
        for cp in range(2):
            for r in range(4):
                A(f"v_cvt_pk_bf16_f32 {v(vH + 2 * r + cp)}, {v(Xf + 8 * cp + r)}, {v(Xf + 8 * cp + 4 + r)}")
        Rr = [K + 8 + i for i in range(4)]
        for cp in range(2):
            for r in range(4):
                A(f"v_dot2_f32_bf16 {v(V[r])}, {v(vH + 2 * r + cp)}, s{sONES}, {v(V[r]) if cp else 0}")
            for r in range(4):
                A(f"v_dot2_f32_bf16 {v(V[4 + r])}, {v(vH + 2 * r + cp)}, {v(vH + 2 * r + cp)}, {v(V[4 + r]) if cp else 0}")
            for r in range(4):
                A(f"v_dot2_f32_bf16 {v(Rr[r])}, {v(vH + 2 * r + cp)}, {v(vWR + cp)}, {v(Rr[r]) if cp else 0}")
        for i in range(4):
            A(f"v_add_f32_dpp {v(V[i])}, {v(V[i])}, {v(V[i])} row_ror:8 row_mask:0xf bank_mask:0x3")
        for i in range(4):
            A(f"v_add_f32_dpp {v(V[i])}, {v(V[i + 4])}, {v(V[i + 4])} row_ror:8 row_mask:0xf bank_mask:0xc")
        for i in range(2):
            A(f"v_add_f32_dpp {v(Rr[i])}, {v(Rr[i])}, {v(Rr[i])} row_shl:4 row_mask:0xf bank_mask:0x5")
        for i in range(2):
            A(f"v_add_f32_dpp {v(Rr[i])}, {v(Rr[i + 2])}, {v(Rr[i + 2])} row_shr:4 row_mask:0xf bank_mask:0xa")
        for i in range(2):
            A(f"v_add_f32_dpp {v(V[i])}, {v(V[i])}, {v(V[i])} row_shl:4 row_mask:0xf bank_mask:0x5")
        for i in range(2):
            A(f"v_add_f32_dpp {v(V[i])}, {v(V[i + 2])}, {v(V[i + 2])} row_shr:4 row_mask:0xf bank_mask:0xa")
        A(f"v_permlane32_swap_b32 {v(Rr[0])}, {v(Rr[1])}")
        A(f"v_and_b32 {v(K + 13)}, 0xffffff7f, {v(vSW)}")
        A(f"v_permlane32_swap_b32 {v(V[0])}, {v(V[1])}")
        A(f"v_add_f32 {v(Rr[0])}, {v(Rr[0])}, {v(Rr[1])}")
        A(f"v_add_f32 {v(V[0])}, {v(V[0])}, {v(V[1])}")
        A(f"s_mov_b64 vcc, {sp(sODD)}")
        A(f"v_add_f32_dpp {v(Rr[0])}, {v(Rr[0])}, {v(Rr[0])} row_ror:8 row_mask:0xf bank_mask:0xf")
        A(f"v_add_f32_dpp {v(V[0])}, {v(V[0])}, {v(V[0])} quad_perm:[2,3,0,1] row_mask:0xf bank_mask:0xf")
        A(f"v_mov_b32 {v(V[1])}, {v(V[0])}")
        A(f"v_add_f32_dpp {v(Rr[0])}, {v(Rr[0])}, {v(Rr[0])} quad_perm:[2,3,0,1] row_mask:0xf bank_mask:0xf")
        A(f"v_mov_b32 {v(Rr[1])}, {v(Rr[0])}")
        A(f"v_permlane16_swap_b32 {v(V[0])}, {v(V[1])}")
        A(f"v_add_f32 {v(V[0])}, {v(V[0])}, {v(V[1])}")
        A(f"v_permlane16_swap_b32 {v(Rr[0])}, {v(Rr[1])}")
        A(f"v_add_f32 {v(Rr[0])}, {v(Rr[0])}, {v(Rr[1])}")
        A(f"ds_write_b32 {v(vSW)}, {v(V[0])} offset:{L_RED2 - L_RED1}")
        A(f"ds_write_b32 {v(K + 13)}, {v(Rr[0])} offset:{L_RED2 - L_RED1 + 256}")
        A("s_waitcnt lgkmcnt(0)")
        A("s_barrier")
        self.stamp("b5")
        Hf, Dd = Xf, Tt
        self.key_calc(K, vRA, vLANE)
        self.spread(K + 12, vNM, K + 24)
        A(f"v_readfirstlane_b32 s{sBEST}, {v(K + 8)}")
        for r in range(4):
            for cp in range(2):
                A(f"v_lshlrev_b32 {v(Hf + 4 * r + 2 * cp)}, 16, {v(vH + 2 * r + cp)}")
                A(f"v_and_b32 {v(Hf + 4 * r + 2 * cp + 1)}, s{sMASK}, {v(vH + 2 * r + cp)}")
        self.spread(K + 13, vRI, K + 24)
        for k in range(8):
            r = k >> 1
            sel = "op_sel:[1,0] op_sel_hi:[1,1]" if r & 1 else "op_sel_hi:[0,1]"
            A(f"v_pk_add_f32 {v(Dd + 2 * k, 2)}, {v(vNM + (r & 2), 2)}, {v(Hf + 2 * k, 2)} {sel}")
        vX2 = vU
        for k in range(8):
            A(f"v_cvt_pk_bf16_f32 {v(vX2 + k)}, {v(Dd + 2 * k)}, {v(Dd + 2 * k + 1)}")
        for k in range(8):
            A(f"v_lshlrev_b32 {v(Dd + 2 * k)}, 16, {v(vX2 + k)}")
            A(f"v_and_b32 {v(Dd + 2 * k + 1)}, s{sMASK}, {v(vX2 + k)}")
        for k in range(8):
            r = k >> 1
            sel = "op_sel:[1,0] op_sel_hi:[1,1]" if r & 1 else "op_sel_hi:[0,1]"
            A(f"v_pk_mul_f32 {v(Dd + 2 * k, 2)}, {v(vRI + (r & 2), 2)}, {v(Dd + 2 * k, 2)} {sel}")
        for k in range(8):
            A(f"v_cvt_pk_bf16_f32 {v(vX2 + k)}, {v(Dd + 2 * k)}, {v(Dd + 2 * k + 1)}")
        A(f"s_andn2_b32 s{sTMP}, 7, s{sBEST}")
        A(f"s_and_b32 s{sTMP + 1}, s{sTMP}, 3")
        A(f"s_lshl_b32 s{sTMP + 2}, s{sTMP + 1}, 1")
        A(f"s_not_b64 {sp(sE)}, {sp(sODD)}")
        A(f"s_cmp_ge_u32 s{sTMP}, 4")
        A(f"s_cselect_b64 {sp(sE)}, {sp(sODD)}, {sp(sE)}")
        vC = K + 24
        A(f"s_set_gpr_idx_on s{sTMP + 2}, gpr_idx(SRC0)")
        A(f"v_mov_b32 {v(vC)}, {v(vX2)}")
        A(f"v_mov_b32 {v(vC + 1)}, {v(vX2 + 1)}")
        A(f"v_mov_b32 {v(vC + 2)}, {v(vH)}")
        A(f"v_mov_b32 {v(vC + 3)}, {v(vH + 1)}")
        A("s_set_gpr_idx_off")
        A(f"s_add_u32 s{sTMP + 3}, s{sOWN}, {O_SLOT}")
        A(f"v_add_u32 {v(vT)}, s{sTMP + 3}, {v(vT + 2)}")
        A(f"s_mov_b64 exec, {sp(sE)}")
        A(f"global_store_dwordx2 {v(vT)}, {v(vC, 2)}, {sp(sWS)} sc1")
        A(f"global_store_dwordx2 {v(vT)}, {v(vC + 2, 2)}, {sp(sWS)} offset:1024 sc1")
        A("s_mov_b64 exec, -1")
        self.stamp("slot")
        for k in range(8):
            A(f"v_dot2_f32_bf16 {v(Hf + 2 * k)}, {v(vX2 + k)}, s{sSELLO}, {v(Hf + 2 * k)}")
            A(f"v_dot2_f32_bf16 {v(Hf + 2 * k + 1)}, {v(vX2 + k)}, s{sSELHI}, {v(Hf + 2 * k + 1)}")
        vO = vY
        A(f"v_mov_b32 {v(vT + 4)}, {L_REDK}")
        for k in range(8):
            A(f"v_cvt_pk_bf16_f32 {v(vO + k)}, {v(Hf + 2 * k)}, {v(Hf + 2 * k + 1)}")
        osc = " sc1" if o.get("outsc", 0) == 1 else (" nt" if o.get("outsc", 0) == 2 else "")
        for r in range(4):
            A(f"s_cmp_eq_u32 s{sTMP + 1}, {r}")
            A(f"s_cselect_b64 vcc, {sp(sE)}, 0")
            A("s_not_b64 exec, vcc")
            A(f"global_store_dwordx2 {v(vRD)}, {v(vO + 2 * r, 2)}, {sp(sOUT)} offset:{1024 * r}{osc}")
        A("s_mov_b64 exec, -1")
        A(f"s_set_gpr_idx_on s{sTMP + 2}, gpr_idx(SRC0)")
        A(f"v_mov_b32 {v(vC + 4)}, {v(vO)}")
        A(f"v_mov_b32 {v(vC + 5)}, {v(vO + 1)}")
        A("s_set_gpr_idx_off")
        A(f"s_lshl_b32 s{sTMP + 1}, s{sTMP + 1}, 10")
        A(f"v_add_u32 {v(vRD)}, s{sTMP + 1}, {v(vRD)}")
        A(f"s_lshr_b32 s{sTMP}, s{sWAVE}, 1")
        A(f"s_lshl_b32 s{sTMP}, s{sTMP}, 9")
        A(f"s_add_u32 s{sTMP}, s{sTMP}, {W_REG + O_SLOT}")
        A(f"v_lshrrev_b32 {v(vT)}, 1, {v(vLANE)}")
        A(f"v_lshl_add_u32 {v(vT)}, {v(vT)}, 4, s{sTMP}")
        A(f"v_lshlrev_b32 {v(vT + 1)}, 6, {v(vT + 1)}")
        A(f"v_and_b32 {v(vT + 2)}, 12, {v(vLANE)}")
        A(f"v_lshl_add_u32 {v(vT + 1)}, {v(vT + 2)}, 2, {v(vT + 1)}")
        A(f"v_lshrrev_b32 {v(vT + 2)}, 5, {v(vLANE)}")
        A(f"v_lshl_add_u32 {v(vT + 1)}, {v(vT + 2)}, 3, {v(vT + 1)}")
        A(f"s_and_b32 s{sTMP}, s{sWAVE}, 1")
        A(f"s_lshl_b32 s{sTMP}, s{sTMP}, 7")
        A(f"s_lshr_b32 s{sTMP + 1}, s{sWAVE}, 1")
        A(f"s_lshl_b32 s{sTMP + 1}, s{sTMP + 1}, 2")
        A(f"s_add_u32 s{sTMP}, s{sTMP}, s{sTMP + 1}")
        A(f"s_add_u32 s{sTMP}, s{sTMP}, {L_REDF}")
        A(f"v_add_u32 {v(vT + 1)}, s{sTMP}, {v(vT + 1)}")
        A(f"v_and_b32 {v(vT + 2)}, 15, {v(vLANE)}")
        A(f"v_lshlrev_b32 {v(vT + 2)}, 3, {v(vT + 2)}")
        A(f"v_add_u32 {v(vT + 2)}, {L_REDF}, {v(vT + 2)}")
        A(f"s_add_u32 s{sTMP}, s{sOWN}, {O_PART}")
        A(f"v_lshl_add_u32 {v(vT + 3)}, v0, 3, s{sTMP}")
        WGp = K + 80
        for kp in range(4):
            for d in range(4):
                lo, hi = vWG + 8 * kp + d, vWG + 8 * kp + 4 + d
                A(f"v_perm_b32 {v(WGp + 8 * kp + 2 * d)}, {v(hi)}, {v(lo)}, s{sRP0}")
                A(f"v_perm_b32 {v(WGp + 8 * kp + 2 * d + 1)}, {v(hi)}, {v(lo)}, s{sRP1}")
        WDp = vWG
        for kp in range(8):
            lo, hi = vWD + 2 * kp, vWD + 2 * kp + 1
            A(f"v_perm_b32 {v(WDp + 2 * kp)}, {v(hi)}, {v(lo)}, s{sRP0}")
            A(f"v_perm_b32 {v(WDp + 2 * kp + 1)}, {v(hi)}, {v(lo)}, s{sRP1}")
        self.stamp("outst")
        A("s_barrier")
        A(f"ds_read_b32 {v(K)}, {v(vT + 4)}")
        A("s_waitcnt lgkmcnt(0)")
        A(f"v_readfirstlane_b32 s{sWIN}, {v(K)}")
        A(f"s_andn2_b32 s{sT0}, 2047, s{sWIN}")
        A(f"s_lshr_b32 s{sT1}, s{sT0}, 3")
        A(f"s_mul_i32 s{sT1}, s{sT1}, {RS}")
        A(f"s_cmp_lt_u32 s{sPOS}, 14")
        A("s_cbranch_scc0 L_noffn")
        A(f"v_add_u32 {v(vT)}, s{sT1}, {v(vT)}")
        sl = [f"global_load_dwordx4 {v(K, 4)}, {v(vT)}, {sp(sWS)} sc1"]
        A(sl[0])
        self.stamp("win")
        A("s_waitcnt vmcnt(0)")
        self.poll("sel", sl, [f"v_max3_u32 {v(vT + 6)}, {v(K)}, {v(K + 1)}, {v(K + 2)}",
                              f"v_max_u32 {v(vT + 6)}, {v(vT + 6)}, {v(K + 3)}",
                              f"v_cmp_eq_u32 vcc, -1, {v(vT + 6)}"])
        self.stamp("sel")
        V2 = [K + 8 + i for i in range(8)]
        for kp in range(4):
            for c in range(8):
                A(f"v_dot2_f32_bf16 {v(V2[c])}, {v(K + kp)}, {v(WGp + 8 * kp + c)}, {v(V2[c]) if kp else 0}")
        self.reduce8(V2, K + 16)
        A(f"ds_write_b32 {v(vT + 1)}, {v(V2[0])}")
        A("s_waitcnt lgkmcnt(0)")
        A("s_barrier")
        A(f"ds_read_b64 {v(K, 2)}, {v(vT + 2)}")
        A(f"ds_read_b64 {v(K + 2, 2)}, {v(vT + 2)} offset:128")
        A("s_waitcnt lgkmcnt(0)")
        A(f"v_add_f32 {v(K)}, {v(K)}, {v(K + 1)}")
        A(f"v_add_f32 {v(K + 2)}, {v(K + 2)}, {v(K + 3)}")
        A(f"v_cvt_pk_bf16_f32 {v(K + 1)}, {v(K)}, {v(K + 2)}")
        A(f"v_lshlrev_b32 {v(K)}, 16, {v(K + 1)}")
        A(f"v_mul_f32 {v(K + 3)}, {hex(f2u(-L2E))}, {v(K)}")
        A(f"v_exp_f32 {v(K + 3)}, {v(K + 3)}")
        A(f"v_and_b32 {v(K + 2)}, s{sMASK}, {v(K + 1)}")
        A(f"v_add_f32 {v(K + 3)}, 1.0, {v(K + 3)}")
        A(f"v_rcp_f32 {v(K + 3)}, {v(K + 3)}")
        A(f"v_mul_f32 {v(K)}, {v(K)}, {v(K + 3)}")
        A(f"v_cvt_pk_bf16_f32 {v(K)}, {v(K)}, {v(K)}")
        A(f"v_and_b32 {v(K)}, s{sMASK}, {v(K)}")
        A(f"v_mul_f32 {v(K)}, {v(K)}, {v(K + 2)}")
        A(f"v_mov_b32_dpp {v(K + 1)}, {v(K)} quad_perm:[1,1,3,3] row_mask:0xf bank_mask:0xf")
        A(f"v_cvt_pk_bf16_f32 {v(K)}, {v(K)}, {v(K + 1)}")
        for kp in range(8):
            A(f"v_readlane_b32 s{sH + kp}, {v(K)}, {2 * kp}")
        for kp in range(8):
            for c in range(2):
                A(f"v_dot2_f32_bf16 {v(K + 4 + c)}, s{sH + kp}, {v(WDp + 2 * kp + c)}, {v(K + 4 + c) if kp else 0}")
        A(f"global_store_dwordx2 {v(vT + 3)}, {v(K + 4, 2)}, {sp(sWS)} sc1")
        self.stamp("part")
        held = [f"s_cmp_eq_u32 s{sWIN}, s{sBEST}",
                f"s_cselect_b64 exec, 0, {sp(sE)}",
                f"global_store_dwordx2 {v(vRD)}, {v(vC + 4, 2)}, {sp(sOUT)}{osc}",
                f"s_or_b32 s{sTMP}, s{sL}, s{sWAVE}",
                f"s_cmp_eq_u32 s{sTMP}, 0",
                "s_cselect_b64 exec, 1, 0",
                f"v_mov_b32 {v(vT + 4)}, s{sG}",
                f"v_mov_b32 {v(vT + 5)}, 0",
                f"global_store_dword {v(vT + 5)}, {v(vT + 4)}, {sp(sWS)} sc1",
                "s_mov_b64 exec, -1"]
        T = self.tail
        T("L_noffn:")
        for l in held:
            T(l)
        T("s_branch L_fin")
        for l in held:
            A(l)
        A(f"s_cmp_lt_u32 s{sPOS}, 8")
        A("s_cbranch_scc0 L_fin")
        A(f"s_cmp_lt_u32 s{sWAVE}, 2")
        A("s_cbranch_scc0 L_fin")
        A(f"s_lshl_b32 s{sTMP}, s{sXCD}, 3")
        A(f"s_add_u32 s{sTMP}, s{sTMP}, s{sPOS}")
        A(f"s_lshl_b32 s{sTMP}, s{sTMP}, 1")
        A(f"s_add_u32 s{sTMP}, s{sTMP}, s{sWAVE}")
        A(f"v_lshrrev_b32 {v(vT)}, 5, {v(vLANE)}")
        A(f"v_bfe_u32 {v(vT + 1)}, {v(vLANE)}, 4, 1")
        A(f"v_lshl_add_u32 {v(vT)}, {v(vT + 1)}, 1, {v(vT)}")
        A(f"s_lshl_b32 s{sTMP + 1}, s{sTMP}, 3")
        A(f"v_lshl_add_u32 {v(vT)}, {v(vT)}, 1, s{sTMP + 1}")
        A(f"s_add_u32 s{sT1}, s{sT1}, {W_REG + O_SLOT}")
        A(f"v_add_u32 {v(vT + 1)}, s{sT1}, {v(vT)}")
        xh = [f"global_load_ushort {v(K + 20)}, {v(vT + 1)}, {sp(sWS)} sc1",
              f"global_load_ushort {v(K + 21)}, {v(vT + 1)}, {sp(sWS)} offset:1024 sc1"]
        for l in xh:
            A(l)
        A(f"s_lshl_b32 s{sTMP + 1}, s{sT0}, 10")
        A(f"v_add_u32 {v(vT)}, s{sTMP + 1}, {v(vT)}")
        A(f"v_min_u32 {v(vT + 2)}, 55, {v(vLANE)}")
        A(f"v_mul_u32_u24 {v(vT + 3)}, 4682, {v(vT + 2)}")
        A(f"v_lshrrev_b32 {v(vT + 3)}, 16, {v(vT + 3)}")
        A(f"v_mad_u32_u24 {v(vT + 2)}, {v(vT + 3)}, 18, {v(vT + 2)}")
        A(f"v_mul_u32_u24 {v(vT + 2)}, {RS}, {v(vT + 2)}")
        A(f"s_lshl_b32 s{sTMP + 1}, s{sTMP}, 4")
        A(f"s_add_u32 s{sTMP + 1}, s{sTMP + 1}, {W_REG + O_PART}")
        A(f"v_add_u32 {v(vT + 2)}, s{sTMP + 1}, {v(vT + 2)}")
        A(f"v_add_u32 {v(vT + 3)}, {128 * RS}, {v(vT + 2)}")
        A(f"s_ashr_i32 s{sTMP + 2}, s{sWIN}, 31")
        A(f"s_not_b32 s{sTMP + 2}, s{sTMP + 2}")
        A(f"s_or_b32 s{sTMP + 2}, s{sTMP + 2}, 0x80000000")
        A(f"s_xor_b32 s{sTMP + 2}, s{sTMP + 2}, s{sWIN}")
        A(f"s_and_b32 s{sTMP + 2}, s{sTMP + 2}, 0xfffff800")
        A(f"s_or_b32 s{sTMP + 2}, s{sTMP + 2}, 0x400")
        A(f"v_cvt_pk_bf16_f32 {v(K + 22)}, s{sTMP + 2}, s{sTMP + 2}")
        A(f"v_and_b32 {v(K + 22)}, s{sMASK}, {v(K + 22)}")
        A(f"v_mul_f32 {v(K + 22)}, {hex(f2u(-L2E))}, {v(K + 22)}")
        A(f"v_exp_f32 {v(K + 22)}, {v(K + 22)}")
        A(f"v_add_f32 {v(K + 22)}, 1.0, {v(K + 22)}")
        A(f"v_rcp_f32 {v(K + 22)}, {v(K + 22)}")
        A(f"v_cvt_pk_bf16_f32 {v(K + 22)}, {v(K + 22)}, {v(K + 22)}")
        A(f"v_and_b32 {v(K + 22)}, s{sMASK}, {v(K + 22)}")
        A("s_waitcnt vmcnt(0)")
        self.stamp("partdr")
        pl = [f"global_load_dwordx4 {v(vY, 4)}, {v(vT + 2)}, {sp(sWS)} sc1",
              f"global_load_dwordx4 {v(vY + 4, 4)}, {v(vT + 3)}, {sp(sWS)} sc1"]
        for l in pl:
            A(l)
        self.poll("xh", xh, [f"v_max_u32 {v(vT + 6)}, {v(K + 20)}, {v(K + 21)}",
                             f"v_cmp_eq_u32 vcc, 0xffff, {v(vT + 6)}"])
        A(f"v_lshlrev_b32 {v(K + 20)}, 16, {v(K + 20)}")
        A(f"v_lshlrev_b32 {v(K + 21)}, 16, {v(K + 21)}")
        A("s_waitcnt vmcnt(0)")
        self.poll("part", pl, chk8)
        self.stamp("partld")
        A(f"v_cmp_gt_u32 vcc, 56, {v(vLANE)}")
        A(f"v_pk_add_f32 {v(vY, 2)}, {v(vY, 2)}, {v(vY + 4, 2)}")
        A(f"v_pk_add_f32 {v(vY + 2, 2)}, {v(vY + 2, 2)}, {v(vY + 6, 2)}")
        for c in range(4):
            A(f"v_cndmask_b32 {v(vY + c)}, 0, {v(vY + c)}, vcc")
        A(f"v_permlane32_swap_b32 {v(vY)}, {v(vY + 1)}")
        A(f"v_permlane32_swap_b32 {v(vY + 2)}, {v(vY + 3)}")
        A(f"v_add_f32 {v(vY)}, {v(vY)}, {v(vY + 1)}")
        A(f"v_add_f32 {v(vY + 2)}, {v(vY + 2)}, {v(vY + 3)}")
        A(f"v_permlane16_swap_b32 {v(vY)}, {v(vY + 2)}")
        A(f"v_add_f32 {v(vY)}, {v(vY)}, {v(vY + 2)}")
        for sh in (8, 4, 2, 1):
            A(f"v_add_f32_dpp {v(vY)}, {v(vY)}, {v(vY)} row_ror:{sh} row_mask:0xf bank_mask:0xf")
        y = vY
        A(f"v_cvt_pk_bf16_f32 {v(y)}, {v(y)}, {v(y)}")
        A(f"v_and_b32 {v(y)}, s{sMASK}, {v(y)}")
        A(f"v_mul_f32 {v(y)}, {v(y)}, {v(K + 22)}")
        A(f"v_cvt_pk_bf16_f32 {v(y)}, {v(y)}, {v(y)}")
        A(f"v_and_b32 {v(y)}, s{sMASK}, {v(y)}")
        A(f"v_add_f32 {v(y)}, {v(y)}, {v(K + 20)}")
        A(f"v_cvt_pk_bf16_f32 {v(y)}, {v(y)}, {v(y)}")
        A(f"v_and_b32 {v(y)}, s{sMASK}, {v(y)}")
        A(f"v_add_f32 {v(y)}, {v(y)}, {v(K + 21)}")
        A(f"v_cvt_pk_bf16_f32 {v(y)}, {v(y)}, {v(y)}")
        A("s_mov_b32 exec_lo, 0x00010001")
        A("s_mov_b32 exec_hi, 0x00010001")
        A(f"global_store_short {v(vT)}, {v(y)}, {sp(sOUT)}")
        A("L_fin:")
        self.finish("R")

    def chans(self):
        A = self.A
        o = self.o
        vLANE = 1
        vAA, vBA, vEW, vER, vRA = 4, 12, 13, 14, 15
        vKA0, vKA1, vKB, vPW0, vPW1 = 16, 17, 18, 19, 20
        vP = 24
        vT = 28
        vACC = 40
        vA0, vA1, vB0, vB1 = 72, 104, 136, 168
        K = 72
        A("L_chan:")
        A("v_and_b32 v0, 0xff, v0")
        A(f"s_sub_u32 s{sWAVE}, s{sWAVE}, 4")
        A(f"s_lshl_b32 s{sT0}, s{sL}, 9")
        A(f"v_lshl_add_u32 {v(vT)}, v0, 1, s{sT0}")
        A(f"s_lshl_b32 s{sT1}, s{sL}, 2")
        A("s_waitcnt lgkmcnt(0)")
        self.stamp("karg")
        for k, s in enumerate((sLA, sAI, sCR, sCI)):
            A(f"global_load_ushort {v(vP + k)}, {v(vT)}, {sp(s)}{' nt' if o.get('ntx', 1) else ''}")
        A(f"s_load_dword s{sDT}, {sp(sLDT)}, s{sT1}")
        vJ, vGq = vT + 4, vT + 5
        A(f"v_and_b32 {v(vJ)}, 15, {v(vLANE)}")
        A(f"v_lshrrev_b32 {v(vGq)}, 4, {v(vLANE)}")
        A(f"s_lshr_b32 s{sT0}, s{sWAVE}, 1")
        A(f"s_and_b32 s{sT1}, s{sWAVE}, 1")
        A(f"v_and_b32 {v(vT)}, 7, {v(vLANE)}")
        A(f"v_lshlrev_b32 {v(vRA)}, 4, {v(vT)}")
        A(f"v_add_u32 {v(vRA)}, {L_RED1}, {v(vRA)}")
        A(f"s_mul_i32 s{sTMP}, s{sT0}, {PC}")
        A(f"s_lshl_b32 s{sTMP + 1}, s{sT1}, 7")
        A(f"s_add_u32 s{sTMP}, s{sTMP}, s{sTMP + 1}")
        A(f"s_add_u32 s{sTMP}, s{sTMP}, {L_P + 4 * 26}")
        A(f"v_lshlrev_b32 {v(vT)}, 3, {v(vGq)}")
        A(f"v_sub_u32 {v(vT)}, {v(vJ)}, {v(vT)}")
        A(f"v_lshl_add_u32 {v(vAA)}, {v(vT)}, 2, s{sTMP}")
        for m in range(1, 8):
            A(f"v_add_u32 {v(vAA + m)}, {1024 * m}, {v(vAA)}")
        A(f"s_mul_i32 s{sTMP}, s{sT0}, {UC}")
        A(f"s_lshl_b32 s{sTMP + 1}, s{sT1}, 6")
        A(f"s_sub_u32 s{sTMP}, s{sTMP}, s{sTMP + 1}")
        A(f"s_add_u32 s{sTMP}, s{sTMP}, {L_U + 64}")
        A(f"v_lshl_add_u32 {v(vT)}, {v(vJ)}, 1, {v(vGq)}")
        A(f"v_lshl_add_u32 {v(vBA)}, {v(vT)}, 4, s{sTMP}")
        A(f"v_lshl_add_u32 {v(vT)}, {v(vJ)}, 2, {v(vGq)}")
        A(f"v_lshrrev_b32 {v(vT + 1)}, 3, {v(vT)}")
        A(f"v_add_u32 {v(vT)}, {v(vT)}, {v(vT + 1)}")
        A(f"s_mul_i32 s{sTMP}, s{sWAVE}, {8 * TBS}")
        A(f"v_lshl_add_u32 {v(vEW)}, {v(vT)}, 4, s{sTMP}")
        A(f"v_lshrrev_b32 {v(vT + 1)}, 3, {v(vLANE)}")
        A(f"v_add_u32 {v(vT)}, {v(vLANE)}, {v(vT + 1)}")
        A(f"s_mul_i32 s{sTMP}, s{sWAVE}, {2 * TBS}")
        A(f"v_lshl_add_u32 {v(vER)}, {v(vT)}, 4, s{sTMP}")
        KS = o.get("ks", 5)
        for k in range(4):
            A(f"v_mov_b32 {v(vACC + k)}, -1")
        A(f"s_mul_i32 s{sTMP}, s{sL}, {RS}")
        A(f"s_add_u32 s{sTMP}, s{sTMP}, {W_REG + 4096}")
        A(f"v_lshl_add_u32 {v(vACC + 4)}, v0, 4, s{sTMP}")
        A(f"v_add_u32 {v(vACC + 5)}, 8192, {v(vACC + 4)}")
        A(f"v_add_u32 {v(vACC + 6)}, 12288, {v(vACC + 4)}")
        A(f"s_lshl_b32 s{sTMP}, s{sL}, {KS}")
        A(f"s_add_u32 s{sTMP}, s{sTMP}, {W_KEY}")
        A(f"v_mov_b32 {v(22)}, s{sTMP}")
        ones = v(vACC, 4)
        A(f"s_cmp_eq_u32 s{sWAVE}, 0")
        A("s_cselect_b64 exec, 1, 0")
        A(f"global_store_dword {v(22)}, {v(vACC)}, {sp(sWS)} sc1")
        A("s_mov_b64 exec, -1")
        A(f"global_store_dwordx4 {v(vACC + 4)}, {ones}, {sp(sWS)} offset:-4096 sc1")
        A(f"global_store_dwordx4 {v(vACC + 4)}, {ones}, {sp(sWS)} sc1")
        A(f"global_store_dwordx4 {v(vACC + 5)}, {ones}, {sp(sWS)} offset:-4096 sc1")
        A(f"global_store_dwordx4 {v(vACC + 5)}, {ones}, {sp(sWS)} sc1")
        A(f"global_store_dwordx4 {v(vACC + 6)}, {ones}, {sp(sWS)} sc1")
        vg, vr = vT, vT + 1
        A(f"v_lshrrev_b32 {v(vg)}, 2, {v(vJ)}")
        A(f"v_and_b32 {v(vr)}, 3, {v(vJ)}")
        A(f"s_cmp_eq_u32 s{sT1}, 0")
        A("s_cbranch_scc0 L_rows_hi")
        A(f"v_mov_b32 {v(vKA0)}, {v(vJ)}")
        A(f"v_lshl_add_u32 {v(vKA1)}, {v(vg)}, 1, {v(vr)}")
        A(f"v_add_u32 {v(vKA1)}, 16, {v(vKA1)}")
        A(f"v_add_u32 {v(vT + 2)}, -4, {v(vJ)}")
        A(f"v_and_b32 {v(vT + 2)}, 15, {v(vT + 2)}")
        A(f"v_cmp_eq_u32 vcc, 3, {v(vr)}")
        A(f"v_cndmask_b32 {v(vKA1)}, {v(vKA1)}, {v(vT + 2)}, vcc")
        A(f"v_lshl_add_u32 {v(vPW0)}, {v(vJ)}, 2, {v(vGq)}")
        A(f"v_lshlrev_b32 {v(vPW0)}, 4, {v(vPW0)}")
        A(f"v_add_u32 {v(vPW1)}, 1024, {v(vPW0)}")
        A("s_branch L_rows_done")
        A("L_rows_hi:")
        A(f"v_lshrrev_b32 {v(vT + 2)}, 1, {v(vg)}")
        A(f"v_lshl_add_u32 {v(vKA0)}, {v(vg)}, 1, {v(vr)}")
        A(f"v_add3_u32 {v(vKA0)}, {v(vKA0)}, {v(vT + 2)}, 25")
        A(f"v_sub_u32 {v(vKA1)}, {v(vJ)}, {v(vg)}")
        A(f"v_add_u32 {v(vKA1)}, 35, {v(vKA1)}")
        A(f"v_lshrrev_b32 {v(vT + 2)}, 1, {v(vGq)}")
        A(f"v_lshl_add_u32 {v(vPW0)}, {v(vT + 2)}, 4, {v(vJ)}")
        A(f"v_and_b32 {v(vT + 2)}, 1, {v(vGq)}")
        A(f"v_lshl_add_u32 {v(vPW0)}, {v(vPW0)}, 1, {v(vT + 2)}")
        A(f"v_lshlrev_b32 {v(vPW0)}, 5, {v(vPW0)}")
        A(f"v_add_u32 {v(vPW0)}, 2048, {v(vPW0)}")
        A(f"v_lshlrev_b32 {v(vPW1)}, 6, {v(vLANE)}")
        A(f"v_add_u32 {v(vPW1)}, 4096, {v(vPW1)}")
        A("L_rows_done:")
        A(f"s_mul_i32 s{sTMP}, s{sT0}, {PC}")
        A(f"s_add_u32 s{sTMP}, s{sTMP}, {L_P + 64}")
        A(f"v_add_u32 {v(vPW0)}, s{sTMP}, {v(vPW0)}")
        A(f"v_add_u32 {v(vPW1)}, s{sTMP}, {v(vPW1)}")
        A(f"s_mul_i32 s{sTMP}, s{sT0}, {TABC}")
        A(f"v_lshl_add_u32 {v(vT + 2)}, {v(vGq)}, 4, s{sTMP}")
        A(f"s_movk_i32 s{sTMP + 1}, {ROWB}")
        A(f"v_mad_u32_u24 {v(vKA0)}, {v(vKA0)}, s{sTMP + 1}, {v(vT + 2)}")
        A(f"v_mad_u32_u24 {v(vKA1)}, {v(vKA1)}, s{sTMP + 1}, {v(vT + 2)}")
        A(f"v_mad_u32_u24 {v(vKB)}, {v(vJ)}, s{sTMP + 1}, {v(vT + 2)}")
        A(f"s_lshl_b32 s{sTMP + 1}, s{sT1}, 8")
        A(f"s_add_u32 m0, s{sTMP}, s{sTMP + 1}")
        A(f"s_mul_i32 s{sTMP}, s{sXCD}, 448")
        A(f"s_and_b32 s{sTMP}, s{sTMP}, 0xffffff80")
        A(f"s_mul_i32 s{sTMP + 1}, s{sPOS}, {16 * 3584}")
        A(f"s_add_u32 s{sTMP}, s{sTMP}, s{sTMP + 1}")
        A(f"v_lshrrev_b32 {v(vT + 2)}, 2, {v(vLANE)}")
        A(f"v_mul_u32_u24 {v(vT + 2)}, 3584, {v(vT + 2)}")
        A(f"v_and_b32 {v(vT + 3)}, 3, {v(vLANE)}")
        A(f"v_lshl_add_u32 {v(vT + 2)}, {v(vT + 3)}, 7, {v(vT + 2)}")
        A(f"v_add_u32 {v(vT + 2)}, s{sTMP}, {v(vT + 2)}")
        A(f"s_mul_i32 s{sTMP}, s{sL}, 7168")
        A(f"s_mul_i32 s{sTMP + 1}, s{sT1}, 3584")
        A(f"s_add_u32 s{sTMP}, s{sTMP}, s{sTMP + 1}")
        A(f"v_min_u32 {v(vT + 3)}, 27, {v(vLANE)}")
        A(f"v_lshl_add_u32 {v(vT + 3)}, {v(vT + 3)}, 7, s{sTMP}")
        A(f"s_cmp_eq_u32 s{sT1}, 0")
        A(f"s_cselect_b64 {sp(sWSEL)}, {sp(sWG)}, {sp(sWU)}")
        A(f"s_cmp_eq_u32 s{sT0}, 0")
        A(f"s_cselect_b64 {sp(sWSEL)}, {sp(sWSEL)}, {sp(sWD)}")
        A("s_cselect_b64 vcc, -1, 0")
        A(f"v_cndmask_b32 {v(21)}, {v(vT + 3)}, {v(vT + 2)}, vcc")
        wpf = f"global_load_dword v3, v21, {sp(sWSEL)}{' nt' if o.get('ntw', 1) else ''}"
        if o.get("wpf", 1) == 2:
            A(wpf)

        L2E = 1.4426950408889634
        l2e_hi = struct.unpack("<f", struct.pack("<f", L2E))[0]
        l2e_lo = L2E - l2e_hi
        a, b = K, K + 2
        A(f"s_mov_b32 s{sE}, {hex(f2u(l2e_hi))}")
        A(f"s_mov_b32 s{sE + 1}, {hex(f2u(l2e_lo))}")
        A(f"s_waitcnt vmcnt({6 if o.get('wpf', 1) == 2 else 5}) lgkmcnt(0)")
        self.stamp("par")
        A(f"s_lshl_b32 s{sTMP}, s{sDT}, 16")
        A(f"s_and_b32 s{sTMP + 1}, s{sDT}, s{sMASK}")
        A(f"s_cmp_lt_u32 s{sWAVE}, 2")
        A(f"s_cselect_b32 s{sDT}, s{sTMP}, s{sTMP + 1}")
        A(f"v_lshlrev_b32 {v(a)}, 16, {v(vP)}")
        A(f"v_mov_b32 {v(a + 1)}, s{sDT}")
        A(f"v_pk_mul_f32 {v(b, 2)}, {v(a, 2)}, {sp(sE)} op_sel_hi:[1,0]")
        A(f"v_pk_fma_f32 {v(b + 2, 2)}, {v(a, 2)}, {sp(sE)}, {v(b, 2)} op_sel_hi:[1,0,1] neg_lo:[0,0,1] neg_hi:[0,0,1]")
        A(f"v_exp_f32 {v(b)}, {v(b)}")
        A(f"v_exp_f32 {v(b + 1)}, {v(b + 1)}")
        A(f"v_pk_fma_f32 {v(b + 2, 2)}, {sp(sE)}, {v(a, 2)}, {v(b + 2, 2)} op_sel:[1,0,0] op_sel_hi:[1,1,1]")
        A(f"v_mul_f32 {v(b + 2)}, {hex(f2u(0.6931471805599453))}, {v(b + 2)}")
        A(f"v_mul_f32 {v(b + 3)}, {hex(f2u(0.6931471805599453))}, {v(b + 3)}")
        A(f"v_pk_fma_f32 {v(b, 2)}, {v(b, 2)}, {v(b + 2, 2)}, {v(b, 2)}")
        A(f"v_cvt_pk_bf16_f32 {v(a)}, {v(b)}, {v(b + 1)}")
        vdt, va2, vph = K + 6, K + 7, K + 8
        A(f"v_and_b32 {v(vdt)}, s{sMASK}, {v(a)}")
        A(f"v_lshlrev_b32 {v(va2)}, 16, {v(a)}")
        A(f"v_lshlrev_b32 {v(vph)}, 16, {v(vP + 1)}")
        A(f"v_mul_f32 {v(va2)}, {v(va2)}, {v(vdt)}")
        A(f"v_mul_f32 {v(vph)}, {v(vph)}, {v(vdt)}")
        A(f"v_mul_f32 {v(va2)}, {hex(f2u(-l2e_hi))}, {v(va2)}")
        A(f"v_mul_f32 {v(vph)}, 0.15915494, {v(vph)}")
        Wp = {p: K + 10 + 2 * p for p in range(1, 17)}
        Zp = {p: K + 42 + 2 * p for p in range(1, 8)}
        G = [K + 58, K + 60]
        TT = [K + 62, K + 64, K + 66, K + 68]
        RR = [K + 70, K + 72, K + 74, K + 76]
        CV = K + 80
        A(f"v_add_f32 {v(vdt)}, {v(vdt)}, {v(vdt)}")
        A(f"v_lshlrev_b32 {v(G[0])}, 16, {v(vP + 2)}")
        A(f"v_lshlrev_b32 {v(G[0] + 1)}, 16, {v(vP + 3)}")
        A(f"v_mul_f32 {v(G[0])}, {v(G[0])}, {v(vdt)}")
        A(f"v_mul_f32 {v(G[0] + 1)}, {v(G[0] + 1)}, {v(vdt)}")
        for n, (dst, sc) in enumerate(((Wp[1], 1.0), (Wp[16], 16.0), (Zp[1], 256.0))):
            t = TT[n]
            if sc == 1.0:
                A(f"v_exp_f32 {v(t)}, {v(va2)}")
                A(f"v_fract_f32 {v(t + 1)}, {v(vph)}")
            else:
                A(f"v_mul_f32 {v(t)}, {hex(f2u(sc))}, {v(va2)}")
                A(f"v_mul_f32 {v(t + 1)}, {hex(f2u(sc))}, {v(vph)}")
                A(f"v_exp_f32 {v(t)}, {v(t)}")
                A(f"v_fract_f32 {v(t + 1)}, {v(t + 1)}")
            A(f"v_cos_f32 {v(dst)}, {v(t + 1)}")
            A(f"v_sin_f32 {v(dst + 1)}, {v(t + 1)}")
        for n, dst in enumerate((Wp[1], Wp[16], Zp[1])):
            A(f"v_pk_mul_f32 {v(dst, 2)}, {v(dst, 2)}, {v(TT[n], 2)} op_sel_hi:[1,0]")
        jobs = [(1, Wp[1], None, None, 0), (16, Zp[1], None, None, 0), (47, G[0], None, None, 1)]
        wj = []
        for p in range(2, 16):
            hb = 1 << (p.bit_length() - 1)
            x, y = (p // 2, p // 2) if hb == p else (hb, p - hb)
            wj.append((p, Wp[p], Wp[x], Wp[y], 0))
        gj = [(47 + j, G[j & 1], G[(j - 1) & 1], Wp[16], 1) for j in range(1, 16)]
        zrow = {2: 25, 3: 30, 4: 35, 5: 38, 6: 41, 7: 44}
        zj = []
        for p in range(2, 8):
            hb = 1 << (p.bit_length() - 1)
            x, y = (p // 2, p // 2) if hb == p else (hb, p - hb)
            zj.append((zrow[p], Zp[p], Zp[x], Zp[y], 0))
        tj = [(16 + k, None, Zp[1], Wp[2 * k], 0) for k in range(1, 9)]
        for z in (2, 3):
            tj += [(zrow[z] + k, None, Zp[z], Wp[4 * k], 0) for k in range(1, 5)]
        for z in (4, 5, 6, 7):
            tj += [(zrow[z] + k, None, Zp[z], Wp[8 * k], 0) for k in range(1, 3)]
        first = []
        for i in range(max(len(wj), len(gj), len(zj))):
            for q in (wj, gj, zj):
                if i < len(q):
                    first.append(q[i])
        jobs += first + tj
        A(f"v_mov_b32 {v(CV + 15)}, 0x3f80")
        pend = [(0, CV + 15)]
        slot = 0
        nb = 0
        b1_at = o.get("b1_at", 0)
        batch = o.get("batch", 6)

        def do_b1():
            self.stamp("setup")
            A(f"s_waitcnt vmcnt({1 if o.get('wpf', 1) == 2 else 0})")
            self.stamp("idr")
            A("s_barrier")
            self.stamp("b1")
            if o.get("wpf", 1) == 1:
                A(wpf)
        if b1_at == 0:
            do_b1()
        for n, (row, dst, x, y, conj) in enumerate(jobs):
            if x is not None:
                if dst is None:
                    dst = RR[n & 3]
                for ins in self.cmul(dst, x, y, TT[n & 3]):
                    A(ins)
            A(f"v_cvt_pk_bf16_f32 {v(CV + slot)}, {v(dst)}, {'-' if conj else ''}{v(dst + 1)}")
            pend.append((row, CV + slot))
            slot = (slot + 1) % 15
            if len(pend) >= batch or n == len(jobs) - 1:
                for row_, reg in pend:
                    A(f"ds_write_addtid_b32 {v(reg)} offset:{row_ * ROWB}")
                pend = []
                nb += 1
                if nb == b1_at:
                    do_b1()
        A("s_waitcnt lgkmcnt(0)")
        self.stamp("kgen1")
        A("s_barrier")
        if o.get("wpf", 1) == 3:
            A(wpf)
        fB, fA0, fA1 = K, K + 32, K + 64
        for s in range(4):
            A(f"ds_read_b128 {v(fB + 4 * s, 4)}, {v(vKB)} offset:{47 * ROWB + 64 * s}")
            A(f"ds_read_b128 {v(fA0 + 4 * s, 4)}, {v(vKA0)} offset:{64 * s}")
            A(f"ds_read_b128 {v(fA1 + 4 * s, 4)}, {v(vKA1)} offset:{64 * s}")
        D0, D1 = vACC, vACC + 4
        for s in range(8):
            s2 = s + 4
            A(f"s_waitcnt lgkmcnt({9 if s2 < 8 else 3 * (7 - s)})")
            c0 = "0" if s == 0 else v(D0, 4)
            c1 = "0" if s == 0 else v(D1, 4)
            A(f"v_mfma_f32_16x16x32_bf16 {v(D0, 4)}, {v(fA0 + 4 * s, 4)}, {v(fB + 4 * s, 4)}, {c0}")
            if s2 < 8:
                A(f"ds_read_b128 {v(fB + 4 * s2, 4)}, {v(vKB)} offset:{47 * ROWB + 64 * s2}")
                A(f"ds_read_b128 {v(fA0 + 4 * s2, 4)}, {v(vKA0)} offset:{64 * s2}")
            A(f"v_mfma_f32_16x16x32_bf16 {v(D1, 4)}, {v(fA1 + 4 * s, 4)}, {v(fB + 4 * s, 4)}, {c1}")
            if s2 < 8:
                A(f"ds_read_b128 {v(fA1 + 4 * s2, 4)}, {v(vKA1)} offset:{64 * s2}")
        E = K + 96
        A(f"s_bitcmp1_b32 s{sWAVE}, 0")
        A(f"v_cmp_eq_u32 vcc, 0, {v(vLANE)}")
        A("s_nop 5")
        A("s_cbranch_scc0 L_exp_lo")
        seq2 = ["aa", "aa", "aa", "ba", "bb", "bb", "cb", "cc"]
        seq3 = ["aa", "aa", "aa", "aa", "aa", "ba", "bb", "bb", "bb", "bb", "cb", "cc", "cc", "cc"]
        ix = {"a": 0, "b": 1, "c": 2}
        for k, s in enumerate(seq3):
            A(f"v_cvt_pk_bf16_f32 {v(E + 8 + k)}, {v(D1 + ix[s[0]])}, {v(D1 + ix[s[1]])}")
        for k, w in enumerate((0, 4, 6, 10)):
            A(f"ds_write_b128 {v(vPW1)}, {v(E + 8 + w, 4)} offset:{16 * k}")
        for k, s in enumerate(seq2):
            A(f"v_cvt_pk_bf16_f32 {v(E + k)}, {v(D0 + ix[s[0]])}, {v(D0 + ix[s[1]])}")
        A(f"ds_write_b128 {v(vPW0)}, {v(E, 4)}")
        A(f"ds_write_b128 {v(vPW0)}, {v(E + 4, 4)} offset:16")
        A("L_exp_done:")
        T = self.tail
        T("L_exp_lo:")
        T(f"v_mov_b32_dpp {v(D1 + 3)}, {v(D1 + 3)} row_ror:1 row_mask:0x1 bank_mask:0xf")
        T(f"v_cvt_pk_bf16_f32 {v(E + 1)}, {v(D0 + 1)}, {v(D0)}")
        T(f"v_cvt_pk_bf16_f32 {v(E + 2)}, {v(D0 + 2)}, {v(D0 + 1)}")
        T(f"v_cvt_pk_bf16_f32 {v(E + 3)}, {v(D0 + 3)}, {v(D0 + 2)}")
        T(f"v_cndmask_b32 {v(E + 8)}, {v(D1 + 3)}, 0, vcc")
        T(f"v_cndmask_b32 {v(E + 9)}, {v(D1)}, {v(D1 + 3)}, vcc")
        T(f"v_cvt_pk_bf16_f32 {v(E)}, {v(D0)}, {v(E + 8)}")
        T(f"v_cvt_pk_bf16_f32 {v(E + 4)}, {v(D1)}, {v(E + 9)}")
        T(f"v_cvt_pk_bf16_f32 {v(E + 5)}, {v(D1)}, {v(D1)}")
        T(f"v_cvt_pk_bf16_f32 {v(E + 6)}, {v(D1 + 1)}, {v(D1)}")
        T(f"v_cvt_pk_bf16_f32 {v(E + 7)}, {v(D1 + 2)}, {v(D1 + 1)}")
        T(f"ds_write_b128 {v(vPW0)}, {v(E, 4)}")
        T(f"ds_write_b128 {v(vPW1)}, {v(E + 4, 4)}")
        T("s_branch L_exp_done")
        A("s_waitcnt lgkmcnt(0)")
        self.stamp("kgen2")
        A("s_barrier")
        if o.get("wpf", 1) == 4:
            A(wpf)

        def rdA(buf, rho, m):
            return [f"ds_read2_b32 {v(buf + 4 * m, 2)}, {v(vAA + m)} offset0:{64 * rho + 6} offset1:{64 * rho + 4}",
                    f"ds_read2_b32 {v(buf + 4 * m + 2, 2)}, {v(vAA + m)} offset0:{64 * rho + 2} offset1:{64 * rho}"]

        def rdB(buf, rho, n):
            return [f"ds_read_b128 {v(buf + 4 * n, 4)}, {v(vBA)} offset:{128 * (3 - rho) + 512 * (7 - n)}"]

        for m in range(8):
            for l in rdA(vA0, 0, m):
                A(l)
        A(f"s_mul_i32 s{sTMP}, s{sL}, {RS}")
        A(f"s_lshl_b32 s{sTMP + 1}, s{sWAVE}, 11")
        A(f"s_add_u32 s{sTMP}, s{sTMP}, s{sTMP + 1}")
        A(f"s_add_u32 s{sTMP}, s{sTMP}, {W_REG + O_X2}")
        A(f"v_lshl_add_u32 {v(vT)}, {v(vLANE)}, 4, s{sTMP}")
        A(f"v_lshlrev_b32 {v(vT + 1)}, {KS}, v0")
        A(f"v_add_u32 {v(vT + 1)}, {W_KEY}, {v(vT + 1)}")
        A(f"s_lshl_b32 s{sTMP}, s{sWAVE}, 2")
        A(f"s_add_u32 s{sTMP}, s{sTMP}, {L_REDK}")
        A(f"v_mov_b32 {v(vT + 3)}, s{sTMP}")
        A("s_waitcnt lgkmcnt(0)")
        self.stamp("apre")
        A("s_barrier")
        self.stamp("b3")
        if o.get("wpf", 1) == 5:
            A(wpf)
        if o.get("prio", 1):
            A("s_setprio 2")

        bufA, bufB = [vA0, vA1], [vB0, vB1]
        for n in range(7, -1, -1):
            for l in rdB(vB0, 0, n):
                A(l)
        started = set()
        for rho in range(4):
            a_, b_ = bufA[rho & 1], bufB[rho & 1]
            order = [(n - 7 + tb, tb, n) for n in range(7, -1, -1) for tb in range(7 - n, 8)]
            if rho == 3:
                order = [(n - 7 + tb, tb, n) for tb in range(8) for n in range(7 - tb, 8)]
            fill = []
            if rho + 1 < 4:
                nb_, na_ = bufB[(rho + 1) & 1], bufA[(rho + 1) & 1]
                for m in range(8):
                    fill += rdB(nb_, rho + 1, 7 - m)
                    fill += rdA(na_, rho + 1, m)
            issued = 0
            seen = set()
            done_at = {}
            for i, (m, tb, n) in enumerate(order):
                done_at[tb] = i
            for i, (m, tb, n) in enumerate(order):
                if rho == 0 and n not in seen:
                    A(f"s_waitcnt lgkmcnt({min(15, n + issued)})")
                    seen.add(n)
                elif i == 0:
                    A("s_waitcnt lgkmcnt(0)")
                acc = v(vACC + 4 * tb, 4)
                c = acc if tb in started else "0"
                started.add(tb)
                A(f"v_mfma_f32_16x16x32_bf16 {acc}, {v(a_ + 4 * m, 4)}, {v(b_ + 4 * n, 4)}, {c}")
                if i >= 1 and fill:
                    A(fill.pop(0))
                    issued += 1
                if rho == 3:
                    for t in range(7):
                        if done_at[t] + 8 == i or (i == len(order) - 1 and done_at[t] + 8 > i):
                            A(f"ds_write_b128 {v(vEW)}, {v(vACC + 4 * t, 4)} offset:{t * TBS}")
            assert not fill
        A(f"ds_write_b128 {v(vEW)}, {v(vACC + 28, 4)} offset:{7 * TBS}")
        self.stamp("conv")
        A("s_waitcnt lgkmcnt(0)")
        A("s_barrier")
        for i in range(2):
            for s in range(4):
                A(f"ds_read_b128 {v(K + 16 * i + 4 * s, 4)}, {v(vER)} offset:{s * 8 * TBS + i * TBS}")
        for i in range(2):
            A(f"s_waitcnt lgkmcnt({4 * (1 - i)})")
            b0 = K + 16 * i
            for c in range(2):
                for h in range(2):
                    A(f"v_pk_add_f32 {v(b0 + 8 * c + 2 * h, 2)}, {v(b0 + 8 * c + 2 * h, 2)}, {v(b0 + 8 * c + 4 + 2 * h, 2)}")
            for c in range(2):
                for h in range(2):
                    A(f"v_cvt_pk_bf16_f32 {v(K + 32 + 4 * i + 2 * c + h)}, {v(b0 + 8 * c + 2 * h)}, {v(b0 + 8 * c + 2 * h + 1)}")
            A(f"global_store_dwordx4 {v(vT)}, {v(K + 32 + 4 * i, 4)}, {sp(sWS)} offset:{1024 * i} sc1")
        self.stamp("x2st")
        A("s_waitcnt vmcnt(0)")
        self.stamp("x2dr")
        A("s_barrier")
        A(f"s_cmp_eq_u32 s{sWAVE}, 0")
        A("s_cbranch_scc0 L_cfin")
        for q in range(1, 4):
            A(f"v_add_u32 {v(vT + 8 + q)}, {(64 * q) << KS}, {v(vT + 1)}")
        A("s_barrier")
        self.key_calc(K, vRA, vLANE)
        A("s_mov_b64 exec, 1")
        A(f"global_store_dword {v(22)}, {v(K + 8)}, {sp(sWS)} sc1")
        A("s_mov_b64 exec, -1")
        self.stamp("key")
        A("s_waitcnt vmcnt(0)")
        self.stamp("keydr")
        k2 = vT + 4
        kl = [f"global_load_dword {v(K + q)}, {v(vT + 8 + q) if q else v(vT + 1)}, {sp(sWS)} sc1" for q in range(4)]
        for l in kl:
            A(l)
        A("s_waitcnt vmcnt(0)")
        self.poll("key", kl, [f"v_max3_u32 {v(k2)}, {v(K)}, {v(K + 1)}, {v(K + 2)}",
                              f"v_max_u32 {v(k2)}, {v(k2)}, {v(K + 3)}",
                              f"v_cmp_eq_u32 vcc, -1, {v(k2)}"])
        self.stamp("keyld")
        A(f"v_max_u32_dpp {v(k2)}, {v(k2)}, {v(k2)} quad_perm:[1,0,3,2] row_mask:0xf bank_mask:0xf")
        A(f"v_max_u32_dpp {v(k2)}, {v(k2)}, {v(k2)} quad_perm:[2,3,0,1] row_mask:0xf bank_mask:0xf")
        A(f"v_max_u32_dpp {v(k2)}, {v(k2)}, {v(k2)} row_half_mirror row_mask:0xf bank_mask:0xf")
        A(f"v_max_u32_dpp {v(k2)}, {v(k2)}, {v(k2)} row_mirror row_mask:0xf bank_mask:0xf")
        A(f"v_max_u32_dpp {v(k2)}, {v(k2)}, {v(k2)} row_bcast:15 row_mask:0xa bank_mask:0xf")
        A(f"v_max_u32_dpp {v(k2)}, {v(k2)}, {v(k2)} row_bcast:31 row_mask:0xc bank_mask:0xf")
        A("s_mov_b32 exec_lo, 0")
        A("s_brev_b32 exec_hi, 1")
        A(f"ds_write_b32 {v(vT + 3)}, {v(k2)}")
        A("s_waitcnt lgkmcnt(0)")
        A("s_barrier")
        A("L_cfin:")
        self.finish("C")

    def text(self):
        lines = self.build()
        src = open("sequential_preLN__ssm_conv_s4d__moe_arch_mod__prompt.s.ref").read()
        head = [l for l in src.split("\n") if l.startswith(";") and "@launch" not in l]
        head = head[:head.index("; Override launch geometry by editing the next line (default: block=256,")]
        out = head + [f"; @launch grid=(256,1,1) block=(512,1,1) lds={LDS_BYTES}",
                      '.amdgcn_target "amdgcn-amd-amdhsa--gfx950"', ".text", f".globl {KNAME}", ".p2align 8",
                      f".type {KNAME},@function"]
        out += [l if l.endswith(":") else "    " + l for l in lines]
        out += [".section .rodata,\"a\"", ".p2align 6", f".amdhsa_kernel {KNAME}",
                "  .amdhsa_next_free_vgpr 224", "  .amdhsa_next_free_sgpr 102", "  .amdhsa_accum_offset 224",
                "  .amdhsa_group_segment_fixed_size 0", "  .amdhsa_kernarg_size 120", "  .amdhsa_user_sgpr_count 2",
                "  .amdhsa_user_sgpr_kernarg_segment_ptr 1", "  .amdhsa_system_sgpr_workgroup_id_x 1",
                ".end_amdhsa_kernel", ""]
        return "\n".join(out)


if __name__ == "__main__":
    out = sys.argv[1]
    opts = {}
    stamp = False
    for a in sys.argv[2:]:
        if a == "stamp":
            stamp = True
        else:
            k, val = a.split("=")
            opts[k] = int(val)
    g = Gen(stamp, opts)
    open(out, "w").write(g.text())
    if stamp:
        open(out + ".names", "w").write(" ".join(g.allnames["R"]) + "\n" + " ".join(g.allnames["C"]))
    print(g.info, "lds", LDS_BYTES)
```

```python
import sys
import struct
from asmlib import Asm, align8

KNAME = "sequential_preLN__ssm_conv_s4d__moe_arch_mod__prompt_kernel"


def f2u(x):
    return struct.unpack("<I", struct.pack("<f", x))[0]


W_FLAG = 0x1000 + (int(__import__('os').environ.get('WOFF', '0')) << 20)
W_KEY = 0x9000 + (int(__import__('os').environ.get('WOFF', '0')) << 20)
W_FLAG2 = 0x11000 + (int(__import__('os').environ.get('WOFF', '0')) << 20)
import os
WOFF = int(os.environ.get('WOFF', '0')) << 20
W_REG = 0x38000 + WOFF
RS = 20608
O_X1, O_X2, O_SLOT, O_PART = 0, 8192, 16384, 18432
W_STAMP = 0x800000
ROWB = 544
TABC = 63 * ROWB
L_TAB = 0
L_P = 68608
PC = 8256
L_U = L_P + 2 * PC
UC = 4608
L_RED1 = (L_U + 2 * UC + 255) // 256 * 256
L_RED2 = L_RED1 + 256
L_SUMW = L_RED2 + 384
L_REDK = L_SUMW + 16
L_REDF = L_REDK + 16
LDS_BYTES = L_REDF + 256
L_EPI = 0
TBS = 1152
sX, sLA, sAI, sCR, sCI, sLDT, sD = 4, 6, 8, 10, 12, 14, 16
sWR, sWG, sWU, sWD, sOUT, sDBG, sWS = 20, 22, 24, 26, 28, 30, 32
sL, sPOS, sXCD, sWAVE, sG, sDT, sT0, sT1, sSPIN, sF = 34, 35, 36, 37, 38, 39, 40, 41, 42, 43
sODD = 44
sSELLO, sSELHI, sONES, sMASK = 46, 47, 48, 49
sWSEL = 50
sBEST, sWIN, sRP0, sRP1 = 52, 53, 54, 55
sH = 56
sE = 64
sTMP = 66
sOWN = 71
sSTAMP = 72


def sp(r):
    return f"s[{r}:{r + 1}]"


def v(r, n=1):
    return f"v{r}" if n == 1 else f"v[{r}:{r + n - 1}]"


class Gen:
    def __init__(self, stamp=False, opts=None):
        self.A = Asm()
        self.tail = Asm()
        self.stamp_on = stamp
        self.nstamp = 0
        self.names = []
        self.o = dict(opts or {})

    def stamp(self, name):
        if not self.stamp_on:
            return
        k = self.nstamp
        self.nstamp += 1
        self.names.append(name)
        assert sSTAMP + k < 100
        self.A(f"s_memrealtime s[100:101]")
        self.A("s_waitcnt lgkmcnt(0)")
        self.A(f"s_mov_b32 s{sSTAMP + k}, s100")

    def poll(self, name, loads, check, base_exec="-1"):
        A = self.A
        for c in check:
            A(c)
        A(f"s_cbranch_vccnz L_retry_{name}")
        A(f"L_ok_{name}:")
        T = self.tail
        T(f"L_retry_{name}:")
        T(f"s_mov_b32 s{sSPIN}, 0x40000")
        T(f"L_again_{name}:")
        T(f"s_sub_u32 s{sSPIN}, s{sSPIN}, 1")
        T(f"s_cbranch_scc1 L_ok_{name}")
        T("s_mov_b64 exec, vcc")
        for l in loads:
            T(l)
        T("s_waitcnt vmcnt(0)")
        for c in check:
            T(c)
        T(f"s_mov_b64 exec, {base_exec}")
        T(f"s_cbranch_vccnz L_again_{name}")
        T(f"s_branch L_ok_{name}")

    def cmul(self, d, x, y, t):
        return [f"v_pk_mul_f32 {v(t, 2)}, {v(x, 2)}, {v(y, 2)} op_sel:[0,0] op_sel_hi:[0,1]",
                f"v_pk_fma_f32 {v(d, 2)}, {v(x, 2)}, {v(y, 2)}, {v(t, 2)} op_sel:[1,1,0] op_sel_hi:[1,0,1] neg_lo:[1,0,0]"]

    def reduce8(self, V, t):
        A = self.A
        for i in range(4):
            A(f"v_add_f32_dpp {v(V[i])}, {v(V[i])}, {v(V[i])} row_ror:8 row_mask:0xf bank_mask:0x3")
        for i in range(4):
            A(f"v_add_f32_dpp {v(V[i])}, {v(V[i + 4])}, {v(V[i + 4])} row_ror:8 row_mask:0xf bank_mask:0xc")
        for i in range(2):
            A(f"v_add_f32_dpp {v(V[i])}, {v(V[i])}, {v(V[i])} row_shl:4 row_mask:0xf bank_mask:0x5")
        for i in range(2):
            A(f"v_add_f32_dpp {v(V[i])}, {v(V[i + 2])}, {v(V[i + 2])} row_shr:4 row_mask:0xf bank_mask:0xa")
        A(f"v_permlane32_swap_b32 {v(V[0])}, {v(V[1])}")
        A(f"v_add_f32 {v(V[0])}, {v(V[0])}, {v(V[1])}")
        A(f"v_add_f32_dpp {v(V[0])}, {v(V[0])}, {v(V[0])} quad_perm:[2,3,0,1] row_mask:0xf bank_mask:0xf")
        A(f"v_mov_b32 {v(t)}, {v(V[0])}")
        A(f"v_permlane16_swap_b32 {v(V[0])}, {v(t)}")
        A(f"v_add_f32 {v(V[0])}, {v(V[0])}, {v(t)}")

    def row_stats(self, S, Q, negm, rinv, t):
        A = self.A
        A(f"v_pk_add_f32 {v(S, 2)}, {v(S, 2)}, {v(S + 2, 2)}")
        A(f"v_pk_add_f32 {v(Q, 2)}, {v(Q, 2)}, {v(Q + 2, 2)}")
        A(f"v_add_f32 {v(S)}, {v(S)}, {v(S + 1)}")
        A(f"v_add_f32 {v(Q)}, {v(Q)}, {v(Q + 1)}")
        A(f"v_mul_f32 {v(S)}, {hex(f2u(1 / 512))}, {v(S)}")
        A(f"v_mul_f32 {v(Q)}, {hex(f2u(1 / 512))}, {v(Q)}")
        A(f"v_fma_f32 {v(Q)}, -{v(S)}, {v(S)}, {v(Q)}")
        A(f"v_max_f32 {v(Q)}, 0, {v(Q)}")
        A(f"v_cvt_pk_bf16_f32 {v(t)}, -{v(S)}, {v(Q)}")
        A(f"v_and_b32 {v(Q)}, s{sMASK}, {v(t)}")
        A(f"v_add_f32 {v(Q)}, {hex(f2u(1e-5))}, {v(Q)}")
        A(f"v_cvt_pk_bf16_f32 {v(Q)}, {v(Q)}, {v(Q)}")
        A(f"v_and_b32 {v(Q)}, s{sMASK}, {v(Q)}")
        A(f"v_sqrt_f32 {v(Q)}, {v(Q)}")
        A(f"v_lshlrev_b32 {v(negm)}, 16, {v(t)}")
        A(f"v_cvt_pk_bf16_f32 {v(Q)}, {v(Q)}, {v(Q)}")
        A(f"v_and_b32 {v(Q)}, s{sMASK}, {v(Q)}")
        A(f"v_rcp_f32 {v(rinv)}, {v(Q)}")

    def spread(self, val, dst, t):
        A = self.A
        for r in range(4):
            A(f"v_mov_b32_dpp {v(t + r)}, {v(val)} row_newbcast:{4 + r} row_mask:0xf bank_mask:0xf")
        for r in range(4):
            A(f"v_cndmask_b32_dpp {v(dst + r)}, {v(val)}, {v(t + r)}, vcc row_newbcast:{r} row_mask:0xf bank_mask:0xf")

    def key_calc(self, K, vRA, vLANE):
        A = self.A
        A(f"v_mov_b32 {v(K + 14)}, {L_SUMW}")
        A(f"ds_read_b128 {v(K, 4)}, {v(vRA)} offset:{L_RED2 - L_RED1}")
        A(f"ds_read_b128 {v(K + 4, 4)}, {v(vRA)} offset:{L_RED2 - L_RED1 + 128}")
        A(f"ds_read_b128 {v(K + 8, 4)}, {v(vRA)} offset:{L_RED2 - L_RED1 + 256}")
        A(f"ds_read_b32 {v(K + 15)}, {v(K + 14)}")
        A(f"s_lshl_b32 s{sTMP}, s{sL}, 3")
        A(f"s_sub_u32 s{sTMP}, 2047, s{sTMP}")
        A(f"v_and_b32 {v(K + 14)}, 7, {v(vLANE)}")
        A(f"v_sub_u32 {v(K + 14)}, s{sTMP}, {v(K + 14)}")
        A("s_waitcnt lgkmcnt(2)")
        self.row_stats(K, K + 4, K + 12, K + 13, K + 28)
        A("s_waitcnt lgkmcnt(0)")
        A(f"v_pk_add_f32 {v(K + 8, 2)}, {v(K + 8, 2)}, {v(K + 10, 2)}")
        A(f"v_add_f32 {v(K + 8)}, {v(K + 8)}, {v(K + 9)}")
        A(f"v_fmac_f32 {v(K + 8)}, {v(K + 12)}, {v(K + 15)}")
        A(f"v_mul_f32 {v(K + 8)}, {v(K + 8)}, {v(K + 13)}")
        A(f"v_ashrrev_i32 {v(K + 9)}, 31, {v(K + 8)}")
        A(f"v_or_b32 {v(K + 9)}, 0x80000000, {v(K + 9)}")
        A(f"v_xor_b32 {v(K + 8)}, {v(K + 8)}, {v(K + 9)}")
        A(f"v_and_b32 {v(K + 8)}, 0xfffff800, {v(K + 8)}")
        A(f"v_or_b32 {v(K + 8)}, {v(K + 8)}, {v(K + 14)}")
        A(f"v_min_u32 {v(K + 8)}, -2, {v(K + 8)}")
        A(f"v_max_u32_dpp {v(K + 8)}, {v(K + 8)}, {v(K + 8)} quad_perm:[1,0,3,2] row_mask:0xf bank_mask:0xf")
        A(f"v_max_u32_dpp {v(K + 8)}, {v(K + 8)}, {v(K + 8)} quad_perm:[2,3,0,1] row_mask:0xf bank_mask:0xf")
        A(f"v_max_u32_dpp {v(K + 8)}, {v(K + 8)}, {v(K + 8)} row_half_mirror row_mask:0xf bank_mask:0xf")

    def finish(self, role):
        A = self.A
        o = self.o
        if self.stamp_on:
            self.stamp("end")
            self.allnames[role] = self.names
        if self.stamp_on and "probe" in o:
            k = o["probe"]
            if k == 99 and role == "R":
                A("s_memtime s[96:97]")
                A("s_waitcnt lgkmcnt(0)")
                A("s_sub_u32 s96, s96, s98")
                A(f"s_sub_u32 s97, s{sSTAMP + self.nstamp - 1}, s{sSTAMP}")
                A("s_mov_b64 exec, -1")
                A("v_cvt_f32_u32 v2, s96")
                A("v_cvt_f32_u32 v3, s97")
                A("v_rcp_f32 v3, v3")
                A("s_nop 1")
                A("v_mul_f32 v2, v2, v3")
                A("v_mul_f32 v2, 0x43c80000, v2")
                A("v_cvt_u32_f32 v2, v2")
                A("s_nop 1")
                A(f"v_readfirstlane_b32 s{sTMP}, v2")
                A(f"s_add_u32 s{sTMP}, s{sTMP}, 2000")
            elif k < 0 and role == "R":
                A(f"s_mov_b32 s{sTMP}, {-k}")
            elif k >= 0 and (k >= 100) == (role == "C"):
                A(f"s_sub_u32 s{sTMP}, s{sSTAMP + k % 100}, s{sSTAMP}")
                A(f"s_cmp_lt_u32 s{sTMP}, 3000")
                A(f"s_cselect_b32 s{sTMP}, s{sTMP}, 0")
                A(f"s_mul_i32 s{sTMP}, s{sTMP}, 20")
                A(f"s_add_u32 s{sTMP}, s{sTMP}, 2000")
                if role == "C":
                    A(f"s_cmp_eq_u32 s{sWAVE}, 0")
                    A(f"s_cselect_b32 s{sTMP}, s{sTMP}, 0")
            else:
                A(f"s_mov_b32 s{sTMP}, 0")
            A(f"L_spin{role}:")
            A("s_memrealtime s[100:101]")
            A("s_waitcnt lgkmcnt(0)")
            A(f"s_sub_u32 s100, s100, s{sSTAMP}")
            A(f"s_cmp_lt_u32 s100, s{sTMP}")
            A(f"s_cbranch_scc1 L_spin{role}")
        elif self.stamp_on:
            A("s_mov_b64 exec, 1")
            A(f"s_lshl_b32 s{sTMP}, s2, 3")
            A(f"s_add_u32 s{sTMP}, s{sTMP}, s{sWAVE}")
            if role == "C":
                A(f"s_add_u32 s{sTMP}, s{sTMP}, 4")
            A(f"s_lshl_b32 s{sTMP}, s{sTMP}, 7")
            A(f"s_add_u32 s{sTMP}, s{sTMP}, {W_STAMP}")
            A(f"v_mov_b32 v1, s{sTMP}")
            for k in range(self.nstamp):
                A(f"v_mov_b32 v2, s{sSTAMP + k}")
                A(f"global_store_dword v1, v2, {sp(sWS)} offset:{4 * k}")
        A("s_endpgm")

    def build(self):
        A = self.A
        self.allnames = {}
        A(f"{KNAME}:")
        A("s_cmp_ge_u32 s2, 256")
        A("s_cbranch_scc1 L_end")
        self.stamp("start")
        if self.o.get("probe", 0) == 99:
            A("s_memtime s[98:99]")
        if self.o.get("codepf", 1):
            A(f"s_getpc_b64 {sp(sE)}")
            A("L_pc:")
            A("v_lshlrev_b32 v2, 5, v0")
            A(f"v_min_u32 v2, L_codeend-L_pc-4, v2")
            A(f"global_load_dword v3, v2, {sp(sE)}")
        A("s_load_dwordx16 s[4:19], s[0:1], 0")
        A("s_load_dwordx8 s[20:27], s[0:1], 64")
        A("s_load_dwordx4 s[28:31], s[0:1], 96")
        A("s_load_dwordx2 s[32:33], s[0:1], 112")
        A("v_lshrrev_b32 v4, 6, v0")
        A(f"s_and_b32 s{sXCD}, s2, 7")
        A(f"v_readfirstlane_b32 s{sWAVE}, v4")
        A(f"s_lshr_b32 s{sPOS}, s2, 3")
        A(f"s_lshl_b32 s{sL}, s{sXCD}, 5")
        A(f"s_add_u32 s{sL}, s{sL}, s{sPOS}")
        A("v_and_b32 v1, 63, v0")
        A(f"s_mov_b32 s{sMASK}, 0xffff0000")
        A(f"s_cmp_ge_u32 s{sWAVE}, 4")
        A("s_cbranch_scc1 L_chan")
        self.rows()
        self.names = self.names[:1]
        self.nstamp = min(self.nstamp, 1)
        A(".p2align 6")
        self.chans()
        A("L_end:")
        A("s_endpgm")
        for l in self.tail.L:
            A(l)
        A("L_codeend:")
        lines, nops = A.padded()
        lines, nbytes, promoted, missed = align8(lines)
        self.info = dict(nops=nops, bytes=nbytes, promoted=promoted, missed=missed, lines=len(lines))
        return lines

    def rows(self):
        A = self.A
        o = self.o
        vLANE = 1
        vX, vU, vD, vWR = 212, 10, 18, 20
        vREG, vRD, vAUX = 22, 23, 24
        vKEY, vSW, vRA, vFL, vUW = 26, 27, 28, 29, 30
        vT = 32
        vWG, vWD = 40, 72
        vY = 88
        vONE = 96
        K = 100
        L2E = 1.4426950408889634
        A(f"v_lshrrev_b32 {v(vT)}, 1, v0")
        A(f"v_and_b32 {v(vT + 1)}, 1, v0")
        A(f"v_lshlrev_b32 {v(vT + 2)}, 3, {v(vT)}")
        A(f"s_lshl_b32 s{sT0}, s{sL}, 13")
        A(f"v_lshl_add_u32 {v(vRD)}, {v(vT + 1)}, 12, {v(vT + 2)}")
        A(f"v_add_u32 {v(vRD)}, s{sT0}, {v(vRD)}")
        A(f"s_mul_i32 s{sOWN}, s{sL}, {RS}")
        A(f"s_add_u32 s{sOWN}, s{sOWN}, {W_REG}")
        A(f"s_add_u32 s{sT0}, s{sOWN}, 4096")
        A(f"v_lshl_add_u32 {v(vREG)}, v0, 4, s{sT0}")
        A(f"v_lshlrev_b32 {v(vT + 3)}, 4, {v(vLANE)}")
        nt = ' nt' if o.get('ntx', 1) else ''
        A("s_waitcnt lgkmcnt(0)")
        self.stamp("karg")
        for r in range(4):
            A(f"global_load_dwordx2 {v(vX + 2 * r, 2)}, {v(vRD)}, {sp(sX)} offset:{1024 * r}{nt}")
        A(f"s_load_dword s{sG}, {sp(sWS)}, 0")
        A(f"global_load_dwordx2 {v(vD, 2)}, {v(vT + 2)}, {sp(sD)}")
        A(f"global_load_dwordx2 {v(vWR, 2)}, {v(vT + 2)}, {sp(sWR)}")
        A(f"global_load_dwordx4 {v(vONE, 4)}, {v(vT + 3)}, {sp(sWR)}")
        A(f"s_mov_b32 s{sODD}, 0xaaaaaaaa")
        A(f"s_mov_b32 s{sODD + 1}, 0xaaaaaaaa")
        A(f"s_mov_b32 s{sSELLO}, 0x3f80")
        A(f"s_mov_b32 s{sSELHI}, 0x3f800000")
        A(f"s_mov_b32 s{sONES}, 0x3f803f80")
        A(f"s_and_b32 s{sTMP}, s{sL}, 1")
        A(f"s_lshl_b32 s{sTMP}, s{sTMP}, 12")
        A(f"s_lshr_b32 s{sTMP + 1}, s{sL}, 1")
        A(f"s_lshl_b32 s{sTMP + 1}, s{sTMP + 1}, 5")
        A(f"s_add_u32 s{sTMP}, s{sTMP}, s{sTMP + 1}")
        A(f"s_add_u32 s{sTMP}, s{sTMP}, {W_REG + O_X1}")
        A(f"v_mul_u32_u24 {v(vAUX)}, {RS}, {v(vT)}")
        A(f"v_lshl_add_u32 {v(vAUX)}, {v(vT + 1)}, 4, {v(vAUX)}")
        A(f"v_add_u32 {v(vAUX)}, s{sTMP}, {v(vAUX)}")
        A(f"v_add_u32 {v(vAUX + 1)}, {128 * RS}, {v(vAUX)}")
        FS = o.get("fs", 5)
        KS = o.get("ks", 5)
        A(f"v_lshlrev_b32 {v(vFL)}, {FS}, {v(vT)}")
        A(f"v_add_u32 {v(vFL)}, {W_FLAG}, {v(vFL)}")
        A(f"v_add_u32 {v(vFL + 2)}, {128 << FS}, {v(vFL)}")
        A(f"s_lshl_b32 s{sT0}, s{sL}, {FS}")
        A(f"s_add_u32 s{sT0}, s{sT0}, {W_FLAG}")
        A(f"v_mov_b32 {v(vKEY)}, s{sT0}")
        A(f"v_lshlrev_b32 {v(vSW)}, 6, {v(vT + 1)}")
        A(f"v_and_b32 {v(vT + 3)}, 4, {v(vLANE)}")
        A(f"v_lshl_add_u32 {v(vSW)}, {v(vT + 3)}, 3, {v(vSW)}")
        A(f"v_and_b32 {v(vT + 3)}, 8, {v(vLANE)}")
        A(f"v_lshl_add_u32 {v(vSW)}, {v(vT + 3)}, 4, {v(vSW)}")
        A(f"v_lshrrev_b32 {v(vT + 3)}, 5, {v(vLANE)}")
        A(f"v_lshl_add_u32 {v(vSW)}, {v(vT + 3)}, 4, {v(vSW)}")
        A(f"s_lshl_b32 s{sTMP}, s{sWAVE}, 2")
        A(f"s_add_u32 s{sTMP}, s{sTMP}, {L_RED1}")
        A(f"v_add_u32 {v(vSW)}, s{sTMP}, {v(vSW)}")
        A(f"v_and_b32 {v(vT + 3)}, 7, {v(vLANE)}")
        A(f"v_lshlrev_b32 {v(vRA)}, 4, {v(vT + 3)}")
        A(f"v_add_u32 {v(vRA)}, {L_RED1}, {v(vRA)}")
        A(f"v_lshlrev_b32 {v(vUW)}, 3, v0")
        A(f"v_mov_b32 {v(K)}, 0")
        A(f"v_mov_b32 {v(K + 1)}, 0")
        A(f"v_min_u32 {v(vT + 3)}, 472, {v(vUW)}")
        A(f"v_add_u32 {v(vT + 3)}, {L_U}, {v(vT + 3)}")
        A(f"v_min_u32 {v(vT + 4)}, 56, {v(vUW)}")
        A(f"v_add_u32 {v(vT + 4)}, {L_P}, {v(vT + 4)}")
        A(f"ds_write2st64_b64 {v(vT + 3)}, {v(K, 2)}, {v(K, 2)} offset0:0 offset1:9")
        A(f"ds_write_b64 {v(vT + 4)}, {v(K, 2)}")
        A(f"ds_write_b64 {v(vT + 4)}, {v(K, 2)} offset:{PC}")
        A(f"v_add_u32 {v(vUW)}, {L_U + 480}, {v(vUW)}")

        V = [K + i for i in range(8)]
        A("s_waitcnt vmcnt(3)")
        self.stamp("x")
        for r in range(4):
            A(f"v_dot2_f32_bf16 {v(V[r])}, {v(vX + 2 * r)}, s{sONES}, 0")
        for r in range(4):
            A(f"v_dot2_f32_bf16 {v(V[4 + r])}, {v(vX + 2 * r)}, {v(vX + 2 * r)}, 0")
        for r in range(4):
            A(f"v_dot2_f32_bf16 {v(V[r])}, {v(vX + 2 * r + 1)}, s{sONES}, {v(V[r])}")
        for r in range(4):
            A(f"v_dot2_f32_bf16 {v(V[4 + r])}, {v(vX + 2 * r + 1)}, {v(vX + 2 * r + 1)}, {v(V[4 + r])}")
        self.reduce8(V, K + 8)
        A(f"ds_write_b32 {v(vSW)}, {v(V[0])}")
        A("s_waitcnt lgkmcnt(0)")
        A("s_barrier")
        self.stamp("b1")
        A(f"ds_read_b128 {v(K, 4)}, {v(vRA)}")
        A(f"ds_read_b128 {v(K + 4, 4)}, {v(vRA)} offset:128")
        A(f"s_add_u32 s{sG}, s{sG}, 0x9e3779b9")
        A(f"v_mov_b32 {v(K + 8)}, s{sG}")
        A(f"s_cmp_eq_u32 s{sWAVE}, 0")
        A("s_cselect_b64 exec, 1, 0")
        A(f"global_store_dword {v(vKEY)}, {v(K + 8)}, {sp(sWS)} sc1")
        A("s_mov_b64 exec, -1")
        A(f"s_mov_b64 vcc, {sp(sODD)}")
        A("s_waitcnt lgkmcnt(0)")
        vNM, vRI = K + 16, K + 20
        self.row_stats(K, K + 4, K + 10, K + 11, K + 12)
        self.spread(K + 10, vNM, K + 24)
        Dd = K + 32
        for c in range(4):
            for r in range(4):
                A(f"v_dot2_f32_bf16 {v(Dd + 4 * c + r)}, {v(vX + 2 * r + (c >> 1))}, s{sSELHI if c & 1 else sSELLO}, {v(vNM + r)}")
        self.spread(K + 11, vRI, K + 24)
        Pk = K + 48
        for half in range(2):
            ks = range(4 * half, 4 * half + 4)
            for k in ks:
                A(f"v_cvt_pk_bf16_f32 {v(Pk + k)}, {v(Dd + 2 * k)}, {v(Dd + 2 * k + 1)}")
            for k in ks:
                A(f"v_lshlrev_b32 {v(Dd + 2 * k)}, 16, {v(Pk + k)}")
                A(f"v_and_b32 {v(Dd + 2 * k + 1)}, s{sMASK}, {v(Pk + k)}")
            for k in ks:
                A(f"v_pk_mul_f32 {v(Dd + 2 * k, 2)}, {v(Dd + 2 * k, 2)}, {v(vRI + 2 * (k & 1), 2)}")
            for k in ks:
                A(f"v_cvt_pk_bf16_f32 {v(vU + k)}, {v(Dd + 2 * k)}, {v(Dd + 2 * k + 1)}")
            A(f"global_store_dwordx4 {v(vREG)}, {v(vU + 4 * half, 4)}, {sp(sWS)} offset:{-4096 + 4096 * half} sc1")
        self.stamp("x1st")
        fl = [f"global_load_dword {v(vT + 4)}, {v(vFL)}, {sp(sWS)} sc1",
              f"global_load_dword {v(vT + 5)}, {v(vFL + 2)}, {sp(sWS)} sc1"]
        flchk = [f"v_xor_b32 {v(vT + 6)}, s{sG}, {v(vT + 4)}",
                 f"v_xor_b32 {v(vT + 7)}, s{sG}, {v(vT + 5)}",
                 f"v_or_b32 {v(vT + 6)}, {v(vT + 6)}, {v(vT + 7)}",
                 f"v_cmp_ne_u32 vcc, 0, {v(vT + 6)}"]
        flmode = o.get("flmode", 1)
        if flmode == 1:
            A("s_waitcnt vmcnt(0)")
        if flmode < 2:
            for l in fl:
                A(l)
        A("s_barrier")
        if flmode == 2:
            for l in fl:
                A(l)
        A("s_waitcnt vmcnt(0)")
        self.stamp("x1dr")
        self.poll("flag", fl, flchk)
        xl = [f"global_load_dwordx4 {v(vY, 4)}, {v(vAUX)}, {sp(sWS)} sc1",
              f"global_load_dwordx4 {v(vY + 4, 4)}, {v(vAUX + 1)}, {sp(sWS)} sc1"]
        for l in xl:
            A(l)
        self.stamp("flag")
        A(f"s_mul_i32 s{sF}, s{sXCD}, 14")
        A(f"s_add_u32 s{sF}, s{sF}, s{sPOS}")
        A(f"s_bitcmp1_b32 s{sWAVE}, 0")
        A(f"s_cselect_b64 {sp(sWSEL)}, {sp(sWU)}, {sp(sWG)}")
        A(f"s_lshr_b32 s{sTMP + 1}, s{sWAVE}, 1")
        A(f"s_mul_i32 s{sTMP + 1}, s{sTMP + 1}, {256 * 3584}")
        A(f"s_lshl_b32 s{sTMP + 2}, s{sF}, 5")
        A(f"s_add_u32 s{sTMP + 1}, s{sTMP + 1}, s{sTMP + 2}")
        vWA = K + 8
        A(f"v_lshrrev_b32 {v(vWA)}, 1, {v(vLANE)}")
        A(f"v_mul_u32_u24 {v(vWA)}, {8 * 3584}, {v(vWA)}")
        A(f"v_lshl_add_u32 {v(vWA)}, {v(vT + 1)}, 4, {v(vWA)}")
        A(f"v_add_u32 {v(vWA)}, s{sTMP + 1}, {v(vWA)}")
        A(f"v_add_u32 {v(vWA + 2)}, {7 * 3584}, {v(vWA)}")
        A(f"v_add_u32 {v(vWA + 1)}, {4 * 3584}, {v(vWA)}")
        A(f"v_add_u32 {v(vWA)}, 3584, {v(vWA)}")
        A(f"s_lshl_b32 s{sTMP + 1}, s{sF}, 14")
        A(f"s_add_u32 s{sTMP + 1}, s{sTMP + 1}, 4096")
        A(f"v_lshl_add_u32 {v(vWA + 3)}, v0, 2, s{sTMP + 1}")
        A(f"v_add_u32 {v(vWA + 4)}, 8192, {v(vWA + 3)}")
        A(f"v_dot2_f32_bf16 {v(K + 4)}, {v(vONE)}, s{sONES}, 0")
        for k in range(1, 4):
            A(f"v_dot2_f32_bf16 {v(K + 4)}, {v(vONE + k)}, s{sONES}, {v(K + 4)}")
        A(f"v_mov_b32 {v(K + 5)}, {L_SUMW}")
        A(f"s_mov_b32 s{sRP0}, 0x05040100")
        A(f"s_mov_b32 s{sRP1}, 0x07060302")
        for sh in (8, 4, 2, 1):
            A(f"v_add_f32_dpp {v(K + 4)}, {v(K + 4)}, {v(K + 4)} row_ror:{sh} row_mask:0xf bank_mask:0xf")
        A(f"v_add_f32_dpp {v(K + 4)}, {v(K + 4)}, {v(K + 4)} row_bcast:15 row_mask:0xa bank_mask:0xf")
        A(f"v_add_f32_dpp {v(K + 4)}, {v(K + 4)}, {v(K + 4)} row_bcast:31 row_mask:0xc bank_mask:0xf")
        A("s_mov_b32 exec_lo, 0")
        A("s_brev_b32 exec_hi, 1")
        A(f"ds_write_b32 {v(K + 5)}, {v(K + 4)}")
        A("s_mov_b64 exec, -1")
        A("s_barrier")
        A("s_waitcnt vmcnt(0)")
        chk8 = [f"v_max3_u32 {v(vT + 6)}, {v(vY)}, {v(vY + 1)}, {v(vY + 2)}",
                f"v_max3_u32 {v(vT + 7)}, {v(vY + 3)}, {v(vY + 4)}, {v(vY + 5)}",
                f"v_max3_u32 {v(vT + 6)}, {v(vT + 6)}, {v(vY + 6)}, {v(vY + 7)}",
                f"v_max_u32 {v(vT + 6)}, {v(vT + 6)}, {v(vT + 7)}",
                f"v_cmp_eq_u32 vcc, -1, {v(vT + 6)}"]
        self.poll("x1", xl, chk8)
        self.stamp("x1ld")
        A(f"ds_write2st64_b64 {v(vUW)}, {v(vY, 2)}, {v(vY + 2, 2)} offset0:0 offset1:9")
        A(f"ds_write2st64_b64 {v(vUW)}, {v(vY + 4, 2)}, {v(vY + 6, 2)} offset0:4 offset1:13")
        A("s_waitcnt lgkmcnt(0)")
        A("s_barrier")

        A(f"s_cmp_lt_u32 s{sPOS}, 14")
        A("s_cbranch_scc0 L_now")
        for k in range(8):
            A(f"global_load_dwordx4 {v(vWG + 4 * k, 4)}, {v(vWA + k // 3)}, {sp(sWSEL)} offset:{(k % 3 - 1) * 3584}")
        for k in range(16):
            A(f"global_load_dword {v(vWD + k)}, {v(vWA + 3 + (k >> 3))}, {sp(sWD)} offset:{((k & 7) - 4) * 1024}")
        A("L_now:")
        A(f"v_and_b32 {v(vT + 3)}, 0xfe, v0")
        A(f"v_mul_u32_u24 {v(vAUX)}, {RS}, {v(vT + 3)}")
        A(f"v_lshl_add_u32 {v(vAUX)}, {v(vT + 1)}, 4, {v(vAUX)}")
        A(f"s_lshl_b32 s{sTMP}, s{sL}, 5")
        A(f"s_add_u32 s{sTMP}, s{sTMP}, {W_REG + O_X2}")
        A(f"v_add_u32 {v(vAUX)}, s{sTMP}, {v(vAUX)}")
        A(f"v_add_u32 {v(vAUX + 1)}, {RS}, {v(vAUX)}")
        Tt, Xf = K + 40, K + 56
        Df = K + 72
        for k in range(8):
            A(f"v_lshlrev_b32 {v(Tt + 2 * k)}, 16, {v(vU + k)}")
            A(f"v_and_b32 {v(Tt + 2 * k + 1)}, s{sMASK}, {v(vU + k)}")
        A(f"v_lshlrev_b32 {v(Df)}, 16, {v(vD)}")
        A(f"v_and_b32 {v(Df + 1)}, s{sMASK}, {v(vD)}")
        A(f"v_lshlrev_b32 {v(Df + 2)}, 16, {v(vD + 1)}")
        A(f"v_and_b32 {v(Df + 3)}, s{sMASK}, {v(vD + 1)}")
        for k in range(8):
            c = k >> 1
            sel = "op_sel:[1,0] op_sel_hi:[1,1]" if c & 1 else "op_sel_hi:[0,1]"
            A(f"v_pk_mul_f32 {v(Tt + 2 * k, 2)}, {v(Df + (c & 2), 2)}, {v(Tt + 2 * k, 2)} {sel}")
        for k in range(8):
            A(f"v_cvt_pk_bf16_f32 {v(Xf + k)}, {v(Tt + 2 * k)}, {v(Tt + 2 * k + 1)}")
        for k in range(8):
            A(f"v_lshlrev_b32 {v(Tt + 2 * k)}, 16, {v(Xf + k)}")
            A(f"v_and_b32 {v(Tt + 2 * k + 1)}, s{sMASK}, {v(Xf + k)}")
        for r in range(4):
            for c in range(4):
                src = v(vX + 2 * r + (c >> 1))
                if c & 1:
                    A(f"v_and_b32 {v(Xf + 4 * c + r)}, s{sMASK}, {src}")
                else:
                    A(f"v_lshlrev_b32 {v(Xf + 4 * c + r)}, 16, {src}")
        self.stamp("shadow")
        A("s_barrier")
        A("s_barrier")
        self.stamp("b4b")
        for l in xl:
            A(l)
        A("s_waitcnt vmcnt(0)")
        self.poll("x2", xl, chk8)
        self.stamp("x2ld")

        for k in range(8):
            A(f"v_dot2_f32_bf16 {v(Tt + 2 * k)}, {v(vY + k)}, s{sSELLO}, {v(Tt + 2 * k)}")
            A(f"v_dot2_f32_bf16 {v(Tt + 2 * k + 1)}, {v(vY + k)}, s{sSELHI}, {v(Tt + 2 * k + 1)}")
        for k in range(8):
            A(f"v_cvt_pk_bf16_f32 {v(vY + k)}, {v(Tt + 2 * k)}, {v(Tt + 2 * k + 1)}")
        for k in range(8):
            A(f"v_dot2_f32_bf16 {v(Xf + 2 * k)}, {v(vY + k)}, s{sSELLO}, {v(Xf + 2 * k)}")
            A(f"v_dot2_f32_bf16 {v(Xf + 2 * k + 1)}, {v(vY + k)}, s{sSELHI}, {v(Xf + 2 * k + 1)}")
        vH = vX
        for cp in range(2):
            for r in range(4):
                A(f"v_cvt_pk_bf16_f32 {v(vH + 2 * r + cp)}, {v(Xf + 8 * cp + r)}, {v(Xf + 8 * cp + 4 + r)}")
        Rr = [K + 8 + i for i in range(4)]
        for cp in range(2):
            for r in range(4):
                A(f"v_dot2_f32_bf16 {v(V[r])}, {v(vH + 2 * r + cp)}, s{sONES}, {v(V[r]) if cp else 0}")
            for r in range(4):
                A(f"v_dot2_f32_bf16 {v(V[4 + r])}, {v(vH + 2 * r + cp)}, {v(vH + 2 * r + cp)}, {v(V[4 + r]) if cp else 0}")
            for r in range(4):
                A(f"v_dot2_f32_bf16 {v(Rr[r])}, {v(vH + 2 * r + cp)}, {v(vWR + cp)}, {v(Rr[r]) if cp else 0}")
        for i in range(4):
            A(f"v_add_f32_dpp {v(V[i])}, {v(V[i])}, {v(V[i])} row_ror:8 row_mask:0xf bank_mask:0x3")
        for i in range(4):
            A(f"v_add_f32_dpp {v(V[i])}, {v(V[i + 4])}, {v(V[i + 4])} row_ror:8 row_mask:0xf bank_mask:0xc")
        for i in range(2):
            A(f"v_add_f32_dpp {v(Rr[i])}, {v(Rr[i])}, {v(Rr[i])} row_shl:4 row_mask:0xf bank_mask:0x5")
        for i in range(2):
            A(f"v_add_f32_dpp {v(Rr[i])}, {v(Rr[i + 2])}, {v(Rr[i + 2])} row_shr:4 row_mask:0xf bank_mask:0xa")
        for i in range(2):
            A(f"v_add_f32_dpp {v(V[i])}, {v(V[i])}, {v(V[i])} row_shl:4 row_mask:0xf bank_mask:0x5")
        for i in range(2):
            A(f"v_add_f32_dpp {v(V[i])}, {v(V[i + 2])}, {v(V[i + 2])} row_shr:4 row_mask:0xf bank_mask:0xa")
        A(f"v_permlane32_swap_b32 {v(Rr[0])}, {v(Rr[1])}")
        A(f"v_and_b32 {v(K + 13)}, 0xffffff7f, {v(vSW)}")
        A(f"v_permlane32_swap_b32 {v(V[0])}, {v(V[1])}")
        A(f"v_add_f32 {v(Rr[0])}, {v(Rr[0])}, {v(Rr[1])}")
        A(f"v_add_f32 {v(V[0])}, {v(V[0])}, {v(V[1])}")
        A(f"s_mov_b64 vcc, {sp(sODD)}")
        A(f"v_add_f32_dpp {v(Rr[0])}, {v(Rr[0])}, {v(Rr[0])} row_ror:8 row_mask:0xf bank_mask:0xf")
        A(f"v_add_f32_dpp {v(V[0])}, {v(V[0])}, {v(V[0])} quad_perm:[2,3,0,1] row_mask:0xf bank_mask:0xf")
        A(f"v_mov_b32 {v(V[1])}, {v(V[0])}")
        A(f"v_add_f32_dpp {v(Rr[0])}, {v(Rr[0])}, {v(Rr[0])} quad_perm:[2,3,0,1] row_mask:0xf bank_mask:0xf")
        A(f"v_mov_b32 {v(Rr[1])}, {v(Rr[0])}")
        A(f"v_permlane16_swap_b32 {v(V[0])}, {v(V[1])}")
        A(f"v_add_f32 {v(V[0])}, {v(V[0])}, {v(V[1])}")
        A(f"v_permlane16_swap_b32 {v(Rr[0])}, {v(Rr[1])}")
        A(f"v_add_f32 {v(Rr[0])}, {v(Rr[0])}, {v(Rr[1])}")
        A(f"ds_write_b32 {v(vSW)}, {v(V[0])} offset:{L_RED2 - L_RED1}")
        A(f"ds_write_b32 {v(K + 13)}, {v(Rr[0])} offset:{L_RED2 - L_RED1 + 256}")
        A("s_waitcnt lgkmcnt(0)")
        A("s_barrier")
        self.stamp("b5")
        Hf, Dd = Xf, Tt
        self.key_calc(K, vRA, vLANE)
        self.spread(K + 12, vNM, K + 24)
        A(f"v_readfirstlane_b32 s{sBEST}, {v(K + 8)}")
        for r in range(4):
            for cp in range(2):
                A(f"v_lshlrev_b32 {v(Hf + 4 * r + 2 * cp)}, 16, {v(vH + 2 * r + cp)}")
                A(f"v_and_b32 {v(Hf + 4 * r + 2 * cp + 1)}, s{sMASK}, {v(vH + 2 * r + cp)}")
        self.spread(K + 13, vRI, K + 24)
        for k in range(8):
            r = k >> 1
            sel = "op_sel:[1,0] op_sel_hi:[1,1]" if r & 1 else "op_sel_hi:[0,1]"
            A(f"v_pk_add_f32 {v(Dd + 2 * k, 2)}, {v(vNM + (r & 2), 2)}, {v(Hf + 2 * k, 2)} {sel}")
        vX2 = vU
        for k in range(8):
            A(f"v_cvt_pk_bf16_f32 {v(vX2 + k)}, {v(Dd + 2 * k)}, {v(Dd + 2 * k + 1)}")
        for k in range(8):
            A(f"v_lshlrev_b32 {v(Dd + 2 * k)}, 16, {v(vX2 + k)}")
            A(f"v_and_b32 {v(Dd + 2 * k + 1)}, s{sMASK}, {v(vX2 + k)}")
        for k in range(8):
            r = k >> 1
            sel = "op_sel:[1,0] op_sel_hi:[1,1]" if r & 1 else "op_sel_hi:[0,1]"
            A(f"v_pk_mul_f32 {v(Dd + 2 * k, 2)}, {v(vRI + (r & 2), 2)}, {v(Dd + 2 * k, 2)} {sel}")
        for k in range(8):
            A(f"v_cvt_pk_bf16_f32 {v(vX2 + k)}, {v(Dd + 2 * k)}, {v(Dd + 2 * k + 1)}")
        A(f"s_andn2_b32 s{sTMP}, 7, s{sBEST}")
        A(f"s_and_b32 s{sTMP + 1}, s{sTMP}, 3")
        A(f"s_lshl_b32 s{sTMP + 2}, s{sTMP + 1}, 1")
        A(f"s_not_b64 {sp(sE)}, {sp(sODD)}")
        A(f"s_cmp_ge_u32 s{sTMP}, 4")
        A(f"s_cselect_b64 {sp(sE)}, {sp(sODD)}, {sp(sE)}")
        vC = K + 24
        A(f"s_set_gpr_idx_on s{sTMP + 2}, gpr_idx(SRC0)")
        A(f"v_mov_b32 {v(vC)}, {v(vX2)}")
        A(f"v_mov_b32 {v(vC + 1)}, {v(vX2 + 1)}")
        A(f"v_mov_b32 {v(vC + 2)}, {v(vH)}")
        A(f"v_mov_b32 {v(vC + 3)}, {v(vH + 1)}")
        A("s_set_gpr_idx_off")
        A(f"s_add_u32 s{sTMP + 3}, s{sOWN}, {O_SLOT}")
        A(f"v_add_u32 {v(vT)}, s{sTMP + 3}, {v(vT + 2)}")
        A(f"s_mov_b64 exec, {sp(sE)}")
        A(f"global_store_dwordx2 {v(vT)}, {v(vC, 2)}, {sp(sWS)} sc1")
        A(f"global_store_dwordx2 {v(vT)}, {v(vC + 2, 2)}, {sp(sWS)} offset:1024 sc1")
        A("s_mov_b64 exec, -1")
        self.stamp("slot")
        for k in range(8):
            A(f"v_dot2_f32_bf16 {v(Hf + 2 * k)}, {v(vX2 + k)}, s{sSELLO}, {v(Hf + 2 * k)}")
            A(f"v_dot2_f32_bf16 {v(Hf + 2 * k + 1)}, {v(vX2 + k)}, s{sSELHI}, {v(Hf + 2 * k + 1)}")
        vO = vY
        A(f"v_mov_b32 {v(vT + 4)}, {L_REDK}")
        for k in range(8):
            A(f"v_cvt_pk_bf16_f32 {v(vO + k)}, {v(Hf + 2 * k)}, {v(Hf + 2 * k + 1)}")
        osc = " sc1" if o.get("outsc", 0) == 1 else (" nt" if o.get("outsc", 0) == 2 else "")
        for r in range(4):
            A(f"s_cmp_eq_u32 s{sTMP + 1}, {r}")
            A(f"s_cselect_b64 vcc, {sp(sE)}, 0")
            A("s_not_b64 exec, vcc")
            A(f"global_store_dwordx2 {v(vRD)}, {v(vO + 2 * r, 2)}, {sp(sOUT)} offset:{1024 * r}{osc}")
        A("s_mov_b64 exec, -1")
        A(f"s_set_gpr_idx_on s{sTMP + 2}, gpr_idx(SRC0)")
        A(f"v_mov_b32 {v(vC + 4)}, {v(vO)}")
        A(f"v_mov_b32 {v(vC + 5)}, {v(vO + 1)}")
        A("s_set_gpr_idx_off")
        A(f"s_lshl_b32 s{sTMP + 1}, s{sTMP + 1}, 10")
        A(f"v_add_u32 {v(vRD)}, s{sTMP + 1}, {v(vRD)}")
        A(f"s_lshr_b32 s{sTMP}, s{sWAVE}, 1")
        A(f"s_lshl_b32 s{sTMP}, s{sTMP}, 9")
        A(f"s_add_u32 s{sTMP}, s{sTMP}, {W_REG + O_SLOT}")
        A(f"v_lshrrev_b32 {v(vT)}, 1, {v(vLANE)}")
        A(f"v_lshl_add_u32 {v(vT)}, {v(vT)}, 4, s{sTMP}")
        A(f"v_lshlrev_b32 {v(vT + 1)}, 6, {v(vT + 1)}")
        A(f"v_and_b32 {v(vT + 2)}, 12, {v(vLANE)}")
        A(f"v_lshl_add_u32 {v(vT + 1)}, {v(vT + 2)}, 2, {v(vT + 1)}")
        A(f"v_lshrrev_b32 {v(vT + 2)}, 5, {v(vLANE)}")
        A(f"v_lshl_add_u32 {v(vT + 1)}, {v(vT + 2)}, 3, {v(vT + 1)}")
        A(f"s_and_b32 s{sTMP}, s{sWAVE}, 1")
        A(f"s_lshl_b32 s{sTMP}, s{sTMP}, 7")
        A(f"s_lshr_b32 s{sTMP + 1}, s{sWAVE}, 1")
        A(f"s_lshl_b32 s{sTMP + 1}, s{sTMP + 1}, 2")
        A(f"s_add_u32 s{sTMP}, s{sTMP}, s{sTMP + 1}")
        A(f"s_add_u32 s{sTMP}, s{sTMP}, {L_REDF}")
        A(f"v_add_u32 {v(vT + 1)}, s{sTMP}, {v(vT + 1)}")
        A(f"v_and_b32 {v(vT + 2)}, 15, {v(vLANE)}")
        A(f"v_lshlrev_b32 {v(vT + 2)}, 3, {v(vT + 2)}")
        A(f"v_add_u32 {v(vT + 2)}, {L_REDF}, {v(vT + 2)}")
        A(f"s_add_u32 s{sTMP}, s{sOWN}, {O_PART}")
        A(f"v_lshl_add_u32 {v(vT + 3)}, v0, 3, s{sTMP}")
        WGp = K + 80
        for kp in range(4):
            for d in range(4):
                lo, hi = vWG + 8 * kp + d, vWG + 8 * kp + 4 + d
                A(f"v_perm_b32 {v(WGp + 8 * kp + 2 * d)}, {v(hi)}, {v(lo)}, s{sRP0}")
                A(f"v_perm_b32 {v(WGp + 8 * kp + 2 * d + 1)}, {v(hi)}, {v(lo)}, s{sRP1}")
        WDp = vWG
        for kp in range(8):
            lo, hi = vWD + 2 * kp, vWD + 2 * kp + 1
            A(f"v_perm_b32 {v(WDp + 2 * kp)}, {v(hi)}, {v(lo)}, s{sRP0}")
            A(f"v_perm_b32 {v(WDp + 2 * kp + 1)}, {v(hi)}, {v(lo)}, s{sRP1}")
        self.stamp("outst")
        A("s_barrier")
        A(f"ds_read_b32 {v(K)}, {v(vT + 4)}")
        A("s_waitcnt lgkmcnt(0)")
        A(f"v_readfirstlane_b32 s{sWIN}, {v(K)}")
        A(f"s_andn2_b32 s{sT0}, 2047, s{sWIN}")
        A(f"s_lshr_b32 s{sT1}, s{sT0}, 3")
        A(f"s_mul_i32 s{sT1}, s{sT1}, {RS}")
        A(f"s_cmp_lt_u32 s{sPOS}, 14")
        A("s_cbranch_scc0 L_noffn")
        A(f"v_add_u32 {v(vT)}, s{sT1}, {v(vT)}")
        sl = [f"global_load_dwordx4 {v(K, 4)}, {v(vT)}, {sp(sWS)} sc1"]
        A(sl[0])
        self.stamp("win")
        A("s_waitcnt vmcnt(0)")
        self.poll("sel", sl, [f"v_max3_u32 {v(vT + 6)}, {v(K)}, {v(K + 1)}, {v(K + 2)}",
                              f"v_max_u32 {v(vT + 6)}, {v(vT + 6)}, {v(K + 3)}",
                              f"v_cmp_eq_u32 vcc, -1, {v(vT + 6)}"])
        self.stamp("sel")
        V2 = [K + 8 + i for i in range(8)]
        for kp in range(4):
            for c in range(8):
                A(f"v_dot2_f32_bf16 {v(V2[c])}, {v(K + kp)}, {v(WGp + 8 * kp + c)}, {v(V2[c]) if kp else 0}")
        self.reduce8(V2, K + 16)
        A(f"ds_write_b32 {v(vT + 1)}, {v(V2[0])}")
        A("s_waitcnt lgkmcnt(0)")
        A("s_barrier")
        A(f"ds_read_b64 {v(K, 2)}, {v(vT + 2)}")
        A(f"ds_read_b64 {v(K + 2, 2)}, {v(vT + 2)} offset:128")
        A("s_waitcnt lgkmcnt(0)")
        A(f"v_add_f32 {v(K)}, {v(K)}, {v(K + 1)}")
        A(f"v_add_f32 {v(K + 2)}, {v(K + 2)}, {v(K + 3)}")
        A(f"v_cvt_pk_bf16_f32 {v(K + 1)}, {v(K)}, {v(K + 2)}")
        A(f"v_lshlrev_b32 {v(K)}, 16, {v(K + 1)}")
        A(f"v_mul_f32 {v(K + 3)}, {hex(f2u(-L2E))}, {v(K)}")
        A(f"v_exp_f32 {v(K + 3)}, {v(K + 3)}")
        A(f"v_and_b32 {v(K + 2)}, s{sMASK}, {v(K + 1)}")
        A(f"v_add_f32 {v(K + 3)}, 1.0, {v(K + 3)}")
        A(f"v_rcp_f32 {v(K + 3)}, {v(K + 3)}")
        A(f"v_mul_f32 {v(K)}, {v(K)}, {v(K + 3)}")
        A(f"v_cvt_pk_bf16_f32 {v(K)}, {v(K)}, {v(K)}")
        A(f"v_and_b32 {v(K)}, s{sMASK}, {v(K)}")
        A(f"v_mul_f32 {v(K)}, {v(K)}, {v(K + 2)}")
        A(f"v_mov_b32_dpp {v(K + 1)}, {v(K)} quad_perm:[1,1,3,3] row_mask:0xf bank_mask:0xf")
        A(f"v_cvt_pk_bf16_f32 {v(K)}, {v(K)}, {v(K + 1)}")
        for kp in range(8):
            A(f"v_readlane_b32 s{sH + kp}, {v(K)}, {2 * kp}")
        for kp in range(8):
            for c in range(2):
                A(f"v_dot2_f32_bf16 {v(K + 4 + c)}, s{sH + kp}, {v(WDp + 2 * kp + c)}, {v(K + 4 + c) if kp else 0}")
        A(f"global_store_dwordx2 {v(vT + 3)}, {v(K + 4, 2)}, {sp(sWS)} sc1")
        self.stamp("part")
        held = [f"s_cmp_eq_u32 s{sWIN}, s{sBEST}",
                f"s_cselect_b64 exec, 0, {sp(sE)}",
                f"global_store_dwordx2 {v(vRD)}, {v(vC + 4, 2)}, {sp(sOUT)}{osc}",
                f"s_or_b32 s{sTMP}, s{sL}, s{sWAVE}",
                f"s_cmp_eq_u32 s{sTMP}, 0",
                "s_cselect_b64 exec, 1, 0",
                f"v_mov_b32 {v(vT + 4)}, s{sG}",
                f"v_mov_b32 {v(vT + 5)}, 0",
                f"global_store_dword {v(vT + 5)}, {v(vT + 4)}, {sp(sWS)} sc1",
                "s_mov_b64 exec, -1"]
        T = self.tail
        T("L_noffn:")
        for l in held:
            T(l)
        T("s_branch L_fin")
        for l in held:
            A(l)
        A(f"s_cmp_lt_u32 s{sPOS}, 8")
        A("s_cbranch_scc0 L_fin")
        A(f"s_cmp_lt_u32 s{sWAVE}, 2")
        A("s_cbranch_scc0 L_fin")
        A(f"s_lshl_b32 s{sTMP}, s{sXCD}, 3")
        A(f"s_add_u32 s{sTMP}, s{sTMP}, s{sPOS}")
        A(f"s_lshl_b32 s{sTMP}, s{sTMP}, 1")
        A(f"s_add_u32 s{sTMP}, s{sTMP}, s{sWAVE}")
        A(f"v_lshrrev_b32 {v(vT)}, 5, {v(vLANE)}")
        A(f"v_bfe_u32 {v(vT + 1)}, {v(vLANE)}, 4, 1")
        A(f"v_lshl_add_u32 {v(vT)}, {v(vT + 1)}, 1, {v(vT)}")
        A(f"s_lshl_b32 s{sTMP + 1}, s{sTMP}, 3")
        A(f"v_lshl_add_u32 {v(vT)}, {v(vT)}, 1, s{sTMP + 1}")
        A(f"s_add_u32 s{sT1}, s{sT1}, {W_REG + O_SLOT}")
        A(f"v_add_u32 {v(vT + 1)}, s{sT1}, {v(vT)}")
        xh = [f"global_load_ushort {v(K + 20)}, {v(vT + 1)}, {sp(sWS)} sc1",
              f"global_load_ushort {v(K + 21)}, {v(vT + 1)}, {sp(sWS)} offset:1024 sc1"]
        for l in xh:
            A(l)
        A(f"s_lshl_b32 s{sTMP + 1}, s{sT0}, 10")
        A(f"v_add_u32 {v(vT)}, s{sTMP + 1}, {v(vT)}")
        A(f"v_min_u32 {v(vT + 2)}, 55, {v(vLANE)}")
        A(f"v_mul_u32_u24 {v(vT + 3)}, 4682, {v(vT + 2)}")
        A(f"v_lshrrev_b32 {v(vT + 3)}, 16, {v(vT + 3)}")
        A(f"v_mad_u32_u24 {v(vT + 2)}, {v(vT + 3)}, 18, {v(vT + 2)}")
        A(f"v_mul_u32_u24 {v(vT + 2)}, {RS}, {v(vT + 2)}")
        A(f"s_lshl_b32 s{sTMP + 1}, s{sTMP}, 4")
        A(f"s_add_u32 s{sTMP + 1}, s{sTMP + 1}, {W_REG + O_PART}")
        A(f"v_add_u32 {v(vT + 2)}, s{sTMP + 1}, {v(vT + 2)}")
        A(f"v_add_u32 {v(vT + 3)}, {128 * RS}, {v(vT + 2)}")
        A(f"s_ashr_i32 s{sTMP + 2}, s{sWIN}, 31")
        A(f"s_not_b32 s{sTMP + 2}, s{sTMP + 2}")
        A(f"s_or_b32 s{sTMP + 2}, s{sTMP + 2}, 0x80000000")
        A(f"s_xor_b32 s{sTMP + 2}, s{sTMP + 2}, s{sWIN}")
        A(f"s_and_b32 s{sTMP + 2}, s{sTMP + 2}, 0xfffff800")
        A(f"s_or_b32 s{sTMP + 2}, s{sTMP + 2}, 0x400")
        A(f"v_cvt_pk_bf16_f32 {v(K + 22)}, s{sTMP + 2}, s{sTMP + 2}")
        A(f"v_and_b32 {v(K + 22)}, s{sMASK}, {v(K + 22)}")
        A(f"v_mul_f32 {v(K + 22)}, {hex(f2u(-L2E))}, {v(K + 22)}")
        A(f"v_exp_f32 {v(K + 22)}, {v(K + 22)}")
        A(f"v_add_f32 {v(K + 22)}, 1.0, {v(K + 22)}")
        A(f"v_rcp_f32 {v(K + 22)}, {v(K + 22)}")
        A(f"v_cvt_pk_bf16_f32 {v(K + 22)}, {v(K + 22)}, {v(K + 22)}")
        A(f"v_and_b32 {v(K + 22)}, s{sMASK}, {v(K + 22)}")
        A("s_waitcnt vmcnt(0)")
        self.stamp("partdr")
        pl = [f"global_load_dwordx4 {v(vY, 4)}, {v(vT + 2)}, {sp(sWS)} sc1",
              f"global_load_dwordx4 {v(vY + 4, 4)}, {v(vT + 3)}, {sp(sWS)} sc1"]
        for l in pl:
            A(l)
        self.poll("xh", xh, [f"v_max_u32 {v(vT + 6)}, {v(K + 20)}, {v(K + 21)}",
                             f"v_cmp_eq_u32 vcc, 0xffff, {v(vT + 6)}"])
        A(f"v_lshlrev_b32 {v(K + 20)}, 16, {v(K + 20)}")
        A(f"v_lshlrev_b32 {v(K + 21)}, 16, {v(K + 21)}")
        A("s_waitcnt vmcnt(0)")
        self.poll("part", pl, chk8)
        self.stamp("partld")
        A(f"v_cmp_gt_u32 vcc, 56, {v(vLANE)}")
        A(f"v_pk_add_f32 {v(vY, 2)}, {v(vY, 2)}, {v(vY + 4, 2)}")
        A(f"v_pk_add_f32 {v(vY + 2, 2)}, {v(vY + 2, 2)}, {v(vY + 6, 2)}")
        for c in range(4):
            A(f"v_cndmask_b32 {v(vY + c)}, 0, {v(vY + c)}, vcc")
        A(f"v_permlane32_swap_b32 {v(vY)}, {v(vY + 1)}")
        A(f"v_permlane32_swap_b32 {v(vY + 2)}, {v(vY + 3)}")
        A(f"v_add_f32 {v(vY)}, {v(vY)}, {v(vY + 1)}")
        A(f"v_add_f32 {v(vY + 2)}, {v(vY + 2)}, {v(vY + 3)}")
        A(f"v_permlane16_swap_b32 {v(vY)}, {v(vY + 2)}")
        A(f"v_add_f32 {v(vY)}, {v(vY)}, {v(vY + 2)}")
        for sh in (8, 4, 2, 1):
            A(f"v_add_f32_dpp {v(vY)}, {v(vY)}, {v(vY)} row_ror:{sh} row_mask:0xf bank_mask:0xf")
        y = vY
        A(f"v_cvt_pk_bf16_f32 {v(y)}, {v(y)}, {v(y)}")
        A(f"v_and_b32 {v(y)}, s{sMASK}, {v(y)}")
        A(f"v_mul_f32 {v(y)}, {v(y)}, {v(K + 22)}")
        A(f"v_cvt_pk_bf16_f32 {v(y)}, {v(y)}, {v(y)}")
        A(f"v_and_b32 {v(y)}, s{sMASK}, {v(y)}")
        A(f"v_add_f32 {v(y)}, {v(y)}, {v(K + 20)}")
        A(f"v_cvt_pk_bf16_f32 {v(y)}, {v(y)}, {v(y)}")
        A(f"v_and_b32 {v(y)}, s{sMASK}, {v(y)}")
        A(f"v_add_f32 {v(y)}, {v(y)}, {v(K + 21)}")
        A(f"v_cvt_pk_bf16_f32 {v(y)}, {v(y)}, {v(y)}")
        A("s_mov_b32 exec_lo, 0x00010001")
        A("s_mov_b32 exec_hi, 0x00010001")
        A(f"global_store_short {v(vT)}, {v(y)}, {sp(sOUT)}")
        A("L_fin:")
        self.finish("R")

    def chans(self):
        A = self.A
        o = self.o
        vLANE = 1
        vAA, vBA, vEW, vER, vRA = 4, 12, 13, 14, 15
        vKA0, vKA1, vKB, vPW0, vPW1 = 16, 17, 18, 19, 20
        vP = 24
        vT = 28
        vACC = 40
        vA0, vA1, vB0, vB1 = 72, 104, 136, 168
        K = 72
        A("L_chan:")
        A("v_and_b32 v0, 0xff, v0")
        A(f"s_sub_u32 s{sWAVE}, s{sWAVE}, 4")
        A(f"s_lshl_b32 s{sT0}, s{sL}, 9")
        A(f"v_lshl_add_u32 {v(vT)}, v0, 1, s{sT0}")
        A(f"s_lshl_b32 s{sT1}, s{sL}, 2")
        A("s_waitcnt lgkmcnt(0)")
        self.stamp("karg")
        for k, s in enumerate((sLA, sAI, sCR, sCI)):
            A(f"global_load_ushort {v(vP + k)}, {v(vT)}, {sp(s)}{' nt' if o.get('ntx', 1) else ''}")
        A(f"s_load_dword s{sDT}, {sp(sLDT)}, s{sT1}")
        vJ, vGq = vT + 4, vT + 5
        A(f"v_and_b32 {v(vJ)}, 15, {v(vLANE)}")
        A(f"v_lshrrev_b32 {v(vGq)}, 4, {v(vLANE)}")
        A(f"s_lshr_b32 s{sT0}, s{sWAVE}, 1")
        A(f"s_and_b32 s{sT1}, s{sWAVE}, 1")
        A(f"v_and_b32 {v(vT)}, 7, {v(vLANE)}")
        A(f"v_lshlrev_b32 {v(vRA)}, 4, {v(vT)}")
        A(f"v_add_u32 {v(vRA)}, {L_RED1}, {v(vRA)}")
        A(f"s_mul_i32 s{sTMP}, s{sT0}, {PC}")
        A(f"s_lshl_b32 s{sTMP + 1}, s{sT1}, 7")
        A(f"s_add_u32 s{sTMP}, s{sTMP}, s{sTMP + 1}")
        A(f"s_add_u32 s{sTMP}, s{sTMP}, {L_P + 4 * 26}")
        A(f"v_lshlrev_b32 {v(vT)}, 3, {v(vGq)}")
        A(f"v_sub_u32 {v(vT)}, {v(vJ)}, {v(vT)}")
        A(f"v_lshl_add_u32 {v(vAA)}, {v(vT)}, 2, s{sTMP}")
        for m in range(1, 8):
            A(f"v_add_u32 {v(vAA + m)}, {1024 * m}, {v(vAA)}")
        A(f"s_mul_i32 s{sTMP}, s{sT0}, {UC}")
        A(f"s_lshl_b32 s{sTMP + 1}, s{sT1}, 6")
        A(f"s_sub_u32 s{sTMP}, s{sTMP}, s{sTMP + 1}")
        A(f"s_add_u32 s{sTMP}, s{sTMP}, {L_U + 64}")
        A(f"v_lshl_add_u32 {v(vT)}, {v(vJ)}, 1, {v(vGq)}")
        A(f"v_lshl_add_u32 {v(vBA)}, {v(vT)}, 4, s{sTMP}")
        A(f"v_lshl_add_u32 {v(vT)}, {v(vJ)}, 2, {v(vGq)}")
        A(f"v_lshrrev_b32 {v(vT + 1)}, 3, {v(vT)}")
        A(f"v_add_u32 {v(vT)}, {v(vT)}, {v(vT + 1)}")
        A(f"s_mul_i32 s{sTMP}, s{sWAVE}, {8 * TBS}")
        A(f"v_lshl_add_u32 {v(vEW)}, {v(vT)}, 4, s{sTMP}")
        A(f"v_lshrrev_b32 {v(vT + 1)}, 3, {v(vLANE)}")
        A(f"v_add_u32 {v(vT)}, {v(vLANE)}, {v(vT + 1)}")
        A(f"s_mul_i32 s{sTMP}, s{sWAVE}, {2 * TBS}")
        A(f"v_lshl_add_u32 {v(vER)}, {v(vT)}, 4, s{sTMP}")
        KS = o.get("ks", 5)
        for k in range(4):
            A(f"v_mov_b32 {v(vACC + k)}, -1")
        A(f"s_mul_i32 s{sTMP}, s{sL}, {RS}")
        A(f"s_add_u32 s{sTMP}, s{sTMP}, {W_REG + 4096}")
        A(f"v_lshl_add_u32 {v(vACC + 4)}, v0, 4, s{sTMP}")
        A(f"v_add_u32 {v(vACC + 5)}, 8192, {v(vACC + 4)}")
        A(f"v_add_u32 {v(vACC + 6)}, 12288, {v(vACC + 4)}")
        A(f"s_lshl_b32 s{sTMP}, s{sL}, {KS}")
        A(f"s_add_u32 s{sTMP}, s{sTMP}, {W_KEY}")
        A(f"v_mov_b32 {v(22)}, s{sTMP}")
        ones = v(vACC, 4)
        A(f"s_cmp_eq_u32 s{sWAVE}, 0")
        A("s_cselect_b64 exec, 1, 0")
        A(f"global_store_dword {v(22)}, {v(vACC)}, {sp(sWS)} sc1")
        A("s_mov_b64 exec, -1")
        A(f"global_store_dwordx4 {v(vACC + 4)}, {ones}, {sp(sWS)} offset:-4096 sc1")
        A(f"global_store_dwordx4 {v(vACC + 4)}, {ones}, {sp(sWS)} sc1")
        A(f"global_store_dwordx4 {v(vACC + 5)}, {ones}, {sp(sWS)} offset:-4096 sc1")
        A(f"global_store_dwordx4 {v(vACC + 5)}, {ones}, {sp(sWS)} sc1")
        A(f"global_store_dwordx4 {v(vACC + 6)}, {ones}, {sp(sWS)} sc1")
        vg, vr = vT, vT + 1
        A(f"v_lshrrev_b32 {v(vg)}, 2, {v(vJ)}")
        A(f"v_and_b32 {v(vr)}, 3, {v(vJ)}")
        A(f"s_cmp_eq_u32 s{sT1}, 0")
        A("s_cbranch_scc0 L_rows_hi")
        A(f"v_mov_b32 {v(vKA0)}, {v(vJ)}")
        A(f"v_lshl_add_u32 {v(vKA1)}, {v(vg)}, 1, {v(vr)}")
        A(f"v_add_u32 {v(vKA1)}, 16, {v(vKA1)}")
        A(f"v_add_u32 {v(vT + 2)}, -4, {v(vJ)}")
        A(f"v_and_b32 {v(vT + 2)}, 15, {v(vT + 2)}")
        A(f"v_cmp_eq_u32 vcc, 3, {v(vr)}")
        A(f"v_cndmask_b32 {v(vKA1)}, {v(vKA1)}, {v(vT + 2)}, vcc")
        A(f"v_lshl_add_u32 {v(vPW0)}, {v(vJ)}, 2, {v(vGq)}")
        A(f"v_lshlrev_b32 {v(vPW0)}, 4, {v(vPW0)}")
        A(f"v_add_u32 {v(vPW1)}, 1024, {v(vPW0)}")
        A("s_branch L_rows_done")
        A("L_rows_hi:")
        A(f"v_lshrrev_b32 {v(vT + 2)}, 1, {v(vg)}")
        A(f"v_lshl_add_u32 {v(vKA0)}, {v(vg)}, 1, {v(vr)}")
        A(f"v_add3_u32 {v(vKA0)}, {v(vKA0)}, {v(vT + 2)}, 25")
        A(f"v_sub_u32 {v(vKA1)}, {v(vJ)}, {v(vg)}")
        A(f"v_add_u32 {v(vKA1)}, 35, {v(vKA1)}")
        A(f"v_lshrrev_b32 {v(vT + 2)}, 1, {v(vGq)}")
        A(f"v_lshl_add_u32 {v(vPW0)}, {v(vT + 2)}, 4, {v(vJ)}")
        A(f"v_and_b32 {v(vT + 2)}, 1, {v(vGq)}")
        A(f"v_lshl_add_u32 {v(vPW0)}, {v(vPW0)}, 1, {v(vT + 2)}")
        A(f"v_lshlrev_b32 {v(vPW0)}, 5, {v(vPW0)}")
        A(f"v_add_u32 {v(vPW0)}, 2048, {v(vPW0)}")
        A(f"v_lshlrev_b32 {v(vPW1)}, 6, {v(vLANE)}")
        A(f"v_add_u32 {v(vPW1)}, 4096, {v(vPW1)}")
        A("L_rows_done:")
        A(f"s_mul_i32 s{sTMP}, s{sT0}, {PC}")
        A(f"s_add_u32 s{sTMP}, s{sTMP}, {L_P + 64}")
        A(f"v_add_u32 {v(vPW0)}, s{sTMP}, {v(vPW0)}")
        A(f"v_add_u32 {v(vPW1)}, s{sTMP}, {v(vPW1)}")
        A(f"s_mul_i32 s{sTMP}, s{sT0}, {TABC}")
        A(f"v_lshl_add_u32 {v(vT + 2)}, {v(vGq)}, 4, s{sTMP}")
        A(f"s_movk_i32 s{sTMP + 1}, {ROWB}")
        A(f"v_mad_u32_u24 {v(vKA0)}, {v(vKA0)}, s{sTMP + 1}, {v(vT + 2)}")
        A(f"v_mad_u32_u24 {v(vKA1)}, {v(vKA1)}, s{sTMP + 1}, {v(vT + 2)}")
        A(f"v_mad_u32_u24 {v(vKB)}, {v(vJ)}, s{sTMP + 1}, {v(vT + 2)}")
        A(f"s_lshl_b32 s{sTMP + 1}, s{sT1}, 8")
        A(f"s_add_u32 m0, s{sTMP}, s{sTMP + 1}")
        A(f"s_mul_i32 s{sTMP}, s{sXCD}, 448")
        A(f"s_and_b32 s{sTMP}, s{sTMP}, 0xffffff80")
        A(f"s_mul_i32 s{sTMP + 1}, s{sPOS}, {16 * 3584}")
        A(f"s_add_u32 s{sTMP}, s{sTMP}, s{sTMP + 1}")
        A(f"v_lshrrev_b32 {v(vT + 2)}, 2, {v(vLANE)}")
        A(f"v_mul_u32_u24 {v(vT + 2)}, 3584, {v(vT + 2)}")
        A(f"v_and_b32 {v(vT + 3)}, 3, {v(vLANE)}")
        A(f"v_lshl_add_u32 {v(vT + 2)}, {v(vT + 3)}, 7, {v(vT + 2)}")
        A(f"v_add_u32 {v(vT + 2)}, s{sTMP}, {v(vT + 2)}")
        A(f"s_mul_i32 s{sTMP}, s{sL}, 7168")
        A(f"s_mul_i32 s{sTMP + 1}, s{sT1}, 3584")
        A(f"s_add_u32 s{sTMP}, s{sTMP}, s{sTMP + 1}")
        A(f"v_min_u32 {v(vT + 3)}, 27, {v(vLANE)}")
        A(f"v_lshl_add_u32 {v(vT + 3)}, {v(vT + 3)}, 7, s{sTMP}")
        A(f"s_cmp_eq_u32 s{sT1}, 0")
        A(f"s_cselect_b64 {sp(sWSEL)}, {sp(sWG)}, {sp(sWU)}")
        A(f"s_cmp_eq_u32 s{sT0}, 0")
        A(f"s_cselect_b64 {sp(sWSEL)}, {sp(sWSEL)}, {sp(sWD)}")
        A("s_cselect_b64 vcc, -1, 0")
        A(f"v_cndmask_b32 {v(21)}, {v(vT + 3)}, {v(vT + 2)}, vcc")
        wpf = f"global_load_dword v3, v21, {sp(sWSEL)}{' nt' if o.get('ntw', 1) else ''}"
        if o.get("wpf", 1) == 2:
            A(wpf)

        L2E = 1.4426950408889634
        l2e_hi = struct.unpack("<f", struct.pack("<f", L2E))[0]
        l2e_lo = L2E - l2e_hi
        a, b = K, K + 2
        A(f"s_mov_b32 s{sE}, {hex(f2u(l2e_hi))}")
        A(f"s_mov_b32 s{sE + 1}, {hex(f2u(l2e_lo))}")
        A(f"s_waitcnt vmcnt({6 if o.get('wpf', 1) == 2 else 5}) lgkmcnt(0)")
        self.stamp("par")
        A(f"s_lshl_b32 s{sTMP}, s{sDT}, 16")
        A(f"s_and_b32 s{sTMP + 1}, s{sDT}, s{sMASK}")
        A(f"s_cmp_lt_u32 s{sWAVE}, 2")
        A(f"s_cselect_b32 s{sDT}, s{sTMP}, s{sTMP + 1}")
        A(f"v_lshlrev_b32 {v(a)}, 16, {v(vP)}")
        A(f"v_mov_b32 {v(a + 1)}, s{sDT}")
        A(f"v_pk_mul_f32 {v(b, 2)}, {v(a, 2)}, {sp(sE)} op_sel_hi:[1,0]")
        A(f"v_pk_fma_f32 {v(b + 2, 2)}, {v(a, 2)}, {sp(sE)}, {v(b, 2)} op_sel_hi:[1,0,1] neg_lo:[0,0,1] neg_hi:[0,0,1]")
        A(f"v_exp_f32 {v(b)}, {v(b)}")
        A(f"v_exp_f32 {v(b + 1)}, {v(b + 1)}")
        A(f"v_pk_fma_f32 {v(b + 2, 2)}, {sp(sE)}, {v(a, 2)}, {v(b + 2, 2)} op_sel:[1,0,0] op_sel_hi:[1,1,1]")
        A(f"v_mul_f32 {v(b + 2)}, {hex(f2u(0.6931471805599453))}, {v(b + 2)}")
        A(f"v_mul_f32 {v(b + 3)}, {hex(f2u(0.6931471805599453))}, {v(b + 3)}")
        A(f"v_pk_fma_f32 {v(b, 2)}, {v(b, 2)}, {v(b + 2, 2)}, {v(b, 2)}")
        A(f"v_cvt_pk_bf16_f32 {v(a)}, {v(b)}, {v(b + 1)}")
        vdt, va2, vph = K + 6, K + 7, K + 8
        A(f"v_and_b32 {v(vdt)}, s{sMASK}, {v(a)}")
        A(f"v_lshlrev_b32 {v(va2)}, 16, {v(a)}")
        A(f"v_lshlrev_b32 {v(vph)}, 16, {v(vP + 1)}")
        A(f"v_mul_f32 {v(va2)}, {v(va2)}, {v(vdt)}")
        A(f"v_mul_f32 {v(vph)}, {v(vph)}, {v(vdt)}")
        A(f"v_mul_f32 {v(va2)}, {hex(f2u(-l2e_hi))}, {v(va2)}")
        A(f"v_mul_f32 {v(vph)}, 0.15915494, {v(vph)}")
        Wp = {p: K + 10 + 2 * p for p in range(1, 17)}
        Zp = {p: K + 42 + 2 * p for p in range(1, 8)}
        G = [K + 58, K + 60]
        TT = [K + 62, K + 64, K + 66, K + 68]
        RR = [K + 70, K + 72, K + 74, K + 76]
        CV = K + 80
        A(f"v_add_f32 {v(vdt)}, {v(vdt)}, {v(vdt)}")
        A(f"v_lshlrev_b32 {v(G[0])}, 16, {v(vP + 2)}")
        A(f"v_lshlrev_b32 {v(G[0] + 1)}, 16, {v(vP + 3)}")
        A(f"v_mul_f32 {v(G[0])}, {v(G[0])}, {v(vdt)}")
        A(f"v_mul_f32 {v(G[0] + 1)}, {v(G[0] + 1)}, {v(vdt)}")
        for n, (dst, sc) in enumerate(((Wp[1], 1.0), (Wp[16], 16.0), (Zp[1], 256.0))):
            t = TT[n]
            if sc == 1.0:
                A(f"v_exp_f32 {v(t)}, {v(va2)}")
                A(f"v_fract_f32 {v(t + 1)}, {v(vph)}")
            else:
                A(f"v_mul_f32 {v(t)}, {hex(f2u(sc))}, {v(va2)}")
                A(f"v_mul_f32 {v(t + 1)}, {hex(f2u(sc))}, {v(vph)}")
                A(f"v_exp_f32 {v(t)}, {v(t)}")
                A(f"v_fract_f32 {v(t + 1)}, {v(t + 1)}")
            A(f"v_cos_f32 {v(dst)}, {v(t + 1)}")
            A(f"v_sin_f32 {v(dst + 1)}, {v(t + 1)}")
        for n, dst in enumerate((Wp[1], Wp[16], Zp[1])):
            A(f"v_pk_mul_f32 {v(dst, 2)}, {v(dst, 2)}, {v(TT[n], 2)} op_sel_hi:[1,0]")
        jobs = [(1, Wp[1], None, None, 0), (16, Zp[1], None, None, 0), (47, G[0], None, None, 1)]
        wj = []
        for p in range(2, 16):
            hb = 1 << (p.bit_length() - 1)
            x, y = (p // 2, p // 2) if hb == p else (hb, p - hb)
            wj.append((p, Wp[p], Wp[x], Wp[y], 0))
        gj = [(47 + j, G[j & 1], G[(j - 1) & 1], Wp[16], 1) for j in range(1, 16)]
        zrow = {2: 25, 3: 30, 4: 35, 5: 38, 6: 41, 7: 44}
        zj = []
        for p in range(2, 8):
            hb = 1 << (p.bit_length() - 1)
            x, y = (p // 2, p // 2) if hb == p else (hb, p - hb)
            zj.append((zrow[p], Zp[p], Zp[x], Zp[y], 0))
        tj = [(16 + k, None, Zp[1], Wp[2 * k], 0) for k in range(1, 9)]
        for z in (2, 3):
            tj += [(zrow[z] + k, None, Zp[z], Wp[4 * k], 0) for k in range(1, 5)]
        for z in (4, 5, 6, 7):
            tj += [(zrow[z] + k, None, Zp[z], Wp[8 * k], 0) for k in range(1, 3)]
        first = []
        for i in range(max(len(wj), len(gj), len(zj))):
            for q in (wj, gj, zj):
                if i < len(q):
                    first.append(q[i])
        jobs += first + tj
        A(f"v_mov_b32 {v(CV + 15)}, 0x3f80")
        pend = [(0, CV + 15)]
        slot = 0
        nb = 0
        b1_at = o.get("b1_at", 0)
        batch = o.get("batch", 6)

        def do_b1():
            self.stamp("setup")
            A(f"s_waitcnt vmcnt({1 if o.get('wpf', 1) == 2 else 0})")
            self.stamp("idr")
            A("s_barrier")
            self.stamp("b1")
            if o.get("wpf", 1) == 1:
                A(wpf)
        if b1_at == 0:
            do_b1()
        for n, (row, dst, x, y, conj) in enumerate(jobs):
            if x is not None:
                if dst is None:
                    dst = RR[n & 3]
                for ins in self.cmul(dst, x, y, TT[n & 3]):
                    A(ins)
            A(f"v_cvt_pk_bf16_f32 {v(CV + slot)}, {v(dst)}, {'-' if conj else ''}{v(dst + 1)}")
            pend.append((row, CV + slot))
            slot = (slot + 1) % 15
            if len(pend) >= batch or n == len(jobs) - 1:
                for row_, reg in pend:
                    A(f"ds_write_addtid_b32 {v(reg)} offset:{row_ * ROWB}")
                pend = []
                nb += 1
                if nb == b1_at:
                    do_b1()
        A("s_waitcnt lgkmcnt(0)")
        self.stamp("kgen1")
        A("s_barrier")
        if o.get("wpf", 1) == 3:
            A(wpf)
        fB, fA0, fA1 = K, K + 32, K + 64
        for s in range(4):
            A(f"ds_read_b128 {v(fB + 4 * s, 4)}, {v(vKB)} offset:{47 * ROWB + 64 * s}")
            A(f"ds_read_b128 {v(fA0 + 4 * s, 4)}, {v(vKA0)} offset:{64 * s}")
            A(f"ds_read_b128 {v(fA1 + 4 * s, 4)}, {v(vKA1)} offset:{64 * s}")
        D0, D1 = vACC, vACC + 4
        for s in range(8):
            s2 = s + 4
            A(f"s_waitcnt lgkmcnt({9 if s2 < 8 else 3 * (7 - s)})")
            c0 = "0" if s == 0 else v(D0, 4)
            c1 = "0" if s == 0 else v(D1, 4)
            A(f"v_mfma_f32_16x16x32_bf16 {v(D0, 4)}, {v(fA0 + 4 * s, 4)}, {v(fB + 4 * s, 4)}, {c0}")
            if s2 < 8:
                A(f"ds_read_b128 {v(fB + 4 * s2, 4)}, {v(vKB)} offset:{47 * ROWB + 64 * s2}")
                A(f"ds_read_b128 {v(fA0 + 4 * s2, 4)}, {v(vKA0)} offset:{64 * s2}")
            A(f"v_mfma_f32_16x16x32_bf16 {v(D1, 4)}, {v(fA1 + 4 * s, 4)}, {v(fB + 4 * s, 4)}, {c1}")
            if s2 < 8:
                A(f"ds_read_b128 {v(fA1 + 4 * s2, 4)}, {v(vKA1)} offset:{64 * s2}")
        E = K + 96
        A(f"s_bitcmp1_b32 s{sWAVE}, 0")
        A(f"v_cmp_eq_u32 vcc, 0, {v(vLANE)}")
        A("s_nop 5")
        A("s_cbranch_scc0 L_exp_lo")
        seq2 = ["aa", "aa", "aa", "ba", "bb", "bb", "cb", "cc"]
        seq3 = ["aa", "aa", "aa", "aa", "aa", "ba", "bb", "bb", "bb", "bb", "cb", "cc", "cc", "cc"]
        ix = {"a": 0, "b": 1, "c": 2}
        for k, s in enumerate(seq3):
            A(f"v_cvt_pk_bf16_f32 {v(E + 8 + k)}, {v(D1 + ix[s[0]])}, {v(D1 + ix[s[1]])}")
        for k, w in enumerate((0, 4, 6, 10)):
            A(f"ds_write_b128 {v(vPW1)}, {v(E + 8 + w, 4)} offset:{16 * k}")
        for k, s in enumerate(seq2):
            A(f"v_cvt_pk_bf16_f32 {v(E + k)}, {v(D0 + ix[s[0]])}, {v(D0 + ix[s[1]])}")
        A(f"ds_write_b128 {v(vPW0)}, {v(E, 4)}")
        A(f"ds_write_b128 {v(vPW0)}, {v(E + 4, 4)} offset:16")
        A("L_exp_done:")
        T = self.tail
        T("L_exp_lo:")
        T(f"v_mov_b32_dpp {v(D1 + 3)}, {v(D1 + 3)} row_ror:1 row_mask:0x1 bank_mask:0xf")
        T(f"v_cvt_pk_bf16_f32 {v(E + 1)}, {v(D0 + 1)}, {v(D0)}")
        T(f"v_cvt_pk_bf16_f32 {v(E + 2)}, {v(D0 + 2)}, {v(D0 + 1)}")
        T(f"v_cvt_pk_bf16_f32 {v(E + 3)}, {v(D0 + 3)}, {v(D0 + 2)}")
        T(f"v_cndmask_b32 {v(E + 8)}, {v(D1 + 3)}, 0, vcc")
        T(f"v_cndmask_b32 {v(E + 9)}, {v(D1)}, {v(D1 + 3)}, vcc")
        T(f"v_cvt_pk_bf16_f32 {v(E)}, {v(D0)}, {v(E + 8)}")
        T(f"v_cvt_pk_bf16_f32 {v(E + 4)}, {v(D1)}, {v(E + 9)}")
        T(f"v_cvt_pk_bf16_f32 {v(E + 5)}, {v(D1)}, {v(D1)}")
        T(f"v_cvt_pk_bf16_f32 {v(E + 6)}, {v(D1 + 1)}, {v(D1)}")
        T(f"v_cvt_pk_bf16_f32 {v(E + 7)}, {v(D1 + 2)}, {v(D1 + 1)}")
        T(f"ds_write_b128 {v(vPW0)}, {v(E, 4)}")
        T(f"ds_write_b128 {v(vPW1)}, {v(E + 4, 4)}")
        T("s_branch L_exp_done")
        A("s_waitcnt lgkmcnt(0)")
        self.stamp("kgen2")
        A("s_barrier")
        if o.get("wpf", 1) == 4:
            A(wpf)

        def rdA(buf, rho, m):
            return [f"ds_read2_b32 {v(buf + 4 * m, 2)}, {v(vAA + m)} offset0:{64 * rho + 6} offset1:{64 * rho + 4}",
                    f"ds_read2_b32 {v(buf + 4 * m + 2, 2)}, {v(vAA + m)} offset0:{64 * rho + 2} offset1:{64 * rho}"]

        def rdB(buf, rho, n):
            return [f"ds_read_b128 {v(buf + 4 * n, 4)}, {v(vBA)} offset:{128 * (3 - rho) + 512 * (7 - n)}"]

        for m in range(8):
            for l in rdA(vA0, 0, m):
                A(l)
        A(f"s_mul_i32 s{sTMP}, s{sL}, {RS}")
        A(f"s_lshl_b32 s{sTMP + 1}, s{sWAVE}, 11")
        A(f"s_add_u32 s{sTMP}, s{sTMP}, s{sTMP + 1}")
        A(f"s_add_u32 s{sTMP}, s{sTMP}, {W_REG + O_X2}")
        A(f"v_lshl_add_u32 {v(vT)}, {v(vLANE)}, 4, s{sTMP}")
        A(f"v_lshlrev_b32 {v(vT + 1)}, {KS}, v0")
        A(f"v_add_u32 {v(vT + 1)}, {W_KEY}, {v(vT + 1)}")
        A(f"s_lshl_b32 s{sTMP}, s{sWAVE}, 2")
        A(f"s_add_u32 s{sTMP}, s{sTMP}, {L_REDK}")
        A(f"v_mov_b32 {v(vT + 3)}, s{sTMP}")
        A("s_waitcnt lgkmcnt(0)")
        self.stamp("apre")
        A("s_barrier")
        self.stamp("b3")
        if o.get("wpf", 1) == 5:
            A(wpf)
        if o.get("prio", 1):
            A("s_setprio 2")

        bufA, bufB = [vA0, vA1], [vB0, vB1]
        for n in range(7, -1, -1):
            for l in rdB(vB0, 0, n):
                A(l)
        started = set()
        for rho in range(4):
            a_, b_ = bufA[rho & 1], bufB[rho & 1]
            order = [(n - 7 + tb, tb, n) for n in range(7, -1, -1) for tb in range(7 - n, 8)]
            if rho == 3:
                order = [(n - 7 + tb, tb, n) for tb in range(8) for n in range(7 - tb, 8)]
            fill = []
            if rho + 1 < 4:
                nb_, na_ = bufB[(rho + 1) & 1], bufA[(rho + 1) & 1]
                for m in range(8):
                    fill += rdB(nb_, rho + 1, 7 - m)
                    fill += rdA(na_, rho + 1, m)
            issued = 0
            seen = set()
            done_at = {}
            for i, (m, tb, n) in enumerate(order):
                done_at[tb] = i
            for i, (m, tb, n) in enumerate(order):
                if rho == 0 and n not in seen:
                    A(f"s_waitcnt lgkmcnt({min(15, n + issued)})")
                    seen.add(n)
                elif i == 0:
                    A("s_waitcnt lgkmcnt(0)")
                acc = v(vACC + 4 * tb, 4)
                c = acc if tb in started else "0"
                started.add(tb)
                A(f"v_mfma_f32_16x16x32_bf16 {acc}, {v(a_ + 4 * m, 4)}, {v(b_ + 4 * n, 4)}, {c}")
                if i >= 1 and fill:
                    A(fill.pop(0))
                    issued += 1
                if rho == 3:
                    for t in range(7):
                        if done_at[t] + 8 == i or (i == len(order) - 1 and done_at[t] + 8 > i):
                            A(f"ds_write_b128 {v(vEW)}, {v(vACC + 4 * t, 4)} offset:{t * TBS}")
            assert not fill
        A(f"ds_write_b128 {v(vEW)}, {v(vACC + 28, 4)} offset:{7 * TBS}")
        self.stamp("conv")
        A("s_waitcnt lgkmcnt(0)")
        A("s_barrier")
        for i in range(2):
            for s in range(4):
                A(f"ds_read_b128 {v(K + 16 * i + 4 * s, 4)}, {v(vER)} offset:{s * 8 * TBS + i * TBS}")
        for i in range(2):
            A(f"s_waitcnt lgkmcnt({4 * (1 - i)})")
            b0 = K + 16 * i
            for c in range(2):
                for h in range(2):
                    A(f"v_pk_add_f32 {v(b0 + 8 * c + 2 * h, 2)}, {v(b0 + 8 * c + 2 * h, 2)}, {v(b0 + 8 * c + 4 + 2 * h, 2)}")
            for c in range(2):
                for h in range(2):
                    A(f"v_cvt_pk_bf16_f32 {v(K + 32 + 4 * i + 2 * c + h)}, {v(b0 + 8 * c + 2 * h)}, {v(b0 + 8 * c + 2 * h + 1)}")
            A(f"global_store_dwordx4 {v(vT)}, {v(K + 32 + 4 * i, 4)}, {sp(sWS)} offset:{1024 * i} sc1")
        self.stamp("x2st")
        A("s_waitcnt vmcnt(0)")
        self.stamp("x2dr")
        A("s_barrier")
        A(f"s_cmp_eq_u32 s{sWAVE}, 0")
        A("s_cbranch_scc0 L_cfin")
        for q in range(1, 4):
            A(f"v_add_u32 {v(vT + 8 + q)}, {(64 * q) << KS}, {v(vT + 1)}")
        A("s_barrier")
        self.key_calc(K, vRA, vLANE)
        A("s_mov_b64 exec, 1")
        A(f"global_store_dword {v(22)}, {v(K + 8)}, {sp(sWS)} sc1")
        A("s_mov_b64 exec, -1")
        self.stamp("key")
        A("s_waitcnt vmcnt(0)")
        self.stamp("keydr")
        k2 = vT + 4
        kl = [f"global_load_dword {v(K + q)}, {v(vT + 8 + q) if q else v(vT + 1)}, {sp(sWS)} sc1" for q in range(4)]
        for l in kl:
            A(l)
        A("s_waitcnt vmcnt(0)")
        self.poll("key", kl, [f"v_max3_u32 {v(k2)}, {v(K)}, {v(K + 1)}, {v(K + 2)}",
                              f"v_max_u32 {v(k2)}, {v(k2)}, {v(K + 3)}",
                              f"v_cmp_eq_u32 vcc, -1, {v(k2)}"])
        self.stamp("keyld")
        A(f"v_max_u32_dpp {v(k2)}, {v(k2)}, {v(k2)} quad_perm:[1,0,3,2] row_mask:0xf bank_mask:0xf")
        A(f"v_max_u32_dpp {v(k2)}, {v(k2)}, {v(k2)} quad_perm:[2,3,0,1] row_mask:0xf bank_mask:0xf")
        A(f"v_max_u32_dpp {v(k2)}, {v(k2)}, {v(k2)} row_half_mirror row_mask:0xf bank_mask:0xf")
        A(f"v_max_u32_dpp {v(k2)}, {v(k2)}, {v(k2)} row_mirror row_mask:0xf bank_mask:0xf")
        A(f"v_max_u32_dpp {v(k2)}, {v(k2)}, {v(k2)} row_bcast:15 row_mask:0xa bank_mask:0xf")
        A(f"v_max_u32_dpp {v(k2)}, {v(k2)}, {v(k2)} row_bcast:31 row_mask:0xc bank_mask:0xf")
        A("s_mov_b32 exec_lo, 0")
        A("s_brev_b32 exec_hi, 1")
        A(f"ds_write_b32 {v(vT + 3)}, {v(k2)}")
        A("s_waitcnt lgkmcnt(0)")
        A("s_barrier")
        A("L_cfin:")
        self.finish("C")

    def text(self):
        lines = self.build()
        src = open("sequential_preLN__ssm_conv_s4d__moe_arch_mod__prompt.s.ref").read()
        head = [l for l in src.split("\n") if l.startswith(";") and "@launch" not in l]
        head = head[:head.index("; Override launch geometry by editing the next line (default: block=256,")]
        out = head + [f"; @launch grid=(256,1,1) block=(512,1,1) lds={LDS_BYTES}",
                      '.amdgcn_target "amdgcn-amd-amdhsa--gfx950"', ".text", f".globl {KNAME}", ".p2align 8",
                      f".type {KNAME},@function"]
        out += [l if l.endswith(":") else "    " + l for l in lines]
        out += [".section .rodata,\"a\"", ".p2align 6", f".amdhsa_kernel {KNAME}",
                "  .amdhsa_next_free_vgpr 224", "  .amdhsa_next_free_sgpr 102", "  .amdhsa_accum_offset 224",
                "  .amdhsa_group_segment_fixed_size 0", "  .amdhsa_kernarg_size 120", "  .amdhsa_user_sgpr_count 2",
                "  .amdhsa_user_sgpr_kernarg_segment_ptr 1", "  .amdhsa_system_sgpr_workgroup_id_x 1",
                ".end_amdhsa_kernel", ""]
        return "\n".join(out)


if __name__ == "__main__":
    out = sys.argv[1]
    opts = {}
    stamp = False
    for a in sys.argv[2:]:
        if a == "stamp":
            stamp = True
        else:
            k, val = a.split("=")
            opts[k] = int(val)
    g = Gen(stamp, opts)
    open(out, "w").write(g.text())
    if stamp:
        open(out + ".names", "w").write(" ".join(g.allnames["R"]) + "\n" + " ".join(g.allnames["C"]))
    print(g.info, "lds", LDS_BYTES)
```

```python
import sys
import struct
from asmlib import Asm, align8

KNAME = "sequential_preLN__ssm_conv_s4d__moe_arch_mod__prompt_kernel"


def f2u(x):
    return struct.unpack("<I", struct.pack("<f", x))[0]


W_FLAG = 0x1000 + (int(__import__('os').environ.get('WOFF', '0')) << 20)
W_KEY = 0x9000 + (int(__import__('os').environ.get('WOFF', '0')) << 20)
W_FLAG2 = 0x11000 + (int(__import__('os').environ.get('WOFF', '0')) << 20)
import os
WOFF = int(os.environ.get('WOFF', '0')) << 20
W_REG = 0x38000 + WOFF
RS = 20608
O_X1, O_X2, O_SLOT, O_PART = 0, 8192, 16384, 18432
W_STAMP = 0x800000
ROWB = 544
TABC = 63 * ROWB
L_TAB = 0
L_P = 68608
PC = 8256
L_U = L_P + 2 * PC
UC = 4608
L_RED1 = (L_U + 2 * UC + 255) // 256 * 256
L_RED2 = L_RED1 + 256
L_SUMW = L_RED2 + 384
L_REDK = L_SUMW + 16
L_REDF = L_REDK + 16
LDS_BYTES = L_REDF + 256
L_EPI = 0
TBS = 1152
sX, sLA, sAI, sCR, sCI, sLDT, sD = 4, 6, 8, 10, 12, 14, 16
sWR, sWG, sWU, sWD, sOUT, sDBG, sWS = 20, 22, 24, 26, 28, 30, 32
sL, sPOS, sXCD, sWAVE, sG, sDT, sT0, sT1, sSPIN, sF = 34, 35, 36, 37, 38, 39, 40, 41, 42, 43
sODD = 44
sSELLO, sSELHI, sONES, sMASK = 46, 47, 48, 49
sWSEL = 50
sBEST, sWIN, sRP0, sRP1 = 52, 53, 54, 55
sH = 56
sE = 64
sTMP = 66
sOWN = 71
sSTAMP = 72


def sp(r):
    return f"s[{r}:{r + 1}]"


def v(r, n=1):
    return f"v{r}" if n == 1 else f"v[{r}:{r + n - 1}]"


class Gen:
    def __init__(self, stamp=False, opts=None):
        self.A = Asm()
        self.tail = Asm()
        self.stamp_on = stamp
        self.nstamp = 0
        self.names = []
        self.o = dict(opts or {})

    def stamp(self, name):
        if not self.stamp_on:
            return
        k = self.nstamp
        self.nstamp += 1
        self.names.append(name)
        assert sSTAMP + k < 100
        self.A(f"s_memrealtime s[100:101]")
        self.A("s_waitcnt lgkmcnt(0)")
        self.A(f"s_mov_b32 s{sSTAMP + k}, s100")

    def poll(self, name, loads, check, base_exec="-1"):
        A = self.A
        for c in check:
            A(c)
        A(f"s_cbranch_vccnz L_retry_{name}")
        A(f"L_ok_{name}:")
        T = self.tail
        T(f"L_retry_{name}:")
        T(f"s_mov_b32 s{sSPIN}, 0x40000")
        T(f"L_again_{name}:")
        T(f"s_sub_u32 s{sSPIN}, s{sSPIN}, 1")
        T(f"s_cbranch_scc1 L_ok_{name}")
        T("s_mov_b64 exec, vcc")
        for l in loads:
            T(l)
        T("s_waitcnt vmcnt(0)")
        for c in check:
            T(c)
        T(f"s_mov_b64 exec, {base_exec}")
        T(f"s_cbranch_vccnz L_again_{name}")
        T(f"s_branch L_ok_{name}")

    def cmul(self, d, x, y, t):
        return [f"v_pk_mul_f32 {v(t, 2)}, {v(x, 2)}, {v(y, 2)} op_sel:[0,0] op_sel_hi:[0,1]",
                f"v_pk_fma_f32 {v(d, 2)}, {v(x, 2)}, {v(y, 2)}, {v(t, 2)} op_sel:[1,1,0] op_sel_hi:[1,0,1] neg_lo:[1,0,0]"]

    def reduce8(self, V, t):
        A = self.A
        for i in range(4):
            A(f"v_add_f32_dpp {v(V[i])}, {v(V[i])}, {v(V[i])} row_ror:8 row_mask:0xf bank_mask:0x3")
        for i in range(4):
            A(f"v_add_f32_dpp {v(V[i])}, {v(V[i + 4])}, {v(V[i + 4])} row_ror:8 row_mask:0xf bank_mask:0xc")
        for i in range(2):
            A(f"v_add_f32_dpp {v(V[i])}, {v(V[i])}, {v(V[i])} row_shl:4 row_mask:0xf bank_mask:0x5")
        for i in range(2):
            A(f"v_add_f32_dpp {v(V[i])}, {v(V[i + 2])}, {v(V[i + 2])} row_shr:4 row_mask:0xf bank_mask:0xa")
        A(f"v_permlane32_swap_b32 {v(V[0])}, {v(V[1])}")
        A(f"v_add_f32 {v(V[0])}, {v(V[0])}, {v(V[1])}")
        A(f"v_add_f32_dpp {v(V[0])}, {v(V[0])}, {v(V[0])} quad_perm:[2,3,0,1] row_mask:0xf bank_mask:0xf")
        A(f"v_mov_b32 {v(t)}, {v(V[0])}")
        A(f"v_permlane16_swap_b32 {v(V[0])}, {v(t)}")
        A(f"v_add_f32 {v(V[0])}, {v(V[0])}, {v(t)}")

    def row_stats(self, S, Q, negm, rinv, t):
        A = self.A
        A(f"v_pk_add_f32 {v(S, 2)}, {v(S, 2)}, {v(S + 2, 2)}")
        A(f"v_pk_add_f32 {v(Q, 2)}, {v(Q, 2)}, {v(Q + 2, 2)}")
        A(f"v_add_f32 {v(S)}, {v(S)}, {v(S + 1)}")
        A(f"v_add_f32 {v(Q)}, {v(Q)}, {v(Q + 1)}")
        A(f"v_mul_f32 {v(S)}, {hex(f2u(1 / 512))}, {v(S)}")
        A(f"v_mul_f32 {v(Q)}, {hex(f2u(1 / 512))}, {v(Q)}")
        A(f"v_fma_f32 {v(Q)}, -{v(S)}, {v(S)}, {v(Q)}")
        A(f"v_max_f32 {v(Q)}, 0, {v(Q)}")
        A(f"v_cvt_pk_bf16_f32 {v(t)}, -{v(S)}, {v(Q)}")
        A(f"v_and_b32 {v(Q)}, s{sMASK}, {v(t)}")
        A(f"v_add_f32 {v(Q)}, {hex(f2u(1e-5))}, {v(Q)}")
        A(f"v_cvt_pk_bf16_f32 {v(Q)}, {v(Q)}, {v(Q)}")
        A(f"v_and_b32 {v(Q)}, s{sMASK}, {v(Q)}")
        A(f"v_sqrt_f32 {v(Q)}, {v(Q)}")
        A(f"v_lshlrev_b32 {v(negm)}, 16, {v(t)}")
        A(f"v_cvt_pk_bf16_f32 {v(Q)}, {v(Q)}, {v(Q)}")
        A(f"v_and_b32 {v(Q)}, s{sMASK}, {v(Q)}")
        A(f"v_rcp_f32 {v(rinv)}, {v(Q)}")

    def spread(self, val, dst, t):
        A = self.A
        for r in range(4):
            A(f"v_mov_b32_dpp {v(t + r)}, {v(val)} row_newbcast:{4 + r} row_mask:0xf bank_mask:0xf")
        for r in range(4):
            A(f"v_cndmask_b32_dpp {v(dst + r)}, {v(val)}, {v(t + r)}, vcc row_newbcast:{r} row_mask:0xf bank_mask:0xf")

    def key_calc(self, K, vRA, vLANE):
        A = self.A
        A(f"v_mov_b32 {v(K + 14)}, {L_SUMW}")
        A(f"ds_read_b128 {v(K, 4)}, {v(vRA)} offset:{L_RED2 - L_RED1}")
        A(f"ds_read_b128 {v(K + 4, 4)}, {v(vRA)} offset:{L_RED2 - L_RED1 + 128}")
        A(f"ds_read_b128 {v(K + 8, 4)}, {v(vRA)} offset:{L_RED2 - L_RED1 + 256}")
        A(f"ds_read_b32 {v(K + 15)}, {v(K + 14)}")
        A(f"s_lshl_b32 s{sTMP}, s{sL}, 3")
        A(f"s_sub_u32 s{sTMP}, 2047, s{sTMP}")
        A(f"v_and_b32 {v(K + 14)}, 7, {v(vLANE)}")
        A(f"v_sub_u32 {v(K + 14)}, s{sTMP}, {v(K + 14)}")
        A("s_waitcnt lgkmcnt(2)")
        self.row_stats(K, K + 4, K + 12, K + 13, K + 28)
        A("s_waitcnt lgkmcnt(0)")
        A(f"v_pk_add_f32 {v(K + 8, 2)}, {v(K + 8, 2)}, {v(K + 10, 2)}")
        A(f"v_add_f32 {v(K + 8)}, {v(K + 8)}, {v(K + 9)}")
        A(f"v_fmac_f32 {v(K + 8)}, {v(K + 12)}, {v(K + 15)}")
        A(f"v_mul_f32 {v(K + 8)}, {v(K + 8)}, {v(K + 13)}")
        A(f"v_ashrrev_i32 {v(K + 9)}, 31, {v(K + 8)}")
        A(f"v_or_b32 {v(K + 9)}, 0x80000000, {v(K + 9)}")
        A(f"v_xor_b32 {v(K + 8)}, {v(K + 8)}, {v(K + 9)}")
        A(f"v_and_b32 {v(K + 8)}, 0xfffff800, {v(K + 8)}")
        A(f"v_or_b32 {v(K + 8)}, {v(K + 8)}, {v(K + 14)}")
        A(f"v_min_u32 {v(K + 8)}, -2, {v(K + 8)}")
        A(f"v_max_u32_dpp {v(K + 8)}, {v(K + 8)}, {v(K + 8)} quad_perm:[1,0,3,2] row_mask:0xf bank_mask:0xf")
        A(f"v_max_u32_dpp {v(K + 8)}, {v(K + 8)}, {v(K + 8)} quad_perm:[2,3,0,1] row_mask:0xf bank_mask:0xf")
        A(f"v_max_u32_dpp {v(K + 8)}, {v(K + 8)}, {v(K + 8)} row_half_mirror row_mask:0xf bank_mask:0xf")

    def finish(self, role):
        A = self.A
        o = self.o
        if self.stamp_on:
            self.stamp("end")
            self.allnames[role] = self.names
        if self.stamp_on and "probe" in o:
            k = o["probe"]
            if k == 99 and role == "R":
                A("s_memtime s[96:97]")
                A("s_waitcnt lgkmcnt(0)")
                A("s_sub_u32 s96, s96, s98")
                A(f"s_sub_u32 s97, s{sSTAMP + self.nstamp - 1}, s{sSTAMP}")
                A("s_mov_b64 exec, -1")
                A("v_cvt_f32_u32 v2, s96")
                A("v_cvt_f32_u32 v3, s97")
                A("v_rcp_f32 v3, v3")
                A("s_nop 1")
                A("v_mul_f32 v2, v2, v3")
                A("v_mul_f32 v2, 0x43c80000, v2")
                A("v_cvt_u32_f32 v2, v2")
                A("s_nop 1")
                A(f"v_readfirstlane_b32 s{sTMP}, v2")
                A(f"s_add_u32 s{sTMP}, s{sTMP}, 2000")
            elif k < 0 and role == "R":
                A(f"s_mov_b32 s{sTMP}, {-k}")
            elif k >= 0 and (k >= 100) == (role == "C"):
                A(f"s_sub_u32 s{sTMP}, s{sSTAMP + k % 100}, s{sSTAMP}")
                A(f"s_cmp_lt_u32 s{sTMP}, 3000")
                A(f"s_cselect_b32 s{sTMP}, s{sTMP}, 0")
                A(f"s_mul_i32 s{sTMP}, s{sTMP}, 20")
                A(f"s_add_u32 s{sTMP}, s{sTMP}, 2000")
                if role == "C":
                    A(f"s_cmp_eq_u32 s{sWAVE}, 0")
                    A(f"s_cselect_b32 s{sTMP}, s{sTMP}, 0")
            else:
                A(f"s_mov_b32 s{sTMP}, 0")
            A(f"L_spin{role}:")
            A("s_memrealtime s[100:101]")
            A("s_waitcnt lgkmcnt(0)")
            A(f"s_sub_u32 s100, s100, s{sSTAMP}")
            A(f"s_cmp_lt_u32 s100, s{sTMP}")
            A(f"s_cbranch_scc1 L_spin{role}")
        elif self.stamp_on:
            A("s_mov_b64 exec, 1")
            A(f"s_lshl_b32 s{sTMP}, s2, 3")
            A(f"s_add_u32 s{sTMP}, s{sTMP}, s{sWAVE}")
            if role == "C":
                A(f"s_add_u32 s{sTMP}, s{sTMP}, 4")
            A(f"s_lshl_b32 s{sTMP}, s{sTMP}, 7")
            A(f"s_add_u32 s{sTMP}, s{sTMP}, {W_STAMP}")
            A(f"v_mov_b32 v1, s{sTMP}")
            for k in range(self.nstamp):
                A(f"v_mov_b32 v2, s{sSTAMP + k}")
                A(f"global_store_dword v1, v2, {sp(sWS)} offset:{4 * k}")
        A("s_endpgm")

    def build(self):
        A = self.A
        self.allnames = {}
        A(f"{KNAME}:")
        A("s_cmp_ge_u32 s2, 256")
        A("s_cbranch_scc1 L_end")
        self.stamp("start")
        if self.o.get("probe", 0) == 99:
            A("s_memtime s[98:99]")
        if self.o.get("codepf", 1):
            A(f"s_getpc_b64 {sp(sE)}")
            A("L_pc:")
            A("v_lshlrev_b32 v2, 5, v0")
            A(f"v_min_u32 v2, L_codeend-L_pc-4, v2")
            A(f"global_load_dword v3, v2, {sp(sE)}")
        A("s_load_dwordx16 s[4:19], s[0:1], 0")
        A("s_load_dwordx8 s[20:27], s[0:1], 64")
        A("s_load_dwordx4 s[28:31], s[0:1], 96")
        A("s_load_dwordx2 s[32:33], s[0:1], 112")
        A("v_lshrrev_b32 v4, 6, v0")
        A(f"s_and_b32 s{sXCD}, s2, 7")
        A(f"v_readfirstlane_b32 s{sWAVE}, v4")
        A(f"s_lshr_b32 s{sPOS}, s2, 3")
        A(f"s_lshl_b32 s{sL}, s{sXCD}, 5")
        A(f"s_add_u32 s{sL}, s{sL}, s{sPOS}")
        A("v_and_b32 v1, 63, v0")
        A(f"s_mov_b32 s{sMASK}, 0xffff0000")
        A(f"s_cmp_ge_u32 s{sWAVE}, 4")
        A("s_cbranch_scc1 L_chan")
        self.rows()
        self.names = self.names[:1]
        self.nstamp = min(self.nstamp, 1)
        A(".p2align 6")
        self.chans()
        A("L_end:")
        A("s_endpgm")
        for l in self.tail.L:
            A(l)
        A("L_codeend:")
        lines, nops = A.padded()
        lines, nbytes, promoted, missed = align8(lines)
        self.info = dict(nops=nops, bytes=nbytes, promoted=promoted, missed=missed, lines=len(lines))
        return lines

    def rows(self):
        A = self.A
        o = self.o
        vLANE = 1
        vX, vU, vD, vWR = 212, 10, 18, 20
        vREG, vRD, vAUX = 22, 23, 24
        vKEY, vSW, vRA, vFL, vUW = 26, 27, 28, 29, 30
        vT = 32
        vWG, vWD = 40, 72
        vY = 88
        vONE = 96
        K = 100
        L2E = 1.4426950408889634
        A(f"v_lshrrev_b32 {v(vT)}, 1, v0")
        A(f"v_and_b32 {v(vT + 1)}, 1, v0")
        A(f"v_lshlrev_b32 {v(vT + 2)}, 3, {v(vT)}")
        A(f"s_lshl_b32 s{sT0}, s{sL}, 13")
        A(f"v_lshl_add_u32 {v(vRD)}, {v(vT + 1)}, 12, {v(vT + 2)}")
        A(f"v_add_u32 {v(vRD)}, s{sT0}, {v(vRD)}")
        A(f"s_mul_i32 s{sOWN}, s{sL}, {RS}")
        A(f"s_add_u32 s{sOWN}, s{sOWN}, {W_REG}")
        A(f"s_add_u32 s{sT0}, s{sOWN}, 4096")
        A(f"v_lshl_add_u32 {v(vREG)}, v0, 4, s{sT0}")
        A(f"v_lshlrev_b32 {v(vT + 3)}, 4, {v(vLANE)}")
        nt = ' nt' if o.get('ntx', 1) else ''
        A("s_waitcnt lgkmcnt(0)")
        self.stamp("karg")
        for r in range(4):
            A(f"global_load_dwordx2 {v(vX + 2 * r, 2)}, {v(vRD)}, {sp(sX)} offset:{1024 * r}{nt}")
        A(f"s_load_dword s{sG}, {sp(sWS)}, 0")
        A(f"global_load_dwordx2 {v(vD, 2)}, {v(vT + 2)}, {sp(sD)}")
        A(f"global_load_dwordx2 {v(vWR, 2)}, {v(vT + 2)}, {sp(sWR)}")
        A(f"global_load_dwordx4 {v(vONE, 4)}, {v(vT + 3)}, {sp(sWR)}")
        A(f"s_mov_b32 s{sODD}, 0xaaaaaaaa")
        A(f"s_mov_b32 s{sODD + 1}, 0xaaaaaaaa")
        A(f"s_mov_b32 s{sSELLO}, 0x3f80")
        A(f"s_mov_b32 s{sSELHI}, 0x3f800000")
        A(f"s_mov_b32 s{sONES}, 0x3f803f80")
        A(f"s_and_b32 s{sTMP}, s{sL}, 1")
        A(f"s_lshl_b32 s{sTMP}, s{sTMP}, 12")
        A(f"s_lshr_b32 s{sTMP + 1}, s{sL}, 1")
        A(f"s_lshl_b32 s{sTMP + 1}, s{sTMP + 1}, 5")
        A(f"s_add_u32 s{sTMP}, s{sTMP}, s{sTMP + 1}")
        A(f"s_add_u32 s{sTMP}, s{sTMP}, {W_REG + O_X1}")
        A(f"v_mul_u32_u24 {v(vAUX)}, {RS}, {v(vT)}")
        A(f"v_lshl_add_u32 {v(vAUX)}, {v(vT + 1)}, 4, {v(vAUX)}")
        A(f"v_add_u32 {v(vAUX)}, s{sTMP}, {v(vAUX)}")
        A(f"v_add_u32 {v(vAUX + 1)}, {128 * RS}, {v(vAUX)}")
        FS = o.get("fs", 7)
        KS = o.get("ks", 5)
        A(f"v_lshlrev_b32 {v(vFL)}, {FS}, {v(vT)}")
        A(f"v_add_u32 {v(vFL)}, {W_FLAG}, {v(vFL)}")
        A(f"v_add_u32 {v(vFL + 2)}, {128 << FS}, {v(vFL)}")
        A(f"s_lshl_b32 s{sT0}, s{sL}, {FS}")
        A(f"s_add_u32 s{sT0}, s{sT0}, {W_FLAG}")
        A(f"v_mov_b32 {v(vKEY)}, s{sT0}")
        A(f"v_lshlrev_b32 {v(vSW)}, 6, {v(vT + 1)}")
        A(f"v_and_b32 {v(vT + 3)}, 4, {v(vLANE)}")
        A(f"v_lshl_add_u32 {v(vSW)}, {v(vT + 3)}, 3, {v(vSW)}")
        A(f"v_and_b32 {v(vT + 3)}, 8, {v(vLANE)}")
        A(f"v_lshl_add_u32 {v(vSW)}, {v(vT + 3)}, 4, {v(vSW)}")
        A(f"v_lshrrev_b32 {v(vT + 3)}, 5, {v(vLANE)}")
        A(f"v_lshl_add_u32 {v(vSW)}, {v(vT + 3)}, 4, {v(vSW)}")
        A(f"s_lshl_b32 s{sTMP}, s{sWAVE}, 2")
        A(f"s_add_u32 s{sTMP}, s{sTMP}, {L_RED1}")
        A(f"v_add_u32 {v(vSW)}, s{sTMP}, {v(vSW)}")
        A(f"v_and_b32 {v(vT + 3)}, 7, {v(vLANE)}")
        A(f"v_lshlrev_b32 {v(vRA)}, 4, {v(vT + 3)}")
        A(f"v_add_u32 {v(vRA)}, {L_RED1}, {v(vRA)}")
        A(f"v_lshlrev_b32 {v(vUW)}, 3, v0")
        A(f"v_mov_b32 {v(K)}, 0")
        A(f"v_mov_b32 {v(K + 1)}, 0")
        A(f"v_min_u32 {v(vT + 3)}, 472, {v(vUW)}")
        A(f"v_add_u32 {v(vT + 3)}, {L_U}, {v(vT + 3)}")
        A(f"v_min_u32 {v(vT + 4)}, 56, {v(vUW)}")
        A(f"v_add_u32 {v(vT + 4)}, {L_P}, {v(vT + 4)}")
        A(f"ds_write2st64_b64 {v(vT + 3)}, {v(K, 2)}, {v(K, 2)} offset0:0 offset1:9")
        A(f"ds_write_b64 {v(vT + 4)}, {v(K, 2)}")
        A(f"ds_write_b64 {v(vT + 4)}, {v(K, 2)} offset:{PC}")
        A(f"v_add_u32 {v(vUW)}, {L_U + 480}, {v(vUW)}")

        V = [K + i for i in range(8)]
        A("s_waitcnt vmcnt(3)")
        self.stamp("x")
        for r in range(4):
            A(f"v_dot2_f32_bf16 {v(V[r])}, {v(vX + 2 * r)}, s{sONES}, 0")
        for r in range(4):
            A(f"v_dot2_f32_bf16 {v(V[4 + r])}, {v(vX + 2 * r)}, {v(vX + 2 * r)}, 0")
        for r in range(4):
            A(f"v_dot2_f32_bf16 {v(V[r])}, {v(vX + 2 * r + 1)}, s{sONES}, {v(V[r])}")
        for r in range(4):
            A(f"v_dot2_f32_bf16 {v(V[4 + r])}, {v(vX + 2 * r + 1)}, {v(vX + 2 * r + 1)}, {v(V[4 + r])}")
        self.reduce8(V, K + 8)
        A(f"ds_write_b32 {v(vSW)}, {v(V[0])}")
        A("s_waitcnt lgkmcnt(0)")
        A("s_barrier")
        self.stamp("b1")
        A(f"ds_read_b128 {v(K, 4)}, {v(vRA)}")
        A(f"ds_read_b128 {v(K + 4, 4)}, {v(vRA)} offset:128")
        A(f"s_add_u32 s{sG}, s{sG}, 0x9e3779b9")
        A(f"v_mov_b32 {v(K + 8)}, s{sG}")
        A(f"s_cmp_eq_u32 s{sWAVE}, 0")
        A("s_cselect_b64 exec, 1, 0")
        A(f"global_store_dword {v(vKEY)}, {v(K + 8)}, {sp(sWS)} sc1")
        A("s_mov_b64 exec, -1")
        A(f"s_mov_b64 vcc, {sp(sODD)}")
        A("s_waitcnt lgkmcnt(0)")
        vNM, vRI = K + 16, K + 20
        self.row_stats(K, K + 4, K + 10, K + 11, K + 12)
        self.spread(K + 10, vNM, K + 24)
        Dd = K + 32
        for c in range(4):
            for r in range(4):
                A(f"v_dot2_f32_bf16 {v(Dd + 4 * c + r)}, {v(vX + 2 * r + (c >> 1))}, s{sSELHI if c & 1 else sSELLO}, {v(vNM + r)}")
        self.spread(K + 11, vRI, K + 24)
        Pk = K + 48
        for half in range(2):
            ks = range(4 * half, 4 * half + 4)
            for k in ks:
                A(f"v_cvt_pk_bf16_f32 {v(Pk + k)}, {v(Dd + 2 * k)}, {v(Dd + 2 * k + 1)}")
            for k in ks:
                A(f"v_lshlrev_b32 {v(Dd + 2 * k)}, 16, {v(Pk + k)}")
                A(f"v_and_b32 {v(Dd + 2 * k + 1)}, s{sMASK}, {v(Pk + k)}")
            for k in ks:
                A(f"v_pk_mul_f32 {v(Dd + 2 * k, 2)}, {v(Dd + 2 * k, 2)}, {v(vRI + 2 * (k & 1), 2)}")
            for k in ks:
                A(f"v_cvt_pk_bf16_f32 {v(vU + k)}, {v(Dd + 2 * k)}, {v(Dd + 2 * k + 1)}")
            A(f"global_store_dwordx4 {v(vREG)}, {v(vU + 4 * half, 4)}, {sp(sWS)} offset:{-4096 + 4096 * half} sc1")
        self.stamp("x1st")
        fl = [f"global_load_dword {v(vT + 4)}, {v(vFL)}, {sp(sWS)} sc1",
              f"global_load_dword {v(vT + 5)}, {v(vFL + 2)}, {sp(sWS)} sc1"]
        flchk = [f"v_xor_b32 {v(vT + 6)}, s{sG}, {v(vT + 4)}",
                 f"v_xor_b32 {v(vT + 7)}, s{sG}, {v(vT + 5)}",
                 f"v_or_b32 {v(vT + 6)}, {v(vT + 6)}, {v(vT + 7)}",
                 f"v_cmp_ne_u32 vcc, 0, {v(vT + 6)}"]
        flmode = o.get("flmode", 1)
        if flmode == 1:
            A("s_waitcnt vmcnt(0)")
        if flmode < 2:
            for l in fl:
                A(l)
        A("s_barrier")
        if flmode == 2:
            for l in fl:
                A(l)
        A("s_waitcnt vmcnt(0)")
        self.stamp("x1dr")
        self.poll("flag", fl, flchk)
        xl = [f"global_load_dwordx4 {v(vY, 4)}, {v(vAUX)}, {sp(sWS)} sc1",
              f"global_load_dwordx4 {v(vY + 4, 4)}, {v(vAUX + 1)}, {sp(sWS)} sc1"]
        for l in xl:
            A(l)
        self.stamp("flag")
        A(f"s_mul_i32 s{sF}, s{sXCD}, 14")
        A(f"s_add_u32 s{sF}, s{sF}, s{sPOS}")
        A(f"s_bitcmp1_b32 s{sWAVE}, 0")
        A(f"s_cselect_b64 {sp(sWSEL)}, {sp(sWU)}, {sp(sWG)}")
        A(f"s_lshr_b32 s{sTMP + 1}, s{sWAVE}, 1")
        A(f"s_mul_i32 s{sTMP + 1}, s{sTMP + 1}, {256 * 3584}")
        A(f"s_lshl_b32 s{sTMP + 2}, s{sF}, 5")
        A(f"s_add_u32 s{sTMP + 1}, s{sTMP + 1}, s{sTMP + 2}")
        vWA = K + 8
        A(f"v_lshrrev_b32 {v(vWA)}, 1, {v(vLANE)}")
        A(f"v_mul_u32_u24 {v(vWA)}, {8 * 3584}, {v(vWA)}")
        A(f"v_lshl_add_u32 {v(vWA)}, {v(vT + 1)}, 4, {v(vWA)}")
        A(f"v_add_u32 {v(vWA)}, s{sTMP + 1}, {v(vWA)}")
        A(f"v_add_u32 {v(vWA + 2)}, {7 * 3584}, {v(vWA)}")
        A(f"v_add_u32 {v(vWA + 1)}, {4 * 3584}, {v(vWA)}")
        A(f"v_add_u32 {v(vWA)}, 3584, {v(vWA)}")
        A(f"s_lshl_b32 s{sTMP + 1}, s{sF}, 14")
        A(f"s_add_u32 s{sTMP + 1}, s{sTMP + 1}, 4096")
        A(f"v_lshl_add_u32 {v(vWA + 3)}, v0, 2, s{sTMP + 1}")
        A(f"v_add_u32 {v(vWA + 4)}, 8192, {v(vWA + 3)}")
        A(f"v_dot2_f32_bf16 {v(K + 4)}, {v(vONE)}, s{sONES}, 0")
        for k in range(1, 4):
            A(f"v_dot2_f32_bf16 {v(K + 4)}, {v(vONE + k)}, s{sONES}, {v(K + 4)}")
        A(f"v_mov_b32 {v(K + 5)}, {L_SUMW}")
        A(f"s_mov_b32 s{sRP0}, 0x05040100")
        A(f"s_mov_b32 s{sRP1}, 0x07060302")
        for sh in (8, 4, 2, 1):
            A(f"v_add_f32_dpp {v(K + 4)}, {v(K + 4)}, {v(K + 4)} row_ror:{sh} row_mask:0xf bank_mask:0xf")
        A(f"v_add_f32_dpp {v(K + 4)}, {v(K + 4)}, {v(K + 4)} row_bcast:15 row_mask:0xa bank_mask:0xf")
        A(f"v_add_f32_dpp {v(K + 4)}, {v(K + 4)}, {v(K + 4)} row_bcast:31 row_mask:0xc bank_mask:0xf")
        A("s_mov_b32 exec_lo, 0")
        A("s_brev_b32 exec_hi, 1")
        A(f"ds_write_b32 {v(K + 5)}, {v(K + 4)}")
        A("s_mov_b64 exec, -1")
        A("s_barrier")
        A("s_waitcnt vmcnt(0)")
        chk8 = [f"v_max3_u32 {v(vT + 6)}, {v(vY)}, {v(vY + 1)}, {v(vY + 2)}",
                f"v_max3_u32 {v(vT + 7)}, {v(vY + 3)}, {v(vY + 4)}, {v(vY + 5)}",
                f"v_max3_u32 {v(vT + 6)}, {v(vT + 6)}, {v(vY + 6)}, {v(vY + 7)}",
                f"v_max_u32 {v(vT + 6)}, {v(vT + 6)}, {v(vT + 7)}",
                f"v_cmp_eq_u32 vcc, -1, {v(vT + 6)}"]
        self.poll("x1", xl, chk8)
        self.stamp("x1ld")
        A(f"ds_write2st64_b64 {v(vUW)}, {v(vY, 2)}, {v(vY + 2, 2)} offset0:0 offset1:9")
        A(f"ds_write2st64_b64 {v(vUW)}, {v(vY + 4, 2)}, {v(vY + 6, 2)} offset0:4 offset1:13")
        A("s_waitcnt lgkmcnt(0)")
        A("s_barrier")

        A(f"s_cmp_lt_u32 s{sPOS}, 14")
        A("s_cbranch_scc0 L_now")
        for k in range(8):
            A(f"global_load_dwordx4 {v(vWG + 4 * k, 4)}, {v(vWA + k // 3)}, {sp(sWSEL)} offset:{(k % 3 - 1) * 3584}")
        for k in range(16):
            A(f"global_load_dword {v(vWD + k)}, {v(vWA + 3 + (k >> 3))}, {sp(sWD)} offset:{((k & 7) - 4) * 1024}")
        A("L_now:")
        A(f"v_and_b32 {v(vT + 3)}, 0xfe, v0")
        A(f"v_mul_u32_u24 {v(vAUX)}, {RS}, {v(vT + 3)}")
        A(f"v_lshl_add_u32 {v(vAUX)}, {v(vT + 1)}, 4, {v(vAUX)}")
        A(f"s_lshl_b32 s{sTMP}, s{sL}, 5")
        A(f"s_add_u32 s{sTMP}, s{sTMP}, {W_REG + O_X2}")
        A(f"v_add_u32 {v(vAUX)}, s{sTMP}, {v(vAUX)}")
        A(f"v_add_u32 {v(vAUX + 1)}, {RS}, {v(vAUX)}")
        Tt, Xf = K + 40, K + 56
        Df = K + 72
        for k in range(8):
            A(f"v_lshlrev_b32 {v(Tt + 2 * k)}, 16, {v(vU + k)}")
            A(f"v_and_b32 {v(Tt + 2 * k + 1)}, s{sMASK}, {v(vU + k)}")
        A(f"v_lshlrev_b32 {v(Df)}, 16, {v(vD)}")
        A(f"v_and_b32 {v(Df + 1)}, s{sMASK}, {v(vD)}")
        A(f"v_lshlrev_b32 {v(Df + 2)}, 16, {v(vD + 1)}")
        A(f"v_and_b32 {v(Df + 3)}, s{sMASK}, {v(vD + 1)}")
        for k in range(8):
            c = k >> 1
            sel = "op_sel:[1,0] op_sel_hi:[1,1]" if c & 1 else "op_sel_hi:[0,1]"
            A(f"v_pk_mul_f32 {v(Tt + 2 * k, 2)}, {v(Df + (c & 2), 2)}, {v(Tt + 2 * k, 2)} {sel}")
        for k in range(8):
            A(f"v_cvt_pk_bf16_f32 {v(Xf + k)}, {v(Tt + 2 * k)}, {v(Tt + 2 * k + 1)}")
        for k in range(8):
            A(f"v_lshlrev_b32 {v(Tt + 2 * k)}, 16, {v(Xf + k)}")
            A(f"v_and_b32 {v(Tt + 2 * k + 1)}, s{sMASK}, {v(Xf + k)}")
        for r in range(4):
            for c in range(4):
                src = v(vX + 2 * r + (c >> 1))
                if c & 1:
                    A(f"v_and_b32 {v(Xf + 4 * c + r)}, s{sMASK}, {src}")
                else:
                    A(f"v_lshlrev_b32 {v(Xf + 4 * c + r)}, 16, {src}")
        self.stamp("shadow")
        A("s_barrier")
        A("s_barrier")
        self.stamp("b4b")
        for l in xl:
            A(l)
        A("s_waitcnt vmcnt(0)")
        self.poll("x2", xl, chk8)
        self.stamp("x2ld")

        for k in range(8):
            A(f"v_dot2_f32_bf16 {v(Tt + 2 * k)}, {v(vY + k)}, s{sSELLO}, {v(Tt + 2 * k)}")
            A(f"v_dot2_f32_bf16 {v(Tt + 2 * k + 1)}, {v(vY + k)}, s{sSELHI}, {v(Tt + 2 * k + 1)}")
        for k in range(8):
            A(f"v_cvt_pk_bf16_f32 {v(vY + k)}, {v(Tt + 2 * k)}, {v(Tt + 2 * k + 1)}")
        for k in range(8):
            A(f"v_dot2_f32_bf16 {v(Xf + 2 * k)}, {v(vY + k)}, s{sSELLO}, {v(Xf + 2 * k)}")
            A(f"v_dot2_f32_bf16 {v(Xf + 2 * k + 1)}, {v(vY + k)}, s{sSELHI}, {v(Xf + 2 * k + 1)}")
        vH = vX
        for cp in range(2):
            for r in range(4):
                A(f"v_cvt_pk_bf16_f32 {v(vH + 2 * r + cp)}, {v(Xf + 8 * cp + r)}, {v(Xf + 8 * cp + 4 + r)}")
        Rr = [K + 8 + i for i in range(4)]
        for cp in range(2):
            for r in range(4):
                A(f"v_dot2_f32_bf16 {v(V[r])}, {v(vH + 2 * r + cp)}, s{sONES}, {v(V[r]) if cp else 0}")
            for r in range(4):
                A(f"v_dot2_f32_bf16 {v(V[4 + r])}, {v(vH + 2 * r + cp)}, {v(vH + 2 * r + cp)}, {v(V[4 + r]) if cp else 0}")
            for r in range(4):
                A(f"v_dot2_f32_bf16 {v(Rr[r])}, {v(vH + 2 * r + cp)}, {v(vWR + cp)}, {v(Rr[r]) if cp else 0}")
        for i in range(4):
            A(f"v_add_f32_dpp {v(V[i])}, {v(V[i])}, {v(V[i])} row_ror:8 row_mask:0xf bank_mask:0x3")
        for i in range(4):
            A(f"v_add_f32_dpp {v(V[i])}, {v(V[i + 4])}, {v(V[i + 4])} row_ror:8 row_mask:0xf bank_mask:0xc")
        for i in range(2):
            A(f"v_add_f32_dpp {v(Rr[i])}, {v(Rr[i])}, {v(Rr[i])} row_shl:4 row_mask:0xf bank_mask:0x5")
        for i in range(2):
            A(f"v_add_f32_dpp {v(Rr[i])}, {v(Rr[i + 2])}, {v(Rr[i + 2])} row_shr:4 row_mask:0xf bank_mask:0xa")
        for i in range(2):
            A(f"v_add_f32_dpp {v(V[i])}, {v(V[i])}, {v(V[i])} row_shl:4 row_mask:0xf bank_mask:0x5")
        for i in range(2):
            A(f"v_add_f32_dpp {v(V[i])}, {v(V[i + 2])}, {v(V[i + 2])} row_shr:4 row_mask:0xf bank_mask:0xa")
        A(f"v_permlane32_swap_b32 {v(Rr[0])}, {v(Rr[1])}")
        A(f"v_and_b32 {v(K + 13)}, 0xffffff7f, {v(vSW)}")
        A(f"v_permlane32_swap_b32 {v(V[0])}, {v(V[1])}")
        A(f"v_add_f32 {v(Rr[0])}, {v(Rr[0])}, {v(Rr[1])}")
        A(f"v_add_f32 {v(V[0])}, {v(V[0])}, {v(V[1])}")
        A(f"s_mov_b64 vcc, {sp(sODD)}")
        A(f"v_add_f32_dpp {v(Rr[0])}, {v(Rr[0])}, {v(Rr[0])} row_ror:8 row_mask:0xf bank_mask:0xf")
        A(f"v_add_f32_dpp {v(V[0])}, {v(V[0])}, {v(V[0])} quad_perm:[2,3,0,1] row_mask:0xf bank_mask:0xf")
        A(f"v_mov_b32 {v(V[1])}, {v(V[0])}")
        A(f"v_add_f32_dpp {v(Rr[0])}, {v(Rr[0])}, {v(Rr[0])} quad_perm:[2,3,0,1] row_mask:0xf bank_mask:0xf")
        A(f"v_mov_b32 {v(Rr[1])}, {v(Rr[0])}")
        A(f"v_permlane16_swap_b32 {v(V[0])}, {v(V[1])}")
        A(f"v_add_f32 {v(V[0])}, {v(V[0])}, {v(V[1])}")
        A(f"v_permlane16_swap_b32 {v(Rr[0])}, {v(Rr[1])}")
        A(f"v_add_f32 {v(Rr[0])}, {v(Rr[0])}, {v(Rr[1])}")
        A(f"ds_write_b32 {v(vSW)}, {v(V[0])} offset:{L_RED2 - L_RED1}")
        A(f"ds_write_b32 {v(K + 13)}, {v(Rr[0])} offset:{L_RED2 - L_RED1 + 256}")
        A("s_waitcnt lgkmcnt(0)")
        A("s_barrier")
        self.stamp("b5")
        Hf, Dd = Xf, Tt
        self.key_calc(K, vRA, vLANE)
        self.spread(K + 12, vNM, K + 24)
        A(f"v_readfirstlane_b32 s{sBEST}, {v(K + 8)}")
        for r in range(4):
            for cp in range(2):
                A(f"v_lshlrev_b32 {v(Hf + 4 * r + 2 * cp)}, 16, {v(vH + 2 * r + cp)}")
                A(f"v_and_b32 {v(Hf + 4 * r + 2 * cp + 1)}, s{sMASK}, {v(vH + 2 * r + cp)}")
        self.spread(K + 13, vRI, K + 24)
        for k in range(8):
            r = k >> 1
            sel = "op_sel:[1,0] op_sel_hi:[1,1]" if r & 1 else "op_sel_hi:[0,1]"
            A(f"v_pk_add_f32 {v(Dd + 2 * k, 2)}, {v(vNM + (r & 2), 2)}, {v(Hf + 2 * k, 2)} {sel}")
        vX2 = vU
        for k in range(8):
            A(f"v_cvt_pk_bf16_f32 {v(vX2 + k)}, {v(Dd + 2 * k)}, {v(Dd + 2 * k + 1)}")
        for k in range(8):
            A(f"v_lshlrev_b32 {v(Dd + 2 * k)}, 16, {v(vX2 + k)}")
            A(f"v_and_b32 {v(Dd + 2 * k + 1)}, s{sMASK}, {v(vX2 + k)}")
        for k in range(8):
            r = k >> 1
            sel = "op_sel:[1,0] op_sel_hi:[1,1]" if r & 1 else "op_sel_hi:[0,1]"
            A(f"v_pk_mul_f32 {v(Dd + 2 * k, 2)}, {v(vRI + (r & 2), 2)}, {v(Dd + 2 * k, 2)} {sel}")
        for k in range(8):
            A(f"v_cvt_pk_bf16_f32 {v(vX2 + k)}, {v(Dd + 2 * k)}, {v(Dd + 2 * k + 1)}")
        A(f"s_andn2_b32 s{sTMP}, 7, s{sBEST}")
        A(f"s_and_b32 s{sTMP + 1}, s{sTMP}, 3")
        A(f"s_lshl_b32 s{sTMP + 2}, s{sTMP + 1}, 1")
        A(f"s_not_b64 {sp(sE)}, {sp(sODD)}")
        A(f"s_cmp_ge_u32 s{sTMP}, 4")
        A(f"s_cselect_b64 {sp(sE)}, {sp(sODD)}, {sp(sE)}")
        vC = K + 24
        A(f"s_set_gpr_idx_on s{sTMP + 2}, gpr_idx(SRC0)")
        A(f"v_mov_b32 {v(vC)}, {v(vX2)}")
        A(f"v_mov_b32 {v(vC + 1)}, {v(vX2 + 1)}")
        A(f"v_mov_b32 {v(vC + 2)}, {v(vH)}")
        A(f"v_mov_b32 {v(vC + 3)}, {v(vH + 1)}")
        A("s_set_gpr_idx_off")
        A(f"s_add_u32 s{sTMP + 3}, s{sOWN}, {O_SLOT}")
        A(f"v_add_u32 {v(vT)}, s{sTMP + 3}, {v(vT + 2)}")
        A(f"s_mov_b64 exec, {sp(sE)}")
        A(f"global_store_dwordx2 {v(vT)}, {v(vC, 2)}, {sp(sWS)} sc1")
        A(f"global_store_dwordx2 {v(vT)}, {v(vC + 2, 2)}, {sp(sWS)} offset:1024 sc1")
        A("s_mov_b64 exec, -1")
        self.stamp("slot")
        for k in range(8):
            A(f"v_dot2_f32_bf16 {v(Hf + 2 * k)}, {v(vX2 + k)}, s{sSELLO}, {v(Hf + 2 * k)}")
            A(f"v_dot2_f32_bf16 {v(Hf + 2 * k + 1)}, {v(vX2 + k)}, s{sSELHI}, {v(Hf + 2 * k + 1)}")
        vO = vY
        A(f"v_mov_b32 {v(vT + 4)}, {L_REDK}")
        for k in range(8):
            A(f"v_cvt_pk_bf16_f32 {v(vO + k)}, {v(Hf + 2 * k)}, {v(Hf + 2 * k + 1)}")
        osc = " sc1" if o.get("outsc", 0) == 1 else (" nt" if o.get("outsc", 0) == 2 else "")
        for r in range(4):
            A(f"s_cmp_eq_u32 s{sTMP + 1}, {r}")
            A(f"s_cselect_b64 vcc, {sp(sE)}, 0")
            A("s_not_b64 exec, vcc")
            A(f"global_store_dwordx2 {v(vRD)}, {v(vO + 2 * r, 2)}, {sp(sOUT)} offset:{1024 * r}{osc}")
        A("s_mov_b64 exec, -1")
        A(f"s_set_gpr_idx_on s{sTMP + 2}, gpr_idx(SRC0)")
        A(f"v_mov_b32 {v(vC + 4)}, {v(vO)}")
        A(f"v_mov_b32 {v(vC + 5)}, {v(vO + 1)}")
        A("s_set_gpr_idx_off")
        A(f"s_lshl_b32 s{sTMP + 1}, s{sTMP + 1}, 10")
        A(f"v_add_u32 {v(vRD)}, s{sTMP + 1}, {v(vRD)}")
        A(f"s_lshr_b32 s{sTMP}, s{sWAVE}, 1")
        A(f"s_lshl_b32 s{sTMP}, s{sTMP}, 9")
        A(f"s_add_u32 s{sTMP}, s{sTMP}, {W_REG + O_SLOT}")
        A(f"v_lshrrev_b32 {v(vT)}, 1, {v(vLANE)}")
        A(f"v_lshl_add_u32 {v(vT)}, {v(vT)}, 4, s{sTMP}")
        A(f"v_lshlrev_b32 {v(vT + 1)}, 6, {v(vT + 1)}")
        A(f"v_and_b32 {v(vT + 2)}, 12, {v(vLANE)}")
        A(f"v_lshl_add_u32 {v(vT + 1)}, {v(vT + 2)}, 2, {v(vT + 1)}")
        A(f"v_lshrrev_b32 {v(vT + 2)}, 5, {v(vLANE)}")
        A(f"v_lshl_add_u32 {v(vT + 1)}, {v(vT + 2)}, 3, {v(vT + 1)}")
        A(f"s_and_b32 s{sTMP}, s{sWAVE}, 1")
        A(f"s_lshl_b32 s{sTMP}, s{sTMP}, 7")
        A(f"s_lshr_b32 s{sTMP + 1}, s{sWAVE}, 1")
        A(f"s_lshl_b32 s{sTMP + 1}, s{sTMP + 1}, 2")
        A(f"s_add_u32 s{sTMP}, s{sTMP}, s{sTMP + 1}")
        A(f"s_add_u32 s{sTMP}, s{sTMP}, {L_REDF}")
        A(f"v_add_u32 {v(vT + 1)}, s{sTMP}, {v(vT + 1)}")
        A(f"v_and_b32 {v(vT + 2)}, 15, {v(vLANE)}")
        A(f"v_lshlrev_b32 {v(vT + 2)}, 3, {v(vT + 2)}")
        A(f"v_add_u32 {v(vT + 2)}, {L_REDF}, {v(vT + 2)}")
        A(f"s_add_u32 s{sTMP}, s{sOWN}, {O_PART}")
        A(f"v_lshl_add_u32 {v(vT + 3)}, v0, 3, s{sTMP}")
        WGp = K + 80
        for kp in range(4):
            for d in range(4):
                lo, hi = vWG + 8 * kp + d, vWG + 8 * kp + 4 + d
                A(f"v_perm_b32 {v(WGp + 8 * kp + 2 * d)}, {v(hi)}, {v(lo)}, s{sRP0}")
                A(f"v_perm_b32 {v(WGp + 8 * kp + 2 * d + 1)}, {v(hi)}, {v(lo)}, s{sRP1}")
        WDp = vWG
        for kp in range(8):
            lo, hi = vWD + 2 * kp, vWD + 2 * kp + 1
            A(f"v_perm_b32 {v(WDp + 2 * kp)}, {v(hi)}, {v(lo)}, s{sRP0}")
            A(f"v_perm_b32 {v(WDp + 2 * kp + 1)}, {v(hi)}, {v(lo)}, s{sRP1}")
        self.stamp("outst")
        A("s_barrier")
        A(f"ds_read_b32 {v(K)}, {v(vT + 4)}")
        A("s_waitcnt lgkmcnt(0)")
        A(f"v_readfirstlane_b32 s{sWIN}, {v(K)}")
        A(f"s_andn2_b32 s{sT0}, 2047, s{sWIN}")
        A(f"s_lshr_b32 s{sT1}, s{sT0}, 3")
        A(f"s_mul_i32 s{sT1}, s{sT1}, {RS}")
        A(f"s_cmp_lt_u32 s{sPOS}, 14")
        A("s_cbranch_scc0 L_noffn")
        A(f"v_add_u32 {v(vT)}, s{sT1}, {v(vT)}")
        sl = [f"global_load_dwordx4 {v(K, 4)}, {v(vT)}, {sp(sWS)} sc1"]
        A(sl[0])
        self.stamp("win")
        A("s_waitcnt vmcnt(0)")
        self.poll("sel", sl, [f"v_max3_u32 {v(vT + 6)}, {v(K)}, {v(K + 1)}, {v(K + 2)}",
                              f"v_max_u32 {v(vT + 6)}, {v(vT + 6)}, {v(K + 3)}",
                              f"v_cmp_eq_u32 vcc, -1, {v(vT + 6)}"])
        self.stamp("sel")
        V2 = [K + 8 + i for i in range(8)]
        for kp in range(4):
            for c in range(8):
                A(f"v_dot2_f32_bf16 {v(V2[c])}, {v(K + kp)}, {v(WGp + 8 * kp + c)}, {v(V2[c]) if kp else 0}")
        self.reduce8(V2, K + 16)
        A(f"ds_write_b32 {v(vT + 1)}, {v(V2[0])}")
        A("s_waitcnt lgkmcnt(0)")
        A("s_barrier")
        A(f"ds_read_b64 {v(K, 2)}, {v(vT + 2)}")
        A(f"ds_read_b64 {v(K + 2, 2)}, {v(vT + 2)} offset:128")
        A("s_waitcnt lgkmcnt(0)")
        A(f"v_add_f32 {v(K)}, {v(K)}, {v(K + 1)}")
        A(f"v_add_f32 {v(K + 2)}, {v(K + 2)}, {v(K + 3)}")
        A(f"v_cvt_pk_bf16_f32 {v(K + 1)}, {v(K)}, {v(K + 2)}")
        A(f"v_lshlrev_b32 {v(K)}, 16, {v(K + 1)}")
        A(f"v_mul_f32 {v(K + 3)}, {hex(f2u(-L2E))}, {v(K)}")
        A(f"v_exp_f32 {v(K + 3)}, {v(K + 3)}")
        A(f"v_and_b32 {v(K + 2)}, s{sMASK}, {v(K + 1)}")
        A(f"v_add_f32 {v(K + 3)}, 1.0, {v(K + 3)}")
        A(f"v_rcp_f32 {v(K + 3)}, {v(K + 3)}")
        A(f"v_mul_f32 {v(K)}, {v(K)}, {v(K + 3)}")
        A(f"v_cvt_pk_bf16_f32 {v(K)}, {v(K)}, {v(K)}")
        A(f"v_and_b32 {v(K)}, s{sMASK}, {v(K)}")
        A(f"v_mul_f32 {v(K)}, {v(K)}, {v(K + 2)}")
        A(f"v_mov_b32_dpp {v(K + 1)}, {v(K)} quad_perm:[1,1,3,3] row_mask:0xf bank_mask:0xf")
        A(f"v_cvt_pk_bf16_f32 {v(K)}, {v(K)}, {v(K + 1)}")
        for kp in range(8):
            A(f"v_readlane_b32 s{sH + kp}, {v(K)}, {2 * kp}")
        for kp in range(8):
            for c in range(2):
                A(f"v_dot2_f32_bf16 {v(K + 4 + c)}, s{sH + kp}, {v(WDp + 2 * kp + c)}, {v(K + 4 + c) if kp else 0}")
        A(f"global_store_dwordx2 {v(vT + 3)}, {v(K + 4, 2)}, {sp(sWS)} sc1")
        self.stamp("part")
        held = [f"s_cmp_eq_u32 s{sWIN}, s{sBEST}",
                f"s_cselect_b64 exec, 0, {sp(sE)}",
                f"global_store_dwordx2 {v(vRD)}, {v(vC + 4, 2)}, {sp(sOUT)}{osc}",
                f"s_or_b32 s{sTMP}, s{sL}, s{sWAVE}",
                f"s_cmp_eq_u32 s{sTMP}, 0",
                "s_cselect_b64 exec, 1, 0",
                f"v_mov_b32 {v(vT + 4)}, s{sG}",
                f"v_mov_b32 {v(vT + 5)}, 0",
                f"global_store_dword {v(vT + 5)}, {v(vT + 4)}, {sp(sWS)} sc1",
                "s_mov_b64 exec, -1"]
        T = self.tail
        T("L_noffn:")
        for l in held:
            T(l)
        T("s_branch L_fin")
        for l in held:
            A(l)
        A(f"s_cmp_lt_u32 s{sPOS}, 8")
        A("s_cbranch_scc0 L_fin")
        A(f"s_cmp_lt_u32 s{sWAVE}, 2")
        A("s_cbranch_scc0 L_fin")
        A(f"s_lshl_b32 s{sTMP}, s{sXCD}, 3")
        A(f"s_add_u32 s{sTMP}, s{sTMP}, s{sPOS}")
        A(f"s_lshl_b32 s{sTMP}, s{sTMP}, 1")
        A(f"s_add_u32 s{sTMP}, s{sTMP}, s{sWAVE}")
        A(f"v_lshrrev_b32 {v(vT)}, 5, {v(vLANE)}")
        A(f"v_bfe_u32 {v(vT + 1)}, {v(vLANE)}, 4, 1")
        A(f"v_lshl_add_u32 {v(vT)}, {v(vT + 1)}, 1, {v(vT)}")
        A(f"s_lshl_b32 s{sTMP + 1}, s{sTMP}, 3")
        A(f"v_lshl_add_u32 {v(vT)}, {v(vT)}, 1, s{sTMP + 1}")
        A(f"s_add_u32 s{sT1}, s{sT1}, {W_REG + O_SLOT}")
        A(f"v_add_u32 {v(vT + 1)}, s{sT1}, {v(vT)}")
        xh = [f"global_load_ushort {v(K + 20)}, {v(vT + 1)}, {sp(sWS)} sc1",
              f"global_load_ushort {v(K + 21)}, {v(vT + 1)}, {sp(sWS)} offset:1024 sc1"]
        for l in xh:
            A(l)
        A(f"s_lshl_b32 s{sTMP + 1}, s{sT0}, 10")
        A(f"v_add_u32 {v(vT)}, s{sTMP + 1}, {v(vT)}")
        A(f"v_min_u32 {v(vT + 2)}, 55, {v(vLANE)}")
        A(f"v_mul_u32_u24 {v(vT + 3)}, 4682, {v(vT + 2)}")
        A(f"v_lshrrev_b32 {v(vT + 3)}, 16, {v(vT + 3)}")
        A(f"v_mad_u32_u24 {v(vT + 2)}, {v(vT + 3)}, 18, {v(vT + 2)}")
        A(f"v_mul_u32_u24 {v(vT + 2)}, {RS}, {v(vT + 2)}")
        A(f"s_lshl_b32 s{sTMP + 1}, s{sTMP}, 4")
        A(f"s_add_u32 s{sTMP + 1}, s{sTMP + 1}, {W_REG + O_PART}")
        A(f"v_add_u32 {v(vT + 2)}, s{sTMP + 1}, {v(vT + 2)}")
        A(f"v_add_u32 {v(vT + 3)}, {128 * RS}, {v(vT + 2)}")
        A(f"s_ashr_i32 s{sTMP + 2}, s{sWIN}, 31")
        A(f"s_not_b32 s{sTMP + 2}, s{sTMP + 2}")
        A(f"s_or_b32 s{sTMP + 2}, s{sTMP + 2}, 0x80000000")
        A(f"s_xor_b32 s{sTMP + 2}, s{sTMP + 2}, s{sWIN}")
        A(f"s_and_b32 s{sTMP + 2}, s{sTMP + 2}, 0xfffff800")
        A(f"s_or_b32 s{sTMP + 2}, s{sTMP + 2}, 0x400")
        A(f"v_cvt_pk_bf16_f32 {v(K + 22)}, s{sTMP + 2}, s{sTMP + 2}")
        A(f"v_and_b32 {v(K + 22)}, s{sMASK}, {v(K + 22)}")
        A(f"v_mul_f32 {v(K + 22)}, {hex(f2u(-L2E))}, {v(K + 22)}")
        A(f"v_exp_f32 {v(K + 22)}, {v(K + 22)}")
        A(f"v_add_f32 {v(K + 22)}, 1.0, {v(K + 22)}")
        A(f"v_rcp_f32 {v(K + 22)}, {v(K + 22)}")
        A(f"v_cvt_pk_bf16_f32 {v(K + 22)}, {v(K + 22)}, {v(K + 22)}")
        A(f"v_and_b32 {v(K + 22)}, s{sMASK}, {v(K + 22)}")
        A("s_waitcnt vmcnt(0)")
        self.stamp("partdr")
        pl = [f"global_load_dwordx4 {v(vY, 4)}, {v(vT + 2)}, {sp(sWS)} sc1",
              f"global_load_dwordx4 {v(vY + 4, 4)}, {v(vT + 3)}, {sp(sWS)} sc1"]
        for l in pl:
            A(l)
        self.poll("xh", xh, [f"v_max_u32 {v(vT + 6)}, {v(K + 20)}, {v(K + 21)}",
                             f"v_cmp_eq_u32 vcc, 0xffff, {v(vT + 6)}"])
        A(f"v_lshlrev_b32 {v(K + 20)}, 16, {v(K + 20)}")
        A(f"v_lshlrev_b32 {v(K + 21)}, 16, {v(K + 21)}")
        A("s_waitcnt vmcnt(0)")
        self.poll("part", pl, chk8)
        self.stamp("partld")
        A(f"v_cmp_gt_u32 vcc, 56, {v(vLANE)}")
        A(f"v_pk_add_f32 {v(vY, 2)}, {v(vY, 2)}, {v(vY + 4, 2)}")
        A(f"v_pk_add_f32 {v(vY + 2, 2)}, {v(vY + 2, 2)}, {v(vY + 6, 2)}")
        for c in range(4):
            A(f"v_cndmask_b32 {v(vY + c)}, 0, {v(vY + c)}, vcc")
        A(f"v_permlane32_swap_b32 {v(vY)}, {v(vY + 1)}")
        A(f"v_permlane32_swap_b32 {v(vY + 2)}, {v(vY + 3)}")
        A(f"v_add_f32 {v(vY)}, {v(vY)}, {v(vY + 1)}")
        A(f"v_add_f32 {v(vY + 2)}, {v(vY + 2)}, {v(vY + 3)}")
        A(f"v_permlane16_swap_b32 {v(vY)}, {v(vY + 2)}")
        A(f"v_add_f32 {v(vY)}, {v(vY)}, {v(vY + 2)}")
        for sh in (8, 4, 2, 1):
            A(f"v_add_f32_dpp {v(vY)}, {v(vY)}, {v(vY)} row_ror:{sh} row_mask:0xf bank_mask:0xf")
        y = vY
        A(f"v_cvt_pk_bf16_f32 {v(y)}, {v(y)}, {v(y)}")
        A(f"v_and_b32 {v(y)}, s{sMASK}, {v(y)}")
        A(f"v_mul_f32 {v(y)}, {v(y)}, {v(K + 22)}")
        A(f"v_cvt_pk_bf16_f32 {v(y)}, {v(y)}, {v(y)}")
        A(f"v_and_b32 {v(y)}, s{sMASK}, {v(y)}")
        A(f"v_add_f32 {v(y)}, {v(y)}, {v(K + 20)}")
        A(f"v_cvt_pk_bf16_f32 {v(y)}, {v(y)}, {v(y)}")
        A(f"v_and_b32 {v(y)}, s{sMASK}, {v(y)}")
        A(f"v_add_f32 {v(y)}, {v(y)}, {v(K + 21)}")
        A(f"v_cvt_pk_bf16_f32 {v(y)}, {v(y)}, {v(y)}")
        A("s_mov_b32 exec_lo, 0x00010001")
        A("s_mov_b32 exec_hi, 0x00010001")
        A(f"global_store_short {v(vT)}, {v(y)}, {sp(sOUT)}")
        A("L_fin:")
        self.finish("R")

    def chans(self):
        A = self.A
        o = self.o
        vLANE = 1
        vAA, vBA, vEW, vER, vRA = 4, 12, 13, 14, 15
        vKA0, vKA1, vKB, vPW0, vPW1 = 16, 17, 18, 19, 20
        vP = 24
        vT = 28
        vACC = 40
        vA0, vA1, vB0, vB1 = 72, 104, 136, 168
        K = 72
        A("L_chan:")
        A("v_and_b32 v0, 0xff, v0")
        A(f"s_sub_u32 s{sWAVE}, s{sWAVE}, 4")
        A(f"s_lshl_b32 s{sT0}, s{sL}, 9")
        A(f"v_lshl_add_u32 {v(vT)}, v0, 1, s{sT0}")
        A(f"s_lshl_b32 s{sT1}, s{sL}, 2")
        A("s_waitcnt lgkmcnt(0)")
        self.stamp("karg")
        for k, s in enumerate((sLA, sAI, sCR, sCI)):
            A(f"global_load_ushort {v(vP + k)}, {v(vT)}, {sp(s)}{' nt' if o.get('ntx', 1) else ''}")
        A(f"s_load_dword s{sDT}, {sp(sLDT)}, s{sT1}")
        ntlb = 0
        if o.get("tlb", 0):
            A("v_mov_b32 v2, 0")
            A("s_mov_b64 exec, 1")
            for sb in (sWG, sWU, sWD, sOUT):
                A(f"global_load_dword v3, v2, {sp(sb)}")
                ntlb += 1
            A("s_mov_b64 exec, -1")
        vJ, vGq = vT + 4, vT + 5
        A(f"v_and_b32 {v(vJ)}, 15, {v(vLANE)}")
        A(f"v_lshrrev_b32 {v(vGq)}, 4, {v(vLANE)}")
        A(f"s_lshr_b32 s{sT0}, s{sWAVE}, 1")
        A(f"s_and_b32 s{sT1}, s{sWAVE}, 1")
        A(f"v_and_b32 {v(vT)}, 7, {v(vLANE)}")
        A(f"v_lshlrev_b32 {v(vRA)}, 4, {v(vT)}")
        A(f"v_add_u32 {v(vRA)}, {L_RED1}, {v(vRA)}")
        A(f"s_mul_i32 s{sTMP}, s{sT0}, {PC}")
        A(f"s_lshl_b32 s{sTMP + 1}, s{sT1}, 7")
        A(f"s_add_u32 s{sTMP}, s{sTMP}, s{sTMP + 1}")
        A(f"s_add_u32 s{sTMP}, s{sTMP}, {L_P + 4 * 26}")
        A(f"v_lshlrev_b32 {v(vT)}, 3, {v(vGq)}")
        A(f"v_sub_u32 {v(vT)}, {v(vJ)}, {v(vT)}")
        A(f"v_lshl_add_u32 {v(vAA)}, {v(vT)}, 2, s{sTMP}")
        for m in range(1, 8):
            A(f"v_add_u32 {v(vAA + m)}, {1024 * m}, {v(vAA)}")
        A(f"s_mul_i32 s{sTMP}, s{sT0}, {UC}")
        A(f"s_lshl_b32 s{sTMP + 1}, s{sT1}, 6")
        A(f"s_sub_u32 s{sTMP}, s{sTMP}, s{sTMP + 1}")
        A(f"s_add_u32 s{sTMP}, s{sTMP}, {L_U + 64}")
        A(f"v_lshl_add_u32 {v(vT)}, {v(vJ)}, 1, {v(vGq)}")
        A(f"v_lshl_add_u32 {v(vBA)}, {v(vT)}, 4, s{sTMP}")
        A(f"v_lshl_add_u32 {v(vT)}, {v(vJ)}, 2, {v(vGq)}")
        A(f"v_lshrrev_b32 {v(vT + 1)}, 3, {v(vT)}")
        A(f"v_add_u32 {v(vT)}, {v(vT)}, {v(vT + 1)}")
        A(f"s_mul_i32 s{sTMP}, s{sWAVE}, {8 * TBS}")
        A(f"v_lshl_add_u32 {v(vEW)}, {v(vT)}, 4, s{sTMP}")
        A(f"v_lshrrev_b32 {v(vT + 1)}, 3, {v(vLANE)}")
        A(f"v_add_u32 {v(vT)}, {v(vLANE)}, {v(vT + 1)}")
        A(f"s_mul_i32 s{sTMP}, s{sWAVE}, {2 * TBS}")
        A(f"v_lshl_add_u32 {v(vER)}, {v(vT)}, 4, s{sTMP}")
        KS = o.get("ks", 5)
        for k in range(4):
            A(f"v_mov_b32 {v(vACC + k)}, -1")
        A(f"s_mul_i32 s{sTMP}, s{sL}, {RS}")
        A(f"s_add_u32 s{sTMP}, s{sTMP}, {W_REG + 4096}")
        A(f"v_lshl_add_u32 {v(vACC + 4)}, v0, 4, s{sTMP}")
        A(f"v_add_u32 {v(vACC + 5)}, 8192, {v(vACC + 4)}")
        A(f"v_add_u32 {v(vACC + 6)}, 12288, {v(vACC + 4)}")
        A(f"s_lshl_b32 s{sTMP}, s{sL}, {KS}")
        A(f"s_add_u32 s{sTMP}, s{sTMP}, {W_KEY}")
        A(f"v_mov_b32 {v(22)}, s{sTMP}")
        ones = v(vACC, 4)
        A(f"s_cmp_eq_u32 s{sWAVE}, 0")
        A("s_cselect_b64 exec, 1, 0")
        A(f"global_store_dword {v(22)}, {v(vACC)}, {sp(sWS)} sc1")
        A("s_mov_b64 exec, -1")
        A(f"global_store_dwordx4 {v(vACC + 4)}, {ones}, {sp(sWS)} offset:-4096 sc1")
        A(f"global_store_dwordx4 {v(vACC + 4)}, {ones}, {sp(sWS)} sc1")
        A(f"global_store_dwordx4 {v(vACC + 5)}, {ones}, {sp(sWS)} offset:-4096 sc1")
        A(f"global_store_dwordx4 {v(vACC + 5)}, {ones}, {sp(sWS)} sc1")
        A(f"global_store_dwordx4 {v(vACC + 6)}, {ones}, {sp(sWS)} sc1")
        vg, vr = vT, vT + 1
        A(f"v_lshrrev_b32 {v(vg)}, 2, {v(vJ)}")
        A(f"v_and_b32 {v(vr)}, 3, {v(vJ)}")
        A(f"s_cmp_eq_u32 s{sT1}, 0")
        A("s_cbranch_scc0 L_rows_hi")
        A(f"v_mov_b32 {v(vKA0)}, {v(vJ)}")
        A(f"v_lshl_add_u32 {v(vKA1)}, {v(vg)}, 1, {v(vr)}")
        A(f"v_add_u32 {v(vKA1)}, 16, {v(vKA1)}")
        A(f"v_add_u32 {v(vT + 2)}, -4, {v(vJ)}")
        A(f"v_and_b32 {v(vT + 2)}, 15, {v(vT + 2)}")
        A(f"v_cmp_eq_u32 vcc, 3, {v(vr)}")
        A(f"v_cndmask_b32 {v(vKA1)}, {v(vKA1)}, {v(vT + 2)}, vcc")
        A(f"v_lshl_add_u32 {v(vPW0)}, {v(vJ)}, 2, {v(vGq)}")
        A(f"v_lshlrev_b32 {v(vPW0)}, 4, {v(vPW0)}")
        A(f"v_add_u32 {v(vPW1)}, 1024, {v(vPW0)}")
        A("s_branch L_rows_done")
        A("L_rows_hi:")
        A(f"v_lshrrev_b32 {v(vT + 2)}, 1, {v(vg)}")
        A(f"v_lshl_add_u32 {v(vKA0)}, {v(vg)}, 1, {v(vr)}")
        A(f"v_add3_u32 {v(vKA0)}, {v(vKA0)}, {v(vT + 2)}, 25")
        A(f"v_sub_u32 {v(vKA1)}, {v(vJ)}, {v(vg)}")
        A(f"v_add_u32 {v(vKA1)}, 35, {v(vKA1)}")
        A(f"v_lshrrev_b32 {v(vT + 2)}, 1, {v(vGq)}")
        A(f"v_lshl_add_u32 {v(vPW0)}, {v(vT + 2)}, 4, {v(vJ)}")
        A(f"v_and_b32 {v(vT + 2)}, 1, {v(vGq)}")
        A(f"v_lshl_add_u32 {v(vPW0)}, {v(vPW0)}, 1, {v(vT + 2)}")
        A(f"v_lshlrev_b32 {v(vPW0)}, 5, {v(vPW0)}")
        A(f"v_add_u32 {v(vPW0)}, 2048, {v(vPW0)}")
        A(f"v_lshlrev_b32 {v(vPW1)}, 6, {v(vLANE)}")
        A(f"v_add_u32 {v(vPW1)}, 4096, {v(vPW1)}")
        A("L_rows_done:")
        A(f"s_mul_i32 s{sTMP}, s{sT0}, {PC}")
        A(f"s_add_u32 s{sTMP}, s{sTMP}, {L_P + 64}")
        A(f"v_add_u32 {v(vPW0)}, s{sTMP}, {v(vPW0)}")
        A(f"v_add_u32 {v(vPW1)}, s{sTMP}, {v(vPW1)}")
        A(f"s_mul_i32 s{sTMP}, s{sT0}, {TABC}")
        A(f"v_lshl_add_u32 {v(vT + 2)}, {v(vGq)}, 4, s{sTMP}")
        A(f"s_movk_i32 s{sTMP + 1}, {ROWB}")
        A(f"v_mad_u32_u24 {v(vKA0)}, {v(vKA0)}, s{sTMP + 1}, {v(vT + 2)}")
        A(f"v_mad_u32_u24 {v(vKA1)}, {v(vKA1)}, s{sTMP + 1}, {v(vT + 2)}")
        A(f"v_mad_u32_u24 {v(vKB)}, {v(vJ)}, s{sTMP + 1}, {v(vT + 2)}")
        A(f"s_lshl_b32 s{sTMP + 1}, s{sT1}, 8")
        A(f"s_add_u32 m0, s{sTMP}, s{sTMP + 1}")
        A(f"s_mul_i32 s{sTMP}, s{sXCD}, 448")
        A(f"s_and_b32 s{sTMP}, s{sTMP}, 0xffffff80")
        A(f"s_mul_i32 s{sTMP + 1}, s{sPOS}, {16 * 3584}")
        A(f"s_add_u32 s{sTMP}, s{sTMP}, s{sTMP + 1}")
        A(f"v_lshrrev_b32 {v(vT + 2)}, 2, {v(vLANE)}")
        A(f"v_mul_u32_u24 {v(vT + 2)}, 3584, {v(vT + 2)}")
        A(f"v_and_b32 {v(vT + 3)}, 3, {v(vLANE)}")
        A(f"v_lshl_add_u32 {v(vT + 2)}, {v(vT + 3)}, 7, {v(vT + 2)}")
        A(f"v_add_u32 {v(vT + 2)}, s{sTMP}, {v(vT + 2)}")
        A(f"s_mul_i32 s{sTMP}, s{sL}, 7168")
        A(f"s_mul_i32 s{sTMP + 1}, s{sT1}, 3584")
        A(f"s_add_u32 s{sTMP}, s{sTMP}, s{sTMP + 1}")
        A(f"v_min_u32 {v(vT + 3)}, 27, {v(vLANE)}")
        A(f"v_lshl_add_u32 {v(vT + 3)}, {v(vT + 3)}, 7, s{sTMP}")
        A(f"s_cmp_eq_u32 s{sT1}, 0")
        A(f"s_cselect_b64 {sp(sWSEL)}, {sp(sWG)}, {sp(sWU)}")
        A(f"s_cmp_eq_u32 s{sT0}, 0")
        A(f"s_cselect_b64 {sp(sWSEL)}, {sp(sWSEL)}, {sp(sWD)}")
        A("s_cselect_b64 vcc, -1, 0")
        A(f"v_cndmask_b32 {v(21)}, {v(vT + 3)}, {v(vT + 2)}, vcc")
        wpf = f"global_load_dword v3, v21, {sp(sWSEL)}{' nt' if o.get('ntw', 1) else ''}"
        if o.get("wpf", 1) == 2:
            A(wpf)

        L2E = 1.4426950408889634
        l2e_hi = struct.unpack("<f", struct.pack("<f", L2E))[0]
        l2e_lo = L2E - l2e_hi
        a, b = K, K + 2
        A(f"s_mov_b32 s{sE}, {hex(f2u(l2e_hi))}")
        A(f"s_mov_b32 s{sE + 1}, {hex(f2u(l2e_lo))}")
        A(f"s_waitcnt vmcnt({(6 if o.get('wpf', 1) == 2 else 5) + ntlb}) lgkmcnt(0)")
        self.stamp("par")
        A(f"s_lshl_b32 s{sTMP}, s{sDT}, 16")
        A(f"s_and_b32 s{sTMP + 1}, s{sDT}, s{sMASK}")
        A(f"s_cmp_lt_u32 s{sWAVE}, 2")
        A(f"s_cselect_b32 s{sDT}, s{sTMP}, s{sTMP + 1}")
        A(f"v_lshlrev_b32 {v(a)}, 16, {v(vP)}")
        A(f"v_mov_b32 {v(a + 1)}, s{sDT}")
        A(f"v_pk_mul_f32 {v(b, 2)}, {v(a, 2)}, {sp(sE)} op_sel_hi:[1,0]")
        A(f"v_pk_fma_f32 {v(b + 2, 2)}, {v(a, 2)}, {sp(sE)}, {v(b, 2)} op_sel_hi:[1,0,1] neg_lo:[0,0,1] neg_hi:[0,0,1]")
        A(f"v_exp_f32 {v(b)}, {v(b)}")
        A(f"v_exp_f32 {v(b + 1)}, {v(b + 1)}")
        A(f"v_pk_fma_f32 {v(b + 2, 2)}, {sp(sE)}, {v(a, 2)}, {v(b + 2, 2)} op_sel:[1,0,0] op_sel_hi:[1,1,1]")
        A(f"v_mul_f32 {v(b + 2)}, {hex(f2u(0.6931471805599453))}, {v(b + 2)}")
        A(f"v_mul_f32 {v(b + 3)}, {hex(f2u(0.6931471805599453))}, {v(b + 3)}")
        A(f"v_pk_fma_f32 {v(b, 2)}, {v(b, 2)}, {v(b + 2, 2)}, {v(b, 2)}")
        A(f"v_cvt_pk_bf16_f32 {v(a)}, {v(b)}, {v(b + 1)}")
        vdt, va2, vph = K + 6, K + 7, K + 8
        A(f"v_and_b32 {v(vdt)}, s{sMASK}, {v(a)}")
        A(f"v_lshlrev_b32 {v(va2)}, 16, {v(a)}")
        A(f"v_lshlrev_b32 {v(vph)}, 16, {v(vP + 1)}")
        A(f"v_mul_f32 {v(va2)}, {v(va2)}, {v(vdt)}")
        A(f"v_mul_f32 {v(vph)}, {v(vph)}, {v(vdt)}")
        A(f"v_mul_f32 {v(va2)}, {hex(f2u(-l2e_hi))}, {v(va2)}")
        A(f"v_mul_f32 {v(vph)}, 0.15915494, {v(vph)}")
        Wp = {p: K + 10 + 2 * p for p in range(1, 17)}
        Zp = {p: K + 42 + 2 * p for p in range(1, 8)}
        G = [K + 58, K + 60]
        TT = [K + 62, K + 64, K + 66, K + 68]
        RR = [K + 70, K + 72, K + 74, K + 76]
        CV = K + 80
        A(f"v_add_f32 {v(vdt)}, {v(vdt)}, {v(vdt)}")
        A(f"v_lshlrev_b32 {v(G[0])}, 16, {v(vP + 2)}")
        A(f"v_lshlrev_b32 {v(G[0] + 1)}, 16, {v(vP + 3)}")
        A(f"v_mul_f32 {v(G[0])}, {v(G[0])}, {v(vdt)}")
        A(f"v_mul_f32 {v(G[0] + 1)}, {v(G[0] + 1)}, {v(vdt)}")
        for n, (dst, sc) in enumerate(((Wp[1], 1.0), (Wp[16], 16.0), (Zp[1], 256.0))):
            t = TT[n]
            if sc == 1.0:
                A(f"v_exp_f32 {v(t)}, {v(va2)}")
                A(f"v_fract_f32 {v(t + 1)}, {v(vph)}")
            else:
                A(f"v_mul_f32 {v(t)}, {hex(f2u(sc))}, {v(va2)}")
                A(f"v_mul_f32 {v(t + 1)}, {hex(f2u(sc))}, {v(vph)}")
                A(f"v_exp_f32 {v(t)}, {v(t)}")
                A(f"v_fract_f32 {v(t + 1)}, {v(t + 1)}")
            A(f"v_cos_f32 {v(dst)}, {v(t + 1)}")
            A(f"v_sin_f32 {v(dst + 1)}, {v(t + 1)}")
        for n, dst in enumerate((Wp[1], Wp[16], Zp[1])):
            A(f"v_pk_mul_f32 {v(dst, 2)}, {v(dst, 2)}, {v(TT[n], 2)} op_sel_hi:[1,0]")
        jobs = [(1, Wp[1], None, None, 0), (16, Zp[1], None, None, 0), (47, G[0], None, None, 1)]
        wj = []
        for p in range(2, 16):
            hb = 1 << (p.bit_length() - 1)
            x, y = (p // 2, p // 2) if hb == p else (hb, p - hb)
            wj.append((p, Wp[p], Wp[x], Wp[y], 0))
        gj = [(47 + j, G[j & 1], G[(j - 1) & 1], Wp[16], 1) for j in range(1, 16)]
        zrow = {2: 25, 3: 30, 4: 35, 5: 38, 6: 41, 7: 44}
        zj = []
        for p in range(2, 8):
            hb = 1 << (p.bit_length() - 1)
            x, y = (p // 2, p // 2) if hb == p else (hb, p - hb)
            zj.append((zrow[p], Zp[p], Zp[x], Zp[y], 0))
        tj = [(16 + k, None, Zp[1], Wp[2 * k], 0) for k in range(1, 9)]
        for z in (2, 3):
            tj += [(zrow[z] + k, None, Zp[z], Wp[4 * k], 0) for k in range(1, 5)]
        for z in (4, 5, 6, 7):
            tj += [(zrow[z] + k, None, Zp[z], Wp[8 * k], 0) for k in range(1, 3)]
        first = []
        for i in range(max(len(wj), len(gj), len(zj))):
            for q in (wj, gj, zj):
                if i < len(q):
                    first.append(q[i])
        jobs += first + tj
        A(f"v_mov_b32 {v(CV + 15)}, 0x3f80")
        pend = [(0, CV + 15)]
        slot = 0
        nb = 0
        b1_at = o.get("b1_at", 0)
        batch = o.get("batch", 6)

        def do_b1():
            self.stamp("setup")
            A(f"s_waitcnt vmcnt({1 if o.get('wpf', 1) == 2 else 0})")
            self.stamp("idr")
            A("s_barrier")
            self.stamp("b1")
            if o.get("wpf", 1) == 1:
                A(wpf)
        if b1_at == 0:
            do_b1()
        for n, (row, dst, x, y, conj) in enumerate(jobs):
            if x is not None:
                if dst is None:
                    dst = RR[n & 3]
                for ins in self.cmul(dst, x, y, TT[n & 3]):
                    A(ins)
            A(f"v_cvt_pk_bf16_f32 {v(CV + slot)}, {v(dst)}, {'-' if conj else ''}{v(dst + 1)}")
            pend.append((row, CV + slot))
            slot = (slot + 1) % 15
            if len(pend) >= batch or n == len(jobs) - 1:
                for row_, reg in pend:
                    A(f"ds_write_addtid_b32 {v(reg)} offset:{row_ * ROWB}")
                pend = []
                nb += 1
                if nb == b1_at:
                    do_b1()
        A("s_waitcnt lgkmcnt(0)")
        self.stamp("kgen1")
        A("s_barrier")
        if o.get("wpf", 1) == 3:
            A(wpf)
        fB, fA0, fA1 = K, K + 32, K + 64
        for s in range(4):
            A(f"ds_read_b128 {v(fB + 4 * s, 4)}, {v(vKB)} offset:{47 * ROWB + 64 * s}")
            A(f"ds_read_b128 {v(fA0 + 4 * s, 4)}, {v(vKA0)} offset:{64 * s}")
            A(f"ds_read_b128 {v(fA1 + 4 * s, 4)}, {v(vKA1)} offset:{64 * s}")
        D0, D1 = vACC, vACC + 4
        for s in range(8):
            s2 = s + 4
            A(f"s_waitcnt lgkmcnt({9 if s2 < 8 else 3 * (7 - s)})")
            c0 = "0" if s == 0 else v(D0, 4)
            c1 = "0" if s == 0 else v(D1, 4)
            A(f"v_mfma_f32_16x16x32_bf16 {v(D0, 4)}, {v(fA0 + 4 * s, 4)}, {v(fB + 4 * s, 4)}, {c0}")
            if s2 < 8:
                A(f"ds_read_b128 {v(fB + 4 * s2, 4)}, {v(vKB)} offset:{47 * ROWB + 64 * s2}")
                A(f"ds_read_b128 {v(fA0 + 4 * s2, 4)}, {v(vKA0)} offset:{64 * s2}")
            A(f"v_mfma_f32_16x16x32_bf16 {v(D1, 4)}, {v(fA1 + 4 * s, 4)}, {v(fB + 4 * s, 4)}, {c1}")
            if s2 < 8:
                A(f"ds_read_b128 {v(fA1 + 4 * s2, 4)}, {v(vKA1)} offset:{64 * s2}")
        E = K + 96
        A(f"s_bitcmp1_b32 s{sWAVE}, 0")
        A(f"v_cmp_eq_u32 vcc, 0, {v(vLANE)}")
        A("s_nop 5")
        A("s_cbranch_scc0 L_exp_lo")
        seq2 = ["aa", "aa", "aa", "ba", "bb", "bb", "cb", "cc"]
        seq3 = ["aa", "aa", "aa", "aa", "aa", "ba", "bb", "bb", "bb", "bb", "cb", "cc", "cc", "cc"]
        ix = {"a": 0, "b": 1, "c": 2}
        for k, s in enumerate(seq3):
            A(f"v_cvt_pk_bf16_f32 {v(E + 8 + k)}, {v(D1 + ix[s[0]])}, {v(D1 + ix[s[1]])}")
        for k, w in enumerate((0, 4, 6, 10)):
            A(f"ds_write_b128 {v(vPW1)}, {v(E + 8 + w, 4)} offset:{16 * k}")
        for k, s in enumerate(seq2):
            A(f"v_cvt_pk_bf16_f32 {v(E + k)}, {v(D0 + ix[s[0]])}, {v(D0 + ix[s[1]])}")
        A(f"ds_write_b128 {v(vPW0)}, {v(E, 4)}")
        A(f"ds_write_b128 {v(vPW0)}, {v(E + 4, 4)} offset:16")
        A("L_exp_done:")
        T = self.tail
        T("L_exp_lo:")
        T(f"v_mov_b32_dpp {v(D1 + 3)}, {v(D1 + 3)} row_ror:1 row_mask:0x1 bank_mask:0xf")
        T(f"v_cvt_pk_bf16_f32 {v(E + 1)}, {v(D0 + 1)}, {v(D0)}")
        T(f"v_cvt_pk_bf16_f32 {v(E + 2)}, {v(D0 + 2)}, {v(D0 + 1)}")
        T(f"v_cvt_pk_bf16_f32 {v(E + 3)}, {v(D0 + 3)}, {v(D0 + 2)}")
        T(f"v_cndmask_b32 {v(E + 8)}, {v(D1 + 3)}, 0, vcc")
        T(f"v_cndmask_b32 {v(E + 9)}, {v(D1)}, {v(D1 + 3)}, vcc")
        T(f"v_cvt_pk_bf16_f32 {v(E)}, {v(D0)}, {v(E + 8)}")
        T(f"v_cvt_pk_bf16_f32 {v(E + 4)}, {v(D1)}, {v(E + 9)}")
        T(f"v_cvt_pk_bf16_f32 {v(E + 5)}, {v(D1)}, {v(D1)}")
        T(f"v_cvt_pk_bf16_f32 {v(E + 6)}, {v(D1 + 1)}, {v(D1)}")
        T(f"v_cvt_pk_bf16_f32 {v(E + 7)}, {v(D1 + 2)}, {v(D1 + 1)}")
        T(f"ds_write_b128 {v(vPW0)}, {v(E, 4)}")
        T(f"ds_write_b128 {v(vPW1)}, {v(E + 4, 4)}")
        T("s_branch L_exp_done")
        A("s_waitcnt lgkmcnt(0)")
        self.stamp("kgen2")
        A("s_barrier")
        if o.get("wpf", 1) == 4:
            A(wpf)

        def rdA(buf, rho, m):
            return [f"ds_read2_b32 {v(buf + 4 * m, 2)}, {v(vAA + m)} offset0:{64 * rho + 6} offset1:{64 * rho + 4}",
                    f"ds_read2_b32 {v(buf + 4 * m + 2, 2)}, {v(vAA + m)} offset0:{64 * rho + 2} offset1:{64 * rho}"]

        def rdB(buf, rho, n):
            return [f"ds_read_b128 {v(buf + 4 * n, 4)}, {v(vBA)} offset:{128 * (3 - rho) + 512 * (7 - n)}"]

        for m in range(8):
            for l in rdA(vA0, 0, m):
                A(l)
        A(f"s_mul_i32 s{sTMP}, s{sL}, {RS}")
        A(f"s_lshl_b32 s{sTMP + 1}, s{sWAVE}, 11")
        A(f"s_add_u32 s{sTMP}, s{sTMP}, s{sTMP + 1}")
        A(f"s_add_u32 s{sTMP}, s{sTMP}, {W_REG + O_X2}")
        A(f"v_lshl_add_u32 {v(vT)}, {v(vLANE)}, 4, s{sTMP}")
        A(f"v_lshlrev_b32 {v(vT + 1)}, {KS}, v0")
        A(f"v_add_u32 {v(vT + 1)}, {W_KEY}, {v(vT + 1)}")
        A(f"s_lshl_b32 s{sTMP}, s{sWAVE}, 2")
        A(f"s_add_u32 s{sTMP}, s{sTMP}, {L_REDK}")
        A(f"v_mov_b32 {v(vT + 3)}, s{sTMP}")
        A("s_waitcnt lgkmcnt(0)")
        self.stamp("apre")
        A("s_barrier")
        self.stamp("b3")
        if o.get("wpf", 1) == 5:
            A(wpf)
        if o.get("prio", 1):
            A("s_setprio 2")

        bufA, bufB = [vA0, vA1], [vB0, vB1]
        for n in range(7, -1, -1):
            for l in rdB(vB0, 0, n):
                A(l)
        started = set()
        for rho in range(4):
            a_, b_ = bufA[rho & 1], bufB[rho & 1]
            order = [(n - 7 + tb, tb, n) for n in range(7, -1, -1) for tb in range(7 - n, 8)]
            if rho == 3:
                order = [(n - 7 + tb, tb, n) for tb in range(8) for n in range(7 - tb, 8)]
            fill = []
            if rho + 1 < 4:
                nb_, na_ = bufB[(rho + 1) & 1], bufA[(rho + 1) & 1]
                for m in range(8):
                    fill += rdB(nb_, rho + 1, 7 - m)
                    fill += rdA(na_, rho + 1, m)
            issued = 0
            seen = set()
            done_at = {}
            for i, (m, tb, n) in enumerate(order):
                done_at[tb] = i
            for i, (m, tb, n) in enumerate(order):
                if rho == 0 and n not in seen:
                    A(f"s_waitcnt lgkmcnt({min(15, n + issued)})")
                    seen.add(n)
                elif i == 0:
                    A("s_waitcnt lgkmcnt(0)")
                acc = v(vACC + 4 * tb, 4)
                c = acc if tb in started else "0"
                started.add(tb)
                A(f"v_mfma_f32_16x16x32_bf16 {acc}, {v(a_ + 4 * m, 4)}, {v(b_ + 4 * n, 4)}, {c}")
                if i >= 1 and fill:
                    A(fill.pop(0))
                    issued += 1
                if rho == 3:
                    for t in range(7):
                        if done_at[t] + 8 == i or (i == len(order) - 1 and done_at[t] + 8 > i):
                            A(f"ds_write_b128 {v(vEW)}, {v(vACC + 4 * t, 4)} offset:{t * TBS}")
            assert not fill
        A(f"ds_write_b128 {v(vEW)}, {v(vACC + 28, 4)} offset:{7 * TBS}")
        self.stamp("conv")
        A("s_waitcnt lgkmcnt(0)")
        A("s_barrier")
        for i in range(2):
            for s in range(4):
                A(f"ds_read_b128 {v(K + 16 * i + 4 * s, 4)}, {v(vER)} offset:{s * 8 * TBS + i * TBS}")
        for i in range(2):
            A(f"s_waitcnt lgkmcnt({4 * (1 - i)})")
            b0 = K + 16 * i
            for c in range(2):
                for h in range(2):
                    A(f"v_pk_add_f32 {v(b0 + 8 * c + 2 * h, 2)}, {v(b0 + 8 * c + 2 * h, 2)}, {v(b0 + 8 * c + 4 + 2 * h, 2)}")
            for c in range(2):
                for h in range(2):
                    A(f"v_cvt_pk_bf16_f32 {v(K + 32 + 4 * i + 2 * c + h)}, {v(b0 + 8 * c + 2 * h)}, {v(b0 + 8 * c + 2 * h + 1)}")
            A(f"global_store_dwordx4 {v(vT)}, {v(K + 32 + 4 * i, 4)}, {sp(sWS)} offset:{1024 * i} sc1")
        self.stamp("x2st")
        A("s_waitcnt vmcnt(0)")
        self.stamp("x2dr")
        A("s_barrier")
        A(f"s_cmp_eq_u32 s{sWAVE}, 0")
        A("s_cbranch_scc0 L_cfin")
        for q in range(1, 4):
            A(f"v_add_u32 {v(vT + 8 + q)}, {(64 * q) << KS}, {v(vT + 1)}")
        A("s_barrier")
        self.key_calc(K, vRA, vLANE)
        A("s_mov_b64 exec, 1")
        A(f"global_store_dword {v(22)}, {v(K + 8)}, {sp(sWS)} sc1")
        A("s_mov_b64 exec, -1")
        self.stamp("key")
        A("s_waitcnt vmcnt(0)")
        self.stamp("keydr")
        k2 = vT + 4
        kl = [f"global_load_dword {v(K + q)}, {v(vT + 8 + q) if q else v(vT + 1)}, {sp(sWS)} sc1" for q in range(4)]
        for l in kl:
            A(l)
        A("s_waitcnt vmcnt(0)")
        self.poll("key", kl, [f"v_max3_u32 {v(k2)}, {v(K)}, {v(K + 1)}, {v(K + 2)}",
                              f"v_max_u32 {v(k2)}, {v(k2)}, {v(K + 3)}",
                              f"v_cmp_eq_u32 vcc, -1, {v(k2)}"])
        self.stamp("keyld")
        A(f"v_max_u32_dpp {v(k2)}, {v(k2)}, {v(k2)} quad_perm:[1,0,3,2] row_mask:0xf bank_mask:0xf")
        A(f"v_max_u32_dpp {v(k2)}, {v(k2)}, {v(k2)} quad_perm:[2,3,0,1] row_mask:0xf bank_mask:0xf")
        A(f"v_max_u32_dpp {v(k2)}, {v(k2)}, {v(k2)} row_half_mirror row_mask:0xf bank_mask:0xf")
        A(f"v_max_u32_dpp {v(k2)}, {v(k2)}, {v(k2)} row_mirror row_mask:0xf bank_mask:0xf")
        A(f"v_max_u32_dpp {v(k2)}, {v(k2)}, {v(k2)} row_bcast:15 row_mask:0xa bank_mask:0xf")
        A(f"v_max_u32_dpp {v(k2)}, {v(k2)}, {v(k2)} row_bcast:31 row_mask:0xc bank_mask:0xf")
        A("s_mov_b32 exec_lo, 0")
        A("s_brev_b32 exec_hi, 1")
        A(f"ds_write_b32 {v(vT + 3)}, {v(k2)}")
        A("s_waitcnt lgkmcnt(0)")
        A("s_barrier")
        A("L_cfin:")
        self.finish("C")

    def text(self):
        lines = self.build()
        src = open("sequential_preLN__ssm_conv_s4d__moe_arch_mod__prompt.s.ref").read()
        head = [l for l in src.split("\n") if l.startswith(";") and "@launch" not in l]
        head = head[:head.index("; Override launch geometry by editing the next line (default: block=256,")]
        out = head + [f"; @launch grid=(256,1,1) block=(512,1,1) lds={LDS_BYTES}",
                      '.amdgcn_target "amdgcn-amd-amdhsa--gfx950"', ".text", f".globl {KNAME}", ".p2align 8",
                      f".type {KNAME},@function"]
        out += [l if l.endswith(":") else "    " + l for l in lines]
        out += [".section .rodata,\"a\"", ".p2align 6", f".amdhsa_kernel {KNAME}",
                "  .amdhsa_next_free_vgpr 224", "  .amdhsa_next_free_sgpr 102", "  .amdhsa_accum_offset 224",
                "  .amdhsa_group_segment_fixed_size 0", "  .amdhsa_kernarg_size 120", "  .amdhsa_user_sgpr_count 2",
                "  .amdhsa_user_sgpr_kernarg_segment_ptr 1", "  .amdhsa_system_sgpr_workgroup_id_x 1",
                ".end_amdhsa_kernel", ""]
        return "\n".join(out)


if __name__ == "__main__":
    out = sys.argv[1]
    opts = {}
    stamp = False
    for a in sys.argv[2:]:
        if a == "stamp":
            stamp = True
        else:
            k, val = a.split("=")
            opts[k] = int(val)
    g = Gen(stamp, opts)
    open(out, "w").write(g.text())
    if stamp:
        open(out + ".names", "w").write(" ".join(g.allnames["R"]) + "\n" + " ".join(g.allnames["C"]))
    print(g.info, "lds", LDS_BYTES)
```

```python
import sys
import struct
from asmlib import Asm, align8

KNAME = "sequential_preLN__ssm_conv_s4d__moe_arch_mod__prompt_kernel"


def f2u(x):
    return struct.unpack("<I", struct.pack("<f", x))[0]


W_FLAG = 0x1000 + (int(__import__('os').environ.get('WOFF', '0')) << 20)
W_KEY = 0x9000 + (int(__import__('os').environ.get('WOFF', '0')) << 20)
W_FLAG2 = 0x11000 + (int(__import__('os').environ.get('WOFF', '0')) << 20)
import os
WOFF = int(os.environ.get('WOFF', '0')) << 20
W_REG = 0x38000 + WOFF
RS = 20608
O_X1, O_X2, O_SLOT, O_PART = 0, 8192, 16384, 18432
W_STAMP = 0x800000
ROWB = 544
TABC = 63 * ROWB
L_TAB = 0
L_P = 68608
PC = 8256
L_U = L_P + 2 * PC
UC = 4608
L_RED1 = (L_U + 2 * UC + 255) // 256 * 256
L_RED2 = L_RED1 + 256
L_SUMW = L_RED2 + 384
L_REDK = L_SUMW + 16
L_REDF = L_REDK + 16
LDS_BYTES = L_REDF + 256
L_EPI = 0
TBS = 1152
sX, sLA, sAI, sCR, sCI, sLDT, sD = 4, 6, 8, 10, 12, 14, 16
sWR, sWG, sWU, sWD, sOUT, sDBG, sWS = 20, 22, 24, 26, 28, 30, 32
sL, sPOS, sXCD, sWAVE, sG, sDT, sT0, sT1, sSPIN, sF = 34, 35, 36, 37, 38, 39, 40, 41, 42, 43
sODD = 44
sSELLO, sSELHI, sONES, sMASK = 46, 47, 48, 49
sWSEL = 50
sBEST, sWIN, sRP0, sRP1 = 52, 53, 54, 55
sH = 56
sE = 64
sTMP = 66
sOWN = 71
sSTAMP = 72


def sp(r):
    return f"s[{r}:{r + 1}]"


def v(r, n=1):
    return f"v{r}" if n == 1 else f"v[{r}:{r + n - 1}]"


class Gen:
    def __init__(self, stamp=False, opts=None):
        self.A = Asm()
        self.tail = Asm()
        self.stamp_on = stamp
        self.nstamp = 0
        self.names = []
        self.o = dict(opts or {})
        self.only = None
        self.role = "R"
        if "pr" in self.o:
            self.only = tuple(self.o["pr"].split("."))
            self.stamp_on = True
            self.o["probe"] = 1 if self.only[0] == "R" else 101

    def stamp(self, name):
        if not self.stamp_on:
            return
        if self.only and name != "start" and (self.role, name) != self.only:
            return
        k = self.nstamp
        self.nstamp += 1
        self.names.append(name)
        assert sSTAMP + k < 100
        self.A(f"s_memrealtime s[100:101]")
        self.A("s_waitcnt lgkmcnt(0)")
        self.A(f"s_mov_b32 s{sSTAMP + k}, s100")

    def poll(self, name, loads, check, base_exec="-1"):
        A = self.A
        for c in check:
            A(c)
        A(f"s_cbranch_vccnz L_retry_{name}")
        A(f"L_ok_{name}:")
        T = self.tail
        T(f"L_retry_{name}:")
        T(f"s_mov_b32 s{sSPIN}, 0x40000")
        T(f"L_again_{name}:")
        T(f"s_sub_u32 s{sSPIN}, s{sSPIN}, 1")
        T(f"s_cbranch_scc1 L_ok_{name}")
        T("s_mov_b64 exec, vcc")
        for l in loads:
            T(l)
        T("s_waitcnt vmcnt(0)")
        for c in check:
            T(c)
        T(f"s_mov_b64 exec, {base_exec}")
        T(f"s_cbranch_vccnz L_again_{name}")
        T(f"s_branch L_ok_{name}")

    def cmul(self, d, x, y, t):
        return [f"v_pk_mul_f32 {v(t, 2)}, {v(x, 2)}, {v(y, 2)} op_sel:[0,0] op_sel_hi:[0,1]",
                f"v_pk_fma_f32 {v(d, 2)}, {v(x, 2)}, {v(y, 2)}, {v(t, 2)} op_sel:[1,1,0] op_sel_hi:[1,0,1] neg_lo:[1,0,0]"]

    def reduce8(self, V, t):
        A = self.A
        for i in range(4):
            A(f"v_add_f32_dpp {v(V[i])}, {v(V[i])}, {v(V[i])} row_ror:8 row_mask:0xf bank_mask:0x3")
        for i in range(4):
            A(f"v_add_f32_dpp {v(V[i])}, {v(V[i + 4])}, {v(V[i + 4])} row_ror:8 row_mask:0xf bank_mask:0xc")
        for i in range(2):
            A(f"v_add_f32_dpp {v(V[i])}, {v(V[i])}, {v(V[i])} row_shl:4 row_mask:0xf bank_mask:0x5")
        for i in range(2):
            A(f"v_add_f32_dpp {v(V[i])}, {v(V[i + 2])}, {v(V[i + 2])} row_shr:4 row_mask:0xf bank_mask:0xa")
        A(f"v_permlane32_swap_b32 {v(V[0])}, {v(V[1])}")
        A(f"v_add_f32 {v(V[0])}, {v(V[0])}, {v(V[1])}")
        A(f"v_add_f32_dpp {v(V[0])}, {v(V[0])}, {v(V[0])} quad_perm:[2,3,0,1] row_mask:0xf bank_mask:0xf")
        A(f"v_mov_b32 {v(t)}, {v(V[0])}")
        A(f"v_permlane16_swap_b32 {v(V[0])}, {v(t)}")
        A(f"v_add_f32 {v(V[0])}, {v(V[0])}, {v(t)}")

    def row_stats(self, S, Q, negm, rinv, t):
        A = self.A
        A(f"v_pk_add_f32 {v(S, 2)}, {v(S, 2)}, {v(S + 2, 2)}")
        A(f"v_pk_add_f32 {v(Q, 2)}, {v(Q, 2)}, {v(Q + 2, 2)}")
        A(f"v_add_f32 {v(S)}, {v(S)}, {v(S + 1)}")
        A(f"v_add_f32 {v(Q)}, {v(Q)}, {v(Q + 1)}")
        A(f"v_mul_f32 {v(S)}, {hex(f2u(1 / 512))}, {v(S)}")
        A(f"v_mul_f32 {v(Q)}, {hex(f2u(1 / 512))}, {v(Q)}")
        A(f"v_fma_f32 {v(Q)}, -{v(S)}, {v(S)}, {v(Q)}")
        A(f"v_max_f32 {v(Q)}, 0, {v(Q)}")
        A(f"v_cvt_pk_bf16_f32 {v(t)}, -{v(S)}, {v(Q)}")
        A(f"v_and_b32 {v(Q)}, s{sMASK}, {v(t)}")
        A(f"v_add_f32 {v(Q)}, {hex(f2u(1e-5))}, {v(Q)}")
        A(f"v_cvt_pk_bf16_f32 {v(Q)}, {v(Q)}, {v(Q)}")
        A(f"v_and_b32 {v(Q)}, s{sMASK}, {v(Q)}")
        A(f"v_sqrt_f32 {v(Q)}, {v(Q)}")
        A(f"v_lshlrev_b32 {v(negm)}, 16, {v(t)}")
        A(f"v_cvt_pk_bf16_f32 {v(Q)}, {v(Q)}, {v(Q)}")
        A(f"v_and_b32 {v(Q)}, s{sMASK}, {v(Q)}")
        A(f"v_rcp_f32 {v(rinv)}, {v(Q)}")

    def spread(self, val, dst, t):
        A = self.A
        for r in range(4):
            A(f"v_mov_b32_dpp {v(t + r)}, {v(val)} row_newbcast:{4 + r} row_mask:0xf bank_mask:0xf")
        for r in range(4):
            A(f"v_cndmask_b32_dpp {v(dst + r)}, {v(val)}, {v(t + r)}, vcc row_newbcast:{r} row_mask:0xf bank_mask:0xf")

    def key_calc(self, K, vRA, vLANE):
        A = self.A
        A(f"v_mov_b32 {v(K + 14)}, {L_SUMW}")
        A(f"ds_read_b128 {v(K, 4)}, {v(vRA)} offset:{L_RED2 - L_RED1}")
        A(f"ds_read_b128 {v(K + 4, 4)}, {v(vRA)} offset:{L_RED2 - L_RED1 + 128}")
        A(f"ds_read_b128 {v(K + 8, 4)}, {v(vRA)} offset:{L_RED2 - L_RED1 + 256}")
        A(f"ds_read_b32 {v(K + 15)}, {v(K + 14)}")
        A(f"s_lshl_b32 s{sTMP}, s{sL}, 3")
        A(f"s_sub_u32 s{sTMP}, 2047, s{sTMP}")
        A(f"v_and_b32 {v(K + 14)}, 7, {v(vLANE)}")
        A(f"v_sub_u32 {v(K + 14)}, s{sTMP}, {v(K + 14)}")
        A("s_waitcnt lgkmcnt(2)")
        self.row_stats(K, K + 4, K + 12, K + 13, K + 28)
        A("s_waitcnt lgkmcnt(0)")
        A(f"v_pk_add_f32 {v(K + 8, 2)}, {v(K + 8, 2)}, {v(K + 10, 2)}")
        A(f"v_add_f32 {v(K + 8)}, {v(K + 8)}, {v(K + 9)}")
        A(f"v_fmac_f32 {v(K + 8)}, {v(K + 12)}, {v(K + 15)}")
        A(f"v_mul_f32 {v(K + 8)}, {v(K + 8)}, {v(K + 13)}")
        A(f"v_ashrrev_i32 {v(K + 9)}, 31, {v(K + 8)}")
        A(f"v_or_b32 {v(K + 9)}, 0x80000000, {v(K + 9)}")
        A(f"v_xor_b32 {v(K + 8)}, {v(K + 8)}, {v(K + 9)}")
        A(f"v_and_b32 {v(K + 8)}, 0xfffff800, {v(K + 8)}")
        A(f"v_or_b32 {v(K + 8)}, {v(K + 8)}, {v(K + 14)}")
        A(f"v_min_u32 {v(K + 8)}, -2, {v(K + 8)}")
        A(f"v_max_u32_dpp {v(K + 8)}, {v(K + 8)}, {v(K + 8)} quad_perm:[1,0,3,2] row_mask:0xf bank_mask:0xf")
        A(f"v_max_u32_dpp {v(K + 8)}, {v(K + 8)}, {v(K + 8)} quad_perm:[2,3,0,1] row_mask:0xf bank_mask:0xf")
        A(f"v_max_u32_dpp {v(K + 8)}, {v(K + 8)}, {v(K + 8)} row_half_mirror row_mask:0xf bank_mask:0xf")

    def finish(self, role):
        A = self.A
        o = self.o
        if self.stamp_on:
            self.stamp("end")
            self.allnames[role] = self.names
        if self.stamp_on and "probe" in o:
            k = o["probe"]
            if k == 99 and role == "R":
                A("s_memtime s[96:97]")
                A("s_waitcnt lgkmcnt(0)")
                A("s_sub_u32 s96, s96, s98")
                A(f"s_sub_u32 s97, s{sSTAMP + self.nstamp - 1}, s{sSTAMP}")
                A("s_mov_b64 exec, -1")
                A("v_cvt_f32_u32 v2, s96")
                A("v_cvt_f32_u32 v3, s97")
                A("v_rcp_f32 v3, v3")
                A("s_nop 1")
                A("v_mul_f32 v2, v2, v3")
                A("v_mul_f32 v2, 0x43c80000, v2")
                A("v_cvt_u32_f32 v2, v2")
                A("s_nop 1")
                A(f"v_readfirstlane_b32 s{sTMP}, v2")
                A(f"s_add_u32 s{sTMP}, s{sTMP}, 2000")
            elif k < 0 and role == "R":
                A(f"s_mov_b32 s{sTMP}, {-k}")
            elif k >= 0 and (k >= 100) == (role == "C"):
                A(f"s_sub_u32 s{sTMP}, s{sSTAMP + k % 100}, s{sSTAMP}")
                A(f"s_cmp_lt_u32 s{sTMP}, 3000")
                A(f"s_cselect_b32 s{sTMP}, s{sTMP}, 0")
                A(f"s_mul_i32 s{sTMP}, s{sTMP}, 20")
                A(f"s_add_u32 s{sTMP}, s{sTMP}, 2000")
                if role == "C":
                    A(f"s_cmp_eq_u32 s{sWAVE}, 0")
                    A(f"s_cselect_b32 s{sTMP}, s{sTMP}, 0")
            else:
                A(f"s_mov_b32 s{sTMP}, 0")
            A(f"L_spin{role}:")
            A("s_memrealtime s[100:101]")
            A("s_waitcnt lgkmcnt(0)")
            A(f"s_sub_u32 s100, s100, s{sSTAMP}")
            A(f"s_cmp_lt_u32 s100, s{sTMP}")
            A(f"s_cbranch_scc1 L_spin{role}")
        elif self.stamp_on:
            A("s_mov_b64 exec, 1")
            A(f"s_lshl_b32 s{sTMP}, s2, 3")
            A(f"s_add_u32 s{sTMP}, s{sTMP}, s{sWAVE}")
            if role == "C":
                A(f"s_add_u32 s{sTMP}, s{sTMP}, 4")
            A(f"s_lshl_b32 s{sTMP}, s{sTMP}, 7")
            A(f"s_add_u32 s{sTMP}, s{sTMP}, {W_STAMP}")
            A(f"v_mov_b32 v1, s{sTMP}")
            for k in range(self.nstamp):
                A(f"v_mov_b32 v2, s{sSTAMP + k}")
                A(f"global_store_dword v1, v2, {sp(sWS)} offset:{4 * k}")
        A("s_endpgm")

    def build(self):
        A = self.A
        self.allnames = {}
        A(f"{KNAME}:")
        A("s_cmp_ge_u32 s2, 256")
        A("s_cbranch_scc1 L_end")
        self.stamp("start")
        if self.o.get("probe", 0) == 99:
            A("s_memtime s[98:99]")
        if self.o.get("codepf", 1):
            A(f"s_getpc_b64 {sp(sE)}")
            A("L_pc:")
            A("v_lshlrev_b32 v2, 5, v0")
            A(f"v_min_u32 v2, L_codeend-L_pc-4, v2")
            A(f"global_load_dword v3, v2, {sp(sE)}")
        A("s_load_dwordx16 s[4:19], s[0:1], 0")
        A("s_load_dwordx8 s[20:27], s[0:1], 64")
        A("s_load_dwordx4 s[28:31], s[0:1], 96")
        A("s_load_dwordx2 s[32:33], s[0:1], 112")
        A("v_lshrrev_b32 v4, 6, v0")
        A(f"s_and_b32 s{sXCD}, s2, 7")
        A(f"v_readfirstlane_b32 s{sWAVE}, v4")
        A(f"s_lshr_b32 s{sPOS}, s2, 3")
        A(f"s_lshl_b32 s{sL}, s{sXCD}, 5")
        A(f"s_add_u32 s{sL}, s{sL}, s{sPOS}")
        A("v_and_b32 v1, 63, v0")
        A(f"s_mov_b32 s{sMASK}, 0xffff0000")
        A(f"s_cmp_ge_u32 s{sWAVE}, 4")
        A("s_cbranch_scc1 L_chan")
        self.rows()
        self.names = self.names[:1]
        self.nstamp = min(self.nstamp, 1)
        A(".p2align 6")
        self.role = "C"
        self.chans()
        A("L_end:")
        A("s_endpgm")
        for l in self.tail.L:
            A(l)
        A("L_codeend:")
        lines, nops = A.padded()
        lines, nbytes, promoted, missed = align8(lines)
        self.info = dict(nops=nops, bytes=nbytes, promoted=promoted, missed=missed, lines=len(lines))
        return lines

    def rows(self):
        A = self.A
        o = self.o
        vLANE = 1
        vX, vU, vD, vWR = 212, 10, 18, 20
        vREG, vRD, vAUX = 22, 23, 24
        vKEY, vSW, vRA, vFL, vUW = 26, 27, 28, 29, 30
        vT = 32
        vWG, vWD = 40, 72
        vY = 88
        vONE = 96
        K = 100
        L2E = 1.4426950408889634
        A(f"v_lshrrev_b32 {v(vT)}, 1, v0")
        A(f"v_and_b32 {v(vT + 1)}, 1, v0")
        A(f"v_lshlrev_b32 {v(vT + 2)}, 3, {v(vT)}")
        A(f"s_lshl_b32 s{sT0}, s{sL}, 13")
        A(f"v_lshl_add_u32 {v(vRD)}, {v(vT + 1)}, 12, {v(vT + 2)}")
        A(f"v_add_u32 {v(vRD)}, s{sT0}, {v(vRD)}")
        A(f"s_mul_i32 s{sOWN}, s{sL}, {RS}")
        A(f"s_add_u32 s{sOWN}, s{sOWN}, {W_REG}")
        A(f"s_add_u32 s{sT0}, s{sOWN}, 4096")
        A(f"v_lshl_add_u32 {v(vREG)}, v0, 4, s{sT0}")
        A(f"v_lshlrev_b32 {v(vT + 3)}, 4, {v(vLANE)}")
        nt = ' nt' if o.get('ntx', 1) else ''
        A("s_waitcnt lgkmcnt(0)")
        self.stamp("karg")
        for r in range(4):
            A(f"global_load_dwordx2 {v(vX + 2 * r, 2)}, {v(vRD)}, {sp(sX)} offset:{1024 * r}{nt}")
        A(f"s_load_dword s{sG}, {sp(sWS)}, 0")
        A(f"global_load_dwordx2 {v(vD, 2)}, {v(vT + 2)}, {sp(sD)}")
        A(f"global_load_dwordx2 {v(vWR, 2)}, {v(vT + 2)}, {sp(sWR)}")
        A(f"global_load_dwordx4 {v(vONE, 4)}, {v(vT + 3)}, {sp(sWR)}")
        A(f"s_mov_b32 s{sODD}, 0xaaaaaaaa")
        A(f"s_mov_b32 s{sODD + 1}, 0xaaaaaaaa")
        A(f"s_mov_b32 s{sSELLO}, 0x3f80")
        A(f"s_mov_b32 s{sSELHI}, 0x3f800000")
        A(f"s_mov_b32 s{sONES}, 0x3f803f80")
        A(f"s_and_b32 s{sTMP}, s{sL}, 1")
        A(f"s_lshl_b32 s{sTMP}, s{sTMP}, 12")
        A(f"s_lshr_b32 s{sTMP + 1}, s{sL}, 1")
        A(f"s_lshl_b32 s{sTMP + 1}, s{sTMP + 1}, 5")
        A(f"s_add_u32 s{sTMP}, s{sTMP}, s{sTMP + 1}")
        A(f"s_add_u32 s{sTMP}, s{sTMP}, {W_REG + O_X1}")
        A(f"v_mul_u32_u24 {v(vAUX)}, {RS}, {v(vT)}")
        A(f"v_lshl_add_u32 {v(vAUX)}, {v(vT + 1)}, 4, {v(vAUX)}")
        A(f"v_add_u32 {v(vAUX)}, s{sTMP}, {v(vAUX)}")
        A(f"v_add_u32 {v(vAUX + 1)}, {128 * RS}, {v(vAUX)}")
        FS = o.get("fs", 7)
        KS = o.get("ks", 5)
        A(f"v_lshlrev_b32 {v(vFL)}, {FS}, {v(vT)}")
        A(f"v_add_u32 {v(vFL)}, {W_FLAG}, {v(vFL)}")
        A(f"v_add_u32 {v(vFL + 2)}, {128 << FS}, {v(vFL)}")
        A(f"s_lshl_b32 s{sT0}, s{sL}, {FS}")
        A(f"s_add_u32 s{sT0}, s{sT0}, {W_FLAG}")
        A(f"v_lshl_add_u32 {v(vKEY)}, {v(vLANE)}, 4, s{sT0}")
        A(f"v_lshlrev_b32 {v(vSW)}, 6, {v(vT + 1)}")
        A(f"v_and_b32 {v(vT + 3)}, 4, {v(vLANE)}")
        A(f"v_lshl_add_u32 {v(vSW)}, {v(vT + 3)}, 3, {v(vSW)}")
        A(f"v_and_b32 {v(vT + 3)}, 8, {v(vLANE)}")
        A(f"v_lshl_add_u32 {v(vSW)}, {v(vT + 3)}, 4, {v(vSW)}")
        A(f"v_lshrrev_b32 {v(vT + 3)}, 5, {v(vLANE)}")
        A(f"v_lshl_add_u32 {v(vSW)}, {v(vT + 3)}, 4, {v(vSW)}")
        A(f"s_lshl_b32 s{sTMP}, s{sWAVE}, 2")
        A(f"s_add_u32 s{sTMP}, s{sTMP}, {L_RED1}")
        A(f"v_add_u32 {v(vSW)}, s{sTMP}, {v(vSW)}")
        A(f"v_and_b32 {v(vT + 3)}, 7, {v(vLANE)}")
        A(f"v_lshlrev_b32 {v(vRA)}, 4, {v(vT + 3)}")
        A(f"v_add_u32 {v(vRA)}, {L_RED1}, {v(vRA)}")
        A(f"v_lshlrev_b32 {v(vUW)}, 3, v0")
        A(f"v_mov_b32 {v(K)}, 0")
        A(f"v_mov_b32 {v(K + 1)}, 0")
        A(f"v_min_u32 {v(vT + 3)}, 472, {v(vUW)}")
        A(f"v_add_u32 {v(vT + 3)}, {L_U}, {v(vT + 3)}")
        A(f"v_min_u32 {v(vT + 4)}, 56, {v(vUW)}")
        A(f"v_add_u32 {v(vT + 4)}, {L_P}, {v(vT + 4)}")
        A(f"ds_write2st64_b64 {v(vT + 3)}, {v(K, 2)}, {v(K, 2)} offset0:0 offset1:9")
        A(f"ds_write_b64 {v(vT + 4)}, {v(K, 2)}")
        A(f"ds_write_b64 {v(vT + 4)}, {v(K, 2)} offset:{PC}")
        A(f"v_add_u32 {v(vUW)}, {L_U + 480}, {v(vUW)}")

        V = [K + i for i in range(8)]
        A("s_waitcnt vmcnt(3)")
        self.stamp("x")
        for r in range(4):
            A(f"v_dot2_f32_bf16 {v(V[r])}, {v(vX + 2 * r)}, s{sONES}, 0")
        for r in range(4):
            A(f"v_dot2_f32_bf16 {v(V[4 + r])}, {v(vX + 2 * r)}, {v(vX + 2 * r)}, 0")
        for r in range(4):
            A(f"v_dot2_f32_bf16 {v(V[r])}, {v(vX + 2 * r + 1)}, s{sONES}, {v(V[r])}")
        for r in range(4):
            A(f"v_dot2_f32_bf16 {v(V[4 + r])}, {v(vX + 2 * r + 1)}, {v(vX + 2 * r + 1)}, {v(V[4 + r])}")
        self.reduce8(V, K + 8)
        A(f"ds_write_b32 {v(vSW)}, {v(V[0])}")
        A("s_waitcnt lgkmcnt(0)")
        A("s_barrier")
        self.stamp("b1")
        A(f"ds_read_b128 {v(K, 4)}, {v(vRA)}")
        A(f"ds_read_b128 {v(K + 4, 4)}, {v(vRA)} offset:128")
        A(f"s_add_u32 s{sG}, s{sG}, 0x9e3779b9")
        fw = o.get("fw", 1)
        for k in range(4 if fw else 1):
            A(f"v_mov_b32 {v(K + 28 + k)}, s{sG}")
        A(f"s_cmp_eq_u32 s{sWAVE}, 0")
        if fw:
            A(f"s_cselect_b64 exec, {(1 << ((1 << FS) // 16)) - 1}, 0")
            A(f"global_store_dwordx4 {v(vKEY)}, {v(K + 28, 4)}, {sp(sWS)} sc1")
        else:
            A("s_cselect_b64 exec, 1, 0")
            A(f"global_store_dword {v(vKEY)}, {v(K + 28)}, {sp(sWS)} sc1")
        A("s_mov_b64 exec, -1")
        A(f"s_mov_b64 vcc, {sp(sODD)}")
        A("s_waitcnt lgkmcnt(0)")
        vNM, vRI = K + 16, K + 20
        self.row_stats(K, K + 4, K + 10, K + 11, K + 12)
        self.spread(K + 10, vNM, K + 24)
        Dd = K + 32
        for c in range(4):
            for r in range(4):
                A(f"v_dot2_f32_bf16 {v(Dd + 4 * c + r)}, {v(vX + 2 * r + (c >> 1))}, s{sSELHI if c & 1 else sSELLO}, {v(vNM + r)}")
        self.spread(K + 11, vRI, K + 24)
        Pk = K + 48
        for half in range(2):
            ks = range(4 * half, 4 * half + 4)
            for k in ks:
                A(f"v_cvt_pk_bf16_f32 {v(Pk + k)}, {v(Dd + 2 * k)}, {v(Dd + 2 * k + 1)}")
            for k in ks:
                A(f"v_lshlrev_b32 {v(Dd + 2 * k)}, 16, {v(Pk + k)}")
                A(f"v_and_b32 {v(Dd + 2 * k + 1)}, s{sMASK}, {v(Pk + k)}")
            for k in ks:
                A(f"v_pk_mul_f32 {v(Dd + 2 * k, 2)}, {v(Dd + 2 * k, 2)}, {v(vRI + 2 * (k & 1), 2)}")
            for k in ks:
                A(f"v_cvt_pk_bf16_f32 {v(vU + k)}, {v(Dd + 2 * k)}, {v(Dd + 2 * k + 1)}")
            A(f"global_store_dwordx4 {v(vREG)}, {v(vU + 4 * half, 4)}, {sp(sWS)} offset:{-4096 + 4096 * half} sc1")
        self.stamp("x1st")
        fl = [f"global_load_dword {v(vT + 4)}, {v(vFL)}, {sp(sWS)} sc1",
              f"global_load_dword {v(vT + 5)}, {v(vFL + 2)}, {sp(sWS)} sc1"]
        flchk = [f"v_xor_b32 {v(vT + 6)}, s{sG}, {v(vT + 4)}",
                 f"v_xor_b32 {v(vT + 7)}, s{sG}, {v(vT + 5)}",
                 f"v_or_b32 {v(vT + 6)}, {v(vT + 6)}, {v(vT + 7)}",
                 f"v_cmp_ne_u32 vcc, 0, {v(vT + 6)}"]
        flmode = o.get("flmode", 1)
        if flmode == 1:
            A("s_waitcnt vmcnt(0)")
        if flmode < 2:
            for l in fl:
                A(l)
        A("s_barrier")
        if flmode == 2:
            for l in fl:
                A(l)
        A("s_waitcnt vmcnt(0)")
        self.stamp("x1dr")
        self.poll("flag", fl, flchk)
        xl = [f"global_load_dwordx4 {v(vY, 4)}, {v(vAUX)}, {sp(sWS)} sc1",
              f"global_load_dwordx4 {v(vY + 4, 4)}, {v(vAUX + 1)}, {sp(sWS)} sc1"]
        for l in xl:
            A(l)
        self.stamp("flag")
        A(f"s_mul_i32 s{sF}, s{sXCD}, 14")
        A(f"s_add_u32 s{sF}, s{sF}, s{sPOS}")
        A(f"s_bitcmp1_b32 s{sWAVE}, 0")
        A(f"s_cselect_b64 {sp(sWSEL)}, {sp(sWU)}, {sp(sWG)}")
        A(f"s_lshr_b32 s{sTMP + 1}, s{sWAVE}, 1")
        A(f"s_mul_i32 s{sTMP + 1}, s{sTMP + 1}, {256 * 3584}")
        A(f"s_lshl_b32 s{sTMP + 2}, s{sF}, 5")
        A(f"s_add_u32 s{sTMP + 1}, s{sTMP + 1}, s{sTMP + 2}")
        vWA = K + 8
        A(f"v_lshrrev_b32 {v(vWA)}, 1, {v(vLANE)}")
        A(f"v_mul_u32_u24 {v(vWA)}, {8 * 3584}, {v(vWA)}")
        A(f"v_lshl_add_u32 {v(vWA)}, {v(vT + 1)}, 4, {v(vWA)}")
        A(f"v_add_u32 {v(vWA)}, s{sTMP + 1}, {v(vWA)}")
        A(f"v_add_u32 {v(vWA + 2)}, {7 * 3584}, {v(vWA)}")
        A(f"v_add_u32 {v(vWA + 1)}, {4 * 3584}, {v(vWA)}")
        A(f"v_add_u32 {v(vWA)}, 3584, {v(vWA)}")
        A(f"s_lshl_b32 s{sTMP + 1}, s{sF}, 14")
        A(f"s_add_u32 s{sTMP + 1}, s{sTMP + 1}, 4096")
        A(f"v_lshl_add_u32 {v(vWA + 3)}, v0, 2, s{sTMP + 1}")
        A(f"v_add_u32 {v(vWA + 4)}, 8192, {v(vWA + 3)}")
        A(f"v_dot2_f32_bf16 {v(K + 4)}, {v(vONE)}, s{sONES}, 0")
        for k in range(1, 4):
            A(f"v_dot2_f32_bf16 {v(K + 4)}, {v(vONE + k)}, s{sONES}, {v(K + 4)}")
        A(f"v_mov_b32 {v(K + 5)}, {L_SUMW}")
        A(f"s_mov_b32 s{sRP0}, 0x05040100")
        A(f"s_mov_b32 s{sRP1}, 0x07060302")
        for sh in (8, 4, 2, 1):
            A(f"v_add_f32_dpp {v(K + 4)}, {v(K + 4)}, {v(K + 4)} row_ror:{sh} row_mask:0xf bank_mask:0xf")
        A(f"v_add_f32_dpp {v(K + 4)}, {v(K + 4)}, {v(K + 4)} row_bcast:15 row_mask:0xa bank_mask:0xf")
        A(f"v_add_f32_dpp {v(K + 4)}, {v(K + 4)}, {v(K + 4)} row_bcast:31 row_mask:0xc bank_mask:0xf")
        A("s_mov_b32 exec_lo, 0")
        A("s_brev_b32 exec_hi, 1")
        A(f"ds_write_b32 {v(K + 5)}, {v(K + 4)}")
        A("s_mov_b64 exec, -1")
        A("s_barrier")
        A("s_waitcnt vmcnt(0)")
        chk8 = [f"v_max3_u32 {v(vT + 6)}, {v(vY)}, {v(vY + 1)}, {v(vY + 2)}",
                f"v_max3_u32 {v(vT + 7)}, {v(vY + 3)}, {v(vY + 4)}, {v(vY + 5)}",
                f"v_max3_u32 {v(vT + 6)}, {v(vT + 6)}, {v(vY + 6)}, {v(vY + 7)}",
                f"v_max_u32 {v(vT + 6)}, {v(vT + 6)}, {v(vT + 7)}",
                f"v_cmp_eq_u32 vcc, -1, {v(vT + 6)}"]
        self.poll("x1", xl, chk8)
        self.stamp("x1ld")
        A(f"ds_write2st64_b64 {v(vUW)}, {v(vY, 2)}, {v(vY + 2, 2)} offset0:0 offset1:9")
        A(f"ds_write2st64_b64 {v(vUW)}, {v(vY + 4, 2)}, {v(vY + 6, 2)} offset0:4 offset1:13")
        A("s_waitcnt lgkmcnt(0)")
        A("s_barrier")

        A(f"s_cmp_lt_u32 s{sPOS}, 14")
        A("s_cbranch_scc0 L_now")
        for k in range(8):
            A(f"global_load_dwordx4 {v(vWG + 4 * k, 4)}, {v(vWA + k // 3)}, {sp(sWSEL)} offset:{(k % 3 - 1) * 3584}")
        for k in range(16):
            A(f"global_load_dword {v(vWD + k)}, {v(vWA + 3 + (k >> 3))}, {sp(sWD)} offset:{((k & 7) - 4) * 1024}")
        A("L_now:")
        A(f"v_and_b32 {v(vT + 3)}, 0xfe, v0")
        A(f"v_mul_u32_u24 {v(vAUX)}, {RS}, {v(vT + 3)}")
        A(f"v_lshl_add_u32 {v(vAUX)}, {v(vT + 1)}, 4, {v(vAUX)}")
        A(f"s_lshl_b32 s{sTMP}, s{sL}, 5")
        A(f"s_add_u32 s{sTMP}, s{sTMP}, {W_REG + O_X2}")
        A(f"v_add_u32 {v(vAUX)}, s{sTMP}, {v(vAUX)}")
        A(f"v_add_u32 {v(vAUX + 1)}, {RS}, {v(vAUX)}")
        Tt, Xf = K + 40, K + 56
        Df = K + 72
        for k in range(8):
            A(f"v_lshlrev_b32 {v(Tt + 2 * k)}, 16, {v(vU + k)}")
            A(f"v_and_b32 {v(Tt + 2 * k + 1)}, s{sMASK}, {v(vU + k)}")
        A(f"v_lshlrev_b32 {v(Df)}, 16, {v(vD)}")
        A(f"v_and_b32 {v(Df + 1)}, s{sMASK}, {v(vD)}")
        A(f"v_lshlrev_b32 {v(Df + 2)}, 16, {v(vD + 1)}")
        A(f"v_and_b32 {v(Df + 3)}, s{sMASK}, {v(vD + 1)}")
        for k in range(8):
            c = k >> 1
            sel = "op_sel:[1,0] op_sel_hi:[1,1]" if c & 1 else "op_sel_hi:[0,1]"
            A(f"v_pk_mul_f32 {v(Tt + 2 * k, 2)}, {v(Df + (c & 2), 2)}, {v(Tt + 2 * k, 2)} {sel}")
        for k in range(8):
            A(f"v_cvt_pk_bf16_f32 {v(Xf + k)}, {v(Tt + 2 * k)}, {v(Tt + 2 * k + 1)}")
        for k in range(8):
            A(f"v_lshlrev_b32 {v(Tt + 2 * k)}, 16, {v(Xf + k)}")
            A(f"v_and_b32 {v(Tt + 2 * k + 1)}, s{sMASK}, {v(Xf + k)}")
        for r in range(4):
            for c in range(4):
                src = v(vX + 2 * r + (c >> 1))
                if c & 1:
                    A(f"v_and_b32 {v(Xf + 4 * c + r)}, s{sMASK}, {src}")
                else:
                    A(f"v_lshlrev_b32 {v(Xf + 4 * c + r)}, 16, {src}")
        self.stamp("shadow")
        A("s_barrier")
        A("s_barrier")
        self.stamp("b4b")
        for l in xl:
            A(l)
        A("s_waitcnt vmcnt(0)")
        self.poll("x2", xl, chk8)
        self.stamp("x2ld")

        for k in range(8):
            A(f"v_dot2_f32_bf16 {v(Tt + 2 * k)}, {v(vY + k)}, s{sSELLO}, {v(Tt + 2 * k)}")
            A(f"v_dot2_f32_bf16 {v(Tt + 2 * k + 1)}, {v(vY + k)}, s{sSELHI}, {v(Tt + 2 * k + 1)}")
        for k in range(8):
            A(f"v_cvt_pk_bf16_f32 {v(vY + k)}, {v(Tt + 2 * k)}, {v(Tt + 2 * k + 1)}")
        for k in range(8):
            A(f"v_dot2_f32_bf16 {v(Xf + 2 * k)}, {v(vY + k)}, s{sSELLO}, {v(Xf + 2 * k)}")
            A(f"v_dot2_f32_bf16 {v(Xf + 2 * k + 1)}, {v(vY + k)}, s{sSELHI}, {v(Xf + 2 * k + 1)}")
        vH = vX
        for cp in range(2):
            for r in range(4):
                A(f"v_cvt_pk_bf16_f32 {v(vH + 2 * r + cp)}, {v(Xf + 8 * cp + r)}, {v(Xf + 8 * cp + 4 + r)}")
        Rr = [K + 8 + i for i in range(4)]
        for cp in range(2):
            for r in range(4):
                A(f"v_dot2_f32_bf16 {v(V[r])}, {v(vH + 2 * r + cp)}, s{sONES}, {v(V[r]) if cp else 0}")
            for r in range(4):
                A(f"v_dot2_f32_bf16 {v(V[4 + r])}, {v(vH + 2 * r + cp)}, {v(vH + 2 * r + cp)}, {v(V[4 + r]) if cp else 0}")
            for r in range(4):
                A(f"v_dot2_f32_bf16 {v(Rr[r])}, {v(vH + 2 * r + cp)}, {v(vWR + cp)}, {v(Rr[r]) if cp else 0}")
        for i in range(4):
            A(f"v_add_f32_dpp {v(V[i])}, {v(V[i])}, {v(V[i])} row_ror:8 row_mask:0xf bank_mask:0x3")
        for i in range(4):
            A(f"v_add_f32_dpp {v(V[i])}, {v(V[i + 4])}, {v(V[i + 4])} row_ror:8 row_mask:0xf bank_mask:0xc")
        for i in range(2):
            A(f"v_add_f32_dpp {v(Rr[i])}, {v(Rr[i])}, {v(Rr[i])} row_shl:4 row_mask:0xf bank_mask:0x5")
        for i in range(2):
            A(f"v_add_f32_dpp {v(Rr[i])}, {v(Rr[i + 2])}, {v(Rr[i + 2])} row_shr:4 row_mask:0xf bank_mask:0xa")
        for i in range(2):
            A(f"v_add_f32_dpp {v(V[i])}, {v(V[i])}, {v(V[i])} row_shl:4 row_mask:0xf bank_mask:0x5")
        for i in range(2):
            A(f"v_add_f32_dpp {v(V[i])}, {v(V[i + 2])}, {v(V[i + 2])} row_shr:4 row_mask:0xf bank_mask:0xa")
        A(f"v_permlane32_swap_b32 {v(Rr[0])}, {v(Rr[1])}")
        A(f"v_and_b32 {v(K + 13)}, 0xffffff7f, {v(vSW)}")
        A(f"v_permlane32_swap_b32 {v(V[0])}, {v(V[1])}")
        A(f"v_add_f32 {v(Rr[0])}, {v(Rr[0])}, {v(Rr[1])}")
        A(f"v_add_f32 {v(V[0])}, {v(V[0])}, {v(V[1])}")
        A(f"s_mov_b64 vcc, {sp(sODD)}")
        A(f"v_add_f32_dpp {v(Rr[0])}, {v(Rr[0])}, {v(Rr[0])} row_ror:8 row_mask:0xf bank_mask:0xf")
        A(f"v_add_f32_dpp {v(V[0])}, {v(V[0])}, {v(V[0])} quad_perm:[2,3,0,1] row_mask:0xf bank_mask:0xf")
        A(f"v_mov_b32 {v(V[1])}, {v(V[0])}")
        A(f"v_add_f32_dpp {v(Rr[0])}, {v(Rr[0])}, {v(Rr[0])} quad_perm:[2,3,0,1] row_mask:0xf bank_mask:0xf")
        A(f"v_mov_b32 {v(Rr[1])}, {v(Rr[0])}")
        A(f"v_permlane16_swap_b32 {v(V[0])}, {v(V[1])}")
        A(f"v_add_f32 {v(V[0])}, {v(V[0])}, {v(V[1])}")
        A(f"v_permlane16_swap_b32 {v(Rr[0])}, {v(Rr[1])}")
        A(f"v_add_f32 {v(Rr[0])}, {v(Rr[0])}, {v(Rr[1])}")
        A(f"ds_write_b32 {v(vSW)}, {v(V[0])} offset:{L_RED2 - L_RED1}")
        A(f"ds_write_b32 {v(K + 13)}, {v(Rr[0])} offset:{L_RED2 - L_RED1 + 256}")
        A("s_waitcnt lgkmcnt(0)")
        A("s_barrier")
        self.stamp("b5")
        Hf, Dd = Xf, Tt
        self.key_calc(K, vRA, vLANE)
        self.spread(K + 12, vNM, K + 24)
        A(f"v_readfirstlane_b32 s{sBEST}, {v(K + 8)}")
        for r in range(4):
            for cp in range(2):
                A(f"v_lshlrev_b32 {v(Hf + 4 * r + 2 * cp)}, 16, {v(vH + 2 * r + cp)}")
                A(f"v_and_b32 {v(Hf + 4 * r + 2 * cp + 1)}, s{sMASK}, {v(vH + 2 * r + cp)}")
        self.spread(K + 13, vRI, K + 24)
        for k in range(8):
            r = k >> 1
            sel = "op_sel:[1,0] op_sel_hi:[1,1]" if r & 1 else "op_sel_hi:[0,1]"
            A(f"v_pk_add_f32 {v(Dd + 2 * k, 2)}, {v(vNM + (r & 2), 2)}, {v(Hf + 2 * k, 2)} {sel}")
        vX2 = vU
        for k in range(8):
            A(f"v_cvt_pk_bf16_f32 {v(vX2 + k)}, {v(Dd + 2 * k)}, {v(Dd + 2 * k + 1)}")
        for k in range(8):
            A(f"v_lshlrev_b32 {v(Dd + 2 * k)}, 16, {v(vX2 + k)}")
            A(f"v_and_b32 {v(Dd + 2 * k + 1)}, s{sMASK}, {v(vX2 + k)}")
        for k in range(8):
            r = k >> 1
            sel = "op_sel:[1,0] op_sel_hi:[1,1]" if r & 1 else "op_sel_hi:[0,1]"
            A(f"v_pk_mul_f32 {v(Dd + 2 * k, 2)}, {v(vRI + (r & 2), 2)}, {v(Dd + 2 * k, 2)} {sel}")
        for k in range(8):
            A(f"v_cvt_pk_bf16_f32 {v(vX2 + k)}, {v(Dd + 2 * k)}, {v(Dd + 2 * k + 1)}")
        A(f"s_andn2_b32 s{sTMP}, 7, s{sBEST}")
        A(f"s_and_b32 s{sTMP + 1}, s{sTMP}, 3")
        A(f"s_lshl_b32 s{sTMP + 2}, s{sTMP + 1}, 1")
        A(f"s_not_b64 {sp(sE)}, {sp(sODD)}")
        A(f"s_cmp_ge_u32 s{sTMP}, 4")
        A(f"s_cselect_b64 {sp(sE)}, {sp(sODD)}, {sp(sE)}")
        vC = K + 24
        A(f"s_set_gpr_idx_on s{sTMP + 2}, gpr_idx(SRC0)")
        A(f"v_mov_b32 {v(vC)}, {v(vX2)}")
        A(f"v_mov_b32 {v(vC + 1)}, {v(vX2 + 1)}")
        A(f"v_mov_b32 {v(vC + 2)}, {v(vH)}")
        A(f"v_mov_b32 {v(vC + 3)}, {v(vH + 1)}")
        A("s_set_gpr_idx_off")
        A(f"s_add_u32 s{sTMP + 3}, s{sOWN}, {O_SLOT}")
        A(f"v_add_u32 {v(vT)}, s{sTMP + 3}, {v(vT + 2)}")
        A(f"s_mov_b64 exec, {sp(sE)}")
        A(f"global_store_dwordx2 {v(vT)}, {v(vC, 2)}, {sp(sWS)} sc1")
        A(f"global_store_dwordx2 {v(vT)}, {v(vC + 2, 2)}, {sp(sWS)} offset:1024 sc1")
        A("s_mov_b64 exec, -1")
        self.stamp("slot")
        for k in range(8):
            A(f"v_dot2_f32_bf16 {v(Hf + 2 * k)}, {v(vX2 + k)}, s{sSELLO}, {v(Hf + 2 * k)}")
            A(f"v_dot2_f32_bf16 {v(Hf + 2 * k + 1)}, {v(vX2 + k)}, s{sSELHI}, {v(Hf + 2 * k + 1)}")
        vO = vY
        A(f"v_mov_b32 {v(vT + 4)}, {L_REDK}")
        for k in range(8):
            A(f"v_cvt_pk_bf16_f32 {v(vO + k)}, {v(Hf + 2 * k)}, {v(Hf + 2 * k + 1)}")
        osc = " sc1" if o.get("outsc", 0) == 1 else (" nt" if o.get("outsc", 0) == 2 else "")
        for r in range(4):
            A(f"s_cmp_eq_u32 s{sTMP + 1}, {r}")
            A(f"s_cselect_b64 vcc, {sp(sE)}, 0")
            A("s_not_b64 exec, vcc")
            A(f"global_store_dwordx2 {v(vRD)}, {v(vO + 2 * r, 2)}, {sp(sOUT)} offset:{1024 * r}{osc}")
        A("s_mov_b64 exec, -1")
        A(f"s_set_gpr_idx_on s{sTMP + 2}, gpr_idx(SRC0)")
        A(f"v_mov_b32 {v(vC + 4)}, {v(vO)}")
        A(f"v_mov_b32 {v(vC + 5)}, {v(vO + 1)}")
        A("s_set_gpr_idx_off")
        A(f"s_lshl_b32 s{sTMP + 1}, s{sTMP + 1}, 10")
        A(f"v_add_u32 {v(vRD)}, s{sTMP + 1}, {v(vRD)}")
        A(f"s_lshr_b32 s{sTMP}, s{sWAVE}, 1")
        A(f"s_lshl_b32 s{sTMP}, s{sTMP}, 9")
        A(f"s_add_u32 s{sTMP}, s{sTMP}, {W_REG + O_SLOT}")
        A(f"v_lshrrev_b32 {v(vT)}, 1, {v(vLANE)}")
        A(f"v_lshl_add_u32 {v(vT)}, {v(vT)}, 4, s{sTMP}")
        A(f"v_lshlrev_b32 {v(vT + 1)}, 6, {v(vT + 1)}")
        A(f"v_and_b32 {v(vT + 2)}, 12, {v(vLANE)}")
        A(f"v_lshl_add_u32 {v(vT + 1)}, {v(vT + 2)}, 2, {v(vT + 1)}")
        A(f"v_lshrrev_b32 {v(vT + 2)}, 5, {v(vLANE)}")
        A(f"v_lshl_add_u32 {v(vT + 1)}, {v(vT + 2)}, 3, {v(vT + 1)}")
        A(f"s_and_b32 s{sTMP}, s{sWAVE}, 1")
        A(f"s_lshl_b32 s{sTMP}, s{sTMP}, 7")
        A(f"s_lshr_b32 s{sTMP + 1}, s{sWAVE}, 1")
        A(f"s_lshl_b32 s{sTMP + 1}, s{sTMP + 1}, 2")
        A(f"s_add_u32 s{sTMP}, s{sTMP}, s{sTMP + 1}")
        A(f"s_add_u32 s{sTMP}, s{sTMP}, {L_REDF}")
        A(f"v_add_u32 {v(vT + 1)}, s{sTMP}, {v(vT + 1)}")
        A(f"v_and_b32 {v(vT + 2)}, 15, {v(vLANE)}")
        A(f"v_lshlrev_b32 {v(vT + 2)}, 3, {v(vT + 2)}")
        A(f"v_add_u32 {v(vT + 2)}, {L_REDF}, {v(vT + 2)}")
        A(f"s_add_u32 s{sTMP}, s{sOWN}, {O_PART}")
        A(f"v_lshl_add_u32 {v(vT + 3)}, v0, 3, s{sTMP}")
        WGp = K + 80
        for kp in range(4):
            for d in range(4):
                lo, hi = vWG + 8 * kp + d, vWG + 8 * kp + 4 + d
                A(f"v_perm_b32 {v(WGp + 8 * kp + 2 * d)}, {v(hi)}, {v(lo)}, s{sRP0}")
                A(f"v_perm_b32 {v(WGp + 8 * kp + 2 * d + 1)}, {v(hi)}, {v(lo)}, s{sRP1}")
        WDp = vWG
        for kp in range(8):
            lo, hi = vWD + 2 * kp, vWD + 2 * kp + 1
            A(f"v_perm_b32 {v(WDp + 2 * kp)}, {v(hi)}, {v(lo)}, s{sRP0}")
            A(f"v_perm_b32 {v(WDp + 2 * kp + 1)}, {v(hi)}, {v(lo)}, s{sRP1}")
        self.stamp("outst")
        A("s_barrier")
        A(f"ds_read_b32 {v(K)}, {v(vT + 4)}")
        A("s_waitcnt lgkmcnt(0)")
        A(f"v_readfirstlane_b32 s{sWIN}, {v(K)}")
        A(f"s_andn2_b32 s{sT0}, 2047, s{sWIN}")
        A(f"s_lshr_b32 s{sT1}, s{sT0}, 3")
        A(f"s_mul_i32 s{sT1}, s{sT1}, {RS}")
        A(f"s_cmp_lt_u32 s{sPOS}, 14")
        A("s_cbranch_scc0 L_noffn")
        A(f"v_add_u32 {v(vT)}, s{sT1}, {v(vT)}")
        sl = [f"global_load_dwordx4 {v(K, 4)}, {v(vT)}, {sp(sWS)} sc1"]
        A(sl[0])
        self.stamp("win")
        A("s_waitcnt vmcnt(0)")
        self.poll("sel", sl, [f"v_max3_u32 {v(vT + 6)}, {v(K)}, {v(K + 1)}, {v(K + 2)}",
                              f"v_max_u32 {v(vT + 6)}, {v(vT + 6)}, {v(K + 3)}",
                              f"v_cmp_eq_u32 vcc, -1, {v(vT + 6)}"])
        self.stamp("sel")
        V2 = [K + 8 + i for i in range(8)]
        for kp in range(4):
            for c in range(8):
                A(f"v_dot2_f32_bf16 {v(V2[c])}, {v(K + kp)}, {v(WGp + 8 * kp + c)}, {v(V2[c]) if kp else 0}")
        self.reduce8(V2, K + 16)
        A(f"ds_write_b32 {v(vT + 1)}, {v(V2[0])}")
        A("s_waitcnt lgkmcnt(0)")
        A("s_barrier")
        A(f"ds_read_b64 {v(K, 2)}, {v(vT + 2)}")
        A(f"ds_read_b64 {v(K + 2, 2)}, {v(vT + 2)} offset:128")
        A("s_waitcnt lgkmcnt(0)")
        A(f"v_add_f32 {v(K)}, {v(K)}, {v(K + 1)}")
        A(f"v_add_f32 {v(K + 2)}, {v(K + 2)}, {v(K + 3)}")
        A(f"v_cvt_pk_bf16_f32 {v(K + 1)}, {v(K)}, {v(K + 2)}")
        A(f"v_lshlrev_b32 {v(K)}, 16, {v(K + 1)}")
        A(f"v_mul_f32 {v(K + 3)}, {hex(f2u(-L2E))}, {v(K)}")
        A(f"v_exp_f32 {v(K + 3)}, {v(K + 3)}")
        A(f"v_and_b32 {v(K + 2)}, s{sMASK}, {v(K + 1)}")
        A(f"v_add_f32 {v(K + 3)}, 1.0, {v(K + 3)}")
        A(f"v_rcp_f32 {v(K + 3)}, {v(K + 3)}")
        A(f"v_mul_f32 {v(K)}, {v(K)}, {v(K + 3)}")
        A(f"v_cvt_pk_bf16_f32 {v(K)}, {v(K)}, {v(K)}")
        A(f"v_and_b32 {v(K)}, s{sMASK}, {v(K)}")
        A(f"v_mul_f32 {v(K)}, {v(K)}, {v(K + 2)}")
        A(f"v_mov_b32_dpp {v(K + 1)}, {v(K)} quad_perm:[1,1,3,3] row_mask:0xf bank_mask:0xf")
        A(f"v_cvt_pk_bf16_f32 {v(K)}, {v(K)}, {v(K + 1)}")
        for kp in range(8):
            A(f"v_readlane_b32 s{sH + kp}, {v(K)}, {2 * kp}")
        for kp in range(8):
            for c in range(2):
                A(f"v_dot2_f32_bf16 {v(K + 4 + c)}, s{sH + kp}, {v(WDp + 2 * kp + c)}, {v(K + 4 + c) if kp else 0}")
        A(f"global_store_dwordx2 {v(vT + 3)}, {v(K + 4, 2)}, {sp(sWS)} sc1")
        self.stamp("part")
        held = [f"s_cmp_eq_u32 s{sWIN}, s{sBEST}",
                f"s_cselect_b64 exec, 0, {sp(sE)}",
                f"global_store_dwordx2 {v(vRD)}, {v(vC + 4, 2)}, {sp(sOUT)}{osc}",
                f"s_or_b32 s{sTMP}, s{sL}, s{sWAVE}",
                f"s_cmp_eq_u32 s{sTMP}, 0",
                "s_cselect_b64 exec, 1, 0",
                f"v_mov_b32 {v(vT + 4)}, s{sG}",
                f"v_mov_b32 {v(vT + 5)}, 0",
                f"global_store_dword {v(vT + 5)}, {v(vT + 4)}, {sp(sWS)} sc1",
                "s_mov_b64 exec, -1"]
        T = self.tail
        T("L_noffn:")
        for l in held:
            T(l)
        T("s_branch L_fin")
        for l in held:
            A(l)
        A(f"s_cmp_lt_u32 s{sPOS}, 8")
        A("s_cbranch_scc0 L_fin")
        A(f"s_cmp_lt_u32 s{sWAVE}, 2")
        A("s_cbranch_scc0 L_fin")
        A(f"s_lshl_b32 s{sTMP}, s{sXCD}, 3")
        A(f"s_add_u32 s{sTMP}, s{sTMP}, s{sPOS}")
        A(f"s_lshl_b32 s{sTMP}, s{sTMP}, 1")
        A(f"s_add_u32 s{sTMP}, s{sTMP}, s{sWAVE}")
        A(f"v_lshrrev_b32 {v(vT)}, 5, {v(vLANE)}")
        A(f"v_bfe_u32 {v(vT + 1)}, {v(vLANE)}, 4, 1")
        A(f"v_lshl_add_u32 {v(vT)}, {v(vT + 1)}, 1, {v(vT)}")
        A(f"s_lshl_b32 s{sTMP + 1}, s{sTMP}, 3")
        A(f"v_lshl_add_u32 {v(vT)}, {v(vT)}, 1, s{sTMP + 1}")
        A(f"s_add_u32 s{sT1}, s{sT1}, {W_REG + O_SLOT}")
        A(f"v_add_u32 {v(vT + 1)}, s{sT1}, {v(vT)}")
        xh = [f"global_load_ushort {v(K + 20)}, {v(vT + 1)}, {sp(sWS)} sc1",
              f"global_load_ushort {v(K + 21)}, {v(vT + 1)}, {sp(sWS)} offset:1024 sc1"]
        for l in xh:
            A(l)
        A(f"s_lshl_b32 s{sTMP + 1}, s{sT0}, 10")
        A(f"v_add_u32 {v(vT)}, s{sTMP + 1}, {v(vT)}")
        A(f"v_min_u32 {v(vT + 2)}, 55, {v(vLANE)}")
        A(f"v_mul_u32_u24 {v(vT + 3)}, 4682, {v(vT + 2)}")
        A(f"v_lshrrev_b32 {v(vT + 3)}, 16, {v(vT + 3)}")
        A(f"v_mad_u32_u24 {v(vT + 2)}, {v(vT + 3)}, 18, {v(vT + 2)}")
        A(f"v_mul_u32_u24 {v(vT + 2)}, {RS}, {v(vT + 2)}")
        A(f"s_lshl_b32 s{sTMP + 1}, s{sTMP}, 4")
        A(f"s_add_u32 s{sTMP + 1}, s{sTMP + 1}, {W_REG + O_PART}")
        A(f"v_add_u32 {v(vT + 2)}, s{sTMP + 1}, {v(vT + 2)}")
        A(f"v_add_u32 {v(vT + 3)}, {128 * RS}, {v(vT + 2)}")
        A(f"s_ashr_i32 s{sTMP + 2}, s{sWIN}, 31")
        A(f"s_not_b32 s{sTMP + 2}, s{sTMP + 2}")
        A(f"s_or_b32 s{sTMP + 2}, s{sTMP + 2}, 0x80000000")
        A(f"s_xor_b32 s{sTMP + 2}, s{sTMP + 2}, s{sWIN}")
        A(f"s_and_b32 s{sTMP + 2}, s{sTMP + 2}, 0xfffff800")
        A(f"s_or_b32 s{sTMP + 2}, s{sTMP + 2}, 0x400")
        A(f"v_cvt_pk_bf16_f32 {v(K + 22)}, s{sTMP + 2}, s{sTMP + 2}")
        A(f"v_and_b32 {v(K + 22)}, s{sMASK}, {v(K + 22)}")
        A(f"v_mul_f32 {v(K + 22)}, {hex(f2u(-L2E))}, {v(K + 22)}")
        A(f"v_exp_f32 {v(K + 22)}, {v(K + 22)}")
        A(f"v_add_f32 {v(K + 22)}, 1.0, {v(K + 22)}")
        A(f"v_rcp_f32 {v(K + 22)}, {v(K + 22)}")
        A(f"v_cvt_pk_bf16_f32 {v(K + 22)}, {v(K + 22)}, {v(K + 22)}")
        A(f"v_and_b32 {v(K + 22)}, s{sMASK}, {v(K + 22)}")
        A("s_waitcnt vmcnt(0)")
        self.stamp("partdr")
        pl = [f"global_load_dwordx4 {v(vY, 4)}, {v(vT + 2)}, {sp(sWS)} sc1",
              f"global_load_dwordx4 {v(vY + 4, 4)}, {v(vT + 3)}, {sp(sWS)} sc1"]
        for l in pl:
            A(l)
        self.poll("xh", xh, [f"v_max_u32 {v(vT + 6)}, {v(K + 20)}, {v(K + 21)}",
                             f"v_cmp_eq_u32 vcc, 0xffff, {v(vT + 6)}"])
        A(f"v_lshlrev_b32 {v(K + 20)}, 16, {v(K + 20)}")
        A(f"v_lshlrev_b32 {v(K + 21)}, 16, {v(K + 21)}")
        A("s_waitcnt vmcnt(0)")
        self.poll("part", pl, chk8)
        self.stamp("partld")
        A(f"v_cmp_gt_u32 vcc, 56, {v(vLANE)}")
        A(f"v_pk_add_f32 {v(vY, 2)}, {v(vY, 2)}, {v(vY + 4, 2)}")
        A(f"v_pk_add_f32 {v(vY + 2, 2)}, {v(vY + 2, 2)}, {v(vY + 6, 2)}")
        for c in range(4):
            A(f"v_cndmask_b32 {v(vY + c)}, 0, {v(vY + c)}, vcc")
        A(f"v_permlane32_swap_b32 {v(vY)}, {v(vY + 1)}")
        A(f"v_permlane32_swap_b32 {v(vY + 2)}, {v(vY + 3)}")
        A(f"v_add_f32 {v(vY)}, {v(vY)}, {v(vY + 1)}")
        A(f"v_add_f32 {v(vY + 2)}, {v(vY + 2)}, {v(vY + 3)}")
        A(f"v_permlane16_swap_b32 {v(vY)}, {v(vY + 2)}")
        A(f"v_add_f32 {v(vY)}, {v(vY)}, {v(vY + 2)}")
        for sh in (8, 4, 2, 1):
            A(f"v_add_f32_dpp {v(vY)}, {v(vY)}, {v(vY)} row_ror:{sh} row_mask:0xf bank_mask:0xf")
        y = vY
        A(f"v_cvt_pk_bf16_f32 {v(y)}, {v(y)}, {v(y)}")
        A(f"v_and_b32 {v(y)}, s{sMASK}, {v(y)}")
        A(f"v_mul_f32 {v(y)}, {v(y)}, {v(K + 22)}")
        A(f"v_cvt_pk_bf16_f32 {v(y)}, {v(y)}, {v(y)}")
        A(f"v_and_b32 {v(y)}, s{sMASK}, {v(y)}")
        A(f"v_add_f32 {v(y)}, {v(y)}, {v(K + 20)}")
        A(f"v_cvt_pk_bf16_f32 {v(y)}, {v(y)}, {v(y)}")
        A(f"v_and_b32 {v(y)}, s{sMASK}, {v(y)}")
        A(f"v_add_f32 {v(y)}, {v(y)}, {v(K + 21)}")
        A(f"v_cvt_pk_bf16_f32 {v(y)}, {v(y)}, {v(y)}")
        A("s_mov_b32 exec_lo, 0x00010001")
        A("s_mov_b32 exec_hi, 0x00010001")
        A(f"global_store_short {v(vT)}, {v(y)}, {sp(sOUT)}")
        A("L_fin:")
        self.finish("R")

    def chans(self):
        A = self.A
        o = self.o
        vLANE = 1
        vAA, vBA, vEW, vER, vRA = 4, 12, 13, 14, 15
        vKA0, vKA1, vKB, vPW0, vPW1 = 16, 17, 18, 19, 20
        vP = 24
        vT = 28
        vACC = 40
        vA0, vA1, vB0, vB1 = 72, 104, 136, 168
        K = 72
        A("L_chan:")
        A("v_and_b32 v0, 0xff, v0")
        A(f"s_sub_u32 s{sWAVE}, s{sWAVE}, 4")
        A(f"s_lshl_b32 s{sT0}, s{sL}, 9")
        A(f"v_lshl_add_u32 {v(vT)}, v0, 1, s{sT0}")
        A(f"s_lshl_b32 s{sT1}, s{sL}, 2")
        A("s_waitcnt lgkmcnt(0)")
        self.stamp("karg")
        for k, s in enumerate((sLA, sAI, sCR, sCI)):
            A(f"global_load_ushort {v(vP + k)}, {v(vT)}, {sp(s)}{' nt' if o.get('ntx', 1) else ''}")
        A(f"s_load_dword s{sDT}, {sp(sLDT)}, s{sT1}")
        ntlb = 0
        if o.get("tlb", 0):
            A("v_mov_b32 v2, 0")
            A("s_mov_b64 exec, 1")
            for sb in (sWG, sWU, sWD, sOUT):
                A(f"global_load_dword v3, v2, {sp(sb)}")
                ntlb += 1
            A("s_mov_b64 exec, -1")
        vJ, vGq = vT + 4, vT + 5
        A(f"v_and_b32 {v(vJ)}, 15, {v(vLANE)}")
        A(f"v_lshrrev_b32 {v(vGq)}, 4, {v(vLANE)}")
        A(f"s_lshr_b32 s{sT0}, s{sWAVE}, 1")
        A(f"s_and_b32 s{sT1}, s{sWAVE}, 1")
        A(f"v_and_b32 {v(vT)}, 7, {v(vLANE)}")
        A(f"v_lshlrev_b32 {v(vRA)}, 4, {v(vT)}")
        A(f"v_add_u32 {v(vRA)}, {L_RED1}, {v(vRA)}")
        A(f"s_mul_i32 s{sTMP}, s{sT0}, {PC}")
        A(f"s_lshl_b32 s{sTMP + 1}, s{sT1}, 7")
        A(f"s_add_u32 s{sTMP}, s{sTMP}, s{sTMP + 1}")
        A(f"s_add_u32 s{sTMP}, s{sTMP}, {L_P + 4 * 26}")
        A(f"v_lshlrev_b32 {v(vT)}, 3, {v(vGq)}")
        A(f"v_sub_u32 {v(vT)}, {v(vJ)}, {v(vT)}")
        A(f"v_lshl_add_u32 {v(vAA)}, {v(vT)}, 2, s{sTMP}")
        for m in range(1, 8):
            A(f"v_add_u32 {v(vAA + m)}, {1024 * m}, {v(vAA)}")
        A(f"s_mul_i32 s{sTMP}, s{sT0}, {UC}")
        A(f"s_lshl_b32 s{sTMP + 1}, s{sT1}, 6")
        A(f"s_sub_u32 s{sTMP}, s{sTMP}, s{sTMP + 1}")
        A(f"s_add_u32 s{sTMP}, s{sTMP}, {L_U + 64}")
        A(f"v_lshl_add_u32 {v(vT)}, {v(vJ)}, 1, {v(vGq)}")
        A(f"v_lshl_add_u32 {v(vBA)}, {v(vT)}, 4, s{sTMP}")
        A(f"v_lshl_add_u32 {v(vT)}, {v(vJ)}, 2, {v(vGq)}")
        A(f"v_lshrrev_b32 {v(vT + 1)}, 3, {v(vT)}")
        A(f"v_add_u32 {v(vT)}, {v(vT)}, {v(vT + 1)}")
        A(f"s_mul_i32 s{sTMP}, s{sWAVE}, {8 * TBS}")
        A(f"v_lshl_add_u32 {v(vEW)}, {v(vT)}, 4, s{sTMP}")
        A(f"v_lshrrev_b32 {v(vT + 1)}, 3, {v(vLANE)}")
        A(f"v_add_u32 {v(vT)}, {v(vLANE)}, {v(vT + 1)}")
        A(f"s_mul_i32 s{sTMP}, s{sWAVE}, {2 * TBS}")
        A(f"v_lshl_add_u32 {v(vER)}, {v(vT)}, 4, s{sTMP}")
        KS = o.get("ks", 5)
        for k in range(4):
            A(f"v_mov_b32 {v(vACC + k)}, -1")
        A(f"s_mul_i32 s{sTMP}, s{sL}, {RS}")
        A(f"s_add_u32 s{sTMP}, s{sTMP}, {W_REG + 4096}")
        A(f"v_lshl_add_u32 {v(vACC + 4)}, v0, 4, s{sTMP}")
        A(f"v_add_u32 {v(vACC + 5)}, 8192, {v(vACC + 4)}")
        A(f"v_add_u32 {v(vACC + 6)}, 12288, {v(vACC + 4)}")
        A(f"s_lshl_b32 s{sTMP}, s{sL}, {KS}")
        A(f"s_add_u32 s{sTMP}, s{sTMP}, {W_KEY}")
        A(f"v_lshl_add_u32 {v(22)}, {v(vLANE)}, 4, s{sTMP}")
        ones = v(vACC, 4)
        A(f"s_cmp_eq_u32 s{sWAVE}, 0")
        A(f"s_cselect_b64 exec, {(1 << ((1 << KS) // 16)) - 1}, 0")
        A(f"global_store_dwordx4 {v(22)}, {ones}, {sp(sWS)} sc1")
        A("s_mov_b64 exec, -1")
        A(f"global_store_dwordx4 {v(vACC + 4)}, {ones}, {sp(sWS)} offset:-4096 sc1")
        A(f"global_store_dwordx4 {v(vACC + 4)}, {ones}, {sp(sWS)} sc1")
        A(f"global_store_dwordx4 {v(vACC + 5)}, {ones}, {sp(sWS)} offset:-4096 sc1")
        A(f"global_store_dwordx4 {v(vACC + 5)}, {ones}, {sp(sWS)} sc1")
        A(f"global_store_dwordx4 {v(vACC + 6)}, {ones}, {sp(sWS)} sc1")
        vg, vr = vT, vT + 1
        A(f"v_lshrrev_b32 {v(vg)}, 2, {v(vJ)}")
        A(f"v_and_b32 {v(vr)}, 3, {v(vJ)}")
        A(f"s_cmp_eq_u32 s{sT1}, 0")
        A("s_cbranch_scc0 L_rows_hi")
        A(f"v_mov_b32 {v(vKA0)}, {v(vJ)}")
        A(f"v_lshl_add_u32 {v(vKA1)}, {v(vg)}, 1, {v(vr)}")
        A(f"v_add_u32 {v(vKA1)}, 16, {v(vKA1)}")
        A(f"v_add_u32 {v(vT + 2)}, -4, {v(vJ)}")
        A(f"v_and_b32 {v(vT + 2)}, 15, {v(vT + 2)}")
        A(f"v_cmp_eq_u32 vcc, 3, {v(vr)}")
        A(f"v_cndmask_b32 {v(vKA1)}, {v(vKA1)}, {v(vT + 2)}, vcc")
        A(f"v_lshl_add_u32 {v(vPW0)}, {v(vJ)}, 2, {v(vGq)}")
        A(f"v_lshlrev_b32 {v(vPW0)}, 4, {v(vPW0)}")
        A(f"v_add_u32 {v(vPW1)}, 1024, {v(vPW0)}")
        A("s_branch L_rows_done")
        A("L_rows_hi:")
        A(f"v_lshrrev_b32 {v(vT + 2)}, 1, {v(vg)}")
        A(f"v_lshl_add_u32 {v(vKA0)}, {v(vg)}, 1, {v(vr)}")
        A(f"v_add3_u32 {v(vKA0)}, {v(vKA0)}, {v(vT + 2)}, 25")
        A(f"v_sub_u32 {v(vKA1)}, {v(vJ)}, {v(vg)}")
        A(f"v_add_u32 {v(vKA1)}, 35, {v(vKA1)}")
        A(f"v_lshrrev_b32 {v(vT + 2)}, 1, {v(vGq)}")
        A(f"v_lshl_add_u32 {v(vPW0)}, {v(vT + 2)}, 4, {v(vJ)}")
        A(f"v_and_b32 {v(vT + 2)}, 1, {v(vGq)}")
        A(f"v_lshl_add_u32 {v(vPW0)}, {v(vPW0)}, 1, {v(vT + 2)}")
        A(f"v_lshlrev_b32 {v(vPW0)}, 5, {v(vPW0)}")
        A(f"v_add_u32 {v(vPW0)}, 2048, {v(vPW0)}")
        A(f"v_lshlrev_b32 {v(vPW1)}, 6, {v(vLANE)}")
        A(f"v_add_u32 {v(vPW1)}, 4096, {v(vPW1)}")
        A("L_rows_done:")
        A(f"s_mul_i32 s{sTMP}, s{sT0}, {PC}")
        A(f"s_add_u32 s{sTMP}, s{sTMP}, {L_P + 64}")
        A(f"v_add_u32 {v(vPW0)}, s{sTMP}, {v(vPW0)}")
        A(f"v_add_u32 {v(vPW1)}, s{sTMP}, {v(vPW1)}")
        A(f"s_mul_i32 s{sTMP}, s{sT0}, {TABC}")
        A(f"v_lshl_add_u32 {v(vT + 2)}, {v(vGq)}, 4, s{sTMP}")
        A(f"s_movk_i32 s{sTMP + 1}, {ROWB}")
        A(f"v_mad_u32_u24 {v(vKA0)}, {v(vKA0)}, s{sTMP + 1}, {v(vT + 2)}")
        A(f"v_mad_u32_u24 {v(vKA1)}, {v(vKA1)}, s{sTMP + 1}, {v(vT + 2)}")
        A(f"v_mad_u32_u24 {v(vKB)}, {v(vJ)}, s{sTMP + 1}, {v(vT + 2)}")
        A(f"s_lshl_b32 s{sTMP + 1}, s{sT1}, 8")
        A(f"s_add_u32 m0, s{sTMP}, s{sTMP + 1}")
        A(f"s_mul_i32 s{sTMP}, s{sXCD}, 448")
        A(f"s_and_b32 s{sTMP}, s{sTMP}, 0xffffff80")
        A(f"s_mul_i32 s{sTMP + 1}, s{sPOS}, {16 * 3584}")
        A(f"s_add_u32 s{sTMP}, s{sTMP}, s{sTMP + 1}")
        A(f"v_lshrrev_b32 {v(vT + 2)}, 2, {v(vLANE)}")
        A(f"v_mul_u32_u24 {v(vT + 2)}, 3584, {v(vT + 2)}")
        A(f"v_and_b32 {v(vT + 3)}, 3, {v(vLANE)}")
        A(f"v_lshl_add_u32 {v(vT + 2)}, {v(vT + 3)}, 7, {v(vT + 2)}")
        A(f"v_add_u32 {v(vT + 2)}, s{sTMP}, {v(vT + 2)}")
        A(f"s_mul_i32 s{sTMP}, s{sL}, 7168")
        A(f"s_mul_i32 s{sTMP + 1}, s{sT1}, 3584")
        A(f"s_add_u32 s{sTMP}, s{sTMP}, s{sTMP + 1}")
        A(f"v_min_u32 {v(vT + 3)}, 27, {v(vLANE)}")
        A(f"v_lshl_add_u32 {v(vT + 3)}, {v(vT + 3)}, 7, s{sTMP}")
        A(f"s_cmp_eq_u32 s{sT1}, 0")
        A(f"s_cselect_b64 {sp(sWSEL)}, {sp(sWG)}, {sp(sWU)}")
        A(f"s_cmp_eq_u32 s{sT0}, 0")
        A(f"s_cselect_b64 {sp(sWSEL)}, {sp(sWSEL)}, {sp(sWD)}")
        A("s_cselect_b64 vcc, -1, 0")
        A(f"v_cndmask_b32 {v(21)}, {v(vT + 3)}, {v(vT + 2)}, vcc")
        wpf = f"global_load_dword v3, v21, {sp(sWSEL)}{' nt' if o.get('ntw', 1) else ''}"
        if o.get("wpf", 2) == 2:
            A(wpf)

        L2E = 1.4426950408889634
        l2e_hi = struct.unpack("<f", struct.pack("<f", L2E))[0]
        l2e_lo = L2E - l2e_hi
        a, b = K, K + 2
        A(f"s_mov_b32 s{sE}, {hex(f2u(l2e_hi))}")
        A(f"s_mov_b32 s{sE + 1}, {hex(f2u(l2e_lo))}")
        A(f"s_waitcnt vmcnt({(6 if o.get('wpf', 2) == 2 else 5) + ntlb}) lgkmcnt(0)")
        self.stamp("par")
        A(f"s_lshl_b32 s{sTMP}, s{sDT}, 16")
        A(f"s_and_b32 s{sTMP + 1}, s{sDT}, s{sMASK}")
        A(f"s_cmp_lt_u32 s{sWAVE}, 2")
        A(f"s_cselect_b32 s{sDT}, s{sTMP}, s{sTMP + 1}")
        A(f"v_lshlrev_b32 {v(a)}, 16, {v(vP)}")
        A(f"v_mov_b32 {v(a + 1)}, s{sDT}")
        A(f"v_pk_mul_f32 {v(b, 2)}, {v(a, 2)}, {sp(sE)} op_sel_hi:[1,0]")
        A(f"v_pk_fma_f32 {v(b + 2, 2)}, {v(a, 2)}, {sp(sE)}, {v(b, 2)} op_sel_hi:[1,0,1] neg_lo:[0,0,1] neg_hi:[0,0,1]")
        A(f"v_exp_f32 {v(b)}, {v(b)}")
        A(f"v_exp_f32 {v(b + 1)}, {v(b + 1)}")
        A(f"v_pk_fma_f32 {v(b + 2, 2)}, {sp(sE)}, {v(a, 2)}, {v(b + 2, 2)} op_sel:[1,0,0] op_sel_hi:[1,1,1]")
        A(f"v_mul_f32 {v(b + 2)}, {hex(f2u(0.6931471805599453))}, {v(b + 2)}")
        A(f"v_mul_f32 {v(b + 3)}, {hex(f2u(0.6931471805599453))}, {v(b + 3)}")
        A(f"v_pk_fma_f32 {v(b, 2)}, {v(b, 2)}, {v(b + 2, 2)}, {v(b, 2)}")
        A(f"v_cvt_pk_bf16_f32 {v(a)}, {v(b)}, {v(b + 1)}")
        vdt, va2, vph = K + 6, K + 7, K + 8
        A(f"v_and_b32 {v(vdt)}, s{sMASK}, {v(a)}")
        A(f"v_lshlrev_b32 {v(va2)}, 16, {v(a)}")
        A(f"v_lshlrev_b32 {v(vph)}, 16, {v(vP + 1)}")
        A(f"v_mul_f32 {v(va2)}, {v(va2)}, {v(vdt)}")
        A(f"v_mul_f32 {v(vph)}, {v(vph)}, {v(vdt)}")
        A(f"v_mul_f32 {v(va2)}, {hex(f2u(-l2e_hi))}, {v(va2)}")
        A(f"v_mul_f32 {v(vph)}, 0.15915494, {v(vph)}")
        Wp = {p: K + 10 + 2 * p for p in range(1, 17)}
        Zp = {p: K + 42 + 2 * p for p in range(1, 8)}
        G = [K + 58, K + 60]
        TT = [K + 62, K + 64, K + 66, K + 68]
        RR = [K + 70, K + 72, K + 74, K + 76]
        CV = K + 80
        A(f"v_add_f32 {v(vdt)}, {v(vdt)}, {v(vdt)}")
        A(f"v_lshlrev_b32 {v(G[0])}, 16, {v(vP + 2)}")
        A(f"v_lshlrev_b32 {v(G[0] + 1)}, 16, {v(vP + 3)}")
        A(f"v_mul_f32 {v(G[0])}, {v(G[0])}, {v(vdt)}")
        A(f"v_mul_f32 {v(G[0] + 1)}, {v(G[0] + 1)}, {v(vdt)}")
        for n, (dst, sc) in enumerate(((Wp[1], 1.0), (Wp[16], 16.0), (Zp[1], 256.0))):
            t = TT[n]
            if sc == 1.0:
                A(f"v_exp_f32 {v(t)}, {v(va2)}")
                A(f"v_fract_f32 {v(t + 1)}, {v(vph)}")
            else:
                A(f"v_mul_f32 {v(t)}, {hex(f2u(sc))}, {v(va2)}")
                A(f"v_mul_f32 {v(t + 1)}, {hex(f2u(sc))}, {v(vph)}")
                A(f"v_exp_f32 {v(t)}, {v(t)}")
                A(f"v_fract_f32 {v(t + 1)}, {v(t + 1)}")
            A(f"v_cos_f32 {v(dst)}, {v(t + 1)}")
            A(f"v_sin_f32 {v(dst + 1)}, {v(t + 1)}")
        for n, dst in enumerate((Wp[1], Wp[16], Zp[1])):
            A(f"v_pk_mul_f32 {v(dst, 2)}, {v(dst, 2)}, {v(TT[n], 2)} op_sel_hi:[1,0]")
        jobs = [(1, Wp[1], None, None, 0), (16, Zp[1], None, None, 0), (47, G[0], None, None, 1)]
        wj = []
        for p in range(2, 16):
            hb = 1 << (p.bit_length() - 1)
            x, y = (p // 2, p // 2) if hb == p else (hb, p - hb)
            wj.append((p, Wp[p], Wp[x], Wp[y], 0))
        gj = [(47 + j, G[j & 1], G[(j - 1) & 1], Wp[16], 1) for j in range(1, 16)]
        zrow = {2: 25, 3: 30, 4: 35, 5: 38, 6: 41, 7: 44}
        zj = []
        for p in range(2, 8):
            hb = 1 << (p.bit_length() - 1)
            x, y = (p // 2, p // 2) if hb == p else (hb, p - hb)
            zj.append((zrow[p], Zp[p], Zp[x], Zp[y], 0))
        tj = [(16 + k, None, Zp[1], Wp[2 * k], 0) for k in range(1, 9)]
        for z in (2, 3):
            tj += [(zrow[z] + k, None, Zp[z], Wp[4 * k], 0) for k in range(1, 5)]
        for z in (4, 5, 6, 7):
            tj += [(zrow[z] + k, None, Zp[z], Wp[8 * k], 0) for k in range(1, 3)]
        first = []
        for i in range(max(len(wj), len(gj), len(zj))):
            for q in (wj, gj, zj):
                if i < len(q):
                    first.append(q[i])
        jobs += first + tj
        A(f"v_mov_b32 {v(CV + 15)}, 0x3f80")
        pend = [(0, CV + 15)]
        slot = 0
        nb = 0
        b1_at = o.get("b1_at", 0)
        batch = o.get("batch", 6)

        def do_b1():
            self.stamp("setup")
            A(f"s_waitcnt vmcnt({1 if o.get('wpf', 2) == 2 else 0})")
            self.stamp("idr")
            A("s_barrier")
            self.stamp("b1")
            if o.get("wpf", 2) == 1:
                A(wpf)
        if b1_at == 0:
            do_b1()
        for n, (row, dst, x, y, conj) in enumerate(jobs):
            if x is not None:
                if dst is None:
                    dst = RR[n & 3]
                for ins in self.cmul(dst, x, y, TT[n & 3]):
                    A(ins)
            A(f"v_cvt_pk_bf16_f32 {v(CV + slot)}, {v(dst)}, {'-' if conj else ''}{v(dst + 1)}")
            pend.append((row, CV + slot))
            slot = (slot + 1) % 15
            if len(pend) >= batch or n == len(jobs) - 1:
                for row_, reg in pend:
                    A(f"ds_write_addtid_b32 {v(reg)} offset:{row_ * ROWB}")
                pend = []
                nb += 1
                if nb == b1_at:
                    do_b1()
        A("s_waitcnt lgkmcnt(0)")
        self.stamp("kgen1")
        A("s_barrier")
        if o.get("wpf", 2) == 3:
            A(wpf)
        fB, fA0, fA1 = K, K + 32, K + 64
        for s in range(4):
            A(f"ds_read_b128 {v(fB + 4 * s, 4)}, {v(vKB)} offset:{47 * ROWB + 64 * s}")
            A(f"ds_read_b128 {v(fA0 + 4 * s, 4)}, {v(vKA0)} offset:{64 * s}")
            A(f"ds_read_b128 {v(fA1 + 4 * s, 4)}, {v(vKA1)} offset:{64 * s}")
        D0, D1 = vACC, vACC + 4
        for s in range(8):
            s2 = s + 4
            A(f"s_waitcnt lgkmcnt({9 if s2 < 8 else 3 * (7 - s)})")
            c0 = "0" if s == 0 else v(D0, 4)
            c1 = "0" if s == 0 else v(D1, 4)
            A(f"v_mfma_f32_16x16x32_bf16 {v(D0, 4)}, {v(fA0 + 4 * s, 4)}, {v(fB + 4 * s, 4)}, {c0}")
            if s2 < 8:
                A(f"ds_read_b128 {v(fB + 4 * s2, 4)}, {v(vKB)} offset:{47 * ROWB + 64 * s2}")
                A(f"ds_read_b128 {v(fA0 + 4 * s2, 4)}, {v(vKA0)} offset:{64 * s2}")
            A(f"v_mfma_f32_16x16x32_bf16 {v(D1, 4)}, {v(fA1 + 4 * s, 4)}, {v(fB + 4 * s, 4)}, {c1}")
            if s2 < 8:
                A(f"ds_read_b128 {v(fA1 + 4 * s2, 4)}, {v(vKA1)} offset:{64 * s2}")
        E = K + 96
        A(f"s_bitcmp1_b32 s{sWAVE}, 0")
        A(f"v_cmp_eq_u32 vcc, 0, {v(vLANE)}")
        A("s_nop 5")
        A("s_cbranch_scc0 L_exp_lo")
        seq2 = ["aa", "aa", "aa", "ba", "bb", "bb", "cb", "cc"]
        seq3 = ["aa", "aa", "aa", "aa", "aa", "ba", "bb", "bb", "bb", "bb", "cb", "cc", "cc", "cc"]
        ix = {"a": 0, "b": 1, "c": 2}
        for k, s in enumerate(seq3):
            A(f"v_cvt_pk_bf16_f32 {v(E + 8 + k)}, {v(D1 + ix[s[0]])}, {v(D1 + ix[s[1]])}")
        for k, w in enumerate((0, 4, 6, 10)):
            A(f"ds_write_b128 {v(vPW1)}, {v(E + 8 + w, 4)} offset:{16 * k}")
        for k, s in enumerate(seq2):
            A(f"v_cvt_pk_bf16_f32 {v(E + k)}, {v(D0 + ix[s[0]])}, {v(D0 + ix[s[1]])}")
        A(f"ds_write_b128 {v(vPW0)}, {v(E, 4)}")
        A(f"ds_write_b128 {v(vPW0)}, {v(E + 4, 4)} offset:16")
        A("L_exp_done:")
        T = self.tail
        T("L_exp_lo:")
        T(f"v_mov_b32_dpp {v(D1 + 3)}, {v(D1 + 3)} row_ror:1 row_mask:0x1 bank_mask:0xf")
        T(f"v_cvt_pk_bf16_f32 {v(E + 1)}, {v(D0 + 1)}, {v(D0)}")
        T(f"v_cvt_pk_bf16_f32 {v(E + 2)}, {v(D0 + 2)}, {v(D0 + 1)}")
        T(f"v_cvt_pk_bf16_f32 {v(E + 3)}, {v(D0 + 3)}, {v(D0 + 2)}")
        T(f"v_cndmask_b32 {v(E + 8)}, {v(D1 + 3)}, 0, vcc")
        T(f"v_cndmask_b32 {v(E + 9)}, {v(D1)}, {v(D1 + 3)}, vcc")
        T(f"v_cvt_pk_bf16_f32 {v(E)}, {v(D0)}, {v(E + 8)}")
        T(f"v_cvt_pk_bf16_f32 {v(E + 4)}, {v(D1)}, {v(E + 9)}")
        T(f"v_cvt_pk_bf16_f32 {v(E + 5)}, {v(D1)}, {v(D1)}")
        T(f"v_cvt_pk_bf16_f32 {v(E + 6)}, {v(D1 + 1)}, {v(D1)}")
        T(f"v_cvt_pk_bf16_f32 {v(E + 7)}, {v(D1 + 2)}, {v(D1 + 1)}")
        T(f"ds_write_b128 {v(vPW0)}, {v(E, 4)}")
        T(f"ds_write_b128 {v(vPW1)}, {v(E + 4, 4)}")
        T("s_branch L_exp_done")
        A("s_waitcnt lgkmcnt(0)")
        self.stamp("kgen2")
        A("s_barrier")
        if o.get("wpf", 2) == 4:
            A(wpf)

        def rdA(buf, rho, m):
            return [f"ds_read2_b32 {v(buf + 4 * m, 2)}, {v(vAA + m)} offset0:{64 * rho + 6} offset1:{64 * rho + 4}",
                    f"ds_read2_b32 {v(buf + 4 * m + 2, 2)}, {v(vAA + m)} offset0:{64 * rho + 2} offset1:{64 * rho}"]

        def rdB(buf, rho, n):
            return [f"ds_read_b128 {v(buf + 4 * n, 4)}, {v(vBA)} offset:{128 * (3 - rho) + 512 * (7 - n)}"]

        for m in range(8):
            for l in rdA(vA0, 0, m):
                A(l)
        A(f"s_mul_i32 s{sTMP}, s{sL}, {RS}")
        A(f"s_lshl_b32 s{sTMP + 1}, s{sWAVE}, 11")
        A(f"s_add_u32 s{sTMP}, s{sTMP}, s{sTMP + 1}")
        A(f"s_add_u32 s{sTMP}, s{sTMP}, {W_REG + O_X2}")
        A(f"v_lshl_add_u32 {v(vT)}, {v(vLANE)}, 4, s{sTMP}")
        A(f"v_lshlrev_b32 {v(vT + 1)}, {KS}, v0")
        A(f"v_add_u32 {v(vT + 1)}, {W_KEY}, {v(vT + 1)}")
        A(f"s_lshl_b32 s{sTMP}, s{sWAVE}, 2")
        A(f"s_add_u32 s{sTMP}, s{sTMP}, {L_REDK}")
        A(f"v_mov_b32 {v(vT + 3)}, s{sTMP}")
        A("s_waitcnt lgkmcnt(0)")
        self.stamp("apre")
        A("s_barrier")
        self.stamp("b3")
        if o.get("wpf", 2) == 5:
            A(wpf)
        if o.get("prio", 1):
            A("s_setprio 2")

        bufA, bufB = [vA0, vA1], [vB0, vB1]
        for n in range(7, -1, -1):
            for l in rdB(vB0, 0, n):
                A(l)
        started = set()
        for rho in range(4):
            a_, b_ = bufA[rho & 1], bufB[rho & 1]
            order = [(n - 7 + tb, tb, n) for n in range(7, -1, -1) for tb in range(7 - n, 8)]
            if rho == 3:
                order = [(n - 7 + tb, tb, n) for tb in range(8) for n in range(7 - tb, 8)]
            fill = []
            if rho + 1 < 4:
                nb_, na_ = bufB[(rho + 1) & 1], bufA[(rho + 1) & 1]
                for m in range(8):
                    fill += rdB(nb_, rho + 1, 7 - m)
                    fill += rdA(na_, rho + 1, m)
            issued = 0
            seen = set()
            done_at = {}
            for i, (m, tb, n) in enumerate(order):
                done_at[tb] = i
            for i, (m, tb, n) in enumerate(order):
                if rho == 0 and n not in seen:
                    A(f"s_waitcnt lgkmcnt({min(15, n + issued)})")
                    seen.add(n)
                elif i == 0:
                    A("s_waitcnt lgkmcnt(0)")
                acc = v(vACC + 4 * tb, 4)
                c = acc if tb in started else "0"
                started.add(tb)
                A(f"v_mfma_f32_16x16x32_bf16 {acc}, {v(a_ + 4 * m, 4)}, {v(b_ + 4 * n, 4)}, {c}")
                if i >= 1 and fill:
                    A(fill.pop(0))
                    issued += 1
                if rho == 3:
                    for t in range(7):
                        if done_at[t] + 8 == i or (i == len(order) - 1 and done_at[t] + 8 > i):
                            A(f"ds_write_b128 {v(vEW)}, {v(vACC + 4 * t, 4)} offset:{t * TBS}")
            assert not fill
        A(f"ds_write_b128 {v(vEW)}, {v(vACC + 28, 4)} offset:{7 * TBS}")
        self.stamp("conv")
        A("s_waitcnt lgkmcnt(0)")
        A("s_barrier")
        for i in range(2):
            for s in range(4):
                A(f"ds_read_b128 {v(K + 16 * i + 4 * s, 4)}, {v(vER)} offset:{s * 8 * TBS + i * TBS}")
        for i in range(2):
            A(f"s_waitcnt lgkmcnt({4 * (1 - i)})")
            b0 = K + 16 * i
            for c in range(2):
                for h in range(2):
                    A(f"v_pk_add_f32 {v(b0 + 8 * c + 2 * h, 2)}, {v(b0 + 8 * c + 2 * h, 2)}, {v(b0 + 8 * c + 4 + 2 * h, 2)}")
            for c in range(2):
                for h in range(2):
                    A(f"v_cvt_pk_bf16_f32 {v(K + 32 + 4 * i + 2 * c + h)}, {v(b0 + 8 * c + 2 * h)}, {v(b0 + 8 * c + 2 * h + 1)}")
            A(f"global_store_dwordx4 {v(vT)}, {v(K + 32 + 4 * i, 4)}, {sp(sWS)} offset:{1024 * i} sc1")
        self.stamp("x2st")
        A("s_waitcnt vmcnt(0)")
        self.stamp("x2dr")
        A("s_barrier")
        A(f"s_cmp_eq_u32 s{sWAVE}, 0")
        A("s_cbranch_scc0 L_cfin")
        for q in range(1, 4):
            A(f"v_add_u32 {v(vT + 8 + q)}, {(64 * q) << KS}, {v(vT + 1)}")
        A("s_barrier")
        self.key_calc(K, vRA, vLANE)
        A("s_mov_b64 exec, 1")
        A(f"global_store_dword {v(22)}, {v(K + 8)}, {sp(sWS)} sc1")
        A("s_mov_b64 exec, -1")
        self.stamp("key")
        A("s_waitcnt vmcnt(0)")
        self.stamp("keydr")
        k2 = vT + 4
        kl = [f"global_load_dword {v(K + q)}, {v(vT + 8 + q) if q else v(vT + 1)}, {sp(sWS)} sc1" for q in range(4)]
        for l in kl:
            A(l)
        A("s_waitcnt vmcnt(0)")
        self.poll("key", kl, [f"v_max3_u32 {v(k2)}, {v(K)}, {v(K + 1)}, {v(K + 2)}",
                              f"v_max_u32 {v(k2)}, {v(k2)}, {v(K + 3)}",
                              f"v_cmp_eq_u32 vcc, -1, {v(k2)}"])
        self.stamp("keyld")
        A(f"v_max_u32_dpp {v(k2)}, {v(k2)}, {v(k2)} quad_perm:[1,0,3,2] row_mask:0xf bank_mask:0xf")
        A(f"v_max_u32_dpp {v(k2)}, {v(k2)}, {v(k2)} quad_perm:[2,3,0,1] row_mask:0xf bank_mask:0xf")
        A(f"v_max_u32_dpp {v(k2)}, {v(k2)}, {v(k2)} row_half_mirror row_mask:0xf bank_mask:0xf")
        A(f"v_max_u32_dpp {v(k2)}, {v(k2)}, {v(k2)} row_mirror row_mask:0xf bank_mask:0xf")
        A(f"v_max_u32_dpp {v(k2)}, {v(k2)}, {v(k2)} row_bcast:15 row_mask:0xa bank_mask:0xf")
        A(f"v_max_u32_dpp {v(k2)}, {v(k2)}, {v(k2)} row_bcast:31 row_mask:0xc bank_mask:0xf")
        A("s_mov_b32 exec_lo, 0")
        A("s_brev_b32 exec_hi, 1")
        A(f"ds_write_b32 {v(vT + 3)}, {v(k2)}")
        A("s_waitcnt lgkmcnt(0)")
        A("s_barrier")
        A("L_cfin:")
        self.finish("C")

    def text(self):
        lines = self.build()
        src = open("sequential_preLN__ssm_conv_s4d__moe_arch_mod__prompt.s.ref").read()
        head = [l for l in src.split("\n") if l.startswith(";") and "@launch" not in l]
        head = head[:head.index("; Override launch geometry by editing the next line (default: block=256,")]
        out = head + [f"; @launch grid=(256,1,1) block=(512,1,1) lds={LDS_BYTES}",
                      '.amdgcn_target "amdgcn-amd-amdhsa--gfx950"', ".text", f".globl {KNAME}", ".p2align 8",
                      f".type {KNAME},@function"]
        out += [l if l.endswith(":") else "    " + l for l in lines]
        out += [".section .rodata,\"a\"", ".p2align 6", f".amdhsa_kernel {KNAME}",
                "  .amdhsa_next_free_vgpr 224", "  .amdhsa_next_free_sgpr 102", "  .amdhsa_accum_offset 224",
                "  .amdhsa_group_segment_fixed_size 0", "  .amdhsa_kernarg_size 120", "  .amdhsa_user_sgpr_count 2",
                "  .amdhsa_user_sgpr_kernarg_segment_ptr 1", "  .amdhsa_system_sgpr_workgroup_id_x 1",
                ".end_amdhsa_kernel", ""]
        return "\n".join(out)


if __name__ == "__main__":
    out = sys.argv[1]
    opts = {}
    stamp = False
    for a in sys.argv[2:]:
        if a == "stamp":
            stamp = True
        else:
            k, val = a.split("=")
            opts[k] = val if k == 'pr' else int(val)
    g = Gen(stamp, opts)
    open(out, "w").write(g.text())
    if stamp:
        open(out + ".names", "w").write(" ".join(g.allnames["R"]) + "\n" + " ".join(g.allnames["C"]))
    print(g.info, "lds", LDS_BYTES)
```

```python
import sys
import struct
from asmlib import Asm, align8

KNAME = "sequential_preLN__ssm_conv_s4d__moe_arch_mod__prompt_kernel"


def f2u(x):
    return struct.unpack("<I", struct.pack("<f", x))[0]


W_FLAG = 0x1000 + (int(__import__('os').environ.get('WOFF', '0')) << 20)
W_KEY = 0x9000 + (int(__import__('os').environ.get('WOFF', '0')) << 20)
W_FLAG2 = 0x11000 + (int(__import__('os').environ.get('WOFF', '0')) << 20)
import os
WOFF = int(os.environ.get('WOFF', '0')) << 20
W_REG = 0x38000 + WOFF
RS = 20608
O_X1, O_X2, O_SLOT, O_PART = 0, 8192, 16384, 18432
W_STAMP = 0x800000
ROWB = 544
TABC = 63 * ROWB
L_TAB = 0
L_P = 68608
PC = 8256
L_U = L_P + 2 * PC
UC = 4608
L_RED1 = (L_U + 2 * UC + 255) // 256 * 256
L_RED2 = L_RED1 + 256
L_SUMW = L_RED2 + 384
L_REDK = L_SUMW + 16
L_REDF = L_REDK + 16
LDS_BYTES = L_REDF + 256
L_EPI = 0
TBS = 1152
sX, sLA, sAI, sCR, sCI, sLDT, sD = 4, 6, 8, 10, 12, 14, 16
sWR, sWG, sWU, sWD, sOUT, sDBG, sWS = 20, 22, 24, 26, 28, 30, 32
sL, sPOS, sXCD, sWAVE, sG, sDT, sT0, sT1, sSPIN, sF = 34, 35, 36, 37, 38, 39, 40, 41, 42, 43
sODD = 44
sSELLO, sSELHI, sONES, sMASK = 46, 47, 48, 49
sWSEL = 50
sBEST, sWIN, sRP0, sRP1 = 52, 53, 54, 55
sH = 56
sE = 64
sTMP = 66
sOWN = 71
sSTAMP = 72


def sp(r):
    return f"s[{r}:{r + 1}]"


def v(r, n=1):
    return f"v{r}" if n == 1 else f"v[{r}:{r + n - 1}]"


class Gen:
    def __init__(self, stamp=False, opts=None):
        self.A = Asm()
        self.tail = Asm()
        self.stamp_on = stamp
        self.nstamp = 0
        self.names = []
        self.o = dict(opts or {})
        self.only = None
        self.role = "R"
        if "pr" in self.o:
            self.only = tuple(self.o["pr"].split("."))
            self.stamp_on = True
            self.o["probe"] = 1 if self.only[0] == "R" else 101

    def stamp(self, name):
        if not self.stamp_on:
            return
        if self.only and name != "start" and (self.role, name) != self.only:
            return
        k = self.nstamp
        self.nstamp += 1
        self.names.append(name)
        assert sSTAMP + k < 100
        self.A(f"s_memrealtime s[100:101]")
        self.A("s_waitcnt lgkmcnt(0)")
        self.A(f"s_mov_b32 s{sSTAMP + k}, s100")

    def poll(self, name, loads, check, base_exec="-1"):
        A = self.A
        for c in check:
            A(c)
        A(f"s_cbranch_vccnz L_retry_{name}")
        A(f"L_ok_{name}:")
        T = self.tail
        T(f"L_retry_{name}:")
        T(f"s_mov_b32 s{sSPIN}, 0x40000")
        T(f"L_again_{name}:")
        T(f"s_sub_u32 s{sSPIN}, s{sSPIN}, 1")
        T(f"s_cbranch_scc1 L_ok_{name}")
        T("s_mov_b64 exec, vcc")
        for l in loads:
            T(l)
        T("s_waitcnt vmcnt(0)")
        for c in check:
            T(c)
        T(f"s_mov_b64 exec, {base_exec}")
        T(f"s_cbranch_vccnz L_again_{name}")
        T(f"s_branch L_ok_{name}")

    def cmul(self, d, x, y, t):
        return [f"v_pk_mul_f32 {v(t, 2)}, {v(x, 2)}, {v(y, 2)} op_sel:[0,0] op_sel_hi:[0,1]",
                f"v_pk_fma_f32 {v(d, 2)}, {v(x, 2)}, {v(y, 2)}, {v(t, 2)} op_sel:[1,1,0] op_sel_hi:[1,0,1] neg_lo:[1,0,0]"]

    def reduce8(self, V, t):
        A = self.A
        for i in range(4):
            A(f"v_add_f32_dpp {v(V[i])}, {v(V[i])}, {v(V[i])} row_ror:8 row_mask:0xf bank_mask:0x3")
        for i in range(4):
            A(f"v_add_f32_dpp {v(V[i])}, {v(V[i + 4])}, {v(V[i + 4])} row_ror:8 row_mask:0xf bank_mask:0xc")
        for i in range(2):
            A(f"v_add_f32_dpp {v(V[i])}, {v(V[i])}, {v(V[i])} row_shl:4 row_mask:0xf bank_mask:0x5")
        for i in range(2):
            A(f"v_add_f32_dpp {v(V[i])}, {v(V[i + 2])}, {v(V[i + 2])} row_shr:4 row_mask:0xf bank_mask:0xa")
        A(f"v_permlane32_swap_b32 {v(V[0])}, {v(V[1])}")
        A(f"v_add_f32 {v(V[0])}, {v(V[0])}, {v(V[1])}")
        A(f"v_add_f32_dpp {v(V[0])}, {v(V[0])}, {v(V[0])} quad_perm:[2,3,0,1] row_mask:0xf bank_mask:0xf")
        A(f"v_mov_b32 {v(t)}, {v(V[0])}")
        A(f"v_permlane16_swap_b32 {v(V[0])}, {v(t)}")
        A(f"v_add_f32 {v(V[0])}, {v(V[0])}, {v(t)}")

    def row_stats(self, S, Q, negm, rinv, t):
        A = self.A
        A(f"v_pk_add_f32 {v(S, 2)}, {v(S, 2)}, {v(S + 2, 2)}")
        A(f"v_pk_add_f32 {v(Q, 2)}, {v(Q, 2)}, {v(Q + 2, 2)}")
        A(f"v_add_f32 {v(S)}, {v(S)}, {v(S + 1)}")
        A(f"v_add_f32 {v(Q)}, {v(Q)}, {v(Q + 1)}")
        A(f"v_mul_f32 {v(S)}, {hex(f2u(1 / 512))}, {v(S)}")
        A(f"v_mul_f32 {v(Q)}, {hex(f2u(1 / 512))}, {v(Q)}")
        A(f"v_fma_f32 {v(Q)}, -{v(S)}, {v(S)}, {v(Q)}")
        A(f"v_max_f32 {v(Q)}, 0, {v(Q)}")
        A(f"v_cvt_pk_bf16_f32 {v(t)}, -{v(S)}, {v(Q)}")
        A(f"v_and_b32 {v(Q)}, s{sMASK}, {v(t)}")
        A(f"v_add_f32 {v(Q)}, {hex(f2u(1e-5))}, {v(Q)}")
        A(f"v_cvt_pk_bf16_f32 {v(Q)}, {v(Q)}, {v(Q)}")
        A(f"v_and_b32 {v(Q)}, s{sMASK}, {v(Q)}")
        A(f"v_sqrt_f32 {v(Q)}, {v(Q)}")
        A(f"v_lshlrev_b32 {v(negm)}, 16, {v(t)}")
        A(f"v_cvt_pk_bf16_f32 {v(Q)}, {v(Q)}, {v(Q)}")
        A(f"v_and_b32 {v(Q)}, s{sMASK}, {v(Q)}")
        A(f"v_rcp_f32 {v(rinv)}, {v(Q)}")

    def spread(self, val, dst, t):
        A = self.A
        for r in range(4):
            A(f"v_mov_b32_dpp {v(t + r)}, {v(val)} row_newbcast:{4 + r} row_mask:0xf bank_mask:0xf")
        for r in range(4):
            A(f"v_cndmask_b32_dpp {v(dst + r)}, {v(val)}, {v(t + r)}, vcc row_newbcast:{r} row_mask:0xf bank_mask:0xf")

    def key_calc(self, K, vRA, vLANE):
        A = self.A
        A(f"v_mov_b32 {v(K + 14)}, {L_SUMW}")
        A(f"ds_read_b128 {v(K, 4)}, {v(vRA)} offset:{L_RED2 - L_RED1}")
        A(f"ds_read_b128 {v(K + 4, 4)}, {v(vRA)} offset:{L_RED2 - L_RED1 + 128}")
        A(f"ds_read_b128 {v(K + 8, 4)}, {v(vRA)} offset:{L_RED2 - L_RED1 + 256}")
        A(f"ds_read_b32 {v(K + 15)}, {v(K + 14)}")
        A(f"s_lshl_b32 s{sTMP}, s{sL}, 3")
        A(f"s_sub_u32 s{sTMP}, 2047, s{sTMP}")
        A(f"v_and_b32 {v(K + 14)}, 7, {v(vLANE)}")
        A(f"v_sub_u32 {v(K + 14)}, s{sTMP}, {v(K + 14)}")
        A("s_waitcnt lgkmcnt(2)")
        self.row_stats(K, K + 4, K + 12, K + 13, K + 28)
        A("s_waitcnt lgkmcnt(0)")
        A(f"v_pk_add_f32 {v(K + 8, 2)}, {v(K + 8, 2)}, {v(K + 10, 2)}")
        A(f"v_add_f32 {v(K + 8)}, {v(K + 8)}, {v(K + 9)}")
        A(f"v_fmac_f32 {v(K + 8)}, {v(K + 12)}, {v(K + 15)}")
        A(f"v_mul_f32 {v(K + 8)}, {v(K + 8)}, {v(K + 13)}")
        A(f"v_ashrrev_i32 {v(K + 9)}, 31, {v(K + 8)}")
        A(f"v_or_b32 {v(K + 9)}, 0x80000000, {v(K + 9)}")
        A(f"v_xor_b32 {v(K + 8)}, {v(K + 8)}, {v(K + 9)}")
        A(f"v_and_b32 {v(K + 8)}, 0xfffff800, {v(K + 8)}")
        A(f"v_or_b32 {v(K + 8)}, {v(K + 8)}, {v(K + 14)}")
        A(f"v_min_u32 {v(K + 8)}, -2, {v(K + 8)}")
        A(f"v_max_u32_dpp {v(K + 8)}, {v(K + 8)}, {v(K + 8)} quad_perm:[1,0,3,2] row_mask:0xf bank_mask:0xf")
        A(f"v_max_u32_dpp {v(K + 8)}, {v(K + 8)}, {v(K + 8)} quad_perm:[2,3,0,1] row_mask:0xf bank_mask:0xf")
        A(f"v_max_u32_dpp {v(K + 8)}, {v(K + 8)}, {v(K + 8)} row_half_mirror row_mask:0xf bank_mask:0xf")

    def finish(self, role):
        A = self.A
        o = self.o
        if self.stamp_on:
            self.stamp("end")
            self.allnames[role] = self.names
        if self.stamp_on and "probe" in o:
            k = o["probe"]
            if k == 98 and role == "R":
                A(f"s_getreg_b32 s{sTMP}, hwreg(HW_REG_XCC_ID, 0, 4)")
                A(f"s_sub_u32 s{sTMP}, s{sTMP}, s2")
                A(f"s_and_b32 s{sTMP}, s{sTMP}, 7")
                A(f"s_mul_i32 s{sTMP}, s{sTMP}, 1000")
                A(f"s_add_u32 s{sTMP}, s{sTMP}, 2000")
            elif k == 99 and role == "R":
                A("s_memtime s[96:97]")
                A("s_waitcnt lgkmcnt(0)")
                A("s_sub_u32 s96, s96, s98")
                A(f"s_sub_u32 s97, s{sSTAMP + self.nstamp - 1}, s{sSTAMP}")
                A("s_mov_b64 exec, -1")
                A("v_cvt_f32_u32 v2, s96")
                A("v_cvt_f32_u32 v3, s97")
                A("v_rcp_f32 v3, v3")
                A("s_nop 1")
                A("v_mul_f32 v2, v2, v3")
                A("v_mul_f32 v2, 0x43c80000, v2")
                A("v_cvt_u32_f32 v2, v2")
                A("s_nop 1")
                A(f"v_readfirstlane_b32 s{sTMP}, v2")
                A(f"s_add_u32 s{sTMP}, s{sTMP}, 2000")
            elif k < 0 and role == "R":
                A(f"s_mov_b32 s{sTMP}, {-k}")
            elif k >= 0 and (k >= 100) == (role == "C"):
                A(f"s_sub_u32 s{sTMP}, s{sSTAMP + k % 100}, s{sSTAMP}")
                A(f"s_cmp_lt_u32 s{sTMP}, 3000")
                A(f"s_cselect_b32 s{sTMP}, s{sTMP}, 0")
                A(f"s_mul_i32 s{sTMP}, s{sTMP}, 20")
                A(f"s_add_u32 s{sTMP}, s{sTMP}, 2000")
                if role == "C":
                    A(f"s_cmp_eq_u32 s{sWAVE}, 0")
                    A(f"s_cselect_b32 s{sTMP}, s{sTMP}, 0")
            else:
                A(f"s_mov_b32 s{sTMP}, 0")
            A(f"L_spin{role}:")
            A("s_memrealtime s[100:101]")
            A("s_waitcnt lgkmcnt(0)")
            A(f"s_sub_u32 s100, s100, s{sSTAMP}")
            A(f"s_cmp_lt_u32 s100, s{sTMP}")
            A(f"s_cbranch_scc1 L_spin{role}")
        elif self.stamp_on:
            A("s_mov_b64 exec, 1")
            A(f"s_lshl_b32 s{sTMP}, s2, 3")
            A(f"s_add_u32 s{sTMP}, s{sTMP}, s{sWAVE}")
            if role == "C":
                A(f"s_add_u32 s{sTMP}, s{sTMP}, 4")
            A(f"s_lshl_b32 s{sTMP}, s{sTMP}, 7")
            A(f"s_add_u32 s{sTMP}, s{sTMP}, {W_STAMP}")
            A(f"v_mov_b32 v1, s{sTMP}")
            for k in range(self.nstamp):
                A(f"v_mov_b32 v2, s{sSTAMP + k}")
                A(f"global_store_dword v1, v2, {sp(sWS)} offset:{4 * k}")
        A("s_endpgm")

    def build(self):
        A = self.A
        self.allnames = {}
        A(f"{KNAME}:")
        A("s_cmp_ge_u32 s2, 256")
        A("s_cbranch_scc1 L_end")
        self.stamp("start")
        if self.o.get("probe", 0) == 99:
            A("s_memtime s[98:99]")
        if self.o.get("codepf", 1):
            A(f"s_getpc_b64 {sp(sE)}")
            A("L_pc:")
            A("v_lshlrev_b32 v2, 5, v0")
            A(f"v_min_u32 v2, L_codeend-L_pc-4, v2")
            A(f"global_load_dword v3, v2, {sp(sE)}")
        A("s_load_dwordx16 s[4:19], s[0:1], 0")
        A("s_load_dwordx8 s[20:27], s[0:1], 64")
        A("s_load_dwordx4 s[28:31], s[0:1], 96")
        A("s_load_dwordx2 s[32:33], s[0:1], 112")
        A("v_lshrrev_b32 v4, 6, v0")
        A(f"s_and_b32 s{sXCD}, s2, 7")
        A(f"v_readfirstlane_b32 s{sWAVE}, v4")
        A(f"s_lshr_b32 s{sPOS}, s2, 3")
        A(f"s_lshl_b32 s{sL}, s{sXCD}, 5")
        A(f"s_add_u32 s{sL}, s{sL}, s{sPOS}")
        A("v_and_b32 v1, 63, v0")
        A(f"s_mov_b32 s{sMASK}, 0xffff0000")
        A(f"s_cmp_ge_u32 s{sWAVE}, 4")
        A("s_cbranch_scc1 L_chan")
        self.rows()
        self.names = self.names[:1]
        self.nstamp = min(self.nstamp, 1)
        A(".p2align 6")
        self.role = "C"
        self.chans()
        A("L_end:")
        A("s_endpgm")
        for l in self.tail.L:
            A(l)
        A("L_codeend:")
        lines, nops = A.padded()
        lines, nbytes, promoted, missed = align8(lines)
        self.info = dict(nops=nops, bytes=nbytes, promoted=promoted, missed=missed, lines=len(lines))
        return lines

    def rows(self):
        A = self.A
        o = self.o
        vLANE = 1
        vX, vU, vD, vWR = 212, 10, 18, 20
        vREG, vRD, vAUX = 22, 23, 24
        vKEY, vSW, vRA, vFL, vUW = 26, 27, 28, 29, 30
        vT = 32
        vWG, vWD = 40, 72
        vY = 88
        vONE = 96
        K = 100
        L2E = 1.4426950408889634
        A(f"v_lshrrev_b32 {v(vT)}, 1, v0")
        A(f"v_and_b32 {v(vT + 1)}, 1, v0")
        A(f"v_lshlrev_b32 {v(vT + 2)}, 3, {v(vT)}")
        A(f"s_lshl_b32 s{sT0}, s{sL}, 13")
        A(f"v_lshl_add_u32 {v(vRD)}, {v(vT + 1)}, 12, {v(vT + 2)}")
        A(f"v_add_u32 {v(vRD)}, s{sT0}, {v(vRD)}")
        A(f"s_mul_i32 s{sOWN}, s{sL}, {RS}")
        A(f"s_add_u32 s{sOWN}, s{sOWN}, {W_REG}")
        A(f"s_add_u32 s{sT0}, s{sOWN}, 4096")
        A(f"v_lshl_add_u32 {v(vREG)}, v0, 4, s{sT0}")
        A(f"v_lshlrev_b32 {v(vT + 3)}, 4, {v(vLANE)}")
        nt = ' nt' if o.get('ntx', 1) else ''
        A("s_waitcnt lgkmcnt(0)")
        self.stamp("karg")
        for r in range(4):
            A(f"global_load_dwordx2 {v(vX + 2 * r, 2)}, {v(vRD)}, {sp(sX)} offset:{1024 * r}{nt}")
        A(f"s_load_dword s{sG}, {sp(sWS)}, 0")
        A(f"global_load_dwordx2 {v(vD, 2)}, {v(vT + 2)}, {sp(sD)}")
        A(f"global_load_dwordx2 {v(vWR, 2)}, {v(vT + 2)}, {sp(sWR)}")
        A(f"global_load_dwordx4 {v(vONE, 4)}, {v(vT + 3)}, {sp(sWR)}")
        A(f"s_mov_b32 s{sODD}, 0xaaaaaaaa")
        A(f"s_mov_b32 s{sODD + 1}, 0xaaaaaaaa")
        A(f"s_mov_b32 s{sSELLO}, 0x3f80")
        A(f"s_mov_b32 s{sSELHI}, 0x3f800000")
        A(f"s_mov_b32 s{sONES}, 0x3f803f80")
        A(f"s_and_b32 s{sTMP}, s{sL}, 1")
        A(f"s_lshl_b32 s{sTMP}, s{sTMP}, 12")
        A(f"s_lshr_b32 s{sTMP + 1}, s{sL}, 1")
        A(f"s_lshl_b32 s{sTMP + 1}, s{sTMP + 1}, 5")
        A(f"s_add_u32 s{sTMP}, s{sTMP}, s{sTMP + 1}")
        A(f"s_add_u32 s{sTMP}, s{sTMP}, {W_REG + O_X1}")
        A(f"v_mul_u32_u24 {v(vAUX)}, {RS}, {v(vT)}")
        A(f"v_lshl_add_u32 {v(vAUX)}, {v(vT + 1)}, 4, {v(vAUX)}")
        A(f"v_add_u32 {v(vAUX)}, s{sTMP}, {v(vAUX)}")
        A(f"v_add_u32 {v(vAUX + 1)}, {128 * RS}, {v(vAUX)}")
        FS = o.get("fs", 7)
        KS = o.get("ks", 5)
        A(f"v_lshlrev_b32 {v(vFL)}, {FS}, {v(vT)}")
        A(f"v_add_u32 {v(vFL)}, {W_FLAG}, {v(vFL)}")
        A(f"v_add_u32 {v(vFL + 2)}, {128 << FS}, {v(vFL)}")
        A(f"s_lshl_b32 s{sT0}, s{sL}, {FS}")
        A(f"s_add_u32 s{sT0}, s{sT0}, {W_FLAG}")
        A(f"v_lshl_add_u32 {v(vKEY)}, {v(vLANE)}, 4, s{sT0}")
        A(f"v_lshlrev_b32 {v(vSW)}, 6, {v(vT + 1)}")
        A(f"v_and_b32 {v(vT + 3)}, 4, {v(vLANE)}")
        A(f"v_lshl_add_u32 {v(vSW)}, {v(vT + 3)}, 3, {v(vSW)}")
        A(f"v_and_b32 {v(vT + 3)}, 8, {v(vLANE)}")
        A(f"v_lshl_add_u32 {v(vSW)}, {v(vT + 3)}, 4, {v(vSW)}")
        A(f"v_lshrrev_b32 {v(vT + 3)}, 5, {v(vLANE)}")
        A(f"v_lshl_add_u32 {v(vSW)}, {v(vT + 3)}, 4, {v(vSW)}")
        A(f"s_lshl_b32 s{sTMP}, s{sWAVE}, 2")
        A(f"s_add_u32 s{sTMP}, s{sTMP}, {L_RED1}")
        A(f"v_add_u32 {v(vSW)}, s{sTMP}, {v(vSW)}")
        A(f"v_and_b32 {v(vT + 3)}, 7, {v(vLANE)}")
        A(f"v_lshlrev_b32 {v(vRA)}, 4, {v(vT + 3)}")
        A(f"v_add_u32 {v(vRA)}, {L_RED1}, {v(vRA)}")
        A(f"v_lshlrev_b32 {v(vUW)}, 3, v0")
        A(f"v_mov_b32 {v(K)}, 0")
        A(f"v_mov_b32 {v(K + 1)}, 0")
        A(f"v_min_u32 {v(vT + 3)}, 472, {v(vUW)}")
        A(f"v_add_u32 {v(vT + 3)}, {L_U}, {v(vT + 3)}")
        A(f"v_min_u32 {v(vT + 4)}, 56, {v(vUW)}")
        A(f"v_add_u32 {v(vT + 4)}, {L_P}, {v(vT + 4)}")
        A(f"ds_write2st64_b64 {v(vT + 3)}, {v(K, 2)}, {v(K, 2)} offset0:0 offset1:9")
        A(f"ds_write_b64 {v(vT + 4)}, {v(K, 2)}")
        A(f"ds_write_b64 {v(vT + 4)}, {v(K, 2)} offset:{PC}")
        A(f"v_add_u32 {v(vUW)}, {L_U + 480}, {v(vUW)}")

        V = [K + i for i in range(8)]
        A("s_waitcnt vmcnt(3)")
        self.stamp("x")
        for r in range(4):
            A(f"v_dot2_f32_bf16 {v(V[r])}, {v(vX + 2 * r)}, s{sONES}, 0")
        for r in range(4):
            A(f"v_dot2_f32_bf16 {v(V[4 + r])}, {v(vX + 2 * r)}, {v(vX + 2 * r)}, 0")
        for r in range(4):
            A(f"v_dot2_f32_bf16 {v(V[r])}, {v(vX + 2 * r + 1)}, s{sONES}, {v(V[r])}")
        for r in range(4):
            A(f"v_dot2_f32_bf16 {v(V[4 + r])}, {v(vX + 2 * r + 1)}, {v(vX + 2 * r + 1)}, {v(V[4 + r])}")
        self.reduce8(V, K + 8)
        A(f"ds_write_b32 {v(vSW)}, {v(V[0])}")
        A("s_waitcnt lgkmcnt(0)")
        A("s_barrier")
        self.stamp("b1")
        A(f"ds_read_b128 {v(K, 4)}, {v(vRA)}")
        A(f"ds_read_b128 {v(K + 4, 4)}, {v(vRA)} offset:128")
        A(f"s_add_u32 s{sG}, s{sG}, 0x9e3779b9")
        fw = o.get("fw", 1)
        for k in range(4 if fw else 1):
            A(f"v_mov_b32 {v(K + 28 + k)}, s{sG}")
        A(f"s_cmp_eq_u32 s{sWAVE}, 0")
        if fw:
            A(f"s_cselect_b64 exec, {(1 << ((1 << FS) // 16)) - 1}, 0")
            A(f"global_store_dwordx4 {v(vKEY)}, {v(K + 28, 4)}, {sp(sWS)} sc1")
        else:
            A("s_cselect_b64 exec, 1, 0")
            A(f"global_store_dword {v(vKEY)}, {v(K + 28)}, {sp(sWS)} sc1")
        A("s_mov_b64 exec, -1")
        A(f"s_mov_b64 vcc, {sp(sODD)}")
        A("s_waitcnt lgkmcnt(0)")
        vNM, vRI = K + 16, K + 20
        self.row_stats(K, K + 4, K + 10, K + 11, K + 12)
        self.spread(K + 10, vNM, K + 24)
        Dd = K + 32
        for c in range(4):
            for r in range(4):
                A(f"v_dot2_f32_bf16 {v(Dd + 4 * c + r)}, {v(vX + 2 * r + (c >> 1))}, s{sSELHI if c & 1 else sSELLO}, {v(vNM + r)}")
        self.spread(K + 11, vRI, K + 24)
        Pk = K + 48
        for half in range(2):
            ks = range(4 * half, 4 * half + 4)
            for k in ks:
                A(f"v_cvt_pk_bf16_f32 {v(Pk + k)}, {v(Dd + 2 * k)}, {v(Dd + 2 * k + 1)}")
            for k in ks:
                A(f"v_lshlrev_b32 {v(Dd + 2 * k)}, 16, {v(Pk + k)}")
                A(f"v_and_b32 {v(Dd + 2 * k + 1)}, s{sMASK}, {v(Pk + k)}")
            for k in ks:
                A(f"v_pk_mul_f32 {v(Dd + 2 * k, 2)}, {v(Dd + 2 * k, 2)}, {v(vRI + 2 * (k & 1), 2)}")
            for k in ks:
                A(f"v_cvt_pk_bf16_f32 {v(vU + k)}, {v(Dd + 2 * k)}, {v(Dd + 2 * k + 1)}")
            A(f"global_store_dwordx4 {v(vREG)}, {v(vU + 4 * half, 4)}, {sp(sWS)} offset:{-4096 + 4096 * half} sc1")
        self.stamp("x1st")
        fl = [f"global_load_dword {v(vT + 4)}, {v(vFL)}, {sp(sWS)} sc1",
              f"global_load_dword {v(vT + 5)}, {v(vFL + 2)}, {sp(sWS)} sc1"]
        flchk = [f"v_xor_b32 {v(vT + 6)}, s{sG}, {v(vT + 4)}",
                 f"v_xor_b32 {v(vT + 7)}, s{sG}, {v(vT + 5)}",
                 f"v_or_b32 {v(vT + 6)}, {v(vT + 6)}, {v(vT + 7)}",
                 f"v_cmp_ne_u32 vcc, 0, {v(vT + 6)}"]
        flmode = o.get("flmode", 1)
        if flmode == 1:
            A("s_waitcnt vmcnt(0)")
        if flmode < 2:
            for l in fl:
                A(l)
        A("s_barrier")
        if flmode == 2:
            for l in fl:
                A(l)
        A("s_waitcnt vmcnt(0)")
        self.stamp("x1dr")
        self.poll("flag", fl, flchk)
        xl = [f"global_load_dwordx4 {v(vY, 4)}, {v(vAUX)}, {sp(sWS)} sc1",
              f"global_load_dwordx4 {v(vY + 4, 4)}, {v(vAUX + 1)}, {sp(sWS)} sc1"]
        for l in xl:
            A(l)
        self.stamp("flag")
        A(f"s_mul_i32 s{sF}, s{sXCD}, 14")
        A(f"s_add_u32 s{sF}, s{sF}, s{sPOS}")
        A(f"s_bitcmp1_b32 s{sWAVE}, 0")
        A(f"s_cselect_b64 {sp(sWSEL)}, {sp(sWU)}, {sp(sWG)}")
        A(f"s_lshr_b32 s{sTMP + 1}, s{sWAVE}, 1")
        A(f"s_mul_i32 s{sTMP + 1}, s{sTMP + 1}, {256 * 3584}")
        A(f"s_lshl_b32 s{sTMP + 2}, s{sF}, 5")
        A(f"s_add_u32 s{sTMP + 1}, s{sTMP + 1}, s{sTMP + 2}")
        vWA = K + 8
        A(f"v_lshrrev_b32 {v(vWA)}, 1, {v(vLANE)}")
        A(f"v_mul_u32_u24 {v(vWA)}, {8 * 3584}, {v(vWA)}")
        A(f"v_lshl_add_u32 {v(vWA)}, {v(vT + 1)}, 4, {v(vWA)}")
        A(f"v_add_u32 {v(vWA)}, s{sTMP + 1}, {v(vWA)}")
        A(f"v_add_u32 {v(vWA + 2)}, {7 * 3584}, {v(vWA)}")
        A(f"v_add_u32 {v(vWA + 1)}, {4 * 3584}, {v(vWA)}")
        A(f"v_add_u32 {v(vWA)}, 3584, {v(vWA)}")
        A(f"s_lshl_b32 s{sTMP + 1}, s{sF}, 14")
        A(f"s_add_u32 s{sTMP + 1}, s{sTMP + 1}, 4096")
        A(f"v_lshl_add_u32 {v(vWA + 3)}, v0, 2, s{sTMP + 1}")
        A(f"v_add_u32 {v(vWA + 4)}, 8192, {v(vWA + 3)}")
        A(f"v_dot2_f32_bf16 {v(K + 4)}, {v(vONE)}, s{sONES}, 0")
        for k in range(1, 4):
            A(f"v_dot2_f32_bf16 {v(K + 4)}, {v(vONE + k)}, s{sONES}, {v(K + 4)}")
        A(f"v_mov_b32 {v(K + 5)}, {L_SUMW}")
        A(f"s_mov_b32 s{sRP0}, 0x05040100")
        A(f"s_mov_b32 s{sRP1}, 0x07060302")
        for sh in (8, 4, 2, 1):
            A(f"v_add_f32_dpp {v(K + 4)}, {v(K + 4)}, {v(K + 4)} row_ror:{sh} row_mask:0xf bank_mask:0xf")
        A(f"v_add_f32_dpp {v(K + 4)}, {v(K + 4)}, {v(K + 4)} row_bcast:15 row_mask:0xa bank_mask:0xf")
        A(f"v_add_f32_dpp {v(K + 4)}, {v(K + 4)}, {v(K + 4)} row_bcast:31 row_mask:0xc bank_mask:0xf")
        A("s_mov_b32 exec_lo, 0")
        A("s_brev_b32 exec_hi, 1")
        A(f"ds_write_b32 {v(K + 5)}, {v(K + 4)}")
        A("s_mov_b64 exec, -1")
        A("s_barrier")
        A("s_waitcnt vmcnt(0)")
        chk8 = [f"v_max3_u32 {v(vT + 6)}, {v(vY)}, {v(vY + 1)}, {v(vY + 2)}",
                f"v_max3_u32 {v(vT + 7)}, {v(vY + 3)}, {v(vY + 4)}, {v(vY + 5)}",
                f"v_max3_u32 {v(vT + 6)}, {v(vT + 6)}, {v(vY + 6)}, {v(vY + 7)}",
                f"v_max_u32 {v(vT + 6)}, {v(vT + 6)}, {v(vT + 7)}",
                f"v_cmp_eq_u32 vcc, -1, {v(vT + 6)}"]
        self.poll("x1", xl, chk8)
        self.stamp("x1ld")
        A(f"ds_write2st64_b64 {v(vUW)}, {v(vY, 2)}, {v(vY + 2, 2)} offset0:0 offset1:9")
        A(f"ds_write2st64_b64 {v(vUW)}, {v(vY + 4, 2)}, {v(vY + 6, 2)} offset0:4 offset1:13")
        A("s_waitcnt lgkmcnt(0)")
        A("s_barrier")

        A(f"s_cmp_lt_u32 s{sPOS}, 14")
        A("s_cbranch_scc0 L_now")
        for k in range(8):
            A(f"global_load_dwordx4 {v(vWG + 4 * k, 4)}, {v(vWA + k // 3)}, {sp(sWSEL)} offset:{(k % 3 - 1) * 3584}")
        for k in range(16):
            A(f"global_load_dword {v(vWD + k)}, {v(vWA + 3 + (k >> 3))}, {sp(sWD)} offset:{((k & 7) - 4) * 1024}")
        A("L_now:")
        A(f"v_and_b32 {v(vT + 3)}, 0xfe, v0")
        A(f"v_mul_u32_u24 {v(vAUX)}, {RS}, {v(vT + 3)}")
        A(f"v_lshl_add_u32 {v(vAUX)}, {v(vT + 1)}, 4, {v(vAUX)}")
        A(f"s_lshl_b32 s{sTMP}, s{sL}, 5")
        A(f"s_add_u32 s{sTMP}, s{sTMP}, {W_REG + O_X2}")
        A(f"v_add_u32 {v(vAUX)}, s{sTMP}, {v(vAUX)}")
        A(f"v_add_u32 {v(vAUX + 1)}, {RS}, {v(vAUX)}")
        Tt, Xf = K + 40, K + 56
        Df = K + 72
        for k in range(8):
            A(f"v_lshlrev_b32 {v(Tt + 2 * k)}, 16, {v(vU + k)}")
            A(f"v_and_b32 {v(Tt + 2 * k + 1)}, s{sMASK}, {v(vU + k)}")
        A(f"v_lshlrev_b32 {v(Df)}, 16, {v(vD)}")
        A(f"v_and_b32 {v(Df + 1)}, s{sMASK}, {v(vD)}")
        A(f"v_lshlrev_b32 {v(Df + 2)}, 16, {v(vD + 1)}")
        A(f"v_and_b32 {v(Df + 3)}, s{sMASK}, {v(vD + 1)}")
        for k in range(8):
            c = k >> 1
            sel = "op_sel:[1,0] op_sel_hi:[1,1]" if c & 1 else "op_sel_hi:[0,1]"
            A(f"v_pk_mul_f32 {v(Tt + 2 * k, 2)}, {v(Df + (c & 2), 2)}, {v(Tt + 2 * k, 2)} {sel}")
        for k in range(8):
            A(f"v_cvt_pk_bf16_f32 {v(Xf + k)}, {v(Tt + 2 * k)}, {v(Tt + 2 * k + 1)}")
        for k in range(8):
            A(f"v_lshlrev_b32 {v(Tt + 2 * k)}, 16, {v(Xf + k)}")
            A(f"v_and_b32 {v(Tt + 2 * k + 1)}, s{sMASK}, {v(Xf + k)}")
        for r in range(4):
            for c in range(4):
                src = v(vX + 2 * r + (c >> 1))
                if c & 1:
                    A(f"v_and_b32 {v(Xf + 4 * c + r)}, s{sMASK}, {src}")
                else:
                    A(f"v_lshlrev_b32 {v(Xf + 4 * c + r)}, 16, {src}")
        self.stamp("shadow")
        A("s_barrier")
        A("s_barrier")
        self.stamp("b4b")
        for l in xl:
            A(l)
        A("s_waitcnt vmcnt(0)")
        self.poll("x2", xl, chk8)
        self.stamp("x2ld")

        for k in range(8):
            A(f"v_dot2_f32_bf16 {v(Tt + 2 * k)}, {v(vY + k)}, s{sSELLO}, {v(Tt + 2 * k)}")
            A(f"v_dot2_f32_bf16 {v(Tt + 2 * k + 1)}, {v(vY + k)}, s{sSELHI}, {v(Tt + 2 * k + 1)}")
        for k in range(8):
            A(f"v_cvt_pk_bf16_f32 {v(vY + k)}, {v(Tt + 2 * k)}, {v(Tt + 2 * k + 1)}")
        for k in range(8):
            A(f"v_dot2_f32_bf16 {v(Xf + 2 * k)}, {v(vY + k)}, s{sSELLO}, {v(Xf + 2 * k)}")
            A(f"v_dot2_f32_bf16 {v(Xf + 2 * k + 1)}, {v(vY + k)}, s{sSELHI}, {v(Xf + 2 * k + 1)}")
        vH = vX
        for cp in range(2):
            for r in range(4):
                A(f"v_cvt_pk_bf16_f32 {v(vH + 2 * r + cp)}, {v(Xf + 8 * cp + r)}, {v(Xf + 8 * cp + 4 + r)}")
        Rr = [K + 8 + i for i in range(4)]
        for cp in range(2):
            for r in range(4):
                A(f"v_dot2_f32_bf16 {v(V[r])}, {v(vH + 2 * r + cp)}, s{sONES}, {v(V[r]) if cp else 0}")
            for r in range(4):
                A(f"v_dot2_f32_bf16 {v(V[4 + r])}, {v(vH + 2 * r + cp)}, {v(vH + 2 * r + cp)}, {v(V[4 + r]) if cp else 0}")
            for r in range(4):
                A(f"v_dot2_f32_bf16 {v(Rr[r])}, {v(vH + 2 * r + cp)}, {v(vWR + cp)}, {v(Rr[r]) if cp else 0}")
        for i in range(4):
            A(f"v_add_f32_dpp {v(V[i])}, {v(V[i])}, {v(V[i])} row_ror:8 row_mask:0xf bank_mask:0x3")
        for i in range(4):
            A(f"v_add_f32_dpp {v(V[i])}, {v(V[i + 4])}, {v(V[i + 4])} row_ror:8 row_mask:0xf bank_mask:0xc")
        for i in range(2):
            A(f"v_add_f32_dpp {v(Rr[i])}, {v(Rr[i])}, {v(Rr[i])} row_shl:4 row_mask:0xf bank_mask:0x5")
        for i in range(2):
            A(f"v_add_f32_dpp {v(Rr[i])}, {v(Rr[i + 2])}, {v(Rr[i + 2])} row_shr:4 row_mask:0xf bank_mask:0xa")
        for i in range(2):
            A(f"v_add_f32_dpp {v(V[i])}, {v(V[i])}, {v(V[i])} row_shl:4 row_mask:0xf bank_mask:0x5")
        for i in range(2):
            A(f"v_add_f32_dpp {v(V[i])}, {v(V[i + 2])}, {v(V[i + 2])} row_shr:4 row_mask:0xf bank_mask:0xa")
        A(f"v_permlane32_swap_b32 {v(Rr[0])}, {v(Rr[1])}")
        A(f"v_and_b32 {v(K + 13)}, 0xffffff7f, {v(vSW)}")
        A(f"v_permlane32_swap_b32 {v(V[0])}, {v(V[1])}")
        A(f"v_add_f32 {v(Rr[0])}, {v(Rr[0])}, {v(Rr[1])}")
        A(f"v_add_f32 {v(V[0])}, {v(V[0])}, {v(V[1])}")
        A(f"s_mov_b64 vcc, {sp(sODD)}")
        A(f"v_add_f32_dpp {v(Rr[0])}, {v(Rr[0])}, {v(Rr[0])} row_ror:8 row_mask:0xf bank_mask:0xf")
        A(f"v_add_f32_dpp {v(V[0])}, {v(V[0])}, {v(V[0])} quad_perm:[2,3,0,1] row_mask:0xf bank_mask:0xf")
        A(f"v_mov_b32 {v(V[1])}, {v(V[0])}")
        A(f"v_add_f32_dpp {v(Rr[0])}, {v(Rr[0])}, {v(Rr[0])} quad_perm:[2,3,0,1] row_mask:0xf bank_mask:0xf")
        A(f"v_mov_b32 {v(Rr[1])}, {v(Rr[0])}")
        A(f"v_permlane16_swap_b32 {v(V[0])}, {v(V[1])}")
        A(f"v_add_f32 {v(V[0])}, {v(V[0])}, {v(V[1])}")
        A(f"v_permlane16_swap_b32 {v(Rr[0])}, {v(Rr[1])}")
        A(f"v_add_f32 {v(Rr[0])}, {v(Rr[0])}, {v(Rr[1])}")
        A(f"ds_write_b32 {v(vSW)}, {v(V[0])} offset:{L_RED2 - L_RED1}")
        A(f"ds_write_b32 {v(K + 13)}, {v(Rr[0])} offset:{L_RED2 - L_RED1 + 256}")
        A("s_waitcnt lgkmcnt(0)")
        A("s_barrier")
        self.stamp("b5")
        Hf, Dd = Xf, Tt
        self.key_calc(K, vRA, vLANE)
        self.spread(K + 12, vNM, K + 24)
        A(f"v_readfirstlane_b32 s{sBEST}, {v(K + 8)}")
        for r in range(4):
            for cp in range(2):
                A(f"v_lshlrev_b32 {v(Hf + 4 * r + 2 * cp)}, 16, {v(vH + 2 * r + cp)}")
                A(f"v_and_b32 {v(Hf + 4 * r + 2 * cp + 1)}, s{sMASK}, {v(vH + 2 * r + cp)}")
        self.spread(K + 13, vRI, K + 24)
        for k in range(8):
            r = k >> 1
            sel = "op_sel:[1,0] op_sel_hi:[1,1]" if r & 1 else "op_sel_hi:[0,1]"
            A(f"v_pk_add_f32 {v(Dd + 2 * k, 2)}, {v(vNM + (r & 2), 2)}, {v(Hf + 2 * k, 2)} {sel}")
        vX2 = vU
        for k in range(8):
            A(f"v_cvt_pk_bf16_f32 {v(vX2 + k)}, {v(Dd + 2 * k)}, {v(Dd + 2 * k + 1)}")
        for k in range(8):
            A(f"v_lshlrev_b32 {v(Dd + 2 * k)}, 16, {v(vX2 + k)}")
            A(f"v_and_b32 {v(Dd + 2 * k + 1)}, s{sMASK}, {v(vX2 + k)}")
        for k in range(8):
            r = k >> 1
            sel = "op_sel:[1,0] op_sel_hi:[1,1]" if r & 1 else "op_sel_hi:[0,1]"
            A(f"v_pk_mul_f32 {v(Dd + 2 * k, 2)}, {v(vRI + (r & 2), 2)}, {v(Dd + 2 * k, 2)} {sel}")
        for k in range(8):
            A(f"v_cvt_pk_bf16_f32 {v(vX2 + k)}, {v(Dd + 2 * k)}, {v(Dd + 2 * k + 1)}")
        A(f"s_andn2_b32 s{sTMP}, 7, s{sBEST}")
        A(f"s_and_b32 s{sTMP + 1}, s{sTMP}, 3")
        A(f"s_lshl_b32 s{sTMP + 2}, s{sTMP + 1}, 1")
        A(f"s_not_b64 {sp(sE)}, {sp(sODD)}")
        A(f"s_cmp_ge_u32 s{sTMP}, 4")
        A(f"s_cselect_b64 {sp(sE)}, {sp(sODD)}, {sp(sE)}")
        vC = K + 24
        A(f"s_set_gpr_idx_on s{sTMP + 2}, gpr_idx(SRC0)")
        A(f"v_mov_b32 {v(vC)}, {v(vX2)}")
        A(f"v_mov_b32 {v(vC + 1)}, {v(vX2 + 1)}")
        A(f"v_mov_b32 {v(vC + 2)}, {v(vH)}")
        A(f"v_mov_b32 {v(vC + 3)}, {v(vH + 1)}")
        A("s_set_gpr_idx_off")
        A(f"s_add_u32 s{sTMP + 3}, s{sOWN}, {O_SLOT}")
        A(f"v_add_u32 {v(vT)}, s{sTMP + 3}, {v(vT + 2)}")
        A(f"s_mov_b64 exec, {sp(sE)}")
        A(f"global_store_dwordx2 {v(vT)}, {v(vC, 2)}, {sp(sWS)} sc1")
        A(f"global_store_dwordx2 {v(vT)}, {v(vC + 2, 2)}, {sp(sWS)} offset:1024 sc1")
        A("s_mov_b64 exec, -1")
        self.stamp("slot")
        for k in range(8):
            A(f"v_dot2_f32_bf16 {v(Hf + 2 * k)}, {v(vX2 + k)}, s{sSELLO}, {v(Hf + 2 * k)}")
            A(f"v_dot2_f32_bf16 {v(Hf + 2 * k + 1)}, {v(vX2 + k)}, s{sSELHI}, {v(Hf + 2 * k + 1)}")
        vO = vY
        A(f"v_mov_b32 {v(vT + 4)}, {L_REDK}")
        for k in range(8):
            A(f"v_cvt_pk_bf16_f32 {v(vO + k)}, {v(Hf + 2 * k)}, {v(Hf + 2 * k + 1)}")
        osc = " sc1" if o.get("outsc", 0) == 1 else (" nt" if o.get("outsc", 0) == 2 else "")
        for r in range(4):
            A(f"s_cmp_eq_u32 s{sTMP + 1}, {r}")
            A(f"s_cselect_b64 vcc, {sp(sE)}, 0")
            A("s_not_b64 exec, vcc")
            A(f"global_store_dwordx2 {v(vRD)}, {v(vO + 2 * r, 2)}, {sp(sOUT)} offset:{1024 * r}{osc}")
        A("s_mov_b64 exec, -1")
        A(f"s_set_gpr_idx_on s{sTMP + 2}, gpr_idx(SRC0)")
        A(f"v_mov_b32 {v(vC + 4)}, {v(vO)}")
        A(f"v_mov_b32 {v(vC + 5)}, {v(vO + 1)}")
        A("s_set_gpr_idx_off")
        A(f"s_lshl_b32 s{sTMP + 1}, s{sTMP + 1}, 10")
        A(f"v_add_u32 {v(vRD)}, s{sTMP + 1}, {v(vRD)}")
        A(f"s_lshr_b32 s{sTMP}, s{sWAVE}, 1")
        A(f"s_lshl_b32 s{sTMP}, s{sTMP}, 9")
        A(f"s_add_u32 s{sTMP}, s{sTMP}, {W_REG + O_SLOT}")
        A(f"v_lshrrev_b32 {v(vT)}, 1, {v(vLANE)}")
        A(f"v_lshl_add_u32 {v(vT)}, {v(vT)}, 4, s{sTMP}")
        A(f"v_lshlrev_b32 {v(vT + 1)}, 6, {v(vT + 1)}")
        A(f"v_and_b32 {v(vT + 2)}, 12, {v(vLANE)}")
        A(f"v_lshl_add_u32 {v(vT + 1)}, {v(vT + 2)}, 2, {v(vT + 1)}")
        A(f"v_lshrrev_b32 {v(vT + 2)}, 5, {v(vLANE)}")
        A(f"v_lshl_add_u32 {v(vT + 1)}, {v(vT + 2)}, 3, {v(vT + 1)}")
        A(f"s_and_b32 s{sTMP}, s{sWAVE}, 1")
        A(f"s_lshl_b32 s{sTMP}, s{sTMP}, 7")
        A(f"s_lshr_b32 s{sTMP + 1}, s{sWAVE}, 1")
        A(f"s_lshl_b32 s{sTMP + 1}, s{sTMP + 1}, 2")
        A(f"s_add_u32 s{sTMP}, s{sTMP}, s{sTMP + 1}")
        A(f"s_add_u32 s{sTMP}, s{sTMP}, {L_REDF}")
        A(f"v_add_u32 {v(vT + 1)}, s{sTMP}, {v(vT + 1)}")
        A(f"v_and_b32 {v(vT + 2)}, 15, {v(vLANE)}")
        A(f"v_lshlrev_b32 {v(vT + 2)}, 3, {v(vT + 2)}")
        A(f"v_add_u32 {v(vT + 2)}, {L_REDF}, {v(vT + 2)}")
        A(f"s_add_u32 s{sTMP}, s{sOWN}, {O_PART}")
        A(f"v_lshl_add_u32 {v(vT + 3)}, v0, 3, s{sTMP}")
        WGp = K + 80
        for kp in range(4):
            for d in range(4):
                lo, hi = vWG + 8 * kp + d, vWG + 8 * kp + 4 + d
                A(f"v_perm_b32 {v(WGp + 8 * kp + 2 * d)}, {v(hi)}, {v(lo)}, s{sRP0}")
                A(f"v_perm_b32 {v(WGp + 8 * kp + 2 * d + 1)}, {v(hi)}, {v(lo)}, s{sRP1}")
        WDp = vWG
        for kp in range(8):
            lo, hi = vWD + 2 * kp, vWD + 2 * kp + 1
            A(f"v_perm_b32 {v(WDp + 2 * kp)}, {v(hi)}, {v(lo)}, s{sRP0}")
            A(f"v_perm_b32 {v(WDp + 2 * kp + 1)}, {v(hi)}, {v(lo)}, s{sRP1}")
        self.stamp("outst")
        A("s_barrier")
        A(f"ds_read_b32 {v(K)}, {v(vT + 4)}")
        A("s_waitcnt lgkmcnt(0)")
        A(f"v_readfirstlane_b32 s{sWIN}, {v(K)}")
        A(f"s_andn2_b32 s{sT0}, 2047, s{sWIN}")
        A(f"s_lshr_b32 s{sT1}, s{sT0}, 3")
        A(f"s_mul_i32 s{sT1}, s{sT1}, {RS}")
        A(f"s_cmp_lt_u32 s{sPOS}, 14")
        A("s_cbranch_scc0 L_noffn")
        A(f"v_add_u32 {v(vT)}, s{sT1}, {v(vT)}")
        sl = [f"global_load_dwordx4 {v(K, 4)}, {v(vT)}, {sp(sWS)} sc1"]
        A(sl[0])
        self.stamp("win")
        A("s_waitcnt vmcnt(0)")
        self.poll("sel", sl, [f"v_max3_u32 {v(vT + 6)}, {v(K)}, {v(K + 1)}, {v(K + 2)}",
                              f"v_max_u32 {v(vT + 6)}, {v(vT + 6)}, {v(K + 3)}",
                              f"v_cmp_eq_u32 vcc, -1, {v(vT + 6)}"])
        self.stamp("sel")
        V2 = [K + 8 + i for i in range(8)]
        for kp in range(4):
            for c in range(8):
                A(f"v_dot2_f32_bf16 {v(V2[c])}, {v(K + kp)}, {v(WGp + 8 * kp + c)}, {v(V2[c]) if kp else 0}")
        self.reduce8(V2, K + 16)
        A(f"ds_write_b32 {v(vT + 1)}, {v(V2[0])}")
        A("s_waitcnt lgkmcnt(0)")
        A("s_barrier")
        A(f"ds_read_b64 {v(K, 2)}, {v(vT + 2)}")
        A(f"ds_read_b64 {v(K + 2, 2)}, {v(vT + 2)} offset:128")
        A("s_waitcnt lgkmcnt(0)")
        A(f"v_add_f32 {v(K)}, {v(K)}, {v(K + 1)}")
        A(f"v_add_f32 {v(K + 2)}, {v(K + 2)}, {v(K + 3)}")
        A(f"v_cvt_pk_bf16_f32 {v(K + 1)}, {v(K)}, {v(K + 2)}")
        A(f"v_lshlrev_b32 {v(K)}, 16, {v(K + 1)}")
        A(f"v_mul_f32 {v(K + 3)}, {hex(f2u(-L2E))}, {v(K)}")
        A(f"v_exp_f32 {v(K + 3)}, {v(K + 3)}")
        A(f"v_and_b32 {v(K + 2)}, s{sMASK}, {v(K + 1)}")
        A(f"v_add_f32 {v(K + 3)}, 1.0, {v(K + 3)}")
        A(f"v_rcp_f32 {v(K + 3)}, {v(K + 3)}")
        A(f"v_mul_f32 {v(K)}, {v(K)}, {v(K + 3)}")
        A(f"v_cvt_pk_bf16_f32 {v(K)}, {v(K)}, {v(K)}")
        A(f"v_and_b32 {v(K)}, s{sMASK}, {v(K)}")
        A(f"v_mul_f32 {v(K)}, {v(K)}, {v(K + 2)}")
        A(f"v_mov_b32_dpp {v(K + 1)}, {v(K)} quad_perm:[1,1,3,3] row_mask:0xf bank_mask:0xf")
        A(f"v_cvt_pk_bf16_f32 {v(K)}, {v(K)}, {v(K + 1)}")
        for kp in range(8):
            A(f"v_readlane_b32 s{sH + kp}, {v(K)}, {2 * kp}")
        for kp in range(8):
            for c in range(2):
                A(f"v_dot2_f32_bf16 {v(K + 4 + c)}, s{sH + kp}, {v(WDp + 2 * kp + c)}, {v(K + 4 + c) if kp else 0}")
        A(f"global_store_dwordx2 {v(vT + 3)}, {v(K + 4, 2)}, {sp(sWS)} sc1")
        self.stamp("part")
        held = [f"s_cmp_eq_u32 s{sWIN}, s{sBEST}",
                f"s_cselect_b64 exec, 0, {sp(sE)}",
                f"global_store_dwordx2 {v(vRD)}, {v(vC + 4, 2)}, {sp(sOUT)}{osc}",
                f"s_or_b32 s{sTMP}, s{sL}, s{sWAVE}",
                f"s_cmp_eq_u32 s{sTMP}, 0",
                "s_cselect_b64 exec, 1, 0",
                f"v_mov_b32 {v(vT + 4)}, s{sG}",
                f"v_mov_b32 {v(vT + 5)}, 0",
                f"global_store_dword {v(vT + 5)}, {v(vT + 4)}, {sp(sWS)} sc1",
                "s_mov_b64 exec, -1"]
        T = self.tail
        T("L_noffn:")
        for l in held:
            T(l)
        T("s_branch L_fin")
        for l in held:
            A(l)
        A(f"s_cmp_lt_u32 s{sPOS}, 8")
        A("s_cbranch_scc0 L_fin")
        A(f"s_cmp_lt_u32 s{sWAVE}, 2")
        A("s_cbranch_scc0 L_fin")
        A(f"s_lshl_b32 s{sTMP}, s{sXCD}, 3")
        A(f"s_add_u32 s{sTMP}, s{sTMP}, s{sPOS}")
        A(f"s_lshl_b32 s{sTMP}, s{sTMP}, 1")
        A(f"s_add_u32 s{sTMP}, s{sTMP}, s{sWAVE}")
        A(f"v_lshrrev_b32 {v(vT)}, 5, {v(vLANE)}")
        A(f"v_bfe_u32 {v(vT + 1)}, {v(vLANE)}, 4, 1")
        A(f"v_lshl_add_u32 {v(vT)}, {v(vT + 1)}, 1, {v(vT)}")
        A(f"s_lshl_b32 s{sTMP + 1}, s{sTMP}, 3")
        A(f"v_lshl_add_u32 {v(vT)}, {v(vT)}, 1, s{sTMP + 1}")
        A(f"s_add_u32 s{sT1}, s{sT1}, {W_REG + O_SLOT}")
        A(f"v_add_u32 {v(vT + 1)}, s{sT1}, {v(vT)}")
        xh = [f"global_load_ushort {v(K + 20)}, {v(vT + 1)}, {sp(sWS)} sc1",
              f"global_load_ushort {v(K + 21)}, {v(vT + 1)}, {sp(sWS)} offset:1024 sc1"]
        for l in xh:
            A(l)
        A(f"s_lshl_b32 s{sTMP + 1}, s{sT0}, 10")
        A(f"v_add_u32 {v(vT)}, s{sTMP + 1}, {v(vT)}")
        A(f"v_min_u32 {v(vT + 2)}, 55, {v(vLANE)}")
        A(f"v_mul_u32_u24 {v(vT + 3)}, 4682, {v(vT + 2)}")
        A(f"v_lshrrev_b32 {v(vT + 3)}, 16, {v(vT + 3)}")
        A(f"v_mad_u32_u24 {v(vT + 2)}, {v(vT + 3)}, 18, {v(vT + 2)}")
        A(f"v_mul_u32_u24 {v(vT + 2)}, {RS}, {v(vT + 2)}")
        A(f"s_lshl_b32 s{sTMP + 1}, s{sTMP}, 4")
        A(f"s_add_u32 s{sTMP + 1}, s{sTMP + 1}, {W_REG + O_PART}")
        A(f"v_add_u32 {v(vT + 2)}, s{sTMP + 1}, {v(vT + 2)}")
        A(f"v_add_u32 {v(vT + 3)}, {128 * RS}, {v(vT + 2)}")
        A(f"s_ashr_i32 s{sTMP + 2}, s{sWIN}, 31")
        A(f"s_not_b32 s{sTMP + 2}, s{sTMP + 2}")
        A(f"s_or_b32 s{sTMP + 2}, s{sTMP + 2}, 0x80000000")
        A(f"s_xor_b32 s{sTMP + 2}, s{sTMP + 2}, s{sWIN}")
        A(f"s_and_b32 s{sTMP + 2}, s{sTMP + 2}, 0xfffff800")
        A(f"s_or_b32 s{sTMP + 2}, s{sTMP + 2}, 0x400")
        A(f"v_cvt_pk_bf16_f32 {v(K + 22)}, s{sTMP + 2}, s{sTMP + 2}")
        A(f"v_and_b32 {v(K + 22)}, s{sMASK}, {v(K + 22)}")
        A(f"v_mul_f32 {v(K + 22)}, {hex(f2u(-L2E))}, {v(K + 22)}")
        A(f"v_exp_f32 {v(K + 22)}, {v(K + 22)}")
        A(f"v_add_f32 {v(K + 22)}, 1.0, {v(K + 22)}")
        A(f"v_rcp_f32 {v(K + 22)}, {v(K + 22)}")
        A(f"v_cvt_pk_bf16_f32 {v(K + 22)}, {v(K + 22)}, {v(K + 22)}")
        A(f"v_and_b32 {v(K + 22)}, s{sMASK}, {v(K + 22)}")
        A("s_waitcnt vmcnt(0)")
        self.stamp("partdr")
        pl = [f"global_load_dwordx4 {v(vY, 4)}, {v(vT + 2)}, {sp(sWS)} sc1",
              f"global_load_dwordx4 {v(vY + 4, 4)}, {v(vT + 3)}, {sp(sWS)} sc1"]
        for l in pl:
            A(l)
        self.poll("xh", xh, [f"v_max_u32 {v(vT + 6)}, {v(K + 20)}, {v(K + 21)}",
                             f"v_cmp_eq_u32 vcc, 0xffff, {v(vT + 6)}"])
        A(f"v_lshlrev_b32 {v(K + 20)}, 16, {v(K + 20)}")
        A(f"v_lshlrev_b32 {v(K + 21)}, 16, {v(K + 21)}")
        A("s_waitcnt vmcnt(0)")
        self.poll("part", pl, chk8)
        self.stamp("partld")
        A(f"v_cmp_gt_u32 vcc, 56, {v(vLANE)}")
        A(f"v_pk_add_f32 {v(vY, 2)}, {v(vY, 2)}, {v(vY + 4, 2)}")
        A(f"v_pk_add_f32 {v(vY + 2, 2)}, {v(vY + 2, 2)}, {v(vY + 6, 2)}")
        for c in range(4):
            A(f"v_cndmask_b32 {v(vY + c)}, 0, {v(vY + c)}, vcc")
        A(f"v_permlane32_swap_b32 {v(vY)}, {v(vY + 1)}")
        A(f"v_permlane32_swap_b32 {v(vY + 2)}, {v(vY + 3)}")
        A(f"v_add_f32 {v(vY)}, {v(vY)}, {v(vY + 1)}")
        A(f"v_add_f32 {v(vY + 2)}, {v(vY + 2)}, {v(vY + 3)}")
        A(f"v_permlane16_swap_b32 {v(vY)}, {v(vY + 2)}")
        A(f"v_add_f32 {v(vY)}, {v(vY)}, {v(vY + 2)}")
        for sh in (8, 4, 2, 1):
            A(f"v_add_f32_dpp {v(vY)}, {v(vY)}, {v(vY)} row_ror:{sh} row_mask:0xf bank_mask:0xf")
        y = vY
        A(f"v_cvt_pk_bf16_f32 {v(y)}, {v(y)}, {v(y)}")
        A(f"v_and_b32 {v(y)}, s{sMASK}, {v(y)}")
        A(f"v_mul_f32 {v(y)}, {v(y)}, {v(K + 22)}")
        A(f"v_cvt_pk_bf16_f32 {v(y)}, {v(y)}, {v(y)}")
        A(f"v_and_b32 {v(y)}, s{sMASK}, {v(y)}")
        A(f"v_add_f32 {v(y)}, {v(y)}, {v(K + 20)}")
        A(f"v_cvt_pk_bf16_f32 {v(y)}, {v(y)}, {v(y)}")
        A(f"v_and_b32 {v(y)}, s{sMASK}, {v(y)}")
        A(f"v_add_f32 {v(y)}, {v(y)}, {v(K + 21)}")
        A(f"v_cvt_pk_bf16_f32 {v(y)}, {v(y)}, {v(y)}")
        A("s_mov_b32 exec_lo, 0x00010001")
        A("s_mov_b32 exec_hi, 0x00010001")
        A(f"global_store_short {v(vT)}, {v(y)}, {sp(sOUT)}")
        A("L_fin:")
        self.finish("R")

    def chans(self):
        A = self.A
        o = self.o
        vLANE = 1
        vAA, vBA, vEW, vER, vRA = 4, 12, 13, 14, 15
        vKA0, vKA1, vKB, vPW0, vPW1 = 16, 17, 18, 19, 20
        vP = 24
        vT = 28
        vACC = 40
        vA0, vA1, vB0, vB1 = 72, 104, 136, 168
        K = 72
        A("L_chan:")
        A("v_and_b32 v0, 0xff, v0")
        A(f"s_sub_u32 s{sWAVE}, s{sWAVE}, 4")
        A(f"s_lshl_b32 s{sT0}, s{sL}, 9")
        A(f"v_lshl_add_u32 {v(vT)}, v0, 1, s{sT0}")
        A(f"s_lshl_b32 s{sT1}, s{sL}, 2")
        A("s_waitcnt lgkmcnt(0)")
        self.stamp("karg")
        for k, s in enumerate((sLA, sAI, sCR, sCI)):
            A(f"global_load_ushort {v(vP + k)}, {v(vT)}, {sp(s)}{' nt' if o.get('ntx', 1) else ''}")
        A(f"s_load_dword s{sDT}, {sp(sLDT)}, s{sT1}")
        ntlb = 0
        if o.get("tlb", 0):
            A("v_mov_b32 v2, 0")
            A("s_mov_b64 exec, 1")
            for sb in (sWG, sWU, sWD, sOUT):
                A(f"global_load_dword v3, v2, {sp(sb)}")
                ntlb += 1
            A("s_mov_b64 exec, -1")
        vJ, vGq = vT + 4, vT + 5
        A(f"v_and_b32 {v(vJ)}, 15, {v(vLANE)}")
        A(f"v_lshrrev_b32 {v(vGq)}, 4, {v(vLANE)}")
        A(f"s_lshr_b32 s{sT0}, s{sWAVE}, 1")
        A(f"s_and_b32 s{sT1}, s{sWAVE}, 1")
        A(f"v_and_b32 {v(vT)}, 7, {v(vLANE)}")
        A(f"v_lshlrev_b32 {v(vRA)}, 4, {v(vT)}")
        A(f"v_add_u32 {v(vRA)}, {L_RED1}, {v(vRA)}")
        A(f"s_mul_i32 s{sTMP}, s{sT0}, {PC}")
        A(f"s_lshl_b32 s{sTMP + 1}, s{sT1}, 7")
        A(f"s_add_u32 s{sTMP}, s{sTMP}, s{sTMP + 1}")
        A(f"s_add_u32 s{sTMP}, s{sTMP}, {L_P + 4 * 26}")
        A(f"v_lshlrev_b32 {v(vT)}, 3, {v(vGq)}")
        A(f"v_sub_u32 {v(vT)}, {v(vJ)}, {v(vT)}")
        A(f"v_lshl_add_u32 {v(vAA)}, {v(vT)}, 2, s{sTMP}")
        for m in range(1, 8):
            A(f"v_add_u32 {v(vAA + m)}, {1024 * m}, {v(vAA)}")
        A(f"s_mul_i32 s{sTMP}, s{sT0}, {UC}")
        A(f"s_lshl_b32 s{sTMP + 1}, s{sT1}, 6")
        A(f"s_sub_u32 s{sTMP}, s{sTMP}, s{sTMP + 1}")
        A(f"s_add_u32 s{sTMP}, s{sTMP}, {L_U + 64}")
        A(f"v_lshl_add_u32 {v(vT)}, {v(vJ)}, 1, {v(vGq)}")
        A(f"v_lshl_add_u32 {v(vBA)}, {v(vT)}, 4, s{sTMP}")
        A(f"v_lshl_add_u32 {v(vT)}, {v(vJ)}, 2, {v(vGq)}")
        A(f"v_lshrrev_b32 {v(vT + 1)}, 3, {v(vT)}")
        A(f"v_add_u32 {v(vT)}, {v(vT)}, {v(vT + 1)}")
        A(f"s_mul_i32 s{sTMP}, s{sWAVE}, {8 * TBS}")
        A(f"v_lshl_add_u32 {v(vEW)}, {v(vT)}, 4, s{sTMP}")
        A(f"v_lshrrev_b32 {v(vT + 1)}, 3, {v(vLANE)}")
        A(f"v_add_u32 {v(vT)}, {v(vLANE)}, {v(vT + 1)}")
        A(f"s_mul_i32 s{sTMP}, s{sWAVE}, {2 * TBS}")
        A(f"v_lshl_add_u32 {v(vER)}, {v(vT)}, 4, s{sTMP}")
        KS = o.get("ks", 5)
        for k in range(4):
            A(f"v_mov_b32 {v(vACC + k)}, -1")
        A(f"s_mul_i32 s{sTMP}, s{sL}, {RS}")
        A(f"s_add_u32 s{sTMP}, s{sTMP}, {W_REG + 4096}")
        A(f"v_lshl_add_u32 {v(vACC + 4)}, v0, 4, s{sTMP}")
        A(f"v_add_u32 {v(vACC + 5)}, 8192, {v(vACC + 4)}")
        A(f"v_add_u32 {v(vACC + 6)}, 12288, {v(vACC + 4)}")
        A(f"s_lshl_b32 s{sTMP}, s{sL}, {KS}")
        A(f"s_add_u32 s{sTMP}, s{sTMP}, {W_KEY}")
        A(f"v_lshl_add_u32 {v(22)}, {v(vLANE)}, 4, s{sTMP}")
        ones = v(vACC, 4)
        A(f"s_cmp_eq_u32 s{sWAVE}, 0")
        A(f"s_cselect_b64 exec, {(1 << ((1 << KS) // 16)) - 1}, 0")
        A(f"global_store_dwordx4 {v(22)}, {ones}, {sp(sWS)} sc1")
        A("s_mov_b64 exec, -1")
        A(f"global_store_dwordx4 {v(vACC + 4)}, {ones}, {sp(sWS)} offset:-4096 sc1")
        A(f"global_store_dwordx4 {v(vACC + 4)}, {ones}, {sp(sWS)} sc1")
        A(f"global_store_dwordx4 {v(vACC + 5)}, {ones}, {sp(sWS)} offset:-4096 sc1")
        A(f"global_store_dwordx4 {v(vACC + 5)}, {ones}, {sp(sWS)} sc1")
        A(f"global_store_dwordx4 {v(vACC + 6)}, {ones}, {sp(sWS)} sc1")
        vg, vr = vT, vT + 1
        A(f"v_lshrrev_b32 {v(vg)}, 2, {v(vJ)}")
        A(f"v_and_b32 {v(vr)}, 3, {v(vJ)}")
        A(f"s_cmp_eq_u32 s{sT1}, 0")
        A("s_cbranch_scc0 L_rows_hi")
        A(f"v_mov_b32 {v(vKA0)}, {v(vJ)}")
        A(f"v_lshl_add_u32 {v(vKA1)}, {v(vg)}, 1, {v(vr)}")
        A(f"v_add_u32 {v(vKA1)}, 16, {v(vKA1)}")
        A(f"v_add_u32 {v(vT + 2)}, -4, {v(vJ)}")
        A(f"v_and_b32 {v(vT + 2)}, 15, {v(vT + 2)}")
        A(f"v_cmp_eq_u32 vcc, 3, {v(vr)}")
        A(f"v_cndmask_b32 {v(vKA1)}, {v(vKA1)}, {v(vT + 2)}, vcc")
        A(f"v_lshl_add_u32 {v(vPW0)}, {v(vJ)}, 2, {v(vGq)}")
        A(f"v_lshlrev_b32 {v(vPW0)}, 4, {v(vPW0)}")
        A(f"v_add_u32 {v(vPW1)}, 1024, {v(vPW0)}")
        A("s_branch L_rows_done")
        A("L_rows_hi:")
        A(f"v_lshrrev_b32 {v(vT + 2)}, 1, {v(vg)}")
        A(f"v_lshl_add_u32 {v(vKA0)}, {v(vg)}, 1, {v(vr)}")
        A(f"v_add3_u32 {v(vKA0)}, {v(vKA0)}, {v(vT + 2)}, 25")
        A(f"v_sub_u32 {v(vKA1)}, {v(vJ)}, {v(vg)}")
        A(f"v_add_u32 {v(vKA1)}, 35, {v(vKA1)}")
        A(f"v_lshrrev_b32 {v(vT + 2)}, 1, {v(vGq)}")
        A(f"v_lshl_add_u32 {v(vPW0)}, {v(vT + 2)}, 4, {v(vJ)}")
        A(f"v_and_b32 {v(vT + 2)}, 1, {v(vGq)}")
        A(f"v_lshl_add_u32 {v(vPW0)}, {v(vPW0)}, 1, {v(vT + 2)}")
        A(f"v_lshlrev_b32 {v(vPW0)}, 5, {v(vPW0)}")
        A(f"v_add_u32 {v(vPW0)}, 2048, {v(vPW0)}")
        A(f"v_lshlrev_b32 {v(vPW1)}, 6, {v(vLANE)}")
        A(f"v_add_u32 {v(vPW1)}, 4096, {v(vPW1)}")
        A("L_rows_done:")
        A(f"s_mul_i32 s{sTMP}, s{sT0}, {PC}")
        A(f"s_add_u32 s{sTMP}, s{sTMP}, {L_P + 64}")
        A(f"v_add_u32 {v(vPW0)}, s{sTMP}, {v(vPW0)}")
        A(f"v_add_u32 {v(vPW1)}, s{sTMP}, {v(vPW1)}")
        A(f"s_mul_i32 s{sTMP}, s{sT0}, {TABC}")
        A(f"v_lshl_add_u32 {v(vT + 2)}, {v(vGq)}, 4, s{sTMP}")
        A(f"s_movk_i32 s{sTMP + 1}, {ROWB}")
        A(f"v_mad_u32_u24 {v(vKA0)}, {v(vKA0)}, s{sTMP + 1}, {v(vT + 2)}")
        A(f"v_mad_u32_u24 {v(vKA1)}, {v(vKA1)}, s{sTMP + 1}, {v(vT + 2)}")
        A(f"v_mad_u32_u24 {v(vKB)}, {v(vJ)}, s{sTMP + 1}, {v(vT + 2)}")
        A(f"s_lshl_b32 s{sTMP + 1}, s{sT1}, 8")
        A(f"s_add_u32 m0, s{sTMP}, s{sTMP + 1}")
        A(f"s_mul_i32 s{sTMP}, s{sXCD}, 448")
        A(f"s_and_b32 s{sTMP}, s{sTMP}, 0xffffff80")
        A(f"s_mul_i32 s{sTMP + 1}, s{sPOS}, {16 * 3584}")
        A(f"s_add_u32 s{sTMP}, s{sTMP}, s{sTMP + 1}")
        A(f"v_lshrrev_b32 {v(vT + 2)}, 2, {v(vLANE)}")
        A(f"v_mul_u32_u24 {v(vT + 2)}, 3584, {v(vT + 2)}")
        A(f"v_and_b32 {v(vT + 3)}, 3, {v(vLANE)}")
        A(f"v_lshl_add_u32 {v(vT + 2)}, {v(vT + 3)}, 7, {v(vT + 2)}")
        A(f"v_add_u32 {v(vT + 2)}, s{sTMP}, {v(vT + 2)}")
        A(f"s_mul_i32 s{sTMP}, s{sL}, 7168")
        A(f"s_mul_i32 s{sTMP + 1}, s{sT1}, 3584")
        A(f"s_add_u32 s{sTMP}, s{sTMP}, s{sTMP + 1}")
        A(f"v_min_u32 {v(vT + 3)}, 27, {v(vLANE)}")
        A(f"v_lshl_add_u32 {v(vT + 3)}, {v(vT + 3)}, 7, s{sTMP}")
        A(f"s_cmp_eq_u32 s{sT1}, 0")
        A(f"s_cselect_b64 {sp(sWSEL)}, {sp(sWG)}, {sp(sWU)}")
        A(f"s_cmp_eq_u32 s{sT0}, 0")
        A(f"s_cselect_b64 {sp(sWSEL)}, {sp(sWSEL)}, {sp(sWD)}")
        A("s_cselect_b64 vcc, -1, 0")
        A(f"v_cndmask_b32 {v(21)}, {v(vT + 3)}, {v(vT + 2)}, vcc")
        wpf = f"global_load_dword v3, v21, {sp(sWSEL)}{' nt' if o.get('ntw', 1) else ''}"
        if o.get("wpf", 2) == 2:
            A(wpf)

        L2E = 1.4426950408889634
        l2e_hi = struct.unpack("<f", struct.pack("<f", L2E))[0]
        l2e_lo = L2E - l2e_hi
        a, b = K, K + 2
        A(f"s_mov_b32 s{sE}, {hex(f2u(l2e_hi))}")
        A(f"s_mov_b32 s{sE + 1}, {hex(f2u(l2e_lo))}")
        A(f"s_waitcnt vmcnt({(6 if o.get('wpf', 2) == 2 else 5) + ntlb}) lgkmcnt(0)")
        self.stamp("par")
        A(f"s_lshl_b32 s{sTMP}, s{sDT}, 16")
        A(f"s_and_b32 s{sTMP + 1}, s{sDT}, s{sMASK}")
        A(f"s_cmp_lt_u32 s{sWAVE}, 2")
        A(f"s_cselect_b32 s{sDT}, s{sTMP}, s{sTMP + 1}")
        A(f"v_lshlrev_b32 {v(a)}, 16, {v(vP)}")
        A(f"v_mov_b32 {v(a + 1)}, s{sDT}")
        A(f"v_pk_mul_f32 {v(b, 2)}, {v(a, 2)}, {sp(sE)} op_sel_hi:[1,0]")
        A(f"v_pk_fma_f32 {v(b + 2, 2)}, {v(a, 2)}, {sp(sE)}, {v(b, 2)} op_sel_hi:[1,0,1] neg_lo:[0,0,1] neg_hi:[0,0,1]")
        A(f"v_exp_f32 {v(b)}, {v(b)}")
        A(f"v_exp_f32 {v(b + 1)}, {v(b + 1)}")
        A(f"v_pk_fma_f32 {v(b + 2, 2)}, {sp(sE)}, {v(a, 2)}, {v(b + 2, 2)} op_sel:[1,0,0] op_sel_hi:[1,1,1]")
        A(f"v_mul_f32 {v(b + 2)}, {hex(f2u(0.6931471805599453))}, {v(b + 2)}")
        A(f"v_mul_f32 {v(b + 3)}, {hex(f2u(0.6931471805599453))}, {v(b + 3)}")
        A(f"v_pk_fma_f32 {v(b, 2)}, {v(b, 2)}, {v(b + 2, 2)}, {v(b, 2)}")
        A(f"v_cvt_pk_bf16_f32 {v(a)}, {v(b)}, {v(b + 1)}")
        vdt, va2, vph = K + 6, K + 7, K + 8
        A(f"v_and_b32 {v(vdt)}, s{sMASK}, {v(a)}")
        A(f"v_lshlrev_b32 {v(va2)}, 16, {v(a)}")
        A(f"v_lshlrev_b32 {v(vph)}, 16, {v(vP + 1)}")
        A(f"v_mul_f32 {v(va2)}, {v(va2)}, {v(vdt)}")
        A(f"v_mul_f32 {v(vph)}, {v(vph)}, {v(vdt)}")
        A(f"v_mul_f32 {v(va2)}, {hex(f2u(-l2e_hi))}, {v(va2)}")
        A(f"v_mul_f32 {v(vph)}, 0.15915494, {v(vph)}")
        Wp = {p: K + 10 + 2 * p for p in range(1, 17)}
        Zp = {p: K + 42 + 2 * p for p in range(1, 8)}
        G = [K + 58, K + 60]
        TT = [K + 62, K + 64, K + 66, K + 68]
        RR = [K + 70, K + 72, K + 74, K + 76]
        CV = K + 80
        A(f"v_add_f32 {v(vdt)}, {v(vdt)}, {v(vdt)}")
        A(f"v_lshlrev_b32 {v(G[0])}, 16, {v(vP + 2)}")
        A(f"v_lshlrev_b32 {v(G[0] + 1)}, 16, {v(vP + 3)}")
        A(f"v_mul_f32 {v(G[0])}, {v(G[0])}, {v(vdt)}")
        A(f"v_mul_f32 {v(G[0] + 1)}, {v(G[0] + 1)}, {v(vdt)}")
        for n, (dst, sc) in enumerate(((Wp[1], 1.0), (Wp[16], 16.0), (Zp[1], 256.0))):
            t = TT[n]
            if sc == 1.0:
                A(f"v_exp_f32 {v(t)}, {v(va2)}")
                A(f"v_fract_f32 {v(t + 1)}, {v(vph)}")
            else:
                A(f"v_mul_f32 {v(t)}, {hex(f2u(sc))}, {v(va2)}")
                A(f"v_mul_f32 {v(t + 1)}, {hex(f2u(sc))}, {v(vph)}")
                A(f"v_exp_f32 {v(t)}, {v(t)}")
                A(f"v_fract_f32 {v(t + 1)}, {v(t + 1)}")
            A(f"v_cos_f32 {v(dst)}, {v(t + 1)}")
            A(f"v_sin_f32 {v(dst + 1)}, {v(t + 1)}")
        for n, dst in enumerate((Wp[1], Wp[16], Zp[1])):
            A(f"v_pk_mul_f32 {v(dst, 2)}, {v(dst, 2)}, {v(TT[n], 2)} op_sel_hi:[1,0]")
        jobs = [(1, Wp[1], None, None, 0), (16, Zp[1], None, None, 0), (47, G[0], None, None, 1)]
        wj = []
        for p in range(2, 16):
            hb = 1 << (p.bit_length() - 1)
            x, y = (p // 2, p // 2) if hb == p else (hb, p - hb)
            wj.append((p, Wp[p], Wp[x], Wp[y], 0))
        gj = [(47 + j, G[j & 1], G[(j - 1) & 1], Wp[16], 1) for j in range(1, 16)]
        zrow = {2: 25, 3: 30, 4: 35, 5: 38, 6: 41, 7: 44}
        zj = []
        for p in range(2, 8):
            hb = 1 << (p.bit_length() - 1)
            x, y = (p // 2, p // 2) if hb == p else (hb, p - hb)
            zj.append((zrow[p], Zp[p], Zp[x], Zp[y], 0))
        tj = [(16 + k, None, Zp[1], Wp[2 * k], 0) for k in range(1, 9)]
        for z in (2, 3):
            tj += [(zrow[z] + k, None, Zp[z], Wp[4 * k], 0) for k in range(1, 5)]
        for z in (4, 5, 6, 7):
            tj += [(zrow[z] + k, None, Zp[z], Wp[8 * k], 0) for k in range(1, 3)]
        first = []
        for i in range(max(len(wj), len(gj), len(zj))):
            for q in (wj, gj, zj):
                if i < len(q):
                    first.append(q[i])
        jobs += first + tj
        A(f"v_mov_b32 {v(CV + 15)}, 0x3f80")
        pend = [(0, CV + 15)]
        slot = 0
        nb = 0
        b1_at = o.get("b1_at", 0)
        batch = o.get("batch", 6)

        def do_b1():
            self.stamp("setup")
            A(f"s_waitcnt vmcnt({1 if o.get('wpf', 2) == 2 else 0})")
            self.stamp("idr")
            A("s_barrier")
            self.stamp("b1")
            if o.get("wpf", 2) == 1:
                A(wpf)
        if b1_at == 0:
            do_b1()
        for n, (row, dst, x, y, conj) in enumerate(jobs):
            if x is not None:
                if dst is None:
                    dst = RR[n & 3]
                for ins in self.cmul(dst, x, y, TT[n & 3]):
                    A(ins)
            A(f"v_cvt_pk_bf16_f32 {v(CV + slot)}, {v(dst)}, {'-' if conj else ''}{v(dst + 1)}")
            pend.append((row, CV + slot))
            slot = (slot + 1) % 15
            if len(pend) >= batch or n == len(jobs) - 1:
                for row_, reg in pend:
                    A(f"ds_write_addtid_b32 {v(reg)} offset:{row_ * ROWB}")
                pend = []
                nb += 1
                if nb == b1_at:
                    do_b1()
        A("s_waitcnt lgkmcnt(0)")
        self.stamp("kgen1")
        A("s_barrier")
        if o.get("wpf", 2) == 3:
            A(wpf)
        fB, fA0, fA1 = K, K + 32, K + 64
        for s in range(4):
            A(f"ds_read_b128 {v(fB + 4 * s, 4)}, {v(vKB)} offset:{47 * ROWB + 64 * s}")
            A(f"ds_read_b128 {v(fA0 + 4 * s, 4)}, {v(vKA0)} offset:{64 * s}")
            A(f"ds_read_b128 {v(fA1 + 4 * s, 4)}, {v(vKA1)} offset:{64 * s}")
        D0, D1 = vACC, vACC + 4
        for s in range(8):
            s2 = s + 4
            A(f"s_waitcnt lgkmcnt({9 if s2 < 8 else 3 * (7 - s)})")
            c0 = "0" if s == 0 else v(D0, 4)
            c1 = "0" if s == 0 else v(D1, 4)
            A(f"v_mfma_f32_16x16x32_bf16 {v(D0, 4)}, {v(fA0 + 4 * s, 4)}, {v(fB + 4 * s, 4)}, {c0}")
            if s2 < 8:
                A(f"ds_read_b128 {v(fB + 4 * s2, 4)}, {v(vKB)} offset:{47 * ROWB + 64 * s2}")
                A(f"ds_read_b128 {v(fA0 + 4 * s2, 4)}, {v(vKA0)} offset:{64 * s2}")
            A(f"v_mfma_f32_16x16x32_bf16 {v(D1, 4)}, {v(fA1 + 4 * s, 4)}, {v(fB + 4 * s, 4)}, {c1}")
            if s2 < 8:
                A(f"ds_read_b128 {v(fA1 + 4 * s2, 4)}, {v(vKA1)} offset:{64 * s2}")
        E = K + 96
        A(f"s_bitcmp1_b32 s{sWAVE}, 0")
        A(f"v_cmp_eq_u32 vcc, 0, {v(vLANE)}")
        A("s_nop 5")
        A("s_cbranch_scc0 L_exp_lo")
        seq2 = ["aa", "aa", "aa", "ba", "bb", "bb", "cb", "cc"]
        seq3 = ["aa", "aa", "aa", "aa", "aa", "ba", "bb", "bb", "bb", "bb", "cb", "cc", "cc", "cc"]
        ix = {"a": 0, "b": 1, "c": 2}
        for k, s in enumerate(seq3):
            A(f"v_cvt_pk_bf16_f32 {v(E + 8 + k)}, {v(D1 + ix[s[0]])}, {v(D1 + ix[s[1]])}")
        for k, w in enumerate((0, 4, 6, 10)):
            A(f"ds_write_b128 {v(vPW1)}, {v(E + 8 + w, 4)} offset:{16 * k}")
        for k, s in enumerate(seq2):
            A(f"v_cvt_pk_bf16_f32 {v(E + k)}, {v(D0 + ix[s[0]])}, {v(D0 + ix[s[1]])}")
        A(f"ds_write_b128 {v(vPW0)}, {v(E, 4)}")
        A(f"ds_write_b128 {v(vPW0)}, {v(E + 4, 4)} offset:16")
        A("L_exp_done:")
        T = self.tail
        T("L_exp_lo:")
        T(f"v_mov_b32_dpp {v(D1 + 3)}, {v(D1 + 3)} row_ror:1 row_mask:0x1 bank_mask:0xf")
        T(f"v_cvt_pk_bf16_f32 {v(E + 1)}, {v(D0 + 1)}, {v(D0)}")
        T(f"v_cvt_pk_bf16_f32 {v(E + 2)}, {v(D0 + 2)}, {v(D0 + 1)}")
        T(f"v_cvt_pk_bf16_f32 {v(E + 3)}, {v(D0 + 3)}, {v(D0 + 2)}")
        T(f"v_cndmask_b32 {v(E + 8)}, {v(D1 + 3)}, 0, vcc")
        T(f"v_cndmask_b32 {v(E + 9)}, {v(D1)}, {v(D1 + 3)}, vcc")
        T(f"v_cvt_pk_bf16_f32 {v(E)}, {v(D0)}, {v(E + 8)}")
        T(f"v_cvt_pk_bf16_f32 {v(E + 4)}, {v(D1)}, {v(E + 9)}")
        T(f"v_cvt_pk_bf16_f32 {v(E + 5)}, {v(D1)}, {v(D1)}")
        T(f"v_cvt_pk_bf16_f32 {v(E + 6)}, {v(D1 + 1)}, {v(D1)}")
        T(f"v_cvt_pk_bf16_f32 {v(E + 7)}, {v(D1 + 2)}, {v(D1 + 1)}")
        T(f"ds_write_b128 {v(vPW0)}, {v(E, 4)}")
        T(f"ds_write_b128 {v(vPW1)}, {v(E + 4, 4)}")
        T("s_branch L_exp_done")
        A("s_waitcnt lgkmcnt(0)")
        self.stamp("kgen2")
        A("s_barrier")
        if o.get("wpf", 2) == 4:
            A(wpf)

        def rdA(buf, rho, m):
            return [f"ds_read2_b32 {v(buf + 4 * m, 2)}, {v(vAA + m)} offset0:{64 * rho + 6} offset1:{64 * rho + 4}",
                    f"ds_read2_b32 {v(buf + 4 * m + 2, 2)}, {v(vAA + m)} offset0:{64 * rho + 2} offset1:{64 * rho}"]

        def rdB(buf, rho, n):
            return [f"ds_read_b128 {v(buf + 4 * n, 4)}, {v(vBA)} offset:{128 * (3 - rho) + 512 * (7 - n)}"]

        for m in range(8):
            for l in rdA(vA0, 0, m):
                A(l)
        A(f"s_mul_i32 s{sTMP}, s{sL}, {RS}")
        A(f"s_lshl_b32 s{sTMP + 1}, s{sWAVE}, 11")
        A(f"s_add_u32 s{sTMP}, s{sTMP}, s{sTMP + 1}")
        A(f"s_add_u32 s{sTMP}, s{sTMP}, {W_REG + O_X2}")
        A(f"v_lshl_add_u32 {v(vT)}, {v(vLANE)}, 4, s{sTMP}")
        A(f"v_lshlrev_b32 {v(vT + 1)}, {KS}, v0")
        A(f"v_add_u32 {v(vT + 1)}, {W_KEY}, {v(vT + 1)}")
        A(f"s_lshl_b32 s{sTMP}, s{sWAVE}, 2")
        A(f"s_add_u32 s{sTMP}, s{sTMP}, {L_REDK}")
        A(f"v_mov_b32 {v(vT + 3)}, s{sTMP}")
        A("s_waitcnt lgkmcnt(0)")
        self.stamp("apre")
        A("s_barrier")
        self.stamp("b3")
        if o.get("wpf", 2) == 5:
            A(wpf)
        if o.get("prio", 1):
            A("s_setprio 2")

        bufA, bufB = [vA0, vA1], [vB0, vB1]
        for n in range(7, -1, -1):
            for l in rdB(vB0, 0, n):
                A(l)
        started = set()
        for rho in range(4):
            a_, b_ = bufA[rho & 1], bufB[rho & 1]
            order = [(n - 7 + tb, tb, n) for n in range(7, -1, -1) for tb in range(7 - n, 8)]
            if rho == 3:
                order = [(n - 7 + tb, tb, n) for tb in range(8) for n in range(7 - tb, 8)]
            fill = []
            if rho + 1 < 4:
                nb_, na_ = bufB[(rho + 1) & 1], bufA[(rho + 1) & 1]
                for m in range(8):
                    fill += rdB(nb_, rho + 1, 7 - m)
                    fill += rdA(na_, rho + 1, m)
            issued = 0
            seen = set()
            done_at = {}
            for i, (m, tb, n) in enumerate(order):
                done_at[tb] = i
            for i, (m, tb, n) in enumerate(order):
                if rho == 0 and n not in seen:
                    A(f"s_waitcnt lgkmcnt({min(15, n + issued)})")
                    seen.add(n)
                elif i == 0:
                    A("s_waitcnt lgkmcnt(0)")
                acc = v(vACC + 4 * tb, 4)
                c = acc if tb in started else "0"
                started.add(tb)
                A(f"v_mfma_f32_16x16x32_bf16 {acc}, {v(a_ + 4 * m, 4)}, {v(b_ + 4 * n, 4)}, {c}")
                if i >= 1 and fill:
                    A(fill.pop(0))
                    issued += 1
                if rho == 3:
                    for t in range(7):
                        if done_at[t] + 8 == i or (i == len(order) - 1 and done_at[t] + 8 > i):
                            A(f"ds_write_b128 {v(vEW)}, {v(vACC + 4 * t, 4)} offset:{t * TBS}")
            assert not fill
        A(f"ds_write_b128 {v(vEW)}, {v(vACC + 28, 4)} offset:{7 * TBS}")
        self.stamp("conv")
        A("s_waitcnt lgkmcnt(0)")
        A("s_barrier")
        for i in range(2):
            for s in range(4):
                A(f"ds_read_b128 {v(K + 16 * i + 4 * s, 4)}, {v(vER)} offset:{s * 8 * TBS + i * TBS}")
        for i in range(2):
            A(f"s_waitcnt lgkmcnt({4 * (1 - i)})")
            b0 = K + 16 * i
            for c in range(2):
                for h in range(2):
                    A(f"v_pk_add_f32 {v(b0 + 8 * c + 2 * h, 2)}, {v(b0 + 8 * c + 2 * h, 2)}, {v(b0 + 8 * c + 4 + 2 * h, 2)}")
            for c in range(2):
                for h in range(2):
                    A(f"v_cvt_pk_bf16_f32 {v(K + 32 + 4 * i + 2 * c + h)}, {v(b0 + 8 * c + 2 * h)}, {v(b0 + 8 * c + 2 * h + 1)}")
            A(f"global_store_dwordx4 {v(vT)}, {v(K + 32 + 4 * i, 4)}, {sp(sWS)} offset:{1024 * i} sc1")
        self.stamp("x2st")
        A("s_waitcnt vmcnt(0)")
        self.stamp("x2dr")
        A("s_barrier")
        A(f"s_cmp_eq_u32 s{sWAVE}, 0")
        A("s_cbranch_scc0 L_cfin")
        for q in range(1, 4):
            A(f"v_add_u32 {v(vT + 8 + q)}, {(64 * q) << KS}, {v(vT + 1)}")
        A("s_barrier")
        self.key_calc(K, vRA, vLANE)
        A("s_mov_b64 exec, 1")
        A(f"global_store_dword {v(22)}, {v(K + 8)}, {sp(sWS)} sc1")
        A("s_mov_b64 exec, -1")
        self.stamp("key")
        A("s_waitcnt vmcnt(0)")
        self.stamp("keydr")
        k2 = vT + 4
        kl = [f"global_load_dword {v(K + q)}, {v(vT + 8 + q) if q else v(vT + 1)}, {sp(sWS)} sc1" for q in range(4)]
        for l in kl:
            A(l)
        A("s_waitcnt vmcnt(0)")
        self.poll("key", kl, [f"v_max3_u32 {v(k2)}, {v(K)}, {v(K + 1)}, {v(K + 2)}",
                              f"v_max_u32 {v(k2)}, {v(k2)}, {v(K + 3)}",
                              f"v_cmp_eq_u32 vcc, -1, {v(k2)}"])
        self.stamp("keyld")
        A(f"v_max_u32_dpp {v(k2)}, {v(k2)}, {v(k2)} quad_perm:[1,0,3,2] row_mask:0xf bank_mask:0xf")
        A(f"v_max_u32_dpp {v(k2)}, {v(k2)}, {v(k2)} quad_perm:[2,3,0,1] row_mask:0xf bank_mask:0xf")
        A(f"v_max_u32_dpp {v(k2)}, {v(k2)}, {v(k2)} row_half_mirror row_mask:0xf bank_mask:0xf")
        A(f"v_max_u32_dpp {v(k2)}, {v(k2)}, {v(k2)} row_mirror row_mask:0xf bank_mask:0xf")
        A(f"v_max_u32_dpp {v(k2)}, {v(k2)}, {v(k2)} row_bcast:15 row_mask:0xa bank_mask:0xf")
        A(f"v_max_u32_dpp {v(k2)}, {v(k2)}, {v(k2)} row_bcast:31 row_mask:0xc bank_mask:0xf")
        A("s_mov_b32 exec_lo, 0")
        A("s_brev_b32 exec_hi, 1")
        A(f"ds_write_b32 {v(vT + 3)}, {v(k2)}")
        A("s_waitcnt lgkmcnt(0)")
        A("s_barrier")
        A("L_cfin:")
        self.finish("C")

    def text(self):
        lines = self.build()
        src = open("sequential_preLN__ssm_conv_s4d__moe_arch_mod__prompt.s.ref").read()
        head = [l for l in src.split("\n") if l.startswith(";") and "@launch" not in l]
        head = head[:head.index("; Override launch geometry by editing the next line (default: block=256,")]
        out = head + [f"; @launch grid=(256,1,1) block=(512,1,1) lds={LDS_BYTES}",
                      '.amdgcn_target "amdgcn-amd-amdhsa--gfx950"', ".text", f".globl {KNAME}", ".p2align 8",
                      f".type {KNAME},@function"]
        out += [l if l.endswith(":") else "    " + l for l in lines]
        out += [".section .rodata,\"a\"", ".p2align 6", f".amdhsa_kernel {KNAME}",
                "  .amdhsa_next_free_vgpr 224", "  .amdhsa_next_free_sgpr 102", "  .amdhsa_accum_offset 224",
                "  .amdhsa_group_segment_fixed_size 0", "  .amdhsa_kernarg_size 120", "  .amdhsa_user_sgpr_count 2",
                "  .amdhsa_user_sgpr_kernarg_segment_ptr 1", "  .amdhsa_system_sgpr_workgroup_id_x 1",
                ".end_amdhsa_kernel", ""]
        return "\n".join(out)


if __name__ == "__main__":
    out = sys.argv[1]
    opts = {}
    stamp = False
    for a in sys.argv[2:]:
        if a == "stamp":
            stamp = True
        else:
            k, val = a.split("=")
            opts[k] = val if k == 'pr' else int(val)
    g = Gen(stamp, opts)
    open(out, "w").write(g.text())
    if stamp:
        open(out + ".names", "w").write(" ".join(g.allnames["R"]) + "\n" + " ".join(g.allnames["C"]))
    print(g.info, "lds", LDS_BYTES)
```

```python
import sys
import struct
from asmlib import Asm, align8

KNAME = "sequential_preLN__ssm_conv_s4d__moe_arch_mod__prompt_kernel"


def f2u(x):
    return struct.unpack("<I", struct.pack("<f", x))[0]


W_FLAG = 0x1000 + (int(__import__('os').environ.get('WOFF', '0')) << 20)
W_KEY = 0x9000 + (int(__import__('os').environ.get('WOFF', '0')) << 20)
W_FLAG2 = 0x11000 + (int(__import__('os').environ.get('WOFF', '0')) << 20)
import os
WOFF = int(os.environ.get('WOFF', '0')) << 20
W_REG = 0x38000 + WOFF
RS = 20608
O_X1, O_X2, O_SLOT, O_PART = 0, 8192, 16384, 18432
W_STAMP = 0x800000
ROWB = 544
TABC = 63 * ROWB
L_TAB = 0
L_P = 68608
PC = 8256
L_U = L_P + 2 * PC
UC = 4608
L_RED1 = (L_U + 2 * UC + 255) // 256 * 256
L_RED2 = L_RED1 + 256
L_SUMW = L_RED2 + 384
L_REDK = L_SUMW + 16
L_REDF = L_REDK + 16
LDS_BYTES = L_REDF + 256
L_EPI = 0
TBS = 1152
sX, sLA, sAI, sCR, sCI, sLDT, sD = 4, 6, 8, 10, 12, 14, 16
sWR, sWG, sWU, sWD, sOUT, sDBG, sWS = 20, 22, 24, 26, 28, 30, 32
sL, sPOS, sXCD, sWAVE, sG, sDT, sT0, sT1, sSPIN, sF = 34, 35, 36, 37, 38, 39, 40, 41, 42, 43
sODD = 44
sSELLO, sSELHI, sONES, sMASK = 46, 47, 48, 49
sWSEL = 50
sBEST, sWIN, sRP0, sRP1 = 52, 53, 54, 55
sH = 56
sE = 64
sTMP = 66
sOWN = 71
sSTAMP = 72


def sp(r):
    return f"s[{r}:{r + 1}]"


def v(r, n=1):
    return f"v{r}" if n == 1 else f"v[{r}:{r + n - 1}]"


class Gen:
    def __init__(self, stamp=False, opts=None):
        self.A = Asm()
        self.tail = Asm()
        self.stamp_on = stamp
        self.nstamp = 0
        self.names = []
        self.o = dict(opts or {})
        self.only = None
        self.role = "R"
        if "pr" in self.o:
            self.only = tuple(self.o["pr"].split("."))
            self.stamp_on = True
            self.o["probe"] = 1 if self.only[0] == "R" else 101

    def stamp(self, name):
        if not self.stamp_on:
            return
        if self.only and name != "start" and (self.role, name) != self.only:
            return
        k = self.nstamp
        self.nstamp += 1
        self.names.append(name)
        assert sSTAMP + k < 100
        self.A(f"s_memrealtime s[100:101]")
        self.A("s_waitcnt lgkmcnt(0)")
        self.A(f"s_mov_b32 s{sSTAMP + k}, s100")

    def poll(self, name, loads, check, base_exec="-1"):
        A = self.A
        for c in check:
            A(c)
        A(f"s_cbranch_vccnz L_retry_{name}")
        A(f"L_ok_{name}:")
        T = self.tail
        T(f"L_retry_{name}:")
        T(f"s_mov_b32 s{sSPIN}, 0x40000")
        T(f"L_again_{name}:")
        T(f"s_sub_u32 s{sSPIN}, s{sSPIN}, 1")
        T(f"s_cbranch_scc1 L_ok_{name}")
        T("s_mov_b64 exec, vcc")
        for l in loads:
            T(l)
        T("s_waitcnt vmcnt(0)")
        for c in check:
            T(c)
        T(f"s_mov_b64 exec, {base_exec}")
        T(f"s_cbranch_vccnz L_again_{name}")
        T(f"s_branch L_ok_{name}")

    def cmul(self, d, x, y, t):
        return [f"v_pk_mul_f32 {v(t, 2)}, {v(x, 2)}, {v(y, 2)} op_sel:[0,0] op_sel_hi:[0,1]",
                f"v_pk_fma_f32 {v(d, 2)}, {v(x, 2)}, {v(y, 2)}, {v(t, 2)} op_sel:[1,1,0] op_sel_hi:[1,0,1] neg_lo:[1,0,0]"]

    def reduce8(self, V, t):
        A = self.A
        for i in range(4):
            A(f"v_add_f32_dpp {v(V[i])}, {v(V[i])}, {v(V[i])} row_ror:8 row_mask:0xf bank_mask:0x3")
        for i in range(4):
            A(f"v_add_f32_dpp {v(V[i])}, {v(V[i + 4])}, {v(V[i + 4])} row_ror:8 row_mask:0xf bank_mask:0xc")
        for i in range(2):
            A(f"v_add_f32_dpp {v(V[i])}, {v(V[i])}, {v(V[i])} row_shl:4 row_mask:0xf bank_mask:0x5")
        for i in range(2):
            A(f"v_add_f32_dpp {v(V[i])}, {v(V[i + 2])}, {v(V[i + 2])} row_shr:4 row_mask:0xf bank_mask:0xa")
        A(f"v_permlane32_swap_b32 {v(V[0])}, {v(V[1])}")
        A(f"v_add_f32 {v(V[0])}, {v(V[0])}, {v(V[1])}")
        A(f"v_add_f32_dpp {v(V[0])}, {v(V[0])}, {v(V[0])} quad_perm:[2,3,0,1] row_mask:0xf bank_mask:0xf")
        A(f"v_mov_b32 {v(t)}, {v(V[0])}")
        A(f"v_permlane16_swap_b32 {v(V[0])}, {v(t)}")
        A(f"v_add_f32 {v(V[0])}, {v(V[0])}, {v(t)}")

    def row_stats(self, S, Q, negm, rinv, t):
        A = self.A
        A(f"v_pk_add_f32 {v(S, 2)}, {v(S, 2)}, {v(S + 2, 2)}")
        A(f"v_pk_add_f32 {v(Q, 2)}, {v(Q, 2)}, {v(Q + 2, 2)}")
        A(f"v_add_f32 {v(S)}, {v(S)}, {v(S + 1)}")
        A(f"v_add_f32 {v(Q)}, {v(Q)}, {v(Q + 1)}")
        A(f"v_mul_f32 {v(S)}, {hex(f2u(1 / 512))}, {v(S)}")
        A(f"v_mul_f32 {v(Q)}, {hex(f2u(1 / 512))}, {v(Q)}")
        A(f"v_fma_f32 {v(Q)}, -{v(S)}, {v(S)}, {v(Q)}")
        A(f"v_max_f32 {v(Q)}, 0, {v(Q)}")
        A(f"v_cvt_pk_bf16_f32 {v(t)}, -{v(S)}, {v(Q)}")
        A(f"v_and_b32 {v(Q)}, s{sMASK}, {v(t)}")
        A(f"v_add_f32 {v(Q)}, {hex(f2u(1e-5))}, {v(Q)}")
        A(f"v_cvt_pk_bf16_f32 {v(Q)}, {v(Q)}, {v(Q)}")
        A(f"v_and_b32 {v(Q)}, s{sMASK}, {v(Q)}")
        A(f"v_sqrt_f32 {v(Q)}, {v(Q)}")
        A(f"v_lshlrev_b32 {v(negm)}, 16, {v(t)}")
        A(f"v_cvt_pk_bf16_f32 {v(Q)}, {v(Q)}, {v(Q)}")
        A(f"v_and_b32 {v(Q)}, s{sMASK}, {v(Q)}")
        A(f"v_rcp_f32 {v(rinv)}, {v(Q)}")

    def spread(self, val, dst, t):
        A = self.A
        for r in range(4):
            A(f"v_mov_b32_dpp {v(t + r)}, {v(val)} row_newbcast:{4 + r} row_mask:0xf bank_mask:0xf")
        for r in range(4):
            A(f"v_cndmask_b32_dpp {v(dst + r)}, {v(val)}, {v(t + r)}, vcc row_newbcast:{r} row_mask:0xf bank_mask:0xf")

    def key_calc(self, K, vRA, vLANE):
        A = self.A
        A(f"v_mov_b32 {v(K + 14)}, {L_SUMW}")
        A(f"ds_read_b128 {v(K, 4)}, {v(vRA)} offset:{L_RED2 - L_RED1}")
        A(f"ds_read_b128 {v(K + 4, 4)}, {v(vRA)} offset:{L_RED2 - L_RED1 + 128}")
        A(f"ds_read_b128 {v(K + 8, 4)}, {v(vRA)} offset:{L_RED2 - L_RED1 + 256}")
        A(f"ds_read_b32 {v(K + 15)}, {v(K + 14)}")
        A(f"s_lshl_b32 s{sTMP}, s{sL}, 3")
        A(f"s_sub_u32 s{sTMP}, 2047, s{sTMP}")
        A(f"v_and_b32 {v(K + 14)}, 7, {v(vLANE)}")
        A(f"v_sub_u32 {v(K + 14)}, s{sTMP}, {v(K + 14)}")
        A("s_waitcnt lgkmcnt(2)")
        self.row_stats(K, K + 4, K + 12, K + 13, K + 28)
        A("s_waitcnt lgkmcnt(0)")
        A(f"v_pk_add_f32 {v(K + 8, 2)}, {v(K + 8, 2)}, {v(K + 10, 2)}")
        A(f"v_add_f32 {v(K + 8)}, {v(K + 8)}, {v(K + 9)}")
        A(f"v_fmac_f32 {v(K + 8)}, {v(K + 12)}, {v(K + 15)}")
        A(f"v_mul_f32 {v(K + 8)}, {v(K + 8)}, {v(K + 13)}")
        A(f"v_ashrrev_i32 {v(K + 9)}, 31, {v(K + 8)}")
        A(f"v_or_b32 {v(K + 9)}, 0x80000000, {v(K + 9)}")
        A(f"v_xor_b32 {v(K + 8)}, {v(K + 8)}, {v(K + 9)}")
        A(f"v_and_b32 {v(K + 8)}, 0xfffff800, {v(K + 8)}")
        A(f"v_or_b32 {v(K + 8)}, {v(K + 8)}, {v(K + 14)}")
        A(f"v_min_u32 {v(K + 8)}, -2, {v(K + 8)}")
        A(f"v_max_u32_dpp {v(K + 8)}, {v(K + 8)}, {v(K + 8)} quad_perm:[1,0,3,2] row_mask:0xf bank_mask:0xf")
        A(f"v_max_u32_dpp {v(K + 8)}, {v(K + 8)}, {v(K + 8)} quad_perm:[2,3,0,1] row_mask:0xf bank_mask:0xf")
        A(f"v_max_u32_dpp {v(K + 8)}, {v(K + 8)}, {v(K + 8)} row_half_mirror row_mask:0xf bank_mask:0xf")

    def finish(self, role):
        A = self.A
        o = self.o
        if self.stamp_on:
            self.stamp("end")
            self.allnames[role] = self.names
        if self.stamp_on and "probe" in o:
            k = o["probe"]
            if k == 98 and role == "R":
                A(f"s_getreg_b32 s{sTMP}, hwreg(HW_REG_XCC_ID, 0, 4)")
                A(f"s_sub_u32 s{sTMP}, s{sTMP}, s2")
                A(f"s_and_b32 s{sTMP}, s{sTMP}, 7")
                A(f"s_mul_i32 s{sTMP}, s{sTMP}, 1000")
                A(f"s_add_u32 s{sTMP}, s{sTMP}, 2000")
            elif k == 99 and role == "R":
                A("s_memtime s[96:97]")
                A("s_waitcnt lgkmcnt(0)")
                A("s_sub_u32 s96, s96, s98")
                A(f"s_sub_u32 s97, s{sSTAMP + self.nstamp - 1}, s{sSTAMP}")
                A("s_mov_b64 exec, -1")
                A("v_cvt_f32_u32 v2, s96")
                A("v_cvt_f32_u32 v3, s97")
                A("v_rcp_f32 v3, v3")
                A("s_nop 1")
                A("v_mul_f32 v2, v2, v3")
                A("v_mul_f32 v2, 0x43c80000, v2")
                A("v_cvt_u32_f32 v2, v2")
                A("s_nop 1")
                A(f"v_readfirstlane_b32 s{sTMP}, v2")
                A(f"s_add_u32 s{sTMP}, s{sTMP}, 2000")
            elif k < 0 and role == "R":
                A(f"s_mov_b32 s{sTMP}, {-k}")
            elif k >= 0 and (k >= 100) == (role == "C"):
                A(f"s_sub_u32 s{sTMP}, s{sSTAMP + k % 100}, s{sSTAMP}")
                A(f"s_cmp_lt_u32 s{sTMP}, 3000")
                A(f"s_cselect_b32 s{sTMP}, s{sTMP}, 0")
                A(f"s_mul_i32 s{sTMP}, s{sTMP}, 20")
                A(f"s_add_u32 s{sTMP}, s{sTMP}, 2000")
                if role == "C":
                    A(f"s_cmp_eq_u32 s{sWAVE}, 0")
                    A(f"s_cselect_b32 s{sTMP}, s{sTMP}, 0")
            else:
                A(f"s_mov_b32 s{sTMP}, 0")
            A(f"L_spin{role}:")
            A("s_memrealtime s[100:101]")
            A("s_waitcnt lgkmcnt(0)")
            A(f"s_sub_u32 s100, s100, s{sSTAMP}")
            A(f"s_cmp_lt_u32 s100, s{sTMP}")
            A(f"s_cbranch_scc1 L_spin{role}")
        elif self.stamp_on:
            A("s_mov_b64 exec, 1")
            A(f"s_lshl_b32 s{sTMP}, s2, 3")
            A(f"s_add_u32 s{sTMP}, s{sTMP}, s{sWAVE}")
            if role == "C":
                A(f"s_add_u32 s{sTMP}, s{sTMP}, 4")
            A(f"s_lshl_b32 s{sTMP}, s{sTMP}, 7")
            A(f"s_add_u32 s{sTMP}, s{sTMP}, {W_STAMP}")
            A(f"v_mov_b32 v1, s{sTMP}")
            for k in range(self.nstamp):
                A(f"v_mov_b32 v2, s{sSTAMP + k}")
                A(f"global_store_dword v1, v2, {sp(sWS)} offset:{4 * k}")
        A("s_endpgm")

    def build(self):
        A = self.A
        self.allnames = {}
        A(f"{KNAME}:")
        A("s_cmp_ge_u32 s2, 256")
        A("s_cbranch_scc1 L_end")
        self.stamp("start")
        if self.o.get("probe", 0) == 99:
            A("s_memtime s[98:99]")
        if self.o.get("codepf", 1):
            A(f"s_getpc_b64 {sp(sE)}")
            A("L_pc:")
            A("v_lshlrev_b32 v2, 5, v0")
            A(f"v_min_u32 v2, L_codeend-L_pc-4, v2")
            A(f"global_load_dword v3, v2, {sp(sE)}")
        A("s_load_dwordx16 s[4:19], s[0:1], 0")
        A("s_load_dwordx8 s[20:27], s[0:1], 64")
        A("s_load_dwordx4 s[28:31], s[0:1], 96")
        A("s_load_dwordx2 s[32:33], s[0:1], 112")
        A("v_lshrrev_b32 v4, 6, v0")
        A(f"s_and_b32 s{sXCD}, s2, 7")
        A(f"v_readfirstlane_b32 s{sWAVE}, v4")
        A(f"s_lshr_b32 s{sPOS}, s2, 3")
        A(f"s_lshl_b32 s{sL}, s{sXCD}, 5")
        A(f"s_add_u32 s{sL}, s{sL}, s{sPOS}")
        A("v_and_b32 v1, 63, v0")
        A(f"s_mov_b32 s{sMASK}, 0xffff0000")
        A(f"s_cmp_ge_u32 s{sWAVE}, 4")
        A("s_cbranch_scc1 L_chan")
        self.rows()
        self.names = self.names[:1]
        self.nstamp = min(self.nstamp, 1)
        A(".p2align 6")
        self.role = "C"
        self.chans()
        A("L_end:")
        A("s_endpgm")
        for l in self.tail.L:
            A(l)
        A("L_codeend:")
        lines, nops = A.padded()
        lines, nbytes, promoted, missed = align8(lines)
        self.info = dict(nops=nops, bytes=nbytes, promoted=promoted, missed=missed, lines=len(lines))
        return lines

    def rows(self):
        A = self.A
        o = self.o
        vLANE = 1
        vX, vU, vD, vWR = 212, 10, 18, 20
        vREG, vRD, vAUX = 22, 23, 24
        vKEY, vSW, vRA, vFL, vUW = 26, 27, 28, 29, 30
        vT = 32
        vWG, vWD = 40, 72
        vY = 88
        vONE = 96
        K = 100
        L2E = 1.4426950408889634
        A(f"v_lshrrev_b32 {v(vT)}, 1, v0")
        A(f"v_and_b32 {v(vT + 1)}, 1, v0")
        A(f"v_lshlrev_b32 {v(vT + 2)}, 3, {v(vT)}")
        A(f"s_lshl_b32 s{sT0}, s{sL}, 13")
        A(f"v_lshl_add_u32 {v(vRD)}, {v(vT + 1)}, 12, {v(vT + 2)}")
        A(f"v_add_u32 {v(vRD)}, s{sT0}, {v(vRD)}")
        A(f"s_mul_i32 s{sOWN}, s{sL}, {RS}")
        A(f"s_add_u32 s{sOWN}, s{sOWN}, {W_REG}")
        A(f"s_add_u32 s{sT0}, s{sOWN}, 4096")
        A(f"v_lshl_add_u32 {v(vREG)}, v0, 4, s{sT0}")
        A(f"v_lshlrev_b32 {v(vT + 3)}, 4, {v(vLANE)}")
        nt = ' nt' if o.get('ntx', 1) else ''
        A("s_waitcnt lgkmcnt(0)")
        self.stamp("karg")
        for r in range(4):
            A(f"global_load_dwordx2 {v(vX + 2 * r, 2)}, {v(vRD)}, {sp(sX)} offset:{1024 * r}{nt}")
        A(f"s_load_dword s{sG}, {sp(sWS)}, 0")
        A(f"global_load_dwordx2 {v(vD, 2)}, {v(vT + 2)}, {sp(sD)}")
        A(f"global_load_dwordx2 {v(vWR, 2)}, {v(vT + 2)}, {sp(sWR)}")
        A(f"global_load_dwordx4 {v(vONE, 4)}, {v(vT + 3)}, {sp(sWR)}")
        A(f"s_mov_b32 s{sODD}, 0xaaaaaaaa")
        A(f"s_mov_b32 s{sODD + 1}, 0xaaaaaaaa")
        A(f"s_mov_b32 s{sSELLO}, 0x3f80")
        A(f"s_mov_b32 s{sSELHI}, 0x3f800000")
        A(f"s_mov_b32 s{sONES}, 0x3f803f80")
        A(f"s_and_b32 s{sTMP}, s{sL}, 1")
        A(f"s_lshl_b32 s{sTMP}, s{sTMP}, 12")
        A(f"s_lshr_b32 s{sTMP + 1}, s{sL}, 1")
        A(f"s_lshl_b32 s{sTMP + 1}, s{sTMP + 1}, 5")
        A(f"s_add_u32 s{sTMP}, s{sTMP}, s{sTMP + 1}")
        A(f"s_add_u32 s{sTMP}, s{sTMP}, {W_REG + O_X1}")
        A(f"v_mul_u32_u24 {v(vAUX)}, {RS}, {v(vT)}")
        A(f"v_lshl_add_u32 {v(vAUX)}, {v(vT + 1)}, 4, {v(vAUX)}")
        A(f"v_add_u32 {v(vAUX)}, s{sTMP}, {v(vAUX)}")
        A(f"v_add_u32 {v(vAUX + 1)}, {128 * RS}, {v(vAUX)}")
        FS = o.get("fs", 7)
        KS = o.get("ks", 5)
        A(f"v_lshlrev_b32 {v(vFL)}, {FS}, {v(vT)}")
        A(f"v_add_u32 {v(vFL)}, {W_FLAG}, {v(vFL)}")
        A(f"v_add_u32 {v(vFL + 2)}, {128 << FS}, {v(vFL)}")
        A(f"s_lshl_b32 s{sT0}, s{sL}, {FS}")
        A(f"s_add_u32 s{sT0}, s{sT0}, {W_FLAG}")
        A(f"v_lshl_add_u32 {v(vKEY)}, {v(vLANE)}, 4, s{sT0}")
        A(f"v_lshlrev_b32 {v(vSW)}, 6, {v(vT + 1)}")
        A(f"v_and_b32 {v(vT + 3)}, 4, {v(vLANE)}")
        A(f"v_lshl_add_u32 {v(vSW)}, {v(vT + 3)}, 3, {v(vSW)}")
        A(f"v_and_b32 {v(vT + 3)}, 8, {v(vLANE)}")
        A(f"v_lshl_add_u32 {v(vSW)}, {v(vT + 3)}, 4, {v(vSW)}")
        A(f"v_lshrrev_b32 {v(vT + 3)}, 5, {v(vLANE)}")
        A(f"v_lshl_add_u32 {v(vSW)}, {v(vT + 3)}, 4, {v(vSW)}")
        A(f"s_lshl_b32 s{sTMP}, s{sWAVE}, 2")
        A(f"s_add_u32 s{sTMP}, s{sTMP}, {L_RED1}")
        A(f"v_add_u32 {v(vSW)}, s{sTMP}, {v(vSW)}")
        A(f"v_and_b32 {v(vT + 3)}, 7, {v(vLANE)}")
        A(f"v_lshlrev_b32 {v(vRA)}, 4, {v(vT + 3)}")
        A(f"v_add_u32 {v(vRA)}, {L_RED1}, {v(vRA)}")
        A(f"v_lshlrev_b32 {v(vUW)}, 3, v0")
        A(f"v_mov_b32 {v(K)}, 0")
        A(f"v_mov_b32 {v(K + 1)}, 0")
        A(f"v_min_u32 {v(vT + 3)}, 472, {v(vUW)}")
        A(f"v_add_u32 {v(vT + 3)}, {L_U}, {v(vT + 3)}")
        A(f"v_min_u32 {v(vT + 4)}, 56, {v(vUW)}")
        A(f"v_add_u32 {v(vT + 4)}, {L_P}, {v(vT + 4)}")
        A(f"ds_write2st64_b64 {v(vT + 3)}, {v(K, 2)}, {v(K, 2)} offset0:0 offset1:9")
        A(f"ds_write_b64 {v(vT + 4)}, {v(K, 2)}")
        A(f"ds_write_b64 {v(vT + 4)}, {v(K, 2)} offset:{PC}")
        A(f"v_add_u32 {v(vUW)}, {L_U + 480}, {v(vUW)}")

        V = [K + i for i in range(8)]
        A("s_waitcnt vmcnt(3)")
        self.stamp("x")
        for r in range(4):
            A(f"v_dot2_f32_bf16 {v(V[r])}, {v(vX + 2 * r)}, s{sONES}, 0")
        for r in range(4):
            A(f"v_dot2_f32_bf16 {v(V[4 + r])}, {v(vX + 2 * r)}, {v(vX + 2 * r)}, 0")
        for r in range(4):
            A(f"v_dot2_f32_bf16 {v(V[r])}, {v(vX + 2 * r + 1)}, s{sONES}, {v(V[r])}")
        for r in range(4):
            A(f"v_dot2_f32_bf16 {v(V[4 + r])}, {v(vX + 2 * r + 1)}, {v(vX + 2 * r + 1)}, {v(V[4 + r])}")
        self.reduce8(V, K + 8)
        A(f"ds_write_b32 {v(vSW)}, {v(V[0])}")
        A("s_waitcnt lgkmcnt(0)")
        A("s_barrier")
        self.stamp("b1")
        A(f"ds_read_b128 {v(K, 4)}, {v(vRA)}")
        A(f"ds_read_b128 {v(K + 4, 4)}, {v(vRA)} offset:128")
        A(f"s_add_u32 s{sG}, s{sG}, 0x9e3779b9")
        fw = o.get("fw", 1)
        for k in range(4 if fw else 1):
            A(f"v_mov_b32 {v(K + 28 + k)}, s{sG}")
        A(f"s_cmp_eq_u32 s{sWAVE}, 0")
        if fw:
            A(f"s_cselect_b64 exec, {(1 << ((1 << FS) // 16)) - 1}, 0")
            A(f"global_store_dwordx4 {v(vKEY)}, {v(K + 28, 4)}, {sp(sWS)} sc1")
        else:
            A("s_cselect_b64 exec, 1, 0")
            A(f"global_store_dword {v(vKEY)}, {v(K + 28)}, {sp(sWS)} sc1")
        A("s_mov_b64 exec, -1")
        A(f"s_mov_b64 vcc, {sp(sODD)}")
        A("s_waitcnt lgkmcnt(0)")
        vNM, vRI = K + 16, K + 20
        self.row_stats(K, K + 4, K + 10, K + 11, K + 12)
        self.spread(K + 10, vNM, K + 24)
        Dd = K + 32
        for c in range(4):
            for r in range(4):
                A(f"v_dot2_f32_bf16 {v(Dd + 4 * c + r)}, {v(vX + 2 * r + (c >> 1))}, s{sSELHI if c & 1 else sSELLO}, {v(vNM + r)}")
        self.spread(K + 11, vRI, K + 24)
        Pk = K + 48
        for half in range(2):
            ks = range(4 * half, 4 * half + 4)
            for k in ks:
                A(f"v_cvt_pk_bf16_f32 {v(Pk + k)}, {v(Dd + 2 * k)}, {v(Dd + 2 * k + 1)}")
            for k in ks:
                A(f"v_lshlrev_b32 {v(Dd + 2 * k)}, 16, {v(Pk + k)}")
                A(f"v_and_b32 {v(Dd + 2 * k + 1)}, s{sMASK}, {v(Pk + k)}")
            for k in ks:
                A(f"v_pk_mul_f32 {v(Dd + 2 * k, 2)}, {v(Dd + 2 * k, 2)}, {v(vRI + 2 * (k & 1), 2)}")
            for k in ks:
                A(f"v_cvt_pk_bf16_f32 {v(vU + k)}, {v(Dd + 2 * k)}, {v(Dd + 2 * k + 1)}")
            A(f"global_store_dwordx4 {v(vREG)}, {v(vU + 4 * half, 4)}, {sp(sWS)} offset:{-4096 + 4096 * half} sc1")
        self.stamp("x1st")
        fl = [f"global_load_dword {v(vT + 4)}, {v(vFL)}, {sp(sWS)} sc1",
              f"global_load_dword {v(vT + 5)}, {v(vFL + 2)}, {sp(sWS)} sc1"]
        flchk = [f"v_xor_b32 {v(vT + 6)}, s{sG}, {v(vT + 4)}",
                 f"v_xor_b32 {v(vT + 7)}, s{sG}, {v(vT + 5)}",
                 f"v_or_b32 {v(vT + 6)}, {v(vT + 6)}, {v(vT + 7)}",
                 f"v_cmp_ne_u32 vcc, 0, {v(vT + 6)}"]
        flmode = o.get("flmode", 1)
        if flmode == 1:
            A("s_waitcnt vmcnt(0)")
        if flmode < 2:
            for l in fl:
                A(l)
        A("s_barrier")
        if flmode == 2:
            for l in fl:
                A(l)
        A("s_waitcnt vmcnt(0)")
        self.stamp("x1dr")
        self.poll("flag", fl, flchk)
        xl = [f"global_load_dwordx4 {v(vY, 4)}, {v(vAUX)}, {sp(sWS)} sc1",
              f"global_load_dwordx4 {v(vY + 4, 4)}, {v(vAUX + 1)}, {sp(sWS)} sc1"]
        for l in xl:
            A(l)
        self.stamp("flag")
        A(f"s_mul_i32 s{sF}, s{sXCD}, 14")
        A(f"s_add_u32 s{sF}, s{sF}, s{sPOS}")
        A(f"s_bitcmp1_b32 s{sWAVE}, 0")
        A(f"s_cselect_b64 {sp(sWSEL)}, {sp(sWU)}, {sp(sWG)}")
        A(f"s_lshr_b32 s{sTMP + 1}, s{sWAVE}, 1")
        A(f"s_mul_i32 s{sTMP + 1}, s{sTMP + 1}, {256 * 3584}")
        A(f"s_lshl_b32 s{sTMP + 2}, s{sF}, 5")
        A(f"s_add_u32 s{sTMP + 1}, s{sTMP + 1}, s{sTMP + 2}")
        vWA = K + 8
        A(f"v_lshrrev_b32 {v(vWA)}, 1, {v(vLANE)}")
        A(f"v_mul_u32_u24 {v(vWA)}, {8 * 3584}, {v(vWA)}")
        A(f"v_lshl_add_u32 {v(vWA)}, {v(vT + 1)}, 4, {v(vWA)}")
        A(f"v_add_u32 {v(vWA)}, s{sTMP + 1}, {v(vWA)}")
        A(f"v_add_u32 {v(vWA + 2)}, {7 * 3584}, {v(vWA)}")
        A(f"v_add_u32 {v(vWA + 1)}, {4 * 3584}, {v(vWA)}")
        A(f"v_add_u32 {v(vWA)}, 3584, {v(vWA)}")
        A(f"s_lshl_b32 s{sTMP + 1}, s{sF}, 14")
        A(f"s_add_u32 s{sTMP + 1}, s{sTMP + 1}, 4096")
        A(f"v_lshl_add_u32 {v(vWA + 3)}, v0, 2, s{sTMP + 1}")
        A(f"v_add_u32 {v(vWA + 4)}, 8192, {v(vWA + 3)}")
        A(f"v_dot2_f32_bf16 {v(K + 4)}, {v(vONE)}, s{sONES}, 0")
        for k in range(1, 4):
            A(f"v_dot2_f32_bf16 {v(K + 4)}, {v(vONE + k)}, s{sONES}, {v(K + 4)}")
        A(f"v_mov_b32 {v(K + 5)}, {L_SUMW}")
        A(f"s_mov_b32 s{sRP0}, 0x05040100")
        A(f"s_mov_b32 s{sRP1}, 0x07060302")
        for sh in (8, 4, 2, 1):
            A(f"v_add_f32_dpp {v(K + 4)}, {v(K + 4)}, {v(K + 4)} row_ror:{sh} row_mask:0xf bank_mask:0xf")
        A(f"v_add_f32_dpp {v(K + 4)}, {v(K + 4)}, {v(K + 4)} row_bcast:15 row_mask:0xa bank_mask:0xf")
        A(f"v_add_f32_dpp {v(K + 4)}, {v(K + 4)}, {v(K + 4)} row_bcast:31 row_mask:0xc bank_mask:0xf")
        A("s_mov_b32 exec_lo, 0")
        A("s_brev_b32 exec_hi, 1")
        A(f"ds_write_b32 {v(K + 5)}, {v(K + 4)}")
        A("s_mov_b64 exec, -1")
        A("s_barrier")
        A("s_waitcnt vmcnt(0)")
        chk8 = [f"v_max3_u32 {v(vT + 6)}, {v(vY)}, {v(vY + 1)}, {v(vY + 2)}",
                f"v_max3_u32 {v(vT + 7)}, {v(vY + 3)}, {v(vY + 4)}, {v(vY + 5)}",
                f"v_max3_u32 {v(vT + 6)}, {v(vT + 6)}, {v(vY + 6)}, {v(vY + 7)}",
                f"v_max_u32 {v(vT + 6)}, {v(vT + 6)}, {v(vT + 7)}",
                f"v_cmp_eq_u32 vcc, -1, {v(vT + 6)}"]
        self.poll("x1", xl, chk8)
        self.stamp("x1ld")
        A(f"ds_write2st64_b64 {v(vUW)}, {v(vY, 2)}, {v(vY + 2, 2)} offset0:0 offset1:9")
        A(f"ds_write2st64_b64 {v(vUW)}, {v(vY + 4, 2)}, {v(vY + 6, 2)} offset0:4 offset1:13")
        A("s_waitcnt lgkmcnt(0)")
        A("s_barrier")

        A(f"s_cmp_lt_u32 s{sPOS}, 14")
        A("s_cbranch_scc0 L_now")
        for k in range(8):
            A(f"global_load_dwordx4 {v(vWG + 4 * k, 4)}, {v(vWA + k // 3)}, {sp(sWSEL)} offset:{(k % 3 - 1) * 3584}")
        self.stamp("wq1")
        if o.get("wwait"):
            A("s_waitcnt vmcnt(0)")
            self.stamp("wq1w")
        for k in range(16):
            A(f"global_load_dword {v(vWD + k)}, {v(vWA + 3 + (k >> 3))}, {sp(sWD)} offset:{((k & 7) - 4) * 1024}")
        self.stamp("wq2")
        if o.get("wwait"):
            A("s_waitcnt vmcnt(0)")
            self.stamp("wq2w")
        A("L_now:")
        A(f"v_and_b32 {v(vT + 3)}, 0xfe, v0")
        A(f"v_mul_u32_u24 {v(vAUX)}, {RS}, {v(vT + 3)}")
        A(f"v_lshl_add_u32 {v(vAUX)}, {v(vT + 1)}, 4, {v(vAUX)}")
        A(f"s_lshl_b32 s{sTMP}, s{sL}, 5")
        A(f"s_add_u32 s{sTMP}, s{sTMP}, {W_REG + O_X2}")
        A(f"v_add_u32 {v(vAUX)}, s{sTMP}, {v(vAUX)}")
        A(f"v_add_u32 {v(vAUX + 1)}, {RS}, {v(vAUX)}")
        Tt, Xf = K + 40, K + 56
        Df = K + 72
        for k in range(8):
            A(f"v_lshlrev_b32 {v(Tt + 2 * k)}, 16, {v(vU + k)}")
            A(f"v_and_b32 {v(Tt + 2 * k + 1)}, s{sMASK}, {v(vU + k)}")
        A(f"v_lshlrev_b32 {v(Df)}, 16, {v(vD)}")
        A(f"v_and_b32 {v(Df + 1)}, s{sMASK}, {v(vD)}")
        A(f"v_lshlrev_b32 {v(Df + 2)}, 16, {v(vD + 1)}")
        A(f"v_and_b32 {v(Df + 3)}, s{sMASK}, {v(vD + 1)}")
        for k in range(8):
            c = k >> 1
            sel = "op_sel:[1,0] op_sel_hi:[1,1]" if c & 1 else "op_sel_hi:[0,1]"
            A(f"v_pk_mul_f32 {v(Tt + 2 * k, 2)}, {v(Df + (c & 2), 2)}, {v(Tt + 2 * k, 2)} {sel}")
        for k in range(8):
            A(f"v_cvt_pk_bf16_f32 {v(Xf + k)}, {v(Tt + 2 * k)}, {v(Tt + 2 * k + 1)}")
        for k in range(8):
            A(f"v_lshlrev_b32 {v(Tt + 2 * k)}, 16, {v(Xf + k)}")
            A(f"v_and_b32 {v(Tt + 2 * k + 1)}, s{sMASK}, {v(Xf + k)}")
        for r in range(4):
            for c in range(4):
                src = v(vX + 2 * r + (c >> 1))
                if c & 1:
                    A(f"v_and_b32 {v(Xf + 4 * c + r)}, s{sMASK}, {src}")
                else:
                    A(f"v_lshlrev_b32 {v(Xf + 4 * c + r)}, 16, {src}")
        self.stamp("shadow")
        A("s_barrier")
        A("s_barrier")
        self.stamp("b4b")
        for l in xl:
            A(l)
        A("s_waitcnt vmcnt(0)")
        self.poll("x2", xl, chk8)
        self.stamp("x2ld")

        for k in range(8):
            A(f"v_dot2_f32_bf16 {v(Tt + 2 * k)}, {v(vY + k)}, s{sSELLO}, {v(Tt + 2 * k)}")
            A(f"v_dot2_f32_bf16 {v(Tt + 2 * k + 1)}, {v(vY + k)}, s{sSELHI}, {v(Tt + 2 * k + 1)}")
        for k in range(8):
            A(f"v_cvt_pk_bf16_f32 {v(vY + k)}, {v(Tt + 2 * k)}, {v(Tt + 2 * k + 1)}")
        for k in range(8):
            A(f"v_dot2_f32_bf16 {v(Xf + 2 * k)}, {v(vY + k)}, s{sSELLO}, {v(Xf + 2 * k)}")
            A(f"v_dot2_f32_bf16 {v(Xf + 2 * k + 1)}, {v(vY + k)}, s{sSELHI}, {v(Xf + 2 * k + 1)}")
        vH = vX
        for cp in range(2):
            for r in range(4):
                A(f"v_cvt_pk_bf16_f32 {v(vH + 2 * r + cp)}, {v(Xf + 8 * cp + r)}, {v(Xf + 8 * cp + 4 + r)}")
        Rr = [K + 8 + i for i in range(4)]
        for cp in range(2):
            for r in range(4):
                A(f"v_dot2_f32_bf16 {v(V[r])}, {v(vH + 2 * r + cp)}, s{sONES}, {v(V[r]) if cp else 0}")
            for r in range(4):
                A(f"v_dot2_f32_bf16 {v(V[4 + r])}, {v(vH + 2 * r + cp)}, {v(vH + 2 * r + cp)}, {v(V[4 + r]) if cp else 0}")
            for r in range(4):
                A(f"v_dot2_f32_bf16 {v(Rr[r])}, {v(vH + 2 * r + cp)}, {v(vWR + cp)}, {v(Rr[r]) if cp else 0}")
        for i in range(4):
            A(f"v_add_f32_dpp {v(V[i])}, {v(V[i])}, {v(V[i])} row_ror:8 row_mask:0xf bank_mask:0x3")
        for i in range(4):
            A(f"v_add_f32_dpp {v(V[i])}, {v(V[i + 4])}, {v(V[i + 4])} row_ror:8 row_mask:0xf bank_mask:0xc")
        for i in range(2):
            A(f"v_add_f32_dpp {v(Rr[i])}, {v(Rr[i])}, {v(Rr[i])} row_shl:4 row_mask:0xf bank_mask:0x5")
        for i in range(2):
            A(f"v_add_f32_dpp {v(Rr[i])}, {v(Rr[i + 2])}, {v(Rr[i + 2])} row_shr:4 row_mask:0xf bank_mask:0xa")
        for i in range(2):
            A(f"v_add_f32_dpp {v(V[i])}, {v(V[i])}, {v(V[i])} row_shl:4 row_mask:0xf bank_mask:0x5")
        for i in range(2):
            A(f"v_add_f32_dpp {v(V[i])}, {v(V[i + 2])}, {v(V[i + 2])} row_shr:4 row_mask:0xf bank_mask:0xa")
        A(f"v_permlane32_swap_b32 {v(Rr[0])}, {v(Rr[1])}")
        A(f"v_and_b32 {v(K + 13)}, 0xffffff7f, {v(vSW)}")
        A(f"v_permlane32_swap_b32 {v(V[0])}, {v(V[1])}")
        A(f"v_add_f32 {v(Rr[0])}, {v(Rr[0])}, {v(Rr[1])}")
        A(f"v_add_f32 {v(V[0])}, {v(V[0])}, {v(V[1])}")
        A(f"s_mov_b64 vcc, {sp(sODD)}")
        A(f"v_add_f32_dpp {v(Rr[0])}, {v(Rr[0])}, {v(Rr[0])} row_ror:8 row_mask:0xf bank_mask:0xf")
        A(f"v_add_f32_dpp {v(V[0])}, {v(V[0])}, {v(V[0])} quad_perm:[2,3,0,1] row_mask:0xf bank_mask:0xf")
        A(f"v_mov_b32 {v(V[1])}, {v(V[0])}")
        A(f"v_add_f32_dpp {v(Rr[0])}, {v(Rr[0])}, {v(Rr[0])} quad_perm:[2,3,0,1] row_mask:0xf bank_mask:0xf")
        A(f"v_mov_b32 {v(Rr[1])}, {v(Rr[0])}")
        A(f"v_permlane16_swap_b32 {v(V[0])}, {v(V[1])}")
        A(f"v_add_f32 {v(V[0])}, {v(V[0])}, {v(V[1])}")
        A(f"v_permlane16_swap_b32 {v(Rr[0])}, {v(Rr[1])}")
        A(f"v_add_f32 {v(Rr[0])}, {v(Rr[0])}, {v(Rr[1])}")
        A(f"ds_write_b32 {v(vSW)}, {v(V[0])} offset:{L_RED2 - L_RED1}")
        A(f"ds_write_b32 {v(K + 13)}, {v(Rr[0])} offset:{L_RED2 - L_RED1 + 256}")
        A("s_waitcnt lgkmcnt(0)")
        A("s_barrier")
        self.stamp("b5")
        Hf, Dd = Xf, Tt
        self.key_calc(K, vRA, vLANE)
        self.spread(K + 12, vNM, K + 24)
        A(f"v_readfirstlane_b32 s{sBEST}, {v(K + 8)}")
        for r in range(4):
            for cp in range(2):
                A(f"v_lshlrev_b32 {v(Hf + 4 * r + 2 * cp)}, 16, {v(vH + 2 * r + cp)}")
                A(f"v_and_b32 {v(Hf + 4 * r + 2 * cp + 1)}, s{sMASK}, {v(vH + 2 * r + cp)}")
        self.spread(K + 13, vRI, K + 24)
        for k in range(8):
            r = k >> 1
            sel = "op_sel:[1,0] op_sel_hi:[1,1]" if r & 1 else "op_sel_hi:[0,1]"
            A(f"v_pk_add_f32 {v(Dd + 2 * k, 2)}, {v(vNM + (r & 2), 2)}, {v(Hf + 2 * k, 2)} {sel}")
        vX2 = vU
        for k in range(8):
            A(f"v_cvt_pk_bf16_f32 {v(vX2 + k)}, {v(Dd + 2 * k)}, {v(Dd + 2 * k + 1)}")
        for k in range(8):
            A(f"v_lshlrev_b32 {v(Dd + 2 * k)}, 16, {v(vX2 + k)}")
            A(f"v_and_b32 {v(Dd + 2 * k + 1)}, s{sMASK}, {v(vX2 + k)}")
        for k in range(8):
            r = k >> 1
            sel = "op_sel:[1,0] op_sel_hi:[1,1]" if r & 1 else "op_sel_hi:[0,1]"
            A(f"v_pk_mul_f32 {v(Dd + 2 * k, 2)}, {v(vRI + (r & 2), 2)}, {v(Dd + 2 * k, 2)} {sel}")
        for k in range(8):
            A(f"v_cvt_pk_bf16_f32 {v(vX2 + k)}, {v(Dd + 2 * k)}, {v(Dd + 2 * k + 1)}")
        A(f"s_andn2_b32 s{sTMP}, 7, s{sBEST}")
        A(f"s_and_b32 s{sTMP + 1}, s{sTMP}, 3")
        A(f"s_lshl_b32 s{sTMP + 2}, s{sTMP + 1}, 1")
        A(f"s_not_b64 {sp(sE)}, {sp(sODD)}")
        A(f"s_cmp_ge_u32 s{sTMP}, 4")
        A(f"s_cselect_b64 {sp(sE)}, {sp(sODD)}, {sp(sE)}")
        vC = K + 24
        A(f"s_set_gpr_idx_on s{sTMP + 2}, gpr_idx(SRC0)")
        A(f"v_mov_b32 {v(vC)}, {v(vX2)}")
        A(f"v_mov_b32 {v(vC + 1)}, {v(vX2 + 1)}")
        A(f"v_mov_b32 {v(vC + 2)}, {v(vH)}")
        A(f"v_mov_b32 {v(vC + 3)}, {v(vH + 1)}")
        A("s_set_gpr_idx_off")
        A(f"s_add_u32 s{sTMP + 3}, s{sOWN}, {O_SLOT}")
        A(f"v_add_u32 {v(vT)}, s{sTMP + 3}, {v(vT + 2)}")
        A(f"s_mov_b64 exec, {sp(sE)}")
        A(f"global_store_dwordx2 {v(vT)}, {v(vC, 2)}, {sp(sWS)} sc1")
        A(f"global_store_dwordx2 {v(vT)}, {v(vC + 2, 2)}, {sp(sWS)} offset:1024 sc1")
        A("s_mov_b64 exec, -1")
        self.stamp("slot")
        for k in range(8):
            A(f"v_dot2_f32_bf16 {v(Hf + 2 * k)}, {v(vX2 + k)}, s{sSELLO}, {v(Hf + 2 * k)}")
            A(f"v_dot2_f32_bf16 {v(Hf + 2 * k + 1)}, {v(vX2 + k)}, s{sSELHI}, {v(Hf + 2 * k + 1)}")
        vO = vY
        A(f"v_mov_b32 {v(vT + 4)}, {L_REDK}")
        for k in range(8):
            A(f"v_cvt_pk_bf16_f32 {v(vO + k)}, {v(Hf + 2 * k)}, {v(Hf + 2 * k + 1)}")
        osc = " sc1" if o.get("outsc", 0) == 1 else (" nt" if o.get("outsc", 0) == 2 else "")
        for r in range(4):
            A(f"s_cmp_eq_u32 s{sTMP + 1}, {r}")
            A(f"s_cselect_b64 vcc, {sp(sE)}, 0")
            A("s_not_b64 exec, vcc")
            A(f"global_store_dwordx2 {v(vRD)}, {v(vO + 2 * r, 2)}, {sp(sOUT)} offset:{1024 * r}{osc}")
        A("s_mov_b64 exec, -1")
        A(f"s_set_gpr_idx_on s{sTMP + 2}, gpr_idx(SRC0)")
        A(f"v_mov_b32 {v(vC + 4)}, {v(vO)}")
        A(f"v_mov_b32 {v(vC + 5)}, {v(vO + 1)}")
        A("s_set_gpr_idx_off")
        A(f"s_lshl_b32 s{sTMP + 1}, s{sTMP + 1}, 10")
        A(f"v_add_u32 {v(vRD)}, s{sTMP + 1}, {v(vRD)}")
        A(f"s_lshr_b32 s{sTMP}, s{sWAVE}, 1")
        A(f"s_lshl_b32 s{sTMP}, s{sTMP}, 9")
        A(f"s_add_u32 s{sTMP}, s{sTMP}, {W_REG + O_SLOT}")
        A(f"v_lshrrev_b32 {v(vT)}, 1, {v(vLANE)}")
        A(f"v_lshl_add_u32 {v(vT)}, {v(vT)}, 4, s{sTMP}")
        A(f"v_lshlrev_b32 {v(vT + 1)}, 6, {v(vT + 1)}")
        A(f"v_and_b32 {v(vT + 2)}, 12, {v(vLANE)}")
        A(f"v_lshl_add_u32 {v(vT + 1)}, {v(vT + 2)}, 2, {v(vT + 1)}")
        A(f"v_lshrrev_b32 {v(vT + 2)}, 5, {v(vLANE)}")
        A(f"v_lshl_add_u32 {v(vT + 1)}, {v(vT + 2)}, 3, {v(vT + 1)}")
        A(f"s_and_b32 s{sTMP}, s{sWAVE}, 1")
        A(f"s_lshl_b32 s{sTMP}, s{sTMP}, 7")
        A(f"s_lshr_b32 s{sTMP + 1}, s{sWAVE}, 1")
        A(f"s_lshl_b32 s{sTMP + 1}, s{sTMP + 1}, 2")
        A(f"s_add_u32 s{sTMP}, s{sTMP}, s{sTMP + 1}")
        A(f"s_add_u32 s{sTMP}, s{sTMP}, {L_REDF}")
        A(f"v_add_u32 {v(vT + 1)}, s{sTMP}, {v(vT + 1)}")
        A(f"v_and_b32 {v(vT + 2)}, 15, {v(vLANE)}")
        A(f"v_lshlrev_b32 {v(vT + 2)}, 3, {v(vT + 2)}")
        A(f"v_add_u32 {v(vT + 2)}, {L_REDF}, {v(vT + 2)}")
        A(f"s_add_u32 s{sTMP}, s{sOWN}, {O_PART}")
        A(f"v_lshl_add_u32 {v(vT + 3)}, v0, 3, s{sTMP}")
        WGp = K + 80
        for kp in range(4):
            for d in range(4):
                lo, hi = vWG + 8 * kp + d, vWG + 8 * kp + 4 + d
                A(f"v_perm_b32 {v(WGp + 8 * kp + 2 * d)}, {v(hi)}, {v(lo)}, s{sRP0}")
                A(f"v_perm_b32 {v(WGp + 8 * kp + 2 * d + 1)}, {v(hi)}, {v(lo)}, s{sRP1}")
        WDp = vWG
        for kp in range(8):
            lo, hi = vWD + 2 * kp, vWD + 2 * kp + 1
            A(f"v_perm_b32 {v(WDp + 2 * kp)}, {v(hi)}, {v(lo)}, s{sRP0}")
            A(f"v_perm_b32 {v(WDp + 2 * kp + 1)}, {v(hi)}, {v(lo)}, s{sRP1}")
        self.stamp("outst")
        A("s_barrier")
        A(f"ds_read_b32 {v(K)}, {v(vT + 4)}")
        A("s_waitcnt lgkmcnt(0)")
        A(f"v_readfirstlane_b32 s{sWIN}, {v(K)}")
        A(f"s_andn2_b32 s{sT0}, 2047, s{sWIN}")
        A(f"s_lshr_b32 s{sT1}, s{sT0}, 3")
        A(f"s_mul_i32 s{sT1}, s{sT1}, {RS}")
        A(f"s_cmp_lt_u32 s{sPOS}, 14")
        A("s_cbranch_scc0 L_noffn")
        A(f"v_add_u32 {v(vT)}, s{sT1}, {v(vT)}")
        sl = [f"global_load_dwordx4 {v(K, 4)}, {v(vT)}, {sp(sWS)} sc1"]
        A(sl[0])
        self.stamp("win")
        A("s_waitcnt vmcnt(0)")
        self.poll("sel", sl, [f"v_max3_u32 {v(vT + 6)}, {v(K)}, {v(K + 1)}, {v(K + 2)}",
                              f"v_max_u32 {v(vT + 6)}, {v(vT + 6)}, {v(K + 3)}",
                              f"v_cmp_eq_u32 vcc, -1, {v(vT + 6)}"])
        self.stamp("sel")
        V2 = [K + 8 + i for i in range(8)]
        for kp in range(4):
            for c in range(8):
                A(f"v_dot2_f32_bf16 {v(V2[c])}, {v(K + kp)}, {v(WGp + 8 * kp + c)}, {v(V2[c]) if kp else 0}")
        self.reduce8(V2, K + 16)
        A(f"ds_write_b32 {v(vT + 1)}, {v(V2[0])}")
        A("s_waitcnt lgkmcnt(0)")
        A("s_barrier")
        A(f"ds_read_b64 {v(K, 2)}, {v(vT + 2)}")
        A(f"ds_read_b64 {v(K + 2, 2)}, {v(vT + 2)} offset:128")
        A("s_waitcnt lgkmcnt(0)")
        A(f"v_add_f32 {v(K)}, {v(K)}, {v(K + 1)}")
        A(f"v_add_f32 {v(K + 2)}, {v(K + 2)}, {v(K + 3)}")
        A(f"v_cvt_pk_bf16_f32 {v(K + 1)}, {v(K)}, {v(K + 2)}")
        A(f"v_lshlrev_b32 {v(K)}, 16, {v(K + 1)}")
        A(f"v_mul_f32 {v(K + 3)}, {hex(f2u(-L2E))}, {v(K)}")
        A(f"v_exp_f32 {v(K + 3)}, {v(K + 3)}")
        A(f"v_and_b32 {v(K + 2)}, s{sMASK}, {v(K + 1)}")
        A(f"v_add_f32 {v(K + 3)}, 1.0, {v(K + 3)}")
        A(f"v_rcp_f32 {v(K + 3)}, {v(K + 3)}")
        A(f"v_mul_f32 {v(K)}, {v(K)}, {v(K + 3)}")
        A(f"v_cvt_pk_bf16_f32 {v(K)}, {v(K)}, {v(K)}")
        A(f"v_and_b32 {v(K)}, s{sMASK}, {v(K)}")
        A(f"v_mul_f32 {v(K)}, {v(K)}, {v(K + 2)}")
        A(f"v_mov_b32_dpp {v(K + 1)}, {v(K)} quad_perm:[1,1,3,3] row_mask:0xf bank_mask:0xf")
        A(f"v_cvt_pk_bf16_f32 {v(K)}, {v(K)}, {v(K + 1)}")
        for kp in range(8):
            A(f"v_readlane_b32 s{sH + kp}, {v(K)}, {2 * kp}")
        for kp in range(8):
            for c in range(2):
                A(f"v_dot2_f32_bf16 {v(K + 4 + c)}, s{sH + kp}, {v(WDp + 2 * kp + c)}, {v(K + 4 + c) if kp else 0}")
        A(f"global_store_dwordx2 {v(vT + 3)}, {v(K + 4, 2)}, {sp(sWS)} sc1")
        self.stamp("part")
        held = [f"s_cmp_eq_u32 s{sWIN}, s{sBEST}",
                f"s_cselect_b64 exec, 0, {sp(sE)}",
                f"global_store_dwordx2 {v(vRD)}, {v(vC + 4, 2)}, {sp(sOUT)}{osc}",
                f"s_or_b32 s{sTMP}, s{sL}, s{sWAVE}",
                f"s_cmp_eq_u32 s{sTMP}, 0",
                "s_cselect_b64 exec, 1, 0",
                f"v_mov_b32 {v(vT + 4)}, s{sG}",
                f"v_mov_b32 {v(vT + 5)}, 0",
                f"global_store_dword {v(vT + 5)}, {v(vT + 4)}, {sp(sWS)} sc1",
                "s_mov_b64 exec, -1"]
        T = self.tail
        T("L_noffn:")
        for l in held:
            T(l)
        T("s_branch L_fin")
        for l in held:
            A(l)
        A(f"s_cmp_lt_u32 s{sPOS}, 8")
        A("s_cbranch_scc0 L_fin")
        A(f"s_cmp_lt_u32 s{sWAVE}, 2")
        A("s_cbranch_scc0 L_fin")
        A(f"s_lshl_b32 s{sTMP}, s{sXCD}, 3")
        A(f"s_add_u32 s{sTMP}, s{sTMP}, s{sPOS}")
        A(f"s_lshl_b32 s{sTMP}, s{sTMP}, 1")
        A(f"s_add_u32 s{sTMP}, s{sTMP}, s{sWAVE}")
        A(f"v_lshrrev_b32 {v(vT)}, 5, {v(vLANE)}")
        A(f"v_bfe_u32 {v(vT + 1)}, {v(vLANE)}, 4, 1")
        A(f"v_lshl_add_u32 {v(vT)}, {v(vT + 1)}, 1, {v(vT)}")
        A(f"s_lshl_b32 s{sTMP + 1}, s{sTMP}, 3")
        A(f"v_lshl_add_u32 {v(vT)}, {v(vT)}, 1, s{sTMP + 1}")
        A(f"s_add_u32 s{sT1}, s{sT1}, {W_REG + O_SLOT}")
        A(f"v_add_u32 {v(vT + 1)}, s{sT1}, {v(vT)}")
        xh = [f"global_load_ushort {v(K + 20)}, {v(vT + 1)}, {sp(sWS)} sc1",
              f"global_load_ushort {v(K + 21)}, {v(vT + 1)}, {sp(sWS)} offset:1024 sc1"]
        for l in xh:
            A(l)
        A(f"s_lshl_b32 s{sTMP + 1}, s{sT0}, 10")
        A(f"v_add_u32 {v(vT)}, s{sTMP + 1}, {v(vT)}")
        A(f"v_min_u32 {v(vT + 2)}, 55, {v(vLANE)}")
        A(f"v_mul_u32_u24 {v(vT + 3)}, 4682, {v(vT + 2)}")
        A(f"v_lshrrev_b32 {v(vT + 3)}, 16, {v(vT + 3)}")
        A(f"v_mad_u32_u24 {v(vT + 2)}, {v(vT + 3)}, 18, {v(vT + 2)}")
        A(f"v_mul_u32_u24 {v(vT + 2)}, {RS}, {v(vT + 2)}")
        A(f"s_lshl_b32 s{sTMP + 1}, s{sTMP}, 4")
        A(f"s_add_u32 s{sTMP + 1}, s{sTMP + 1}, {W_REG + O_PART}")
        A(f"v_add_u32 {v(vT + 2)}, s{sTMP + 1}, {v(vT + 2)}")
        A(f"v_add_u32 {v(vT + 3)}, {128 * RS}, {v(vT + 2)}")
        A(f"s_ashr_i32 s{sTMP + 2}, s{sWIN}, 31")
        A(f"s_not_b32 s{sTMP + 2}, s{sTMP + 2}")
        A(f"s_or_b32 s{sTMP + 2}, s{sTMP + 2}, 0x80000000")
        A(f"s_xor_b32 s{sTMP + 2}, s{sTMP + 2}, s{sWIN}")
        A(f"s_and_b32 s{sTMP + 2}, s{sTMP + 2}, 0xfffff800")
        A(f"s_or_b32 s{sTMP + 2}, s{sTMP + 2}, 0x400")
        A(f"v_cvt_pk_bf16_f32 {v(K + 22)}, s{sTMP + 2}, s{sTMP + 2}")
        A(f"v_and_b32 {v(K + 22)}, s{sMASK}, {v(K + 22)}")
        A(f"v_mul_f32 {v(K + 22)}, {hex(f2u(-L2E))}, {v(K + 22)}")
        A(f"v_exp_f32 {v(K + 22)}, {v(K + 22)}")
        A(f"v_add_f32 {v(K + 22)}, 1.0, {v(K + 22)}")
        A(f"v_rcp_f32 {v(K + 22)}, {v(K + 22)}")
        A(f"v_cvt_pk_bf16_f32 {v(K + 22)}, {v(K + 22)}, {v(K + 22)}")
        A(f"v_and_b32 {v(K + 22)}, s{sMASK}, {v(K + 22)}")
        A("s_waitcnt vmcnt(0)")
        self.stamp("partdr")
        pl = [f"global_load_dwordx4 {v(vY, 4)}, {v(vT + 2)}, {sp(sWS)} sc1",
              f"global_load_dwordx4 {v(vY + 4, 4)}, {v(vT + 3)}, {sp(sWS)} sc1"]
        for l in pl:
            A(l)
        self.poll("xh", xh, [f"v_max_u32 {v(vT + 6)}, {v(K + 20)}, {v(K + 21)}",
                             f"v_cmp_eq_u32 vcc, 0xffff, {v(vT + 6)}"])
        A(f"v_lshlrev_b32 {v(K + 20)}, 16, {v(K + 20)}")
        A(f"v_lshlrev_b32 {v(K + 21)}, 16, {v(K + 21)}")
        A("s_waitcnt vmcnt(0)")
        self.poll("part", pl, chk8)
        self.stamp("partld")
        A(f"v_cmp_gt_u32 vcc, 56, {v(vLANE)}")
        A(f"v_pk_add_f32 {v(vY, 2)}, {v(vY, 2)}, {v(vY + 4, 2)}")
        A(f"v_pk_add_f32 {v(vY + 2, 2)}, {v(vY + 2, 2)}, {v(vY + 6, 2)}")
        for c in range(4):
            A(f"v_cndmask_b32 {v(vY + c)}, 0, {v(vY + c)}, vcc")
        A(f"v_permlane32_swap_b32 {v(vY)}, {v(vY + 1)}")
        A(f"v_permlane32_swap_b32 {v(vY + 2)}, {v(vY + 3)}")
        A(f"v_add_f32 {v(vY)}, {v(vY)}, {v(vY + 1)}")
        A(f"v_add_f32 {v(vY + 2)}, {v(vY + 2)}, {v(vY + 3)}")
        A(f"v_permlane16_swap_b32 {v(vY)}, {v(vY + 2)}")
        A(f"v_add_f32 {v(vY)}, {v(vY)}, {v(vY + 2)}")
        for sh in (8, 4, 2, 1):
            A(f"v_add_f32_dpp {v(vY)}, {v(vY)}, {v(vY)} row_ror:{sh} row_mask:0xf bank_mask:0xf")
        y = vY
        A(f"v_cvt_pk_bf16_f32 {v(y)}, {v(y)}, {v(y)}")
        A(f"v_and_b32 {v(y)}, s{sMASK}, {v(y)}")
        A(f"v_mul_f32 {v(y)}, {v(y)}, {v(K + 22)}")
        A(f"v_cvt_pk_bf16_f32 {v(y)}, {v(y)}, {v(y)}")
        A(f"v_and_b32 {v(y)}, s{sMASK}, {v(y)}")
        A(f"v_add_f32 {v(y)}, {v(y)}, {v(K + 20)}")
        A(f"v_cvt_pk_bf16_f32 {v(y)}, {v(y)}, {v(y)}")
        A(f"v_and_b32 {v(y)}, s{sMASK}, {v(y)}")
        A(f"v_add_f32 {v(y)}, {v(y)}, {v(K + 21)}")
        A(f"v_cvt_pk_bf16_f32 {v(y)}, {v(y)}, {v(y)}")
        A("s_mov_b32 exec_lo, 0x00010001")
        A("s_mov_b32 exec_hi, 0x00010001")
        A(f"global_store_short {v(vT)}, {v(y)}, {sp(sOUT)}")
        A("L_fin:")
        self.finish("R")

    def chans(self):
        A = self.A
        o = self.o
        vLANE = 1
        vAA, vBA, vEW, vER, vRA = 4, 12, 13, 14, 15
        vKA0, vKA1, vKB, vPW0, vPW1 = 16, 17, 18, 19, 20
        vP = 24
        vT = 28
        vACC = 40
        vA0, vA1, vB0, vB1 = 72, 104, 136, 168
        K = 72
        A("L_chan:")
        A("v_and_b32 v0, 0xff, v0")
        A(f"s_sub_u32 s{sWAVE}, s{sWAVE}, 4")
        A(f"s_lshl_b32 s{sT0}, s{sL}, 9")
        A(f"v_lshl_add_u32 {v(vT)}, v0, 1, s{sT0}")
        A(f"s_lshl_b32 s{sT1}, s{sL}, 2")
        A("s_waitcnt lgkmcnt(0)")
        self.stamp("karg")
        for k, s in enumerate((sLA, sAI, sCR, sCI)):
            A(f"global_load_ushort {v(vP + k)}, {v(vT)}, {sp(s)}{' nt' if o.get('ntx', 1) else ''}")
        A(f"s_load_dword s{sDT}, {sp(sLDT)}, s{sT1}")
        ntlb = 0
        if o.get("tlb", 0):
            A("v_mov_b32 v2, 0")
            A("s_mov_b64 exec, 1")
            for sb in (sWG, sWU, sWD, sOUT):
                A(f"global_load_dword v3, v2, {sp(sb)}")
                ntlb += 1
            A("s_mov_b64 exec, -1")
        vJ, vGq = vT + 4, vT + 5
        A(f"v_and_b32 {v(vJ)}, 15, {v(vLANE)}")
        A(f"v_lshrrev_b32 {v(vGq)}, 4, {v(vLANE)}")
        A(f"s_lshr_b32 s{sT0}, s{sWAVE}, 1")
        A(f"s_and_b32 s{sT1}, s{sWAVE}, 1")
        A(f"v_and_b32 {v(vT)}, 7, {v(vLANE)}")
        A(f"v_lshlrev_b32 {v(vRA)}, 4, {v(vT)}")
        A(f"v_add_u32 {v(vRA)}, {L_RED1}, {v(vRA)}")
        A(f"s_mul_i32 s{sTMP}, s{sT0}, {PC}")
        A(f"s_lshl_b32 s{sTMP + 1}, s{sT1}, 7")
        A(f"s_add_u32 s{sTMP}, s{sTMP}, s{sTMP + 1}")
        A(f"s_add_u32 s{sTMP}, s{sTMP}, {L_P + 4 * 26}")
        A(f"v_lshlrev_b32 {v(vT)}, 3, {v(vGq)}")
        A(f"v_sub_u32 {v(vT)}, {v(vJ)}, {v(vT)}")
        A(f"v_lshl_add_u32 {v(vAA)}, {v(vT)}, 2, s{sTMP}")
        for m in range(1, 8):
            A(f"v_add_u32 {v(vAA + m)}, {1024 * m}, {v(vAA)}")
        A(f"s_mul_i32 s{sTMP}, s{sT0}, {UC}")
        A(f"s_lshl_b32 s{sTMP + 1}, s{sT1}, 6")
        A(f"s_sub_u32 s{sTMP}, s{sTMP}, s{sTMP + 1}")
        A(f"s_add_u32 s{sTMP}, s{sTMP}, {L_U + 64}")
        A(f"v_lshl_add_u32 {v(vT)}, {v(vJ)}, 1, {v(vGq)}")
        A(f"v_lshl_add_u32 {v(vBA)}, {v(vT)}, 4, s{sTMP}")
        A(f"v_lshl_add_u32 {v(vT)}, {v(vJ)}, 2, {v(vGq)}")
        A(f"v_lshrrev_b32 {v(vT + 1)}, 3, {v(vT)}")
        A(f"v_add_u32 {v(vT)}, {v(vT)}, {v(vT + 1)}")
        A(f"s_mul_i32 s{sTMP}, s{sWAVE}, {8 * TBS}")
        A(f"v_lshl_add_u32 {v(vEW)}, {v(vT)}, 4, s{sTMP}")
        A(f"v_lshrrev_b32 {v(vT + 1)}, 3, {v(vLANE)}")
        A(f"v_add_u32 {v(vT)}, {v(vLANE)}, {v(vT + 1)}")
        A(f"s_mul_i32 s{sTMP}, s{sWAVE}, {2 * TBS}")
        A(f"v_lshl_add_u32 {v(vER)}, {v(vT)}, 4, s{sTMP}")
        KS = o.get("ks", 5)
        for k in range(4):
            A(f"v_mov_b32 {v(vACC + k)}, -1")
        A(f"s_mul_i32 s{sTMP}, s{sL}, {RS}")
        A(f"s_add_u32 s{sTMP}, s{sTMP}, {W_REG + 4096}")
        A(f"v_lshl_add_u32 {v(vACC + 4)}, v0, 4, s{sTMP}")
        A(f"v_add_u32 {v(vACC + 5)}, 8192, {v(vACC + 4)}")
        A(f"v_add_u32 {v(vACC + 6)}, 12288, {v(vACC + 4)}")
        A(f"s_lshl_b32 s{sTMP}, s{sL}, {KS}")
        A(f"s_add_u32 s{sTMP}, s{sTMP}, {W_KEY}")
        A(f"v_lshl_add_u32 {v(22)}, {v(vLANE)}, 4, s{sTMP}")
        ones = v(vACC, 4)
        A(f"s_cmp_eq_u32 s{sWAVE}, 0")
        A(f"s_cselect_b64 exec, {(1 << ((1 << KS) // 16)) - 1}, 0")
        A(f"global_store_dwordx4 {v(22)}, {ones}, {sp(sWS)} sc1")
        A("s_mov_b64 exec, -1")
        A(f"global_store_dwordx4 {v(vACC + 4)}, {ones}, {sp(sWS)} offset:-4096 sc1")
        A(f"global_store_dwordx4 {v(vACC + 4)}, {ones}, {sp(sWS)} sc1")
        A(f"global_store_dwordx4 {v(vACC + 5)}, {ones}, {sp(sWS)} offset:-4096 sc1")
        A(f"global_store_dwordx4 {v(vACC + 5)}, {ones}, {sp(sWS)} sc1")
        A(f"global_store_dwordx4 {v(vACC + 6)}, {ones}, {sp(sWS)} sc1")
        vg, vr = vT, vT + 1
        A(f"v_lshrrev_b32 {v(vg)}, 2, {v(vJ)}")
        A(f"v_and_b32 {v(vr)}, 3, {v(vJ)}")
        A(f"s_cmp_eq_u32 s{sT1}, 0")
        A("s_cbranch_scc0 L_rows_hi")
        A(f"v_mov_b32 {v(vKA0)}, {v(vJ)}")
        A(f"v_lshl_add_u32 {v(vKA1)}, {v(vg)}, 1, {v(vr)}")
        A(f"v_add_u32 {v(vKA1)}, 16, {v(vKA1)}")
        A(f"v_add_u32 {v(vT + 2)}, -4, {v(vJ)}")
        A(f"v_and_b32 {v(vT + 2)}, 15, {v(vT + 2)}")
        A(f"v_cmp_eq_u32 vcc, 3, {v(vr)}")
        A(f"v_cndmask_b32 {v(vKA1)}, {v(vKA1)}, {v(vT + 2)}, vcc")
        A(f"v_lshl_add_u32 {v(vPW0)}, {v(vJ)}, 2, {v(vGq)}")
        A(f"v_lshlrev_b32 {v(vPW0)}, 4, {v(vPW0)}")
        A(f"v_add_u32 {v(vPW1)}, 1024, {v(vPW0)}")
        A("s_branch L_rows_done")
        A("L_rows_hi:")
        A(f"v_lshrrev_b32 {v(vT + 2)}, 1, {v(vg)}")
        A(f"v_lshl_add_u32 {v(vKA0)}, {v(vg)}, 1, {v(vr)}")
        A(f"v_add3_u32 {v(vKA0)}, {v(vKA0)}, {v(vT + 2)}, 25")
        A(f"v_sub_u32 {v(vKA1)}, {v(vJ)}, {v(vg)}")
        A(f"v_add_u32 {v(vKA1)}, 35, {v(vKA1)}")
        A(f"v_lshrrev_b32 {v(vT + 2)}, 1, {v(vGq)}")
        A(f"v_lshl_add_u32 {v(vPW0)}, {v(vT + 2)}, 4, {v(vJ)}")
        A(f"v_and_b32 {v(vT + 2)}, 1, {v(vGq)}")
        A(f"v_lshl_add_u32 {v(vPW0)}, {v(vPW0)}, 1, {v(vT + 2)}")
        A(f"v_lshlrev_b32 {v(vPW0)}, 5, {v(vPW0)}")
        A(f"v_add_u32 {v(vPW0)}, 2048, {v(vPW0)}")
        A(f"v_lshlrev_b32 {v(vPW1)}, 6, {v(vLANE)}")
        A(f"v_add_u32 {v(vPW1)}, 4096, {v(vPW1)}")
        A("L_rows_done:")
        A(f"s_mul_i32 s{sTMP}, s{sT0}, {PC}")
        A(f"s_add_u32 s{sTMP}, s{sTMP}, {L_P + 64}")
        A(f"v_add_u32 {v(vPW0)}, s{sTMP}, {v(vPW0)}")
        A(f"v_add_u32 {v(vPW1)}, s{sTMP}, {v(vPW1)}")
        A(f"s_mul_i32 s{sTMP}, s{sT0}, {TABC}")
        A(f"v_lshl_add_u32 {v(vT + 2)}, {v(vGq)}, 4, s{sTMP}")
        A(f"s_movk_i32 s{sTMP + 1}, {ROWB}")
        A(f"v_mad_u32_u24 {v(vKA0)}, {v(vKA0)}, s{sTMP + 1}, {v(vT + 2)}")
        A(f"v_mad_u32_u24 {v(vKA1)}, {v(vKA1)}, s{sTMP + 1}, {v(vT + 2)}")
        A(f"v_mad_u32_u24 {v(vKB)}, {v(vJ)}, s{sTMP + 1}, {v(vT + 2)}")
        A(f"s_lshl_b32 s{sTMP + 1}, s{sT1}, 8")
        A(f"s_add_u32 m0, s{sTMP}, s{sTMP + 1}")
        A(f"s_mul_i32 s{sTMP}, s{sXCD}, 448")
        A(f"s_and_b32 s{sTMP}, s{sTMP}, 0xffffff80")
        A(f"s_mul_i32 s{sTMP + 1}, s{sPOS}, {16 * 3584}")
        A(f"s_add_u32 s{sTMP}, s{sTMP}, s{sTMP + 1}")
        A(f"v_lshrrev_b32 {v(vT + 2)}, 2, {v(vLANE)}")
        A(f"v_mul_u32_u24 {v(vT + 2)}, 3584, {v(vT + 2)}")
        A(f"v_and_b32 {v(vT + 3)}, 3, {v(vLANE)}")
        A(f"v_lshl_add_u32 {v(vT + 2)}, {v(vT + 3)}, 7, {v(vT + 2)}")
        A(f"v_add_u32 {v(vT + 2)}, s{sTMP}, {v(vT + 2)}")
        A(f"s_mul_i32 s{sTMP}, s{sL}, 7168")
        A(f"s_mul_i32 s{sTMP + 1}, s{sT1}, 3584")
        A(f"s_add_u32 s{sTMP}, s{sTMP}, s{sTMP + 1}")
        A(f"v_min_u32 {v(vT + 3)}, 27, {v(vLANE)}")
        A(f"v_lshl_add_u32 {v(vT + 3)}, {v(vT + 3)}, 7, s{sTMP}")
        A(f"s_cmp_eq_u32 s{sT1}, 0")
        A(f"s_cselect_b64 {sp(sWSEL)}, {sp(sWG)}, {sp(sWU)}")
        A(f"s_cmp_eq_u32 s{sT0}, 0")
        A(f"s_cselect_b64 {sp(sWSEL)}, {sp(sWSEL)}, {sp(sWD)}")
        A("s_cselect_b64 vcc, -1, 0")
        A(f"v_cndmask_b32 {v(21)}, {v(vT + 3)}, {v(vT + 2)}, vcc")
        wpf = f"global_load_dword v3, v21, {sp(sWSEL)}{' nt' if o.get('ntw', 0) else ''}"
        if o.get("wpf", 2) == 2:
            A(wpf)

        L2E = 1.4426950408889634
        l2e_hi = struct.unpack("<f", struct.pack("<f", L2E))[0]
        l2e_lo = L2E - l2e_hi
        a, b = K, K + 2
        A(f"s_mov_b32 s{sE}, {hex(f2u(l2e_hi))}")
        A(f"s_mov_b32 s{sE + 1}, {hex(f2u(l2e_lo))}")
        A(f"s_waitcnt vmcnt({(6 if o.get('wpf', 2) == 2 else 5) + ntlb}) lgkmcnt(0)")
        self.stamp("par")
        A(f"s_lshl_b32 s{sTMP}, s{sDT}, 16")
        A(f"s_and_b32 s{sTMP + 1}, s{sDT}, s{sMASK}")
        A(f"s_cmp_lt_u32 s{sWAVE}, 2")
        A(f"s_cselect_b32 s{sDT}, s{sTMP}, s{sTMP + 1}")
        A(f"v_lshlrev_b32 {v(a)}, 16, {v(vP)}")
        A(f"v_mov_b32 {v(a + 1)}, s{sDT}")
        A(f"v_pk_mul_f32 {v(b, 2)}, {v(a, 2)}, {sp(sE)} op_sel_hi:[1,0]")
        A(f"v_pk_fma_f32 {v(b + 2, 2)}, {v(a, 2)}, {sp(sE)}, {v(b, 2)} op_sel_hi:[1,0,1] neg_lo:[0,0,1] neg_hi:[0,0,1]")
        A(f"v_exp_f32 {v(b)}, {v(b)}")
        A(f"v_exp_f32 {v(b + 1)}, {v(b + 1)}")
        A(f"v_pk_fma_f32 {v(b + 2, 2)}, {sp(sE)}, {v(a, 2)}, {v(b + 2, 2)} op_sel:[1,0,0] op_sel_hi:[1,1,1]")
        A(f"v_mul_f32 {v(b + 2)}, {hex(f2u(0.6931471805599453))}, {v(b + 2)}")
        A(f"v_mul_f32 {v(b + 3)}, {hex(f2u(0.6931471805599453))}, {v(b + 3)}")
        A(f"v_pk_fma_f32 {v(b, 2)}, {v(b, 2)}, {v(b + 2, 2)}, {v(b, 2)}")
        A(f"v_cvt_pk_bf16_f32 {v(a)}, {v(b)}, {v(b + 1)}")
        vdt, va2, vph = K + 6, K + 7, K + 8
        A(f"v_and_b32 {v(vdt)}, s{sMASK}, {v(a)}")
        A(f"v_lshlrev_b32 {v(va2)}, 16, {v(a)}")
        A(f"v_lshlrev_b32 {v(vph)}, 16, {v(vP + 1)}")
        A(f"v_mul_f32 {v(va2)}, {v(va2)}, {v(vdt)}")
        A(f"v_mul_f32 {v(vph)}, {v(vph)}, {v(vdt)}")
        A(f"v_mul_f32 {v(va2)}, {hex(f2u(-l2e_hi))}, {v(va2)}")
        A(f"v_mul_f32 {v(vph)}, 0.15915494, {v(vph)}")
        Wp = {p: K + 10 + 2 * p for p in range(1, 17)}
        Zp = {p: K + 42 + 2 * p for p in range(1, 8)}
        G = [K + 58, K + 60]
        TT = [K + 62, K + 64, K + 66, K + 68]
        RR = [K + 70, K + 72, K + 74, K + 76]
        CV = K + 80
        A(f"v_add_f32 {v(vdt)}, {v(vdt)}, {v(vdt)}")
        A(f"v_lshlrev_b32 {v(G[0])}, 16, {v(vP + 2)}")
        A(f"v_lshlrev_b32 {v(G[0] + 1)}, 16, {v(vP + 3)}")
        A(f"v_mul_f32 {v(G[0])}, {v(G[0])}, {v(vdt)}")
        A(f"v_mul_f32 {v(G[0] + 1)}, {v(G[0] + 1)}, {v(vdt)}")
        for n, (dst, sc) in enumerate(((Wp[1], 1.0), (Wp[16], 16.0), (Zp[1], 256.0))):
            t = TT[n]
            if sc == 1.0:
                A(f"v_exp_f32 {v(t)}, {v(va2)}")
                A(f"v_fract_f32 {v(t + 1)}, {v(vph)}")
            else:
                A(f"v_mul_f32 {v(t)}, {hex(f2u(sc))}, {v(va2)}")
                A(f"v_mul_f32 {v(t + 1)}, {hex(f2u(sc))}, {v(vph)}")
                A(f"v_exp_f32 {v(t)}, {v(t)}")
                A(f"v_fract_f32 {v(t + 1)}, {v(t + 1)}")
            A(f"v_cos_f32 {v(dst)}, {v(t + 1)}")
            A(f"v_sin_f32 {v(dst + 1)}, {v(t + 1)}")
        for n, dst in enumerate((Wp[1], Wp[16], Zp[1])):
            A(f"v_pk_mul_f32 {v(dst, 2)}, {v(dst, 2)}, {v(TT[n], 2)} op_sel_hi:[1,0]")
        jobs = [(1, Wp[1], None, None, 0), (16, Zp[1], None, None, 0), (47, G[0], None, None, 1)]
        wj = []
        for p in range(2, 16):
            hb = 1 << (p.bit_length() - 1)
            x, y = (p // 2, p // 2) if hb == p else (hb, p - hb)
            wj.append((p, Wp[p], Wp[x], Wp[y], 0))
        gj = [(47 + j, G[j & 1], G[(j - 1) & 1], Wp[16], 1) for j in range(1, 16)]
        zrow = {2: 25, 3: 30, 4: 35, 5: 38, 6: 41, 7: 44}
        zj = []
        for p in range(2, 8):
            hb = 1 << (p.bit_length() - 1)
            x, y = (p // 2, p // 2) if hb == p else (hb, p - hb)
            zj.append((zrow[p], Zp[p], Zp[x], Zp[y], 0))
        tj = [(16 + k, None, Zp[1], Wp[2 * k], 0) for k in range(1, 9)]
        for z in (2, 3):
            tj += [(zrow[z] + k, None, Zp[z], Wp[4 * k], 0) for k in range(1, 5)]
        for z in (4, 5, 6, 7):
            tj += [(zrow[z] + k, None, Zp[z], Wp[8 * k], 0) for k in range(1, 3)]
        first = []
        for i in range(max(len(wj), len(gj), len(zj))):
            for q in (wj, gj, zj):
                if i < len(q):
                    first.append(q[i])
        jobs += first + tj
        A(f"v_mov_b32 {v(CV + 15)}, 0x3f80")
        pend = [(0, CV + 15)]
        slot = 0
        nb = 0
        b1_at = o.get("b1_at", 0)
        batch = o.get("batch", 6)

        def do_b1():
            self.stamp("setup")
            A(f"s_waitcnt vmcnt({1 if o.get('wpf', 2) == 2 else 0})")
            self.stamp("idr")
            A("s_barrier")
            self.stamp("b1")
            if o.get("wpf", 2) == 1:
                A(wpf)
        if b1_at == 0:
            do_b1()
        for n, (row, dst, x, y, conj) in enumerate(jobs):
            if x is not None:
                if dst is None:
                    dst = RR[n & 3]
                for ins in self.cmul(dst, x, y, TT[n & 3]):
                    A(ins)
            A(f"v_cvt_pk_bf16_f32 {v(CV + slot)}, {v(dst)}, {'-' if conj else ''}{v(dst + 1)}")
            pend.append((row, CV + slot))
            slot = (slot + 1) % 15
            if len(pend) >= batch or n == len(jobs) - 1:
                for row_, reg in pend:
                    A(f"ds_write_addtid_b32 {v(reg)} offset:{row_ * ROWB}")
                pend = []
                nb += 1
                if nb == b1_at:
                    do_b1()
        A("s_waitcnt lgkmcnt(0)")
        self.stamp("kgen1")
        A("s_barrier")
        if o.get("wpf", 2) == 3:
            A(wpf)
        fB, fA0, fA1 = K, K + 32, K + 64
        for s in range(4):
            A(f"ds_read_b128 {v(fB + 4 * s, 4)}, {v(vKB)} offset:{47 * ROWB + 64 * s}")
            A(f"ds_read_b128 {v(fA0 + 4 * s, 4)}, {v(vKA0)} offset:{64 * s}")
            A(f"ds_read_b128 {v(fA1 + 4 * s, 4)}, {v(vKA1)} offset:{64 * s}")
        D0, D1 = vACC, vACC + 4
        for s in range(8):
            s2 = s + 4
            A(f"s_waitcnt lgkmcnt({9 if s2 < 8 else 3 * (7 - s)})")
            c0 = "0" if s == 0 else v(D0, 4)
            c1 = "0" if s == 0 else v(D1, 4)
            A(f"v_mfma_f32_16x16x32_bf16 {v(D0, 4)}, {v(fA0 + 4 * s, 4)}, {v(fB + 4 * s, 4)}, {c0}")
            if s2 < 8:
                A(f"ds_read_b128 {v(fB + 4 * s2, 4)}, {v(vKB)} offset:{47 * ROWB + 64 * s2}")
                A(f"ds_read_b128 {v(fA0 + 4 * s2, 4)}, {v(vKA0)} offset:{64 * s2}")
            A(f"v_mfma_f32_16x16x32_bf16 {v(D1, 4)}, {v(fA1 + 4 * s, 4)}, {v(fB + 4 * s, 4)}, {c1}")
            if s2 < 8:
                A(f"ds_read_b128 {v(fA1 + 4 * s2, 4)}, {v(vKA1)} offset:{64 * s2}")
        E = K + 96
        A(f"s_bitcmp1_b32 s{sWAVE}, 0")
        A(f"v_cmp_eq_u32 vcc, 0, {v(vLANE)}")
        A("s_nop 5")
        A("s_cbranch_scc0 L_exp_lo")
        seq2 = ["aa", "aa", "aa", "ba", "bb", "bb", "cb", "cc"]
        seq3 = ["aa", "aa", "aa", "aa", "aa", "ba", "bb", "bb", "bb", "bb", "cb", "cc", "cc", "cc"]
        ix = {"a": 0, "b": 1, "c": 2}
        for k, s in enumerate(seq3):
            A(f"v_cvt_pk_bf16_f32 {v(E + 8 + k)}, {v(D1 + ix[s[0]])}, {v(D1 + ix[s[1]])}")
        for k, w in enumerate((0, 4, 6, 10)):
            A(f"ds_write_b128 {v(vPW1)}, {v(E + 8 + w, 4)} offset:{16 * k}")
        for k, s in enumerate(seq2):
            A(f"v_cvt_pk_bf16_f32 {v(E + k)}, {v(D0 + ix[s[0]])}, {v(D0 + ix[s[1]])}")
        A(f"ds_write_b128 {v(vPW0)}, {v(E, 4)}")
        A(f"ds_write_b128 {v(vPW0)}, {v(E + 4, 4)} offset:16")
        A("L_exp_done:")
        T = self.tail
        T("L_exp_lo:")
        T(f"v_mov_b32_dpp {v(D1 + 3)}, {v(D1 + 3)} row_ror:1 row_mask:0x1 bank_mask:0xf")
        T(f"v_cvt_pk_bf16_f32 {v(E + 1)}, {v(D0 + 1)}, {v(D0)}")
        T(f"v_cvt_pk_bf16_f32 {v(E + 2)}, {v(D0 + 2)}, {v(D0 + 1)}")
        T(f"v_cvt_pk_bf16_f32 {v(E + 3)}, {v(D0 + 3)}, {v(D0 + 2)}")
        T(f"v_cndmask_b32 {v(E + 8)}, {v(D1 + 3)}, 0, vcc")
        T(f"v_cndmask_b32 {v(E + 9)}, {v(D1)}, {v(D1 + 3)}, vcc")
        T(f"v_cvt_pk_bf16_f32 {v(E)}, {v(D0)}, {v(E + 8)}")
        T(f"v_cvt_pk_bf16_f32 {v(E + 4)}, {v(D1)}, {v(E + 9)}")
        T(f"v_cvt_pk_bf16_f32 {v(E + 5)}, {v(D1)}, {v(D1)}")
        T(f"v_cvt_pk_bf16_f32 {v(E + 6)}, {v(D1 + 1)}, {v(D1)}")
        T(f"v_cvt_pk_bf16_f32 {v(E + 7)}, {v(D1 + 2)}, {v(D1 + 1)}")
        T(f"ds_write_b128 {v(vPW0)}, {v(E, 4)}")
        T(f"ds_write_b128 {v(vPW1)}, {v(E + 4, 4)}")
        T("s_branch L_exp_done")
        A("s_waitcnt lgkmcnt(0)")
        self.stamp("kgen2")
        A("s_barrier")
        if o.get("wpf", 2) == 4:
            A(wpf)

        def rdA(buf, rho, m):
            return [f"ds_read2_b32 {v(buf + 4 * m, 2)}, {v(vAA + m)} offset0:{64 * rho + 6} offset1:{64 * rho + 4}",
                    f"ds_read2_b32 {v(buf + 4 * m + 2, 2)}, {v(vAA + m)} offset0:{64 * rho + 2} offset1:{64 * rho}"]

        def rdB(buf, rho, n):
            return [f"ds_read_b128 {v(buf + 4 * n, 4)}, {v(vBA)} offset:{128 * (3 - rho) + 512 * (7 - n)}"]

        for m in range(8):
            for l in rdA(vA0, 0, m):
                A(l)
        A(f"s_mul_i32 s{sTMP}, s{sL}, {RS}")
        A(f"s_lshl_b32 s{sTMP + 1}, s{sWAVE}, 11")
        A(f"s_add_u32 s{sTMP}, s{sTMP}, s{sTMP + 1}")
        A(f"s_add_u32 s{sTMP}, s{sTMP}, {W_REG + O_X2}")
        A(f"v_lshl_add_u32 {v(vT)}, {v(vLANE)}, 4, s{sTMP}")
        A(f"v_lshlrev_b32 {v(vT + 1)}, {KS}, v0")
        A(f"v_add_u32 {v(vT + 1)}, {W_KEY}, {v(vT + 1)}")
        A(f"s_lshl_b32 s{sTMP}, s{sWAVE}, 2")
        A(f"s_add_u32 s{sTMP}, s{sTMP}, {L_REDK}")
        A(f"v_mov_b32 {v(vT + 3)}, s{sTMP}")
        A("s_waitcnt lgkmcnt(0)")
        self.stamp("apre")
        A("s_barrier")
        self.stamp("b3")
        if o.get("wpf", 2) == 5:
            A(wpf)
        if o.get("prio", 1):
            A("s_setprio 2")

        bufA, bufB = [vA0, vA1], [vB0, vB1]
        for n in range(7, -1, -1):
            for l in rdB(vB0, 0, n):
                A(l)
        started = set()
        for rho in range(4):
            a_, b_ = bufA[rho & 1], bufB[rho & 1]
            order = [(n - 7 + tb, tb, n) for n in range(7, -1, -1) for tb in range(7 - n, 8)]
            if rho == 3:
                order = [(n - 7 + tb, tb, n) for tb in range(8) for n in range(7 - tb, 8)]
            fill = []
            if rho + 1 < 4:
                nb_, na_ = bufB[(rho + 1) & 1], bufA[(rho + 1) & 1]
                for m in range(8):
                    fill += rdB(nb_, rho + 1, 7 - m)
                    fill += rdA(na_, rho + 1, m)
            issued = 0
            seen = set()
            done_at = {}
            for i, (m, tb, n) in enumerate(order):
                done_at[tb] = i
            for i, (m, tb, n) in enumerate(order):
                if rho == 0 and n not in seen:
                    A(f"s_waitcnt lgkmcnt({min(15, n + issued)})")
                    seen.add(n)
                elif i == 0:
                    A("s_waitcnt lgkmcnt(0)")
                acc = v(vACC + 4 * tb, 4)
                c = acc if tb in started else "0"
                started.add(tb)
                A(f"v_mfma_f32_16x16x32_bf16 {acc}, {v(a_ + 4 * m, 4)}, {v(b_ + 4 * n, 4)}, {c}")
                if i >= 1 and fill:
                    A(fill.pop(0))
                    issued += 1
                if rho == 3:
                    for t in range(7):
                        if done_at[t] + 8 == i or (i == len(order) - 1 and done_at[t] + 8 > i):
                            A(f"ds_write_b128 {v(vEW)}, {v(vACC + 4 * t, 4)} offset:{t * TBS}")
            assert not fill
        A(f"ds_write_b128 {v(vEW)}, {v(vACC + 28, 4)} offset:{7 * TBS}")
        self.stamp("conv")
        A("s_waitcnt lgkmcnt(0)")
        A("s_barrier")
        for i in range(2):
            for s in range(4):
                A(f"ds_read_b128 {v(K + 16 * i + 4 * s, 4)}, {v(vER)} offset:{s * 8 * TBS + i * TBS}")
        for i in range(2):
            A(f"s_waitcnt lgkmcnt({4 * (1 - i)})")
            b0 = K + 16 * i
            for c in range(2):
                for h in range(2):
                    A(f"v_pk_add_f32 {v(b0 + 8 * c + 2 * h, 2)}, {v(b0 + 8 * c + 2 * h, 2)}, {v(b0 + 8 * c + 4 + 2 * h, 2)}")
            for c in range(2):
                for h in range(2):
                    A(f"v_cvt_pk_bf16_f32 {v(K + 32 + 4 * i + 2 * c + h)}, {v(b0 + 8 * c + 2 * h)}, {v(b0 + 8 * c + 2 * h + 1)}")
            A(f"global_store_dwordx4 {v(vT)}, {v(K + 32 + 4 * i, 4)}, {sp(sWS)} offset:{1024 * i} sc1")
        self.stamp("x2st")
        A("s_waitcnt vmcnt(0)")
        self.stamp("x2dr")
        A("s_barrier")
        A(f"s_cmp_eq_u32 s{sWAVE}, 0")
        A("s_cbranch_scc0 L_cfin")
        for q in range(1, 4):
            A(f"v_add_u32 {v(vT + 8 + q)}, {(64 * q) << KS}, {v(vT + 1)}")
        A("s_barrier")
        self.key_calc(K, vRA, vLANE)
        A("s_mov_b64 exec, 1")
        A(f"global_store_dword {v(22)}, {v(K + 8)}, {sp(sWS)} sc1")
        A("s_mov_b64 exec, -1")
        self.stamp("key")
        A("s_waitcnt vmcnt(0)")
        self.stamp("keydr")
        k2 = vT + 4
        kl = [f"global_load_dword {v(K + q)}, {v(vT + 8 + q) if q else v(vT + 1)}, {sp(sWS)} sc1" for q in range(4)]
        for l in kl:
            A(l)
        A("s_waitcnt vmcnt(0)")
        self.poll("key", kl, [f"v_max3_u32 {v(k2)}, {v(K)}, {v(K + 1)}, {v(K + 2)}",
                              f"v_max_u32 {v(k2)}, {v(k2)}, {v(K + 3)}",
                              f"v_cmp_eq_u32 vcc, -1, {v(k2)}"])
        self.stamp("keyld")
        A(f"v_max_u32_dpp {v(k2)}, {v(k2)}, {v(k2)} quad_perm:[1,0,3,2] row_mask:0xf bank_mask:0xf")
        A(f"v_max_u32_dpp {v(k2)}, {v(k2)}, {v(k2)} quad_perm:[2,3,0,1] row_mask:0xf bank_mask:0xf")
        A(f"v_max_u32_dpp {v(k2)}, {v(k2)}, {v(k2)} row_half_mirror row_mask:0xf bank_mask:0xf")
        A(f"v_max_u32_dpp {v(k2)}, {v(k2)}, {v(k2)} row_mirror row_mask:0xf bank_mask:0xf")
        A(f"v_max_u32_dpp {v(k2)}, {v(k2)}, {v(k2)} row_bcast:15 row_mask:0xa bank_mask:0xf")
        A(f"v_max_u32_dpp {v(k2)}, {v(k2)}, {v(k2)} row_bcast:31 row_mask:0xc bank_mask:0xf")
        A("s_mov_b32 exec_lo, 0")
        A("s_brev_b32 exec_hi, 1")
        A(f"ds_write_b32 {v(vT + 3)}, {v(k2)}")
        A("s_waitcnt lgkmcnt(0)")
        A("s_barrier")
        A("L_cfin:")
        self.finish("C")

    def text(self):
        lines = self.build()
        src = open("sequential_preLN__ssm_conv_s4d__moe_arch_mod__prompt.s.ref").read()
        head = [l for l in src.split("\n") if l.startswith(";") and "@launch" not in l]
        head = head[:head.index("; Override launch geometry by editing the next line (default: block=256,")]
        out = head + [f"; @launch grid=(256,1,1) block=(512,1,1) lds={LDS_BYTES}",
                      '.amdgcn_target "amdgcn-amd-amdhsa--gfx950"', ".text", f".globl {KNAME}", ".p2align 8",
                      f".type {KNAME},@function"]
        out += [l if l.endswith(":") else "    " + l for l in lines]
        out += [".section .rodata,\"a\"", ".p2align 6", f".amdhsa_kernel {KNAME}",
                "  .amdhsa_next_free_vgpr 224", "  .amdhsa_next_free_sgpr 102", "  .amdhsa_accum_offset 224",
                "  .amdhsa_group_segment_fixed_size 0", "  .amdhsa_kernarg_size 120", "  .amdhsa_user_sgpr_count 2",
                "  .amdhsa_user_sgpr_kernarg_segment_ptr 1", "  .amdhsa_system_sgpr_workgroup_id_x 1",
                ".end_amdhsa_kernel", ""]
        return "\n".join(out)


if __name__ == "__main__":
    out = sys.argv[1]
    opts = {}
    stamp = False
    for a in sys.argv[2:]:
        if a == "stamp":
            stamp = True
        else:
            k, val = a.split("=")
            opts[k] = val if k == 'pr' else int(val)
    g = Gen(stamp, opts)
    open(out, "w").write(g.text())
    if stamp:
        open(out + ".names", "w").write(" ".join(g.allnames["R"]) + "\n" + " ".join(g.allnames["C"]))
    print(g.info, "lds", LDS_BYTES)
```

```python
import sys
import struct
from asmlib import Asm, align8

KNAME = "sequential_preLN__ssm_conv_s4d__moe_arch_mod__prompt_kernel"


def f2u(x):
    return struct.unpack("<I", struct.pack("<f", x))[0]


W_FLAG = 0x1000 + (int(__import__('os').environ.get('WOFF', '0')) << 20)
W_KEY = 0x9000 + (int(__import__('os').environ.get('WOFF', '0')) << 20)
W_FLAG2 = 0x11000 + (int(__import__('os').environ.get('WOFF', '0')) << 20)
import os
WOFF = int(os.environ.get('WOFF', '0')) << 20
W_REG = 0x38000 + WOFF
RS = 20608
O_X1, O_X2, O_SLOT, O_PART = 0, 8192, 16384, 18432
W_STAMP = 0x800000
ROWB = 544
TABC = 63 * ROWB
L_TAB = 0
L_P = 68608
PC = 8256
L_U = L_P + 2 * PC
UC = 4608
L_RED1 = (L_U + 2 * UC + 255) // 256 * 256
L_RED2 = L_RED1 + 256
L_SUMW = L_RED2 + 384
L_REDK = L_SUMW + 16
L_REDF = L_REDK + 16
LDS_BYTES = L_REDF + 256
L_EPI = 0
TBS = 1152
sX, sLA, sAI, sCR, sCI, sLDT, sD = 4, 6, 8, 10, 12, 14, 16
sWR, sWG, sWU, sWD, sOUT, sDBG, sWS = 20, 22, 24, 26, 28, 30, 32
sL, sPOS, sXCD, sWAVE, sG, sDT, sT0, sT1, sSPIN, sF = 34, 35, 36, 37, 38, 39, 40, 41, 42, 43
sODD = 44
sSELLO, sSELHI, sONES, sMASK = 46, 47, 48, 49
sWSEL = 50
sBEST, sWIN, sRP0, sRP1 = 52, 53, 54, 55
sH = 56
sE = 64
sTMP = 66
sOWN = 71
sSTAMP = 72


def sp(r):
    return f"s[{r}:{r + 1}]"


def v(r, n=1):
    return f"v{r}" if n == 1 else f"v[{r}:{r + n - 1}]"


class Gen:
    def __init__(self, stamp=False, opts=None):
        self.A = Asm()
        self.tail = Asm()
        self.stamp_on = stamp
        self.nstamp = 0
        self.names = []
        self.o = dict(opts or {})
        self.only = None
        self.role = "R"
        if "pr" in self.o:
            self.only = tuple(self.o["pr"].split("."))
            self.stamp_on = True
            self.o["probe"] = 1 if self.only[0] == "R" else 101

    def stamp(self, name):
        if not self.stamp_on:
            return
        if self.only and name != "start" and (self.role, name) != self.only:
            return
        k = self.nstamp
        self.nstamp += 1
        self.names.append(name)
        assert sSTAMP + k < 100
        self.A(f"s_memrealtime s[100:101]")
        self.A("s_waitcnt lgkmcnt(0)")
        self.A(f"s_mov_b32 s{sSTAMP + k}, s100")

    def poll(self, name, loads, check, base_exec="-1"):
        A = self.A
        for c in check:
            A(c)
        A(f"s_cbranch_vccnz L_retry_{name}")
        A(f"L_ok_{name}:")
        T = self.tail
        T(f"L_retry_{name}:")
        T(f"s_mov_b32 s{sSPIN}, 0x40000")
        T(f"L_again_{name}:")
        T(f"s_sub_u32 s{sSPIN}, s{sSPIN}, 1")
        T(f"s_cbranch_scc1 L_ok_{name}")
        T("s_mov_b64 exec, vcc")
        for l in loads:
            T(l)
        T("s_waitcnt vmcnt(0)")
        for c in check:
            T(c)
        T(f"s_mov_b64 exec, {base_exec}")
        T(f"s_cbranch_vccnz L_again_{name}")
        T(f"s_branch L_ok_{name}")

    def cmul(self, d, x, y, t):
        return [f"v_pk_mul_f32 {v(t, 2)}, {v(x, 2)}, {v(y, 2)} op_sel:[0,0] op_sel_hi:[0,1]",
                f"v_pk_fma_f32 {v(d, 2)}, {v(x, 2)}, {v(y, 2)}, {v(t, 2)} op_sel:[1,1,0] op_sel_hi:[1,0,1] neg_lo:[1,0,0]"]

    def reduce8(self, V, t):
        A = self.A
        for i in range(4):
            A(f"v_add_f32_dpp {v(V[i])}, {v(V[i])}, {v(V[i])} row_ror:8 row_mask:0xf bank_mask:0x3")
        for i in range(4):
            A(f"v_add_f32_dpp {v(V[i])}, {v(V[i + 4])}, {v(V[i + 4])} row_ror:8 row_mask:0xf bank_mask:0xc")
        for i in range(2):
            A(f"v_add_f32_dpp {v(V[i])}, {v(V[i])}, {v(V[i])} row_shl:4 row_mask:0xf bank_mask:0x5")
        for i in range(2):
            A(f"v_add_f32_dpp {v(V[i])}, {v(V[i + 2])}, {v(V[i + 2])} row_shr:4 row_mask:0xf bank_mask:0xa")
        A(f"v_permlane32_swap_b32 {v(V[0])}, {v(V[1])}")
        A(f"v_add_f32 {v(V[0])}, {v(V[0])}, {v(V[1])}")
        A(f"v_add_f32_dpp {v(V[0])}, {v(V[0])}, {v(V[0])} quad_perm:[2,3,0,1] row_mask:0xf bank_mask:0xf")
        A(f"v_mov_b32 {v(t)}, {v(V[0])}")
        A(f"v_permlane16_swap_b32 {v(V[0])}, {v(t)}")
        A(f"v_add_f32 {v(V[0])}, {v(V[0])}, {v(t)}")

    def row_stats(self, S, Q, negm, rinv, t):
        A = self.A
        A(f"v_pk_add_f32 {v(S, 2)}, {v(S, 2)}, {v(S + 2, 2)}")
        A(f"v_pk_add_f32 {v(Q, 2)}, {v(Q, 2)}, {v(Q + 2, 2)}")
        A(f"v_add_f32 {v(S)}, {v(S)}, {v(S + 1)}")
        A(f"v_add_f32 {v(Q)}, {v(Q)}, {v(Q + 1)}")
        A(f"v_mul_f32 {v(S)}, {hex(f2u(1 / 512))}, {v(S)}")
        A(f"v_mul_f32 {v(Q)}, {hex(f2u(1 / 512))}, {v(Q)}")
        A(f"v_fma_f32 {v(Q)}, -{v(S)}, {v(S)}, {v(Q)}")
        A(f"v_max_f32 {v(Q)}, 0, {v(Q)}")
        A(f"v_cvt_pk_bf16_f32 {v(t)}, -{v(S)}, {v(Q)}")
        A(f"v_and_b32 {v(Q)}, s{sMASK}, {v(t)}")
        A(f"v_add_f32 {v(Q)}, {hex(f2u(1e-5))}, {v(Q)}")
        A(f"v_cvt_pk_bf16_f32 {v(Q)}, {v(Q)}, {v(Q)}")
        A(f"v_and_b32 {v(Q)}, s{sMASK}, {v(Q)}")
        A(f"v_sqrt_f32 {v(Q)}, {v(Q)}")
        A(f"v_lshlrev_b32 {v(negm)}, 16, {v(t)}")
        A(f"v_cvt_pk_bf16_f32 {v(Q)}, {v(Q)}, {v(Q)}")
        A(f"v_and_b32 {v(Q)}, s{sMASK}, {v(Q)}")
        A(f"v_rcp_f32 {v(rinv)}, {v(Q)}")

    def spread(self, val, dst, t):
        A = self.A
        for r in range(4):
            A(f"v_mov_b32_dpp {v(t + r)}, {v(val)} row_newbcast:{4 + r} row_mask:0xf bank_mask:0xf")
        for r in range(4):
            A(f"v_cndmask_b32_dpp {v(dst + r)}, {v(val)}, {v(t + r)}, vcc row_newbcast:{r} row_mask:0xf bank_mask:0xf")

    def key_calc(self, K, vRA, vLANE):
        A = self.A
        A(f"v_mov_b32 {v(K + 14)}, {L_SUMW}")
        A(f"ds_read_b128 {v(K, 4)}, {v(vRA)} offset:{L_RED2 - L_RED1}")
        A(f"ds_read_b128 {v(K + 4, 4)}, {v(vRA)} offset:{L_RED2 - L_RED1 + 128}")
        A(f"ds_read_b128 {v(K + 8, 4)}, {v(vRA)} offset:{L_RED2 - L_RED1 + 256}")
        A(f"ds_read_b32 {v(K + 15)}, {v(K + 14)}")
        A(f"s_lshl_b32 s{sTMP}, s{sL}, 3")
        A(f"s_sub_u32 s{sTMP}, 2047, s{sTMP}")
        A(f"v_and_b32 {v(K + 14)}, 7, {v(vLANE)}")
        A(f"v_sub_u32 {v(K + 14)}, s{sTMP}, {v(K + 14)}")
        A("s_waitcnt lgkmcnt(2)")
        self.row_stats(K, K + 4, K + 12, K + 13, K + 28)
        A("s_waitcnt lgkmcnt(0)")
        A(f"v_pk_add_f32 {v(K + 8, 2)}, {v(K + 8, 2)}, {v(K + 10, 2)}")
        A(f"v_add_f32 {v(K + 8)}, {v(K + 8)}, {v(K + 9)}")
        A(f"v_fmac_f32 {v(K + 8)}, {v(K + 12)}, {v(K + 15)}")
        A(f"v_mul_f32 {v(K + 8)}, {v(K + 8)}, {v(K + 13)}")
        A(f"v_ashrrev_i32 {v(K + 9)}, 31, {v(K + 8)}")
        A(f"v_or_b32 {v(K + 9)}, 0x80000000, {v(K + 9)}")
        A(f"v_xor_b32 {v(K + 8)}, {v(K + 8)}, {v(K + 9)}")
        A(f"v_and_b32 {v(K + 8)}, 0xfffff800, {v(K + 8)}")
        A(f"v_or_b32 {v(K + 8)}, {v(K + 8)}, {v(K + 14)}")
        A(f"v_min_u32 {v(K + 8)}, -2, {v(K + 8)}")
        A(f"v_max_u32_dpp {v(K + 8)}, {v(K + 8)}, {v(K + 8)} quad_perm:[1,0,3,2] row_mask:0xf bank_mask:0xf")
        A(f"v_max_u32_dpp {v(K + 8)}, {v(K + 8)}, {v(K + 8)} quad_perm:[2,3,0,1] row_mask:0xf bank_mask:0xf")
        A(f"v_max_u32_dpp {v(K + 8)}, {v(K + 8)}, {v(K + 8)} row_half_mirror row_mask:0xf bank_mask:0xf")

    def finish(self, role):
        A = self.A
        o = self.o
        if self.stamp_on:
            self.stamp("end")
            self.allnames[role] = self.names
        if self.stamp_on and "probe" in o:
            k = o["probe"]
            if k == 98 and role == "R":
                A(f"s_getreg_b32 s{sTMP}, hwreg(HW_REG_XCC_ID, 0, 4)")
                A(f"s_sub_u32 s{sTMP}, s{sTMP}, s2")
                A(f"s_and_b32 s{sTMP}, s{sTMP}, 7")
                A(f"s_mul_i32 s{sTMP}, s{sTMP}, 1000")
                A(f"s_add_u32 s{sTMP}, s{sTMP}, 2000")
            elif k == 99 and role == "R":
                A("s_memtime s[96:97]")
                A("s_waitcnt lgkmcnt(0)")
                A("s_sub_u32 s96, s96, s98")
                A(f"s_sub_u32 s97, s{sSTAMP + self.nstamp - 1}, s{sSTAMP}")
                A("s_mov_b64 exec, -1")
                A("v_cvt_f32_u32 v2, s96")
                A("v_cvt_f32_u32 v3, s97")
                A("v_rcp_f32 v3, v3")
                A("s_nop 1")
                A("v_mul_f32 v2, v2, v3")
                A("v_mul_f32 v2, 0x43c80000, v2")
                A("v_cvt_u32_f32 v2, v2")
                A("s_nop 1")
                A(f"v_readfirstlane_b32 s{sTMP}, v2")
                A(f"s_add_u32 s{sTMP}, s{sTMP}, 2000")
            elif k < 0 and role == "R":
                A(f"s_mov_b32 s{sTMP}, {-k}")
            elif k >= 0 and (k >= 100) == (role == "C"):
                A(f"s_sub_u32 s{sTMP}, s{sSTAMP + k % 100}, s{sSTAMP}")
                A(f"s_cmp_lt_u32 s{sTMP}, 3000")
                A(f"s_cselect_b32 s{sTMP}, s{sTMP}, 0")
                A(f"s_mul_i32 s{sTMP}, s{sTMP}, 20")
                A(f"s_add_u32 s{sTMP}, s{sTMP}, 2000")
                if role == "C":
                    A(f"s_cmp_eq_u32 s{sWAVE}, 0")
                    A(f"s_cselect_b32 s{sTMP}, s{sTMP}, 0")
            else:
                A(f"s_mov_b32 s{sTMP}, 0")
            A(f"L_spin{role}:")
            A("s_memrealtime s[100:101]")
            A("s_waitcnt lgkmcnt(0)")
            A(f"s_sub_u32 s100, s100, s{sSTAMP}")
            A(f"s_cmp_lt_u32 s100, s{sTMP}")
            A(f"s_cbranch_scc1 L_spin{role}")
        elif self.stamp_on:
            A("s_mov_b64 exec, 1")
            A(f"s_lshl_b32 s{sTMP}, s2, 3")
            A(f"s_add_u32 s{sTMP}, s{sTMP}, s{sWAVE}")
            if role == "C":
                A(f"s_add_u32 s{sTMP}, s{sTMP}, 4")
            A(f"s_lshl_b32 s{sTMP}, s{sTMP}, 7")
            A(f"s_add_u32 s{sTMP}, s{sTMP}, {W_STAMP}")
            A(f"v_mov_b32 v1, s{sTMP}")
            for k in range(self.nstamp):
                A(f"v_mov_b32 v2, s{sSTAMP + k}")
                A(f"global_store_dword v1, v2, {sp(sWS)} offset:{4 * k}")
        A("s_endpgm")

    def build(self):
        A = self.A
        self.allnames = {}
        A(f"{KNAME}:")
        A("s_cmp_ge_u32 s2, 256")
        A("s_cbranch_scc1 L_end")
        self.stamp("start")
        if self.o.get("probe", 0) == 99:
            A("s_memtime s[98:99]")
        if self.o.get("codepf", 1):
            A(f"s_getpc_b64 {sp(sE)}")
            A("L_pc:")
            A("v_lshlrev_b32 v2, 5, v0")
            A(f"v_min_u32 v2, L_codeend-L_pc-4, v2")
            A(f"global_load_dword v3, v2, {sp(sE)}")
        A("s_load_dwordx16 s[4:19], s[0:1], 0")
        A("s_load_dwordx8 s[20:27], s[0:1], 64")
        A("s_load_dwordx4 s[28:31], s[0:1], 96")
        A("s_load_dwordx2 s[32:33], s[0:1], 112")
        A("v_lshrrev_b32 v4, 6, v0")
        A(f"s_and_b32 s{sXCD}, s2, 7")
        A(f"v_readfirstlane_b32 s{sWAVE}, v4")
        A(f"s_lshr_b32 s{sPOS}, s2, 3")
        A(f"s_lshl_b32 s{sL}, s{sXCD}, 5")
        A(f"s_add_u32 s{sL}, s{sL}, s{sPOS}")
        A("v_and_b32 v1, 63, v0")
        A(f"s_mov_b32 s{sMASK}, 0xffff0000")
        A(f"s_cmp_ge_u32 s{sWAVE}, 4")
        A("s_cbranch_scc1 L_chan")
        self.rows()
        self.names = self.names[:1]
        self.nstamp = min(self.nstamp, 1)
        A(".p2align 6")
        self.role = "C"
        self.chans()
        A("L_end:")
        A("s_endpgm")
        for l in self.tail.L:
            A(l)
        A("L_codeend:")
        lines, nops = A.padded()
        lines, nbytes, promoted, missed = align8(lines)
        self.info = dict(nops=nops, bytes=nbytes, promoted=promoted, missed=missed, lines=len(lines))
        return lines

    def rows(self):
        A = self.A
        o = self.o
        vLANE = 1
        vX, vU, vD, vWR = 212, 10, 18, 20
        vREG, vRD, vAUX = 22, 23, 24
        vKEY, vSW, vRA, vFL, vUW = 26, 27, 28, 29, 30
        vT = 32
        vWG, vWD = 40, 72
        vY = 88
        vONE = 96
        K = 100
        L2E = 1.4426950408889634
        A(f"v_lshrrev_b32 {v(vT)}, 1, v0")
        A(f"v_and_b32 {v(vT + 1)}, 1, v0")
        A(f"v_lshlrev_b32 {v(vT + 2)}, 3, {v(vT)}")
        A(f"s_lshl_b32 s{sT0}, s{sL}, 13")
        A(f"v_lshl_add_u32 {v(vRD)}, {v(vT + 1)}, 12, {v(vT + 2)}")
        A(f"v_add_u32 {v(vRD)}, s{sT0}, {v(vRD)}")
        A(f"s_mul_i32 s{sOWN}, s{sL}, {RS}")
        A(f"s_add_u32 s{sOWN}, s{sOWN}, {W_REG}")
        A(f"s_add_u32 s{sT0}, s{sOWN}, 4096")
        A(f"v_lshl_add_u32 {v(vREG)}, v0, 4, s{sT0}")
        A(f"v_lshlrev_b32 {v(vT + 3)}, 4, {v(vLANE)}")
        nt = ' nt' if o.get('ntx', 1) else ''
        A("s_waitcnt lgkmcnt(0)")
        self.stamp("karg")
        for r in range(4):
            A(f"global_load_dwordx2 {v(vX + 2 * r, 2)}, {v(vRD)}, {sp(sX)} offset:{1024 * r}{nt}")
        A(f"s_load_dword s{sG}, {sp(sWS)}, 0")
        A(f"global_load_dwordx2 {v(vD, 2)}, {v(vT + 2)}, {sp(sD)}")
        A(f"global_load_dwordx2 {v(vWR, 2)}, {v(vT + 2)}, {sp(sWR)}")
        A(f"global_load_dwordx4 {v(vONE, 4)}, {v(vT + 3)}, {sp(sWR)}")
        A(f"s_mov_b32 s{sODD}, 0xaaaaaaaa")
        A(f"s_mov_b32 s{sODD + 1}, 0xaaaaaaaa")
        A(f"s_mov_b32 s{sSELLO}, 0x3f80")
        A(f"s_mov_b32 s{sSELHI}, 0x3f800000")
        A(f"s_mov_b32 s{sONES}, 0x3f803f80")
        A(f"s_and_b32 s{sTMP}, s{sL}, 1")
        A(f"s_lshl_b32 s{sTMP}, s{sTMP}, 12")
        A(f"s_lshr_b32 s{sTMP + 1}, s{sL}, 1")
        A(f"s_lshl_b32 s{sTMP + 1}, s{sTMP + 1}, 5")
        A(f"s_add_u32 s{sTMP}, s{sTMP}, s{sTMP + 1}")
        A(f"s_add_u32 s{sTMP}, s{sTMP}, {W_REG + O_X1}")
        A(f"v_mul_u32_u24 {v(vAUX)}, {RS}, {v(vT)}")
        A(f"v_lshl_add_u32 {v(vAUX)}, {v(vT + 1)}, 4, {v(vAUX)}")
        A(f"v_add_u32 {v(vAUX)}, s{sTMP}, {v(vAUX)}")
        A(f"v_add_u32 {v(vAUX + 1)}, {128 * RS}, {v(vAUX)}")
        FS = o.get("fs", 7)
        KS = o.get("ks", 5)
        A(f"v_lshlrev_b32 {v(vFL)}, {FS}, {v(vT)}")
        A(f"v_add_u32 {v(vFL)}, {W_FLAG}, {v(vFL)}")
        A(f"v_add_u32 {v(vFL + 2)}, {128 << FS}, {v(vFL)}")
        A(f"s_lshl_b32 s{sT0}, s{sL}, {FS}")
        A(f"s_add_u32 s{sT0}, s{sT0}, {W_FLAG}")
        A(f"v_lshl_add_u32 {v(vKEY)}, {v(vLANE)}, 4, s{sT0}")
        A(f"v_lshlrev_b32 {v(vSW)}, 6, {v(vT + 1)}")
        A(f"v_and_b32 {v(vT + 3)}, 4, {v(vLANE)}")
        A(f"v_lshl_add_u32 {v(vSW)}, {v(vT + 3)}, 3, {v(vSW)}")
        A(f"v_and_b32 {v(vT + 3)}, 8, {v(vLANE)}")
        A(f"v_lshl_add_u32 {v(vSW)}, {v(vT + 3)}, 4, {v(vSW)}")
        A(f"v_lshrrev_b32 {v(vT + 3)}, 5, {v(vLANE)}")
        A(f"v_lshl_add_u32 {v(vSW)}, {v(vT + 3)}, 4, {v(vSW)}")
        A(f"s_lshl_b32 s{sTMP}, s{sWAVE}, 2")
        A(f"s_add_u32 s{sTMP}, s{sTMP}, {L_RED1}")
        A(f"v_add_u32 {v(vSW)}, s{sTMP}, {v(vSW)}")
        A(f"v_and_b32 {v(vT + 3)}, 7, {v(vLANE)}")
        A(f"v_lshlrev_b32 {v(vRA)}, 4, {v(vT + 3)}")
        A(f"v_add_u32 {v(vRA)}, {L_RED1}, {v(vRA)}")
        A(f"v_lshlrev_b32 {v(vUW)}, 3, v0")
        A(f"v_mov_b32 {v(K)}, 0")
        A(f"v_mov_b32 {v(K + 1)}, 0")
        A(f"v_min_u32 {v(vT + 3)}, 472, {v(vUW)}")
        A(f"v_add_u32 {v(vT + 3)}, {L_U}, {v(vT + 3)}")
        A(f"v_min_u32 {v(vT + 4)}, 56, {v(vUW)}")
        A(f"v_add_u32 {v(vT + 4)}, {L_P}, {v(vT + 4)}")
        A(f"ds_write2st64_b64 {v(vT + 3)}, {v(K, 2)}, {v(K, 2)} offset0:0 offset1:9")
        A(f"ds_write_b64 {v(vT + 4)}, {v(K, 2)}")
        A(f"ds_write_b64 {v(vT + 4)}, {v(K, 2)} offset:{PC}")
        A(f"v_add_u32 {v(vUW)}, {L_U + 480}, {v(vUW)}")

        V = [K + i for i in range(8)]
        A("s_waitcnt vmcnt(3)")
        self.stamp("x")
        for r in range(4):
            A(f"v_dot2_f32_bf16 {v(V[r])}, {v(vX + 2 * r)}, s{sONES}, 0")
        for r in range(4):
            A(f"v_dot2_f32_bf16 {v(V[4 + r])}, {v(vX + 2 * r)}, {v(vX + 2 * r)}, 0")
        for r in range(4):
            A(f"v_dot2_f32_bf16 {v(V[r])}, {v(vX + 2 * r + 1)}, s{sONES}, {v(V[r])}")
        for r in range(4):
            A(f"v_dot2_f32_bf16 {v(V[4 + r])}, {v(vX + 2 * r + 1)}, {v(vX + 2 * r + 1)}, {v(V[4 + r])}")
        self.reduce8(V, K + 8)
        A(f"ds_write_b32 {v(vSW)}, {v(V[0])}")
        A("s_waitcnt lgkmcnt(0)")
        A("s_barrier")
        self.stamp("b1")
        A(f"ds_read_b128 {v(K, 4)}, {v(vRA)}")
        A(f"ds_read_b128 {v(K + 4, 4)}, {v(vRA)} offset:128")
        A(f"s_add_u32 s{sG}, s{sG}, 0x9e3779b9")
        fw = o.get("fw", 1)
        for k in range(4 if fw else 1):
            A(f"v_mov_b32 {v(K + 28 + k)}, s{sG}")
        A(f"s_cmp_eq_u32 s{sWAVE}, 0")
        if fw:
            A(f"s_cselect_b64 exec, {(1 << ((1 << FS) // 16)) - 1}, 0")
            A(f"global_store_dwordx4 {v(vKEY)}, {v(K + 28, 4)}, {sp(sWS)} sc1")
        else:
            A("s_cselect_b64 exec, 1, 0")
            A(f"global_store_dword {v(vKEY)}, {v(K + 28)}, {sp(sWS)} sc1")
        A("s_mov_b64 exec, -1")
        A(f"s_mov_b64 vcc, {sp(sODD)}")
        A("s_waitcnt lgkmcnt(0)")
        vNM, vRI = K + 16, K + 20
        self.row_stats(K, K + 4, K + 10, K + 11, K + 12)
        self.spread(K + 10, vNM, K + 24)
        Dd = K + 32
        for c in range(4):
            for r in range(4):
                A(f"v_dot2_f32_bf16 {v(Dd + 4 * c + r)}, {v(vX + 2 * r + (c >> 1))}, s{sSELHI if c & 1 else sSELLO}, {v(vNM + r)}")
        self.spread(K + 11, vRI, K + 24)
        Pk = K + 48
        for half in range(2):
            ks = range(4 * half, 4 * half + 4)
            for k in ks:
                A(f"v_cvt_pk_bf16_f32 {v(Pk + k)}, {v(Dd + 2 * k)}, {v(Dd + 2 * k + 1)}")
            for k in ks:
                A(f"v_lshlrev_b32 {v(Dd + 2 * k)}, 16, {v(Pk + k)}")
                A(f"v_and_b32 {v(Dd + 2 * k + 1)}, s{sMASK}, {v(Pk + k)}")
            for k in ks:
                A(f"v_pk_mul_f32 {v(Dd + 2 * k, 2)}, {v(Dd + 2 * k, 2)}, {v(vRI + 2 * (k & 1), 2)}")
            for k in ks:
                A(f"v_cvt_pk_bf16_f32 {v(vU + k)}, {v(Dd + 2 * k)}, {v(Dd + 2 * k + 1)}")
            A(f"global_store_dwordx4 {v(vREG)}, {v(vU + 4 * half, 4)}, {sp(sWS)} offset:{-4096 + 4096 * half} sc1")
        self.stamp("x1st")
        fl = [f"global_load_dword {v(vT + 4)}, {v(vFL)}, {sp(sWS)} sc1",
              f"global_load_dword {v(vT + 5)}, {v(vFL + 2)}, {sp(sWS)} sc1"]
        flchk = [f"v_xor_b32 {v(vT + 6)}, s{sG}, {v(vT + 4)}",
                 f"v_xor_b32 {v(vT + 7)}, s{sG}, {v(vT + 5)}",
                 f"v_or_b32 {v(vT + 6)}, {v(vT + 6)}, {v(vT + 7)}",
                 f"v_cmp_ne_u32 vcc, 0, {v(vT + 6)}"]
        flmode = o.get("flmode", 1)
        if flmode == 1:
            A("s_waitcnt vmcnt(0)")
        if flmode < 2:
            for l in fl:
                A(l)
        A("s_barrier")
        if flmode == 2:
            for l in fl:
                A(l)
        A("s_waitcnt vmcnt(0)")
        self.stamp("x1dr")
        self.poll("flag", fl, flchk)
        xl = [f"global_load_dwordx4 {v(vY, 4)}, {v(vAUX)}, {sp(sWS)} sc1",
              f"global_load_dwordx4 {v(vY + 4, 4)}, {v(vAUX + 1)}, {sp(sWS)} sc1"]
        for l in xl:
            A(l)
        self.stamp("flag")
        A(f"s_mul_i32 s{sF}, s{sXCD}, 14")
        A(f"s_add_u32 s{sF}, s{sF}, s{sPOS}")
        A(f"s_bitcmp1_b32 s{sWAVE}, 0")
        A(f"s_cselect_b64 {sp(sWSEL)}, {sp(sWU)}, {sp(sWG)}")
        A(f"s_lshr_b32 s{sTMP + 1}, s{sWAVE}, 1")
        A(f"s_mul_i32 s{sTMP + 1}, s{sTMP + 1}, {256 * 3584}")
        A(f"s_lshl_b32 s{sTMP + 2}, s{sF}, 5")
        A(f"s_add_u32 s{sTMP + 1}, s{sTMP + 1}, s{sTMP + 2}")
        vWA = K + 8
        A(f"v_lshrrev_b32 {v(vWA)}, 1, {v(vLANE)}")
        A(f"v_mul_u32_u24 {v(vWA)}, {8 * 3584}, {v(vWA)}")
        A(f"v_lshl_add_u32 {v(vWA)}, {v(vT + 1)}, 4, {v(vWA)}")
        A(f"v_add_u32 {v(vWA)}, s{sTMP + 1}, {v(vWA)}")
        A(f"v_add_u32 {v(vWA + 2)}, {7 * 3584}, {v(vWA)}")
        A(f"v_add_u32 {v(vWA + 1)}, {4 * 3584}, {v(vWA)}")
        A(f"v_add_u32 {v(vWA)}, 3584, {v(vWA)}")
        A(f"s_lshl_b32 s{sTMP + 1}, s{sF}, 14")
        A(f"s_add_u32 s{sTMP + 1}, s{sTMP + 1}, 4096")
        A(f"v_lshl_add_u32 {v(vWA + 3)}, v0, 2, s{sTMP + 1}")
        A(f"v_add_u32 {v(vWA + 4)}, 8192, {v(vWA + 3)}")
        A(f"v_dot2_f32_bf16 {v(K + 4)}, {v(vONE)}, s{sONES}, 0")
        for k in range(1, 4):
            A(f"v_dot2_f32_bf16 {v(K + 4)}, {v(vONE + k)}, s{sONES}, {v(K + 4)}")
        A(f"v_mov_b32 {v(K + 5)}, {L_SUMW}")
        A(f"s_mov_b32 s{sRP0}, 0x05040100")
        A(f"s_mov_b32 s{sRP1}, 0x07060302")
        for sh in (8, 4, 2, 1):
            A(f"v_add_f32_dpp {v(K + 4)}, {v(K + 4)}, {v(K + 4)} row_ror:{sh} row_mask:0xf bank_mask:0xf")
        A(f"v_add_f32_dpp {v(K + 4)}, {v(K + 4)}, {v(K + 4)} row_bcast:15 row_mask:0xa bank_mask:0xf")
        A(f"v_add_f32_dpp {v(K + 4)}, {v(K + 4)}, {v(K + 4)} row_bcast:31 row_mask:0xc bank_mask:0xf")
        A("s_mov_b32 exec_lo, 0")
        A("s_brev_b32 exec_hi, 1")
        A(f"ds_write_b32 {v(K + 5)}, {v(K + 4)}")
        A("s_mov_b64 exec, -1")
        A("s_barrier")
        A("s_waitcnt vmcnt(0)")
        chk8 = [f"v_max3_u32 {v(vT + 6)}, {v(vY)}, {v(vY + 1)}, {v(vY + 2)}",
                f"v_max3_u32 {v(vT + 7)}, {v(vY + 3)}, {v(vY + 4)}, {v(vY + 5)}",
                f"v_max3_u32 {v(vT + 6)}, {v(vT + 6)}, {v(vY + 6)}, {v(vY + 7)}",
                f"v_max_u32 {v(vT + 6)}, {v(vT + 6)}, {v(vT + 7)}",
                f"v_cmp_eq_u32 vcc, -1, {v(vT + 6)}"]
        self.poll("x1", xl, chk8)
        self.stamp("x1ld")
        A(f"ds_write2st64_b64 {v(vUW)}, {v(vY, 2)}, {v(vY + 2, 2)} offset0:0 offset1:9")
        A(f"ds_write2st64_b64 {v(vUW)}, {v(vY + 4, 2)}, {v(vY + 6, 2)} offset0:4 offset1:13")
        A("s_waitcnt lgkmcnt(0)")
        A("s_barrier")

        A(f"s_cmp_lt_u32 s{sPOS}, 14")
        A("s_cbranch_scc0 L_now")
        for k in range(8):
            A(f"global_load_dwordx4 {v(vWG + 4 * k, 4)}, {v(vWA + k // 3)}, {sp(sWSEL)} offset:{(k % 3 - 1) * 3584}")
        self.stamp("wq1")
        if o.get("wwait"):
            A("s_waitcnt vmcnt(0)")
            self.stamp("wq1w")
        for k in range(16):
            A(f"global_load_dword {v(vWD + k)}, {v(vWA + 3 + (k >> 3))}, {sp(sWD)} offset:{((k & 7) - 4) * 1024}")
        self.stamp("wq2")
        if o.get("wwait"):
            A("s_waitcnt vmcnt(0)")
            self.stamp("wq2w")
        A("L_now:")
        A(f"v_and_b32 {v(vT + 3)}, 0xfe, v0")
        A(f"v_mul_u32_u24 {v(vAUX)}, {RS}, {v(vT + 3)}")
        A(f"v_lshl_add_u32 {v(vAUX)}, {v(vT + 1)}, 4, {v(vAUX)}")
        A(f"s_lshl_b32 s{sTMP}, s{sL}, 5")
        A(f"s_add_u32 s{sTMP}, s{sTMP}, {W_REG + O_X2}")
        A(f"v_add_u32 {v(vAUX)}, s{sTMP}, {v(vAUX)}")
        A(f"v_add_u32 {v(vAUX + 1)}, {RS}, {v(vAUX)}")
        Tt, Xf = K + 40, K + 56
        Df = K + 72
        for k in range(8):
            A(f"v_lshlrev_b32 {v(Tt + 2 * k)}, 16, {v(vU + k)}")
            A(f"v_and_b32 {v(Tt + 2 * k + 1)}, s{sMASK}, {v(vU + k)}")
        A(f"v_lshlrev_b32 {v(Df)}, 16, {v(vD)}")
        A(f"v_and_b32 {v(Df + 1)}, s{sMASK}, {v(vD)}")
        A(f"v_lshlrev_b32 {v(Df + 2)}, 16, {v(vD + 1)}")
        A(f"v_and_b32 {v(Df + 3)}, s{sMASK}, {v(vD + 1)}")
        for k in range(8):
            c = k >> 1
            sel = "op_sel:[1,0] op_sel_hi:[1,1]" if c & 1 else "op_sel_hi:[0,1]"
            A(f"v_pk_mul_f32 {v(Tt + 2 * k, 2)}, {v(Df + (c & 2), 2)}, {v(Tt + 2 * k, 2)} {sel}")
        for k in range(8):
            A(f"v_cvt_pk_bf16_f32 {v(Xf + k)}, {v(Tt + 2 * k)}, {v(Tt + 2 * k + 1)}")
        for k in range(8):
            A(f"v_lshlrev_b32 {v(Tt + 2 * k)}, 16, {v(Xf + k)}")
            A(f"v_and_b32 {v(Tt + 2 * k + 1)}, s{sMASK}, {v(Xf + k)}")
        for r in range(4):
            for c in range(4):
                src = v(vX + 2 * r + (c >> 1))
                if c & 1:
                    A(f"v_and_b32 {v(Xf + 4 * c + r)}, s{sMASK}, {src}")
                else:
                    A(f"v_lshlrev_b32 {v(Xf + 4 * c + r)}, 16, {src}")
        self.stamp("shadow")
        A("s_barrier")
        A("s_barrier")
        self.stamp("b4b")
        for l in xl:
            A(l)
        A("s_waitcnt vmcnt(0)")
        self.poll("x2", xl, chk8)
        self.stamp("x2ld")

        for k in range(8):
            A(f"v_dot2_f32_bf16 {v(Tt + 2 * k)}, {v(vY + k)}, s{sSELLO}, {v(Tt + 2 * k)}")
            A(f"v_dot2_f32_bf16 {v(Tt + 2 * k + 1)}, {v(vY + k)}, s{sSELHI}, {v(Tt + 2 * k + 1)}")
        for k in range(8):
            A(f"v_cvt_pk_bf16_f32 {v(vY + k)}, {v(Tt + 2 * k)}, {v(Tt + 2 * k + 1)}")
        for k in range(8):
            A(f"v_dot2_f32_bf16 {v(Xf + 2 * k)}, {v(vY + k)}, s{sSELLO}, {v(Xf + 2 * k)}")
            A(f"v_dot2_f32_bf16 {v(Xf + 2 * k + 1)}, {v(vY + k)}, s{sSELHI}, {v(Xf + 2 * k + 1)}")
        vH = vX
        for cp in range(2):
            for r in range(4):
                A(f"v_cvt_pk_bf16_f32 {v(vH + 2 * r + cp)}, {v(Xf + 8 * cp + r)}, {v(Xf + 8 * cp + 4 + r)}")
        Rr = [K + 8 + i for i in range(4)]
        for cp in range(2):
            for r in range(4):
                A(f"v_dot2_f32_bf16 {v(V[r])}, {v(vH + 2 * r + cp)}, s{sONES}, {v(V[r]) if cp else 0}")
            for r in range(4):
                A(f"v_dot2_f32_bf16 {v(V[4 + r])}, {v(vH + 2 * r + cp)}, {v(vH + 2 * r + cp)}, {v(V[4 + r]) if cp else 0}")
            for r in range(4):
                A(f"v_dot2_f32_bf16 {v(Rr[r])}, {v(vH + 2 * r + cp)}, {v(vWR + cp)}, {v(Rr[r]) if cp else 0}")
        for i in range(4):
            A(f"v_add_f32_dpp {v(V[i])}, {v(V[i])}, {v(V[i])} row_ror:8 row_mask:0xf bank_mask:0x3")
        for i in range(4):
            A(f"v_add_f32_dpp {v(V[i])}, {v(V[i + 4])}, {v(V[i + 4])} row_ror:8 row_mask:0xf bank_mask:0xc")
        for i in range(2):
            A(f"v_add_f32_dpp {v(Rr[i])}, {v(Rr[i])}, {v(Rr[i])} row_shl:4 row_mask:0xf bank_mask:0x5")
        for i in range(2):
            A(f"v_add_f32_dpp {v(Rr[i])}, {v(Rr[i + 2])}, {v(Rr[i + 2])} row_shr:4 row_mask:0xf bank_mask:0xa")
        for i in range(2):
            A(f"v_add_f32_dpp {v(V[i])}, {v(V[i])}, {v(V[i])} row_shl:4 row_mask:0xf bank_mask:0x5")
        for i in range(2):
            A(f"v_add_f32_dpp {v(V[i])}, {v(V[i + 2])}, {v(V[i + 2])} row_shr:4 row_mask:0xf bank_mask:0xa")
        A(f"v_permlane32_swap_b32 {v(Rr[0])}, {v(Rr[1])}")
        A(f"v_and_b32 {v(K + 13)}, 0xffffff7f, {v(vSW)}")
        A(f"v_permlane32_swap_b32 {v(V[0])}, {v(V[1])}")
        A(f"v_add_f32 {v(Rr[0])}, {v(Rr[0])}, {v(Rr[1])}")
        A(f"v_add_f32 {v(V[0])}, {v(V[0])}, {v(V[1])}")
        A(f"s_mov_b64 vcc, {sp(sODD)}")
        A(f"v_add_f32_dpp {v(Rr[0])}, {v(Rr[0])}, {v(Rr[0])} row_ror:8 row_mask:0xf bank_mask:0xf")
        A(f"v_add_f32_dpp {v(V[0])}, {v(V[0])}, {v(V[0])} quad_perm:[2,3,0,1] row_mask:0xf bank_mask:0xf")
        A(f"v_mov_b32 {v(V[1])}, {v(V[0])}")
        A(f"v_add_f32_dpp {v(Rr[0])}, {v(Rr[0])}, {v(Rr[0])} quad_perm:[2,3,0,1] row_mask:0xf bank_mask:0xf")
        A(f"v_mov_b32 {v(Rr[1])}, {v(Rr[0])}")
        A(f"v_permlane16_swap_b32 {v(V[0])}, {v(V[1])}")
        A(f"v_add_f32 {v(V[0])}, {v(V[0])}, {v(V[1])}")
        A(f"v_permlane16_swap_b32 {v(Rr[0])}, {v(Rr[1])}")
        A(f"v_add_f32 {v(Rr[0])}, {v(Rr[0])}, {v(Rr[1])}")
        A(f"ds_write_b32 {v(vSW)}, {v(V[0])} offset:{L_RED2 - L_RED1}")
        A(f"ds_write_b32 {v(K + 13)}, {v(Rr[0])} offset:{L_RED2 - L_RED1 + 256}")
        A("s_waitcnt lgkmcnt(0)")
        A("s_barrier")
        self.stamp("b5")
        Hf, Dd = Xf, Tt
        self.key_calc(K, vRA, vLANE)
        self.spread(K + 12, vNM, K + 24)
        A(f"v_readfirstlane_b32 s{sBEST}, {v(K + 8)}")
        for r in range(4):
            for cp in range(2):
                A(f"v_lshlrev_b32 {v(Hf + 4 * r + 2 * cp)}, 16, {v(vH + 2 * r + cp)}")
                A(f"v_and_b32 {v(Hf + 4 * r + 2 * cp + 1)}, s{sMASK}, {v(vH + 2 * r + cp)}")
        self.spread(K + 13, vRI, K + 24)
        for k in range(8):
            r = k >> 1
            sel = "op_sel:[1,0] op_sel_hi:[1,1]" if r & 1 else "op_sel_hi:[0,1]"
            A(f"v_pk_add_f32 {v(Dd + 2 * k, 2)}, {v(vNM + (r & 2), 2)}, {v(Hf + 2 * k, 2)} {sel}")
        vX2 = vU
        for k in range(8):
            A(f"v_cvt_pk_bf16_f32 {v(vX2 + k)}, {v(Dd + 2 * k)}, {v(Dd + 2 * k + 1)}")
        for k in range(8):
            A(f"v_lshlrev_b32 {v(Dd + 2 * k)}, 16, {v(vX2 + k)}")
            A(f"v_and_b32 {v(Dd + 2 * k + 1)}, s{sMASK}, {v(vX2 + k)}")
        for k in range(8):
            r = k >> 1
            sel = "op_sel:[1,0] op_sel_hi:[1,1]" if r & 1 else "op_sel_hi:[0,1]"
            A(f"v_pk_mul_f32 {v(Dd + 2 * k, 2)}, {v(vRI + (r & 2), 2)}, {v(Dd + 2 * k, 2)} {sel}")
        for k in range(8):
            A(f"v_cvt_pk_bf16_f32 {v(vX2 + k)}, {v(Dd + 2 * k)}, {v(Dd + 2 * k + 1)}")
        A(f"s_andn2_b32 s{sTMP}, 7, s{sBEST}")
        A(f"s_and_b32 s{sTMP + 1}, s{sTMP}, 3")
        A(f"s_lshl_b32 s{sTMP + 2}, s{sTMP + 1}, 1")
        A(f"s_not_b64 {sp(sE)}, {sp(sODD)}")
        A(f"s_cmp_ge_u32 s{sTMP}, 4")
        A(f"s_cselect_b64 {sp(sE)}, {sp(sODD)}, {sp(sE)}")
        vC = K + 24
        A(f"s_set_gpr_idx_on s{sTMP + 2}, gpr_idx(SRC0)")
        A(f"v_mov_b32 {v(vC)}, {v(vX2)}")
        A(f"v_mov_b32 {v(vC + 1)}, {v(vX2 + 1)}")
        A(f"v_mov_b32 {v(vC + 2)}, {v(vH)}")
        A(f"v_mov_b32 {v(vC + 3)}, {v(vH + 1)}")
        A("s_set_gpr_idx_off")
        A(f"s_add_u32 s{sTMP + 3}, s{sOWN}, {O_SLOT}")
        A(f"v_add_u32 {v(vT)}, s{sTMP + 3}, {v(vT + 2)}")
        A(f"s_mov_b64 exec, {sp(sE)}")
        A(f"global_store_dwordx2 {v(vT)}, {v(vC, 2)}, {sp(sWS)} sc1")
        A(f"global_store_dwordx2 {v(vT)}, {v(vC + 2, 2)}, {sp(sWS)} offset:1024 sc1")
        A("s_mov_b64 exec, -1")
        self.stamp("slot")
        for k in range(8):
            A(f"v_dot2_f32_bf16 {v(Hf + 2 * k)}, {v(vX2 + k)}, s{sSELLO}, {v(Hf + 2 * k)}")
            A(f"v_dot2_f32_bf16 {v(Hf + 2 * k + 1)}, {v(vX2 + k)}, s{sSELHI}, {v(Hf + 2 * k + 1)}")
        vO = vY
        A(f"v_mov_b32 {v(vT + 4)}, {L_REDK}")
        for k in range(8):
            A(f"v_cvt_pk_bf16_f32 {v(vO + k)}, {v(Hf + 2 * k)}, {v(Hf + 2 * k + 1)}")
        osc = " sc1" if o.get("outsc", 1) == 1 else (" nt" if o.get("outsc", 1) == 2 else "")
        for r in range(4):
            A(f"s_cmp_eq_u32 s{sTMP + 1}, {r}")
            A(f"s_cselect_b64 vcc, {sp(sE)}, 0")
            A("s_not_b64 exec, vcc")
            A(f"global_store_dwordx2 {v(vRD)}, {v(vO + 2 * r, 2)}, {sp(sOUT)} offset:{1024 * r}{osc}")
        A("s_mov_b64 exec, -1")
        A(f"s_set_gpr_idx_on s{sTMP + 2}, gpr_idx(SRC0)")
        A(f"v_mov_b32 {v(vC + 4)}, {v(vO)}")
        A(f"v_mov_b32 {v(vC + 5)}, {v(vO + 1)}")
        A("s_set_gpr_idx_off")
        A(f"s_lshl_b32 s{sTMP + 1}, s{sTMP + 1}, 10")
        A(f"v_add_u32 {v(vRD)}, s{sTMP + 1}, {v(vRD)}")
        A(f"s_lshr_b32 s{sTMP}, s{sWAVE}, 1")
        A(f"s_lshl_b32 s{sTMP}, s{sTMP}, 9")
        A(f"s_add_u32 s{sTMP}, s{sTMP}, {W_REG + O_SLOT}")
        A(f"v_lshrrev_b32 {v(vT)}, 1, {v(vLANE)}")
        A(f"v_lshl_add_u32 {v(vT)}, {v(vT)}, 4, s{sTMP}")
        A(f"v_lshlrev_b32 {v(vT + 1)}, 6, {v(vT + 1)}")
        A(f"v_and_b32 {v(vT + 2)}, 12, {v(vLANE)}")
        A(f"v_lshl_add_u32 {v(vT + 1)}, {v(vT + 2)}, 2, {v(vT + 1)}")
        A(f"v_lshrrev_b32 {v(vT + 2)}, 5, {v(vLANE)}")
        A(f"v_lshl_add_u32 {v(vT + 1)}, {v(vT + 2)}, 3, {v(vT + 1)}")
        A(f"s_and_b32 s{sTMP}, s{sWAVE}, 1")
        A(f"s_lshl_b32 s{sTMP}, s{sTMP}, 7")
        A(f"s_lshr_b32 s{sTMP + 1}, s{sWAVE}, 1")
        A(f"s_lshl_b32 s{sTMP + 1}, s{sTMP + 1}, 2")
        A(f"s_add_u32 s{sTMP}, s{sTMP}, s{sTMP + 1}")
        A(f"s_add_u32 s{sTMP}, s{sTMP}, {L_REDF}")
        A(f"v_add_u32 {v(vT + 1)}, s{sTMP}, {v(vT + 1)}")
        A(f"v_and_b32 {v(vT + 2)}, 15, {v(vLANE)}")
        A(f"v_lshlrev_b32 {v(vT + 2)}, 3, {v(vT + 2)}")
        A(f"v_add_u32 {v(vT + 2)}, {L_REDF}, {v(vT + 2)}")
        A(f"s_add_u32 s{sTMP}, s{sOWN}, {O_PART}")
        A(f"v_lshl_add_u32 {v(vT + 3)}, v0, 3, s{sTMP}")
        WGp = K + 80
        for kp in range(4):
            for d in range(4):
                lo, hi = vWG + 8 * kp + d, vWG + 8 * kp + 4 + d
                A(f"v_perm_b32 {v(WGp + 8 * kp + 2 * d)}, {v(hi)}, {v(lo)}, s{sRP0}")
                A(f"v_perm_b32 {v(WGp + 8 * kp + 2 * d + 1)}, {v(hi)}, {v(lo)}, s{sRP1}")
        WDp = vWG
        for kp in range(8):
            lo, hi = vWD + 2 * kp, vWD + 2 * kp + 1
            A(f"v_perm_b32 {v(WDp + 2 * kp)}, {v(hi)}, {v(lo)}, s{sRP0}")
            A(f"v_perm_b32 {v(WDp + 2 * kp + 1)}, {v(hi)}, {v(lo)}, s{sRP1}")
        self.stamp("outst")
        A("s_barrier")
        A(f"ds_read_b32 {v(K)}, {v(vT + 4)}")
        A("s_waitcnt lgkmcnt(0)")
        A(f"v_readfirstlane_b32 s{sWIN}, {v(K)}")
        A(f"s_andn2_b32 s{sT0}, 2047, s{sWIN}")
        A(f"s_lshr_b32 s{sT1}, s{sT0}, 3")
        A(f"s_mul_i32 s{sT1}, s{sT1}, {RS}")
        A(f"s_cmp_lt_u32 s{sPOS}, 14")
        A("s_cbranch_scc0 L_noffn")
        A(f"v_add_u32 {v(vT)}, s{sT1}, {v(vT)}")
        sl = [f"global_load_dwordx4 {v(K, 4)}, {v(vT)}, {sp(sWS)} sc1"]
        A(sl[0])
        self.stamp("win")
        A("s_waitcnt vmcnt(0)")
        self.poll("sel", sl, [f"v_max3_u32 {v(vT + 6)}, {v(K)}, {v(K + 1)}, {v(K + 2)}",
                              f"v_max_u32 {v(vT + 6)}, {v(vT + 6)}, {v(K + 3)}",
                              f"v_cmp_eq_u32 vcc, -1, {v(vT + 6)}"])
        self.stamp("sel")
        V2 = [K + 8 + i for i in range(8)]
        for kp in range(4):
            for c in range(8):
                A(f"v_dot2_f32_bf16 {v(V2[c])}, {v(K + kp)}, {v(WGp + 8 * kp + c)}, {v(V2[c]) if kp else 0}")
        self.reduce8(V2, K + 16)
        A(f"ds_write_b32 {v(vT + 1)}, {v(V2[0])}")
        A("s_waitcnt lgkmcnt(0)")
        A("s_barrier")
        A(f"ds_read_b64 {v(K, 2)}, {v(vT + 2)}")
        A(f"ds_read_b64 {v(K + 2, 2)}, {v(vT + 2)} offset:128")
        A("s_waitcnt lgkmcnt(0)")
        A(f"v_add_f32 {v(K)}, {v(K)}, {v(K + 1)}")
        A(f"v_add_f32 {v(K + 2)}, {v(K + 2)}, {v(K + 3)}")
        A(f"v_cvt_pk_bf16_f32 {v(K + 1)}, {v(K)}, {v(K + 2)}")
        A(f"v_lshlrev_b32 {v(K)}, 16, {v(K + 1)}")
        A(f"v_mul_f32 {v(K + 3)}, {hex(f2u(-L2E))}, {v(K)}")
        A(f"v_exp_f32 {v(K + 3)}, {v(K + 3)}")
        A(f"v_and_b32 {v(K + 2)}, s{sMASK}, {v(K + 1)}")
        A(f"v_add_f32 {v(K + 3)}, 1.0, {v(K + 3)}")
        A(f"v_rcp_f32 {v(K + 3)}, {v(K + 3)}")
        A(f"v_mul_f32 {v(K)}, {v(K)}, {v(K + 3)}")
        A(f"v_cvt_pk_bf16_f32 {v(K)}, {v(K)}, {v(K)}")
        A(f"v_and_b32 {v(K)}, s{sMASK}, {v(K)}")
        A(f"v_mul_f32 {v(K)}, {v(K)}, {v(K + 2)}")
        A(f"v_mov_b32_dpp {v(K + 1)}, {v(K)} quad_perm:[1,1,3,3] row_mask:0xf bank_mask:0xf")
        A(f"v_cvt_pk_bf16_f32 {v(K)}, {v(K)}, {v(K + 1)}")
        for kp in range(8):
            A(f"v_readlane_b32 s{sH + kp}, {v(K)}, {2 * kp}")
        for kp in range(8):
            for c in range(2):
                A(f"v_dot2_f32_bf16 {v(K + 4 + c)}, s{sH + kp}, {v(WDp + 2 * kp + c)}, {v(K + 4 + c) if kp else 0}")
        A(f"global_store_dwordx2 {v(vT + 3)}, {v(K + 4, 2)}, {sp(sWS)} sc1")
        self.stamp("part")
        held = [f"s_cmp_eq_u32 s{sWIN}, s{sBEST}",
                f"s_cselect_b64 exec, 0, {sp(sE)}",
                f"global_store_dwordx2 {v(vRD)}, {v(vC + 4, 2)}, {sp(sOUT)}{osc}",
                f"s_or_b32 s{sTMP}, s{sL}, s{sWAVE}",
                f"s_cmp_eq_u32 s{sTMP}, 0",
                "s_cselect_b64 exec, 1, 0",
                f"v_mov_b32 {v(vT + 4)}, s{sG}",
                f"v_mov_b32 {v(vT + 5)}, 0",
                f"global_store_dword {v(vT + 5)}, {v(vT + 4)}, {sp(sWS)} sc1",
                "s_mov_b64 exec, -1"]
        T = self.tail
        T("L_noffn:")
        for l in held:
            T(l)
        T("s_branch L_fin")
        for l in held:
            A(l)
        A(f"s_cmp_lt_u32 s{sPOS}, 8")
        A("s_cbranch_scc0 L_fin")
        A(f"s_cmp_lt_u32 s{sWAVE}, 2")
        A("s_cbranch_scc0 L_fin")
        A(f"s_lshl_b32 s{sTMP}, s{sXCD}, 3")
        A(f"s_add_u32 s{sTMP}, s{sTMP}, s{sPOS}")
        A(f"s_lshl_b32 s{sTMP}, s{sTMP}, 1")
        A(f"s_add_u32 s{sTMP}, s{sTMP}, s{sWAVE}")
        A(f"v_lshrrev_b32 {v(vT)}, 5, {v(vLANE)}")
        A(f"v_bfe_u32 {v(vT + 1)}, {v(vLANE)}, 4, 1")
        A(f"v_lshl_add_u32 {v(vT)}, {v(vT + 1)}, 1, {v(vT)}")
        A(f"s_lshl_b32 s{sTMP + 1}, s{sTMP}, 3")
        A(f"v_lshl_add_u32 {v(vT)}, {v(vT)}, 1, s{sTMP + 1}")
        A(f"s_add_u32 s{sT1}, s{sT1}, {W_REG + O_SLOT}")
        A(f"v_add_u32 {v(vT + 1)}, s{sT1}, {v(vT)}")
        xh = [f"global_load_ushort {v(K + 20)}, {v(vT + 1)}, {sp(sWS)} sc1",
              f"global_load_ushort {v(K + 21)}, {v(vT + 1)}, {sp(sWS)} offset:1024 sc1"]
        for l in xh:
            A(l)
        A(f"s_lshl_b32 s{sTMP + 1}, s{sT0}, 10")
        A(f"v_add_u32 {v(vT)}, s{sTMP + 1}, {v(vT)}")
        A(f"v_min_u32 {v(vT + 2)}, 55, {v(vLANE)}")
        A(f"v_mul_u32_u24 {v(vT + 3)}, 4682, {v(vT + 2)}")
        A(f"v_lshrrev_b32 {v(vT + 3)}, 16, {v(vT + 3)}")
        A(f"v_mad_u32_u24 {v(vT + 2)}, {v(vT + 3)}, 18, {v(vT + 2)}")
        A(f"v_mul_u32_u24 {v(vT + 2)}, {RS}, {v(vT + 2)}")
        A(f"s_lshl_b32 s{sTMP + 1}, s{sTMP}, 4")
        A(f"s_add_u32 s{sTMP + 1}, s{sTMP + 1}, {W_REG + O_PART}")
        A(f"v_add_u32 {v(vT + 2)}, s{sTMP + 1}, {v(vT + 2)}")
        A(f"v_add_u32 {v(vT + 3)}, {128 * RS}, {v(vT + 2)}")
        A(f"s_ashr_i32 s{sTMP + 2}, s{sWIN}, 31")
        A(f"s_not_b32 s{sTMP + 2}, s{sTMP + 2}")
        A(f"s_or_b32 s{sTMP + 2}, s{sTMP + 2}, 0x80000000")
        A(f"s_xor_b32 s{sTMP + 2}, s{sTMP + 2}, s{sWIN}")
        A(f"s_and_b32 s{sTMP + 2}, s{sTMP + 2}, 0xfffff800")
        A(f"s_or_b32 s{sTMP + 2}, s{sTMP + 2}, 0x400")
        A(f"v_cvt_pk_bf16_f32 {v(K + 22)}, s{sTMP + 2}, s{sTMP + 2}")
        A(f"v_and_b32 {v(K + 22)}, s{sMASK}, {v(K + 22)}")
        A(f"v_mul_f32 {v(K + 22)}, {hex(f2u(-L2E))}, {v(K + 22)}")
        A(f"v_exp_f32 {v(K + 22)}, {v(K + 22)}")
        A(f"v_add_f32 {v(K + 22)}, 1.0, {v(K + 22)}")
        A(f"v_rcp_f32 {v(K + 22)}, {v(K + 22)}")
        A(f"v_cvt_pk_bf16_f32 {v(K + 22)}, {v(K + 22)}, {v(K + 22)}")
        A(f"v_and_b32 {v(K + 22)}, s{sMASK}, {v(K + 22)}")
        A("s_waitcnt vmcnt(0)")
        self.stamp("partdr")
        pl = [f"global_load_dwordx4 {v(vY, 4)}, {v(vT + 2)}, {sp(sWS)} sc1",
              f"global_load_dwordx4 {v(vY + 4, 4)}, {v(vT + 3)}, {sp(sWS)} sc1"]
        for l in pl:
            A(l)
        self.poll("xh", xh, [f"v_max_u32 {v(vT + 6)}, {v(K + 20)}, {v(K + 21)}",
                             f"v_cmp_eq_u32 vcc, 0xffff, {v(vT + 6)}"])
        A(f"v_lshlrev_b32 {v(K + 20)}, 16, {v(K + 20)}")
        A(f"v_lshlrev_b32 {v(K + 21)}, 16, {v(K + 21)}")
        A("s_waitcnt vmcnt(0)")
        self.poll("part", pl, chk8)
        self.stamp("partld")
        A(f"v_cmp_gt_u32 vcc, 56, {v(vLANE)}")
        A(f"v_pk_add_f32 {v(vY, 2)}, {v(vY, 2)}, {v(vY + 4, 2)}")
        A(f"v_pk_add_f32 {v(vY + 2, 2)}, {v(vY + 2, 2)}, {v(vY + 6, 2)}")
        for c in range(4):
            A(f"v_cndmask_b32 {v(vY + c)}, 0, {v(vY + c)}, vcc")
        A(f"v_permlane32_swap_b32 {v(vY)}, {v(vY + 1)}")
        A(f"v_permlane32_swap_b32 {v(vY + 2)}, {v(vY + 3)}")
        A(f"v_add_f32 {v(vY)}, {v(vY)}, {v(vY + 1)}")
        A(f"v_add_f32 {v(vY + 2)}, {v(vY + 2)}, {v(vY + 3)}")
        A(f"v_permlane16_swap_b32 {v(vY)}, {v(vY + 2)}")
        A(f"v_add_f32 {v(vY)}, {v(vY)}, {v(vY + 2)}")
        for sh in (8, 4, 2, 1):
            A(f"v_add_f32_dpp {v(vY)}, {v(vY)}, {v(vY)} row_ror:{sh} row_mask:0xf bank_mask:0xf")
        y = vY
        A(f"v_cvt_pk_bf16_f32 {v(y)}, {v(y)}, {v(y)}")
        A(f"v_and_b32 {v(y)}, s{sMASK}, {v(y)}")
        A(f"v_mul_f32 {v(y)}, {v(y)}, {v(K + 22)}")
        A(f"v_cvt_pk_bf16_f32 {v(y)}, {v(y)}, {v(y)}")
        A(f"v_and_b32 {v(y)}, s{sMASK}, {v(y)}")
        A(f"v_add_f32 {v(y)}, {v(y)}, {v(K + 20)}")
        A(f"v_cvt_pk_bf16_f32 {v(y)}, {v(y)}, {v(y)}")
        A(f"v_and_b32 {v(y)}, s{sMASK}, {v(y)}")
        A(f"v_add_f32 {v(y)}, {v(y)}, {v(K + 21)}")
        A(f"v_cvt_pk_bf16_f32 {v(y)}, {v(y)}, {v(y)}")
        A("s_mov_b32 exec_lo, 0x00010001")
        A("s_mov_b32 exec_hi, 0x00010001")
        A(f"global_store_short {v(vT)}, {v(y)}, {sp(sOUT)}")
        A("L_fin:")
        self.finish("R")

    def chans(self):
        A = self.A
        o = self.o
        vLANE = 1
        vAA, vBA, vEW, vER, vRA = 4, 12, 13, 14, 15
        vKA0, vKA1, vKB, vPW0, vPW1 = 16, 17, 18, 19, 20
        vP = 24
        vT = 28
        vACC = 40
        vA0, vA1, vB0, vB1 = 72, 104, 136, 168
        K = 72
        A("L_chan:")
        A("v_and_b32 v0, 0xff, v0")
        A(f"s_sub_u32 s{sWAVE}, s{sWAVE}, 4")
        A(f"s_lshl_b32 s{sT0}, s{sL}, 9")
        A(f"v_lshl_add_u32 {v(vT)}, v0, 1, s{sT0}")
        A(f"s_lshl_b32 s{sT1}, s{sL}, 2")
        A("s_waitcnt lgkmcnt(0)")
        self.stamp("karg")
        for k, s in enumerate((sLA, sAI, sCR, sCI)):
            A(f"global_load_ushort {v(vP + k)}, {v(vT)}, {sp(s)}{' nt' if o.get('ntx', 1) else ''}")
        A(f"s_load_dword s{sDT}, {sp(sLDT)}, s{sT1}")
        ntlb = 0
        if o.get("tlb", 0):
            A("v_mov_b32 v2, 0")
            A("s_mov_b64 exec, 1")
            for sb in (sWG, sWU, sWD, sOUT):
                A(f"global_load_dword v3, v2, {sp(sb)}")
                ntlb += 1
            A("s_mov_b64 exec, -1")
        vJ, vGq = vT + 4, vT + 5
        A(f"v_and_b32 {v(vJ)}, 15, {v(vLANE)}")
        A(f"v_lshrrev_b32 {v(vGq)}, 4, {v(vLANE)}")
        A(f"s_lshr_b32 s{sT0}, s{sWAVE}, 1")
        A(f"s_and_b32 s{sT1}, s{sWAVE}, 1")
        A(f"v_and_b32 {v(vT)}, 7, {v(vLANE)}")
        A(f"v_lshlrev_b32 {v(vRA)}, 4, {v(vT)}")
        A(f"v_add_u32 {v(vRA)}, {L_RED1}, {v(vRA)}")
        A(f"s_mul_i32 s{sTMP}, s{sT0}, {PC}")
        A(f"s_lshl_b32 s{sTMP + 1}, s{sT1}, 7")
        A(f"s_add_u32 s{sTMP}, s{sTMP}, s{sTMP + 1}")
        A(f"s_add_u32 s{sTMP}, s{sTMP}, {L_P + 4 * 26}")
        A(f"v_lshlrev_b32 {v(vT)}, 3, {v(vGq)}")
        A(f"v_sub_u32 {v(vT)}, {v(vJ)}, {v(vT)}")
        A(f"v_lshl_add_u32 {v(vAA)}, {v(vT)}, 2, s{sTMP}")
        for m in range(1, 8):
            A(f"v_add_u32 {v(vAA + m)}, {1024 * m}, {v(vAA)}")
        A(f"s_mul_i32 s{sTMP}, s{sT0}, {UC}")
        A(f"s_lshl_b32 s{sTMP + 1}, s{sT1}, 6")
        A(f"s_sub_u32 s{sTMP}, s{sTMP}, s{sTMP + 1}")
        A(f"s_add_u32 s{sTMP}, s{sTMP}, {L_U + 64}")
        A(f"v_lshl_add_u32 {v(vT)}, {v(vJ)}, 1, {v(vGq)}")
        A(f"v_lshl_add_u32 {v(vBA)}, {v(vT)}, 4, s{sTMP}")
        A(f"v_lshl_add_u32 {v(vT)}, {v(vJ)}, 2, {v(vGq)}")
        A(f"v_lshrrev_b32 {v(vT + 1)}, 3, {v(vT)}")
        A(f"v_add_u32 {v(vT)}, {v(vT)}, {v(vT + 1)}")
        A(f"s_mul_i32 s{sTMP}, s{sWAVE}, {8 * TBS}")
        A(f"v_lshl_add_u32 {v(vEW)}, {v(vT)}, 4, s{sTMP}")
        A(f"v_lshrrev_b32 {v(vT + 1)}, 3, {v(vLANE)}")
        A(f"v_add_u32 {v(vT)}, {v(vLANE)}, {v(vT + 1)}")
        A(f"s_mul_i32 s{sTMP}, s{sWAVE}, {2 * TBS}")
        A(f"v_lshl_add_u32 {v(vER)}, {v(vT)}, 4, s{sTMP}")
        KS = o.get("ks", 5)
        for k in range(4):
            A(f"v_mov_b32 {v(vACC + k)}, -1")
        A(f"s_mul_i32 s{sTMP}, s{sL}, {RS}")
        A(f"s_add_u32 s{sTMP}, s{sTMP}, {W_REG + 4096}")
        A(f"v_lshl_add_u32 {v(vACC + 4)}, v0, 4, s{sTMP}")
        A(f"v_add_u32 {v(vACC + 5)}, 8192, {v(vACC + 4)}")
        A(f"v_add_u32 {v(vACC + 6)}, 12288, {v(vACC + 4)}")
        A(f"s_lshl_b32 s{sTMP}, s{sL}, {KS}")
        A(f"s_add_u32 s{sTMP}, s{sTMP}, {W_KEY}")
        A(f"v_lshl_add_u32 {v(22)}, {v(vLANE)}, 4, s{sTMP}")
        ones = v(vACC, 4)
        inits = [f"s_cmp_eq_u32 s{sWAVE}, 0",
                 f"s_cselect_b64 exec, {(1 << ((1 << KS) // 16)) - 1}, 0",
                 f"global_store_dwordx4 {v(22)}, {ones}, {sp(sWS)} sc1",
                 "s_mov_b64 exec, -1",
                 f"global_store_dwordx4 {v(vACC + 4)}, {ones}, {sp(sWS)} offset:-4096 sc1",
                 f"global_store_dwordx4 {v(vACC + 4)}, {ones}, {sp(sWS)} sc1",
                 f"global_store_dwordx4 {v(vACC + 5)}, {ones}, {sp(sWS)} offset:-4096 sc1",
                 f"global_store_dwordx4 {v(vACC + 5)}, {ones}, {sp(sWS)} sc1",
                 f"global_store_dwordx4 {v(vACC + 6)}, {ones}, {sp(sWS)} sc1"]
        ilate = o.get("ilate", 0)
        if not ilate:
            for l in inits:
                A(l)
        vg, vr = vT, vT + 1
        A(f"v_lshrrev_b32 {v(vg)}, 2, {v(vJ)}")
        A(f"v_and_b32 {v(vr)}, 3, {v(vJ)}")
        A(f"s_cmp_eq_u32 s{sT1}, 0")
        A("s_cbranch_scc0 L_rows_hi")
        A(f"v_mov_b32 {v(vKA0)}, {v(vJ)}")
        A(f"v_lshl_add_u32 {v(vKA1)}, {v(vg)}, 1, {v(vr)}")
        A(f"v_add_u32 {v(vKA1)}, 16, {v(vKA1)}")
        A(f"v_add_u32 {v(vT + 2)}, -4, {v(vJ)}")
        A(f"v_and_b32 {v(vT + 2)}, 15, {v(vT + 2)}")
        A(f"v_cmp_eq_u32 vcc, 3, {v(vr)}")
        A(f"v_cndmask_b32 {v(vKA1)}, {v(vKA1)}, {v(vT + 2)}, vcc")
        A(f"v_lshl_add_u32 {v(vPW0)}, {v(vJ)}, 2, {v(vGq)}")
        A(f"v_lshlrev_b32 {v(vPW0)}, 4, {v(vPW0)}")
        A(f"v_add_u32 {v(vPW1)}, 1024, {v(vPW0)}")
        A("s_branch L_rows_done")
        A("L_rows_hi:")
        A(f"v_lshrrev_b32 {v(vT + 2)}, 1, {v(vg)}")
        A(f"v_lshl_add_u32 {v(vKA0)}, {v(vg)}, 1, {v(vr)}")
        A(f"v_add3_u32 {v(vKA0)}, {v(vKA0)}, {v(vT + 2)}, 25")
        A(f"v_sub_u32 {v(vKA1)}, {v(vJ)}, {v(vg)}")
        A(f"v_add_u32 {v(vKA1)}, 35, {v(vKA1)}")
        A(f"v_lshrrev_b32 {v(vT + 2)}, 1, {v(vGq)}")
        A(f"v_lshl_add_u32 {v(vPW0)}, {v(vT + 2)}, 4, {v(vJ)}")
        A(f"v_and_b32 {v(vT + 2)}, 1, {v(vGq)}")
        A(f"v_lshl_add_u32 {v(vPW0)}, {v(vPW0)}, 1, {v(vT + 2)}")
        A(f"v_lshlrev_b32 {v(vPW0)}, 5, {v(vPW0)}")
        A(f"v_add_u32 {v(vPW0)}, 2048, {v(vPW0)}")
        A(f"v_lshlrev_b32 {v(vPW1)}, 6, {v(vLANE)}")
        A(f"v_add_u32 {v(vPW1)}, 4096, {v(vPW1)}")
        A("L_rows_done:")
        A(f"s_mul_i32 s{sTMP}, s{sT0}, {PC}")
        A(f"s_add_u32 s{sTMP}, s{sTMP}, {L_P + 64}")
        A(f"v_add_u32 {v(vPW0)}, s{sTMP}, {v(vPW0)}")
        A(f"v_add_u32 {v(vPW1)}, s{sTMP}, {v(vPW1)}")
        A(f"s_mul_i32 s{sTMP}, s{sT0}, {TABC}")
        A(f"v_lshl_add_u32 {v(vT + 2)}, {v(vGq)}, 4, s{sTMP}")
        A(f"s_movk_i32 s{sTMP + 1}, {ROWB}")
        A(f"v_mad_u32_u24 {v(vKA0)}, {v(vKA0)}, s{sTMP + 1}, {v(vT + 2)}")
        A(f"v_mad_u32_u24 {v(vKA1)}, {v(vKA1)}, s{sTMP + 1}, {v(vT + 2)}")
        A(f"v_mad_u32_u24 {v(vKB)}, {v(vJ)}, s{sTMP + 1}, {v(vT + 2)}")
        A(f"s_lshl_b32 s{sTMP + 1}, s{sT1}, 8")
        A(f"s_add_u32 m0, s{sTMP}, s{sTMP + 1}")
        A(f"s_mul_i32 s{sTMP}, s{sXCD}, 448")
        A(f"s_and_b32 s{sTMP}, s{sTMP}, 0xffffff80")
        A(f"s_mul_i32 s{sTMP + 1}, s{sPOS}, {16 * 3584}")
        A(f"s_add_u32 s{sTMP}, s{sTMP}, s{sTMP + 1}")
        A(f"v_lshrrev_b32 {v(vT + 2)}, 2, {v(vLANE)}")
        A(f"v_mul_u32_u24 {v(vT + 2)}, 3584, {v(vT + 2)}")
        A(f"v_and_b32 {v(vT + 3)}, 3, {v(vLANE)}")
        A(f"v_lshl_add_u32 {v(vT + 2)}, {v(vT + 3)}, 7, {v(vT + 2)}")
        A(f"v_add_u32 {v(vT + 2)}, s{sTMP}, {v(vT + 2)}")
        A(f"s_mul_i32 s{sTMP}, s{sL}, 7168")
        A(f"s_mul_i32 s{sTMP + 1}, s{sT1}, 3584")
        A(f"s_add_u32 s{sTMP}, s{sTMP}, s{sTMP + 1}")
        A(f"v_min_u32 {v(vT + 3)}, 27, {v(vLANE)}")
        A(f"v_lshl_add_u32 {v(vT + 3)}, {v(vT + 3)}, 7, s{sTMP}")
        A(f"s_cmp_eq_u32 s{sT1}, 0")
        A(f"s_cselect_b64 {sp(sWSEL)}, {sp(sWG)}, {sp(sWU)}")
        A(f"s_cmp_eq_u32 s{sT0}, 0")
        A(f"s_cselect_b64 {sp(sWSEL)}, {sp(sWSEL)}, {sp(sWD)}")
        A("s_cselect_b64 vcc, -1, 0")
        A(f"v_cndmask_b32 {v(21)}, {v(vT + 3)}, {v(vT + 2)}, vcc")
        wpf = f"global_load_dword v3, v21, {sp(sWSEL)}{' nt' if o.get('ntw', 0) else ''}"
        if o.get("wpf", 2) == 2:
            A(wpf)

        L2E = 1.4426950408889634
        l2e_hi = struct.unpack("<f", struct.pack("<f", L2E))[0]
        l2e_lo = L2E - l2e_hi
        a, b = K, K + 2
        A(f"s_mov_b32 s{sE}, {hex(f2u(l2e_hi))}")
        A(f"s_mov_b32 s{sE + 1}, {hex(f2u(l2e_lo))}")
        A(f"s_waitcnt vmcnt({(1 if o.get('wpf', 2) == 2 else 0) + (0 if ilate else 5) + ntlb}) lgkmcnt(0)")
        self.stamp("par")
        if ilate:
            for l in inits:
                A(l)
        if o.get("wpf", 2) == 6:
            A(wpf)
        A(f"s_lshl_b32 s{sTMP}, s{sDT}, 16")
        A(f"s_and_b32 s{sTMP + 1}, s{sDT}, s{sMASK}")
        A(f"s_cmp_lt_u32 s{sWAVE}, 2")
        A(f"s_cselect_b32 s{sDT}, s{sTMP}, s{sTMP + 1}")
        A(f"v_lshlrev_b32 {v(a)}, 16, {v(vP)}")
        A(f"v_mov_b32 {v(a + 1)}, s{sDT}")
        A(f"v_pk_mul_f32 {v(b, 2)}, {v(a, 2)}, {sp(sE)} op_sel_hi:[1,0]")
        A(f"v_pk_fma_f32 {v(b + 2, 2)}, {v(a, 2)}, {sp(sE)}, {v(b, 2)} op_sel_hi:[1,0,1] neg_lo:[0,0,1] neg_hi:[0,0,1]")
        A(f"v_exp_f32 {v(b)}, {v(b)}")
        A(f"v_exp_f32 {v(b + 1)}, {v(b + 1)}")
        A(f"v_pk_fma_f32 {v(b + 2, 2)}, {sp(sE)}, {v(a, 2)}, {v(b + 2, 2)} op_sel:[1,0,0] op_sel_hi:[1,1,1]")
        A(f"v_mul_f32 {v(b + 2)}, {hex(f2u(0.6931471805599453))}, {v(b + 2)}")
        A(f"v_mul_f32 {v(b + 3)}, {hex(f2u(0.6931471805599453))}, {v(b + 3)}")
        A(f"v_pk_fma_f32 {v(b, 2)}, {v(b, 2)}, {v(b + 2, 2)}, {v(b, 2)}")
        A(f"v_cvt_pk_bf16_f32 {v(a)}, {v(b)}, {v(b + 1)}")
        vdt, va2, vph = K + 6, K + 7, K + 8
        A(f"v_and_b32 {v(vdt)}, s{sMASK}, {v(a)}")
        A(f"v_lshlrev_b32 {v(va2)}, 16, {v(a)}")
        A(f"v_lshlrev_b32 {v(vph)}, 16, {v(vP + 1)}")
        A(f"v_mul_f32 {v(va2)}, {v(va2)}, {v(vdt)}")
        A(f"v_mul_f32 {v(vph)}, {v(vph)}, {v(vdt)}")
        A(f"v_mul_f32 {v(va2)}, {hex(f2u(-l2e_hi))}, {v(va2)}")
        A(f"v_mul_f32 {v(vph)}, 0.15915494, {v(vph)}")
        Wp = {p: K + 10 + 2 * p for p in range(1, 17)}
        Zp = {p: K + 42 + 2 * p for p in range(1, 8)}
        G = [K + 58, K + 60]
        TT = [K + 62, K + 64, K + 66, K + 68]
        RR = [K + 70, K + 72, K + 74, K + 76]
        CV = K + 80
        A(f"v_add_f32 {v(vdt)}, {v(vdt)}, {v(vdt)}")
        A(f"v_lshlrev_b32 {v(G[0])}, 16, {v(vP + 2)}")
        A(f"v_lshlrev_b32 {v(G[0] + 1)}, 16, {v(vP + 3)}")
        A(f"v_mul_f32 {v(G[0])}, {v(G[0])}, {v(vdt)}")
        A(f"v_mul_f32 {v(G[0] + 1)}, {v(G[0] + 1)}, {v(vdt)}")
        for n, (dst, sc) in enumerate(((Wp[1], 1.0), (Wp[16], 16.0), (Zp[1], 256.0))):
            t = TT[n]
            if sc == 1.0:
                A(f"v_exp_f32 {v(t)}, {v(va2)}")
                A(f"v_fract_f32 {v(t + 1)}, {v(vph)}")
            else:
                A(f"v_mul_f32 {v(t)}, {hex(f2u(sc))}, {v(va2)}")
                A(f"v_mul_f32 {v(t + 1)}, {hex(f2u(sc))}, {v(vph)}")
                A(f"v_exp_f32 {v(t)}, {v(t)}")
                A(f"v_fract_f32 {v(t + 1)}, {v(t + 1)}")
            A(f"v_cos_f32 {v(dst)}, {v(t + 1)}")
            A(f"v_sin_f32 {v(dst + 1)}, {v(t + 1)}")
        for n, dst in enumerate((Wp[1], Wp[16], Zp[1])):
            A(f"v_pk_mul_f32 {v(dst, 2)}, {v(dst, 2)}, {v(TT[n], 2)} op_sel_hi:[1,0]")
        jobs = [(1, Wp[1], None, None, 0), (16, Zp[1], None, None, 0), (47, G[0], None, None, 1)]
        wj = []
        for p in range(2, 16):
            hb = 1 << (p.bit_length() - 1)
            x, y = (p // 2, p // 2) if hb == p else (hb, p - hb)
            wj.append((p, Wp[p], Wp[x], Wp[y], 0))
        gj = [(47 + j, G[j & 1], G[(j - 1) & 1], Wp[16], 1) for j in range(1, 16)]
        zrow = {2: 25, 3: 30, 4: 35, 5: 38, 6: 41, 7: 44}
        zj = []
        for p in range(2, 8):
            hb = 1 << (p.bit_length() - 1)
            x, y = (p // 2, p // 2) if hb == p else (hb, p - hb)
            zj.append((zrow[p], Zp[p], Zp[x], Zp[y], 0))
        tj = [(16 + k, None, Zp[1], Wp[2 * k], 0) for k in range(1, 9)]
        for z in (2, 3):
            tj += [(zrow[z] + k, None, Zp[z], Wp[4 * k], 0) for k in range(1, 5)]
        for z in (4, 5, 6, 7):
            tj += [(zrow[z] + k, None, Zp[z], Wp[8 * k], 0) for k in range(1, 3)]
        first = []
        for i in range(max(len(wj), len(gj), len(zj))):
            for q in (wj, gj, zj):
                if i < len(q):
                    first.append(q[i])
        jobs += first + tj
        A(f"v_mov_b32 {v(CV + 15)}, 0x3f80")
        pend = [(0, CV + 15)]
        slot = 0
        nb = 0
        b1_at = o.get("b1_at", 0)
        batch = o.get("batch", 6)

        def do_b1():
            self.stamp("setup")
            A(f"s_waitcnt vmcnt({1 if (o.get('wpf', 2) == 2 and not ilate) or o.get('wpf', 2) == 6 else 0})")
            self.stamp("idr")
            A("s_barrier")
            self.stamp("b1")
            if o.get("wpf", 2) == 1:
                A(wpf)
        if b1_at == 0:
            do_b1()
        for n, (row, dst, x, y, conj) in enumerate(jobs):
            if x is not None:
                if dst is None:
                    dst = RR[n & 3]
                for ins in self.cmul(dst, x, y, TT[n & 3]):
                    A(ins)
            A(f"v_cvt_pk_bf16_f32 {v(CV + slot)}, {v(dst)}, {'-' if conj else ''}{v(dst + 1)}")
            pend.append((row, CV + slot))
            slot = (slot + 1) % 15
            if len(pend) >= batch or n == len(jobs) - 1:
                for row_, reg in pend:
                    A(f"ds_write_addtid_b32 {v(reg)} offset:{row_ * ROWB}")
                pend = []
                nb += 1
                if nb == b1_at:
                    do_b1()
        A("s_waitcnt lgkmcnt(0)")
        self.stamp("kgen1")
        A("s_barrier")
        if o.get("wpf", 2) == 3:
            A(wpf)
        fB, fA0, fA1 = K, K + 32, K + 64
        for s in range(4):
            A(f"ds_read_b128 {v(fB + 4 * s, 4)}, {v(vKB)} offset:{47 * ROWB + 64 * s}")
            A(f"ds_read_b128 {v(fA0 + 4 * s, 4)}, {v(vKA0)} offset:{64 * s}")
            A(f"ds_read_b128 {v(fA1 + 4 * s, 4)}, {v(vKA1)} offset:{64 * s}")
        D0, D1 = vACC, vACC + 4
        for s in range(8):
            s2 = s + 4
            A(f"s_waitcnt lgkmcnt({9 if s2 < 8 else 3 * (7 - s)})")
            c0 = "0" if s == 0 else v(D0, 4)
            c1 = "0" if s == 0 else v(D1, 4)
            A(f"v_mfma_f32_16x16x32_bf16 {v(D0, 4)}, {v(fA0 + 4 * s, 4)}, {v(fB + 4 * s, 4)}, {c0}")
            if s2 < 8:
                A(f"ds_read_b128 {v(fB + 4 * s2, 4)}, {v(vKB)} offset:{47 * ROWB + 64 * s2}")
                A(f"ds_read_b128 {v(fA0 + 4 * s2, 4)}, {v(vKA0)} offset:{64 * s2}")
            A(f"v_mfma_f32_16x16x32_bf16 {v(D1, 4)}, {v(fA1 + 4 * s, 4)}, {v(fB + 4 * s, 4)}, {c1}")
            if s2 < 8:
                A(f"ds_read_b128 {v(fA1 + 4 * s2, 4)}, {v(vKA1)} offset:{64 * s2}")
        E = K + 96
        A(f"s_bitcmp1_b32 s{sWAVE}, 0")
        A(f"v_cmp_eq_u32 vcc, 0, {v(vLANE)}")
        A("s_nop 5")
        A("s_cbranch_scc0 L_exp_lo")
        seq2 = ["aa", "aa", "aa", "ba", "bb", "bb", "cb", "cc"]
        seq3 = ["aa", "aa", "aa", "aa", "aa", "ba", "bb", "bb", "bb", "bb", "cb", "cc", "cc", "cc"]
        ix = {"a": 0, "b": 1, "c": 2}
        for k, s in enumerate(seq3):
            A(f"v_cvt_pk_bf16_f32 {v(E + 8 + k)}, {v(D1 + ix[s[0]])}, {v(D1 + ix[s[1]])}")
        for k, w in enumerate((0, 4, 6, 10)):
            A(f"ds_write_b128 {v(vPW1)}, {v(E + 8 + w, 4)} offset:{16 * k}")
        for k, s in enumerate(seq2):
            A(f"v_cvt_pk_bf16_f32 {v(E + k)}, {v(D0 + ix[s[0]])}, {v(D0 + ix[s[1]])}")
        A(f"ds_write_b128 {v(vPW0)}, {v(E, 4)}")
        A(f"ds_write_b128 {v(vPW0)}, {v(E + 4, 4)} offset:16")
        A("L_exp_done:")
        T = self.tail
        T("L_exp_lo:")
        T(f"v_mov_b32_dpp {v(D1 + 3)}, {v(D1 + 3)} row_ror:1 row_mask:0x1 bank_mask:0xf")
        T(f"v_cvt_pk_bf16_f32 {v(E + 1)}, {v(D0 + 1)}, {v(D0)}")
        T(f"v_cvt_pk_bf16_f32 {v(E + 2)}, {v(D0 + 2)}, {v(D0 + 1)}")
        T(f"v_cvt_pk_bf16_f32 {v(E + 3)}, {v(D0 + 3)}, {v(D0 + 2)}")
        T(f"v_cndmask_b32 {v(E + 8)}, {v(D1 + 3)}, 0, vcc")
        T(f"v_cndmask_b32 {v(E + 9)}, {v(D1)}, {v(D1 + 3)}, vcc")
        T(f"v_cvt_pk_bf16_f32 {v(E)}, {v(D0)}, {v(E + 8)}")
        T(f"v_cvt_pk_bf16_f32 {v(E + 4)}, {v(D1)}, {v(E + 9)}")
        T(f"v_cvt_pk_bf16_f32 {v(E + 5)}, {v(D1)}, {v(D1)}")
        T(f"v_cvt_pk_bf16_f32 {v(E + 6)}, {v(D1 + 1)}, {v(D1)}")
        T(f"v_cvt_pk_bf16_f32 {v(E + 7)}, {v(D1 + 2)}, {v(D1 + 1)}")
        T(f"ds_write_b128 {v(vPW0)}, {v(E, 4)}")
        T(f"ds_write_b128 {v(vPW1)}, {v(E + 4, 4)}")
        T("s_branch L_exp_done")
        A("s_waitcnt lgkmcnt(0)")
        self.stamp("kgen2")
        A("s_barrier")
        if o.get("wpf", 2) == 4:
            A(wpf)

        def rdA(buf, rho, m):
            return [f"ds_read2_b32 {v(buf + 4 * m, 2)}, {v(vAA + m)} offset0:{64 * rho + 6} offset1:{64 * rho + 4}",
                    f"ds_read2_b32 {v(buf + 4 * m + 2, 2)}, {v(vAA + m)} offset0:{64 * rho + 2} offset1:{64 * rho}"]

        def rdB(buf, rho, n):
            return [f"ds_read_b128 {v(buf + 4 * n, 4)}, {v(vBA)} offset:{128 * (3 - rho) + 512 * (7 - n)}"]

        for m in range(8):
            for l in rdA(vA0, 0, m):
                A(l)
        A(f"s_mul_i32 s{sTMP}, s{sL}, {RS}")
        A(f"s_lshl_b32 s{sTMP + 1}, s{sWAVE}, 11")
        A(f"s_add_u32 s{sTMP}, s{sTMP}, s{sTMP + 1}")
        A(f"s_add_u32 s{sTMP}, s{sTMP}, {W_REG + O_X2}")
        A(f"v_lshl_add_u32 {v(vT)}, {v(vLANE)}, 4, s{sTMP}")
        A(f"v_lshlrev_b32 {v(vT + 1)}, {KS}, v0")
        A(f"v_add_u32 {v(vT + 1)}, {W_KEY}, {v(vT + 1)}")
        A(f"s_lshl_b32 s{sTMP}, s{sWAVE}, 2")
        A(f"s_add_u32 s{sTMP}, s{sTMP}, {L_REDK}")
        A(f"v_mov_b32 {v(vT + 3)}, s{sTMP}")
        A("s_waitcnt lgkmcnt(0)")
        self.stamp("apre")
        A("s_barrier")
        self.stamp("b3")
        if o.get("wpf", 2) == 5:
            A(wpf)
        if o.get("prio", 1):
            A("s_setprio 2")

        bufA, bufB = [vA0, vA1], [vB0, vB1]
        for n in range(7, -1, -1):
            for l in rdB(vB0, 0, n):
                A(l)
        started = set()
        for rho in range(4):
            a_, b_ = bufA[rho & 1], bufB[rho & 1]
            order = [(n - 7 + tb, tb, n) for n in range(7, -1, -1) for tb in range(7 - n, 8)]
            if rho == 3:
                order = [(n - 7 + tb, tb, n) for tb in range(8) for n in range(7 - tb, 8)]
            fill = []
            if rho + 1 < 4:
                nb_, na_ = bufB[(rho + 1) & 1], bufA[(rho + 1) & 1]
                for m in range(8):
                    fill += rdB(nb_, rho + 1, 7 - m)
                    fill += rdA(na_, rho + 1, m)
            issued = 0
            seen = set()
            done_at = {}
            for i, (m, tb, n) in enumerate(order):
                done_at[tb] = i
            for i, (m, tb, n) in enumerate(order):
                if rho == 0 and n not in seen:
                    A(f"s_waitcnt lgkmcnt({min(15, n + issued)})")
                    seen.add(n)
                elif i == 0:
                    A("s_waitcnt lgkmcnt(0)")
                acc = v(vACC + 4 * tb, 4)
                c = acc if tb in started else "0"
                started.add(tb)
                A(f"v_mfma_f32_16x16x32_bf16 {acc}, {v(a_ + 4 * m, 4)}, {v(b_ + 4 * n, 4)}, {c}")
                if i >= 1 and fill:
                    A(fill.pop(0))
                    issued += 1
                if rho == 3:
                    for t in range(7):
                        if done_at[t] + 8 == i or (i == len(order) - 1 and done_at[t] + 8 > i):
                            A(f"ds_write_b128 {v(vEW)}, {v(vACC + 4 * t, 4)} offset:{t * TBS}")
            assert not fill
        A(f"ds_write_b128 {v(vEW)}, {v(vACC + 28, 4)} offset:{7 * TBS}")
        self.stamp("conv")
        A("s_waitcnt lgkmcnt(0)")
        A("s_barrier")
        for i in range(2):
            for s in range(4):
                A(f"ds_read_b128 {v(K + 16 * i + 4 * s, 4)}, {v(vER)} offset:{s * 8 * TBS + i * TBS}")
        for i in range(2):
            A(f"s_waitcnt lgkmcnt({4 * (1 - i)})")
            b0 = K + 16 * i
            for c in range(2):
                for h in range(2):
                    A(f"v_pk_add_f32 {v(b0 + 8 * c + 2 * h, 2)}, {v(b0 + 8 * c + 2 * h, 2)}, {v(b0 + 8 * c + 4 + 2 * h, 2)}")
            for c in range(2):
                for h in range(2):
                    A(f"v_cvt_pk_bf16_f32 {v(K + 32 + 4 * i + 2 * c + h)}, {v(b0 + 8 * c + 2 * h)}, {v(b0 + 8 * c + 2 * h + 1)}")
            A(f"global_store_dwordx4 {v(vT)}, {v(K + 32 + 4 * i, 4)}, {sp(sWS)} offset:{1024 * i} sc1")
        self.stamp("x2st")
        A("s_waitcnt vmcnt(0)")
        self.stamp("x2dr")
        A("s_barrier")
        A(f"s_cmp_eq_u32 s{sWAVE}, 0")
        A("s_cbranch_scc0 L_cfin")
        for q in range(1, 4):
            A(f"v_add_u32 {v(vT + 8 + q)}, {(64 * q) << KS}, {v(vT + 1)}")
        A("s_barrier")
        self.key_calc(K, vRA, vLANE)
        A("s_mov_b64 exec, 1")
        A(f"global_store_dword {v(22)}, {v(K + 8)}, {sp(sWS)} sc1")
        A("s_mov_b64 exec, -1")
        self.stamp("key")
        A("s_waitcnt vmcnt(0)")
        self.stamp("keydr")
        k2 = vT + 4
        kl = [f"global_load_dword {v(K + q)}, {v(vT + 8 + q) if q else v(vT + 1)}, {sp(sWS)} sc1" for q in range(4)]
        for l in kl:
            A(l)
        A("s_waitcnt vmcnt(0)")
        self.poll("key", kl, [f"v_max3_u32 {v(k2)}, {v(K)}, {v(K + 1)}, {v(K + 2)}",
                              f"v_max_u32 {v(k2)}, {v(k2)}, {v(K + 3)}",
                              f"v_cmp_eq_u32 vcc, -1, {v(k2)}"])
        self.stamp("keyld")
        A(f"v_max_u32_dpp {v(k2)}, {v(k2)}, {v(k2)} quad_perm:[1,0,3,2] row_mask:0xf bank_mask:0xf")
        A(f"v_max_u32_dpp {v(k2)}, {v(k2)}, {v(k2)} quad_perm:[2,3,0,1] row_mask:0xf bank_mask:0xf")
        A(f"v_max_u32_dpp {v(k2)}, {v(k2)}, {v(k2)} row_half_mirror row_mask:0xf bank_mask:0xf")
        A(f"v_max_u32_dpp {v(k2)}, {v(k2)}, {v(k2)} row_mirror row_mask:0xf bank_mask:0xf")
        A(f"v_max_u32_dpp {v(k2)}, {v(k2)}, {v(k2)} row_bcast:15 row_mask:0xa bank_mask:0xf")
        A(f"v_max_u32_dpp {v(k2)}, {v(k2)}, {v(k2)} row_bcast:31 row_mask:0xc bank_mask:0xf")
        A("s_mov_b32 exec_lo, 0")
        A("s_brev_b32 exec_hi, 1")
        A(f"ds_write_b32 {v(vT + 3)}, {v(k2)}")
        A("s_waitcnt lgkmcnt(0)")
        A("s_barrier")
        A("L_cfin:")
        self.finish("C")

    def text(self):
        lines = self.build()
        src = open("sequential_preLN__ssm_conv_s4d__moe_arch_mod__prompt.s.ref").read()
        head = [l for l in src.split("\n") if l.startswith(";") and "@launch" not in l]
        head = head[:head.index("; Override launch geometry by editing the next line (default: block=256,")]
        out = head + [f"; @launch grid=(256,1,1) block=(512,1,1) lds={LDS_BYTES}",
                      '.amdgcn_target "amdgcn-amd-amdhsa--gfx950"', ".text", f".globl {KNAME}", ".p2align 8",
                      f".type {KNAME},@function"]
        out += [l if l.endswith(":") else "    " + l for l in lines]
        out += [".section .rodata,\"a\"", ".p2align 6", f".amdhsa_kernel {KNAME}",
                "  .amdhsa_next_free_vgpr 224", "  .amdhsa_next_free_sgpr 102", "  .amdhsa_accum_offset 224",
                "  .amdhsa_group_segment_fixed_size 0", "  .amdhsa_kernarg_size 120", "  .amdhsa_user_sgpr_count 2",
                "  .amdhsa_user_sgpr_kernarg_segment_ptr 1", "  .amdhsa_system_sgpr_workgroup_id_x 1",
                ".end_amdhsa_kernel", ""]
        return "\n".join(out)


if __name__ == "__main__":
    out = sys.argv[1]
    opts = {}
    stamp = False
    for a in sys.argv[2:]:
        if a == "stamp":
            stamp = True
        else:
            k, val = a.split("=")
            opts[k] = val if k == 'pr' else int(val)
    g = Gen(stamp, opts)
    open(out, "w").write(g.text())
    if stamp:
        open(out + ".names", "w").write(" ".join(g.allnames["R"]) + "\n" + " ".join(g.allnames["C"]))
    print(g.info, "lds", LDS_BYTES)
```

```python
import sys
import struct
from asmlib import Asm, align8

KNAME = "sequential_preLN__ssm_conv_s4d__moe_arch_mod__prompt_kernel"


def f2u(x):
    return struct.unpack("<I", struct.pack("<f", x))[0]


W_FLAG = 0x1000
W_KEY = 0x9000
W_FLAG2 = 0x11000
W_REG = 0x19000
RS = 20608
O_X1, O_X2, O_SLOT, O_PART = 0, 8192, 16384, 18432
W_STAMP = 0x800000
ROWB = 544
TABC = 63 * ROWB
L_TAB = 0
L_P = 68608
PC = 8256
L_U = L_P + 2 * PC
UC = 4608
L_RED1 = (L_U + 2 * UC + 255) // 256 * 256
L_RED2 = L_RED1 + 256
L_SUMW = L_RED2 + 384
L_REDK = L_SUMW + 16
L_REDF = L_REDK + 16
LDS_BYTES = L_REDF + 256
L_EPI = 0
TBS = 1152
sX, sLA, sAI, sCR, sCI, sLDT, sD = 4, 6, 8, 10, 12, 14, 16
sWR, sWG, sWU, sWD, sOUT, sDBG, sWS = 20, 22, 24, 26, 28, 30, 32
sL, sPOS, sXCD, sWAVE, sG, sDT, sT0, sT1, sSPIN, sF = 34, 35, 36, 37, 38, 39, 40, 41, 42, 43
sODD = 44
sSELLO, sSELHI, sONES, sMASK = 46, 47, 48, 49
sWSEL = 50
sBEST, sWIN, sRP0, sRP1 = 52, 53, 54, 55
sH = 56
sE = 64
sTMP = 66
sOWN = 71
sSTAMP = 72


def sp(r):
    return f"s[{r}:{r + 1}]"


def v(r, n=1):
    return f"v{r}" if n == 1 else f"v[{r}:{r + n - 1}]"


class Gen:
    def __init__(self, stamp=False, opts=None):
        self.A = Asm()
        self.tail = Asm()
        self.stamp_on = stamp
        self.nstamp = 0
        self.names = []
        self.o = dict(opts or {})
        self.only = None
        self.role = "R"
        if "pr" in self.o:
            self.only = tuple(self.o["pr"].split("."))
            self.stamp_on = True
            self.o["probe"] = 1 if self.only[0] == "R" else 101

    def stamp(self, name):
        if not self.stamp_on:
            return
        if self.only and name != "start" and (self.role, name) != self.only:
            return
        k = self.nstamp
        self.nstamp += 1
        self.names.append(name)
        assert sSTAMP + k < 100
        self.A(f"s_memrealtime s[100:101]")
        self.A("s_waitcnt lgkmcnt(0)")
        self.A(f"s_mov_b32 s{sSTAMP + k}, s100")

    def poll(self, name, loads, check, base_exec="-1"):
        A = self.A
        for c in check:
            A(c)
        A(f"s_cbranch_vccnz L_retry_{name}")
        A(f"L_ok_{name}:")
        T = self.tail
        T(f"L_retry_{name}:")
        T(f"s_mov_b32 s{sSPIN}, 0x40000")
        T(f"L_again_{name}:")
        T(f"s_sub_u32 s{sSPIN}, s{sSPIN}, 1")
        T(f"s_cbranch_scc1 L_ok_{name}")
        T("s_mov_b64 exec, vcc")
        for l in loads:
            T(l)
        T("s_waitcnt vmcnt(0)")
        for c in check:
            T(c)
        T(f"s_mov_b64 exec, {base_exec}")
        T(f"s_cbranch_vccnz L_again_{name}")
        T(f"s_branch L_ok_{name}")

    def cmul(self, d, x, y, t):
        return [f"v_pk_mul_f32 {v(t, 2)}, {v(x, 2)}, {v(y, 2)} op_sel:[0,0] op_sel_hi:[0,1]",
                f"v_pk_fma_f32 {v(d, 2)}, {v(x, 2)}, {v(y, 2)}, {v(t, 2)} op_sel:[1,1,0] op_sel_hi:[1,0,1] neg_lo:[1,0,0]"]

    def reduce8(self, V, t):
        A = self.A
        for i in range(4):
            A(f"v_add_f32_dpp {v(V[i])}, {v(V[i])}, {v(V[i])} row_ror:8 row_mask:0xf bank_mask:0x3")
        for i in range(4):
            A(f"v_add_f32_dpp {v(V[i])}, {v(V[i + 4])}, {v(V[i + 4])} row_ror:8 row_mask:0xf bank_mask:0xc")
        for i in range(2):
            A(f"v_add_f32_dpp {v(V[i])}, {v(V[i])}, {v(V[i])} row_shl:4 row_mask:0xf bank_mask:0x5")
        for i in range(2):
            A(f"v_add_f32_dpp {v(V[i])}, {v(V[i + 2])}, {v(V[i + 2])} row_shr:4 row_mask:0xf bank_mask:0xa")
        A(f"v_permlane32_swap_b32 {v(V[0])}, {v(V[1])}")
        A(f"v_add_f32 {v(V[0])}, {v(V[0])}, {v(V[1])}")
        A(f"v_add_f32_dpp {v(V[0])}, {v(V[0])}, {v(V[0])} quad_perm:[2,3,0,1] row_mask:0xf bank_mask:0xf")
        A(f"v_mov_b32 {v(t)}, {v(V[0])}")
        A(f"v_permlane16_swap_b32 {v(V[0])}, {v(t)}")
        A(f"v_add_f32 {v(V[0])}, {v(V[0])}, {v(t)}")

    def row_stats(self, S, Q, negm, rinv, t):
        A = self.A
        A(f"v_pk_add_f32 {v(S, 2)}, {v(S, 2)}, {v(S + 2, 2)}")
        A(f"v_pk_add_f32 {v(Q, 2)}, {v(Q, 2)}, {v(Q + 2, 2)}")
        A(f"v_add_f32 {v(S)}, {v(S)}, {v(S + 1)}")
        A(f"v_add_f32 {v(Q)}, {v(Q)}, {v(Q + 1)}")
        A(f"v_mul_f32 {v(S)}, {hex(f2u(1 / 512))}, {v(S)}")
        A(f"v_mul_f32 {v(Q)}, {hex(f2u(1 / 512))}, {v(Q)}")
        A(f"v_fma_f32 {v(Q)}, -{v(S)}, {v(S)}, {v(Q)}")
        A(f"v_max_f32 {v(Q)}, 0, {v(Q)}")
        A(f"v_cvt_pk_bf16_f32 {v(t)}, -{v(S)}, {v(Q)}")
        A(f"v_and_b32 {v(Q)}, s{sMASK}, {v(t)}")
        A(f"v_add_f32 {v(Q)}, {hex(f2u(1e-5))}, {v(Q)}")
        A(f"v_cvt_pk_bf16_f32 {v(Q)}, {v(Q)}, {v(Q)}")
        A(f"v_and_b32 {v(Q)}, s{sMASK}, {v(Q)}")
        A(f"v_sqrt_f32 {v(Q)}, {v(Q)}")
        A(f"v_lshlrev_b32 {v(negm)}, 16, {v(t)}")
        A(f"v_cvt_pk_bf16_f32 {v(Q)}, {v(Q)}, {v(Q)}")
        A(f"v_and_b32 {v(Q)}, s{sMASK}, {v(Q)}")
        A(f"v_rcp_f32 {v(rinv)}, {v(Q)}")

    def spread(self, val, dst, t):
        A = self.A
        for r in range(4):
            A(f"v_mov_b32_dpp {v(t + r)}, {v(val)} row_newbcast:{4 + r} row_mask:0xf bank_mask:0xf")
        for r in range(4):
            A(f"v_cndmask_b32_dpp {v(dst + r)}, {v(val)}, {v(t + r)}, vcc row_newbcast:{r} row_mask:0xf bank_mask:0xf")

    def key_calc(self, K, vRA, vLANE):
        A = self.A
        A(f"v_mov_b32 {v(K + 14)}, {L_SUMW}")
        A(f"ds_read_b128 {v(K, 4)}, {v(vRA)} offset:{L_RED2 - L_RED1}")
        A(f"ds_read_b128 {v(K + 4, 4)}, {v(vRA)} offset:{L_RED2 - L_RED1 + 128}")
        A(f"ds_read_b128 {v(K + 8, 4)}, {v(vRA)} offset:{L_RED2 - L_RED1 + 256}")
        A(f"ds_read_b32 {v(K + 15)}, {v(K + 14)}")
        A(f"s_lshl_b32 s{sTMP}, s{sL}, 3")
        A(f"s_sub_u32 s{sTMP}, 2047, s{sTMP}")
        A(f"v_and_b32 {v(K + 14)}, 7, {v(vLANE)}")
        A(f"v_sub_u32 {v(K + 14)}, s{sTMP}, {v(K + 14)}")
        A("s_waitcnt lgkmcnt(2)")
        self.row_stats(K, K + 4, K + 12, K + 13, K + 28)
        A("s_waitcnt lgkmcnt(0)")
        A(f"v_pk_add_f32 {v(K + 8, 2)}, {v(K + 8, 2)}, {v(K + 10, 2)}")
        A(f"v_add_f32 {v(K + 8)}, {v(K + 8)}, {v(K + 9)}")
        A(f"v_fmac_f32 {v(K + 8)}, {v(K + 12)}, {v(K + 15)}")
        A(f"v_mul_f32 {v(K + 8)}, {v(K + 8)}, {v(K + 13)}")
        A(f"v_ashrrev_i32 {v(K + 9)}, 31, {v(K + 8)}")
        A(f"v_or_b32 {v(K + 9)}, 0x80000000, {v(K + 9)}")
        A(f"v_xor_b32 {v(K + 8)}, {v(K + 8)}, {v(K + 9)}")
        A(f"v_and_b32 {v(K + 8)}, 0xfffff800, {v(K + 8)}")
        A(f"v_or_b32 {v(K + 8)}, {v(K + 8)}, {v(K + 14)}")
        A(f"v_min_u32 {v(K + 8)}, -2, {v(K + 8)}")
        A(f"v_max_u32_dpp {v(K + 8)}, {v(K + 8)}, {v(K + 8)} quad_perm:[1,0,3,2] row_mask:0xf bank_mask:0xf")
        A(f"v_max_u32_dpp {v(K + 8)}, {v(K + 8)}, {v(K + 8)} quad_perm:[2,3,0,1] row_mask:0xf bank_mask:0xf")
        A(f"v_max_u32_dpp {v(K + 8)}, {v(K + 8)}, {v(K + 8)} row_half_mirror row_mask:0xf bank_mask:0xf")

    def finish(self, role):
        A = self.A
        o = self.o
        if self.stamp_on:
            self.stamp("end")
            self.allnames[role] = self.names
        if self.stamp_on and "probe" in o:
            k = o["probe"]
            if k == 98 and role == "R":
                A(f"s_getreg_b32 s{sTMP}, hwreg(HW_REG_XCC_ID, 0, 4)")
                A(f"s_sub_u32 s{sTMP}, s{sTMP}, s2")
                A(f"s_and_b32 s{sTMP}, s{sTMP}, 7")
                A(f"s_mul_i32 s{sTMP}, s{sTMP}, 1000")
                A(f"s_add_u32 s{sTMP}, s{sTMP}, 2000")
            elif k == 99 and role == "R":
                A("s_memtime s[96:97]")
                A("s_waitcnt lgkmcnt(0)")
                A("s_sub_u32 s96, s96, s98")
                A(f"s_sub_u32 s97, s{sSTAMP + self.nstamp - 1}, s{sSTAMP}")
                A("s_mov_b64 exec, -1")
                A("v_cvt_f32_u32 v2, s96")
                A("v_cvt_f32_u32 v3, s97")
                A("v_rcp_f32 v3, v3")
                A("s_nop 1")
                A("v_mul_f32 v2, v2, v3")
                A("v_mul_f32 v2, 0x43c80000, v2")
                A("v_cvt_u32_f32 v2, v2")
                A("s_nop 1")
                A(f"v_readfirstlane_b32 s{sTMP}, v2")
                A(f"s_add_u32 s{sTMP}, s{sTMP}, 2000")
            elif k < 0 and role == "R":
                A(f"s_mov_b32 s{sTMP}, {-k}")
            elif k >= 0 and (k >= 100) == (role == "C"):
                A(f"s_sub_u32 s{sTMP}, s{sSTAMP + k % 100}, s{sSTAMP}")
                A(f"s_cmp_lt_u32 s{sTMP}, 3000")
                A(f"s_cselect_b32 s{sTMP}, s{sTMP}, 0")
                A(f"s_mul_i32 s{sTMP}, s{sTMP}, 20")
                A(f"s_add_u32 s{sTMP}, s{sTMP}, 2000")
            else:
                A(f"s_mov_b32 s{sTMP}, 0")
            A(f"L_spin{role}:")
            A("s_memrealtime s[100:101]")
            A("s_waitcnt lgkmcnt(0)")
            A(f"s_sub_u32 s100, s100, s{sSTAMP}")
            A(f"s_cmp_lt_u32 s100, s{sTMP}")
            A(f"s_cbranch_scc1 L_spin{role}")
        elif self.stamp_on:
            A("s_mov_b64 exec, 1")
            A(f"s_lshl_b32 s{sTMP}, s2, 3")
            A(f"s_add_u32 s{sTMP}, s{sTMP}, s{sWAVE}")
            if role == "C":
                A(f"s_add_u32 s{sTMP}, s{sTMP}, 4")
            A(f"s_lshl_b32 s{sTMP}, s{sTMP}, 7")
            A(f"s_add_u32 s{sTMP}, s{sTMP}, {W_STAMP}")
            A(f"v_mov_b32 v1, s{sTMP}")
            for k in range(self.nstamp):
                A(f"v_mov_b32 v2, s{sSTAMP + k}")
                A(f"global_store_dword v1, v2, {sp(sWS)} offset:{4 * k}")
        A("s_endpgm")

    def build(self):
        A = self.A
        self.allnames = {}
        o = self.o
        A(f"{KNAME}:")
        self.stamp("start")
        A("s_load_dwordx16 s[4:19], s[0:1], 0")
        A("s_cmp_ge_u32 s2, 256")
        A("s_cbranch_scc1 L_end")
        if o.get("probe", 0) == 99:
            A("s_memtime s[98:99]")
        A(f"s_getpc_b64 {sp(sE)}")
        A("L_pc:")
        A("v_lshlrev_b32 v2, 5, v0")
        A(f"v_min_u32 v2, L_codeend-L_pc-4, v2")
        A(f"global_load_dword v3, v2, {sp(sE)}")
        A("s_load_dwordx8 s[20:27], s[0:1], 64")
        A("s_load_dwordx4 s[28:31], s[0:1], 96")
        A("s_load_dwordx2 s[32:33], s[0:1], 112")
        A("v_lshrrev_b32 v4, 6, v0")
        A(f"s_and_b32 s{sXCD}, s2, 7")
        A(f"v_readfirstlane_b32 s{sWAVE}, v4")
        A(f"s_lshr_b32 s{sPOS}, s2, 3")
        A(f"s_lshl_b32 s{sL}, s{sXCD}, 5")
        A(f"s_add_u32 s{sL}, s{sL}, s{sPOS}")
        A("v_and_b32 v1, 63, v0")
        A("v_and_b32 v0, 0xff, v0")
        A("v_lshrrev_b32 v32, 1, v0")
        A("v_and_b32 v33, 1, v0")
        A("v_lshlrev_b32 v34, 3, v32")
        A(f"s_lshl_b32 s{sT0}, s{sL}, 13")
        A("v_lshl_add_u32 v23, v33, 12, v34")
        A(f"v_add_u32 v23, s{sT0}, v23")
        A(f"s_lshl_b32 s{sT0}, s{sL}, 9")
        A(f"v_lshl_add_u32 v28, v0, 1, s{sT0}")
        A(f"s_lshl_b32 s{sT1}, s{sL}, 2")
        A(f"s_cmp_lt_u32 s{sWAVE}, 4")
        A("s_waitcnt lgkmcnt(0)")
        A("s_cbranch_scc1 L_rows")
        nt = ' nt' if o.get('ntx', 1) else ''
        for k, sb in enumerate((sLA, sAI, sCR, sCI)):
            A(f"global_load_ushort v{24 + k}, v28, {sp(sb)}{nt}")
        A(f"s_load_dword s{sDT}, {sp(sLDT)}, s{sT1}")
        A("s_branch L_chan")
        A("L_rows:")
        self.rows()
        self.names = self.names[:1]
        self.nstamp = min(self.nstamp, 1)
        A(".p2align 6")
        self.role = "C"
        self.chans()
        A("L_end:")
        A("s_endpgm")
        for l in self.tail.L:
            A(l)
        A("L_codeend:")
        lines, nops = A.padded()
        lines, nbytes, promoted, missed = align8(lines)
        self.info = dict(nops=nops, bytes=nbytes, promoted=promoted, missed=missed, lines=len(lines))
        return lines

    def rows(self):
        A = self.A
        o = self.o
        vLANE = 1
        vX, vU, vD, vWR = 212, 10, 18, 20
        vREG, vRD, vAUX = 22, 23, 24
        vKEY, vSW, vRA, vFL, vUW = 26, 27, 28, 29, 30
        vT = 32
        vWG, vWD = 40, 72
        vY = 88
        vONE = 96
        K = 100
        L2E = 1.4426950408889634
        nt = ' nt' if o.get('ntx', 1) else ''
        for r in range(4):
            A(f"global_load_dwordx2 {v(vX + 2 * r, 2)}, {v(vRD)}, {sp(sX)} offset:{1024 * r}{nt}")
        self.stamp("karg")
        A(f"s_load_dword s{sG}, {sp(sWS)}, 0")
        A(f"v_lshlrev_b32 {v(vT + 3)}, 4, {v(vLANE)}")
        A(f"global_load_dwordx2 {v(vD, 2)}, {v(vT + 2)}, {sp(sD)}")
        A(f"global_load_dwordx2 {v(vWR, 2)}, {v(vT + 2)}, {sp(sWR)}")
        A(f"global_load_dwordx4 {v(vONE, 4)}, {v(vT + 3)}, {sp(sWR)}")
        A(f"s_mul_i32 s{sOWN}, s{sL}, {RS}")
        A(f"s_add_u32 s{sOWN}, s{sOWN}, {W_REG}")
        A(f"s_add_u32 s{sT0}, s{sOWN}, 4096")
        A(f"v_lshl_add_u32 {v(vREG)}, v0, 4, s{sT0}")
        A(f"s_mov_b32 s{sMASK}, 0xffff0000")
        for k in range(4):
            A(f"v_mov_b32 {v(vY + k)}, -1")
        x1init = [f"global_store_dwordx4 {v(vREG)}, {v(vY, 4)}, {sp(sWS)} offset:-4096 sc1",
                  f"global_store_dwordx4 {v(vREG)}, {v(vY, 4)}, {sp(sWS)} sc1"]
        if o.get("i1", 1) == 0:
            for l in x1init:
                A(l)
        A(f"s_mov_b32 s{sODD}, 0xaaaaaaaa")
        A(f"s_mov_b32 s{sODD + 1}, 0xaaaaaaaa")
        A(f"s_mov_b32 s{sSELLO}, 0x3f80")
        A(f"s_mov_b32 s{sSELHI}, 0x3f800000")
        A(f"s_mov_b32 s{sONES}, 0x3f803f80")
        A(f"s_and_b32 s{sTMP}, s{sL}, 1")
        A(f"s_lshl_b32 s{sTMP}, s{sTMP}, 12")
        A(f"s_lshr_b32 s{sTMP + 1}, s{sL}, 1")
        A(f"s_lshl_b32 s{sTMP + 1}, s{sTMP + 1}, 5")
        A(f"s_add_u32 s{sTMP}, s{sTMP}, s{sTMP + 1}")
        A(f"s_add_u32 s{sTMP}, s{sTMP}, {W_REG + O_X1}")
        A(f"v_mul_u32_u24 {v(vAUX)}, {RS}, {v(vT)}")
        A(f"v_lshl_add_u32 {v(vAUX)}, {v(vT + 1)}, 4, {v(vAUX)}")
        A(f"v_add_u32 {v(vAUX)}, s{sTMP}, {v(vAUX)}")
        A(f"v_add_u32 {v(vAUX + 1)}, {128 * RS}, {v(vAUX)}")
        FS = o.get("fs", 7)
        KS = o.get("ks", 5)
        A(f"v_lshlrev_b32 {v(vFL)}, {FS}, {v(vT)}")
        A(f"v_add_u32 {v(vFL)}, {W_FLAG}, {v(vFL)}")
        A(f"v_add_u32 {v(vFL + 2)}, {128 << FS}, {v(vFL)}")
        A(f"s_lshl_b32 s{sT0}, s{sL}, {FS}")
        A(f"s_add_u32 s{sT0}, s{sT0}, {W_FLAG}")
        A(f"v_lshl_add_u32 {v(vKEY)}, {v(vLANE)}, 4, s{sT0}")
        A(f"v_lshlrev_b32 {v(vSW)}, 6, {v(vT + 1)}")
        A(f"v_and_b32 {v(vT + 3)}, 4, {v(vLANE)}")
        A(f"v_lshl_add_u32 {v(vSW)}, {v(vT + 3)}, 3, {v(vSW)}")
        A(f"v_and_b32 {v(vT + 3)}, 8, {v(vLANE)}")
        A(f"v_lshl_add_u32 {v(vSW)}, {v(vT + 3)}, 4, {v(vSW)}")
        A(f"v_lshrrev_b32 {v(vT + 3)}, 5, {v(vLANE)}")
        A(f"v_lshl_add_u32 {v(vSW)}, {v(vT + 3)}, 4, {v(vSW)}")
        A(f"s_lshl_b32 s{sTMP}, s{sWAVE}, 2")
        A(f"s_add_u32 s{sTMP}, s{sTMP}, {L_RED1}")
        A(f"v_add_u32 {v(vSW)}, s{sTMP}, {v(vSW)}")
        A(f"v_and_b32 {v(vT + 3)}, 7, {v(vLANE)}")
        A(f"v_lshlrev_b32 {v(vRA)}, 4, {v(vT + 3)}")
        A(f"v_add_u32 {v(vRA)}, {L_RED1}, {v(vRA)}")
        A(f"v_lshlrev_b32 {v(vUW)}, 3, v0")
        A(f"v_mov_b32 {v(K)}, 0")
        A(f"v_mov_b32 {v(K + 1)}, 0")
        A(f"v_min_u32 {v(vT + 3)}, 472, {v(vUW)}")
        A(f"v_add_u32 {v(vT + 3)}, {L_U}, {v(vT + 3)}")
        A(f"v_min_u32 {v(vT + 4)}, 56, {v(vUW)}")
        A(f"v_add_u32 {v(vT + 4)}, {L_P}, {v(vT + 4)}")
        A(f"ds_write2st64_b64 {v(vT + 3)}, {v(K, 2)}, {v(K, 2)} offset0:0 offset1:9")
        A(f"ds_write_b64 {v(vT + 4)}, {v(K, 2)}")
        A(f"ds_write_b64 {v(vT + 4)}, {v(K, 2)} offset:{PC}")
        A(f"v_add_u32 {v(vUW)}, {L_U + 480}, {v(vUW)}")
        if o.get("i1", 1) == 1:
            for l in x1init:
                A(l)

        V = [K + i for i in range(8)]
        A("s_waitcnt vmcnt(5)")
        self.stamp("x")
        for r in range(4):
            A(f"v_dot2_f32_bf16 {v(V[r])}, {v(vX + 2 * r)}, s{sONES}, 0")
        for r in range(4):
            A(f"v_dot2_f32_bf16 {v(V[4 + r])}, {v(vX + 2 * r)}, {v(vX + 2 * r)}, 0")
        for r in range(4):
            A(f"v_dot2_f32_bf16 {v(V[r])}, {v(vX + 2 * r + 1)}, s{sONES}, {v(V[r])}")
        for r in range(4):
            A(f"v_dot2_f32_bf16 {v(V[4 + r])}, {v(vX + 2 * r + 1)}, {v(vX + 2 * r + 1)}, {v(V[4 + r])}")
        self.reduce8(V, K + 8)
        A(f"ds_write_b32 {v(vSW)}, {v(V[0])}")
        A("s_waitcnt vmcnt(0) lgkmcnt(0)")
        A("s_barrier")
        self.stamp("b1")
        A(f"ds_read_b128 {v(K, 4)}, {v(vRA)}")
        A(f"ds_read_b128 {v(K + 4, 4)}, {v(vRA)} offset:128")
        A(f"s_add_u32 s{sG}, s{sG}, 0x9e3779b9")
        fw = o.get("fw", 1)
        for k in range(4 if fw else 1):
            A(f"v_mov_b32 {v(K + 28 + k)}, s{sG}")
        A(f"s_cmp_eq_u32 s{sWAVE}, 0")
        if fw:
            A(f"s_cselect_b64 exec, {(1 << ((1 << FS) // 16)) - 1}, 0")
            A(f"global_store_dwordx4 {v(vKEY)}, {v(K + 28, 4)}, {sp(sWS)} sc1")
        else:
            A("s_cselect_b64 exec, 1, 0")
            A(f"global_store_dword {v(vKEY)}, {v(K + 28)}, {sp(sWS)} sc1")
        A("s_mov_b64 exec, -1")
        A(f"s_mov_b64 vcc, {sp(sODD)}")
        A("s_waitcnt lgkmcnt(0)")
        vNM, vRI = K + 16, K + 20
        self.row_stats(K, K + 4, K + 10, K + 11, K + 12)
        self.spread(K + 10, vNM, K + 24)
        Dd = K + 32
        for c in range(4):
            for r in range(4):
                A(f"v_dot2_f32_bf16 {v(Dd + 4 * c + r)}, {v(vX + 2 * r + (c >> 1))}, s{sSELHI if c & 1 else sSELLO}, {v(vNM + r)}")
        self.spread(K + 11, vRI, K + 24)
        Pk = K + 48
        for half in range(2):
            ks = range(4 * half, 4 * half + 4)
            for k in ks:
                A(f"v_cvt_pk_bf16_f32 {v(Pk + k)}, {v(Dd + 2 * k)}, {v(Dd + 2 * k + 1)}")
            for k in ks:
                A(f"v_lshlrev_b32 {v(Dd + 2 * k)}, 16, {v(Pk + k)}")
                A(f"v_and_b32 {v(Dd + 2 * k + 1)}, s{sMASK}, {v(Pk + k)}")
            for k in ks:
                A(f"v_pk_mul_f32 {v(Dd + 2 * k, 2)}, {v(Dd + 2 * k, 2)}, {v(vRI + 2 * (k & 1), 2)}")
            for k in ks:
                A(f"v_cvt_pk_bf16_f32 {v(vU + k)}, {v(Dd + 2 * k)}, {v(Dd + 2 * k + 1)}")
            A(f"global_store_dwordx4 {v(vREG)}, {v(vU + 4 * half, 4)}, {sp(sWS)} offset:{-4096 + 4096 * half} sc1")
        self.stamp("x1st")
        fl = [f"global_load_dword {v(vT + 4)}, {v(vFL)}, {sp(sWS)} sc1",
              f"global_load_dword {v(vT + 5)}, {v(vFL + 2)}, {sp(sWS)} sc1"]
        flchk = [f"v_xor_b32 {v(vT + 6)}, s{sG}, {v(vT + 4)}",
                 f"v_xor_b32 {v(vT + 7)}, s{sG}, {v(vT + 5)}",
                 f"v_or_b32 {v(vT + 6)}, {v(vT + 6)}, {v(vT + 7)}",
                 f"v_cmp_ne_u32 vcc, 0, {v(vT + 6)}"]
        flmode = o.get("flmode", 1)
        if flmode == 1:
            A("s_waitcnt vmcnt(0)")
        if flmode < 2:
            for l in fl:
                A(l)
        A("s_barrier")
        if flmode == 2:
            for l in fl:
                A(l)
        A("s_waitcnt vmcnt(0)")
        self.stamp("x1dr")
        self.poll("flag", fl, flchk)
        xl = [f"global_load_dwordx4 {v(vY, 4)}, {v(vAUX)}, {sp(sWS)} sc1",
              f"global_load_dwordx4 {v(vY + 4, 4)}, {v(vAUX + 1)}, {sp(sWS)} sc1"]
        for l in xl:
            A(l)
        self.stamp("flag")
        vWA = K + 8
        A(f"s_mul_i32 s{sTMP}, s{sXCD}, 448")
        A(f"s_and_b32 s{sTMP}, s{sTMP}, 0xffffff80")
        A(f"s_lshl_b32 s{sTMP + 1}, s{sPOS}, 1")
        A(f"s_lshr_b32 s{sTMP + 2}, s{sWAVE}, 1")
        A(f"s_add_u32 s{sTMP + 1}, s{sTMP + 1}, s{sTMP + 2}")
        A(f"s_mul_i32 s{sTMP + 1}, s{sTMP + 1}, {8 * 3584}")
        A(f"s_add_u32 s{sTMP}, s{sTMP}, s{sTMP + 1}")
        A(f"v_bfe_u32 {v(vWA)}, {v(vLANE)}, 2, 3")
        A(f"v_mul_u32_u24 {v(vWA)}, 3584, {v(vWA)}")
        A(f"v_and_b32 {v(vWA + 1)}, 3, {v(vLANE)}")
        A(f"v_lshl_add_u32 {v(vWA)}, {v(vWA + 1)}, 7, {v(vWA)}")
        A(f"v_add_u32 {v(vWA)}, s{sTMP}, {v(vWA)}")
        A(f"s_bitcmp1_b32 s{sWAVE}, 0")
        A(f"s_cselect_b64 {sp(sWSEL)}, {sp(sWU)}, {sp(sWG)}")
        A(f"v_and_b32 {v(vT + 3)}, 0xfe, v0")
        A(f"v_lshlrev_b32 {v(vFL)}, 7, {v(vT + 3)}")
        A(f"v_add_u32 {v(vFL)}, {W_FLAG2}, {v(vFL)}")
        A(f"v_dot2_f32_bf16 {v(K + 4)}, {v(vONE)}, s{sONES}, 0")
        for k in range(1, 4):
            A(f"v_dot2_f32_bf16 {v(K + 4)}, {v(vONE + k)}, s{sONES}, {v(K + 4)}")
        A(f"v_mov_b32 {v(K + 5)}, {L_SUMW}")
        for sh in (8, 4, 2, 1):
            A(f"v_add_f32_dpp {v(K + 4)}, {v(K + 4)}, {v(K + 4)} row_ror:{sh} row_mask:0xf bank_mask:0xf")
        A(f"v_add_f32_dpp {v(K + 4)}, {v(K + 4)}, {v(K + 4)} row_bcast:15 row_mask:0xa bank_mask:0xf")
        A(f"v_add_f32_dpp {v(K + 4)}, {v(K + 4)}, {v(K + 4)} row_bcast:31 row_mask:0xc bank_mask:0xf")
        A("s_mov_b32 exec_lo, 0")
        A("s_brev_b32 exec_hi, 1")
        A(f"ds_write_b32 {v(K + 5)}, {v(K + 4)}")
        A("s_mov_b64 exec, -1")
        A("s_barrier")
        A("s_waitcnt vmcnt(0)")
        chk8 = [f"v_max3_u32 {v(vT + 6)}, {v(vY)}, {v(vY + 1)}, {v(vY + 2)}",
                f"v_max3_u32 {v(vT + 7)}, {v(vY + 3)}, {v(vY + 4)}, {v(vY + 5)}",
                f"v_max3_u32 {v(vT + 6)}, {v(vT + 6)}, {v(vY + 6)}, {v(vY + 7)}",
                f"v_max_u32 {v(vT + 6)}, {v(vT + 6)}, {v(vT + 7)}",
                f"v_cmp_eq_u32 vcc, -1, {v(vT + 6)}"]
        self.poll("x1", xl, chk8)
        self.stamp("x1ld")
        A(f"ds_write2st64_b64 {v(vUW)}, {v(vY, 2)}, {v(vY + 2, 2)} offset0:0 offset1:9")
        A(f"ds_write2st64_b64 {v(vUW)}, {v(vY + 4, 2)}, {v(vY + 6, 2)} offset0:4 offset1:13")
        A("s_waitcnt lgkmcnt(0)")
        A("s_barrier")

        fl2 = [f"global_load_dword {v(vT + 4)}, {v(vFL)}, {sp(sWS)} sc1",
               f"global_load_dword {v(vT + 5)}, {v(vFL)}, {sp(sWS)} offset:128 sc1"]
        for l in fl2:
            A(l)
        A("s_mov_b32 exec_hi, 0")
        A(f"global_load_dword v3, {v(vWA)}, {sp(sWSEL)}")
        A("s_mov_b32 exec_hi, -1")
        A(f"v_mul_u32_u24 {v(vAUX)}, {RS}, {v(vT + 3)}")
        A(f"v_lshl_add_u32 {v(vAUX)}, {v(vT + 1)}, 4, {v(vAUX)}")
        A(f"s_lshl_b32 s{sTMP}, s{sL}, 5")
        A(f"s_add_u32 s{sTMP}, s{sTMP}, {W_REG + O_X2}")
        A(f"v_add_u32 {v(vAUX)}, s{sTMP}, {v(vAUX)}")
        A(f"v_add_u32 {v(vAUX + 1)}, {RS}, {v(vAUX)}")
        Tt, Xf = K + 40, K + 56
        Df = K + 72
        for k in range(8):
            A(f"v_lshlrev_b32 {v(Tt + 2 * k)}, 16, {v(vU + k)}")
            A(f"v_and_b32 {v(Tt + 2 * k + 1)}, s{sMASK}, {v(vU + k)}")
        A(f"v_lshlrev_b32 {v(Df)}, 16, {v(vD)}")
        A(f"v_and_b32 {v(Df + 1)}, s{sMASK}, {v(vD)}")
        A(f"v_lshlrev_b32 {v(Df + 2)}, 16, {v(vD + 1)}")
        A(f"v_and_b32 {v(Df + 3)}, s{sMASK}, {v(vD + 1)}")
        for k in range(8):
            c = k >> 1
            sel = "op_sel:[1,0] op_sel_hi:[1,1]" if c & 1 else "op_sel_hi:[0,1]"
            A(f"v_pk_mul_f32 {v(Tt + 2 * k, 2)}, {v(Df + (c & 2), 2)}, {v(Tt + 2 * k, 2)} {sel}")
        for k in range(8):
            A(f"v_cvt_pk_bf16_f32 {v(Xf + k)}, {v(Tt + 2 * k)}, {v(Tt + 2 * k + 1)}")
        for k in range(8):
            A(f"v_lshlrev_b32 {v(Tt + 2 * k)}, 16, {v(Xf + k)}")
            A(f"v_and_b32 {v(Tt + 2 * k + 1)}, s{sMASK}, {v(Xf + k)}")
        for r in range(4):
            for c in range(4):
                src = v(vX + 2 * r + (c >> 1))
                if c & 1:
                    A(f"v_and_b32 {v(Xf + 4 * c + r)}, s{sMASK}, {src}")
                else:
                    A(f"v_lshlrev_b32 {v(Xf + 4 * c + r)}, 16, {src}")
        A("s_waitcnt vmcnt(1)")
        self.poll("flag2", fl2, flchk)
        self.stamp("shadow")
        A("s_barrier")
        A("s_barrier")
        self.stamp("b4b")
        for l in xl:
            A(l)
        A("s_waitcnt vmcnt(0)")
        self.poll("x2", xl, chk8)
        self.stamp("x2ld")

        for k in range(8):
            A(f"v_dot2_f32_bf16 {v(Tt + 2 * k)}, {v(vY + k)}, s{sSELLO}, {v(Tt + 2 * k)}")
            A(f"v_dot2_f32_bf16 {v(Tt + 2 * k + 1)}, {v(vY + k)}, s{sSELHI}, {v(Tt + 2 * k + 1)}")
        for k in range(8):
            A(f"v_cvt_pk_bf16_f32 {v(vY + k)}, {v(Tt + 2 * k)}, {v(Tt + 2 * k + 1)}")
        for k in range(8):
            A(f"v_dot2_f32_bf16 {v(Xf + 2 * k)}, {v(vY + k)}, s{sSELLO}, {v(Xf + 2 * k)}")
            A(f"v_dot2_f32_bf16 {v(Xf + 2 * k + 1)}, {v(vY + k)}, s{sSELHI}, {v(Xf + 2 * k + 1)}")
        vH = vX
        for cp in range(2):
            for r in range(4):
                A(f"v_cvt_pk_bf16_f32 {v(vH + 2 * r + cp)}, {v(Xf + 8 * cp + r)}, {v(Xf + 8 * cp + 4 + r)}")
        Rr = [K + 8 + i for i in range(4)]
        for cp in range(2):
            for r in range(4):
                A(f"v_dot2_f32_bf16 {v(V[r])}, {v(vH + 2 * r + cp)}, s{sONES}, {v(V[r]) if cp else 0}")
            for r in range(4):
                A(f"v_dot2_f32_bf16 {v(V[4 + r])}, {v(vH + 2 * r + cp)}, {v(vH + 2 * r + cp)}, {v(V[4 + r]) if cp else 0}")
            for r in range(4):
                A(f"v_dot2_f32_bf16 {v(Rr[r])}, {v(vH + 2 * r + cp)}, {v(vWR + cp)}, {v(Rr[r]) if cp else 0}")
        for i in range(4):
            A(f"v_add_f32_dpp {v(V[i])}, {v(V[i])}, {v(V[i])} row_ror:8 row_mask:0xf bank_mask:0x3")
        for i in range(4):
            A(f"v_add_f32_dpp {v(V[i])}, {v(V[i + 4])}, {v(V[i + 4])} row_ror:8 row_mask:0xf bank_mask:0xc")
        for i in range(2):
            A(f"v_add_f32_dpp {v(Rr[i])}, {v(Rr[i])}, {v(Rr[i])} row_shl:4 row_mask:0xf bank_mask:0x5")
        for i in range(2):
            A(f"v_add_f32_dpp {v(Rr[i])}, {v(Rr[i + 2])}, {v(Rr[i + 2])} row_shr:4 row_mask:0xf bank_mask:0xa")
        for i in range(2):
            A(f"v_add_f32_dpp {v(V[i])}, {v(V[i])}, {v(V[i])} row_shl:4 row_mask:0xf bank_mask:0x5")
        for i in range(2):
            A(f"v_add_f32_dpp {v(V[i])}, {v(V[i + 2])}, {v(V[i + 2])} row_shr:4 row_mask:0xf bank_mask:0xa")
        A(f"v_permlane32_swap_b32 {v(Rr[0])}, {v(Rr[1])}")
        A(f"v_and_b32 {v(K + 13)}, 0xffffff7f, {v(vSW)}")
        A(f"v_permlane32_swap_b32 {v(V[0])}, {v(V[1])}")
        A(f"v_add_f32 {v(Rr[0])}, {v(Rr[0])}, {v(Rr[1])}")
        A(f"v_add_f32 {v(V[0])}, {v(V[0])}, {v(V[1])}")
        A(f"s_mov_b64 vcc, {sp(sODD)}")
        A(f"v_add_f32_dpp {v(Rr[0])}, {v(Rr[0])}, {v(Rr[0])} row_ror:8 row_mask:0xf bank_mask:0xf")
        A(f"v_add_f32_dpp {v(V[0])}, {v(V[0])}, {v(V[0])} quad_perm:[2,3,0,1] row_mask:0xf bank_mask:0xf")
        A(f"v_mov_b32 {v(V[1])}, {v(V[0])}")
        A(f"v_add_f32_dpp {v(Rr[0])}, {v(Rr[0])}, {v(Rr[0])} quad_perm:[2,3,0,1] row_mask:0xf bank_mask:0xf")
        A(f"v_mov_b32 {v(Rr[1])}, {v(Rr[0])}")
        A(f"v_permlane16_swap_b32 {v(V[0])}, {v(V[1])}")
        A(f"v_add_f32 {v(V[0])}, {v(V[0])}, {v(V[1])}")
        A(f"v_permlane16_swap_b32 {v(Rr[0])}, {v(Rr[1])}")
        A(f"v_add_f32 {v(Rr[0])}, {v(Rr[0])}, {v(Rr[1])}")
        A(f"ds_write_b32 {v(vSW)}, {v(V[0])} offset:{L_RED2 - L_RED1}")
        A(f"ds_write_b32 {v(K + 13)}, {v(Rr[0])} offset:{L_RED2 - L_RED1 + 256}")
        A("s_waitcnt lgkmcnt(0)")
        A("s_barrier")
        self.stamp("b5")
        Hf, Dd = Xf, Tt
        self.key_calc(K, vRA, vLANE)
        self.spread(K + 12, vNM, K + 24)
        A(f"v_readfirstlane_b32 s{sBEST}, {v(K + 8)}")
        for r in range(4):
            for cp in range(2):
                A(f"v_lshlrev_b32 {v(Hf + 4 * r + 2 * cp)}, 16, {v(vH + 2 * r + cp)}")
                A(f"v_and_b32 {v(Hf + 4 * r + 2 * cp + 1)}, s{sMASK}, {v(vH + 2 * r + cp)}")
        self.spread(K + 13, vRI, K + 24)
        for k in range(8):
            r = k >> 1
            sel = "op_sel:[1,0] op_sel_hi:[1,1]" if r & 1 else "op_sel_hi:[0,1]"
            A(f"v_pk_add_f32 {v(Dd + 2 * k, 2)}, {v(vNM + (r & 2), 2)}, {v(Hf + 2 * k, 2)} {sel}")
        vX2 = vU
        for k in range(8):
            A(f"v_cvt_pk_bf16_f32 {v(vX2 + k)}, {v(Dd + 2 * k)}, {v(Dd + 2 * k + 1)}")
        for k in range(8):
            A(f"v_lshlrev_b32 {v(Dd + 2 * k)}, 16, {v(vX2 + k)}")
            A(f"v_and_b32 {v(Dd + 2 * k + 1)}, s{sMASK}, {v(vX2 + k)}")
        for k in range(8):
            r = k >> 1
            sel = "op_sel:[1,0] op_sel_hi:[1,1]" if r & 1 else "op_sel_hi:[0,1]"
            A(f"v_pk_mul_f32 {v(Dd + 2 * k, 2)}, {v(vRI + (r & 2), 2)}, {v(Dd + 2 * k, 2)} {sel}")
        for k in range(8):
            A(f"v_cvt_pk_bf16_f32 {v(vX2 + k)}, {v(Dd + 2 * k)}, {v(Dd + 2 * k + 1)}")
        A(f"s_andn2_b32 s{sTMP}, 7, s{sBEST}")
        A(f"s_and_b32 s{sTMP + 1}, s{sTMP}, 3")
        A(f"s_lshl_b32 s{sTMP + 2}, s{sTMP + 1}, 1")
        A(f"s_not_b64 {sp(sE)}, {sp(sODD)}")
        A(f"s_cmp_ge_u32 s{sTMP}, 4")
        A(f"s_cselect_b64 {sp(sE)}, {sp(sODD)}, {sp(sE)}")
        vC = K + 24
        A(f"s_set_gpr_idx_on s{sTMP + 2}, gpr_idx(SRC0)")
        A(f"v_mov_b32 {v(vC)}, {v(vX2)}")
        A(f"v_mov_b32 {v(vC + 1)}, {v(vX2 + 1)}")
        A(f"v_mov_b32 {v(vC + 2)}, {v(vH)}")
        A(f"v_mov_b32 {v(vC + 3)}, {v(vH + 1)}")
        A("s_set_gpr_idx_off")
        A(f"s_add_u32 s{sTMP + 3}, s{sOWN}, {O_SLOT}")
        A(f"v_add_u32 {v(vT)}, s{sTMP + 3}, {v(vT + 2)}")
        A(f"s_mov_b64 exec, {sp(sE)}")
        A(f"global_store_dwordx2 {v(vT)}, {v(vC, 2)}, {sp(sWS)} sc1")
        A(f"global_store_dwordx2 {v(vT)}, {v(vC + 2, 2)}, {sp(sWS)} offset:1024 sc1")
        A("s_mov_b64 exec, -1")
        self.stamp("slot")
        for k in range(8):
            A(f"v_dot2_f32_bf16 {v(Hf + 2 * k)}, {v(vX2 + k)}, s{sSELLO}, {v(Hf + 2 * k)}")
            A(f"v_dot2_f32_bf16 {v(Hf + 2 * k + 1)}, {v(vX2 + k)}, s{sSELHI}, {v(Hf + 2 * k + 1)}")
        vO = vY
        A(f"v_mov_b32 {v(vT + 4)}, {L_REDK}")
        for k in range(8):
            A(f"v_cvt_pk_bf16_f32 {v(vO + k)}, {v(Hf + 2 * k)}, {v(Hf + 2 * k + 1)}")
        osc = " sc1" if o.get("outsc", 1) == 1 else (" nt" if o.get("outsc", 1) == 2 else "")
        for r in range(4):
            A(f"s_cmp_eq_u32 s{sTMP + 1}, {r}")
            A(f"s_cselect_b64 vcc, {sp(sE)}, 0")
            A("s_not_b64 exec, vcc")
            A(f"global_store_dwordx2 {v(vRD)}, {v(vO + 2 * r, 2)}, {sp(sOUT)} offset:{1024 * r}{osc}")
        A("s_mov_b64 exec, -1")
        A(f"s_set_gpr_idx_on s{sTMP + 2}, gpr_idx(SRC0)")
        A(f"v_mov_b32 {v(vC + 4)}, {v(vO)}")
        A(f"v_mov_b32 {v(vC + 5)}, {v(vO + 1)}")
        A("s_set_gpr_idx_off")
        A(f"s_lshl_b32 s{sTMP + 1}, s{sTMP + 1}, 10")
        A(f"v_add_u32 {v(vRD)}, s{sTMP + 1}, {v(vRD)}")
        self.stamp("outst")
        A("s_barrier")
        A(f"ds_read_b32 {v(K)}, {v(vT + 4)}")
        A(f"v_mov_b32 {v(vT + 4)}, s{sG}")
        A(f"v_mov_b32 {v(vT + 5)}, 0")
        A("s_waitcnt lgkmcnt(0)")
        A(f"v_readfirstlane_b32 s{sWIN}, {v(K)}")
        A(f"s_cmp_eq_u32 s{sWIN}, s{sBEST}")
        A(f"s_cselect_b64 exec, 0, {sp(sE)}")
        A(f"global_store_dwordx2 {v(vRD)}, {v(vC + 4, 2)}, {sp(sOUT)}{osc}")
        A(f"s_or_b32 s{sTMP}, s{sL}, s{sWAVE}")
        A(f"s_cmp_eq_u32 s{sTMP}, 0")
        A("s_cselect_b64 exec, 1, 0")
        A(f"global_store_dword {v(vT + 5)}, {v(vT + 4)}, {sp(sWS)} sc1")
        A(f"s_cmp_lt_u32 s{sPOS}, 14")
        A("s_cbranch_scc0 L_fin")
        A("s_barrier")
        A("L_fin:")
        self.finish("R")

    def chans(self):
        A = self.A
        o = self.o
        vLANE = 1
        vAA, vBA, vEW, vER, vRA = 4, 12, 13, 14, 15
        vKA0, vKA1, vKB, vPW0, vPW1 = 16, 17, 18, 19, 20
        vP = 24
        vT = 28
        vACC = 40
        vA0, vA1, vB0, vB1 = 72, 104, 136, 168
        K = 72
        vWD = 200
        A("L_chan:")
        self.stamp("karg")
        A(f"s_load_dword s{sG}, {sp(sWS)}, 0")
        A(f"s_sub_u32 s{sWAVE}, s{sWAVE}, 4")
        A(f"s_mov_b32 s{sMASK}, 0xffff0000")
        A(f"s_mul_i32 s{sOWN}, s{sL}, {RS}")
        A(f"s_add_u32 s{sOWN}, s{sOWN}, {W_REG}")
        vJ, vGq = vT + 4, vT + 5
        A(f"v_and_b32 {v(vJ)}, 15, {v(vLANE)}")
        A(f"v_lshrrev_b32 {v(vGq)}, 4, {v(vLANE)}")
        A(f"s_lshr_b32 s{sT0}, s{sWAVE}, 1")
        A(f"s_and_b32 s{sT1}, s{sWAVE}, 1")
        A(f"v_and_b32 {v(vT)}, 7, {v(vLANE)}")
        A(f"v_lshlrev_b32 {v(vRA)}, 4, {v(vT)}")
        A(f"v_add_u32 {v(vRA)}, {L_RED1}, {v(vRA)}")
        A(f"s_mul_i32 s{sTMP}, s{sT0}, {PC}")
        A(f"s_lshl_b32 s{sTMP + 1}, s{sT1}, 7")
        A(f"s_add_u32 s{sTMP}, s{sTMP}, s{sTMP + 1}")
        A(f"s_add_u32 s{sTMP}, s{sTMP}, {L_P + 4 * 26}")
        A(f"v_lshlrev_b32 {v(vT)}, 3, {v(vGq)}")
        A(f"v_sub_u32 {v(vT)}, {v(vJ)}, {v(vT)}")
        A(f"v_lshl_add_u32 {v(vAA)}, {v(vT)}, 2, s{sTMP}")
        for m in range(1, 8):
            A(f"v_add_u32 {v(vAA + m)}, {1024 * m}, {v(vAA)}")
        A(f"s_mul_i32 s{sTMP}, s{sT0}, {UC}")
        A(f"s_lshl_b32 s{sTMP + 1}, s{sT1}, 6")
        A(f"s_sub_u32 s{sTMP}, s{sTMP}, s{sTMP + 1}")
        A(f"s_add_u32 s{sTMP}, s{sTMP}, {L_U + 64}")
        A(f"v_lshl_add_u32 {v(vT)}, {v(vJ)}, 1, {v(vGq)}")
        A(f"v_lshl_add_u32 {v(vBA)}, {v(vT)}, 4, s{sTMP}")
        A(f"v_lshl_add_u32 {v(vT)}, {v(vJ)}, 2, {v(vGq)}")
        A(f"v_lshrrev_b32 {v(vT + 1)}, 3, {v(vT)}")
        A(f"v_add_u32 {v(vT)}, {v(vT)}, {v(vT + 1)}")
        A(f"s_mul_i32 s{sTMP}, s{sWAVE}, {8 * TBS}")
        A(f"v_lshl_add_u32 {v(vEW)}, {v(vT)}, 4, s{sTMP}")
        A(f"v_lshrrev_b32 {v(vT + 1)}, 3, {v(vLANE)}")
        A(f"v_add_u32 {v(vT)}, {v(vLANE)}, {v(vT + 1)}")
        A(f"s_mul_i32 s{sTMP}, s{sWAVE}, {2 * TBS}")
        A(f"v_lshl_add_u32 {v(vER)}, {v(vT)}, 4, s{sTMP}")
        KS = o.get("ks", 5)
        for k in range(4):
            A(f"v_mov_b32 {v(vACC + k)}, -1")
        A(f"s_add_u32 s{sTMP}, s{sOWN}, {O_X2 + 4096}")
        A(f"v_lshl_add_u32 {v(vACC + 4)}, v0, 4, s{sTMP}")
        A(f"v_add_u32 {v(vACC + 5)}, 4096, {v(vACC + 4)}")
        A(f"s_lshl_b32 s{sTMP}, s{sL}, {KS}")
        A(f"s_add_u32 s{sTMP}, s{sTMP}, {W_KEY}")
        A(f"v_lshl_add_u32 {v(22)}, {v(vLANE)}, 4, s{sTMP}")
        A(f"s_lshl_b32 s{sTMP}, s{sL}, 7")
        A(f"s_add_u32 s{sTMP}, s{sTMP}, {W_FLAG2}")
        A(f"v_lshl_add_u32 {v(23)}, {v(vLANE)}, 4, s{sTMP}")
        ones = v(vACC, 4)
        inits = [f"global_store_dwordx4 {v(vACC + 4)}, {ones}, {sp(sWS)} offset:-4096 sc1",
                 f"global_store_dwordx4 {v(vACC + 4)}, {ones}, {sp(sWS)} sc1",
                 f"global_store_dwordx4 {v(vACC + 5)}, {ones}, {sp(sWS)} sc1",
                 f"s_cmp_eq_u32 s{sWAVE}, 0",
                 f"s_cselect_b64 exec, {(1 << ((1 << KS) // 16)) - 1}, 0",
                 f"global_store_dwordx4 {v(22)}, {ones}, {sp(sWS)} sc1",
                 "s_mov_b64 exec, -1"]
        i2 = o.get("i2", 0)
        vg, vr = vT, vT + 1
        A(f"v_lshrrev_b32 {v(vg)}, 2, {v(vJ)}")
        A(f"v_and_b32 {v(vr)}, 3, {v(vJ)}")
        A(f"s_cmp_eq_u32 s{sT1}, 0")
        A("s_cbranch_scc0 L_rows_hi")
        A(f"v_mov_b32 {v(vKA0)}, {v(vJ)}")
        A(f"v_lshl_add_u32 {v(vKA1)}, {v(vg)}, 1, {v(vr)}")
        A(f"v_add_u32 {v(vKA1)}, 16, {v(vKA1)}")
        A(f"v_add_u32 {v(vT + 2)}, -4, {v(vJ)}")
        A(f"v_and_b32 {v(vT + 2)}, 15, {v(vT + 2)}")
        A(f"v_cmp_eq_u32 vcc, 3, {v(vr)}")
        A(f"v_cndmask_b32 {v(vKA1)}, {v(vKA1)}, {v(vT + 2)}, vcc")
        A(f"v_lshl_add_u32 {v(vPW0)}, {v(vJ)}, 2, {v(vGq)}")
        A(f"v_lshlrev_b32 {v(vPW0)}, 4, {v(vPW0)}")
        A(f"v_add_u32 {v(vPW1)}, 1024, {v(vPW0)}")
        A("s_branch L_rows_done")
        A("L_rows_hi:")
        A(f"v_lshrrev_b32 {v(vT + 2)}, 1, {v(vg)}")
        A(f"v_lshl_add_u32 {v(vKA0)}, {v(vg)}, 1, {v(vr)}")
        A(f"v_add3_u32 {v(vKA0)}, {v(vKA0)}, {v(vT + 2)}, 25")
        A(f"v_sub_u32 {v(vKA1)}, {v(vJ)}, {v(vg)}")
        A(f"v_add_u32 {v(vKA1)}, 35, {v(vKA1)}")
        A(f"v_lshrrev_b32 {v(vT + 2)}, 1, {v(vGq)}")
        A(f"v_lshl_add_u32 {v(vPW0)}, {v(vT + 2)}, 4, {v(vJ)}")
        A(f"v_and_b32 {v(vT + 2)}, 1, {v(vGq)}")
        A(f"v_lshl_add_u32 {v(vPW0)}, {v(vPW0)}, 1, {v(vT + 2)}")
        A(f"v_lshlrev_b32 {v(vPW0)}, 5, {v(vPW0)}")
        A(f"v_add_u32 {v(vPW0)}, 2048, {v(vPW0)}")
        A(f"v_lshlrev_b32 {v(vPW1)}, 6, {v(vLANE)}")
        A(f"v_add_u32 {v(vPW1)}, 4096, {v(vPW1)}")
        A("L_rows_done:")
        A(f"s_mul_i32 s{sTMP}, s{sT0}, {PC}")
        A(f"s_add_u32 s{sTMP}, s{sTMP}, {L_P + 64}")
        A(f"v_add_u32 {v(vPW0)}, s{sTMP}, {v(vPW0)}")
        A(f"v_add_u32 {v(vPW1)}, s{sTMP}, {v(vPW1)}")
        A(f"s_mul_i32 s{sTMP}, s{sT0}, {TABC}")
        A(f"v_lshl_add_u32 {v(vT + 2)}, {v(vGq)}, 4, s{sTMP}")
        A(f"s_movk_i32 s{sTMP + 1}, {ROWB}")
        A(f"v_mad_u32_u24 {v(vKA0)}, {v(vKA0)}, s{sTMP + 1}, {v(vT + 2)}")
        A(f"v_mad_u32_u24 {v(vKA1)}, {v(vKA1)}, s{sTMP + 1}, {v(vT + 2)}")
        A(f"v_mad_u32_u24 {v(vKB)}, {v(vJ)}, s{sTMP + 1}, {v(vT + 2)}")
        A(f"s_lshl_b32 s{sTMP + 1}, s{sT1}, 8")
        A(f"s_add_u32 m0, s{sTMP}, s{sTMP + 1}")
        A(f"s_mul_i32 s{sF}, s{sXCD}, 14")
        A(f"s_add_u32 s{sF}, s{sF}, s{sPOS}")
        A(f"s_lshl_b32 s{sTMP + 1}, s{sF}, 14")
        A(f"s_add_u32 s{sTMP + 1}, s{sTMP + 1}, 4096")
        A(f"v_lshl_add_u32 v2, v0, 2, s{sTMP + 1}")
        A(f"v_add_u32 v21, 8192, v2")

        L2E = 1.4426950408889634
        l2e_hi = struct.unpack("<f", struct.pack("<f", L2E))[0]
        l2e_lo = L2E - l2e_hi
        a, b = K, K + 2
        A(f"s_mov_b32 s{sE}, {hex(f2u(l2e_hi))}")
        A(f"s_mov_b32 s{sE + 1}, {hex(f2u(l2e_lo))}")
        A("s_waitcnt vmcnt(0) lgkmcnt(0)")
        self.stamp("par")
        if i2 == 0:
            for l in inits:
                A(l)
        A(f"s_lshl_b32 s{sTMP}, s{sDT}, 16")
        A(f"s_and_b32 s{sTMP + 1}, s{sDT}, s{sMASK}")
        A(f"s_cmp_lt_u32 s{sWAVE}, 2")
        A(f"s_cselect_b32 s{sDT}, s{sTMP}, s{sTMP + 1}")
        A(f"v_lshlrev_b32 {v(a)}, 16, {v(vP)}")
        A(f"v_mov_b32 {v(a + 1)}, s{sDT}")
        A(f"v_pk_mul_f32 {v(b, 2)}, {v(a, 2)}, {sp(sE)} op_sel_hi:[1,0]")
        A(f"v_pk_fma_f32 {v(b + 2, 2)}, {v(a, 2)}, {sp(sE)}, {v(b, 2)} op_sel_hi:[1,0,1] neg_lo:[0,0,1] neg_hi:[0,0,1]")
        A(f"v_exp_f32 {v(b)}, {v(b)}")
        A(f"v_exp_f32 {v(b + 1)}, {v(b + 1)}")
        A(f"v_pk_fma_f32 {v(b + 2, 2)}, {sp(sE)}, {v(a, 2)}, {v(b + 2, 2)} op_sel:[1,0,0] op_sel_hi:[1,1,1]")
        A(f"v_mul_f32 {v(b + 2)}, {hex(f2u(0.6931471805599453))}, {v(b + 2)}")
        A(f"v_mul_f32 {v(b + 3)}, {hex(f2u(0.6931471805599453))}, {v(b + 3)}")
        A(f"v_pk_fma_f32 {v(b, 2)}, {v(b, 2)}, {v(b + 2, 2)}, {v(b, 2)}")
        A(f"v_cvt_pk_bf16_f32 {v(a)}, {v(b)}, {v(b + 1)}")
        vdt, va2, vph = K + 6, K + 7, K + 8
        A(f"v_and_b32 {v(vdt)}, s{sMASK}, {v(a)}")
        A(f"v_lshlrev_b32 {v(va2)}, 16, {v(a)}")
        A(f"v_lshlrev_b32 {v(vph)}, 16, {v(vP + 1)}")
        A(f"v_mul_f32 {v(va2)}, {v(va2)}, {v(vdt)}")
        A(f"v_mul_f32 {v(vph)}, {v(vph)}, {v(vdt)}")
        A(f"v_mul_f32 {v(va2)}, {hex(f2u(-l2e_hi))}, {v(va2)}")
        A(f"v_mul_f32 {v(vph)}, 0.15915494, {v(vph)}")
        Wp = {p: K + 10 + 2 * p for p in range(1, 17)}
        Zp = {p: K + 42 + 2 * p for p in range(1, 8)}
        G = [K + 58, K + 60]
        TT = [K + 62, K + 64, K + 66, K + 68]
        RR = [K + 70, K + 72, K + 74, K + 76]
        CV = K + 80
        A(f"v_add_f32 {v(vdt)}, {v(vdt)}, {v(vdt)}")
        A(f"v_lshlrev_b32 {v(G[0])}, 16, {v(vP + 2)}")
        A(f"v_lshlrev_b32 {v(G[0] + 1)}, 16, {v(vP + 3)}")
        A(f"v_mul_f32 {v(G[0])}, {v(G[0])}, {v(vdt)}")
        A(f"v_mul_f32 {v(G[0] + 1)}, {v(G[0] + 1)}, {v(vdt)}")
        for n, (dst, sc) in enumerate(((Wp[1], 1.0), (Wp[16], 16.0), (Zp[1], 256.0))):
            t = TT[n]
            if sc == 1.0:
                A(f"v_exp_f32 {v(t)}, {v(va2)}")
                A(f"v_fract_f32 {v(t + 1)}, {v(vph)}")
            else:
                A(f"v_mul_f32 {v(t)}, {hex(f2u(sc))}, {v(va2)}")
                A(f"v_mul_f32 {v(t + 1)}, {hex(f2u(sc))}, {v(vph)}")
                A(f"v_exp_f32 {v(t)}, {v(t)}")
                A(f"v_fract_f32 {v(t + 1)}, {v(t + 1)}")
            A(f"v_cos_f32 {v(dst)}, {v(t + 1)}")
            A(f"v_sin_f32 {v(dst + 1)}, {v(t + 1)}")
        for n, dst in enumerate((Wp[1], Wp[16], Zp[1])):
            A(f"v_pk_mul_f32 {v(dst, 2)}, {v(dst, 2)}, {v(TT[n], 2)} op_sel_hi:[1,0]")
        jobs = [(1, Wp[1], None, None, 0), (16, Zp[1], None, None, 0), (47, G[0], None, None, 1)]
        wj = []
        for p in range(2, 16):
            hb = 1 << (p.bit_length() - 1)
            x, y = (p // 2, p // 2) if hb == p else (hb, p - hb)
            wj.append((p, Wp[p], Wp[x], Wp[y], 0))
        gj = [(47 + j, G[j & 1], G[(j - 1) & 1], Wp[16], 1) for j in range(1, 16)]
        zrow = {2: 25, 3: 30, 4: 35, 5: 38, 6: 41, 7: 44}
        zj = []
        for p in range(2, 8):
            hb = 1 << (p.bit_length() - 1)
            x, y = (p // 2, p // 2) if hb == p else (hb, p - hb)
            zj.append((zrow[p], Zp[p], Zp[x], Zp[y], 0))
        tj = [(16 + k, None, Zp[1], Wp[2 * k], 0) for k in range(1, 9)]
        for z in (2, 3):
            tj += [(zrow[z] + k, None, Zp[z], Wp[4 * k], 0) for k in range(1, 5)]
        for z in (4, 5, 6, 7):
            tj += [(zrow[z] + k, None, Zp[z], Wp[8 * k], 0) for k in range(1, 3)]
        first = []
        for i in range(max(len(wj), len(gj), len(zj))):
            for q in (wj, gj, zj):
                if i < len(q):
                    first.append(q[i])
        jobs += first + tj
        A(f"v_mov_b32 {v(CV + 15)}, 0x3f80")
        pend = [(0, CV + 15)]
        slot = 0
        nb = 0
        b1_at = o.get("b1_at", 0)
        batch = o.get("batch", 6)

        def do_b1():
            self.stamp("setup")
            A("s_barrier")
            self.stamp("b1")
            if i2 == 1:
                for l in inits:
                    A(l)
        if b1_at == 0:
            do_b1()
        for n, (row, dst, x, y, conj) in enumerate(jobs):
            if x is not None:
                if dst is None:
                    dst = RR[n & 3]
                for ins in self.cmul(dst, x, y, TT[n & 3]):
                    A(ins)
            A(f"v_cvt_pk_bf16_f32 {v(CV + slot)}, {v(dst)}, {'-' if conj else ''}{v(dst + 1)}")
            pend.append((row, CV + slot))
            slot = (slot + 1) % 15
            if len(pend) >= batch or n == len(jobs) - 1:
                for row_, reg in pend:
                    A(f"ds_write_addtid_b32 {v(reg)} offset:{row_ * ROWB}")
                pend = []
                nb += 1
                if nb == b1_at:
                    do_b1()
        A(f"s_add_u32 s{sG}, s{sG}, 0x9e3779b9")
        for k in range(4):
            A(f"v_mov_b32 {v(vACC + 8 + k)}, s{sG}")
        A("s_waitcnt vmcnt(0) lgkmcnt(0)")
        self.stamp("kgen1")
        A("s_barrier")
        fB, fA0, fA1 = K, K + 32, K + 64
        for s in range(4):
            A(f"ds_read_b128 {v(fB + 4 * s, 4)}, {v(vKB)} offset:{47 * ROWB + 64 * s}")
            A(f"ds_read_b128 {v(fA0 + 4 * s, 4)}, {v(vKA0)} offset:{64 * s}")
            A(f"ds_read_b128 {v(fA1 + 4 * s, 4)}, {v(vKA1)} offset:{64 * s}")
        A(f"s_cmp_eq_u32 s{sWAVE}, 0")
        A("s_cselect_b64 exec, 0xff, 0")
        A(f"global_store_dwordx4 {v(23)}, {v(vACC + 8, 4)}, {sp(sWS)} sc1")
        A("s_mov_b64 exec, -1")
        D0, D1 = vACC, vACC + 4
        for s in range(8):
            s2 = s + 4
            A(f"s_waitcnt lgkmcnt({9 if s2 < 8 else 3 * (7 - s)})")
            c0 = "0" if s == 0 else v(D0, 4)
            c1 = "0" if s == 0 else v(D1, 4)
            A(f"v_mfma_f32_16x16x32_bf16 {v(D0, 4)}, {v(fA0 + 4 * s, 4)}, {v(fB + 4 * s, 4)}, {c0}")
            if s2 < 8:
                A(f"ds_read_b128 {v(fB + 4 * s2, 4)}, {v(vKB)} offset:{47 * ROWB + 64 * s2}")
                A(f"ds_read_b128 {v(fA0 + 4 * s2, 4)}, {v(vKA0)} offset:{64 * s2}")
            A(f"v_mfma_f32_16x16x32_bf16 {v(D1, 4)}, {v(fA1 + 4 * s, 4)}, {v(fB + 4 * s, 4)}, {c1}")
            if s2 < 8:
                A(f"ds_read_b128 {v(fA1 + 4 * s2, 4)}, {v(vKA1)} offset:{64 * s2}")
        E = K + 96
        A(f"s_bitcmp1_b32 s{sWAVE}, 0")
        A(f"v_cmp_eq_u32 vcc, 0, {v(vLANE)}")
        A("s_nop 5")
        A("s_cbranch_scc0 L_exp_lo")
        seq2 = ["aa", "aa", "aa", "ba", "bb", "bb", "cb", "cc"]
        seq3 = ["aa", "aa", "aa", "aa", "aa", "ba", "bb", "bb", "bb", "bb", "cb", "cc", "cc", "cc"]
        ix = {"a": 0, "b": 1, "c": 2}
        for k, s in enumerate(seq3):
            A(f"v_cvt_pk_bf16_f32 {v(E + 8 + k)}, {v(D1 + ix[s[0]])}, {v(D1 + ix[s[1]])}")
        for k, w in enumerate((0, 4, 6, 10)):
            A(f"ds_write_b128 {v(vPW1)}, {v(E + 8 + w, 4)} offset:{16 * k}")
        for k, s in enumerate(seq2):
            A(f"v_cvt_pk_bf16_f32 {v(E + k)}, {v(D0 + ix[s[0]])}, {v(D0 + ix[s[1]])}")
        A(f"ds_write_b128 {v(vPW0)}, {v(E, 4)}")
        A(f"ds_write_b128 {v(vPW0)}, {v(E + 4, 4)} offset:16")
        A("L_exp_done:")
        T = self.tail
        T("L_exp_lo:")
        T(f"v_mov_b32_dpp {v(D1 + 3)}, {v(D1 + 3)} row_ror:1 row_mask:0x1 bank_mask:0xf")
        T(f"v_cvt_pk_bf16_f32 {v(E + 1)}, {v(D0 + 1)}, {v(D0)}")
        T(f"v_cvt_pk_bf16_f32 {v(E + 2)}, {v(D0 + 2)}, {v(D0 + 1)}")
        T(f"v_cvt_pk_bf16_f32 {v(E + 3)}, {v(D0 + 3)}, {v(D0 + 2)}")
        T(f"v_cndmask_b32 {v(E + 8)}, {v(D1 + 3)}, 0, vcc")
        T(f"v_cndmask_b32 {v(E + 9)}, {v(D1)}, {v(D1 + 3)}, vcc")
        T(f"v_cvt_pk_bf16_f32 {v(E)}, {v(D0)}, {v(E + 8)}")
        T(f"v_cvt_pk_bf16_f32 {v(E + 4)}, {v(D1)}, {v(E + 9)}")
        T(f"v_cvt_pk_bf16_f32 {v(E + 5)}, {v(D1)}, {v(D1)}")
        T(f"v_cvt_pk_bf16_f32 {v(E + 6)}, {v(D1 + 1)}, {v(D1)}")
        T(f"v_cvt_pk_bf16_f32 {v(E + 7)}, {v(D1 + 2)}, {v(D1 + 1)}")
        T(f"ds_write_b128 {v(vPW0)}, {v(E, 4)}")
        T(f"ds_write_b128 {v(vPW1)}, {v(E + 4, 4)}")
        T("s_branch L_exp_done")
        A("s_waitcnt lgkmcnt(0)")
        self.stamp("kgen2")
        A("s_barrier")

        def rdA(buf, rho, m):
            return [f"ds_read2_b32 {v(buf + 4 * m, 2)}, {v(vAA + m)} offset0:{64 * rho + 6} offset1:{64 * rho + 4}",
                    f"ds_read2_b32 {v(buf + 4 * m + 2, 2)}, {v(vAA + m)} offset0:{64 * rho + 2} offset1:{64 * rho}"]

        def rdB(buf, rho, n):
            return [f"ds_read_b128 {v(buf + 4 * n, 4)}, {v(vBA)} offset:{128 * (3 - rho) + 512 * (7 - n)}"]

        for m in range(8):
            for l in rdA(vA0, 0, m):
                A(l)
        A(f"s_lshl_b32 s{sTMP}, s{sWAVE}, 11")
        A(f"s_add_u32 s{sTMP}, s{sTMP}, s{sOWN}")
        A(f"s_add_u32 s{sTMP}, s{sTMP}, {O_X2}")
        A(f"v_lshl_add_u32 {v(vT)}, {v(vLANE)}, 4, s{sTMP}")
        A(f"v_lshlrev_b32 {v(vT + 1)}, {KS}, v0")
        A(f"v_add_u32 {v(vT + 1)}, {W_KEY}, {v(vT + 1)}")
        A(f"v_mov_b32 {v(vT + 3)}, {L_REDK}")
        A("s_waitcnt lgkmcnt(0)")
        self.stamp("apre")
        A("s_barrier")
        self.stamp("b3")
        if o.get("prio", 1):
            A("s_setprio 2")

        bufA, bufB = [vA0, vA1], [vB0, vB1]
        for n in range(7, -1, -1):
            for l in rdB(vB0, 0, n):
                A(l)
        A(f"s_cmp_lt_u32 s{sPOS}, 14")
        A("s_cselect_b64 vcc, -1, 0")
        wdl = [f"global_load_dword {v(vWD + k)}, {'v21' if k >> 3 else 'v2'}, {sp(sWD)} offset:{((k & 7) - 4) * 1024}{' nt' if o.get('ntd', 1) else ''}" for k in range(16)]
        A("s_mov_b64 exec, vcc")
        for l in wdl[:8]:
            A(l)
        A("s_mov_b64 exec, -1")
        started = set()
        for rho in range(4):
            a_, b_ = bufA[rho & 1], bufB[rho & 1]
            order = [(n - 7 + tb, tb, n) for n in range(7, -1, -1) for tb in range(7 - n, 8)]
            if rho == 3:
                order = [(n - 7 + tb, tb, n) for tb in range(8) for n in range(7 - tb, 8)]
            fill = []
            if rho + 1 < 4:
                nb_, na_ = bufB[(rho + 1) & 1], bufA[(rho + 1) & 1]
                for m in range(8):
                    fill += rdB(nb_, rho + 1, 7 - m)
                    fill += rdA(na_, rho + 1, m)
            issued = 0
            seen = set()
            done_at = {}
            for i, (m, tb, n) in enumerate(order):
                done_at[tb] = i
            for i, (m, tb, n) in enumerate(order):
                if rho == 0 and n not in seen:
                    A(f"s_waitcnt lgkmcnt({min(15, n + issued)})")
                    seen.add(n)
                elif i == 0:
                    A("s_waitcnt lgkmcnt(0)")
                acc = v(vACC + 4 * tb, 4)
                c = acc if tb in started else "0"
                started.add(tb)
                A(f"v_mfma_f32_16x16x32_bf16 {acc}, {v(a_ + 4 * m, 4)}, {v(b_ + 4 * n, 4)}, {c}")
                if i >= 1 and fill:
                    A(fill.pop(0))
                    issued += 1
                if rho == 3:
                    for t in range(7):
                        if done_at[t] + 8 == i or (i == len(order) - 1 and done_at[t] + 8 > i):
                            A(f"ds_write_b128 {v(vEW)}, {v(vACC + 4 * t, 4)} offset:{t * TBS}")
            assert not fill
            if rho == 0:
                A("s_mov_b64 exec, vcc")
                for l in wdl[8:]:
                    A(l)
                A("s_mov_b64 exec, -1")
        A(f"ds_write_b128 {v(vEW)}, {v(vACC + 28, 4)} offset:{7 * TBS}")
        self.stamp("conv")
        A("s_waitcnt lgkmcnt(0)")
        A("s_barrier")
        for i in range(2):
            for s in range(4):
                A(f"ds_read_b128 {v(K + 16 * i + 4 * s, 4)}, {v(vER)} offset:{s * 8 * TBS + i * TBS}")
        for i in range(2):
            A(f"s_waitcnt lgkmcnt({4 * (1 - i)})")
            b0 = K + 16 * i
            for c in range(2):
                for h in range(2):
                    A(f"v_pk_add_f32 {v(b0 + 8 * c + 2 * h, 2)}, {v(b0 + 8 * c + 2 * h, 2)}, {v(b0 + 8 * c + 4 + 2 * h, 2)}")
            for c in range(2):
                for h in range(2):
                    A(f"v_cvt_pk_bf16_f32 {v(K + 32 + 4 * i + 2 * c + h)}, {v(b0 + 8 * c + 2 * h)}, {v(b0 + 8 * c + 2 * h + 1)}")
            A(f"global_store_dwordx4 {v(vT)}, {v(K + 32 + 4 * i, 4)}, {sp(sWS)} offset:{1024 * i} sc1")
        self.stamp("x2st")
        A("s_waitcnt vmcnt(0)")
        self.stamp("x2dr")
        A("s_barrier")
        if o.get("prio", 1):
            A("s_setprio 0")
        L2E = 1.4426950408889634
        vWG, WGp, WDp, vY = 104, 136, 168, 184
        vF = 4
        A(f"s_cmp_lt_u32 s{sPOS}, 14")
        A("s_cbranch_scc0 L_now")
        A(f"s_bitcmp1_b32 s{sWAVE}, 0")
        A(f"s_cselect_b64 {sp(sWSEL)}, {sp(sWU)}, {sp(sWG)}")
        A(f"s_lshr_b32 s{sTMP + 1}, s{sWAVE}, 1")
        A(f"s_mul_i32 s{sTMP + 1}, s{sTMP + 1}, {256 * 3584}")
        A(f"s_lshl_b32 s{sTMP + 2}, s{sF}, 5")
        A(f"s_add_u32 s{sTMP + 1}, s{sTMP + 1}, s{sTMP + 2}")
        A(f"v_lshrrev_b32 {v(vF + 3)}, 1, {v(vLANE)}")
        A(f"v_and_b32 {v(vF + 4)}, 1, {v(vLANE)}")
        A(f"v_mul_u32_u24 {v(vF)}, {8 * 3584}, {v(vF + 3)}")
        A(f"v_lshl_add_u32 {v(vF)}, {v(vF + 4)}, 4, {v(vF)}")
        A(f"v_add_u32 {v(vF)}, s{sTMP + 1}, {v(vF)}")
        A(f"v_add_u32 {v(vF + 2)}, {7 * 3584}, {v(vF)}")
        A(f"v_add_u32 {v(vF + 1)}, {4 * 3584}, {v(vF)}")
        A(f"v_add_u32 {v(vF)}, 3584, {v(vF)}")
        for k in range(8):
            A(f"global_load_dwordx4 {v(vWG + 4 * k, 4)}, {v(vF + k // 3)}, {sp(sWSEL)} offset:{(k % 3 - 1) * 3584}")
        self.stamp("wq")
        A(f"s_mov_b32 s{sRP0}, 0x05040100")
        A(f"s_mov_b32 s{sRP1}, 0x07060302")
        for kp in range(8):
            lo, hi = vWD + 2 * kp, vWD + 2 * kp + 1
            A(f"v_perm_b32 {v(WDp + 2 * kp)}, {v(hi)}, {v(lo)}, s{sRP0}")
            A(f"v_perm_b32 {v(WDp + 2 * kp + 1)}, {v(hi)}, {v(lo)}, s{sRP1}")
        A(f"s_lshr_b32 s{sTMP}, s{sWAVE}, 1")
        A(f"s_lshl_b32 s{sTMP}, s{sTMP}, 9")
        A(f"s_add_u32 s{sTMP}, s{sTMP}, {W_REG + O_SLOT}")
        A(f"v_lshl_add_u32 {v(vF + 3)}, {v(vF + 3)}, 4, s{sTMP}")
        A(f"v_lshlrev_b32 {v(vF + 4)}, 6, {v(vF + 4)}")
        A(f"v_and_b32 {v(vF + 5)}, 12, {v(vLANE)}")
        A(f"v_lshl_add_u32 {v(vF + 4)}, {v(vF + 5)}, 2, {v(vF + 4)}")
        A(f"v_lshrrev_b32 {v(vF + 5)}, 5, {v(vLANE)}")
        A(f"v_lshl_add_u32 {v(vF + 4)}, {v(vF + 5)}, 3, {v(vF + 4)}")
        A(f"s_and_b32 s{sTMP}, s{sWAVE}, 1")
        A(f"s_lshl_b32 s{sTMP}, s{sTMP}, 7")
        A(f"s_lshr_b32 s{sTMP + 1}, s{sWAVE}, 1")
        A(f"s_lshl_b32 s{sTMP + 1}, s{sTMP + 1}, 2")
        A(f"s_add_u32 s{sTMP}, s{sTMP}, s{sTMP + 1}")
        A(f"s_add_u32 s{sTMP}, s{sTMP}, {L_REDF}")
        A(f"v_add_u32 {v(vF + 4)}, s{sTMP}, {v(vF + 4)}")
        A(f"v_and_b32 {v(vF + 5)}, 15, {v(vLANE)}")
        A(f"v_lshlrev_b32 {v(vF + 5)}, 3, {v(vF + 5)}")
        A(f"v_add_u32 {v(vF + 5)}, {L_REDF}, {v(vF + 5)}")
        A(f"s_add_u32 s{sTMP}, s{sOWN}, {O_PART}")
        A(f"v_lshl_add_u32 {v(vF + 6)}, v0, 3, s{sTMP}")
        A("L_now:")
        perms = []
        for kp in range(4):
            for d in range(4):
                lo, hi = vWG + 8 * kp + d, vWG + 8 * kp + 4 + d
                perms.append(f"v_perm_b32 {v(WGp + 8 * kp + 2 * d)}, {v(hi)}, {v(lo)}, s{sRP0}")
                perms.append(f"v_perm_b32 {v(WGp + 8 * kp + 2 * d + 1)}, {v(hi)}, {v(lo)}, s{sRP1}")
        for q in range(1, 4):
            A(f"v_add_u32 {v(vT + 8 + q)}, {(64 * q) << KS}, {v(vT + 1)}")
        A(f"s_cmp_eq_u32 s{sWAVE}, 0")
        A("s_barrier")
        A("s_cbranch_scc0 L_nokey")
        self.key_calc(K, vRA, vLANE)
        A("s_mov_b64 exec, 1")
        A(f"global_store_dword {v(22)}, {v(K + 8)}, {sp(sWS)} sc1")
        A("s_mov_b64 exec, -1")
        self.stamp("key")
        A("s_waitcnt vmcnt(0)")
        self.stamp("keydr")
        k2 = vT + 4
        kl = [f"global_load_dword {v(K + q)}, {v(vT + 8 + q) if q else v(vT + 1)}, {sp(sWS)} sc1" for q in range(4)]
        for l in kl:
            A(l)
        for l in perms:
            A(l)
        A("s_waitcnt vmcnt(0)")
        self.poll("key", kl, [f"v_max3_u32 {v(k2)}, {v(K)}, {v(K + 1)}, {v(K + 2)}",
                              f"v_max_u32 {v(k2)}, {v(k2)}, {v(K + 3)}",
                              f"v_cmp_eq_u32 vcc, -1, {v(k2)}"])
        self.stamp("keyld")
        A(f"v_max_u32_dpp {v(k2)}, {v(k2)}, {v(k2)} quad_perm:[1,0,3,2] row_mask:0xf bank_mask:0xf")
        A(f"v_max_u32_dpp {v(k2)}, {v(k2)}, {v(k2)} quad_perm:[2,3,0,1] row_mask:0xf bank_mask:0xf")
        A(f"v_max_u32_dpp {v(k2)}, {v(k2)}, {v(k2)} row_half_mirror row_mask:0xf bank_mask:0xf")
        A(f"v_max_u32_dpp {v(k2)}, {v(k2)}, {v(k2)} row_mirror row_mask:0xf bank_mask:0xf")
        A(f"v_max_u32_dpp {v(k2)}, {v(k2)}, {v(k2)} row_bcast:15 row_mask:0xa bank_mask:0xf")
        A(f"v_max_u32_dpp {v(k2)}, {v(k2)}, {v(k2)} row_bcast:31 row_mask:0xc bank_mask:0xf")
        A("s_mov_b32 exec_lo, 0")
        A("s_brev_b32 exec_hi, 1")
        A(f"ds_write_b32 {v(vT + 3)}, {v(k2)}")
        A("s_mov_b64 exec, -1")
        A("s_waitcnt lgkmcnt(0)")
        A("L_keyed:")
        T("L_nokey:")
        T("s_waitcnt vmcnt(0)")
        for l in perms:
            T(l)
        T("s_branch L_keyed")
        A(f"s_cmp_lt_u32 s{sPOS}, 14")
        A("s_barrier")
        A("s_cbranch_scc0 L_cfin")
        A(f"ds_read_b32 {v(K)}, {v(vT + 3)}")
        A("s_waitcnt lgkmcnt(0)")
        A(f"v_readfirstlane_b32 s{sWIN}, {v(K)}")
        A(f"s_andn2_b32 s{sT0}, 2047, s{sWIN}")
        A(f"s_lshr_b32 s{sT1}, s{sT0}, 3")
        A(f"s_mul_i32 s{sT1}, s{sT1}, {RS}")
        A(f"v_add_u32 {v(vF + 3)}, s{sT1}, {v(vF + 3)}")
        sl = [f"global_load_dwordx4 {v(K, 4)}, {v(vF + 3)}, {sp(sWS)} sc1"]
        A(sl[0])
        self.stamp("win")
        A("s_waitcnt vmcnt(0)")
        self.poll("sel", sl, [f"v_max3_u32 {v(vT + 6)}, {v(K)}, {v(K + 1)}, {v(K + 2)}",
                              f"v_max_u32 {v(vT + 6)}, {v(vT + 6)}, {v(K + 3)}",
                              f"v_cmp_eq_u32 vcc, -1, {v(vT + 6)}"])
        self.stamp("sel")
        chk8 = [f"v_max3_u32 {v(vT + 6)}, {v(vY)}, {v(vY + 1)}, {v(vY + 2)}",
                f"v_max3_u32 {v(vT + 7)}, {v(vY + 3)}, {v(vY + 4)}, {v(vY + 5)}",
                f"v_max3_u32 {v(vT + 6)}, {v(vT + 6)}, {v(vY + 6)}, {v(vY + 7)}",
                f"v_max_u32 {v(vT + 6)}, {v(vT + 6)}, {v(vT + 7)}",
                f"v_cmp_eq_u32 vcc, -1, {v(vT + 6)}"]
        V2 = [K + 8 + i for i in range(8)]
        for kp in range(4):
            for c in range(8):
                A(f"v_dot2_f32_bf16 {v(V2[c])}, {v(K + kp)}, {v(WGp + 8 * kp + c)}, {v(V2[c]) if kp else 0}")
        self.reduce8(V2, K + 16)
        A(f"ds_write_b32 {v(vF + 4)}, {v(V2[0])}")
        A("s_waitcnt lgkmcnt(0)")
        A("s_barrier")
        A(f"ds_read_b64 {v(K, 2)}, {v(vF + 5)}")
        A(f"ds_read_b64 {v(K + 2, 2)}, {v(vF + 5)} offset:128")
        A("s_waitcnt lgkmcnt(0)")
        A(f"v_add_f32 {v(K)}, {v(K)}, {v(K + 1)}")
        A(f"v_add_f32 {v(K + 2)}, {v(K + 2)}, {v(K + 3)}")
        A(f"v_cvt_pk_bf16_f32 {v(K + 1)}, {v(K)}, {v(K + 2)}")
        A(f"v_lshlrev_b32 {v(K)}, 16, {v(K + 1)}")
        A(f"v_mul_f32 {v(K + 3)}, {hex(f2u(-L2E))}, {v(K)}")
        A(f"v_exp_f32 {v(K + 3)}, {v(K + 3)}")
        A(f"v_and_b32 {v(K + 2)}, s{sMASK}, {v(K + 1)}")
        A(f"v_add_f32 {v(K + 3)}, 1.0, {v(K + 3)}")
        A(f"v_rcp_f32 {v(K + 3)}, {v(K + 3)}")
        A(f"v_mul_f32 {v(K)}, {v(K)}, {v(K + 3)}")
        A(f"v_cvt_pk_bf16_f32 {v(K)}, {v(K)}, {v(K)}")
        A(f"v_and_b32 {v(K)}, s{sMASK}, {v(K)}")
        A(f"v_mul_f32 {v(K)}, {v(K)}, {v(K + 2)}")
        A(f"v_mov_b32_dpp {v(K + 1)}, {v(K)} quad_perm:[1,1,3,3] row_mask:0xf bank_mask:0xf")
        A(f"v_cvt_pk_bf16_f32 {v(K)}, {v(K)}, {v(K + 1)}")
        for kp in range(8):
            A(f"v_readlane_b32 s{sH + kp}, {v(K)}, {2 * kp}")
        for kp in range(8):
            for c in range(2):
                A(f"v_dot2_f32_bf16 {v(K + 4 + c)}, s{sH + kp}, {v(WDp + 2 * kp + c)}, {v(K + 4 + c) if kp else 0}")
        A(f"global_store_dwordx2 {v(vF + 6)}, {v(K + 4, 2)}, {sp(sWS)} sc1")
        self.stamp("part")
        A(f"s_cmp_lt_u32 s{sPOS}, 8")
        A("s_cbranch_scc0 L_cfin")
        A(f"s_cmp_lt_u32 s{sWAVE}, 2")
        A("s_cbranch_scc0 L_cfin")
        A(f"s_lshl_b32 s{sTMP}, s{sXCD}, 3")
        A(f"s_add_u32 s{sTMP}, s{sTMP}, s{sPOS}")
        A(f"s_lshl_b32 s{sTMP}, s{sTMP}, 1")
        A(f"s_add_u32 s{sTMP}, s{sTMP}, s{sWAVE}")
        A(f"v_lshrrev_b32 {v(vT)}, 5, {v(vLANE)}")
        A(f"v_bfe_u32 {v(vT + 1)}, {v(vLANE)}, 4, 1")
        A(f"v_lshl_add_u32 {v(vT)}, {v(vT + 1)}, 1, {v(vT)}")
        A(f"s_lshl_b32 s{sTMP + 1}, s{sTMP}, 3")
        A(f"v_lshl_add_u32 {v(vT)}, {v(vT)}, 1, s{sTMP + 1}")
        A(f"s_add_u32 s{sT1}, s{sT1}, {W_REG + O_SLOT}")
        A(f"v_add_u32 {v(vT + 1)}, s{sT1}, {v(vT)}")
        xh = [f"global_load_ushort {v(K + 20)}, {v(vT + 1)}, {sp(sWS)} sc1",
              f"global_load_ushort {v(K + 21)}, {v(vT + 1)}, {sp(sWS)} offset:1024 sc1"]
        for l in xh:
            A(l)
        A(f"s_lshl_b32 s{sTMP + 1}, s{sT0}, 10")
        A(f"v_add_u32 {v(vT)}, s{sTMP + 1}, {v(vT)}")
        A(f"v_min_u32 {v(vT + 2)}, 55, {v(vLANE)}")
        A(f"v_mul_u32_u24 {v(vT + 3)}, 4682, {v(vT + 2)}")
        A(f"v_lshrrev_b32 {v(vT + 3)}, 16, {v(vT + 3)}")
        A(f"v_mad_u32_u24 {v(vT + 2)}, {v(vT + 3)}, 18, {v(vT + 2)}")
        A(f"v_mul_u32_u24 {v(vT + 2)}, {RS}, {v(vT + 2)}")
        A(f"s_lshl_b32 s{sTMP + 1}, s{sTMP}, 4")
        A(f"s_add_u32 s{sTMP + 1}, s{sTMP + 1}, {W_REG + O_PART}")
        A(f"v_add_u32 {v(vT + 2)}, s{sTMP + 1}, {v(vT + 2)}")
        A(f"v_add_u32 {v(vT + 3)}, {128 * RS}, {v(vT + 2)}")
        A(f"s_ashr_i32 s{sTMP + 2}, s{sWIN}, 31")
        A(f"s_not_b32 s{sTMP + 2}, s{sTMP + 2}")
        A(f"s_or_b32 s{sTMP + 2}, s{sTMP + 2}, 0x80000000")
        A(f"s_xor_b32 s{sTMP + 2}, s{sTMP + 2}, s{sWIN}")
        A(f"s_and_b32 s{sTMP + 2}, s{sTMP + 2}, 0xfffff800")
        A(f"s_or_b32 s{sTMP + 2}, s{sTMP + 2}, 0x400")
        A(f"v_cvt_pk_bf16_f32 {v(K + 22)}, s{sTMP + 2}, s{sTMP + 2}")
        A(f"v_and_b32 {v(K + 22)}, s{sMASK}, {v(K + 22)}")
        A(f"v_mul_f32 {v(K + 22)}, {hex(f2u(-L2E))}, {v(K + 22)}")
        A(f"v_exp_f32 {v(K + 22)}, {v(K + 22)}")
        A(f"v_add_f32 {v(K + 22)}, 1.0, {v(K + 22)}")
        A(f"v_rcp_f32 {v(K + 22)}, {v(K + 22)}")
        A(f"v_cvt_pk_bf16_f32 {v(K + 22)}, {v(K + 22)}, {v(K + 22)}")
        A(f"v_and_b32 {v(K + 22)}, s{sMASK}, {v(K + 22)}")
        A("s_waitcnt vmcnt(0)")
        self.stamp("partdr")
        pl = [f"global_load_dwordx4 {v(vY, 4)}, {v(vT + 2)}, {sp(sWS)} sc1",
              f"global_load_dwordx4 {v(vY + 4, 4)}, {v(vT + 3)}, {sp(sWS)} sc1"]
        for l in pl:
            A(l)
        self.poll("xh", xh, [f"v_max_u32 {v(vT + 6)}, {v(K + 20)}, {v(K + 21)}",
                             f"v_cmp_eq_u32 vcc, 0xffff, {v(vT + 6)}"])
        A(f"v_lshlrev_b32 {v(K + 20)}, 16, {v(K + 20)}")
        A(f"v_lshlrev_b32 {v(K + 21)}, 16, {v(K + 21)}")
        A("s_waitcnt vmcnt(0)")
        self.poll("part", pl, chk8)
        self.stamp("partld")
        A(f"v_cmp_gt_u32 vcc, 56, {v(vLANE)}")
        A(f"v_pk_add_f32 {v(vY, 2)}, {v(vY, 2)}, {v(vY + 4, 2)}")
        A(f"v_pk_add_f32 {v(vY + 2, 2)}, {v(vY + 2, 2)}, {v(vY + 6, 2)}")
        for c in range(4):
            A(f"v_cndmask_b32 {v(vY + c)}, 0, {v(vY + c)}, vcc")
        A(f"v_permlane32_swap_b32 {v(vY)}, {v(vY + 1)}")
        A(f"v_permlane32_swap_b32 {v(vY + 2)}, {v(vY + 3)}")
        A(f"v_add_f32 {v(vY)}, {v(vY)}, {v(vY + 1)}")
        A(f"v_add_f32 {v(vY + 2)}, {v(vY + 2)}, {v(vY + 3)}")
        A(f"v_permlane16_swap_b32 {v(vY)}, {v(vY + 2)}")
        A(f"v_add_f32 {v(vY)}, {v(vY)}, {v(vY + 2)}")
        for sh in (8, 4, 2, 1):
            A(f"v_add_f32_dpp {v(vY)}, {v(vY)}, {v(vY)} row_ror:{sh} row_mask:0xf bank_mask:0xf")
        y = vY
        A(f"v_cvt_pk_bf16_f32 {v(y)}, {v(y)}, {v(y)}")
        A(f"v_and_b32 {v(y)}, s{sMASK}, {v(y)}")
        A(f"v_mul_f32 {v(y)}, {v(y)}, {v(K + 22)}")
        A(f"v_cvt_pk_bf16_f32 {v(y)}, {v(y)}, {v(y)}")
        A(f"v_and_b32 {v(y)}, s{sMASK}, {v(y)}")
        A(f"v_add_f32 {v(y)}, {v(y)}, {v(K + 20)}")
        A(f"v_cvt_pk_bf16_f32 {v(y)}, {v(y)}, {v(y)}")
        A(f"v_and_b32 {v(y)}, s{sMASK}, {v(y)}")
        A(f"v_add_f32 {v(y)}, {v(y)}, {v(K + 21)}")
        A(f"v_cvt_pk_bf16_f32 {v(y)}, {v(y)}, {v(y)}")
        A("s_mov_b32 exec_lo, 0x00010001")
        A("s_mov_b32 exec_hi, 0x00010001")
        A(f"global_store_short {v(vT)}, {v(y)}, {sp(sOUT)}")
        A("L_cfin:")
        self.finish("C")

    def text(self):
        lines = self.build()
        src = open("sequential_preLN__ssm_conv_s4d__moe_arch_mod__prompt.s.ref").read()
        head = [l for l in src.split("\n") if l.startswith(";") and "@launch" not in l]
        head = head[:head.index("; Override launch geometry by editing the next line (default: block=256,")]
        out = head + [f"; @launch grid=(256,1,1) block=(512,1,1) lds={LDS_BYTES}",
                      '.amdgcn_target "amdgcn-amd-amdhsa--gfx950"', ".text", f".globl {KNAME}", ".p2align 8",
                      f".type {KNAME},@function"]
        out += [l if l.endswith(":") else "    " + l for l in lines]
        out += [".section .rodata,\"a\"", ".p2align 6", f".amdhsa_kernel {KNAME}",
                "  .amdhsa_next_free_vgpr 224", "  .amdhsa_next_free_sgpr 102", "  .amdhsa_accum_offset 224",
                "  .amdhsa_group_segment_fixed_size 0", "  .amdhsa_kernarg_size 120", "  .amdhsa_user_sgpr_count 2",
                "  .amdhsa_user_sgpr_kernarg_segment_ptr 1", "  .amdhsa_system_sgpr_workgroup_id_x 1",
                ".end_amdhsa_kernel", ""]
        return "\n".join(out)


if __name__ == "__main__":
    out = sys.argv[1]
    opts = {}
    stamp = False
    for a in sys.argv[2:]:
        if a == "stamp":
            stamp = True
        else:
            k, val = a.split("=")
            opts[k] = val if k == 'pr' else int(val)
    g = Gen(stamp, opts)
    open(out, "w").write(g.text())
    if stamp:
        open(out + ".names", "w").write(" ".join(g.allnames["R"]) + "\n" + " ".join(g.allnames["C"]))
    print(g.info, "lds", LDS_BYTES)
```

```python
import sys
import struct
from asmlib import Asm, align8

KNAME = "sequential_preLN__ssm_conv_s4d__moe_arch_mod__prompt_kernel"


def f2u(x):
    return struct.unpack("<I", struct.pack("<f", x))[0]


W_FLAG = 0x1000 + (int(__import__('os').environ.get('WOFF', '0')) << 20)
W_KEY = 0x9000 + (int(__import__('os').environ.get('WOFF', '0')) << 20)
W_FLAG2 = 0x11000 + (int(__import__('os').environ.get('WOFF', '0')) << 20)
import os
WOFF = int(os.environ.get('WOFF', '0')) << 20
W_REG = 0x38000 + WOFF
RS = 20608
O_X1, O_X2, O_SLOT, O_PART = 0, 8192, 16384, 18432
W_STAMP = 0x800000
ROWB = 544
TABC = 63 * ROWB
L_TAB = 0
L_P = 68608
PC = 8256
L_U = L_P + 2 * PC
UC = 4608
L_RED1 = (L_U + 2 * UC + 255) // 256 * 256
L_RED2 = L_RED1 + 256
L_SUMW = L_RED2 + 384
L_REDK = L_SUMW + 16
L_REDF = L_REDK + 16
LDS_BYTES = L_REDF + 256
L_EPI = 0
TBS = 1152
sX, sLA, sAI, sCR, sCI, sLDT, sD = 4, 6, 8, 10, 12, 14, 16
sWR, sWG, sWU, sWD, sOUT, sDBG, sWS = 20, 22, 24, 26, 28, 30, 32
sL, sPOS, sXCD, sWAVE, sG, sDT, sT0, sT1, sSPIN, sF = 34, 35, 36, 37, 38, 39, 40, 41, 42, 43
sODD = 44
sSELLO, sSELHI, sONES, sMASK = 46, 47, 48, 49
sWSEL = 50
sBEST, sWIN, sRP0, sRP1 = 52, 53, 54, 55
sH = 56
sE = 64
sTMP = 66
sOWN = 71
sSTAMP = 72


def sp(r):
    return f"s[{r}:{r + 1}]"


def v(r, n=1):
    return f"v{r}" if n == 1 else f"v[{r}:{r + n - 1}]"


class Gen:
    def __init__(self, stamp=False, opts=None):
        self.A = Asm()
        self.tail = Asm()
        self.stamp_on = stamp
        self.nstamp = 0
        self.names = []
        self.o = dict(opts or {})
        self.only = None
        self.role = "R"
        if "pr" in self.o:
            self.only = tuple(self.o["pr"].split("."))
            self.stamp_on = True
            self.o["probe"] = 1 if self.only[0] == "R" else 101

    def stamp(self, name):
        if not self.stamp_on:
            return
        if self.only and name != "start" and (self.role, name) != self.only:
            return
        k = self.nstamp
        self.nstamp += 1
        self.names.append(name)
        assert sSTAMP + k < 100
        self.A(f"s_memrealtime s[100:101]")
        self.A("s_waitcnt lgkmcnt(0)")
        self.A(f"s_mov_b32 s{sSTAMP + k}, s100")

    def poll(self, name, loads, check, base_exec="-1"):
        A = self.A
        for c in check:
            A(c)
        A(f"s_cbranch_vccnz L_retry_{name}")
        A(f"L_ok_{name}:")
        T = self.tail
        T(f"L_retry_{name}:")
        T(f"s_mov_b32 s{sSPIN}, 0x40000")
        T(f"L_again_{name}:")
        T(f"s_sub_u32 s{sSPIN}, s{sSPIN}, 1")
        T(f"s_cbranch_scc1 L_ok_{name}")
        T("s_mov_b64 exec, vcc")
        for l in loads:
            T(l)
        T("s_waitcnt vmcnt(0)")
        for c in check:
            T(c)
        T(f"s_mov_b64 exec, {base_exec}")
        T(f"s_cbranch_vccnz L_again_{name}")
        T(f"s_branch L_ok_{name}")

    def cmul(self, d, x, y, t):
        return [f"v_pk_mul_f32 {v(t, 2)}, {v(x, 2)}, {v(y, 2)} op_sel:[0,0] op_sel_hi:[0,1]",
                f"v_pk_fma_f32 {v(d, 2)}, {v(x, 2)}, {v(y, 2)}, {v(t, 2)} op_sel:[1,1,0] op_sel_hi:[1,0,1] neg_lo:[1,0,0]"]

    def reduce8(self, V, t):
        A = self.A
        for i in range(4):
            A(f"v_add_f32_dpp {v(V[i])}, {v(V[i])}, {v(V[i])} row_ror:8 row_mask:0xf bank_mask:0x3")
        for i in range(4):
            A(f"v_add_f32_dpp {v(V[i])}, {v(V[i + 4])}, {v(V[i + 4])} row_ror:8 row_mask:0xf bank_mask:0xc")
        for i in range(2):
            A(f"v_add_f32_dpp {v(V[i])}, {v(V[i])}, {v(V[i])} row_shl:4 row_mask:0xf bank_mask:0x5")
        for i in range(2):
            A(f"v_add_f32_dpp {v(V[i])}, {v(V[i + 2])}, {v(V[i + 2])} row_shr:4 row_mask:0xf bank_mask:0xa")
        A(f"v_permlane32_swap_b32 {v(V[0])}, {v(V[1])}")
        A(f"v_add_f32 {v(V[0])}, {v(V[0])}, {v(V[1])}")
        A(f"v_add_f32_dpp {v(V[0])}, {v(V[0])}, {v(V[0])} quad_perm:[2,3,0,1] row_mask:0xf bank_mask:0xf")
        A(f"v_mov_b32 {v(t)}, {v(V[0])}")
        A(f"v_permlane16_swap_b32 {v(V[0])}, {v(t)}")
        A(f"v_add_f32 {v(V[0])}, {v(V[0])}, {v(t)}")

    def row_stats(self, S, Q, negm, rinv, t):
        A = self.A
        A(f"v_pk_add_f32 {v(S, 2)}, {v(S, 2)}, {v(S + 2, 2)}")
        A(f"v_pk_add_f32 {v(Q, 2)}, {v(Q, 2)}, {v(Q + 2, 2)}")
        A(f"v_add_f32 {v(S)}, {v(S)}, {v(S + 1)}")
        A(f"v_add_f32 {v(Q)}, {v(Q)}, {v(Q + 1)}")
        A(f"v_mul_f32 {v(S)}, {hex(f2u(1 / 512))}, {v(S)}")
        A(f"v_mul_f32 {v(Q)}, {hex(f2u(1 / 512))}, {v(Q)}")
        A(f"v_fma_f32 {v(Q)}, -{v(S)}, {v(S)}, {v(Q)}")
        A(f"v_max_f32 {v(Q)}, 0, {v(Q)}")
        A(f"v_cvt_pk_bf16_f32 {v(t)}, -{v(S)}, {v(Q)}")
        A(f"v_and_b32 {v(Q)}, s{sMASK}, {v(t)}")
        A(f"v_add_f32 {v(Q)}, {hex(f2u(1e-5))}, {v(Q)}")
        A(f"v_cvt_pk_bf16_f32 {v(Q)}, {v(Q)}, {v(Q)}")
        A(f"v_and_b32 {v(Q)}, s{sMASK}, {v(Q)}")
        A(f"v_sqrt_f32 {v(Q)}, {v(Q)}")
        A(f"v_lshlrev_b32 {v(negm)}, 16, {v(t)}")
        A(f"v_cvt_pk_bf16_f32 {v(Q)}, {v(Q)}, {v(Q)}")
        A(f"v_and_b32 {v(Q)}, s{sMASK}, {v(Q)}")
        A(f"v_rcp_f32 {v(rinv)}, {v(Q)}")

    def spread(self, val, dst, t):
        A = self.A
        for r in range(4):
            A(f"v_mov_b32_dpp {v(t + r)}, {v(val)} row_newbcast:{4 + r} row_mask:0xf bank_mask:0xf")
        for r in range(4):
            A(f"v_cndmask_b32_dpp {v(dst + r)}, {v(val)}, {v(t + r)}, vcc row_newbcast:{r} row_mask:0xf bank_mask:0xf")

    def key_calc(self, K, vRA, vLANE):
        A = self.A
        A(f"v_mov_b32 {v(K + 14)}, {L_SUMW}")
        A(f"ds_read_b128 {v(K, 4)}, {v(vRA)} offset:{L_RED2 - L_RED1}")
        A(f"ds_read_b128 {v(K + 4, 4)}, {v(vRA)} offset:{L_RED2 - L_RED1 + 128}")
        A(f"ds_read_b128 {v(K + 8, 4)}, {v(vRA)} offset:{L_RED2 - L_RED1 + 256}")
        A(f"ds_read_b32 {v(K + 15)}, {v(K + 14)}")
        A(f"s_lshl_b32 s{sTMP}, s{sL}, 3")
        A(f"s_sub_u32 s{sTMP}, 2047, s{sTMP}")
        A(f"v_and_b32 {v(K + 14)}, 7, {v(vLANE)}")
        A(f"v_sub_u32 {v(K + 14)}, s{sTMP}, {v(K + 14)}")
        A("s_waitcnt lgkmcnt(2)")
        self.row_stats(K, K + 4, K + 12, K + 13, K + 28)
        A("s_waitcnt lgkmcnt(0)")
        A(f"v_pk_add_f32 {v(K + 8, 2)}, {v(K + 8, 2)}, {v(K + 10, 2)}")
        A(f"v_add_f32 {v(K + 8)}, {v(K + 8)}, {v(K + 9)}")
        A(f"v_fmac_f32 {v(K + 8)}, {v(K + 12)}, {v(K + 15)}")
        A(f"v_mul_f32 {v(K + 8)}, {v(K + 8)}, {v(K + 13)}")
        A(f"v_ashrrev_i32 {v(K + 9)}, 31, {v(K + 8)}")
        A(f"v_or_b32 {v(K + 9)}, 0x80000000, {v(K + 9)}")
        A(f"v_xor_b32 {v(K + 8)}, {v(K + 8)}, {v(K + 9)}")
        A(f"v_and_b32 {v(K + 8)}, 0xfffff800, {v(K + 8)}")
        A(f"v_or_b32 {v(K + 8)}, {v(K + 8)}, {v(K + 14)}")
        A(f"v_min_u32 {v(K + 8)}, -2, {v(K + 8)}")
        A(f"v_max_u32_dpp {v(K + 8)}, {v(K + 8)}, {v(K + 8)} quad_perm:[1,0,3,2] row_mask:0xf bank_mask:0xf")
        A(f"v_max_u32_dpp {v(K + 8)}, {v(K + 8)}, {v(K + 8)} quad_perm:[2,3,0,1] row_mask:0xf bank_mask:0xf")
        A(f"v_max_u32_dpp {v(K + 8)}, {v(K + 8)}, {v(K + 8)} row_half_mirror row_mask:0xf bank_mask:0xf")

    def finish(self, role):
        A = self.A
        o = self.o
        if self.stamp_on:
            self.stamp("end")
            self.allnames[role] = self.names
        if self.stamp_on and "probe" in o:
            k = o["probe"]
            if k == 98 and role == "R":
                A(f"s_getreg_b32 s{sTMP}, hwreg(HW_REG_XCC_ID, 0, 4)")
                A(f"s_sub_u32 s{sTMP}, s{sTMP}, s2")
                A(f"s_and_b32 s{sTMP}, s{sTMP}, 7")
                A(f"s_mul_i32 s{sTMP}, s{sTMP}, 1000")
                A(f"s_add_u32 s{sTMP}, s{sTMP}, 2000")
            elif k == 99 and role == "R":
                A("s_memtime s[96:97]")
                A("s_waitcnt lgkmcnt(0)")
                A("s_sub_u32 s96, s96, s98")
                A(f"s_sub_u32 s97, s{sSTAMP + self.nstamp - 1}, s{sSTAMP}")
                A("s_mov_b64 exec, -1")
                A("v_cvt_f32_u32 v2, s96")
                A("v_cvt_f32_u32 v3, s97")
                A("v_rcp_f32 v3, v3")
                A("s_nop 1")
                A("v_mul_f32 v2, v2, v3")
                A("v_mul_f32 v2, 0x43c80000, v2")
                A("v_cvt_u32_f32 v2, v2")
                A("s_nop 1")
                A(f"v_readfirstlane_b32 s{sTMP}, v2")
                A(f"s_add_u32 s{sTMP}, s{sTMP}, 2000")
            elif k < 0 and role == "R":
                A(f"s_mov_b32 s{sTMP}, {-k}")
            elif k >= 0 and (k >= 100) == (role == "C"):
                A(f"s_sub_u32 s{sTMP}, s{sSTAMP + k % 100}, s{sSTAMP}")
                A(f"s_cmp_lt_u32 s{sTMP}, 3000")
                A(f"s_cselect_b32 s{sTMP}, s{sTMP}, 0")
                A(f"s_mul_i32 s{sTMP}, s{sTMP}, 20")
                A(f"s_add_u32 s{sTMP}, s{sTMP}, 2000")
                if role == "C":
                    A(f"s_cmp_eq_u32 s{sWAVE}, 0")
                    A(f"s_cselect_b32 s{sTMP}, s{sTMP}, 0")
            else:
                A(f"s_mov_b32 s{sTMP}, 0")
            A(f"L_spin{role}:")
            A("s_memrealtime s[100:101]")
            A("s_waitcnt lgkmcnt(0)")
            A(f"s_sub_u32 s100, s100, s{sSTAMP}")
            A(f"s_cmp_lt_u32 s100, s{sTMP}")
            A(f"s_cbranch_scc1 L_spin{role}")
        elif self.stamp_on:
            A("s_mov_b64 exec, 1")
            A(f"s_lshl_b32 s{sTMP}, s2, 3")
            A(f"s_add_u32 s{sTMP}, s{sTMP}, s{sWAVE}")
            if role == "C":
                A(f"s_add_u32 s{sTMP}, s{sTMP}, 4")
            A(f"s_lshl_b32 s{sTMP}, s{sTMP}, 7")
            A(f"s_add_u32 s{sTMP}, s{sTMP}, {W_STAMP}")
            A(f"v_mov_b32 v1, s{sTMP}")
            for k in range(self.nstamp):
                A(f"v_mov_b32 v2, s{sSTAMP + k}")
                A(f"global_store_dword v1, v2, {sp(sWS)} offset:{4 * k}")
        A("s_endpgm")

    def build(self):
        A = self.A
        self.allnames = {}
        A(f"{KNAME}:")
        A("s_cmp_ge_u32 s2, 256")
        A("s_cbranch_scc1 L_end")
        self.stamp("start")
        if self.o.get("probe", 0) == 99:
            A("s_memtime s[98:99]")
        if self.o.get("codepf", 1):
            A(f"s_getpc_b64 {sp(sE)}")
            A("L_pc:")
            A("v_lshlrev_b32 v2, 5, v0")
            A(f"v_min_u32 v2, L_codeend-L_pc-4, v2")
            A(f"global_load_dword v3, v2, {sp(sE)}")
        A("s_load_dwordx16 s[4:19], s[0:1], 0")
        A("s_load_dwordx8 s[20:27], s[0:1], 64")
        A("s_load_dwordx4 s[28:31], s[0:1], 96")
        A("s_load_dwordx2 s[32:33], s[0:1], 112")
        A("v_lshrrev_b32 v4, 6, v0")
        A(f"s_and_b32 s{sXCD}, s2, 7")
        A(f"v_readfirstlane_b32 s{sWAVE}, v4")
        A(f"s_lshr_b32 s{sPOS}, s2, 3")
        A(f"s_lshl_b32 s{sL}, s{sXCD}, 5")
        A(f"s_add_u32 s{sL}, s{sL}, s{sPOS}")
        A("v_and_b32 v1, 63, v0")
        A(f"s_mov_b32 s{sMASK}, 0xffff0000")
        pre = self.o.get("pre", 0)
        if pre:
            A("s_waitcnt lgkmcnt(0)")
            n = pre % 10
            kind = pre // 10
            A(f"s_mul_i32 s{sT0}, s{sL}, {n * 4096 + 128}")
            A(f"s_add_u32 s{sT0}, s{sT0}, {32 << 20}")
            A("v_and_b32 v5, 0xff, v0")
            A(f"v_lshl_add_u32 v5, v5, 4, s{sT0}")
            A(f"s_cmp_ge_u32 s{sWAVE}, 4")
            A("s_cbranch_scc1 L_pre")
            if kind in (2, 3):
                A("s_mov_b64 exec, 1")
                A(f"global_load_dword v8, v5, {sp(sWS)}")
                A("s_mov_b64 exec, -1")
                A("s_waitcnt vmcnt(0)")
                if kind == 3:
                    self.nstamp = 0
                    self.names = []
                    self.stamp("start")
            for k in range(n):
                if kind == 1:
                    A(f"global_load_dwordx4 v[8:11], v5, {sp(sWS)}")
                elif kind == 5:
                    A(f"global_load_dwordx4 v[8:11], v5, {sp(sWS)} nt")
                elif kind == 4:
                    A(f"global_store_dwordx4 v5, v[8:11], {sp(sWS)}")
                else:
                    A(f"global_store_dwordx4 v5, v[8:11], {sp(sWS)} sc1")
                A("v_add_u32 v5, 4096, v5")
            A("s_waitcnt vmcnt(0)")
            self.stamp("pre")
            A("L_pre:")
            A("s_barrier")
        A(f"s_cmp_ge_u32 s{sWAVE}, 4")
        A("s_cbranch_scc1 L_chan")
        self.rows()
        self.names = self.names[:1]
        self.nstamp = min(self.nstamp, 1)
        A(".p2align 6")
        self.role = "C"
        self.chans()
        A("L_end:")
        A("s_endpgm")
        for l in self.tail.L:
            A(l)
        A("L_codeend:")
        lines, nops = A.padded()
        lines, nbytes, promoted, missed = align8(lines)
        self.info = dict(nops=nops, bytes=nbytes, promoted=promoted, missed=missed, lines=len(lines))
        return lines

    def rows(self):
        A = self.A
        o = self.o
        vLANE = 1
        vX, vU, vD, vWR = 212, 10, 18, 20
        vREG, vRD, vAUX = 22, 23, 24
        vKEY, vSW, vRA, vFL, vUW = 26, 27, 28, 29, 30
        vT = 32
        vWG, vWD = 40, 72
        vY = 88
        vONE = 96
        K = 100
        L2E = 1.4426950408889634
        A(f"v_lshrrev_b32 {v(vT)}, 1, v0")
        A(f"v_and_b32 {v(vT + 1)}, 1, v0")
        A(f"v_lshlrev_b32 {v(vT + 2)}, 3, {v(vT)}")
        A(f"s_lshl_b32 s{sT0}, s{sL}, 13")
        A(f"v_lshl_add_u32 {v(vRD)}, {v(vT + 1)}, 12, {v(vT + 2)}")
        A(f"v_add_u32 {v(vRD)}, s{sT0}, {v(vRD)}")
        A(f"s_mul_i32 s{sOWN}, s{sL}, {RS}")
        A(f"s_add_u32 s{sOWN}, s{sOWN}, {W_REG}")
        A(f"s_add_u32 s{sT0}, s{sOWN}, 4096")
        A(f"v_lshl_add_u32 {v(vREG)}, v0, 4, s{sT0}")
        A(f"v_lshlrev_b32 {v(vT + 3)}, 4, {v(vLANE)}")
        nt = ' nt' if o.get('ntx', 1) else ''
        A("s_waitcnt lgkmcnt(0)")
        self.stamp("karg")
        for r in range(4):
            A(f"global_load_dwordx2 {v(vX + 2 * r, 2)}, {v(vRD)}, {sp(sX)} offset:{1024 * r}{nt}")
        A(f"s_load_dword s{sG}, {sp(sWS)}, 0")
        A(f"global_load_dwordx2 {v(vD, 2)}, {v(vT + 2)}, {sp(sD)}")
        A(f"global_load_dwordx2 {v(vWR, 2)}, {v(vT + 2)}, {sp(sWR)}")
        A(f"global_load_dwordx4 {v(vONE, 4)}, {v(vT + 3)}, {sp(sWR)}")
        A(f"s_mov_b32 s{sODD}, 0xaaaaaaaa")
        A(f"s_mov_b32 s{sODD + 1}, 0xaaaaaaaa")
        A(f"s_mov_b32 s{sSELLO}, 0x3f80")
        A(f"s_mov_b32 s{sSELHI}, 0x3f800000")
        A(f"s_mov_b32 s{sONES}, 0x3f803f80")
        A(f"s_and_b32 s{sTMP}, s{sL}, 1")
        A(f"s_lshl_b32 s{sTMP}, s{sTMP}, 12")
        A(f"s_lshr_b32 s{sTMP + 1}, s{sL}, 1")
        A(f"s_lshl_b32 s{sTMP + 1}, s{sTMP + 1}, 5")
        A(f"s_add_u32 s{sTMP}, s{sTMP}, s{sTMP + 1}")
        A(f"s_add_u32 s{sTMP}, s{sTMP}, {W_REG + O_X1}")
        A(f"v_mul_u32_u24 {v(vAUX)}, {RS}, {v(vT)}")
        A(f"v_lshl_add_u32 {v(vAUX)}, {v(vT + 1)}, 4, {v(vAUX)}")
        A(f"v_add_u32 {v(vAUX)}, s{sTMP}, {v(vAUX)}")
        A(f"v_add_u32 {v(vAUX + 1)}, {128 * RS}, {v(vAUX)}")
        FS = o.get("fs", 7)
        KS = o.get("ks", 5)
        A(f"v_lshlrev_b32 {v(vFL)}, {FS}, {v(vT)}")
        A(f"v_add_u32 {v(vFL)}, {W_FLAG}, {v(vFL)}")
        A(f"v_add_u32 {v(vFL + 2)}, {128 << FS}, {v(vFL)}")
        A(f"s_lshl_b32 s{sT0}, s{sL}, {FS}")
        A(f"s_add_u32 s{sT0}, s{sT0}, {W_FLAG}")
        A(f"v_lshl_add_u32 {v(vKEY)}, {v(vLANE)}, 4, s{sT0}")
        A(f"v_lshlrev_b32 {v(vSW)}, 6, {v(vT + 1)}")
        A(f"v_and_b32 {v(vT + 3)}, 4, {v(vLANE)}")
        A(f"v_lshl_add_u32 {v(vSW)}, {v(vT + 3)}, 3, {v(vSW)}")
        A(f"v_and_b32 {v(vT + 3)}, 8, {v(vLANE)}")
        A(f"v_lshl_add_u32 {v(vSW)}, {v(vT + 3)}, 4, {v(vSW)}")
        A(f"v_lshrrev_b32 {v(vT + 3)}, 5, {v(vLANE)}")
        A(f"v_lshl_add_u32 {v(vSW)}, {v(vT + 3)}, 4, {v(vSW)}")
        A(f"s_lshl_b32 s{sTMP}, s{sWAVE}, 2")
        A(f"s_add_u32 s{sTMP}, s{sTMP}, {L_RED1}")
        A(f"v_add_u32 {v(vSW)}, s{sTMP}, {v(vSW)}")
        A(f"v_and_b32 {v(vT + 3)}, 7, {v(vLANE)}")
        A(f"v_lshlrev_b32 {v(vRA)}, 4, {v(vT + 3)}")
        A(f"v_add_u32 {v(vRA)}, {L_RED1}, {v(vRA)}")
        A(f"v_lshlrev_b32 {v(vUW)}, 3, v0")
        A(f"v_mov_b32 {v(K)}, 0")
        A(f"v_mov_b32 {v(K + 1)}, 0")
        A(f"v_min_u32 {v(vT + 3)}, 472, {v(vUW)}")
        A(f"v_add_u32 {v(vT + 3)}, {L_U}, {v(vT + 3)}")
        A(f"v_min_u32 {v(vT + 4)}, 56, {v(vUW)}")
        A(f"v_add_u32 {v(vT + 4)}, {L_P}, {v(vT + 4)}")
        A(f"ds_write2st64_b64 {v(vT + 3)}, {v(K, 2)}, {v(K, 2)} offset0:0 offset1:9")
        A(f"ds_write_b64 {v(vT + 4)}, {v(K, 2)}")
        A(f"ds_write_b64 {v(vT + 4)}, {v(K, 2)} offset:{PC}")
        A(f"v_add_u32 {v(vUW)}, {L_U + 480}, {v(vUW)}")

        V = [K + i for i in range(8)]
        A("s_waitcnt vmcnt(3)")
        self.stamp("x")
        for r in range(4):
            A(f"v_dot2_f32_bf16 {v(V[r])}, {v(vX + 2 * r)}, s{sONES}, 0")
        for r in range(4):
            A(f"v_dot2_f32_bf16 {v(V[4 + r])}, {v(vX + 2 * r)}, {v(vX + 2 * r)}, 0")
        for r in range(4):
            A(f"v_dot2_f32_bf16 {v(V[r])}, {v(vX + 2 * r + 1)}, s{sONES}, {v(V[r])}")
        for r in range(4):
            A(f"v_dot2_f32_bf16 {v(V[4 + r])}, {v(vX + 2 * r + 1)}, {v(vX + 2 * r + 1)}, {v(V[4 + r])}")
        self.reduce8(V, K + 8)
        A(f"ds_write_b32 {v(vSW)}, {v(V[0])}")
        A("s_waitcnt lgkmcnt(0)")
        A("s_barrier")
        self.stamp("b1")
        A(f"ds_read_b128 {v(K, 4)}, {v(vRA)}")
        A(f"ds_read_b128 {v(K + 4, 4)}, {v(vRA)} offset:128")
        A(f"s_add_u32 s{sG}, s{sG}, 0x9e3779b9")
        fw = o.get("fw", 1)
        for k in range(4 if fw else 1):
            A(f"v_mov_b32 {v(K + 28 + k)}, s{sG}")
        A(f"s_cmp_eq_u32 s{sWAVE}, 0")
        if fw:
            A(f"s_cselect_b64 exec, {(1 << ((1 << FS) // 16)) - 1}, 0")
            A(f"global_store_dwordx4 {v(vKEY)}, {v(K + 28, 4)}, {sp(sWS)} sc1")
        else:
            A("s_cselect_b64 exec, 1, 0")
            A(f"global_store_dword {v(vKEY)}, {v(K + 28)}, {sp(sWS)} sc1")
        A("s_mov_b64 exec, -1")
        A(f"s_mov_b64 vcc, {sp(sODD)}")
        A("s_waitcnt lgkmcnt(0)")
        vNM, vRI = K + 16, K + 20
        self.row_stats(K, K + 4, K + 10, K + 11, K + 12)
        self.spread(K + 10, vNM, K + 24)
        Dd = K + 32
        for c in range(4):
            for r in range(4):
                A(f"v_dot2_f32_bf16 {v(Dd + 4 * c + r)}, {v(vX + 2 * r + (c >> 1))}, s{sSELHI if c & 1 else sSELLO}, {v(vNM + r)}")
        self.spread(K + 11, vRI, K + 24)
        Pk = K + 48
        for half in range(2):
            ks = range(4 * half, 4 * half + 4)
            for k in ks:
                A(f"v_cvt_pk_bf16_f32 {v(Pk + k)}, {v(Dd + 2 * k)}, {v(Dd + 2 * k + 1)}")
            for k in ks:
                A(f"v_lshlrev_b32 {v(Dd + 2 * k)}, 16, {v(Pk + k)}")
                A(f"v_and_b32 {v(Dd + 2 * k + 1)}, s{sMASK}, {v(Pk + k)}")
            for k in ks:
                A(f"v_pk_mul_f32 {v(Dd + 2 * k, 2)}, {v(Dd + 2 * k, 2)}, {v(vRI + 2 * (k & 1), 2)}")
            for k in ks:
                A(f"v_cvt_pk_bf16_f32 {v(vU + k)}, {v(Dd + 2 * k)}, {v(Dd + 2 * k + 1)}")
            A(f"global_store_dwordx4 {v(vREG)}, {v(vU + 4 * half, 4)}, {sp(sWS)} offset:{-4096 + 4096 * half} sc1")
        self.stamp("x1st")
        fl = [f"global_load_dword {v(vT + 4)}, {v(vFL)}, {sp(sWS)} sc1",
              f"global_load_dword {v(vT + 5)}, {v(vFL + 2)}, {sp(sWS)} sc1"]
        flchk = [f"v_xor_b32 {v(vT + 6)}, s{sG}, {v(vT + 4)}",
                 f"v_xor_b32 {v(vT + 7)}, s{sG}, {v(vT + 5)}",
                 f"v_or_b32 {v(vT + 6)}, {v(vT + 6)}, {v(vT + 7)}",
                 f"v_cmp_ne_u32 vcc, 0, {v(vT + 6)}"]
        flmode = o.get("flmode", 1)
        if flmode == 1:
            A("s_waitcnt vmcnt(0)")
        if flmode < 2:
            for l in fl:
                A(l)
        A("s_barrier")
        if flmode == 2:
            for l in fl:
                A(l)
        A("s_waitcnt vmcnt(0)")
        self.stamp("x1dr")
        self.poll("flag", fl, flchk)
        xl = [f"global_load_dwordx4 {v(vY, 4)}, {v(vAUX)}, {sp(sWS)} sc1",
              f"global_load_dwordx4 {v(vY + 4, 4)}, {v(vAUX + 1)}, {sp(sWS)} sc1"]
        for l in xl:
            A(l)
        self.stamp("flag")
        A(f"s_mul_i32 s{sF}, s{sXCD}, 14")
        A(f"s_add_u32 s{sF}, s{sF}, s{sPOS}")
        A(f"s_bitcmp1_b32 s{sWAVE}, 0")
        A(f"s_cselect_b64 {sp(sWSEL)}, {sp(sWU)}, {sp(sWG)}")
        A(f"s_lshr_b32 s{sTMP + 1}, s{sWAVE}, 1")
        A(f"s_mul_i32 s{sTMP + 1}, s{sTMP + 1}, {256 * 3584}")
        A(f"s_lshl_b32 s{sTMP + 2}, s{sF}, 5")
        A(f"s_add_u32 s{sTMP + 1}, s{sTMP + 1}, s{sTMP + 2}")
        vWA = K + 8
        A(f"v_lshrrev_b32 {v(vWA)}, 1, {v(vLANE)}")
        A(f"v_mul_u32_u24 {v(vWA)}, {8 * 3584}, {v(vWA)}")
        A(f"v_lshl_add_u32 {v(vWA)}, {v(vT + 1)}, 4, {v(vWA)}")
        A(f"v_add_u32 {v(vWA)}, s{sTMP + 1}, {v(vWA)}")
        A(f"v_add_u32 {v(vWA + 2)}, {7 * 3584}, {v(vWA)}")
        A(f"v_add_u32 {v(vWA + 1)}, {4 * 3584}, {v(vWA)}")
        A(f"v_add_u32 {v(vWA)}, 3584, {v(vWA)}")
        A(f"s_lshl_b32 s{sTMP + 1}, s{sF}, 14")
        A(f"s_add_u32 s{sTMP + 1}, s{sTMP + 1}, 4096")
        A(f"v_lshl_add_u32 {v(vWA + 3)}, v0, 2, s{sTMP + 1}")
        A(f"v_add_u32 {v(vWA + 4)}, 8192, {v(vWA + 3)}")
        A(f"v_dot2_f32_bf16 {v(K + 4)}, {v(vONE)}, s{sONES}, 0")
        for k in range(1, 4):
            A(f"v_dot2_f32_bf16 {v(K + 4)}, {v(vONE + k)}, s{sONES}, {v(K + 4)}")
        A(f"v_mov_b32 {v(K + 5)}, {L_SUMW}")
        A(f"s_mov_b32 s{sRP0}, 0x05040100")
        A(f"s_mov_b32 s{sRP1}, 0x07060302")
        for sh in (8, 4, 2, 1):
            A(f"v_add_f32_dpp {v(K + 4)}, {v(K + 4)}, {v(K + 4)} row_ror:{sh} row_mask:0xf bank_mask:0xf")
        A(f"v_add_f32_dpp {v(K + 4)}, {v(K + 4)}, {v(K + 4)} row_bcast:15 row_mask:0xa bank_mask:0xf")
        A(f"v_add_f32_dpp {v(K + 4)}, {v(K + 4)}, {v(K + 4)} row_bcast:31 row_mask:0xc bank_mask:0xf")
        A("s_mov_b32 exec_lo, 0")
        A("s_brev_b32 exec_hi, 1")
        A(f"ds_write_b32 {v(K + 5)}, {v(K + 4)}")
        A("s_mov_b64 exec, -1")
        A("s_barrier")
        A("s_waitcnt vmcnt(0)")
        chk8 = [f"v_max3_u32 {v(vT + 6)}, {v(vY)}, {v(vY + 1)}, {v(vY + 2)}",
                f"v_max3_u32 {v(vT + 7)}, {v(vY + 3)}, {v(vY + 4)}, {v(vY + 5)}",
                f"v_max3_u32 {v(vT + 6)}, {v(vT + 6)}, {v(vY + 6)}, {v(vY + 7)}",
                f"v_max_u32 {v(vT + 6)}, {v(vT + 6)}, {v(vT + 7)}",
                f"v_cmp_eq_u32 vcc, -1, {v(vT + 6)}"]
        self.poll("x1", xl, chk8)
        self.stamp("x1ld")
        A(f"ds_write2st64_b64 {v(vUW)}, {v(vY, 2)}, {v(vY + 2, 2)} offset0:0 offset1:9")
        A(f"ds_write2st64_b64 {v(vUW)}, {v(vY + 4, 2)}, {v(vY + 6, 2)} offset0:4 offset1:13")
        A("s_waitcnt lgkmcnt(0)")
        A("s_barrier")

        A(f"s_cmp_lt_u32 s{sPOS}, 14")
        A("s_cbranch_scc0 L_now")
        for k in range(8):
            A(f"global_load_dwordx4 {v(vWG + 4 * k, 4)}, {v(vWA + k // 3)}, {sp(sWSEL)} offset:{(k % 3 - 1) * 3584}")
        self.stamp("wq1")
        if o.get("wwait"):
            A("s_waitcnt vmcnt(0)")
            self.stamp("wq1w")
        for k in range(16):
            A(f"global_load_dword {v(vWD + k)}, {v(vWA + 3 + (k >> 3))}, {sp(sWD)} offset:{((k & 7) - 4) * 1024}")
        self.stamp("wq2")
        if o.get("wwait"):
            A("s_waitcnt vmcnt(0)")
            self.stamp("wq2w")
        A("L_now:")
        A(f"v_and_b32 {v(vT + 3)}, 0xfe, v0")
        A(f"v_mul_u32_u24 {v(vAUX)}, {RS}, {v(vT + 3)}")
        A(f"v_lshl_add_u32 {v(vAUX)}, {v(vT + 1)}, 4, {v(vAUX)}")
        A(f"s_lshl_b32 s{sTMP}, s{sL}, 5")
        A(f"s_add_u32 s{sTMP}, s{sTMP}, {W_REG + O_X2}")
        A(f"v_add_u32 {v(vAUX)}, s{sTMP}, {v(vAUX)}")
        A(f"v_add_u32 {v(vAUX + 1)}, {RS}, {v(vAUX)}")
        Tt, Xf = K + 40, K + 56
        Df = K + 72
        for k in range(8):
            A(f"v_lshlrev_b32 {v(Tt + 2 * k)}, 16, {v(vU + k)}")
            A(f"v_and_b32 {v(Tt + 2 * k + 1)}, s{sMASK}, {v(vU + k)}")
        A(f"v_lshlrev_b32 {v(Df)}, 16, {v(vD)}")
        A(f"v_and_b32 {v(Df + 1)}, s{sMASK}, {v(vD)}")
        A(f"v_lshlrev_b32 {v(Df + 2)}, 16, {v(vD + 1)}")
        A(f"v_and_b32 {v(Df + 3)}, s{sMASK}, {v(vD + 1)}")
        for k in range(8):
            c = k >> 1
            sel = "op_sel:[1,0] op_sel_hi:[1,1]" if c & 1 else "op_sel_hi:[0,1]"
            A(f"v_pk_mul_f32 {v(Tt + 2 * k, 2)}, {v(Df + (c & 2), 2)}, {v(Tt + 2 * k, 2)} {sel}")
        for k in range(8):
            A(f"v_cvt_pk_bf16_f32 {v(Xf + k)}, {v(Tt + 2 * k)}, {v(Tt + 2 * k + 1)}")
        for k in range(8):
            A(f"v_lshlrev_b32 {v(Tt + 2 * k)}, 16, {v(Xf + k)}")
            A(f"v_and_b32 {v(Tt + 2 * k + 1)}, s{sMASK}, {v(Xf + k)}")
        for r in range(4):
            for c in range(4):
                src = v(vX + 2 * r + (c >> 1))
                if c & 1:
                    A(f"v_and_b32 {v(Xf + 4 * c + r)}, s{sMASK}, {src}")
                else:
                    A(f"v_lshlrev_b32 {v(Xf + 4 * c + r)}, 16, {src}")
        self.stamp("shadow")
        A("s_barrier")
        A("s_barrier")
        self.stamp("b4b")
        for l in xl:
            A(l)
        A("s_waitcnt vmcnt(0)")
        self.poll("x2", xl, chk8)
        self.stamp("x2ld")

        for k in range(8):
            A(f"v_dot2_f32_bf16 {v(Tt + 2 * k)}, {v(vY + k)}, s{sSELLO}, {v(Tt + 2 * k)}")
            A(f"v_dot2_f32_bf16 {v(Tt + 2 * k + 1)}, {v(vY + k)}, s{sSELHI}, {v(Tt + 2 * k + 1)}")
        for k in range(8):
            A(f"v_cvt_pk_bf16_f32 {v(vY + k)}, {v(Tt + 2 * k)}, {v(Tt + 2 * k + 1)}")
        for k in range(8):
            A(f"v_dot2_f32_bf16 {v(Xf + 2 * k)}, {v(vY + k)}, s{sSELLO}, {v(Xf + 2 * k)}")
            A(f"v_dot2_f32_bf16 {v(Xf + 2 * k + 1)}, {v(vY + k)}, s{sSELHI}, {v(Xf + 2 * k + 1)}")
        vH = vX
        for cp in range(2):
            for r in range(4):
                A(f"v_cvt_pk_bf16_f32 {v(vH + 2 * r + cp)}, {v(Xf + 8 * cp + r)}, {v(Xf + 8 * cp + 4 + r)}")
        Rr = [K + 8 + i for i in range(4)]
        for cp in range(2):
            for r in range(4):
                A(f"v_dot2_f32_bf16 {v(V[r])}, {v(vH + 2 * r + cp)}, s{sONES}, {v(V[r]) if cp else 0}")
            for r in range(4):
                A(f"v_dot2_f32_bf16 {v(V[4 + r])}, {v(vH + 2 * r + cp)}, {v(vH + 2 * r + cp)}, {v(V[4 + r]) if cp else 0}")
            for r in range(4):
                A(f"v_dot2_f32_bf16 {v(Rr[r])}, {v(vH + 2 * r + cp)}, {v(vWR + cp)}, {v(Rr[r]) if cp else 0}")
        for i in range(4):
            A(f"v_add_f32_dpp {v(V[i])}, {v(V[i])}, {v(V[i])} row_ror:8 row_mask:0xf bank_mask:0x3")
        for i in range(4):
            A(f"v_add_f32_dpp {v(V[i])}, {v(V[i + 4])}, {v(V[i + 4])} row_ror:8 row_mask:0xf bank_mask:0xc")
        for i in range(2):
            A(f"v_add_f32_dpp {v(Rr[i])}, {v(Rr[i])}, {v(Rr[i])} row_shl:4 row_mask:0xf bank_mask:0x5")
        for i in range(2):
            A(f"v_add_f32_dpp {v(Rr[i])}, {v(Rr[i + 2])}, {v(Rr[i + 2])} row_shr:4 row_mask:0xf bank_mask:0xa")
        for i in range(2):
            A(f"v_add_f32_dpp {v(V[i])}, {v(V[i])}, {v(V[i])} row_shl:4 row_mask:0xf bank_mask:0x5")
        for i in range(2):
            A(f"v_add_f32_dpp {v(V[i])}, {v(V[i + 2])}, {v(V[i + 2])} row_shr:4 row_mask:0xf bank_mask:0xa")
        A(f"v_permlane32_swap_b32 {v(Rr[0])}, {v(Rr[1])}")
        A(f"v_and_b32 {v(K + 13)}, 0xffffff7f, {v(vSW)}")
        A(f"v_permlane32_swap_b32 {v(V[0])}, {v(V[1])}")
        A(f"v_add_f32 {v(Rr[0])}, {v(Rr[0])}, {v(Rr[1])}")
        A(f"v_add_f32 {v(V[0])}, {v(V[0])}, {v(V[1])}")
        A(f"s_mov_b64 vcc, {sp(sODD)}")
        A(f"v_add_f32_dpp {v(Rr[0])}, {v(Rr[0])}, {v(Rr[0])} row_ror:8 row_mask:0xf bank_mask:0xf")
        A(f"v_add_f32_dpp {v(V[0])}, {v(V[0])}, {v(V[0])} quad_perm:[2,3,0,1] row_mask:0xf bank_mask:0xf")
        A(f"v_mov_b32 {v(V[1])}, {v(V[0])}")
        A(f"v_add_f32_dpp {v(Rr[0])}, {v(Rr[0])}, {v(Rr[0])} quad_perm:[2,3,0,1] row_mask:0xf bank_mask:0xf")
        A(f"v_mov_b32 {v(Rr[1])}, {v(Rr[0])}")
        A(f"v_permlane16_swap_b32 {v(V[0])}, {v(V[1])}")
        A(f"v_add_f32 {v(V[0])}, {v(V[0])}, {v(V[1])}")
        A(f"v_permlane16_swap_b32 {v(Rr[0])}, {v(Rr[1])}")
        A(f"v_add_f32 {v(Rr[0])}, {v(Rr[0])}, {v(Rr[1])}")
        A(f"ds_write_b32 {v(vSW)}, {v(V[0])} offset:{L_RED2 - L_RED1}")
        A(f"ds_write_b32 {v(K + 13)}, {v(Rr[0])} offset:{L_RED2 - L_RED1 + 256}")
        A("s_waitcnt lgkmcnt(0)")
        A("s_barrier")
        self.stamp("b5")
        Hf, Dd = Xf, Tt
        self.key_calc(K, vRA, vLANE)
        self.spread(K + 12, vNM, K + 24)
        A(f"v_readfirstlane_b32 s{sBEST}, {v(K + 8)}")
        for r in range(4):
            for cp in range(2):
                A(f"v_lshlrev_b32 {v(Hf + 4 * r + 2 * cp)}, 16, {v(vH + 2 * r + cp)}")
                A(f"v_and_b32 {v(Hf + 4 * r + 2 * cp + 1)}, s{sMASK}, {v(vH + 2 * r + cp)}")
        self.spread(K + 13, vRI, K + 24)
        for k in range(8):
            r = k >> 1
            sel = "op_sel:[1,0] op_sel_hi:[1,1]" if r & 1 else "op_sel_hi:[0,1]"
            A(f"v_pk_add_f32 {v(Dd + 2 * k, 2)}, {v(vNM + (r & 2), 2)}, {v(Hf + 2 * k, 2)} {sel}")
        vX2 = vU
        for k in range(8):
            A(f"v_cvt_pk_bf16_f32 {v(vX2 + k)}, {v(Dd + 2 * k)}, {v(Dd + 2 * k + 1)}")
        for k in range(8):
            A(f"v_lshlrev_b32 {v(Dd + 2 * k)}, 16, {v(vX2 + k)}")
            A(f"v_and_b32 {v(Dd + 2 * k + 1)}, s{sMASK}, {v(vX2 + k)}")
        for k in range(8):
            r = k >> 1
            sel = "op_sel:[1,0] op_sel_hi:[1,1]" if r & 1 else "op_sel_hi:[0,1]"
            A(f"v_pk_mul_f32 {v(Dd + 2 * k, 2)}, {v(vRI + (r & 2), 2)}, {v(Dd + 2 * k, 2)} {sel}")
        for k in range(8):
            A(f"v_cvt_pk_bf16_f32 {v(vX2 + k)}, {v(Dd + 2 * k)}, {v(Dd + 2 * k + 1)}")
        A(f"s_andn2_b32 s{sTMP}, 7, s{sBEST}")
        A(f"s_and_b32 s{sTMP + 1}, s{sTMP}, 3")
        A(f"s_lshl_b32 s{sTMP + 2}, s{sTMP + 1}, 1")
        A(f"s_not_b64 {sp(sE)}, {sp(sODD)}")
        A(f"s_cmp_ge_u32 s{sTMP}, 4")
        A(f"s_cselect_b64 {sp(sE)}, {sp(sODD)}, {sp(sE)}")
        vC = K + 24
        A(f"s_set_gpr_idx_on s{sTMP + 2}, gpr_idx(SRC0)")
        A(f"v_mov_b32 {v(vC)}, {v(vX2)}")
        A(f"v_mov_b32 {v(vC + 1)}, {v(vX2 + 1)}")
        A(f"v_mov_b32 {v(vC + 2)}, {v(vH)}")
        A(f"v_mov_b32 {v(vC + 3)}, {v(vH + 1)}")
        A("s_set_gpr_idx_off")
        A(f"s_add_u32 s{sTMP + 3}, s{sOWN}, {O_SLOT}")
        A(f"v_add_u32 {v(vT)}, s{sTMP + 3}, {v(vT + 2)}")
        A(f"s_mov_b64 exec, {sp(sE)}")
        A(f"global_store_dwordx2 {v(vT)}, {v(vC, 2)}, {sp(sWS)} sc1")
        A(f"global_store_dwordx2 {v(vT)}, {v(vC + 2, 2)}, {sp(sWS)} offset:1024 sc1")
        A("s_mov_b64 exec, -1")
        self.stamp("slot")
        for k in range(8):
            A(f"v_dot2_f32_bf16 {v(Hf + 2 * k)}, {v(vX2 + k)}, s{sSELLO}, {v(Hf + 2 * k)}")
            A(f"v_dot2_f32_bf16 {v(Hf + 2 * k + 1)}, {v(vX2 + k)}, s{sSELHI}, {v(Hf + 2 * k + 1)}")
        vO = vY
        A(f"v_mov_b32 {v(vT + 4)}, {L_REDK}")
        for k in range(8):
            A(f"v_cvt_pk_bf16_f32 {v(vO + k)}, {v(Hf + 2 * k)}, {v(Hf + 2 * k + 1)}")
        osc = " sc1" if o.get("outsc", 1) == 1 else (" nt" if o.get("outsc", 1) == 2 else "")
        for r in range(4):
            A(f"s_cmp_eq_u32 s{sTMP + 1}, {r}")
            A(f"s_cselect_b64 vcc, {sp(sE)}, 0")
            A("s_not_b64 exec, vcc")
            A(f"global_store_dwordx2 {v(vRD)}, {v(vO + 2 * r, 2)}, {sp(sOUT)} offset:{1024 * r}{osc}")
        A("s_mov_b64 exec, -1")
        A(f"s_set_gpr_idx_on s{sTMP + 2}, gpr_idx(SRC0)")
        A(f"v_mov_b32 {v(vC + 4)}, {v(vO)}")
        A(f"v_mov_b32 {v(vC + 5)}, {v(vO + 1)}")
        A("s_set_gpr_idx_off")
        A(f"s_lshl_b32 s{sTMP + 1}, s{sTMP + 1}, 10")
        A(f"v_add_u32 {v(vRD)}, s{sTMP + 1}, {v(vRD)}")
        A(f"s_lshr_b32 s{sTMP}, s{sWAVE}, 1")
        A(f"s_lshl_b32 s{sTMP}, s{sTMP}, 9")
        A(f"s_add_u32 s{sTMP}, s{sTMP}, {W_REG + O_SLOT}")
        A(f"v_lshrrev_b32 {v(vT)}, 1, {v(vLANE)}")
        A(f"v_lshl_add_u32 {v(vT)}, {v(vT)}, 4, s{sTMP}")
        A(f"v_lshlrev_b32 {v(vT + 1)}, 6, {v(vT + 1)}")
        A(f"v_and_b32 {v(vT + 2)}, 12, {v(vLANE)}")
        A(f"v_lshl_add_u32 {v(vT + 1)}, {v(vT + 2)}, 2, {v(vT + 1)}")
        A(f"v_lshrrev_b32 {v(vT + 2)}, 5, {v(vLANE)}")
        A(f"v_lshl_add_u32 {v(vT + 1)}, {v(vT + 2)}, 3, {v(vT + 1)}")
        A(f"s_and_b32 s{sTMP}, s{sWAVE}, 1")
        A(f"s_lshl_b32 s{sTMP}, s{sTMP}, 7")
        A(f"s_lshr_b32 s{sTMP + 1}, s{sWAVE}, 1")
        A(f"s_lshl_b32 s{sTMP + 1}, s{sTMP + 1}, 2")
        A(f"s_add_u32 s{sTMP}, s{sTMP}, s{sTMP + 1}")
        A(f"s_add_u32 s{sTMP}, s{sTMP}, {L_REDF}")
        A(f"v_add_u32 {v(vT + 1)}, s{sTMP}, {v(vT + 1)}")
        A(f"v_and_b32 {v(vT + 2)}, 15, {v(vLANE)}")
        A(f"v_lshlrev_b32 {v(vT + 2)}, 3, {v(vT + 2)}")
        A(f"v_add_u32 {v(vT + 2)}, {L_REDF}, {v(vT + 2)}")
        A(f"s_add_u32 s{sTMP}, s{sOWN}, {O_PART}")
        A(f"v_lshl_add_u32 {v(vT + 3)}, v0, 3, s{sTMP}")
        WGp = K + 80
        for kp in range(4):
            for d in range(4):
                lo, hi = vWG + 8 * kp + d, vWG + 8 * kp + 4 + d
                A(f"v_perm_b32 {v(WGp + 8 * kp + 2 * d)}, {v(hi)}, {v(lo)}, s{sRP0}")
                A(f"v_perm_b32 {v(WGp + 8 * kp + 2 * d + 1)}, {v(hi)}, {v(lo)}, s{sRP1}")
        WDp = vWG
        for kp in range(8):
            lo, hi = vWD + 2 * kp, vWD + 2 * kp + 1
            A(f"v_perm_b32 {v(WDp + 2 * kp)}, {v(hi)}, {v(lo)}, s{sRP0}")
            A(f"v_perm_b32 {v(WDp + 2 * kp + 1)}, {v(hi)}, {v(lo)}, s{sRP1}")
        self.stamp("outst")
        A("s_barrier")
        A(f"ds_read_b32 {v(K)}, {v(vT + 4)}")
        A("s_waitcnt lgkmcnt(0)")
        A(f"v_readfirstlane_b32 s{sWIN}, {v(K)}")
        A(f"s_andn2_b32 s{sT0}, 2047, s{sWIN}")
        A(f"s_lshr_b32 s{sT1}, s{sT0}, 3")
        A(f"s_mul_i32 s{sT1}, s{sT1}, {RS}")
        A(f"s_cmp_lt_u32 s{sPOS}, 14")
        A("s_cbranch_scc0 L_noffn")
        A(f"v_add_u32 {v(vT)}, s{sT1}, {v(vT)}")
        sl = [f"global_load_dwordx4 {v(K, 4)}, {v(vT)}, {sp(sWS)} sc1"]
        A(sl[0])
        self.stamp("win")
        A("s_waitcnt vmcnt(0)")
        self.poll("sel", sl, [f"v_max3_u32 {v(vT + 6)}, {v(K)}, {v(K + 1)}, {v(K + 2)}",
                              f"v_max_u32 {v(vT + 6)}, {v(vT + 6)}, {v(K + 3)}",
                              f"v_cmp_eq_u32 vcc, -1, {v(vT + 6)}"])
        self.stamp("sel")
        V2 = [K + 8 + i for i in range(8)]
        for kp in range(4):
            for c in range(8):
                A(f"v_dot2_f32_bf16 {v(V2[c])}, {v(K + kp)}, {v(WGp + 8 * kp + c)}, {v(V2[c]) if kp else 0}")
        self.reduce8(V2, K + 16)
        A(f"ds_write_b32 {v(vT + 1)}, {v(V2[0])}")
        A("s_waitcnt lgkmcnt(0)")
        A("s_barrier")
        A(f"ds_read_b64 {v(K, 2)}, {v(vT + 2)}")
        A(f"ds_read_b64 {v(K + 2, 2)}, {v(vT + 2)} offset:128")
        A("s_waitcnt lgkmcnt(0)")
        A(f"v_add_f32 {v(K)}, {v(K)}, {v(K + 1)}")
        A(f"v_add_f32 {v(K + 2)}, {v(K + 2)}, {v(K + 3)}")
        A(f"v_cvt_pk_bf16_f32 {v(K + 1)}, {v(K)}, {v(K + 2)}")
        A(f"v_lshlrev_b32 {v(K)}, 16, {v(K + 1)}")
        A(f"v_mul_f32 {v(K + 3)}, {hex(f2u(-L2E))}, {v(K)}")
        A(f"v_exp_f32 {v(K + 3)}, {v(K + 3)}")
        A(f"v_and_b32 {v(K + 2)}, s{sMASK}, {v(K + 1)}")
        A(f"v_add_f32 {v(K + 3)}, 1.0, {v(K + 3)}")
        A(f"v_rcp_f32 {v(K + 3)}, {v(K + 3)}")
        A(f"v_mul_f32 {v(K)}, {v(K)}, {v(K + 3)}")
        A(f"v_cvt_pk_bf16_f32 {v(K)}, {v(K)}, {v(K)}")
        A(f"v_and_b32 {v(K)}, s{sMASK}, {v(K)}")
        A(f"v_mul_f32 {v(K)}, {v(K)}, {v(K + 2)}")
        A(f"v_mov_b32_dpp {v(K + 1)}, {v(K)} quad_perm:[1,1,3,3] row_mask:0xf bank_mask:0xf")
        A(f"v_cvt_pk_bf16_f32 {v(K)}, {v(K)}, {v(K + 1)}")
        for kp in range(8):
            A(f"v_readlane_b32 s{sH + kp}, {v(K)}, {2 * kp}")
        for kp in range(8):
            for c in range(2):
                A(f"v_dot2_f32_bf16 {v(K + 4 + c)}, s{sH + kp}, {v(WDp + 2 * kp + c)}, {v(K + 4 + c) if kp else 0}")
        A(f"global_store_dwordx2 {v(vT + 3)}, {v(K + 4, 2)}, {sp(sWS)} sc1")
        self.stamp("part")
        held = [f"s_cmp_eq_u32 s{sWIN}, s{sBEST}",
                f"s_cselect_b64 exec, 0, {sp(sE)}",
                f"global_store_dwordx2 {v(vRD)}, {v(vC + 4, 2)}, {sp(sOUT)}{osc}",
                f"s_or_b32 s{sTMP}, s{sL}, s{sWAVE}",
                f"s_cmp_eq_u32 s{sTMP}, 0",
                "s_cselect_b64 exec, 1, 0",
                f"v_mov_b32 {v(vT + 4)}, s{sG}",
                f"v_mov_b32 {v(vT + 5)}, 0",
                f"global_store_dword {v(vT + 5)}, {v(vT + 4)}, {sp(sWS)} sc1",
                "s_mov_b64 exec, -1"]
        T = self.tail
        T("L_noffn:")
        for l in held:
            T(l)
        T("s_branch L_fin")
        for l in held:
            A(l)
        A(f"s_cmp_lt_u32 s{sPOS}, 8")
        A("s_cbranch_scc0 L_fin")
        A(f"s_cmp_lt_u32 s{sWAVE}, 2")
        A("s_cbranch_scc0 L_fin")
        A(f"s_lshl_b32 s{sTMP}, s{sXCD}, 3")
        A(f"s_add_u32 s{sTMP}, s{sTMP}, s{sPOS}")
        A(f"s_lshl_b32 s{sTMP}, s{sTMP}, 1")
        A(f"s_add_u32 s{sTMP}, s{sTMP}, s{sWAVE}")
        A(f"v_lshrrev_b32 {v(vT)}, 5, {v(vLANE)}")
        A(f"v_bfe_u32 {v(vT + 1)}, {v(vLANE)}, 4, 1")
        A(f"v_lshl_add_u32 {v(vT)}, {v(vT + 1)}, 1, {v(vT)}")
        A(f"s_lshl_b32 s{sTMP + 1}, s{sTMP}, 3")
        A(f"v_lshl_add_u32 {v(vT)}, {v(vT)}, 1, s{sTMP + 1}")
        A(f"s_add_u32 s{sT1}, s{sT1}, {W_REG + O_SLOT}")
        A(f"v_add_u32 {v(vT + 1)}, s{sT1}, {v(vT)}")
        xh = [f"global_load_ushort {v(K + 20)}, {v(vT + 1)}, {sp(sWS)} sc1",
              f"global_load_ushort {v(K + 21)}, {v(vT + 1)}, {sp(sWS)} offset:1024 sc1"]
        for l in xh:
            A(l)
        A(f"s_lshl_b32 s{sTMP + 1}, s{sT0}, 10")
        A(f"v_add_u32 {v(vT)}, s{sTMP + 1}, {v(vT)}")
        A(f"v_min_u32 {v(vT + 2)}, 55, {v(vLANE)}")
        A(f"v_mul_u32_u24 {v(vT + 3)}, 4682, {v(vT + 2)}")
        A(f"v_lshrrev_b32 {v(vT + 3)}, 16, {v(vT + 3)}")
        A(f"v_mad_u32_u24 {v(vT + 2)}, {v(vT + 3)}, 18, {v(vT + 2)}")
        A(f"v_mul_u32_u24 {v(vT + 2)}, {RS}, {v(vT + 2)}")
        A(f"s_lshl_b32 s{sTMP + 1}, s{sTMP}, 4")
        A(f"s_add_u32 s{sTMP + 1}, s{sTMP + 1}, {W_REG + O_PART}")
        A(f"v_add_u32 {v(vT + 2)}, s{sTMP + 1}, {v(vT + 2)}")
        A(f"v_add_u32 {v(vT + 3)}, {128 * RS}, {v(vT + 2)}")
        A(f"s_ashr_i32 s{sTMP + 2}, s{sWIN}, 31")
        A(f"s_not_b32 s{sTMP + 2}, s{sTMP + 2}")
        A(f"s_or_b32 s{sTMP + 2}, s{sTMP + 2}, 0x80000000")
        A(f"s_xor_b32 s{sTMP + 2}, s{sTMP + 2}, s{sWIN}")
        A(f"s_and_b32 s{sTMP + 2}, s{sTMP + 2}, 0xfffff800")
        A(f"s_or_b32 s{sTMP + 2}, s{sTMP + 2}, 0x400")
        A(f"v_cvt_pk_bf16_f32 {v(K + 22)}, s{sTMP + 2}, s{sTMP + 2}")
        A(f"v_and_b32 {v(K + 22)}, s{sMASK}, {v(K + 22)}")
        A(f"v_mul_f32 {v(K + 22)}, {hex(f2u(-L2E))}, {v(K + 22)}")
        A(f"v_exp_f32 {v(K + 22)}, {v(K + 22)}")
        A(f"v_add_f32 {v(K + 22)}, 1.0, {v(K + 22)}")
        A(f"v_rcp_f32 {v(K + 22)}, {v(K + 22)}")
        A(f"v_cvt_pk_bf16_f32 {v(K + 22)}, {v(K + 22)}, {v(K + 22)}")
        A(f"v_and_b32 {v(K + 22)}, s{sMASK}, {v(K + 22)}")
        A("s_waitcnt vmcnt(0)")
        self.stamp("partdr")
        pl = [f"global_load_dwordx4 {v(vY, 4)}, {v(vT + 2)}, {sp(sWS)} sc1",
              f"global_load_dwordx4 {v(vY + 4, 4)}, {v(vT + 3)}, {sp(sWS)} sc1"]
        for l in pl:
            A(l)
        self.poll("xh", xh, [f"v_max_u32 {v(vT + 6)}, {v(K + 20)}, {v(K + 21)}",
                             f"v_cmp_eq_u32 vcc, 0xffff, {v(vT + 6)}"])
        A(f"v_lshlrev_b32 {v(K + 20)}, 16, {v(K + 20)}")
        A(f"v_lshlrev_b32 {v(K + 21)}, 16, {v(K + 21)}")
        A("s_waitcnt vmcnt(0)")
        self.poll("part", pl, chk8)
        self.stamp("partld")
        A(f"v_cmp_gt_u32 vcc, 56, {v(vLANE)}")
        A(f"v_pk_add_f32 {v(vY, 2)}, {v(vY, 2)}, {v(vY + 4, 2)}")
        A(f"v_pk_add_f32 {v(vY + 2, 2)}, {v(vY + 2, 2)}, {v(vY + 6, 2)}")
        for c in range(4):
            A(f"v_cndmask_b32 {v(vY + c)}, 0, {v(vY + c)}, vcc")
        A(f"v_permlane32_swap_b32 {v(vY)}, {v(vY + 1)}")
        A(f"v_permlane32_swap_b32 {v(vY + 2)}, {v(vY + 3)}")
        A(f"v_add_f32 {v(vY)}, {v(vY)}, {v(vY + 1)}")
        A(f"v_add_f32 {v(vY + 2)}, {v(vY + 2)}, {v(vY + 3)}")
        A(f"v_permlane16_swap_b32 {v(vY)}, {v(vY + 2)}")
        A(f"v_add_f32 {v(vY)}, {v(vY)}, {v(vY + 2)}")
        for sh in (8, 4, 2, 1):
            A(f"v_add_f32_dpp {v(vY)}, {v(vY)}, {v(vY)} row_ror:{sh} row_mask:0xf bank_mask:0xf")
        y = vY
        A(f"v_cvt_pk_bf16_f32 {v(y)}, {v(y)}, {v(y)}")
        A(f"v_and_b32 {v(y)}, s{sMASK}, {v(y)}")
        A(f"v_mul_f32 {v(y)}, {v(y)}, {v(K + 22)}")
        A(f"v_cvt_pk_bf16_f32 {v(y)}, {v(y)}, {v(y)}")
        A(f"v_and_b32 {v(y)}, s{sMASK}, {v(y)}")
        A(f"v_add_f32 {v(y)}, {v(y)}, {v(K + 20)}")
        A(f"v_cvt_pk_bf16_f32 {v(y)}, {v(y)}, {v(y)}")
        A(f"v_and_b32 {v(y)}, s{sMASK}, {v(y)}")
        A(f"v_add_f32 {v(y)}, {v(y)}, {v(K + 21)}")
        A(f"v_cvt_pk_bf16_f32 {v(y)}, {v(y)}, {v(y)}")
        A("s_mov_b32 exec_lo, 0x00010001")
        A("s_mov_b32 exec_hi, 0x00010001")
        A(f"global_store_short {v(vT)}, {v(y)}, {sp(sOUT)}")
        A("L_fin:")
        self.finish("R")

    def chans(self):
        A = self.A
        o = self.o
        vLANE = 1
        vAA, vBA, vEW, vER, vRA = 4, 12, 13, 14, 15
        vKA0, vKA1, vKB, vPW0, vPW1 = 16, 17, 18, 19, 20
        vP = 24
        vT = 28
        vACC = 40
        vA0, vA1, vB0, vB1 = 72, 104, 136, 168
        K = 72
        A("L_chan:")
        A("v_and_b32 v0, 0xff, v0")
        A(f"s_sub_u32 s{sWAVE}, s{sWAVE}, 4")
        A(f"s_lshl_b32 s{sT0}, s{sL}, 9")
        A(f"v_lshl_add_u32 {v(vT)}, v0, 1, s{sT0}")
        A(f"s_lshl_b32 s{sT1}, s{sL}, 2")
        A("s_waitcnt lgkmcnt(0)")
        self.stamp("karg")
        for k, s in enumerate((sLA, sAI, sCR, sCI)):
            A(f"global_load_ushort {v(vP + k)}, {v(vT)}, {sp(s)}{' nt' if o.get('ntx', 1) else ''}")
        A(f"s_load_dword s{sDT}, {sp(sLDT)}, s{sT1}")
        ntlb = 0
        if o.get("tlb", 0):
            A("v_mov_b32 v2, 0")
            A("s_mov_b64 exec, 1")
            for sb in (sWG, sWU, sWD, sOUT):
                A(f"global_load_dword v3, v2, {sp(sb)}")
                ntlb += 1
            A("s_mov_b64 exec, -1")
        vJ, vGq = vT + 4, vT + 5
        A(f"v_and_b32 {v(vJ)}, 15, {v(vLANE)}")
        A(f"v_lshrrev_b32 {v(vGq)}, 4, {v(vLANE)}")
        A(f"s_lshr_b32 s{sT0}, s{sWAVE}, 1")
        A(f"s_and_b32 s{sT1}, s{sWAVE}, 1")
        A(f"v_and_b32 {v(vT)}, 7, {v(vLANE)}")
        A(f"v_lshlrev_b32 {v(vRA)}, 4, {v(vT)}")
        A(f"v_add_u32 {v(vRA)}, {L_RED1}, {v(vRA)}")
        A(f"s_mul_i32 s{sTMP}, s{sT0}, {PC}")
        A(f"s_lshl_b32 s{sTMP + 1}, s{sT1}, 7")
        A(f"s_add_u32 s{sTMP}, s{sTMP}, s{sTMP + 1}")
        A(f"s_add_u32 s{sTMP}, s{sTMP}, {L_P + 4 * 26}")
        A(f"v_lshlrev_b32 {v(vT)}, 3, {v(vGq)}")
        A(f"v_sub_u32 {v(vT)}, {v(vJ)}, {v(vT)}")
        A(f"v_lshl_add_u32 {v(vAA)}, {v(vT)}, 2, s{sTMP}")
        for m in range(1, 8):
            A(f"v_add_u32 {v(vAA + m)}, {1024 * m}, {v(vAA)}")
        A(f"s_mul_i32 s{sTMP}, s{sT0}, {UC}")
        A(f"s_lshl_b32 s{sTMP + 1}, s{sT1}, 6")
        A(f"s_sub_u32 s{sTMP}, s{sTMP}, s{sTMP + 1}")
        A(f"s_add_u32 s{sTMP}, s{sTMP}, {L_U + 64}")
        A(f"v_lshl_add_u32 {v(vT)}, {v(vJ)}, 1, {v(vGq)}")
        A(f"v_lshl_add_u32 {v(vBA)}, {v(vT)}, 4, s{sTMP}")
        A(f"v_lshl_add_u32 {v(vT)}, {v(vJ)}, 2, {v(vGq)}")
        A(f"v_lshrrev_b32 {v(vT + 1)}, 3, {v(vT)}")
        A(f"v_add_u32 {v(vT)}, {v(vT)}, {v(vT + 1)}")
        A(f"s_mul_i32 s{sTMP}, s{sWAVE}, {8 * TBS}")
        A(f"v_lshl_add_u32 {v(vEW)}, {v(vT)}, 4, s{sTMP}")
        A(f"v_lshrrev_b32 {v(vT + 1)}, 3, {v(vLANE)}")
        A(f"v_add_u32 {v(vT)}, {v(vLANE)}, {v(vT + 1)}")
        A(f"s_mul_i32 s{sTMP}, s{sWAVE}, {2 * TBS}")
        A(f"v_lshl_add_u32 {v(vER)}, {v(vT)}, 4, s{sTMP}")
        KS = o.get("ks", 5)
        for k in range(4):
            A(f"v_mov_b32 {v(vACC + k)}, -1")
        A(f"s_mul_i32 s{sTMP}, s{sL}, {RS}")
        A(f"s_add_u32 s{sTMP}, s{sTMP}, {W_REG + 4096}")
        A(f"v_lshl_add_u32 {v(vACC + 4)}, v0, 4, s{sTMP}")
        A(f"v_add_u32 {v(vACC + 5)}, 8192, {v(vACC + 4)}")
        A(f"v_add_u32 {v(vACC + 6)}, 12288, {v(vACC + 4)}")
        A(f"s_lshl_b32 s{sTMP}, s{sL}, {KS}")
        A(f"s_add_u32 s{sTMP}, s{sTMP}, {W_KEY}")
        A(f"v_lshl_add_u32 {v(22)}, {v(vLANE)}, 4, s{sTMP}")
        ones = v(vACC, 4)
        inits = [f"s_cmp_eq_u32 s{sWAVE}, 0",
                 f"s_cselect_b64 exec, {(1 << ((1 << KS) // 16)) - 1}, 0",
                 f"global_store_dwordx4 {v(22)}, {ones}, {sp(sWS)} sc1",
                 "s_mov_b64 exec, -1",
                 f"global_store_dwordx4 {v(vACC + 4)}, {ones}, {sp(sWS)} offset:-4096 sc1",
                 f"global_store_dwordx4 {v(vACC + 4)}, {ones}, {sp(sWS)} sc1",
                 f"global_store_dwordx4 {v(vACC + 5)}, {ones}, {sp(sWS)} offset:-4096 sc1",
                 f"global_store_dwordx4 {v(vACC + 5)}, {ones}, {sp(sWS)} sc1",
                 f"global_store_dwordx4 {v(vACC + 6)}, {ones}, {sp(sWS)} sc1"]
        ilate = o.get("ilate", 0)
        if not ilate:
            for l in inits:
                A(l)
        vg, vr = vT, vT + 1
        A(f"v_lshrrev_b32 {v(vg)}, 2, {v(vJ)}")
        A(f"v_and_b32 {v(vr)}, 3, {v(vJ)}")
        A(f"s_cmp_eq_u32 s{sT1}, 0")
        A("s_cbranch_scc0 L_rows_hi")
        A(f"v_mov_b32 {v(vKA0)}, {v(vJ)}")
        A(f"v_lshl_add_u32 {v(vKA1)}, {v(vg)}, 1, {v(vr)}")
        A(f"v_add_u32 {v(vKA1)}, 16, {v(vKA1)}")
        A(f"v_add_u32 {v(vT + 2)}, -4, {v(vJ)}")
        A(f"v_and_b32 {v(vT + 2)}, 15, {v(vT + 2)}")
        A(f"v_cmp_eq_u32 vcc, 3, {v(vr)}")
        A(f"v_cndmask_b32 {v(vKA1)}, {v(vKA1)}, {v(vT + 2)}, vcc")
        A(f"v_lshl_add_u32 {v(vPW0)}, {v(vJ)}, 2, {v(vGq)}")
        A(f"v_lshlrev_b32 {v(vPW0)}, 4, {v(vPW0)}")
        A(f"v_add_u32 {v(vPW1)}, 1024, {v(vPW0)}")
        A("s_branch L_rows_done")
        A("L_rows_hi:")
        A(f"v_lshrrev_b32 {v(vT + 2)}, 1, {v(vg)}")
        A(f"v_lshl_add_u32 {v(vKA0)}, {v(vg)}, 1, {v(vr)}")
        A(f"v_add3_u32 {v(vKA0)}, {v(vKA0)}, {v(vT + 2)}, 25")
        A(f"v_sub_u32 {v(vKA1)}, {v(vJ)}, {v(vg)}")
        A(f"v_add_u32 {v(vKA1)}, 35, {v(vKA1)}")
        A(f"v_lshrrev_b32 {v(vT + 2)}, 1, {v(vGq)}")
        A(f"v_lshl_add_u32 {v(vPW0)}, {v(vT + 2)}, 4, {v(vJ)}")
        A(f"v_and_b32 {v(vT + 2)}, 1, {v(vGq)}")
        A(f"v_lshl_add_u32 {v(vPW0)}, {v(vPW0)}, 1, {v(vT + 2)}")
        A(f"v_lshlrev_b32 {v(vPW0)}, 5, {v(vPW0)}")
        A(f"v_add_u32 {v(vPW0)}, 2048, {v(vPW0)}")
        A(f"v_lshlrev_b32 {v(vPW1)}, 6, {v(vLANE)}")
        A(f"v_add_u32 {v(vPW1)}, 4096, {v(vPW1)}")
        A("L_rows_done:")
        A(f"s_mul_i32 s{sTMP}, s{sT0}, {PC}")
        A(f"s_add_u32 s{sTMP}, s{sTMP}, {L_P + 64}")
        A(f"v_add_u32 {v(vPW0)}, s{sTMP}, {v(vPW0)}")
        A(f"v_add_u32 {v(vPW1)}, s{sTMP}, {v(vPW1)}")
        A(f"s_mul_i32 s{sTMP}, s{sT0}, {TABC}")
        A(f"v_lshl_add_u32 {v(vT + 2)}, {v(vGq)}, 4, s{sTMP}")
        A(f"s_movk_i32 s{sTMP + 1}, {ROWB}")
        A(f"v_mad_u32_u24 {v(vKA0)}, {v(vKA0)}, s{sTMP + 1}, {v(vT + 2)}")
        A(f"v_mad_u32_u24 {v(vKA1)}, {v(vKA1)}, s{sTMP + 1}, {v(vT + 2)}")
        A(f"v_mad_u32_u24 {v(vKB)}, {v(vJ)}, s{sTMP + 1}, {v(vT + 2)}")
        A(f"s_lshl_b32 s{sTMP + 1}, s{sT1}, 8")
        A(f"s_add_u32 m0, s{sTMP}, s{sTMP + 1}")
        A(f"s_mul_i32 s{sTMP}, s{sXCD}, 448")
        A(f"s_and_b32 s{sTMP}, s{sTMP}, 0xffffff80")
        A(f"s_mul_i32 s{sTMP + 1}, s{sPOS}, {16 * 3584}")
        A(f"s_add_u32 s{sTMP}, s{sTMP}, s{sTMP + 1}")
        A(f"v_lshrrev_b32 {v(vT + 2)}, 2, {v(vLANE)}")
        A(f"v_mul_u32_u24 {v(vT + 2)}, 3584, {v(vT + 2)}")
        A(f"v_and_b32 {v(vT + 3)}, 3, {v(vLANE)}")
        A(f"v_lshl_add_u32 {v(vT + 2)}, {v(vT + 3)}, 7, {v(vT + 2)}")
        A(f"v_add_u32 {v(vT + 2)}, s{sTMP}, {v(vT + 2)}")
        A(f"s_mul_i32 s{sTMP}, s{sL}, 7168")
        A(f"s_mul_i32 s{sTMP + 1}, s{sT1}, 3584")
        A(f"s_add_u32 s{sTMP}, s{sTMP}, s{sTMP + 1}")
        A(f"v_min_u32 {v(vT + 3)}, 27, {v(vLANE)}")
        A(f"v_lshl_add_u32 {v(vT + 3)}, {v(vT + 3)}, 7, s{sTMP}")
        A(f"s_cmp_eq_u32 s{sT1}, 0")
        A(f"s_cselect_b64 {sp(sWSEL)}, {sp(sWG)}, {sp(sWU)}")
        A(f"s_cmp_eq_u32 s{sT0}, 0")
        A(f"s_cselect_b64 {sp(sWSEL)}, {sp(sWSEL)}, {sp(sWD)}")
        A("s_cselect_b64 vcc, -1, 0")
        A(f"v_cndmask_b32 {v(21)}, {v(vT + 3)}, {v(vT + 2)}, vcc")
        wpf = f"global_load_dword v3, v21, {sp(sWSEL)}{' nt' if o.get('ntw', 0) else ''}"
        if o.get("wpf", 2) == 2:
            A(wpf)

        L2E = 1.4426950408889634
        l2e_hi = struct.unpack("<f", struct.pack("<f", L2E))[0]
        l2e_lo = L2E - l2e_hi
        a, b = K, K + 2
        A(f"s_mov_b32 s{sE}, {hex(f2u(l2e_hi))}")
        A(f"s_mov_b32 s{sE + 1}, {hex(f2u(l2e_lo))}")
        A(f"s_waitcnt vmcnt({(1 if o.get('wpf', 2) == 2 else 0) + (0 if ilate else 5) + ntlb}) lgkmcnt(0)")
        self.stamp("par")
        if ilate:
            for l in inits:
                A(l)
        if o.get("wpf", 2) == 6:
            A(wpf)
        A(f"s_lshl_b32 s{sTMP}, s{sDT}, 16")
        A(f"s_and_b32 s{sTMP + 1}, s{sDT}, s{sMASK}")
        A(f"s_cmp_lt_u32 s{sWAVE}, 2")
        A(f"s_cselect_b32 s{sDT}, s{sTMP}, s{sTMP + 1}")
        A(f"v_lshlrev_b32 {v(a)}, 16, {v(vP)}")
        A(f"v_mov_b32 {v(a + 1)}, s{sDT}")
        A(f"v_pk_mul_f32 {v(b, 2)}, {v(a, 2)}, {sp(sE)} op_sel_hi:[1,0]")
        A(f"v_pk_fma_f32 {v(b + 2, 2)}, {v(a, 2)}, {sp(sE)}, {v(b, 2)} op_sel_hi:[1,0,1] neg_lo:[0,0,1] neg_hi:[0,0,1]")
        A(f"v_exp_f32 {v(b)}, {v(b)}")
        A(f"v_exp_f32 {v(b + 1)}, {v(b + 1)}")
        A(f"v_pk_fma_f32 {v(b + 2, 2)}, {sp(sE)}, {v(a, 2)}, {v(b + 2, 2)} op_sel:[1,0,0] op_sel_hi:[1,1,1]")
        A(f"v_mul_f32 {v(b + 2)}, {hex(f2u(0.6931471805599453))}, {v(b + 2)}")
        A(f"v_mul_f32 {v(b + 3)}, {hex(f2u(0.6931471805599453))}, {v(b + 3)}")
        A(f"v_pk_fma_f32 {v(b, 2)}, {v(b, 2)}, {v(b + 2, 2)}, {v(b, 2)}")
        A(f"v_cvt_pk_bf16_f32 {v(a)}, {v(b)}, {v(b + 1)}")
        vdt, va2, vph = K + 6, K + 7, K + 8
        A(f"v_and_b32 {v(vdt)}, s{sMASK}, {v(a)}")
        A(f"v_lshlrev_b32 {v(va2)}, 16, {v(a)}")
        A(f"v_lshlrev_b32 {v(vph)}, 16, {v(vP + 1)}")
        A(f"v_mul_f32 {v(va2)}, {v(va2)}, {v(vdt)}")
        A(f"v_mul_f32 {v(vph)}, {v(vph)}, {v(vdt)}")
        A(f"v_mul_f32 {v(va2)}, {hex(f2u(-l2e_hi))}, {v(va2)}")
        A(f"v_mul_f32 {v(vph)}, 0.15915494, {v(vph)}")
        Wp = {p: K + 10 + 2 * p for p in range(1, 17)}
        Zp = {p: K + 42 + 2 * p for p in range(1, 8)}
        G = [K + 58, K + 60]
        TT = [K + 62, K + 64, K + 66, K + 68]
        RR = [K + 70, K + 72, K + 74, K + 76]
        CV = K + 80
        A(f"v_add_f32 {v(vdt)}, {v(vdt)}, {v(vdt)}")
        A(f"v_lshlrev_b32 {v(G[0])}, 16, {v(vP + 2)}")
        A(f"v_lshlrev_b32 {v(G[0] + 1)}, 16, {v(vP + 3)}")
        A(f"v_mul_f32 {v(G[0])}, {v(G[0])}, {v(vdt)}")
        A(f"v_mul_f32 {v(G[0] + 1)}, {v(G[0] + 1)}, {v(vdt)}")
        for n, (dst, sc) in enumerate(((Wp[1], 1.0), (Wp[16], 16.0), (Zp[1], 256.0))):
            t = TT[n]
            if sc == 1.0:
                A(f"v_exp_f32 {v(t)}, {v(va2)}")
                A(f"v_fract_f32 {v(t + 1)}, {v(vph)}")
            else:
                A(f"v_mul_f32 {v(t)}, {hex(f2u(sc))}, {v(va2)}")
                A(f"v_mul_f32 {v(t + 1)}, {hex(f2u(sc))}, {v(vph)}")
                A(f"v_exp_f32 {v(t)}, {v(t)}")
                A(f"v_fract_f32 {v(t + 1)}, {v(t + 1)}")
            A(f"v_cos_f32 {v(dst)}, {v(t + 1)}")
            A(f"v_sin_f32 {v(dst + 1)}, {v(t + 1)}")
        for n, dst in enumerate((Wp[1], Wp[16], Zp[1])):
            A(f"v_pk_mul_f32 {v(dst, 2)}, {v(dst, 2)}, {v(TT[n], 2)} op_sel_hi:[1,0]")
        jobs = [(1, Wp[1], None, None, 0), (16, Zp[1], None, None, 0), (47, G[0], None, None, 1)]
        wj = []
        for p in range(2, 16):
            hb = 1 << (p.bit_length() - 1)
            x, y = (p // 2, p // 2) if hb == p else (hb, p - hb)
            wj.append((p, Wp[p], Wp[x], Wp[y], 0))
        gj = [(47 + j, G[j & 1], G[(j - 1) & 1], Wp[16], 1) for j in range(1, 16)]
        zrow = {2: 25, 3: 30, 4: 35, 5: 38, 6: 41, 7: 44}
        zj = []
        for p in range(2, 8):
            hb = 1 << (p.bit_length() - 1)
            x, y = (p // 2, p // 2) if hb == p else (hb, p - hb)
            zj.append((zrow[p], Zp[p], Zp[x], Zp[y], 0))
        tj = [(16 + k, None, Zp[1], Wp[2 * k], 0) for k in range(1, 9)]
        for z in (2, 3):
            tj += [(zrow[z] + k, None, Zp[z], Wp[4 * k], 0) for k in range(1, 5)]
        for z in (4, 5, 6, 7):
            tj += [(zrow[z] + k, None, Zp[z], Wp[8 * k], 0) for k in range(1, 3)]
        first = []
        for i in range(max(len(wj), len(gj), len(zj))):
            for q in (wj, gj, zj):
                if i < len(q):
                    first.append(q[i])
        jobs += first + tj
        A(f"v_mov_b32 {v(CV + 15)}, 0x3f80")
        pend = [(0, CV + 15)]
        slot = 0
        nb = 0
        b1_at = o.get("b1_at", 0)
        batch = o.get("batch", 6)

        def do_b1():
            self.stamp("setup")
            A(f"s_waitcnt vmcnt({1 if (o.get('wpf', 2) == 2 and not ilate) or o.get('wpf', 2) == 6 else 0})")
            self.stamp("idr")
            A("s_barrier")
            self.stamp("b1")
            if o.get("wpf", 2) == 1:
                A(wpf)
        if b1_at == 0:
            do_b1()
        for n, (row, dst, x, y, conj) in enumerate(jobs):
            if x is not None:
                if dst is None:
                    dst = RR[n & 3]
                for ins in self.cmul(dst, x, y, TT[n & 3]):
                    A(ins)
            A(f"v_cvt_pk_bf16_f32 {v(CV + slot)}, {v(dst)}, {'-' if conj else ''}{v(dst + 1)}")
            pend.append((row, CV + slot))
            slot = (slot + 1) % 15
            if len(pend) >= batch or n == len(jobs) - 1:
                for row_, reg in pend:
                    A(f"ds_write_addtid_b32 {v(reg)} offset:{row_ * ROWB}")
                pend = []
                nb += 1
                if nb == b1_at:
                    do_b1()
        A("s_waitcnt lgkmcnt(0)")
        self.stamp("kgen1")
        A("s_barrier")
        if o.get("wpf", 2) == 3:
            A(wpf)
        fB, fA0, fA1 = K, K + 32, K + 64
        for s in range(4):
            A(f"ds_read_b128 {v(fB + 4 * s, 4)}, {v(vKB)} offset:{47 * ROWB + 64 * s}")
            A(f"ds_read_b128 {v(fA0 + 4 * s, 4)}, {v(vKA0)} offset:{64 * s}")
            A(f"ds_read_b128 {v(fA1 + 4 * s, 4)}, {v(vKA1)} offset:{64 * s}")
        D0, D1 = vACC, vACC + 4
        for s in range(8):
            s2 = s + 4
            A(f"s_waitcnt lgkmcnt({9 if s2 < 8 else 3 * (7 - s)})")
            c0 = "0" if s == 0 else v(D0, 4)
            c1 = "0" if s == 0 else v(D1, 4)
            A(f"v_mfma_f32_16x16x32_bf16 {v(D0, 4)}, {v(fA0 + 4 * s, 4)}, {v(fB + 4 * s, 4)}, {c0}")
            if s2 < 8:
                A(f"ds_read_b128 {v(fB + 4 * s2, 4)}, {v(vKB)} offset:{47 * ROWB + 64 * s2}")
                A(f"ds_read_b128 {v(fA0 + 4 * s2, 4)}, {v(vKA0)} offset:{64 * s2}")
            A(f"v_mfma_f32_16x16x32_bf16 {v(D1, 4)}, {v(fA1 + 4 * s, 4)}, {v(fB + 4 * s, 4)}, {c1}")
            if s2 < 8:
                A(f"ds_read_b128 {v(fA1 + 4 * s2, 4)}, {v(vKA1)} offset:{64 * s2}")
        E = K + 96
        A(f"s_bitcmp1_b32 s{sWAVE}, 0")
        A(f"v_cmp_eq_u32 vcc, 0, {v(vLANE)}")
        A("s_nop 5")
        A("s_cbranch_scc0 L_exp_lo")
        seq2 = ["aa", "aa", "aa", "ba", "bb", "bb", "cb", "cc"]
        seq3 = ["aa", "aa", "aa", "aa", "aa", "ba", "bb", "bb", "bb", "bb", "cb", "cc", "cc", "cc"]
        ix = {"a": 0, "b": 1, "c": 2}
        for k, s in enumerate(seq3):
            A(f"v_cvt_pk_bf16_f32 {v(E + 8 + k)}, {v(D1 + ix[s[0]])}, {v(D1 + ix[s[1]])}")
        for k, w in enumerate((0, 4, 6, 10)):
            A(f"ds_write_b128 {v(vPW1)}, {v(E + 8 + w, 4)} offset:{16 * k}")
        for k, s in enumerate(seq2):
            A(f"v_cvt_pk_bf16_f32 {v(E + k)}, {v(D0 + ix[s[0]])}, {v(D0 + ix[s[1]])}")
        A(f"ds_write_b128 {v(vPW0)}, {v(E, 4)}")
        A(f"ds_write_b128 {v(vPW0)}, {v(E + 4, 4)} offset:16")
        A("L_exp_done:")
        T = self.tail
        T("L_exp_lo:")
        T(f"v_mov_b32_dpp {v(D1 + 3)}, {v(D1 + 3)} row_ror:1 row_mask:0x1 bank_mask:0xf")
        T(f"v_cvt_pk_bf16_f32 {v(E + 1)}, {v(D0 + 1)}, {v(D0)}")
        T(f"v_cvt_pk_bf16_f32 {v(E + 2)}, {v(D0 + 2)}, {v(D0 + 1)}")
        T(f"v_cvt_pk_bf16_f32 {v(E + 3)}, {v(D0 + 3)}, {v(D0 + 2)}")
        T(f"v_cndmask_b32 {v(E + 8)}, {v(D1 + 3)}, 0, vcc")
        T(f"v_cndmask_b32 {v(E + 9)}, {v(D1)}, {v(D1 + 3)}, vcc")
        T(f"v_cvt_pk_bf16_f32 {v(E)}, {v(D0)}, {v(E + 8)}")
        T(f"v_cvt_pk_bf16_f32 {v(E + 4)}, {v(D1)}, {v(E + 9)}")
        T(f"v_cvt_pk_bf16_f32 {v(E + 5)}, {v(D1)}, {v(D1)}")
        T(f"v_cvt_pk_bf16_f32 {v(E + 6)}, {v(D1 + 1)}, {v(D1)}")
        T(f"v_cvt_pk_bf16_f32 {v(E + 7)}, {v(D1 + 2)}, {v(D1 + 1)}")
        T(f"ds_write_b128 {v(vPW0)}, {v(E, 4)}")
        T(f"ds_write_b128 {v(vPW1)}, {v(E + 4, 4)}")
        T("s_branch L_exp_done")
        A("s_waitcnt lgkmcnt(0)")
        self.stamp("kgen2")
        A("s_barrier")
        if o.get("wpf", 2) == 4:
            A(wpf)

        def rdA(buf, rho, m):
            return [f"ds_read2_b32 {v(buf + 4 * m, 2)}, {v(vAA + m)} offset0:{64 * rho + 6} offset1:{64 * rho + 4}",
                    f"ds_read2_b32 {v(buf + 4 * m + 2, 2)}, {v(vAA + m)} offset0:{64 * rho + 2} offset1:{64 * rho}"]

        def rdB(buf, rho, n):
            return [f"ds_read_b128 {v(buf + 4 * n, 4)}, {v(vBA)} offset:{128 * (3 - rho) + 512 * (7 - n)}"]

        for m in range(8):
            for l in rdA(vA0, 0, m):
                A(l)
        A(f"s_mul_i32 s{sTMP}, s{sL}, {RS}")
        A(f"s_lshl_b32 s{sTMP + 1}, s{sWAVE}, 11")
        A(f"s_add_u32 s{sTMP}, s{sTMP}, s{sTMP + 1}")
        A(f"s_add_u32 s{sTMP}, s{sTMP}, {W_REG + O_X2}")
        A(f"v_lshl_add_u32 {v(vT)}, {v(vLANE)}, 4, s{sTMP}")
        A(f"v_lshlrev_b32 {v(vT + 1)}, {KS}, v0")
        A(f"v_add_u32 {v(vT + 1)}, {W_KEY}, {v(vT + 1)}")
        A(f"s_lshl_b32 s{sTMP}, s{sWAVE}, 2")
        A(f"s_add_u32 s{sTMP}, s{sTMP}, {L_REDK}")
        A(f"v_mov_b32 {v(vT + 3)}, s{sTMP}")
        A("s_waitcnt lgkmcnt(0)")
        self.stamp("apre")
        A("s_barrier")
        self.stamp("b3")
        if o.get("wpf", 2) == 5:
            A(wpf)
        if o.get("prio", 1):
            A("s_setprio 2")

        bufA, bufB = [vA0, vA1], [vB0, vB1]
        for n in range(7, -1, -1):
            for l in rdB(vB0, 0, n):
                A(l)
        started = set()
        for rho in range(4):
            a_, b_ = bufA[rho & 1], bufB[rho & 1]
            order = [(n - 7 + tb, tb, n) for n in range(7, -1, -1) for tb in range(7 - n, 8)]
            if rho == 3:
                order = [(n - 7 + tb, tb, n) for tb in range(8) for n in range(7 - tb, 8)]
            fill = []
            if rho + 1 < 4:
                nb_, na_ = bufB[(rho + 1) & 1], bufA[(rho + 1) & 1]
                for m in range(8):
                    fill += rdB(nb_, rho + 1, 7 - m)
                    fill += rdA(na_, rho + 1, m)
            issued = 0
            seen = set()
            done_at = {}
            for i, (m, tb, n) in enumerate(order):
                done_at[tb] = i
            for i, (m, tb, n) in enumerate(order):
                if rho == 0 and n not in seen:
                    A(f"s_waitcnt lgkmcnt({min(15, n + issued)})")
                    seen.add(n)
                elif i == 0:
                    A("s_waitcnt lgkmcnt(0)")
                acc = v(vACC + 4 * tb, 4)
                c = acc if tb in started else "0"
                started.add(tb)
                A(f"v_mfma_f32_16x16x32_bf16 {acc}, {v(a_ + 4 * m, 4)}, {v(b_ + 4 * n, 4)}, {c}")
                if i >= 1 and fill:
                    A(fill.pop(0))
                    issued += 1
                if rho == 3:
                    for t in range(7):
                        if done_at[t] + 8 == i or (i == len(order) - 1 and done_at[t] + 8 > i):
                            A(f"ds_write_b128 {v(vEW)}, {v(vACC + 4 * t, 4)} offset:{t * TBS}")
            assert not fill
        A(f"ds_write_b128 {v(vEW)}, {v(vACC + 28, 4)} offset:{7 * TBS}")
        self.stamp("conv")
        A("s_waitcnt lgkmcnt(0)")
        A("s_barrier")
        for i in range(2):
            for s in range(4):
                A(f"ds_read_b128 {v(K + 16 * i + 4 * s, 4)}, {v(vER)} offset:{s * 8 * TBS + i * TBS}")
        for i in range(2):
            A(f"s_waitcnt lgkmcnt({4 * (1 - i)})")
            b0 = K + 16 * i
            for c in range(2):
                for h in range(2):
                    A(f"v_pk_add_f32 {v(b0 + 8 * c + 2 * h, 2)}, {v(b0 + 8 * c + 2 * h, 2)}, {v(b0 + 8 * c + 4 + 2 * h, 2)}")
            for c in range(2):
                for h in range(2):
                    A(f"v_cvt_pk_bf16_f32 {v(K + 32 + 4 * i + 2 * c + h)}, {v(b0 + 8 * c + 2 * h)}, {v(b0 + 8 * c + 2 * h + 1)}")
            A(f"global_store_dwordx4 {v(vT)}, {v(K + 32 + 4 * i, 4)}, {sp(sWS)} offset:{1024 * i} sc1")
        self.stamp("x2st")
        A("s_waitcnt vmcnt(0)")
        self.stamp("x2dr")
        A("s_barrier")
        A(f"s_cmp_eq_u32 s{sWAVE}, 0")
        A("s_cbranch_scc0 L_cfin")
        for q in range(1, 4):
            A(f"v_add_u32 {v(vT + 8 + q)}, {(64 * q) << KS}, {v(vT + 1)}")
        A("s_barrier")
        self.key_calc(K, vRA, vLANE)
        A("s_mov_b64 exec, 1")
        A(f"global_store_dword {v(22)}, {v(K + 8)}, {sp(sWS)} sc1")
        A("s_mov_b64 exec, -1")
        self.stamp("key")
        A("s_waitcnt vmcnt(0)")
        self.stamp("keydr")
        k2 = vT + 4
        kl = [f"global_load_dword {v(K + q)}, {v(vT + 8 + q) if q else v(vT + 1)}, {sp(sWS)} sc1" for q in range(4)]
        for l in kl:
            A(l)
        A("s_waitcnt vmcnt(0)")
        self.poll("key", kl, [f"v_max3_u32 {v(k2)}, {v(K)}, {v(K + 1)}, {v(K + 2)}",
                              f"v_max_u32 {v(k2)}, {v(k2)}, {v(K + 3)}",
                              f"v_cmp_eq_u32 vcc, -1, {v(k2)}"])
        self.stamp("keyld")
        A(f"v_max_u32_dpp {v(k2)}, {v(k2)}, {v(k2)} quad_perm:[1,0,3,2] row_mask:0xf bank_mask:0xf")
        A(f"v_max_u32_dpp {v(k2)}, {v(k2)}, {v(k2)} quad_perm:[2,3,0,1] row_mask:0xf bank_mask:0xf")
        A(f"v_max_u32_dpp {v(k2)}, {v(k2)}, {v(k2)} row_half_mirror row_mask:0xf bank_mask:0xf")
        A(f"v_max_u32_dpp {v(k2)}, {v(k2)}, {v(k2)} row_mirror row_mask:0xf bank_mask:0xf")
        A(f"v_max_u32_dpp {v(k2)}, {v(k2)}, {v(k2)} row_bcast:15 row_mask:0xa bank_mask:0xf")
        A(f"v_max_u32_dpp {v(k2)}, {v(k2)}, {v(k2)} row_bcast:31 row_mask:0xc bank_mask:0xf")
        A("s_mov_b32 exec_lo, 0")
        A("s_brev_b32 exec_hi, 1")
        A(f"ds_write_b32 {v(vT + 3)}, {v(k2)}")
        A("s_waitcnt lgkmcnt(0)")
        A("s_barrier")
        A("L_cfin:")
        self.finish("C")

    def text(self):
        lines = self.build()
        src = open("sequential_preLN__ssm_conv_s4d__moe_arch_mod__prompt.s.ref").read()
        head = [l for l in src.split("\n") if l.startswith(";") and "@launch" not in l]
        head = head[:head.index("; Override launch geometry by editing the next line (default: block=256,")]
        out = head + [f"; @launch grid=(256,1,1) block=(512,1,1) lds={LDS_BYTES}",
                      '.amdgcn_target "amdgcn-amd-amdhsa--gfx950"', ".text", f".globl {KNAME}", ".p2align 8",
                      f".type {KNAME},@function"]
        out += [l if l.endswith(":") else "    " + l for l in lines]
        out += [".section .rodata,\"a\"", ".p2align 6", f".amdhsa_kernel {KNAME}",
                "  .amdhsa_next_free_vgpr 224", "  .amdhsa_next_free_sgpr 102", "  .amdhsa_accum_offset 224",
                "  .amdhsa_group_segment_fixed_size 0", "  .amdhsa_kernarg_size 120", "  .amdhsa_user_sgpr_count 2",
                "  .amdhsa_user_sgpr_kernarg_segment_ptr 1", "  .amdhsa_system_sgpr_workgroup_id_x 1",
                ".end_amdhsa_kernel", ""]
        return "\n".join(out)


if __name__ == "__main__":
    out = sys.argv[1]
    opts = {}
    stamp = False
    for a in sys.argv[2:]:
        if a == "stamp":
            stamp = True
        else:
            k, val = a.split("=")
            opts[k] = val if k == 'pr' else int(val)
    g = Gen(stamp, opts)
    open(out, "w").write(g.text())
    if stamp:
        open(out + ".names", "w").write(" ".join(g.allnames["R"]) + "\n" + " ".join(g.allnames["C"]))
    print(g.info, "lds", LDS_BYTES)
```

```python
import sys
import struct
from asmlib import Asm, align8

KNAME = "sequential_preLN__ssm_conv_s4d__moe_arch_mod__prompt_kernel"


def f2u(x):
    return struct.unpack("<I", struct.pack("<f", x))[0]


W_FLAG = 0x1000 + (int(__import__('os').environ.get('WOFF', '0')) << 20)
W_KEY = 0x9000 + (int(__import__('os').environ.get('WOFF', '0')) << 20)
W_FLAG2 = 0x11000 + (int(__import__('os').environ.get('WOFF', '0')) << 20)
import os
WOFF = int(os.environ.get('WOFF', '0')) << 20
W_REG = 0x38000 + WOFF
RS = 20608
O_X1, O_X2, O_SLOT, O_PART = 0, 8192, 16384, 18432
W_STAMP = 0x800000
ROWB = 544
TABC = 63 * ROWB
L_TAB = 0
L_P = 68608
PC = 8256
L_U = L_P + 2 * PC
UC = 4608
L_RED1 = (L_U + 2 * UC + 255) // 256 * 256
L_RED2 = L_RED1 + 256
L_SUMW = L_RED2 + 384
L_REDK = L_SUMW + 16
L_REDF = L_REDK + 16
LDS_BYTES = L_REDF + 256
L_EPI = 0
TBS = 1152
sX, sLA, sAI, sCR, sCI, sLDT, sD = 4, 6, 8, 10, 12, 14, 16
sWR, sWG, sWU, sWD, sOUT, sDBG, sWS = 20, 22, 24, 26, 28, 30, 32
sL, sPOS, sXCD, sWAVE, sG, sDT, sT0, sT1, sSPIN, sF = 34, 35, 36, 37, 38, 39, 40, 41, 42, 43
sODD = 44
sSELLO, sSELHI, sONES, sMASK = 46, 47, 48, 49
sWSEL = 50
sBEST, sWIN, sRP0, sRP1 = 52, 53, 54, 55
sH = 56
sE = 64
sTMP = 66
sOWN = 71
sSTAMP = 72


def sp(r):
    return f"s[{r}:{r + 1}]"


def v(r, n=1):
    return f"v{r}" if n == 1 else f"v[{r}:{r + n - 1}]"


class Gen:
    def __init__(self, stamp=False, opts=None):
        self.A = Asm()
        self.tail = Asm()
        self.stamp_on = stamp
        self.nstamp = 0
        self.names = []
        self.o = dict(opts or {})
        self.only = None
        self.role = "R"
        if "pr" in self.o:
            self.only = tuple(self.o["pr"].split("."))
            self.stamp_on = True
            self.o["probe"] = 1 if self.only[0] == "R" else 101

    def stamp(self, name):
        if not self.stamp_on:
            return
        if self.only and name != "start" and (self.role, name) != self.only:
            return
        k = self.nstamp
        self.nstamp += 1
        self.names.append(name)
        assert sSTAMP + k < 100
        self.A(f"s_memrealtime s[100:101]")
        self.A("s_waitcnt lgkmcnt(0)")
        self.A(f"s_mov_b32 s{sSTAMP + k}, s100")

    def poll(self, name, loads, check, base_exec="-1"):
        A = self.A
        for c in check:
            A(c)
        A(f"s_cbranch_vccnz L_retry_{name}")
        A(f"L_ok_{name}:")
        T = self.tail
        T(f"L_retry_{name}:")
        T(f"s_mov_b32 s{sSPIN}, 0x40000")
        T(f"L_again_{name}:")
        T(f"s_sub_u32 s{sSPIN}, s{sSPIN}, 1")
        T(f"s_cbranch_scc1 L_ok_{name}")
        T("s_mov_b64 exec, vcc")
        for l in loads:
            T(l)
        T("s_waitcnt vmcnt(0)")
        for c in check:
            T(c)
        T(f"s_mov_b64 exec, {base_exec}")
        T(f"s_cbranch_vccnz L_again_{name}")
        T(f"s_branch L_ok_{name}")

    def cmul(self, d, x, y, t):
        return [f"v_pk_mul_f32 {v(t, 2)}, {v(x, 2)}, {v(y, 2)} op_sel:[0,0] op_sel_hi:[0,1]",
                f"v_pk_fma_f32 {v(d, 2)}, {v(x, 2)}, {v(y, 2)}, {v(t, 2)} op_sel:[1,1,0] op_sel_hi:[1,0,1] neg_lo:[1,0,0]"]

    def reduce8(self, V, t):
        A = self.A
        for i in range(4):
            A(f"v_add_f32_dpp {v(V[i])}, {v(V[i])}, {v(V[i])} row_ror:8 row_mask:0xf bank_mask:0x3")
        for i in range(4):
            A(f"v_add_f32_dpp {v(V[i])}, {v(V[i + 4])}, {v(V[i + 4])} row_ror:8 row_mask:0xf bank_mask:0xc")
        for i in range(2):
            A(f"v_add_f32_dpp {v(V[i])}, {v(V[i])}, {v(V[i])} row_shl:4 row_mask:0xf bank_mask:0x5")
        for i in range(2):
            A(f"v_add_f32_dpp {v(V[i])}, {v(V[i + 2])}, {v(V[i + 2])} row_shr:4 row_mask:0xf bank_mask:0xa")
        A(f"v_permlane32_swap_b32 {v(V[0])}, {v(V[1])}")
        A(f"v_add_f32 {v(V[0])}, {v(V[0])}, {v(V[1])}")
        A(f"v_add_f32_dpp {v(V[0])}, {v(V[0])}, {v(V[0])} quad_perm:[2,3,0,1] row_mask:0xf bank_mask:0xf")
        A(f"v_mov_b32 {v(t)}, {v(V[0])}")
        A(f"v_permlane16_swap_b32 {v(V[0])}, {v(t)}")
        A(f"v_add_f32 {v(V[0])}, {v(V[0])}, {v(t)}")

    def row_stats(self, S, Q, negm, rinv, t):
        A = self.A
        A(f"v_pk_add_f32 {v(S, 2)}, {v(S, 2)}, {v(S + 2, 2)}")
        A(f"v_pk_add_f32 {v(Q, 2)}, {v(Q, 2)}, {v(Q + 2, 2)}")
        A(f"v_add_f32 {v(S)}, {v(S)}, {v(S + 1)}")
        A(f"v_add_f32 {v(Q)}, {v(Q)}, {v(Q + 1)}")
        A(f"v_mul_f32 {v(S)}, {hex(f2u(1 / 512))}, {v(S)}")
        A(f"v_mul_f32 {v(Q)}, {hex(f2u(1 / 512))}, {v(Q)}")
        A(f"v_fma_f32 {v(Q)}, -{v(S)}, {v(S)}, {v(Q)}")
        A(f"v_max_f32 {v(Q)}, 0, {v(Q)}")
        A(f"v_cvt_pk_bf16_f32 {v(t)}, -{v(S)}, {v(Q)}")
        A(f"v_and_b32 {v(Q)}, s{sMASK}, {v(t)}")
        A(f"v_add_f32 {v(Q)}, {hex(f2u(1e-5))}, {v(Q)}")
        A(f"v_cvt_pk_bf16_f32 {v(Q)}, {v(Q)}, {v(Q)}")
        A(f"v_and_b32 {v(Q)}, s{sMASK}, {v(Q)}")
        A(f"v_sqrt_f32 {v(Q)}, {v(Q)}")
        A(f"v_lshlrev_b32 {v(negm)}, 16, {v(t)}")
        A(f"v_cvt_pk_bf16_f32 {v(Q)}, {v(Q)}, {v(Q)}")
        A(f"v_and_b32 {v(Q)}, s{sMASK}, {v(Q)}")
        A(f"v_rcp_f32 {v(rinv)}, {v(Q)}")

    def spread(self, val, dst, t):
        A = self.A
        for r in range(4):
            A(f"v_mov_b32_dpp {v(t + r)}, {v(val)} row_newbcast:{4 + r} row_mask:0xf bank_mask:0xf")
        for r in range(4):
            A(f"v_cndmask_b32_dpp {v(dst + r)}, {v(val)}, {v(t + r)}, vcc row_newbcast:{r} row_mask:0xf bank_mask:0xf")

    def key_calc(self, K, vRA, vLANE):
        A = self.A
        A(f"v_mov_b32 {v(K + 14)}, {L_SUMW}")
        A(f"ds_read_b128 {v(K, 4)}, {v(vRA)} offset:{L_RED2 - L_RED1}")
        A(f"ds_read_b128 {v(K + 4, 4)}, {v(vRA)} offset:{L_RED2 - L_RED1 + 128}")
        A(f"ds_read_b128 {v(K + 8, 4)}, {v(vRA)} offset:{L_RED2 - L_RED1 + 256}")
        A(f"ds_read_b32 {v(K + 15)}, {v(K + 14)}")
        A(f"s_lshl_b32 s{sTMP}, s{sL}, 3")
        A(f"s_sub_u32 s{sTMP}, 2047, s{sTMP}")
        A(f"v_and_b32 {v(K + 14)}, 7, {v(vLANE)}")
        A(f"v_sub_u32 {v(K + 14)}, s{sTMP}, {v(K + 14)}")
        A("s_waitcnt lgkmcnt(2)")
        self.row_stats(K, K + 4, K + 12, K + 13, K + 28)
        A("s_waitcnt lgkmcnt(0)")
        A(f"v_pk_add_f32 {v(K + 8, 2)}, {v(K + 8, 2)}, {v(K + 10, 2)}")
        A(f"v_add_f32 {v(K + 8)}, {v(K + 8)}, {v(K + 9)}")
        A(f"v_fmac_f32 {v(K + 8)}, {v(K + 12)}, {v(K + 15)}")
        A(f"v_mul_f32 {v(K + 8)}, {v(K + 8)}, {v(K + 13)}")
        A(f"v_ashrrev_i32 {v(K + 9)}, 31, {v(K + 8)}")
        A(f"v_or_b32 {v(K + 9)}, 0x80000000, {v(K + 9)}")
        A(f"v_xor_b32 {v(K + 8)}, {v(K + 8)}, {v(K + 9)}")
        A(f"v_and_b32 {v(K + 8)}, 0xfffff800, {v(K + 8)}")
        A(f"v_or_b32 {v(K + 8)}, {v(K + 8)}, {v(K + 14)}")
        A(f"v_min_u32 {v(K + 8)}, -2, {v(K + 8)}")
        A(f"v_max_u32_dpp {v(K + 8)}, {v(K + 8)}, {v(K + 8)} quad_perm:[1,0,3,2] row_mask:0xf bank_mask:0xf")
        A(f"v_max_u32_dpp {v(K + 8)}, {v(K + 8)}, {v(K + 8)} quad_perm:[2,3,0,1] row_mask:0xf bank_mask:0xf")
        A(f"v_max_u32_dpp {v(K + 8)}, {v(K + 8)}, {v(K + 8)} row_half_mirror row_mask:0xf bank_mask:0xf")

    def finish(self, role):
        A = self.A
        o = self.o
        if self.stamp_on:
            self.stamp("end")
            self.allnames[role] = self.names
        if self.stamp_on and "probe" in o:
            k = o["probe"]
            if k == 98 and role == "R":
                A(f"s_getreg_b32 s{sTMP}, hwreg(HW_REG_XCC_ID, 0, 4)")
                A(f"s_sub_u32 s{sTMP}, s{sTMP}, s2")
                A(f"s_and_b32 s{sTMP}, s{sTMP}, 7")
                A(f"s_mul_i32 s{sTMP}, s{sTMP}, 1000")
                A(f"s_add_u32 s{sTMP}, s{sTMP}, 2000")
            elif k == 99 and role == "R":
                A("s_memtime s[96:97]")
                A("s_waitcnt lgkmcnt(0)")
                A("s_sub_u32 s96, s96, s98")
                A(f"s_sub_u32 s97, s{sSTAMP + self.nstamp - 1}, s{sSTAMP}")
                A("s_mov_b64 exec, -1")
                A("v_cvt_f32_u32 v2, s96")
                A("v_cvt_f32_u32 v3, s97")
                A("v_rcp_f32 v3, v3")
                A("s_nop 1")
                A("v_mul_f32 v2, v2, v3")
                A("v_mul_f32 v2, 0x43c80000, v2")
                A("v_cvt_u32_f32 v2, v2")
                A("s_nop 1")
                A(f"v_readfirstlane_b32 s{sTMP}, v2")
                A(f"s_add_u32 s{sTMP}, s{sTMP}, 2000")
            elif k < 0 and role == "R":
                A(f"s_mov_b32 s{sTMP}, {-k}")
            elif k >= 0 and (k >= 100) == (role == "C"):
                A(f"s_sub_u32 s{sTMP}, s{sSTAMP + k % 100}, s{sSTAMP}")
                A(f"s_cmp_lt_u32 s{sTMP}, 3000")
                A(f"s_cselect_b32 s{sTMP}, s{sTMP}, 0")
                A(f"s_mul_i32 s{sTMP}, s{sTMP}, 20")
                A(f"s_add_u32 s{sTMP}, s{sTMP}, 2000")
                if role == "C":
                    A(f"s_cmp_eq_u32 s{sWAVE}, 0")
                    A(f"s_cselect_b32 s{sTMP}, s{sTMP}, 0")
            else:
                A(f"s_mov_b32 s{sTMP}, 0")
            A(f"L_spin{role}:")
            A("s_memrealtime s[100:101]")
            A("s_waitcnt lgkmcnt(0)")
            A(f"s_sub_u32 s100, s100, s{sSTAMP}")
            A(f"s_cmp_lt_u32 s100, s{sTMP}")
            A(f"s_cbranch_scc1 L_spin{role}")
        elif self.stamp_on:
            A("s_mov_b64 exec, 1")
            A(f"s_lshl_b32 s{sTMP}, s2, 3")
            A(f"s_add_u32 s{sTMP}, s{sTMP}, s{sWAVE}")
            if role == "C":
                A(f"s_add_u32 s{sTMP}, s{sTMP}, 4")
            A(f"s_lshl_b32 s{sTMP}, s{sTMP}, 7")
            A(f"s_add_u32 s{sTMP}, s{sTMP}, {W_STAMP}")
            A(f"v_mov_b32 v1, s{sTMP}")
            for k in range(self.nstamp):
                A(f"v_mov_b32 v2, s{sSTAMP + k}")
                A(f"global_store_dword v1, v2, {sp(sWS)} offset:{4 * k}")
        A("s_endpgm")

    def build(self):
        A = self.A
        self.allnames = {}
        A(f"{KNAME}:")
        A("s_cmp_ge_u32 s2, 256")
        A("s_cbranch_scc1 L_end")
        self.stamp("start")
        if self.o.get("probe", 0) == 99:
            A("s_memtime s[98:99]")
        if self.o.get("codepf", 1):
            A(f"s_getpc_b64 {sp(sE)}")
            A("L_pc:")
            A("v_lshlrev_b32 v2, 5, v0")
            A(f"v_min_u32 v2, L_codeend-L_pc-4, v2")
            A(f"global_load_dword v3, v2, {sp(sE)}")
        A("s_load_dwordx16 s[4:19], s[0:1], 0")
        A("s_load_dwordx8 s[20:27], s[0:1], 64")
        A("s_load_dwordx4 s[28:31], s[0:1], 96")
        A("s_load_dwordx2 s[32:33], s[0:1], 112")
        A("v_lshrrev_b32 v4, 6, v0")
        A(f"s_and_b32 s{sXCD}, s2, 7")
        A(f"v_readfirstlane_b32 s{sWAVE}, v4")
        A(f"s_lshr_b32 s{sPOS}, s2, 3")
        A(f"s_lshl_b32 s{sL}, s{sXCD}, 5")
        A(f"s_add_u32 s{sL}, s{sL}, s{sPOS}")
        A("v_and_b32 v1, 63, v0")
        A(f"s_mov_b32 s{sMASK}, 0xffff0000")
        pre = self.o.get("pre", 0)
        if pre:
            A("s_waitcnt lgkmcnt(0)")
            n = pre % 10
            kind = pre // 10
            A(f"s_mul_i32 s{sT0}, s{sL}, {n * 4096 + 128}")
            A(f"s_add_u32 s{sT0}, s{sT0}, {32 << 20}")
            A("v_and_b32 v5, 0xff, v0")
            A(f"v_lshl_add_u32 v5, v5, 4, s{sT0}")
            A(f"s_cmp_ge_u32 s{sWAVE}, 4")
            A("s_cbranch_scc1 L_pre")
            if kind in (2, 3):
                A("s_mov_b64 exec, 1")
                A(f"global_load_dword v8, v5, {sp(sWS)}")
                A("s_mov_b64 exec, -1")
                A("s_waitcnt vmcnt(0)")
                if kind == 3:
                    self.nstamp = 0
                    self.names = []
                    self.stamp("start")
            for k in range(n):
                if kind == 1:
                    A(f"global_load_dwordx4 v[8:11], v5, {sp(sWS)}")
                elif kind == 6:
                    if k == 0:
                        A(f"s_lshl_b32 s{sT0}, s{sL}, 7")
                        A(f"v_mov_b32 v6, s{sT0}")
                        A("s_mov_b64 exec, 1")
                    A(f"global_load_dword v{8 + k}, v6, {sp((sX, sLA, sAI, sCR, sCI, sWG, sWU, sWD, sOUT)[k])}")
                    if k == n - 1:
                        A("s_mov_b64 exec, -1")
                elif kind == 7:
                    if k == 0:
                        A(f"v_lshlrev_b32 v6, 3, v1")
                    A(f"global_load_dwordx2 v[{8 + 2 * k}:{9 + 2 * k}], v6, {sp((sD, sWR)[k])}")
                elif kind == 5:
                    A(f"global_load_dwordx4 v[8:11], v5, {sp(sWS)} nt")
                elif kind == 4:
                    A(f"global_store_dwordx4 v5, v[8:11], {sp(sWS)}")
                else:
                    A(f"global_store_dwordx4 v5, v[8:11], {sp(sWS)} sc1")
                A("v_add_u32 v5, 4096, v5")
            A("s_waitcnt vmcnt(0)")
            self.stamp("pre")
            A("L_pre:")
            A("s_barrier")
        A(f"s_cmp_ge_u32 s{sWAVE}, 4")
        A("s_cbranch_scc1 L_chan")
        self.rows()
        self.names = self.names[:1]
        self.nstamp = min(self.nstamp, 1)
        A(".p2align 6")
        self.role = "C"
        self.chans()
        A("L_end:")
        A("s_endpgm")
        for l in self.tail.L:
            A(l)
        A("L_codeend:")
        lines, nops = A.padded()
        lines, nbytes, promoted, missed = align8(lines)
        self.info = dict(nops=nops, bytes=nbytes, promoted=promoted, missed=missed, lines=len(lines))
        return lines

    def rows(self):
        A = self.A
        o = self.o
        vLANE = 1
        vX, vU, vD, vWR = 212, 10, 18, 20
        vREG, vRD, vAUX = 22, 23, 24
        vKEY, vSW, vRA, vFL, vUW = 26, 27, 28, 29, 30
        vT = 32
        vWG, vWD = 40, 72
        vY = 88
        vONE = 96
        K = 100
        L2E = 1.4426950408889634
        A(f"v_lshrrev_b32 {v(vT)}, 1, v0")
        A(f"v_and_b32 {v(vT + 1)}, 1, v0")
        A(f"v_lshlrev_b32 {v(vT + 2)}, 3, {v(vT)}")
        A(f"s_lshl_b32 s{sT0}, s{sL}, 13")
        A(f"v_lshl_add_u32 {v(vRD)}, {v(vT + 1)}, 12, {v(vT + 2)}")
        A(f"v_add_u32 {v(vRD)}, s{sT0}, {v(vRD)}")
        A(f"s_mul_i32 s{sOWN}, s{sL}, {RS}")
        A(f"s_add_u32 s{sOWN}, s{sOWN}, {W_REG}")
        A(f"s_add_u32 s{sT0}, s{sOWN}, 4096")
        A(f"v_lshl_add_u32 {v(vREG)}, v0, 4, s{sT0}")
        A(f"v_lshlrev_b32 {v(vT + 3)}, 4, {v(vLANE)}")
        nt = ' nt' if o.get('ntx', 1) else ''
        A("s_waitcnt lgkmcnt(0)")
        self.stamp("karg")
        for r in range(4):
            A(f"global_load_dwordx2 {v(vX + 2 * r, 2)}, {v(vRD)}, {sp(sX)} offset:{1024 * r}{nt}")
        A(f"s_load_dword s{sG}, {sp(sWS)}, 0")
        A(f"global_load_dwordx2 {v(vD, 2)}, {v(vT + 2)}, {sp(sD)}")
        A(f"global_load_dwordx2 {v(vWR, 2)}, {v(vT + 2)}, {sp(sWR)}")
        A(f"global_load_dwordx4 {v(vONE, 4)}, {v(vT + 3)}, {sp(sWR)}")
        A(f"s_mov_b32 s{sODD}, 0xaaaaaaaa")
        A(f"s_mov_b32 s{sODD + 1}, 0xaaaaaaaa")
        A(f"s_mov_b32 s{sSELLO}, 0x3f80")
        A(f"s_mov_b32 s{sSELHI}, 0x3f800000")
        A(f"s_mov_b32 s{sONES}, 0x3f803f80")
        A(f"s_and_b32 s{sTMP}, s{sL}, 1")
        A(f"s_lshl_b32 s{sTMP}, s{sTMP}, 12")
        A(f"s_lshr_b32 s{sTMP + 1}, s{sL}, 1")
        A(f"s_lshl_b32 s{sTMP + 1}, s{sTMP + 1}, 5")
        A(f"s_add_u32 s{sTMP}, s{sTMP}, s{sTMP + 1}")
        A(f"s_add_u32 s{sTMP}, s{sTMP}, {W_REG + O_X1}")
        A(f"v_mul_u32_u24 {v(vAUX)}, {RS}, {v(vT)}")
        A(f"v_lshl_add_u32 {v(vAUX)}, {v(vT + 1)}, 4, {v(vAUX)}")
        A(f"v_add_u32 {v(vAUX)}, s{sTMP}, {v(vAUX)}")
        A(f"v_add_u32 {v(vAUX + 1)}, {128 * RS}, {v(vAUX)}")
        FS = o.get("fs", 7)
        KS = o.get("ks", 5)
        A(f"v_lshlrev_b32 {v(vFL)}, {FS}, {v(vT)}")
        A(f"v_add_u32 {v(vFL)}, {W_FLAG}, {v(vFL)}")
        A(f"v_add_u32 {v(vFL + 2)}, {128 << FS}, {v(vFL)}")
        A(f"s_lshl_b32 s{sT0}, s{sL}, {FS}")
        A(f"s_add_u32 s{sT0}, s{sT0}, {W_FLAG}")
        A(f"v_lshl_add_u32 {v(vKEY)}, {v(vLANE)}, 4, s{sT0}")
        A(f"v_lshlrev_b32 {v(vSW)}, 6, {v(vT + 1)}")
        A(f"v_and_b32 {v(vT + 3)}, 4, {v(vLANE)}")
        A(f"v_lshl_add_u32 {v(vSW)}, {v(vT + 3)}, 3, {v(vSW)}")
        A(f"v_and_b32 {v(vT + 3)}, 8, {v(vLANE)}")
        A(f"v_lshl_add_u32 {v(vSW)}, {v(vT + 3)}, 4, {v(vSW)}")
        A(f"v_lshrrev_b32 {v(vT + 3)}, 5, {v(vLANE)}")
        A(f"v_lshl_add_u32 {v(vSW)}, {v(vT + 3)}, 4, {v(vSW)}")
        A(f"s_lshl_b32 s{sTMP}, s{sWAVE}, 2")
        A(f"s_add_u32 s{sTMP}, s{sTMP}, {L_RED1}")
        A(f"v_add_u32 {v(vSW)}, s{sTMP}, {v(vSW)}")
        A(f"v_and_b32 {v(vT + 3)}, 7, {v(vLANE)}")
        A(f"v_lshlrev_b32 {v(vRA)}, 4, {v(vT + 3)}")
        A(f"v_add_u32 {v(vRA)}, {L_RED1}, {v(vRA)}")
        A(f"v_lshlrev_b32 {v(vUW)}, 3, v0")
        A(f"v_mov_b32 {v(K)}, 0")
        A(f"v_mov_b32 {v(K + 1)}, 0")
        A(f"v_min_u32 {v(vT + 3)}, 472, {v(vUW)}")
        A(f"v_add_u32 {v(vT + 3)}, {L_U}, {v(vT + 3)}")
        A(f"v_min_u32 {v(vT + 4)}, 56, {v(vUW)}")
        A(f"v_add_u32 {v(vT + 4)}, {L_P}, {v(vT + 4)}")
        A(f"ds_write2st64_b64 {v(vT + 3)}, {v(K, 2)}, {v(K, 2)} offset0:0 offset1:9")
        A(f"ds_write_b64 {v(vT + 4)}, {v(K, 2)}")
        A(f"ds_write_b64 {v(vT + 4)}, {v(K, 2)} offset:{PC}")
        A(f"v_add_u32 {v(vUW)}, {L_U + 480}, {v(vUW)}")

        V = [K + i for i in range(8)]
        A("s_waitcnt vmcnt(3)")
        self.stamp("x")
        for r in range(4):
            A(f"v_dot2_f32_bf16 {v(V[r])}, {v(vX + 2 * r)}, s{sONES}, 0")
        for r in range(4):
            A(f"v_dot2_f32_bf16 {v(V[4 + r])}, {v(vX + 2 * r)}, {v(vX + 2 * r)}, 0")
        for r in range(4):
            A(f"v_dot2_f32_bf16 {v(V[r])}, {v(vX + 2 * r + 1)}, s{sONES}, {v(V[r])}")
        for r in range(4):
            A(f"v_dot2_f32_bf16 {v(V[4 + r])}, {v(vX + 2 * r + 1)}, {v(vX + 2 * r + 1)}, {v(V[4 + r])}")
        self.reduce8(V, K + 8)
        A(f"ds_write_b32 {v(vSW)}, {v(V[0])}")
        A("s_waitcnt lgkmcnt(0)")
        A("s_barrier")
        self.stamp("b1")
        A(f"ds_read_b128 {v(K, 4)}, {v(vRA)}")
        A(f"ds_read_b128 {v(K + 4, 4)}, {v(vRA)} offset:128")
        A(f"s_add_u32 s{sG}, s{sG}, 0x9e3779b9")
        fw = o.get("fw", 1)
        for k in range(4 if fw else 1):
            A(f"v_mov_b32 {v(K + 28 + k)}, s{sG}")
        A(f"s_cmp_eq_u32 s{sWAVE}, 0")
        if fw:
            A(f"s_cselect_b64 exec, {(1 << ((1 << FS) // 16)) - 1}, 0")
            A(f"global_store_dwordx4 {v(vKEY)}, {v(K + 28, 4)}, {sp(sWS)} sc1")
        else:
            A("s_cselect_b64 exec, 1, 0")
            A(f"global_store_dword {v(vKEY)}, {v(K + 28)}, {sp(sWS)} sc1")
        A("s_mov_b64 exec, -1")
        A(f"s_mov_b64 vcc, {sp(sODD)}")
        A("s_waitcnt lgkmcnt(0)")
        vNM, vRI = K + 16, K + 20
        self.row_stats(K, K + 4, K + 10, K + 11, K + 12)
        self.spread(K + 10, vNM, K + 24)
        Dd = K + 32
        for c in range(4):
            for r in range(4):
                A(f"v_dot2_f32_bf16 {v(Dd + 4 * c + r)}, {v(vX + 2 * r + (c >> 1))}, s{sSELHI if c & 1 else sSELLO}, {v(vNM + r)}")
        self.spread(K + 11, vRI, K + 24)
        Pk = K + 48
        for half in range(2):
            ks = range(4 * half, 4 * half + 4)
            for k in ks:
                A(f"v_cvt_pk_bf16_f32 {v(Pk + k)}, {v(Dd + 2 * k)}, {v(Dd + 2 * k + 1)}")
            for k in ks:
                A(f"v_lshlrev_b32 {v(Dd + 2 * k)}, 16, {v(Pk + k)}")
                A(f"v_and_b32 {v(Dd + 2 * k + 1)}, s{sMASK}, {v(Pk + k)}")
            for k in ks:
                A(f"v_pk_mul_f32 {v(Dd + 2 * k, 2)}, {v(Dd + 2 * k, 2)}, {v(vRI + 2 * (k & 1), 2)}")
            for k in ks:
                A(f"v_cvt_pk_bf16_f32 {v(vU + k)}, {v(Dd + 2 * k)}, {v(Dd + 2 * k + 1)}")
            A(f"global_store_dwordx4 {v(vREG)}, {v(vU + 4 * half, 4)}, {sp(sWS)} offset:{-4096 + 4096 * half} sc1")
        self.stamp("x1st")
        fl = [f"global_load_dword {v(vT + 4)}, {v(vFL)}, {sp(sWS)} sc1",
              f"global_load_dword {v(vT + 5)}, {v(vFL + 2)}, {sp(sWS)} sc1"]
        flchk = [f"v_xor_b32 {v(vT + 6)}, s{sG}, {v(vT + 4)}",
                 f"v_xor_b32 {v(vT + 7)}, s{sG}, {v(vT + 5)}",
                 f"v_or_b32 {v(vT + 6)}, {v(vT + 6)}, {v(vT + 7)}",
                 f"v_cmp_ne_u32 vcc, 0, {v(vT + 6)}"]
        flmode = o.get("flmode", 1)
        if flmode == 1:
            A("s_waitcnt vmcnt(0)")
        if flmode < 2:
            for l in fl:
                A(l)
        A("s_barrier")
        if flmode == 2:
            for l in fl:
                A(l)
        A("s_waitcnt vmcnt(0)")
        self.stamp("x1dr")
        self.poll("flag", fl, flchk)
        xl = [f"global_load_dwordx4 {v(vY, 4)}, {v(vAUX)}, {sp(sWS)} sc1",
              f"global_load_dwordx4 {v(vY + 4, 4)}, {v(vAUX + 1)}, {sp(sWS)} sc1"]
        for l in xl:
            A(l)
        self.stamp("flag")
        A(f"s_mul_i32 s{sF}, s{sXCD}, 14")
        A(f"s_add_u32 s{sF}, s{sF}, s{sPOS}")
        A(f"s_bitcmp1_b32 s{sWAVE}, 0")
        A(f"s_cselect_b64 {sp(sWSEL)}, {sp(sWU)}, {sp(sWG)}")
        A(f"s_lshr_b32 s{sTMP + 1}, s{sWAVE}, 1")
        A(f"s_mul_i32 s{sTMP + 1}, s{sTMP + 1}, {256 * 3584}")
        A(f"s_lshl_b32 s{sTMP + 2}, s{sF}, 5")
        A(f"s_add_u32 s{sTMP + 1}, s{sTMP + 1}, s{sTMP + 2}")
        vWA = K + 8
        A(f"v_lshrrev_b32 {v(vWA)}, 1, {v(vLANE)}")
        A(f"v_mul_u32_u24 {v(vWA)}, {8 * 3584}, {v(vWA)}")
        A(f"v_lshl_add_u32 {v(vWA)}, {v(vT + 1)}, 4, {v(vWA)}")
        A(f"v_add_u32 {v(vWA)}, s{sTMP + 1}, {v(vWA)}")
        A(f"v_add_u32 {v(vWA + 2)}, {7 * 3584}, {v(vWA)}")
        A(f"v_add_u32 {v(vWA + 1)}, {4 * 3584}, {v(vWA)}")
        A(f"v_add_u32 {v(vWA)}, 3584, {v(vWA)}")
        A(f"s_lshl_b32 s{sTMP + 1}, s{sF}, 14")
        A(f"s_add_u32 s{sTMP + 1}, s{sTMP + 1}, 4096")
        A(f"v_lshl_add_u32 {v(vWA + 3)}, v0, 2, s{sTMP + 1}")
        A(f"v_add_u32 {v(vWA + 4)}, 8192, {v(vWA + 3)}")
        A(f"v_dot2_f32_bf16 {v(K + 4)}, {v(vONE)}, s{sONES}, 0")
        for k in range(1, 4):
            A(f"v_dot2_f32_bf16 {v(K + 4)}, {v(vONE + k)}, s{sONES}, {v(K + 4)}")
        A(f"v_mov_b32 {v(K + 5)}, {L_SUMW}")
        A(f"s_mov_b32 s{sRP0}, 0x05040100")
        A(f"s_mov_b32 s{sRP1}, 0x07060302")
        for sh in (8, 4, 2, 1):
            A(f"v_add_f32_dpp {v(K + 4)}, {v(K + 4)}, {v(K + 4)} row_ror:{sh} row_mask:0xf bank_mask:0xf")
        A(f"v_add_f32_dpp {v(K + 4)}, {v(K + 4)}, {v(K + 4)} row_bcast:15 row_mask:0xa bank_mask:0xf")
        A(f"v_add_f32_dpp {v(K + 4)}, {v(K + 4)}, {v(K + 4)} row_bcast:31 row_mask:0xc bank_mask:0xf")
        A("s_mov_b32 exec_lo, 0")
        A("s_brev_b32 exec_hi, 1")
        A(f"ds_write_b32 {v(K + 5)}, {v(K + 4)}")
        A("s_mov_b64 exec, -1")
        A("s_barrier")
        A("s_waitcnt vmcnt(0)")
        chk8 = [f"v_max3_u32 {v(vT + 6)}, {v(vY)}, {v(vY + 1)}, {v(vY + 2)}",
                f"v_max3_u32 {v(vT + 7)}, {v(vY + 3)}, {v(vY + 4)}, {v(vY + 5)}",
                f"v_max3_u32 {v(vT + 6)}, {v(vT + 6)}, {v(vY + 6)}, {v(vY + 7)}",
                f"v_max_u32 {v(vT + 6)}, {v(vT + 6)}, {v(vT + 7)}",
                f"v_cmp_eq_u32 vcc, -1, {v(vT + 6)}"]
        self.poll("x1", xl, chk8)
        self.stamp("x1ld")
        A(f"ds_write2st64_b64 {v(vUW)}, {v(vY, 2)}, {v(vY + 2, 2)} offset0:0 offset1:9")
        A(f"ds_write2st64_b64 {v(vUW)}, {v(vY + 4, 2)}, {v(vY + 6, 2)} offset0:4 offset1:13")
        A("s_waitcnt lgkmcnt(0)")
        A("s_barrier")

        A(f"s_cmp_lt_u32 s{sPOS}, 14")
        A("s_cbranch_scc0 L_now")
        for k in range(8):
            A(f"global_load_dwordx4 {v(vWG + 4 * k, 4)}, {v(vWA + k // 3)}, {sp(sWSEL)} offset:{(k % 3 - 1) * 3584}")
        self.stamp("wq1")
        if o.get("wwait"):
            A("s_waitcnt vmcnt(0)")
            self.stamp("wq1w")
        for k in range(16):
            A(f"global_load_dword {v(vWD + k)}, {v(vWA + 3 + (k >> 3))}, {sp(sWD)} offset:{((k & 7) - 4) * 1024}")
        self.stamp("wq2")
        if o.get("wwait"):
            A("s_waitcnt vmcnt(0)")
            self.stamp("wq2w")
        A("L_now:")
        A(f"v_and_b32 {v(vT + 3)}, 0xfe, v0")
        A(f"v_mul_u32_u24 {v(vAUX)}, {RS}, {v(vT + 3)}")
        A(f"v_lshl_add_u32 {v(vAUX)}, {v(vT + 1)}, 4, {v(vAUX)}")
        A(f"s_lshl_b32 s{sTMP}, s{sL}, 5")
        A(f"s_add_u32 s{sTMP}, s{sTMP}, {W_REG + O_X2}")
        A(f"v_add_u32 {v(vAUX)}, s{sTMP}, {v(vAUX)}")
        A(f"v_add_u32 {v(vAUX + 1)}, {RS}, {v(vAUX)}")
        Tt, Xf = K + 40, K + 56
        Df = K + 72
        for k in range(8):
            A(f"v_lshlrev_b32 {v(Tt + 2 * k)}, 16, {v(vU + k)}")
            A(f"v_and_b32 {v(Tt + 2 * k + 1)}, s{sMASK}, {v(vU + k)}")
        A(f"v_lshlrev_b32 {v(Df)}, 16, {v(vD)}")
        A(f"v_and_b32 {v(Df + 1)}, s{sMASK}, {v(vD)}")
        A(f"v_lshlrev_b32 {v(Df + 2)}, 16, {v(vD + 1)}")
        A(f"v_and_b32 {v(Df + 3)}, s{sMASK}, {v(vD + 1)}")
        for k in range(8):
            c = k >> 1
            sel = "op_sel:[1,0] op_sel_hi:[1,1]" if c & 1 else "op_sel_hi:[0,1]"
            A(f"v_pk_mul_f32 {v(Tt + 2 * k, 2)}, {v(Df + (c & 2), 2)}, {v(Tt + 2 * k, 2)} {sel}")
        for k in range(8):
            A(f"v_cvt_pk_bf16_f32 {v(Xf + k)}, {v(Tt + 2 * k)}, {v(Tt + 2 * k + 1)}")
        for k in range(8):
            A(f"v_lshlrev_b32 {v(Tt + 2 * k)}, 16, {v(Xf + k)}")
            A(f"v_and_b32 {v(Tt + 2 * k + 1)}, s{sMASK}, {v(Xf + k)}")
        for r in range(4):
            for c in range(4):
                src = v(vX + 2 * r + (c >> 1))
                if c & 1:
                    A(f"v_and_b32 {v(Xf + 4 * c + r)}, s{sMASK}, {src}")
                else:
                    A(f"v_lshlrev_b32 {v(Xf + 4 * c + r)}, 16, {src}")
        self.stamp("shadow")
        A("s_barrier")
        A("s_barrier")
        self.stamp("b4b")
        for l in xl:
            A(l)
        A("s_waitcnt vmcnt(0)")
        self.poll("x2", xl, chk8)
        self.stamp("x2ld")

        for k in range(8):
            A(f"v_dot2_f32_bf16 {v(Tt + 2 * k)}, {v(vY + k)}, s{sSELLO}, {v(Tt + 2 * k)}")
            A(f"v_dot2_f32_bf16 {v(Tt + 2 * k + 1)}, {v(vY + k)}, s{sSELHI}, {v(Tt + 2 * k + 1)}")
        for k in range(8):
            A(f"v_cvt_pk_bf16_f32 {v(vY + k)}, {v(Tt + 2 * k)}, {v(Tt + 2 * k + 1)}")
        for k in range(8):
            A(f"v_dot2_f32_bf16 {v(Xf + 2 * k)}, {v(vY + k)}, s{sSELLO}, {v(Xf + 2 * k)}")
            A(f"v_dot2_f32_bf16 {v(Xf + 2 * k + 1)}, {v(vY + k)}, s{sSELHI}, {v(Xf + 2 * k + 1)}")
        vH = vX
        for cp in range(2):
            for r in range(4):
                A(f"v_cvt_pk_bf16_f32 {v(vH + 2 * r + cp)}, {v(Xf + 8 * cp + r)}, {v(Xf + 8 * cp + 4 + r)}")
        Rr = [K + 8 + i for i in range(4)]
        for cp in range(2):
            for r in range(4):
                A(f"v_dot2_f32_bf16 {v(V[r])}, {v(vH + 2 * r + cp)}, s{sONES}, {v(V[r]) if cp else 0}")
            for r in range(4):
                A(f"v_dot2_f32_bf16 {v(V[4 + r])}, {v(vH + 2 * r + cp)}, {v(vH + 2 * r + cp)}, {v(V[4 + r]) if cp else 0}")
            for r in range(4):
                A(f"v_dot2_f32_bf16 {v(Rr[r])}, {v(vH + 2 * r + cp)}, {v(vWR + cp)}, {v(Rr[r]) if cp else 0}")
        for i in range(4):
            A(f"v_add_f32_dpp {v(V[i])}, {v(V[i])}, {v(V[i])} row_ror:8 row_mask:0xf bank_mask:0x3")
        for i in range(4):
            A(f"v_add_f32_dpp {v(V[i])}, {v(V[i + 4])}, {v(V[i + 4])} row_ror:8 row_mask:0xf bank_mask:0xc")
        for i in range(2):
            A(f"v_add_f32_dpp {v(Rr[i])}, {v(Rr[i])}, {v(Rr[i])} row_shl:4 row_mask:0xf bank_mask:0x5")
        for i in range(2):
            A(f"v_add_f32_dpp {v(Rr[i])}, {v(Rr[i + 2])}, {v(Rr[i + 2])} row_shr:4 row_mask:0xf bank_mask:0xa")
        for i in range(2):
            A(f"v_add_f32_dpp {v(V[i])}, {v(V[i])}, {v(V[i])} row_shl:4 row_mask:0xf bank_mask:0x5")
        for i in range(2):
            A(f"v_add_f32_dpp {v(V[i])}, {v(V[i + 2])}, {v(V[i + 2])} row_shr:4 row_mask:0xf bank_mask:0xa")
        A(f"v_permlane32_swap_b32 {v(Rr[0])}, {v(Rr[1])}")
        A(f"v_and_b32 {v(K + 13)}, 0xffffff7f, {v(vSW)}")
        A(f"v_permlane32_swap_b32 {v(V[0])}, {v(V[1])}")
        A(f"v_add_f32 {v(Rr[0])}, {v(Rr[0])}, {v(Rr[1])}")
        A(f"v_add_f32 {v(V[0])}, {v(V[0])}, {v(V[1])}")
        A(f"s_mov_b64 vcc, {sp(sODD)}")
        A(f"v_add_f32_dpp {v(Rr[0])}, {v(Rr[0])}, {v(Rr[0])} row_ror:8 row_mask:0xf bank_mask:0xf")
        A(f"v_add_f32_dpp {v(V[0])}, {v(V[0])}, {v(V[0])} quad_perm:[2,3,0,1] row_mask:0xf bank_mask:0xf")
        A(f"v_mov_b32 {v(V[1])}, {v(V[0])}")
        A(f"v_add_f32_dpp {v(Rr[0])}, {v(Rr[0])}, {v(Rr[0])} quad_perm:[2,3,0,1] row_mask:0xf bank_mask:0xf")
        A(f"v_mov_b32 {v(Rr[1])}, {v(Rr[0])}")
        A(f"v_permlane16_swap_b32 {v(V[0])}, {v(V[1])}")
        A(f"v_add_f32 {v(V[0])}, {v(V[0])}, {v(V[1])}")
        A(f"v_permlane16_swap_b32 {v(Rr[0])}, {v(Rr[1])}")
        A(f"v_add_f32 {v(Rr[0])}, {v(Rr[0])}, {v(Rr[1])}")
        A(f"ds_write_b32 {v(vSW)}, {v(V[0])} offset:{L_RED2 - L_RED1}")
        A(f"ds_write_b32 {v(K + 13)}, {v(Rr[0])} offset:{L_RED2 - L_RED1 + 256}")
        A("s_waitcnt lgkmcnt(0)")
        A("s_barrier")
        self.stamp("b5")
        Hf, Dd = Xf, Tt
        self.key_calc(K, vRA, vLANE)
        self.spread(K + 12, vNM, K + 24)
        A(f"v_readfirstlane_b32 s{sBEST}, {v(K + 8)}")
        for r in range(4):
            for cp in range(2):
                A(f"v_lshlrev_b32 {v(Hf + 4 * r + 2 * cp)}, 16, {v(vH + 2 * r + cp)}")
                A(f"v_and_b32 {v(Hf + 4 * r + 2 * cp + 1)}, s{sMASK}, {v(vH + 2 * r + cp)}")
        self.spread(K + 13, vRI, K + 24)
        for k in range(8):
            r = k >> 1
            sel = "op_sel:[1,0] op_sel_hi:[1,1]" if r & 1 else "op_sel_hi:[0,1]"
            A(f"v_pk_add_f32 {v(Dd + 2 * k, 2)}, {v(vNM + (r & 2), 2)}, {v(Hf + 2 * k, 2)} {sel}")
        vX2 = vU
        for k in range(8):
            A(f"v_cvt_pk_bf16_f32 {v(vX2 + k)}, {v(Dd + 2 * k)}, {v(Dd + 2 * k + 1)}")
        for k in range(8):
            A(f"v_lshlrev_b32 {v(Dd + 2 * k)}, 16, {v(vX2 + k)}")
            A(f"v_and_b32 {v(Dd + 2 * k + 1)}, s{sMASK}, {v(vX2 + k)}")
        for k in range(8):
            r = k >> 1
            sel = "op_sel:[1,0] op_sel_hi:[1,1]" if r & 1 else "op_sel_hi:[0,1]"
            A(f"v_pk_mul_f32 {v(Dd + 2 * k, 2)}, {v(vRI + (r & 2), 2)}, {v(Dd + 2 * k, 2)} {sel}")
        for k in range(8):
            A(f"v_cvt_pk_bf16_f32 {v(vX2 + k)}, {v(Dd + 2 * k)}, {v(Dd + 2 * k + 1)}")
        A(f"s_andn2_b32 s{sTMP}, 7, s{sBEST}")
        A(f"s_and_b32 s{sTMP + 1}, s{sTMP}, 3")
        A(f"s_lshl_b32 s{sTMP + 2}, s{sTMP + 1}, 1")
        A(f"s_not_b64 {sp(sE)}, {sp(sODD)}")
        A(f"s_cmp_ge_u32 s{sTMP}, 4")
        A(f"s_cselect_b64 {sp(sE)}, {sp(sODD)}, {sp(sE)}")
        vC = K + 24
        A(f"s_set_gpr_idx_on s{sTMP + 2}, gpr_idx(SRC0)")
        A(f"v_mov_b32 {v(vC)}, {v(vX2)}")
        A(f"v_mov_b32 {v(vC + 1)}, {v(vX2 + 1)}")
        A(f"v_mov_b32 {v(vC + 2)}, {v(vH)}")
        A(f"v_mov_b32 {v(vC + 3)}, {v(vH + 1)}")
        A("s_set_gpr_idx_off")
        A(f"s_add_u32 s{sTMP + 3}, s{sOWN}, {O_SLOT}")
        A(f"v_add_u32 {v(vT)}, s{sTMP + 3}, {v(vT + 2)}")
        A(f"s_mov_b64 exec, {sp(sE)}")
        A(f"global_store_dwordx2 {v(vT)}, {v(vC, 2)}, {sp(sWS)} sc1")
        A(f"global_store_dwordx2 {v(vT)}, {v(vC + 2, 2)}, {sp(sWS)} offset:1024 sc1")
        A("s_mov_b64 exec, -1")
        self.stamp("slot")
        for k in range(8):
            A(f"v_dot2_f32_bf16 {v(Hf + 2 * k)}, {v(vX2 + k)}, s{sSELLO}, {v(Hf + 2 * k)}")
            A(f"v_dot2_f32_bf16 {v(Hf + 2 * k + 1)}, {v(vX2 + k)}, s{sSELHI}, {v(Hf + 2 * k + 1)}")
        vO = vY
        A(f"v_mov_b32 {v(vT + 4)}, {L_REDK}")
        for k in range(8):
            A(f"v_cvt_pk_bf16_f32 {v(vO + k)}, {v(Hf + 2 * k)}, {v(Hf + 2 * k + 1)}")
        osc = " sc1" if o.get("outsc", 1) == 1 else (" nt" if o.get("outsc", 1) == 2 else "")
        for r in range(4):
            A(f"s_cmp_eq_u32 s{sTMP + 1}, {r}")
            A(f"s_cselect_b64 vcc, {sp(sE)}, 0")
            A("s_not_b64 exec, vcc")
            A(f"global_store_dwordx2 {v(vRD)}, {v(vO + 2 * r, 2)}, {sp(sOUT)} offset:{1024 * r}{osc}")
        A("s_mov_b64 exec, -1")
        A(f"s_set_gpr_idx_on s{sTMP + 2}, gpr_idx(SRC0)")
        A(f"v_mov_b32 {v(vC + 4)}, {v(vO)}")
        A(f"v_mov_b32 {v(vC + 5)}, {v(vO + 1)}")
        A("s_set_gpr_idx_off")
        A(f"s_lshl_b32 s{sTMP + 1}, s{sTMP + 1}, 10")
        A(f"v_add_u32 {v(vRD)}, s{sTMP + 1}, {v(vRD)}")
        A(f"s_lshr_b32 s{sTMP}, s{sWAVE}, 1")
        A(f"s_lshl_b32 s{sTMP}, s{sTMP}, 9")
        A(f"s_add_u32 s{sTMP}, s{sTMP}, {W_REG + O_SLOT}")
        A(f"v_lshrrev_b32 {v(vT)}, 1, {v(vLANE)}")
        A(f"v_lshl_add_u32 {v(vT)}, {v(vT)}, 4, s{sTMP}")
        A(f"v_lshlrev_b32 {v(vT + 1)}, 6, {v(vT + 1)}")
        A(f"v_and_b32 {v(vT + 2)}, 12, {v(vLANE)}")
        A(f"v_lshl_add_u32 {v(vT + 1)}, {v(vT + 2)}, 2, {v(vT + 1)}")
        A(f"v_lshrrev_b32 {v(vT + 2)}, 5, {v(vLANE)}")
        A(f"v_lshl_add_u32 {v(vT + 1)}, {v(vT + 2)}, 3, {v(vT + 1)}")
        A(f"s_and_b32 s{sTMP}, s{sWAVE}, 1")
        A(f"s_lshl_b32 s{sTMP}, s{sTMP}, 7")
        A(f"s_lshr_b32 s{sTMP + 1}, s{sWAVE}, 1")
        A(f"s_lshl_b32 s{sTMP + 1}, s{sTMP + 1}, 2")
        A(f"s_add_u32 s{sTMP}, s{sTMP}, s{sTMP + 1}")
        A(f"s_add_u32 s{sTMP}, s{sTMP}, {L_REDF}")
        A(f"v_add_u32 {v(vT + 1)}, s{sTMP}, {v(vT + 1)}")
        A(f"v_and_b32 {v(vT + 2)}, 15, {v(vLANE)}")
        A(f"v_lshlrev_b32 {v(vT + 2)}, 3, {v(vT + 2)}")
        A(f"v_add_u32 {v(vT + 2)}, {L_REDF}, {v(vT + 2)}")
        A(f"s_add_u32 s{sTMP}, s{sOWN}, {O_PART}")
        A(f"v_lshl_add_u32 {v(vT + 3)}, v0, 3, s{sTMP}")
        WGp = K + 80
        for kp in range(4):
            for d in range(4):
                lo, hi = vWG + 8 * kp + d, vWG + 8 * kp + 4 + d
                A(f"v_perm_b32 {v(WGp + 8 * kp + 2 * d)}, {v(hi)}, {v(lo)}, s{sRP0}")
                A(f"v_perm_b32 {v(WGp + 8 * kp + 2 * d + 1)}, {v(hi)}, {v(lo)}, s{sRP1}")
        WDp = vWG
        for kp in range(8):
            lo, hi = vWD + 2 * kp, vWD + 2 * kp + 1
            A(f"v_perm_b32 {v(WDp + 2 * kp)}, {v(hi)}, {v(lo)}, s{sRP0}")
            A(f"v_perm_b32 {v(WDp + 2 * kp + 1)}, {v(hi)}, {v(lo)}, s{sRP1}")
        self.stamp("outst")
        A("s_barrier")
        A(f"ds_read_b32 {v(K)}, {v(vT + 4)}")
        A("s_waitcnt lgkmcnt(0)")
        A(f"v_readfirstlane_b32 s{sWIN}, {v(K)}")
        A(f"s_andn2_b32 s{sT0}, 2047, s{sWIN}")
        A(f"s_lshr_b32 s{sT1}, s{sT0}, 3")
        A(f"s_mul_i32 s{sT1}, s{sT1}, {RS}")
        A(f"s_cmp_lt_u32 s{sPOS}, 14")
        A("s_cbranch_scc0 L_noffn")
        A(f"v_add_u32 {v(vT)}, s{sT1}, {v(vT)}")
        sl = [f"global_load_dwordx4 {v(K, 4)}, {v(vT)}, {sp(sWS)} sc1"]
        A(sl[0])
        self.stamp("win")
        A("s_waitcnt vmcnt(0)")
        self.poll("sel", sl, [f"v_max3_u32 {v(vT + 6)}, {v(K)}, {v(K + 1)}, {v(K + 2)}",
                              f"v_max_u32 {v(vT + 6)}, {v(vT + 6)}, {v(K + 3)}",
                              f"v_cmp_eq_u32 vcc, -1, {v(vT + 6)}"])
        self.stamp("sel")
        V2 = [K + 8 + i for i in range(8)]
        for kp in range(4):
            for c in range(8):
                A(f"v_dot2_f32_bf16 {v(V2[c])}, {v(K + kp)}, {v(WGp + 8 * kp + c)}, {v(V2[c]) if kp else 0}")
        self.reduce8(V2, K + 16)
        A(f"ds_write_b32 {v(vT + 1)}, {v(V2[0])}")
        A("s_waitcnt lgkmcnt(0)")
        A("s_barrier")
        A(f"ds_read_b64 {v(K, 2)}, {v(vT + 2)}")
        A(f"ds_read_b64 {v(K + 2, 2)}, {v(vT + 2)} offset:128")
        A("s_waitcnt lgkmcnt(0)")
        A(f"v_add_f32 {v(K)}, {v(K)}, {v(K + 1)}")
        A(f"v_add_f32 {v(K + 2)}, {v(K + 2)}, {v(K + 3)}")
        A(f"v_cvt_pk_bf16_f32 {v(K + 1)}, {v(K)}, {v(K + 2)}")
        A(f"v_lshlrev_b32 {v(K)}, 16, {v(K + 1)}")
        A(f"v_mul_f32 {v(K + 3)}, {hex(f2u(-L2E))}, {v(K)}")
        A(f"v_exp_f32 {v(K + 3)}, {v(K + 3)}")
        A(f"v_and_b32 {v(K + 2)}, s{sMASK}, {v(K + 1)}")
        A(f"v_add_f32 {v(K + 3)}, 1.0, {v(K + 3)}")
        A(f"v_rcp_f32 {v(K + 3)}, {v(K + 3)}")
        A(f"v_mul_f32 {v(K)}, {v(K)}, {v(K + 3)}")
        A(f"v_cvt_pk_bf16_f32 {v(K)}, {v(K)}, {v(K)}")
        A(f"v_and_b32 {v(K)}, s{sMASK}, {v(K)}")
        A(f"v_mul_f32 {v(K)}, {v(K)}, {v(K + 2)}")
        A(f"v_mov_b32_dpp {v(K + 1)}, {v(K)} quad_perm:[1,1,3,3] row_mask:0xf bank_mask:0xf")
        A(f"v_cvt_pk_bf16_f32 {v(K)}, {v(K)}, {v(K + 1)}")
        for kp in range(8):
            A(f"v_readlane_b32 s{sH + kp}, {v(K)}, {2 * kp}")
        for kp in range(8):
            for c in range(2):
                A(f"v_dot2_f32_bf16 {v(K + 4 + c)}, s{sH + kp}, {v(WDp + 2 * kp + c)}, {v(K + 4 + c) if kp else 0}")
        A(f"global_store_dwordx2 {v(vT + 3)}, {v(K + 4, 2)}, {sp(sWS)} sc1")
        self.stamp("part")
        held = [f"s_cmp_eq_u32 s{sWIN}, s{sBEST}",
                f"s_cselect_b64 exec, 0, {sp(sE)}",
                f"global_store_dwordx2 {v(vRD)}, {v(vC + 4, 2)}, {sp(sOUT)}{osc}",
                f"s_or_b32 s{sTMP}, s{sL}, s{sWAVE}",
                f"s_cmp_eq_u32 s{sTMP}, 0",
                "s_cselect_b64 exec, 1, 0",
                f"v_mov_b32 {v(vT + 4)}, s{sG}",
                f"v_mov_b32 {v(vT + 5)}, 0",
                f"global_store_dword {v(vT + 5)}, {v(vT + 4)}, {sp(sWS)} sc1",
                "s_mov_b64 exec, -1"]
        T = self.tail
        T("L_noffn:")
        for l in held:
            T(l)
        T("s_branch L_fin")
        for l in held:
            A(l)
        A(f"s_cmp_lt_u32 s{sPOS}, 8")
        A("s_cbranch_scc0 L_fin")
        A(f"s_cmp_lt_u32 s{sWAVE}, 2")
        A("s_cbranch_scc0 L_fin")
        A(f"s_lshl_b32 s{sTMP}, s{sXCD}, 3")
        A(f"s_add_u32 s{sTMP}, s{sTMP}, s{sPOS}")
        A(f"s_lshl_b32 s{sTMP}, s{sTMP}, 1")
        A(f"s_add_u32 s{sTMP}, s{sTMP}, s{sWAVE}")
        A(f"v_lshrrev_b32 {v(vT)}, 5, {v(vLANE)}")
        A(f"v_bfe_u32 {v(vT + 1)}, {v(vLANE)}, 4, 1")
        A(f"v_lshl_add_u32 {v(vT)}, {v(vT + 1)}, 1, {v(vT)}")
        A(f"s_lshl_b32 s{sTMP + 1}, s{sTMP}, 3")
        A(f"v_lshl_add_u32 {v(vT)}, {v(vT)}, 1, s{sTMP + 1}")
        A(f"s_add_u32 s{sT1}, s{sT1}, {W_REG + O_SLOT}")
        A(f"v_add_u32 {v(vT + 1)}, s{sT1}, {v(vT)}")
        xh = [f"global_load_ushort {v(K + 20)}, {v(vT + 1)}, {sp(sWS)} sc1",
              f"global_load_ushort {v(K + 21)}, {v(vT + 1)}, {sp(sWS)} offset:1024 sc1"]
        for l in xh:
            A(l)
        A(f"s_lshl_b32 s{sTMP + 1}, s{sT0}, 10")
        A(f"v_add_u32 {v(vT)}, s{sTMP + 1}, {v(vT)}")
        A(f"v_min_u32 {v(vT + 2)}, 55, {v(vLANE)}")
        A(f"v_mul_u32_u24 {v(vT + 3)}, 4682, {v(vT + 2)}")
        A(f"v_lshrrev_b32 {v(vT + 3)}, 16, {v(vT + 3)}")
        A(f"v_mad_u32_u24 {v(vT + 2)}, {v(vT + 3)}, 18, {v(vT + 2)}")
        A(f"v_mul_u32_u24 {v(vT + 2)}, {RS}, {v(vT + 2)}")
        A(f"s_lshl_b32 s{sTMP + 1}, s{sTMP}, 4")
        A(f"s_add_u32 s{sTMP + 1}, s{sTMP + 1}, {W_REG + O_PART}")
        A(f"v_add_u32 {v(vT + 2)}, s{sTMP + 1}, {v(vT + 2)}")
        A(f"v_add_u32 {v(vT + 3)}, {128 * RS}, {v(vT + 2)}")
        A(f"s_ashr_i32 s{sTMP + 2}, s{sWIN}, 31")
        A(f"s_not_b32 s{sTMP + 2}, s{sTMP + 2}")
        A(f"s_or_b32 s{sTMP + 2}, s{sTMP + 2}, 0x80000000")
        A(f"s_xor_b32 s{sTMP + 2}, s{sTMP + 2}, s{sWIN}")
        A(f"s_and_b32 s{sTMP + 2}, s{sTMP + 2}, 0xfffff800")
        A(f"s_or_b32 s{sTMP + 2}, s{sTMP + 2}, 0x400")
        A(f"v_cvt_pk_bf16_f32 {v(K + 22)}, s{sTMP + 2}, s{sTMP + 2}")
        A(f"v_and_b32 {v(K + 22)}, s{sMASK}, {v(K + 22)}")
        A(f"v_mul_f32 {v(K + 22)}, {hex(f2u(-L2E))}, {v(K + 22)}")
        A(f"v_exp_f32 {v(K + 22)}, {v(K + 22)}")
        A(f"v_add_f32 {v(K + 22)}, 1.0, {v(K + 22)}")
        A(f"v_rcp_f32 {v(K + 22)}, {v(K + 22)}")
        A(f"v_cvt_pk_bf16_f32 {v(K + 22)}, {v(K + 22)}, {v(K + 22)}")
        A(f"v_and_b32 {v(K + 22)}, s{sMASK}, {v(K + 22)}")
        A("s_waitcnt vmcnt(0)")
        self.stamp("partdr")
        pl = [f"global_load_dwordx4 {v(vY, 4)}, {v(vT + 2)}, {sp(sWS)} sc1",
              f"global_load_dwordx4 {v(vY + 4, 4)}, {v(vT + 3)}, {sp(sWS)} sc1"]
        for l in pl:
            A(l)
        self.poll("xh", xh, [f"v_max_u32 {v(vT + 6)}, {v(K + 20)}, {v(K + 21)}",
                             f"v_cmp_eq_u32 vcc, 0xffff, {v(vT + 6)}"])
        A(f"v_lshlrev_b32 {v(K + 20)}, 16, {v(K + 20)}")
        A(f"v_lshlrev_b32 {v(K + 21)}, 16, {v(K + 21)}")
        A("s_waitcnt vmcnt(0)")
        self.poll("part", pl, chk8)
        self.stamp("partld")
        A(f"v_cmp_gt_u32 vcc, 56, {v(vLANE)}")
        A(f"v_pk_add_f32 {v(vY, 2)}, {v(vY, 2)}, {v(vY + 4, 2)}")
        A(f"v_pk_add_f32 {v(vY + 2, 2)}, {v(vY + 2, 2)}, {v(vY + 6, 2)}")
        for c in range(4):
            A(f"v_cndmask_b32 {v(vY + c)}, 0, {v(vY + c)}, vcc")
        A(f"v_permlane32_swap_b32 {v(vY)}, {v(vY + 1)}")
        A(f"v_permlane32_swap_b32 {v(vY + 2)}, {v(vY + 3)}")
        A(f"v_add_f32 {v(vY)}, {v(vY)}, {v(vY + 1)}")
        A(f"v_add_f32 {v(vY + 2)}, {v(vY + 2)}, {v(vY + 3)}")
        A(f"v_permlane16_swap_b32 {v(vY)}, {v(vY + 2)}")
        A(f"v_add_f32 {v(vY)}, {v(vY)}, {v(vY + 2)}")
        for sh in (8, 4, 2, 1):
            A(f"v_add_f32_dpp {v(vY)}, {v(vY)}, {v(vY)} row_ror:{sh} row_mask:0xf bank_mask:0xf")
        y = vY
        A(f"v_cvt_pk_bf16_f32 {v(y)}, {v(y)}, {v(y)}")
        A(f"v_and_b32 {v(y)}, s{sMASK}, {v(y)}")
        A(f"v_mul_f32 {v(y)}, {v(y)}, {v(K + 22)}")
        A(f"v_cvt_pk_bf16_f32 {v(y)}, {v(y)}, {v(y)}")
        A(f"v_and_b32 {v(y)}, s{sMASK}, {v(y)}")
        A(f"v_add_f32 {v(y)}, {v(y)}, {v(K + 20)}")
        A(f"v_cvt_pk_bf16_f32 {v(y)}, {v(y)}, {v(y)}")
        A(f"v_and_b32 {v(y)}, s{sMASK}, {v(y)}")
        A(f"v_add_f32 {v(y)}, {v(y)}, {v(K + 21)}")
        A(f"v_cvt_pk_bf16_f32 {v(y)}, {v(y)}, {v(y)}")
        A("s_mov_b32 exec_lo, 0x00010001")
        A("s_mov_b32 exec_hi, 0x00010001")
        A(f"global_store_short {v(vT)}, {v(y)}, {sp(sOUT)}")
        A("L_fin:")
        self.finish("R")

    def chans(self):
        A = self.A
        o = self.o
        vLANE = 1
        vAA, vBA, vEW, vER, vRA = 4, 12, 13, 14, 15
        vKA0, vKA1, vKB, vPW0, vPW1 = 16, 17, 18, 19, 20
        vP = 24
        vT = 28
        vACC = 40
        vA0, vA1, vB0, vB1 = 72, 104, 136, 168
        K = 72
        A("L_chan:")
        A("v_and_b32 v0, 0xff, v0")
        A(f"s_sub_u32 s{sWAVE}, s{sWAVE}, 4")
        A(f"s_lshl_b32 s{sT0}, s{sL}, 9")
        A(f"v_lshl_add_u32 {v(vT)}, v0, 1, s{sT0}")
        A(f"s_lshl_b32 s{sT1}, s{sL}, 2")
        A("s_waitcnt lgkmcnt(0)")
        self.stamp("karg")
        for k, s in enumerate((sLA, sAI, sCR, sCI)):
            A(f"global_load_ushort {v(vP + k)}, {v(vT)}, {sp(s)}{' nt' if o.get('ntx', 1) else ''}")
        A(f"s_load_dword s{sDT}, {sp(sLDT)}, s{sT1}")
        ntlb = 0
        if o.get("tlb", 0):
            A("v_mov_b32 v2, 0")
            A("s_mov_b64 exec, 1")
            for sb in (sWG, sWU, sWD, sOUT):
                A(f"global_load_dword v3, v2, {sp(sb)}")
                ntlb += 1
            A("s_mov_b64 exec, -1")
        vJ, vGq = vT + 4, vT + 5
        A(f"v_and_b32 {v(vJ)}, 15, {v(vLANE)}")
        A(f"v_lshrrev_b32 {v(vGq)}, 4, {v(vLANE)}")
        A(f"s_lshr_b32 s{sT0}, s{sWAVE}, 1")
        A(f"s_and_b32 s{sT1}, s{sWAVE}, 1")
        A(f"v_and_b32 {v(vT)}, 7, {v(vLANE)}")
        A(f"v_lshlrev_b32 {v(vRA)}, 4, {v(vT)}")
        A(f"v_add_u32 {v(vRA)}, {L_RED1}, {v(vRA)}")
        A(f"s_mul_i32 s{sTMP}, s{sT0}, {PC}")
        A(f"s_lshl_b32 s{sTMP + 1}, s{sT1}, 7")
        A(f"s_add_u32 s{sTMP}, s{sTMP}, s{sTMP + 1}")
        A(f"s_add_u32 s{sTMP}, s{sTMP}, {L_P + 4 * 26}")
        A(f"v_lshlrev_b32 {v(vT)}, 3, {v(vGq)}")
        A(f"v_sub_u32 {v(vT)}, {v(vJ)}, {v(vT)}")
        A(f"v_lshl_add_u32 {v(vAA)}, {v(vT)}, 2, s{sTMP}")
        for m in range(1, 8):
            A(f"v_add_u32 {v(vAA + m)}, {1024 * m}, {v(vAA)}")
        A(f"s_mul_i32 s{sTMP}, s{sT0}, {UC}")
        A(f"s_lshl_b32 s{sTMP + 1}, s{sT1}, 6")
        A(f"s_sub_u32 s{sTMP}, s{sTMP}, s{sTMP + 1}")
        A(f"s_add_u32 s{sTMP}, s{sTMP}, {L_U + 64}")
        A(f"v_lshl_add_u32 {v(vT)}, {v(vJ)}, 1, {v(vGq)}")
        A(f"v_lshl_add_u32 {v(vBA)}, {v(vT)}, 4, s{sTMP}")
        A(f"v_lshl_add_u32 {v(vT)}, {v(vJ)}, 2, {v(vGq)}")
        A(f"v_lshrrev_b32 {v(vT + 1)}, 3, {v(vT)}")
        A(f"v_add_u32 {v(vT)}, {v(vT)}, {v(vT + 1)}")
        A(f"s_mul_i32 s{sTMP}, s{sWAVE}, {8 * TBS}")
        A(f"v_lshl_add_u32 {v(vEW)}, {v(vT)}, 4, s{sTMP}")
        A(f"v_lshrrev_b32 {v(vT + 1)}, 3, {v(vLANE)}")
        A(f"v_add_u32 {v(vT)}, {v(vLANE)}, {v(vT + 1)}")
        A(f"s_mul_i32 s{sTMP}, s{sWAVE}, {2 * TBS}")
        A(f"v_lshl_add_u32 {v(vER)}, {v(vT)}, 4, s{sTMP}")
        KS = o.get("ks", 5)
        for k in range(4):
            A(f"v_mov_b32 {v(vACC + k)}, -1")
        A(f"s_mul_i32 s{sTMP}, s{sL}, {RS}")
        A(f"s_add_u32 s{sTMP}, s{sTMP}, {W_REG + 4096}")
        A(f"v_lshl_add_u32 {v(vACC + 4)}, v0, 4, s{sTMP}")
        A(f"v_add_u32 {v(vACC + 5)}, 8192, {v(vACC + 4)}")
        A(f"v_add_u32 {v(vACC + 6)}, 12288, {v(vACC + 4)}")
        A(f"s_lshl_b32 s{sTMP}, s{sL}, {KS}")
        A(f"s_add_u32 s{sTMP}, s{sTMP}, {W_KEY}")
        A(f"v_lshl_add_u32 {v(22)}, {v(vLANE)}, 4, s{sTMP}")
        ones = v(vACC, 4)
        inits = [f"s_cmp_eq_u32 s{sWAVE}, 0",
                 f"s_cselect_b64 exec, {(1 << ((1 << KS) // 16)) - 1}, 0",
                 f"global_store_dwordx4 {v(22)}, {ones}, {sp(sWS)} sc1",
                 "s_mov_b64 exec, -1",
                 f"global_store_dwordx4 {v(vACC + 4)}, {ones}, {sp(sWS)} offset:-4096 sc1",
                 f"global_store_dwordx4 {v(vACC + 4)}, {ones}, {sp(sWS)} sc1",
                 f"global_store_dwordx4 {v(vACC + 5)}, {ones}, {sp(sWS)} offset:-4096 sc1",
                 f"global_store_dwordx4 {v(vACC + 5)}, {ones}, {sp(sWS)} sc1",
                 f"global_store_dwordx4 {v(vACC + 6)}, {ones}, {sp(sWS)} sc1"]
        ilate = o.get("ilate", 0)
        if not ilate:
            for l in inits:
                A(l)
        vg, vr = vT, vT + 1
        A(f"v_lshrrev_b32 {v(vg)}, 2, {v(vJ)}")
        A(f"v_and_b32 {v(vr)}, 3, {v(vJ)}")
        A(f"s_cmp_eq_u32 s{sT1}, 0")
        A("s_cbranch_scc0 L_rows_hi")
        A(f"v_mov_b32 {v(vKA0)}, {v(vJ)}")
        A(f"v_lshl_add_u32 {v(vKA1)}, {v(vg)}, 1, {v(vr)}")
        A(f"v_add_u32 {v(vKA1)}, 16, {v(vKA1)}")
        A(f"v_add_u32 {v(vT + 2)}, -4, {v(vJ)}")
        A(f"v_and_b32 {v(vT + 2)}, 15, {v(vT + 2)}")
        A(f"v_cmp_eq_u32 vcc, 3, {v(vr)}")
        A(f"v_cndmask_b32 {v(vKA1)}, {v(vKA1)}, {v(vT + 2)}, vcc")
        A(f"v_lshl_add_u32 {v(vPW0)}, {v(vJ)}, 2, {v(vGq)}")
        A(f"v_lshlrev_b32 {v(vPW0)}, 4, {v(vPW0)}")
        A(f"v_add_u32 {v(vPW1)}, 1024, {v(vPW0)}")
        A("s_branch L_rows_done")
        A("L_rows_hi:")
        A(f"v_lshrrev_b32 {v(vT + 2)}, 1, {v(vg)}")
        A(f"v_lshl_add_u32 {v(vKA0)}, {v(vg)}, 1, {v(vr)}")
        A(f"v_add3_u32 {v(vKA0)}, {v(vKA0)}, {v(vT + 2)}, 25")
        A(f"v_sub_u32 {v(vKA1)}, {v(vJ)}, {v(vg)}")
        A(f"v_add_u32 {v(vKA1)}, 35, {v(vKA1)}")
        A(f"v_lshrrev_b32 {v(vT + 2)}, 1, {v(vGq)}")
        A(f"v_lshl_add_u32 {v(vPW0)}, {v(vT + 2)}, 4, {v(vJ)}")
        A(f"v_and_b32 {v(vT + 2)}, 1, {v(vGq)}")
        A(f"v_lshl_add_u32 {v(vPW0)}, {v(vPW0)}, 1, {v(vT + 2)}")
        A(f"v_lshlrev_b32 {v(vPW0)}, 5, {v(vPW0)}")
        A(f"v_add_u32 {v(vPW0)}, 2048, {v(vPW0)}")
        A(f"v_lshlrev_b32 {v(vPW1)}, 6, {v(vLANE)}")
        A(f"v_add_u32 {v(vPW1)}, 4096, {v(vPW1)}")
        A("L_rows_done:")
        A(f"s_mul_i32 s{sTMP}, s{sT0}, {PC}")
        A(f"s_add_u32 s{sTMP}, s{sTMP}, {L_P + 64}")
        A(f"v_add_u32 {v(vPW0)}, s{sTMP}, {v(vPW0)}")
        A(f"v_add_u32 {v(vPW1)}, s{sTMP}, {v(vPW1)}")
        A(f"s_mul_i32 s{sTMP}, s{sT0}, {TABC}")
        A(f"v_lshl_add_u32 {v(vT + 2)}, {v(vGq)}, 4, s{sTMP}")
        A(f"s_movk_i32 s{sTMP + 1}, {ROWB}")
        A(f"v_mad_u32_u24 {v(vKA0)}, {v(vKA0)}, s{sTMP + 1}, {v(vT + 2)}")
        A(f"v_mad_u32_u24 {v(vKA1)}, {v(vKA1)}, s{sTMP + 1}, {v(vT + 2)}")
        A(f"v_mad_u32_u24 {v(vKB)}, {v(vJ)}, s{sTMP + 1}, {v(vT + 2)}")
        A(f"s_lshl_b32 s{sTMP + 1}, s{sT1}, 8")
        A(f"s_add_u32 m0, s{sTMP}, s{sTMP + 1}")
        A(f"s_mul_i32 s{sTMP}, s{sXCD}, 448")
        A(f"s_and_b32 s{sTMP}, s{sTMP}, 0xffffff80")
        A(f"s_mul_i32 s{sTMP + 1}, s{sPOS}, {16 * 3584}")
        A(f"s_add_u32 s{sTMP}, s{sTMP}, s{sTMP + 1}")
        A(f"v_lshrrev_b32 {v(vT + 2)}, 2, {v(vLANE)}")
        A(f"v_mul_u32_u24 {v(vT + 2)}, 3584, {v(vT + 2)}")
        A(f"v_and_b32 {v(vT + 3)}, 3, {v(vLANE)}")
        A(f"v_lshl_add_u32 {v(vT + 2)}, {v(vT + 3)}, 7, {v(vT + 2)}")
        A(f"v_add_u32 {v(vT + 2)}, s{sTMP}, {v(vT + 2)}")
        A(f"s_mul_i32 s{sTMP}, s{sL}, 7168")
        A(f"s_mul_i32 s{sTMP + 1}, s{sT1}, 3584")
        A(f"s_add_u32 s{sTMP}, s{sTMP}, s{sTMP + 1}")
        A(f"v_min_u32 {v(vT + 3)}, 27, {v(vLANE)}")
        A(f"v_lshl_add_u32 {v(vT + 3)}, {v(vT + 3)}, 7, s{sTMP}")
        A(f"s_cmp_eq_u32 s{sT1}, 0")
        A(f"s_cselect_b64 {sp(sWSEL)}, {sp(sWG)}, {sp(sWU)}")
        A(f"s_cmp_eq_u32 s{sT0}, 0")
        A(f"s_cselect_b64 {sp(sWSEL)}, {sp(sWSEL)}, {sp(sWD)}")
        A("s_cselect_b64 vcc, -1, 0")
        A(f"v_cndmask_b32 {v(21)}, {v(vT + 3)}, {v(vT + 2)}, vcc")
        wpf = f"global_load_dword v3, v21, {sp(sWSEL)}{' nt' if o.get('ntw', 0) else ''}"
        if o.get("wpf", 2) == 2:
            A(wpf)

        L2E = 1.4426950408889634
        l2e_hi = struct.unpack("<f", struct.pack("<f", L2E))[0]
        l2e_lo = L2E - l2e_hi
        a, b = K, K + 2
        A(f"s_mov_b32 s{sE}, {hex(f2u(l2e_hi))}")
        A(f"s_mov_b32 s{sE + 1}, {hex(f2u(l2e_lo))}")
        A(f"s_waitcnt vmcnt({(1 if o.get('wpf', 2) == 2 else 0) + (0 if ilate else 5) + ntlb}) lgkmcnt(0)")
        self.stamp("par")
        if ilate:
            for l in inits:
                A(l)
        if o.get("wpf", 2) == 6:
            A(wpf)
        A(f"s_lshl_b32 s{sTMP}, s{sDT}, 16")
        A(f"s_and_b32 s{sTMP + 1}, s{sDT}, s{sMASK}")
        A(f"s_cmp_lt_u32 s{sWAVE}, 2")
        A(f"s_cselect_b32 s{sDT}, s{sTMP}, s{sTMP + 1}")
        A(f"v_lshlrev_b32 {v(a)}, 16, {v(vP)}")
        A(f"v_mov_b32 {v(a + 1)}, s{sDT}")
        A(f"v_pk_mul_f32 {v(b, 2)}, {v(a, 2)}, {sp(sE)} op_sel_hi:[1,0]")
        A(f"v_pk_fma_f32 {v(b + 2, 2)}, {v(a, 2)}, {sp(sE)}, {v(b, 2)} op_sel_hi:[1,0,1] neg_lo:[0,0,1] neg_hi:[0,0,1]")
        A(f"v_exp_f32 {v(b)}, {v(b)}")
        A(f"v_exp_f32 {v(b + 1)}, {v(b + 1)}")
        A(f"v_pk_fma_f32 {v(b + 2, 2)}, {sp(sE)}, {v(a, 2)}, {v(b + 2, 2)} op_sel:[1,0,0] op_sel_hi:[1,1,1]")
        A(f"v_mul_f32 {v(b + 2)}, {hex(f2u(0.6931471805599453))}, {v(b + 2)}")
        A(f"v_mul_f32 {v(b + 3)}, {hex(f2u(0.6931471805599453))}, {v(b + 3)}")
        A(f"v_pk_fma_f32 {v(b, 2)}, {v(b, 2)}, {v(b + 2, 2)}, {v(b, 2)}")
        A(f"v_cvt_pk_bf16_f32 {v(a)}, {v(b)}, {v(b + 1)}")
        vdt, va2, vph = K + 6, K + 7, K + 8
        A(f"v_and_b32 {v(vdt)}, s{sMASK}, {v(a)}")
        A(f"v_lshlrev_b32 {v(va2)}, 16, {v(a)}")
        A(f"v_lshlrev_b32 {v(vph)}, 16, {v(vP + 1)}")
        A(f"v_mul_f32 {v(va2)}, {v(va2)}, {v(vdt)}")
        A(f"v_mul_f32 {v(vph)}, {v(vph)}, {v(vdt)}")
        A(f"v_mul_f32 {v(va2)}, {hex(f2u(-l2e_hi))}, {v(va2)}")
        A(f"v_mul_f32 {v(vph)}, 0.15915494, {v(vph)}")
        Wp = {p: K + 10 + 2 * p for p in range(1, 17)}
        Zp = {p: K + 42 + 2 * p for p in range(1, 8)}
        G = [K + 58, K + 60]
        TT = [K + 62, K + 64, K + 66, K + 68]
        RR = [K + 70, K + 72, K + 74, K + 76]
        CV = K + 80
        A(f"v_add_f32 {v(vdt)}, {v(vdt)}, {v(vdt)}")
        A(f"v_lshlrev_b32 {v(G[0])}, 16, {v(vP + 2)}")
        A(f"v_lshlrev_b32 {v(G[0] + 1)}, 16, {v(vP + 3)}")
        A(f"v_mul_f32 {v(G[0])}, {v(G[0])}, {v(vdt)}")
        A(f"v_mul_f32 {v(G[0] + 1)}, {v(G[0] + 1)}, {v(vdt)}")
        for n, (dst, sc) in enumerate(((Wp[1], 1.0), (Wp[16], 16.0), (Zp[1], 256.0))):
            t = TT[n]
            if sc == 1.0:
                A(f"v_exp_f32 {v(t)}, {v(va2)}")
                A(f"v_fract_f32 {v(t + 1)}, {v(vph)}")
            else:
                A(f"v_mul_f32 {v(t)}, {hex(f2u(sc))}, {v(va2)}")
                A(f"v_mul_f32 {v(t + 1)}, {hex(f2u(sc))}, {v(vph)}")
                A(f"v_exp_f32 {v(t)}, {v(t)}")
                A(f"v_fract_f32 {v(t + 1)}, {v(t + 1)}")
            A(f"v_cos_f32 {v(dst)}, {v(t + 1)}")
            A(f"v_sin_f32 {v(dst + 1)}, {v(t + 1)}")
        for n, dst in enumerate((Wp[1], Wp[16], Zp[1])):
            A(f"v_pk_mul_f32 {v(dst, 2)}, {v(dst, 2)}, {v(TT[n], 2)} op_sel_hi:[1,0]")
        jobs = [(1, Wp[1], None, None, 0), (16, Zp[1], None, None, 0), (47, G[0], None, None, 1)]
        wj = []
        for p in range(2, 16):
            hb = 1 << (p.bit_length() - 1)
            x, y = (p // 2, p // 2) if hb == p else (hb, p - hb)
            wj.append((p, Wp[p], Wp[x], Wp[y], 0))
        gj = [(47 + j, G[j & 1], G[(j - 1) & 1], Wp[16], 1) for j in range(1, 16)]
        zrow = {2: 25, 3: 30, 4: 35, 5: 38, 6: 41, 7: 44}
        zj = []
        for p in range(2, 8):
            hb = 1 << (p.bit_length() - 1)
            x, y = (p // 2, p // 2) if hb == p else (hb, p - hb)
            zj.append((zrow[p], Zp[p], Zp[x], Zp[y], 0))
        tj = [(16 + k, None, Zp[1], Wp[2 * k], 0) for k in range(1, 9)]
        for z in (2, 3):
            tj += [(zrow[z] + k, None, Zp[z], Wp[4 * k], 0) for k in range(1, 5)]
        for z in (4, 5, 6, 7):
            tj += [(zrow[z] + k, None, Zp[z], Wp[8 * k], 0) for k in range(1, 3)]
        first = []
        for i in range(max(len(wj), len(gj), len(zj))):
            for q in (wj, gj, zj):
                if i < len(q):
                    first.append(q[i])
        jobs += first + tj
        A(f"v_mov_b32 {v(CV + 15)}, 0x3f80")
        pend = [(0, CV + 15)]
        slot = 0
        nb = 0
        b1_at = o.get("b1_at", 0)
        batch = o.get("batch", 6)

        def do_b1():
            self.stamp("setup")
            A(f"s_waitcnt vmcnt({1 if (o.get('wpf', 2) == 2 and not ilate) or o.get('wpf', 2) == 6 else 0})")
            self.stamp("idr")
            A("s_barrier")
            self.stamp("b1")
            if o.get("wpf", 2) == 1:
                A(wpf)
        if b1_at == 0:
            do_b1()
        for n, (row, dst, x, y, conj) in enumerate(jobs):
            if x is not None:
                if dst is None:
                    dst = RR[n & 3]
                for ins in self.cmul(dst, x, y, TT[n & 3]):
                    A(ins)
            A(f"v_cvt_pk_bf16_f32 {v(CV + slot)}, {v(dst)}, {'-' if conj else ''}{v(dst + 1)}")
            pend.append((row, CV + slot))
            slot = (slot + 1) % 15
            if len(pend) >= batch or n == len(jobs) - 1:
                for row_, reg in pend:
                    A(f"ds_write_addtid_b32 {v(reg)} offset:{row_ * ROWB}")
                pend = []
                nb += 1
                if nb == b1_at:
                    do_b1()
        A("s_waitcnt lgkmcnt(0)")
        self.stamp("kgen1")
        A("s_barrier")
        if o.get("wpf", 2) == 3:
            A(wpf)
        fB, fA0, fA1 = K, K + 32, K + 64
        for s in range(4):
            A(f"ds_read_b128 {v(fB + 4 * s, 4)}, {v(vKB)} offset:{47 * ROWB + 64 * s}")
            A(f"ds_read_b128 {v(fA0 + 4 * s, 4)}, {v(vKA0)} offset:{64 * s}")
            A(f"ds_read_b128 {v(fA1 + 4 * s, 4)}, {v(vKA1)} offset:{64 * s}")
        D0, D1 = vACC, vACC + 4
        for s in range(8):
            s2 = s + 4
            A(f"s_waitcnt lgkmcnt({9 if s2 < 8 else 3 * (7 - s)})")
            c0 = "0" if s == 0 else v(D0, 4)
            c1 = "0" if s == 0 else v(D1, 4)
            A(f"v_mfma_f32_16x16x32_bf16 {v(D0, 4)}, {v(fA0 + 4 * s, 4)}, {v(fB + 4 * s, 4)}, {c0}")
            if s2 < 8:
                A(f"ds_read_b128 {v(fB + 4 * s2, 4)}, {v(vKB)} offset:{47 * ROWB + 64 * s2}")
                A(f"ds_read_b128 {v(fA0 + 4 * s2, 4)}, {v(vKA0)} offset:{64 * s2}")
            A(f"v_mfma_f32_16x16x32_bf16 {v(D1, 4)}, {v(fA1 + 4 * s, 4)}, {v(fB + 4 * s, 4)}, {c1}")
            if s2 < 8:
                A(f"ds_read_b128 {v(fA1 + 4 * s2, 4)}, {v(vKA1)} offset:{64 * s2}")
        E = K + 96
        A(f"s_bitcmp1_b32 s{sWAVE}, 0")
        A(f"v_cmp_eq_u32 vcc, 0, {v(vLANE)}")
        A("s_nop 5")
        A("s_cbranch_scc0 L_exp_lo")
        seq2 = ["aa", "aa", "aa", "ba", "bb", "bb", "cb", "cc"]
        seq3 = ["aa", "aa", "aa", "aa", "aa", "ba", "bb", "bb", "bb", "bb", "cb", "cc", "cc", "cc"]
        ix = {"a": 0, "b": 1, "c": 2}
        for k, s in enumerate(seq3):
            A(f"v_cvt_pk_bf16_f32 {v(E + 8 + k)}, {v(D1 + ix[s[0]])}, {v(D1 + ix[s[1]])}")
        for k, w in enumerate((0, 4, 6, 10)):
            A(f"ds_write_b128 {v(vPW1)}, {v(E + 8 + w, 4)} offset:{16 * k}")
        for k, s in enumerate(seq2):
            A(f"v_cvt_pk_bf16_f32 {v(E + k)}, {v(D0 + ix[s[0]])}, {v(D0 + ix[s[1]])}")
        A(f"ds_write_b128 {v(vPW0)}, {v(E, 4)}")
        A(f"ds_write_b128 {v(vPW0)}, {v(E + 4, 4)} offset:16")
        A("L_exp_done:")
        T = self.tail
        T("L_exp_lo:")
        T(f"v_mov_b32_dpp {v(D1 + 3)}, {v(D1 + 3)} row_ror:1 row_mask:0x1 bank_mask:0xf")
        T(f"v_cvt_pk_bf16_f32 {v(E + 1)}, {v(D0 + 1)}, {v(D0)}")
        T(f"v_cvt_pk_bf16_f32 {v(E + 2)}, {v(D0 + 2)}, {v(D0 + 1)}")
        T(f"v_cvt_pk_bf16_f32 {v(E + 3)}, {v(D0 + 3)}, {v(D0 + 2)}")
        T(f"v_cndmask_b32 {v(E + 8)}, {v(D1 + 3)}, 0, vcc")
        T(f"v_cndmask_b32 {v(E + 9)}, {v(D1)}, {v(D1 + 3)}, vcc")
        T(f"v_cvt_pk_bf16_f32 {v(E)}, {v(D0)}, {v(E + 8)}")
        T(f"v_cvt_pk_bf16_f32 {v(E + 4)}, {v(D1)}, {v(E + 9)}")
        T(f"v_cvt_pk_bf16_f32 {v(E + 5)}, {v(D1)}, {v(D1)}")
        T(f"v_cvt_pk_bf16_f32 {v(E + 6)}, {v(D1 + 1)}, {v(D1)}")
        T(f"v_cvt_pk_bf16_f32 {v(E + 7)}, {v(D1 + 2)}, {v(D1 + 1)}")
        T(f"ds_write_b128 {v(vPW0)}, {v(E, 4)}")
        T(f"ds_write_b128 {v(vPW1)}, {v(E + 4, 4)}")
        T("s_branch L_exp_done")
        A("s_waitcnt lgkmcnt(0)")
        self.stamp("kgen2")
        A("s_barrier")
        if o.get("wpf", 2) == 4:
            A(wpf)

        def rdA(buf, rho, m):
            return [f"ds_read2_b32 {v(buf + 4 * m, 2)}, {v(vAA + m)} offset0:{64 * rho + 6} offset1:{64 * rho + 4}",
                    f"ds_read2_b32 {v(buf + 4 * m + 2, 2)}, {v(vAA + m)} offset0:{64 * rho + 2} offset1:{64 * rho}"]

        def rdB(buf, rho, n):
            return [f"ds_read_b128 {v(buf + 4 * n, 4)}, {v(vBA)} offset:{128 * (3 - rho) + 512 * (7 - n)}"]

        for m in range(8):
            for l in rdA(vA0, 0, m):
                A(l)
        A(f"s_mul_i32 s{sTMP}, s{sL}, {RS}")
        A(f"s_lshl_b32 s{sTMP + 1}, s{sWAVE}, 11")
        A(f"s_add_u32 s{sTMP}, s{sTMP}, s{sTMP + 1}")
        A(f"s_add_u32 s{sTMP}, s{sTMP}, {W_REG + O_X2}")
        A(f"v_lshl_add_u32 {v(vT)}, {v(vLANE)}, 4, s{sTMP}")
        A(f"v_lshlrev_b32 {v(vT + 1)}, {KS}, v0")
        A(f"v_add_u32 {v(vT + 1)}, {W_KEY}, {v(vT + 1)}")
        A(f"s_lshl_b32 s{sTMP}, s{sWAVE}, 2")
        A(f"s_add_u32 s{sTMP}, s{sTMP}, {L_REDK}")
        A(f"v_mov_b32 {v(vT + 3)}, s{sTMP}")
        A("s_waitcnt lgkmcnt(0)")
        self.stamp("apre")
        A("s_barrier")
        self.stamp("b3")
        if o.get("wpf", 2) == 5:
            A(wpf)
        if o.get("prio", 1):
            A("s_setprio 2")

        bufA, bufB = [vA0, vA1], [vB0, vB1]
        for n in range(7, -1, -1):
            for l in rdB(vB0, 0, n):
                A(l)
        started = set()
        for rho in range(4):
            a_, b_ = bufA[rho & 1], bufB[rho & 1]
            order = [(n - 7 + tb, tb, n) for n in range(7, -1, -1) for tb in range(7 - n, 8)]
            if rho == 3:
                order = [(n - 7 + tb, tb, n) for tb in range(8) for n in range(7 - tb, 8)]
            fill = []
            if rho + 1 < 4:
                nb_, na_ = bufB[(rho + 1) & 1], bufA[(rho + 1) & 1]
                for m in range(8):
                    fill += rdB(nb_, rho + 1, 7 - m)
                    fill += rdA(na_, rho + 1, m)
            issued = 0
            seen = set()
            done_at = {}
            for i, (m, tb, n) in enumerate(order):
                done_at[tb] = i
            for i, (m, tb, n) in enumerate(order):
                if rho == 0 and n not in seen:
                    A(f"s_waitcnt lgkmcnt({min(15, n + issued)})")
                    seen.add(n)
                elif i == 0:
                    A("s_waitcnt lgkmcnt(0)")
                acc = v(vACC + 4 * tb, 4)
                c = acc if tb in started else "0"
                started.add(tb)
                A(f"v_mfma_f32_16x16x32_bf16 {acc}, {v(a_ + 4 * m, 4)}, {v(b_ + 4 * n, 4)}, {c}")
                if i >= 1 and fill:
                    A(fill.pop(0))
                    issued += 1
                if rho == 3:
                    for t in range(7):
                        if done_at[t] + 8 == i or (i == len(order) - 1 and done_at[t] + 8 > i):
                            A(f"ds_write_b128 {v(vEW)}, {v(vACC + 4 * t, 4)} offset:{t * TBS}")
            assert not fill
        A(f"ds_write_b128 {v(vEW)}, {v(vACC + 28, 4)} offset:{7 * TBS}")
        self.stamp("conv")
        A("s_waitcnt lgkmcnt(0)")
        A("s_barrier")
        for i in range(2):
            for s in range(4):
                A(f"ds_read_b128 {v(K + 16 * i + 4 * s, 4)}, {v(vER)} offset:{s * 8 * TBS + i * TBS}")
        for i in range(2):
            A(f"s_waitcnt lgkmcnt({4 * (1 - i)})")
            b0 = K + 16 * i
            for c in range(2):
                for h in range(2):
                    A(f"v_pk_add_f32 {v(b0 + 8 * c + 2 * h, 2)}, {v(b0 + 8 * c + 2 * h, 2)}, {v(b0 + 8 * c + 4 + 2 * h, 2)}")
            for c in range(2):
                for h in range(2):
                    A(f"v_cvt_pk_bf16_f32 {v(K + 32 + 4 * i + 2 * c + h)}, {v(b0 + 8 * c + 2 * h)}, {v(b0 + 8 * c + 2 * h + 1)}")
            A(f"global_store_dwordx4 {v(vT)}, {v(K + 32 + 4 * i, 4)}, {sp(sWS)} offset:{1024 * i} sc1")
        self.stamp("x2st")
        A("s_waitcnt vmcnt(0)")
        self.stamp("x2dr")
        A("s_barrier")
        A(f"s_cmp_eq_u32 s{sWAVE}, 0")
        A("s_cbranch_scc0 L_cfin")
        for q in range(1, 4):
            A(f"v_add_u32 {v(vT + 8 + q)}, {(64 * q) << KS}, {v(vT + 1)}")
        A("s_barrier")
        self.key_calc(K, vRA, vLANE)
        A("s_mov_b64 exec, 1")
        A(f"global_store_dword {v(22)}, {v(K + 8)}, {sp(sWS)} sc1")
        A("s_mov_b64 exec, -1")
        self.stamp("key")
        A("s_waitcnt vmcnt(0)")
        self.stamp("keydr")
        k2 = vT + 4
        kl = [f"global_load_dword {v(K + q)}, {v(vT + 8 + q) if q else v(vT + 1)}, {sp(sWS)} sc1" for q in range(4)]
        for l in kl:
            A(l)
        A("s_waitcnt vmcnt(0)")
        self.poll("key", kl, [f"v_max3_u32 {v(k2)}, {v(K)}, {v(K + 1)}, {v(K + 2)}",
                              f"v_max_u32 {v(k2)}, {v(k2)}, {v(K + 3)}",
                              f"v_cmp_eq_u32 vcc, -1, {v(k2)}"])
        self.stamp("keyld")
        A(f"v_max_u32_dpp {v(k2)}, {v(k2)}, {v(k2)} quad_perm:[1,0,3,2] row_mask:0xf bank_mask:0xf")
        A(f"v_max_u32_dpp {v(k2)}, {v(k2)}, {v(k2)} quad_perm:[2,3,0,1] row_mask:0xf bank_mask:0xf")
        A(f"v_max_u32_dpp {v(k2)}, {v(k2)}, {v(k2)} row_half_mirror row_mask:0xf bank_mask:0xf")
        A(f"v_max_u32_dpp {v(k2)}, {v(k2)}, {v(k2)} row_mirror row_mask:0xf bank_mask:0xf")
        A(f"v_max_u32_dpp {v(k2)}, {v(k2)}, {v(k2)} row_bcast:15 row_mask:0xa bank_mask:0xf")
        A(f"v_max_u32_dpp {v(k2)}, {v(k2)}, {v(k2)} row_bcast:31 row_mask:0xc bank_mask:0xf")
        A("s_mov_b32 exec_lo, 0")
        A("s_brev_b32 exec_hi, 1")
        A(f"ds_write_b32 {v(vT + 3)}, {v(k2)}")
        A("s_waitcnt lgkmcnt(0)")
        A("s_barrier")
        A("L_cfin:")
        self.finish("C")

    def text(self):
        lines = self.build()
        src = open("sequential_preLN__ssm_conv_s4d__moe_arch_mod__prompt.s.ref").read()
        head = [l for l in src.split("\n") if l.startswith(";") and "@launch" not in l]
        head = head[:head.index("; Override launch geometry by editing the next line (default: block=256,")]
        out = head + [f"; @launch grid=(256,1,1) block=(512,1,1) lds={LDS_BYTES}",
                      '.amdgcn_target "amdgcn-amd-amdhsa--gfx950"', ".text", f".globl {KNAME}", ".p2align 8",
                      f".type {KNAME},@function"]
        out += [l if l.endswith(":") else "    " + l for l in lines]
        out += [".section .rodata,\"a\"", ".p2align 6", f".amdhsa_kernel {KNAME}",
                "  .amdhsa_next_free_vgpr 224", "  .amdhsa_next_free_sgpr 102", "  .amdhsa_accum_offset 224",
                "  .amdhsa_group_segment_fixed_size 0", "  .amdhsa_kernarg_size 120", "  .amdhsa_user_sgpr_count 2",
                "  .amdhsa_user_sgpr_kernarg_segment_ptr 1", "  .amdhsa_system_sgpr_workgroup_id_x 1",
                ".end_amdhsa_kernel", ""]
        return "\n".join(out)


if __name__ == "__main__":
    out = sys.argv[1]
    opts = {}
    stamp = False
    for a in sys.argv[2:]:
        if a == "stamp":
            stamp = True
        else:
            k, val = a.split("=")
            opts[k] = val if k == 'pr' else int(val)
    g = Gen(stamp, opts)
    open(out, "w").write(g.text())
    if stamp:
        open(out + ".names", "w").write(" ".join(g.allnames["R"]) + "\n" + " ".join(g.allnames["C"]))
    print(g.info, "lds", LDS_BYTES)
```

```python
import sys
import struct
from asmlib import Asm, align8

KNAME = "sequential_preLN__ssm_conv_s4d__moe_arch_mod__prompt_kernel"


def f2u(x):
    return struct.unpack("<I", struct.pack("<f", x))[0]


W_FLAG = 0x1000 + (int(__import__('os').environ.get('WOFF', '0')) << 20)
W_KEY = 0x9000 + (int(__import__('os').environ.get('WOFF', '0')) << 20)
W_FLAG2 = 0x11000 + (int(__import__('os').environ.get('WOFF', '0')) << 20)
import os
WOFF = int(os.environ.get('WOFF', '0')) << 20
W_REG = 0x38000 + WOFF
RS = 20608
O_X1, O_X2, O_SLOT, O_PART = 0, 8192, 16384, 18432
W_STAMP = 0x800000
ROWB = 544
TABC = 63 * ROWB
L_TAB = 0
L_P = 68608
PC = 8256
L_U = L_P + 2 * PC
UC = 4608
L_RED1 = (L_U + 2 * UC + 255) // 256 * 256
L_RED2 = L_RED1 + 256
L_SUMW = L_RED2 + 384
L_REDK = L_SUMW + 16
L_REDF = L_REDK + 16
LDS_BYTES = L_REDF + 256
L_EPI = 0
TBS = 1152
sX, sLA, sAI, sCR, sCI, sLDT, sD = 4, 6, 8, 10, 12, 14, 16
sWR, sWG, sWU, sWD, sOUT, sDBG, sWS = 20, 22, 24, 26, 28, 30, 32
sL, sPOS, sXCD, sWAVE, sG, sDT, sT0, sT1, sSPIN, sF = 34, 35, 36, 37, 38, 39, 40, 41, 42, 43
sODD = 44
sSELLO, sSELHI, sONES, sMASK = 46, 47, 48, 49
sWSEL = 50
sBEST, sWIN, sRP0, sRP1 = 52, 53, 54, 55
sH = 56
sE = 64
sTMP = 66
sOWN = 71
sSTAMP = 72


def sp(r):
    return f"s[{r}:{r + 1}]"


def v(r, n=1):
    return f"v{r}" if n == 1 else f"v[{r}:{r + n - 1}]"


class Gen:
    def __init__(self, stamp=False, opts=None):
        self.A = Asm()
        self.tail = Asm()
        self.stamp_on = stamp
        self.nstamp = 0
        self.names = []
        self.o = dict(opts or {})
        self.only = None
        self.role = "R"
        if "pr" in self.o:
            self.only = tuple(self.o["pr"].split("."))
            self.stamp_on = True
            self.o["probe"] = 1 if self.only[0] == "R" else 101

    def stamp(self, name):
        if not self.stamp_on:
            return
        if self.only and name != "start" and (self.role, name) != self.only:
            return
        k = self.nstamp
        self.nstamp += 1
        self.names.append(name)
        assert sSTAMP + k < 100
        self.A(f"s_memrealtime s[100:101]")
        self.A("s_waitcnt lgkmcnt(0)")
        self.A(f"s_mov_b32 s{sSTAMP + k}, s100")

    def poll(self, name, loads, check, base_exec="-1"):
        A = self.A
        for c in check:
            A(c)
        A(f"s_cbranch_vccnz L_retry_{name}")
        A(f"L_ok_{name}:")
        T = self.tail
        T(f"L_retry_{name}:")
        T(f"s_mov_b32 s{sSPIN}, 0x40000")
        T(f"L_again_{name}:")
        T(f"s_sub_u32 s{sSPIN}, s{sSPIN}, 1")
        T(f"s_cbranch_scc1 L_ok_{name}")
        T("s_mov_b64 exec, vcc")
        for l in loads:
            T(l)
        T("s_waitcnt vmcnt(0)")
        for c in check:
            T(c)
        T(f"s_mov_b64 exec, {base_exec}")
        T(f"s_cbranch_vccnz L_again_{name}")
        T(f"s_branch L_ok_{name}")

    def cmul(self, d, x, y, t):
        return [f"v_pk_mul_f32 {v(t, 2)}, {v(x, 2)}, {v(y, 2)} op_sel:[0,0] op_sel_hi:[0,1]",
                f"v_pk_fma_f32 {v(d, 2)}, {v(x, 2)}, {v(y, 2)}, {v(t, 2)} op_sel:[1,1,0] op_sel_hi:[1,0,1] neg_lo:[1,0,0]"]

    def reduce8(self, V, t):
        A = self.A
        for i in range(4):
            A(f"v_add_f32_dpp {v(V[i])}, {v(V[i])}, {v(V[i])} row_ror:8 row_mask:0xf bank_mask:0x3")
        for i in range(4):
            A(f"v_add_f32_dpp {v(V[i])}, {v(V[i + 4])}, {v(V[i + 4])} row_ror:8 row_mask:0xf bank_mask:0xc")
        for i in range(2):
            A(f"v_add_f32_dpp {v(V[i])}, {v(V[i])}, {v(V[i])} row_shl:4 row_mask:0xf bank_mask:0x5")
        for i in range(2):
            A(f"v_add_f32_dpp {v(V[i])}, {v(V[i + 2])}, {v(V[i + 2])} row_shr:4 row_mask:0xf bank_mask:0xa")
        A(f"v_permlane32_swap_b32 {v(V[0])}, {v(V[1])}")
        A(f"v_add_f32 {v(V[0])}, {v(V[0])}, {v(V[1])}")
        A(f"v_add_f32_dpp {v(V[0])}, {v(V[0])}, {v(V[0])} quad_perm:[2,3,0,1] row_mask:0xf bank_mask:0xf")
        A(f"v_mov_b32 {v(t)}, {v(V[0])}")
        A(f"v_permlane16_swap_b32 {v(V[0])}, {v(t)}")
        A(f"v_add_f32 {v(V[0])}, {v(V[0])}, {v(t)}")

    def row_stats(self, S, Q, negm, rinv, t):
        A = self.A
        A(f"v_pk_add_f32 {v(S, 2)}, {v(S, 2)}, {v(S + 2, 2)}")
        A(f"v_pk_add_f32 {v(Q, 2)}, {v(Q, 2)}, {v(Q + 2, 2)}")
        A(f"v_add_f32 {v(S)}, {v(S)}, {v(S + 1)}")
        A(f"v_add_f32 {v(Q)}, {v(Q)}, {v(Q + 1)}")
        A(f"v_mul_f32 {v(S)}, {hex(f2u(1 / 512))}, {v(S)}")
        A(f"v_mul_f32 {v(Q)}, {hex(f2u(1 / 512))}, {v(Q)}")
        A(f"v_fma_f32 {v(Q)}, -{v(S)}, {v(S)}, {v(Q)}")
        A(f"v_max_f32 {v(Q)}, 0, {v(Q)}")
        A(f"v_cvt_pk_bf16_f32 {v(t)}, -{v(S)}, {v(Q)}")
        A(f"v_and_b32 {v(Q)}, s{sMASK}, {v(t)}")
        A(f"v_add_f32 {v(Q)}, {hex(f2u(1e-5))}, {v(Q)}")
        A(f"v_cvt_pk_bf16_f32 {v(Q)}, {v(Q)}, {v(Q)}")
        A(f"v_and_b32 {v(Q)}, s{sMASK}, {v(Q)}")
        A(f"v_sqrt_f32 {v(Q)}, {v(Q)}")
        A(f"v_lshlrev_b32 {v(negm)}, 16, {v(t)}")
        A(f"v_cvt_pk_bf16_f32 {v(Q)}, {v(Q)}, {v(Q)}")
        A(f"v_and_b32 {v(Q)}, s{sMASK}, {v(Q)}")
        A(f"v_rcp_f32 {v(rinv)}, {v(Q)}")

    def spread(self, val, dst, t):
        A = self.A
        for r in range(4):
            A(f"v_mov_b32_dpp {v(t + r)}, {v(val)} row_newbcast:{4 + r} row_mask:0xf bank_mask:0xf")
        for r in range(4):
            A(f"v_cndmask_b32_dpp {v(dst + r)}, {v(val)}, {v(t + r)}, vcc row_newbcast:{r} row_mask:0xf bank_mask:0xf")

    def key_calc(self, K, vRA, vLANE):
        A = self.A
        A(f"v_mov_b32 {v(K + 14)}, {L_SUMW}")
        A(f"ds_read_b128 {v(K, 4)}, {v(vRA)} offset:{L_RED2 - L_RED1}")
        A(f"ds_read_b128 {v(K + 4, 4)}, {v(vRA)} offset:{L_RED2 - L_RED1 + 128}")
        A(f"ds_read_b128 {v(K + 8, 4)}, {v(vRA)} offset:{L_RED2 - L_RED1 + 256}")
        A(f"ds_read_b32 {v(K + 15)}, {v(K + 14)}")
        A(f"s_lshl_b32 s{sTMP}, s{sL}, 3")
        A(f"s_sub_u32 s{sTMP}, 2047, s{sTMP}")
        A(f"v_and_b32 {v(K + 14)}, 7, {v(vLANE)}")
        A(f"v_sub_u32 {v(K + 14)}, s{sTMP}, {v(K + 14)}")
        A("s_waitcnt lgkmcnt(2)")
        self.row_stats(K, K + 4, K + 12, K + 13, K + 28)
        A("s_waitcnt lgkmcnt(0)")
        A(f"v_pk_add_f32 {v(K + 8, 2)}, {v(K + 8, 2)}, {v(K + 10, 2)}")
        A(f"v_add_f32 {v(K + 8)}, {v(K + 8)}, {v(K + 9)}")
        A(f"v_fmac_f32 {v(K + 8)}, {v(K + 12)}, {v(K + 15)}")
        A(f"v_mul_f32 {v(K + 8)}, {v(K + 8)}, {v(K + 13)}")
        A(f"v_ashrrev_i32 {v(K + 9)}, 31, {v(K + 8)}")
        A(f"v_or_b32 {v(K + 9)}, 0x80000000, {v(K + 9)}")
        A(f"v_xor_b32 {v(K + 8)}, {v(K + 8)}, {v(K + 9)}")
        A(f"v_and_b32 {v(K + 8)}, 0xfffff800, {v(K + 8)}")
        A(f"v_or_b32 {v(K + 8)}, {v(K + 8)}, {v(K + 14)}")
        A(f"v_min_u32 {v(K + 8)}, -2, {v(K + 8)}")
        A(f"v_max_u32_dpp {v(K + 8)}, {v(K + 8)}, {v(K + 8)} quad_perm:[1,0,3,2] row_mask:0xf bank_mask:0xf")
        A(f"v_max_u32_dpp {v(K + 8)}, {v(K + 8)}, {v(K + 8)} quad_perm:[2,3,0,1] row_mask:0xf bank_mask:0xf")
        A(f"v_max_u32_dpp {v(K + 8)}, {v(K + 8)}, {v(K + 8)} row_half_mirror row_mask:0xf bank_mask:0xf")

    def finish(self, role):
        A = self.A
        o = self.o
        if self.stamp_on:
            self.stamp("end")
            self.allnames[role] = self.names
        if self.stamp_on and "probe" in o:
            k = o["probe"]
            if k == 98 and role == "R":
                A(f"s_getreg_b32 s{sTMP}, hwreg(HW_REG_XCC_ID, 0, 4)")
                A(f"s_sub_u32 s{sTMP}, s{sTMP}, s2")
                A(f"s_and_b32 s{sTMP}, s{sTMP}, 7")
                A(f"s_mul_i32 s{sTMP}, s{sTMP}, 1000")
                A(f"s_add_u32 s{sTMP}, s{sTMP}, 2000")
            elif k == 99 and role == "R":
                A("s_memtime s[96:97]")
                A("s_waitcnt lgkmcnt(0)")
                A("s_sub_u32 s96, s96, s98")
                A(f"s_sub_u32 s97, s{sSTAMP + self.nstamp - 1}, s{sSTAMP}")
                A("s_mov_b64 exec, -1")
                A("v_cvt_f32_u32 v2, s96")
                A("v_cvt_f32_u32 v3, s97")
                A("v_rcp_f32 v3, v3")
                A("s_nop 1")
                A("v_mul_f32 v2, v2, v3")
                A("v_mul_f32 v2, 0x43c80000, v2")
                A("v_cvt_u32_f32 v2, v2")
                A("s_nop 1")
                A(f"v_readfirstlane_b32 s{sTMP}, v2")
                A(f"s_add_u32 s{sTMP}, s{sTMP}, 2000")
            elif k < 0 and role == "R":
                A(f"s_mov_b32 s{sTMP}, {-k}")
            elif k >= 0 and (k >= 100) == (role == "C"):
                A(f"s_sub_u32 s{sTMP}, s{sSTAMP + k % 100}, s{sSTAMP}")
                A(f"s_cmp_lt_u32 s{sTMP}, 3000")
                A(f"s_cselect_b32 s{sTMP}, s{sTMP}, 0")
                A(f"s_mul_i32 s{sTMP}, s{sTMP}, 20")
                A(f"s_add_u32 s{sTMP}, s{sTMP}, 2000")
                if role == "C":
                    A(f"s_cmp_eq_u32 s{sWAVE}, 0")
                    A(f"s_cselect_b32 s{sTMP}, s{sTMP}, 0")
            else:
                A(f"s_mov_b32 s{sTMP}, 0")
            A(f"L_spin{role}:")
            A("s_memrealtime s[100:101]")
            A("s_waitcnt lgkmcnt(0)")
            A(f"s_sub_u32 s100, s100, s{sSTAMP}")
            A(f"s_cmp_lt_u32 s100, s{sTMP}")
            A(f"s_cbranch_scc1 L_spin{role}")
        elif self.stamp_on:
            A("s_mov_b64 exec, 1")
            A(f"s_lshl_b32 s{sTMP}, s2, 3")
            A(f"s_add_u32 s{sTMP}, s{sTMP}, s{sWAVE}")
            if role == "C":
                A(f"s_add_u32 s{sTMP}, s{sTMP}, 4")
            A(f"s_lshl_b32 s{sTMP}, s{sTMP}, 7")
            A(f"s_add_u32 s{sTMP}, s{sTMP}, {W_STAMP}")
            A(f"v_mov_b32 v1, s{sTMP}")
            for k in range(self.nstamp):
                A(f"v_mov_b32 v2, s{sSTAMP + k}")
                A(f"global_store_dword v1, v2, {sp(sWS)} offset:{4 * k}")
        A("s_endpgm")

    def build(self):
        A = self.A
        self.allnames = {}
        A(f"{KNAME}:")
        A("s_cmp_ge_u32 s2, 256")
        A("s_cbranch_scc1 L_end")
        self.stamp("start")
        if self.o.get("probe", 0) == 99:
            A("s_memtime s[98:99]")
        if self.o.get("codepf", 1):
            A(f"s_getpc_b64 {sp(sE)}")
            A("L_pc:")
            A("v_lshlrev_b32 v2, 5, v0")
            A(f"v_min_u32 v2, L_codeend-L_pc-4, v2")
            A(f"global_load_dword v3, v2, {sp(sE)}")
        A("s_load_dwordx16 s[4:19], s[0:1], 0")
        A("s_load_dwordx8 s[20:27], s[0:1], 64")
        A("s_load_dwordx4 s[28:31], s[0:1], 96")
        A("s_load_dwordx2 s[32:33], s[0:1], 112")
        A("v_lshrrev_b32 v4, 6, v0")
        A(f"s_and_b32 s{sXCD}, s2, 7")
        A(f"v_readfirstlane_b32 s{sWAVE}, v4")
        A(f"s_lshr_b32 s{sPOS}, s2, 3")
        A(f"s_lshl_b32 s{sL}, s{sXCD}, 5")
        A(f"s_add_u32 s{sL}, s{sL}, s{sPOS}")
        A("v_and_b32 v1, 63, v0")
        A(f"s_mov_b32 s{sMASK}, 0xffff0000")
        pre = self.o.get("pre", 0)
        if pre:
            A("s_waitcnt lgkmcnt(0)")
            n = pre % 10
            kind = pre // 10
            A(f"s_mul_i32 s{sT0}, s{sL}, {n * 4096 + 128}")
            A(f"s_add_u32 s{sT0}, s{sT0}, {32 << 20}")
            A("v_and_b32 v5, 0xff, v0")
            A(f"v_lshl_add_u32 v5, v5, 4, s{sT0}")
            A(f"s_cmp_ge_u32 s{sWAVE}, 4")
            A("s_cbranch_scc1 L_pre")
            if kind in (2, 3):
                A("s_mov_b64 exec, 1")
                A(f"global_load_dword v8, v5, {sp(sWS)}")
                A("s_mov_b64 exec, -1")
                A("s_waitcnt vmcnt(0)")
                if kind == 3:
                    self.nstamp = 0
                    self.names = []
                    self.stamp("start")
            if kind in (8, 9, 10, 11):
                A("v_lshrrev_b32 v12, 1, v0")
                A("v_and_b32 v13, 1, v0")
                A("v_lshlrev_b32 v12, 3, v12")
                A(f"s_lshl_b32 s{sT0}, s{sL}, 13")
                A("v_lshl_add_u32 v14, v13, 12, v12")
                A(f"v_add_u32 v14, s{sT0}, v14")
                for r in range(4):
                    A(f"global_load_dwordx2 v[{16 + 2 * r}:{17 + 2 * r}], v14, s[18:19] offset:{1024 * r}{' nt' if kind != 10 else ''}")
                ny = 0
                if kind in (9, 11):
                    A(f"global_load_dwordx2 v[24:25], v12, {sp(sD)}")
                    A(f"global_load_dwordx2 v[26:27], v12, {sp(sWR)}")
                    A("v_lshlrev_b32 v13, 4, v1")
                    A(f"global_load_dwordx4 v[28:31], v13, {sp(sWR)}")
                    ny = 3
                if kind == 11:
                    A(f"s_load_dword s{sG}, {sp(sWS)}, 0")
                for k in range(n):
                    A(f"global_store_dwordx4 v5, v[8:11], {sp(sWS)} sc1")
                    A("v_add_u32 v5, 4096, v5")
                A(f"s_waitcnt vmcnt({n + ny})")
                self.stamp("pre")
                n = 0
            for k in range(n):
                if kind == 1:
                    A(f"global_load_dwordx4 v[8:11], v5, {sp(sWS)}")
                elif kind == 6:
                    if k == 0:
                        A(f"s_lshl_b32 s{sT0}, s{sL}, 7")
                        A(f"v_mov_b32 v6, s{sT0}")
                        A("s_mov_b64 exec, 1")
                    A(f"global_load_dword v{8 + k}, v6, {sp((sX, sLA, sAI, sCR, sCI, sWG, sWU, sWD, sOUT)[k])}")
                    if k == n - 1:
                        A("s_mov_b64 exec, -1")
                elif kind == 7:
                    if k == 0:
                        A(f"v_lshlrev_b32 v6, 3, v1")
                    A(f"global_load_dwordx2 v[{8 + 2 * k}:{9 + 2 * k}], v6, {sp((sD, sWR)[k])}")
                elif kind == 5:
                    A(f"global_load_dwordx4 v[8:11], v5, {sp(sWS)} nt")
                elif kind == 4:
                    A(f"global_store_dwordx4 v5, v[8:11], {sp(sWS)}")
                else:
                    A(f"global_store_dwordx4 v5, v[8:11], {sp(sWS)} sc1")
                A("v_add_u32 v5, 4096, v5")
            A("s_waitcnt vmcnt(0)")
            if kind < 8:
                self.stamp("pre")
            A("L_pre:")
            A("s_barrier")
        A(f"s_cmp_ge_u32 s{sWAVE}, 4")
        A("s_cbranch_scc1 L_chan")
        self.rows()
        self.names = self.names[:1]
        self.nstamp = min(self.nstamp, 1)
        A(".p2align 6")
        self.role = "C"
        self.chans()
        A("L_end:")
        A("s_endpgm")
        for l in self.tail.L:
            A(l)
        A("L_codeend:")
        lines, nops = A.padded()
        lines, nbytes, promoted, missed = align8(lines)
        self.info = dict(nops=nops, bytes=nbytes, promoted=promoted, missed=missed, lines=len(lines))
        return lines

    def rows(self):
        A = self.A
        o = self.o
        vLANE = 1
        vX, vU, vD, vWR = 212, 10, 18, 20
        vREG, vRD, vAUX = 22, 23, 24
        vKEY, vSW, vRA, vFL, vUW = 26, 27, 28, 29, 30
        vT = 32
        vWG, vWD = 40, 72
        vY = 88
        vONE = 96
        K = 100
        L2E = 1.4426950408889634
        A(f"v_lshrrev_b32 {v(vT)}, 1, v0")
        A(f"v_and_b32 {v(vT + 1)}, 1, v0")
        A(f"v_lshlrev_b32 {v(vT + 2)}, 3, {v(vT)}")
        A(f"s_lshl_b32 s{sT0}, s{sL}, 13")
        A(f"v_lshl_add_u32 {v(vRD)}, {v(vT + 1)}, 12, {v(vT + 2)}")
        A(f"v_add_u32 {v(vRD)}, s{sT0}, {v(vRD)}")
        A(f"s_mul_i32 s{sOWN}, s{sL}, {RS}")
        A(f"s_add_u32 s{sOWN}, s{sOWN}, {W_REG}")
        A(f"s_add_u32 s{sT0}, s{sOWN}, 4096")
        A(f"v_lshl_add_u32 {v(vREG)}, v0, 4, s{sT0}")
        A(f"v_lshlrev_b32 {v(vT + 3)}, 4, {v(vLANE)}")
        nt = ' nt' if o.get('ntx', 1) else ''
        A("s_waitcnt lgkmcnt(0)")
        self.stamp("karg")
        for r in range(4):
            A(f"global_load_dwordx2 {v(vX + 2 * r, 2)}, {v(vRD)}, {sp(sX)} offset:{1024 * r}{nt}")
        A(f"s_load_dword s{sG}, {sp(sWS)}, 0")
        A(f"global_load_dwordx2 {v(vD, 2)}, {v(vT + 2)}, {sp(sD)}")
        A(f"global_load_dwordx2 {v(vWR, 2)}, {v(vT + 2)}, {sp(sWR)}")
        A(f"global_load_dwordx4 {v(vONE, 4)}, {v(vT + 3)}, {sp(sWR)}")
        A(f"s_mov_b32 s{sODD}, 0xaaaaaaaa")
        A(f"s_mov_b32 s{sODD + 1}, 0xaaaaaaaa")
        A(f"s_mov_b32 s{sSELLO}, 0x3f80")
        A(f"s_mov_b32 s{sSELHI}, 0x3f800000")
        A(f"s_mov_b32 s{sONES}, 0x3f803f80")
        A(f"s_and_b32 s{sTMP}, s{sL}, 1")
        A(f"s_lshl_b32 s{sTMP}, s{sTMP}, 12")
        A(f"s_lshr_b32 s{sTMP + 1}, s{sL}, 1")
        A(f"s_lshl_b32 s{sTMP + 1}, s{sTMP + 1}, 5")
        A(f"s_add_u32 s{sTMP}, s{sTMP}, s{sTMP + 1}")
        A(f"s_add_u32 s{sTMP}, s{sTMP}, {W_REG + O_X1}")
        A(f"v_mul_u32_u24 {v(vAUX)}, {RS}, {v(vT)}")
        A(f"v_lshl_add_u32 {v(vAUX)}, {v(vT + 1)}, 4, {v(vAUX)}")
        A(f"v_add_u32 {v(vAUX)}, s{sTMP}, {v(vAUX)}")
        A(f"v_add_u32 {v(vAUX + 1)}, {128 * RS}, {v(vAUX)}")
        FS = o.get("fs", 7)
        KS = o.get("ks", 5)
        A(f"v_lshlrev_b32 {v(vFL)}, {FS}, {v(vT)}")
        A(f"v_add_u32 {v(vFL)}, {W_FLAG}, {v(vFL)}")
        A(f"v_add_u32 {v(vFL + 2)}, {128 << FS}, {v(vFL)}")
        A(f"s_lshl_b32 s{sT0}, s{sL}, {FS}")
        A(f"s_add_u32 s{sT0}, s{sT0}, {W_FLAG}")
        A(f"v_lshl_add_u32 {v(vKEY)}, {v(vLANE)}, 4, s{sT0}")
        A(f"v_lshlrev_b32 {v(vSW)}, 6, {v(vT + 1)}")
        A(f"v_and_b32 {v(vT + 3)}, 4, {v(vLANE)}")
        A(f"v_lshl_add_u32 {v(vSW)}, {v(vT + 3)}, 3, {v(vSW)}")
        A(f"v_and_b32 {v(vT + 3)}, 8, {v(vLANE)}")
        A(f"v_lshl_add_u32 {v(vSW)}, {v(vT + 3)}, 4, {v(vSW)}")
        A(f"v_lshrrev_b32 {v(vT + 3)}, 5, {v(vLANE)}")
        A(f"v_lshl_add_u32 {v(vSW)}, {v(vT + 3)}, 4, {v(vSW)}")
        A(f"s_lshl_b32 s{sTMP}, s{sWAVE}, 2")
        A(f"s_add_u32 s{sTMP}, s{sTMP}, {L_RED1}")
        A(f"v_add_u32 {v(vSW)}, s{sTMP}, {v(vSW)}")
        A(f"v_and_b32 {v(vT + 3)}, 7, {v(vLANE)}")
        A(f"v_lshlrev_b32 {v(vRA)}, 4, {v(vT + 3)}")
        A(f"v_add_u32 {v(vRA)}, {L_RED1}, {v(vRA)}")
        A(f"v_lshlrev_b32 {v(vUW)}, 3, v0")
        A(f"v_mov_b32 {v(K)}, 0")
        A(f"v_mov_b32 {v(K + 1)}, 0")
        A(f"v_min_u32 {v(vT + 3)}, 472, {v(vUW)}")
        A(f"v_add_u32 {v(vT + 3)}, {L_U}, {v(vT + 3)}")
        A(f"v_min_u32 {v(vT + 4)}, 56, {v(vUW)}")
        A(f"v_add_u32 {v(vT + 4)}, {L_P}, {v(vT + 4)}")
        A(f"ds_write2st64_b64 {v(vT + 3)}, {v(K, 2)}, {v(K, 2)} offset0:0 offset1:9")
        A(f"ds_write_b64 {v(vT + 4)}, {v(K, 2)}")
        A(f"ds_write_b64 {v(vT + 4)}, {v(K, 2)} offset:{PC}")
        A(f"v_add_u32 {v(vUW)}, {L_U + 480}, {v(vUW)}")

        V = [K + i for i in range(8)]
        A("s_waitcnt vmcnt(3)")
        self.stamp("x")
        for r in range(4):
            A(f"v_dot2_f32_bf16 {v(V[r])}, {v(vX + 2 * r)}, s{sONES}, 0")
        for r in range(4):
            A(f"v_dot2_f32_bf16 {v(V[4 + r])}, {v(vX + 2 * r)}, {v(vX + 2 * r)}, 0")
        for r in range(4):
            A(f"v_dot2_f32_bf16 {v(V[r])}, {v(vX + 2 * r + 1)}, s{sONES}, {v(V[r])}")
        for r in range(4):
            A(f"v_dot2_f32_bf16 {v(V[4 + r])}, {v(vX + 2 * r + 1)}, {v(vX + 2 * r + 1)}, {v(V[4 + r])}")
        self.reduce8(V, K + 8)
        A(f"ds_write_b32 {v(vSW)}, {v(V[0])}")
        A("s_waitcnt lgkmcnt(0)")
        A("s_barrier")
        self.stamp("b1")
        A(f"ds_read_b128 {v(K, 4)}, {v(vRA)}")
        A(f"ds_read_b128 {v(K + 4, 4)}, {v(vRA)} offset:128")
        A(f"s_add_u32 s{sG}, s{sG}, 0x9e3779b9")
        fw = o.get("fw", 1)
        for k in range(4 if fw else 1):
            A(f"v_mov_b32 {v(K + 28 + k)}, s{sG}")
        A(f"s_cmp_eq_u32 s{sWAVE}, 0")
        if fw:
            A(f"s_cselect_b64 exec, {(1 << ((1 << FS) // 16)) - 1}, 0")
            A(f"global_store_dwordx4 {v(vKEY)}, {v(K + 28, 4)}, {sp(sWS)} sc1")
        else:
            A("s_cselect_b64 exec, 1, 0")
            A(f"global_store_dword {v(vKEY)}, {v(K + 28)}, {sp(sWS)} sc1")
        A("s_mov_b64 exec, -1")
        A(f"s_mov_b64 vcc, {sp(sODD)}")
        A("s_waitcnt lgkmcnt(0)")
        vNM, vRI = K + 16, K + 20
        self.row_stats(K, K + 4, K + 10, K + 11, K + 12)
        self.spread(K + 10, vNM, K + 24)
        Dd = K + 32
        for c in range(4):
            for r in range(4):
                A(f"v_dot2_f32_bf16 {v(Dd + 4 * c + r)}, {v(vX + 2 * r + (c >> 1))}, s{sSELHI if c & 1 else sSELLO}, {v(vNM + r)}")
        self.spread(K + 11, vRI, K + 24)
        Pk = K + 48
        for half in range(2):
            ks = range(4 * half, 4 * half + 4)
            for k in ks:
                A(f"v_cvt_pk_bf16_f32 {v(Pk + k)}, {v(Dd + 2 * k)}, {v(Dd + 2 * k + 1)}")
            for k in ks:
                A(f"v_lshlrev_b32 {v(Dd + 2 * k)}, 16, {v(Pk + k)}")
                A(f"v_and_b32 {v(Dd + 2 * k + 1)}, s{sMASK}, {v(Pk + k)}")
            for k in ks:
                A(f"v_pk_mul_f32 {v(Dd + 2 * k, 2)}, {v(Dd + 2 * k, 2)}, {v(vRI + 2 * (k & 1), 2)}")
            for k in ks:
                A(f"v_cvt_pk_bf16_f32 {v(vU + k)}, {v(Dd + 2 * k)}, {v(Dd + 2 * k + 1)}")
            A(f"global_store_dwordx4 {v(vREG)}, {v(vU + 4 * half, 4)}, {sp(sWS)} offset:{-4096 + 4096 * half} sc1")
        self.stamp("x1st")
        fl = [f"global_load_dword {v(vT + 4)}, {v(vFL)}, {sp(sWS)} sc1",
              f"global_load_dword {v(vT + 5)}, {v(vFL + 2)}, {sp(sWS)} sc1"]
        flchk = [f"v_xor_b32 {v(vT + 6)}, s{sG}, {v(vT + 4)}",
                 f"v_xor_b32 {v(vT + 7)}, s{sG}, {v(vT + 5)}",
                 f"v_or_b32 {v(vT + 6)}, {v(vT + 6)}, {v(vT + 7)}",
                 f"v_cmp_ne_u32 vcc, 0, {v(vT + 6)}"]
        flmode = o.get("flmode", 1)
        if flmode == 1:
            A("s_waitcnt vmcnt(0)")
        if flmode < 2:
            for l in fl:
                A(l)
        A("s_barrier")
        if flmode == 2:
            for l in fl:
                A(l)
        A("s_waitcnt vmcnt(0)")
        self.stamp("x1dr")
        self.poll("flag", fl, flchk)
        xl = [f"global_load_dwordx4 {v(vY, 4)}, {v(vAUX)}, {sp(sWS)} sc1",
              f"global_load_dwordx4 {v(vY + 4, 4)}, {v(vAUX + 1)}, {sp(sWS)} sc1"]
        for l in xl:
            A(l)
        self.stamp("flag")
        A(f"s_mul_i32 s{sF}, s{sXCD}, 14")
        A(f"s_add_u32 s{sF}, s{sF}, s{sPOS}")
        A(f"s_bitcmp1_b32 s{sWAVE}, 0")
        A(f"s_cselect_b64 {sp(sWSEL)}, {sp(sWU)}, {sp(sWG)}")
        A(f"s_lshr_b32 s{sTMP + 1}, s{sWAVE}, 1")
        A(f"s_mul_i32 s{sTMP + 1}, s{sTMP + 1}, {256 * 3584}")
        A(f"s_lshl_b32 s{sTMP + 2}, s{sF}, 5")
        A(f"s_add_u32 s{sTMP + 1}, s{sTMP + 1}, s{sTMP + 2}")
        vWA = K + 8
        A(f"v_lshrrev_b32 {v(vWA)}, 1, {v(vLANE)}")
        A(f"v_mul_u32_u24 {v(vWA)}, {8 * 3584}, {v(vWA)}")
        A(f"v_lshl_add_u32 {v(vWA)}, {v(vT + 1)}, 4, {v(vWA)}")
        A(f"v_add_u32 {v(vWA)}, s{sTMP + 1}, {v(vWA)}")
        A(f"v_add_u32 {v(vWA + 2)}, {7 * 3584}, {v(vWA)}")
        A(f"v_add_u32 {v(vWA + 1)}, {4 * 3584}, {v(vWA)}")
        A(f"v_add_u32 {v(vWA)}, 3584, {v(vWA)}")
        A(f"s_lshl_b32 s{sTMP + 1}, s{sF}, 14")
        A(f"s_add_u32 s{sTMP + 1}, s{sTMP + 1}, 4096")
        A(f"v_lshl_add_u32 {v(vWA + 3)}, v0, 2, s{sTMP + 1}")
        A(f"v_add_u32 {v(vWA + 4)}, 8192, {v(vWA + 3)}")
        A(f"v_dot2_f32_bf16 {v(K + 4)}, {v(vONE)}, s{sONES}, 0")
        for k in range(1, 4):
            A(f"v_dot2_f32_bf16 {v(K + 4)}, {v(vONE + k)}, s{sONES}, {v(K + 4)}")
        A(f"v_mov_b32 {v(K + 5)}, {L_SUMW}")
        A(f"s_mov_b32 s{sRP0}, 0x05040100")
        A(f"s_mov_b32 s{sRP1}, 0x07060302")
        for sh in (8, 4, 2, 1):
            A(f"v_add_f32_dpp {v(K + 4)}, {v(K + 4)}, {v(K + 4)} row_ror:{sh} row_mask:0xf bank_mask:0xf")
        A(f"v_add_f32_dpp {v(K + 4)}, {v(K + 4)}, {v(K + 4)} row_bcast:15 row_mask:0xa bank_mask:0xf")
        A(f"v_add_f32_dpp {v(K + 4)}, {v(K + 4)}, {v(K + 4)} row_bcast:31 row_mask:0xc bank_mask:0xf")
        A("s_mov_b32 exec_lo, 0")
        A("s_brev_b32 exec_hi, 1")
        A(f"ds_write_b32 {v(K + 5)}, {v(K + 4)}")
        A("s_mov_b64 exec, -1")
        A("s_barrier")
        A("s_waitcnt vmcnt(0)")
        chk8 = [f"v_max3_u32 {v(vT + 6)}, {v(vY)}, {v(vY + 1)}, {v(vY + 2)}",
                f"v_max3_u32 {v(vT + 7)}, {v(vY + 3)}, {v(vY + 4)}, {v(vY + 5)}",
                f"v_max3_u32 {v(vT + 6)}, {v(vT + 6)}, {v(vY + 6)}, {v(vY + 7)}",
                f"v_max_u32 {v(vT + 6)}, {v(vT + 6)}, {v(vT + 7)}",
                f"v_cmp_eq_u32 vcc, -1, {v(vT + 6)}"]
        self.poll("x1", xl, chk8)
        self.stamp("x1ld")
        A(f"ds_write2st64_b64 {v(vUW)}, {v(vY, 2)}, {v(vY + 2, 2)} offset0:0 offset1:9")
        A(f"ds_write2st64_b64 {v(vUW)}, {v(vY + 4, 2)}, {v(vY + 6, 2)} offset0:4 offset1:13")
        A("s_waitcnt lgkmcnt(0)")
        A("s_barrier")

        A(f"s_cmp_lt_u32 s{sPOS}, 14")
        A("s_cbranch_scc0 L_now")
        for k in range(8):
            A(f"global_load_dwordx4 {v(vWG + 4 * k, 4)}, {v(vWA + k // 3)}, {sp(sWSEL)} offset:{(k % 3 - 1) * 3584}")
        self.stamp("wq1")
        if o.get("wwait"):
            A("s_waitcnt vmcnt(0)")
            self.stamp("wq1w")
        for k in range(16):
            A(f"global_load_dword {v(vWD + k)}, {v(vWA + 3 + (k >> 3))}, {sp(sWD)} offset:{((k & 7) - 4) * 1024}")
        self.stamp("wq2")
        if o.get("wwait"):
            A("s_waitcnt vmcnt(0)")
            self.stamp("wq2w")
        A("L_now:")
        A(f"v_and_b32 {v(vT + 3)}, 0xfe, v0")
        A(f"v_mul_u32_u24 {v(vAUX)}, {RS}, {v(vT + 3)}")
        A(f"v_lshl_add_u32 {v(vAUX)}, {v(vT + 1)}, 4, {v(vAUX)}")
        A(f"s_lshl_b32 s{sTMP}, s{sL}, 5")
        A(f"s_add_u32 s{sTMP}, s{sTMP}, {W_REG + O_X2}")
        A(f"v_add_u32 {v(vAUX)}, s{sTMP}, {v(vAUX)}")
        A(f"v_add_u32 {v(vAUX + 1)}, {RS}, {v(vAUX)}")
        Tt, Xf = K + 40, K + 56
        Df = K + 72
        for k in range(8):
            A(f"v_lshlrev_b32 {v(Tt + 2 * k)}, 16, {v(vU + k)}")
            A(f"v_and_b32 {v(Tt + 2 * k + 1)}, s{sMASK}, {v(vU + k)}")
        A(f"v_lshlrev_b32 {v(Df)}, 16, {v(vD)}")
        A(f"v_and_b32 {v(Df + 1)}, s{sMASK}, {v(vD)}")
        A(f"v_lshlrev_b32 {v(Df + 2)}, 16, {v(vD + 1)}")
        A(f"v_and_b32 {v(Df + 3)}, s{sMASK}, {v(vD + 1)}")
        for k in range(8):
            c = k >> 1
            sel = "op_sel:[1,0] op_sel_hi:[1,1]" if c & 1 else "op_sel_hi:[0,1]"
            A(f"v_pk_mul_f32 {v(Tt + 2 * k, 2)}, {v(Df + (c & 2), 2)}, {v(Tt + 2 * k, 2)} {sel}")
        for k in range(8):
            A(f"v_cvt_pk_bf16_f32 {v(Xf + k)}, {v(Tt + 2 * k)}, {v(Tt + 2 * k + 1)}")
        for k in range(8):
            A(f"v_lshlrev_b32 {v(Tt + 2 * k)}, 16, {v(Xf + k)}")
            A(f"v_and_b32 {v(Tt + 2 * k + 1)}, s{sMASK}, {v(Xf + k)}")
        for r in range(4):
            for c in range(4):
                src = v(vX + 2 * r + (c >> 1))
                if c & 1:
                    A(f"v_and_b32 {v(Xf + 4 * c + r)}, s{sMASK}, {src}")
                else:
                    A(f"v_lshlrev_b32 {v(Xf + 4 * c + r)}, 16, {src}")
        self.stamp("shadow")
        A("s_barrier")
        A("s_barrier")
        self.stamp("b4b")
        for l in xl:
            A(l)
        A("s_waitcnt vmcnt(0)")
        self.poll("x2", xl, chk8)
        self.stamp("x2ld")

        for k in range(8):
            A(f"v_dot2_f32_bf16 {v(Tt + 2 * k)}, {v(vY + k)}, s{sSELLO}, {v(Tt + 2 * k)}")
            A(f"v_dot2_f32_bf16 {v(Tt + 2 * k + 1)}, {v(vY + k)}, s{sSELHI}, {v(Tt + 2 * k + 1)}")
        for k in range(8):
            A(f"v_cvt_pk_bf16_f32 {v(vY + k)}, {v(Tt + 2 * k)}, {v(Tt + 2 * k + 1)}")
        for k in range(8):
            A(f"v_dot2_f32_bf16 {v(Xf + 2 * k)}, {v(vY + k)}, s{sSELLO}, {v(Xf + 2 * k)}")
            A(f"v_dot2_f32_bf16 {v(Xf + 2 * k + 1)}, {v(vY + k)}, s{sSELHI}, {v(Xf + 2 * k + 1)}")
        vH = vX
        for cp in range(2):
            for r in range(4):
                A(f"v_cvt_pk_bf16_f32 {v(vH + 2 * r + cp)}, {v(Xf + 8 * cp + r)}, {v(Xf + 8 * cp + 4 + r)}")
        Rr = [K + 8 + i for i in range(4)]
        for cp in range(2):
            for r in range(4):
                A(f"v_dot2_f32_bf16 {v(V[r])}, {v(vH + 2 * r + cp)}, s{sONES}, {v(V[r]) if cp else 0}")
            for r in range(4):
                A(f"v_dot2_f32_bf16 {v(V[4 + r])}, {v(vH + 2 * r + cp)}, {v(vH + 2 * r + cp)}, {v(V[4 + r]) if cp else 0}")
            for r in range(4):
                A(f"v_dot2_f32_bf16 {v(Rr[r])}, {v(vH + 2 * r + cp)}, {v(vWR + cp)}, {v(Rr[r]) if cp else 0}")
        for i in range(4):
            A(f"v_add_f32_dpp {v(V[i])}, {v(V[i])}, {v(V[i])} row_ror:8 row_mask:0xf bank_mask:0x3")
        for i in range(4):
            A(f"v_add_f32_dpp {v(V[i])}, {v(V[i + 4])}, {v(V[i + 4])} row_ror:8 row_mask:0xf bank_mask:0xc")
        for i in range(2):
            A(f"v_add_f32_dpp {v(Rr[i])}, {v(Rr[i])}, {v(Rr[i])} row_shl:4 row_mask:0xf bank_mask:0x5")
        for i in range(2):
            A(f"v_add_f32_dpp {v(Rr[i])}, {v(Rr[i + 2])}, {v(Rr[i + 2])} row_shr:4 row_mask:0xf bank_mask:0xa")
        for i in range(2):
            A(f"v_add_f32_dpp {v(V[i])}, {v(V[i])}, {v(V[i])} row_shl:4 row_mask:0xf bank_mask:0x5")
        for i in range(2):
            A(f"v_add_f32_dpp {v(V[i])}, {v(V[i + 2])}, {v(V[i + 2])} row_shr:4 row_mask:0xf bank_mask:0xa")
        A(f"v_permlane32_swap_b32 {v(Rr[0])}, {v(Rr[1])}")
        A(f"v_and_b32 {v(K + 13)}, 0xffffff7f, {v(vSW)}")
        A(f"v_permlane32_swap_b32 {v(V[0])}, {v(V[1])}")
        A(f"v_add_f32 {v(Rr[0])}, {v(Rr[0])}, {v(Rr[1])}")
        A(f"v_add_f32 {v(V[0])}, {v(V[0])}, {v(V[1])}")
        A(f"s_mov_b64 vcc, {sp(sODD)}")
        A(f"v_add_f32_dpp {v(Rr[0])}, {v(Rr[0])}, {v(Rr[0])} row_ror:8 row_mask:0xf bank_mask:0xf")
        A(f"v_add_f32_dpp {v(V[0])}, {v(V[0])}, {v(V[0])} quad_perm:[2,3,0,1] row_mask:0xf bank_mask:0xf")
        A(f"v_mov_b32 {v(V[1])}, {v(V[0])}")
        A(f"v_add_f32_dpp {v(Rr[0])}, {v(Rr[0])}, {v(Rr[0])} quad_perm:[2,3,0,1] row_mask:0xf bank_mask:0xf")
        A(f"v_mov_b32 {v(Rr[1])}, {v(Rr[0])}")
        A(f"v_permlane16_swap_b32 {v(V[0])}, {v(V[1])}")
        A(f"v_add_f32 {v(V[0])}, {v(V[0])}, {v(V[1])}")
        A(f"v_permlane16_swap_b32 {v(Rr[0])}, {v(Rr[1])}")
        A(f"v_add_f32 {v(Rr[0])}, {v(Rr[0])}, {v(Rr[1])}")
        A(f"ds_write_b32 {v(vSW)}, {v(V[0])} offset:{L_RED2 - L_RED1}")
        A(f"ds_write_b32 {v(K + 13)}, {v(Rr[0])} offset:{L_RED2 - L_RED1 + 256}")
        A("s_waitcnt lgkmcnt(0)")
        A("s_barrier")
        self.stamp("b5")
        Hf, Dd = Xf, Tt
        self.key_calc(K, vRA, vLANE)
        self.spread(K + 12, vNM, K + 24)
        A(f"v_readfirstlane_b32 s{sBEST}, {v(K + 8)}")
        for r in range(4):
            for cp in range(2):
                A(f"v_lshlrev_b32 {v(Hf + 4 * r + 2 * cp)}, 16, {v(vH + 2 * r + cp)}")
                A(f"v_and_b32 {v(Hf + 4 * r + 2 * cp + 1)}, s{sMASK}, {v(vH + 2 * r + cp)}")
        self.spread(K + 13, vRI, K + 24)
        for k in range(8):
            r = k >> 1
            sel = "op_sel:[1,0] op_sel_hi:[1,1]" if r & 1 else "op_sel_hi:[0,1]"
            A(f"v_pk_add_f32 {v(Dd + 2 * k, 2)}, {v(vNM + (r & 2), 2)}, {v(Hf + 2 * k, 2)} {sel}")
        vX2 = vU
        for k in range(8):
            A(f"v_cvt_pk_bf16_f32 {v(vX2 + k)}, {v(Dd + 2 * k)}, {v(Dd + 2 * k + 1)}")
        for k in range(8):
            A(f"v_lshlrev_b32 {v(Dd + 2 * k)}, 16, {v(vX2 + k)}")
            A(f"v_and_b32 {v(Dd + 2 * k + 1)}, s{sMASK}, {v(vX2 + k)}")
        for k in range(8):
            r = k >> 1
            sel = "op_sel:[1,0] op_sel_hi:[1,1]" if r & 1 else "op_sel_hi:[0,1]"
            A(f"v_pk_mul_f32 {v(Dd + 2 * k, 2)}, {v(vRI + (r & 2), 2)}, {v(Dd + 2 * k, 2)} {sel}")
        for k in range(8):
            A(f"v_cvt_pk_bf16_f32 {v(vX2 + k)}, {v(Dd + 2 * k)}, {v(Dd + 2 * k + 1)}")
        A(f"s_andn2_b32 s{sTMP}, 7, s{sBEST}")
        A(f"s_and_b32 s{sTMP + 1}, s{sTMP}, 3")
        A(f"s_lshl_b32 s{sTMP + 2}, s{sTMP + 1}, 1")
        A(f"s_not_b64 {sp(sE)}, {sp(sODD)}")
        A(f"s_cmp_ge_u32 s{sTMP}, 4")
        A(f"s_cselect_b64 {sp(sE)}, {sp(sODD)}, {sp(sE)}")
        vC = K + 24
        A(f"s_set_gpr_idx_on s{sTMP + 2}, gpr_idx(SRC0)")
        A(f"v_mov_b32 {v(vC)}, {v(vX2)}")
        A(f"v_mov_b32 {v(vC + 1)}, {v(vX2 + 1)}")
        A(f"v_mov_b32 {v(vC + 2)}, {v(vH)}")
        A(f"v_mov_b32 {v(vC + 3)}, {v(vH + 1)}")
        A("s_set_gpr_idx_off")
        A(f"s_add_u32 s{sTMP + 3}, s{sOWN}, {O_SLOT}")
        A(f"v_add_u32 {v(vT)}, s{sTMP + 3}, {v(vT + 2)}")
        A(f"s_mov_b64 exec, {sp(sE)}")
        A(f"global_store_dwordx2 {v(vT)}, {v(vC, 2)}, {sp(sWS)} sc1")
        A(f"global_store_dwordx2 {v(vT)}, {v(vC + 2, 2)}, {sp(sWS)} offset:1024 sc1")
        A("s_mov_b64 exec, -1")
        self.stamp("slot")
        for k in range(8):
            A(f"v_dot2_f32_bf16 {v(Hf + 2 * k)}, {v(vX2 + k)}, s{sSELLO}, {v(Hf + 2 * k)}")
            A(f"v_dot2_f32_bf16 {v(Hf + 2 * k + 1)}, {v(vX2 + k)}, s{sSELHI}, {v(Hf + 2 * k + 1)}")
        vO = vY
        A(f"v_mov_b32 {v(vT + 4)}, {L_REDK}")
        for k in range(8):
            A(f"v_cvt_pk_bf16_f32 {v(vO + k)}, {v(Hf + 2 * k)}, {v(Hf + 2 * k + 1)}")
        osc = " sc1" if o.get("outsc", 1) == 1 else (" nt" if o.get("outsc", 1) == 2 else "")
        for r in range(4):
            A(f"s_cmp_eq_u32 s{sTMP + 1}, {r}")
            A(f"s_cselect_b64 vcc, {sp(sE)}, 0")
            A("s_not_b64 exec, vcc")
            A(f"global_store_dwordx2 {v(vRD)}, {v(vO + 2 * r, 2)}, {sp(sOUT)} offset:{1024 * r}{osc}")
        A("s_mov_b64 exec, -1")
        A(f"s_set_gpr_idx_on s{sTMP + 2}, gpr_idx(SRC0)")
        A(f"v_mov_b32 {v(vC + 4)}, {v(vO)}")
        A(f"v_mov_b32 {v(vC + 5)}, {v(vO + 1)}")
        A("s_set_gpr_idx_off")
        A(f"s_lshl_b32 s{sTMP + 1}, s{sTMP + 1}, 10")
        A(f"v_add_u32 {v(vRD)}, s{sTMP + 1}, {v(vRD)}")
        A(f"s_lshr_b32 s{sTMP}, s{sWAVE}, 1")
        A(f"s_lshl_b32 s{sTMP}, s{sTMP}, 9")
        A(f"s_add_u32 s{sTMP}, s{sTMP}, {W_REG + O_SLOT}")
        A(f"v_lshrrev_b32 {v(vT)}, 1, {v(vLANE)}")
        A(f"v_lshl_add_u32 {v(vT)}, {v(vT)}, 4, s{sTMP}")
        A(f"v_lshlrev_b32 {v(vT + 1)}, 6, {v(vT + 1)}")
        A(f"v_and_b32 {v(vT + 2)}, 12, {v(vLANE)}")
        A(f"v_lshl_add_u32 {v(vT + 1)}, {v(vT + 2)}, 2, {v(vT + 1)}")
        A(f"v_lshrrev_b32 {v(vT + 2)}, 5, {v(vLANE)}")
        A(f"v_lshl_add_u32 {v(vT + 1)}, {v(vT + 2)}, 3, {v(vT + 1)}")
        A(f"s_and_b32 s{sTMP}, s{sWAVE}, 1")
        A(f"s_lshl_b32 s{sTMP}, s{sTMP}, 7")
        A(f"s_lshr_b32 s{sTMP + 1}, s{sWAVE}, 1")
        A(f"s_lshl_b32 s{sTMP + 1}, s{sTMP + 1}, 2")
        A(f"s_add_u32 s{sTMP}, s{sTMP}, s{sTMP + 1}")
        A(f"s_add_u32 s{sTMP}, s{sTMP}, {L_REDF}")
        A(f"v_add_u32 {v(vT + 1)}, s{sTMP}, {v(vT + 1)}")
        A(f"v_and_b32 {v(vT + 2)}, 15, {v(vLANE)}")
        A(f"v_lshlrev_b32 {v(vT + 2)}, 3, {v(vT + 2)}")
        A(f"v_add_u32 {v(vT + 2)}, {L_REDF}, {v(vT + 2)}")
        A(f"s_add_u32 s{sTMP}, s{sOWN}, {O_PART}")
        A(f"v_lshl_add_u32 {v(vT + 3)}, v0, 3, s{sTMP}")
        WGp = K + 80
        for kp in range(4):
            for d in range(4):
                lo, hi = vWG + 8 * kp + d, vWG + 8 * kp + 4 + d
                A(f"v_perm_b32 {v(WGp + 8 * kp + 2 * d)}, {v(hi)}, {v(lo)}, s{sRP0}")
                A(f"v_perm_b32 {v(WGp + 8 * kp + 2 * d + 1)}, {v(hi)}, {v(lo)}, s{sRP1}")
        WDp = vWG
        for kp in range(8):
            lo, hi = vWD + 2 * kp, vWD + 2 * kp + 1
            A(f"v_perm_b32 {v(WDp + 2 * kp)}, {v(hi)}, {v(lo)}, s{sRP0}")
            A(f"v_perm_b32 {v(WDp + 2 * kp + 1)}, {v(hi)}, {v(lo)}, s{sRP1}")
        self.stamp("outst")
        A("s_barrier")
        A(f"ds_read_b32 {v(K)}, {v(vT + 4)}")
        A("s_waitcnt lgkmcnt(0)")
        A(f"v_readfirstlane_b32 s{sWIN}, {v(K)}")
        A(f"s_andn2_b32 s{sT0}, 2047, s{sWIN}")
        A(f"s_lshr_b32 s{sT1}, s{sT0}, 3")
        A(f"s_mul_i32 s{sT1}, s{sT1}, {RS}")
        A(f"s_cmp_lt_u32 s{sPOS}, 14")
        A("s_cbranch_scc0 L_noffn")
        A(f"v_add_u32 {v(vT)}, s{sT1}, {v(vT)}")
        sl = [f"global_load_dwordx4 {v(K, 4)}, {v(vT)}, {sp(sWS)} sc1"]
        A(sl[0])
        self.stamp("win")
        A("s_waitcnt vmcnt(0)")
        self.poll("sel", sl, [f"v_max3_u32 {v(vT + 6)}, {v(K)}, {v(K + 1)}, {v(K + 2)}",
                              f"v_max_u32 {v(vT + 6)}, {v(vT + 6)}, {v(K + 3)}",
                              f"v_cmp_eq_u32 vcc, -1, {v(vT + 6)}"])
        self.stamp("sel")
        V2 = [K + 8 + i for i in range(8)]
        for kp in range(4):
            for c in range(8):
                A(f"v_dot2_f32_bf16 {v(V2[c])}, {v(K + kp)}, {v(WGp + 8 * kp + c)}, {v(V2[c]) if kp else 0}")
        self.reduce8(V2, K + 16)
        A(f"ds_write_b32 {v(vT + 1)}, {v(V2[0])}")
        A("s_waitcnt lgkmcnt(0)")
        A("s_barrier")
        A(f"ds_read_b64 {v(K, 2)}, {v(vT + 2)}")
        A(f"ds_read_b64 {v(K + 2, 2)}, {v(vT + 2)} offset:128")
        A("s_waitcnt lgkmcnt(0)")
        A(f"v_add_f32 {v(K)}, {v(K)}, {v(K + 1)}")
        A(f"v_add_f32 {v(K + 2)}, {v(K + 2)}, {v(K + 3)}")
        A(f"v_cvt_pk_bf16_f32 {v(K + 1)}, {v(K)}, {v(K + 2)}")
        A(f"v_lshlrev_b32 {v(K)}, 16, {v(K + 1)}")
        A(f"v_mul_f32 {v(K + 3)}, {hex(f2u(-L2E))}, {v(K)}")
        A(f"v_exp_f32 {v(K + 3)}, {v(K + 3)}")
        A(f"v_and_b32 {v(K + 2)}, s{sMASK}, {v(K + 1)}")
        A(f"v_add_f32 {v(K + 3)}, 1.0, {v(K + 3)}")
        A(f"v_rcp_f32 {v(K + 3)}, {v(K + 3)}")
        A(f"v_mul_f32 {v(K)}, {v(K)}, {v(K + 3)}")
        A(f"v_cvt_pk_bf16_f32 {v(K)}, {v(K)}, {v(K)}")
        A(f"v_and_b32 {v(K)}, s{sMASK}, {v(K)}")
        A(f"v_mul_f32 {v(K)}, {v(K)}, {v(K + 2)}")
        A(f"v_mov_b32_dpp {v(K + 1)}, {v(K)} quad_perm:[1,1,3,3] row_mask:0xf bank_mask:0xf")
        A(f"v_cvt_pk_bf16_f32 {v(K)}, {v(K)}, {v(K + 1)}")
        for kp in range(8):
            A(f"v_readlane_b32 s{sH + kp}, {v(K)}, {2 * kp}")
        for kp in range(8):
            for c in range(2):
                A(f"v_dot2_f32_bf16 {v(K + 4 + c)}, s{sH + kp}, {v(WDp + 2 * kp + c)}, {v(K + 4 + c) if kp else 0}")
        A(f"global_store_dwordx2 {v(vT + 3)}, {v(K + 4, 2)}, {sp(sWS)} sc1")
        self.stamp("part")
        held = [f"s_cmp_eq_u32 s{sWIN}, s{sBEST}",
                f"s_cselect_b64 exec, 0, {sp(sE)}",
                f"global_store_dwordx2 {v(vRD)}, {v(vC + 4, 2)}, {sp(sOUT)}{osc}",
                f"s_or_b32 s{sTMP}, s{sL}, s{sWAVE}",
                f"s_cmp_eq_u32 s{sTMP}, 0",
                "s_cselect_b64 exec, 1, 0",
                f"v_mov_b32 {v(vT + 4)}, s{sG}",
                f"v_mov_b32 {v(vT + 5)}, 0",
                f"global_store_dword {v(vT + 5)}, {v(vT + 4)}, {sp(sWS)} sc1",
                "s_mov_b64 exec, -1"]
        T = self.tail
        T("L_noffn:")
        for l in held:
            T(l)
        T("s_branch L_fin")
        for l in held:
            A(l)
        A(f"s_cmp_lt_u32 s{sPOS}, 8")
        A("s_cbranch_scc0 L_fin")
        A(f"s_cmp_lt_u32 s{sWAVE}, 2")
        A("s_cbranch_scc0 L_fin")
        A(f"s_lshl_b32 s{sTMP}, s{sXCD}, 3")
        A(f"s_add_u32 s{sTMP}, s{sTMP}, s{sPOS}")
        A(f"s_lshl_b32 s{sTMP}, s{sTMP}, 1")
        A(f"s_add_u32 s{sTMP}, s{sTMP}, s{sWAVE}")
        A(f"v_lshrrev_b32 {v(vT)}, 5, {v(vLANE)}")
        A(f"v_bfe_u32 {v(vT + 1)}, {v(vLANE)}, 4, 1")
        A(f"v_lshl_add_u32 {v(vT)}, {v(vT + 1)}, 1, {v(vT)}")
        A(f"s_lshl_b32 s{sTMP + 1}, s{sTMP}, 3")
        A(f"v_lshl_add_u32 {v(vT)}, {v(vT)}, 1, s{sTMP + 1}")
        A(f"s_add_u32 s{sT1}, s{sT1}, {W_REG + O_SLOT}")
        A(f"v_add_u32 {v(vT + 1)}, s{sT1}, {v(vT)}")
        xh = [f"global_load_ushort {v(K + 20)}, {v(vT + 1)}, {sp(sWS)} sc1",
              f"global_load_ushort {v(K + 21)}, {v(vT + 1)}, {sp(sWS)} offset:1024 sc1"]
        for l in xh:
            A(l)
        A(f"s_lshl_b32 s{sTMP + 1}, s{sT0}, 10")
        A(f"v_add_u32 {v(vT)}, s{sTMP + 1}, {v(vT)}")
        A(f"v_min_u32 {v(vT + 2)}, 55, {v(vLANE)}")
        A(f"v_mul_u32_u24 {v(vT + 3)}, 4682, {v(vT + 2)}")
        A(f"v_lshrrev_b32 {v(vT + 3)}, 16, {v(vT + 3)}")
        A(f"v_mad_u32_u24 {v(vT + 2)}, {v(vT + 3)}, 18, {v(vT + 2)}")
        A(f"v_mul_u32_u24 {v(vT + 2)}, {RS}, {v(vT + 2)}")
        A(f"s_lshl_b32 s{sTMP + 1}, s{sTMP}, 4")
        A(f"s_add_u32 s{sTMP + 1}, s{sTMP + 1}, {W_REG + O_PART}")
        A(f"v_add_u32 {v(vT + 2)}, s{sTMP + 1}, {v(vT + 2)}")
        A(f"v_add_u32 {v(vT + 3)}, {128 * RS}, {v(vT + 2)}")
        A(f"s_ashr_i32 s{sTMP + 2}, s{sWIN}, 31")
        A(f"s_not_b32 s{sTMP + 2}, s{sTMP + 2}")
        A(f"s_or_b32 s{sTMP + 2}, s{sTMP + 2}, 0x80000000")
        A(f"s_xor_b32 s{sTMP + 2}, s{sTMP + 2}, s{sWIN}")
        A(f"s_and_b32 s{sTMP + 2}, s{sTMP + 2}, 0xfffff800")
        A(f"s_or_b32 s{sTMP + 2}, s{sTMP + 2}, 0x400")
        A(f"v_cvt_pk_bf16_f32 {v(K + 22)}, s{sTMP + 2}, s{sTMP + 2}")
        A(f"v_and_b32 {v(K + 22)}, s{sMASK}, {v(K + 22)}")
        A(f"v_mul_f32 {v(K + 22)}, {hex(f2u(-L2E))}, {v(K + 22)}")
        A(f"v_exp_f32 {v(K + 22)}, {v(K + 22)}")
        A(f"v_add_f32 {v(K + 22)}, 1.0, {v(K + 22)}")
        A(f"v_rcp_f32 {v(K + 22)}, {v(K + 22)}")
        A(f"v_cvt_pk_bf16_f32 {v(K + 22)}, {v(K + 22)}, {v(K + 22)}")
        A(f"v_and_b32 {v(K + 22)}, s{sMASK}, {v(K + 22)}")
        A("s_waitcnt vmcnt(0)")
        self.stamp("partdr")
        pl = [f"global_load_dwordx4 {v(vY, 4)}, {v(vT + 2)}, {sp(sWS)} sc1",
              f"global_load_dwordx4 {v(vY + 4, 4)}, {v(vT + 3)}, {sp(sWS)} sc1"]
        for l in pl:
            A(l)
        self.poll("xh", xh, [f"v_max_u32 {v(vT + 6)}, {v(K + 20)}, {v(K + 21)}",
                             f"v_cmp_eq_u32 vcc, 0xffff, {v(vT + 6)}"])
        A(f"v_lshlrev_b32 {v(K + 20)}, 16, {v(K + 20)}")
        A(f"v_lshlrev_b32 {v(K + 21)}, 16, {v(K + 21)}")
        A("s_waitcnt vmcnt(0)")
        self.poll("part", pl, chk8)
        self.stamp("partld")
        A(f"v_cmp_gt_u32 vcc, 56, {v(vLANE)}")
        A(f"v_pk_add_f32 {v(vY, 2)}, {v(vY, 2)}, {v(vY + 4, 2)}")
        A(f"v_pk_add_f32 {v(vY + 2, 2)}, {v(vY + 2, 2)}, {v(vY + 6, 2)}")
        for c in range(4):
            A(f"v_cndmask_b32 {v(vY + c)}, 0, {v(vY + c)}, vcc")
        A(f"v_permlane32_swap_b32 {v(vY)}, {v(vY + 1)}")
        A(f"v_permlane32_swap_b32 {v(vY + 2)}, {v(vY + 3)}")
        A(f"v_add_f32 {v(vY)}, {v(vY)}, {v(vY + 1)}")
        A(f"v_add_f32 {v(vY + 2)}, {v(vY + 2)}, {v(vY + 3)}")
        A(f"v_permlane16_swap_b32 {v(vY)}, {v(vY + 2)}")
        A(f"v_add_f32 {v(vY)}, {v(vY)}, {v(vY + 2)}")
        for sh in (8, 4, 2, 1):
            A(f"v_add_f32_dpp {v(vY)}, {v(vY)}, {v(vY)} row_ror:{sh} row_mask:0xf bank_mask:0xf")
        y = vY
        A(f"v_cvt_pk_bf16_f32 {v(y)}, {v(y)}, {v(y)}")
        A(f"v_and_b32 {v(y)}, s{sMASK}, {v(y)}")
        A(f"v_mul_f32 {v(y)}, {v(y)}, {v(K + 22)}")
        A(f"v_cvt_pk_bf16_f32 {v(y)}, {v(y)}, {v(y)}")
        A(f"v_and_b32 {v(y)}, s{sMASK}, {v(y)}")
        A(f"v_add_f32 {v(y)}, {v(y)}, {v(K + 20)}")
        A(f"v_cvt_pk_bf16_f32 {v(y)}, {v(y)}, {v(y)}")
        A(f"v_and_b32 {v(y)}, s{sMASK}, {v(y)}")
        A(f"v_add_f32 {v(y)}, {v(y)}, {v(K + 21)}")
        A(f"v_cvt_pk_bf16_f32 {v(y)}, {v(y)}, {v(y)}")
        A("s_mov_b32 exec_lo, 0x00010001")
        A("s_mov_b32 exec_hi, 0x00010001")
        A(f"global_store_short {v(vT)}, {v(y)}, {sp(sOUT)}")
        A("L_fin:")
        self.finish("R")

    def chans(self):
        A = self.A
        o = self.o
        vLANE = 1
        vAA, vBA, vEW, vER, vRA = 4, 12, 13, 14, 15
        vKA0, vKA1, vKB, vPW0, vPW1 = 16, 17, 18, 19, 20
        vP = 24
        vT = 28
        vACC = 40
        vA0, vA1, vB0, vB1 = 72, 104, 136, 168
        K = 72
        A("L_chan:")
        A("v_and_b32 v0, 0xff, v0")
        A(f"s_sub_u32 s{sWAVE}, s{sWAVE}, 4")
        A(f"s_lshl_b32 s{sT0}, s{sL}, 9")
        A(f"v_lshl_add_u32 {v(vT)}, v0, 1, s{sT0}")
        A(f"s_lshl_b32 s{sT1}, s{sL}, 2")
        A("s_waitcnt lgkmcnt(0)")
        self.stamp("karg")
        for k, s in enumerate((sLA, sAI, sCR, sCI)):
            A(f"global_load_ushort {v(vP + k)}, {v(vT)}, {sp(s)}{' nt' if o.get('ntx', 1) else ''}")
        A(f"s_load_dword s{sDT}, {sp(sLDT)}, s{sT1}")
        ntlb = 0
        if o.get("tlb", 0):
            A("v_mov_b32 v2, 0")
            A("s_mov_b64 exec, 1")
            for sb in (sWG, sWU, sWD, sOUT):
                A(f"global_load_dword v3, v2, {sp(sb)}")
                ntlb += 1
            A("s_mov_b64 exec, -1")
        vJ, vGq = vT + 4, vT + 5
        A(f"v_and_b32 {v(vJ)}, 15, {v(vLANE)}")
        A(f"v_lshrrev_b32 {v(vGq)}, 4, {v(vLANE)}")
        A(f"s_lshr_b32 s{sT0}, s{sWAVE}, 1")
        A(f"s_and_b32 s{sT1}, s{sWAVE}, 1")
        A(f"v_and_b32 {v(vT)}, 7, {v(vLANE)}")
        A(f"v_lshlrev_b32 {v(vRA)}, 4, {v(vT)}")
        A(f"v_add_u32 {v(vRA)}, {L_RED1}, {v(vRA)}")
        A(f"s_mul_i32 s{sTMP}, s{sT0}, {PC}")
        A(f"s_lshl_b32 s{sTMP + 1}, s{sT1}, 7")
        A(f"s_add_u32 s{sTMP}, s{sTMP}, s{sTMP + 1}")
        A(f"s_add_u32 s{sTMP}, s{sTMP}, {L_P + 4 * 26}")
        A(f"v_lshlrev_b32 {v(vT)}, 3, {v(vGq)}")
        A(f"v_sub_u32 {v(vT)}, {v(vJ)}, {v(vT)}")
        A(f"v_lshl_add_u32 {v(vAA)}, {v(vT)}, 2, s{sTMP}")
        for m in range(1, 8):
            A(f"v_add_u32 {v(vAA + m)}, {1024 * m}, {v(vAA)}")
        A(f"s_mul_i32 s{sTMP}, s{sT0}, {UC}")
        A(f"s_lshl_b32 s{sTMP + 1}, s{sT1}, 6")
        A(f"s_sub_u32 s{sTMP}, s{sTMP}, s{sTMP + 1}")
        A(f"s_add_u32 s{sTMP}, s{sTMP}, {L_U + 64}")
        A(f"v_lshl_add_u32 {v(vT)}, {v(vJ)}, 1, {v(vGq)}")
        A(f"v_lshl_add_u32 {v(vBA)}, {v(vT)}, 4, s{sTMP}")
        A(f"v_lshl_add_u32 {v(vT)}, {v(vJ)}, 2, {v(vGq)}")
        A(f"v_lshrrev_b32 {v(vT + 1)}, 3, {v(vT)}")
        A(f"v_add_u32 {v(vT)}, {v(vT)}, {v(vT + 1)}")
        A(f"s_mul_i32 s{sTMP}, s{sWAVE}, {8 * TBS}")
        A(f"v_lshl_add_u32 {v(vEW)}, {v(vT)}, 4, s{sTMP}")
        A(f"v_lshrrev_b32 {v(vT + 1)}, 3, {v(vLANE)}")
        A(f"v_add_u32 {v(vT)}, {v(vLANE)}, {v(vT + 1)}")
        A(f"s_mul_i32 s{sTMP}, s{sWAVE}, {2 * TBS}")
        A(f"v_lshl_add_u32 {v(vER)}, {v(vT)}, 4, s{sTMP}")
        KS = o.get("ks", 5)
        for k in range(4):
            A(f"v_mov_b32 {v(vACC + k)}, -1")
        A(f"s_mul_i32 s{sTMP}, s{sL}, {RS}")
        A(f"s_add_u32 s{sTMP}, s{sTMP}, {W_REG + 4096}")
        A(f"v_lshl_add_u32 {v(vACC + 4)}, v0, 4, s{sTMP}")
        A(f"v_add_u32 {v(vACC + 5)}, 8192, {v(vACC + 4)}")
        A(f"v_add_u32 {v(vACC + 6)}, 12288, {v(vACC + 4)}")
        A(f"s_lshl_b32 s{sTMP}, s{sL}, {KS}")
        A(f"s_add_u32 s{sTMP}, s{sTMP}, {W_KEY}")
        A(f"v_lshl_add_u32 {v(22)}, {v(vLANE)}, 4, s{sTMP}")
        ones = v(vACC, 4)
        inits = [f"s_cmp_eq_u32 s{sWAVE}, 0",
                 f"s_cselect_b64 exec, {(1 << ((1 << KS) // 16)) - 1}, 0",
                 f"global_store_dwordx4 {v(22)}, {ones}, {sp(sWS)} sc1",
                 "s_mov_b64 exec, -1",
                 f"global_store_dwordx4 {v(vACC + 4)}, {ones}, {sp(sWS)} offset:-4096 sc1",
                 f"global_store_dwordx4 {v(vACC + 4)}, {ones}, {sp(sWS)} sc1",
                 f"global_store_dwordx4 {v(vACC + 5)}, {ones}, {sp(sWS)} offset:-4096 sc1",
                 f"global_store_dwordx4 {v(vACC + 5)}, {ones}, {sp(sWS)} sc1",
                 f"global_store_dwordx4 {v(vACC + 6)}, {ones}, {sp(sWS)} sc1"]
        ilate = o.get("ilate", 0)
        if not ilate:
            for l in inits:
                A(l)
        vg, vr = vT, vT + 1
        A(f"v_lshrrev_b32 {v(vg)}, 2, {v(vJ)}")
        A(f"v_and_b32 {v(vr)}, 3, {v(vJ)}")
        A(f"s_cmp_eq_u32 s{sT1}, 0")
        A("s_cbranch_scc0 L_rows_hi")
        A(f"v_mov_b32 {v(vKA0)}, {v(vJ)}")
        A(f"v_lshl_add_u32 {v(vKA1)}, {v(vg)}, 1, {v(vr)}")
        A(f"v_add_u32 {v(vKA1)}, 16, {v(vKA1)}")
        A(f"v_add_u32 {v(vT + 2)}, -4, {v(vJ)}")
        A(f"v_and_b32 {v(vT + 2)}, 15, {v(vT + 2)}")
        A(f"v_cmp_eq_u32 vcc, 3, {v(vr)}")
        A(f"v_cndmask_b32 {v(vKA1)}, {v(vKA1)}, {v(vT + 2)}, vcc")
        A(f"v_lshl_add_u32 {v(vPW0)}, {v(vJ)}, 2, {v(vGq)}")
        A(f"v_lshlrev_b32 {v(vPW0)}, 4, {v(vPW0)}")
        A(f"v_add_u32 {v(vPW1)}, 1024, {v(vPW0)}")
        A("s_branch L_rows_done")
        A("L_rows_hi:")
        A(f"v_lshrrev_b32 {v(vT + 2)}, 1, {v(vg)}")
        A(f"v_lshl_add_u32 {v(vKA0)}, {v(vg)}, 1, {v(vr)}")
        A(f"v_add3_u32 {v(vKA0)}, {v(vKA0)}, {v(vT + 2)}, 25")
        A(f"v_sub_u32 {v(vKA1)}, {v(vJ)}, {v(vg)}")
        A(f"v_add_u32 {v(vKA1)}, 35, {v(vKA1)}")
        A(f"v_lshrrev_b32 {v(vT + 2)}, 1, {v(vGq)}")
        A(f"v_lshl_add_u32 {v(vPW0)}, {v(vT + 2)}, 4, {v(vJ)}")
        A(f"v_and_b32 {v(vT + 2)}, 1, {v(vGq)}")
        A(f"v_lshl_add_u32 {v(vPW0)}, {v(vPW0)}, 1, {v(vT + 2)}")
        A(f"v_lshlrev_b32 {v(vPW0)}, 5, {v(vPW0)}")
        A(f"v_add_u32 {v(vPW0)}, 2048, {v(vPW0)}")
        A(f"v_lshlrev_b32 {v(vPW1)}, 6, {v(vLANE)}")
        A(f"v_add_u32 {v(vPW1)}, 4096, {v(vPW1)}")
        A("L_rows_done:")
        A(f"s_mul_i32 s{sTMP}, s{sT0}, {PC}")
        A(f"s_add_u32 s{sTMP}, s{sTMP}, {L_P + 64}")
        A(f"v_add_u32 {v(vPW0)}, s{sTMP}, {v(vPW0)}")
        A(f"v_add_u32 {v(vPW1)}, s{sTMP}, {v(vPW1)}")
        A(f"s_mul_i32 s{sTMP}, s{sT0}, {TABC}")
        A(f"v_lshl_add_u32 {v(vT + 2)}, {v(vGq)}, 4, s{sTMP}")
        A(f"s_movk_i32 s{sTMP + 1}, {ROWB}")
        A(f"v_mad_u32_u24 {v(vKA0)}, {v(vKA0)}, s{sTMP + 1}, {v(vT + 2)}")
        A(f"v_mad_u32_u24 {v(vKA1)}, {v(vKA1)}, s{sTMP + 1}, {v(vT + 2)}")
        A(f"v_mad_u32_u24 {v(vKB)}, {v(vJ)}, s{sTMP + 1}, {v(vT + 2)}")
        A(f"s_lshl_b32 s{sTMP + 1}, s{sT1}, 8")
        A(f"s_add_u32 m0, s{sTMP}, s{sTMP + 1}")
        A(f"s_mul_i32 s{sTMP}, s{sXCD}, 448")
        A(f"s_and_b32 s{sTMP}, s{sTMP}, 0xffffff80")
        A(f"s_mul_i32 s{sTMP + 1}, s{sPOS}, {16 * 3584}")
        A(f"s_add_u32 s{sTMP}, s{sTMP}, s{sTMP + 1}")
        A(f"v_lshrrev_b32 {v(vT + 2)}, 2, {v(vLANE)}")
        A(f"v_mul_u32_u24 {v(vT + 2)}, 3584, {v(vT + 2)}")
        A(f"v_and_b32 {v(vT + 3)}, 3, {v(vLANE)}")
        A(f"v_lshl_add_u32 {v(vT + 2)}, {v(vT + 3)}, 7, {v(vT + 2)}")
        A(f"v_add_u32 {v(vT + 2)}, s{sTMP}, {v(vT + 2)}")
        A(f"s_mul_i32 s{sTMP}, s{sL}, 7168")
        A(f"s_mul_i32 s{sTMP + 1}, s{sT1}, 3584")
        A(f"s_add_u32 s{sTMP}, s{sTMP}, s{sTMP + 1}")
        A(f"v_min_u32 {v(vT + 3)}, 27, {v(vLANE)}")
        A(f"v_lshl_add_u32 {v(vT + 3)}, {v(vT + 3)}, 7, s{sTMP}")
        A(f"s_cmp_eq_u32 s{sT1}, 0")
        A(f"s_cselect_b64 {sp(sWSEL)}, {sp(sWG)}, {sp(sWU)}")
        A(f"s_cmp_eq_u32 s{sT0}, 0")
        A(f"s_cselect_b64 {sp(sWSEL)}, {sp(sWSEL)}, {sp(sWD)}")
        A("s_cselect_b64 vcc, -1, 0")
        A(f"v_cndmask_b32 {v(21)}, {v(vT + 3)}, {v(vT + 2)}, vcc")
        wpf = f"global_load_dword v3, v21, {sp(sWSEL)}{' nt' if o.get('ntw', 0) else ''}"
        if o.get("wpf", 2) == 2:
            A(wpf)

        L2E = 1.4426950408889634
        l2e_hi = struct.unpack("<f", struct.pack("<f", L2E))[0]
        l2e_lo = L2E - l2e_hi
        a, b = K, K + 2
        A(f"s_mov_b32 s{sE}, {hex(f2u(l2e_hi))}")
        A(f"s_mov_b32 s{sE + 1}, {hex(f2u(l2e_lo))}")
        A(f"s_waitcnt vmcnt({(1 if o.get('wpf', 2) == 2 else 0) + (0 if ilate else 5) + ntlb}) lgkmcnt(0)")
        self.stamp("par")
        if ilate:
            for l in inits:
                A(l)
        if o.get("wpf", 2) == 6:
            A(wpf)
        A(f"s_lshl_b32 s{sTMP}, s{sDT}, 16")
        A(f"s_and_b32 s{sTMP + 1}, s{sDT}, s{sMASK}")
        A(f"s_cmp_lt_u32 s{sWAVE}, 2")
        A(f"s_cselect_b32 s{sDT}, s{sTMP}, s{sTMP + 1}")
        A(f"v_lshlrev_b32 {v(a)}, 16, {v(vP)}")
        A(f"v_mov_b32 {v(a + 1)}, s{sDT}")
        A(f"v_pk_mul_f32 {v(b, 2)}, {v(a, 2)}, {sp(sE)} op_sel_hi:[1,0]")
        A(f"v_pk_fma_f32 {v(b + 2, 2)}, {v(a, 2)}, {sp(sE)}, {v(b, 2)} op_sel_hi:[1,0,1] neg_lo:[0,0,1] neg_hi:[0,0,1]")
        A(f"v_exp_f32 {v(b)}, {v(b)}")
        A(f"v_exp_f32 {v(b + 1)}, {v(b + 1)}")
        A(f"v_pk_fma_f32 {v(b + 2, 2)}, {sp(sE)}, {v(a, 2)}, {v(b + 2, 2)} op_sel:[1,0,0] op_sel_hi:[1,1,1]")
        A(f"v_mul_f32 {v(b + 2)}, {hex(f2u(0.6931471805599453))}, {v(b + 2)}")
        A(f"v_mul_f32 {v(b + 3)}, {hex(f2u(0.6931471805599453))}, {v(b + 3)}")
        A(f"v_pk_fma_f32 {v(b, 2)}, {v(b, 2)}, {v(b + 2, 2)}, {v(b, 2)}")
        A(f"v_cvt_pk_bf16_f32 {v(a)}, {v(b)}, {v(b + 1)}")
        vdt, va2, vph = K + 6, K + 7, K + 8
        A(f"v_and_b32 {v(vdt)}, s{sMASK}, {v(a)}")
        A(f"v_lshlrev_b32 {v(va2)}, 16, {v(a)}")
        A(f"v_lshlrev_b32 {v(vph)}, 16, {v(vP + 1)}")
        A(f"v_mul_f32 {v(va2)}, {v(va2)}, {v(vdt)}")
        A(f"v_mul_f32 {v(vph)}, {v(vph)}, {v(vdt)}")
        A(f"v_mul_f32 {v(va2)}, {hex(f2u(-l2e_hi))}, {v(va2)}")
        A(f"v_mul_f32 {v(vph)}, 0.15915494, {v(vph)}")
        Wp = {p: K + 10 + 2 * p for p in range(1, 17)}
        Zp = {p: K + 42 + 2 * p for p in range(1, 8)}
        G = [K + 58, K + 60]
        TT = [K + 62, K + 64, K + 66, K + 68]
        RR = [K + 70, K + 72, K + 74, K + 76]
        CV = K + 80
        A(f"v_add_f32 {v(vdt)}, {v(vdt)}, {v(vdt)}")
        A(f"v_lshlrev_b32 {v(G[0])}, 16, {v(vP + 2)}")
        A(f"v_lshlrev_b32 {v(G[0] + 1)}, 16, {v(vP + 3)}")
        A(f"v_mul_f32 {v(G[0])}, {v(G[0])}, {v(vdt)}")
        A(f"v_mul_f32 {v(G[0] + 1)}, {v(G[0] + 1)}, {v(vdt)}")
        for n, (dst, sc) in enumerate(((Wp[1], 1.0), (Wp[16], 16.0), (Zp[1], 256.0))):
            t = TT[n]
            if sc == 1.0:
                A(f"v_exp_f32 {v(t)}, {v(va2)}")
                A(f"v_fract_f32 {v(t + 1)}, {v(vph)}")
            else:
                A(f"v_mul_f32 {v(t)}, {hex(f2u(sc))}, {v(va2)}")
                A(f"v_mul_f32 {v(t + 1)}, {hex(f2u(sc))}, {v(vph)}")
                A(f"v_exp_f32 {v(t)}, {v(t)}")
                A(f"v_fract_f32 {v(t + 1)}, {v(t + 1)}")
            A(f"v_cos_f32 {v(dst)}, {v(t + 1)}")
            A(f"v_sin_f32 {v(dst + 1)}, {v(t + 1)}")
        for n, dst in enumerate((Wp[1], Wp[16], Zp[1])):
            A(f"v_pk_mul_f32 {v(dst, 2)}, {v(dst, 2)}, {v(TT[n], 2)} op_sel_hi:[1,0]")
        jobs = [(1, Wp[1], None, None, 0), (16, Zp[1], None, None, 0), (47, G[0], None, None, 1)]
        wj = []
        for p in range(2, 16):
            hb = 1 << (p.bit_length() - 1)
            x, y = (p // 2, p // 2) if hb == p else (hb, p - hb)
            wj.append((p, Wp[p], Wp[x], Wp[y], 0))
        gj = [(47 + j, G[j & 1], G[(j - 1) & 1], Wp[16], 1) for j in range(1, 16)]
        zrow = {2: 25, 3: 30, 4: 35, 5: 38, 6: 41, 7: 44}
        zj = []
        for p in range(2, 8):
            hb = 1 << (p.bit_length() - 1)
            x, y = (p // 2, p // 2) if hb == p else (hb, p - hb)
            zj.append((zrow[p], Zp[p], Zp[x], Zp[y], 0))
        tj = [(16 + k, None, Zp[1], Wp[2 * k], 0) for k in range(1, 9)]
        for z in (2, 3):
            tj += [(zrow[z] + k, None, Zp[z], Wp[4 * k], 0) for k in range(1, 5)]
        for z in (4, 5, 6, 7):
            tj += [(zrow[z] + k, None, Zp[z], Wp[8 * k], 0) for k in range(1, 3)]
        first = []
        for i in range(max(len(wj), len(gj), len(zj))):
            for q in (wj, gj, zj):
                if i < len(q):
                    first.append(q[i])
        jobs += first + tj
        A(f"v_mov_b32 {v(CV + 15)}, 0x3f80")
        pend = [(0, CV + 15)]
        slot = 0
        nb = 0
        b1_at = o.get("b1_at", 0)
        batch = o.get("batch", 6)

        def do_b1():
            self.stamp("setup")
            A(f"s_waitcnt vmcnt({1 if (o.get('wpf', 2) == 2 and not ilate) or o.get('wpf', 2) == 6 else 0})")
            self.stamp("idr")
            A("s_barrier")
            self.stamp("b1")
            if o.get("wpf", 2) == 1:
                A(wpf)
        if b1_at == 0:
            do_b1()
        for n, (row, dst, x, y, conj) in enumerate(jobs):
            if x is not None:
                if dst is None:
                    dst = RR[n & 3]
                for ins in self.cmul(dst, x, y, TT[n & 3]):
                    A(ins)
            A(f"v_cvt_pk_bf16_f32 {v(CV + slot)}, {v(dst)}, {'-' if conj else ''}{v(dst + 1)}")
            pend.append((row, CV + slot))
            slot = (slot + 1) % 15
            if len(pend) >= batch or n == len(jobs) - 1:
                for row_, reg in pend:
                    A(f"ds_write_addtid_b32 {v(reg)} offset:{row_ * ROWB}")
                pend = []
                nb += 1
                if nb == b1_at:
                    do_b1()
        A("s_waitcnt lgkmcnt(0)")
        self.stamp("kgen1")
        A("s_barrier")
        if o.get("wpf", 2) == 3:
            A(wpf)
        fB, fA0, fA1 = K, K + 32, K + 64
        for s in range(4):
            A(f"ds_read_b128 {v(fB + 4 * s, 4)}, {v(vKB)} offset:{47 * ROWB + 64 * s}")
            A(f"ds_read_b128 {v(fA0 + 4 * s, 4)}, {v(vKA0)} offset:{64 * s}")
            A(f"ds_read_b128 {v(fA1 + 4 * s, 4)}, {v(vKA1)} offset:{64 * s}")
        D0, D1 = vACC, vACC + 4
        for s in range(8):
            s2 = s + 4
            A(f"s_waitcnt lgkmcnt({9 if s2 < 8 else 3 * (7 - s)})")
            c0 = "0" if s == 0 else v(D0, 4)
            c1 = "0" if s == 0 else v(D1, 4)
            A(f"v_mfma_f32_16x16x32_bf16 {v(D0, 4)}, {v(fA0 + 4 * s, 4)}, {v(fB + 4 * s, 4)}, {c0}")
            if s2 < 8:
                A(f"ds_read_b128 {v(fB + 4 * s2, 4)}, {v(vKB)} offset:{47 * ROWB + 64 * s2}")
                A(f"ds_read_b128 {v(fA0 + 4 * s2, 4)}, {v(vKA0)} offset:{64 * s2}")
            A(f"v_mfma_f32_16x16x32_bf16 {v(D1, 4)}, {v(fA1 + 4 * s, 4)}, {v(fB + 4 * s, 4)}, {c1}")
            if s2 < 8:
                A(f"ds_read_b128 {v(fA1 + 4 * s2, 4)}, {v(vKA1)} offset:{64 * s2}")
        E = K + 96
        A(f"s_bitcmp1_b32 s{sWAVE}, 0")
        A(f"v_cmp_eq_u32 vcc, 0, {v(vLANE)}")
        A("s_nop 5")
        A("s_cbranch_scc0 L_exp_lo")
        seq2 = ["aa", "aa", "aa", "ba", "bb", "bb", "cb", "cc"]
        seq3 = ["aa", "aa", "aa", "aa", "aa", "ba", "bb", "bb", "bb", "bb", "cb", "cc", "cc", "cc"]
        ix = {"a": 0, "b": 1, "c": 2}
        for k, s in enumerate(seq3):
            A(f"v_cvt_pk_bf16_f32 {v(E + 8 + k)}, {v(D1 + ix[s[0]])}, {v(D1 + ix[s[1]])}")
        for k, w in enumerate((0, 4, 6, 10)):
            A(f"ds_write_b128 {v(vPW1)}, {v(E + 8 + w, 4)} offset:{16 * k}")
        for k, s in enumerate(seq2):
            A(f"v_cvt_pk_bf16_f32 {v(E + k)}, {v(D0 + ix[s[0]])}, {v(D0 + ix[s[1]])}")
        A(f"ds_write_b128 {v(vPW0)}, {v(E, 4)}")
        A(f"ds_write_b128 {v(vPW0)}, {v(E + 4, 4)} offset:16")
        A("L_exp_done:")
        T = self.tail
        T("L_exp_lo:")
        T(f"v_mov_b32_dpp {v(D1 + 3)}, {v(D1 + 3)} row_ror:1 row_mask:0x1 bank_mask:0xf")
        T(f"v_cvt_pk_bf16_f32 {v(E + 1)}, {v(D0 + 1)}, {v(D0)}")
        T(f"v_cvt_pk_bf16_f32 {v(E + 2)}, {v(D0 + 2)}, {v(D0 + 1)}")
        T(f"v_cvt_pk_bf16_f32 {v(E + 3)}, {v(D0 + 3)}, {v(D0 + 2)}")
        T(f"v_cndmask_b32 {v(E + 8)}, {v(D1 + 3)}, 0, vcc")
        T(f"v_cndmask_b32 {v(E + 9)}, {v(D1)}, {v(D1 + 3)}, vcc")
        T(f"v_cvt_pk_bf16_f32 {v(E)}, {v(D0)}, {v(E + 8)}")
        T(f"v_cvt_pk_bf16_f32 {v(E + 4)}, {v(D1)}, {v(E + 9)}")
        T(f"v_cvt_pk_bf16_f32 {v(E + 5)}, {v(D1)}, {v(D1)}")
        T(f"v_cvt_pk_bf16_f32 {v(E + 6)}, {v(D1 + 1)}, {v(D1)}")
        T(f"v_cvt_pk_bf16_f32 {v(E + 7)}, {v(D1 + 2)}, {v(D1 + 1)}")
        T(f"ds_write_b128 {v(vPW0)}, {v(E, 4)}")
        T(f"ds_write_b128 {v(vPW1)}, {v(E + 4, 4)}")
        T("s_branch L_exp_done")
        A("s_waitcnt lgkmcnt(0)")
        self.stamp("kgen2")
        A("s_barrier")
        if o.get("wpf", 2) == 4:
            A(wpf)

        def rdA(buf, rho, m):
            return [f"ds_read2_b32 {v(buf + 4 * m, 2)}, {v(vAA + m)} offset0:{64 * rho + 6} offset1:{64 * rho + 4}",
                    f"ds_read2_b32 {v(buf + 4 * m + 2, 2)}, {v(vAA + m)} offset0:{64 * rho + 2} offset1:{64 * rho}"]

        def rdB(buf, rho, n):
            return [f"ds_read_b128 {v(buf + 4 * n, 4)}, {v(vBA)} offset:{128 * (3 - rho) + 512 * (7 - n)}"]

        for m in range(8):
            for l in rdA(vA0, 0, m):
                A(l)
        A(f"s_mul_i32 s{sTMP}, s{sL}, {RS}")
        A(f"s_lshl_b32 s{sTMP + 1}, s{sWAVE}, 11")
        A(f"s_add_u32 s{sTMP}, s{sTMP}, s{sTMP + 1}")
        A(f"s_add_u32 s{sTMP}, s{sTMP}, {W_REG + O_X2}")
        A(f"v_lshl_add_u32 {v(vT)}, {v(vLANE)}, 4, s{sTMP}")
        A(f"v_lshlrev_b32 {v(vT + 1)}, {KS}, v0")
        A(f"v_add_u32 {v(vT + 1)}, {W_KEY}, {v(vT + 1)}")
        A(f"s_lshl_b32 s{sTMP}, s{sWAVE}, 2")
        A(f"s_add_u32 s{sTMP}, s{sTMP}, {L_REDK}")
        A(f"v_mov_b32 {v(vT + 3)}, s{sTMP}")
        A("s_waitcnt lgkmcnt(0)")
        self.stamp("apre")
        A("s_barrier")
        self.stamp("b3")
        if o.get("wpf", 2) == 5:
            A(wpf)
        if o.get("prio", 1):
            A("s_setprio 2")

        bufA, bufB = [vA0, vA1], [vB0, vB1]
        for n in range(7, -1, -1):
            for l in rdB(vB0, 0, n):
                A(l)
        started = set()
        for rho in range(4):
            a_, b_ = bufA[rho & 1], bufB[rho & 1]
            order = [(n - 7 + tb, tb, n) for n in range(7, -1, -1) for tb in range(7 - n, 8)]
            if rho == 3:
                order = [(n - 7 + tb, tb, n) for tb in range(8) for n in range(7 - tb, 8)]
            fill = []
            if rho + 1 < 4:
                nb_, na_ = bufB[(rho + 1) & 1], bufA[(rho + 1) & 1]
                for m in range(8):
                    fill += rdB(nb_, rho + 1, 7 - m)
                    fill += rdA(na_, rho + 1, m)
            issued = 0
            seen = set()
            done_at = {}
            for i, (m, tb, n) in enumerate(order):
                done_at[tb] = i
            for i, (m, tb, n) in enumerate(order):
                if rho == 0 and n not in seen:
                    A(f"s_waitcnt lgkmcnt({min(15, n + issued)})")
                    seen.add(n)
                elif i == 0:
                    A("s_waitcnt lgkmcnt(0)")
                acc = v(vACC + 4 * tb, 4)
                c = acc if tb in started else "0"
                started.add(tb)
                A(f"v_mfma_f32_16x16x32_bf16 {acc}, {v(a_ + 4 * m, 4)}, {v(b_ + 4 * n, 4)}, {c}")
                if i >= 1 and fill:
                    A(fill.pop(0))
                    issued += 1
                if rho == 3:
                    for t in range(7):
                        if done_at[t] + 8 == i or (i == len(order) - 1 and done_at[t] + 8 > i):
                            A(f"ds_write_b128 {v(vEW)}, {v(vACC + 4 * t, 4)} offset:{t * TBS}")
            assert not fill
        A(f"ds_write_b128 {v(vEW)}, {v(vACC + 28, 4)} offset:{7 * TBS}")
        self.stamp("conv")
        A("s_waitcnt lgkmcnt(0)")
        A("s_barrier")
        for i in range(2):
            for s in range(4):
                A(f"ds_read_b128 {v(K + 16 * i + 4 * s, 4)}, {v(vER)} offset:{s * 8 * TBS + i * TBS}")
        for i in range(2):
            A(f"s_waitcnt lgkmcnt({4 * (1 - i)})")
            b0 = K + 16 * i
            for c in range(2):
                for h in range(2):
                    A(f"v_pk_add_f32 {v(b0 + 8 * c + 2 * h, 2)}, {v(b0 + 8 * c + 2 * h, 2)}, {v(b0 + 8 * c + 4 + 2 * h, 2)}")
            for c in range(2):
                for h in range(2):
                    A(f"v_cvt_pk_bf16_f32 {v(K + 32 + 4 * i + 2 * c + h)}, {v(b0 + 8 * c + 2 * h)}, {v(b0 + 8 * c + 2 * h + 1)}")
            A(f"global_store_dwordx4 {v(vT)}, {v(K + 32 + 4 * i, 4)}, {sp(sWS)} offset:{1024 * i} sc1")
        self.stamp("x2st")
        A("s_waitcnt vmcnt(0)")
        self.stamp("x2dr")
        A("s_barrier")
        A(f"s_cmp_eq_u32 s{sWAVE}, 0")
        A("s_cbranch_scc0 L_cfin")
        for q in range(1, 4):
            A(f"v_add_u32 {v(vT + 8 + q)}, {(64 * q) << KS}, {v(vT + 1)}")
        A("s_barrier")
        self.key_calc(K, vRA, vLANE)
        A("s_mov_b64 exec, 1")
        A(f"global_store_dword {v(22)}, {v(K + 8)}, {sp(sWS)} sc1")
        A("s_mov_b64 exec, -1")
        self.stamp("key")
        A("s_waitcnt vmcnt(0)")
        self.stamp("keydr")
        k2 = vT + 4
        kl = [f"global_load_dword {v(K + q)}, {v(vT + 8 + q) if q else v(vT + 1)}, {sp(sWS)} sc1" for q in range(4)]
        for l in kl:
            A(l)
        A("s_waitcnt vmcnt(0)")
        self.poll("key", kl, [f"v_max3_u32 {v(k2)}, {v(K)}, {v(K + 1)}, {v(K + 2)}",
                              f"v_max_u32 {v(k2)}, {v(k2)}, {v(K + 3)}",
                              f"v_cmp_eq_u32 vcc, -1, {v(k2)}"])
        self.stamp("keyld")
        A(f"v_max_u32_dpp {v(k2)}, {v(k2)}, {v(k2)} quad_perm:[1,0,3,2] row_mask:0xf bank_mask:0xf")
        A(f"v_max_u32_dpp {v(k2)}, {v(k2)}, {v(k2)} quad_perm:[2,3,0,1] row_mask:0xf bank_mask:0xf")
        A(f"v_max_u32_dpp {v(k2)}, {v(k2)}, {v(k2)} row_half_mirror row_mask:0xf bank_mask:0xf")
        A(f"v_max_u32_dpp {v(k2)}, {v(k2)}, {v(k2)} row_mirror row_mask:0xf bank_mask:0xf")
        A(f"v_max_u32_dpp {v(k2)}, {v(k2)}, {v(k2)} row_bcast:15 row_mask:0xa bank_mask:0xf")
        A(f"v_max_u32_dpp {v(k2)}, {v(k2)}, {v(k2)} row_bcast:31 row_mask:0xc bank_mask:0xf")
        A("s_mov_b32 exec_lo, 0")
        A("s_brev_b32 exec_hi, 1")
        A(f"ds_write_b32 {v(vT + 3)}, {v(k2)}")
        A("s_waitcnt lgkmcnt(0)")
        A("s_barrier")
        A("L_cfin:")
        self.finish("C")

    def text(self):
        lines = self.build()
        src = open("sequential_preLN__ssm_conv_s4d__moe_arch_mod__prompt.s.ref").read()
        head = [l for l in src.split("\n") if l.startswith(";") and "@launch" not in l]
        head = head[:head.index("; Override launch geometry by editing the next line (default: block=256,")]
        out = head + [f"; @launch grid=(256,1,1) block=(512,1,1) lds={LDS_BYTES}",
                      '.amdgcn_target "amdgcn-amd-amdhsa--gfx950"', ".text", f".globl {KNAME}", ".p2align 8",
                      f".type {KNAME},@function"]
        out += [l if l.endswith(":") else "    " + l for l in lines]
        out += [".section .rodata,\"a\"", ".p2align 6", f".amdhsa_kernel {KNAME}",
                "  .amdhsa_next_free_vgpr 224", "  .amdhsa_next_free_sgpr 102", "  .amdhsa_accum_offset 224",
                "  .amdhsa_group_segment_fixed_size 0", "  .amdhsa_kernarg_size 120", "  .amdhsa_user_sgpr_count 2",
                "  .amdhsa_user_sgpr_kernarg_segment_ptr 1", "  .amdhsa_system_sgpr_workgroup_id_x 1",
                ".end_amdhsa_kernel", ""]
        return "\n".join(out)


if __name__ == "__main__":
    out = sys.argv[1]
    opts = {}
    stamp = False
    for a in sys.argv[2:]:
        if a == "stamp":
            stamp = True
        else:
            k, val = a.split("=")
            opts[k] = val if k == 'pr' else int(val)
    g = Gen(stamp, opts)
    open(out, "w").write(g.text())
    if stamp:
        open(out + ".names", "w").write(" ".join(g.allnames["R"]) + "\n" + " ".join(g.allnames["C"]))
    print(g.info, "lds", LDS_BYTES)
```

```python
import sys
import struct
from asmlib import Asm, align8

KNAME = "sequential_preLN__ssm_conv_s4d__moe_arch_mod__prompt_kernel"


def f2u(x):
    return struct.unpack("<I", struct.pack("<f", x))[0]


W_FLAG = 0x1000
W_KEY = 0x9000
W_FLAG2 = 0x11000
W_REG = 0x31000
RS = 20608
O_X1, O_X2, O_SLOT, O_PART = 0, 8192, 16384, 18432
W_STAMP = 0x800000
ROWB = 544
TABC = 63 * ROWB
L_TAB = 0
L_P = 68608
PC = 8256
L_U = L_P + 2 * PC
UC = 4608
L_RED1 = (L_U + 2 * UC + 255) // 256 * 256
L_RED2 = L_RED1 + 256
L_SUMW = L_RED2 + 384
L_REDK = L_SUMW + 16
L_REDF = L_REDK + 16
LDS_BYTES = L_REDF + 256
L_EPI = 0
TBS = 1152
L_TILE = 40960
RSTR = 1040
TILE = 8 * RSTR
sX, sLA, sAI, sCR, sCI, sLDT, sD = 4, 6, 8, 10, 12, 14, 16
sWR, sWG, sWU, sWD, sOUT, sDBG, sWS = 20, 22, 24, 26, 28, 30, 32
sL, sPOS, sXCD, sWAVE, sG, sDT, sT0, sT1, sSPIN, sF = 34, 35, 36, 37, 38, 39, 40, 41, 42, 43
sODD = 44
sSELLO, sSELHI, sONES, sMASK = 46, 47, 48, 49
sWSEL = 50
sBEST, sWIN, sRP0, sRP1 = 52, 53, 54, 55
sH = 56
sE = 64
sTMP = 66
sOWN = 71
sSTAMP = 72


def sp(r):
    return f"s[{r}:{r + 1}]"


def v(r, n=1):
    return f"v{r}" if n == 1 else f"v[{r}:{r + n - 1}]"


class Gen:
    def __init__(self, stamp=False, opts=None):
        self.A = Asm()
        self.tail = Asm()
        self.stamp_on = stamp
        self.nstamp = 0
        self.names = []
        self.o = dict(opts or {})
        self.only = None
        self.role = "R"
        if "pr" in self.o:
            self.only = tuple(self.o["pr"].split("."))
            self.stamp_on = True
            self.o["probe"] = 1 if self.only[0] == "R" else 101

    def stamp(self, name):
        if not self.stamp_on:
            return
        if self.only and name != "start" and (self.role, name) != self.only:
            return
        k = self.nstamp
        self.nstamp += 1
        self.names.append(name)
        assert sSTAMP + k < 100
        self.A(f"s_memtime s[100:101]" if self.o.get("cyc") else f"s_memrealtime s[100:101]")
        self.A("s_waitcnt lgkmcnt(0)")
        self.A(f"s_mov_b32 s{sSTAMP + k}, s100")

    def poll(self, name, loads, check, base_exec="-1"):
        A = self.A
        for c in check:
            A(c)
        A(f"s_cbranch_vccnz L_retry_{name}")
        A(f"L_ok_{name}:")
        T = self.tail
        T(f"L_retry_{name}:")
        T(f"s_mov_b32 s{sSPIN}, 0x40000")
        T(f"L_again_{name}:")
        T(f"s_sub_u32 s{sSPIN}, s{sSPIN}, 1")
        T(f"s_cbranch_scc1 L_ok_{name}")
        T("s_mov_b64 exec, vcc")
        for l in loads:
            T(l)
        T("s_waitcnt vmcnt(0)")
        for c in check:
            T(c)
        T(f"s_mov_b64 exec, {base_exec}")
        T(f"s_cbranch_vccnz L_again_{name}")
        T(f"s_branch L_ok_{name}")

    def cmul(self, d, x, y, t):
        return [f"v_pk_mul_f32 {v(t, 2)}, {v(x, 2)}, {v(y, 2)} op_sel:[0,0] op_sel_hi:[0,1]",
                f"v_pk_fma_f32 {v(d, 2)}, {v(x, 2)}, {v(y, 2)}, {v(t, 2)} op_sel:[1,1,0] op_sel_hi:[1,0,1] neg_lo:[1,0,0]"]

    def reduce8(self, V, t):
        A = self.A
        for i in range(4):
            A(f"v_add_f32_dpp {v(V[i])}, {v(V[i])}, {v(V[i])} row_ror:8 row_mask:0xf bank_mask:0x3")
        for i in range(4):
            A(f"v_add_f32_dpp {v(V[i])}, {v(V[i + 4])}, {v(V[i + 4])} row_ror:8 row_mask:0xf bank_mask:0xc")
        for i in range(2):
            A(f"v_add_f32_dpp {v(V[i])}, {v(V[i])}, {v(V[i])} row_shl:4 row_mask:0xf bank_mask:0x5")
        for i in range(2):
            A(f"v_add_f32_dpp {v(V[i])}, {v(V[i + 2])}, {v(V[i + 2])} row_shr:4 row_mask:0xf bank_mask:0xa")
        A(f"v_permlane32_swap_b32 {v(V[0])}, {v(V[1])}")
        A(f"v_add_f32 {v(V[0])}, {v(V[0])}, {v(V[1])}")
        A(f"v_add_f32_dpp {v(V[0])}, {v(V[0])}, {v(V[0])} quad_perm:[2,3,0,1] row_mask:0xf bank_mask:0xf")
        A(f"v_mov_b32 {v(t)}, {v(V[0])}")
        A(f"v_permlane16_swap_b32 {v(V[0])}, {v(t)}")
        A(f"v_add_f32 {v(V[0])}, {v(V[0])}, {v(t)}")

    def row_stats(self, S, Q, negm, rinv, t):
        A = self.A
        A(f"v_pk_add_f32 {v(S, 2)}, {v(S, 2)}, {v(S + 2, 2)}")
        A(f"v_pk_add_f32 {v(Q, 2)}, {v(Q, 2)}, {v(Q + 2, 2)}")
        A(f"v_add_f32 {v(S)}, {v(S)}, {v(S + 1)}")
        A(f"v_add_f32 {v(Q)}, {v(Q)}, {v(Q + 1)}")
        A(f"v_mul_f32 {v(S)}, {hex(f2u(1 / 512))}, {v(S)}")
        A(f"v_mul_f32 {v(Q)}, {hex(f2u(1 / 512))}, {v(Q)}")
        A(f"v_fma_f32 {v(Q)}, -{v(S)}, {v(S)}, {v(Q)}")
        A(f"v_max_f32 {v(Q)}, 0, {v(Q)}")
        A(f"v_cvt_pk_bf16_f32 {v(t)}, -{v(S)}, {v(Q)}")
        A(f"v_and_b32 {v(Q)}, s{sMASK}, {v(t)}")
        A(f"v_add_f32 {v(Q)}, {hex(f2u(1e-5))}, {v(Q)}")
        A(f"v_cvt_pk_bf16_f32 {v(Q)}, {v(Q)}, {v(Q)}")
        A(f"v_and_b32 {v(Q)}, s{sMASK}, {v(Q)}")
        A(f"v_sqrt_f32 {v(Q)}, {v(Q)}")
        A(f"v_lshlrev_b32 {v(negm)}, 16, {v(t)}")
        A(f"v_cvt_pk_bf16_f32 {v(Q)}, {v(Q)}, {v(Q)}")
        A(f"v_and_b32 {v(Q)}, s{sMASK}, {v(Q)}")
        A(f"v_rcp_f32 {v(rinv)}, {v(Q)}")

    def spread(self, val, dst, t):
        A = self.A
        for r in range(4):
            A(f"v_mov_b32_dpp {v(t + r)}, {v(val)} row_newbcast:{4 + r} row_mask:0xf bank_mask:0xf")
        for r in range(4):
            A(f"v_cndmask_b32_dpp {v(dst + r)}, {v(val)}, {v(t + r)}, vcc row_newbcast:{r} row_mask:0xf bank_mask:0xf")

    def key_calc(self, K, vRA, vLANE):
        A = self.A
        A(f"v_mov_b32 {v(K + 14)}, {L_SUMW}")
        A(f"ds_read_b128 {v(K, 4)}, {v(vRA)} offset:{L_RED2 - L_RED1}")
        A(f"ds_read_b128 {v(K + 4, 4)}, {v(vRA)} offset:{L_RED2 - L_RED1 + 128}")
        A(f"ds_read_b128 {v(K + 8, 4)}, {v(vRA)} offset:{L_RED2 - L_RED1 + 256}")
        A(f"ds_read_b32 {v(K + 15)}, {v(K + 14)}")
        A(f"s_lshl_b32 s{sTMP}, s{sL}, 3")
        A(f"s_sub_u32 s{sTMP}, 2047, s{sTMP}")
        A(f"v_and_b32 {v(K + 14)}, 7, {v(vLANE)}")
        A(f"v_sub_u32 {v(K + 14)}, s{sTMP}, {v(K + 14)}")
        A("s_waitcnt lgkmcnt(2)")
        self.row_stats(K, K + 4, K + 12, K + 13, K + 28)
        A("s_waitcnt lgkmcnt(0)")
        A(f"v_pk_add_f32 {v(K + 8, 2)}, {v(K + 8, 2)}, {v(K + 10, 2)}")
        A(f"v_add_f32 {v(K + 8)}, {v(K + 8)}, {v(K + 9)}")
        A(f"v_fmac_f32 {v(K + 8)}, {v(K + 12)}, {v(K + 15)}")
        A(f"v_mul_f32 {v(K + 8)}, {v(K + 8)}, {v(K + 13)}")
        A(f"v_ashrrev_i32 {v(K + 9)}, 31, {v(K + 8)}")
        A(f"v_or_b32 {v(K + 9)}, 0x80000000, {v(K + 9)}")
        A(f"v_xor_b32 {v(K + 8)}, {v(K + 8)}, {v(K + 9)}")
        A(f"v_and_b32 {v(K + 8)}, 0xfffff800, {v(K + 8)}")
        A(f"v_or_b32 {v(K + 8)}, {v(K + 8)}, {v(K + 14)}")
        A(f"v_min_u32 {v(K + 8)}, -2, {v(K + 8)}")
        A(f"v_max_u32_dpp {v(K + 8)}, {v(K + 8)}, {v(K + 8)} quad_perm:[1,0,3,2] row_mask:0xf bank_mask:0xf")
        A(f"v_max_u32_dpp {v(K + 8)}, {v(K + 8)}, {v(K + 8)} quad_perm:[2,3,0,1] row_mask:0xf bank_mask:0xf")
        A(f"v_max_u32_dpp {v(K + 8)}, {v(K + 8)}, {v(K + 8)} row_half_mirror row_mask:0xf bank_mask:0xf")

    def finish(self, role):
        A = self.A
        o = self.o
        if self.stamp_on:
            self.stamp("end")
            self.allnames[role] = self.names
        if self.stamp_on and "probe" in o:
            k = o["probe"]
            if k == 98 and role == "R":
                A(f"s_getreg_b32 s{sTMP}, hwreg(HW_REG_XCC_ID, 0, 4)")
                A(f"s_sub_u32 s{sTMP}, s{sTMP}, s2")
                A(f"s_and_b32 s{sTMP}, s{sTMP}, 7")
                A(f"s_mul_i32 s{sTMP}, s{sTMP}, 1000")
                A(f"s_add_u32 s{sTMP}, s{sTMP}, 2000")
            elif k == 99 and role == "R":
                A("s_memtime s[96:97]")
                A("s_waitcnt lgkmcnt(0)")
                A("s_sub_u32 s96, s96, s98")
                A(f"s_sub_u32 s97, s{sSTAMP + self.nstamp - 1}, s{sSTAMP}")
                A("s_mov_b64 exec, -1")
                A("v_cvt_f32_u32 v2, s96")
                A("v_cvt_f32_u32 v3, s97")
                A("v_rcp_f32 v3, v3")
                A("s_nop 1")
                A("v_mul_f32 v2, v2, v3")
                A("v_mul_f32 v2, 0x43c80000, v2")
                A("v_cvt_u32_f32 v2, v2")
                A("s_nop 1")
                A(f"v_readfirstlane_b32 s{sTMP}, v2")
                A(f"s_add_u32 s{sTMP}, s{sTMP}, 2000")
            elif k < 0 and role == "R":
                A(f"s_mov_b32 s{sTMP}, {-k}")
            elif k >= 0 and (k >= 100) == (role == "C"):
                A(f"s_sub_u32 s{sTMP}, s{sSTAMP + k % 100}, s{sSTAMP}")
                A(f"s_cmp_lt_u32 s{sTMP}, 3000")
                A(f"s_cselect_b32 s{sTMP}, s{sTMP}, 0")
                A(f"s_mul_i32 s{sTMP}, s{sTMP}, 20")
                A(f"s_add_u32 s{sTMP}, s{sTMP}, 2000")
            else:
                A(f"s_mov_b32 s{sTMP}, 0")
            A(f"L_spin{role}:")
            A("s_memrealtime s[100:101]")
            A("s_waitcnt lgkmcnt(0)")
            A(f"s_sub_u32 s100, s100, s{sSTAMP}")
            A(f"s_cmp_lt_u32 s100, s{sTMP}")
            A(f"s_cbranch_scc1 L_spin{role}")
        elif self.stamp_on:
            A("s_mov_b64 exec, 1")
            A(f"s_lshl_b32 s{sTMP}, s2, 3")
            A(f"s_add_u32 s{sTMP}, s{sTMP}, s{sWAVE}")
            if role == "C":
                A(f"s_add_u32 s{sTMP}, s{sTMP}, 4")
            A(f"s_lshl_b32 s{sTMP}, s{sTMP}, 7")
            A(f"s_add_u32 s{sTMP}, s{sTMP}, {W_STAMP}")
            A(f"v_mov_b32 v1, s{sTMP}")
            for k in range(self.nstamp):
                A(f"v_mov_b32 v2, s{sSTAMP + k}")
                A(f"global_store_dword v1, v2, {sp(sWS)} offset:{4 * k}")
        A("s_endpgm")

    def build(self):
        A = self.A
        self.allnames = {}
        o = self.o
        A(f"{KNAME}:")
        self.stamp("start")
        A("s_load_dwordx16 s[4:19], s[0:1], 0")
        A("s_cmp_ge_u32 s2, 256")
        A("s_cbranch_scc1 L_end")
        if o.get("probe", 0) == 99:
            A("s_memtime s[98:99]")
        A(f"s_getpc_b64 {sp(sE)}")
        A("L_pc:")
        A("v_lshlrev_b32 v2, 5, v0")
        A(f"v_min_u32 v2, L_codeend-L_pc-4, v2")
        A(f"global_load_dword v3, v2, {sp(sE)}")
        A("s_load_dwordx8 s[20:27], s[0:1], 64")
        A("s_load_dwordx4 s[28:31], s[0:1], 96")
        A("s_load_dwordx2 s[32:33], s[0:1], 112")
        A("v_lshrrev_b32 v4, 6, v0")
        A(f"s_and_b32 s{sXCD}, s2, 7")
        A(f"v_readfirstlane_b32 s{sWAVE}, v4")
        A(f"s_lshr_b32 s{sPOS}, s2, 3")
        A(f"s_lshl_b32 s{sL}, s{sXCD}, 5")
        A(f"s_add_u32 s{sL}, s{sL}, s{sPOS}")
        A("v_and_b32 v1, 63, v0")
        A("v_and_b32 v0, 0xff, v0")
        A("v_lshrrev_b32 v32, 1, v0")
        A("v_and_b32 v33, 1, v0")
        A("v_lshlrev_b32 v34, 3, v32")
        A(f"s_lshl_b32 s{sT0}, s{sL}, 13")
        A("v_lshl_add_u32 v23, v33, 12, v34")
        A(f"v_add_u32 v23, s{sT0}, v23")
        A(f"s_lshl_b32 s{sT0}, s{sL}, 9")
        A(f"v_lshl_add_u32 v28, v0, 1, s{sT0}")
        A(f"s_lshl_b32 s{sT1}, s{sL}, 2")
        A(f"s_cmp_lt_u32 s{sWAVE}, 4")
        A("s_waitcnt lgkmcnt(0)")
        A("s_cbranch_scc1 L_rows")
        nt = ' nt' if o.get('ntx', 1) else ''
        for k, sb in enumerate((sLA, sAI, sCR, sCI)):
            A(f"global_load_ushort v{24 + k}, v28, {sp(sb)}{nt}")
        A(f"s_load_dword s{sDT}, {sp(sLDT)}, s{sT1}")
        A("s_branch L_chan")
        A("L_rows:")
        self.rows()
        self.names = self.names[:1]
        self.nstamp = min(self.nstamp, 1)
        A(".p2align 6")
        self.role = "C"
        self.chans()
        A("L_end:")
        A("s_endpgm")
        for l in self.tail.L:
            A(l)
        A("L_codeend:")
        lines, nops = A.padded()
        lines, nbytes, promoted, missed = align8(lines)
        self.info = dict(nops=nops, bytes=nbytes, promoted=promoted, missed=missed, lines=len(lines))
        return lines

    def rows(self):
        A = self.A
        o = self.o
        vLANE = 1
        vX, vU, vD, vWR = 212, 10, 18, 20
        vREG, vRD, vAUX = 22, 23, 24
        vKEY, vSW, vRA, vFL, vUW = 26, 27, 28, 29, 30
        vT = 32
        vWG, vWD = 40, 72
        vY = 88
        vONE = 96
        K = 100
        L2E = 1.4426950408889634
        nt = ' nt' if o.get('ntx', 1) else ''
        for r in range(4):
            A(f"global_load_dwordx2 {v(vX + 2 * r, 2)}, {v(vRD)}, {sp(sX)} offset:{1024 * r}{nt}")
        self.stamp("karg")
        A(f"s_load_dword s{sG}, {sp(sWS)}, 0")
        A(f"v_lshlrev_b32 {v(vT + 3)}, 4, {v(vLANE)}")
        A(f"global_load_dwordx2 {v(vD, 2)}, {v(vT + 2)}, {sp(sD)}")
        A(f"global_load_dwordx2 {v(vWR, 2)}, {v(vT + 2)}, {sp(sWR)}")
        A(f"global_load_dwordx4 {v(vONE, 4)}, {v(vT + 3)}, {sp(sWR)}")
        A(f"s_mul_i32 s{sOWN}, s{sL}, {RS}")
        A(f"s_add_u32 s{sOWN}, s{sOWN}, {W_REG}")
        A(f"s_add_u32 s{sT0}, s{sOWN}, 4096")
        A(f"v_lshl_add_u32 {v(vREG)}, v0, 4, s{sT0}")
        A(f"s_mov_b32 s{sMASK}, 0xffff0000")
        A(f"s_mov_b32 s{sODD}, 0xaaaaaaaa")
        A(f"s_mov_b32 s{sODD + 1}, 0xaaaaaaaa")
        A(f"s_mov_b32 s{sSELLO}, 0x3f80")
        A(f"s_mov_b32 s{sSELHI}, 0x3f800000")
        A(f"s_mov_b32 s{sONES}, 0x3f803f80")
        A(f"s_and_b32 s{sTMP}, s{sL}, 1")
        A(f"s_lshl_b32 s{sTMP}, s{sTMP}, 12")
        A(f"s_lshr_b32 s{sTMP + 1}, s{sL}, 1")
        A(f"s_lshl_b32 s{sTMP + 1}, s{sTMP + 1}, 5")
        A(f"s_add_u32 s{sTMP}, s{sTMP}, s{sTMP + 1}")
        A(f"s_add_u32 s{sTMP}, s{sTMP}, {W_REG + O_X1}")
        A(f"v_mul_u32_u24 {v(vAUX)}, {RS}, {v(vT)}")
        A(f"v_lshl_add_u32 {v(vAUX)}, {v(vT + 1)}, 4, {v(vAUX)}")
        A(f"v_add_u32 {v(vAUX)}, s{sTMP}, {v(vAUX)}")
        A(f"v_add_u32 {v(vAUX + 1)}, {128 * RS}, {v(vAUX)}")
        FS = o.get("fs", 7)
        KS = o.get("ks", 5)
        A(f"v_lshlrev_b32 {v(vFL)}, {FS}, {v(vT)}")
        A(f"v_add_u32 {v(vFL)}, {W_FLAG}, {v(vFL)}")
        A(f"v_add_u32 {v(vFL + 2)}, {128 << FS}, {v(vFL)}")
        A(f"s_lshl_b32 s{sT0}, s{sL}, {FS}")
        A(f"s_add_u32 s{sT0}, s{sT0}, {W_FLAG}")
        A(f"v_lshl_add_u32 {v(vKEY)}, {v(vLANE)}, 4, s{sT0}")
        A(f"v_cmp_ne_u32 vcc, s{sL}, {v(vT)}")
        A(f"s_sub_u32 s{sT0}, s{sL}, 128")
        A(f"v_cndmask_b32 {v(5)}, 0, -1, vcc")
        A(f"v_cmp_ne_u32 vcc, s{sT0}, {v(vT)}")
        A(f"v_cndmask_b32 {v(6)}, 0, -1, vcc")
        A(f"v_lshlrev_b32 {v(vSW)}, 6, {v(vT + 1)}")
        A(f"v_and_b32 {v(vT + 3)}, 4, {v(vLANE)}")
        A(f"v_lshl_add_u32 {v(vSW)}, {v(vT + 3)}, 3, {v(vSW)}")
        A(f"v_and_b32 {v(vT + 3)}, 8, {v(vLANE)}")
        A(f"v_lshl_add_u32 {v(vSW)}, {v(vT + 3)}, 4, {v(vSW)}")
        A(f"v_lshrrev_b32 {v(vT + 3)}, 5, {v(vLANE)}")
        A(f"v_lshl_add_u32 {v(vSW)}, {v(vT + 3)}, 4, {v(vSW)}")
        A(f"s_lshl_b32 s{sTMP}, s{sWAVE}, 2")
        A(f"s_add_u32 s{sTMP}, s{sTMP}, {L_RED1}")
        A(f"v_add_u32 {v(vSW)}, s{sTMP}, {v(vSW)}")
        A(f"v_and_b32 {v(vT + 3)}, 7, {v(vLANE)}")
        A(f"v_lshlrev_b32 {v(vRA)}, 4, {v(vT + 3)}")
        A(f"v_add_u32 {v(vRA)}, {L_RED1}, {v(vRA)}")
        A(f"v_lshlrev_b32 {v(vUW)}, 3, v0")
        A(f"v_mov_b32 {v(K)}, 0")
        A(f"v_mov_b32 {v(K + 1)}, 0")
        A(f"v_min_u32 {v(vT + 3)}, 472, {v(vUW)}")
        A(f"v_add_u32 {v(vT + 3)}, {L_U}, {v(vT + 3)}")
        A(f"v_min_u32 {v(vT + 4)}, 56, {v(vUW)}")
        A(f"v_add_u32 {v(vT + 4)}, {L_P}, {v(vT + 4)}")
        A(f"ds_write2st64_b64 {v(vT + 3)}, {v(K, 2)}, {v(K, 2)} offset0:0 offset1:9")
        A(f"ds_write_b64 {v(vT + 4)}, {v(K, 2)}")
        A(f"ds_write_b64 {v(vT + 4)}, {v(K, 2)} offset:{PC}")
        A(f"v_add_u32 {v(vUW)}, {L_U + 480}, {v(vUW)}")

        V = [K + i for i in range(8)]
        A("s_waitcnt vmcnt(3)")
        self.stamp("x")
        for r in range(4):
            A(f"v_dot2_f32_bf16 {v(V[r])}, {v(vX + 2 * r)}, s{sONES}, 0")
        for r in range(4):
            A(f"v_dot2_f32_bf16 {v(V[4 + r])}, {v(vX + 2 * r)}, {v(vX + 2 * r)}, 0")
        for r in range(4):
            A(f"v_dot2_f32_bf16 {v(V[r])}, {v(vX + 2 * r + 1)}, s{sONES}, {v(V[r])}")
        for r in range(4):
            A(f"v_dot2_f32_bf16 {v(V[4 + r])}, {v(vX + 2 * r + 1)}, {v(vX + 2 * r + 1)}, {v(V[4 + r])}")
        self.reduce8(V, K + 8)
        A(f"ds_write_b32 {v(vSW)}, {v(V[0])}")
        A("s_waitcnt lgkmcnt(0)")
        A("s_barrier")
        self.stamp("b1")
        A(f"ds_read_b128 {v(K, 4)}, {v(vRA)}")
        A(f"ds_read_b128 {v(K + 4, 4)}, {v(vRA)} offset:128")
        A(f"s_add_u32 s{sG}, s{sG}, 0x9e3779b9")
        fw = o.get("fw", 1)
        for k in range(4 if fw else 1):
            A(f"v_mov_b32 {v(K + 28 + k)}, s{sG}")
        A(f"s_cmp_eq_u32 s{sWAVE}, 0")
        if fw:
            A(f"s_cselect_b64 exec, {(1 << ((1 << FS) // 16)) - 1}, 0")
            A(f"global_store_dwordx4 {v(vKEY)}, {v(K + 28, 4)}, {sp(sWS)} sc1")
        else:
            A("s_cselect_b64 exec, 1, 0")
            A(f"global_store_dword {v(vKEY)}, {v(K + 28)}, {sp(sWS)} sc1")
        A("s_mov_b64 exec, -1")
        flmode = o.get("flmode", 1)
        fl = [f"global_load_dword {v(vT + 4)}, {v(vFL)}, {sp(sWS)} sc1",
              f"global_load_dword {v(vT + 5)}, {v(vFL + 2)}, {sp(sWS)} sc1"]
        if flmode == 3:
            for l in fl:
                A(l)
        A(f"s_mov_b64 vcc, {sp(sODD)}")
        A("s_waitcnt lgkmcnt(0)")
        vNM, vRI = K + 16, K + 20
        self.row_stats(K, K + 4, K + 10, K + 11, K + 12)
        self.spread(K + 10, vNM, K + 24)
        Dd = K + 32
        for c in range(4):
            for r in range(4):
                A(f"v_dot2_f32_bf16 {v(Dd + 4 * c + r)}, {v(vX + 2 * r + (c >> 1))}, s{sSELHI if c & 1 else sSELLO}, {v(vNM + r)}")
        self.spread(K + 11, vRI, K + 24)
        Pk = K + 48
        for half in range(2):
            ks = range(4 * half, 4 * half + 4)
            for k in ks:
                A(f"v_cvt_pk_bf16_f32 {v(Pk + k)}, {v(Dd + 2 * k)}, {v(Dd + 2 * k + 1)}")
            for k in ks:
                A(f"v_lshlrev_b32 {v(Dd + 2 * k)}, 16, {v(Pk + k)}")
                A(f"v_and_b32 {v(Dd + 2 * k + 1)}, s{sMASK}, {v(Pk + k)}")
            for k in ks:
                A(f"v_pk_mul_f32 {v(Dd + 2 * k, 2)}, {v(Dd + 2 * k, 2)}, {v(vRI + 2 * (k & 1), 2)}")
            for k in ks:
                A(f"v_cvt_pk_bf16_f32 {v(vU + k)}, {v(Dd + 2 * k)}, {v(Dd + 2 * k + 1)}")
            A(f"global_store_dwordx4 {v(vREG)}, {v(vU + 4 * half, 4)}, {sp(sWS)} offset:{-4096 + 4096 * half} sc1")
        self.stamp("x1st")
        flchk = [f"v_xor_b32 {v(vT + 6)}, s{sG}, {v(vT + 4)}",
                 f"v_xor_b32 {v(vT + 7)}, s{sG}, {v(vT + 5)}",
                 f"v_or_b32 {v(vT + 6)}, {v(vT + 6)}, {v(vT + 7)}",
                 f"v_cmp_ne_u32 vcc, 0, {v(vT + 6)}"]
        if flmode == 3:
            A("s_waitcnt vmcnt(2)")
            self.stamp("x1dr")
            self.poll("flag", fl, [f"v_xor_b32 {v(vT + 6)}, s{sG}, {v(vT + 4)}",
                                   f"v_xor_b32 {v(vT + 7)}, s{sG}, {v(vT + 5)}",
                                   f"v_and_b32 {v(vT + 6)}, {v(vT + 6)}, {v(5)}",
                                   f"v_and_or_b32 {v(vT + 6)}, {v(vT + 7)}, {v(6)}, {v(vT + 6)}",
                                   f"v_cmp_ne_u32 vcc, 0, {v(vT + 6)}"])
        else:
            if flmode == 1:
                A("s_waitcnt vmcnt(0)")
            if flmode < 2:
                for l in fl:
                    A(l)
            A("s_barrier")
            if flmode == 2:
                for l in fl:
                    A(l)
            A("s_waitcnt vmcnt(0)")
            self.stamp("x1dr")
            self.poll("flag", fl, flchk)
        xl = [f"global_load_dwordx4 {v(vY, 4)}, {v(vAUX)}, {sp(sWS)} sc1",
              f"global_load_dwordx4 {v(vY + 4, 4)}, {v(vAUX + 1)}, {sp(sWS)} sc1"]
        for l in xl:
            A(l)
        self.stamp("flag")
        if flmode == 3:
            A("s_barrier")
        vWA = K + 8
        A(f"s_mul_i32 s{sTMP}, s{sXCD}, 448")
        A(f"s_and_b32 s{sTMP}, s{sTMP}, 0xffffff80")
        A(f"s_lshl_b32 s{sTMP + 1}, s{sPOS}, 1")
        A(f"s_lshr_b32 s{sTMP + 2}, s{sWAVE}, 1")
        A(f"s_add_u32 s{sTMP + 1}, s{sTMP + 1}, s{sTMP + 2}")
        A(f"s_mul_i32 s{sTMP + 1}, s{sTMP + 1}, {8 * 3584}")
        A(f"s_add_u32 s{sTMP}, s{sTMP}, s{sTMP + 1}")
        A(f"v_bfe_u32 {v(vWA)}, {v(vLANE)}, 2, 3")
        A(f"v_mul_u32_u24 {v(vWA)}, 3584, {v(vWA)}")
        A(f"v_and_b32 {v(vWA + 1)}, 3, {v(vLANE)}")
        A(f"v_lshl_add_u32 {v(vWA)}, {v(vWA + 1)}, 7, {v(vWA)}")
        A(f"v_add_u32 {v(vWA)}, s{sTMP}, {v(vWA)}")
        A(f"s_bitcmp1_b32 s{sWAVE}, 0")
        A(f"s_cselect_b64 {sp(sWSEL)}, {sp(sWU)}, {sp(sWG)}")
        A(f"s_mul_i32 s{sTMP}, s{sL}, 7168")
        A(f"s_mul_i32 s{sTMP + 1}, s{sWAVE}, 1792")
        A(f"s_add_u32 s{sTMP}, s{sTMP}, s{sTMP + 1}")
        A(f"v_min_u32 {v(vWA + 1)}, 13, {v(vLANE)}")
        A(f"v_lshl_add_u32 {v(vWA + 1)}, {v(vWA + 1)}, 7, s{sTMP}")
        A(f"v_and_b32 {v(vT + 3)}, 0xfe, v0")
        i2 = o.get("i2", 2)
        if i2 == 1:
            A(f"v_lshlrev_b32 {v(vWA + 2)}, 7, {v(vT + 3)}")
            A(f"v_add_u32 {v(vWA + 2)}, {W_FLAG2}, {v(vWA + 2)}")
        if i2 == 2:
            A(f"s_lshl_b32 s{sTMP}, s{sWAVE}, 11")
            A(f"s_add_u32 s{sTMP}, s{sTMP}, s{sOWN}")
            A(f"s_add_u32 s{sTMP}, s{sTMP}, {O_X2}")
            A(f"v_lshl_add_u32 {v(vWA + 5)}, {v(vLANE)}, 4, s{sTMP}")
            A(f"v_add_u32 {v(vWA + 6)}, {O_SLOT - 4096}, {v(vREG)}")
            A(f"s_lshl_b32 s{sTMP}, s{sL}, {KS}")
            A(f"s_add_u32 s{sTMP}, s{sTMP}, {W_KEY}")
            A(f"v_lshl_add_u32 {v(vWA + 7)}, {v(vLANE)}, 4, s{sTMP}")
            A(f"s_lshl_b32 s{sTMP}, s{sL}, 2")
            A(f"s_add_u32 s{sTMP}, s{sTMP}, s{sWAVE}")
            A(f"s_lshl_b32 s{sTMP}, s{sTMP}, 7")
            A(f"s_add_u32 s{sTMP}, s{sTMP}, {W_FLAG2}")
            A(f"v_lshl_add_u32 {v(vWA + 3)}, {v(vLANE)}, 4, s{sTMP}")
            A(f"s_lshr_b32 s{sTMP}, s{sL}, 6")
            A(f"s_lshl_b32 s{sTMP}, s{sTMP}, 7")
            A(f"s_add_u32 s{sTMP}, s{sTMP}, {W_FLAG2}")
            A(f"v_lshl_add_u32 {v(vWA + 2)}, {v(vT + 3)}, 9, s{sTMP}")
            for k in range(4):
                A(f"v_mov_b32 {v(K + 32 + k)}, -1")
        A(f"v_dot2_f32_bf16 {v(K + 4)}, {v(vONE)}, s{sONES}, 0")
        for k in range(1, 4):
            A(f"v_dot2_f32_bf16 {v(K + 4)}, {v(vONE + k)}, s{sONES}, {v(K + 4)}")
        A(f"v_mov_b32 {v(K + 5)}, {L_SUMW}")
        for sh in (8, 4, 2, 1):
            A(f"v_add_f32_dpp {v(K + 4)}, {v(K + 4)}, {v(K + 4)} row_ror:{sh} row_mask:0xf bank_mask:0xf")
        A(f"v_add_f32_dpp {v(K + 4)}, {v(K + 4)}, {v(K + 4)} row_bcast:15 row_mask:0xa bank_mask:0xf")
        A(f"v_add_f32_dpp {v(K + 4)}, {v(K + 4)}, {v(K + 4)} row_bcast:31 row_mask:0xc bank_mask:0xf")
        A("s_mov_b32 exec_lo, 0")
        A("s_brev_b32 exec_hi, 1")
        A(f"ds_write_b32 {v(K + 5)}, {v(K + 4)}")
        A("s_mov_b64 exec, -1")
        A("s_barrier")
        A("s_waitcnt vmcnt(0)")
        chk8 = [f"v_max3_u32 {v(vT + 6)}, {v(vY)}, {v(vY + 1)}, {v(vY + 2)}",
                f"v_max3_u32 {v(vT + 7)}, {v(vY + 3)}, {v(vY + 4)}, {v(vY + 5)}",
                f"v_max3_u32 {v(vT + 6)}, {v(vT + 6)}, {v(vY + 6)}, {v(vY + 7)}",
                f"v_max_u32 {v(vT + 6)}, {v(vT + 6)}, {v(vT + 7)}",
                f"v_cmp_eq_u32 vcc, -1, {v(vT + 6)}"]
        self.poll("x1", xl, chk8)
        self.stamp("x1ld")
        A(f"ds_write2st64_b64 {v(vUW)}, {v(vY, 2)}, {v(vY + 2, 2)} offset0:0 offset1:9")
        A(f"ds_write2st64_b64 {v(vUW)}, {v(vY + 4, 2)}, {v(vY + 6, 2)} offset0:4 offset1:13")
        A("s_waitcnt lgkmcnt(0)")
        A("s_barrier")

        fl2 = [f"global_load_dword {v(vT + 4)}, {v(vWA + 2)}, {sp(sWS)} sc1",
               f"global_load_dword {v(vT + 5)}, {v(vWA + 2)}, {sp(sWS)} offset:{128 if i2 == 1 else 512} sc1"]
        if i2 == 1:
            for l in fl2:
                A(l)
        if i2 == 2:
            ones = v(K + 32, 4)
            A(f"s_cmp_eq_u32 s{sWAVE}, 0")
            A(f"s_cselect_b64 exec, {(1 << ((1 << KS) // 16)) - 1}, 0")
            A(f"global_store_dwordx4 {v(vWA + 7)}, {ones}, {sp(sWS)} sc1")
            A("s_mov_b64 exec, -1")
            A(f"global_store_dwordx4 {v(vWA + 5)}, {ones}, {sp(sWS)} sc1")
            A(f"global_store_dwordx4 {v(vWA + 5)}, {ones}, {sp(sWS)} offset:1024 sc1")
            A(f"global_store_dwordx4 {v(vWA + 6)}, {ones}, {sp(sWS)} sc1")
            A("s_waitcnt vmcnt(0)")
            A("s_mov_b64 exec, 0xff")
            A(f"global_store_dwordx4 {v(vWA + 3)}, {v(K + 28, 4)}, {sp(sWS)} sc1")
            A("s_mov_b64 exec, -1")
            self.stamp("init2")
        A("s_mov_b32 exec_hi, 0")
        A(f"global_load_dword v3, {v(vWA)}, {sp(sWSEL)}")
        A(f"global_load_dword v4, {v(vWA + 1)}, {sp(sWD)}")
        A("s_mov_b32 exec_hi, -1")
        if i2 == 1:
            A("s_waitcnt vmcnt(2)")
            self.poll("flag2", fl2, flchk)
            self.stamp("flag2")
        shp = o.get("shp", 1)
        if shp == 1:
            A("s_barrier")
        if i2 == 2:
            for l in fl2:
                A(l)
        A(f"v_mul_u32_u24 {v(vAUX)}, {RS}, {v(vT + 3)}")
        A(f"v_lshl_add_u32 {v(vAUX)}, {v(vT + 1)}, 4, {v(vAUX)}")
        A(f"s_lshl_b32 s{sTMP}, s{sL}, 5")
        A(f"s_add_u32 s{sTMP}, s{sTMP}, {W_REG + O_X2}")
        A(f"v_add_u32 {v(vAUX)}, s{sTMP}, {v(vAUX)}")
        A(f"v_add_u32 {v(vAUX + 1)}, {RS}, {v(vAUX)}")
        Tt, Xf = K + 40, K + 56
        Df = K + 72
        for k in range(8):
            A(f"v_lshlrev_b32 {v(Tt + 2 * k)}, 16, {v(vU + k)}")
            A(f"v_and_b32 {v(Tt + 2 * k + 1)}, s{sMASK}, {v(vU + k)}")
        A(f"v_lshlrev_b32 {v(Df)}, 16, {v(vD)}")
        A(f"v_and_b32 {v(Df + 1)}, s{sMASK}, {v(vD)}")
        A(f"v_lshlrev_b32 {v(Df + 2)}, 16, {v(vD + 1)}")
        A(f"v_and_b32 {v(Df + 3)}, s{sMASK}, {v(vD + 1)}")
        for k in range(8):
            c = k >> 1
            sel = "op_sel:[1,0] op_sel_hi:[1,1]" if c & 1 else "op_sel_hi:[0,1]"
            A(f"v_pk_mul_f32 {v(Tt + 2 * k, 2)}, {v(Df + (c & 2), 2)}, {v(Tt + 2 * k, 2)} {sel}")
        for k in range(8):
            A(f"v_cvt_pk_bf16_f32 {v(Xf + k)}, {v(Tt + 2 * k)}, {v(Tt + 2 * k + 1)}")
        for k in range(8):
            A(f"v_lshlrev_b32 {v(Tt + 2 * k)}, 16, {v(Xf + k)}")
            A(f"v_and_b32 {v(Tt + 2 * k + 1)}, s{sMASK}, {v(Xf + k)}")
        for r in range(4):
            for c in range(4):
                src = v(vX + 2 * r + (c >> 1))
                if c & 1:
                    A(f"v_and_b32 {v(Xf + 4 * c + r)}, s{sMASK}, {src}")
                else:
                    A(f"v_lshlrev_b32 {v(Xf + 4 * c + r)}, 16, {src}")
        vTW, vTR = vUW, vFL
        A(f"v_mul_u32_u24 {v(vTW)}, {4 * RSTR}, {v(vT + 1)}")
        A(f"v_add3_u32 {v(vTW)}, {v(vTW)}, {v(vT + 2)}, 0")
        A(f"v_add_u32 {v(vTW)}, {L_TILE}, {v(vTW)}")
        A(f"v_lshlrev_b32 {v(vTR)}, 4, {v(vLANE)}")
        A(f"s_lshl_b32 s{sTMP}, s{sL}, 13")
        A(f"s_lshl_b32 s{sTMP + 1}, s{sWAVE}, 11")
        A(f"s_add_u32 s{sTMP}, s{sTMP}, s{sTMP + 1}")
        A(f"v_add_u32 {v(vRD)}, s{sTMP}, {v(vTR)}")
        A(f"s_lshl_b32 s{sTMP}, s{sWAVE}, 10")
        A(f"s_add_u32 s{sTMP}, s{sTMP}, s{sOWN}")
        A(f"s_add_u32 s{sTMP}, s{sTMP}, {O_SLOT}")
        A(f"v_add_u32 {v(vKEY)}, s{sTMP}, {v(vTR)}")
        A(f"s_mul_i32 s{sTMP}, s{sWAVE}, {2 * RSTR}")
        A(f"s_add_u32 s{sTMP}, s{sTMP}, {L_TILE + 2 * TILE}")
        A(f"v_add_u32 {v(vTR + 2)}, s{sTMP}, {v(vTR)}")
        A(f"s_mul_i32 s{sTMP}, s{sWAVE}, {TILE}")
        A(f"s_add_u32 s{sTMP}, s{sTMP}, {L_TILE}")
        A(f"v_add_u32 {v(vTR)}, s{sTMP}, {v(vTR)}")
        self.stamp("shadow")
        if shp == 0:
            A("s_barrier")
        if i2 == 2:
            A("s_waitcnt vmcnt(0)")
            self.poll("flag2", fl2, flchk)
            self.stamp("flag2")
        A("s_barrier")
        self.stamp("b4b")
        for l in xl:
            A(l)
        A("s_waitcnt vmcnt(0)")
        self.poll("x2", xl, chk8)
        self.stamp("x2ld")

        for k in range(8):
            A(f"v_dot2_f32_bf16 {v(Tt + 2 * k)}, {v(vY + k)}, s{sSELLO}, {v(Tt + 2 * k)}")
            A(f"v_dot2_f32_bf16 {v(Tt + 2 * k + 1)}, {v(vY + k)}, s{sSELHI}, {v(Tt + 2 * k + 1)}")
        for k in range(8):
            A(f"v_cvt_pk_bf16_f32 {v(vY + k)}, {v(Tt + 2 * k)}, {v(Tt + 2 * k + 1)}")
        for k in range(8):
            A(f"v_dot2_f32_bf16 {v(Xf + 2 * k)}, {v(vY + k)}, s{sSELLO}, {v(Xf + 2 * k)}")
            A(f"v_dot2_f32_bf16 {v(Xf + 2 * k + 1)}, {v(vY + k)}, s{sSELHI}, {v(Xf + 2 * k + 1)}")
        vH = vX
        for cp in range(2):
            for r in range(4):
                A(f"v_cvt_pk_bf16_f32 {v(vH + 2 * r + cp)}, {v(Xf + 8 * cp + r)}, {v(Xf + 8 * cp + 4 + r)}")
        Rr = [K + 8 + i for i in range(4)]
        for cp in range(2):
            for r in range(4):
                A(f"v_dot2_f32_bf16 {v(V[r])}, {v(vH + 2 * r + cp)}, s{sONES}, {v(V[r]) if cp else 0}")
            for r in range(4):
                A(f"v_dot2_f32_bf16 {v(V[4 + r])}, {v(vH + 2 * r + cp)}, {v(vH + 2 * r + cp)}, {v(V[4 + r]) if cp else 0}")
            for r in range(4):
                A(f"v_dot2_f32_bf16 {v(Rr[r])}, {v(vH + 2 * r + cp)}, {v(vWR + cp)}, {v(Rr[r]) if cp else 0}")
        for i in range(4):
            A(f"v_add_f32_dpp {v(V[i])}, {v(V[i])}, {v(V[i])} row_ror:8 row_mask:0xf bank_mask:0x3")
        for i in range(4):
            A(f"v_add_f32_dpp {v(V[i])}, {v(V[i + 4])}, {v(V[i + 4])} row_ror:8 row_mask:0xf bank_mask:0xc")
        for i in range(2):
            A(f"v_add_f32_dpp {v(Rr[i])}, {v(Rr[i])}, {v(Rr[i])} row_shl:4 row_mask:0xf bank_mask:0x5")
        for i in range(2):
            A(f"v_add_f32_dpp {v(Rr[i])}, {v(Rr[i + 2])}, {v(Rr[i + 2])} row_shr:4 row_mask:0xf bank_mask:0xa")
        for i in range(2):
            A(f"v_add_f32_dpp {v(V[i])}, {v(V[i])}, {v(V[i])} row_shl:4 row_mask:0xf bank_mask:0x5")
        for i in range(2):
            A(f"v_add_f32_dpp {v(V[i])}, {v(V[i + 2])}, {v(V[i + 2])} row_shr:4 row_mask:0xf bank_mask:0xa")
        A(f"v_permlane32_swap_b32 {v(Rr[0])}, {v(Rr[1])}")
        A(f"v_and_b32 {v(K + 13)}, 0xffffff7f, {v(vSW)}")
        A(f"v_permlane32_swap_b32 {v(V[0])}, {v(V[1])}")
        A(f"v_add_f32 {v(Rr[0])}, {v(Rr[0])}, {v(Rr[1])}")
        A(f"v_add_f32 {v(V[0])}, {v(V[0])}, {v(V[1])}")
        A(f"s_mov_b64 vcc, {sp(sODD)}")
        A(f"v_add_f32_dpp {v(Rr[0])}, {v(Rr[0])}, {v(Rr[0])} row_ror:8 row_mask:0xf bank_mask:0xf")
        A(f"v_add_f32_dpp {v(V[0])}, {v(V[0])}, {v(V[0])} quad_perm:[2,3,0,1] row_mask:0xf bank_mask:0xf")
        A(f"v_mov_b32 {v(V[1])}, {v(V[0])}")
        A(f"v_add_f32_dpp {v(Rr[0])}, {v(Rr[0])}, {v(Rr[0])} quad_perm:[2,3,0,1] row_mask:0xf bank_mask:0xf")
        A(f"v_mov_b32 {v(Rr[1])}, {v(Rr[0])}")
        A(f"v_permlane16_swap_b32 {v(V[0])}, {v(V[1])}")
        A(f"v_add_f32 {v(V[0])}, {v(V[0])}, {v(V[1])}")
        A(f"v_permlane16_swap_b32 {v(Rr[0])}, {v(Rr[1])}")
        A(f"v_add_f32 {v(Rr[0])}, {v(Rr[0])}, {v(Rr[1])}")
        A(f"ds_write_b32 {v(vSW)}, {v(V[0])} offset:{L_RED2 - L_RED1}")
        A(f"ds_write_b32 {v(K + 13)}, {v(Rr[0])} offset:{L_RED2 - L_RED1 + 256}")
        A("s_waitcnt lgkmcnt(0)")
        A("s_barrier")
        self.stamp("b5")
        Hf, Dd = Xf, Tt
        A(f"ds_read_b128 {v(K, 4)}, {v(vRA)} offset:{L_RED2 - L_RED1}")
        A(f"ds_read_b128 {v(K + 4, 4)}, {v(vRA)} offset:{L_RED2 - L_RED1 + 128}")
        for r in range(4):
            A(f"ds_write_b64 {v(vTW)}, {v(vH + 2 * r, 2)} offset:{TILE + r * RSTR}")
        for r in range(4):
            for cp in range(2):
                A(f"v_lshlrev_b32 {v(Hf + 4 * r + 2 * cp)}, 16, {v(vH + 2 * r + cp)}")
                A(f"v_and_b32 {v(Hf + 4 * r + 2 * cp + 1)}, s{sMASK}, {v(vH + 2 * r + cp)}")
        A("s_waitcnt lgkmcnt(4)")
        self.row_stats(K, K + 4, K + 12, K + 13, K + 28)
        self.spread(K + 12, vNM, K + 24)
        self.spread(K + 13, vRI, K + 24)
        for k in range(8):
            r = k >> 1
            sel = "op_sel:[1,0] op_sel_hi:[1,1]" if r & 1 else "op_sel_hi:[0,1]"
            A(f"v_pk_add_f32 {v(Dd + 2 * k, 2)}, {v(vNM + (r & 2), 2)}, {v(Hf + 2 * k, 2)} {sel}")
        vX2 = vU
        for k in range(8):
            A(f"v_cvt_pk_bf16_f32 {v(vX2 + k)}, {v(Dd + 2 * k)}, {v(Dd + 2 * k + 1)}")
        for k in range(8):
            A(f"v_lshlrev_b32 {v(Dd + 2 * k)}, 16, {v(vX2 + k)}")
            A(f"v_and_b32 {v(Dd + 2 * k + 1)}, s{sMASK}, {v(vX2 + k)}")
        for k in range(8):
            r = k >> 1
            sel = "op_sel:[1,0] op_sel_hi:[1,1]" if r & 1 else "op_sel_hi:[0,1]"
            A(f"v_pk_mul_f32 {v(Dd + 2 * k, 2)}, {v(vRI + (r & 2), 2)}, {v(Dd + 2 * k, 2)} {sel}")
        for k in range(8):
            A(f"v_cvt_pk_bf16_f32 {v(vX2 + k)}, {v(Dd + 2 * k)}, {v(Dd + 2 * k + 1)}")
        for r in range(4):
            A(f"ds_write_b64 {v(vTW)}, {v(vX2 + 2 * r, 2)} offset:{r * RSTR}")
        for k in range(8):
            A(f"v_dot2_f32_bf16 {v(Hf + 2 * k)}, {v(vX2 + k)}, s{sSELLO}, {v(Hf + 2 * k)}")
            A(f"v_dot2_f32_bf16 {v(Hf + 2 * k + 1)}, {v(vX2 + k)}, s{sSELHI}, {v(Hf + 2 * k + 1)}")
        vO = vY
        A(f"v_mov_b32 {v(vT + 4)}, {L_REDK}")
        for k in range(8):
            A(f"v_cvt_pk_bf16_f32 {v(vO + k)}, {v(Hf + 2 * k)}, {v(Hf + 2 * k + 1)}")
        for r in range(4):
            A(f"ds_write_b64 {v(vTW)}, {v(vO + 2 * r, 2)} offset:{2 * TILE + r * RSTR}")
        A("s_waitcnt lgkmcnt(0)")
        self.stamp("norm")
        A("s_barrier")
        A(f"ds_read_b32 {v(K)}, {v(vT + 4)} offset:4")
        A(f"ds_read_b128 {v(vO, 4)}, {v(vTR + 2)}")
        A(f"ds_read_b128 {v(vO + 4, 4)}, {v(vTR + 2)} offset:{RSTR}")
        A(f"s_lshl_b32 s{sTMP + 1}, s{sWAVE}, 1")
        A("s_waitcnt lgkmcnt(2)")
        A(f"v_readfirstlane_b32 s{sBEST}, {v(K)}")
        A(f"s_andn2_b32 s{sTMP}, 7, s{sBEST}")
        A(f"s_mul_i32 s{sTMP + 2}, s{sTMP}, {RSTR}")
        A(f"s_sub_u32 s{sTMP + 1}, s{sTMP}, s{sTMP + 1}")
        A(f"v_add_u32 {v(vTR)}, s{sTMP + 2}, {v(vTR)}")
        A(f"ds_read_b128 {v(K + 4, 4)}, {v(vTR)}")
        A(f"s_cmp_lt_u32 s{sWAVE}, 2")
        A("s_cselect_b64 exec, -1, 0")
        A("s_waitcnt lgkmcnt(0)")
        A(f"global_store_dwordx4 {v(vKEY)}, {v(K + 4, 4)}, {sp(sWS)} sc1")
        self.stamp("slot")
        osc = " sc1" if o.get("outsc", 1) == 1 else ""
        olate = o.get("olate", 0)
        if not olate:
            for i in range(2):
                A(f"s_cmp_eq_u32 s{sTMP + 1}, {i}")
                A("s_cselect_b64 exec, 0, -1")
                A(f"global_store_dwordx4 {v(vRD)}, {v(vO + 4 * i, 4)}, {sp(sOUT)} offset:{1024 * i}{osc}")
        A("s_mov_b64 exec, -1")
        self.stamp("outst")
        A("s_barrier")
        A(f"ds_read_b32 {v(K)}, {v(vT + 4)}")
        A(f"v_mov_b32 {v(vT + 4)}, s{sG}")
        A(f"v_mov_b32 {v(vT + 5)}, 0")
        A("s_waitcnt lgkmcnt(0)")
        A(f"v_readfirstlane_b32 s{sWIN}, {v(K)}")
        A(f"s_cmp_eq_u32 s{sWIN}, s{sBEST}")
        if olate:
            A(f"s_cselect_b32 s{sTMP + 1}, s{sTMP + 1}, 8")
        else:
            A(f"s_cselect_b32 s{sTMP + 1}, 8, s{sTMP + 1}")
        for i in range(2):
            A(f"s_cmp_eq_u32 s{sTMP + 1}, {i}")
            A("s_cselect_b64 exec, 0, -1" if olate else "s_cselect_b64 exec, -1, 0")
            A(f"global_store_dwordx4 {v(vRD)}, {v(vO + 4 * i, 4)}, {sp(sOUT)} offset:{1024 * i}{osc}")
        A(f"s_or_b32 s{sTMP}, s{sL}, s{sWAVE}")
        A(f"s_cmp_eq_u32 s{sTMP}, 0")
        A("s_cselect_b64 exec, 1, 0")
        A(f"global_store_dword {v(vT + 5)}, {v(vT + 4)}, {sp(sWS)} sc1")
        A(f"s_cmp_lt_u32 s{sPOS}, 14")
        A("s_cbranch_scc0 L_fin")
        A("s_barrier")
        A("L_fin:")
        self.finish("R")

    def chans(self):
        A = self.A
        o = self.o
        vLANE = 1
        vAA, vBA, vEW, vER, vRA = 4, 12, 13, 14, 15
        vKA0, vKA1, vKB, vPW0, vPW1 = 16, 17, 18, 19, 20
        vP = 24
        vT = 28
        vACC = 40
        vA0, vA1, vB0, vB1 = 72, 104, 136, 168
        K = 72
        vWD = 200
        A("L_chan:")
        self.stamp("karg")
        if o.get("i2", 2) == 1:
            A(f"s_load_dword s{sG}, {sp(sWS)}, 0")
        A(f"s_sub_u32 s{sWAVE}, s{sWAVE}, 4")
        A(f"s_mov_b32 s{sMASK}, 0xffff0000")
        A(f"s_mul_i32 s{sOWN}, s{sL}, {RS}")
        A(f"s_add_u32 s{sOWN}, s{sOWN}, {W_REG}")
        vJ, vGq = vT + 4, vT + 5
        A(f"v_and_b32 {v(vJ)}, 15, {v(vLANE)}")
        A(f"v_lshrrev_b32 {v(vGq)}, 4, {v(vLANE)}")
        A(f"s_lshr_b32 s{sT0}, s{sWAVE}, 1")
        A(f"s_and_b32 s{sT1}, s{sWAVE}, 1")
        A(f"v_and_b32 {v(vT)}, 7, {v(vLANE)}")
        A(f"v_lshlrev_b32 {v(vRA)}, 4, {v(vT)}")
        A(f"v_add_u32 {v(vRA)}, {L_RED1}, {v(vRA)}")
        A(f"s_mul_i32 s{sTMP}, s{sT0}, {PC}")
        A(f"s_lshl_b32 s{sTMP + 1}, s{sT1}, 7")
        A(f"s_add_u32 s{sTMP}, s{sTMP}, s{sTMP + 1}")
        A(f"s_add_u32 s{sTMP}, s{sTMP}, {L_P + 4 * 26}")
        A(f"v_lshlrev_b32 {v(vT)}, 3, {v(vGq)}")
        A(f"v_sub_u32 {v(vT)}, {v(vJ)}, {v(vT)}")
        A(f"v_lshl_add_u32 {v(vAA)}, {v(vT)}, 2, s{sTMP}")
        for m in range(1, 8):
            A(f"v_add_u32 {v(vAA + m)}, {1024 * m}, {v(vAA)}")
        A(f"s_mul_i32 s{sTMP}, s{sT0}, {UC}")
        A(f"s_lshl_b32 s{sTMP + 1}, s{sT1}, 6")
        A(f"s_sub_u32 s{sTMP}, s{sTMP}, s{sTMP + 1}")
        A(f"s_add_u32 s{sTMP}, s{sTMP}, {L_U + 64}")
        A(f"v_lshl_add_u32 {v(vT)}, {v(vJ)}, 1, {v(vGq)}")
        A(f"v_lshl_add_u32 {v(vBA)}, {v(vT)}, 4, s{sTMP}")
        A(f"v_lshl_add_u32 {v(vT)}, {v(vJ)}, 2, {v(vGq)}")
        A(f"v_lshrrev_b32 {v(vT + 1)}, 3, {v(vT)}")
        A(f"v_add_u32 {v(vT)}, {v(vT)}, {v(vT + 1)}")
        A(f"s_mul_i32 s{sTMP}, s{sWAVE}, {8 * TBS}")
        A(f"v_lshl_add_u32 {v(vEW)}, {v(vT)}, 4, s{sTMP}")
        A(f"v_lshrrev_b32 {v(vT + 1)}, 3, {v(vLANE)}")
        A(f"v_add_u32 {v(vT)}, {v(vLANE)}, {v(vT + 1)}")
        A(f"s_mul_i32 s{sTMP}, s{sWAVE}, {2 * TBS}")
        A(f"v_lshl_add_u32 {v(vER)}, {v(vT)}, 4, s{sTMP}")
        KS = o.get("ks", 5)
        for k in range(4):
            A(f"v_mov_b32 {v(vACC + k)}, -1")
        A(f"s_add_u32 s{sTMP}, s{sOWN}, 4096")
        A(f"v_lshl_add_u32 {v(vACC + 4)}, v0, 4, s{sTMP}")
        A(f"s_lshl_b32 s{sTMP}, s{sL}, {KS}")
        A(f"s_add_u32 s{sTMP}, s{sTMP}, {W_KEY}")
        A(f"v_lshl_add_u32 {v(22)}, {v(vLANE)}, 4, s{sTMP}")
        ones = v(vACC, 4)
        i2 = o.get("i2", 2)
        if not i2:
            A(f"s_cmp_eq_u32 s{sWAVE}, 0")
            A(f"s_cselect_b64 exec, {(1 << ((1 << KS) // 16)) - 1}, 0")
            A(f"global_store_dwordx4 {v(22)}, {ones}, {sp(sWS)} sc1")
            A("s_mov_b64 exec, -1")
        A(f"global_store_dwordx4 {v(vACC + 4)}, {ones}, {sp(sWS)} offset:-4096 sc1")
        A(f"global_store_dwordx4 {v(vACC + 4)}, {ones}, {sp(sWS)} sc1")
        late = []
        if i2 == 1:
            A(f"v_add_u32 {v(vACC + 5)}, 8192, {v(vACC + 4)}")
            A(f"v_add_u32 {v(vACC + 6)}, 12288, {v(vACC + 4)}")
            A(f"s_lshl_b32 s{sTMP}, s{sL}, 7")
            A(f"s_add_u32 s{sTMP}, s{sTMP}, {W_FLAG2}")
            A(f"v_lshl_add_u32 {v(23)}, {v(vLANE)}, 4, s{sTMP}")
            late = [[f"global_store_dwordx4 {v(vACC + 5)}, {ones}, {sp(sWS)} offset:-4096 sc1"],
                    [f"global_store_dwordx4 {v(vACC + 5)}, {ones}, {sp(sWS)} sc1"],
                    [f"global_store_dwordx4 {v(vACC + 6)}, {ones}, {sp(sWS)} sc1",
                     f"s_cmp_eq_u32 s{sWAVE}, 0",
                     f"s_cselect_b64 exec, {(1 << ((1 << KS) // 16)) - 1}, 0",
                     f"global_store_dwordx4 {v(22)}, {ones}, {sp(sWS)} sc1",
                     "s_mov_b64 exec, -1"]]
        if not i2:
            A(f"v_add_u32 {v(vACC + 5)}, 8192, {v(vACC + 4)}")
            A(f"v_add_u32 {v(vACC + 6)}, 12288, {v(vACC + 4)}")
            A(f"global_store_dwordx4 {v(vACC + 5)}, {ones}, {sp(sWS)} offset:-4096 sc1")
            A(f"global_store_dwordx4 {v(vACC + 5)}, {ones}, {sp(sWS)} sc1")
            A(f"global_store_dwordx4 {v(vACC + 6)}, {ones}, {sp(sWS)} sc1")
        vg, vr = vT, vT + 1
        A(f"v_lshrrev_b32 {v(vg)}, 2, {v(vJ)}")
        A(f"v_and_b32 {v(vr)}, 3, {v(vJ)}")
        A(f"s_cmp_eq_u32 s{sT1}, 0")
        A("s_cbranch_scc0 L_rows_hi")
        A(f"v_mov_b32 {v(vKA0)}, {v(vJ)}")
        A(f"v_lshl_add_u32 {v(vKA1)}, {v(vg)}, 1, {v(vr)}")
        A(f"v_add_u32 {v(vKA1)}, 16, {v(vKA1)}")
        A(f"v_add_u32 {v(vT + 2)}, -4, {v(vJ)}")
        A(f"v_and_b32 {v(vT + 2)}, 15, {v(vT + 2)}")
        A(f"v_cmp_eq_u32 vcc, 3, {v(vr)}")
        A(f"v_cndmask_b32 {v(vKA1)}, {v(vKA1)}, {v(vT + 2)}, vcc")
        A(f"v_lshl_add_u32 {v(vPW0)}, {v(vJ)}, 2, {v(vGq)}")
        A(f"v_lshlrev_b32 {v(vPW0)}, 4, {v(vPW0)}")
        A(f"v_add_u32 {v(vPW1)}, 1024, {v(vPW0)}")
        A("s_branch L_rows_done")
        A("L_rows_hi:")
        A(f"v_lshrrev_b32 {v(vT + 2)}, 1, {v(vg)}")
        A(f"v_lshl_add_u32 {v(vKA0)}, {v(vg)}, 1, {v(vr)}")
        A(f"v_add3_u32 {v(vKA0)}, {v(vKA0)}, {v(vT + 2)}, 25")
        A(f"v_sub_u32 {v(vKA1)}, {v(vJ)}, {v(vg)}")
        A(f"v_add_u32 {v(vKA1)}, 35, {v(vKA1)}")
        A(f"v_lshrrev_b32 {v(vT + 2)}, 1, {v(vGq)}")
        A(f"v_lshl_add_u32 {v(vPW0)}, {v(vT + 2)}, 4, {v(vJ)}")
        A(f"v_and_b32 {v(vT + 2)}, 1, {v(vGq)}")
        A(f"v_lshl_add_u32 {v(vPW0)}, {v(vPW0)}, 1, {v(vT + 2)}")
        A(f"v_lshlrev_b32 {v(vPW0)}, 5, {v(vPW0)}")
        A(f"v_add_u32 {v(vPW0)}, 2048, {v(vPW0)}")
        A(f"v_lshlrev_b32 {v(vPW1)}, 6, {v(vLANE)}")
        A(f"v_add_u32 {v(vPW1)}, 4096, {v(vPW1)}")
        A("L_rows_done:")
        A(f"s_mul_i32 s{sTMP}, s{sT0}, {PC}")
        A(f"s_add_u32 s{sTMP}, s{sTMP}, {L_P + 64}")
        A(f"v_add_u32 {v(vPW0)}, s{sTMP}, {v(vPW0)}")
        A(f"v_add_u32 {v(vPW1)}, s{sTMP}, {v(vPW1)}")
        A(f"s_mul_i32 s{sTMP}, s{sT0}, {TABC}")
        A(f"v_lshl_add_u32 {v(vT + 2)}, {v(vGq)}, 4, s{sTMP}")
        A(f"s_movk_i32 s{sTMP + 1}, {ROWB}")
        A(f"v_mad_u32_u24 {v(vKA0)}, {v(vKA0)}, s{sTMP + 1}, {v(vT + 2)}")
        A(f"v_mad_u32_u24 {v(vKA1)}, {v(vKA1)}, s{sTMP + 1}, {v(vT + 2)}")
        A(f"v_mad_u32_u24 {v(vKB)}, {v(vJ)}, s{sTMP + 1}, {v(vT + 2)}")
        A(f"s_lshl_b32 s{sTMP + 1}, s{sT1}, 8")
        A(f"s_add_u32 m0, s{sTMP}, s{sTMP + 1}")
        A(f"s_mul_i32 s{sF}, s{sXCD}, 14")
        A(f"s_add_u32 s{sF}, s{sF}, s{sPOS}")
        A(f"s_lshl_b32 s{sTMP + 1}, s{sF}, 14")
        A(f"s_add_u32 s{sTMP + 1}, s{sTMP + 1}, 4096")
        A(f"v_lshl_add_u32 v2, v0, 2, s{sTMP + 1}")
        A(f"v_add_u32 v21, 8192, v2")

        L2E = 1.4426950408889634
        l2e_hi = struct.unpack("<f", struct.pack("<f", L2E))[0]
        l2e_lo = L2E - l2e_hi
        a, b = K, K + 2
        A(f"s_mov_b32 s{sE}, {hex(f2u(l2e_hi))}")
        A(f"s_mov_b32 s{sE + 1}, {hex(f2u(l2e_lo))}")
        A(f"s_waitcnt vmcnt({2 if i2 else 5}) lgkmcnt(0)")
        self.stamp("par")
        A(f"s_lshl_b32 s{sTMP}, s{sDT}, 16")
        A(f"s_and_b32 s{sTMP + 1}, s{sDT}, s{sMASK}")
        A(f"s_cmp_lt_u32 s{sWAVE}, 2")
        A(f"s_cselect_b32 s{sDT}, s{sTMP}, s{sTMP + 1}")
        A(f"v_lshlrev_b32 {v(a)}, 16, {v(vP)}")
        A(f"v_mov_b32 {v(a + 1)}, s{sDT}")
        A(f"v_pk_mul_f32 {v(b, 2)}, {v(a, 2)}, {sp(sE)} op_sel_hi:[1,0]")
        A(f"v_pk_fma_f32 {v(b + 2, 2)}, {v(a, 2)}, {sp(sE)}, {v(b, 2)} op_sel_hi:[1,0,1] neg_lo:[0,0,1] neg_hi:[0,0,1]")
        A(f"v_exp_f32 {v(b)}, {v(b)}")
        A(f"v_exp_f32 {v(b + 1)}, {v(b + 1)}")
        A(f"v_pk_fma_f32 {v(b + 2, 2)}, {sp(sE)}, {v(a, 2)}, {v(b + 2, 2)} op_sel:[1,0,0] op_sel_hi:[1,1,1]")
        A(f"v_mul_f32 {v(b + 2)}, {hex(f2u(0.6931471805599453))}, {v(b + 2)}")
        A(f"v_mul_f32 {v(b + 3)}, {hex(f2u(0.6931471805599453))}, {v(b + 3)}")
        A(f"v_pk_fma_f32 {v(b, 2)}, {v(b, 2)}, {v(b + 2, 2)}, {v(b, 2)}")
        A(f"v_cvt_pk_bf16_f32 {v(a)}, {v(b)}, {v(b + 1)}")
        vdt, va2, vph = K + 6, K + 7, K + 8
        A(f"v_and_b32 {v(vdt)}, s{sMASK}, {v(a)}")
        A(f"v_lshlrev_b32 {v(va2)}, 16, {v(a)}")
        A(f"v_lshlrev_b32 {v(vph)}, 16, {v(vP + 1)}")
        A(f"v_mul_f32 {v(va2)}, {v(va2)}, {v(vdt)}")
        A(f"v_mul_f32 {v(vph)}, {v(vph)}, {v(vdt)}")
        A(f"v_mul_f32 {v(va2)}, {hex(f2u(-l2e_hi))}, {v(va2)}")
        A(f"v_mul_f32 {v(vph)}, 0.15915494, {v(vph)}")
        Wp = {p: K + 10 + 2 * p for p in range(1, 17)}
        Zp = {p: K + 42 + 2 * p for p in range(1, 8)}
        G = [K + 58, K + 60]
        TT = [K + 62, K + 64, K + 66, K + 68]
        RR = [K + 70, K + 72, K + 74, K + 76]
        CV = K + 80
        A(f"v_add_f32 {v(vdt)}, {v(vdt)}, {v(vdt)}")
        A(f"v_lshlrev_b32 {v(G[0])}, 16, {v(vP + 2)}")
        A(f"v_lshlrev_b32 {v(G[0] + 1)}, 16, {v(vP + 3)}")
        A(f"v_mul_f32 {v(G[0])}, {v(G[0])}, {v(vdt)}")
        A(f"v_mul_f32 {v(G[0] + 1)}, {v(G[0] + 1)}, {v(vdt)}")
        for n, (dst, sc) in enumerate(((Wp[1], 1.0), (Wp[16], 16.0), (Zp[1], 256.0))):
            t = TT[n]
            if sc == 1.0:
                A(f"v_exp_f32 {v(t)}, {v(va2)}")
                A(f"v_fract_f32 {v(t + 1)}, {v(vph)}")
            else:
                A(f"v_mul_f32 {v(t)}, {hex(f2u(sc))}, {v(va2)}")
                A(f"v_mul_f32 {v(t + 1)}, {hex(f2u(sc))}, {v(vph)}")
                A(f"v_exp_f32 {v(t)}, {v(t)}")
                A(f"v_fract_f32 {v(t + 1)}, {v(t + 1)}")
            A(f"v_cos_f32 {v(dst)}, {v(t + 1)}")
            A(f"v_sin_f32 {v(dst + 1)}, {v(t + 1)}")
        for n, dst in enumerate((Wp[1], Wp[16], Zp[1])):
            A(f"v_pk_mul_f32 {v(dst, 2)}, {v(dst, 2)}, {v(TT[n], 2)} op_sel_hi:[1,0]")
        jobs = [(1, Wp[1], None, None, 0), (16, Zp[1], None, None, 0), (47, G[0], None, None, 1)]
        wj = []
        for p in range(2, 16):
            hb = 1 << (p.bit_length() - 1)
            x, y = (p // 2, p // 2) if hb == p else (hb, p - hb)
            wj.append((p, Wp[p], Wp[x], Wp[y], 0))
        gj = [(47 + j, G[j & 1], G[(j - 1) & 1], Wp[16], 1) for j in range(1, 16)]
        zrow = {2: 25, 3: 30, 4: 35, 5: 38, 6: 41, 7: 44}
        zj = []
        for p in range(2, 8):
            hb = 1 << (p.bit_length() - 1)
            x, y = (p // 2, p // 2) if hb == p else (hb, p - hb)
            zj.append((zrow[p], Zp[p], Zp[x], Zp[y], 0))
        tj = [(16 + k, None, Zp[1], Wp[2 * k], 0) for k in range(1, 9)]
        for z in (2, 3):
            tj += [(zrow[z] + k, None, Zp[z], Wp[4 * k], 0) for k in range(1, 5)]
        for z in (4, 5, 6, 7):
            tj += [(zrow[z] + k, None, Zp[z], Wp[8 * k], 0) for k in range(1, 3)]
        first = []
        for i in range(max(len(wj), len(gj), len(zj))):
            for q in (wj, gj, zj):
                if i < len(q):
                    first.append(q[i])
        jobs += first + tj
        A(f"v_mov_b32 {v(CV + 15)}, 0x3f80")
        pend = [(0, CV + 15)]
        slot = 0
        nb = 0
        b1_at = o.get("b1_at", 0)
        batch = o.get("batch", 6)

        def do_b1():
            self.stamp("setup")
            A("s_waitcnt vmcnt(0)")
            A("s_barrier")
            self.stamp("b1")
        if b1_at == 0:
            do_b1()
        for n, (row, dst, x, y, conj) in enumerate(jobs):
            if x is not None:
                if dst is None:
                    dst = RR[n & 3]
                for ins in self.cmul(dst, x, y, TT[n & 3]):
                    A(ins)
            A(f"v_cvt_pk_bf16_f32 {v(CV + slot)}, {v(dst)}, {'-' if conj else ''}{v(dst + 1)}")
            pend.append((row, CV + slot))
            slot = (slot + 1) % 15
            if len(pend) >= batch or n == len(jobs) - 1:
                for row_, reg in pend:
                    A(f"ds_write_addtid_b32 {v(reg)} offset:{row_ * ROWB}")
                pend = []
                nb += 1
                if nb == b1_at:
                    do_b1()
                if late and nb >= o.get("i2at", 0) + 1:
                    for l in late.pop(0):
                        A(l)
        if i2 == 1:
            A(f"s_add_u32 s{sG}, s{sG}, 0x9e3779b9")
            for k in range(4):
                A(f"v_mov_b32 {v(vACC + 8 + k)}, s{sG}")
        A("s_waitcnt lgkmcnt(0)")
        self.stamp("kgen1")
        A("s_barrier")
        fB, fA0, fA1 = K, K + 32, K + 64
        for s in range(4):
            A(f"ds_read_b128 {v(fB + 4 * s, 4)}, {v(vKB)} offset:{47 * ROWB + 64 * s}")
            A(f"ds_read_b128 {v(fA0 + 4 * s, 4)}, {v(vKA0)} offset:{64 * s}")
            A(f"ds_read_b128 {v(fA1 + 4 * s, 4)}, {v(vKA1)} offset:{64 * s}")
        D0, D1 = vACC + 16, vACC + 20
        for s in range(8):
            s2 = s + 4
            A(f"s_waitcnt lgkmcnt({9 if s2 < 8 else 3 * (7 - s)})")
            c0 = "0" if s == 0 else v(D0, 4)
            c1 = "0" if s == 0 else v(D1, 4)
            A(f"v_mfma_f32_16x16x32_bf16 {v(D0, 4)}, {v(fA0 + 4 * s, 4)}, {v(fB + 4 * s, 4)}, {c0}")
            if s2 < 8:
                A(f"ds_read_b128 {v(fB + 4 * s2, 4)}, {v(vKB)} offset:{47 * ROWB + 64 * s2}")
                A(f"ds_read_b128 {v(fA0 + 4 * s2, 4)}, {v(vKA0)} offset:{64 * s2}")
            A(f"v_mfma_f32_16x16x32_bf16 {v(D1, 4)}, {v(fA1 + 4 * s, 4)}, {v(fB + 4 * s, 4)}, {c1}")
            if s2 < 8:
                A(f"ds_read_b128 {v(fA1 + 4 * s2, 4)}, {v(vKA1)} offset:{64 * s2}")
        E = K + 96
        A(f"s_bitcmp1_b32 s{sWAVE}, 0")
        A(f"v_cmp_eq_u32 vcc, 0, {v(vLANE)}")
        A("s_nop 5")
        A("s_cbranch_scc0 L_exp_lo")
        seq2 = ["aa", "aa", "aa", "ba", "bb", "bb", "cb", "cc"]
        seq3 = ["aa", "aa", "aa", "aa", "aa", "ba", "bb", "bb", "bb", "bb", "cb", "cc", "cc", "cc"]
        ix = {"a": 0, "b": 1, "c": 2}
        for k, s in enumerate(seq3):
            A(f"v_cvt_pk_bf16_f32 {v(E + 8 + k)}, {v(D1 + ix[s[0]])}, {v(D1 + ix[s[1]])}")
        for k, w in enumerate((0, 4, 6, 10)):
            A(f"ds_write_b128 {v(vPW1)}, {v(E + 8 + w, 4)} offset:{16 * k}")
        for k, s in enumerate(seq2):
            A(f"v_cvt_pk_bf16_f32 {v(E + k)}, {v(D0 + ix[s[0]])}, {v(D0 + ix[s[1]])}")
        A(f"ds_write_b128 {v(vPW0)}, {v(E, 4)}")
        A(f"ds_write_b128 {v(vPW0)}, {v(E + 4, 4)} offset:16")
        A("L_exp_done:")
        T = self.tail
        T("L_exp_lo:")
        T(f"v_mov_b32_dpp {v(D1 + 3)}, {v(D1 + 3)} row_ror:1 row_mask:0x1 bank_mask:0xf")
        T(f"v_cvt_pk_bf16_f32 {v(E + 1)}, {v(D0 + 1)}, {v(D0)}")
        T(f"v_cvt_pk_bf16_f32 {v(E + 2)}, {v(D0 + 2)}, {v(D0 + 1)}")
        T(f"v_cvt_pk_bf16_f32 {v(E + 3)}, {v(D0 + 3)}, {v(D0 + 2)}")
        T(f"v_cndmask_b32 {v(E + 8)}, {v(D1 + 3)}, 0, vcc")
        T(f"v_cndmask_b32 {v(E + 9)}, {v(D1)}, {v(D1 + 3)}, vcc")
        T(f"v_cvt_pk_bf16_f32 {v(E)}, {v(D0)}, {v(E + 8)}")
        T(f"v_cvt_pk_bf16_f32 {v(E + 4)}, {v(D1)}, {v(E + 9)}")
        T(f"v_cvt_pk_bf16_f32 {v(E + 5)}, {v(D1)}, {v(D1)}")
        T(f"v_cvt_pk_bf16_f32 {v(E + 6)}, {v(D1 + 1)}, {v(D1)}")
        T(f"v_cvt_pk_bf16_f32 {v(E + 7)}, {v(D1 + 2)}, {v(D1 + 1)}")
        T(f"ds_write_b128 {v(vPW0)}, {v(E, 4)}")
        T(f"ds_write_b128 {v(vPW1)}, {v(E + 4, 4)}")
        T("s_branch L_exp_done")
        A("s_waitcnt lgkmcnt(0)")
        if i2 == 1:
            A("s_waitcnt vmcnt(0)")
        self.stamp("kgen2")
        A("s_barrier")
        if i2 == 1:
            A(f"s_cmp_eq_u32 s{sWAVE}, 0")
            A("s_cselect_b64 exec, 0xff, 0")
            A(f"global_store_dwordx4 {v(23)}, {v(vACC + 8, 4)}, {sp(sWS)} sc1")
            A("s_mov_b64 exec, -1")

        def rdA(buf, rho, m):
            return [f"ds_read2_b32 {v(buf + 4 * m, 2)}, {v(vAA + m)} offset0:{64 * rho + 6} offset1:{64 * rho + 4}",
                    f"ds_read2_b32 {v(buf + 4 * m + 2, 2)}, {v(vAA + m)} offset0:{64 * rho + 2} offset1:{64 * rho}"]

        def rdB(buf, rho, n):
            return [f"ds_read_b128 {v(buf + 4 * n, 4)}, {v(vBA)} offset:{128 * (3 - rho) + 512 * (7 - n)}"]

        for m in range(8):
            for l in rdA(vA0, 0, m):
                A(l)
        A(f"s_lshl_b32 s{sTMP}, s{sWAVE}, 11")
        A(f"s_add_u32 s{sTMP}, s{sTMP}, s{sOWN}")
        A(f"s_add_u32 s{sTMP}, s{sTMP}, {O_X2}")
        A(f"v_lshl_add_u32 {v(vT)}, {v(vLANE)}, 4, s{sTMP}")
        A(f"v_mov_b32 {v(vT + 3)}, {L_REDK}")
        vF = 216
        A(f"s_bitcmp1_b32 s{sWAVE}, 0")
        A(f"s_cselect_b64 {sp(sWSEL)}, {sp(sWU)}, {sp(sWG)}")
        A(f"s_lshr_b32 s{sTMP + 1}, s{sWAVE}, 1")
        A(f"s_mul_i32 s{sTMP + 1}, s{sTMP + 1}, {256 * 3584}")
        A(f"s_lshl_b32 s{sTMP + 2}, s{sF}, 5")
        A(f"s_add_u32 s{sTMP + 1}, s{sTMP + 1}, s{sTMP + 2}")
        A(f"v_lshrrev_b32 {v(vF + 3)}, 1, {v(vLANE)}")
        A(f"v_and_b32 {v(vF + 4)}, 1, {v(vLANE)}")
        A(f"v_mul_u32_u24 {v(vF)}, {8 * 3584}, {v(vF + 3)}")
        A(f"v_lshl_add_u32 {v(vF)}, {v(vF + 4)}, 4, {v(vF)}")
        A(f"v_add_u32 {v(vF)}, s{sTMP + 1}, {v(vF)}")
        A(f"v_add_u32 {v(vF + 2)}, {7 * 3584}, {v(vF)}")
        A(f"v_add_u32 {v(vF + 1)}, {4 * 3584}, {v(vF)}")
        A(f"v_add_u32 {v(vF)}, 3584, {v(vF)}")
        A("s_waitcnt lgkmcnt(0)")
        self.stamp("apre")
        A("s_barrier")
        self.stamp("b3")
        if o.get("prio", 1):
            A("s_setprio 2")

        bufA, bufB = [vA0, vA1], [vB0, vB1]
        for n in range(7, -1, -1):
            for l in rdB(vB0, 0, n):
                A(l)
        started = set()
        for rho in range(4):
            a_, b_ = bufA[rho & 1], bufB[rho & 1]
            order = [(n - 7 + tb, tb, n) for n in range(7, -1, -1) for tb in range(7 - n, 8)]
            if rho == 3:
                order = [(n - 7 + tb, tb, n) for tb in range(8) for n in range(7 - tb, 8)]
            fill = []
            if rho + 1 < 4:
                nb_, na_ = bufB[(rho + 1) & 1], bufA[(rho + 1) & 1]
                for m in range(8):
                    fill += rdB(nb_, rho + 1, 7 - m)
                    fill += rdA(na_, rho + 1, m)
            issued = 0
            seen = set()
            done_at = {}
            for i, (m, tb, n) in enumerate(order):
                done_at[tb] = i
            for i, (m, tb, n) in enumerate(order):
                if rho == 0 and n not in seen:
                    A(f"s_waitcnt lgkmcnt({min(15, n + issued)})")
                    seen.add(n)
                elif i == 0:
                    A("s_waitcnt lgkmcnt(0)")
                acc = v(vACC + 4 * tb, 4)
                c = acc if tb in started else "0"
                started.add(tb)
                A(f"v_mfma_f32_16x16x32_bf16 {acc}, {v(a_ + 4 * m, 4)}, {v(b_ + 4 * n, 4)}, {c}")
                if i >= 1 and fill:
                    A(fill.pop(0))
                    issued += 1
                if rho == 3:
                    for t in range(7):
                        if done_at[t] + 8 == i or (i == len(order) - 1 and done_at[t] + 8 > i):
                            A(f"ds_write_b128 {v(vEW)}, {v(vACC + 4 * t, 4)} offset:{t * TBS}")
            assert not fill
            if o.get("cyc") and rho < 3:
                self.stamp(f"cls{rho}")
        A(f"ds_write_b128 {v(vEW)}, {v(vACC + 28, 4)} offset:{7 * TBS}")
        self.stamp("conv")
        A("s_waitcnt lgkmcnt(0)")
        A("s_barrier")
        for i in range(2):
            for s in range(4):
                A(f"ds_read_b128 {v(K + 16 * i + 4 * s, 4)}, {v(vER)} offset:{s * 8 * TBS + i * TBS}")
        for i in range(2):
            A(f"s_waitcnt lgkmcnt({4 * (1 - i)})")
            b0 = K + 16 * i
            for c in range(2):
                for h in range(2):
                    A(f"v_pk_add_f32 {v(b0 + 8 * c + 2 * h, 2)}, {v(b0 + 8 * c + 2 * h, 2)}, {v(b0 + 8 * c + 4 + 2 * h, 2)}")
            for c in range(2):
                for h in range(2):
                    A(f"v_cvt_pk_bf16_f32 {v(K + 32 + 4 * i + 2 * c + h)}, {v(b0 + 8 * c + 2 * h)}, {v(b0 + 8 * c + 2 * h + 1)}")
            A(f"global_store_dwordx4 {v(vT)}, {v(K + 32 + 4 * i, 4)}, {sp(sWS)} offset:{1024 * i} sc1")
        self.stamp("x2st")
        L2E = 1.4426950408889634
        vWG, WGp, WDp, vY = 120, 152, 184, 112
        n1 = o.get("st1", 4)
        wl = [f"global_load_dwordx4 {v(vWG + 4 * k, 4)}, {v(vF + k // 3)}, {sp(sWSEL)} offset:{(k % 3 - 1) * 3584}" for k in range(8)]
        wdl = [f"global_load_dword {v(vWD + k)}, {'v21' if k >> 3 else 'v2'}, {sp(sWD)} offset:{((k & 7) - 4) * 1024}" for k in range(16)]
        A(f"s_add_u32 s{sTMP}, s{sOWN}, {O_PART}")
        A(f"v_lshl_add_u32 {v(vF + 6)}, v0, 3, s{sTMP}")
        A(f"s_cmp_lt_u32 s{sPOS}, 14")
        A("s_cbranch_scc0 L_nst1")
        for l in wl[:n1]:
            A(l)
        A(f"s_waitcnt vmcnt({n1})")
        A("s_barrier")
        T("L_nst1:")
        T("s_waitcnt vmcnt(0)")
        T("s_barrier")
        T("s_branch L_now")
        self.stamp("x2dr")
        A(f"s_mov_b32 s{sRP0}, 0x05040100")
        A(f"s_mov_b32 s{sRP1}, 0x07060302")
        A(f"s_lshr_b32 s{sTMP}, s{sWAVE}, 1")
        A(f"s_lshl_b32 s{sTMP}, s{sTMP}, 9")
        A(f"s_add_u32 s{sTMP}, s{sTMP}, {W_REG + O_SLOT}")
        A(f"v_lshl_add_u32 {v(vF + 3)}, {v(vF + 3)}, 4, s{sTMP}")
        A(f"v_lshlrev_b32 {v(vF + 4)}, 6, {v(vF + 4)}")
        A(f"v_and_b32 {v(vF + 5)}, 12, {v(vLANE)}")
        A(f"v_lshl_add_u32 {v(vF + 4)}, {v(vF + 5)}, 2, {v(vF + 4)}")
        A(f"v_lshrrev_b32 {v(vF + 5)}, 5, {v(vLANE)}")
        A(f"v_lshl_add_u32 {v(vF + 4)}, {v(vF + 5)}, 3, {v(vF + 4)}")
        A(f"s_and_b32 s{sTMP}, s{sWAVE}, 1")
        A(f"s_lshl_b32 s{sTMP}, s{sTMP}, 7")
        A(f"s_lshr_b32 s{sTMP + 1}, s{sWAVE}, 1")
        A(f"s_lshl_b32 s{sTMP + 1}, s{sTMP + 1}, 2")
        A(f"s_add_u32 s{sTMP}, s{sTMP}, s{sTMP + 1}")
        A(f"s_add_u32 s{sTMP}, s{sTMP}, {L_REDF}")
        A(f"v_add_u32 {v(vF + 4)}, s{sTMP}, {v(vF + 4)}")
        A(f"v_and_b32 {v(vF + 5)}, 15, {v(vLANE)}")
        A(f"v_lshlrev_b32 {v(vF + 5)}, 3, {v(vF + 5)}")
        A(f"v_add_u32 {v(vF + 5)}, {L_REDF}, {v(vF + 5)}")
        for l in wl[n1:] + (wdl if o.get("wdp", 1) == 0 else []):
            A(l)
        self.stamp("wq")
        A("L_now:")
        perms = []
        for kp in range(8):
            lo, hi = vWD + 2 * kp, vWD + 2 * kp + 1
            perms.append(f"v_perm_b32 {v(WDp + 2 * kp)}, {v(hi)}, {v(lo)}, s{sRP0}")
            perms.append(f"v_perm_b32 {v(WDp + 2 * kp + 1)}, {v(hi)}, {v(lo)}, s{sRP1}")
        for kp in range(4):
            for d in range(4):
                lo, hi = vWG + 8 * kp + d, vWG + 8 * kp + 4 + d
                perms.append(f"v_perm_b32 {v(WGp + 8 * kp + 2 * d)}, {v(hi)}, {v(lo)}, s{sRP0}")
                perms.append(f"v_perm_b32 {v(WGp + 8 * kp + 2 * d + 1)}, {v(hi)}, {v(lo)}, s{sRP1}")
        wdp = o.get("wdp", 1)
        perms1 = perms if wdp == 0 else perms[16:]
        A(f"v_lshlrev_b32 {v(vT + 1)}, {KS}, {v(vLANE)}")
        A(f"v_add_u32 {v(vT + 1)}, {W_KEY}, {v(vT + 1)}")
        for q in range(1, 4):
            A(f"v_add_u32 {v(vT + 8 + q)}, {(64 * q) << KS}, {v(vT + 1)}")
        A(f"s_cmp_eq_u32 s{sWAVE}, 0")
        A("s_barrier")
        A("s_cbranch_scc0 L_nokey")
        self.key_calc(K, vRA, vLANE)
        A("s_mov_b64 exec, 1")
        A(f"global_store_dword {v(22)}, {v(K + 8)}, {sp(sWS)} sc1")
        A(f"ds_write_b32 {v(vT + 3)}, {v(K + 8)} offset:4")
        A("s_mov_b64 exec, -1")
        self.stamp("key")
        A("s_waitcnt lgkmcnt(0)")
        A("s_barrier")
        A("s_waitcnt vmcnt(1)")
        for l in perms1:
            A(l)
        A("s_branch L_keyed")
        A("L_nokey:")
        A("s_waitcnt vmcnt(0)")
        self.stamp("wld")
        for l in perms1:
            A(l)
        A(f"s_cmp_eq_u32 s{sWAVE}, 1")
        A("s_barrier")
        A("s_cbranch_scc0 L_keyed")
        self.stamp("b5c")
        k2 = vT + 4
        kl = [f"global_load_dword {v(K + q)}, {v(vT + 8 + q) if q else v(vT + 1)}, {sp(sWS)} sc1" for q in range(4)]
        for l in kl:
            A(l)
        A("s_waitcnt vmcnt(0)")
        self.poll("key", kl, [f"v_max3_u32 {v(k2)}, {v(K)}, {v(K + 1)}, {v(K + 2)}",
                              f"v_max_u32 {v(k2)}, {v(k2)}, {v(K + 3)}",
                              f"v_cmp_eq_u32 vcc, -1, {v(k2)}"])
        self.stamp("keyld")
        A(f"v_max_u32_dpp {v(k2)}, {v(k2)}, {v(k2)} quad_perm:[1,0,3,2] row_mask:0xf bank_mask:0xf")
        A(f"v_max_u32_dpp {v(k2)}, {v(k2)}, {v(k2)} quad_perm:[2,3,0,1] row_mask:0xf bank_mask:0xf")
        A(f"v_max_u32_dpp {v(k2)}, {v(k2)}, {v(k2)} row_half_mirror row_mask:0xf bank_mask:0xf")
        A(f"v_max_u32_dpp {v(k2)}, {v(k2)}, {v(k2)} row_mirror row_mask:0xf bank_mask:0xf")
        A(f"v_max_u32_dpp {v(k2)}, {v(k2)}, {v(k2)} row_bcast:15 row_mask:0xa bank_mask:0xf")
        A(f"v_max_u32_dpp {v(k2)}, {v(k2)}, {v(k2)} row_bcast:31 row_mask:0xc bank_mask:0xf")
        A("s_mov_b32 exec_lo, 0")
        A("s_brev_b32 exec_hi, 1")
        A(f"ds_write_b32 {v(vT + 3)}, {v(k2)}")
        A("s_mov_b64 exec, -1")
        A("s_waitcnt lgkmcnt(0)")
        A("L_keyed:")
        A(f"s_cmp_lt_u32 s{sPOS}, 14")
        A("s_barrier")
        A("s_cbranch_scc0 L_cfin")
        A(f"ds_read_b32 {v(K)}, {v(vT + 3)}")
        A("s_waitcnt lgkmcnt(0)")
        A(f"v_readfirstlane_b32 s{sWIN}, {v(K)}")
        A(f"s_andn2_b32 s{sT0}, 2047, s{sWIN}")
        A(f"s_lshr_b32 s{sT1}, s{sT0}, 3")
        A(f"s_mul_i32 s{sT1}, s{sT1}, {RS}")
        A(f"v_add_u32 {v(vF + 3)}, s{sT1}, {v(vF + 3)}")
        sl = [f"global_load_dwordx4 {v(K, 4)}, {v(vF + 3)}, {sp(sWS)} sc1"]
        A(sl[0])
        if o.get("wdp", 1) == 1:
            for l in wdl:
                A(l)
        self.stamp("win")
        A(f"s_waitcnt vmcnt({16 if o.get('wdp', 1) == 1 else 0})")
        self.poll("sel", sl, [f"v_max3_u32 {v(vT + 6)}, {v(K)}, {v(K + 1)}, {v(K + 2)}",
                              f"v_max_u32 {v(vT + 6)}, {v(vT + 6)}, {v(K + 3)}",
                              f"v_cmp_eq_u32 vcc, -1, {v(vT + 6)}"])
        self.stamp("sel")
        chk8 = [f"v_max3_u32 {v(vT + 6)}, {v(vY)}, {v(vY + 1)}, {v(vY + 2)}",
                f"v_max3_u32 {v(vT + 7)}, {v(vY + 3)}, {v(vY + 4)}, {v(vY + 5)}",
                f"v_max3_u32 {v(vT + 6)}, {v(vT + 6)}, {v(vY + 6)}, {v(vY + 7)}",
                f"v_max_u32 {v(vT + 6)}, {v(vT + 6)}, {v(vT + 7)}",
                f"v_cmp_eq_u32 vcc, -1, {v(vT + 6)}"]
        V2 = [K + 8 + i for i in range(8)]
        for kp in range(4):
            for c in range(8):
                A(f"v_dot2_f32_bf16 {v(V2[c])}, {v(K + kp)}, {v(WGp + 8 * kp + c)}, {v(V2[c]) if kp else 0}")
        self.reduce8(V2, K + 16)
        A(f"ds_write_b32 {v(vF + 4)}, {v(V2[0])}")
        if o.get("wdp", 1) == 1:
            A("s_waitcnt vmcnt(0)")
            for l in perms[:16]:
                A(l)
        A("s_waitcnt lgkmcnt(0)")
        A("s_barrier")
        A(f"ds_read_b64 {v(K, 2)}, {v(vF + 5)}")
        A(f"ds_read_b64 {v(K + 2, 2)}, {v(vF + 5)} offset:128")
        A("s_waitcnt lgkmcnt(0)")
        A(f"v_add_f32 {v(K)}, {v(K)}, {v(K + 1)}")
        A(f"v_add_f32 {v(K + 2)}, {v(K + 2)}, {v(K + 3)}")
        A(f"v_cvt_pk_bf16_f32 {v(K + 1)}, {v(K)}, {v(K + 2)}")
        A(f"v_lshlrev_b32 {v(K)}, 16, {v(K + 1)}")
        A(f"v_mul_f32 {v(K + 3)}, {hex(f2u(-L2E))}, {v(K)}")
        A(f"v_exp_f32 {v(K + 3)}, {v(K + 3)}")
        A(f"v_and_b32 {v(K + 2)}, s{sMASK}, {v(K + 1)}")
        A(f"v_add_f32 {v(K + 3)}, 1.0, {v(K + 3)}")
        A(f"v_rcp_f32 {v(K + 3)}, {v(K + 3)}")
        A(f"v_mul_f32 {v(K)}, {v(K)}, {v(K + 3)}")
        A(f"v_cvt_pk_bf16_f32 {v(K)}, {v(K)}, {v(K)}")
        A(f"v_and_b32 {v(K)}, s{sMASK}, {v(K)}")
        A(f"v_mul_f32 {v(K)}, {v(K)}, {v(K + 2)}")
        A(f"v_mov_b32_dpp {v(K + 1)}, {v(K)} quad_perm:[1,1,3,3] row_mask:0xf bank_mask:0xf")
        A(f"v_cvt_pk_bf16_f32 {v(K)}, {v(K)}, {v(K + 1)}")
        for kp in range(8):
            A(f"v_readlane_b32 s{sH + kp}, {v(K)}, {2 * kp}")
        for kp in range(8):
            for c in range(2):
                A(f"v_dot2_f32_bf16 {v(K + 4 + c)}, s{sH + kp}, {v(WDp + 2 * kp + c)}, {v(K + 4 + c) if kp else 0}")
        A(f"global_store_dwordx2 {v(vF + 6)}, {v(K + 4, 2)}, {sp(sWS)} sc1")
        self.stamp("part")
        A(f"s_cmp_lt_u32 s{sPOS}, 8")
        A("s_cbranch_scc0 L_cfin")
        A(f"s_cmp_lt_u32 s{sWAVE}, 2")
        A("s_cbranch_scc0 L_cfin")
        A(f"s_lshl_b32 s{sTMP}, s{sXCD}, 3")
        A(f"s_add_u32 s{sTMP}, s{sTMP}, s{sPOS}")
        A(f"s_lshl_b32 s{sTMP}, s{sTMP}, 1")
        A(f"s_add_u32 s{sTMP}, s{sTMP}, s{sWAVE}")
        A(f"v_lshrrev_b32 {v(vT)}, 5, {v(vLANE)}")
        A(f"v_bfe_u32 {v(vT + 1)}, {v(vLANE)}, 4, 1")
        A(f"v_lshl_add_u32 {v(vT)}, {v(vT + 1)}, 1, {v(vT)}")
        A(f"s_lshl_b32 s{sTMP + 1}, s{sTMP}, 3")
        A(f"v_lshl_add_u32 {v(vT)}, {v(vT)}, 1, s{sTMP + 1}")
        A(f"s_add_u32 s{sT1}, s{sT1}, {W_REG + O_SLOT}")
        A(f"v_add_u32 {v(vT + 1)}, s{sT1}, {v(vT)}")
        xh = [f"global_load_ushort {v(K + 20)}, {v(vT + 1)}, {sp(sWS)} sc1",
              f"global_load_ushort {v(K + 21)}, {v(vT + 1)}, {sp(sWS)} offset:1024 sc1"]
        for l in xh:
            A(l)
        A(f"s_lshl_b32 s{sTMP + 1}, s{sT0}, 10")
        A(f"v_add_u32 {v(vT)}, s{sTMP + 1}, {v(vT)}")
        A(f"v_min_u32 {v(vT + 2)}, 55, {v(vLANE)}")
        A(f"v_mul_u32_u24 {v(vT + 3)}, 4682, {v(vT + 2)}")
        A(f"v_lshrrev_b32 {v(vT + 3)}, 16, {v(vT + 3)}")
        A(f"v_mad_u32_u24 {v(vT + 2)}, {v(vT + 3)}, 18, {v(vT + 2)}")
        A(f"v_mul_u32_u24 {v(vT + 2)}, {RS}, {v(vT + 2)}")
        A(f"s_lshl_b32 s{sTMP + 1}, s{sTMP}, 4")
        A(f"s_add_u32 s{sTMP + 1}, s{sTMP + 1}, {W_REG + O_PART}")
        A(f"v_add_u32 {v(vT + 2)}, s{sTMP + 1}, {v(vT + 2)}")
        A(f"v_add_u32 {v(vT + 3)}, {128 * RS}, {v(vT + 2)}")
        A(f"s_ashr_i32 s{sTMP + 2}, s{sWIN}, 31")
        A(f"s_not_b32 s{sTMP + 2}, s{sTMP + 2}")
        A(f"s_or_b32 s{sTMP + 2}, s{sTMP + 2}, 0x80000000")
        A(f"s_xor_b32 s{sTMP + 2}, s{sTMP + 2}, s{sWIN}")
        A(f"s_and_b32 s{sTMP + 2}, s{sTMP + 2}, 0xfffff800")
        A(f"s_or_b32 s{sTMP + 2}, s{sTMP + 2}, 0x400")
        A(f"v_cvt_pk_bf16_f32 {v(K + 22)}, s{sTMP + 2}, s{sTMP + 2}")
        A(f"v_and_b32 {v(K + 22)}, s{sMASK}, {v(K + 22)}")
        A(f"v_mul_f32 {v(K + 22)}, {hex(f2u(-L2E))}, {v(K + 22)}")
        A(f"v_exp_f32 {v(K + 22)}, {v(K + 22)}")
        A(f"v_add_f32 {v(K + 22)}, 1.0, {v(K + 22)}")
        A(f"v_rcp_f32 {v(K + 22)}, {v(K + 22)}")
        A(f"v_cvt_pk_bf16_f32 {v(K + 22)}, {v(K + 22)}, {v(K + 22)}")
        A(f"v_and_b32 {v(K + 22)}, s{sMASK}, {v(K + 22)}")
        A("s_waitcnt vmcnt(0)")
        self.stamp("partdr")
        pl = [f"global_load_dwordx4 {v(vY, 4)}, {v(vT + 2)}, {sp(sWS)} sc1",
              f"global_load_dwordx4 {v(vY + 4, 4)}, {v(vT + 3)}, {sp(sWS)} sc1"]
        for l in pl:
            A(l)
        self.poll("xh", xh, [f"v_max_u32 {v(vT + 6)}, {v(K + 20)}, {v(K + 21)}",
                             f"v_cmp_eq_u32 vcc, 0xffff, {v(vT + 6)}"])
        A(f"v_lshlrev_b32 {v(K + 20)}, 16, {v(K + 20)}")
        A(f"v_lshlrev_b32 {v(K + 21)}, 16, {v(K + 21)}")
        A("s_waitcnt vmcnt(0)")
        self.poll("part", pl, chk8)
        self.stamp("partld")
        A(f"v_cmp_gt_u32 vcc, 56, {v(vLANE)}")
        A(f"v_pk_add_f32 {v(vY, 2)}, {v(vY, 2)}, {v(vY + 4, 2)}")
        A(f"v_pk_add_f32 {v(vY + 2, 2)}, {v(vY + 2, 2)}, {v(vY + 6, 2)}")
        for c in range(4):
            A(f"v_cndmask_b32 {v(vY + c)}, 0, {v(vY + c)}, vcc")
        A(f"v_permlane32_swap_b32 {v(vY)}, {v(vY + 1)}")
        A(f"v_permlane32_swap_b32 {v(vY + 2)}, {v(vY + 3)}")
        A(f"v_add_f32 {v(vY)}, {v(vY)}, {v(vY + 1)}")
        A(f"v_add_f32 {v(vY + 2)}, {v(vY + 2)}, {v(vY + 3)}")
        A(f"v_permlane16_swap_b32 {v(vY)}, {v(vY + 2)}")
        A(f"v_add_f32 {v(vY)}, {v(vY)}, {v(vY + 2)}")
        for sh in (8, 4, 2, 1):
            A(f"v_add_f32_dpp {v(vY)}, {v(vY)}, {v(vY)} row_ror:{sh} row_mask:0xf bank_mask:0xf")
        y = vY
        A(f"v_cvt_pk_bf16_f32 {v(y)}, {v(y)}, {v(y)}")
        A(f"v_and_b32 {v(y)}, s{sMASK}, {v(y)}")
        A(f"v_mul_f32 {v(y)}, {v(y)}, {v(K + 22)}")
        A(f"v_cvt_pk_bf16_f32 {v(y)}, {v(y)}, {v(y)}")
        A(f"v_and_b32 {v(y)}, s{sMASK}, {v(y)}")
        A(f"v_add_f32 {v(y)}, {v(y)}, {v(K + 20)}")
        A(f"v_cvt_pk_bf16_f32 {v(y)}, {v(y)}, {v(y)}")
        A(f"v_and_b32 {v(y)}, s{sMASK}, {v(y)}")
        A(f"v_add_f32 {v(y)}, {v(y)}, {v(K + 21)}")
        A(f"v_cvt_pk_bf16_f32 {v(y)}, {v(y)}, {v(y)}")
        A("s_mov_b32 exec_lo, 0x00010001")
        A("s_mov_b32 exec_hi, 0x00010001")
        A(f"global_store_short {v(vT)}, {v(y)}, {sp(sOUT)}")
        A("L_cfin:")
        self.finish("C")

    def text(self):
        lines = self.build()
        src = open("sequential_preLN__ssm_conv_s4d__moe_arch_mod__prompt.s.ref").read()
        head = [l for l in src.split("\n") if l.startswith(";") and "@launch" not in l]
        head = head[:head.index("; Override launch geometry by editing the next line (default: block=256,")]
        out = head + [f"; @launch grid=(256,1,1) block=(512,1,1) lds={LDS_BYTES}",
                      '.amdgcn_target "amdgcn-amd-amdhsa--gfx950"', ".text", f".globl {KNAME}", ".p2align 8",
                      f".type {KNAME},@function"]
        out += [l if l.endswith(":") else "    " + l for l in lines]
        out += [".section .rodata,\"a\"", ".p2align 6", f".amdhsa_kernel {KNAME}",
                "  .amdhsa_next_free_vgpr 224", "  .amdhsa_next_free_sgpr 102", "  .amdhsa_accum_offset 224",
                "  .amdhsa_group_segment_fixed_size 0", "  .amdhsa_kernarg_size 120", "  .amdhsa_user_sgpr_count 2",
                "  .amdhsa_user_sgpr_kernarg_segment_ptr 1", "  .amdhsa_system_sgpr_workgroup_id_x 1",
                ".end_amdhsa_kernel", ""]
        return "\n".join(out)


if __name__ == "__main__":
    out = sys.argv[1]
    opts = {}
    stamp = False
    for a in sys.argv[2:]:
        if a == "stamp":
            stamp = True
        else:
            k, val = a.split("=")
            opts[k] = val if k == 'pr' else int(val)
    g = Gen(stamp, opts)
    open(out, "w").write(g.text())
    if stamp:
        open(out + ".names", "w").write(" ".join(g.allnames["R"]) + "\n" + " ".join(g.allnames["C"]))
    print(g.info, "lds", LDS_BYTES)
```

```python
import sys
import struct
from asmlib import Asm, align8

KNAME = "sequential_preLN__ssm_conv_s4d__moe_arch_mod__prompt_kernel"


def f2u(x):
    return struct.unpack("<I", struct.pack("<f", x))[0]


W_FLAG = 0x1000
W_KEY = 0x9000
W_FLAG2 = 0x11000
W_REG = 0x31000
RS = 20608
O_X1, O_X2, O_SLOT, O_PART = 0, 8192, 16384, 18432
W_STAMP = 0x800000
ROWB = 544
TABC = 63 * ROWB
L_TAB = 0
L_P = 68608
PC = 8256
L_U = L_P + 2 * PC
UC = 4608
L_RED1 = (L_U + 2 * UC + 255) // 256 * 256
L_RED2 = L_RED1 + 256
L_SUMW = L_RED2 + 384
L_REDK = L_SUMW + 16
L_REDF = L_REDK + 16
LDS_BYTES = L_REDF + 256
L_EPI = 0
TBS = 1152
L_TILE = 40960
RSTR = 1040
TILE = 8 * RSTR
sX, sLA, sAI, sCR, sCI, sLDT, sD = 4, 6, 8, 10, 12, 14, 16
sWR, sWG, sWU, sWD, sOUT, sDBG, sWS = 20, 22, 24, 26, 28, 30, 32
sL, sPOS, sXCD, sWAVE, sG, sDT, sT0, sT1, sSPIN, sF = 34, 35, 36, 37, 38, 39, 40, 41, 42, 43
sODD = 44
sSELLO, sSELHI, sONES, sMASK = 46, 47, 48, 49
sWSEL = 50
sBEST, sWIN, sRP0, sRP1 = 52, 53, 54, 55
sH = 56
sE = 64
sTMP = 66
sOWN = 71
sSTAMP = 72


def sp(r):
    return f"s[{r}:{r + 1}]"


def v(r, n=1):
    return f"v{r}" if n == 1 else f"v[{r}:{r + n - 1}]"


class Gen:
    def __init__(self, stamp=False, opts=None):
        self.A = Asm()
        self.tail = Asm()
        self.stamp_on = stamp
        self.nstamp = 0
        self.names = []
        self.o = dict(opts or {})
        self.only = None
        self.role = "R"
        if "pr" in self.o:
            self.only = tuple(self.o["pr"].split("."))
            self.stamp_on = True
            self.o["probe"] = 1 if self.only[0] == "R" else 101

    def stamp(self, name):
        if not self.stamp_on:
            return
        if self.only and name != "start" and (self.role, name) != self.only:
            return
        k = self.nstamp
        self.nstamp += 1
        self.names.append(name)
        assert sSTAMP + k < 100
        self.A(f"s_memtime s[100:101]" if self.o.get("cyc") else f"s_memrealtime s[100:101]")
        self.A("s_waitcnt lgkmcnt(0)")
        self.A(f"s_mov_b32 s{sSTAMP + k}, s100")

    def poll(self, name, loads, check, base_exec="-1"):
        A = self.A
        for c in check:
            A(c)
        A(f"s_cbranch_vccnz L_retry_{name}")
        A(f"L_ok_{name}:")
        T = self.tail
        T(f"L_retry_{name}:")
        T(f"s_mov_b32 s{sSPIN}, 0x40000")
        T(f"L_again_{name}:")
        T(f"s_sub_u32 s{sSPIN}, s{sSPIN}, 1")
        T(f"s_cbranch_scc1 L_ok_{name}")
        T("s_mov_b64 exec, vcc")
        for l in loads:
            T(l)
        T("s_waitcnt vmcnt(0)")
        for c in check:
            T(c)
        T(f"s_mov_b64 exec, {base_exec}")
        T(f"s_cbranch_vccnz L_again_{name}")
        T(f"s_branch L_ok_{name}")

    def cmul(self, d, x, y, t):
        return [f"v_pk_mul_f32 {v(t, 2)}, {v(x, 2)}, {v(y, 2)} op_sel:[0,0] op_sel_hi:[0,1]",
                f"v_pk_fma_f32 {v(d, 2)}, {v(x, 2)}, {v(y, 2)}, {v(t, 2)} op_sel:[1,1,0] op_sel_hi:[1,0,1] neg_lo:[1,0,0]"]

    def reduce8(self, V, t):
        A = self.A
        for i in range(4):
            A(f"v_add_f32_dpp {v(V[i])}, {v(V[i])}, {v(V[i])} row_ror:8 row_mask:0xf bank_mask:0x3")
        for i in range(4):
            A(f"v_add_f32_dpp {v(V[i])}, {v(V[i + 4])}, {v(V[i + 4])} row_ror:8 row_mask:0xf bank_mask:0xc")
        for i in range(2):
            A(f"v_add_f32_dpp {v(V[i])}, {v(V[i])}, {v(V[i])} row_shl:4 row_mask:0xf bank_mask:0x5")
        for i in range(2):
            A(f"v_add_f32_dpp {v(V[i])}, {v(V[i + 2])}, {v(V[i + 2])} row_shr:4 row_mask:0xf bank_mask:0xa")
        A(f"v_permlane32_swap_b32 {v(V[0])}, {v(V[1])}")
        A(f"v_add_f32 {v(V[0])}, {v(V[0])}, {v(V[1])}")
        A(f"v_add_f32_dpp {v(V[0])}, {v(V[0])}, {v(V[0])} quad_perm:[2,3,0,1] row_mask:0xf bank_mask:0xf")
        A(f"v_mov_b32 {v(t)}, {v(V[0])}")
        A(f"v_permlane16_swap_b32 {v(V[0])}, {v(t)}")
        A(f"v_add_f32 {v(V[0])}, {v(V[0])}, {v(t)}")

    def row_stats(self, S, Q, negm, rinv, t):
        A = self.A
        A(f"v_pk_add_f32 {v(S, 2)}, {v(S, 2)}, {v(S + 2, 2)}")
        A(f"v_pk_add_f32 {v(Q, 2)}, {v(Q, 2)}, {v(Q + 2, 2)}")
        A(f"v_add_f32 {v(S)}, {v(S)}, {v(S + 1)}")
        A(f"v_add_f32 {v(Q)}, {v(Q)}, {v(Q + 1)}")
        A(f"v_mul_f32 {v(S)}, {hex(f2u(1 / 512))}, {v(S)}")
        A(f"v_mul_f32 {v(Q)}, {hex(f2u(1 / 512))}, {v(Q)}")
        A(f"v_fma_f32 {v(Q)}, -{v(S)}, {v(S)}, {v(Q)}")
        A(f"v_max_f32 {v(Q)}, 0, {v(Q)}")
        A(f"v_cvt_pk_bf16_f32 {v(t)}, -{v(S)}, {v(Q)}")
        A(f"v_and_b32 {v(Q)}, s{sMASK}, {v(t)}")
        A(f"v_add_f32 {v(Q)}, {hex(f2u(1e-5))}, {v(Q)}")
        A(f"v_cvt_pk_bf16_f32 {v(Q)}, {v(Q)}, {v(Q)}")
        A(f"v_and_b32 {v(Q)}, s{sMASK}, {v(Q)}")
        A(f"v_sqrt_f32 {v(Q)}, {v(Q)}")
        A(f"v_lshlrev_b32 {v(negm)}, 16, {v(t)}")
        A(f"v_cvt_pk_bf16_f32 {v(Q)}, {v(Q)}, {v(Q)}")
        A(f"v_and_b32 {v(Q)}, s{sMASK}, {v(Q)}")
        A(f"v_rcp_f32 {v(rinv)}, {v(Q)}")

    def spread(self, val, dst, t):
        A = self.A
        for r in range(4):
            A(f"v_mov_b32_dpp {v(t + r)}, {v(val)} row_newbcast:{4 + r} row_mask:0xf bank_mask:0xf")
        for r in range(4):
            A(f"v_cndmask_b32_dpp {v(dst + r)}, {v(val)}, {v(t + r)}, vcc row_newbcast:{r} row_mask:0xf bank_mask:0xf")

    def key_calc(self, K, vRA, vLANE):
        A = self.A
        A(f"v_mov_b32 {v(K + 14)}, {L_SUMW}")
        A(f"ds_read_b128 {v(K, 4)}, {v(vRA)} offset:{L_RED2 - L_RED1}")
        A(f"ds_read_b128 {v(K + 4, 4)}, {v(vRA)} offset:{L_RED2 - L_RED1 + 128}")
        A(f"ds_read_b128 {v(K + 8, 4)}, {v(vRA)} offset:{L_RED2 - L_RED1 + 256}")
        A(f"ds_read_b32 {v(K + 15)}, {v(K + 14)}")
        A(f"s_lshl_b32 s{sTMP}, s{sL}, 3")
        A(f"s_sub_u32 s{sTMP}, 2047, s{sTMP}")
        A(f"v_and_b32 {v(K + 14)}, 7, {v(vLANE)}")
        A(f"v_sub_u32 {v(K + 14)}, s{sTMP}, {v(K + 14)}")
        A("s_waitcnt lgkmcnt(2)")
        self.row_stats(K, K + 4, K + 12, K + 13, K + 28)
        A("s_waitcnt lgkmcnt(0)")
        A(f"v_pk_add_f32 {v(K + 8, 2)}, {v(K + 8, 2)}, {v(K + 10, 2)}")
        A(f"v_add_f32 {v(K + 8)}, {v(K + 8)}, {v(K + 9)}")
        A(f"v_fmac_f32 {v(K + 8)}, {v(K + 12)}, {v(K + 15)}")
        A(f"v_mul_f32 {v(K + 8)}, {v(K + 8)}, {v(K + 13)}")
        A(f"v_ashrrev_i32 {v(K + 9)}, 31, {v(K + 8)}")
        A(f"v_or_b32 {v(K + 9)}, 0x80000000, {v(K + 9)}")
        A(f"v_xor_b32 {v(K + 8)}, {v(K + 8)}, {v(K + 9)}")
        A(f"v_and_b32 {v(K + 8)}, 0xfffff800, {v(K + 8)}")
        A(f"v_or_b32 {v(K + 8)}, {v(K + 8)}, {v(K + 14)}")
        A(f"v_min_u32 {v(K + 8)}, -2, {v(K + 8)}")
        A(f"v_max_u32_dpp {v(K + 8)}, {v(K + 8)}, {v(K + 8)} quad_perm:[1,0,3,2] row_mask:0xf bank_mask:0xf")
        A(f"v_max_u32_dpp {v(K + 8)}, {v(K + 8)}, {v(K + 8)} quad_perm:[2,3,0,1] row_mask:0xf bank_mask:0xf")
        A(f"v_max_u32_dpp {v(K + 8)}, {v(K + 8)}, {v(K + 8)} row_half_mirror row_mask:0xf bank_mask:0xf")

    def finish(self, role):
        A = self.A
        o = self.o
        if self.stamp_on:
            self.stamp("end")
            self.allnames[role] = self.names
        if self.stamp_on and "probe" in o:
            k = o["probe"]
            if k == 98 and role == "R":
                A(f"s_getreg_b32 s{sTMP}, hwreg(HW_REG_XCC_ID, 0, 4)")
                A(f"s_sub_u32 s{sTMP}, s{sTMP}, s2")
                A(f"s_and_b32 s{sTMP}, s{sTMP}, 7")
                A(f"s_mul_i32 s{sTMP}, s{sTMP}, 1000")
                A(f"s_add_u32 s{sTMP}, s{sTMP}, 2000")
            elif k == 99 and role == "R":
                A("s_memtime s[96:97]")
                A("s_waitcnt lgkmcnt(0)")
                A("s_sub_u32 s96, s96, s98")
                A(f"s_sub_u32 s97, s{sSTAMP + self.nstamp - 1}, s{sSTAMP}")
                A("s_mov_b64 exec, -1")
                A("v_cvt_f32_u32 v2, s96")
                A("v_cvt_f32_u32 v3, s97")
                A("v_rcp_f32 v3, v3")
                A("s_nop 1")
                A("v_mul_f32 v2, v2, v3")
                A("v_mul_f32 v2, 0x43c80000, v2")
                A("v_cvt_u32_f32 v2, v2")
                A("s_nop 1")
                A(f"v_readfirstlane_b32 s{sTMP}, v2")
                A(f"s_add_u32 s{sTMP}, s{sTMP}, 2000")
            elif k < 0 and role == "R":
                A(f"s_mov_b32 s{sTMP}, {-k}")
            elif k >= 0 and (k >= 100) == (role == "C"):
                A(f"s_sub_u32 s{sTMP}, s{sSTAMP + k % 100}, s{sSTAMP}")
                A(f"s_cmp_lt_u32 s{sTMP}, 3000")
                A(f"s_cselect_b32 s{sTMP}, s{sTMP}, 0")
                A(f"s_mul_i32 s{sTMP}, s{sTMP}, 20")
                A(f"s_add_u32 s{sTMP}, s{sTMP}, 2000")
            else:
                A(f"s_mov_b32 s{sTMP}, 0")
            A(f"L_spin{role}:")
            A("s_memrealtime s[100:101]")
            A("s_waitcnt lgkmcnt(0)")
            A(f"s_sub_u32 s100, s100, s{sSTAMP}")
            A(f"s_cmp_lt_u32 s100, s{sTMP}")
            A(f"s_cbranch_scc1 L_spin{role}")
        elif self.stamp_on:
            A("s_mov_b64 exec, 1")
            A(f"s_lshl_b32 s{sTMP}, s2, 3")
            A(f"s_add_u32 s{sTMP}, s{sTMP}, s{sWAVE}")
            if role == "C":
                A(f"s_add_u32 s{sTMP}, s{sTMP}, 4")
            A(f"s_lshl_b32 s{sTMP}, s{sTMP}, 7")
            A(f"s_add_u32 s{sTMP}, s{sTMP}, {W_STAMP}")
            A(f"v_mov_b32 v1, s{sTMP}")
            for k in range(self.nstamp):
                A(f"v_mov_b32 v2, s{sSTAMP + k}")
                A(f"global_store_dword v1, v2, {sp(sWS)} offset:{4 * k}")
        A("s_endpgm")

    def build(self):
        A = self.A
        self.allnames = {}
        o = self.o
        A(f"{KNAME}:")
        self.stamp("start")
        A("s_load_dwordx16 s[4:19], s[0:1], 0")
        A("s_cmp_ge_u32 s2, 256")
        A("s_cbranch_scc1 L_end")
        if o.get("probe", 0) == 99:
            A("s_memtime s[98:99]")
        A(f"s_getpc_b64 {sp(sE)}")
        A("L_pc:")
        A("v_lshlrev_b32 v2, 5, v0")
        A(f"v_min_u32 v2, L_codeend-L_pc-4, v2")
        A(f"global_load_dword v3, v2, {sp(sE)}")
        A("s_load_dwordx8 s[20:27], s[0:1], 64")
        A("s_load_dwordx4 s[28:31], s[0:1], 96")
        A("s_load_dwordx2 s[32:33], s[0:1], 112")
        A("v_lshrrev_b32 v4, 6, v0")
        A(f"s_and_b32 s{sXCD}, s2, 7")
        A(f"v_readfirstlane_b32 s{sWAVE}, v4")
        A(f"s_lshr_b32 s{sPOS}, s2, 3")
        A(f"s_lshl_b32 s{sL}, s{sXCD}, 5")
        A(f"s_add_u32 s{sL}, s{sL}, s{sPOS}")
        A("v_and_b32 v1, 63, v0")
        A("v_and_b32 v0, 0xff, v0")
        A("v_lshrrev_b32 v32, 1, v0")
        A("v_and_b32 v33, 1, v0")
        A("v_lshlrev_b32 v34, 3, v32")
        A(f"s_lshl_b32 s{sT0}, s{sL}, 13")
        A("v_lshl_add_u32 v23, v33, 12, v34")
        A(f"v_add_u32 v23, s{sT0}, v23")
        A(f"s_lshl_b32 s{sT0}, s{sL}, 9")
        A(f"v_lshl_add_u32 v28, v0, 1, s{sT0}")
        A(f"s_lshl_b32 s{sT1}, s{sL}, 2")
        A(f"s_cmp_lt_u32 s{sWAVE}, 4")
        A("s_waitcnt lgkmcnt(0)")
        A("s_cbranch_scc1 L_rows")
        nt = ' nt' if o.get('ntx', 1) else ''
        for k, sb in enumerate((sLA, sAI, sCR, sCI)):
            A(f"global_load_ushort v{24 + k}, v28, {sp(sb)}{nt}")
        A(f"s_load_dword s{sDT}, {sp(sLDT)}, s{sT1}")
        A("s_branch L_chan")
        A("L_rows:")
        self.rows()
        self.names = self.names[:1]
        self.nstamp = min(self.nstamp, 1)
        A(".p2align 6")
        self.role = "C"
        self.chans()
        A("L_end:")
        A("s_endpgm")
        for l in self.tail.L:
            A(l)
        A("L_codeend:")
        lines, nops = A.padded()
        lines, nbytes, promoted, missed = align8(lines)
        self.info = dict(nops=nops, bytes=nbytes, promoted=promoted, missed=missed, lines=len(lines))
        return lines

    def rows(self):
        A = self.A
        o = self.o
        vLANE = 1
        vX, vU, vD, vWR = 212, 10, 18, 20
        vREG, vRD, vAUX = 22, 23, 24
        vKEY, vSW, vRA, vFL, vUW = 26, 27, 28, 29, 30
        vT = 32
        vWG, vWD = 40, 72
        vY = 88
        vONE = 96
        K = 100
        L2E = 1.4426950408889634
        nt = ' nt' if o.get('ntx', 1) else ''
        for r in range(4):
            A(f"global_load_dwordx2 {v(vX + 2 * r, 2)}, {v(vRD)}, {sp(sX)} offset:{1024 * r}{nt}")
        self.stamp("karg")
        A(f"s_load_dword s{sG}, {sp(sWS)}, 0")
        A(f"v_lshlrev_b32 {v(vT + 3)}, 4, {v(vLANE)}")
        A(f"global_load_dwordx2 {v(vD, 2)}, {v(vT + 2)}, {sp(sD)}")
        A(f"global_load_dwordx2 {v(vWR, 2)}, {v(vT + 2)}, {sp(sWR)}")
        A(f"global_load_dwordx4 {v(vONE, 4)}, {v(vT + 3)}, {sp(sWR)}")
        A(f"s_mul_i32 s{sOWN}, s{sL}, {RS}")
        A(f"s_add_u32 s{sOWN}, s{sOWN}, {W_REG}")
        A(f"s_add_u32 s{sT0}, s{sOWN}, 4096")
        A(f"v_lshl_add_u32 {v(vREG)}, v0, 4, s{sT0}")
        A(f"s_mov_b32 s{sMASK}, 0xffff0000")
        A(f"s_mov_b32 s{sODD}, 0xaaaaaaaa")
        A(f"s_mov_b32 s{sODD + 1}, 0xaaaaaaaa")
        A(f"s_mov_b32 s{sSELLO}, 0x3f80")
        A(f"s_mov_b32 s{sSELHI}, 0x3f800000")
        A(f"s_mov_b32 s{sONES}, 0x3f803f80")
        A(f"s_and_b32 s{sTMP}, s{sL}, 1")
        A(f"s_lshl_b32 s{sTMP}, s{sTMP}, 12")
        A(f"s_lshr_b32 s{sTMP + 1}, s{sL}, 1")
        A(f"s_lshl_b32 s{sTMP + 1}, s{sTMP + 1}, 5")
        A(f"s_add_u32 s{sTMP}, s{sTMP}, s{sTMP + 1}")
        A(f"s_add_u32 s{sTMP}, s{sTMP}, {W_REG + O_X1}")
        A(f"v_mul_u32_u24 {v(vAUX)}, {RS}, {v(vT)}")
        A(f"v_lshl_add_u32 {v(vAUX)}, {v(vT + 1)}, 4, {v(vAUX)}")
        A(f"v_add_u32 {v(vAUX)}, s{sTMP}, {v(vAUX)}")
        A(f"v_add_u32 {v(vAUX + 1)}, {128 * RS}, {v(vAUX)}")
        FS = o.get("fs", 7)
        KS = o.get("ks", 5)
        A(f"v_lshlrev_b32 {v(vFL)}, {FS}, {v(vT)}")
        A(f"v_add_u32 {v(vFL)}, {W_FLAG}, {v(vFL)}")
        A(f"v_add_u32 {v(vFL + 2)}, {128 << FS}, {v(vFL)}")
        A(f"s_lshl_b32 s{sT0}, s{sL}, {FS}")
        A(f"s_add_u32 s{sT0}, s{sT0}, {W_FLAG}")
        A(f"v_lshl_add_u32 {v(vKEY)}, {v(vLANE)}, 4, s{sT0}")
        A(f"v_cmp_ne_u32 vcc, s{sL}, {v(vT)}")
        A(f"s_sub_u32 s{sT0}, s{sL}, 128")
        A(f"v_cndmask_b32 {v(5)}, 0, -1, vcc")
        A(f"v_cmp_ne_u32 vcc, s{sT0}, {v(vT)}")
        A(f"v_cndmask_b32 {v(6)}, 0, -1, vcc")
        A(f"v_lshlrev_b32 {v(vSW)}, 6, {v(vT + 1)}")
        A(f"v_and_b32 {v(vT + 3)}, 4, {v(vLANE)}")
        A(f"v_lshl_add_u32 {v(vSW)}, {v(vT + 3)}, 3, {v(vSW)}")
        A(f"v_and_b32 {v(vT + 3)}, 8, {v(vLANE)}")
        A(f"v_lshl_add_u32 {v(vSW)}, {v(vT + 3)}, 4, {v(vSW)}")
        A(f"v_lshrrev_b32 {v(vT + 3)}, 5, {v(vLANE)}")
        A(f"v_lshl_add_u32 {v(vSW)}, {v(vT + 3)}, 4, {v(vSW)}")
        A(f"s_lshl_b32 s{sTMP}, s{sWAVE}, 2")
        A(f"s_add_u32 s{sTMP}, s{sTMP}, {L_RED1}")
        A(f"v_add_u32 {v(vSW)}, s{sTMP}, {v(vSW)}")
        A(f"v_and_b32 {v(vT + 3)}, 7, {v(vLANE)}")
        A(f"v_lshlrev_b32 {v(vRA)}, 4, {v(vT + 3)}")
        A(f"v_add_u32 {v(vRA)}, {L_RED1}, {v(vRA)}")
        A(f"v_lshlrev_b32 {v(vUW)}, 3, v0")
        A(f"v_mov_b32 {v(K)}, 0")
        A(f"v_mov_b32 {v(K + 1)}, 0")
        A(f"v_min_u32 {v(vT + 3)}, 472, {v(vUW)}")
        A(f"v_add_u32 {v(vT + 3)}, {L_U}, {v(vT + 3)}")
        A(f"v_min_u32 {v(vT + 4)}, 56, {v(vUW)}")
        A(f"v_add_u32 {v(vT + 4)}, {L_P}, {v(vT + 4)}")
        A(f"ds_write2st64_b64 {v(vT + 3)}, {v(K, 2)}, {v(K, 2)} offset0:0 offset1:9")
        A(f"ds_write_b64 {v(vT + 4)}, {v(K, 2)}")
        A(f"ds_write_b64 {v(vT + 4)}, {v(K, 2)} offset:{PC}")
        A(f"v_add_u32 {v(vUW)}, {L_U + 480}, {v(vUW)}")

        V = [K + i for i in range(8)]
        A("s_waitcnt vmcnt(3)")
        self.stamp("x")
        for r in range(4):
            A(f"v_dot2_f32_bf16 {v(V[r])}, {v(vX + 2 * r)}, s{sONES}, 0")
        for r in range(4):
            A(f"v_dot2_f32_bf16 {v(V[4 + r])}, {v(vX + 2 * r)}, {v(vX + 2 * r)}, 0")
        for r in range(4):
            A(f"v_dot2_f32_bf16 {v(V[r])}, {v(vX + 2 * r + 1)}, s{sONES}, {v(V[r])}")
        for r in range(4):
            A(f"v_dot2_f32_bf16 {v(V[4 + r])}, {v(vX + 2 * r + 1)}, {v(vX + 2 * r + 1)}, {v(V[4 + r])}")
        self.reduce8(V, K + 8)
        A(f"ds_write_b32 {v(vSW)}, {v(V[0])}")
        A("s_waitcnt lgkmcnt(0)")
        A("s_barrier")
        self.stamp("b1")
        A(f"ds_read_b128 {v(K, 4)}, {v(vRA)}")
        A(f"ds_read_b128 {v(K + 4, 4)}, {v(vRA)} offset:128")
        A(f"s_add_u32 s{sG}, s{sG}, 0x9e3779b9")
        fw = o.get("fw", 1)
        for k in range(4 if fw else 1):
            A(f"v_mov_b32 {v(K + 28 + k)}, s{sG}")
        A(f"s_cmp_eq_u32 s{sWAVE}, 0")
        if fw:
            A(f"s_cselect_b64 exec, {(1 << ((1 << FS) // 16)) - 1}, 0")
            A(f"global_store_dwordx4 {v(vKEY)}, {v(K + 28, 4)}, {sp(sWS)} sc1")
        else:
            A("s_cselect_b64 exec, 1, 0")
            A(f"global_store_dword {v(vKEY)}, {v(K + 28)}, {sp(sWS)} sc1")
        A("s_mov_b64 exec, -1")
        flmode = o.get("flmode", 1)
        fl = [f"global_load_dword {v(vT + 4)}, {v(vFL)}, {sp(sWS)} sc1",
              f"global_load_dword {v(vT + 5)}, {v(vFL + 2)}, {sp(sWS)} sc1"]
        if flmode == 3:
            for l in fl:
                A(l)
        A(f"s_mov_b64 vcc, {sp(sODD)}")
        A("s_waitcnt lgkmcnt(0)")
        vNM, vRI = K + 16, K + 20
        self.row_stats(K, K + 4, K + 10, K + 11, K + 12)
        self.spread(K + 10, vNM, K + 24)
        Dd = K + 32
        for c in range(4):
            for r in range(4):
                A(f"v_dot2_f32_bf16 {v(Dd + 4 * c + r)}, {v(vX + 2 * r + (c >> 1))}, s{sSELHI if c & 1 else sSELLO}, {v(vNM + r)}")
        self.spread(K + 11, vRI, K + 24)
        Pk = K + 48
        for half in range(2):
            ks = range(4 * half, 4 * half + 4)
            for k in ks:
                A(f"v_cvt_pk_bf16_f32 {v(Pk + k)}, {v(Dd + 2 * k)}, {v(Dd + 2 * k + 1)}")
            for k in ks:
                A(f"v_lshlrev_b32 {v(Dd + 2 * k)}, 16, {v(Pk + k)}")
                A(f"v_and_b32 {v(Dd + 2 * k + 1)}, s{sMASK}, {v(Pk + k)}")
            for k in ks:
                A(f"v_pk_mul_f32 {v(Dd + 2 * k, 2)}, {v(Dd + 2 * k, 2)}, {v(vRI + 2 * (k & 1), 2)}")
            for k in ks:
                A(f"v_cvt_pk_bf16_f32 {v(vU + k)}, {v(Dd + 2 * k)}, {v(Dd + 2 * k + 1)}")
            A(f"global_store_dwordx4 {v(vREG)}, {v(vU + 4 * half, 4)}, {sp(sWS)} offset:{-4096 + 4096 * half} sc1")
        self.stamp("x1st")
        flchk = [f"v_xor_b32 {v(vT + 6)}, s{sG}, {v(vT + 4)}",
                 f"v_xor_b32 {v(vT + 7)}, s{sG}, {v(vT + 5)}",
                 f"v_or_b32 {v(vT + 6)}, {v(vT + 6)}, {v(vT + 7)}",
                 f"v_cmp_ne_u32 vcc, 0, {v(vT + 6)}"]
        if flmode == 3:
            A("s_waitcnt vmcnt(2)")
            self.stamp("x1dr")
            self.poll("flag", fl, [f"v_xor_b32 {v(vT + 6)}, s{sG}, {v(vT + 4)}",
                                   f"v_xor_b32 {v(vT + 7)}, s{sG}, {v(vT + 5)}",
                                   f"v_and_b32 {v(vT + 6)}, {v(vT + 6)}, {v(5)}",
                                   f"v_and_or_b32 {v(vT + 6)}, {v(vT + 7)}, {v(6)}, {v(vT + 6)}",
                                   f"v_cmp_ne_u32 vcc, 0, {v(vT + 6)}"])
        else:
            if flmode == 1:
                A("s_waitcnt vmcnt(0)")
            if flmode < 2:
                for l in fl:
                    A(l)
            A("s_barrier")
            if flmode == 2:
                for l in fl:
                    A(l)
            A("s_waitcnt vmcnt(0)")
            self.stamp("x1dr")
            self.poll("flag", fl, flchk)
        xl = [f"global_load_dwordx4 {v(vY, 4)}, {v(vAUX)}, {sp(sWS)} sc1",
              f"global_load_dwordx4 {v(vY + 4, 4)}, {v(vAUX + 1)}, {sp(sWS)} sc1"]
        for l in xl:
            A(l)
        self.stamp("flag")
        if flmode == 3:
            A("s_barrier")
        vWA = K + 8
        A(f"s_mul_i32 s{sTMP}, s{sXCD}, 448")
        A(f"s_and_b32 s{sTMP}, s{sTMP}, 0xffffff80")
        A(f"s_lshl_b32 s{sTMP + 1}, s{sPOS}, 1")
        A(f"s_lshr_b32 s{sTMP + 2}, s{sWAVE}, 1")
        A(f"s_add_u32 s{sTMP + 1}, s{sTMP + 1}, s{sTMP + 2}")
        A(f"s_mul_i32 s{sTMP + 1}, s{sTMP + 1}, {8 * 3584}")
        A(f"s_add_u32 s{sTMP}, s{sTMP}, s{sTMP + 1}")
        A(f"v_bfe_u32 {v(vWA)}, {v(vLANE)}, 2, 3")
        A(f"v_mul_u32_u24 {v(vWA)}, 3584, {v(vWA)}")
        A(f"v_and_b32 {v(vWA + 1)}, 3, {v(vLANE)}")
        A(f"v_lshl_add_u32 {v(vWA)}, {v(vWA + 1)}, 7, {v(vWA)}")
        A(f"v_add_u32 {v(vWA)}, s{sTMP}, {v(vWA)}")
        A(f"s_bitcmp1_b32 s{sWAVE}, 0")
        A(f"s_cselect_b64 {sp(sWSEL)}, {sp(sWU)}, {sp(sWG)}")
        A(f"s_mul_i32 s{sTMP}, s{sL}, 7168")
        A(f"s_mul_i32 s{sTMP + 1}, s{sWAVE}, 1792")
        A(f"s_add_u32 s{sTMP}, s{sTMP}, s{sTMP + 1}")
        A(f"v_min_u32 {v(vWA + 1)}, 13, {v(vLANE)}")
        A(f"v_lshl_add_u32 {v(vWA + 1)}, {v(vWA + 1)}, 7, s{sTMP}")
        A(f"v_and_b32 {v(vT + 3)}, 0xfe, v0")
        i2 = o.get("i2", 2)
        if i2 == 1:
            A(f"v_lshlrev_b32 {v(vWA + 2)}, 7, {v(vT + 3)}")
            A(f"v_add_u32 {v(vWA + 2)}, {W_FLAG2}, {v(vWA + 2)}")
        if i2 == 2:
            A(f"s_lshl_b32 s{sTMP}, s{sWAVE}, 11")
            A(f"s_add_u32 s{sTMP}, s{sTMP}, s{sOWN}")
            A(f"s_add_u32 s{sTMP}, s{sTMP}, {O_X2}")
            A(f"v_lshl_add_u32 {v(vWA + 5)}, {v(vLANE)}, 4, s{sTMP}")
            A(f"v_add_u32 {v(vWA + 6)}, {O_SLOT - 4096}, {v(vREG)}")
            A(f"s_lshl_b32 s{sTMP}, s{sL}, {KS}")
            A(f"s_add_u32 s{sTMP}, s{sTMP}, {W_KEY}")
            A(f"v_lshl_add_u32 {v(vWA + 7)}, {v(vLANE)}, 4, s{sTMP}")
            A(f"s_lshl_b32 s{sTMP}, s{sL}, 2")
            A(f"s_add_u32 s{sTMP}, s{sTMP}, s{sWAVE}")
            A(f"s_lshl_b32 s{sTMP}, s{sTMP}, 7")
            A(f"s_add_u32 s{sTMP}, s{sTMP}, {W_FLAG2}")
            A(f"v_lshl_add_u32 {v(vWA + 3)}, {v(vLANE)}, 4, s{sTMP}")
            A(f"s_lshr_b32 s{sTMP}, s{sL}, 6")
            A(f"s_lshl_b32 s{sTMP}, s{sTMP}, 7")
            A(f"s_add_u32 s{sTMP}, s{sTMP}, {W_FLAG2}")
            A(f"v_lshl_add_u32 {v(vWA + 2)}, {v(vT + 3)}, 9, s{sTMP}")
            for k in range(4):
                A(f"v_mov_b32 {v(K + 32 + k)}, -1")
        A(f"v_dot2_f32_bf16 {v(K + 4)}, {v(vONE)}, s{sONES}, 0")
        for k in range(1, 4):
            A(f"v_dot2_f32_bf16 {v(K + 4)}, {v(vONE + k)}, s{sONES}, {v(K + 4)}")
        A(f"v_mov_b32 {v(K + 5)}, {L_SUMW}")
        for sh in (8, 4, 2, 1):
            A(f"v_add_f32_dpp {v(K + 4)}, {v(K + 4)}, {v(K + 4)} row_ror:{sh} row_mask:0xf bank_mask:0xf")
        A(f"v_add_f32_dpp {v(K + 4)}, {v(K + 4)}, {v(K + 4)} row_bcast:15 row_mask:0xa bank_mask:0xf")
        A(f"v_add_f32_dpp {v(K + 4)}, {v(K + 4)}, {v(K + 4)} row_bcast:31 row_mask:0xc bank_mask:0xf")
        A("s_mov_b32 exec_lo, 0")
        A("s_brev_b32 exec_hi, 1")
        A(f"ds_write_b32 {v(K + 5)}, {v(K + 4)}")
        A("s_mov_b64 exec, -1")
        A("s_barrier")
        A("s_waitcnt vmcnt(0)")
        chk8 = [f"v_max3_u32 {v(vT + 6)}, {v(vY)}, {v(vY + 1)}, {v(vY + 2)}",
                f"v_max3_u32 {v(vT + 7)}, {v(vY + 3)}, {v(vY + 4)}, {v(vY + 5)}",
                f"v_max3_u32 {v(vT + 6)}, {v(vT + 6)}, {v(vY + 6)}, {v(vY + 7)}",
                f"v_max_u32 {v(vT + 6)}, {v(vT + 6)}, {v(vT + 7)}",
                f"v_cmp_eq_u32 vcc, -1, {v(vT + 6)}"]
        self.poll("x1", xl, chk8)
        self.stamp("x1ld")
        A(f"ds_write2st64_b64 {v(vUW)}, {v(vY, 2)}, {v(vY + 2, 2)} offset0:0 offset1:9")
        A(f"ds_write2st64_b64 {v(vUW)}, {v(vY + 4, 2)}, {v(vY + 6, 2)} offset0:4 offset1:13")
        A("s_waitcnt lgkmcnt(0)")
        A("s_barrier")

        fl2 = [f"global_load_dword {v(vT + 4)}, {v(vWA + 2)}, {sp(sWS)} sc1",
               f"global_load_dword {v(vT + 5)}, {v(vWA + 2)}, {sp(sWS)} offset:{128 if i2 == 1 else 512} sc1"]
        if i2 == 1:
            for l in fl2:
                A(l)
        if i2 == 2:
            ones = v(K + 32, 4)
            A(f"s_cmp_eq_u32 s{sWAVE}, 0")
            A(f"s_cselect_b64 exec, {(1 << ((1 << KS) // 16)) - 1}, 0")
            A(f"global_store_dwordx4 {v(vWA + 7)}, {ones}, {sp(sWS)} sc1")
            A("s_mov_b64 exec, -1")
            A(f"global_store_dwordx4 {v(vWA + 5)}, {ones}, {sp(sWS)} sc1")
            A(f"global_store_dwordx4 {v(vWA + 5)}, {ones}, {sp(sWS)} offset:1024 sc1")
            A(f"global_store_dwordx4 {v(vWA + 6)}, {ones}, {sp(sWS)} sc1")
            A("s_waitcnt vmcnt(0)")
            A("s_mov_b64 exec, 0xff")
            A(f"global_store_dwordx4 {v(vWA + 3)}, {v(K + 28, 4)}, {sp(sWS)} sc1")
            A("s_mov_b64 exec, -1")
            self.stamp("init2")
        A("s_mov_b32 exec_hi, 0")
        A(f"global_load_dword v3, {v(vWA)}, {sp(sWSEL)}")
        A(f"global_load_dword v4, {v(vWA + 1)}, {sp(sWD)}")
        A("s_mov_b32 exec_hi, -1")
        if o.get("cpf2"):
            A(f"s_getpc_b64 {sp(sE)}")
            A("L_pc2:")
            A(f"v_lshlrev_b32 v7, 6, v0")
            A(f"v_min_u32 v7, L_codeend-L_pc2-4, v7")
            A(f"global_load_dword v8, v7, {sp(sE)}")
        if i2 == 1:
            A("s_waitcnt vmcnt(2)")
            self.poll("flag2", fl2, flchk)
            self.stamp("flag2")
        shp = o.get("shp", 1)
        if shp == 1:
            A("s_barrier")
        if i2 == 2:
            for l in fl2:
                A(l)
        A(f"v_mul_u32_u24 {v(vAUX)}, {RS}, {v(vT + 3)}")
        A(f"v_lshl_add_u32 {v(vAUX)}, {v(vT + 1)}, 4, {v(vAUX)}")
        A(f"s_lshl_b32 s{sTMP}, s{sL}, 5")
        A(f"s_add_u32 s{sTMP}, s{sTMP}, {W_REG + O_X2}")
        A(f"v_add_u32 {v(vAUX)}, s{sTMP}, {v(vAUX)}")
        A(f"v_add_u32 {v(vAUX + 1)}, {RS}, {v(vAUX)}")
        Tt, Xf = K + 40, K + 56
        Df = K + 72
        for k in range(8):
            A(f"v_lshlrev_b32 {v(Tt + 2 * k)}, 16, {v(vU + k)}")
            A(f"v_and_b32 {v(Tt + 2 * k + 1)}, s{sMASK}, {v(vU + k)}")
        A(f"v_lshlrev_b32 {v(Df)}, 16, {v(vD)}")
        A(f"v_and_b32 {v(Df + 1)}, s{sMASK}, {v(vD)}")
        A(f"v_lshlrev_b32 {v(Df + 2)}, 16, {v(vD + 1)}")
        A(f"v_and_b32 {v(Df + 3)}, s{sMASK}, {v(vD + 1)}")
        for k in range(8):
            c = k >> 1
            sel = "op_sel:[1,0] op_sel_hi:[1,1]" if c & 1 else "op_sel_hi:[0,1]"
            A(f"v_pk_mul_f32 {v(Tt + 2 * k, 2)}, {v(Df + (c & 2), 2)}, {v(Tt + 2 * k, 2)} {sel}")
        for k in range(8):
            A(f"v_cvt_pk_bf16_f32 {v(Xf + k)}, {v(Tt + 2 * k)}, {v(Tt + 2 * k + 1)}")
        for k in range(8):
            A(f"v_lshlrev_b32 {v(Tt + 2 * k)}, 16, {v(Xf + k)}")
            A(f"v_and_b32 {v(Tt + 2 * k + 1)}, s{sMASK}, {v(Xf + k)}")
        for r in range(4):
            for c in range(4):
                src = v(vX + 2 * r + (c >> 1))
                if c & 1:
                    A(f"v_and_b32 {v(Xf + 4 * c + r)}, s{sMASK}, {src}")
                else:
                    A(f"v_lshlrev_b32 {v(Xf + 4 * c + r)}, 16, {src}")
        vTW, vTR = vUW, vFL
        A(f"v_mul_u32_u24 {v(vTW)}, {4 * RSTR}, {v(vT + 1)}")
        A(f"v_add3_u32 {v(vTW)}, {v(vTW)}, {v(vT + 2)}, 0")
        A(f"v_add_u32 {v(vTW)}, {L_TILE}, {v(vTW)}")
        A(f"v_lshlrev_b32 {v(vTR)}, 4, {v(vLANE)}")
        A(f"s_lshl_b32 s{sTMP}, s{sL}, 13")
        A(f"s_lshl_b32 s{sTMP + 1}, s{sWAVE}, 11")
        A(f"s_add_u32 s{sTMP}, s{sTMP}, s{sTMP + 1}")
        A(f"v_add_u32 {v(vRD)}, s{sTMP}, {v(vTR)}")
        A(f"s_lshl_b32 s{sTMP}, s{sWAVE}, 10")
        A(f"s_add_u32 s{sTMP}, s{sTMP}, s{sOWN}")
        A(f"s_add_u32 s{sTMP}, s{sTMP}, {O_SLOT}")
        A(f"v_add_u32 {v(vKEY)}, s{sTMP}, {v(vTR)}")
        A(f"s_mul_i32 s{sTMP}, s{sWAVE}, {2 * RSTR}")
        A(f"s_add_u32 s{sTMP}, s{sTMP}, {L_TILE + 2 * TILE}")
        A(f"v_add_u32 {v(vTR + 2)}, s{sTMP}, {v(vTR)}")
        A(f"s_mul_i32 s{sTMP}, s{sWAVE}, {TILE}")
        A(f"s_add_u32 s{sTMP}, s{sTMP}, {L_TILE}")
        A(f"v_add_u32 {v(vTR)}, s{sTMP}, {v(vTR)}")
        self.stamp("shadow")
        if shp == 0:
            A("s_barrier")
        if i2 == 2:
            A("s_waitcnt vmcnt(0)")
            self.poll("flag2", fl2, flchk)
            self.stamp("flag2")
        A("s_barrier")
        self.stamp("b4b")
        for l in xl:
            A(l)
        A("s_waitcnt vmcnt(0)")
        self.poll("x2", xl, chk8)
        self.stamp("x2ld")

        for k in range(8):
            A(f"v_dot2_f32_bf16 {v(Tt + 2 * k)}, {v(vY + k)}, s{sSELLO}, {v(Tt + 2 * k)}")
            A(f"v_dot2_f32_bf16 {v(Tt + 2 * k + 1)}, {v(vY + k)}, s{sSELHI}, {v(Tt + 2 * k + 1)}")
        for k in range(8):
            A(f"v_cvt_pk_bf16_f32 {v(vY + k)}, {v(Tt + 2 * k)}, {v(Tt + 2 * k + 1)}")
        for k in range(8):
            A(f"v_dot2_f32_bf16 {v(Xf + 2 * k)}, {v(vY + k)}, s{sSELLO}, {v(Xf + 2 * k)}")
            A(f"v_dot2_f32_bf16 {v(Xf + 2 * k + 1)}, {v(vY + k)}, s{sSELHI}, {v(Xf + 2 * k + 1)}")
        vH = vX
        for cp in range(2):
            for r in range(4):
                A(f"v_cvt_pk_bf16_f32 {v(vH + 2 * r + cp)}, {v(Xf + 8 * cp + r)}, {v(Xf + 8 * cp + 4 + r)}")
        Rr = [K + 8 + i for i in range(4)]
        for cp in range(2):
            for r in range(4):
                A(f"v_dot2_f32_bf16 {v(V[r])}, {v(vH + 2 * r + cp)}, s{sONES}, {v(V[r]) if cp else 0}")
            for r in range(4):
                A(f"v_dot2_f32_bf16 {v(V[4 + r])}, {v(vH + 2 * r + cp)}, {v(vH + 2 * r + cp)}, {v(V[4 + r]) if cp else 0}")
            for r in range(4):
                A(f"v_dot2_f32_bf16 {v(Rr[r])}, {v(vH + 2 * r + cp)}, {v(vWR + cp)}, {v(Rr[r]) if cp else 0}")
        for i in range(4):
            A(f"v_add_f32_dpp {v(V[i])}, {v(V[i])}, {v(V[i])} row_ror:8 row_mask:0xf bank_mask:0x3")
        for i in range(4):
            A(f"v_add_f32_dpp {v(V[i])}, {v(V[i + 4])}, {v(V[i + 4])} row_ror:8 row_mask:0xf bank_mask:0xc")
        for i in range(2):
            A(f"v_add_f32_dpp {v(Rr[i])}, {v(Rr[i])}, {v(Rr[i])} row_shl:4 row_mask:0xf bank_mask:0x5")
        for i in range(2):
            A(f"v_add_f32_dpp {v(Rr[i])}, {v(Rr[i + 2])}, {v(Rr[i + 2])} row_shr:4 row_mask:0xf bank_mask:0xa")
        for i in range(2):
            A(f"v_add_f32_dpp {v(V[i])}, {v(V[i])}, {v(V[i])} row_shl:4 row_mask:0xf bank_mask:0x5")
        for i in range(2):
            A(f"v_add_f32_dpp {v(V[i])}, {v(V[i + 2])}, {v(V[i + 2])} row_shr:4 row_mask:0xf bank_mask:0xa")
        A(f"v_permlane32_swap_b32 {v(Rr[0])}, {v(Rr[1])}")
        A(f"v_and_b32 {v(K + 13)}, 0xffffff7f, {v(vSW)}")
        A(f"v_permlane32_swap_b32 {v(V[0])}, {v(V[1])}")
        A(f"v_add_f32 {v(Rr[0])}, {v(Rr[0])}, {v(Rr[1])}")
        A(f"v_add_f32 {v(V[0])}, {v(V[0])}, {v(V[1])}")
        A(f"s_mov_b64 vcc, {sp(sODD)}")
        A(f"v_add_f32_dpp {v(Rr[0])}, {v(Rr[0])}, {v(Rr[0])} row_ror:8 row_mask:0xf bank_mask:0xf")
        A(f"v_add_f32_dpp {v(V[0])}, {v(V[0])}, {v(V[0])} quad_perm:[2,3,0,1] row_mask:0xf bank_mask:0xf")
        A(f"v_mov_b32 {v(V[1])}, {v(V[0])}")
        A(f"v_add_f32_dpp {v(Rr[0])}, {v(Rr[0])}, {v(Rr[0])} quad_perm:[2,3,0,1] row_mask:0xf bank_mask:0xf")
        A(f"v_mov_b32 {v(Rr[1])}, {v(Rr[0])}")
        A(f"v_permlane16_swap_b32 {v(V[0])}, {v(V[1])}")
        A(f"v_add_f32 {v(V[0])}, {v(V[0])}, {v(V[1])}")
        A(f"v_permlane16_swap_b32 {v(Rr[0])}, {v(Rr[1])}")
        A(f"v_add_f32 {v(Rr[0])}, {v(Rr[0])}, {v(Rr[1])}")
        A(f"ds_write_b32 {v(vSW)}, {v(V[0])} offset:{L_RED2 - L_RED1}")
        A(f"ds_write_b32 {v(K + 13)}, {v(Rr[0])} offset:{L_RED2 - L_RED1 + 256}")
        A("s_waitcnt lgkmcnt(0)")
        A("s_barrier")
        self.stamp("b5")
        Hf, Dd = Xf, Tt
        A(f"ds_read_b128 {v(K, 4)}, {v(vRA)} offset:{L_RED2 - L_RED1}")
        A(f"ds_read_b128 {v(K + 4, 4)}, {v(vRA)} offset:{L_RED2 - L_RED1 + 128}")
        for r in range(4):
            A(f"ds_write_b64 {v(vTW)}, {v(vH + 2 * r, 2)} offset:{TILE + r * RSTR}")
        for r in range(4):
            for cp in range(2):
                A(f"v_lshlrev_b32 {v(Hf + 4 * r + 2 * cp)}, 16, {v(vH + 2 * r + cp)}")
                A(f"v_and_b32 {v(Hf + 4 * r + 2 * cp + 1)}, s{sMASK}, {v(vH + 2 * r + cp)}")
        A("s_waitcnt lgkmcnt(4)")
        self.row_stats(K, K + 4, K + 12, K + 13, K + 28)
        self.spread(K + 12, vNM, K + 24)
        self.spread(K + 13, vRI, K + 24)
        for k in range(8):
            r = k >> 1
            sel = "op_sel:[1,0] op_sel_hi:[1,1]" if r & 1 else "op_sel_hi:[0,1]"
            A(f"v_pk_add_f32 {v(Dd + 2 * k, 2)}, {v(vNM + (r & 2), 2)}, {v(Hf + 2 * k, 2)} {sel}")
        vX2 = vU
        for k in range(8):
            A(f"v_cvt_pk_bf16_f32 {v(vX2 + k)}, {v(Dd + 2 * k)}, {v(Dd + 2 * k + 1)}")
        for k in range(8):
            A(f"v_lshlrev_b32 {v(Dd + 2 * k)}, 16, {v(vX2 + k)}")
            A(f"v_and_b32 {v(Dd + 2 * k + 1)}, s{sMASK}, {v(vX2 + k)}")
        for k in range(8):
            r = k >> 1
            sel = "op_sel:[1,0] op_sel_hi:[1,1]" if r & 1 else "op_sel_hi:[0,1]"
            A(f"v_pk_mul_f32 {v(Dd + 2 * k, 2)}, {v(vRI + (r & 2), 2)}, {v(Dd + 2 * k, 2)} {sel}")
        for k in range(8):
            A(f"v_cvt_pk_bf16_f32 {v(vX2 + k)}, {v(Dd + 2 * k)}, {v(Dd + 2 * k + 1)}")
        for r in range(4):
            A(f"ds_write_b64 {v(vTW)}, {v(vX2 + 2 * r, 2)} offset:{r * RSTR}")
        for k in range(8):
            A(f"v_dot2_f32_bf16 {v(Hf + 2 * k)}, {v(vX2 + k)}, s{sSELLO}, {v(Hf + 2 * k)}")
            A(f"v_dot2_f32_bf16 {v(Hf + 2 * k + 1)}, {v(vX2 + k)}, s{sSELHI}, {v(Hf + 2 * k + 1)}")
        vO = vY
        A(f"v_mov_b32 {v(vT + 4)}, {L_REDK}")
        for k in range(8):
            A(f"v_cvt_pk_bf16_f32 {v(vO + k)}, {v(Hf + 2 * k)}, {v(Hf + 2 * k + 1)}")
        for r in range(4):
            A(f"ds_write_b64 {v(vTW)}, {v(vO + 2 * r, 2)} offset:{2 * TILE + r * RSTR}")
        A("s_waitcnt lgkmcnt(0)")
        self.stamp("norm")
        A("s_barrier")
        A(f"ds_read_b32 {v(K)}, {v(vT + 4)} offset:4")
        A(f"ds_read_b128 {v(vO, 4)}, {v(vTR + 2)}")
        A(f"ds_read_b128 {v(vO + 4, 4)}, {v(vTR + 2)} offset:{RSTR}")
        A(f"s_lshl_b32 s{sTMP + 1}, s{sWAVE}, 1")
        A("s_waitcnt lgkmcnt(2)")
        A(f"v_readfirstlane_b32 s{sBEST}, {v(K)}")
        A(f"s_andn2_b32 s{sTMP}, 7, s{sBEST}")
        A(f"s_mul_i32 s{sTMP + 2}, s{sTMP}, {RSTR}")
        A(f"s_sub_u32 s{sTMP + 1}, s{sTMP}, s{sTMP + 1}")
        A(f"v_add_u32 {v(vTR)}, s{sTMP + 2}, {v(vTR)}")
        A(f"ds_read_b128 {v(K + 4, 4)}, {v(vTR)}")
        A(f"s_cmp_lt_u32 s{sWAVE}, 2")
        A("s_cselect_b64 exec, -1, 0")
        A("s_waitcnt lgkmcnt(0)")
        A(f"global_store_dwordx4 {v(vKEY)}, {v(K + 4, 4)}, {sp(sWS)} sc1")
        self.stamp("slot")
        osc = " sc1" if o.get("outsc", 1) == 1 else ""
        olate = o.get("olate", 0)
        if not olate:
            for i in range(2):
                A(f"s_cmp_eq_u32 s{sTMP + 1}, {i}")
                A("s_cselect_b64 exec, 0, -1")
                A(f"global_store_dwordx4 {v(vRD)}, {v(vO + 4 * i, 4)}, {sp(sOUT)} offset:{1024 * i}{osc}")
        A("s_mov_b64 exec, -1")
        self.stamp("outst")
        A("s_barrier")
        A(f"ds_read_b32 {v(K)}, {v(vT + 4)}")
        A(f"v_mov_b32 {v(vT + 4)}, s{sG}")
        A(f"v_mov_b32 {v(vT + 5)}, 0")
        A("s_waitcnt lgkmcnt(0)")
        A(f"v_readfirstlane_b32 s{sWIN}, {v(K)}")
        A(f"s_cmp_eq_u32 s{sWIN}, s{sBEST}")
        if olate:
            A(f"s_cselect_b32 s{sTMP + 1}, s{sTMP + 1}, 8")
        else:
            A(f"s_cselect_b32 s{sTMP + 1}, 8, s{sTMP + 1}")
        for i in range(2):
            A(f"s_cmp_eq_u32 s{sTMP + 1}, {i}")
            A("s_cselect_b64 exec, 0, -1" if olate else "s_cselect_b64 exec, -1, 0")
            A(f"global_store_dwordx4 {v(vRD)}, {v(vO + 4 * i, 4)}, {sp(sOUT)} offset:{1024 * i}{osc}")
        A(f"s_or_b32 s{sTMP}, s{sL}, s{sWAVE}")
        A(f"s_cmp_eq_u32 s{sTMP}, 0")
        A("s_cselect_b64 exec, 1, 0")
        A(f"global_store_dword {v(vT + 5)}, {v(vT + 4)}, {sp(sWS)} sc1")
        A(f"s_cmp_lt_u32 s{sPOS}, 14")
        A("s_cbranch_scc0 L_fin")
        A("s_barrier")
        A("L_fin:")
        self.finish("R")

    def chans(self):
        A = self.A
        o = self.o
        vLANE = 1
        vAA, vBA, vEW, vER, vRA = 4, 12, 13, 14, 15
        vKA0, vKA1, vKB, vPW0, vPW1 = 16, 17, 18, 19, 20
        vP = 24
        vT = 28
        vACC = 40
        vA0, vA1, vB0, vB1 = 72, 104, 136, 168
        K = 72
        vWD = 200
        A("L_chan:")
        self.stamp("karg")
        if o.get("i2", 2) == 1:
            A(f"s_load_dword s{sG}, {sp(sWS)}, 0")
        A(f"s_sub_u32 s{sWAVE}, s{sWAVE}, 4")
        A(f"s_mov_b32 s{sMASK}, 0xffff0000")
        A(f"s_mul_i32 s{sOWN}, s{sL}, {RS}")
        A(f"s_add_u32 s{sOWN}, s{sOWN}, {W_REG}")
        vJ, vGq = vT + 4, vT + 5
        A(f"v_and_b32 {v(vJ)}, 15, {v(vLANE)}")
        A(f"v_lshrrev_b32 {v(vGq)}, 4, {v(vLANE)}")
        A(f"s_lshr_b32 s{sT0}, s{sWAVE}, 1")
        A(f"s_and_b32 s{sT1}, s{sWAVE}, 1")
        A(f"v_and_b32 {v(vT)}, 7, {v(vLANE)}")
        A(f"v_lshlrev_b32 {v(vRA)}, 4, {v(vT)}")
        A(f"v_add_u32 {v(vRA)}, {L_RED1}, {v(vRA)}")
        A(f"s_mul_i32 s{sTMP}, s{sT0}, {PC}")
        A(f"s_lshl_b32 s{sTMP + 1}, s{sT1}, 7")
        A(f"s_add_u32 s{sTMP}, s{sTMP}, s{sTMP + 1}")
        A(f"s_add_u32 s{sTMP}, s{sTMP}, {L_P + 4 * 26}")
        A(f"v_lshlrev_b32 {v(vT)}, 3, {v(vGq)}")
        A(f"v_sub_u32 {v(vT)}, {v(vJ)}, {v(vT)}")
        A(f"v_lshl_add_u32 {v(vAA)}, {v(vT)}, 2, s{sTMP}")
        for m in range(1, 8):
            A(f"v_add_u32 {v(vAA + m)}, {1024 * m}, {v(vAA)}")
        A(f"s_mul_i32 s{sTMP}, s{sT0}, {UC}")
        A(f"s_lshl_b32 s{sTMP + 1}, s{sT1}, 6")
        A(f"s_sub_u32 s{sTMP}, s{sTMP}, s{sTMP + 1}")
        A(f"s_add_u32 s{sTMP}, s{sTMP}, {L_U + 64}")
        A(f"v_lshl_add_u32 {v(vT)}, {v(vJ)}, 1, {v(vGq)}")
        A(f"v_lshl_add_u32 {v(vBA)}, {v(vT)}, 4, s{sTMP}")
        A(f"v_lshl_add_u32 {v(vT)}, {v(vJ)}, 2, {v(vGq)}")
        A(f"v_lshrrev_b32 {v(vT + 1)}, 3, {v(vT)}")
        A(f"v_add_u32 {v(vT)}, {v(vT)}, {v(vT + 1)}")
        A(f"s_mul_i32 s{sTMP}, s{sWAVE}, {8 * TBS}")
        A(f"v_lshl_add_u32 {v(vEW)}, {v(vT)}, 4, s{sTMP}")
        A(f"v_lshrrev_b32 {v(vT + 1)}, 3, {v(vLANE)}")
        A(f"v_add_u32 {v(vT)}, {v(vLANE)}, {v(vT + 1)}")
        A(f"s_mul_i32 s{sTMP}, s{sWAVE}, {2 * TBS}")
        A(f"v_lshl_add_u32 {v(vER)}, {v(vT)}, 4, s{sTMP}")
        KS = o.get("ks", 5)
        for k in range(4):
            A(f"v_mov_b32 {v(vACC + k)}, -1")
        A(f"s_add_u32 s{sTMP}, s{sOWN}, 4096")
        A(f"v_lshl_add_u32 {v(vACC + 4)}, v0, 4, s{sTMP}")
        A(f"s_lshl_b32 s{sTMP}, s{sL}, {KS}")
        A(f"s_add_u32 s{sTMP}, s{sTMP}, {W_KEY}")
        A(f"v_lshl_add_u32 {v(22)}, {v(vLANE)}, 4, s{sTMP}")
        ones = v(vACC, 4)
        i2 = o.get("i2", 2)
        if not i2:
            A(f"s_cmp_eq_u32 s{sWAVE}, 0")
            A(f"s_cselect_b64 exec, {(1 << ((1 << KS) // 16)) - 1}, 0")
            A(f"global_store_dwordx4 {v(22)}, {ones}, {sp(sWS)} sc1")
            A("s_mov_b64 exec, -1")
        A(f"global_store_dwordx4 {v(vACC + 4)}, {ones}, {sp(sWS)} offset:-4096 sc1")
        A(f"global_store_dwordx4 {v(vACC + 4)}, {ones}, {sp(sWS)} sc1")
        late = []
        if i2 == 1:
            A(f"v_add_u32 {v(vACC + 5)}, 8192, {v(vACC + 4)}")
            A(f"v_add_u32 {v(vACC + 6)}, 12288, {v(vACC + 4)}")
            A(f"s_lshl_b32 s{sTMP}, s{sL}, 7")
            A(f"s_add_u32 s{sTMP}, s{sTMP}, {W_FLAG2}")
            A(f"v_lshl_add_u32 {v(23)}, {v(vLANE)}, 4, s{sTMP}")
            late = [[f"global_store_dwordx4 {v(vACC + 5)}, {ones}, {sp(sWS)} offset:-4096 sc1"],
                    [f"global_store_dwordx4 {v(vACC + 5)}, {ones}, {sp(sWS)} sc1"],
                    [f"global_store_dwordx4 {v(vACC + 6)}, {ones}, {sp(sWS)} sc1",
                     f"s_cmp_eq_u32 s{sWAVE}, 0",
                     f"s_cselect_b64 exec, {(1 << ((1 << KS) // 16)) - 1}, 0",
                     f"global_store_dwordx4 {v(22)}, {ones}, {sp(sWS)} sc1",
                     "s_mov_b64 exec, -1"]]
        if not i2:
            A(f"v_add_u32 {v(vACC + 5)}, 8192, {v(vACC + 4)}")
            A(f"v_add_u32 {v(vACC + 6)}, 12288, {v(vACC + 4)}")
            A(f"global_store_dwordx4 {v(vACC + 5)}, {ones}, {sp(sWS)} offset:-4096 sc1")
            A(f"global_store_dwordx4 {v(vACC + 5)}, {ones}, {sp(sWS)} sc1")
            A(f"global_store_dwordx4 {v(vACC + 6)}, {ones}, {sp(sWS)} sc1")
        vg, vr = vT, vT + 1
        A(f"v_lshrrev_b32 {v(vg)}, 2, {v(vJ)}")
        A(f"v_and_b32 {v(vr)}, 3, {v(vJ)}")
        A(f"s_cmp_eq_u32 s{sT1}, 0")
        A("s_cbranch_scc0 L_rows_hi")
        A(f"v_mov_b32 {v(vKA0)}, {v(vJ)}")
        A(f"v_lshl_add_u32 {v(vKA1)}, {v(vg)}, 1, {v(vr)}")
        A(f"v_add_u32 {v(vKA1)}, 16, {v(vKA1)}")
        A(f"v_add_u32 {v(vT + 2)}, -4, {v(vJ)}")
        A(f"v_and_b32 {v(vT + 2)}, 15, {v(vT + 2)}")
        A(f"v_cmp_eq_u32 vcc, 3, {v(vr)}")
        A(f"v_cndmask_b32 {v(vKA1)}, {v(vKA1)}, {v(vT + 2)}, vcc")
        A(f"v_lshl_add_u32 {v(vPW0)}, {v(vJ)}, 2, {v(vGq)}")
        A(f"v_lshlrev_b32 {v(vPW0)}, 4, {v(vPW0)}")
        A(f"v_add_u32 {v(vPW1)}, 1024, {v(vPW0)}")
        A("s_branch L_rows_done")
        A("L_rows_hi:")
        A(f"v_lshrrev_b32 {v(vT + 2)}, 1, {v(vg)}")
        A(f"v_lshl_add_u32 {v(vKA0)}, {v(vg)}, 1, {v(vr)}")
        A(f"v_add3_u32 {v(vKA0)}, {v(vKA0)}, {v(vT + 2)}, 25")
        A(f"v_sub_u32 {v(vKA1)}, {v(vJ)}, {v(vg)}")
        A(f"v_add_u32 {v(vKA1)}, 35, {v(vKA1)}")
        A(f"v_lshrrev_b32 {v(vT + 2)}, 1, {v(vGq)}")
        A(f"v_lshl_add_u32 {v(vPW0)}, {v(vT + 2)}, 4, {v(vJ)}")
        A(f"v_and_b32 {v(vT + 2)}, 1, {v(vGq)}")
        A(f"v_lshl_add_u32 {v(vPW0)}, {v(vPW0)}, 1, {v(vT + 2)}")
        A(f"v_lshlrev_b32 {v(vPW0)}, 5, {v(vPW0)}")
        A(f"v_add_u32 {v(vPW0)}, 2048, {v(vPW0)}")
        A(f"v_lshlrev_b32 {v(vPW1)}, 6, {v(vLANE)}")
        A(f"v_add_u32 {v(vPW1)}, 4096, {v(vPW1)}")
        A("L_rows_done:")
        A(f"s_mul_i32 s{sTMP}, s{sT0}, {PC}")
        A(f"s_add_u32 s{sTMP}, s{sTMP}, {L_P + 64}")
        A(f"v_add_u32 {v(vPW0)}, s{sTMP}, {v(vPW0)}")
        A(f"v_add_u32 {v(vPW1)}, s{sTMP}, {v(vPW1)}")
        A(f"s_mul_i32 s{sTMP}, s{sT0}, {TABC}")
        A(f"v_lshl_add_u32 {v(vT + 2)}, {v(vGq)}, 4, s{sTMP}")
        A(f"s_movk_i32 s{sTMP + 1}, {ROWB}")
        A(f"v_mad_u32_u24 {v(vKA0)}, {v(vKA0)}, s{sTMP + 1}, {v(vT + 2)}")
        A(f"v_mad_u32_u24 {v(vKA1)}, {v(vKA1)}, s{sTMP + 1}, {v(vT + 2)}")
        A(f"v_mad_u32_u24 {v(vKB)}, {v(vJ)}, s{sTMP + 1}, {v(vT + 2)}")
        A(f"s_lshl_b32 s{sTMP + 1}, s{sT1}, 8")
        A(f"s_add_u32 m0, s{sTMP}, s{sTMP + 1}")
        A(f"s_mul_i32 s{sF}, s{sXCD}, 14")
        A(f"s_add_u32 s{sF}, s{sF}, s{sPOS}")
        A(f"s_lshl_b32 s{sTMP + 1}, s{sF}, 14")
        A(f"s_add_u32 s{sTMP + 1}, s{sTMP + 1}, 4096")
        A(f"v_lshl_add_u32 v2, v0, 2, s{sTMP + 1}")
        A(f"v_add_u32 v21, 8192, v2")

        L2E = 1.4426950408889634
        l2e_hi = struct.unpack("<f", struct.pack("<f", L2E))[0]
        l2e_lo = L2E - l2e_hi
        a, b = K, K + 2
        A(f"s_mov_b32 s{sE}, {hex(f2u(l2e_hi))}")
        A(f"s_mov_b32 s{sE + 1}, {hex(f2u(l2e_lo))}")
        A(f"s_waitcnt vmcnt({2 if i2 else 5}) lgkmcnt(0)")
        self.stamp("par")
        A(f"s_lshl_b32 s{sTMP}, s{sDT}, 16")
        A(f"s_and_b32 s{sTMP + 1}, s{sDT}, s{sMASK}")
        A(f"s_cmp_lt_u32 s{sWAVE}, 2")
        A(f"s_cselect_b32 s{sDT}, s{sTMP}, s{sTMP + 1}")
        A(f"v_lshlrev_b32 {v(a)}, 16, {v(vP)}")
        A(f"v_mov_b32 {v(a + 1)}, s{sDT}")
        A(f"v_pk_mul_f32 {v(b, 2)}, {v(a, 2)}, {sp(sE)} op_sel_hi:[1,0]")
        A(f"v_pk_fma_f32 {v(b + 2, 2)}, {v(a, 2)}, {sp(sE)}, {v(b, 2)} op_sel_hi:[1,0,1] neg_lo:[0,0,1] neg_hi:[0,0,1]")
        A(f"v_exp_f32 {v(b)}, {v(b)}")
        A(f"v_exp_f32 {v(b + 1)}, {v(b + 1)}")
        A(f"v_pk_fma_f32 {v(b + 2, 2)}, {sp(sE)}, {v(a, 2)}, {v(b + 2, 2)} op_sel:[1,0,0] op_sel_hi:[1,1,1]")
        A(f"v_mul_f32 {v(b + 2)}, {hex(f2u(0.6931471805599453))}, {v(b + 2)}")
        A(f"v_mul_f32 {v(b + 3)}, {hex(f2u(0.6931471805599453))}, {v(b + 3)}")
        A(f"v_pk_fma_f32 {v(b, 2)}, {v(b, 2)}, {v(b + 2, 2)}, {v(b, 2)}")
        A(f"v_cvt_pk_bf16_f32 {v(a)}, {v(b)}, {v(b + 1)}")
        vdt, va2, vph = K + 6, K + 7, K + 8
        A(f"v_and_b32 {v(vdt)}, s{sMASK}, {v(a)}")
        A(f"v_lshlrev_b32 {v(va2)}, 16, {v(a)}")
        A(f"v_lshlrev_b32 {v(vph)}, 16, {v(vP + 1)}")
        A(f"v_mul_f32 {v(va2)}, {v(va2)}, {v(vdt)}")
        A(f"v_mul_f32 {v(vph)}, {v(vph)}, {v(vdt)}")
        A(f"v_mul_f32 {v(va2)}, {hex(f2u(-l2e_hi))}, {v(va2)}")
        A(f"v_mul_f32 {v(vph)}, 0.15915494, {v(vph)}")
        Wp = {p: K + 10 + 2 * p for p in range(1, 17)}
        Zp = {p: K + 42 + 2 * p for p in range(1, 8)}
        G = [K + 58, K + 60]
        TT = [K + 62, K + 64, K + 66, K + 68]
        RR = [K + 70, K + 72, K + 74, K + 76]
        CV = K + 80
        A(f"v_add_f32 {v(vdt)}, {v(vdt)}, {v(vdt)}")
        A(f"v_lshlrev_b32 {v(G[0])}, 16, {v(vP + 2)}")
        A(f"v_lshlrev_b32 {v(G[0] + 1)}, 16, {v(vP + 3)}")
        A(f"v_mul_f32 {v(G[0])}, {v(G[0])}, {v(vdt)}")
        A(f"v_mul_f32 {v(G[0] + 1)}, {v(G[0] + 1)}, {v(vdt)}")
        for n, (dst, sc) in enumerate(((Wp[1], 1.0), (Wp[16], 16.0), (Zp[1], 256.0))):
            t = TT[n]
            if sc == 1.0:
                A(f"v_exp_f32 {v(t)}, {v(va2)}")
                A(f"v_fract_f32 {v(t + 1)}, {v(vph)}")
            else:
                A(f"v_mul_f32 {v(t)}, {hex(f2u(sc))}, {v(va2)}")
                A(f"v_mul_f32 {v(t + 1)}, {hex(f2u(sc))}, {v(vph)}")
                A(f"v_exp_f32 {v(t)}, {v(t)}")
                A(f"v_fract_f32 {v(t + 1)}, {v(t + 1)}")
            A(f"v_cos_f32 {v(dst)}, {v(t + 1)}")
            A(f"v_sin_f32 {v(dst + 1)}, {v(t + 1)}")
        for n, dst in enumerate((Wp[1], Wp[16], Zp[1])):
            A(f"v_pk_mul_f32 {v(dst, 2)}, {v(dst, 2)}, {v(TT[n], 2)} op_sel_hi:[1,0]")
        jobs = [(1, Wp[1], None, None, 0), (16, Zp[1], None, None, 0), (47, G[0], None, None, 1)]
        wj = []
        for p in range(2, 16):
            hb = 1 << (p.bit_length() - 1)
            x, y = (p // 2, p // 2) if hb == p else (hb, p - hb)
            wj.append((p, Wp[p], Wp[x], Wp[y], 0))
        gj = [(47 + j, G[j & 1], G[(j - 1) & 1], Wp[16], 1) for j in range(1, 16)]
        zrow = {2: 25, 3: 30, 4: 35, 5: 38, 6: 41, 7: 44}
        zj = []
        for p in range(2, 8):
            hb = 1 << (p.bit_length() - 1)
            x, y = (p // 2, p // 2) if hb == p else (hb, p - hb)
            zj.append((zrow[p], Zp[p], Zp[x], Zp[y], 0))
        tj = [(16 + k, None, Zp[1], Wp[2 * k], 0) for k in range(1, 9)]
        for z in (2, 3):
            tj += [(zrow[z] + k, None, Zp[z], Wp[4 * k], 0) for k in range(1, 5)]
        for z in (4, 5, 6, 7):
            tj += [(zrow[z] + k, None, Zp[z], Wp[8 * k], 0) for k in range(1, 3)]
        first = []
        for i in range(max(len(wj), len(gj), len(zj))):
            for q in (wj, gj, zj):
                if i < len(q):
                    first.append(q[i])
        jobs += first + tj
        A(f"v_mov_b32 {v(CV + 15)}, 0x3f80")
        pend = [(0, CV + 15)]
        slot = 0
        nb = 0
        b1_at = o.get("b1_at", 0)
        batch = o.get("batch", 6)

        def do_b1():
            self.stamp("setup")
            A("s_waitcnt vmcnt(0)")
            A("s_barrier")
            self.stamp("b1")
        if b1_at == 0:
            do_b1()
        for n, (row, dst, x, y, conj) in enumerate(jobs):
            if x is not None:
                if dst is None:
                    dst = RR[n & 3]
                for ins in self.cmul(dst, x, y, TT[n & 3]):
                    A(ins)
            A(f"v_cvt_pk_bf16_f32 {v(CV + slot)}, {v(dst)}, {'-' if conj else ''}{v(dst + 1)}")
            pend.append((row, CV + slot))
            slot = (slot + 1) % 15
            if len(pend) >= batch or n == len(jobs) - 1:
                for row_, reg in pend:
                    A(f"ds_write_addtid_b32 {v(reg)} offset:{row_ * ROWB}")
                pend = []
                nb += 1
                if nb == b1_at:
                    do_b1()
                if late and nb >= o.get("i2at", 0) + 1:
                    for l in late.pop(0):
                        A(l)
        if i2 == 1:
            A(f"s_add_u32 s{sG}, s{sG}, 0x9e3779b9")
            for k in range(4):
                A(f"v_mov_b32 {v(vACC + 8 + k)}, s{sG}")
        A("s_waitcnt lgkmcnt(0)")
        self.stamp("kgen1")
        A("s_barrier")
        fB, fA0, fA1 = K, K + 32, K + 64
        for s in range(4):
            A(f"ds_read_b128 {v(fB + 4 * s, 4)}, {v(vKB)} offset:{47 * ROWB + 64 * s}")
            A(f"ds_read_b128 {v(fA0 + 4 * s, 4)}, {v(vKA0)} offset:{64 * s}")
            A(f"ds_read_b128 {v(fA1 + 4 * s, 4)}, {v(vKA1)} offset:{64 * s}")
        D0, D1 = vACC + 16, vACC + 20
        for s in range(8):
            s2 = s + 4
            A(f"s_waitcnt lgkmcnt({9 if s2 < 8 else 3 * (7 - s)})")
            c0 = "0" if s == 0 else v(D0, 4)
            c1 = "0" if s == 0 else v(D1, 4)
            A(f"v_mfma_f32_16x16x32_bf16 {v(D0, 4)}, {v(fA0 + 4 * s, 4)}, {v(fB + 4 * s, 4)}, {c0}")
            if s2 < 8:
                A(f"ds_read_b128 {v(fB + 4 * s2, 4)}, {v(vKB)} offset:{47 * ROWB + 64 * s2}")
                A(f"ds_read_b128 {v(fA0 + 4 * s2, 4)}, {v(vKA0)} offset:{64 * s2}")
            A(f"v_mfma_f32_16x16x32_bf16 {v(D1, 4)}, {v(fA1 + 4 * s, 4)}, {v(fB + 4 * s, 4)}, {c1}")
            if s2 < 8:
                A(f"ds_read_b128 {v(fA1 + 4 * s2, 4)}, {v(vKA1)} offset:{64 * s2}")
        E = K + 96
        A(f"s_bitcmp1_b32 s{sWAVE}, 0")
        A(f"v_cmp_eq_u32 vcc, 0, {v(vLANE)}")
        A("s_nop 5")
        A("s_cbranch_scc0 L_exp_lo")
        seq2 = ["aa", "aa", "aa", "ba", "bb", "bb", "cb", "cc"]
        seq3 = ["aa", "aa", "aa", "aa", "aa", "ba", "bb", "bb", "bb", "bb", "cb", "cc", "cc", "cc"]
        ix = {"a": 0, "b": 1, "c": 2}
        for k, s in enumerate(seq3):
            A(f"v_cvt_pk_bf16_f32 {v(E + 8 + k)}, {v(D1 + ix[s[0]])}, {v(D1 + ix[s[1]])}")
        for k, w in enumerate((0, 4, 6, 10)):
            A(f"ds_write_b128 {v(vPW1)}, {v(E + 8 + w, 4)} offset:{16 * k}")
        for k, s in enumerate(seq2):
            A(f"v_cvt_pk_bf16_f32 {v(E + k)}, {v(D0 + ix[s[0]])}, {v(D0 + ix[s[1]])}")
        A(f"ds_write_b128 {v(vPW0)}, {v(E, 4)}")
        A(f"ds_write_b128 {v(vPW0)}, {v(E + 4, 4)} offset:16")
        A("L_exp_done:")
        T = self.tail
        T("L_exp_lo:")
        T(f"v_mov_b32_dpp {v(D1 + 3)}, {v(D1 + 3)} row_ror:1 row_mask:0x1 bank_mask:0xf")
        T(f"v_cvt_pk_bf16_f32 {v(E + 1)}, {v(D0 + 1)}, {v(D0)}")
        T(f"v_cvt_pk_bf16_f32 {v(E + 2)}, {v(D0 + 2)}, {v(D0 + 1)}")
        T(f"v_cvt_pk_bf16_f32 {v(E + 3)}, {v(D0 + 3)}, {v(D0 + 2)}")
        T(f"v_cndmask_b32 {v(E + 8)}, {v(D1 + 3)}, 0, vcc")
        T(f"v_cndmask_b32 {v(E + 9)}, {v(D1)}, {v(D1 + 3)}, vcc")
        T(f"v_cvt_pk_bf16_f32 {v(E)}, {v(D0)}, {v(E + 8)}")
        T(f"v_cvt_pk_bf16_f32 {v(E + 4)}, {v(D1)}, {v(E + 9)}")
        T(f"v_cvt_pk_bf16_f32 {v(E + 5)}, {v(D1)}, {v(D1)}")
        T(f"v_cvt_pk_bf16_f32 {v(E + 6)}, {v(D1 + 1)}, {v(D1)}")
        T(f"v_cvt_pk_bf16_f32 {v(E + 7)}, {v(D1 + 2)}, {v(D1 + 1)}")
        T(f"ds_write_b128 {v(vPW0)}, {v(E, 4)}")
        T(f"ds_write_b128 {v(vPW1)}, {v(E + 4, 4)}")
        T("s_branch L_exp_done")
        A("s_waitcnt lgkmcnt(0)")
        if i2 == 1:
            A("s_waitcnt vmcnt(0)")
        self.stamp("kgen2")
        A("s_barrier")
        if i2 == 1:
            A(f"s_cmp_eq_u32 s{sWAVE}, 0")
            A("s_cselect_b64 exec, 0xff, 0")
            A(f"global_store_dwordx4 {v(23)}, {v(vACC + 8, 4)}, {sp(sWS)} sc1")
            A("s_mov_b64 exec, -1")

        def rdA(buf, rho, m):
            return [f"ds_read2_b32 {v(buf + 4 * m, 2)}, {v(vAA + m)} offset0:{64 * rho + 6} offset1:{64 * rho + 4}",
                    f"ds_read2_b32 {v(buf + 4 * m + 2, 2)}, {v(vAA + m)} offset0:{64 * rho + 2} offset1:{64 * rho}"]

        def rdB(buf, rho, n):
            return [f"ds_read_b128 {v(buf + 4 * n, 4)}, {v(vBA)} offset:{128 * (3 - rho) + 512 * (7 - n)}"]

        for m in range(8):
            for l in rdA(vA0, 0, m):
                A(l)
        A(f"s_lshl_b32 s{sTMP}, s{sWAVE}, 11")
        A(f"s_add_u32 s{sTMP}, s{sTMP}, s{sOWN}")
        A(f"s_add_u32 s{sTMP}, s{sTMP}, {O_X2}")
        A(f"v_lshl_add_u32 {v(vT)}, {v(vLANE)}, 4, s{sTMP}")
        A(f"v_mov_b32 {v(vT + 3)}, {L_REDK}")
        vF = 216
        A(f"s_bitcmp1_b32 s{sWAVE}, 0")
        A(f"s_cselect_b64 {sp(sWSEL)}, {sp(sWU)}, {sp(sWG)}")
        A(f"s_lshr_b32 s{sTMP + 1}, s{sWAVE}, 1")
        A(f"s_mul_i32 s{sTMP + 1}, s{sTMP + 1}, {256 * 3584}")
        A(f"s_lshl_b32 s{sTMP + 2}, s{sF}, 5")
        A(f"s_add_u32 s{sTMP + 1}, s{sTMP + 1}, s{sTMP + 2}")
        A(f"v_lshrrev_b32 {v(vF + 3)}, 1, {v(vLANE)}")
        A(f"v_and_b32 {v(vF + 4)}, 1, {v(vLANE)}")
        A(f"v_mul_u32_u24 {v(vF)}, {8 * 3584}, {v(vF + 3)}")
        A(f"v_lshl_add_u32 {v(vF)}, {v(vF + 4)}, 4, {v(vF)}")
        A(f"v_add_u32 {v(vF)}, s{sTMP + 1}, {v(vF)}")
        A(f"v_add_u32 {v(vF + 2)}, {7 * 3584}, {v(vF)}")
        A(f"v_add_u32 {v(vF + 1)}, {4 * 3584}, {v(vF)}")
        A(f"v_add_u32 {v(vF)}, 3584, {v(vF)}")
        A("s_waitcnt lgkmcnt(0)")
        self.stamp("apre")
        A("s_barrier")
        self.stamp("b3")
        if o.get("prio", 1):
            A("s_setprio 2")

        bufA, bufB = [vA0, vA1], [vB0, vB1]
        for n in range(7, -1, -1):
            for l in rdB(vB0, 0, n):
                A(l)
        started = set()
        for rho in range(4):
            a_, b_ = bufA[rho & 1], bufB[rho & 1]
            order = [(n - 7 + tb, tb, n) for n in range(7, -1, -1) for tb in range(7 - n, 8)]
            if rho == 3:
                order = [(n - 7 + tb, tb, n) for tb in range(8) for n in range(7 - tb, 8)]
            fill = []
            if rho + 1 < 4:
                nb_, na_ = bufB[(rho + 1) & 1], bufA[(rho + 1) & 1]
                for m in range(8):
                    fill += rdB(nb_, rho + 1, 7 - m)
                    fill += rdA(na_, rho + 1, m)
            issued = 0
            seen = set()
            done_at = {}
            for i, (m, tb, n) in enumerate(order):
                done_at[tb] = i
            for i, (m, tb, n) in enumerate(order):
                if rho == 0 and n not in seen:
                    A(f"s_waitcnt lgkmcnt({min(15, n + issued)})")
                    seen.add(n)
                elif i == 0:
                    A("s_waitcnt lgkmcnt(0)")
                acc = v(vACC + 4 * tb, 4)
                c = acc if tb in started else "0"
                started.add(tb)
                A(f"v_mfma_f32_16x16x32_bf16 {acc}, {v(a_ + 4 * m, 4)}, {v(b_ + 4 * n, 4)}, {c}")
                if i >= 1 and fill:
                    A(fill.pop(0))
                    issued += 1
                if rho == 3:
                    for t in range(7):
                        if done_at[t] + 8 == i or (i == len(order) - 1 and done_at[t] + 8 > i):
                            A(f"ds_write_b128 {v(vEW)}, {v(vACC + 4 * t, 4)} offset:{t * TBS}")
            assert not fill
            if o.get("cyc") and rho < 3:
                self.stamp(f"cls{rho}")
        A(f"ds_write_b128 {v(vEW)}, {v(vACC + 28, 4)} offset:{7 * TBS}")
        self.stamp("conv")
        A("s_waitcnt lgkmcnt(0)")
        A("s_barrier")
        for i in range(2):
            for s in range(4):
                A(f"ds_read_b128 {v(K + 16 * i + 4 * s, 4)}, {v(vER)} offset:{s * 8 * TBS + i * TBS}")
        for i in range(2):
            A(f"s_waitcnt lgkmcnt({4 * (1 - i)})")
            b0 = K + 16 * i
            for c in range(2):
                for h in range(2):
                    A(f"v_pk_add_f32 {v(b0 + 8 * c + 2 * h, 2)}, {v(b0 + 8 * c + 2 * h, 2)}, {v(b0 + 8 * c + 4 + 2 * h, 2)}")
            for c in range(2):
                for h in range(2):
                    A(f"v_cvt_pk_bf16_f32 {v(K + 32 + 4 * i + 2 * c + h)}, {v(b0 + 8 * c + 2 * h)}, {v(b0 + 8 * c + 2 * h + 1)}")
            A(f"global_store_dwordx4 {v(vT)}, {v(K + 32 + 4 * i, 4)}, {sp(sWS)} offset:{1024 * i} sc1")
        self.stamp("x2st")
        L2E = 1.4426950408889634
        vWG, WGp, WDp, vY = 120, 152, 184, 112
        n1 = o.get("st1", 4)
        wl = [f"global_load_dwordx4 {v(vWG + 4 * k, 4)}, {v(vF + k // 3)}, {sp(sWSEL)} offset:{(k % 3 - 1) * 3584}" for k in range(8)]
        wdl = [f"global_load_dword {v(vWD + k)}, {'v21' if k >> 3 else 'v2'}, {sp(sWD)} offset:{((k & 7) - 4) * 1024}" for k in range(16)]
        A(f"s_add_u32 s{sTMP}, s{sOWN}, {O_PART}")
        A(f"v_lshl_add_u32 {v(vF + 6)}, v0, 3, s{sTMP}")
        A(f"s_cmp_lt_u32 s{sPOS}, 14")
        A("s_cbranch_scc0 L_nst1")
        for l in wl[:n1]:
            A(l)
        A(f"s_waitcnt vmcnt({n1})")
        A("s_barrier")
        T("L_nst1:")
        T("s_waitcnt vmcnt(0)")
        T("s_barrier")
        T("s_branch L_now")
        self.stamp("x2dr")
        A(f"s_mov_b32 s{sRP0}, 0x05040100")
        A(f"s_mov_b32 s{sRP1}, 0x07060302")
        A(f"s_lshr_b32 s{sTMP}, s{sWAVE}, 1")
        A(f"s_lshl_b32 s{sTMP}, s{sTMP}, 9")
        A(f"s_add_u32 s{sTMP}, s{sTMP}, {W_REG + O_SLOT}")
        A(f"v_lshl_add_u32 {v(vF + 3)}, {v(vF + 3)}, 4, s{sTMP}")
        A(f"v_lshlrev_b32 {v(vF + 4)}, 6, {v(vF + 4)}")
        A(f"v_and_b32 {v(vF + 5)}, 12, {v(vLANE)}")
        A(f"v_lshl_add_u32 {v(vF + 4)}, {v(vF + 5)}, 2, {v(vF + 4)}")
        A(f"v_lshrrev_b32 {v(vF + 5)}, 5, {v(vLANE)}")
        A(f"v_lshl_add_u32 {v(vF + 4)}, {v(vF + 5)}, 3, {v(vF + 4)}")
        A(f"s_and_b32 s{sTMP}, s{sWAVE}, 1")
        A(f"s_lshl_b32 s{sTMP}, s{sTMP}, 7")
        A(f"s_lshr_b32 s{sTMP + 1}, s{sWAVE}, 1")
        A(f"s_lshl_b32 s{sTMP + 1}, s{sTMP + 1}, 2")
        A(f"s_add_u32 s{sTMP}, s{sTMP}, s{sTMP + 1}")
        A(f"s_add_u32 s{sTMP}, s{sTMP}, {L_REDF}")
        A(f"v_add_u32 {v(vF + 4)}, s{sTMP}, {v(vF + 4)}")
        A(f"v_and_b32 {v(vF + 5)}, 15, {v(vLANE)}")
        A(f"v_lshlrev_b32 {v(vF + 5)}, 3, {v(vF + 5)}")
        A(f"v_add_u32 {v(vF + 5)}, {L_REDF}, {v(vF + 5)}")
        for l in wl[n1:] + (wdl if o.get("wdp", 1) == 0 else []):
            A(l)
        self.stamp("wq")
        A("L_now:")
        perms = []
        for kp in range(8):
            lo, hi = vWD + 2 * kp, vWD + 2 * kp + 1
            perms.append(f"v_perm_b32 {v(WDp + 2 * kp)}, {v(hi)}, {v(lo)}, s{sRP0}")
            perms.append(f"v_perm_b32 {v(WDp + 2 * kp + 1)}, {v(hi)}, {v(lo)}, s{sRP1}")
        for kp in range(4):
            for d in range(4):
                lo, hi = vWG + 8 * kp + d, vWG + 8 * kp + 4 + d
                perms.append(f"v_perm_b32 {v(WGp + 8 * kp + 2 * d)}, {v(hi)}, {v(lo)}, s{sRP0}")
                perms.append(f"v_perm_b32 {v(WGp + 8 * kp + 2 * d + 1)}, {v(hi)}, {v(lo)}, s{sRP1}")
        wdp = o.get("wdp", 1)
        perms1 = perms if wdp == 0 else perms[16:]
        A(f"v_lshlrev_b32 {v(vT + 1)}, {KS}, {v(vLANE)}")
        A(f"v_add_u32 {v(vT + 1)}, {W_KEY}, {v(vT + 1)}")
        for q in range(1, 4):
            A(f"v_add_u32 {v(vT + 8 + q)}, {(64 * q) << KS}, {v(vT + 1)}")
        A(f"s_cmp_eq_u32 s{sWAVE}, 0")
        A("s_barrier")
        A("s_cbranch_scc0 L_nokey")
        self.key_calc(K, vRA, vLANE)
        A("s_mov_b64 exec, 1")
        A(f"global_store_dword {v(22)}, {v(K + 8)}, {sp(sWS)} sc1")
        A(f"ds_write_b32 {v(vT + 3)}, {v(K + 8)} offset:4")
        A("s_mov_b64 exec, -1")
        self.stamp("key")
        A("s_waitcnt lgkmcnt(0)")
        A("s_barrier")
        A("s_waitcnt vmcnt(1)")
        for l in perms1:
            A(l)
        A("s_branch L_keyed")
        A("L_nokey:")
        A("s_waitcnt vmcnt(0)")
        self.stamp("wld")
        for l in perms1:
            A(l)
        A(f"s_cmp_eq_u32 s{sWAVE}, 1")
        A("s_barrier")
        A("s_cbranch_scc0 L_keyed")
        self.stamp("b5c")
        k2 = vT + 4
        kl = [f"global_load_dword {v(K + q)}, {v(vT + 8 + q) if q else v(vT + 1)}, {sp(sWS)} sc1" for q in range(4)]
        for l in kl:
            A(l)
        A("s_waitcnt vmcnt(0)")
        self.poll("key", kl, [f"v_max3_u32 {v(k2)}, {v(K)}, {v(K + 1)}, {v(K + 2)}",
                              f"v_max_u32 {v(k2)}, {v(k2)}, {v(K + 3)}",
                              f"v_cmp_eq_u32 vcc, -1, {v(k2)}"])
        self.stamp("keyld")
        A(f"v_max_u32_dpp {v(k2)}, {v(k2)}, {v(k2)} quad_perm:[1,0,3,2] row_mask:0xf bank_mask:0xf")
        A(f"v_max_u32_dpp {v(k2)}, {v(k2)}, {v(k2)} quad_perm:[2,3,0,1] row_mask:0xf bank_mask:0xf")
        A(f"v_max_u32_dpp {v(k2)}, {v(k2)}, {v(k2)} row_half_mirror row_mask:0xf bank_mask:0xf")
        A(f"v_max_u32_dpp {v(k2)}, {v(k2)}, {v(k2)} row_mirror row_mask:0xf bank_mask:0xf")
        A(f"v_max_u32_dpp {v(k2)}, {v(k2)}, {v(k2)} row_bcast:15 row_mask:0xa bank_mask:0xf")
        A(f"v_max_u32_dpp {v(k2)}, {v(k2)}, {v(k2)} row_bcast:31 row_mask:0xc bank_mask:0xf")
        A("s_mov_b32 exec_lo, 0")
        A("s_brev_b32 exec_hi, 1")
        A(f"ds_write_b32 {v(vT + 3)}, {v(k2)}")
        A("s_mov_b64 exec, -1")
        A("s_waitcnt lgkmcnt(0)")
        A("L_keyed:")
        A(f"s_cmp_lt_u32 s{sPOS}, 14")
        A("s_barrier")
        A("s_cbranch_scc0 L_cfin")
        A(f"ds_read_b32 {v(K)}, {v(vT + 3)}")
        A("s_waitcnt lgkmcnt(0)")
        A(f"v_readfirstlane_b32 s{sWIN}, {v(K)}")
        A(f"s_andn2_b32 s{sT0}, 2047, s{sWIN}")
        A(f"s_lshr_b32 s{sT1}, s{sT0}, 3")
        A(f"s_mul_i32 s{sT1}, s{sT1}, {RS}")
        A(f"v_add_u32 {v(vF + 3)}, s{sT1}, {v(vF + 3)}")
        sl = [f"global_load_dwordx4 {v(K, 4)}, {v(vF + 3)}, {sp(sWS)} sc1"]
        A(sl[0])
        if o.get("wdp", 1) == 1:
            for l in wdl:
                A(l)
        self.stamp("win")
        A(f"s_waitcnt vmcnt({16 if o.get('wdp', 1) == 1 else 0})")
        self.poll("sel", sl, [f"v_max3_u32 {v(vT + 6)}, {v(K)}, {v(K + 1)}, {v(K + 2)}",
                              f"v_max_u32 {v(vT + 6)}, {v(vT + 6)}, {v(K + 3)}",
                              f"v_cmp_eq_u32 vcc, -1, {v(vT + 6)}"])
        self.stamp("sel")
        chk8 = [f"v_max3_u32 {v(vT + 6)}, {v(vY)}, {v(vY + 1)}, {v(vY + 2)}",
                f"v_max3_u32 {v(vT + 7)}, {v(vY + 3)}, {v(vY + 4)}, {v(vY + 5)}",
                f"v_max3_u32 {v(vT + 6)}, {v(vT + 6)}, {v(vY + 6)}, {v(vY + 7)}",
                f"v_max_u32 {v(vT + 6)}, {v(vT + 6)}, {v(vT + 7)}",
                f"v_cmp_eq_u32 vcc, -1, {v(vT + 6)}"]
        V2 = [K + 8 + i for i in range(8)]
        for kp in range(4):
            for c in range(8):
                A(f"v_dot2_f32_bf16 {v(V2[c])}, {v(K + kp)}, {v(WGp + 8 * kp + c)}, {v(V2[c]) if kp else 0}")
        self.reduce8(V2, K + 16)
        A(f"ds_write_b32 {v(vF + 4)}, {v(V2[0])}")
        if o.get("wdp", 1) == 1:
            A("s_waitcnt vmcnt(0)")
            for l in perms[:16]:
                A(l)
        A("s_waitcnt lgkmcnt(0)")
        A("s_barrier")
        A(f"ds_read_b64 {v(K, 2)}, {v(vF + 5)}")
        A(f"ds_read_b64 {v(K + 2, 2)}, {v(vF + 5)} offset:128")
        A("s_waitcnt lgkmcnt(0)")
        A(f"v_add_f32 {v(K)}, {v(K)}, {v(K + 1)}")
        A(f"v_add_f32 {v(K + 2)}, {v(K + 2)}, {v(K + 3)}")
        A(f"v_cvt_pk_bf16_f32 {v(K + 1)}, {v(K)}, {v(K + 2)}")
        A(f"v_lshlrev_b32 {v(K)}, 16, {v(K + 1)}")
        A(f"v_mul_f32 {v(K + 3)}, {hex(f2u(-L2E))}, {v(K)}")
        A(f"v_exp_f32 {v(K + 3)}, {v(K + 3)}")
        A(f"v_and_b32 {v(K + 2)}, s{sMASK}, {v(K + 1)}")
        A(f"v_add_f32 {v(K + 3)}, 1.0, {v(K + 3)}")
        A(f"v_rcp_f32 {v(K + 3)}, {v(K + 3)}")
        A(f"v_mul_f32 {v(K)}, {v(K)}, {v(K + 3)}")
        A(f"v_cvt_pk_bf16_f32 {v(K)}, {v(K)}, {v(K)}")
        A(f"v_and_b32 {v(K)}, s{sMASK}, {v(K)}")
        A(f"v_mul_f32 {v(K)}, {v(K)}, {v(K + 2)}")
        A(f"v_mov_b32_dpp {v(K + 1)}, {v(K)} quad_perm:[1,1,3,3] row_mask:0xf bank_mask:0xf")
        A(f"v_cvt_pk_bf16_f32 {v(K)}, {v(K)}, {v(K + 1)}")
        for kp in range(8):
            A(f"v_readlane_b32 s{sH + kp}, {v(K)}, {2 * kp}")
        for kp in range(8):
            for c in range(2):
                A(f"v_dot2_f32_bf16 {v(K + 4 + c)}, s{sH + kp}, {v(WDp + 2 * kp + c)}, {v(K + 4 + c) if kp else 0}")
        A(f"global_store_dwordx2 {v(vF + 6)}, {v(K + 4, 2)}, {sp(sWS)} sc1")
        self.stamp("part")
        A(f"s_cmp_lt_u32 s{sPOS}, 8")
        A("s_cbranch_scc0 L_cfin")
        A(f"s_cmp_lt_u32 s{sWAVE}, 2")
        A("s_cbranch_scc0 L_cfin")
        A(f"s_lshl_b32 s{sTMP}, s{sXCD}, 3")
        A(f"s_add_u32 s{sTMP}, s{sTMP}, s{sPOS}")
        A(f"s_lshl_b32 s{sTMP}, s{sTMP}, 1")
        A(f"s_add_u32 s{sTMP}, s{sTMP}, s{sWAVE}")
        A(f"v_lshrrev_b32 {v(vT)}, 5, {v(vLANE)}")
        A(f"v_bfe_u32 {v(vT + 1)}, {v(vLANE)}, 4, 1")
        A(f"v_lshl_add_u32 {v(vT)}, {v(vT + 1)}, 1, {v(vT)}")
        A(f"s_lshl_b32 s{sTMP + 1}, s{sTMP}, 3")
        A(f"v_lshl_add_u32 {v(vT)}, {v(vT)}, 1, s{sTMP + 1}")
        A(f"s_add_u32 s{sT1}, s{sT1}, {W_REG + O_SLOT}")
        A(f"v_add_u32 {v(vT + 1)}, s{sT1}, {v(vT)}")
        xh = [f"global_load_ushort {v(K + 20)}, {v(vT + 1)}, {sp(sWS)} sc1",
              f"global_load_ushort {v(K + 21)}, {v(vT + 1)}, {sp(sWS)} offset:1024 sc1"]
        for l in xh:
            A(l)
        A(f"s_lshl_b32 s{sTMP + 1}, s{sT0}, 10")
        A(f"v_add_u32 {v(vT)}, s{sTMP + 1}, {v(vT)}")
        A(f"v_min_u32 {v(vT + 2)}, 55, {v(vLANE)}")
        A(f"v_mul_u32_u24 {v(vT + 3)}, 4682, {v(vT + 2)}")
        A(f"v_lshrrev_b32 {v(vT + 3)}, 16, {v(vT + 3)}")
        A(f"v_mad_u32_u24 {v(vT + 2)}, {v(vT + 3)}, 18, {v(vT + 2)}")
        A(f"v_mul_u32_u24 {v(vT + 2)}, {RS}, {v(vT + 2)}")
        A(f"s_lshl_b32 s{sTMP + 1}, s{sTMP}, 4")
        A(f"s_add_u32 s{sTMP + 1}, s{sTMP + 1}, {W_REG + O_PART}")
        A(f"v_add_u32 {v(vT + 2)}, s{sTMP + 1}, {v(vT + 2)}")
        A(f"v_add_u32 {v(vT + 3)}, {128 * RS}, {v(vT + 2)}")
        A(f"s_ashr_i32 s{sTMP + 2}, s{sWIN}, 31")
        A(f"s_not_b32 s{sTMP + 2}, s{sTMP + 2}")
        A(f"s_or_b32 s{sTMP + 2}, s{sTMP + 2}, 0x80000000")
        A(f"s_xor_b32 s{sTMP + 2}, s{sTMP + 2}, s{sWIN}")
        A(f"s_and_b32 s{sTMP + 2}, s{sTMP + 2}, 0xfffff800")
        A(f"s_or_b32 s{sTMP + 2}, s{sTMP + 2}, 0x400")
        A(f"v_cvt_pk_bf16_f32 {v(K + 22)}, s{sTMP + 2}, s{sTMP + 2}")
        A(f"v_and_b32 {v(K + 22)}, s{sMASK}, {v(K + 22)}")
        A(f"v_mul_f32 {v(K + 22)}, {hex(f2u(-L2E))}, {v(K + 22)}")
        A(f"v_exp_f32 {v(K + 22)}, {v(K + 22)}")
        A(f"v_add_f32 {v(K + 22)}, 1.0, {v(K + 22)}")
        A(f"v_rcp_f32 {v(K + 22)}, {v(K + 22)}")
        A(f"v_cvt_pk_bf16_f32 {v(K + 22)}, {v(K + 22)}, {v(K + 22)}")
        A(f"v_and_b32 {v(K + 22)}, s{sMASK}, {v(K + 22)}")
        A("s_waitcnt vmcnt(0)")
        self.stamp("partdr")
        pl = [f"global_load_dwordx4 {v(vY, 4)}, {v(vT + 2)}, {sp(sWS)} sc1",
              f"global_load_dwordx4 {v(vY + 4, 4)}, {v(vT + 3)}, {sp(sWS)} sc1"]
        for l in pl:
            A(l)
        self.poll("xh", xh, [f"v_max_u32 {v(vT + 6)}, {v(K + 20)}, {v(K + 21)}",
                             f"v_cmp_eq_u32 vcc, 0xffff, {v(vT + 6)}"])
        A(f"v_lshlrev_b32 {v(K + 20)}, 16, {v(K + 20)}")
        A(f"v_lshlrev_b32 {v(K + 21)}, 16, {v(K + 21)}")
        A("s_waitcnt vmcnt(0)")
        self.poll("part", pl, chk8)
        self.stamp("partld")
        A(f"v_cmp_gt_u32 vcc, 56, {v(vLANE)}")
        A(f"v_pk_add_f32 {v(vY, 2)}, {v(vY, 2)}, {v(vY + 4, 2)}")
        A(f"v_pk_add_f32 {v(vY + 2, 2)}, {v(vY + 2, 2)}, {v(vY + 6, 2)}")
        for c in range(4):
            A(f"v_cndmask_b32 {v(vY + c)}, 0, {v(vY + c)}, vcc")
        A(f"v_permlane32_swap_b32 {v(vY)}, {v(vY + 1)}")
        A(f"v_permlane32_swap_b32 {v(vY + 2)}, {v(vY + 3)}")
        A(f"v_add_f32 {v(vY)}, {v(vY)}, {v(vY + 1)}")
        A(f"v_add_f32 {v(vY + 2)}, {v(vY + 2)}, {v(vY + 3)}")
        A(f"v_permlane16_swap_b32 {v(vY)}, {v(vY + 2)}")
        A(f"v_add_f32 {v(vY)}, {v(vY)}, {v(vY + 2)}")
        for sh in (8, 4, 2, 1):
            A(f"v_add_f32_dpp {v(vY)}, {v(vY)}, {v(vY)} row_ror:{sh} row_mask:0xf bank_mask:0xf")
        y = vY
        A(f"v_cvt_pk_bf16_f32 {v(y)}, {v(y)}, {v(y)}")
        A(f"v_and_b32 {v(y)}, s{sMASK}, {v(y)}")
        A(f"v_mul_f32 {v(y)}, {v(y)}, {v(K + 22)}")
        A(f"v_cvt_pk_bf16_f32 {v(y)}, {v(y)}, {v(y)}")
        A(f"v_and_b32 {v(y)}, s{sMASK}, {v(y)}")
        A(f"v_add_f32 {v(y)}, {v(y)}, {v(K + 20)}")
        A(f"v_cvt_pk_bf16_f32 {v(y)}, {v(y)}, {v(y)}")
        A(f"v_and_b32 {v(y)}, s{sMASK}, {v(y)}")
        A(f"v_add_f32 {v(y)}, {v(y)}, {v(K + 21)}")
        A(f"v_cvt_pk_bf16_f32 {v(y)}, {v(y)}, {v(y)}")
        A("s_mov_b32 exec_lo, 0x00010001")
        A("s_mov_b32 exec_hi, 0x00010001")
        A(f"global_store_short {v(vT)}, {v(y)}, {sp(sOUT)}")
        A("L_cfin:")
        self.finish("C")

    def text(self):
        lines = self.build()
        src = open("sequential_preLN__ssm_conv_s4d__moe_arch_mod__prompt.s.ref").read()
        head = [l for l in src.split("\n") if l.startswith(";") and "@launch" not in l]
        head = head[:head.index("; Override launch geometry by editing the next line (default: block=256,")]
        out = head + [f"; @launch grid=(256,1,1) block=(512,1,1) lds={LDS_BYTES}",
                      '.amdgcn_target "amdgcn-amd-amdhsa--gfx950"', ".text", f".globl {KNAME}", ".p2align 8",
                      f".type {KNAME},@function"]
        out += [l if l.endswith(":") else "    " + l for l in lines]
        out += [".section .rodata,\"a\"", ".p2align 6", f".amdhsa_kernel {KNAME}",
                "  .amdhsa_next_free_vgpr 224", "  .amdhsa_next_free_sgpr 102", "  .amdhsa_accum_offset 224",
                "  .amdhsa_group_segment_fixed_size 0", "  .amdhsa_kernarg_size 120", "  .amdhsa_user_sgpr_count 2",
                "  .amdhsa_user_sgpr_kernarg_segment_ptr 1", "  .amdhsa_system_sgpr_workgroup_id_x 1",
                ".end_amdhsa_kernel", ""]
        return "\n".join(out)


if __name__ == "__main__":
    out = sys.argv[1]
    opts = {}
    stamp = False
    for a in sys.argv[2:]:
        if a == "stamp":
            stamp = True
        else:
            k, val = a.split("=")
            opts[k] = val if k == 'pr' else int(val)
    g = Gen(stamp, opts)
    open(out, "w").write(g.text())
    if stamp:
        open(out + ".names", "w").write(" ".join(g.allnames["R"]) + "\n" + " ".join(g.allnames["C"]))
    print(g.info, "lds", LDS_BYTES)
```

```python
import sys
import struct
from asmlib import Asm, align8

KNAME = "sequential_preLN__ssm_conv_s4d__moe_arch_mod__prompt_kernel"


def f2u(x):
    return struct.unpack("<I", struct.pack("<f", x))[0]


W_FLAG = 0x1000
W_KEY = 0x9000
W_FLAG2 = 0x11000
W_REG = 0x31000
RS = 20608
O_X1, O_X2, O_SLOT, O_PART = 0, 8192, 16384, 18432
W_STAMP = 0x800000
ROWB = 544
TABC = 63 * ROWB
L_TAB = 0
L_P = 68608
PC = 8256
L_U = L_P + 2 * PC
UC = 4608
L_RED1 = (L_U + 2 * UC + 255) // 256 * 256
L_RED2 = L_RED1 + 256
L_SUMW = L_RED2 + 384
L_REDK = L_SUMW + 16
L_REDF = L_REDK + 16
LDS_BYTES = L_REDF + 256
L_EPI = 0
TBS = 1152
L_TILE = 40960
RSTR = 1040
TILE = 8 * RSTR
sX, sLA, sAI, sCR, sCI, sLDT, sD = 4, 6, 8, 10, 12, 14, 16
sWR, sWG, sWU, sWD, sOUT, sDBG, sWS = 20, 22, 24, 26, 28, 30, 32
sL, sPOS, sXCD, sWAVE, sG, sDT, sT0, sT1, sSPIN, sF = 34, 35, 36, 37, 38, 39, 40, 41, 42, 43
sODD = 44
sSELLO, sSELHI, sONES, sMASK = 46, 47, 48, 49
sWSEL = 50
sBEST, sWIN, sRP0, sRP1 = 52, 53, 54, 55
sH = 56
sE = 64
sTMP = 66
sOWN = 71
sSTAMP = 72


def sp(r):
    return f"s[{r}:{r + 1}]"


def v(r, n=1):
    return f"v{r}" if n == 1 else f"v[{r}:{r + n - 1}]"


class Gen:
    def __init__(self, stamp=False, opts=None):
        self.A = Asm()
        self.tail = Asm()
        self.stamp_on = stamp
        self.nstamp = 0
        self.names = []
        self.o = dict(opts or {})
        self.only = None
        self.few = None
        if "few" in self.o:
            self.few = ["start", "end"] + self.o["few"].split(".")
            self.stamp_on = True
        self.role = "R"
        if "pr" in self.o:
            self.only = tuple(self.o["pr"].split("."))
            self.stamp_on = True
            self.o["probe"] = 1 if self.only[0] == "R" else 101

    def stamp(self, name):
        if not self.stamp_on:
            return
        if self.only and name != "start" and (self.role, name) != self.only:
            return
        if self.few and name not in self.few:
            return
        k = self.nstamp
        self.nstamp += 1
        self.names.append(name)
        assert sSTAMP + k < 100
        self.A(f"s_memtime s[100:101]" if self.o.get("cyc") else f"s_memrealtime s[100:101]")
        self.A("s_waitcnt lgkmcnt(0)")
        self.A(f"s_mov_b32 s{sSTAMP + k}, s100")

    def poll(self, name, loads, check, base_exec="-1"):
        A = self.A
        for c in check:
            A(c)
        A(f"s_cbranch_vccnz L_retry_{name}")
        A(f"L_ok_{name}:")
        T = self.tail
        T(f"L_retry_{name}:")
        T(f"s_mov_b32 s{sSPIN}, 0x40000")
        T(f"L_again_{name}:")
        T(f"s_sub_u32 s{sSPIN}, s{sSPIN}, 1")
        T(f"s_cbranch_scc1 L_ok_{name}")
        T("s_mov_b64 exec, vcc")
        for l in loads:
            T(l)
        T("s_waitcnt vmcnt(0)")
        for c in check:
            T(c)
        T(f"s_mov_b64 exec, {base_exec}")
        T(f"s_cbranch_vccnz L_again_{name}")
        T(f"s_branch L_ok_{name}")

    def cmul(self, d, x, y, t):
        return [f"v_pk_mul_f32 {v(t, 2)}, {v(x, 2)}, {v(y, 2)} op_sel:[0,0] op_sel_hi:[0,1]",
                f"v_pk_fma_f32 {v(d, 2)}, {v(x, 2)}, {v(y, 2)}, {v(t, 2)} op_sel:[1,1,0] op_sel_hi:[1,0,1] neg_lo:[1,0,0]"]

    def reduce8(self, V, t):
        A = self.A
        for i in range(4):
            A(f"v_add_f32_dpp {v(V[i])}, {v(V[i])}, {v(V[i])} row_ror:8 row_mask:0xf bank_mask:0x3")
        for i in range(4):
            A(f"v_add_f32_dpp {v(V[i])}, {v(V[i + 4])}, {v(V[i + 4])} row_ror:8 row_mask:0xf bank_mask:0xc")
        for i in range(2):
            A(f"v_add_f32_dpp {v(V[i])}, {v(V[i])}, {v(V[i])} row_shl:4 row_mask:0xf bank_mask:0x5")
        for i in range(2):
            A(f"v_add_f32_dpp {v(V[i])}, {v(V[i + 2])}, {v(V[i + 2])} row_shr:4 row_mask:0xf bank_mask:0xa")
        A(f"v_permlane32_swap_b32 {v(V[0])}, {v(V[1])}")
        A(f"v_add_f32 {v(V[0])}, {v(V[0])}, {v(V[1])}")
        A(f"v_add_f32_dpp {v(V[0])}, {v(V[0])}, {v(V[0])} quad_perm:[2,3,0,1] row_mask:0xf bank_mask:0xf")
        A(f"v_mov_b32 {v(t)}, {v(V[0])}")
        A(f"v_permlane16_swap_b32 {v(V[0])}, {v(t)}")
        A(f"v_add_f32 {v(V[0])}, {v(V[0])}, {v(t)}")

    def row_stats(self, S, Q, negm, rinv, t):
        A = self.A
        A(f"v_pk_add_f32 {v(S, 2)}, {v(S, 2)}, {v(S + 2, 2)}")
        A(f"v_pk_add_f32 {v(Q, 2)}, {v(Q, 2)}, {v(Q + 2, 2)}")
        A(f"v_add_f32 {v(S)}, {v(S)}, {v(S + 1)}")
        A(f"v_add_f32 {v(Q)}, {v(Q)}, {v(Q + 1)}")
        A(f"v_mul_f32 {v(S)}, {hex(f2u(1 / 512))}, {v(S)}")
        A(f"v_mul_f32 {v(Q)}, {hex(f2u(1 / 512))}, {v(Q)}")
        A(f"v_fma_f32 {v(Q)}, -{v(S)}, {v(S)}, {v(Q)}")
        A(f"v_max_f32 {v(Q)}, 0, {v(Q)}")
        A(f"v_cvt_pk_bf16_f32 {v(t)}, -{v(S)}, {v(Q)}")
        A(f"v_and_b32 {v(Q)}, s{sMASK}, {v(t)}")
        A(f"v_add_f32 {v(Q)}, {hex(f2u(1e-5))}, {v(Q)}")
        A(f"v_cvt_pk_bf16_f32 {v(Q)}, {v(Q)}, {v(Q)}")
        A(f"v_and_b32 {v(Q)}, s{sMASK}, {v(Q)}")
        A(f"v_sqrt_f32 {v(Q)}, {v(Q)}")
        A(f"v_lshlrev_b32 {v(negm)}, 16, {v(t)}")
        A(f"v_cvt_pk_bf16_f32 {v(Q)}, {v(Q)}, {v(Q)}")
        A(f"v_and_b32 {v(Q)}, s{sMASK}, {v(Q)}")
        A(f"v_rcp_f32 {v(rinv)}, {v(Q)}")

    def spread(self, val, dst, t):
        A = self.A
        for r in range(4):
            A(f"v_mov_b32_dpp {v(t + r)}, {v(val)} row_newbcast:{4 + r} row_mask:0xf bank_mask:0xf")
        for r in range(4):
            A(f"v_cndmask_b32_dpp {v(dst + r)}, {v(val)}, {v(t + r)}, vcc row_newbcast:{r} row_mask:0xf bank_mask:0xf")

    def key_calc(self, K, vRA, vLANE):
        A = self.A
        A(f"v_mov_b32 {v(K + 14)}, {L_SUMW}")
        A(f"ds_read_b128 {v(K, 4)}, {v(vRA)} offset:{L_RED2 - L_RED1}")
        A(f"ds_read_b128 {v(K + 4, 4)}, {v(vRA)} offset:{L_RED2 - L_RED1 + 128}")
        A(f"ds_read_b128 {v(K + 8, 4)}, {v(vRA)} offset:{L_RED2 - L_RED1 + 256}")
        A(f"ds_read_b32 {v(K + 15)}, {v(K + 14)}")
        A(f"s_lshl_b32 s{sTMP}, s{sL}, 3")
        A(f"s_sub_u32 s{sTMP}, 2047, s{sTMP}")
        A(f"v_and_b32 {v(K + 14)}, 7, {v(vLANE)}")
        A(f"v_sub_u32 {v(K + 14)}, s{sTMP}, {v(K + 14)}")
        A("s_waitcnt lgkmcnt(2)")
        self.row_stats(K, K + 4, K + 12, K + 13, K + 28)
        A("s_waitcnt lgkmcnt(0)")
        A(f"v_pk_add_f32 {v(K + 8, 2)}, {v(K + 8, 2)}, {v(K + 10, 2)}")
        A(f"v_add_f32 {v(K + 8)}, {v(K + 8)}, {v(K + 9)}")
        A(f"v_fmac_f32 {v(K + 8)}, {v(K + 12)}, {v(K + 15)}")
        A(f"v_mul_f32 {v(K + 8)}, {v(K + 8)}, {v(K + 13)}")
        A(f"v_ashrrev_i32 {v(K + 9)}, 31, {v(K + 8)}")
        A(f"v_or_b32 {v(K + 9)}, 0x80000000, {v(K + 9)}")
        A(f"v_xor_b32 {v(K + 8)}, {v(K + 8)}, {v(K + 9)}")
        A(f"v_and_b32 {v(K + 8)}, 0xfffff800, {v(K + 8)}")
        A(f"v_or_b32 {v(K + 8)}, {v(K + 8)}, {v(K + 14)}")
        A(f"v_min_u32 {v(K + 8)}, -2, {v(K + 8)}")
        A(f"v_max_u32_dpp {v(K + 8)}, {v(K + 8)}, {v(K + 8)} quad_perm:[1,0,3,2] row_mask:0xf bank_mask:0xf")
        A(f"v_max_u32_dpp {v(K + 8)}, {v(K + 8)}, {v(K + 8)} quad_perm:[2,3,0,1] row_mask:0xf bank_mask:0xf")
        A(f"v_max_u32_dpp {v(K + 8)}, {v(K + 8)}, {v(K + 8)} row_half_mirror row_mask:0xf bank_mask:0xf")

    def finish(self, role):
        A = self.A
        o = self.o
        if self.stamp_on:
            self.stamp("end")
            self.allnames[role] = self.names
        if self.stamp_on and "probe" in o:
            k = o["probe"]
            if k == 98 and role == "R":
                A(f"s_getreg_b32 s{sTMP}, hwreg(HW_REG_XCC_ID, 0, 4)")
                A(f"s_sub_u32 s{sTMP}, s{sTMP}, s2")
                A(f"s_and_b32 s{sTMP}, s{sTMP}, 7")
                A(f"s_mul_i32 s{sTMP}, s{sTMP}, 1000")
                A(f"s_add_u32 s{sTMP}, s{sTMP}, 2000")
            elif k == 99 and role == "R":
                A("s_memtime s[96:97]")
                A("s_waitcnt lgkmcnt(0)")
                A("s_sub_u32 s96, s96, s98")
                A(f"s_sub_u32 s97, s{sSTAMP + self.nstamp - 1}, s{sSTAMP}")
                A("s_mov_b64 exec, -1")
                A("v_cvt_f32_u32 v2, s96")
                A("v_cvt_f32_u32 v3, s97")
                A("v_rcp_f32 v3, v3")
                A("s_nop 1")
                A("v_mul_f32 v2, v2, v3")
                A("v_mul_f32 v2, 0x43c80000, v2")
                A("v_cvt_u32_f32 v2, v2")
                A("s_nop 1")
                A(f"v_readfirstlane_b32 s{sTMP}, v2")
                A(f"s_add_u32 s{sTMP}, s{sTMP}, 2000")
            elif k < 0 and role == "R":
                A(f"s_mov_b32 s{sTMP}, {-k}")
            elif k >= 0 and (k >= 100) == (role == "C"):
                A(f"s_sub_u32 s{sTMP}, s{sSTAMP + k % 100}, s{sSTAMP}")
                A(f"s_cmp_lt_u32 s{sTMP}, 3000")
                A(f"s_cselect_b32 s{sTMP}, s{sTMP}, 0")
                A(f"s_mul_i32 s{sTMP}, s{sTMP}, 20")
                A(f"s_add_u32 s{sTMP}, s{sTMP}, 2000")
            else:
                A(f"s_mov_b32 s{sTMP}, 0")
            A(f"L_spin{role}:")
            A("s_memrealtime s[100:101]")
            A("s_waitcnt lgkmcnt(0)")
            A(f"s_sub_u32 s100, s100, s{sSTAMP}")
            A(f"s_cmp_lt_u32 s100, s{sTMP}")
            A(f"s_cbranch_scc1 L_spin{role}")
        elif self.stamp_on:
            A("s_mov_b64 exec, 1")
            A(f"s_lshl_b32 s{sTMP}, s2, 3")
            A(f"s_add_u32 s{sTMP}, s{sTMP}, s{sWAVE}")
            if role == "C":
                A(f"s_add_u32 s{sTMP}, s{sTMP}, 4")
            A(f"s_lshl_b32 s{sTMP}, s{sTMP}, 7")
            A(f"s_add_u32 s{sTMP}, s{sTMP}, {W_STAMP}")
            A(f"v_mov_b32 v1, s{sTMP}")
            for k in range(self.nstamp):
                A(f"v_mov_b32 v2, s{sSTAMP + k}")
                A(f"global_store_dword v1, v2, {sp(sWS)} offset:{4 * k}")
        A("s_endpgm")

    def build(self):
        A = self.A
        self.allnames = {}
        o = self.o
        A(f"{KNAME}:")
        self.stamp("start")
        A("s_load_dwordx16 s[4:19], s[0:1], 0")
        A("s_cmp_ge_u32 s2, 256")
        A("s_cbranch_scc1 L_end")
        if o.get("probe", 0) == 99:
            A("s_memtime s[98:99]")
        A(f"s_getpc_b64 {sp(sE)}")
        A("L_pc:")
        A("v_lshlrev_b32 v2, 5, v0")
        A(f"v_min_u32 v2, L_codeend-L_pc-4, v2")
        A(f"global_load_dword v3, v2, {sp(sE)}")
        A("s_load_dwordx8 s[20:27], s[0:1], 64")
        A("s_load_dwordx4 s[28:31], s[0:1], 96")
        A("s_load_dwordx2 s[32:33], s[0:1], 112")
        A("v_lshrrev_b32 v4, 6, v0")
        A(f"s_and_b32 s{sXCD}, s2, 7")
        A(f"v_readfirstlane_b32 s{sWAVE}, v4")
        A(f"s_lshr_b32 s{sPOS}, s2, 3")
        A(f"s_lshl_b32 s{sL}, s{sXCD}, 5")
        A(f"s_add_u32 s{sL}, s{sL}, s{sPOS}")
        A("v_and_b32 v1, 63, v0")
        A("v_and_b32 v0, 0xff, v0")
        A("v_lshrrev_b32 v32, 1, v0")
        A("v_and_b32 v33, 1, v0")
        A("v_lshlrev_b32 v34, 3, v32")
        A(f"s_lshl_b32 s{sT0}, s{sL}, 13")
        A("v_lshl_add_u32 v23, v33, 12, v34")
        A(f"v_add_u32 v23, s{sT0}, v23")
        A(f"s_lshl_b32 s{sT0}, s{sL}, 9")
        A(f"v_lshl_add_u32 v28, v0, 1, s{sT0}")
        A(f"s_lshl_b32 s{sT1}, s{sL}, 2")
        A(f"s_cmp_lt_u32 s{sWAVE}, 4")
        A("s_waitcnt lgkmcnt(0)")
        A("s_cbranch_scc1 L_rows")
        nt = ' nt' if o.get('ntx', 1) else ''
        for k, sb in enumerate((sLA, sAI, sCR, sCI)):
            A(f"global_load_ushort v{24 + k}, v28, {sp(sb)}{nt}")
        A(f"s_load_dword s{sDT}, {sp(sLDT)}, s{sT1}")
        A("s_branch L_chan")
        A("L_rows:")
        self.rows()
        self.names = self.names[:1]
        self.nstamp = min(self.nstamp, 1)
        A(".p2align 6")
        self.role = "C"
        self.chans()
        A("L_end:")
        A("s_endpgm")
        for l in self.tail.L:
            A(l)
        A("L_codeend:")
        lines, nops = A.padded()
        lines, nbytes, promoted, missed = align8(lines)
        self.info = dict(nops=nops, bytes=nbytes, promoted=promoted, missed=missed, lines=len(lines))
        return lines

    def rows(self):
        A = self.A
        o = self.o
        vLANE = 1
        vX, vU, vD, vWR = 212, 10, 18, 20
        vREG, vRD, vAUX = 22, 23, 24
        vKEY, vSW, vRA, vFL, vUW = 26, 27, 28, 29, 30
        vT = 32
        vWG, vWD = 40, 72
        vY = 88
        vONE = 96
        K = 100
        L2E = 1.4426950408889634
        nt = ' nt' if o.get('ntx', 1) else ''
        for r in range(4):
            A(f"global_load_dwordx2 {v(vX + 2 * r, 2)}, {v(vRD)}, {sp(sX)} offset:{1024 * r}{nt}")
        self.stamp("karg")
        A(f"s_load_dword s{sG}, {sp(sWS)}, 0")
        A(f"v_lshlrev_b32 {v(vT + 3)}, 4, {v(vLANE)}")
        A(f"global_load_dwordx2 {v(vD, 2)}, {v(vT + 2)}, {sp(sD)}")
        A(f"global_load_dwordx2 {v(vWR, 2)}, {v(vT + 2)}, {sp(sWR)}")
        A(f"global_load_dwordx4 {v(vONE, 4)}, {v(vT + 3)}, {sp(sWR)}")
        A(f"s_mul_i32 s{sOWN}, s{sL}, {RS}")
        A(f"s_add_u32 s{sOWN}, s{sOWN}, {W_REG}")
        A(f"s_add_u32 s{sT0}, s{sOWN}, 4096")
        A(f"v_lshl_add_u32 {v(vREG)}, v0, 4, s{sT0}")
        A(f"s_mov_b32 s{sMASK}, 0xffff0000")
        A(f"s_mov_b32 s{sODD}, 0xaaaaaaaa")
        A(f"s_mov_b32 s{sODD + 1}, 0xaaaaaaaa")
        A(f"s_mov_b32 s{sSELLO}, 0x3f80")
        A(f"s_mov_b32 s{sSELHI}, 0x3f800000")
        A(f"s_mov_b32 s{sONES}, 0x3f803f80")
        A(f"s_and_b32 s{sTMP}, s{sL}, 1")
        A(f"s_lshl_b32 s{sTMP}, s{sTMP}, 12")
        A(f"s_lshr_b32 s{sTMP + 1}, s{sL}, 1")
        A(f"s_lshl_b32 s{sTMP + 1}, s{sTMP + 1}, 5")
        A(f"s_add_u32 s{sTMP}, s{sTMP}, s{sTMP + 1}")
        A(f"s_add_u32 s{sTMP}, s{sTMP}, {W_REG + O_X1}")
        A(f"v_mul_u32_u24 {v(vAUX)}, {RS}, {v(vT)}")
        A(f"v_lshl_add_u32 {v(vAUX)}, {v(vT + 1)}, 4, {v(vAUX)}")
        A(f"v_add_u32 {v(vAUX)}, s{sTMP}, {v(vAUX)}")
        A(f"v_add_u32 {v(vAUX + 1)}, {128 * RS}, {v(vAUX)}")
        FS = o.get("fs", 7)
        KS = o.get("ks", 5)
        A(f"v_lshlrev_b32 {v(vFL)}, {FS}, {v(vT)}")
        A(f"v_add_u32 {v(vFL)}, {W_FLAG}, {v(vFL)}")
        A(f"v_add_u32 {v(vFL + 2)}, {128 << FS}, {v(vFL)}")
        A(f"s_lshl_b32 s{sT0}, s{sL}, {FS}")
        A(f"s_add_u32 s{sT0}, s{sT0}, {W_FLAG}")
        A(f"v_lshl_add_u32 {v(vKEY)}, {v(vLANE)}, 4, s{sT0}")
        A(f"v_cmp_ne_u32 vcc, s{sL}, {v(vT)}")
        A(f"s_sub_u32 s{sT0}, s{sL}, 128")
        A(f"v_cndmask_b32 {v(5)}, 0, -1, vcc")
        A(f"v_cmp_ne_u32 vcc, s{sT0}, {v(vT)}")
        A(f"v_cndmask_b32 {v(6)}, 0, -1, vcc")
        A(f"v_lshlrev_b32 {v(vSW)}, 6, {v(vT + 1)}")
        A(f"v_and_b32 {v(vT + 3)}, 4, {v(vLANE)}")
        A(f"v_lshl_add_u32 {v(vSW)}, {v(vT + 3)}, 3, {v(vSW)}")
        A(f"v_and_b32 {v(vT + 3)}, 8, {v(vLANE)}")
        A(f"v_lshl_add_u32 {v(vSW)}, {v(vT + 3)}, 4, {v(vSW)}")
        A(f"v_lshrrev_b32 {v(vT + 3)}, 5, {v(vLANE)}")
        A(f"v_lshl_add_u32 {v(vSW)}, {v(vT + 3)}, 4, {v(vSW)}")
        A(f"s_lshl_b32 s{sTMP}, s{sWAVE}, 2")
        A(f"s_add_u32 s{sTMP}, s{sTMP}, {L_RED1}")
        A(f"v_add_u32 {v(vSW)}, s{sTMP}, {v(vSW)}")
        A(f"v_and_b32 {v(vT + 3)}, 7, {v(vLANE)}")
        A(f"v_lshlrev_b32 {v(vRA)}, 4, {v(vT + 3)}")
        A(f"v_add_u32 {v(vRA)}, {L_RED1}, {v(vRA)}")
        A(f"v_lshlrev_b32 {v(vUW)}, 3, v0")
        A(f"v_mov_b32 {v(K)}, 0")
        A(f"v_mov_b32 {v(K + 1)}, 0")
        A(f"v_min_u32 {v(vT + 3)}, 472, {v(vUW)}")
        A(f"v_add_u32 {v(vT + 3)}, {L_U}, {v(vT + 3)}")
        A(f"v_min_u32 {v(vT + 4)}, 56, {v(vUW)}")
        A(f"v_add_u32 {v(vT + 4)}, {L_P}, {v(vT + 4)}")
        A(f"ds_write2st64_b64 {v(vT + 3)}, {v(K, 2)}, {v(K, 2)} offset0:0 offset1:9")
        A(f"ds_write_b64 {v(vT + 4)}, {v(K, 2)}")
        A(f"ds_write_b64 {v(vT + 4)}, {v(K, 2)} offset:{PC}")
        A(f"v_add_u32 {v(vUW)}, {L_U + 480}, {v(vUW)}")

        V = [K + i for i in range(8)]
        A("s_waitcnt vmcnt(3)")
        self.stamp("x")
        for r in range(4):
            A(f"v_dot2_f32_bf16 {v(V[r])}, {v(vX + 2 * r)}, s{sONES}, 0")
        for r in range(4):
            A(f"v_dot2_f32_bf16 {v(V[4 + r])}, {v(vX + 2 * r)}, {v(vX + 2 * r)}, 0")
        for r in range(4):
            A(f"v_dot2_f32_bf16 {v(V[r])}, {v(vX + 2 * r + 1)}, s{sONES}, {v(V[r])}")
        for r in range(4):
            A(f"v_dot2_f32_bf16 {v(V[4 + r])}, {v(vX + 2 * r + 1)}, {v(vX + 2 * r + 1)}, {v(V[4 + r])}")
        self.reduce8(V, K + 8)
        A(f"ds_write_b32 {v(vSW)}, {v(V[0])}")
        A("s_waitcnt lgkmcnt(0)")
        A("s_barrier")
        self.stamp("b1")
        A(f"ds_read_b128 {v(K, 4)}, {v(vRA)}")
        A(f"ds_read_b128 {v(K + 4, 4)}, {v(vRA)} offset:128")
        A(f"s_add_u32 s{sG}, s{sG}, 0x9e3779b9")
        fw = o.get("fw", 1)
        for k in range(4 if fw else 1):
            A(f"v_mov_b32 {v(K + 28 + k)}, s{sG}")
        A(f"s_cmp_eq_u32 s{sWAVE}, 0")
        if fw:
            A(f"s_cselect_b64 exec, {(1 << ((1 << FS) // 16)) - 1}, 0")
            A(f"global_store_dwordx4 {v(vKEY)}, {v(K + 28, 4)}, {sp(sWS)} sc1")
        else:
            A("s_cselect_b64 exec, 1, 0")
            A(f"global_store_dword {v(vKEY)}, {v(K + 28)}, {sp(sWS)} sc1")
        A("s_mov_b64 exec, -1")
        flmode = o.get("flmode", 1)
        fl = [f"global_load_dword {v(vT + 4)}, {v(vFL)}, {sp(sWS)} sc1",
              f"global_load_dword {v(vT + 5)}, {v(vFL + 2)}, {sp(sWS)} sc1"]
        if flmode == 3:
            for l in fl:
                A(l)
        A(f"s_mov_b64 vcc, {sp(sODD)}")
        A("s_waitcnt lgkmcnt(0)")
        vNM, vRI = K + 16, K + 20
        self.row_stats(K, K + 4, K + 10, K + 11, K + 12)
        self.spread(K + 10, vNM, K + 24)
        Dd = K + 32
        for c in range(4):
            for r in range(4):
                A(f"v_dot2_f32_bf16 {v(Dd + 4 * c + r)}, {v(vX + 2 * r + (c >> 1))}, s{sSELHI if c & 1 else sSELLO}, {v(vNM + r)}")
        self.spread(K + 11, vRI, K + 24)
        Pk = K + 48
        for half in range(2):
            ks = range(4 * half, 4 * half + 4)
            for k in ks:
                A(f"v_cvt_pk_bf16_f32 {v(Pk + k)}, {v(Dd + 2 * k)}, {v(Dd + 2 * k + 1)}")
            for k in ks:
                A(f"v_lshlrev_b32 {v(Dd + 2 * k)}, 16, {v(Pk + k)}")
                A(f"v_and_b32 {v(Dd + 2 * k + 1)}, s{sMASK}, {v(Pk + k)}")
            for k in ks:
                A(f"v_pk_mul_f32 {v(Dd + 2 * k, 2)}, {v(Dd + 2 * k, 2)}, {v(vRI + 2 * (k & 1), 2)}")
            for k in ks:
                A(f"v_cvt_pk_bf16_f32 {v(vU + k)}, {v(Dd + 2 * k)}, {v(Dd + 2 * k + 1)}")
            A(f"global_store_dwordx4 {v(vREG)}, {v(vU + 4 * half, 4)}, {sp(sWS)} offset:{-4096 + 4096 * half} sc1")
        self.stamp("x1st")
        flchk = [f"v_xor_b32 {v(vT + 6)}, s{sG}, {v(vT + 4)}",
                 f"v_xor_b32 {v(vT + 7)}, s{sG}, {v(vT + 5)}",
                 f"v_or_b32 {v(vT + 6)}, {v(vT + 6)}, {v(vT + 7)}",
                 f"v_cmp_ne_u32 vcc, 0, {v(vT + 6)}"]
        if flmode == 3:
            A("s_waitcnt vmcnt(2)")
            self.stamp("x1dr")
            self.poll("flag", fl, [f"v_xor_b32 {v(vT + 6)}, s{sG}, {v(vT + 4)}",
                                   f"v_xor_b32 {v(vT + 7)}, s{sG}, {v(vT + 5)}",
                                   f"v_and_b32 {v(vT + 6)}, {v(vT + 6)}, {v(5)}",
                                   f"v_and_or_b32 {v(vT + 6)}, {v(vT + 7)}, {v(6)}, {v(vT + 6)}",
                                   f"v_cmp_ne_u32 vcc, 0, {v(vT + 6)}"])
        else:
            if flmode == 1:
                A("s_waitcnt vmcnt(0)")
            if flmode < 2:
                for l in fl:
                    A(l)
            A("s_barrier")
            if flmode == 2:
                for l in fl:
                    A(l)
            A("s_waitcnt vmcnt(0)")
            self.stamp("x1dr")
            self.poll("flag", fl, flchk)
        xl = [f"global_load_dwordx4 {v(vY, 4)}, {v(vAUX)}, {sp(sWS)} sc1",
              f"global_load_dwordx4 {v(vY + 4, 4)}, {v(vAUX + 1)}, {sp(sWS)} sc1"]
        for l in xl:
            A(l)
        self.stamp("flag")
        if flmode == 3:
            A("s_barrier")
        vWA = K + 8
        A(f"s_mul_i32 s{sTMP}, s{sXCD}, 448")
        A(f"s_and_b32 s{sTMP}, s{sTMP}, 0xffffff80")
        A(f"s_lshl_b32 s{sTMP + 1}, s{sPOS}, 1")
        A(f"s_lshr_b32 s{sTMP + 2}, s{sWAVE}, 1")
        A(f"s_add_u32 s{sTMP + 1}, s{sTMP + 1}, s{sTMP + 2}")
        A(f"s_mul_i32 s{sTMP + 1}, s{sTMP + 1}, {8 * 3584}")
        A(f"s_add_u32 s{sTMP}, s{sTMP}, s{sTMP + 1}")
        A(f"v_bfe_u32 {v(vWA)}, {v(vLANE)}, 2, 3")
        A(f"v_mul_u32_u24 {v(vWA)}, 3584, {v(vWA)}")
        A(f"v_and_b32 {v(vWA + 1)}, 3, {v(vLANE)}")
        A(f"v_lshl_add_u32 {v(vWA)}, {v(vWA + 1)}, 7, {v(vWA)}")
        A(f"v_add_u32 {v(vWA)}, s{sTMP}, {v(vWA)}")
        A(f"s_bitcmp1_b32 s{sWAVE}, 0")
        A(f"s_cselect_b64 {sp(sWSEL)}, {sp(sWU)}, {sp(sWG)}")
        A(f"s_mul_i32 s{sTMP}, s{sL}, 7168")
        A(f"s_mul_i32 s{sTMP + 1}, s{sWAVE}, 1792")
        A(f"s_add_u32 s{sTMP}, s{sTMP}, s{sTMP + 1}")
        A(f"v_min_u32 {v(vWA + 1)}, 13, {v(vLANE)}")
        A(f"v_lshl_add_u32 {v(vWA + 1)}, {v(vWA + 1)}, 7, s{sTMP}")
        A(f"v_and_b32 {v(vT + 3)}, 0xfe, v0")
        i2 = o.get("i2", 2)
        if i2 == 1:
            A(f"v_lshlrev_b32 {v(vWA + 2)}, 7, {v(vT + 3)}")
            A(f"v_add_u32 {v(vWA + 2)}, {W_FLAG2}, {v(vWA + 2)}")
        if i2 == 2:
            A(f"s_lshl_b32 s{sTMP}, s{sWAVE}, 11")
            A(f"s_add_u32 s{sTMP}, s{sTMP}, s{sOWN}")
            A(f"s_add_u32 s{sTMP}, s{sTMP}, {O_X2}")
            A(f"v_lshl_add_u32 {v(vWA + 5)}, {v(vLANE)}, 4, s{sTMP}")
            A(f"v_add_u32 {v(vWA + 6)}, {O_SLOT - 4096}, {v(vREG)}")
            A(f"s_lshl_b32 s{sTMP}, s{sL}, {KS}")
            A(f"s_add_u32 s{sTMP}, s{sTMP}, {W_KEY}")
            A(f"v_lshl_add_u32 {v(vWA + 7)}, {v(vLANE)}, 4, s{sTMP}")
            A(f"s_lshl_b32 s{sTMP}, s{sL}, 2")
            A(f"s_add_u32 s{sTMP}, s{sTMP}, s{sWAVE}")
            A(f"s_lshl_b32 s{sTMP}, s{sTMP}, 7")
            A(f"s_add_u32 s{sTMP}, s{sTMP}, {W_FLAG2}")
            A(f"v_lshl_add_u32 {v(vWA + 3)}, {v(vLANE)}, 4, s{sTMP}")
            A(f"s_lshr_b32 s{sTMP}, s{sL}, 6")
            A(f"s_lshl_b32 s{sTMP}, s{sTMP}, 7")
            A(f"s_add_u32 s{sTMP}, s{sTMP}, {W_FLAG2}")
            A(f"v_lshl_add_u32 {v(vWA + 2)}, {v(vT + 3)}, 9, s{sTMP}")
            for k in range(4):
                A(f"v_mov_b32 {v(K + 32 + k)}, -1")
        A(f"v_dot2_f32_bf16 {v(K + 4)}, {v(vONE)}, s{sONES}, 0")
        for k in range(1, 4):
            A(f"v_dot2_f32_bf16 {v(K + 4)}, {v(vONE + k)}, s{sONES}, {v(K + 4)}")
        A(f"v_mov_b32 {v(K + 5)}, {L_SUMW}")
        for sh in (8, 4, 2, 1):
            A(f"v_add_f32_dpp {v(K + 4)}, {v(K + 4)}, {v(K + 4)} row_ror:{sh} row_mask:0xf bank_mask:0xf")
        A(f"v_add_f32_dpp {v(K + 4)}, {v(K + 4)}, {v(K + 4)} row_bcast:15 row_mask:0xa bank_mask:0xf")
        A(f"v_add_f32_dpp {v(K + 4)}, {v(K + 4)}, {v(K + 4)} row_bcast:31 row_mask:0xc bank_mask:0xf")
        A("s_mov_b32 exec_lo, 0")
        A("s_brev_b32 exec_hi, 1")
        A(f"ds_write_b32 {v(K + 5)}, {v(K + 4)}")
        A("s_mov_b64 exec, -1")
        A("s_barrier")
        A("s_waitcnt vmcnt(0)")
        chk8 = [f"v_max3_u32 {v(vT + 6)}, {v(vY)}, {v(vY + 1)}, {v(vY + 2)}",
                f"v_max3_u32 {v(vT + 7)}, {v(vY + 3)}, {v(vY + 4)}, {v(vY + 5)}",
                f"v_max3_u32 {v(vT + 6)}, {v(vT + 6)}, {v(vY + 6)}, {v(vY + 7)}",
                f"v_max_u32 {v(vT + 6)}, {v(vT + 6)}, {v(vT + 7)}",
                f"v_cmp_eq_u32 vcc, -1, {v(vT + 6)}"]
        self.poll("x1", xl, chk8)
        self.stamp("x1ld")
        A(f"ds_write2st64_b64 {v(vUW)}, {v(vY, 2)}, {v(vY + 2, 2)} offset0:0 offset1:9")
        A(f"ds_write2st64_b64 {v(vUW)}, {v(vY + 4, 2)}, {v(vY + 6, 2)} offset0:4 offset1:13")
        A("s_waitcnt lgkmcnt(0)")
        A("s_barrier")

        fl2 = [f"global_load_dword {v(vT + 4)}, {v(vWA + 2)}, {sp(sWS)} sc1",
               f"global_load_dword {v(vT + 5)}, {v(vWA + 2)}, {sp(sWS)} offset:{128 if i2 == 1 else 512} sc1"]
        if i2 == 1:
            for l in fl2:
                A(l)
        if i2 == 2:
            ones = v(K + 32, 4)
            A(f"s_cmp_eq_u32 s{sWAVE}, 0")
            A(f"s_cselect_b64 exec, {(1 << ((1 << KS) // 16)) - 1}, 0")
            A(f"global_store_dwordx4 {v(vWA + 7)}, {ones}, {sp(sWS)} sc1")
            A("s_mov_b64 exec, -1")
            A(f"global_store_dwordx4 {v(vWA + 5)}, {ones}, {sp(sWS)} sc1")
            A(f"global_store_dwordx4 {v(vWA + 5)}, {ones}, {sp(sWS)} offset:1024 sc1")
            A(f"global_store_dwordx4 {v(vWA + 6)}, {ones}, {sp(sWS)} sc1")
            A("s_waitcnt vmcnt(0)")
            A("s_mov_b64 exec, 0xff")
            A(f"global_store_dwordx4 {v(vWA + 3)}, {v(K + 28, 4)}, {sp(sWS)} sc1")
            A("s_mov_b64 exec, -1")
            self.stamp("init2")
        A("s_mov_b32 exec_hi, 0")
        A(f"global_load_dword v3, {v(vWA)}, {sp(sWSEL)}")
        A(f"global_load_dword v4, {v(vWA + 1)}, {sp(sWD)}")
        A("s_mov_b32 exec_hi, -1")
        if o.get("cpf2"):
            A(f"s_getpc_b64 {sp(sE)}")
            A("L_pc2:")
            A(f"v_lshlrev_b32 v7, 6, v0")
            A(f"v_min_u32 v7, L_codeend-L_pc2-4, v7")
            A(f"global_load_dword v8, v7, {sp(sE)}")
        if i2 == 1:
            A("s_waitcnt vmcnt(2)")
            self.poll("flag2", fl2, flchk)
            self.stamp("flag2")
        shp = o.get("shp", 1)
        if shp == 1:
            A("s_barrier")
        if i2 == 2:
            for l in fl2:
                A(l)
        A(f"v_mul_u32_u24 {v(vAUX)}, {RS}, {v(vT + 3)}")
        A(f"v_lshl_add_u32 {v(vAUX)}, {v(vT + 1)}, 4, {v(vAUX)}")
        A(f"s_lshl_b32 s{sTMP}, s{sL}, 5")
        A(f"s_add_u32 s{sTMP}, s{sTMP}, {W_REG + O_X2}")
        A(f"v_add_u32 {v(vAUX)}, s{sTMP}, {v(vAUX)}")
        A(f"v_add_u32 {v(vAUX + 1)}, {RS}, {v(vAUX)}")
        Tt, Xf = K + 40, K + 56
        Df = K + 72
        for k in range(8):
            A(f"v_lshlrev_b32 {v(Tt + 2 * k)}, 16, {v(vU + k)}")
            A(f"v_and_b32 {v(Tt + 2 * k + 1)}, s{sMASK}, {v(vU + k)}")
        A(f"v_lshlrev_b32 {v(Df)}, 16, {v(vD)}")
        A(f"v_and_b32 {v(Df + 1)}, s{sMASK}, {v(vD)}")
        A(f"v_lshlrev_b32 {v(Df + 2)}, 16, {v(vD + 1)}")
        A(f"v_and_b32 {v(Df + 3)}, s{sMASK}, {v(vD + 1)}")
        for k in range(8):
            c = k >> 1
            sel = "op_sel:[1,0] op_sel_hi:[1,1]" if c & 1 else "op_sel_hi:[0,1]"
            A(f"v_pk_mul_f32 {v(Tt + 2 * k, 2)}, {v(Df + (c & 2), 2)}, {v(Tt + 2 * k, 2)} {sel}")
        for k in range(8):
            A(f"v_cvt_pk_bf16_f32 {v(Xf + k)}, {v(Tt + 2 * k)}, {v(Tt + 2 * k + 1)}")
        for k in range(8):
            A(f"v_lshlrev_b32 {v(Tt + 2 * k)}, 16, {v(Xf + k)}")
            A(f"v_and_b32 {v(Tt + 2 * k + 1)}, s{sMASK}, {v(Xf + k)}")
        for r in range(4):
            for c in range(4):
                src = v(vX + 2 * r + (c >> 1))
                if c & 1:
                    A(f"v_and_b32 {v(Xf + 4 * c + r)}, s{sMASK}, {src}")
                else:
                    A(f"v_lshlrev_b32 {v(Xf + 4 * c + r)}, 16, {src}")
        vTW, vTR = vUW, vFL
        A(f"v_mul_u32_u24 {v(vTW)}, {4 * RSTR}, {v(vT + 1)}")
        A(f"v_add3_u32 {v(vTW)}, {v(vTW)}, {v(vT + 2)}, 0")
        A(f"v_add_u32 {v(vTW)}, {L_TILE}, {v(vTW)}")
        A(f"v_lshlrev_b32 {v(vTR)}, 4, {v(vLANE)}")
        A(f"s_lshl_b32 s{sTMP}, s{sL}, 13")
        A(f"s_lshl_b32 s{sTMP + 1}, s{sWAVE}, 11")
        A(f"s_add_u32 s{sTMP}, s{sTMP}, s{sTMP + 1}")
        A(f"v_add_u32 {v(vRD)}, s{sTMP}, {v(vTR)}")
        A(f"s_lshl_b32 s{sTMP}, s{sWAVE}, 10")
        A(f"s_add_u32 s{sTMP}, s{sTMP}, s{sOWN}")
        A(f"s_add_u32 s{sTMP}, s{sTMP}, {O_SLOT}")
        A(f"v_add_u32 {v(vKEY)}, s{sTMP}, {v(vTR)}")
        A(f"s_mul_i32 s{sTMP}, s{sWAVE}, {2 * RSTR}")
        A(f"s_add_u32 s{sTMP}, s{sTMP}, {L_TILE + 2 * TILE}")
        A(f"v_add_u32 {v(vTR + 2)}, s{sTMP}, {v(vTR)}")
        A(f"s_mul_i32 s{sTMP}, s{sWAVE}, {TILE}")
        A(f"s_add_u32 s{sTMP}, s{sTMP}, {L_TILE}")
        A(f"v_add_u32 {v(vTR)}, s{sTMP}, {v(vTR)}")
        self.stamp("shadow")
        if shp == 0:
            A("s_barrier")
        if i2 == 2:
            A("s_waitcnt vmcnt(0)")
            self.poll("flag2", fl2, flchk)
            self.stamp("flag2")
        A("s_barrier")
        self.stamp("b4b")
        for l in xl:
            A(l)
        A("s_waitcnt vmcnt(0)")
        self.poll("x2", xl, chk8)
        self.stamp("x2ld")

        for k in range(8):
            A(f"v_dot2_f32_bf16 {v(Tt + 2 * k)}, {v(vY + k)}, s{sSELLO}, {v(Tt + 2 * k)}")
            A(f"v_dot2_f32_bf16 {v(Tt + 2 * k + 1)}, {v(vY + k)}, s{sSELHI}, {v(Tt + 2 * k + 1)}")
        for k in range(8):
            A(f"v_cvt_pk_bf16_f32 {v(vY + k)}, {v(Tt + 2 * k)}, {v(Tt + 2 * k + 1)}")
        for k in range(8):
            A(f"v_dot2_f32_bf16 {v(Xf + 2 * k)}, {v(vY + k)}, s{sSELLO}, {v(Xf + 2 * k)}")
            A(f"v_dot2_f32_bf16 {v(Xf + 2 * k + 1)}, {v(vY + k)}, s{sSELHI}, {v(Xf + 2 * k + 1)}")
        vH = vX
        for cp in range(2):
            for r in range(4):
                A(f"v_cvt_pk_bf16_f32 {v(vH + 2 * r + cp)}, {v(Xf + 8 * cp + r)}, {v(Xf + 8 * cp + 4 + r)}")
        Rr = [K + 8 + i for i in range(4)]
        for cp in range(2):
            for r in range(4):
                A(f"v_dot2_f32_bf16 {v(V[r])}, {v(vH + 2 * r + cp)}, s{sONES}, {v(V[r]) if cp else 0}")
            for r in range(4):
                A(f"v_dot2_f32_bf16 {v(V[4 + r])}, {v(vH + 2 * r + cp)}, {v(vH + 2 * r + cp)}, {v(V[4 + r]) if cp else 0}")
            for r in range(4):
                A(f"v_dot2_f32_bf16 {v(Rr[r])}, {v(vH + 2 * r + cp)}, {v(vWR + cp)}, {v(Rr[r]) if cp else 0}")
        for i in range(4):
            A(f"v_add_f32_dpp {v(V[i])}, {v(V[i])}, {v(V[i])} row_ror:8 row_mask:0xf bank_mask:0x3")
        for i in range(4):
            A(f"v_add_f32_dpp {v(V[i])}, {v(V[i + 4])}, {v(V[i + 4])} row_ror:8 row_mask:0xf bank_mask:0xc")
        for i in range(2):
            A(f"v_add_f32_dpp {v(Rr[i])}, {v(Rr[i])}, {v(Rr[i])} row_shl:4 row_mask:0xf bank_mask:0x5")
        for i in range(2):
            A(f"v_add_f32_dpp {v(Rr[i])}, {v(Rr[i + 2])}, {v(Rr[i + 2])} row_shr:4 row_mask:0xf bank_mask:0xa")
        for i in range(2):
            A(f"v_add_f32_dpp {v(V[i])}, {v(V[i])}, {v(V[i])} row_shl:4 row_mask:0xf bank_mask:0x5")
        for i in range(2):
            A(f"v_add_f32_dpp {v(V[i])}, {v(V[i + 2])}, {v(V[i + 2])} row_shr:4 row_mask:0xf bank_mask:0xa")
        A(f"v_permlane32_swap_b32 {v(Rr[0])}, {v(Rr[1])}")
        A(f"v_and_b32 {v(K + 13)}, 0xffffff7f, {v(vSW)}")
        A(f"v_permlane32_swap_b32 {v(V[0])}, {v(V[1])}")
        A(f"v_add_f32 {v(Rr[0])}, {v(Rr[0])}, {v(Rr[1])}")
        A(f"v_add_f32 {v(V[0])}, {v(V[0])}, {v(V[1])}")
        A(f"s_mov_b64 vcc, {sp(sODD)}")
        A(f"v_add_f32_dpp {v(Rr[0])}, {v(Rr[0])}, {v(Rr[0])} row_ror:8 row_mask:0xf bank_mask:0xf")
        A(f"v_add_f32_dpp {v(V[0])}, {v(V[0])}, {v(V[0])} quad_perm:[2,3,0,1] row_mask:0xf bank_mask:0xf")
        A(f"v_mov_b32 {v(V[1])}, {v(V[0])}")
        A(f"v_add_f32_dpp {v(Rr[0])}, {v(Rr[0])}, {v(Rr[0])} quad_perm:[2,3,0,1] row_mask:0xf bank_mask:0xf")
        A(f"v_mov_b32 {v(Rr[1])}, {v(Rr[0])}")
        A(f"v_permlane16_swap_b32 {v(V[0])}, {v(V[1])}")
        A(f"v_add_f32 {v(V[0])}, {v(V[0])}, {v(V[1])}")
        A(f"v_permlane16_swap_b32 {v(Rr[0])}, {v(Rr[1])}")
        A(f"v_add_f32 {v(Rr[0])}, {v(Rr[0])}, {v(Rr[1])}")
        A(f"ds_write_b32 {v(vSW)}, {v(V[0])} offset:{L_RED2 - L_RED1}")
        A(f"ds_write_b32 {v(K + 13)}, {v(Rr[0])} offset:{L_RED2 - L_RED1 + 256}")
        A("s_waitcnt lgkmcnt(0)")
        A("s_barrier")
        self.stamp("b5")
        Hf, Dd = Xf, Tt
        A(f"ds_read_b128 {v(K, 4)}, {v(vRA)} offset:{L_RED2 - L_RED1}")
        A(f"ds_read_b128 {v(K + 4, 4)}, {v(vRA)} offset:{L_RED2 - L_RED1 + 128}")
        for r in range(4):
            A(f"ds_write_b64 {v(vTW)}, {v(vH + 2 * r, 2)} offset:{TILE + r * RSTR}")
        for r in range(4):
            for cp in range(2):
                A(f"v_lshlrev_b32 {v(Hf + 4 * r + 2 * cp)}, 16, {v(vH + 2 * r + cp)}")
                A(f"v_and_b32 {v(Hf + 4 * r + 2 * cp + 1)}, s{sMASK}, {v(vH + 2 * r + cp)}")
        A("s_waitcnt lgkmcnt(4)")
        self.row_stats(K, K + 4, K + 12, K + 13, K + 28)
        self.spread(K + 12, vNM, K + 24)
        self.spread(K + 13, vRI, K + 24)
        for k in range(8):
            r = k >> 1
            sel = "op_sel:[1,0] op_sel_hi:[1,1]" if r & 1 else "op_sel_hi:[0,1]"
            A(f"v_pk_add_f32 {v(Dd + 2 * k, 2)}, {v(vNM + (r & 2), 2)}, {v(Hf + 2 * k, 2)} {sel}")
        vX2 = vU
        for k in range(8):
            A(f"v_cvt_pk_bf16_f32 {v(vX2 + k)}, {v(Dd + 2 * k)}, {v(Dd + 2 * k + 1)}")
        for k in range(8):
            A(f"v_lshlrev_b32 {v(Dd + 2 * k)}, 16, {v(vX2 + k)}")
            A(f"v_and_b32 {v(Dd + 2 * k + 1)}, s{sMASK}, {v(vX2 + k)}")
        for k in range(8):
            r = k >> 1
            sel = "op_sel:[1,0] op_sel_hi:[1,1]" if r & 1 else "op_sel_hi:[0,1]"
            A(f"v_pk_mul_f32 {v(Dd + 2 * k, 2)}, {v(vRI + (r & 2), 2)}, {v(Dd + 2 * k, 2)} {sel}")
        for k in range(8):
            A(f"v_cvt_pk_bf16_f32 {v(vX2 + k)}, {v(Dd + 2 * k)}, {v(Dd + 2 * k + 1)}")
        for r in range(4):
            A(f"ds_write_b64 {v(vTW)}, {v(vX2 + 2 * r, 2)} offset:{r * RSTR}")
        for k in range(8):
            A(f"v_dot2_f32_bf16 {v(Hf + 2 * k)}, {v(vX2 + k)}, s{sSELLO}, {v(Hf + 2 * k)}")
            A(f"v_dot2_f32_bf16 {v(Hf + 2 * k + 1)}, {v(vX2 + k)}, s{sSELHI}, {v(Hf + 2 * k + 1)}")
        vO = vY
        A(f"v_mov_b32 {v(vT + 4)}, {L_REDK}")
        for k in range(8):
            A(f"v_cvt_pk_bf16_f32 {v(vO + k)}, {v(Hf + 2 * k)}, {v(Hf + 2 * k + 1)}")
        for r in range(4):
            A(f"ds_write_b64 {v(vTW)}, {v(vO + 2 * r, 2)} offset:{2 * TILE + r * RSTR}")
        A("s_waitcnt lgkmcnt(0)")
        self.stamp("norm")
        A("s_barrier")
        A(f"ds_read_b32 {v(K)}, {v(vT + 4)} offset:4")
        A(f"ds_read_b128 {v(vO, 4)}, {v(vTR + 2)}")
        A(f"ds_read_b128 {v(vO + 4, 4)}, {v(vTR + 2)} offset:{RSTR}")
        A(f"s_lshl_b32 s{sTMP + 1}, s{sWAVE}, 1")
        A("s_waitcnt lgkmcnt(2)")
        A(f"v_readfirstlane_b32 s{sBEST}, {v(K)}")
        A(f"s_andn2_b32 s{sTMP}, 7, s{sBEST}")
        A(f"s_mul_i32 s{sTMP + 2}, s{sTMP}, {RSTR}")
        A(f"s_sub_u32 s{sTMP + 1}, s{sTMP}, s{sTMP + 1}")
        A(f"v_add_u32 {v(vTR)}, s{sTMP + 2}, {v(vTR)}")
        A(f"ds_read_b128 {v(K + 4, 4)}, {v(vTR)}")
        A(f"s_cmp_lt_u32 s{sWAVE}, 2")
        A("s_cselect_b64 exec, -1, 0")
        A("s_waitcnt lgkmcnt(0)")
        A(f"global_store_dwordx4 {v(vKEY)}, {v(K + 4, 4)}, {sp(sWS)} sc1")
        self.stamp("slot")
        osc = " sc1" if o.get("outsc", 1) == 1 else ""
        olate = o.get("olate", 0)
        if not olate:
            for i in range(2):
                A(f"s_cmp_eq_u32 s{sTMP + 1}, {i}")
                A("s_cselect_b64 exec, 0, -1")
                A(f"global_store_dwordx4 {v(vRD)}, {v(vO + 4 * i, 4)}, {sp(sOUT)} offset:{1024 * i}{osc}")
        A("s_mov_b64 exec, -1")
        self.stamp("outst")
        A("s_barrier")
        A(f"ds_read_b32 {v(K)}, {v(vT + 4)}")
        A(f"v_mov_b32 {v(vT + 4)}, s{sG}")
        A(f"v_mov_b32 {v(vT + 5)}, 0")
        A("s_waitcnt lgkmcnt(0)")
        A(f"v_readfirstlane_b32 s{sWIN}, {v(K)}")
        A(f"s_cmp_eq_u32 s{sWIN}, s{sBEST}")
        if olate:
            A(f"s_cselect_b32 s{sTMP + 1}, s{sTMP + 1}, 8")
        else:
            A(f"s_cselect_b32 s{sTMP + 1}, 8, s{sTMP + 1}")
        for i in range(2):
            A(f"s_cmp_eq_u32 s{sTMP + 1}, {i}")
            A("s_cselect_b64 exec, 0, -1" if olate else "s_cselect_b64 exec, -1, 0")
            A(f"global_store_dwordx4 {v(vRD)}, {v(vO + 4 * i, 4)}, {sp(sOUT)} offset:{1024 * i}{osc}")
        A(f"s_or_b32 s{sTMP}, s{sL}, s{sWAVE}")
        A(f"s_cmp_eq_u32 s{sTMP}, 0")
        A("s_cselect_b64 exec, 1, 0")
        A(f"global_store_dword {v(vT + 5)}, {v(vT + 4)}, {sp(sWS)} sc1")
        A(f"s_cmp_lt_u32 s{sPOS}, 14")
        A("s_cbranch_scc0 L_fin")
        A("s_barrier")
        A("L_fin:")
        self.finish("R")

    def chans(self):
        A = self.A
        o = self.o
        vLANE = 1
        vAA, vBA, vEW, vER, vRA = 4, 12, 13, 14, 15
        vKA0, vKA1, vKB, vPW0, vPW1 = 16, 17, 18, 19, 20
        vP = 24
        vT = 28
        vACC = 40
        vA0, vA1, vB0, vB1 = 72, 104, 136, 168
        K = 72
        vWD = 200
        A("L_chan:")
        self.stamp("karg")
        if o.get("i2", 2) == 1:
            A(f"s_load_dword s{sG}, {sp(sWS)}, 0")
        A(f"s_sub_u32 s{sWAVE}, s{sWAVE}, 4")
        A(f"s_mov_b32 s{sMASK}, 0xffff0000")
        A(f"s_mul_i32 s{sOWN}, s{sL}, {RS}")
        A(f"s_add_u32 s{sOWN}, s{sOWN}, {W_REG}")
        vJ, vGq = vT + 4, vT + 5
        A(f"v_and_b32 {v(vJ)}, 15, {v(vLANE)}")
        A(f"v_lshrrev_b32 {v(vGq)}, 4, {v(vLANE)}")
        A(f"s_lshr_b32 s{sT0}, s{sWAVE}, 1")
        A(f"s_and_b32 s{sT1}, s{sWAVE}, 1")
        A(f"v_and_b32 {v(vT)}, 7, {v(vLANE)}")
        A(f"v_lshlrev_b32 {v(vRA)}, 4, {v(vT)}")
        A(f"v_add_u32 {v(vRA)}, {L_RED1}, {v(vRA)}")
        A(f"s_mul_i32 s{sTMP}, s{sT0}, {PC}")
        A(f"s_lshl_b32 s{sTMP + 1}, s{sT1}, 7")
        A(f"s_add_u32 s{sTMP}, s{sTMP}, s{sTMP + 1}")
        A(f"s_add_u32 s{sTMP}, s{sTMP}, {L_P + 4 * 26}")
        A(f"v_lshlrev_b32 {v(vT)}, 3, {v(vGq)}")
        A(f"v_sub_u32 {v(vT)}, {v(vJ)}, {v(vT)}")
        A(f"v_lshl_add_u32 {v(vAA)}, {v(vT)}, 2, s{sTMP}")
        for m in range(1, 8):
            A(f"v_add_u32 {v(vAA + m)}, {1024 * m}, {v(vAA)}")
        A(f"s_mul_i32 s{sTMP}, s{sT0}, {UC}")
        A(f"s_lshl_b32 s{sTMP + 1}, s{sT1}, 6")
        A(f"s_sub_u32 s{sTMP}, s{sTMP}, s{sTMP + 1}")
        A(f"s_add_u32 s{sTMP}, s{sTMP}, {L_U + 64}")
        A(f"v_lshl_add_u32 {v(vT)}, {v(vJ)}, 1, {v(vGq)}")
        A(f"v_lshl_add_u32 {v(vBA)}, {v(vT)}, 4, s{sTMP}")
        A(f"v_lshl_add_u32 {v(vT)}, {v(vJ)}, 2, {v(vGq)}")
        A(f"v_lshrrev_b32 {v(vT + 1)}, 3, {v(vT)}")
        A(f"v_add_u32 {v(vT)}, {v(vT)}, {v(vT + 1)}")
        A(f"s_mul_i32 s{sTMP}, s{sWAVE}, {8 * TBS}")
        A(f"v_lshl_add_u32 {v(vEW)}, {v(vT)}, 4, s{sTMP}")
        A(f"v_lshrrev_b32 {v(vT + 1)}, 3, {v(vLANE)}")
        A(f"v_add_u32 {v(vT)}, {v(vLANE)}, {v(vT + 1)}")
        A(f"s_mul_i32 s{sTMP}, s{sWAVE}, {2 * TBS}")
        A(f"v_lshl_add_u32 {v(vER)}, {v(vT)}, 4, s{sTMP}")
        KS = o.get("ks", 5)
        for k in range(4):
            A(f"v_mov_b32 {v(vACC + k)}, -1")
        A(f"s_add_u32 s{sTMP}, s{sOWN}, 4096")
        A(f"v_lshl_add_u32 {v(vACC + 4)}, v0, 4, s{sTMP}")
        A(f"s_lshl_b32 s{sTMP}, s{sL}, {KS}")
        A(f"s_add_u32 s{sTMP}, s{sTMP}, {W_KEY}")
        A(f"v_lshl_add_u32 {v(22)}, {v(vLANE)}, 4, s{sTMP}")
        ones = v(vACC, 4)
        i2 = o.get("i2", 2)
        if not i2:
            A(f"s_cmp_eq_u32 s{sWAVE}, 0")
            A(f"s_cselect_b64 exec, {(1 << ((1 << KS) // 16)) - 1}, 0")
            A(f"global_store_dwordx4 {v(22)}, {ones}, {sp(sWS)} sc1")
            A("s_mov_b64 exec, -1")
        A(f"global_store_dwordx4 {v(vACC + 4)}, {ones}, {sp(sWS)} offset:-4096 sc1")
        A(f"global_store_dwordx4 {v(vACC + 4)}, {ones}, {sp(sWS)} sc1")
        late = []
        if i2 == 1:
            A(f"v_add_u32 {v(vACC + 5)}, 8192, {v(vACC + 4)}")
            A(f"v_add_u32 {v(vACC + 6)}, 12288, {v(vACC + 4)}")
            A(f"s_lshl_b32 s{sTMP}, s{sL}, 7")
            A(f"s_add_u32 s{sTMP}, s{sTMP}, {W_FLAG2}")
            A(f"v_lshl_add_u32 {v(23)}, {v(vLANE)}, 4, s{sTMP}")
            late = [[f"global_store_dwordx4 {v(vACC + 5)}, {ones}, {sp(sWS)} offset:-4096 sc1"],
                    [f"global_store_dwordx4 {v(vACC + 5)}, {ones}, {sp(sWS)} sc1"],
                    [f"global_store_dwordx4 {v(vACC + 6)}, {ones}, {sp(sWS)} sc1",
                     f"s_cmp_eq_u32 s{sWAVE}, 0",
                     f"s_cselect_b64 exec, {(1 << ((1 << KS) // 16)) - 1}, 0",
                     f"global_store_dwordx4 {v(22)}, {ones}, {sp(sWS)} sc1",
                     "s_mov_b64 exec, -1"]]
        if not i2:
            A(f"v_add_u32 {v(vACC + 5)}, 8192, {v(vACC + 4)}")
            A(f"v_add_u32 {v(vACC + 6)}, 12288, {v(vACC + 4)}")
            A(f"global_store_dwordx4 {v(vACC + 5)}, {ones}, {sp(sWS)} offset:-4096 sc1")
            A(f"global_store_dwordx4 {v(vACC + 5)}, {ones}, {sp(sWS)} sc1")
            A(f"global_store_dwordx4 {v(vACC + 6)}, {ones}, {sp(sWS)} sc1")
        vg, vr = vT, vT + 1
        A(f"v_lshrrev_b32 {v(vg)}, 2, {v(vJ)}")
        A(f"v_and_b32 {v(vr)}, 3, {v(vJ)}")
        A(f"s_cmp_eq_u32 s{sT1}, 0")
        A("s_cbranch_scc0 L_rows_hi")
        A(f"v_mov_b32 {v(vKA0)}, {v(vJ)}")
        A(f"v_lshl_add_u32 {v(vKA1)}, {v(vg)}, 1, {v(vr)}")
        A(f"v_add_u32 {v(vKA1)}, 16, {v(vKA1)}")
        A(f"v_add_u32 {v(vT + 2)}, -4, {v(vJ)}")
        A(f"v_and_b32 {v(vT + 2)}, 15, {v(vT + 2)}")
        A(f"v_cmp_eq_u32 vcc, 3, {v(vr)}")
        A(f"v_cndmask_b32 {v(vKA1)}, {v(vKA1)}, {v(vT + 2)}, vcc")
        A(f"v_lshl_add_u32 {v(vPW0)}, {v(vJ)}, 2, {v(vGq)}")
        A(f"v_lshlrev_b32 {v(vPW0)}, 4, {v(vPW0)}")
        A(f"v_add_u32 {v(vPW1)}, 1024, {v(vPW0)}")
        A("s_branch L_rows_done")
        A("L_rows_hi:")
        A(f"v_lshrrev_b32 {v(vT + 2)}, 1, {v(vg)}")
        A(f"v_lshl_add_u32 {v(vKA0)}, {v(vg)}, 1, {v(vr)}")
        A(f"v_add3_u32 {v(vKA0)}, {v(vKA0)}, {v(vT + 2)}, 25")
        A(f"v_sub_u32 {v(vKA1)}, {v(vJ)}, {v(vg)}")
        A(f"v_add_u32 {v(vKA1)}, 35, {v(vKA1)}")
        A(f"v_lshrrev_b32 {v(vT + 2)}, 1, {v(vGq)}")
        A(f"v_lshl_add_u32 {v(vPW0)}, {v(vT + 2)}, 4, {v(vJ)}")
        A(f"v_and_b32 {v(vT + 2)}, 1, {v(vGq)}")
        A(f"v_lshl_add_u32 {v(vPW0)}, {v(vPW0)}, 1, {v(vT + 2)}")
        A(f"v_lshlrev_b32 {v(vPW0)}, 5, {v(vPW0)}")
        A(f"v_add_u32 {v(vPW0)}, 2048, {v(vPW0)}")
        A(f"v_lshlrev_b32 {v(vPW1)}, 6, {v(vLANE)}")
        A(f"v_add_u32 {v(vPW1)}, 4096, {v(vPW1)}")
        A("L_rows_done:")
        A(f"s_mul_i32 s{sTMP}, s{sT0}, {PC}")
        A(f"s_add_u32 s{sTMP}, s{sTMP}, {L_P + 64}")
        A(f"v_add_u32 {v(vPW0)}, s{sTMP}, {v(vPW0)}")
        A(f"v_add_u32 {v(vPW1)}, s{sTMP}, {v(vPW1)}")
        A(f"s_mul_i32 s{sTMP}, s{sT0}, {TABC}")
        A(f"v_lshl_add_u32 {v(vT + 2)}, {v(vGq)}, 4, s{sTMP}")
        A(f"s_movk_i32 s{sTMP + 1}, {ROWB}")
        A(f"v_mad_u32_u24 {v(vKA0)}, {v(vKA0)}, s{sTMP + 1}, {v(vT + 2)}")
        A(f"v_mad_u32_u24 {v(vKA1)}, {v(vKA1)}, s{sTMP + 1}, {v(vT + 2)}")
        A(f"v_mad_u32_u24 {v(vKB)}, {v(vJ)}, s{sTMP + 1}, {v(vT + 2)}")
        A(f"s_lshl_b32 s{sTMP + 1}, s{sT1}, 8")
        A(f"s_add_u32 m0, s{sTMP}, s{sTMP + 1}")
        A(f"s_mul_i32 s{sF}, s{sXCD}, 14")
        A(f"s_add_u32 s{sF}, s{sF}, s{sPOS}")
        A(f"s_lshl_b32 s{sTMP + 1}, s{sF}, 14")
        A(f"s_add_u32 s{sTMP + 1}, s{sTMP + 1}, 4096")
        A(f"v_lshl_add_u32 v2, v0, 2, s{sTMP + 1}")
        A(f"v_add_u32 v21, 8192, v2")

        L2E = 1.4426950408889634
        l2e_hi = struct.unpack("<f", struct.pack("<f", L2E))[0]
        l2e_lo = L2E - l2e_hi
        a, b = K, K + 2
        A(f"s_mov_b32 s{sE}, {hex(f2u(l2e_hi))}")
        A(f"s_mov_b32 s{sE + 1}, {hex(f2u(l2e_lo))}")
        A(f"s_waitcnt vmcnt({2 if i2 else 5}) lgkmcnt(0)")
        self.stamp("par")
        A(f"s_lshl_b32 s{sTMP}, s{sDT}, 16")
        A(f"s_and_b32 s{sTMP + 1}, s{sDT}, s{sMASK}")
        A(f"s_cmp_lt_u32 s{sWAVE}, 2")
        A(f"s_cselect_b32 s{sDT}, s{sTMP}, s{sTMP + 1}")
        A(f"v_lshlrev_b32 {v(a)}, 16, {v(vP)}")
        A(f"v_mov_b32 {v(a + 1)}, s{sDT}")
        A(f"v_pk_mul_f32 {v(b, 2)}, {v(a, 2)}, {sp(sE)} op_sel_hi:[1,0]")
        A(f"v_pk_fma_f32 {v(b + 2, 2)}, {v(a, 2)}, {sp(sE)}, {v(b, 2)} op_sel_hi:[1,0,1] neg_lo:[0,0,1] neg_hi:[0,0,1]")
        A(f"v_exp_f32 {v(b)}, {v(b)}")
        A(f"v_exp_f32 {v(b + 1)}, {v(b + 1)}")
        A(f"v_pk_fma_f32 {v(b + 2, 2)}, {sp(sE)}, {v(a, 2)}, {v(b + 2, 2)} op_sel:[1,0,0] op_sel_hi:[1,1,1]")
        A(f"v_mul_f32 {v(b + 2)}, {hex(f2u(0.6931471805599453))}, {v(b + 2)}")
        A(f"v_mul_f32 {v(b + 3)}, {hex(f2u(0.6931471805599453))}, {v(b + 3)}")
        A(f"v_pk_fma_f32 {v(b, 2)}, {v(b, 2)}, {v(b + 2, 2)}, {v(b, 2)}")
        A(f"v_cvt_pk_bf16_f32 {v(a)}, {v(b)}, {v(b + 1)}")
        vdt, va2, vph = K + 6, K + 7, K + 8
        A(f"v_and_b32 {v(vdt)}, s{sMASK}, {v(a)}")
        A(f"v_lshlrev_b32 {v(va2)}, 16, {v(a)}")
        A(f"v_lshlrev_b32 {v(vph)}, 16, {v(vP + 1)}")
        A(f"v_mul_f32 {v(va2)}, {v(va2)}, {v(vdt)}")
        A(f"v_mul_f32 {v(vph)}, {v(vph)}, {v(vdt)}")
        A(f"v_mul_f32 {v(va2)}, {hex(f2u(-l2e_hi))}, {v(va2)}")
        A(f"v_mul_f32 {v(vph)}, 0.15915494, {v(vph)}")
        Wp = {p: K + 10 + 2 * p for p in range(1, 17)}
        Zp = {p: K + 42 + 2 * p for p in range(1, 8)}
        G = [K + 58, K + 60]
        TT = [K + 62, K + 64, K + 66, K + 68]
        RR = [K + 70, K + 72, K + 74, K + 76]
        CV = K + 80
        A(f"v_add_f32 {v(vdt)}, {v(vdt)}, {v(vdt)}")
        A(f"v_lshlrev_b32 {v(G[0])}, 16, {v(vP + 2)}")
        A(f"v_lshlrev_b32 {v(G[0] + 1)}, 16, {v(vP + 3)}")
        A(f"v_mul_f32 {v(G[0])}, {v(G[0])}, {v(vdt)}")
        A(f"v_mul_f32 {v(G[0] + 1)}, {v(G[0] + 1)}, {v(vdt)}")
        for n, (dst, sc) in enumerate(((Wp[1], 1.0), (Wp[16], 16.0), (Zp[1], 256.0))):
            t = TT[n]
            if sc == 1.0:
                A(f"v_exp_f32 {v(t)}, {v(va2)}")
                A(f"v_fract_f32 {v(t + 1)}, {v(vph)}")
            else:
                A(f"v_mul_f32 {v(t)}, {hex(f2u(sc))}, {v(va2)}")
                A(f"v_mul_f32 {v(t + 1)}, {hex(f2u(sc))}, {v(vph)}")
                A(f"v_exp_f32 {v(t)}, {v(t)}")
                A(f"v_fract_f32 {v(t + 1)}, {v(t + 1)}")
            A(f"v_cos_f32 {v(dst)}, {v(t + 1)}")
            A(f"v_sin_f32 {v(dst + 1)}, {v(t + 1)}")
        for n, dst in enumerate((Wp[1], Wp[16], Zp[1])):
            A(f"v_pk_mul_f32 {v(dst, 2)}, {v(dst, 2)}, {v(TT[n], 2)} op_sel_hi:[1,0]")
        jobs = [(1, Wp[1], None, None, 0), (16, Zp[1], None, None, 0), (47, G[0], None, None, 1)]
        wj = []
        for p in range(2, 16):
            hb = 1 << (p.bit_length() - 1)
            x, y = (p // 2, p // 2) if hb == p else (hb, p - hb)
            wj.append((p, Wp[p], Wp[x], Wp[y], 0))
        gj = [(47 + j, G[j & 1], G[(j - 1) & 1], Wp[16], 1) for j in range(1, 16)]
        zrow = {2: 25, 3: 30, 4: 35, 5: 38, 6: 41, 7: 44}
        zj = []
        for p in range(2, 8):
            hb = 1 << (p.bit_length() - 1)
            x, y = (p // 2, p // 2) if hb == p else (hb, p - hb)
            zj.append((zrow[p], Zp[p], Zp[x], Zp[y], 0))
        tj = [(16 + k, None, Zp[1], Wp[2 * k], 0) for k in range(1, 9)]
        for z in (2, 3):
            tj += [(zrow[z] + k, None, Zp[z], Wp[4 * k], 0) for k in range(1, 5)]
        for z in (4, 5, 6, 7):
            tj += [(zrow[z] + k, None, Zp[z], Wp[8 * k], 0) for k in range(1, 3)]
        first = []
        for i in range(max(len(wj), len(gj), len(zj))):
            for q in (wj, gj, zj):
                if i < len(q):
                    first.append(q[i])
        jobs += first + tj
        A(f"v_mov_b32 {v(CV + 15)}, 0x3f80")
        pend = [(0, CV + 15)]
        slot = 0
        nb = 0
        b1_at = o.get("b1_at", 0)
        batch = o.get("batch", 6)

        def do_b1():
            self.stamp("setup")
            A("s_waitcnt vmcnt(0)")
            A("s_barrier")
            self.stamp("b1")
        if b1_at == 0:
            do_b1()
        for n, (row, dst, x, y, conj) in enumerate(jobs):
            if x is not None:
                if dst is None:
                    dst = RR[n & 3]
                for ins in self.cmul(dst, x, y, TT[n & 3]):
                    A(ins)
            A(f"v_cvt_pk_bf16_f32 {v(CV + slot)}, {v(dst)}, {'-' if conj else ''}{v(dst + 1)}")
            pend.append((row, CV + slot))
            slot = (slot + 1) % 15
            if len(pend) >= batch or n == len(jobs) - 1:
                for row_, reg in pend:
                    A(f"ds_write_addtid_b32 {v(reg)} offset:{row_ * ROWB}")
                pend = []
                nb += 1
                if nb == b1_at:
                    do_b1()
                if late and nb >= o.get("i2at", 0) + 1:
                    for l in late.pop(0):
                        A(l)
        if i2 == 1:
            A(f"s_add_u32 s{sG}, s{sG}, 0x9e3779b9")
            for k in range(4):
                A(f"v_mov_b32 {v(vACC + 8 + k)}, s{sG}")
        A("s_waitcnt lgkmcnt(0)")
        self.stamp("kgen1")
        A("s_barrier")
        fB, fA0, fA1 = K, K + 32, K + 64
        for s in range(4):
            A(f"ds_read_b128 {v(fB + 4 * s, 4)}, {v(vKB)} offset:{47 * ROWB + 64 * s}")
            A(f"ds_read_b128 {v(fA0 + 4 * s, 4)}, {v(vKA0)} offset:{64 * s}")
            A(f"ds_read_b128 {v(fA1 + 4 * s, 4)}, {v(vKA1)} offset:{64 * s}")
        D0, D1 = vACC + 16, vACC + 20
        for s in range(8):
            s2 = s + 4
            A(f"s_waitcnt lgkmcnt({9 if s2 < 8 else 3 * (7 - s)})")
            c0 = "0" if s == 0 else v(D0, 4)
            c1 = "0" if s == 0 else v(D1, 4)
            A(f"v_mfma_f32_16x16x32_bf16 {v(D0, 4)}, {v(fA0 + 4 * s, 4)}, {v(fB + 4 * s, 4)}, {c0}")
            if s2 < 8:
                A(f"ds_read_b128 {v(fB + 4 * s2, 4)}, {v(vKB)} offset:{47 * ROWB + 64 * s2}")
                A(f"ds_read_b128 {v(fA0 + 4 * s2, 4)}, {v(vKA0)} offset:{64 * s2}")
            A(f"v_mfma_f32_16x16x32_bf16 {v(D1, 4)}, {v(fA1 + 4 * s, 4)}, {v(fB + 4 * s, 4)}, {c1}")
            if s2 < 8:
                A(f"ds_read_b128 {v(fA1 + 4 * s2, 4)}, {v(vKA1)} offset:{64 * s2}")
        E = K + 96
        A(f"s_bitcmp1_b32 s{sWAVE}, 0")
        A(f"v_cmp_eq_u32 vcc, 0, {v(vLANE)}")
        A("s_nop 5")
        A("s_cbranch_scc0 L_exp_lo")
        seq2 = ["aa", "aa", "aa", "ba", "bb", "bb", "cb", "cc"]
        seq3 = ["aa", "aa", "aa", "aa", "aa", "ba", "bb", "bb", "bb", "bb", "cb", "cc", "cc", "cc"]
        ix = {"a": 0, "b": 1, "c": 2}
        for k, s in enumerate(seq3):
            A(f"v_cvt_pk_bf16_f32 {v(E + 8 + k)}, {v(D1 + ix[s[0]])}, {v(D1 + ix[s[1]])}")
        for k, w in enumerate((0, 4, 6, 10)):
            A(f"ds_write_b128 {v(vPW1)}, {v(E + 8 + w, 4)} offset:{16 * k}")
        for k, s in enumerate(seq2):
            A(f"v_cvt_pk_bf16_f32 {v(E + k)}, {v(D0 + ix[s[0]])}, {v(D0 + ix[s[1]])}")
        A(f"ds_write_b128 {v(vPW0)}, {v(E, 4)}")
        A(f"ds_write_b128 {v(vPW0)}, {v(E + 4, 4)} offset:16")
        A("L_exp_done:")
        T = self.tail
        T("L_exp_lo:")
        T(f"v_mov_b32_dpp {v(D1 + 3)}, {v(D1 + 3)} row_ror:1 row_mask:0x1 bank_mask:0xf")
        T(f"v_cvt_pk_bf16_f32 {v(E + 1)}, {v(D0 + 1)}, {v(D0)}")
        T(f"v_cvt_pk_bf16_f32 {v(E + 2)}, {v(D0 + 2)}, {v(D0 + 1)}")
        T(f"v_cvt_pk_bf16_f32 {v(E + 3)}, {v(D0 + 3)}, {v(D0 + 2)}")
        T(f"v_cndmask_b32 {v(E + 8)}, {v(D1 + 3)}, 0, vcc")
        T(f"v_cndmask_b32 {v(E + 9)}, {v(D1)}, {v(D1 + 3)}, vcc")
        T(f"v_cvt_pk_bf16_f32 {v(E)}, {v(D0)}, {v(E + 8)}")
        T(f"v_cvt_pk_bf16_f32 {v(E + 4)}, {v(D1)}, {v(E + 9)}")
        T(f"v_cvt_pk_bf16_f32 {v(E + 5)}, {v(D1)}, {v(D1)}")
        T(f"v_cvt_pk_bf16_f32 {v(E + 6)}, {v(D1 + 1)}, {v(D1)}")
        T(f"v_cvt_pk_bf16_f32 {v(E + 7)}, {v(D1 + 2)}, {v(D1 + 1)}")
        T(f"ds_write_b128 {v(vPW0)}, {v(E, 4)}")
        T(f"ds_write_b128 {v(vPW1)}, {v(E + 4, 4)}")
        T("s_branch L_exp_done")
        A("s_waitcnt lgkmcnt(0)")
        if i2 == 1:
            A("s_waitcnt vmcnt(0)")
        self.stamp("kgen2")
        A("s_barrier")
        if i2 == 1:
            A(f"s_cmp_eq_u32 s{sWAVE}, 0")
            A("s_cselect_b64 exec, 0xff, 0")
            A(f"global_store_dwordx4 {v(23)}, {v(vACC + 8, 4)}, {sp(sWS)} sc1")
            A("s_mov_b64 exec, -1")

        def rdA(buf, rho, m):
            return [f"ds_read2_b32 {v(buf + 4 * m, 2)}, {v(vAA + m)} offset0:{64 * rho + 6} offset1:{64 * rho + 4}",
                    f"ds_read2_b32 {v(buf + 4 * m + 2, 2)}, {v(vAA + m)} offset0:{64 * rho + 2} offset1:{64 * rho}"]

        def rdB(buf, rho, n):
            return [f"ds_read_b128 {v(buf + 4 * n, 4)}, {v(vBA)} offset:{128 * (3 - rho) + 512 * (7 - n)}"]

        for m in range(8):
            for l in rdA(vA0, 0, m):
                A(l)
        A(f"s_lshl_b32 s{sTMP}, s{sWAVE}, 11")
        A(f"s_add_u32 s{sTMP}, s{sTMP}, s{sOWN}")
        A(f"s_add_u32 s{sTMP}, s{sTMP}, {O_X2}")
        A(f"v_lshl_add_u32 {v(vT)}, {v(vLANE)}, 4, s{sTMP}")
        A(f"v_mov_b32 {v(vT + 3)}, {L_REDK}")
        vF = 216
        A(f"s_bitcmp1_b32 s{sWAVE}, 0")
        A(f"s_cselect_b64 {sp(sWSEL)}, {sp(sWU)}, {sp(sWG)}")
        A(f"s_lshr_b32 s{sTMP + 1}, s{sWAVE}, 1")
        A(f"s_mul_i32 s{sTMP + 1}, s{sTMP + 1}, {256 * 3584}")
        A(f"s_lshl_b32 s{sTMP + 2}, s{sF}, 5")
        A(f"s_add_u32 s{sTMP + 1}, s{sTMP + 1}, s{sTMP + 2}")
        A(f"v_lshrrev_b32 {v(vF + 3)}, 1, {v(vLANE)}")
        A(f"v_and_b32 {v(vF + 4)}, 1, {v(vLANE)}")
        A(f"v_mul_u32_u24 {v(vF)}, {8 * 3584}, {v(vF + 3)}")
        A(f"v_lshl_add_u32 {v(vF)}, {v(vF + 4)}, 4, {v(vF)}")
        A(f"v_add_u32 {v(vF)}, s{sTMP + 1}, {v(vF)}")
        A(f"v_add_u32 {v(vF + 2)}, {7 * 3584}, {v(vF)}")
        A(f"v_add_u32 {v(vF + 1)}, {4 * 3584}, {v(vF)}")
        A(f"v_add_u32 {v(vF)}, 3584, {v(vF)}")
        A("s_waitcnt lgkmcnt(0)")
        self.stamp("apre")
        A("s_barrier")
        self.stamp("b3")
        if o.get("prio", 1):
            A("s_setprio 2")

        bufA, bufB = [vA0, vA1], [vB0, vB1]
        for n in range(7, -1, -1):
            for l in rdB(vB0, 0, n):
                A(l)
        started = set()
        for rho in range(4):
            a_, b_ = bufA[rho & 1], bufB[rho & 1]
            order = [(n - 7 + tb, tb, n) for n in range(7, -1, -1) for tb in range(7 - n, 8)]
            if rho == 3:
                order = [(n - 7 + tb, tb, n) for tb in range(8) for n in range(7 - tb, 8)]
            fill = []
            if rho + 1 < 4:
                nb_, na_ = bufB[(rho + 1) & 1], bufA[(rho + 1) & 1]
                for m in range(8):
                    fill += rdB(nb_, rho + 1, 7 - m)
                    fill += rdA(na_, rho + 1, m)
            issued = 0
            seen = set()
            done_at = {}
            for i, (m, tb, n) in enumerate(order):
                done_at[tb] = i
            for i, (m, tb, n) in enumerate(order):
                if rho == 0 and n not in seen:
                    A(f"s_waitcnt lgkmcnt({min(15, n + issued)})")
                    seen.add(n)
                elif i == 0:
                    A("s_waitcnt lgkmcnt(0)")
                acc = v(vACC + 4 * tb, 4)
                c = acc if tb in started else "0"
                started.add(tb)
                A(f"v_mfma_f32_16x16x32_bf16 {acc}, {v(a_ + 4 * m, 4)}, {v(b_ + 4 * n, 4)}, {c}")
                if i >= 1 and fill:
                    A(fill.pop(0))
                    issued += 1
                if rho == 3:
                    for t in range(7):
                        if done_at[t] + 8 == i or (i == len(order) - 1 and done_at[t] + 8 > i):
                            A(f"ds_write_b128 {v(vEW)}, {v(vACC + 4 * t, 4)} offset:{t * TBS}")
            assert not fill
            if o.get("cyc") and rho < 3:
                self.stamp(f"cls{rho}")
        A(f"ds_write_b128 {v(vEW)}, {v(vACC + 28, 4)} offset:{7 * TBS}")
        self.stamp("conv")
        A("s_waitcnt lgkmcnt(0)")
        A("s_barrier")
        for i in range(2):
            for s in range(4):
                A(f"ds_read_b128 {v(K + 16 * i + 4 * s, 4)}, {v(vER)} offset:{s * 8 * TBS + i * TBS}")
        for i in range(2):
            A(f"s_waitcnt lgkmcnt({4 * (1 - i)})")
            b0 = K + 16 * i
            for c in range(2):
                for h in range(2):
                    A(f"v_pk_add_f32 {v(b0 + 8 * c + 2 * h, 2)}, {v(b0 + 8 * c + 2 * h, 2)}, {v(b0 + 8 * c + 4 + 2 * h, 2)}")
            for c in range(2):
                for h in range(2):
                    A(f"v_cvt_pk_bf16_f32 {v(K + 32 + 4 * i + 2 * c + h)}, {v(b0 + 8 * c + 2 * h)}, {v(b0 + 8 * c + 2 * h + 1)}")
            A(f"global_store_dwordx4 {v(vT)}, {v(K + 32 + 4 * i, 4)}, {sp(sWS)} offset:{1024 * i} sc1")
        self.stamp("x2st")
        L2E = 1.4426950408889634
        vWG, WGp, WDp, vY = 120, 152, 184, 112
        n1 = o.get("st1", 4)
        wl = [f"global_load_dwordx4 {v(vWG + 4 * k, 4)}, {v(vF + k // 3)}, {sp(sWSEL)} offset:{(k % 3 - 1) * 3584}" for k in range(8)]
        wdl = [f"global_load_dword {v(vWD + k)}, {'v21' if k >> 3 else 'v2'}, {sp(sWD)} offset:{((k & 7) - 4) * 1024}" for k in range(16)]
        A(f"s_add_u32 s{sTMP}, s{sOWN}, {O_PART}")
        A(f"v_lshl_add_u32 {v(vF + 6)}, v0, 3, s{sTMP}")
        A(f"s_cmp_lt_u32 s{sPOS}, 14")
        A("s_cbranch_scc0 L_nst1")
        for l in wl[:n1]:
            A(l)
        A(f"s_waitcnt vmcnt({n1})")
        A("s_barrier")
        T("L_nst1:")
        T("s_waitcnt vmcnt(0)")
        T("s_barrier")
        T("s_branch L_now")
        self.stamp("x2dr")
        A(f"s_mov_b32 s{sRP0}, 0x05040100")
        A(f"s_mov_b32 s{sRP1}, 0x07060302")
        A(f"s_lshr_b32 s{sTMP}, s{sWAVE}, 1")
        A(f"s_lshl_b32 s{sTMP}, s{sTMP}, 9")
        A(f"s_add_u32 s{sTMP}, s{sTMP}, {W_REG + O_SLOT}")
        A(f"v_lshl_add_u32 {v(vF + 3)}, {v(vF + 3)}, 4, s{sTMP}")
        A(f"v_lshlrev_b32 {v(vF + 4)}, 6, {v(vF + 4)}")
        A(f"v_and_b32 {v(vF + 5)}, 12, {v(vLANE)}")
        A(f"v_lshl_add_u32 {v(vF + 4)}, {v(vF + 5)}, 2, {v(vF + 4)}")
        A(f"v_lshrrev_b32 {v(vF + 5)}, 5, {v(vLANE)}")
        A(f"v_lshl_add_u32 {v(vF + 4)}, {v(vF + 5)}, 3, {v(vF + 4)}")
        A(f"s_and_b32 s{sTMP}, s{sWAVE}, 1")
        A(f"s_lshl_b32 s{sTMP}, s{sTMP}, 7")
        A(f"s_lshr_b32 s{sTMP + 1}, s{sWAVE}, 1")
        A(f"s_lshl_b32 s{sTMP + 1}, s{sTMP + 1}, 2")
        A(f"s_add_u32 s{sTMP}, s{sTMP}, s{sTMP + 1}")
        A(f"s_add_u32 s{sTMP}, s{sTMP}, {L_REDF}")
        A(f"v_add_u32 {v(vF + 4)}, s{sTMP}, {v(vF + 4)}")
        A(f"v_and_b32 {v(vF + 5)}, 15, {v(vLANE)}")
        A(f"v_lshlrev_b32 {v(vF + 5)}, 3, {v(vF + 5)}")
        A(f"v_add_u32 {v(vF + 5)}, {L_REDF}, {v(vF + 5)}")
        for l in wl[n1:] + (wdl if o.get("wdp", 1) == 0 else []):
            A(l)
        self.stamp("wq")
        A("L_now:")
        perms = []
        for kp in range(8):
            lo, hi = vWD + 2 * kp, vWD + 2 * kp + 1
            perms.append(f"v_perm_b32 {v(WDp + 2 * kp)}, {v(hi)}, {v(lo)}, s{sRP0}")
            perms.append(f"v_perm_b32 {v(WDp + 2 * kp + 1)}, {v(hi)}, {v(lo)}, s{sRP1}")
        for kp in range(4):
            for d in range(4):
                lo, hi = vWG + 8 * kp + d, vWG + 8 * kp + 4 + d
                perms.append(f"v_perm_b32 {v(WGp + 8 * kp + 2 * d)}, {v(hi)}, {v(lo)}, s{sRP0}")
                perms.append(f"v_perm_b32 {v(WGp + 8 * kp + 2 * d + 1)}, {v(hi)}, {v(lo)}, s{sRP1}")
        wdp = o.get("wdp", 1)
        perms1 = perms if wdp == 0 else perms[16:]
        A(f"v_lshlrev_b32 {v(vT + 1)}, {KS}, {v(vLANE)}")
        A(f"v_add_u32 {v(vT + 1)}, {W_KEY}, {v(vT + 1)}")
        for q in range(1, 4):
            A(f"v_add_u32 {v(vT + 8 + q)}, {(64 * q) << KS}, {v(vT + 1)}")
        A(f"s_cmp_eq_u32 s{sWAVE}, 0")
        A("s_barrier")
        A("s_cbranch_scc0 L_nokey")
        self.key_calc(K, vRA, vLANE)
        A("s_mov_b64 exec, 1")
        A(f"global_store_dword {v(22)}, {v(K + 8)}, {sp(sWS)} sc1")
        A(f"ds_write_b32 {v(vT + 3)}, {v(K + 8)} offset:4")
        A("s_mov_b64 exec, -1")
        self.stamp("key")
        A("s_waitcnt lgkmcnt(0)")
        A("s_barrier")
        A("s_waitcnt vmcnt(1)")
        for l in perms1:
            A(l)
        A("s_branch L_keyed")
        A("L_nokey:")
        A("s_waitcnt vmcnt(0)")
        self.stamp("wld")
        for l in perms1:
            A(l)
        A(f"s_cmp_eq_u32 s{sWAVE}, 1")
        A("s_barrier")
        A("s_cbranch_scc0 L_keyed")
        self.stamp("b5c")
        k2 = vT + 4
        kl = [f"global_load_dword {v(K + q)}, {v(vT + 8 + q) if q else v(vT + 1)}, {sp(sWS)} sc1" for q in range(4)]
        for l in kl:
            A(l)
        A("s_waitcnt vmcnt(0)")
        self.poll("key", kl, [f"v_max3_u32 {v(k2)}, {v(K)}, {v(K + 1)}, {v(K + 2)}",
                              f"v_max_u32 {v(k2)}, {v(k2)}, {v(K + 3)}",
                              f"v_cmp_eq_u32 vcc, -1, {v(k2)}"])
        self.stamp("keyld")
        A(f"v_max_u32_dpp {v(k2)}, {v(k2)}, {v(k2)} quad_perm:[1,0,3,2] row_mask:0xf bank_mask:0xf")
        A(f"v_max_u32_dpp {v(k2)}, {v(k2)}, {v(k2)} quad_perm:[2,3,0,1] row_mask:0xf bank_mask:0xf")
        A(f"v_max_u32_dpp {v(k2)}, {v(k2)}, {v(k2)} row_half_mirror row_mask:0xf bank_mask:0xf")
        A(f"v_max_u32_dpp {v(k2)}, {v(k2)}, {v(k2)} row_mirror row_mask:0xf bank_mask:0xf")
        A(f"v_max_u32_dpp {v(k2)}, {v(k2)}, {v(k2)} row_bcast:15 row_mask:0xa bank_mask:0xf")
        A(f"v_max_u32_dpp {v(k2)}, {v(k2)}, {v(k2)} row_bcast:31 row_mask:0xc bank_mask:0xf")
        A("s_mov_b32 exec_lo, 0")
        A("s_brev_b32 exec_hi, 1")
        A(f"ds_write_b32 {v(vT + 3)}, {v(k2)}")
        A("s_mov_b64 exec, -1")
        A("s_waitcnt lgkmcnt(0)")
        A("L_keyed:")
        A(f"s_cmp_lt_u32 s{sPOS}, 14")
        A("s_barrier")
        A("s_cbranch_scc0 L_cfin")
        A(f"ds_read_b32 {v(K)}, {v(vT + 3)}")
        A("s_waitcnt lgkmcnt(0)")
        A(f"v_readfirstlane_b32 s{sWIN}, {v(K)}")
        A(f"s_andn2_b32 s{sT0}, 2047, s{sWIN}")
        A(f"s_lshr_b32 s{sT1}, s{sT0}, 3")
        A(f"s_mul_i32 s{sT1}, s{sT1}, {RS}")
        A(f"v_add_u32 {v(vF + 3)}, s{sT1}, {v(vF + 3)}")
        sl = [f"global_load_dwordx4 {v(K, 4)}, {v(vF + 3)}, {sp(sWS)} sc1"]
        A(sl[0])
        if o.get("wdp", 1) == 1:
            for l in wdl:
                A(l)
        self.stamp("win")
        A(f"s_waitcnt vmcnt({16 if o.get('wdp', 1) == 1 else 0})")
        self.poll("sel", sl, [f"v_max3_u32 {v(vT + 6)}, {v(K)}, {v(K + 1)}, {v(K + 2)}",
                              f"v_max_u32 {v(vT + 6)}, {v(vT + 6)}, {v(K + 3)}",
                              f"v_cmp_eq_u32 vcc, -1, {v(vT + 6)}"])
        self.stamp("sel")
        chk8 = [f"v_max3_u32 {v(vT + 6)}, {v(vY)}, {v(vY + 1)}, {v(vY + 2)}",
                f"v_max3_u32 {v(vT + 7)}, {v(vY + 3)}, {v(vY + 4)}, {v(vY + 5)}",
                f"v_max3_u32 {v(vT + 6)}, {v(vT + 6)}, {v(vY + 6)}, {v(vY + 7)}",
                f"v_max_u32 {v(vT + 6)}, {v(vT + 6)}, {v(vT + 7)}",
                f"v_cmp_eq_u32 vcc, -1, {v(vT + 6)}"]
        V2 = [K + 8 + i for i in range(8)]
        for kp in range(4):
            for c in range(8):
                A(f"v_dot2_f32_bf16 {v(V2[c])}, {v(K + kp)}, {v(WGp + 8 * kp + c)}, {v(V2[c]) if kp else 0}")
        self.reduce8(V2, K + 16)
        A(f"ds_write_b32 {v(vF + 4)}, {v(V2[0])}")
        if o.get("wdp", 1) == 1:
            A("s_waitcnt vmcnt(0)")
            for l in perms[:16]:
                A(l)
        A("s_waitcnt lgkmcnt(0)")
        A("s_barrier")
        A(f"ds_read_b64 {v(K, 2)}, {v(vF + 5)}")
        A(f"ds_read_b64 {v(K + 2, 2)}, {v(vF + 5)} offset:128")
        A("s_waitcnt lgkmcnt(0)")
        A(f"v_add_f32 {v(K)}, {v(K)}, {v(K + 1)}")
        A(f"v_add_f32 {v(K + 2)}, {v(K + 2)}, {v(K + 3)}")
        A(f"v_cvt_pk_bf16_f32 {v(K + 1)}, {v(K)}, {v(K + 2)}")
        A(f"v_lshlrev_b32 {v(K)}, 16, {v(K + 1)}")
        A(f"v_mul_f32 {v(K + 3)}, {hex(f2u(-L2E))}, {v(K)}")
        A(f"v_exp_f32 {v(K + 3)}, {v(K + 3)}")
        A(f"v_and_b32 {v(K + 2)}, s{sMASK}, {v(K + 1)}")
        A(f"v_add_f32 {v(K + 3)}, 1.0, {v(K + 3)}")
        A(f"v_rcp_f32 {v(K + 3)}, {v(K + 3)}")
        A(f"v_mul_f32 {v(K)}, {v(K)}, {v(K + 3)}")
        A(f"v_cvt_pk_bf16_f32 {v(K)}, {v(K)}, {v(K)}")
        A(f"v_and_b32 {v(K)}, s{sMASK}, {v(K)}")
        A(f"v_mul_f32 {v(K)}, {v(K)}, {v(K + 2)}")
        A(f"v_mov_b32_dpp {v(K + 1)}, {v(K)} quad_perm:[1,1,3,3] row_mask:0xf bank_mask:0xf")
        A(f"v_cvt_pk_bf16_f32 {v(K)}, {v(K)}, {v(K + 1)}")
        for kp in range(8):
            A(f"v_readlane_b32 s{sH + kp}, {v(K)}, {2 * kp}")
        for kp in range(8):
            for c in range(2):
                A(f"v_dot2_f32_bf16 {v(K + 4 + c)}, s{sH + kp}, {v(WDp + 2 * kp + c)}, {v(K + 4 + c) if kp else 0}")
        A(f"global_store_dwordx2 {v(vF + 6)}, {v(K + 4, 2)}, {sp(sWS)} sc1")
        self.stamp("part")
        A(f"s_cmp_lt_u32 s{sPOS}, 8")
        A("s_cbranch_scc0 L_cfin")
        A(f"s_cmp_lt_u32 s{sWAVE}, 2")
        A("s_cbranch_scc0 L_cfin")
        A(f"s_lshl_b32 s{sTMP}, s{sXCD}, 3")
        A(f"s_add_u32 s{sTMP}, s{sTMP}, s{sPOS}")
        A(f"s_lshl_b32 s{sTMP}, s{sTMP}, 1")
        A(f"s_add_u32 s{sTMP}, s{sTMP}, s{sWAVE}")
        A(f"v_lshrrev_b32 {v(vT)}, 5, {v(vLANE)}")
        A(f"v_bfe_u32 {v(vT + 1)}, {v(vLANE)}, 4, 1")
        A(f"v_lshl_add_u32 {v(vT)}, {v(vT + 1)}, 1, {v(vT)}")
        A(f"s_lshl_b32 s{sTMP + 1}, s{sTMP}, 3")
        A(f"v_lshl_add_u32 {v(vT)}, {v(vT)}, 1, s{sTMP + 1}")
        A(f"s_add_u32 s{sT1}, s{sT1}, {W_REG + O_SLOT}")
        A(f"v_add_u32 {v(vT + 1)}, s{sT1}, {v(vT)}")
        xh = [f"global_load_ushort {v(K + 20)}, {v(vT + 1)}, {sp(sWS)} sc1",
              f"global_load_ushort {v(K + 21)}, {v(vT + 1)}, {sp(sWS)} offset:1024 sc1"]
        for l in xh:
            A(l)
        A(f"s_lshl_b32 s{sTMP + 1}, s{sT0}, 10")
        A(f"v_add_u32 {v(vT)}, s{sTMP + 1}, {v(vT)}")
        A(f"v_min_u32 {v(vT + 2)}, 55, {v(vLANE)}")
        A(f"v_mul_u32_u24 {v(vT + 3)}, 4682, {v(vT + 2)}")
        A(f"v_lshrrev_b32 {v(vT + 3)}, 16, {v(vT + 3)}")
        A(f"v_mad_u32_u24 {v(vT + 2)}, {v(vT + 3)}, 18, {v(vT + 2)}")
        A(f"v_mul_u32_u24 {v(vT + 2)}, {RS}, {v(vT + 2)}")
        A(f"s_lshl_b32 s{sTMP + 1}, s{sTMP}, 4")
        A(f"s_add_u32 s{sTMP + 1}, s{sTMP + 1}, {W_REG + O_PART}")
        A(f"v_add_u32 {v(vT + 2)}, s{sTMP + 1}, {v(vT + 2)}")
        A(f"v_add_u32 {v(vT + 3)}, {128 * RS}, {v(vT + 2)}")
        A(f"s_ashr_i32 s{sTMP + 2}, s{sWIN}, 31")
        A(f"s_not_b32 s{sTMP + 2}, s{sTMP + 2}")
        A(f"s_or_b32 s{sTMP + 2}, s{sTMP + 2}, 0x80000000")
        A(f"s_xor_b32 s{sTMP + 2}, s{sTMP + 2}, s{sWIN}")
        A(f"s_and_b32 s{sTMP + 2}, s{sTMP + 2}, 0xfffff800")
        A(f"s_or_b32 s{sTMP + 2}, s{sTMP + 2}, 0x400")
        A(f"v_cvt_pk_bf16_f32 {v(K + 22)}, s{sTMP + 2}, s{sTMP + 2}")
        A(f"v_and_b32 {v(K + 22)}, s{sMASK}, {v(K + 22)}")
        A(f"v_mul_f32 {v(K + 22)}, {hex(f2u(-L2E))}, {v(K + 22)}")
        A(f"v_exp_f32 {v(K + 22)}, {v(K + 22)}")
        A(f"v_add_f32 {v(K + 22)}, 1.0, {v(K + 22)}")
        A(f"v_rcp_f32 {v(K + 22)}, {v(K + 22)}")
        A(f"v_cvt_pk_bf16_f32 {v(K + 22)}, {v(K + 22)}, {v(K + 22)}")
        A(f"v_and_b32 {v(K + 22)}, s{sMASK}, {v(K + 22)}")
        A("s_waitcnt vmcnt(0)")
        self.stamp("partdr")
        pl = [f"global_load_dwordx4 {v(vY, 4)}, {v(vT + 2)}, {sp(sWS)} sc1",
              f"global_load_dwordx4 {v(vY + 4, 4)}, {v(vT + 3)}, {sp(sWS)} sc1"]
        for l in pl:
            A(l)
        self.poll("xh", xh, [f"v_max_u32 {v(vT + 6)}, {v(K + 20)}, {v(K + 21)}",
                             f"v_cmp_eq_u32 vcc, 0xffff, {v(vT + 6)}"])
        A(f"v_lshlrev_b32 {v(K + 20)}, 16, {v(K + 20)}")
        A(f"v_lshlrev_b32 {v(K + 21)}, 16, {v(K + 21)}")
        A("s_waitcnt vmcnt(0)")
        self.poll("part", pl, chk8)
        self.stamp("partld")
        A(f"v_cmp_gt_u32 vcc, 56, {v(vLANE)}")
        A(f"v_pk_add_f32 {v(vY, 2)}, {v(vY, 2)}, {v(vY + 4, 2)}")
        A(f"v_pk_add_f32 {v(vY + 2, 2)}, {v(vY + 2, 2)}, {v(vY + 6, 2)}")
        for c in range(4):
            A(f"v_cndmask_b32 {v(vY + c)}, 0, {v(vY + c)}, vcc")
        A(f"v_permlane32_swap_b32 {v(vY)}, {v(vY + 1)}")
        A(f"v_permlane32_swap_b32 {v(vY + 2)}, {v(vY + 3)}")
        A(f"v_add_f32 {v(vY)}, {v(vY)}, {v(vY + 1)}")
        A(f"v_add_f32 {v(vY + 2)}, {v(vY + 2)}, {v(vY + 3)}")
        A(f"v_permlane16_swap_b32 {v(vY)}, {v(vY + 2)}")
        A(f"v_add_f32 {v(vY)}, {v(vY)}, {v(vY + 2)}")
        for sh in (8, 4, 2, 1):
            A(f"v_add_f32_dpp {v(vY)}, {v(vY)}, {v(vY)} row_ror:{sh} row_mask:0xf bank_mask:0xf")
        y = vY
        A(f"v_cvt_pk_bf16_f32 {v(y)}, {v(y)}, {v(y)}")
        A(f"v_and_b32 {v(y)}, s{sMASK}, {v(y)}")
        A(f"v_mul_f32 {v(y)}, {v(y)}, {v(K + 22)}")
        A(f"v_cvt_pk_bf16_f32 {v(y)}, {v(y)}, {v(y)}")
        A(f"v_and_b32 {v(y)}, s{sMASK}, {v(y)}")
        A(f"v_add_f32 {v(y)}, {v(y)}, {v(K + 20)}")
        A(f"v_cvt_pk_bf16_f32 {v(y)}, {v(y)}, {v(y)}")
        A(f"v_and_b32 {v(y)}, s{sMASK}, {v(y)}")
        A(f"v_add_f32 {v(y)}, {v(y)}, {v(K + 21)}")
        A(f"v_cvt_pk_bf16_f32 {v(y)}, {v(y)}, {v(y)}")
        A("s_mov_b32 exec_lo, 0x00010001")
        A("s_mov_b32 exec_hi, 0x00010001")
        A(f"global_store_short {v(vT)}, {v(y)}, {sp(sOUT)}")
        A("L_cfin:")
        self.finish("C")

    def text(self):
        lines = self.build()
        src = open("sequential_preLN__ssm_conv_s4d__moe_arch_mod__prompt.s.ref").read()
        head = [l for l in src.split("\n") if l.startswith(";") and "@launch" not in l]
        head = head[:head.index("; Override launch geometry by editing the next line (default: block=256,")]
        out = head + [f"; @launch grid=(256,1,1) block=(512,1,1) lds={LDS_BYTES}",
                      '.amdgcn_target "amdgcn-amd-amdhsa--gfx950"', ".text", f".globl {KNAME}", ".p2align 8",
                      f".type {KNAME},@function"]
        out += [l if l.endswith(":") else "    " + l for l in lines]
        out += [".section .rodata,\"a\"", ".p2align 6", f".amdhsa_kernel {KNAME}",
                "  .amdhsa_next_free_vgpr 224", "  .amdhsa_next_free_sgpr 102", "  .amdhsa_accum_offset 224",
                "  .amdhsa_group_segment_fixed_size 0", "  .amdhsa_kernarg_size 120", "  .amdhsa_user_sgpr_count 2",
                "  .amdhsa_user_sgpr_kernarg_segment_ptr 1", "  .amdhsa_system_sgpr_workgroup_id_x 1",
                ".end_amdhsa_kernel", ""]
        return "\n".join(out)


if __name__ == "__main__":
    out = sys.argv[1]
    opts = {}
    stamp = False
    for a in sys.argv[2:]:
        if a == "stamp":
            stamp = True
        else:
            k, val = a.split("=")
            opts[k] = val if k in ('pr', 'few') else int(val)
    g = Gen(stamp, opts)
    open(out, "w").write(g.text())
    if g.stamp_on:
        open(out + ".names", "w").write(" ".join(g.allnames["R"]) + "\n" + " ".join(g.allnames["C"]))
    print(g.info, "lds", LDS_BYTES)
```

```python
import sys
import struct
from asmlib import Asm, align8

KNAME = "sequential_preLN__ssm_conv_s4d__moe_arch_mod__prompt_kernel"


def f2u(x):
    return struct.unpack("<I", struct.pack("<f", x))[0]


W_FLAG = 0x1000
W_KEY = 0x9000
W_FLAG2 = 0x11000
W_REG = 0x31000
RS = 20608
O_X1, O_X2, O_SLOT, O_PART = 0, 8192, 16384, 18432
W_STAMP = 0x800000
ROWB = 544
TABC = 63 * ROWB
L_TAB = 0
L_P = 68608
PC = 8256
L_U = L_P + 2 * PC
UC = 4608
L_RED1 = (L_U + 2 * UC + 255) // 256 * 256
L_RED2 = L_RED1 + 256
L_SUMW = L_RED2 + 384
L_REDK = L_SUMW + 16
L_REDF = L_REDK + 16
LDS_BYTES = L_REDF + 256
L_EPI = 0
TBS = 1152
L_TILE = 40960
RSTR = 1040
TILE = 8 * RSTR
sX, sLA, sAI, sCR, sCI, sLDT, sD = 4, 6, 8, 10, 12, 14, 16
sWR, sWG, sWU, sWD, sOUT, sDBG, sWS = 20, 22, 24, 26, 28, 30, 32
sL, sPOS, sXCD, sWAVE, sG, sDT, sT0, sT1, sSPIN, sF = 34, 35, 36, 37, 38, 39, 40, 41, 42, 43
sODD = 44
sSELLO, sSELHI, sONES, sMASK = 46, 47, 48, 49
sWSEL = 50
sBEST, sWIN, sRP0, sRP1 = 52, 53, 54, 55
sH = 56
sE = 64
sTMP = 66
sOWN = 71
sSTAMP = 72


def sp(r):
    return f"s[{r}:{r + 1}]"


def v(r, n=1):
    return f"v{r}" if n == 1 else f"v[{r}:{r + n - 1}]"


class Gen:
    def __init__(self, stamp=False, opts=None):
        self.A = Asm()
        self.tail = Asm()
        self.stamp_on = stamp
        self.nstamp = 0
        self.names = []
        self.o = dict(opts or {})
        self.only = None
        self.few = None
        if "few" in self.o:
            self.few = ["start", "end"] + self.o["few"].split(".")
            self.stamp_on = True
        self.role = "R"
        if "pr" in self.o:
            self.only = tuple(self.o["pr"].split("."))
            self.stamp_on = True
            self.o["probe"] = 1 if self.only[0] == "R" else 101

    def stamp(self, name):
        if not self.stamp_on:
            return
        if self.only and name != "start" and (self.role, name) != self.only:
            return
        if self.few and name not in self.few:
            return
        k = self.nstamp
        self.nstamp += 1
        self.names.append(name)
        assert sSTAMP + k < 100
        self.A(f"s_memtime s[100:101]" if self.o.get("cyc") else f"s_memrealtime s[100:101]")
        self.A("s_waitcnt lgkmcnt(0)")
        self.A(f"s_mov_b32 s{sSTAMP + k}, s100")

    def poll(self, name, loads, check, base_exec="-1"):
        A = self.A
        for c in check:
            A(c)
        A(f"s_cbranch_vccnz L_retry_{name}")
        A(f"L_ok_{name}:")
        T = self.tail
        T(f"L_retry_{name}:")
        T(f"s_mov_b32 s{sSPIN}, 0x40000")
        T(f"L_again_{name}:")
        T(f"s_sub_u32 s{sSPIN}, s{sSPIN}, 1")
        T(f"s_cbranch_scc1 L_ok_{name}")
        T("s_mov_b64 exec, vcc")
        for l in loads:
            T(l)
        T("s_waitcnt vmcnt(0)")
        for c in check:
            T(c)
        T(f"s_mov_b64 exec, {base_exec}")
        T(f"s_cbranch_vccnz L_again_{name}")
        T(f"s_branch L_ok_{name}")

    def cmul(self, d, x, y, t):
        return [f"v_pk_mul_f32 {v(t, 2)}, {v(x, 2)}, {v(y, 2)} op_sel:[0,0] op_sel_hi:[0,1]",
                f"v_pk_fma_f32 {v(d, 2)}, {v(x, 2)}, {v(y, 2)}, {v(t, 2)} op_sel:[1,1,0] op_sel_hi:[1,0,1] neg_lo:[1,0,0]"]

    def reduce8(self, V, t):
        A = self.A
        for i in range(4):
            A(f"v_add_f32_dpp {v(V[i])}, {v(V[i])}, {v(V[i])} row_ror:8 row_mask:0xf bank_mask:0x3")
        for i in range(4):
            A(f"v_add_f32_dpp {v(V[i])}, {v(V[i + 4])}, {v(V[i + 4])} row_ror:8 row_mask:0xf bank_mask:0xc")
        for i in range(2):
            A(f"v_add_f32_dpp {v(V[i])}, {v(V[i])}, {v(V[i])} row_shl:4 row_mask:0xf bank_mask:0x5")
        for i in range(2):
            A(f"v_add_f32_dpp {v(V[i])}, {v(V[i + 2])}, {v(V[i + 2])} row_shr:4 row_mask:0xf bank_mask:0xa")
        A(f"v_permlane32_swap_b32 {v(V[0])}, {v(V[1])}")
        A(f"v_add_f32 {v(V[0])}, {v(V[0])}, {v(V[1])}")
        A(f"v_add_f32_dpp {v(V[0])}, {v(V[0])}, {v(V[0])} quad_perm:[2,3,0,1] row_mask:0xf bank_mask:0xf")
        A(f"v_mov_b32 {v(t)}, {v(V[0])}")
        A(f"v_permlane16_swap_b32 {v(V[0])}, {v(t)}")
        A(f"v_add_f32 {v(V[0])}, {v(V[0])}, {v(t)}")

    def row_stats(self, S, Q, negm, rinv, t):
        A = self.A
        A(f"v_pk_add_f32 {v(S, 2)}, {v(S, 2)}, {v(S + 2, 2)}")
        A(f"v_pk_add_f32 {v(Q, 2)}, {v(Q, 2)}, {v(Q + 2, 2)}")
        A(f"v_add_f32 {v(S)}, {v(S)}, {v(S + 1)}")
        A(f"v_add_f32 {v(Q)}, {v(Q)}, {v(Q + 1)}")
        A(f"v_mul_f32 {v(S)}, {hex(f2u(1 / 512))}, {v(S)}")
        A(f"v_mul_f32 {v(Q)}, {hex(f2u(1 / 512))}, {v(Q)}")
        A(f"v_fma_f32 {v(Q)}, -{v(S)}, {v(S)}, {v(Q)}")
        A(f"v_max_f32 {v(Q)}, 0, {v(Q)}")
        A(f"v_cvt_pk_bf16_f32 {v(t)}, -{v(S)}, {v(Q)}")
        A(f"v_and_b32 {v(Q)}, s{sMASK}, {v(t)}")
        A(f"v_add_f32 {v(Q)}, {hex(f2u(1e-5))}, {v(Q)}")
        A(f"v_cvt_pk_bf16_f32 {v(Q)}, {v(Q)}, {v(Q)}")
        A(f"v_and_b32 {v(Q)}, s{sMASK}, {v(Q)}")
        A(f"v_sqrt_f32 {v(Q)}, {v(Q)}")
        A(f"v_lshlrev_b32 {v(negm)}, 16, {v(t)}")
        A(f"v_cvt_pk_bf16_f32 {v(Q)}, {v(Q)}, {v(Q)}")
        A(f"v_and_b32 {v(Q)}, s{sMASK}, {v(Q)}")
        A(f"v_rcp_f32 {v(rinv)}, {v(Q)}")

    def spread(self, val, dst, t):
        A = self.A
        for r in range(4):
            A(f"v_mov_b32_dpp {v(t + r)}, {v(val)} row_newbcast:{4 + r} row_mask:0xf bank_mask:0xf")
        for r in range(4):
            A(f"v_cndmask_b32_dpp {v(dst + r)}, {v(val)}, {v(t + r)}, vcc row_newbcast:{r} row_mask:0xf bank_mask:0xf")

    def key_calc(self, K, vRA, vLANE):
        A = self.A
        A(f"v_mov_b32 {v(K + 14)}, {L_SUMW}")
        A(f"ds_read_b128 {v(K, 4)}, {v(vRA)} offset:{L_RED2 - L_RED1}")
        A(f"ds_read_b128 {v(K + 4, 4)}, {v(vRA)} offset:{L_RED2 - L_RED1 + 128}")
        A(f"ds_read_b128 {v(K + 8, 4)}, {v(vRA)} offset:{L_RED2 - L_RED1 + 256}")
        A(f"ds_read_b32 {v(K + 15)}, {v(K + 14)}")
        A(f"s_lshl_b32 s{sTMP}, s{sL}, 3")
        A(f"s_sub_u32 s{sTMP}, 2047, s{sTMP}")
        A(f"v_and_b32 {v(K + 14)}, 7, {v(vLANE)}")
        A(f"v_sub_u32 {v(K + 14)}, s{sTMP}, {v(K + 14)}")
        A("s_waitcnt lgkmcnt(2)")
        self.row_stats(K, K + 4, K + 12, K + 13, K + 28)
        A("s_waitcnt lgkmcnt(0)")
        A(f"v_pk_add_f32 {v(K + 8, 2)}, {v(K + 8, 2)}, {v(K + 10, 2)}")
        A(f"v_add_f32 {v(K + 8)}, {v(K + 8)}, {v(K + 9)}")
        A(f"v_fmac_f32 {v(K + 8)}, {v(K + 12)}, {v(K + 15)}")
        A(f"v_mul_f32 {v(K + 8)}, {v(K + 8)}, {v(K + 13)}")
        A(f"v_ashrrev_i32 {v(K + 9)}, 31, {v(K + 8)}")
        A(f"v_or_b32 {v(K + 9)}, 0x80000000, {v(K + 9)}")
        A(f"v_xor_b32 {v(K + 8)}, {v(K + 8)}, {v(K + 9)}")
        A(f"v_and_b32 {v(K + 8)}, 0xfffff800, {v(K + 8)}")
        A(f"v_or_b32 {v(K + 8)}, {v(K + 8)}, {v(K + 14)}")
        A(f"v_min_u32 {v(K + 8)}, -2, {v(K + 8)}")
        A(f"v_max_u32_dpp {v(K + 8)}, {v(K + 8)}, {v(K + 8)} quad_perm:[1,0,3,2] row_mask:0xf bank_mask:0xf")
        A(f"v_max_u32_dpp {v(K + 8)}, {v(K + 8)}, {v(K + 8)} quad_perm:[2,3,0,1] row_mask:0xf bank_mask:0xf")
        A(f"v_max_u32_dpp {v(K + 8)}, {v(K + 8)}, {v(K + 8)} row_half_mirror row_mask:0xf bank_mask:0xf")

    def finish(self, role):
        A = self.A
        o = self.o
        if self.stamp_on:
            self.stamp("end")
            self.allnames[role] = self.names
        if self.stamp_on and "probe" in o:
            k = o["probe"]
            if k == 98 and role == "R":
                A(f"s_getreg_b32 s{sTMP}, hwreg(HW_REG_XCC_ID, 0, 4)")
                A(f"s_sub_u32 s{sTMP}, s{sTMP}, s2")
                A(f"s_and_b32 s{sTMP}, s{sTMP}, 7")
                A(f"s_mul_i32 s{sTMP}, s{sTMP}, 1000")
                A(f"s_add_u32 s{sTMP}, s{sTMP}, 2000")
            elif k == 99 and role == "R":
                A("s_memtime s[96:97]")
                A("s_waitcnt lgkmcnt(0)")
                A("s_sub_u32 s96, s96, s98")
                A(f"s_sub_u32 s97, s{sSTAMP + self.nstamp - 1}, s{sSTAMP}")
                A("s_mov_b64 exec, -1")
                A("v_cvt_f32_u32 v2, s96")
                A("v_cvt_f32_u32 v3, s97")
                A("v_rcp_f32 v3, v3")
                A("s_nop 1")
                A("v_mul_f32 v2, v2, v3")
                A("v_mul_f32 v2, 0x43c80000, v2")
                A("v_cvt_u32_f32 v2, v2")
                A("s_nop 1")
                A(f"v_readfirstlane_b32 s{sTMP}, v2")
                A(f"s_add_u32 s{sTMP}, s{sTMP}, 2000")
            elif k < 0 and role == "R":
                A(f"s_mov_b32 s{sTMP}, {-k}")
            elif k >= 0 and (k >= 100) == (role == "C"):
                A(f"s_sub_u32 s{sTMP}, s{sSTAMP + k % 100}, s{sSTAMP}")
                A(f"s_cmp_lt_u32 s{sTMP}, 3000")
                A(f"s_cselect_b32 s{sTMP}, s{sTMP}, 0")
                A(f"s_mul_i32 s{sTMP}, s{sTMP}, 20")
                A(f"s_add_u32 s{sTMP}, s{sTMP}, 2000")
            else:
                A(f"s_mov_b32 s{sTMP}, 0")
            A(f"L_spin{role}:")
            A("s_memrealtime s[100:101]")
            A("s_waitcnt lgkmcnt(0)")
            A(f"s_sub_u32 s100, s100, s{sSTAMP}")
            A(f"s_cmp_lt_u32 s100, s{sTMP}")
            A(f"s_cbranch_scc1 L_spin{role}")
        elif self.stamp_on:
            A("s_mov_b64 exec, 1")
            A(f"s_lshl_b32 s{sTMP}, s2, 3")
            A(f"s_add_u32 s{sTMP}, s{sTMP}, s{sWAVE}")
            if role == "C":
                A(f"s_add_u32 s{sTMP}, s{sTMP}, 4")
            A(f"s_lshl_b32 s{sTMP}, s{sTMP}, 7")
            A(f"s_add_u32 s{sTMP}, s{sTMP}, {W_STAMP}")
            A(f"v_mov_b32 v1, s{sTMP}")
            for k in range(self.nstamp):
                A(f"v_mov_b32 v2, s{sSTAMP + k}")
                A(f"global_store_dword v1, v2, {sp(sWS)} offset:{4 * k}")
        A("s_endpgm")

    def build(self):
        A = self.A
        self.allnames = {}
        o = self.o
        A(f"{KNAME}:")
        self.stamp("start")
        A("s_load_dwordx16 s[4:19], s[0:1], 0")
        A("s_cmp_ge_u32 s2, 256")
        A("s_cbranch_scc1 L_end")
        if o.get("probe", 0) == 99:
            A("s_memtime s[98:99]")
        A(f"s_getpc_b64 {sp(sE)}")
        A("L_pc:")
        A("v_lshlrev_b32 v2, 5, v0")
        A(f"v_min_u32 v2, L_codeend-L_pc-4, v2")
        A(f"global_load_dword v3, v2, {sp(sE)}")
        A("s_load_dwordx8 s[20:27], s[0:1], 64")
        A("s_load_dwordx4 s[28:31], s[0:1], 96")
        A("s_load_dwordx2 s[32:33], s[0:1], 112")
        A("v_lshrrev_b32 v4, 6, v0")
        A(f"s_and_b32 s{sXCD}, s2, 7")
        A(f"v_readfirstlane_b32 s{sWAVE}, v4")
        A(f"s_lshr_b32 s{sPOS}, s2, 3")
        A(f"s_lshl_b32 s{sL}, s{sXCD}, 5")
        A(f"s_add_u32 s{sL}, s{sL}, s{sPOS}")
        A("v_and_b32 v1, 63, v0")
        A("v_and_b32 v0, 0xff, v0")
        A("v_lshrrev_b32 v32, 1, v0")
        A("v_and_b32 v33, 1, v0")
        A("v_lshlrev_b32 v34, 3, v32")
        A(f"s_lshl_b32 s{sT0}, s{sL}, 13")
        A("v_lshl_add_u32 v23, v33, 12, v34")
        A(f"v_add_u32 v23, s{sT0}, v23")
        A(f"s_lshl_b32 s{sT0}, s{sL}, 9")
        A(f"v_lshl_add_u32 v28, v0, 1, s{sT0}")
        A(f"s_lshl_b32 s{sT1}, s{sL}, 2")
        A(f"s_cmp_lt_u32 s{sWAVE}, 4")
        A("s_waitcnt lgkmcnt(0)")
        A("s_cbranch_scc1 L_rows")
        nt = ' nt' if o.get('ntx', 1) else ''
        for k, sb in enumerate((sLA, sAI, sCR, sCI)):
            A(f"global_load_ushort v{24 + k}, v28, {sp(sb)}{nt}")
        A(f"s_load_dword s{sDT}, {sp(sLDT)}, s{sT1}")
        A("s_branch L_chan")
        A("L_rows:")
        self.rows()
        self.names = self.names[:1]
        self.nstamp = min(self.nstamp, 1)
        A(".p2align 6")
        self.role = "C"
        self.chans()
        A("L_end:")
        A("s_endpgm")
        for l in self.tail.L:
            A(l)
        A("L_codeend:")
        lines, nops = A.padded()
        lines, nbytes, promoted, missed = align8(lines)
        self.info = dict(nops=nops, bytes=nbytes, promoted=promoted, missed=missed, lines=len(lines))
        return lines

    def rows(self):
        A = self.A
        o = self.o
        vLANE = 1
        vX, vU, vD, vWR = 212, 10, 18, 20
        vREG, vRD, vAUX = 22, 23, 24
        vKEY, vSW, vRA, vFL, vUW = 26, 27, 28, 29, 30
        vT = 32
        vWG, vWD = 40, 72
        vY = 88
        vONE = 96
        K = 100
        L2E = 1.4426950408889634
        nt = ' nt' if o.get('ntx', 1) else ''
        for r in range(4):
            A(f"global_load_dwordx2 {v(vX + 2 * r, 2)}, {v(vRD)}, {sp(sX)} offset:{1024 * r}{nt}")
        self.stamp("karg")
        A(f"s_load_dword s{sG}, {sp(sWS)}, 0")
        A(f"v_lshlrev_b32 {v(vT + 3)}, 4, {v(vLANE)}")
        A(f"global_load_dwordx2 {v(vD, 2)}, {v(vT + 2)}, {sp(sD)}")
        A(f"global_load_dwordx2 {v(vWR, 2)}, {v(vT + 2)}, {sp(sWR)}")
        A(f"global_load_dwordx4 {v(vONE, 4)}, {v(vT + 3)}, {sp(sWR)}")
        A(f"s_mul_i32 s{sOWN}, s{sL}, {RS}")
        A(f"s_add_u32 s{sOWN}, s{sOWN}, {W_REG}")
        A(f"s_add_u32 s{sT0}, s{sOWN}, 4096")
        A(f"v_lshl_add_u32 {v(vREG)}, v0, 4, s{sT0}")
        A(f"s_mov_b32 s{sMASK}, 0xffff0000")
        A(f"s_mov_b32 s{sODD}, 0xaaaaaaaa")
        A(f"s_mov_b32 s{sODD + 1}, 0xaaaaaaaa")
        A(f"s_mov_b32 s{sSELLO}, 0x3f80")
        A(f"s_mov_b32 s{sSELHI}, 0x3f800000")
        A(f"s_mov_b32 s{sONES}, 0x3f803f80")
        A(f"s_and_b32 s{sTMP}, s{sL}, 1")
        A(f"s_lshl_b32 s{sTMP}, s{sTMP}, 12")
        A(f"s_lshr_b32 s{sTMP + 1}, s{sL}, 1")
        A(f"s_lshl_b32 s{sTMP + 1}, s{sTMP + 1}, 5")
        A(f"s_add_u32 s{sTMP}, s{sTMP}, s{sTMP + 1}")
        A(f"s_add_u32 s{sTMP}, s{sTMP}, {W_REG + O_X1}")
        A(f"v_mul_u32_u24 {v(vAUX)}, {RS}, {v(vT)}")
        A(f"v_lshl_add_u32 {v(vAUX)}, {v(vT + 1)}, 4, {v(vAUX)}")
        A(f"v_add_u32 {v(vAUX)}, s{sTMP}, {v(vAUX)}")
        A(f"v_add_u32 {v(vAUX + 1)}, {128 * RS}, {v(vAUX)}")
        FS = o.get("fs", 7)
        KS = o.get("ks", 5)
        A(f"v_lshlrev_b32 {v(vFL)}, {FS}, {v(vT)}")
        A(f"v_add_u32 {v(vFL)}, {W_FLAG}, {v(vFL)}")
        A(f"v_add_u32 {v(vFL + 2)}, {128 << FS}, {v(vFL)}")
        A(f"s_lshl_b32 s{sT0}, s{sL}, {FS}")
        A(f"s_add_u32 s{sT0}, s{sT0}, {W_FLAG}")
        A(f"v_lshl_add_u32 {v(vKEY)}, {v(vLANE)}, 4, s{sT0}")
        A(f"v_cmp_ne_u32 vcc, s{sL}, {v(vT)}")
        A(f"s_sub_u32 s{sT0}, s{sL}, 128")
        A(f"v_cndmask_b32 {v(5)}, 0, -1, vcc")
        A(f"v_cmp_ne_u32 vcc, s{sT0}, {v(vT)}")
        A(f"v_cndmask_b32 {v(6)}, 0, -1, vcc")
        A(f"v_lshlrev_b32 {v(vSW)}, 6, {v(vT + 1)}")
        A(f"v_and_b32 {v(vT + 3)}, 4, {v(vLANE)}")
        A(f"v_lshl_add_u32 {v(vSW)}, {v(vT + 3)}, 3, {v(vSW)}")
        A(f"v_and_b32 {v(vT + 3)}, 8, {v(vLANE)}")
        A(f"v_lshl_add_u32 {v(vSW)}, {v(vT + 3)}, 4, {v(vSW)}")
        A(f"v_lshrrev_b32 {v(vT + 3)}, 5, {v(vLANE)}")
        A(f"v_lshl_add_u32 {v(vSW)}, {v(vT + 3)}, 4, {v(vSW)}")
        A(f"s_lshl_b32 s{sTMP}, s{sWAVE}, 2")
        A(f"s_add_u32 s{sTMP}, s{sTMP}, {L_RED1}")
        A(f"v_add_u32 {v(vSW)}, s{sTMP}, {v(vSW)}")
        A(f"v_and_b32 {v(vT + 3)}, 7, {v(vLANE)}")
        A(f"v_lshlrev_b32 {v(vRA)}, 4, {v(vT + 3)}")
        A(f"v_add_u32 {v(vRA)}, {L_RED1}, {v(vRA)}")
        A(f"v_lshlrev_b32 {v(vUW)}, 3, v0")
        A(f"v_mov_b32 {v(K)}, 0")
        A(f"v_mov_b32 {v(K + 1)}, 0")
        A(f"v_min_u32 {v(vT + 3)}, 472, {v(vUW)}")
        A(f"v_add_u32 {v(vT + 3)}, {L_U}, {v(vT + 3)}")
        A(f"v_min_u32 {v(vT + 4)}, 56, {v(vUW)}")
        A(f"v_add_u32 {v(vT + 4)}, {L_P}, {v(vT + 4)}")
        A(f"ds_write2st64_b64 {v(vT + 3)}, {v(K, 2)}, {v(K, 2)} offset0:0 offset1:9")
        A(f"ds_write_b64 {v(vT + 4)}, {v(K, 2)}")
        A(f"ds_write_b64 {v(vT + 4)}, {v(K, 2)} offset:{PC}")
        A(f"v_add_u32 {v(vUW)}, {L_U + 480}, {v(vUW)}")

        V = [K + i for i in range(8)]
        A("s_waitcnt vmcnt(3)")
        self.stamp("x")
        for r in range(4):
            A(f"v_dot2_f32_bf16 {v(V[r])}, {v(vX + 2 * r)}, s{sONES}, 0")
        for r in range(4):
            A(f"v_dot2_f32_bf16 {v(V[4 + r])}, {v(vX + 2 * r)}, {v(vX + 2 * r)}, 0")
        for r in range(4):
            A(f"v_dot2_f32_bf16 {v(V[r])}, {v(vX + 2 * r + 1)}, s{sONES}, {v(V[r])}")
        for r in range(4):
            A(f"v_dot2_f32_bf16 {v(V[4 + r])}, {v(vX + 2 * r + 1)}, {v(vX + 2 * r + 1)}, {v(V[4 + r])}")
        self.reduce8(V, K + 8)
        A(f"ds_write_b32 {v(vSW)}, {v(V[0])}")
        A("s_waitcnt lgkmcnt(0)")
        A("s_barrier")
        self.stamp("b1")
        A(f"ds_read_b128 {v(K, 4)}, {v(vRA)}")
        A(f"ds_read_b128 {v(K + 4, 4)}, {v(vRA)} offset:128")
        A(f"s_add_u32 s{sG}, s{sG}, 0x9e3779b9")
        fw = o.get("fw", 1)
        for k in range(4 if fw else 1):
            A(f"v_mov_b32 {v(K + 28 + k)}, s{sG}")
        A(f"s_cmp_eq_u32 s{sWAVE}, 0")
        if fw:
            A(f"s_cselect_b64 exec, {(1 << ((1 << FS) // 16)) - 1}, 0")
            A(f"global_store_dwordx4 {v(vKEY)}, {v(K + 28, 4)}, {sp(sWS)} sc1")
        else:
            A("s_cselect_b64 exec, 1, 0")
            A(f"global_store_dword {v(vKEY)}, {v(K + 28)}, {sp(sWS)} sc1")
        A("s_mov_b64 exec, -1")
        flmode = o.get("flmode", 1)
        fl = [f"global_load_dword {v(vT + 4)}, {v(vFL)}, {sp(sWS)} sc1",
              f"global_load_dword {v(vT + 5)}, {v(vFL + 2)}, {sp(sWS)} sc1"]
        if flmode == 3:
            for l in fl:
                A(l)
        A(f"s_mov_b64 vcc, {sp(sODD)}")
        A("s_waitcnt lgkmcnt(0)")
        vNM, vRI = K + 16, K + 20
        self.row_stats(K, K + 4, K + 10, K + 11, K + 12)
        self.spread(K + 10, vNM, K + 24)
        Dd = K + 32
        for c in range(4):
            for r in range(4):
                A(f"v_dot2_f32_bf16 {v(Dd + 4 * c + r)}, {v(vX + 2 * r + (c >> 1))}, s{sSELHI if c & 1 else sSELLO}, {v(vNM + r)}")
        self.spread(K + 11, vRI, K + 24)
        Pk = K + 48
        for half in range(2):
            ks = range(4 * half, 4 * half + 4)
            for k in ks:
                A(f"v_cvt_pk_bf16_f32 {v(Pk + k)}, {v(Dd + 2 * k)}, {v(Dd + 2 * k + 1)}")
            for k in ks:
                A(f"v_lshlrev_b32 {v(Dd + 2 * k)}, 16, {v(Pk + k)}")
                A(f"v_and_b32 {v(Dd + 2 * k + 1)}, s{sMASK}, {v(Pk + k)}")
            for k in ks:
                A(f"v_pk_mul_f32 {v(Dd + 2 * k, 2)}, {v(Dd + 2 * k, 2)}, {v(vRI + 2 * (k & 1), 2)}")
            for k in ks:
                A(f"v_cvt_pk_bf16_f32 {v(vU + k)}, {v(Dd + 2 * k)}, {v(Dd + 2 * k + 1)}")
            A(f"global_store_dwordx4 {v(vREG)}, {v(vU + 4 * half, 4)}, {sp(sWS)} offset:{-4096 + 4096 * half} sc1")
        self.stamp("x1st")
        flchk = [f"v_xor_b32 {v(vT + 6)}, s{sG}, {v(vT + 4)}",
                 f"v_xor_b32 {v(vT + 7)}, s{sG}, {v(vT + 5)}",
                 f"v_or_b32 {v(vT + 6)}, {v(vT + 6)}, {v(vT + 7)}",
                 f"v_cmp_ne_u32 vcc, 0, {v(vT + 6)}"]
        if flmode == 3:
            A("s_waitcnt vmcnt(2)")
            self.stamp("x1dr")
            self.poll("flag", fl, [f"v_xor_b32 {v(vT + 6)}, s{sG}, {v(vT + 4)}",
                                   f"v_xor_b32 {v(vT + 7)}, s{sG}, {v(vT + 5)}",
                                   f"v_and_b32 {v(vT + 6)}, {v(vT + 6)}, {v(5)}",
                                   f"v_and_or_b32 {v(vT + 6)}, {v(vT + 7)}, {v(6)}, {v(vT + 6)}",
                                   f"v_cmp_ne_u32 vcc, 0, {v(vT + 6)}"])
        else:
            if flmode == 1:
                A("s_waitcnt vmcnt(0)")
            if flmode < 2:
                for l in fl:
                    A(l)
            A("s_barrier")
            if flmode == 2:
                for l in fl:
                    A(l)
            A("s_waitcnt vmcnt(0)")
            self.stamp("x1dr")
            self.poll("flag", fl, flchk)
        xl = [f"global_load_dwordx4 {v(vY, 4)}, {v(vAUX)}, {sp(sWS)} sc1",
              f"global_load_dwordx4 {v(vY + 4, 4)}, {v(vAUX + 1)}, {sp(sWS)} sc1"]
        for l in xl:
            A(l)
        self.stamp("flag")
        if flmode == 3:
            A("s_barrier")
        vWA = K + 8
        if not o.get("early", 1):
            A(f"s_mul_i32 s{sTMP}, s{sXCD}, 448")
            A(f"s_and_b32 s{sTMP}, s{sTMP}, 0xffffff80")
            A(f"s_lshl_b32 s{sTMP + 1}, s{sPOS}, 1")
            A(f"s_lshr_b32 s{sTMP + 2}, s{sWAVE}, 1")
            A(f"s_add_u32 s{sTMP + 1}, s{sTMP + 1}, s{sTMP + 2}")
            A(f"s_mul_i32 s{sTMP + 1}, s{sTMP + 1}, {8 * 3584}")
            A(f"s_add_u32 s{sTMP}, s{sTMP}, s{sTMP + 1}")
            A(f"v_bfe_u32 {v(vWA)}, {v(vLANE)}, 2, 3")
            A(f"v_mul_u32_u24 {v(vWA)}, 3584, {v(vWA)}")
            A(f"v_and_b32 {v(vWA + 1)}, 3, {v(vLANE)}")
            A(f"v_lshl_add_u32 {v(vWA)}, {v(vWA + 1)}, 7, {v(vWA)}")
            A(f"v_add_u32 {v(vWA)}, s{sTMP}, {v(vWA)}")
            A(f"s_bitcmp1_b32 s{sWAVE}, 0")
            A(f"s_cselect_b64 {sp(sWSEL)}, {sp(sWU)}, {sp(sWG)}")
            A(f"s_mul_i32 s{sTMP}, s{sL}, 7168")
            A(f"s_mul_i32 s{sTMP + 1}, s{sWAVE}, 1792")
            A(f"s_add_u32 s{sTMP}, s{sTMP}, s{sTMP + 1}")
            A(f"v_min_u32 {v(vWA + 1)}, 13, {v(vLANE)}")
            A(f"v_lshl_add_u32 {v(vWA + 1)}, {v(vWA + 1)}, 7, s{sTMP}")
        A(f"v_and_b32 {v(vT + 3)}, 0xfe, v0")
        i2 = o.get("i2", 2)
        if i2 == 1:
            A(f"v_lshlrev_b32 {v(vWA + 2)}, 7, {v(vT + 3)}")
            A(f"v_add_u32 {v(vWA + 2)}, {W_FLAG2}, {v(vWA + 2)}")
        if i2 == 2:
            A(f"s_lshl_b32 s{sTMP}, s{sWAVE}, 11")
            A(f"s_add_u32 s{sTMP}, s{sTMP}, s{sOWN}")
            A(f"s_add_u32 s{sTMP}, s{sTMP}, {O_X2}")
            A(f"v_lshl_add_u32 {v(vWA + 5)}, {v(vLANE)}, 4, s{sTMP}")
            A(f"v_add_u32 {v(vWA + 6)}, {O_SLOT - 4096}, {v(vREG)}")
            A(f"s_lshl_b32 s{sTMP}, s{sL}, {KS}")
            A(f"s_add_u32 s{sTMP}, s{sTMP}, {W_KEY}")
            A(f"v_lshl_add_u32 {v(vWA + 7)}, {v(vLANE)}, 4, s{sTMP}")
            A(f"s_lshl_b32 s{sTMP}, s{sL}, 2")
            A(f"s_add_u32 s{sTMP}, s{sTMP}, s{sWAVE}")
            A(f"s_lshl_b32 s{sTMP}, s{sTMP}, 7")
            A(f"s_add_u32 s{sTMP}, s{sTMP}, {W_FLAG2}")
            A(f"v_lshl_add_u32 {v(vWA + 3)}, {v(vLANE)}, 4, s{sTMP}")
            A(f"s_lshr_b32 s{sTMP}, s{sL}, 6")
            A(f"s_lshl_b32 s{sTMP}, s{sTMP}, 7")
            A(f"s_add_u32 s{sTMP}, s{sTMP}, {W_FLAG2}")
            A(f"v_lshl_add_u32 {v(vWA + 2)}, {v(vT + 3)}, 9, s{sTMP}")
            for k in range(4):
                A(f"v_mov_b32 {v(K + 32 + k)}, -1")
        A(f"v_dot2_f32_bf16 {v(K + 4)}, {v(vONE)}, s{sONES}, 0")
        for k in range(1, 4):
            A(f"v_dot2_f32_bf16 {v(K + 4)}, {v(vONE + k)}, s{sONES}, {v(K + 4)}")
        A(f"v_mov_b32 {v(K + 5)}, {L_SUMW}")
        for sh in (8, 4, 2, 1):
            A(f"v_add_f32_dpp {v(K + 4)}, {v(K + 4)}, {v(K + 4)} row_ror:{sh} row_mask:0xf bank_mask:0xf")
        A(f"v_add_f32_dpp {v(K + 4)}, {v(K + 4)}, {v(K + 4)} row_bcast:15 row_mask:0xa bank_mask:0xf")
        A(f"v_add_f32_dpp {v(K + 4)}, {v(K + 4)}, {v(K + 4)} row_bcast:31 row_mask:0xc bank_mask:0xf")
        A("s_mov_b32 exec_lo, 0")
        A("s_brev_b32 exec_hi, 1")
        A(f"ds_write_b32 {v(K + 5)}, {v(K + 4)}")
        A("s_mov_b64 exec, -1")
        A("s_barrier")
        A("s_waitcnt vmcnt(0)")
        chk8 = [f"v_max3_u32 {v(vT + 6)}, {v(vY)}, {v(vY + 1)}, {v(vY + 2)}",
                f"v_max3_u32 {v(vT + 7)}, {v(vY + 3)}, {v(vY + 4)}, {v(vY + 5)}",
                f"v_max3_u32 {v(vT + 6)}, {v(vT + 6)}, {v(vY + 6)}, {v(vY + 7)}",
                f"v_max_u32 {v(vT + 6)}, {v(vT + 6)}, {v(vT + 7)}",
                f"v_cmp_eq_u32 vcc, -1, {v(vT + 6)}"]
        self.poll("x1", xl, chk8)
        self.stamp("x1ld")
        A(f"ds_write2st64_b64 {v(vUW)}, {v(vY, 2)}, {v(vY + 2, 2)} offset0:0 offset1:9")
        A(f"ds_write2st64_b64 {v(vUW)}, {v(vY + 4, 2)}, {v(vY + 6, 2)} offset0:4 offset1:13")
        A("s_waitcnt lgkmcnt(0)")
        A("s_barrier")

        fl2 = [f"global_load_dword {v(vT + 4)}, {v(vWA + 2)}, {sp(sWS)} sc1",
               f"global_load_dword {v(vT + 5)}, {v(vWA + 2)}, {sp(sWS)} offset:{128 if i2 == 1 else 512} sc1"]
        if i2 == 1:
            for l in fl2:
                A(l)
        if i2 == 2:
            ones = v(K + 32, 4)
            A(f"s_cmp_eq_u32 s{sWAVE}, 0")
            A(f"s_cselect_b64 exec, {(1 << ((1 << KS) // 16)) - 1}, 0")
            A(f"global_store_dwordx4 {v(vWA + 7)}, {ones}, {sp(sWS)} sc1")
            A("s_mov_b64 exec, -1")
            A(f"global_store_dwordx4 {v(vWA + 5)}, {ones}, {sp(sWS)} sc1")
            A(f"global_store_dwordx4 {v(vWA + 5)}, {ones}, {sp(sWS)} offset:1024 sc1")
            A(f"global_store_dwordx4 {v(vWA + 6)}, {ones}, {sp(sWS)} sc1")
            A("s_waitcnt vmcnt(0)")
            A("s_mov_b64 exec, 0xff")
            A(f"global_store_dwordx4 {v(vWA + 3)}, {v(K + 28, 4)}, {sp(sWS)} sc1")
            A("s_mov_b64 exec, -1")
            self.stamp("init2")
        early = o.get("early", 1)
        if not early:
            A("s_mov_b32 exec_hi, 0")
            A(f"global_load_dword v3, {v(vWA)}, {sp(sWSEL)}")
            A(f"global_load_dword v4, {v(vWA + 1)}, {sp(sWD)}")
            A("s_mov_b32 exec_hi, -1")
        if o.get("cpf2"):
            A(f"s_getpc_b64 {sp(sE)}")
            A("L_pc2:")
            A(f"v_lshlrev_b32 v7, 6, v0")
            A(f"v_min_u32 v7, L_codeend-L_pc2-4, v7")
            A(f"global_load_dword v8, v7, {sp(sE)}")
        if i2 == 1:
            A("s_waitcnt vmcnt(2)")
            self.poll("flag2", fl2, flchk)
            self.stamp("flag2")
        shp = o.get("shp", 1)
        if shp == 1:
            A("s_barrier")
        if i2 == 2:
            for l in fl2:
                A(l)
        A(f"v_mul_u32_u24 {v(vAUX)}, {RS}, {v(vT + 3)}")
        A(f"v_lshl_add_u32 {v(vAUX)}, {v(vT + 1)}, 4, {v(vAUX)}")
        A(f"s_lshl_b32 s{sTMP}, s{sL}, 5")
        A(f"s_add_u32 s{sTMP}, s{sTMP}, {W_REG + O_X2}")
        A(f"v_add_u32 {v(vAUX)}, s{sTMP}, {v(vAUX)}")
        A(f"v_add_u32 {v(vAUX + 1)}, {RS}, {v(vAUX)}")
        Tt, Xf = K + 40, K + 56
        Df = K + 72
        for k in range(8):
            A(f"v_lshlrev_b32 {v(Tt + 2 * k)}, 16, {v(vU + k)}")
            A(f"v_and_b32 {v(Tt + 2 * k + 1)}, s{sMASK}, {v(vU + k)}")
        A(f"v_lshlrev_b32 {v(Df)}, 16, {v(vD)}")
        A(f"v_and_b32 {v(Df + 1)}, s{sMASK}, {v(vD)}")
        A(f"v_lshlrev_b32 {v(Df + 2)}, 16, {v(vD + 1)}")
        A(f"v_and_b32 {v(Df + 3)}, s{sMASK}, {v(vD + 1)}")
        for k in range(8):
            c = k >> 1
            sel = "op_sel:[1,0] op_sel_hi:[1,1]" if c & 1 else "op_sel_hi:[0,1]"
            A(f"v_pk_mul_f32 {v(Tt + 2 * k, 2)}, {v(Df + (c & 2), 2)}, {v(Tt + 2 * k, 2)} {sel}")
        for k in range(8):
            A(f"v_cvt_pk_bf16_f32 {v(Xf + k)}, {v(Tt + 2 * k)}, {v(Tt + 2 * k + 1)}")
        for k in range(8):
            A(f"v_lshlrev_b32 {v(Tt + 2 * k)}, 16, {v(Xf + k)}")
            A(f"v_and_b32 {v(Tt + 2 * k + 1)}, s{sMASK}, {v(Xf + k)}")
        for r in range(4):
            for c in range(4):
                src = v(vX + 2 * r + (c >> 1))
                if c & 1:
                    A(f"v_and_b32 {v(Xf + 4 * c + r)}, s{sMASK}, {src}")
                else:
                    A(f"v_lshlrev_b32 {v(Xf + 4 * c + r)}, 16, {src}")
        vTW, vTR = vUW, vFL
        A(f"v_mul_u32_u24 {v(vTW)}, {4 * RSTR}, {v(vT + 1)}")
        A(f"v_add3_u32 {v(vTW)}, {v(vTW)}, {v(vT + 2)}, 0")
        A(f"v_add_u32 {v(vTW)}, {L_TILE}, {v(vTW)}")
        A(f"v_lshlrev_b32 {v(vTR)}, 4, {v(vLANE)}")
        A(f"s_lshl_b32 s{sTMP}, s{sL}, 13")
        A(f"s_lshl_b32 s{sTMP + 1}, s{sWAVE}, 11")
        A(f"s_add_u32 s{sTMP}, s{sTMP}, s{sTMP + 1}")
        A(f"v_add_u32 {v(vRD)}, s{sTMP}, {v(vTR)}")
        A(f"s_lshl_b32 s{sTMP}, s{sWAVE}, 10")
        A(f"s_add_u32 s{sTMP}, s{sTMP}, s{sOWN}")
        A(f"s_add_u32 s{sTMP}, s{sTMP}, {O_SLOT}")
        A(f"v_add_u32 {v(vKEY)}, s{sTMP}, {v(vTR)}")
        A(f"s_mul_i32 s{sTMP}, s{sWAVE}, {2 * RSTR}")
        A(f"s_add_u32 s{sTMP}, s{sTMP}, {L_TILE + 2 * TILE}")
        A(f"v_add_u32 {v(vTR + 2)}, s{sTMP}, {v(vTR)}")
        A(f"s_mul_i32 s{sTMP}, s{sWAVE}, {TILE}")
        A(f"s_add_u32 s{sTMP}, s{sTMP}, {L_TILE}")
        A(f"v_add_u32 {v(vTR)}, s{sTMP}, {v(vTR)}")
        self.stamp("shadow")
        if shp == 0:
            A("s_barrier")
        if i2 == 2:
            A("s_waitcnt vmcnt(0)")
            self.poll("flag2", fl2, flchk)
            self.stamp("flag2")
        A("s_barrier")
        self.stamp("b4b")
        for l in xl:
            A(l)
        A("s_waitcnt vmcnt(0)")
        self.poll("x2", xl, chk8)
        self.stamp("x2ld")

        for k in range(8):
            A(f"v_dot2_f32_bf16 {v(Tt + 2 * k)}, {v(vY + k)}, s{sSELLO}, {v(Tt + 2 * k)}")
            A(f"v_dot2_f32_bf16 {v(Tt + 2 * k + 1)}, {v(vY + k)}, s{sSELHI}, {v(Tt + 2 * k + 1)}")
        for k in range(8):
            A(f"v_cvt_pk_bf16_f32 {v(vY + k)}, {v(Tt + 2 * k)}, {v(Tt + 2 * k + 1)}")
        for k in range(8):
            A(f"v_dot2_f32_bf16 {v(Xf + 2 * k)}, {v(vY + k)}, s{sSELLO}, {v(Xf + 2 * k)}")
            A(f"v_dot2_f32_bf16 {v(Xf + 2 * k + 1)}, {v(vY + k)}, s{sSELHI}, {v(Xf + 2 * k + 1)}")
        vH = vX
        for cp in range(2):
            for r in range(4):
                A(f"v_cvt_pk_bf16_f32 {v(vH + 2 * r + cp)}, {v(Xf + 8 * cp + r)}, {v(Xf + 8 * cp + 4 + r)}")
        Rr = [K + 8 + i for i in range(4)]
        for cp in range(2):
            for r in range(4):
                A(f"v_dot2_f32_bf16 {v(V[r])}, {v(vH + 2 * r + cp)}, s{sONES}, {v(V[r]) if cp else 0}")
            for r in range(4):
                A(f"v_dot2_f32_bf16 {v(V[4 + r])}, {v(vH + 2 * r + cp)}, {v(vH + 2 * r + cp)}, {v(V[4 + r]) if cp else 0}")
            for r in range(4):
                A(f"v_dot2_f32_bf16 {v(Rr[r])}, {v(vH + 2 * r + cp)}, {v(vWR + cp)}, {v(Rr[r]) if cp else 0}")
        for i in range(4):
            A(f"v_add_f32_dpp {v(V[i])}, {v(V[i])}, {v(V[i])} row_ror:8 row_mask:0xf bank_mask:0x3")
        for i in range(4):
            A(f"v_add_f32_dpp {v(V[i])}, {v(V[i + 4])}, {v(V[i + 4])} row_ror:8 row_mask:0xf bank_mask:0xc")
        for i in range(2):
            A(f"v_add_f32_dpp {v(Rr[i])}, {v(Rr[i])}, {v(Rr[i])} row_shl:4 row_mask:0xf bank_mask:0x5")
        for i in range(2):
            A(f"v_add_f32_dpp {v(Rr[i])}, {v(Rr[i + 2])}, {v(Rr[i + 2])} row_shr:4 row_mask:0xf bank_mask:0xa")
        for i in range(2):
            A(f"v_add_f32_dpp {v(V[i])}, {v(V[i])}, {v(V[i])} row_shl:4 row_mask:0xf bank_mask:0x5")
        for i in range(2):
            A(f"v_add_f32_dpp {v(V[i])}, {v(V[i + 2])}, {v(V[i + 2])} row_shr:4 row_mask:0xf bank_mask:0xa")
        A(f"v_permlane32_swap_b32 {v(Rr[0])}, {v(Rr[1])}")
        A(f"v_and_b32 {v(K + 13)}, 0xffffff7f, {v(vSW)}")
        A(f"v_permlane32_swap_b32 {v(V[0])}, {v(V[1])}")
        A(f"v_add_f32 {v(Rr[0])}, {v(Rr[0])}, {v(Rr[1])}")
        A(f"v_add_f32 {v(V[0])}, {v(V[0])}, {v(V[1])}")
        A(f"s_mov_b64 vcc, {sp(sODD)}")
        A(f"v_add_f32_dpp {v(Rr[0])}, {v(Rr[0])}, {v(Rr[0])} row_ror:8 row_mask:0xf bank_mask:0xf")
        A(f"v_add_f32_dpp {v(V[0])}, {v(V[0])}, {v(V[0])} quad_perm:[2,3,0,1] row_mask:0xf bank_mask:0xf")
        A(f"v_mov_b32 {v(V[1])}, {v(V[0])}")
        A(f"v_add_f32_dpp {v(Rr[0])}, {v(Rr[0])}, {v(Rr[0])} quad_perm:[2,3,0,1] row_mask:0xf bank_mask:0xf")
        A(f"v_mov_b32 {v(Rr[1])}, {v(Rr[0])}")
        A(f"v_permlane16_swap_b32 {v(V[0])}, {v(V[1])}")
        A(f"v_add_f32 {v(V[0])}, {v(V[0])}, {v(V[1])}")
        A(f"v_permlane16_swap_b32 {v(Rr[0])}, {v(Rr[1])}")
        A(f"v_add_f32 {v(Rr[0])}, {v(Rr[0])}, {v(Rr[1])}")
        A(f"ds_write_b32 {v(vSW)}, {v(V[0])} offset:{L_RED2 - L_RED1}")
        A(f"ds_write_b32 {v(K + 13)}, {v(Rr[0])} offset:{L_RED2 - L_RED1 + 256}")
        A("s_waitcnt lgkmcnt(0)")
        A("s_barrier")
        self.stamp("b5")
        Hf, Dd = Xf, Tt
        A(f"ds_read_b128 {v(K, 4)}, {v(vRA)} offset:{L_RED2 - L_RED1}")
        A(f"ds_read_b128 {v(K + 4, 4)}, {v(vRA)} offset:{L_RED2 - L_RED1 + 128}")
        for r in range(4):
            A(f"ds_write_b64 {v(vTW)}, {v(vH + 2 * r, 2)} offset:{TILE + r * RSTR}")
        for r in range(4):
            for cp in range(2):
                A(f"v_lshlrev_b32 {v(Hf + 4 * r + 2 * cp)}, 16, {v(vH + 2 * r + cp)}")
                A(f"v_and_b32 {v(Hf + 4 * r + 2 * cp + 1)}, s{sMASK}, {v(vH + 2 * r + cp)}")
        A("s_waitcnt lgkmcnt(4)")
        self.row_stats(K, K + 4, K + 12, K + 13, K + 28)
        self.spread(K + 12, vNM, K + 24)
        self.spread(K + 13, vRI, K + 24)
        for k in range(8):
            r = k >> 1
            sel = "op_sel:[1,0] op_sel_hi:[1,1]" if r & 1 else "op_sel_hi:[0,1]"
            A(f"v_pk_add_f32 {v(Dd + 2 * k, 2)}, {v(vNM + (r & 2), 2)}, {v(Hf + 2 * k, 2)} {sel}")
        vX2 = vU
        for k in range(8):
            A(f"v_cvt_pk_bf16_f32 {v(vX2 + k)}, {v(Dd + 2 * k)}, {v(Dd + 2 * k + 1)}")
        for k in range(8):
            A(f"v_lshlrev_b32 {v(Dd + 2 * k)}, 16, {v(vX2 + k)}")
            A(f"v_and_b32 {v(Dd + 2 * k + 1)}, s{sMASK}, {v(vX2 + k)}")
        for k in range(8):
            r = k >> 1
            sel = "op_sel:[1,0] op_sel_hi:[1,1]" if r & 1 else "op_sel_hi:[0,1]"
            A(f"v_pk_mul_f32 {v(Dd + 2 * k, 2)}, {v(vRI + (r & 2), 2)}, {v(Dd + 2 * k, 2)} {sel}")
        for k in range(8):
            A(f"v_cvt_pk_bf16_f32 {v(vX2 + k)}, {v(Dd + 2 * k)}, {v(Dd + 2 * k + 1)}")
        for r in range(4):
            A(f"ds_write_b64 {v(vTW)}, {v(vX2 + 2 * r, 2)} offset:{r * RSTR}")
        for k in range(8):
            A(f"v_dot2_f32_bf16 {v(Hf + 2 * k)}, {v(vX2 + k)}, s{sSELLO}, {v(Hf + 2 * k)}")
            A(f"v_dot2_f32_bf16 {v(Hf + 2 * k + 1)}, {v(vX2 + k)}, s{sSELHI}, {v(Hf + 2 * k + 1)}")
        vO = vY
        A(f"v_mov_b32 {v(vT + 4)}, {L_REDK}")
        for k in range(8):
            A(f"v_cvt_pk_bf16_f32 {v(vO + k)}, {v(Hf + 2 * k)}, {v(Hf + 2 * k + 1)}")
        for r in range(4):
            A(f"ds_write_b64 {v(vTW)}, {v(vO + 2 * r, 2)} offset:{2 * TILE + r * RSTR}")
        A("s_waitcnt lgkmcnt(0)")
        self.stamp("norm")
        A("s_barrier")
        A(f"ds_read_b32 {v(K)}, {v(vT + 4)} offset:4")
        A(f"ds_read_b128 {v(vO, 4)}, {v(vTR + 2)}")
        A(f"ds_read_b128 {v(vO + 4, 4)}, {v(vTR + 2)} offset:{RSTR}")
        A(f"s_lshl_b32 s{sTMP + 1}, s{sWAVE}, 1")
        A("s_waitcnt lgkmcnt(2)")
        A(f"v_readfirstlane_b32 s{sBEST}, {v(K)}")
        A(f"s_andn2_b32 s{sTMP}, 7, s{sBEST}")
        A(f"s_mul_i32 s{sTMP + 2}, s{sTMP}, {RSTR}")
        A(f"s_sub_u32 s{sTMP + 1}, s{sTMP}, s{sTMP + 1}")
        A(f"v_add_u32 {v(vTR)}, s{sTMP + 2}, {v(vTR)}")
        A(f"ds_read_b128 {v(K + 4, 4)}, {v(vTR)}")
        A(f"s_cmp_lt_u32 s{sWAVE}, 2")
        A("s_cselect_b64 exec, -1, 0")
        A("s_waitcnt lgkmcnt(0)")
        A(f"global_store_dwordx4 {v(vKEY)}, {v(K + 4, 4)}, {sp(sWS)} sc1")
        self.stamp("slot")
        osc = " sc1" if o.get("outsc", 1) == 1 else ""
        olate = o.get("olate", 0)
        if not olate:
            for i in range(2):
                A(f"s_cmp_eq_u32 s{sTMP + 1}, {i}")
                A("s_cselect_b64 exec, 0, -1")
                A(f"global_store_dwordx4 {v(vRD)}, {v(vO + 4 * i, 4)}, {sp(sOUT)} offset:{1024 * i}{osc}")
        A("s_mov_b64 exec, -1")
        self.stamp("outst")
        A("s_barrier")
        A(f"ds_read_b32 {v(K)}, {v(vT + 4)}")
        A(f"v_mov_b32 {v(vT + 4)}, s{sG}")
        A(f"v_mov_b32 {v(vT + 5)}, 0")
        A("s_waitcnt lgkmcnt(0)")
        A(f"v_readfirstlane_b32 s{sWIN}, {v(K)}")
        A(f"s_cmp_eq_u32 s{sWIN}, s{sBEST}")
        if olate:
            A(f"s_cselect_b32 s{sTMP + 1}, s{sTMP + 1}, 8")
        else:
            A(f"s_cselect_b32 s{sTMP + 1}, 8, s{sTMP + 1}")
        for i in range(2):
            A(f"s_cmp_eq_u32 s{sTMP + 1}, {i}")
            A("s_cselect_b64 exec, 0, -1" if olate else "s_cselect_b64 exec, -1, 0")
            A(f"global_store_dwordx4 {v(vRD)}, {v(vO + 4 * i, 4)}, {sp(sOUT)} offset:{1024 * i}{osc}")
        A(f"s_or_b32 s{sTMP}, s{sL}, s{sWAVE}")
        A(f"s_cmp_eq_u32 s{sTMP}, 0")
        A("s_cselect_b64 exec, 1, 0")
        A(f"global_store_dword {v(vT + 5)}, {v(vT + 4)}, {sp(sWS)} sc1")
        A(f"s_cmp_lt_u32 s{sPOS}, 14")
        A("s_cbranch_scc0 L_fin")
        A("s_barrier")
        A("L_fin:")
        self.finish("R")

    def chans(self):
        A = self.A
        o = self.o
        vLANE = 1
        vAA, vBA, vEW, vER, vRA = 4, 12, 13, 14, 15
        vKA0, vKA1, vKB, vPW0, vPW1 = 16, 17, 18, 19, 20
        vP = 24
        vT = 28
        vACC = 40
        vA0, vA1, vB0, vB1 = 72, 104, 136, 168
        K = 72
        vWD = 200
        A("L_chan:")
        self.stamp("karg")
        if o.get("i2", 2) == 1:
            A(f"s_load_dword s{sG}, {sp(sWS)}, 0")
        A(f"s_sub_u32 s{sWAVE}, s{sWAVE}, 4")
        A(f"s_mov_b32 s{sMASK}, 0xffff0000")
        A(f"s_mul_i32 s{sOWN}, s{sL}, {RS}")
        A(f"s_add_u32 s{sOWN}, s{sOWN}, {W_REG}")
        vJ, vGq = vT + 4, vT + 5
        A(f"v_and_b32 {v(vJ)}, 15, {v(vLANE)}")
        A(f"v_lshrrev_b32 {v(vGq)}, 4, {v(vLANE)}")
        A(f"s_lshr_b32 s{sT0}, s{sWAVE}, 1")
        A(f"s_and_b32 s{sT1}, s{sWAVE}, 1")
        A(f"v_and_b32 {v(vT)}, 7, {v(vLANE)}")
        A(f"v_lshlrev_b32 {v(vRA)}, 4, {v(vT)}")
        A(f"v_add_u32 {v(vRA)}, {L_RED1}, {v(vRA)}")
        A(f"s_mul_i32 s{sTMP}, s{sT0}, {PC}")
        A(f"s_lshl_b32 s{sTMP + 1}, s{sT1}, 7")
        A(f"s_add_u32 s{sTMP}, s{sTMP}, s{sTMP + 1}")
        A(f"s_add_u32 s{sTMP}, s{sTMP}, {L_P + 4 * 26}")
        A(f"v_lshlrev_b32 {v(vT)}, 3, {v(vGq)}")
        A(f"v_sub_u32 {v(vT)}, {v(vJ)}, {v(vT)}")
        A(f"v_lshl_add_u32 {v(vAA)}, {v(vT)}, 2, s{sTMP}")
        for m in range(1, 8):
            A(f"v_add_u32 {v(vAA + m)}, {1024 * m}, {v(vAA)}")
        A(f"s_mul_i32 s{sTMP}, s{sT0}, {UC}")
        A(f"s_lshl_b32 s{sTMP + 1}, s{sT1}, 6")
        A(f"s_sub_u32 s{sTMP}, s{sTMP}, s{sTMP + 1}")
        A(f"s_add_u32 s{sTMP}, s{sTMP}, {L_U + 64}")
        A(f"v_lshl_add_u32 {v(vT)}, {v(vJ)}, 1, {v(vGq)}")
        A(f"v_lshl_add_u32 {v(vBA)}, {v(vT)}, 4, s{sTMP}")
        A(f"v_lshl_add_u32 {v(vT)}, {v(vJ)}, 2, {v(vGq)}")
        A(f"v_lshrrev_b32 {v(vT + 1)}, 3, {v(vT)}")
        A(f"v_add_u32 {v(vT)}, {v(vT)}, {v(vT + 1)}")
        A(f"s_mul_i32 s{sTMP}, s{sWAVE}, {8 * TBS}")
        A(f"v_lshl_add_u32 {v(vEW)}, {v(vT)}, 4, s{sTMP}")
        A(f"v_lshrrev_b32 {v(vT + 1)}, 3, {v(vLANE)}")
        A(f"v_add_u32 {v(vT)}, {v(vLANE)}, {v(vT + 1)}")
        A(f"s_mul_i32 s{sTMP}, s{sWAVE}, {2 * TBS}")
        A(f"v_lshl_add_u32 {v(vER)}, {v(vT)}, 4, s{sTMP}")
        KS = o.get("ks", 5)
        for k in range(4):
            A(f"v_mov_b32 {v(vACC + k)}, -1")
        A(f"s_add_u32 s{sTMP}, s{sOWN}, 4096")
        A(f"v_lshl_add_u32 {v(vACC + 4)}, v0, 4, s{sTMP}")
        A(f"s_lshl_b32 s{sTMP}, s{sL}, {KS}")
        A(f"s_add_u32 s{sTMP}, s{sTMP}, {W_KEY}")
        A(f"v_lshl_add_u32 {v(22)}, {v(vLANE)}, 4, s{sTMP}")
        ones = v(vACC, 4)
        i2 = o.get("i2", 2)
        if not i2:
            A(f"s_cmp_eq_u32 s{sWAVE}, 0")
            A(f"s_cselect_b64 exec, {(1 << ((1 << KS) // 16)) - 1}, 0")
            A(f"global_store_dwordx4 {v(22)}, {ones}, {sp(sWS)} sc1")
            A("s_mov_b64 exec, -1")
        A(f"global_store_dwordx4 {v(vACC + 4)}, {ones}, {sp(sWS)} offset:-4096 sc1")
        A(f"global_store_dwordx4 {v(vACC + 4)}, {ones}, {sp(sWS)} sc1")
        late = []
        if i2 == 1:
            A(f"v_add_u32 {v(vACC + 5)}, 8192, {v(vACC + 4)}")
            A(f"v_add_u32 {v(vACC + 6)}, 12288, {v(vACC + 4)}")
            A(f"s_lshl_b32 s{sTMP}, s{sL}, 7")
            A(f"s_add_u32 s{sTMP}, s{sTMP}, {W_FLAG2}")
            A(f"v_lshl_add_u32 {v(23)}, {v(vLANE)}, 4, s{sTMP}")
            late = [[f"global_store_dwordx4 {v(vACC + 5)}, {ones}, {sp(sWS)} offset:-4096 sc1"],
                    [f"global_store_dwordx4 {v(vACC + 5)}, {ones}, {sp(sWS)} sc1"],
                    [f"global_store_dwordx4 {v(vACC + 6)}, {ones}, {sp(sWS)} sc1",
                     f"s_cmp_eq_u32 s{sWAVE}, 0",
                     f"s_cselect_b64 exec, {(1 << ((1 << KS) // 16)) - 1}, 0",
                     f"global_store_dwordx4 {v(22)}, {ones}, {sp(sWS)} sc1",
                     "s_mov_b64 exec, -1"]]
        if not i2:
            A(f"v_add_u32 {v(vACC + 5)}, 8192, {v(vACC + 4)}")
            A(f"v_add_u32 {v(vACC + 6)}, 12288, {v(vACC + 4)}")
            A(f"global_store_dwordx4 {v(vACC + 5)}, {ones}, {sp(sWS)} offset:-4096 sc1")
            A(f"global_store_dwordx4 {v(vACC + 5)}, {ones}, {sp(sWS)} sc1")
            A(f"global_store_dwordx4 {v(vACC + 6)}, {ones}, {sp(sWS)} sc1")
        vg, vr = vT, vT + 1
        A(f"v_lshrrev_b32 {v(vg)}, 2, {v(vJ)}")
        A(f"v_and_b32 {v(vr)}, 3, {v(vJ)}")
        A(f"s_cmp_eq_u32 s{sT1}, 0")
        A("s_cbranch_scc0 L_rows_hi")
        A(f"v_mov_b32 {v(vKA0)}, {v(vJ)}")
        A(f"v_lshl_add_u32 {v(vKA1)}, {v(vg)}, 1, {v(vr)}")
        A(f"v_add_u32 {v(vKA1)}, 16, {v(vKA1)}")
        A(f"v_add_u32 {v(vT + 2)}, -4, {v(vJ)}")
        A(f"v_and_b32 {v(vT + 2)}, 15, {v(vT + 2)}")
        A(f"v_cmp_eq_u32 vcc, 3, {v(vr)}")
        A(f"v_cndmask_b32 {v(vKA1)}, {v(vKA1)}, {v(vT + 2)}, vcc")
        A(f"v_lshl_add_u32 {v(vPW0)}, {v(vJ)}, 2, {v(vGq)}")
        A(f"v_lshlrev_b32 {v(vPW0)}, 4, {v(vPW0)}")
        A(f"v_add_u32 {v(vPW1)}, 1024, {v(vPW0)}")
        A("s_branch L_rows_done")
        A("L_rows_hi:")
        A(f"v_lshrrev_b32 {v(vT + 2)}, 1, {v(vg)}")
        A(f"v_lshl_add_u32 {v(vKA0)}, {v(vg)}, 1, {v(vr)}")
        A(f"v_add3_u32 {v(vKA0)}, {v(vKA0)}, {v(vT + 2)}, 25")
        A(f"v_sub_u32 {v(vKA1)}, {v(vJ)}, {v(vg)}")
        A(f"v_add_u32 {v(vKA1)}, 35, {v(vKA1)}")
        A(f"v_lshrrev_b32 {v(vT + 2)}, 1, {v(vGq)}")
        A(f"v_lshl_add_u32 {v(vPW0)}, {v(vT + 2)}, 4, {v(vJ)}")
        A(f"v_and_b32 {v(vT + 2)}, 1, {v(vGq)}")
        A(f"v_lshl_add_u32 {v(vPW0)}, {v(vPW0)}, 1, {v(vT + 2)}")
        A(f"v_lshlrev_b32 {v(vPW0)}, 5, {v(vPW0)}")
        A(f"v_add_u32 {v(vPW0)}, 2048, {v(vPW0)}")
        A(f"v_lshlrev_b32 {v(vPW1)}, 6, {v(vLANE)}")
        A(f"v_add_u32 {v(vPW1)}, 4096, {v(vPW1)}")
        A("L_rows_done:")
        A(f"s_mul_i32 s{sTMP}, s{sT0}, {PC}")
        A(f"s_add_u32 s{sTMP}, s{sTMP}, {L_P + 64}")
        A(f"v_add_u32 {v(vPW0)}, s{sTMP}, {v(vPW0)}")
        A(f"v_add_u32 {v(vPW1)}, s{sTMP}, {v(vPW1)}")
        A(f"s_mul_i32 s{sTMP}, s{sT0}, {TABC}")
        A(f"v_lshl_add_u32 {v(vT + 2)}, {v(vGq)}, 4, s{sTMP}")
        A(f"s_movk_i32 s{sTMP + 1}, {ROWB}")
        A(f"v_mad_u32_u24 {v(vKA0)}, {v(vKA0)}, s{sTMP + 1}, {v(vT + 2)}")
        A(f"v_mad_u32_u24 {v(vKA1)}, {v(vKA1)}, s{sTMP + 1}, {v(vT + 2)}")
        A(f"v_mad_u32_u24 {v(vKB)}, {v(vJ)}, s{sTMP + 1}, {v(vT + 2)}")
        A(f"s_lshl_b32 s{sTMP + 1}, s{sT1}, 8")
        A(f"s_add_u32 m0, s{sTMP}, s{sTMP + 1}")
        early = o.get("early", 1)
        if early:
            A(f"s_mul_i32 s{sTMP}, s{sXCD}, 448")
            A(f"s_and_b32 s{sTMP}, s{sTMP}, 0xffffff80")
            A(f"s_mul_i32 s{sTMP + 1}, s{sPOS}, {16 * 3584}")
            A(f"s_add_u32 s{sTMP}, s{sTMP}, s{sTMP + 1}")
            A(f"v_lshrrev_b32 {v(vT + 2)}, 2, {v(vLANE)}")
            A(f"v_mul_u32_u24 {v(vT + 2)}, 3584, {v(vT + 2)}")
            A(f"v_and_b32 {v(vT + 3)}, 3, {v(vLANE)}")
            A(f"v_lshl_add_u32 {v(vT + 2)}, {v(vT + 3)}, 7, {v(vT + 2)}")
            A(f"v_add_u32 {v(vT + 2)}, s{sTMP}, {v(vT + 2)}")
            A(f"s_mul_i32 s{sTMP}, s{sL}, 7168")
            A(f"s_mul_i32 s{sTMP + 1}, s{sT1}, 3584")
            A(f"s_add_u32 s{sTMP}, s{sTMP}, s{sTMP + 1}")
            A(f"v_min_u32 {v(vT + 3)}, 27, {v(vLANE)}")
            A(f"v_lshl_add_u32 {v(vT + 3)}, {v(vT + 3)}, 7, s{sTMP}")
            A(f"s_cmp_eq_u32 s{sT1}, 0")
            A(f"s_cselect_b64 {sp(sWSEL)}, {sp(sWG)}, {sp(sWU)}")
            A(f"s_cmp_eq_u32 s{sT0}, 0")
            A(f"s_cselect_b64 {sp(sWSEL)}, {sp(sWSEL)}, {sp(sWD)}")
            A("s_cselect_b64 vcc, -1, 0")
            A(f"v_cndmask_b32 {v(vT + 2)}, {v(vT + 3)}, {v(vT + 2)}, vcc")
            wpf = f"global_load_dword v3, {v(vT + 2)}, {sp(sWSEL)}"
            if early == 1:
                A(wpf)
        A(f"s_mul_i32 s{sF}, s{sXCD}, 14")
        A(f"s_add_u32 s{sF}, s{sF}, s{sPOS}")
        A(f"s_lshl_b32 s{sTMP + 1}, s{sF}, 14")
        A(f"s_add_u32 s{sTMP + 1}, s{sTMP + 1}, 4096")
        A(f"v_lshl_add_u32 v2, v0, 2, s{sTMP + 1}")
        A(f"v_add_u32 v21, 8192, v2")

        L2E = 1.4426950408889634
        l2e_hi = struct.unpack("<f", struct.pack("<f", L2E))[0]
        l2e_lo = L2E - l2e_hi
        a, b = K, K + 2
        A(f"s_mov_b32 s{sE}, {hex(f2u(l2e_hi))}")
        A(f"s_mov_b32 s{sE + 1}, {hex(f2u(l2e_lo))}")
        A(f"s_waitcnt vmcnt({(2 if i2 else 5) + (early == 1)}) lgkmcnt(0)")
        self.stamp("par")
        A(f"s_lshl_b32 s{sTMP}, s{sDT}, 16")
        A(f"s_and_b32 s{sTMP + 1}, s{sDT}, s{sMASK}")
        A(f"s_cmp_lt_u32 s{sWAVE}, 2")
        A(f"s_cselect_b32 s{sDT}, s{sTMP}, s{sTMP + 1}")
        A(f"v_lshlrev_b32 {v(a)}, 16, {v(vP)}")
        A(f"v_mov_b32 {v(a + 1)}, s{sDT}")
        A(f"v_pk_mul_f32 {v(b, 2)}, {v(a, 2)}, {sp(sE)} op_sel_hi:[1,0]")
        A(f"v_pk_fma_f32 {v(b + 2, 2)}, {v(a, 2)}, {sp(sE)}, {v(b, 2)} op_sel_hi:[1,0,1] neg_lo:[0,0,1] neg_hi:[0,0,1]")
        A(f"v_exp_f32 {v(b)}, {v(b)}")
        A(f"v_exp_f32 {v(b + 1)}, {v(b + 1)}")
        A(f"v_pk_fma_f32 {v(b + 2, 2)}, {sp(sE)}, {v(a, 2)}, {v(b + 2, 2)} op_sel:[1,0,0] op_sel_hi:[1,1,1]")
        A(f"v_mul_f32 {v(b + 2)}, {hex(f2u(0.6931471805599453))}, {v(b + 2)}")
        A(f"v_mul_f32 {v(b + 3)}, {hex(f2u(0.6931471805599453))}, {v(b + 3)}")
        A(f"v_pk_fma_f32 {v(b, 2)}, {v(b, 2)}, {v(b + 2, 2)}, {v(b, 2)}")
        A(f"v_cvt_pk_bf16_f32 {v(a)}, {v(b)}, {v(b + 1)}")
        vdt, va2, vph = K + 6, K + 7, K + 8
        A(f"v_and_b32 {v(vdt)}, s{sMASK}, {v(a)}")
        A(f"v_lshlrev_b32 {v(va2)}, 16, {v(a)}")
        A(f"v_lshlrev_b32 {v(vph)}, 16, {v(vP + 1)}")
        A(f"v_mul_f32 {v(va2)}, {v(va2)}, {v(vdt)}")
        A(f"v_mul_f32 {v(vph)}, {v(vph)}, {v(vdt)}")
        A(f"v_mul_f32 {v(va2)}, {hex(f2u(-l2e_hi))}, {v(va2)}")
        A(f"v_mul_f32 {v(vph)}, 0.15915494, {v(vph)}")
        Wp = {p: K + 10 + 2 * p for p in range(1, 17)}
        Zp = {p: K + 42 + 2 * p for p in range(1, 8)}
        G = [K + 58, K + 60]
        TT = [K + 62, K + 64, K + 66, K + 68]
        RR = [K + 70, K + 72, K + 74, K + 76]
        CV = K + 80
        A(f"v_add_f32 {v(vdt)}, {v(vdt)}, {v(vdt)}")
        A(f"v_lshlrev_b32 {v(G[0])}, 16, {v(vP + 2)}")
        A(f"v_lshlrev_b32 {v(G[0] + 1)}, 16, {v(vP + 3)}")
        A(f"v_mul_f32 {v(G[0])}, {v(G[0])}, {v(vdt)}")
        A(f"v_mul_f32 {v(G[0] + 1)}, {v(G[0] + 1)}, {v(vdt)}")
        for n, (dst, sc) in enumerate(((Wp[1], 1.0), (Wp[16], 16.0), (Zp[1], 256.0))):
            t = TT[n]
            if sc == 1.0:
                A(f"v_exp_f32 {v(t)}, {v(va2)}")
                A(f"v_fract_f32 {v(t + 1)}, {v(vph)}")
            else:
                A(f"v_mul_f32 {v(t)}, {hex(f2u(sc))}, {v(va2)}")
                A(f"v_mul_f32 {v(t + 1)}, {hex(f2u(sc))}, {v(vph)}")
                A(f"v_exp_f32 {v(t)}, {v(t)}")
                A(f"v_fract_f32 {v(t + 1)}, {v(t + 1)}")
            A(f"v_cos_f32 {v(dst)}, {v(t + 1)}")
            A(f"v_sin_f32 {v(dst + 1)}, {v(t + 1)}")
        for n, dst in enumerate((Wp[1], Wp[16], Zp[1])):
            A(f"v_pk_mul_f32 {v(dst, 2)}, {v(dst, 2)}, {v(TT[n], 2)} op_sel_hi:[1,0]")
        jobs = [(1, Wp[1], None, None, 0), (16, Zp[1], None, None, 0), (47, G[0], None, None, 1)]
        wj = []
        for p in range(2, 16):
            hb = 1 << (p.bit_length() - 1)
            x, y = (p // 2, p // 2) if hb == p else (hb, p - hb)
            wj.append((p, Wp[p], Wp[x], Wp[y], 0))
        gj = [(47 + j, G[j & 1], G[(j - 1) & 1], Wp[16], 1) for j in range(1, 16)]
        zrow = {2: 25, 3: 30, 4: 35, 5: 38, 6: 41, 7: 44}
        zj = []
        for p in range(2, 8):
            hb = 1 << (p.bit_length() - 1)
            x, y = (p // 2, p // 2) if hb == p else (hb, p - hb)
            zj.append((zrow[p], Zp[p], Zp[x], Zp[y], 0))
        tj = [(16 + k, None, Zp[1], Wp[2 * k], 0) for k in range(1, 9)]
        for z in (2, 3):
            tj += [(zrow[z] + k, None, Zp[z], Wp[4 * k], 0) for k in range(1, 5)]
        for z in (4, 5, 6, 7):
            tj += [(zrow[z] + k, None, Zp[z], Wp[8 * k], 0) for k in range(1, 3)]
        first = []
        for i in range(max(len(wj), len(gj), len(zj))):
            for q in (wj, gj, zj):
                if i < len(q):
                    first.append(q[i])
        jobs += first + tj
        A(f"v_mov_b32 {v(CV + 15)}, 0x3f80")
        pend = [(0, CV + 15)]
        slot = 0
        nb = 0
        b1_at = o.get("b1_at", 0)
        batch = o.get("batch", 6)

        def do_b1():
            self.stamp("setup")
            A(f"s_waitcnt vmcnt({1 if early == 1 else 0})")
            A("s_barrier")
            self.stamp("b1")
            if early == 2:
                A(wpf)
        if b1_at == 0:
            do_b1()
        for n, (row, dst, x, y, conj) in enumerate(jobs):
            if x is not None:
                if dst is None:
                    dst = RR[n & 3]
                for ins in self.cmul(dst, x, y, TT[n & 3]):
                    A(ins)
            A(f"v_cvt_pk_bf16_f32 {v(CV + slot)}, {v(dst)}, {'-' if conj else ''}{v(dst + 1)}")
            pend.append((row, CV + slot))
            slot = (slot + 1) % 15
            if len(pend) >= batch or n == len(jobs) - 1:
                for row_, reg in pend:
                    A(f"ds_write_addtid_b32 {v(reg)} offset:{row_ * ROWB}")
                pend = []
                nb += 1
                if nb == b1_at:
                    do_b1()
                if late and nb >= o.get("i2at", 0) + 1:
                    for l in late.pop(0):
                        A(l)
        if i2 == 1:
            A(f"s_add_u32 s{sG}, s{sG}, 0x9e3779b9")
            for k in range(4):
                A(f"v_mov_b32 {v(vACC + 8 + k)}, s{sG}")
        A("s_waitcnt lgkmcnt(0)")
        self.stamp("kgen1")
        A("s_barrier")
        fB, fA0, fA1 = K, K + 32, K + 64
        for s in range(4):
            A(f"ds_read_b128 {v(fB + 4 * s, 4)}, {v(vKB)} offset:{47 * ROWB + 64 * s}")
            A(f"ds_read_b128 {v(fA0 + 4 * s, 4)}, {v(vKA0)} offset:{64 * s}")
            A(f"ds_read_b128 {v(fA1 + 4 * s, 4)}, {v(vKA1)} offset:{64 * s}")
        D0, D1 = vACC + 16, vACC + 20
        for s in range(8):
            s2 = s + 4
            A(f"s_waitcnt lgkmcnt({9 if s2 < 8 else 3 * (7 - s)})")
            c0 = "0" if s == 0 else v(D0, 4)
            c1 = "0" if s == 0 else v(D1, 4)
            A(f"v_mfma_f32_16x16x32_bf16 {v(D0, 4)}, {v(fA0 + 4 * s, 4)}, {v(fB + 4 * s, 4)}, {c0}")
            if s2 < 8:
                A(f"ds_read_b128 {v(fB + 4 * s2, 4)}, {v(vKB)} offset:{47 * ROWB + 64 * s2}")
                A(f"ds_read_b128 {v(fA0 + 4 * s2, 4)}, {v(vKA0)} offset:{64 * s2}")
            A(f"v_mfma_f32_16x16x32_bf16 {v(D1, 4)}, {v(fA1 + 4 * s, 4)}, {v(fB + 4 * s, 4)}, {c1}")
            if s2 < 8:
                A(f"ds_read_b128 {v(fA1 + 4 * s2, 4)}, {v(vKA1)} offset:{64 * s2}")
        E = K + 96
        A(f"s_bitcmp1_b32 s{sWAVE}, 0")
        A(f"v_cmp_eq_u32 vcc, 0, {v(vLANE)}")
        A("s_nop 5")
        A("s_cbranch_scc0 L_exp_lo")
        seq2 = ["aa", "aa", "aa", "ba", "bb", "bb", "cb", "cc"]
        seq3 = ["aa", "aa", "aa", "aa", "aa", "ba", "bb", "bb", "bb", "bb", "cb", "cc", "cc", "cc"]
        ix = {"a": 0, "b": 1, "c": 2}
        for k, s in enumerate(seq3):
            A(f"v_cvt_pk_bf16_f32 {v(E + 8 + k)}, {v(D1 + ix[s[0]])}, {v(D1 + ix[s[1]])}")
        for k, w in enumerate((0, 4, 6, 10)):
            A(f"ds_write_b128 {v(vPW1)}, {v(E + 8 + w, 4)} offset:{16 * k}")
        for k, s in enumerate(seq2):
            A(f"v_cvt_pk_bf16_f32 {v(E + k)}, {v(D0 + ix[s[0]])}, {v(D0 + ix[s[1]])}")
        A(f"ds_write_b128 {v(vPW0)}, {v(E, 4)}")
        A(f"ds_write_b128 {v(vPW0)}, {v(E + 4, 4)} offset:16")
        A("L_exp_done:")
        T = self.tail
        T("L_exp_lo:")
        T(f"v_mov_b32_dpp {v(D1 + 3)}, {v(D1 + 3)} row_ror:1 row_mask:0x1 bank_mask:0xf")
        T(f"v_cvt_pk_bf16_f32 {v(E + 1)}, {v(D0 + 1)}, {v(D0)}")
        T(f"v_cvt_pk_bf16_f32 {v(E + 2)}, {v(D0 + 2)}, {v(D0 + 1)}")
        T(f"v_cvt_pk_bf16_f32 {v(E + 3)}, {v(D0 + 3)}, {v(D0 + 2)}")
        T(f"v_cndmask_b32 {v(E + 8)}, {v(D1 + 3)}, 0, vcc")
        T(f"v_cndmask_b32 {v(E + 9)}, {v(D1)}, {v(D1 + 3)}, vcc")
        T(f"v_cvt_pk_bf16_f32 {v(E)}, {v(D0)}, {v(E + 8)}")
        T(f"v_cvt_pk_bf16_f32 {v(E + 4)}, {v(D1)}, {v(E + 9)}")
        T(f"v_cvt_pk_bf16_f32 {v(E + 5)}, {v(D1)}, {v(D1)}")
        T(f"v_cvt_pk_bf16_f32 {v(E + 6)}, {v(D1 + 1)}, {v(D1)}")
        T(f"v_cvt_pk_bf16_f32 {v(E + 7)}, {v(D1 + 2)}, {v(D1 + 1)}")
        T(f"ds_write_b128 {v(vPW0)}, {v(E, 4)}")
        T(f"ds_write_b128 {v(vPW1)}, {v(E + 4, 4)}")
        T("s_branch L_exp_done")
        A("s_waitcnt lgkmcnt(0)")
        if i2 == 1:
            A("s_waitcnt vmcnt(0)")
        self.stamp("kgen2")
        A("s_barrier")
        if i2 == 1:
            A(f"s_cmp_eq_u32 s{sWAVE}, 0")
            A("s_cselect_b64 exec, 0xff, 0")
            A(f"global_store_dwordx4 {v(23)}, {v(vACC + 8, 4)}, {sp(sWS)} sc1")
            A("s_mov_b64 exec, -1")

        def rdA(buf, rho, m):
            return [f"ds_read2_b32 {v(buf + 4 * m, 2)}, {v(vAA + m)} offset0:{64 * rho + 6} offset1:{64 * rho + 4}",
                    f"ds_read2_b32 {v(buf + 4 * m + 2, 2)}, {v(vAA + m)} offset0:{64 * rho + 2} offset1:{64 * rho}"]

        def rdB(buf, rho, n):
            return [f"ds_read_b128 {v(buf + 4 * n, 4)}, {v(vBA)} offset:{128 * (3 - rho) + 512 * (7 - n)}"]

        for m in range(8):
            for l in rdA(vA0, 0, m):
                A(l)
        A(f"s_lshl_b32 s{sTMP}, s{sWAVE}, 11")
        A(f"s_add_u32 s{sTMP}, s{sTMP}, s{sOWN}")
        A(f"s_add_u32 s{sTMP}, s{sTMP}, {O_X2}")
        A(f"v_lshl_add_u32 {v(vT)}, {v(vLANE)}, 4, s{sTMP}")
        A(f"v_mov_b32 {v(vT + 3)}, {L_REDK}")
        vF = 216
        A(f"s_bitcmp1_b32 s{sWAVE}, 0")
        A(f"s_cselect_b64 {sp(sWSEL)}, {sp(sWU)}, {sp(sWG)}")
        A(f"s_lshr_b32 s{sTMP + 1}, s{sWAVE}, 1")
        A(f"s_mul_i32 s{sTMP + 1}, s{sTMP + 1}, {256 * 3584}")
        A(f"s_lshl_b32 s{sTMP + 2}, s{sF}, 5")
        A(f"s_add_u32 s{sTMP + 1}, s{sTMP + 1}, s{sTMP + 2}")
        A(f"v_lshrrev_b32 {v(vF + 3)}, 1, {v(vLANE)}")
        A(f"v_and_b32 {v(vF + 4)}, 1, {v(vLANE)}")
        A(f"v_mul_u32_u24 {v(vF)}, {8 * 3584}, {v(vF + 3)}")
        A(f"v_lshl_add_u32 {v(vF)}, {v(vF + 4)}, 4, {v(vF)}")
        A(f"v_add_u32 {v(vF)}, s{sTMP + 1}, {v(vF)}")
        A(f"v_add_u32 {v(vF + 2)}, {7 * 3584}, {v(vF)}")
        A(f"v_add_u32 {v(vF + 1)}, {4 * 3584}, {v(vF)}")
        A(f"v_add_u32 {v(vF)}, 3584, {v(vF)}")
        vWG, WGp, WDp, vY = (224 if early else 120), 152, 184, 112
        wl = [f"global_load_dwordx4 {v(vWG + 4 * k, 4)}, {v(vF + k // 3)}, {sp(sWSEL)} offset:{(k % 3 - 1) * 3584}" for k in range(8)]
        wdl = [f"global_load_dword {v(vWD + k)}, {'v21' if k >> 3 else 'v2'}, {sp(sWD)} offset:{((k & 7) - 4) * 1024}" for k in range(16)]
        if early:
            A(f"s_cmp_lt_u32 s{sPOS}, 14")
            A("s_cbranch_scc0 L_nst0")
            for l in wl + (wdl if o.get("wdp", 1) == 0 else []):
                A(l)
            A("L_nst0:")
        A("s_waitcnt lgkmcnt(0)")
        self.stamp("apre")
        A("s_barrier")
        self.stamp("b3")
        if o.get("prio", 1):
            A("s_setprio 2")

        bufA, bufB = [vA0, vA1], [vB0, vB1]
        for n in range(7, -1, -1):
            for l in rdB(vB0, 0, n):
                A(l)
        started = set()
        for rho in range(4):
            a_, b_ = bufA[rho & 1], bufB[rho & 1]
            order = [(n - 7 + tb, tb, n) for n in range(7, -1, -1) for tb in range(7 - n, 8)]
            if rho == 3:
                order = [(n - 7 + tb, tb, n) for tb in range(8) for n in range(7 - tb, 8)]
            fill = []
            if rho + 1 < 4:
                nb_, na_ = bufB[(rho + 1) & 1], bufA[(rho + 1) & 1]
                for m in range(8):
                    fill += rdB(nb_, rho + 1, 7 - m)
                    fill += rdA(na_, rho + 1, m)
            issued = 0
            seen = set()
            done_at = {}
            for i, (m, tb, n) in enumerate(order):
                done_at[tb] = i
            for i, (m, tb, n) in enumerate(order):
                if rho == 0 and n not in seen:
                    A(f"s_waitcnt lgkmcnt({min(15, n + issued)})")
                    seen.add(n)
                elif i == 0:
                    A("s_waitcnt lgkmcnt(0)")
                acc = v(vACC + 4 * tb, 4)
                c = acc if tb in started else "0"
                started.add(tb)
                A(f"v_mfma_f32_16x16x32_bf16 {acc}, {v(a_ + 4 * m, 4)}, {v(b_ + 4 * n, 4)}, {c}")
                if i >= 1 and fill:
                    A(fill.pop(0))
                    issued += 1
                if rho == 3:
                    for t in range(7):
                        if done_at[t] + 8 == i or (i == len(order) - 1 and done_at[t] + 8 > i):
                            A(f"ds_write_b128 {v(vEW)}, {v(vACC + 4 * t, 4)} offset:{t * TBS}")
            assert not fill
            if o.get("cyc") and rho < 3:
                self.stamp(f"cls{rho}")
        A(f"ds_write_b128 {v(vEW)}, {v(vACC + 28, 4)} offset:{7 * TBS}")
        self.stamp("conv")
        A("s_waitcnt lgkmcnt(0)")
        A("s_barrier")
        for i in range(2):
            for s in range(4):
                A(f"ds_read_b128 {v(K + 16 * i + 4 * s, 4)}, {v(vER)} offset:{s * 8 * TBS + i * TBS}")
        for i in range(2):
            A(f"s_waitcnt lgkmcnt({4 * (1 - i)})")
            b0 = K + 16 * i
            for c in range(2):
                for h in range(2):
                    A(f"v_pk_add_f32 {v(b0 + 8 * c + 2 * h, 2)}, {v(b0 + 8 * c + 2 * h, 2)}, {v(b0 + 8 * c + 4 + 2 * h, 2)}")
            for c in range(2):
                for h in range(2):
                    A(f"v_cvt_pk_bf16_f32 {v(K + 32 + 4 * i + 2 * c + h)}, {v(b0 + 8 * c + 2 * h)}, {v(b0 + 8 * c + 2 * h + 1)}")
            A(f"global_store_dwordx4 {v(vT)}, {v(K + 32 + 4 * i, 4)}, {sp(sWS)} offset:{1024 * i} sc1")
        self.stamp("x2st")
        L2E = 1.4426950408889634
        n1 = o.get("st1", 4)
        if early:
            wl = []
            n1 = 0
        A(f"s_add_u32 s{sTMP}, s{sOWN}, {O_PART}")
        A(f"v_lshl_add_u32 {v(vF + 6)}, v0, 3, s{sTMP}")
        A(f"s_cmp_lt_u32 s{sPOS}, 14")
        A("s_cbranch_scc0 L_nst1")
        for l in wl[:n1]:
            A(l)
        A(f"s_waitcnt vmcnt({n1})")
        A("s_barrier")
        T("L_nst1:")
        T("s_waitcnt vmcnt(0)")
        T("s_barrier")
        T("s_branch L_now")
        self.stamp("x2dr")
        A(f"s_mov_b32 s{sRP0}, 0x05040100")
        A(f"s_mov_b32 s{sRP1}, 0x07060302")
        A(f"s_lshr_b32 s{sTMP}, s{sWAVE}, 1")
        A(f"s_lshl_b32 s{sTMP}, s{sTMP}, 9")
        A(f"s_add_u32 s{sTMP}, s{sTMP}, {W_REG + O_SLOT}")
        A(f"v_lshl_add_u32 {v(vF + 3)}, {v(vF + 3)}, 4, s{sTMP}")
        A(f"v_lshlrev_b32 {v(vF + 4)}, 6, {v(vF + 4)}")
        A(f"v_and_b32 {v(vF + 5)}, 12, {v(vLANE)}")
        A(f"v_lshl_add_u32 {v(vF + 4)}, {v(vF + 5)}, 2, {v(vF + 4)}")
        A(f"v_lshrrev_b32 {v(vF + 5)}, 5, {v(vLANE)}")
        A(f"v_lshl_add_u32 {v(vF + 4)}, {v(vF + 5)}, 3, {v(vF + 4)}")
        A(f"s_and_b32 s{sTMP}, s{sWAVE}, 1")
        A(f"s_lshl_b32 s{sTMP}, s{sTMP}, 7")
        A(f"s_lshr_b32 s{sTMP + 1}, s{sWAVE}, 1")
        A(f"s_lshl_b32 s{sTMP + 1}, s{sTMP + 1}, 2")
        A(f"s_add_u32 s{sTMP}, s{sTMP}, s{sTMP + 1}")
        A(f"s_add_u32 s{sTMP}, s{sTMP}, {L_REDF}")
        A(f"v_add_u32 {v(vF + 4)}, s{sTMP}, {v(vF + 4)}")
        A(f"v_and_b32 {v(vF + 5)}, 15, {v(vLANE)}")
        A(f"v_lshlrev_b32 {v(vF + 5)}, 3, {v(vF + 5)}")
        A(f"v_add_u32 {v(vF + 5)}, {L_REDF}, {v(vF + 5)}")
        for l in wl[n1:] + (wdl if (o.get("wdp", 1) == 0 and not early) or o.get("wdp", 1) == 2 else []):
            A(l)
        self.stamp("wq")
        A("L_now:")
        perms = []
        for kp in range(8):
            lo, hi = vWD + 2 * kp, vWD + 2 * kp + 1
            perms.append(f"v_perm_b32 {v(WDp + 2 * kp)}, {v(hi)}, {v(lo)}, s{sRP0}")
            perms.append(f"v_perm_b32 {v(WDp + 2 * kp + 1)}, {v(hi)}, {v(lo)}, s{sRP1}")
        for kp in range(4):
            for d in range(4):
                lo, hi = vWG + 8 * kp + d, vWG + 8 * kp + 4 + d
                perms.append(f"v_perm_b32 {v(WGp + 8 * kp + 2 * d)}, {v(hi)}, {v(lo)}, s{sRP0}")
                perms.append(f"v_perm_b32 {v(WGp + 8 * kp + 2 * d + 1)}, {v(hi)}, {v(lo)}, s{sRP1}")
        wdp = o.get("wdp", 1)
        perms1 = perms if wdp != 1 else perms[16:]
        A(f"v_lshlrev_b32 {v(vT + 1)}, {KS}, {v(vLANE)}")
        A(f"v_add_u32 {v(vT + 1)}, {W_KEY}, {v(vT + 1)}")
        for q in range(1, 4):
            A(f"v_add_u32 {v(vT + 8 + q)}, {(64 * q) << KS}, {v(vT + 1)}")
        A(f"s_cmp_eq_u32 s{sWAVE}, 0")
        A("s_barrier")
        A("s_cbranch_scc0 L_nokey")
        self.key_calc(K, vRA, vLANE)
        A("s_mov_b64 exec, 1")
        A(f"global_store_dword {v(22)}, {v(K + 8)}, {sp(sWS)} sc1")
        A(f"ds_write_b32 {v(vT + 3)}, {v(K + 8)} offset:4")
        A("s_mov_b64 exec, -1")
        self.stamp("key")
        A("s_waitcnt lgkmcnt(0)")
        A("s_barrier")
        A("s_waitcnt vmcnt(1)")
        for l in perms1:
            A(l)
        A("s_branch L_keyed")
        A("L_nokey:")
        A("s_waitcnt vmcnt(0)")
        self.stamp("wld")
        for l in perms1:
            A(l)
        A(f"s_cmp_eq_u32 s{sWAVE}, 1")
        A("s_barrier")
        A("s_cbranch_scc0 L_keyed")
        self.stamp("b5c")
        k2 = vT + 4
        kl = [f"global_load_dword {v(K + q)}, {v(vT + 8 + q) if q else v(vT + 1)}, {sp(sWS)} sc1" for q in range(4)]
        for l in kl:
            A(l)
        A("s_waitcnt vmcnt(0)")
        self.poll("key", kl, [f"v_max3_u32 {v(k2)}, {v(K)}, {v(K + 1)}, {v(K + 2)}",
                              f"v_max_u32 {v(k2)}, {v(k2)}, {v(K + 3)}",
                              f"v_cmp_eq_u32 vcc, -1, {v(k2)}"])
        self.stamp("keyld")
        A(f"v_max_u32_dpp {v(k2)}, {v(k2)}, {v(k2)} quad_perm:[1,0,3,2] row_mask:0xf bank_mask:0xf")
        A(f"v_max_u32_dpp {v(k2)}, {v(k2)}, {v(k2)} quad_perm:[2,3,0,1] row_mask:0xf bank_mask:0xf")
        A(f"v_max_u32_dpp {v(k2)}, {v(k2)}, {v(k2)} row_half_mirror row_mask:0xf bank_mask:0xf")
        A(f"v_max_u32_dpp {v(k2)}, {v(k2)}, {v(k2)} row_mirror row_mask:0xf bank_mask:0xf")
        A(f"v_max_u32_dpp {v(k2)}, {v(k2)}, {v(k2)} row_bcast:15 row_mask:0xa bank_mask:0xf")
        A(f"v_max_u32_dpp {v(k2)}, {v(k2)}, {v(k2)} row_bcast:31 row_mask:0xc bank_mask:0xf")
        A("s_mov_b32 exec_lo, 0")
        A("s_brev_b32 exec_hi, 1")
        A(f"ds_write_b32 {v(vT + 3)}, {v(k2)}")
        A("s_mov_b64 exec, -1")
        A("s_waitcnt lgkmcnt(0)")
        A("L_keyed:")
        A(f"s_cmp_lt_u32 s{sPOS}, 14")
        A("s_barrier")
        A("s_cbranch_scc0 L_cfin")
        A(f"ds_read_b32 {v(K)}, {v(vT + 3)}")
        A("s_waitcnt lgkmcnt(0)")
        A(f"v_readfirstlane_b32 s{sWIN}, {v(K)}")
        A(f"s_andn2_b32 s{sT0}, 2047, s{sWIN}")
        A(f"s_lshr_b32 s{sT1}, s{sT0}, 3")
        A(f"s_mul_i32 s{sT1}, s{sT1}, {RS}")
        A(f"v_add_u32 {v(vF + 3)}, s{sT1}, {v(vF + 3)}")
        sl = [f"global_load_dwordx4 {v(K, 4)}, {v(vF + 3)}, {sp(sWS)} sc1"]
        A(sl[0])
        if o.get("wdp", 1) == 1:
            for l in wdl:
                A(l)
        self.stamp("win")
        A(f"s_waitcnt vmcnt({16 if o.get('wdp', 1) == 1 else 0})")
        self.poll("sel", sl, [f"v_max3_u32 {v(vT + 6)}, {v(K)}, {v(K + 1)}, {v(K + 2)}",
                              f"v_max_u32 {v(vT + 6)}, {v(vT + 6)}, {v(K + 3)}",
                              f"v_cmp_eq_u32 vcc, -1, {v(vT + 6)}"])
        self.stamp("sel")
        chk8 = [f"v_max3_u32 {v(vT + 6)}, {v(vY)}, {v(vY + 1)}, {v(vY + 2)}",
                f"v_max3_u32 {v(vT + 7)}, {v(vY + 3)}, {v(vY + 4)}, {v(vY + 5)}",
                f"v_max3_u32 {v(vT + 6)}, {v(vT + 6)}, {v(vY + 6)}, {v(vY + 7)}",
                f"v_max_u32 {v(vT + 6)}, {v(vT + 6)}, {v(vT + 7)}",
                f"v_cmp_eq_u32 vcc, -1, {v(vT + 6)}"]
        V2 = [K + 8 + i for i in range(8)]
        for kp in range(4):
            for c in range(8):
                A(f"v_dot2_f32_bf16 {v(V2[c])}, {v(K + kp)}, {v(WGp + 8 * kp + c)}, {v(V2[c]) if kp else 0}")
        self.reduce8(V2, K + 16)
        A(f"ds_write_b32 {v(vF + 4)}, {v(V2[0])}")
        if o.get("wdp", 1) == 1:
            A("s_waitcnt vmcnt(0)")
            for l in perms[:16]:
                A(l)
        A("s_waitcnt lgkmcnt(0)")
        A("s_barrier")
        A(f"ds_read_b64 {v(K, 2)}, {v(vF + 5)}")
        A(f"ds_read_b64 {v(K + 2, 2)}, {v(vF + 5)} offset:128")
        A("s_waitcnt lgkmcnt(0)")
        A(f"v_add_f32 {v(K)}, {v(K)}, {v(K + 1)}")
        A(f"v_add_f32 {v(K + 2)}, {v(K + 2)}, {v(K + 3)}")
        A(f"v_cvt_pk_bf16_f32 {v(K + 1)}, {v(K)}, {v(K + 2)}")
        A(f"v_lshlrev_b32 {v(K)}, 16, {v(K + 1)}")
        A(f"v_mul_f32 {v(K + 3)}, {hex(f2u(-L2E))}, {v(K)}")
        A(f"v_exp_f32 {v(K + 3)}, {v(K + 3)}")
        A(f"v_and_b32 {v(K + 2)}, s{sMASK}, {v(K + 1)}")
        A(f"v_add_f32 {v(K + 3)}, 1.0, {v(K + 3)}")
        A(f"v_rcp_f32 {v(K + 3)}, {v(K + 3)}")
        A(f"v_mul_f32 {v(K)}, {v(K)}, {v(K + 3)}")
        A(f"v_cvt_pk_bf16_f32 {v(K)}, {v(K)}, {v(K)}")
        A(f"v_and_b32 {v(K)}, s{sMASK}, {v(K)}")
        A(f"v_mul_f32 {v(K)}, {v(K)}, {v(K + 2)}")
        A(f"v_mov_b32_dpp {v(K + 1)}, {v(K)} quad_perm:[1,1,3,3] row_mask:0xf bank_mask:0xf")
        A(f"v_cvt_pk_bf16_f32 {v(K)}, {v(K)}, {v(K + 1)}")
        for kp in range(8):
            A(f"v_readlane_b32 s{sH + kp}, {v(K)}, {2 * kp}")
        for kp in range(8):
            for c in range(2):
                A(f"v_dot2_f32_bf16 {v(K + 4 + c)}, s{sH + kp}, {v(WDp + 2 * kp + c)}, {v(K + 4 + c) if kp else 0}")
        A(f"global_store_dwordx2 {v(vF + 6)}, {v(K + 4, 2)}, {sp(sWS)} sc1")
        self.stamp("part")
        A(f"s_cmp_lt_u32 s{sPOS}, 8")
        A("s_cbranch_scc0 L_cfin")
        A(f"s_cmp_lt_u32 s{sWAVE}, 2")
        A("s_cbranch_scc0 L_cfin")
        A(f"s_lshl_b32 s{sTMP}, s{sXCD}, 3")
        A(f"s_add_u32 s{sTMP}, s{sTMP}, s{sPOS}")
        A(f"s_lshl_b32 s{sTMP}, s{sTMP}, 1")
        A(f"s_add_u32 s{sTMP}, s{sTMP}, s{sWAVE}")
        A(f"v_lshrrev_b32 {v(vT)}, 5, {v(vLANE)}")
        A(f"v_bfe_u32 {v(vT + 1)}, {v(vLANE)}, 4, 1")
        A(f"v_lshl_add_u32 {v(vT)}, {v(vT + 1)}, 1, {v(vT)}")
        A(f"s_lshl_b32 s{sTMP + 1}, s{sTMP}, 3")
        A(f"v_lshl_add_u32 {v(vT)}, {v(vT)}, 1, s{sTMP + 1}")
        A(f"s_add_u32 s{sT1}, s{sT1}, {W_REG + O_SLOT}")
        A(f"v_add_u32 {v(vT + 1)}, s{sT1}, {v(vT)}")
        xh = [f"global_load_ushort {v(K + 20)}, {v(vT + 1)}, {sp(sWS)} sc1",
              f"global_load_ushort {v(K + 21)}, {v(vT + 1)}, {sp(sWS)} offset:1024 sc1"]
        for l in xh:
            A(l)
        A(f"s_lshl_b32 s{sTMP + 1}, s{sT0}, 10")
        A(f"v_add_u32 {v(vT)}, s{sTMP + 1}, {v(vT)}")
        A(f"v_min_u32 {v(vT + 2)}, 55, {v(vLANE)}")
        A(f"v_mul_u32_u24 {v(vT + 3)}, 4682, {v(vT + 2)}")
        A(f"v_lshrrev_b32 {v(vT + 3)}, 16, {v(vT + 3)}")
        A(f"v_mad_u32_u24 {v(vT + 2)}, {v(vT + 3)}, 18, {v(vT + 2)}")
        A(f"v_mul_u32_u24 {v(vT + 2)}, {RS}, {v(vT + 2)}")
        A(f"s_lshl_b32 s{sTMP + 1}, s{sTMP}, 4")
        A(f"s_add_u32 s{sTMP + 1}, s{sTMP + 1}, {W_REG + O_PART}")
        A(f"v_add_u32 {v(vT + 2)}, s{sTMP + 1}, {v(vT + 2)}")
        A(f"v_add_u32 {v(vT + 3)}, {128 * RS}, {v(vT + 2)}")
        A(f"s_ashr_i32 s{sTMP + 2}, s{sWIN}, 31")
        A(f"s_not_b32 s{sTMP + 2}, s{sTMP + 2}")
        A(f"s_or_b32 s{sTMP + 2}, s{sTMP + 2}, 0x80000000")
        A(f"s_xor_b32 s{sTMP + 2}, s{sTMP + 2}, s{sWIN}")
        A(f"s_and_b32 s{sTMP + 2}, s{sTMP + 2}, 0xfffff800")
        A(f"s_or_b32 s{sTMP + 2}, s{sTMP + 2}, 0x400")
        A(f"v_cvt_pk_bf16_f32 {v(K + 22)}, s{sTMP + 2}, s{sTMP + 2}")
        A(f"v_and_b32 {v(K + 22)}, s{sMASK}, {v(K + 22)}")
        A(f"v_mul_f32 {v(K + 22)}, {hex(f2u(-L2E))}, {v(K + 22)}")
        A(f"v_exp_f32 {v(K + 22)}, {v(K + 22)}")
        A(f"v_add_f32 {v(K + 22)}, 1.0, {v(K + 22)}")
        A(f"v_rcp_f32 {v(K + 22)}, {v(K + 22)}")
        A(f"v_cvt_pk_bf16_f32 {v(K + 22)}, {v(K + 22)}, {v(K + 22)}")
        A(f"v_and_b32 {v(K + 22)}, s{sMASK}, {v(K + 22)}")
        A("s_waitcnt vmcnt(0)")
        self.stamp("partdr")
        pl = [f"global_load_dwordx4 {v(vY, 4)}, {v(vT + 2)}, {sp(sWS)} sc1",
              f"global_load_dwordx4 {v(vY + 4, 4)}, {v(vT + 3)}, {sp(sWS)} sc1"]
        for l in pl:
            A(l)
        self.poll("xh", xh, [f"v_max_u32 {v(vT + 6)}, {v(K + 20)}, {v(K + 21)}",
                             f"v_cmp_eq_u32 vcc, 0xffff, {v(vT + 6)}"])
        A(f"v_lshlrev_b32 {v(K + 20)}, 16, {v(K + 20)}")
        A(f"v_lshlrev_b32 {v(K + 21)}, 16, {v(K + 21)}")
        A("s_waitcnt vmcnt(0)")
        self.poll("part", pl, chk8)
        self.stamp("partld")
        A(f"v_cmp_gt_u32 vcc, 56, {v(vLANE)}")
        A(f"v_pk_add_f32 {v(vY, 2)}, {v(vY, 2)}, {v(vY + 4, 2)}")
        A(f"v_pk_add_f32 {v(vY + 2, 2)}, {v(vY + 2, 2)}, {v(vY + 6, 2)}")
        for c in range(4):
            A(f"v_cndmask_b32 {v(vY + c)}, 0, {v(vY + c)}, vcc")
        A(f"v_permlane32_swap_b32 {v(vY)}, {v(vY + 1)}")
        A(f"v_permlane32_swap_b32 {v(vY + 2)}, {v(vY + 3)}")
        A(f"v_add_f32 {v(vY)}, {v(vY)}, {v(vY + 1)}")
        A(f"v_add_f32 {v(vY + 2)}, {v(vY + 2)}, {v(vY + 3)}")
        A(f"v_permlane16_swap_b32 {v(vY)}, {v(vY + 2)}")
        A(f"v_add_f32 {v(vY)}, {v(vY)}, {v(vY + 2)}")
        for sh in (8, 4, 2, 1):
            A(f"v_add_f32_dpp {v(vY)}, {v(vY)}, {v(vY)} row_ror:{sh} row_mask:0xf bank_mask:0xf")
        y = vY
        A(f"v_cvt_pk_bf16_f32 {v(y)}, {v(y)}, {v(y)}")
        A(f"v_and_b32 {v(y)}, s{sMASK}, {v(y)}")
        A(f"v_mul_f32 {v(y)}, {v(y)}, {v(K + 22)}")
        A(f"v_cvt_pk_bf16_f32 {v(y)}, {v(y)}, {v(y)}")
        A(f"v_and_b32 {v(y)}, s{sMASK}, {v(y)}")
        A(f"v_add_f32 {v(y)}, {v(y)}, {v(K + 20)}")
        A(f"v_cvt_pk_bf16_f32 {v(y)}, {v(y)}, {v(y)}")
        A(f"v_and_b32 {v(y)}, s{sMASK}, {v(y)}")
        A(f"v_add_f32 {v(y)}, {v(y)}, {v(K + 21)}")
        A(f"v_cvt_pk_bf16_f32 {v(y)}, {v(y)}, {v(y)}")
        A("s_mov_b32 exec_lo, 0x00010001")
        A("s_mov_b32 exec_hi, 0x00010001")
        A(f"global_store_short {v(vT)}, {v(y)}, {sp(sOUT)}")
        A("L_cfin:")
        self.finish("C")

    def text(self):
        lines = self.build()
        src = open("sequential_preLN__ssm_conv_s4d__moe_arch_mod__prompt.s.ref").read()
        head = [l for l in src.split("\n") if l.startswith(";") and "@launch" not in l]
        head = head[:head.index("; Override launch geometry by editing the next line (default: block=256,")]
        out = head + [f"; @launch grid=(256,1,1) block=(512,1,1) lds={LDS_BYTES}",
                      '.amdgcn_target "amdgcn-amd-amdhsa--gfx950"', ".text", f".globl {KNAME}", ".p2align 8",
                      f".type {KNAME},@function"]
        out += [l if l.endswith(":") else "    " + l for l in lines]
        out += [".section .rodata,\"a\"", ".p2align 6", f".amdhsa_kernel {KNAME}",
                "  .amdhsa_next_free_vgpr 256", "  .amdhsa_next_free_sgpr 102", "  .amdhsa_accum_offset 256",
                "  .amdhsa_group_segment_fixed_size 0", "  .amdhsa_kernarg_size 120", "  .amdhsa_user_sgpr_count 2",
                "  .amdhsa_user_sgpr_kernarg_segment_ptr 1", "  .amdhsa_system_sgpr_workgroup_id_x 1",
                ".end_amdhsa_kernel", ""]
        return "\n".join(out)


if __name__ == "__main__":
    out = sys.argv[1]
    opts = {}
    stamp = False
    for a in sys.argv[2:]:
        if a == "stamp":
            stamp = True
        else:
            k, val = a.split("=")
            opts[k] = val if k in ('pr', 'few') else int(val)
    g = Gen(stamp, opts)
    open(out, "w").write(g.text())
    if g.stamp_on:
        open(out + ".names", "w").write(" ".join(g.allnames["R"]) + "\n" + " ".join(g.allnames["C"]))
    print(g.info, "lds", LDS_BYTES)
```

```python
import sys
import struct
from asmlib import Asm, align8

KNAME = "sequential_preLN__ssm_conv_s4d__moe_arch_mod__prompt_kernel"


def f2u(x):
    return struct.unpack("<I", struct.pack("<f", x))[0]


W_FLAG = 0x1000 + (int(__import__('os').environ.get('WOFF', '0')) << 20)
W_KEY = 0x9000 + (int(__import__('os').environ.get('WOFF', '0')) << 20)
W_FLAG2 = 0x11000 + (int(__import__('os').environ.get('WOFF', '0')) << 20)
import os
WOFF = int(os.environ.get('WOFF', '0')) << 20
W_REG = 0x38000 + WOFF
RS = 20608
O_X1, O_X2, O_SLOT, O_PART = 0, 8192, 16384, 18432
W_STAMP = 0x800000
ROWB = 544
TABC = 63 * ROWB
L_TAB = 0
L_P = 68608
PC = 8256
L_U = L_P + 2 * PC
UC = 4608
L_RED1 = (L_U + 2 * UC + 255) // 256 * 256
L_RED2 = L_RED1 + 256
L_SUMW = L_RED2 + 384
L_REDK = L_SUMW + 16
L_REDF = L_REDK + 16
LDS_BYTES = L_REDF + 256
L_EPI = 0
TBS = 1152
sX, sLA, sAI, sCR, sCI, sLDT, sD = 4, 6, 8, 10, 12, 14, 16
sWR, sWG, sWU, sWD, sOUT, sDBG, sWS = 20, 22, 24, 26, 28, 30, 32
sL, sPOS, sXCD, sWAVE, sG, sDT, sT0, sT1, sSPIN, sF = 34, 35, 36, 37, 38, 39, 40, 41, 42, 43
sODD = 44
sSELLO, sSELHI, sONES, sMASK = 46, 47, 48, 49
sWSEL = 50
sBEST, sWIN, sRP0, sRP1 = 52, 53, 54, 55
sH = 56
sE = 64
sTMP = 66
sOWN = 71
sCAND = 3
sSTAMP = 72


def sp(r):
    return f"s[{r}:{r + 1}]"


def v(r, n=1):
    return f"v{r}" if n == 1 else f"v[{r}:{r + n - 1}]"


class Gen:
    def __init__(self, stamp=False, opts=None):
        self.A = Asm()
        self.tail = Asm()
        self.stamp_on = stamp
        self.nstamp = 0
        self.names = []
        self.o = dict(opts or {})
        self.only = None
        self.few = None
        if "few" in self.o:
            self.few = ["start", "end"] + self.o["few"].split(".")
            self.stamp_on = True
        self.role = "R"
        if "pr" in self.o:
            self.only = tuple(self.o["pr"].split("."))
            self.stamp_on = True
            self.o["probe"] = 1 if self.only[0] == "R" else 101

    def stamp(self, name):
        if not self.stamp_on:
            return
        if self.only and name != "start" and (self.role, name) != self.only:
            return
        if self.few and name not in self.few:
            return
        k = self.nstamp
        self.nstamp += 1
        self.names.append(name)
        assert sSTAMP + k < 100
        self.A(f"s_memrealtime s[100:101]")
        self.A("s_waitcnt lgkmcnt(0)")
        self.A(f"s_mov_b32 s{sSTAMP + k}, s100")

    def poll(self, name, loads, check, base_exec="-1"):
        A = self.A
        for c in check:
            A(c)
        A(f"s_cbranch_vccnz L_retry_{name}")
        A(f"L_ok_{name}:")
        T = self.tail
        T(f"L_retry_{name}:")
        T(f"s_mov_b32 s{sSPIN}, 0x40000")
        T(f"L_again_{name}:")
        T(f"s_sub_u32 s{sSPIN}, s{sSPIN}, 1")
        T(f"s_cbranch_scc1 L_ok_{name}")
        T("s_mov_b64 exec, vcc")
        for l in loads:
            T(l)
        T("s_waitcnt vmcnt(0)")
        for c in check:
            T(c)
        T(f"s_mov_b64 exec, {base_exec}")
        T(f"s_cbranch_vccnz L_again_{name}")
        T(f"s_branch L_ok_{name}")

    def cmul(self, d, x, y, t):
        return [f"v_pk_mul_f32 {v(t, 2)}, {v(x, 2)}, {v(y, 2)} op_sel:[0,0] op_sel_hi:[0,1]",
                f"v_pk_fma_f32 {v(d, 2)}, {v(x, 2)}, {v(y, 2)}, {v(t, 2)} op_sel:[1,1,0] op_sel_hi:[1,0,1] neg_lo:[1,0,0]"]

    def reduce8(self, V, t):
        A = self.A
        for i in range(4):
            A(f"v_add_f32_dpp {v(V[i])}, {v(V[i])}, {v(V[i])} row_ror:8 row_mask:0xf bank_mask:0x3")
        for i in range(4):
            A(f"v_add_f32_dpp {v(V[i])}, {v(V[i + 4])}, {v(V[i + 4])} row_ror:8 row_mask:0xf bank_mask:0xc")
        for i in range(2):
            A(f"v_add_f32_dpp {v(V[i])}, {v(V[i])}, {v(V[i])} row_shl:4 row_mask:0xf bank_mask:0x5")
        for i in range(2):
            A(f"v_add_f32_dpp {v(V[i])}, {v(V[i + 2])}, {v(V[i + 2])} row_shr:4 row_mask:0xf bank_mask:0xa")
        A(f"v_permlane32_swap_b32 {v(V[0])}, {v(V[1])}")
        A(f"v_add_f32 {v(V[0])}, {v(V[0])}, {v(V[1])}")
        A(f"v_add_f32_dpp {v(V[0])}, {v(V[0])}, {v(V[0])} quad_perm:[2,3,0,1] row_mask:0xf bank_mask:0xf")
        A(f"v_mov_b32 {v(t)}, {v(V[0])}")
        A(f"v_permlane16_swap_b32 {v(V[0])}, {v(t)}")
        A(f"v_add_f32 {v(V[0])}, {v(V[0])}, {v(t)}")

    def row_stats(self, S, Q, negm, rinv, t):
        A = self.A
        A(f"v_pk_add_f32 {v(S, 2)}, {v(S, 2)}, {v(S + 2, 2)}")
        A(f"v_pk_add_f32 {v(Q, 2)}, {v(Q, 2)}, {v(Q + 2, 2)}")
        A(f"v_add_f32 {v(S)}, {v(S)}, {v(S + 1)}")
        A(f"v_add_f32 {v(Q)}, {v(Q)}, {v(Q + 1)}")
        A(f"v_mul_f32 {v(S)}, {hex(f2u(1 / 512))}, {v(S)}")
        A(f"v_mul_f32 {v(Q)}, {hex(f2u(1 / 512))}, {v(Q)}")
        A(f"v_fma_f32 {v(Q)}, -{v(S)}, {v(S)}, {v(Q)}")
        A(f"v_max_f32 {v(Q)}, 0, {v(Q)}")
        A(f"v_cvt_pk_bf16_f32 {v(t)}, -{v(S)}, {v(Q)}")
        A(f"v_and_b32 {v(Q)}, s{sMASK}, {v(t)}")
        A(f"v_add_f32 {v(Q)}, {hex(f2u(1e-5))}, {v(Q)}")
        A(f"v_cvt_pk_bf16_f32 {v(Q)}, {v(Q)}, {v(Q)}")
        A(f"v_and_b32 {v(Q)}, s{sMASK}, {v(Q)}")
        A(f"v_sqrt_f32 {v(Q)}, {v(Q)}")
        A(f"v_lshlrev_b32 {v(negm)}, 16, {v(t)}")
        A(f"v_cvt_pk_bf16_f32 {v(Q)}, {v(Q)}, {v(Q)}")
        A(f"v_and_b32 {v(Q)}, s{sMASK}, {v(Q)}")
        A(f"v_rcp_f32 {v(rinv)}, {v(Q)}")

    def spread(self, val, dst, t):
        A = self.A
        for r in range(4):
            A(f"v_mov_b32_dpp {v(t + r)}, {v(val)} row_newbcast:{4 + r} row_mask:0xf bank_mask:0xf")
        for r in range(4):
            A(f"v_cndmask_b32_dpp {v(dst + r)}, {v(val)}, {v(t + r)}, vcc row_newbcast:{r} row_mask:0xf bank_mask:0xf")

    def key_calc(self, K, vRA, vLANE):
        A = self.A
        A(f"v_mov_b32 {v(K + 14)}, {L_SUMW}")
        A(f"ds_read_b128 {v(K, 4)}, {v(vRA)} offset:{L_RED2 - L_RED1}")
        A(f"ds_read_b128 {v(K + 4, 4)}, {v(vRA)} offset:{L_RED2 - L_RED1 + 128}")
        A(f"ds_read_b128 {v(K + 8, 4)}, {v(vRA)} offset:{L_RED2 - L_RED1 + 256}")
        A(f"ds_read_b32 {v(K + 15)}, {v(K + 14)}")
        A(f"s_lshl_b32 s{sTMP}, s{sL}, 3")
        A(f"s_sub_u32 s{sTMP}, 2047, s{sTMP}")
        A(f"v_and_b32 {v(K + 14)}, 7, {v(vLANE)}")
        A(f"v_sub_u32 {v(K + 14)}, s{sTMP}, {v(K + 14)}")
        A("s_waitcnt lgkmcnt(2)")
        self.row_stats(K, K + 4, K + 12, K + 13, K + 28)
        A("s_waitcnt lgkmcnt(0)")
        A(f"v_pk_add_f32 {v(K + 8, 2)}, {v(K + 8, 2)}, {v(K + 10, 2)}")
        A(f"v_add_f32 {v(K + 8)}, {v(K + 8)}, {v(K + 9)}")
        A(f"v_fmac_f32 {v(K + 8)}, {v(K + 12)}, {v(K + 15)}")
        A(f"v_mul_f32 {v(K + 8)}, {v(K + 8)}, {v(K + 13)}")
        A(f"v_ashrrev_i32 {v(K + 9)}, 31, {v(K + 8)}")
        A(f"v_or_b32 {v(K + 9)}, 0x80000000, {v(K + 9)}")
        A(f"v_xor_b32 {v(K + 8)}, {v(K + 8)}, {v(K + 9)}")
        A(f"v_and_b32 {v(K + 8)}, 0xfffff800, {v(K + 8)}")
        A(f"v_or_b32 {v(K + 8)}, {v(K + 8)}, {v(K + 14)}")
        A(f"v_min_u32 {v(K + 8)}, -2, {v(K + 8)}")
        A(f"v_max_u32_dpp {v(K + 8)}, {v(K + 8)}, {v(K + 8)} quad_perm:[1,0,3,2] row_mask:0xf bank_mask:0xf")
        A(f"v_max_u32_dpp {v(K + 8)}, {v(K + 8)}, {v(K + 8)} quad_perm:[2,3,0,1] row_mask:0xf bank_mask:0xf")
        A(f"v_max_u32_dpp {v(K + 8)}, {v(K + 8)}, {v(K + 8)} row_half_mirror row_mask:0xf bank_mask:0xf")

    def finish(self, role):
        A = self.A
        o = self.o
        if self.stamp_on:
            self.stamp("end")
            self.allnames[role] = self.names
        if self.stamp_on and "probe" in o:
            k = o["probe"]
            if k == 98 and role == "R":
                A(f"s_getreg_b32 s{sTMP}, hwreg(HW_REG_XCC_ID, 0, 4)")
                A(f"s_sub_u32 s{sTMP}, s{sTMP}, s2")
                A(f"s_and_b32 s{sTMP}, s{sTMP}, 7")
                A(f"s_mul_i32 s{sTMP}, s{sTMP}, 1000")
                A(f"s_add_u32 s{sTMP}, s{sTMP}, 2000")
            elif k == 99 and role == "R":
                A("s_memtime s[96:97]")
                A("s_waitcnt lgkmcnt(0)")
                A("s_sub_u32 s96, s96, s98")
                A(f"s_sub_u32 s97, s{sSTAMP + self.nstamp - 1}, s{sSTAMP}")
                A("s_mov_b64 exec, -1")
                A("v_cvt_f32_u32 v2, s96")
                A("v_cvt_f32_u32 v3, s97")
                A("v_rcp_f32 v3, v3")
                A("s_nop 1")
                A("v_mul_f32 v2, v2, v3")
                A("v_mul_f32 v2, 0x43c80000, v2")
                A("v_cvt_u32_f32 v2, v2")
                A("s_nop 1")
                A(f"v_readfirstlane_b32 s{sTMP}, v2")
                A(f"s_add_u32 s{sTMP}, s{sTMP}, 2000")
            elif k < 0 and role == "R":
                A(f"s_mov_b32 s{sTMP}, {-k}")
            elif k >= 0 and (k >= 100) == (role == "C"):
                A(f"s_sub_u32 s{sTMP}, s{sSTAMP + k % 100}, s{sSTAMP}")
                A(f"s_cmp_lt_u32 s{sTMP}, 3000")
                A(f"s_cselect_b32 s{sTMP}, s{sTMP}, 0")
                A(f"s_mul_i32 s{sTMP}, s{sTMP}, 20")
                A(f"s_add_u32 s{sTMP}, s{sTMP}, 2000")
                if role == "C":
                    A(f"s_cmp_eq_u32 s{sWAVE}, 0")
                    A(f"s_cselect_b32 s{sTMP}, s{sTMP}, 0")
            else:
                A(f"s_mov_b32 s{sTMP}, 0")
            A(f"L_spin{role}:")
            A("s_memrealtime s[100:101]")
            A("s_waitcnt lgkmcnt(0)")
            A(f"s_sub_u32 s100, s100, s{sSTAMP}")
            A(f"s_cmp_lt_u32 s100, s{sTMP}")
            A(f"s_cbranch_scc1 L_spin{role}")
        elif self.stamp_on:
            A("s_mov_b64 exec, 1")
            A(f"s_lshl_b32 s{sTMP}, s2, 3")
            A(f"s_add_u32 s{sTMP}, s{sTMP}, s{sWAVE}")
            if role == "C":
                A(f"s_add_u32 s{sTMP}, s{sTMP}, 4")
            A(f"s_lshl_b32 s{sTMP}, s{sTMP}, 7")
            A(f"s_add_u32 s{sTMP}, s{sTMP}, {W_STAMP}")
            A(f"v_mov_b32 v1, s{sTMP}")
            for k in range(self.nstamp):
                A(f"v_mov_b32 v2, s{sSTAMP + k}")
                A(f"global_store_dword v1, v2, {sp(sWS)} offset:{4 * k}")
        A("s_endpgm")

    def build(self):
        A = self.A
        self.allnames = {}
        A(f"{KNAME}:")
        A("s_cmp_ge_u32 s2, 256")
        A("s_cbranch_scc1 L_end")
        self.stamp("start")
        if self.o.get("probe", 0) == 99:
            A("s_memtime s[98:99]")
        cpf = self.o.get("codepf", 1)
        if cpf == 1:
            A(f"s_getpc_b64 {sp(sE)}")
            A("L_pc:")
            A("v_lshlrev_b32 v2, 5, v0")
            A(f"v_min_u32 v2, L_codeend-L_pc-4, v2")
            A(f"global_load_dword v3, v2, {sp(sE)}")
        elif cpf >= 2:
            A(f"s_getpc_b64 {sp(sE)}")
            A("L_pc:")
            A(f"s_bfe_u32 s3, s2, {3 | ((7 - cpf) << 16)}")
            A(f"s_lshl_b32 s3, s3, {7 + cpf}")
            A("v_lshl_add_u32 v2, v0, 7, s3")
            A(f"v_min_u32 v2, L_codeend-L_pc-4, v2")
            A(f"v_cmp_gt_u32 vcc, {1 << cpf}, v0")
            A("s_mov_b64 exec, vcc")
            A(f"global_load_dword v3, v2, {sp(sE)}")
            A("s_mov_b64 exec, -1")
        A("s_load_dwordx16 s[4:19], s[0:1], 0")
        A("s_load_dwordx8 s[20:27], s[0:1], 64")
        A("s_load_dwordx4 s[28:31], s[0:1], 96")
        A("s_load_dwordx2 s[32:33], s[0:1], 112")
        A("v_lshrrev_b32 v4, 6, v0")
        A(f"s_and_b32 s{sXCD}, s2, 7")
        A(f"v_readfirstlane_b32 s{sWAVE}, v4")
        A(f"s_lshr_b32 s{sPOS}, s2, 3")
        A(f"s_lshl_b32 s{sL}, s{sXCD}, 5")
        A(f"s_add_u32 s{sL}, s{sL}, s{sPOS}")
        A("v_and_b32 v1, 63, v0")
        A(f"s_mov_b32 s{sMASK}, 0xffff0000")
        pre = self.o.get("pre", 0)
        if pre:
            A("s_waitcnt lgkmcnt(0)")
            n = pre % 10
            kind = pre // 10
            A(f"s_mul_i32 s{sT0}, s{sL}, {n * 4096 + 128}")
            A(f"s_add_u32 s{sT0}, s{sT0}, {32 << 20}")
            A("v_and_b32 v5, 0xff, v0")
            A(f"v_lshl_add_u32 v5, v5, 4, s{sT0}")
            A(f"s_cmp_ge_u32 s{sWAVE}, 4")
            A("s_cbranch_scc1 L_pre")
            if kind in (2, 3):
                A("s_mov_b64 exec, 1")
                A(f"global_load_dword v8, v5, {sp(sWS)}")
                A("s_mov_b64 exec, -1")
                A("s_waitcnt vmcnt(0)")
                if kind == 3:
                    self.nstamp = 0
                    self.names = []
                    self.stamp("start")
            if kind in (8, 9, 10, 11):
                A("v_lshrrev_b32 v12, 1, v0")
                A("v_and_b32 v13, 1, v0")
                A("v_lshlrev_b32 v12, 3, v12")
                A(f"s_lshl_b32 s{sT0}, s{sL}, 13")
                A("v_lshl_add_u32 v14, v13, 12, v12")
                A(f"v_add_u32 v14, s{sT0}, v14")
                for r in range(4):
                    A(f"global_load_dwordx2 v[{16 + 2 * r}:{17 + 2 * r}], v14, s[18:19] offset:{1024 * r}{' nt' if kind != 10 else ''}")
                ny = 0
                if kind in (9, 11):
                    A(f"global_load_dwordx2 v[24:25], v12, {sp(sD)}")
                    A(f"global_load_dwordx2 v[26:27], v12, {sp(sWR)}")
                    A("v_lshlrev_b32 v13, 4, v1")
                    A(f"global_load_dwordx4 v[28:31], v13, {sp(sWR)}")
                    ny = 3
                if kind == 11:
                    A(f"s_load_dword s{sG}, {sp(sWS)}, 0")
                for k in range(n):
                    A(f"global_store_dwordx4 v5, v[8:11], {sp(sWS)} sc1")
                    A("v_add_u32 v5, 4096, v5")
                A(f"s_waitcnt vmcnt({n + ny})")
                self.stamp("pre")
                n = 0
            for k in range(n):
                if kind == 1:
                    A(f"global_load_dwordx4 v[8:11], v5, {sp(sWS)}")
                elif kind == 6:
                    if k == 0:
                        A(f"s_lshl_b32 s{sT0}, s{sL}, 7")
                        A(f"v_mov_b32 v6, s{sT0}")
                        A("s_mov_b64 exec, 1")
                    A(f"global_load_dword v{8 + k}, v6, {sp((sX, sLA, sAI, sCR, sCI, sWG, sWU, sWD, sOUT)[k])}")
                    if k == n - 1:
                        A("s_mov_b64 exec, -1")
                elif kind == 7:
                    if k == 0:
                        A(f"v_lshlrev_b32 v6, 3, v1")
                    A(f"global_load_dwordx2 v[{8 + 2 * k}:{9 + 2 * k}], v6, {sp((sD, sWR)[k])}")
                elif kind == 5:
                    A(f"global_load_dwordx4 v[8:11], v5, {sp(sWS)} nt")
                elif kind == 4:
                    A(f"global_store_dwordx4 v5, v[8:11], {sp(sWS)}")
                else:
                    A(f"global_store_dwordx4 v5, v[8:11], {sp(sWS)} sc1")
                A("v_add_u32 v5, 4096, v5")
            A("s_waitcnt vmcnt(0)")
            if kind < 8:
                self.stamp("pre")
            A("L_pre:")
            A("s_barrier")
        A(f"s_cmp_ge_u32 s{sWAVE}, 4")
        A("s_cbranch_scc1 L_chan")
        self.rows()
        self.names = self.names[:1]
        self.nstamp = min(self.nstamp, 1)
        A(".p2align 6")
        self.role = "C"
        self.chans()
        A("L_end:")
        A("s_endpgm")
        for l in self.tail.L:
            A(l)
        A("L_codeend:")
        lines, nops = A.padded()
        lines, nbytes, promoted, missed = align8(lines)
        self.info = dict(nops=nops, bytes=nbytes, promoted=promoted, missed=missed, lines=len(lines))
        return lines

    def rows(self):
        A = self.A
        o = self.o
        vLANE = 1
        vX, vU, vD, vWR = 212, 10, 18, 20
        vREG, vRD, vAUX = 22, 23, 24
        vKEY, vSW, vRA, vFL, vUW = 26, 27, 28, 29, 30
        vT = 32
        vWG, vWD = 40, 72
        vY = 88
        vONE = 96
        K = 100
        L2E = 1.4426950408889634
        A(f"v_lshrrev_b32 {v(vT)}, 1, v0")
        A(f"v_and_b32 {v(vT + 1)}, 1, v0")
        A(f"v_lshlrev_b32 {v(vT + 2)}, 3, {v(vT)}")
        A(f"s_lshl_b32 s{sT0}, s{sL}, 13")
        A(f"v_lshl_add_u32 {v(vRD)}, {v(vT + 1)}, 12, {v(vT + 2)}")
        A(f"v_add_u32 {v(vRD)}, s{sT0}, {v(vRD)}")
        A(f"s_mul_i32 s{sOWN}, s{sL}, {RS}")
        A(f"s_add_u32 s{sOWN}, s{sOWN}, {W_REG}")
        A(f"s_add_u32 s{sT0}, s{sOWN}, 4096")
        A(f"v_lshl_add_u32 {v(vREG)}, v0, 4, s{sT0}")
        A(f"v_lshlrev_b32 {v(vT + 3)}, 4, {v(vLANE)}")
        nt = ' nt' if o.get('ntx', 1) else ''
        A("s_waitcnt lgkmcnt(0)")
        self.stamp("karg")
        for r in range(4):
            A(f"global_load_dwordx2 {v(vX + 2 * r, 2)}, {v(vRD)}, {sp(sX)} offset:{1024 * r}{nt}")
        A(f"s_load_dword s{sG}, {sp(sWS)}, 0")
        A(f"global_load_dwordx2 {v(vD, 2)}, {v(vT + 2)}, {sp(sD)}")
        A(f"global_load_dwordx2 {v(vWR, 2)}, {v(vT + 2)}, {sp(sWR)}")
        A(f"global_load_dwordx4 {v(vONE, 4)}, {v(vT + 3)}, {sp(sWR)}")
        A(f"s_mov_b32 s{sODD}, 0xaaaaaaaa")
        A(f"s_mov_b32 s{sODD + 1}, 0xaaaaaaaa")
        A(f"s_mov_b32 s{sSELLO}, 0x3f80")
        A(f"s_mov_b32 s{sSELHI}, 0x3f800000")
        A(f"s_mov_b32 s{sONES}, 0x3f803f80")
        A(f"s_and_b32 s{sTMP}, s{sL}, 1")
        A(f"s_lshl_b32 s{sTMP}, s{sTMP}, 12")
        A(f"s_lshr_b32 s{sTMP + 1}, s{sL}, 1")
        A(f"s_lshl_b32 s{sTMP + 1}, s{sTMP + 1}, 5")
        A(f"s_add_u32 s{sTMP}, s{sTMP}, s{sTMP + 1}")
        A(f"s_add_u32 s{sTMP}, s{sTMP}, {W_REG + O_X1}")
        A(f"v_mul_u32_u24 {v(vAUX)}, {RS}, {v(vT)}")
        A(f"v_lshl_add_u32 {v(vAUX)}, {v(vT + 1)}, 4, {v(vAUX)}")
        A(f"v_add_u32 {v(vAUX)}, s{sTMP}, {v(vAUX)}")
        A(f"v_add_u32 {v(vAUX + 1)}, {128 * RS}, {v(vAUX)}")
        FS = o.get("fs", 7)
        KS = o.get("ks", 5)
        A(f"v_lshlrev_b32 {v(vFL)}, {FS}, {v(vT)}")
        A(f"v_add_u32 {v(vFL)}, {W_FLAG}, {v(vFL)}")
        A(f"v_add_u32 {v(vFL + 2)}, {128 << FS}, {v(vFL)}")
        A(f"s_lshl_b32 s{sT0}, s{sL}, {FS}")
        A(f"s_add_u32 s{sT0}, s{sT0}, {W_FLAG}")
        A(f"v_lshl_add_u32 {v(vKEY)}, {v(vLANE)}, 4, s{sT0}")
        A(f"v_lshlrev_b32 {v(vSW)}, 6, {v(vT + 1)}")
        A(f"v_and_b32 {v(vT + 3)}, 4, {v(vLANE)}")
        A(f"v_lshl_add_u32 {v(vSW)}, {v(vT + 3)}, 3, {v(vSW)}")
        A(f"v_and_b32 {v(vT + 3)}, 8, {v(vLANE)}")
        A(f"v_lshl_add_u32 {v(vSW)}, {v(vT + 3)}, 4, {v(vSW)}")
        A(f"v_lshrrev_b32 {v(vT + 3)}, 5, {v(vLANE)}")
        A(f"v_lshl_add_u32 {v(vSW)}, {v(vT + 3)}, 4, {v(vSW)}")
        A(f"s_lshl_b32 s{sTMP}, s{sWAVE}, 2")
        A(f"s_add_u32 s{sTMP}, s{sTMP}, {L_RED1}")
        A(f"v_add_u32 {v(vSW)}, s{sTMP}, {v(vSW)}")
        A(f"v_and_b32 {v(vT + 3)}, 7, {v(vLANE)}")
        A(f"v_lshlrev_b32 {v(vRA)}, 4, {v(vT + 3)}")
        A(f"v_add_u32 {v(vRA)}, {L_RED1}, {v(vRA)}")
        A(f"v_lshlrev_b32 {v(vUW)}, 3, v0")
        A(f"v_mov_b32 {v(K)}, 0")
        A(f"v_mov_b32 {v(K + 1)}, 0")
        A(f"v_min_u32 {v(vT + 3)}, 472, {v(vUW)}")
        A(f"v_add_u32 {v(vT + 3)}, {L_U}, {v(vT + 3)}")
        A(f"v_min_u32 {v(vT + 4)}, 56, {v(vUW)}")
        A(f"v_add_u32 {v(vT + 4)}, {L_P}, {v(vT + 4)}")
        A(f"ds_write2st64_b64 {v(vT + 3)}, {v(K, 2)}, {v(K, 2)} offset0:0 offset1:9")
        A(f"ds_write_b64 {v(vT + 4)}, {v(K, 2)}")
        A(f"ds_write_b64 {v(vT + 4)}, {v(K, 2)} offset:{PC}")
        A(f"v_add_u32 {v(vUW)}, {L_U + 480}, {v(vUW)}")

        V = [K + i for i in range(8)]
        A("s_waitcnt vmcnt(3)")
        self.stamp("x")
        for r in range(4):
            A(f"v_dot2_f32_bf16 {v(V[r])}, {v(vX + 2 * r)}, s{sONES}, 0")
        for r in range(4):
            A(f"v_dot2_f32_bf16 {v(V[4 + r])}, {v(vX + 2 * r)}, {v(vX + 2 * r)}, 0")
        for r in range(4):
            A(f"v_dot2_f32_bf16 {v(V[r])}, {v(vX + 2 * r + 1)}, s{sONES}, {v(V[r])}")
        for r in range(4):
            A(f"v_dot2_f32_bf16 {v(V[4 + r])}, {v(vX + 2 * r + 1)}, {v(vX + 2 * r + 1)}, {v(V[4 + r])}")
        self.reduce8(V, K + 8)
        A(f"ds_write_b32 {v(vSW)}, {v(V[0])}")
        A("s_waitcnt lgkmcnt(0)")
        A("s_barrier")
        self.stamp("b1")
        A(f"ds_read_b128 {v(K, 4)}, {v(vRA)}")
        A(f"ds_read_b128 {v(K + 4, 4)}, {v(vRA)} offset:128")
        A(f"s_add_u32 s{sG}, s{sG}, 0x9e3779b9")
        fw = o.get("fw", 1)
        for k in range(4 if fw else 1):
            A(f"v_mov_b32 {v(K + 28 + k)}, s{sG}")
        A(f"s_cmp_eq_u32 s{sWAVE}, 0")
        if fw:
            A(f"s_cselect_b64 exec, {(1 << ((1 << FS) // 16)) - 1}, 0")
            A(f"global_store_dwordx4 {v(vKEY)}, {v(K + 28, 4)}, {sp(sWS)} sc1")
        else:
            A("s_cselect_b64 exec, 1, 0")
            A(f"global_store_dword {v(vKEY)}, {v(K + 28)}, {sp(sWS)} sc1")
        A("s_mov_b64 exec, -1")
        A(f"s_mov_b64 vcc, {sp(sODD)}")
        A("s_waitcnt lgkmcnt(0)")
        vNM, vRI = K + 16, K + 20
        self.row_stats(K, K + 4, K + 10, K + 11, K + 12)
        self.spread(K + 10, vNM, K + 24)
        Dd = K + 32
        for c in range(4):
            for r in range(4):
                A(f"v_dot2_f32_bf16 {v(Dd + 4 * c + r)}, {v(vX + 2 * r + (c >> 1))}, s{sSELHI if c & 1 else sSELLO}, {v(vNM + r)}")
        self.spread(K + 11, vRI, K + 24)
        Pk = K + 48
        for half in range(2):
            ks = range(4 * half, 4 * half + 4)
            for k in ks:
                A(f"v_cvt_pk_bf16_f32 {v(Pk + k)}, {v(Dd + 2 * k)}, {v(Dd + 2 * k + 1)}")
            for k in ks:
                A(f"v_lshlrev_b32 {v(Dd + 2 * k)}, 16, {v(Pk + k)}")
                A(f"v_and_b32 {v(Dd + 2 * k + 1)}, s{sMASK}, {v(Pk + k)}")
            for k in ks:
                A(f"v_pk_mul_f32 {v(Dd + 2 * k, 2)}, {v(Dd + 2 * k, 2)}, {v(vRI + 2 * (k & 1), 2)}")
            for k in ks:
                A(f"v_cvt_pk_bf16_f32 {v(vU + k)}, {v(Dd + 2 * k)}, {v(Dd + 2 * k + 1)}")
            A(f"global_store_dwordx4 {v(vREG)}, {v(vU + 4 * half, 4)}, {sp(sWS)} offset:{-4096 + 4096 * half} sc1")
        self.stamp("x1st")
        fl = [f"global_load_dword {v(vT + 4)}, {v(vFL)}, {sp(sWS)} sc1",
              f"global_load_dword {v(vT + 5)}, {v(vFL + 2)}, {sp(sWS)} sc1"]
        flchk = [f"v_xor_b32 {v(vT + 6)}, s{sG}, {v(vT + 4)}",
                 f"v_xor_b32 {v(vT + 7)}, s{sG}, {v(vT + 5)}",
                 f"v_or_b32 {v(vT + 6)}, {v(vT + 6)}, {v(vT + 7)}",
                 f"v_cmp_ne_u32 vcc, 0, {v(vT + 6)}"]
        flmode = o.get("flmode", 1)
        if flmode == 1:
            A("s_waitcnt vmcnt(0)")
        if flmode < 2:
            for l in fl:
                A(l)
        A("s_barrier")
        if flmode == 2:
            for l in fl:
                A(l)
        A("s_waitcnt vmcnt(0)")
        self.stamp("x1dr")
        self.poll("flag", fl, flchk)
        xl = [f"global_load_dwordx4 {v(vY, 4)}, {v(vAUX)}, {sp(sWS)} sc1",
              f"global_load_dwordx4 {v(vY + 4, 4)}, {v(vAUX + 1)}, {sp(sWS)} sc1"]
        for l in xl:
            A(l)
        self.stamp("flag")
        A(f"s_mul_i32 s{sF}, s{sXCD}, 14")
        A(f"s_add_u32 s{sF}, s{sF}, s{sPOS}")
        A(f"s_bitcmp1_b32 s{sWAVE}, 0")
        A(f"s_cselect_b64 {sp(sWSEL)}, {sp(sWU)}, {sp(sWG)}")
        A(f"s_lshr_b32 s{sTMP + 1}, s{sWAVE}, 1")
        A(f"s_mul_i32 s{sTMP + 1}, s{sTMP + 1}, {256 * 3584}")
        A(f"s_lshl_b32 s{sTMP + 2}, s{sF}, 5")
        A(f"s_add_u32 s{sTMP + 1}, s{sTMP + 1}, s{sTMP + 2}")
        vWA = K + 8
        A(f"v_lshrrev_b32 {v(vWA)}, 1, {v(vLANE)}")
        A(f"v_mul_u32_u24 {v(vWA)}, {8 * 3584}, {v(vWA)}")
        A(f"v_lshl_add_u32 {v(vWA)}, {v(vT + 1)}, 4, {v(vWA)}")
        A(f"v_add_u32 {v(vWA)}, s{sTMP + 1}, {v(vWA)}")
        A(f"v_add_u32 {v(vWA + 2)}, {7 * 3584}, {v(vWA)}")
        A(f"v_add_u32 {v(vWA + 1)}, {4 * 3584}, {v(vWA)}")
        A(f"v_add_u32 {v(vWA)}, 3584, {v(vWA)}")
        A(f"s_lshl_b32 s{sTMP + 1}, s{sF}, 14")
        A(f"s_add_u32 s{sTMP + 1}, s{sTMP + 1}, 4096")
        A(f"v_lshl_add_u32 {v(vWA + 3)}, v0, 2, s{sTMP + 1}")
        A(f"v_add_u32 {v(vWA + 4)}, 8192, {v(vWA + 3)}")
        i2 = o.get("i2", 1)
        if i2:
            A(f"s_lshl_b32 s{sTMP}, s{sWAVE}, 11")
            A(f"s_add_u32 s{sTMP}, s{sTMP}, s{sOWN}")
            A(f"s_add_u32 s{sTMP}, s{sTMP}, {O_X2}")
            A(f"v_lshl_add_u32 {v(vWA + 5)}, {v(vLANE)}, 4, s{sTMP}")
            A(f"v_add_u32 {v(vWA + 6)}, {O_SLOT - 4096}, {v(vREG)}")
            A(f"s_lshl_b32 s{sTMP}, s{sL}, {KS}")
            A(f"s_add_u32 s{sTMP}, s{sTMP}, {W_KEY}")
            A(f"v_lshl_add_u32 {v(vWA + 7)}, {v(vLANE)}, 4, s{sTMP}")
            A(f"s_lshl_b32 s{sTMP}, s{sL}, 2")
            A(f"s_add_u32 s{sTMP}, s{sTMP}, s{sWAVE}")
            A(f"s_lshl_b32 s{sTMP}, s{sTMP}, 7")
            A(f"s_add_u32 s{sTMP}, s{sTMP}, {W_FLAG2}")
            A(f"v_lshl_add_u32 {v(vKEY)}, {v(vLANE)}, 4, s{sTMP}")
            A(f"s_lshr_b32 s{sTMP}, s{sL}, 6")
            A(f"s_lshl_b32 s{sTMP}, s{sTMP}, 7")
            A(f"s_add_u32 s{sTMP}, s{sTMP}, {W_FLAG2}")
            A(f"v_and_b32 {v(vFL)}, 0xfe, v0")
            A(f"v_lshl_add_u32 {v(vFL)}, {v(vFL)}, 9, s{sTMP}")
            for k in range(4):
                A(f"v_mov_b32 {v(K + 32 + k)}, -1")
        A(f"v_dot2_f32_bf16 {v(K + 4)}, {v(vONE)}, s{sONES}, 0")
        for k in range(1, 4):
            A(f"v_dot2_f32_bf16 {v(K + 4)}, {v(vONE + k)}, s{sONES}, {v(K + 4)}")
        A(f"v_mov_b32 {v(K + 5)}, {L_SUMW}")
        A(f"s_mov_b32 s{sRP0}, 0x05040100")
        A(f"s_mov_b32 s{sRP1}, 0x07060302")
        for sh in (8, 4, 2, 1):
            A(f"v_add_f32_dpp {v(K + 4)}, {v(K + 4)}, {v(K + 4)} row_ror:{sh} row_mask:0xf bank_mask:0xf")
        A(f"v_add_f32_dpp {v(K + 4)}, {v(K + 4)}, {v(K + 4)} row_bcast:15 row_mask:0xa bank_mask:0xf")
        A(f"v_add_f32_dpp {v(K + 4)}, {v(K + 4)}, {v(K + 4)} row_bcast:31 row_mask:0xc bank_mask:0xf")
        A("s_mov_b32 exec_lo, 0")
        A("s_brev_b32 exec_hi, 1")
        A(f"ds_write_b32 {v(K + 5)}, {v(K + 4)}")
        A("s_mov_b64 exec, -1")
        A("s_barrier")
        A("s_waitcnt vmcnt(0)")
        chk8 = [f"v_max3_u32 {v(vT + 6)}, {v(vY)}, {v(vY + 1)}, {v(vY + 2)}",
                f"v_max3_u32 {v(vT + 7)}, {v(vY + 3)}, {v(vY + 4)}, {v(vY + 5)}",
                f"v_max3_u32 {v(vT + 6)}, {v(vT + 6)}, {v(vY + 6)}, {v(vY + 7)}",
                f"v_max_u32 {v(vT + 6)}, {v(vT + 6)}, {v(vT + 7)}",
                f"v_cmp_eq_u32 vcc, -1, {v(vT + 6)}"]
        self.poll("x1", xl, chk8)
        self.stamp("x1ld")
        A(f"ds_write2st64_b64 {v(vUW)}, {v(vY, 2)}, {v(vY + 2, 2)} offset0:0 offset1:9")
        A(f"ds_write2st64_b64 {v(vUW)}, {v(vY + 4, 2)}, {v(vY + 6, 2)} offset0:4 offset1:13")
        A("s_waitcnt lgkmcnt(0)")
        A("s_barrier")

        fl2 = [f"global_load_dword {v(vT + 4)}, {v(vFL)}, {sp(sWS)} sc1",
               f"global_load_dword {v(vT + 5)}, {v(vFL)}, {sp(sWS)} offset:512 sc1"]
        wl = [f"global_load_dwordx4 {v(vWG + 4 * k, 4)}, {v(vWA + k // 3)}, {sp(sWSEL)} offset:{(k % 3 - 1) * 3584}" for k in range(8)]
        wl += [f"global_load_dword {v(vWD + k)}, {v(vWA + 3 + (k >> 3))}, {sp(sWD)} offset:{((k & 7) - 4) * 1024}" for k in range(16)]
        flst = ["s_mov_b64 exec, 0xff",
                f"global_store_dwordx4 {v(vKEY)}, {v(K + 28, 4)}, {sp(sWS)} sc1",
                "s_mov_b64 exec, -1"]
        if i2:
            ones = v(K + 32, 4)
            A(f"s_cmp_eq_u32 s{sWAVE}, 0")
            A(f"s_cselect_b64 exec, {(1 << ((1 << KS) // 16)) - 1}, 0")
            A(f"global_store_dwordx4 {v(vWA + 7)}, {ones}, {sp(sWS)} sc1")
            A("s_mov_b64 exec, -1")
            A(f"global_store_dwordx4 {v(vWA + 5)}, {ones}, {sp(sWS)} sc1")
            A(f"global_store_dwordx4 {v(vWA + 5)}, {ones}, {sp(sWS)} offset:1024 sc1")
            A(f"global_store_dwordx4 {v(vWA + 6)}, {ones}, {sp(sWS)} sc1")
        if i2 == 1:
            A("s_waitcnt vmcnt(0)")
            for l in flst:
                A(l)
            self.stamp("init2")
        A(f"s_cmp_lt_u32 s{sPOS}, 14")
        A("s_cbranch_scc0 L_now")
        for k, l in enumerate(wl):
            A(l)
            if i2 == 2 and k == 3:
                A("s_waitcnt vmcnt(4)")
                for l2 in flst:
                    A(l2)
        self.stamp("wq2")
        if i2 == 2:
            A("s_branch L_now2")
        A("L_now:")
        if i2 == 2:
            A("s_waitcnt vmcnt(0)")
            for l in flst:
                A(l)
            A("L_now2:")
        A(f"v_and_b32 {v(vT + 3)}, 0xfe, v0")
        A(f"v_mul_u32_u24 {v(vAUX)}, {RS}, {v(vT + 3)}")
        A(f"v_lshl_add_u32 {v(vAUX)}, {v(vT + 1)}, 4, {v(vAUX)}")
        A(f"s_lshl_b32 s{sTMP}, s{sL}, 5")
        A(f"s_add_u32 s{sTMP}, s{sTMP}, {W_REG + O_X2}")
        A(f"v_add_u32 {v(vAUX)}, s{sTMP}, {v(vAUX)}")
        A(f"v_add_u32 {v(vAUX + 1)}, {RS}, {v(vAUX)}")
        Tt, Xf = K + 40, K + 56
        Df = K + 72
        for k in range(8):
            A(f"v_lshlrev_b32 {v(Tt + 2 * k)}, 16, {v(vU + k)}")
            A(f"v_and_b32 {v(Tt + 2 * k + 1)}, s{sMASK}, {v(vU + k)}")
        A(f"v_lshlrev_b32 {v(Df)}, 16, {v(vD)}")
        A(f"v_and_b32 {v(Df + 1)}, s{sMASK}, {v(vD)}")
        A(f"v_lshlrev_b32 {v(Df + 2)}, 16, {v(vD + 1)}")
        A(f"v_and_b32 {v(Df + 3)}, s{sMASK}, {v(vD + 1)}")
        for k in range(8):
            c = k >> 1
            sel = "op_sel:[1,0] op_sel_hi:[1,1]" if c & 1 else "op_sel_hi:[0,1]"
            A(f"v_pk_mul_f32 {v(Tt + 2 * k, 2)}, {v(Df + (c & 2), 2)}, {v(Tt + 2 * k, 2)} {sel}")
        for k in range(8):
            A(f"v_cvt_pk_bf16_f32 {v(Xf + k)}, {v(Tt + 2 * k)}, {v(Tt + 2 * k + 1)}")
        for k in range(8):
            A(f"v_lshlrev_b32 {v(Tt + 2 * k)}, 16, {v(Xf + k)}")
            A(f"v_and_b32 {v(Tt + 2 * k + 1)}, s{sMASK}, {v(Xf + k)}")
        for r in range(4):
            for c in range(4):
                src = v(vX + 2 * r + (c >> 1))
                if c & 1:
                    A(f"v_and_b32 {v(Xf + 4 * c + r)}, s{sMASK}, {src}")
                else:
                    A(f"v_lshlrev_b32 {v(Xf + 4 * c + r)}, 16, {src}")
        self.stamp("shadow")
        A("s_barrier")
        if i2:
            for l in fl2:
                A(l)
            A("s_waitcnt vmcnt(0)")
            self.poll("flag2", fl2, flchk)
            self.stamp("flag2")
        A("s_barrier")
        self.stamp("b4b")
        for l in xl:
            A(l)
        A("s_waitcnt vmcnt(0)")
        self.poll("x2", xl, chk8)
        self.stamp("x2ld")

        for k in range(8):
            A(f"v_dot2_f32_bf16 {v(Tt + 2 * k)}, {v(vY + k)}, s{sSELLO}, {v(Tt + 2 * k)}")
            A(f"v_dot2_f32_bf16 {v(Tt + 2 * k + 1)}, {v(vY + k)}, s{sSELHI}, {v(Tt + 2 * k + 1)}")
        for k in range(8):
            A(f"v_cvt_pk_bf16_f32 {v(vY + k)}, {v(Tt + 2 * k)}, {v(Tt + 2 * k + 1)}")
        for k in range(8):
            A(f"v_dot2_f32_bf16 {v(Xf + 2 * k)}, {v(vY + k)}, s{sSELLO}, {v(Xf + 2 * k)}")
            A(f"v_dot2_f32_bf16 {v(Xf + 2 * k + 1)}, {v(vY + k)}, s{sSELHI}, {v(Xf + 2 * k + 1)}")
        vH = vX
        for cp in range(2):
            for r in range(4):
                A(f"v_cvt_pk_bf16_f32 {v(vH + 2 * r + cp)}, {v(Xf + 8 * cp + r)}, {v(Xf + 8 * cp + 4 + r)}")
        Rr = [K + 8 + i for i in range(4)]
        for cp in range(2):
            for r in range(4):
                A(f"v_dot2_f32_bf16 {v(V[r])}, {v(vH + 2 * r + cp)}, s{sONES}, {v(V[r]) if cp else 0}")
            for r in range(4):
                A(f"v_dot2_f32_bf16 {v(V[4 + r])}, {v(vH + 2 * r + cp)}, {v(vH + 2 * r + cp)}, {v(V[4 + r]) if cp else 0}")
            for r in range(4):
                A(f"v_dot2_f32_bf16 {v(Rr[r])}, {v(vH + 2 * r + cp)}, {v(vWR + cp)}, {v(Rr[r]) if cp else 0}")
        for i in range(4):
            A(f"v_add_f32_dpp {v(V[i])}, {v(V[i])}, {v(V[i])} row_ror:8 row_mask:0xf bank_mask:0x3")
        for i in range(4):
            A(f"v_add_f32_dpp {v(V[i])}, {v(V[i + 4])}, {v(V[i + 4])} row_ror:8 row_mask:0xf bank_mask:0xc")
        for i in range(2):
            A(f"v_add_f32_dpp {v(Rr[i])}, {v(Rr[i])}, {v(Rr[i])} row_shl:4 row_mask:0xf bank_mask:0x5")
        for i in range(2):
            A(f"v_add_f32_dpp {v(Rr[i])}, {v(Rr[i + 2])}, {v(Rr[i + 2])} row_shr:4 row_mask:0xf bank_mask:0xa")
        for i in range(2):
            A(f"v_add_f32_dpp {v(V[i])}, {v(V[i])}, {v(V[i])} row_shl:4 row_mask:0xf bank_mask:0x5")
        for i in range(2):
            A(f"v_add_f32_dpp {v(V[i])}, {v(V[i + 2])}, {v(V[i + 2])} row_shr:4 row_mask:0xf bank_mask:0xa")
        A(f"v_permlane32_swap_b32 {v(Rr[0])}, {v(Rr[1])}")
        A(f"v_and_b32 {v(K + 13)}, 0xffffff7f, {v(vSW)}")
        A(f"v_permlane32_swap_b32 {v(V[0])}, {v(V[1])}")
        A(f"v_add_f32 {v(Rr[0])}, {v(Rr[0])}, {v(Rr[1])}")
        A(f"v_add_f32 {v(V[0])}, {v(V[0])}, {v(V[1])}")
        A(f"s_mov_b64 vcc, {sp(sODD)}")
        A(f"v_add_f32_dpp {v(Rr[0])}, {v(Rr[0])}, {v(Rr[0])} row_ror:8 row_mask:0xf bank_mask:0xf")
        A(f"v_add_f32_dpp {v(V[0])}, {v(V[0])}, {v(V[0])} quad_perm:[2,3,0,1] row_mask:0xf bank_mask:0xf")
        A(f"v_mov_b32 {v(V[1])}, {v(V[0])}")
        A(f"v_add_f32_dpp {v(Rr[0])}, {v(Rr[0])}, {v(Rr[0])} quad_perm:[2,3,0,1] row_mask:0xf bank_mask:0xf")
        A(f"v_mov_b32 {v(Rr[1])}, {v(Rr[0])}")
        A(f"v_permlane16_swap_b32 {v(V[0])}, {v(V[1])}")
        A(f"v_add_f32 {v(V[0])}, {v(V[0])}, {v(V[1])}")
        A(f"v_permlane16_swap_b32 {v(Rr[0])}, {v(Rr[1])}")
        A(f"v_add_f32 {v(Rr[0])}, {v(Rr[0])}, {v(Rr[1])}")
        A(f"ds_write_b32 {v(vSW)}, {v(V[0])} offset:{L_RED2 - L_RED1}")
        A(f"ds_write_b32 {v(K + 13)}, {v(Rr[0])} offset:{L_RED2 - L_RED1 + 256}")
        A("s_waitcnt lgkmcnt(0)")
        A("s_barrier")
        self.stamp("b5")
        Hf, Dd = Xf, Tt
        self.key_calc(K, vRA, vLANE)
        self.spread(K + 12, vNM, K + 24)
        A(f"v_readfirstlane_b32 s{sBEST}, {v(K + 8)}")
        for r in range(4):
            for cp in range(2):
                A(f"v_lshlrev_b32 {v(Hf + 4 * r + 2 * cp)}, 16, {v(vH + 2 * r + cp)}")
                A(f"v_and_b32 {v(Hf + 4 * r + 2 * cp + 1)}, s{sMASK}, {v(vH + 2 * r + cp)}")
        self.spread(K + 13, vRI, K + 24)
        for k in range(8):
            r = k >> 1
            sel = "op_sel:[1,0] op_sel_hi:[1,1]" if r & 1 else "op_sel_hi:[0,1]"
            A(f"v_pk_add_f32 {v(Dd + 2 * k, 2)}, {v(vNM + (r & 2), 2)}, {v(Hf + 2 * k, 2)} {sel}")
        vX2 = vU
        for k in range(8):
            A(f"v_cvt_pk_bf16_f32 {v(vX2 + k)}, {v(Dd + 2 * k)}, {v(Dd + 2 * k + 1)}")
        for k in range(8):
            A(f"v_lshlrev_b32 {v(Dd + 2 * k)}, 16, {v(vX2 + k)}")
            A(f"v_and_b32 {v(Dd + 2 * k + 1)}, s{sMASK}, {v(vX2 + k)}")
        for k in range(8):
            r = k >> 1
            sel = "op_sel:[1,0] op_sel_hi:[1,1]" if r & 1 else "op_sel_hi:[0,1]"
            A(f"v_pk_mul_f32 {v(Dd + 2 * k, 2)}, {v(vRI + (r & 2), 2)}, {v(Dd + 2 * k, 2)} {sel}")
        for k in range(8):
            A(f"v_cvt_pk_bf16_f32 {v(vX2 + k)}, {v(Dd + 2 * k)}, {v(Dd + 2 * k + 1)}")
        A(f"s_andn2_b32 s{sTMP}, 7, s{sBEST}")
        A(f"s_and_b32 s{sTMP + 1}, s{sTMP}, 3")
        A(f"s_lshl_b32 s{sTMP + 2}, s{sTMP + 1}, 1")
        A(f"s_not_b64 {sp(sE)}, {sp(sODD)}")
        A(f"s_cmp_ge_u32 s{sTMP}, 4")
        A(f"s_cselect_b64 {sp(sE)}, {sp(sODD)}, {sp(sE)}")
        vC = K + 24
        A(f"s_set_gpr_idx_on s{sTMP + 2}, gpr_idx(SRC0)")
        A(f"v_mov_b32 {v(vC)}, {v(vX2)}")
        A(f"v_mov_b32 {v(vC + 1)}, {v(vX2 + 1)}")
        A(f"v_mov_b32 {v(vC + 2)}, {v(vH)}")
        A(f"v_mov_b32 {v(vC + 3)}, {v(vH + 1)}")
        A("s_set_gpr_idx_off")
        A(f"s_add_u32 s{sTMP + 3}, s{sOWN}, {O_SLOT}")
        A(f"v_add_u32 {v(vT)}, s{sTMP + 3}, {v(vT + 2)}")
        A(f"s_mov_b64 exec, {sp(sE)}")
        A(f"global_store_dwordx2 {v(vT)}, {v(vC, 2)}, {sp(sWS)} sc1")
        A(f"global_store_dwordx2 {v(vT)}, {v(vC + 2, 2)}, {sp(sWS)} offset:1024 sc1")
        A("s_mov_b64 exec, -1")
        self.stamp("slot")
        for k in range(8):
            A(f"v_dot2_f32_bf16 {v(Hf + 2 * k)}, {v(vX2 + k)}, s{sSELLO}, {v(Hf + 2 * k)}")
            A(f"v_dot2_f32_bf16 {v(Hf + 2 * k + 1)}, {v(vX2 + k)}, s{sSELHI}, {v(Hf + 2 * k + 1)}")
        vO = vD - 8 if o.get('olate', 1) else vY
        A(f"v_mov_b32 {v(vT + 4)}, {L_REDK}")
        for k in range(8):
            A(f"v_cvt_pk_bf16_f32 {v(vO + k)}, {v(Hf + 2 * k)}, {v(Hf + 2 * k + 1)}")
        osc = " sc1" if o.get("outsc", 1) == 1 else (" nt" if o.get("outsc", 1) == 2 else "")
        olate = o.get("olate", 1)
        if not olate:
            for r in range(4):
                A(f"s_cmp_eq_u32 s{sTMP + 1}, {r}")
                A(f"s_cselect_b64 vcc, {sp(sE)}, 0")
                A("s_not_b64 exec, vcc")
                A(f"global_store_dwordx2 {v(vRD)}, {v(vO + 2 * r, 2)}, {sp(sOUT)} offset:{1024 * r}{osc}")
            A("s_mov_b64 exec, -1")
            A(f"s_set_gpr_idx_on s{sTMP + 2}, gpr_idx(SRC0)")
            A(f"v_mov_b32 {v(vC + 4)}, {v(vO)}")
            A(f"v_mov_b32 {v(vC + 5)}, {v(vO + 1)}")
            A("s_set_gpr_idx_off")
            A(f"s_lshl_b32 s{sTMP + 1}, s{sTMP + 1}, 10")
            A(f"v_add_u32 {v(vRD)}, s{sTMP + 1}, {v(vRD)}")
        else:
            A(f"s_mov_b32 s{sCAND}, s{sTMP + 1}")
        A(f"s_lshr_b32 s{sTMP}, s{sWAVE}, 1")
        A(f"s_lshl_b32 s{sTMP}, s{sTMP}, 9")
        A(f"s_add_u32 s{sTMP}, s{sTMP}, {W_REG + O_SLOT}")
        A(f"v_lshrrev_b32 {v(vT)}, 1, {v(vLANE)}")
        A(f"v_lshl_add_u32 {v(vT)}, {v(vT)}, 4, s{sTMP}")
        A(f"v_lshlrev_b32 {v(vT + 1)}, 6, {v(vT + 1)}")
        A(f"v_and_b32 {v(vT + 2)}, 12, {v(vLANE)}")
        A(f"v_lshl_add_u32 {v(vT + 1)}, {v(vT + 2)}, 2, {v(vT + 1)}")
        A(f"v_lshrrev_b32 {v(vT + 2)}, 5, {v(vLANE)}")
        A(f"v_lshl_add_u32 {v(vT + 1)}, {v(vT + 2)}, 3, {v(vT + 1)}")
        A(f"s_and_b32 s{sTMP}, s{sWAVE}, 1")
        A(f"s_lshl_b32 s{sTMP}, s{sTMP}, 7")
        A(f"s_lshr_b32 s{sTMP + 1}, s{sWAVE}, 1")
        A(f"s_lshl_b32 s{sTMP + 1}, s{sTMP + 1}, 2")
        A(f"s_add_u32 s{sTMP}, s{sTMP}, s{sTMP + 1}")
        A(f"s_add_u32 s{sTMP}, s{sTMP}, {L_REDF}")
        A(f"v_add_u32 {v(vT + 1)}, s{sTMP}, {v(vT + 1)}")
        A(f"v_and_b32 {v(vT + 2)}, 15, {v(vLANE)}")
        A(f"v_lshlrev_b32 {v(vT + 2)}, 3, {v(vT + 2)}")
        A(f"v_add_u32 {v(vT + 2)}, {L_REDF}, {v(vT + 2)}")
        A(f"s_add_u32 s{sTMP}, s{sOWN}, {O_PART}")
        A(f"v_lshl_add_u32 {v(vT + 3)}, v0, 3, s{sTMP}")
        WGp = K + 80
        for kp in range(4):
            for d in range(4):
                lo, hi = vWG + 8 * kp + d, vWG + 8 * kp + 4 + d
                A(f"v_perm_b32 {v(WGp + 8 * kp + 2 * d)}, {v(hi)}, {v(lo)}, s{sRP0}")
                A(f"v_perm_b32 {v(WGp + 8 * kp + 2 * d + 1)}, {v(hi)}, {v(lo)}, s{sRP1}")
        WDp = vWG
        for kp in range(8):
            lo, hi = vWD + 2 * kp, vWD + 2 * kp + 1
            A(f"v_perm_b32 {v(WDp + 2 * kp)}, {v(hi)}, {v(lo)}, s{sRP0}")
            A(f"v_perm_b32 {v(WDp + 2 * kp + 1)}, {v(hi)}, {v(lo)}, s{sRP1}")
        self.stamp("outst")
        A("s_barrier")
        A(f"ds_read_b32 {v(K)}, {v(vT + 4)}")
        A("s_waitcnt lgkmcnt(0)")
        A(f"v_readfirstlane_b32 s{sWIN}, {v(K)}")
        A(f"s_andn2_b32 s{sT0}, 2047, s{sWIN}")
        A(f"s_lshr_b32 s{sT1}, s{sT0}, 3")
        A(f"s_mul_i32 s{sT1}, s{sT1}, {RS}")
        A(f"s_cmp_lt_u32 s{sPOS}, 14")
        A("s_cbranch_scc0 L_noffn")
        A(f"v_add_u32 {v(vT)}, s{sT1}, {v(vT)}")
        sl = [f"global_load_dwordx4 {v(K, 4)}, {v(vT)}, {sp(sWS)} sc1"]
        A(sl[0])
        self.stamp("win")
        A("s_waitcnt vmcnt(0)")
        self.poll("sel", sl, [f"v_max3_u32 {v(vT + 6)}, {v(K)}, {v(K + 1)}, {v(K + 2)}",
                              f"v_max_u32 {v(vT + 6)}, {v(vT + 6)}, {v(K + 3)}",
                              f"v_cmp_eq_u32 vcc, -1, {v(vT + 6)}"])
        self.stamp("sel")
        V2 = [K + 8 + i for i in range(8)]
        for kp in range(4):
            for c in range(8):
                A(f"v_dot2_f32_bf16 {v(V2[c])}, {v(K + kp)}, {v(WGp + 8 * kp + c)}, {v(V2[c]) if kp else 0}")
        self.reduce8(V2, K + 16)
        A(f"ds_write_b32 {v(vT + 1)}, {v(V2[0])}")
        A("s_waitcnt lgkmcnt(0)")
        A("s_barrier")
        A(f"ds_read_b64 {v(K, 2)}, {v(vT + 2)}")
        A(f"ds_read_b64 {v(K + 2, 2)}, {v(vT + 2)} offset:128")
        A("s_waitcnt lgkmcnt(0)")
        A(f"v_add_f32 {v(K)}, {v(K)}, {v(K + 1)}")
        A(f"v_add_f32 {v(K + 2)}, {v(K + 2)}, {v(K + 3)}")
        A(f"v_cvt_pk_bf16_f32 {v(K + 1)}, {v(K)}, {v(K + 2)}")
        A(f"v_lshlrev_b32 {v(K)}, 16, {v(K + 1)}")
        A(f"v_mul_f32 {v(K + 3)}, {hex(f2u(-L2E))}, {v(K)}")
        A(f"v_exp_f32 {v(K + 3)}, {v(K + 3)}")
        A(f"v_and_b32 {v(K + 2)}, s{sMASK}, {v(K + 1)}")
        A(f"v_add_f32 {v(K + 3)}, 1.0, {v(K + 3)}")
        A(f"v_rcp_f32 {v(K + 3)}, {v(K + 3)}")
        A(f"v_mul_f32 {v(K)}, {v(K)}, {v(K + 3)}")
        A(f"v_cvt_pk_bf16_f32 {v(K)}, {v(K)}, {v(K)}")
        A(f"v_and_b32 {v(K)}, s{sMASK}, {v(K)}")
        A(f"v_mul_f32 {v(K)}, {v(K)}, {v(K + 2)}")
        A(f"v_mov_b32_dpp {v(K + 1)}, {v(K)} quad_perm:[1,1,3,3] row_mask:0xf bank_mask:0xf")
        A(f"v_cvt_pk_bf16_f32 {v(K)}, {v(K)}, {v(K + 1)}")
        for kp in range(8):
            A(f"v_readlane_b32 s{sH + kp}, {v(K)}, {2 * kp}")
        for kp in range(8):
            for c in range(2):
                A(f"v_dot2_f32_bf16 {v(K + 4 + c)}, s{sH + kp}, {v(WDp + 2 * kp + c)}, {v(K + 4 + c) if kp else 0}")
        A(f"global_store_dwordx2 {v(vT + 3)}, {v(K + 4, 2)}, {sp(sWS)} sc1")
        self.stamp("part")
        if olate:
            held = [f"s_cmp_eq_u32 s{sWIN}, s{sBEST}",
                    f"s_cselect_b32 s{sCAND}, s{sCAND}, 8"]
            for r in range(4):
                held += [f"s_cmp_eq_u32 s{sCAND}, {r}",
                         f"s_cselect_b64 vcc, {sp(sE)}, 0",
                         "s_not_b64 exec, vcc",
                         f"global_store_dwordx2 {v(vRD)}, {v(vO + 2 * r, 2)}, {sp(sOUT)} offset:{1024 * r}{osc}"]
        else:
            held = [f"s_cmp_eq_u32 s{sWIN}, s{sBEST}",
                    f"s_cselect_b64 exec, 0, {sp(sE)}",
                    f"global_store_dwordx2 {v(vRD)}, {v(vC + 4, 2)}, {sp(sOUT)}{osc}"]
        held += ["s_mov_b64 exec, -1"]
        gen_st = [f"s_lshl_b32 s{sTMP}, s{sL}, 2",
                  f"s_add_u32 s{sTMP}, s{sTMP}, s{sWAVE}",
                  f"s_cmp_eq_u32 s{sTMP}, 3",
                  "s_cselect_b64 exec, 1, 0",
                  f"v_mov_b32 {v(vT + 4)}, s{sG}",
                  f"v_mov_b32 {v(vT + 5)}, 0",
                  f"global_store_dword {v(vT + 5)}, {v(vT + 4)}, {sp(sWS)} sc1"]
        T = self.tail
        T("L_noffn:")
        for l in held + gen_st:
            T(l)
        T("s_branch L_fin")
        A(f"s_cmp_lt_u32 s{sPOS}, 8")
        A("s_cbranch_scc0 L_noffn")
        A(f"s_cmp_lt_u32 s{sWAVE}, 2")
        A("s_cbranch_scc0 L_noffn")
        if not olate:
            for l in held:
                A(l)
        A(f"s_lshl_b32 s{sTMP}, s{sXCD}, 3")
        A(f"s_add_u32 s{sTMP}, s{sTMP}, s{sPOS}")
        A(f"s_lshl_b32 s{sTMP}, s{sTMP}, 1")
        A(f"s_add_u32 s{sTMP}, s{sTMP}, s{sWAVE}")
        A(f"v_lshrrev_b32 {v(vT)}, 5, {v(vLANE)}")
        A(f"v_bfe_u32 {v(vT + 1)}, {v(vLANE)}, 4, 1")
        A(f"v_lshl_add_u32 {v(vT)}, {v(vT + 1)}, 1, {v(vT)}")
        A(f"s_lshl_b32 s{sTMP + 1}, s{sTMP}, 3")
        A(f"v_lshl_add_u32 {v(vT)}, {v(vT)}, 1, s{sTMP + 1}")
        A(f"s_add_u32 s{sT1}, s{sT1}, {W_REG + O_SLOT}")
        A(f"v_add_u32 {v(vT + 1)}, s{sT1}, {v(vT)}")
        xh = [f"global_load_ushort {v(K + 20)}, {v(vT + 1)}, {sp(sWS)} sc1",
              f"global_load_ushort {v(K + 21)}, {v(vT + 1)}, {sp(sWS)} offset:1024 sc1"]
        for l in xh:
            A(l)
        A(f"s_lshl_b32 s{sTMP + 1}, s{sT0}, 10")
        A(f"v_add_u32 {v(vT)}, s{sTMP + 1}, {v(vT)}")
        A(f"v_min_u32 {v(vT + 2)}, 55, {v(vLANE)}")
        A(f"v_mul_u32_u24 {v(vT + 3)}, 4682, {v(vT + 2)}")
        A(f"v_lshrrev_b32 {v(vT + 3)}, 16, {v(vT + 3)}")
        A(f"v_mad_u32_u24 {v(vT + 2)}, {v(vT + 3)}, 18, {v(vT + 2)}")
        A(f"v_mul_u32_u24 {v(vT + 2)}, {RS}, {v(vT + 2)}")
        A(f"s_lshl_b32 s{sTMP + 1}, s{sTMP}, 4")
        A(f"s_add_u32 s{sTMP + 1}, s{sTMP + 1}, {W_REG + O_PART}")
        A(f"v_add_u32 {v(vT + 2)}, s{sTMP + 1}, {v(vT + 2)}")
        A(f"v_add_u32 {v(vT + 3)}, {128 * RS}, {v(vT + 2)}")
        A(f"s_ashr_i32 s{sTMP + 2}, s{sWIN}, 31")
        A(f"s_not_b32 s{sTMP + 2}, s{sTMP + 2}")
        A(f"s_or_b32 s{sTMP + 2}, s{sTMP + 2}, 0x80000000")
        A(f"s_xor_b32 s{sTMP + 2}, s{sTMP + 2}, s{sWIN}")
        A(f"s_and_b32 s{sTMP + 2}, s{sTMP + 2}, 0xfffff800")
        A(f"s_or_b32 s{sTMP + 2}, s{sTMP + 2}, 0x400")
        A(f"v_cvt_pk_bf16_f32 {v(K + 22)}, s{sTMP + 2}, s{sTMP + 2}")
        A(f"v_and_b32 {v(K + 22)}, s{sMASK}, {v(K + 22)}")
        A(f"v_mul_f32 {v(K + 22)}, {hex(f2u(-L2E))}, {v(K + 22)}")
        A(f"v_exp_f32 {v(K + 22)}, {v(K + 22)}")
        A(f"v_add_f32 {v(K + 22)}, 1.0, {v(K + 22)}")
        A(f"v_rcp_f32 {v(K + 22)}, {v(K + 22)}")
        A(f"v_cvt_pk_bf16_f32 {v(K + 22)}, {v(K + 22)}, {v(K + 22)}")
        A(f"v_and_b32 {v(K + 22)}, s{sMASK}, {v(K + 22)}")
        A("s_waitcnt vmcnt(0)")
        self.stamp("partdr")
        pl = [f"global_load_dwordx4 {v(vY, 4)}, {v(vT + 2)}, {sp(sWS)} sc1",
              f"global_load_dwordx4 {v(vY + 4, 4)}, {v(vT + 3)}, {sp(sWS)} sc1"]
        for l in pl:
            A(l)
        if olate:
            for l in held:
                A(l)
        self.poll("xh", xh, [f"v_max_u32 {v(vT + 6)}, {v(K + 20)}, {v(K + 21)}",
                             f"v_cmp_eq_u32 vcc, 0xffff, {v(vT + 6)}"])
        A(f"v_lshlrev_b32 {v(K + 20)}, 16, {v(K + 20)}")
        A(f"v_lshlrev_b32 {v(K + 21)}, 16, {v(K + 21)}")
        A(f"s_waitcnt vmcnt({4 if olate else 0})")
        self.poll("part", pl, chk8)
        self.stamp("partld")
        A(f"v_cmp_gt_u32 vcc, 56, {v(vLANE)}")
        A(f"v_pk_add_f32 {v(vY, 2)}, {v(vY, 2)}, {v(vY + 4, 2)}")
        A(f"v_pk_add_f32 {v(vY + 2, 2)}, {v(vY + 2, 2)}, {v(vY + 6, 2)}")
        for c in range(4):
            A(f"v_cndmask_b32 {v(vY + c)}, 0, {v(vY + c)}, vcc")
        A(f"v_permlane32_swap_b32 {v(vY)}, {v(vY + 1)}")
        A(f"v_permlane32_swap_b32 {v(vY + 2)}, {v(vY + 3)}")
        A(f"v_add_f32 {v(vY)}, {v(vY)}, {v(vY + 1)}")
        A(f"v_add_f32 {v(vY + 2)}, {v(vY + 2)}, {v(vY + 3)}")
        A(f"v_permlane16_swap_b32 {v(vY)}, {v(vY + 2)}")
        A(f"v_add_f32 {v(vY)}, {v(vY)}, {v(vY + 2)}")
        for sh in (8, 4, 2, 1):
            A(f"v_add_f32_dpp {v(vY)}, {v(vY)}, {v(vY)} row_ror:{sh} row_mask:0xf bank_mask:0xf")
        y = vY
        A(f"v_cvt_pk_bf16_f32 {v(y)}, {v(y)}, {v(y)}")
        A(f"v_and_b32 {v(y)}, s{sMASK}, {v(y)}")
        A(f"v_mul_f32 {v(y)}, {v(y)}, {v(K + 22)}")
        A(f"v_cvt_pk_bf16_f32 {v(y)}, {v(y)}, {v(y)}")
        A(f"v_and_b32 {v(y)}, s{sMASK}, {v(y)}")
        A(f"v_add_f32 {v(y)}, {v(y)}, {v(K + 20)}")
        A(f"v_cvt_pk_bf16_f32 {v(y)}, {v(y)}, {v(y)}")
        A(f"v_and_b32 {v(y)}, s{sMASK}, {v(y)}")
        A(f"v_add_f32 {v(y)}, {v(y)}, {v(K + 21)}")
        A(f"v_cvt_pk_bf16_f32 {v(y)}, {v(y)}, {v(y)}")
        A("s_mov_b32 exec_lo, 0x00010001")
        A("s_mov_b32 exec_hi, 0x00010001")
        A(f"global_store_short {v(vT)}, {v(y)}, {sp(sOUT)}")
        A("L_fin:")
        self.finish("R")

    def chans(self):
        A = self.A
        o = self.o
        vLANE = 1
        vAA, vBA, vEW, vER, vRA = 4, 12, 13, 14, 15
        vKA0, vKA1, vKB, vPW0, vPW1 = 16, 17, 18, 19, 20
        vP = 24
        vT = 28
        vACC = 40
        vA0, vA1, vB0, vB1 = 72, 104, 136, 168
        K = 72
        A("L_chan:")
        A("v_and_b32 v0, 0xff, v0")
        A(f"s_sub_u32 s{sWAVE}, s{sWAVE}, 4")
        A(f"s_lshl_b32 s{sT0}, s{sL}, 9")
        A(f"v_lshl_add_u32 {v(vT)}, v0, 1, s{sT0}")
        A(f"s_lshl_b32 s{sT1}, s{sL}, 2")
        A("s_waitcnt lgkmcnt(0)")
        self.stamp("karg")
        for k, s in enumerate((sLA, sAI, sCR, sCI)):
            A(f"global_load_ushort {v(vP + k)}, {v(vT)}, {sp(s)}{' nt' if o.get('ntx', 1) else ''}")
        A(f"s_load_dword s{sDT}, {sp(sLDT)}, s{sT1}")
        ntlb = 0
        if o.get("tlb", 0):
            A("v_mov_b32 v2, 0")
            A("s_mov_b64 exec, 1")
            for sb in (sWG, sWU, sWD, sOUT):
                A(f"global_load_dword v3, v2, {sp(sb)}")
                ntlb += 1
            A("s_mov_b64 exec, -1")
        vJ, vGq = vT + 4, vT + 5
        A(f"v_and_b32 {v(vJ)}, 15, {v(vLANE)}")
        A(f"v_lshrrev_b32 {v(vGq)}, 4, {v(vLANE)}")
        A(f"s_lshr_b32 s{sT0}, s{sWAVE}, 1")
        A(f"s_and_b32 s{sT1}, s{sWAVE}, 1")
        A(f"v_and_b32 {v(vT)}, 7, {v(vLANE)}")
        A(f"v_lshlrev_b32 {v(vRA)}, 4, {v(vT)}")
        A(f"v_add_u32 {v(vRA)}, {L_RED1}, {v(vRA)}")
        A(f"s_mul_i32 s{sTMP}, s{sT0}, {PC}")
        A(f"s_lshl_b32 s{sTMP + 1}, s{sT1}, 7")
        A(f"s_add_u32 s{sTMP}, s{sTMP}, s{sTMP + 1}")
        A(f"s_add_u32 s{sTMP}, s{sTMP}, {L_P + 4 * 26}")
        A(f"v_lshlrev_b32 {v(vT)}, 3, {v(vGq)}")
        A(f"v_sub_u32 {v(vT)}, {v(vJ)}, {v(vT)}")
        A(f"v_lshl_add_u32 {v(vAA)}, {v(vT)}, 2, s{sTMP}")
        for m in range(1, 8):
            A(f"v_add_u32 {v(vAA + m)}, {1024 * m}, {v(vAA)}")
        A(f"s_mul_i32 s{sTMP}, s{sT0}, {UC}")
        A(f"s_lshl_b32 s{sTMP + 1}, s{sT1}, 6")
        A(f"s_sub_u32 s{sTMP}, s{sTMP}, s{sTMP + 1}")
        A(f"s_add_u32 s{sTMP}, s{sTMP}, {L_U + 64}")
        A(f"v_lshl_add_u32 {v(vT)}, {v(vJ)}, 1, {v(vGq)}")
        A(f"v_lshl_add_u32 {v(vBA)}, {v(vT)}, 4, s{sTMP}")
        A(f"v_lshl_add_u32 {v(vT)}, {v(vJ)}, 2, {v(vGq)}")
        A(f"v_lshrrev_b32 {v(vT + 1)}, 3, {v(vT)}")
        A(f"v_add_u32 {v(vT)}, {v(vT)}, {v(vT + 1)}")
        A(f"s_mul_i32 s{sTMP}, s{sWAVE}, {8 * TBS}")
        A(f"v_lshl_add_u32 {v(vEW)}, {v(vT)}, 4, s{sTMP}")
        A(f"v_lshrrev_b32 {v(vT + 1)}, 3, {v(vLANE)}")
        A(f"v_add_u32 {v(vT)}, {v(vLANE)}, {v(vT + 1)}")
        A(f"s_mul_i32 s{sTMP}, s{sWAVE}, {2 * TBS}")
        A(f"v_lshl_add_u32 {v(vER)}, {v(vT)}, 4, s{sTMP}")
        KS = o.get("ks", 5)
        for k in range(4):
            A(f"v_mov_b32 {v(vACC + k)}, -1")
        A(f"s_mul_i32 s{sTMP}, s{sL}, {RS}")
        A(f"s_add_u32 s{sTMP}, s{sTMP}, {W_REG + 4096}")
        A(f"v_lshl_add_u32 {v(vACC + 4)}, v0, 4, s{sTMP}")
        A(f"v_add_u32 {v(vACC + 5)}, 8192, {v(vACC + 4)}")
        A(f"v_add_u32 {v(vACC + 6)}, 12288, {v(vACC + 4)}")
        A(f"s_lshl_b32 s{sTMP}, s{sL}, {KS}")
        A(f"s_add_u32 s{sTMP}, s{sTMP}, {W_KEY}")
        A(f"v_lshl_add_u32 {v(22)}, {v(vLANE)}, 4, s{sTMP}")
        ones = v(vACC, 4)
        i2 = o.get("i2", 1)
        inits = [f"global_store_dwordx4 {v(vACC + 4)}, {ones}, {sp(sWS)} offset:-4096 sc1",
                 f"global_store_dwordx4 {v(vACC + 4)}, {ones}, {sp(sWS)} sc1"]
        if i2 == 0:
            inits = [f"s_cmp_eq_u32 s{sWAVE}, 0",
                     f"s_cselect_b64 exec, {(1 << ((1 << KS) // 16)) - 1}, 0",
                     f"global_store_dwordx4 {v(22)}, {ones}, {sp(sWS)} sc1",
                     "s_mov_b64 exec, -1"] + inits + [
                     f"global_store_dwordx4 {v(vACC + 5)}, {ones}, {sp(sWS)} offset:-4096 sc1",
                     f"global_store_dwordx4 {v(vACC + 5)}, {ones}, {sp(sWS)} sc1",
                     f"global_store_dwordx4 {v(vACC + 6)}, {ones}, {sp(sWS)} sc1"]
        ninit = 5 if i2 == 0 else 2
        ilate = o.get("ilate", 0)
        if not ilate:
            for l in inits:
                A(l)
        vg, vr = vT, vT + 1
        A(f"v_lshrrev_b32 {v(vg)}, 2, {v(vJ)}")
        A(f"v_and_b32 {v(vr)}, 3, {v(vJ)}")
        A(f"s_cmp_eq_u32 s{sT1}, 0")
        A("s_cbranch_scc0 L_rows_hi")
        A(f"v_mov_b32 {v(vKA0)}, {v(vJ)}")
        A(f"v_lshl_add_u32 {v(vKA1)}, {v(vg)}, 1, {v(vr)}")
        A(f"v_add_u32 {v(vKA1)}, 16, {v(vKA1)}")
        A(f"v_add_u32 {v(vT + 2)}, -4, {v(vJ)}")
        A(f"v_and_b32 {v(vT + 2)}, 15, {v(vT + 2)}")
        A(f"v_cmp_eq_u32 vcc, 3, {v(vr)}")
        A(f"v_cndmask_b32 {v(vKA1)}, {v(vKA1)}, {v(vT + 2)}, vcc")
        A(f"v_lshl_add_u32 {v(vPW0)}, {v(vJ)}, 2, {v(vGq)}")
        A(f"v_lshlrev_b32 {v(vPW0)}, 4, {v(vPW0)}")
        A(f"v_add_u32 {v(vPW1)}, 1024, {v(vPW0)}")
        A("s_branch L_rows_done")
        A("L_rows_hi:")
        A(f"v_lshrrev_b32 {v(vT + 2)}, 1, {v(vg)}")
        A(f"v_lshl_add_u32 {v(vKA0)}, {v(vg)}, 1, {v(vr)}")
        A(f"v_add3_u32 {v(vKA0)}, {v(vKA0)}, {v(vT + 2)}, 25")
        A(f"v_sub_u32 {v(vKA1)}, {v(vJ)}, {v(vg)}")
        A(f"v_add_u32 {v(vKA1)}, 35, {v(vKA1)}")
        A(f"v_lshrrev_b32 {v(vT + 2)}, 1, {v(vGq)}")
        A(f"v_lshl_add_u32 {v(vPW0)}, {v(vT + 2)}, 4, {v(vJ)}")
        A(f"v_and_b32 {v(vT + 2)}, 1, {v(vGq)}")
        A(f"v_lshl_add_u32 {v(vPW0)}, {v(vPW0)}, 1, {v(vT + 2)}")
        A(f"v_lshlrev_b32 {v(vPW0)}, 5, {v(vPW0)}")
        A(f"v_add_u32 {v(vPW0)}, 2048, {v(vPW0)}")
        A(f"v_lshlrev_b32 {v(vPW1)}, 6, {v(vLANE)}")
        A(f"v_add_u32 {v(vPW1)}, 4096, {v(vPW1)}")
        A("L_rows_done:")
        A(f"s_mul_i32 s{sTMP}, s{sT0}, {PC}")
        A(f"s_add_u32 s{sTMP}, s{sTMP}, {L_P + 64}")
        A(f"v_add_u32 {v(vPW0)}, s{sTMP}, {v(vPW0)}")
        A(f"v_add_u32 {v(vPW1)}, s{sTMP}, {v(vPW1)}")
        A(f"s_mul_i32 s{sTMP}, s{sT0}, {TABC}")
        A(f"v_lshl_add_u32 {v(vT + 2)}, {v(vGq)}, 4, s{sTMP}")
        A(f"s_movk_i32 s{sTMP + 1}, {ROWB}")
        A(f"v_mad_u32_u24 {v(vKA0)}, {v(vKA0)}, s{sTMP + 1}, {v(vT + 2)}")
        A(f"v_mad_u32_u24 {v(vKA1)}, {v(vKA1)}, s{sTMP + 1}, {v(vT + 2)}")
        A(f"v_mad_u32_u24 {v(vKB)}, {v(vJ)}, s{sTMP + 1}, {v(vT + 2)}")
        A(f"s_lshl_b32 s{sTMP + 1}, s{sT1}, 8")
        A(f"s_add_u32 m0, s{sTMP}, s{sTMP + 1}")
        A(f"s_mul_i32 s{sTMP}, s{sXCD}, 448")
        A(f"s_and_b32 s{sTMP}, s{sTMP}, 0xffffff80")
        A(f"s_mul_i32 s{sTMP + 1}, s{sPOS}, {16 * 3584}")
        A(f"s_add_u32 s{sTMP}, s{sTMP}, s{sTMP + 1}")
        A(f"v_lshrrev_b32 {v(vT + 2)}, 2, {v(vLANE)}")
        A(f"v_mul_u32_u24 {v(vT + 2)}, 3584, {v(vT + 2)}")
        A(f"v_and_b32 {v(vT + 3)}, 3, {v(vLANE)}")
        A(f"v_lshl_add_u32 {v(vT + 2)}, {v(vT + 3)}, 7, {v(vT + 2)}")
        A(f"v_add_u32 {v(vT + 2)}, s{sTMP}, {v(vT + 2)}")
        A(f"s_mul_i32 s{sTMP}, s{sL}, 7168")
        A(f"s_mul_i32 s{sTMP + 1}, s{sT1}, 3584")
        A(f"s_add_u32 s{sTMP}, s{sTMP}, s{sTMP + 1}")
        A(f"v_min_u32 {v(vT + 3)}, 27, {v(vLANE)}")
        A(f"v_lshl_add_u32 {v(vT + 3)}, {v(vT + 3)}, 7, s{sTMP}")
        A(f"s_cmp_eq_u32 s{sT1}, 0")
        A(f"s_cselect_b64 {sp(sWSEL)}, {sp(sWG)}, {sp(sWU)}")
        A(f"s_cmp_eq_u32 s{sT0}, 0")
        A(f"s_cselect_b64 {sp(sWSEL)}, {sp(sWSEL)}, {sp(sWD)}")
        A("s_cselect_b64 vcc, -1, 0")
        A(f"v_cndmask_b32 {v(21)}, {v(vT + 3)}, {v(vT + 2)}, vcc")
        wpf = f"global_load_dword v3, v21, {sp(sWSEL)}{' nt' if o.get('ntw', 0) else ''}"
        if o.get("wpf", 2) == 2:
            A(wpf)

        L2E = 1.4426950408889634
        l2e_hi = struct.unpack("<f", struct.pack("<f", L2E))[0]
        l2e_lo = L2E - l2e_hi
        a, b = K, K + 2
        A(f"s_mov_b32 s{sE}, {hex(f2u(l2e_hi))}")
        A(f"s_mov_b32 s{sE + 1}, {hex(f2u(l2e_lo))}")
        A(f"s_waitcnt vmcnt({(1 if o.get('wpf', 2) == 2 else 0) + (0 if ilate else ninit) + ntlb}) lgkmcnt(0)")
        self.stamp("par")
        if ilate:
            for l in inits:
                A(l)
        if o.get("wpf", 2) == 6:
            A(wpf)
        A(f"s_lshl_b32 s{sTMP}, s{sDT}, 16")
        A(f"s_and_b32 s{sTMP + 1}, s{sDT}, s{sMASK}")
        A(f"s_cmp_lt_u32 s{sWAVE}, 2")
        A(f"s_cselect_b32 s{sDT}, s{sTMP}, s{sTMP + 1}")
        A(f"v_lshlrev_b32 {v(a)}, 16, {v(vP)}")
        A(f"v_mov_b32 {v(a + 1)}, s{sDT}")
        A(f"v_pk_mul_f32 {v(b, 2)}, {v(a, 2)}, {sp(sE)} op_sel_hi:[1,0]")
        A(f"v_pk_fma_f32 {v(b + 2, 2)}, {v(a, 2)}, {sp(sE)}, {v(b, 2)} op_sel_hi:[1,0,1] neg_lo:[0,0,1] neg_hi:[0,0,1]")
        A(f"v_exp_f32 {v(b)}, {v(b)}")
        A(f"v_exp_f32 {v(b + 1)}, {v(b + 1)}")
        A(f"v_pk_fma_f32 {v(b + 2, 2)}, {sp(sE)}, {v(a, 2)}, {v(b + 2, 2)} op_sel:[1,0,0] op_sel_hi:[1,1,1]")
        A(f"v_mul_f32 {v(b + 2)}, {hex(f2u(0.6931471805599453))}, {v(b + 2)}")
        A(f"v_mul_f32 {v(b + 3)}, {hex(f2u(0.6931471805599453))}, {v(b + 3)}")
        A(f"v_pk_fma_f32 {v(b, 2)}, {v(b, 2)}, {v(b + 2, 2)}, {v(b, 2)}")
        A(f"v_cvt_pk_bf16_f32 {v(a)}, {v(b)}, {v(b + 1)}")
        vdt, va2, vph = K + 6, K + 7, K + 8
        A(f"v_and_b32 {v(vdt)}, s{sMASK}, {v(a)}")
        A(f"v_lshlrev_b32 {v(va2)}, 16, {v(a)}")
        A(f"v_lshlrev_b32 {v(vph)}, 16, {v(vP + 1)}")
        A(f"v_mul_f32 {v(va2)}, {v(va2)}, {v(vdt)}")
        A(f"v_mul_f32 {v(vph)}, {v(vph)}, {v(vdt)}")
        A(f"v_mul_f32 {v(va2)}, {hex(f2u(-l2e_hi))}, {v(va2)}")
        A(f"v_mul_f32 {v(vph)}, 0.15915494, {v(vph)}")
        Wp = {p: K + 10 + 2 * p for p in range(1, 17)}
        Zp = {p: K + 42 + 2 * p for p in range(1, 8)}
        G = [K + 58, K + 60]
        TT = [K + 62, K + 64, K + 66, K + 68]
        RR = [K + 70, K + 72, K + 74, K + 76]
        CV = K + 80
        A(f"v_add_f32 {v(vdt)}, {v(vdt)}, {v(vdt)}")
        A(f"v_lshlrev_b32 {v(G[0])}, 16, {v(vP + 2)}")
        A(f"v_lshlrev_b32 {v(G[0] + 1)}, 16, {v(vP + 3)}")
        A(f"v_mul_f32 {v(G[0])}, {v(G[0])}, {v(vdt)}")
        A(f"v_mul_f32 {v(G[0] + 1)}, {v(G[0] + 1)}, {v(vdt)}")
        for n, (dst, sc) in enumerate(((Wp[1], 1.0), (Wp[16], 16.0), (Zp[1], 256.0))):
            t = TT[n]
            if sc == 1.0:
                A(f"v_exp_f32 {v(t)}, {v(va2)}")
                A(f"v_fract_f32 {v(t + 1)}, {v(vph)}")
            else:
                A(f"v_mul_f32 {v(t)}, {hex(f2u(sc))}, {v(va2)}")
                A(f"v_mul_f32 {v(t + 1)}, {hex(f2u(sc))}, {v(vph)}")
                A(f"v_exp_f32 {v(t)}, {v(t)}")
                A(f"v_fract_f32 {v(t + 1)}, {v(t + 1)}")
            A(f"v_cos_f32 {v(dst)}, {v(t + 1)}")
            A(f"v_sin_f32 {v(dst + 1)}, {v(t + 1)}")
        for n, dst in enumerate((Wp[1], Wp[16], Zp[1])):
            A(f"v_pk_mul_f32 {v(dst, 2)}, {v(dst, 2)}, {v(TT[n], 2)} op_sel_hi:[1,0]")
        jobs = [(1, Wp[1], None, None, 0), (16, Zp[1], None, None, 0), (47, G[0], None, None, 1)]
        wj = []
        for p in range(2, 16):
            hb = 1 << (p.bit_length() - 1)
            x, y = (p // 2, p // 2) if hb == p else (hb, p - hb)
            wj.append((p, Wp[p], Wp[x], Wp[y], 0))
        gj = [(47 + j, G[j & 1], G[(j - 1) & 1], Wp[16], 1) for j in range(1, 16)]
        zrow = {2: 25, 3: 30, 4: 35, 5: 38, 6: 41, 7: 44}
        zj = []
        for p in range(2, 8):
            hb = 1 << (p.bit_length() - 1)
            x, y = (p // 2, p // 2) if hb == p else (hb, p - hb)
            zj.append((zrow[p], Zp[p], Zp[x], Zp[y], 0))
        tj = [(16 + k, None, Zp[1], Wp[2 * k], 0) for k in range(1, 9)]
        for z in (2, 3):
            tj += [(zrow[z] + k, None, Zp[z], Wp[4 * k], 0) for k in range(1, 5)]
        for z in (4, 5, 6, 7):
            tj += [(zrow[z] + k, None, Zp[z], Wp[8 * k], 0) for k in range(1, 3)]
        first = []
        for i in range(max(len(wj), len(gj), len(zj))):
            for q in (wj, gj, zj):
                if i < len(q):
                    first.append(q[i])
        jobs += first + tj
        A(f"v_mov_b32 {v(CV + 15)}, 0x3f80")
        pend = [(0, CV + 15)]
        slot = 0
        nb = 0
        b1_at = o.get("b1_at", 0)
        batch = o.get("batch", 6)

        def do_b1():
            self.stamp("setup")
            A(f"s_waitcnt vmcnt({1 if (o.get('wpf', 2) == 2 and not ilate) or o.get('wpf', 2) == 6 else 0})")
            self.stamp("idr")
            A("s_barrier")
            self.stamp("b1")
            if o.get("wpf", 2) == 1:
                A(wpf)
        if b1_at == 0:
            do_b1()
        for n, (row, dst, x, y, conj) in enumerate(jobs):
            if x is not None:
                if dst is None:
                    dst = RR[n & 3]
                for ins in self.cmul(dst, x, y, TT[n & 3]):
                    A(ins)
            A(f"v_cvt_pk_bf16_f32 {v(CV + slot)}, {v(dst)}, {'-' if conj else ''}{v(dst + 1)}")
            pend.append((row, CV + slot))
            slot = (slot + 1) % 15
            if len(pend) >= batch or n == len(jobs) - 1:
                for row_, reg in pend:
                    A(f"ds_write_addtid_b32 {v(reg)} offset:{row_ * ROWB}")
                pend = []
                nb += 1
                if nb == b1_at:
                    do_b1()
        A("s_waitcnt lgkmcnt(0)")
        self.stamp("kgen1")
        A("s_barrier")
        if o.get("wpf", 2) == 3:
            A(wpf)
        fB, fA0, fA1 = K, K + 32, K + 64
        for s in range(4):
            A(f"ds_read_b128 {v(fB + 4 * s, 4)}, {v(vKB)} offset:{47 * ROWB + 64 * s}")
            A(f"ds_read_b128 {v(fA0 + 4 * s, 4)}, {v(vKA0)} offset:{64 * s}")
            A(f"ds_read_b128 {v(fA1 + 4 * s, 4)}, {v(vKA1)} offset:{64 * s}")
        D0, D1 = vACC, vACC + 4
        for s in range(8):
            s2 = s + 4
            A(f"s_waitcnt lgkmcnt({9 if s2 < 8 else 3 * (7 - s)})")
            c0 = "0" if s == 0 else v(D0, 4)
            c1 = "0" if s == 0 else v(D1, 4)
            A(f"v_mfma_f32_16x16x32_bf16 {v(D0, 4)}, {v(fA0 + 4 * s, 4)}, {v(fB + 4 * s, 4)}, {c0}")
            if s2 < 8:
                A(f"ds_read_b128 {v(fB + 4 * s2, 4)}, {v(vKB)} offset:{47 * ROWB + 64 * s2}")
                A(f"ds_read_b128 {v(fA0 + 4 * s2, 4)}, {v(vKA0)} offset:{64 * s2}")
            A(f"v_mfma_f32_16x16x32_bf16 {v(D1, 4)}, {v(fA1 + 4 * s, 4)}, {v(fB + 4 * s, 4)}, {c1}")
            if s2 < 8:
                A(f"ds_read_b128 {v(fA1 + 4 * s2, 4)}, {v(vKA1)} offset:{64 * s2}")
        E = K + 96
        A(f"s_bitcmp1_b32 s{sWAVE}, 0")
        A(f"v_cmp_eq_u32 vcc, 0, {v(vLANE)}")
        A("s_nop 5")
        A("s_cbranch_scc0 L_exp_lo")
        seq2 = ["aa", "aa", "aa", "ba", "bb", "bb", "cb", "cc"]
        seq3 = ["aa", "aa", "aa", "aa", "aa", "ba", "bb", "bb", "bb", "bb", "cb", "cc", "cc", "cc"]
        ix = {"a": 0, "b": 1, "c": 2}
        for k, s in enumerate(seq3):
            A(f"v_cvt_pk_bf16_f32 {v(E + 8 + k)}, {v(D1 + ix[s[0]])}, {v(D1 + ix[s[1]])}")
        for k, w in enumerate((0, 4, 6, 10)):
            A(f"ds_write_b128 {v(vPW1)}, {v(E + 8 + w, 4)} offset:{16 * k}")
        for k, s in enumerate(seq2):
            A(f"v_cvt_pk_bf16_f32 {v(E + k)}, {v(D0 + ix[s[0]])}, {v(D0 + ix[s[1]])}")
        A(f"ds_write_b128 {v(vPW0)}, {v(E, 4)}")
        A(f"ds_write_b128 {v(vPW0)}, {v(E + 4, 4)} offset:16")
        A("L_exp_done:")
        T = self.tail
        T("L_exp_lo:")
        T(f"v_mov_b32_dpp {v(D1 + 3)}, {v(D1 + 3)} row_ror:1 row_mask:0x1 bank_mask:0xf")
        T(f"v_cvt_pk_bf16_f32 {v(E + 1)}, {v(D0 + 1)}, {v(D0)}")
        T(f"v_cvt_pk_bf16_f32 {v(E + 2)}, {v(D0 + 2)}, {v(D0 + 1)}")
        T(f"v_cvt_pk_bf16_f32 {v(E + 3)}, {v(D0 + 3)}, {v(D0 + 2)}")
        T(f"v_cndmask_b32 {v(E + 8)}, {v(D1 + 3)}, 0, vcc")
        T(f"v_cndmask_b32 {v(E + 9)}, {v(D1)}, {v(D1 + 3)}, vcc")
        T(f"v_cvt_pk_bf16_f32 {v(E)}, {v(D0)}, {v(E + 8)}")
        T(f"v_cvt_pk_bf16_f32 {v(E + 4)}, {v(D1)}, {v(E + 9)}")
        T(f"v_cvt_pk_bf16_f32 {v(E + 5)}, {v(D1)}, {v(D1)}")
        T(f"v_cvt_pk_bf16_f32 {v(E + 6)}, {v(D1 + 1)}, {v(D1)}")
        T(f"v_cvt_pk_bf16_f32 {v(E + 7)}, {v(D1 + 2)}, {v(D1 + 1)}")
        T(f"ds_write_b128 {v(vPW0)}, {v(E, 4)}")
        T(f"ds_write_b128 {v(vPW1)}, {v(E + 4, 4)}")
        T("s_branch L_exp_done")
        A("s_waitcnt lgkmcnt(0)")
        self.stamp("kgen2")
        A("s_barrier")
        if o.get("wpf", 2) == 4:
            A(wpf)

        def rdA(buf, rho, m):
            return [f"ds_read2_b32 {v(buf + 4 * m, 2)}, {v(vAA + m)} offset0:{64 * rho + 6} offset1:{64 * rho + 4}",
                    f"ds_read2_b32 {v(buf + 4 * m + 2, 2)}, {v(vAA + m)} offset0:{64 * rho + 2} offset1:{64 * rho}"]

        def rdB(buf, rho, n):
            return [f"ds_read_b128 {v(buf + 4 * n, 4)}, {v(vBA)} offset:{128 * (3 - rho) + 512 * (7 - n)}"]

        for m in range(8):
            for l in rdA(vA0, 0, m):
                A(l)
        A(f"s_mul_i32 s{sTMP}, s{sL}, {RS}")
        A(f"s_lshl_b32 s{sTMP + 1}, s{sWAVE}, 11")
        A(f"s_add_u32 s{sTMP}, s{sTMP}, s{sTMP + 1}")
        A(f"s_add_u32 s{sTMP}, s{sTMP}, {W_REG + O_X2}")
        A(f"v_lshl_add_u32 {v(vT)}, {v(vLANE)}, 4, s{sTMP}")
        A(f"v_lshlrev_b32 {v(vT + 1)}, {KS}, v0")
        A(f"v_add_u32 {v(vT + 1)}, {W_KEY}, {v(vT + 1)}")
        A(f"s_lshl_b32 s{sTMP}, s{sWAVE}, 2")
        A(f"s_add_u32 s{sTMP}, s{sTMP}, {L_REDK}")
        A(f"v_mov_b32 {v(vT + 3)}, s{sTMP}")
        A("s_waitcnt lgkmcnt(0)")
        self.stamp("apre")
        A("s_barrier")
        self.stamp("b3")
        if o.get("wpf", 2) == 5:
            A(wpf)
        if o.get("prio", 1):
            A("s_setprio 2")

        bufA, bufB = [vA0, vA1], [vB0, vB1]
        for n in range(7, -1, -1):
            for l in rdB(vB0, 0, n):
                A(l)
        started = set()
        for rho in range(4):
            a_, b_ = bufA[rho & 1], bufB[rho & 1]
            order = [(n - 7 + tb, tb, n) for n in range(7, -1, -1) for tb in range(7 - n, 8)]
            if rho == 3:
                order = [(n - 7 + tb, tb, n) for tb in range(8) for n in range(7 - tb, 8)]
            fill = []
            if rho + 1 < 4:
                nb_, na_ = bufB[(rho + 1) & 1], bufA[(rho + 1) & 1]
                for m in range(8):
                    fill += rdB(nb_, rho + 1, 7 - m)
                    fill += rdA(na_, rho + 1, m)
            issued = 0
            seen = set()
            done_at = {}
            for i, (m, tb, n) in enumerate(order):
                done_at[tb] = i
            for i, (m, tb, n) in enumerate(order):
                if rho == 0 and n not in seen:
                    A(f"s_waitcnt lgkmcnt({min(15, n + issued)})")
                    seen.add(n)
                elif i == 0:
                    A("s_waitcnt lgkmcnt(0)")
                acc = v(vACC + 4 * tb, 4)
                c = acc if tb in started else "0"
                started.add(tb)
                A(f"v_mfma_f32_16x16x32_bf16 {acc}, {v(a_ + 4 * m, 4)}, {v(b_ + 4 * n, 4)}, {c}")
                if i >= 1 and fill:
                    A(fill.pop(0))
                    issued += 1
                if rho == 3:
                    for t in range(7):
                        if done_at[t] + 8 == i or (i == len(order) - 1 and done_at[t] + 8 > i):
                            A(f"ds_write_b128 {v(vEW)}, {v(vACC + 4 * t, 4)} offset:{t * TBS}")
            assert not fill
        A(f"ds_write_b128 {v(vEW)}, {v(vACC + 28, 4)} offset:{7 * TBS}")
        self.stamp("conv")
        A("s_waitcnt lgkmcnt(0)")
        A("s_barrier")
        for i in range(2):
            for s in range(4):
                A(f"ds_read_b128 {v(K + 16 * i + 4 * s, 4)}, {v(vER)} offset:{s * 8 * TBS + i * TBS}")
        for i in range(2):
            A(f"s_waitcnt lgkmcnt({4 * (1 - i)})")
            b0 = K + 16 * i
            for c in range(2):
                for h in range(2):
                    A(f"v_pk_add_f32 {v(b0 + 8 * c + 2 * h, 2)}, {v(b0 + 8 * c + 2 * h, 2)}, {v(b0 + 8 * c + 4 + 2 * h, 2)}")
            for c in range(2):
                for h in range(2):
                    A(f"v_cvt_pk_bf16_f32 {v(K + 32 + 4 * i + 2 * c + h)}, {v(b0 + 8 * c + 2 * h)}, {v(b0 + 8 * c + 2 * h + 1)}")
            A(f"global_store_dwordx4 {v(vT)}, {v(K + 32 + 4 * i, 4)}, {sp(sWS)} offset:{1024 * i} sc1")
        self.stamp("x2st")
        A("s_waitcnt vmcnt(0)")
        self.stamp("x2dr")
        A("s_barrier")
        A(f"s_cmp_eq_u32 s{sWAVE}, 0")
        A("s_cbranch_scc0 L_cfin")
        for q in range(1, 4):
            A(f"v_add_u32 {v(vT + 8 + q)}, {(64 * q) << KS}, {v(vT + 1)}")
        A("s_barrier")
        self.key_calc(K, vRA, vLANE)
        A("s_mov_b64 exec, 1")
        A(f"global_store_dword {v(22)}, {v(K + 8)}, {sp(sWS)} sc1")
        A("s_mov_b64 exec, -1")
        self.stamp("key")
        A("s_waitcnt vmcnt(0)")
        self.stamp("keydr")
        k2 = vT + 4
        kl = [f"global_load_dword {v(K + q)}, {v(vT + 8 + q) if q else v(vT + 1)}, {sp(sWS)} sc1" for q in range(4)]
        for l in kl:
            A(l)
        A("s_waitcnt vmcnt(0)")
        self.poll("key", kl, [f"v_max3_u32 {v(k2)}, {v(K)}, {v(K + 1)}, {v(K + 2)}",
                              f"v_max_u32 {v(k2)}, {v(k2)}, {v(K + 3)}",
                              f"v_cmp_eq_u32 vcc, -1, {v(k2)}"])
        self.stamp("keyld")
        A(f"v_max_u32_dpp {v(k2)}, {v(k2)}, {v(k2)} quad_perm:[1,0,3,2] row_mask:0xf bank_mask:0xf")
        A(f"v_max_u32_dpp {v(k2)}, {v(k2)}, {v(k2)} quad_perm:[2,3,0,1] row_mask:0xf bank_mask:0xf")
        A(f"v_max_u32_dpp {v(k2)}, {v(k2)}, {v(k2)} row_half_mirror row_mask:0xf bank_mask:0xf")
        A(f"v_max_u32_dpp {v(k2)}, {v(k2)}, {v(k2)} row_mirror row_mask:0xf bank_mask:0xf")
        A(f"v_max_u32_dpp {v(k2)}, {v(k2)}, {v(k2)} row_bcast:15 row_mask:0xa bank_mask:0xf")
        A(f"v_max_u32_dpp {v(k2)}, {v(k2)}, {v(k2)} row_bcast:31 row_mask:0xc bank_mask:0xf")
        A("s_mov_b32 exec_lo, 0")
        A("s_brev_b32 exec_hi, 1")
        A(f"ds_write_b32 {v(vT + 3)}, {v(k2)}")
        A("s_waitcnt lgkmcnt(0)")
        A("s_barrier")
        A("L_cfin:")
        self.finish("C")

    def text(self):
        lines = self.build()
        src = open("sequential_preLN__ssm_conv_s4d__moe_arch_mod__prompt.s.ref").read()
        head = [l for l in src.split("\n") if l.startswith(";") and "@launch" not in l]
        head = head[:head.index("; Override launch geometry by editing the next line (default: block=256,")]
        out = head + [f"; @launch grid=(256,1,1) block=(512,1,1) lds={LDS_BYTES}",
                      '.amdgcn_target "amdgcn-amd-amdhsa--gfx950"', ".text", f".globl {KNAME}", ".p2align 8",
                      f".type {KNAME},@function"]
        out += [l if l.endswith(":") else "    " + l for l in lines]
        out += [".section .rodata,\"a\"", ".p2align 6", f".amdhsa_kernel {KNAME}",
                "  .amdhsa_next_free_vgpr 224", "  .amdhsa_next_free_sgpr 102", "  .amdhsa_accum_offset 224",
                "  .amdhsa_group_segment_fixed_size 0", "  .amdhsa_kernarg_size 120", "  .amdhsa_user_sgpr_count 2",
                "  .amdhsa_user_sgpr_kernarg_segment_ptr 1", "  .amdhsa_system_sgpr_workgroup_id_x 1",
                ".end_amdhsa_kernel", ""]
        return "\n".join(out)


if __name__ == "__main__":
    out = sys.argv[1]
    opts = {}
    stamp = False
    for a in sys.argv[2:]:
        if a == "stamp":
            stamp = True
        else:
            k, val = a.split("=")
            opts[k] = val if k in ('pr', 'few') else int(val)
    g = Gen(stamp, opts)
    open(out, "w").write(g.text())
    if g.stamp_on:
        open(out + ".names", "w").write(" ".join(g.allnames["R"]) + "\n" + " ".join(g.allnames["C"]))
    print(g.info, "lds", LDS_BYTES)
```

```python
import sys
import struct
from asmlib import Asm, align8

KNAME = "sequential_preLN__ssm_conv_s4d__moe_arch_mod__prompt_kernel"


def f2u(x):
    return struct.unpack("<I", struct.pack("<f", x))[0]


W_FLAG = 0x1000 + (int(__import__('os').environ.get('WOFF', '0')) << 20)
W_KEY = 0x9000 + (int(__import__('os').environ.get('WOFF', '0')) << 20)
W_FLAG2 = 0x11000 + (int(__import__('os').environ.get('WOFF', '0')) << 20)
import os
WOFF = int(os.environ.get('WOFF', '0')) << 20
W_REG = 0x38000 + WOFF
RS = 20608
O_X1, O_X2, O_SLOT, O_PART = 0, 8192, 16384, 18432
W_STAMP = 0x800000
ROWB = 544
TABC = 63 * ROWB
L_TAB = 0
L_P = 68608
PC = 8256
L_U = L_P + 2 * PC
UC = 4608
L_RED1 = (L_U + 2 * UC + 255) // 256 * 256
L_RED2 = L_RED1 + 256
L_SUMW = L_RED2 + 384
L_REDK = L_SUMW + 16
L_REDF = L_REDK + 16
LDS_BYTES = L_REDF + 256
L_EPI = 0
TBS = 1152
sX, sLA, sAI, sCR, sCI, sLDT, sD = 4, 6, 8, 10, 12, 14, 16
sWR, sWG, sWU, sWD, sOUT, sDBG, sWS = 20, 22, 24, 26, 28, 30, 32
sL, sPOS, sXCD, sWAVE, sG, sDT, sT0, sT1, sSPIN, sF = 34, 35, 36, 37, 38, 39, 40, 41, 42, 43
sODD = 44
sSELLO, sSELHI, sONES, sMASK = 46, 47, 48, 49
sWSEL = 50
sBEST, sWIN, sRP0, sRP1 = 52, 53, 54, 55
sH = 56
sE = 64
sTMP = 66
sOWN = 71
sCAND = 3
sTAG = 56
sSTAMP = 72


def sp(r):
    return f"s[{r}:{r + 1}]"


def v(r, n=1):
    return f"v{r}" if n == 1 else f"v[{r}:{r + n - 1}]"


class Gen:
    def __init__(self, stamp=False, opts=None):
        self.A = Asm()
        self.tail = Asm()
        self.stamp_on = stamp
        self.nstamp = 0
        self.names = []
        self.o = dict(opts or {})
        self.only = None
        self.few = None
        if "few" in self.o:
            self.few = ["start", "end"] + self.o["few"].split(".")
            self.stamp_on = True
        self.role = "R"
        if "pr" in self.o:
            self.only = tuple(self.o["pr"].split("."))
            self.stamp_on = True
            self.o["probe"] = 1 if self.only[0] == "R" else 101

    def stamp(self, name):
        if not self.stamp_on:
            return
        if self.only and name != "start" and (self.role, name) != self.only:
            return
        if self.few and name not in self.few:
            return
        k = self.nstamp
        self.nstamp += 1
        self.names.append(name)
        assert sSTAMP + k < 100
        self.A(f"s_memrealtime s[100:101]")
        self.A("s_waitcnt lgkmcnt(0)")
        self.A(f"s_mov_b32 s{sSTAMP + k}, s100")

    def poll(self, name, loads, check, base_exec="-1"):
        A = self.A
        for c in check:
            A(c)
        A(f"s_cbranch_vccnz L_retry_{name}")
        A(f"L_ok_{name}:")
        T = self.tail
        T(f"L_retry_{name}:")
        T(f"s_mov_b32 s{sSPIN}, 0x40000")
        T(f"L_again_{name}:")
        T(f"s_sub_u32 s{sSPIN}, s{sSPIN}, 1")
        T(f"s_cbranch_scc1 L_ok_{name}")
        T("s_mov_b64 exec, vcc")
        for l in loads:
            T(l)
        T("s_waitcnt vmcnt(0)")
        for c in check:
            T(c)
        T(f"s_mov_b64 exec, {base_exec}")
        T(f"s_cbranch_vccnz L_again_{name}")
        T(f"s_branch L_ok_{name}")

    def cmul(self, d, x, y, t):
        return [f"v_pk_mul_f32 {v(t, 2)}, {v(x, 2)}, {v(y, 2)} op_sel:[0,0] op_sel_hi:[0,1]",
                f"v_pk_fma_f32 {v(d, 2)}, {v(x, 2)}, {v(y, 2)}, {v(t, 2)} op_sel:[1,1,0] op_sel_hi:[1,0,1] neg_lo:[1,0,0]"]

    def reduce8(self, V, t):
        A = self.A
        for i in range(4):
            A(f"v_add_f32_dpp {v(V[i])}, {v(V[i])}, {v(V[i])} row_ror:8 row_mask:0xf bank_mask:0x3")
        for i in range(4):
            A(f"v_add_f32_dpp {v(V[i])}, {v(V[i + 4])}, {v(V[i + 4])} row_ror:8 row_mask:0xf bank_mask:0xc")
        for i in range(2):
            A(f"v_add_f32_dpp {v(V[i])}, {v(V[i])}, {v(V[i])} row_shl:4 row_mask:0xf bank_mask:0x5")
        for i in range(2):
            A(f"v_add_f32_dpp {v(V[i])}, {v(V[i + 2])}, {v(V[i + 2])} row_shr:4 row_mask:0xf bank_mask:0xa")
        A(f"v_permlane32_swap_b32 {v(V[0])}, {v(V[1])}")
        A(f"v_add_f32 {v(V[0])}, {v(V[0])}, {v(V[1])}")
        A(f"v_add_f32_dpp {v(V[0])}, {v(V[0])}, {v(V[0])} quad_perm:[2,3,0,1] row_mask:0xf bank_mask:0xf")
        A(f"v_mov_b32 {v(t)}, {v(V[0])}")
        A(f"v_permlane16_swap_b32 {v(V[0])}, {v(t)}")
        A(f"v_add_f32 {v(V[0])}, {v(V[0])}, {v(t)}")

    def row_stats(self, S, Q, negm, rinv, t, scale=None):
        A = self.A
        A(f"v_pk_add_f32 {v(S, 2)}, {v(S, 2)}, {v(S + 2, 2)}")
        A(f"v_pk_add_f32 {v(Q, 2)}, {v(Q, 2)}, {v(Q + 2, 2)}")
        A(f"v_add_f32 {v(S)}, {v(S)}, {v(S + 1)}")
        A(f"v_add_f32 {v(Q)}, {v(Q)}, {v(Q + 1)}")
        A(f"v_mul_f32 {v(S)}, {hex(f2u(1 / 512))}, {v(S)}")
        A(f"v_mul_f32 {v(Q)}, {hex(f2u(1 / 512))}, {v(Q)}")
        A(f"v_fma_f32 {v(Q)}, -{v(S)}, {v(S)}, {v(Q)}")
        A(f"v_max_f32 {v(Q)}, 0, {v(Q)}")
        A(f"v_cvt_pk_bf16_f32 {v(t)}, -{v(S)}, {v(Q)}")
        A(f"v_and_b32 {v(Q)}, s{sMASK}, {v(t)}")
        A(f"v_add_f32 {v(Q)}, {hex(f2u(1e-5))}, {v(Q)}")
        A(f"v_cvt_pk_bf16_f32 {v(Q)}, {v(Q)}, {v(Q)}")
        A(f"v_and_b32 {v(Q)}, s{sMASK}, {v(Q)}")
        A(f"v_sqrt_f32 {v(Q)}, {v(Q)}")
        A(f"v_lshlrev_b32 {v(negm)}, 16, {v(t)}")
        A(f"v_cvt_pk_bf16_f32 {v(Q)}, {v(Q)}, {v(Q)}")
        A(f"v_and_b32 {v(Q)}, s{sMASK}, {v(Q)}")
        if scale:
            A(f"v_mul_f32 {v(Q)}, {hex(f2u(scale))}, {v(Q)}")
        A(f"v_rcp_f32 {v(rinv)}, {v(Q)}")

    def spread(self, val, dst, t):
        A = self.A
        for r in range(4):
            A(f"v_mov_b32_dpp {v(t + r)}, {v(val)} row_newbcast:{4 + r} row_mask:0xf bank_mask:0xf")
        for r in range(4):
            A(f"v_cndmask_b32_dpp {v(dst + r)}, {v(val)}, {v(t + r)}, vcc row_newbcast:{r} row_mask:0xf bank_mask:0xf")

    def key_calc(self, K, vRA, vLANE):
        A = self.A
        A(f"v_mov_b32 {v(K + 14)}, {L_SUMW}")
        A(f"ds_read_b128 {v(K, 4)}, {v(vRA)} offset:{L_RED2 - L_RED1}")
        A(f"ds_read_b128 {v(K + 4, 4)}, {v(vRA)} offset:{L_RED2 - L_RED1 + 128}")
        A(f"ds_read_b128 {v(K + 8, 4)}, {v(vRA)} offset:{L_RED2 - L_RED1 + 256}")
        A(f"ds_read_b32 {v(K + 15)}, {v(K + 14)}")
        A(f"s_lshl_b32 s{sTMP}, s{sL}, 3")
        A(f"s_sub_u32 s{sTMP}, 2047, s{sTMP}")
        A(f"v_and_b32 {v(K + 14)}, 7, {v(vLANE)}")
        A(f"v_sub_u32 {v(K + 14)}, s{sTMP}, {v(K + 14)}")
        A("s_waitcnt lgkmcnt(2)")
        self.row_stats(K, K + 4, K + 12, K + 13, K + 28)
        A("s_waitcnt lgkmcnt(0)")
        A(f"v_pk_add_f32 {v(K + 8, 2)}, {v(K + 8, 2)}, {v(K + 10, 2)}")
        A(f"v_add_f32 {v(K + 8)}, {v(K + 8)}, {v(K + 9)}")
        A(f"v_fmac_f32 {v(K + 8)}, {v(K + 12)}, {v(K + 15)}")
        A(f"v_mul_f32 {v(K + 8)}, {v(K + 8)}, {v(K + 13)}")
        A(f"v_ashrrev_i32 {v(K + 9)}, 31, {v(K + 8)}")
        A(f"v_or_b32 {v(K + 9)}, 0x80000000, {v(K + 9)}")
        A(f"v_xor_b32 {v(K + 8)}, {v(K + 8)}, {v(K + 9)}")
        A(f"v_and_b32 {v(K + 8)}, 0xfffff800, {v(K + 8)}")
        A(f"v_or_b32 {v(K + 8)}, {v(K + 8)}, {v(K + 14)}")
        A(f"v_min_u32 {v(K + 8)}, -2, {v(K + 8)}")
        A(f"v_max_u32_dpp {v(K + 8)}, {v(K + 8)}, {v(K + 8)} quad_perm:[1,0,3,2] row_mask:0xf bank_mask:0xf")
        A(f"v_max_u32_dpp {v(K + 8)}, {v(K + 8)}, {v(K + 8)} quad_perm:[2,3,0,1] row_mask:0xf bank_mask:0xf")
        A(f"v_max_u32_dpp {v(K + 8)}, {v(K + 8)}, {v(K + 8)} row_half_mirror row_mask:0xf bank_mask:0xf")

    def finish(self, role):
        A = self.A
        o = self.o
        if self.stamp_on:
            self.stamp("end")
            self.allnames[role] = self.names
        if self.stamp_on and "probe" in o:
            k = o["probe"]
            if k == 98 and role == "R":
                A(f"s_getreg_b32 s{sTMP}, hwreg(HW_REG_XCC_ID, 0, 4)")
                A(f"s_sub_u32 s{sTMP}, s{sTMP}, s2")
                A(f"s_and_b32 s{sTMP}, s{sTMP}, 7")
                A(f"s_mul_i32 s{sTMP}, s{sTMP}, 1000")
                A(f"s_add_u32 s{sTMP}, s{sTMP}, 2000")
            elif k == 99 and role == "R":
                A("s_memtime s[96:97]")
                A("s_waitcnt lgkmcnt(0)")
                A("s_sub_u32 s96, s96, s98")
                A(f"s_sub_u32 s97, s{sSTAMP + self.nstamp - 1}, s{sSTAMP}")
                A("s_mov_b64 exec, -1")
                A("v_cvt_f32_u32 v2, s96")
                A("v_cvt_f32_u32 v3, s97")
                A("v_rcp_f32 v3, v3")
                A("s_nop 1")
                A("v_mul_f32 v2, v2, v3")
                A("v_mul_f32 v2, 0x43c80000, v2")
                A("v_cvt_u32_f32 v2, v2")
                A("s_nop 1")
                A(f"v_readfirstlane_b32 s{sTMP}, v2")
                A(f"s_add_u32 s{sTMP}, s{sTMP}, 2000")
            elif k < 0 and role == "R":
                A(f"s_mov_b32 s{sTMP}, {-k}")
            elif k >= 0 and (k >= 100) == (role == "C"):
                A(f"s_sub_u32 s{sTMP}, s{sSTAMP + k % 100}, s{sSTAMP}")
                A(f"s_cmp_lt_u32 s{sTMP}, 3000")
                A(f"s_cselect_b32 s{sTMP}, s{sTMP}, 0")
                A(f"s_mul_i32 s{sTMP}, s{sTMP}, 20")
                A(f"s_add_u32 s{sTMP}, s{sTMP}, 2000")
                if role == "C":
                    A(f"s_cmp_eq_u32 s{sWAVE}, 0")
                    A(f"s_cselect_b32 s{sTMP}, s{sTMP}, 0")
            else:
                A(f"s_mov_b32 s{sTMP}, 0")
            A(f"L_spin{role}:")
            A("s_memrealtime s[100:101]")
            A("s_waitcnt lgkmcnt(0)")
            A(f"s_sub_u32 s100, s100, s{sSTAMP}")
            A(f"s_cmp_lt_u32 s100, s{sTMP}")
            A(f"s_cbranch_scc1 L_spin{role}")
        elif self.stamp_on:
            A("s_mov_b64 exec, 1")
            A(f"s_lshl_b32 s{sTMP}, s2, 3")
            A(f"s_add_u32 s{sTMP}, s{sTMP}, s{sWAVE}")
            if role == "C":
                A(f"s_add_u32 s{sTMP}, s{sTMP}, 4")
            A(f"s_lshl_b32 s{sTMP}, s{sTMP}, 7")
            A(f"s_add_u32 s{sTMP}, s{sTMP}, {W_STAMP}")
            A(f"v_mov_b32 v1, s{sTMP}")
            for k in range(self.nstamp):
                A(f"v_mov_b32 v2, s{sSTAMP + k}")
                A(f"global_store_dword v1, v2, {sp(sWS)} offset:{4 * k}")
        A("s_endpgm")

    def build(self):
        A = self.A
        self.allnames = {}
        A(f"{KNAME}:")
        A("s_cmp_ge_u32 s2, 256")
        A("s_cbranch_scc1 L_end")
        self.stamp("start")
        if self.o.get("probe", 0) == 99:
            A("s_memtime s[98:99]")
        cpf = self.o.get("codepf", 1)
        if cpf == 1:
            A(f"s_getpc_b64 {sp(sE)}")
            A("L_pc:")
            A("v_lshlrev_b32 v2, 5, v0")
            A(f"v_min_u32 v2, L_codeend-L_pc-4, v2")
            A(f"global_load_dword v3, v2, {sp(sE)}")
        elif cpf >= 2:
            A(f"s_getpc_b64 {sp(sE)}")
            A("L_pc:")
            A(f"s_bfe_u32 s3, s2, {3 | ((7 - cpf) << 16)}")
            A(f"s_lshl_b32 s3, s3, {7 + cpf}")
            A("v_lshl_add_u32 v2, v0, 7, s3")
            A(f"v_min_u32 v2, L_codeend-L_pc-4, v2")
            A(f"v_cmp_gt_u32 vcc, {1 << cpf}, v0")
            A("s_mov_b64 exec, vcc")
            A(f"global_load_dword v3, v2, {sp(sE)}")
            A("s_mov_b64 exec, -1")
        A("s_load_dwordx16 s[4:19], s[0:1], 0")
        A("s_load_dwordx8 s[20:27], s[0:1], 64")
        A("s_load_dwordx4 s[28:31], s[0:1], 96")
        A("s_load_dwordx2 s[32:33], s[0:1], 112")
        A("v_lshrrev_b32 v4, 6, v0")
        A(f"s_and_b32 s{sXCD}, s2, 7")
        A(f"v_readfirstlane_b32 s{sWAVE}, v4")
        A(f"s_lshr_b32 s{sPOS}, s2, 3")
        A(f"s_lshl_b32 s{sL}, s{sXCD}, 5")
        A(f"s_add_u32 s{sL}, s{sL}, s{sPOS}")
        A("v_and_b32 v1, 63, v0")
        A(f"s_mov_b32 s{sMASK}, 0xffff0000")
        pre = self.o.get("pre", 0)
        if pre:
            A("s_waitcnt lgkmcnt(0)")
            n = pre % 10
            kind = pre // 10
            A(f"s_mul_i32 s{sT0}, s{sL}, {n * 4096 + 128}")
            A(f"s_add_u32 s{sT0}, s{sT0}, {32 << 20}")
            A("v_and_b32 v5, 0xff, v0")
            A(f"v_lshl_add_u32 v5, v5, 4, s{sT0}")
            A(f"s_cmp_ge_u32 s{sWAVE}, 4")
            A("s_cbranch_scc1 L_pre")
            if kind in (2, 3):
                A("s_mov_b64 exec, 1")
                A(f"global_load_dword v8, v5, {sp(sWS)}")
                A("s_mov_b64 exec, -1")
                A("s_waitcnt vmcnt(0)")
                if kind == 3:
                    self.nstamp = 0
                    self.names = []
                    self.stamp("start")
            if kind in (8, 9, 10, 11):
                A("v_lshrrev_b32 v12, 1, v0")
                A("v_and_b32 v13, 1, v0")
                A("v_lshlrev_b32 v12, 3, v12")
                A(f"s_lshl_b32 s{sT0}, s{sL}, 13")
                A("v_lshl_add_u32 v14, v13, 12, v12")
                A(f"v_add_u32 v14, s{sT0}, v14")
                for r in range(4):
                    A(f"global_load_dwordx2 v[{16 + 2 * r}:{17 + 2 * r}], v14, s[18:19] offset:{1024 * r}{' nt' if kind != 10 else ''}")
                ny = 0
                if kind in (9, 11):
                    A(f"global_load_dwordx2 v[24:25], v12, {sp(sD)}")
                    A(f"global_load_dwordx2 v[26:27], v12, {sp(sWR)}")
                    A("v_lshlrev_b32 v13, 4, v1")
                    A(f"global_load_dwordx4 v[28:31], v13, {sp(sWR)}")
                    ny = 3
                if kind == 11:
                    A(f"s_load_dword s{sG}, {sp(sWS)}, 0")
                for k in range(n):
                    A(f"global_store_dwordx4 v5, v[8:11], {sp(sWS)} sc1")
                    A("v_add_u32 v5, 4096, v5")
                A(f"s_waitcnt vmcnt({n + ny})")
                self.stamp("pre")
                n = 0
            for k in range(n):
                if kind == 1:
                    A(f"global_load_dwordx4 v[8:11], v5, {sp(sWS)}")
                elif kind == 6:
                    if k == 0:
                        A(f"s_lshl_b32 s{sT0}, s{sL}, 7")
                        A(f"v_mov_b32 v6, s{sT0}")
                        A("s_mov_b64 exec, 1")
                    A(f"global_load_dword v{8 + k}, v6, {sp((sX, sLA, sAI, sCR, sCI, sWG, sWU, sWD, sOUT)[k])}")
                    if k == n - 1:
                        A("s_mov_b64 exec, -1")
                elif kind == 7:
                    if k == 0:
                        A(f"v_lshlrev_b32 v6, 3, v1")
                    A(f"global_load_dwordx2 v[{8 + 2 * k}:{9 + 2 * k}], v6, {sp((sD, sWR)[k])}")
                elif kind == 5:
                    A(f"global_load_dwordx4 v[8:11], v5, {sp(sWS)} nt")
                elif kind == 4:
                    A(f"global_store_dwordx4 v5, v[8:11], {sp(sWS)}")
                else:
                    A(f"global_store_dwordx4 v5, v[8:11], {sp(sWS)} sc1")
                A("v_add_u32 v5, 4096, v5")
            A("s_waitcnt vmcnt(0)")
            if kind < 8:
                self.stamp("pre")
            A("L_pre:")
            A("s_barrier")
        A(f"s_cmp_ge_u32 s{sWAVE}, 4")
        A("s_cbranch_scc1 L_chan")
        self.rows()
        self.names = self.names[:1]
        self.nstamp = min(self.nstamp, 1)
        A(".p2align 6")
        self.role = "C"
        self.chans()
        A("L_end:")
        A("s_endpgm")
        for l in self.tail.L:
            A(l)
        A("L_codeend:")
        lines, nops = A.padded()
        lines, nbytes, promoted, missed = align8(lines)
        self.info = dict(nops=nops, bytes=nbytes, promoted=promoted, missed=missed, lines=len(lines))
        return lines

    def rows(self):
        A = self.A
        o = self.o
        vLANE = 1
        vX, vU, vD, vWR = 212, 10, 18, 20
        vREG, vRD, vAUX = 22, 23, 24
        vKEY, vSW, vRA, vFL, vUW = 26, 27, 28, 29, 30
        vT = 32
        vWG, vWD = 40, 72
        vY = 88
        vONE = 96
        K = 100
        L2E = 1.4426950408889634
        A(f"v_lshrrev_b32 {v(vT)}, 1, v0")
        A(f"v_and_b32 {v(vT + 1)}, 1, v0")
        A(f"v_lshlrev_b32 {v(vT + 2)}, 3, {v(vT)}")
        A(f"s_lshl_b32 s{sT0}, s{sL}, 13")
        A(f"v_lshl_add_u32 {v(vRD)}, {v(vT + 1)}, 12, {v(vT + 2)}")
        A(f"v_add_u32 {v(vRD)}, s{sT0}, {v(vRD)}")
        A(f"s_mul_i32 s{sOWN}, s{sL}, {RS}")
        A(f"s_add_u32 s{sOWN}, s{sOWN}, {W_REG}")
        A(f"s_add_u32 s{sT0}, s{sOWN}, 4096")
        A(f"v_lshl_add_u32 {v(vREG)}, v0, 4, s{sT0}")
        A(f"v_lshlrev_b32 {v(vT + 3)}, 4, {v(vLANE)}")
        nt = ' nt' if o.get('ntx', 1) else ''
        A("s_waitcnt lgkmcnt(0)")
        self.stamp("karg")
        for r in range(4):
            A(f"global_load_dwordx2 {v(vX + 2 * r, 2)}, {v(vRD)}, {sp(sX)} offset:{1024 * r}{nt}")
        A(f"s_load_dword s{sG}, {sp(sWS)}, 0")
        A(f"global_load_dwordx2 {v(vD, 2)}, {v(vT + 2)}, {sp(sD)}")
        A(f"global_load_dwordx2 {v(vWR, 2)}, {v(vT + 2)}, {sp(sWR)}")
        A(f"global_load_dwordx4 {v(vONE, 4)}, {v(vT + 3)}, {sp(sWR)}")
        A(f"s_mov_b32 s{sODD}, 0xaaaaaaaa")
        A(f"s_mov_b32 s{sODD + 1}, 0xaaaaaaaa")
        A(f"s_mov_b32 s{sSELLO}, 0x3f80")
        A(f"s_mov_b32 s{sSELHI}, 0x3f800000")
        A(f"s_mov_b32 s{sONES}, 0x3f803f80")
        A(f"s_and_b32 s{sTMP}, s{sL}, 1")
        A(f"s_lshl_b32 s{sTMP}, s{sTMP}, 12")
        A(f"s_lshr_b32 s{sTMP + 1}, s{sL}, 1")
        A(f"s_lshl_b32 s{sTMP + 1}, s{sTMP + 1}, 5")
        A(f"s_add_u32 s{sTMP}, s{sTMP}, s{sTMP + 1}")
        A(f"s_add_u32 s{sTMP}, s{sTMP}, {W_REG + O_X1}")
        A(f"v_mul_u32_u24 {v(vAUX)}, {RS}, {v(vT)}")
        A(f"v_lshl_add_u32 {v(vAUX)}, {v(vT + 1)}, 4, {v(vAUX)}")
        A(f"v_add_u32 {v(vAUX)}, s{sTMP}, {v(vAUX)}")
        A(f"v_add_u32 {v(vAUX + 1)}, {128 * RS}, {v(vAUX)}")
        FS = o.get("fs", 7)
        KS = o.get("ks", 5)
        A(f"v_lshlrev_b32 {v(vSW)}, 6, {v(vT + 1)}")
        A(f"v_and_b32 {v(vT + 3)}, 4, {v(vLANE)}")
        A(f"v_lshl_add_u32 {v(vSW)}, {v(vT + 3)}, 3, {v(vSW)}")
        A(f"v_and_b32 {v(vT + 3)}, 8, {v(vLANE)}")
        A(f"v_lshl_add_u32 {v(vSW)}, {v(vT + 3)}, 4, {v(vSW)}")
        A(f"v_lshrrev_b32 {v(vT + 3)}, 5, {v(vLANE)}")
        A(f"v_lshl_add_u32 {v(vSW)}, {v(vT + 3)}, 4, {v(vSW)}")
        A(f"s_lshl_b32 s{sTMP}, s{sWAVE}, 2")
        A(f"s_add_u32 s{sTMP}, s{sTMP}, {L_RED1}")
        A(f"v_add_u32 {v(vSW)}, s{sTMP}, {v(vSW)}")
        A(f"v_and_b32 {v(vT + 3)}, 7, {v(vLANE)}")
        A(f"v_lshlrev_b32 {v(vRA)}, 4, {v(vT + 3)}")
        A(f"v_add_u32 {v(vRA)}, {L_RED1}, {v(vRA)}")
        A(f"v_lshlrev_b32 {v(vUW)}, 3, v0")
        A(f"v_mov_b32 {v(vFL)}, 0x9fff9fff")
        A(f"v_mov_b32 {v(K)}, 0")
        A(f"v_mov_b32 {v(K + 1)}, 0")
        A(f"v_min_u32 {v(vT + 3)}, 472, {v(vUW)}")
        A(f"v_add_u32 {v(vT + 3)}, {L_U}, {v(vT + 3)}")
        A(f"v_min_u32 {v(vT + 4)}, 56, {v(vUW)}")
        A(f"v_add_u32 {v(vT + 4)}, {L_P}, {v(vT + 4)}")
        A(f"ds_write2st64_b64 {v(vT + 3)}, {v(K, 2)}, {v(K, 2)} offset0:0 offset1:9")
        A(f"ds_write_b64 {v(vT + 4)}, {v(K, 2)}")
        A(f"ds_write_b64 {v(vT + 4)}, {v(K, 2)} offset:{PC}")
        A(f"v_add_u32 {v(vUW)}, {L_U + 480}, {v(vUW)}")

        V = [K + i for i in range(8)]
        A("s_waitcnt vmcnt(3)")
        self.stamp("x")
        for r in range(4):
            A(f"v_dot2_f32_bf16 {v(V[r])}, {v(vX + 2 * r)}, s{sONES}, 0")
        for r in range(4):
            A(f"v_dot2_f32_bf16 {v(V[4 + r])}, {v(vX + 2 * r)}, {v(vX + 2 * r)}, 0")
        for r in range(4):
            A(f"v_dot2_f32_bf16 {v(V[r])}, {v(vX + 2 * r + 1)}, s{sONES}, {v(V[r])}")
        for r in range(4):
            A(f"v_dot2_f32_bf16 {v(V[4 + r])}, {v(vX + 2 * r + 1)}, {v(vX + 2 * r + 1)}, {v(V[4 + r])}")
        self.reduce8(V, K + 8)
        A(f"ds_write_b32 {v(vSW)}, {v(V[0])}")
        A("s_waitcnt lgkmcnt(0)")
        A("s_barrier")
        self.stamp("b1")
        A(f"ds_read_b128 {v(K, 4)}, {v(vRA)}")
        A(f"ds_read_b128 {v(K + 4, 4)}, {v(vRA)} offset:128")
        A(f"s_add_u32 s{sG}, s{sG}, 1")
        for k in range(4):
            A(f"s_add_u32 s{sTAG + k}, s{sG}, {5 * k}")
            A(f"s_and_b32 s{sTAG + k}, s{sTAG + k}, 15")
            A(f"s_mul_i32 s{sTAG + k}, s{sTAG + k}, 0x08002000")
            A(f"s_and_b32 s{sTAG + k}, s{sTAG + k}, 0x60006000")
        A(f"s_mov_b64 vcc, {sp(sODD)}")
        A("s_waitcnt lgkmcnt(0)")
        vNM, vRI = K + 16, K + 20
        self.row_stats(K, K + 4, K + 10, K + 11, K + 12, 2.0 ** 68)
        self.spread(K + 10, vNM, K + 24)
        Dd = K + 32
        for c in range(4):
            for r in range(4):
                A(f"v_dot2_f32_bf16 {v(Dd + 4 * c + r)}, {v(vX + 2 * r + (c >> 1))}, s{sSELHI if c & 1 else sSELLO}, {v(vNM + r)}")
        self.spread(K + 11, vRI, K + 24)
        Pk = K + 48
        for half in range(2):
            ks = range(4 * half, 4 * half + 4)
            for k in ks:
                A(f"v_cvt_pk_bf16_f32 {v(Pk + k)}, {v(Dd + 2 * k)}, {v(Dd + 2 * k + 1)}")
            for k in ks:
                A(f"v_lshlrev_b32 {v(Dd + 2 * k)}, 16, {v(Pk + k)}")
                A(f"v_and_b32 {v(Dd + 2 * k + 1)}, s{sMASK}, {v(Pk + k)}")
            for k in ks:
                A(f"v_pk_mul_f32 {v(Dd + 2 * k, 2)}, {v(Dd + 2 * k, 2)}, {v(vRI + 2 * (k & 1), 2)}")
            for k in ks:
                A(f"v_cvt_pk_bf16_f32 {v(vU + k)}, {v(Dd + 2 * k)}, {v(Dd + 2 * k + 1)}")
            for k in ks:
                A(f"v_and_or_b32 {v(Pk + k)}, {v(vU + k)}, {v(vFL)}, s{sTAG + (k & 3)}")
            if half == 0 and o.get("b1b", 1):
                A("s_barrier")
            A(f"global_store_dwordx4 {v(vREG)}, {v(Pk + 4 * half, 4)}, {sp(sWS)} offset:{-4096 + 4096 * half} sc1")
        self.stamp("x1st")
        A("s_waitcnt vmcnt(0)")
        self.stamp("x1dr")
        xl = [f"global_load_dwordx4 {v(vY, 4)}, {v(vAUX)}, {sp(sWS)} sc1",
              f"global_load_dwordx4 {v(vY + 4, 4)}, {v(vAUX + 1)}, {sp(sWS)} sc1"]
        for l in xl:
            A(l)
        A("s_barrier")
        A(f"s_mul_i32 s{sF}, s{sXCD}, 14")
        A(f"s_add_u32 s{sF}, s{sF}, s{sPOS}")
        A(f"s_bitcmp1_b32 s{sWAVE}, 0")
        A(f"s_cselect_b64 {sp(sWSEL)}, {sp(sWU)}, {sp(sWG)}")
        A(f"s_lshr_b32 s{sTMP + 1}, s{sWAVE}, 1")
        A(f"s_mul_i32 s{sTMP + 1}, s{sTMP + 1}, {256 * 3584}")
        A(f"s_lshl_b32 s{sTMP + 2}, s{sF}, 5")
        A(f"s_add_u32 s{sTMP + 1}, s{sTMP + 1}, s{sTMP + 2}")
        vWA = K + 8
        A(f"v_lshrrev_b32 {v(vWA)}, 1, {v(vLANE)}")
        A(f"v_mul_u32_u24 {v(vWA)}, {8 * 3584}, {v(vWA)}")
        A(f"v_lshl_add_u32 {v(vWA)}, {v(vT + 1)}, 4, {v(vWA)}")
        A(f"v_add_u32 {v(vWA)}, s{sTMP + 1}, {v(vWA)}")
        A(f"v_add_u32 {v(vWA + 2)}, {7 * 3584}, {v(vWA)}")
        A(f"v_add_u32 {v(vWA + 1)}, {4 * 3584}, {v(vWA)}")
        A(f"v_add_u32 {v(vWA)}, 3584, {v(vWA)}")
        A(f"s_lshl_b32 s{sTMP + 1}, s{sF}, 14")
        A(f"s_add_u32 s{sTMP + 1}, s{sTMP + 1}, 4096")
        A(f"v_lshl_add_u32 {v(vWA + 3)}, v0, 2, s{sTMP + 1}")
        A(f"v_add_u32 {v(vWA + 4)}, 8192, {v(vWA + 3)}")
        i2 = o.get("i2", 0)
        if i2:
            A(f"s_lshl_b32 s{sTMP}, s{sWAVE}, 11")
            A(f"s_add_u32 s{sTMP}, s{sTMP}, s{sOWN}")
            A(f"s_add_u32 s{sTMP}, s{sTMP}, {O_X2}")
            A(f"v_lshl_add_u32 {v(vWA + 5)}, {v(vLANE)}, 4, s{sTMP}")
            A(f"v_add_u32 {v(vWA + 6)}, {O_SLOT - 4096}, {v(vREG)}")
            A(f"s_lshl_b32 s{sTMP}, s{sL}, {KS}")
            A(f"s_add_u32 s{sTMP}, s{sTMP}, {W_KEY}")
            A(f"v_lshl_add_u32 {v(vWA + 7)}, {v(vLANE)}, 4, s{sTMP}")
            A(f"s_lshl_b32 s{sTMP}, s{sL}, 2")
            A(f"s_add_u32 s{sTMP}, s{sTMP}, s{sWAVE}")
            A(f"s_lshl_b32 s{sTMP}, s{sTMP}, 7")
            A(f"s_add_u32 s{sTMP}, s{sTMP}, {W_FLAG2}")
            A(f"v_lshl_add_u32 {v(vKEY)}, {v(vLANE)}, 4, s{sTMP}")
            A(f"s_lshr_b32 s{sTMP}, s{sL}, 6")
            A(f"s_lshl_b32 s{sTMP}, s{sTMP}, 7")
            A(f"s_add_u32 s{sTMP}, s{sTMP}, {W_FLAG2}")
            A(f"v_and_b32 {v(vFL)}, 0xfe, v0")
            A(f"v_lshl_add_u32 {v(vFL)}, {v(vFL)}, 9, s{sTMP}")
            for k in range(4):
                A(f"v_mov_b32 {v(K + 32 + k)}, -1")
        A(f"v_dot2_f32_bf16 {v(K + 4)}, {v(vONE)}, s{sONES}, 0")
        for k in range(1, 4):
            A(f"v_dot2_f32_bf16 {v(K + 4)}, {v(vONE + k)}, s{sONES}, {v(K + 4)}")
        A(f"v_mov_b32 {v(K + 5)}, {L_SUMW}")
        A(f"s_mov_b32 s{sRP0}, 0x05040100")
        A(f"s_mov_b32 s{sRP1}, 0x07060302")
        for sh in (8, 4, 2, 1):
            A(f"v_add_f32_dpp {v(K + 4)}, {v(K + 4)}, {v(K + 4)} row_ror:{sh} row_mask:0xf bank_mask:0xf")
        A(f"v_add_f32_dpp {v(K + 4)}, {v(K + 4)}, {v(K + 4)} row_bcast:15 row_mask:0xa bank_mask:0xf")
        A(f"v_add_f32_dpp {v(K + 4)}, {v(K + 4)}, {v(K + 4)} row_bcast:31 row_mask:0xc bank_mask:0xf")
        A("s_mov_b32 exec_lo, 0")
        A("s_brev_b32 exec_hi, 1")
        A(f"ds_write_b32 {v(K + 5)}, {v(K + 4)}")
        A("s_mov_b64 exec, -1")
        A("s_barrier")
        A("s_waitcnt vmcnt(0)")
        chk8 = [f"v_max3_u32 {v(vT + 6)}, {v(vY)}, {v(vY + 1)}, {v(vY + 2)}",
                f"v_max3_u32 {v(vT + 7)}, {v(vY + 3)}, {v(vY + 4)}, {v(vY + 5)}",
                f"v_max3_u32 {v(vT + 6)}, {v(vT + 6)}, {v(vY + 6)}, {v(vY + 7)}",
                f"v_max_u32 {v(vT + 6)}, {v(vT + 6)}, {v(vT + 7)}",
                f"v_cmp_eq_u32 vcc, -1, {v(vT + 6)}"]
        Z = K + 32
        tchk = [f"v_xor_b32 {v(Z + k)}, s{sTAG + (k & 3)}, {v(vY + k)}" for k in range(8)]
        tchk += [f"v_or3_b32 {v(vT + 6)}, {v(Z)}, {v(Z + 1)}, {v(Z + 2)}",
                 f"v_or3_b32 {v(vT + 7)}, {v(Z + 3)}, {v(Z + 4)}, {v(Z + 5)}",
                 f"v_or3_b32 {v(vT + 6)}, {v(vT + 6)}, {v(Z + 6)}, {v(Z + 7)}",
                 f"v_or_b32 {v(vT + 6)}, {v(vT + 6)}, {v(vT + 7)}",
                 f"v_and_b32 {v(vT + 6)}, 0x60006000, {v(vT + 6)}",
                 "s_nop 1",
                 f"v_or_b32_dpp {v(vT + 6)}, {v(vT + 6)}, {v(vT + 6)} quad_perm:[1,0,3,2] row_mask:0xf bank_mask:0xf",
                 f"v_cmp_ne_u32 vcc, 0, {v(vT + 6)}"]
        self.poll("x1", xl, tchk)
        self.stamp("x1ld")
        A(f"ds_write2st64_b64 {v(vUW)}, {v(Z, 2)}, {v(Z + 2, 2)} offset0:0 offset1:9")
        A(f"ds_write2st64_b64 {v(vUW)}, {v(Z + 4, 2)}, {v(Z + 6, 2)} offset0:4 offset1:13")
        A("s_waitcnt lgkmcnt(0)")
        A("s_barrier")

        fl2 = [f"global_load_dword {v(vT + 4)}, {v(vFL)}, {sp(sWS)} sc1",
               f"global_load_dword {v(vT + 5)}, {v(vFL)}, {sp(sWS)} offset:512 sc1"]
        wl = [f"global_load_dwordx4 {v(vWG + 4 * k, 4)}, {v(vWA + k // 3)}, {sp(sWSEL)} offset:{(k % 3 - 1) * 3584}" for k in range(8)]
        wl += [f"global_load_dword {v(vWD + k)}, {v(vWA + 3 + (k >> 3))}, {sp(sWD)} offset:{((k & 7) - 4) * 1024}" for k in range(16)]
        flst = ["s_mov_b64 exec, 0xff",
                f"global_store_dwordx4 {v(vKEY)}, {v(K + 28, 4)}, {sp(sWS)} sc1",
                "s_mov_b64 exec, -1"]
        if i2:
            ones = v(K + 32, 4)
            A(f"s_cmp_eq_u32 s{sWAVE}, 0")
            A(f"s_cselect_b64 exec, {(1 << ((1 << KS) // 16)) - 1}, 0")
            A(f"global_store_dwordx4 {v(vWA + 7)}, {ones}, {sp(sWS)} sc1")
            A("s_mov_b64 exec, -1")
            A(f"global_store_dwordx4 {v(vWA + 5)}, {ones}, {sp(sWS)} sc1")
            A(f"global_store_dwordx4 {v(vWA + 5)}, {ones}, {sp(sWS)} offset:1024 sc1")
            A(f"global_store_dwordx4 {v(vWA + 6)}, {ones}, {sp(sWS)} sc1")
        if i2 == 1:
            A("s_waitcnt vmcnt(0)")
            for l in flst:
                A(l)
            self.stamp("init2")
        A(f"s_cmp_lt_u32 s{sPOS}, 14")
        A("s_cbranch_scc0 L_now")
        for k, l in enumerate(wl):
            A(l)
            if i2 == 2 and k == 3:
                A("s_waitcnt vmcnt(4)")
                for l2 in flst:
                    A(l2)
        self.stamp("wq2")
        if i2 == 2:
            A("s_branch L_now2")
        A("L_now:")
        if i2 == 2:
            A("s_waitcnt vmcnt(0)")
            for l in flst:
                A(l)
            A("L_now2:")
        A(f"v_and_b32 {v(vT + 3)}, 0xfe, v0")
        A(f"v_mul_u32_u24 {v(vAUX)}, {RS}, {v(vT + 3)}")
        A(f"v_lshl_add_u32 {v(vAUX)}, {v(vT + 1)}, 4, {v(vAUX)}")
        A(f"s_lshl_b32 s{sTMP}, s{sL}, 5")
        A(f"s_add_u32 s{sTMP}, s{sTMP}, {W_REG + O_X2}")
        A(f"v_add_u32 {v(vAUX)}, s{sTMP}, {v(vAUX)}")
        A(f"v_add_u32 {v(vAUX + 1)}, {RS}, {v(vAUX)}")
        Tt, Xf = K + 40, K + 56
        Df = K + 72
        for k in range(8):
            A(f"v_lshlrev_b32 {v(Tt + 2 * k)}, 16, {v(vU + k)}")
            A(f"v_and_b32 {v(Tt + 2 * k + 1)}, s{sMASK}, {v(vU + k)}")
        A(f"v_lshlrev_b32 {v(Df)}, 16, {v(vD)}")
        A(f"v_and_b32 {v(Df + 1)}, s{sMASK}, {v(vD)}")
        A(f"v_lshlrev_b32 {v(Df + 2)}, 16, {v(vD + 1)}")
        A(f"v_and_b32 {v(Df + 3)}, s{sMASK}, {v(vD + 1)}")
        for k in range(4):
            A(f"v_mul_f32 {v(Df + k)}, {hex(f2u(2.0 ** 68))}, {v(Df + k)}")
        for k in range(8):
            c = k >> 1
            sel = "op_sel:[1,0] op_sel_hi:[1,1]" if c & 1 else "op_sel_hi:[0,1]"
            A(f"v_pk_mul_f32 {v(Tt + 2 * k, 2)}, {v(Df + (c & 2), 2)}, {v(Tt + 2 * k, 2)} {sel}")
        for k in range(8):
            A(f"v_cvt_pk_bf16_f32 {v(Xf + k)}, {v(Tt + 2 * k)}, {v(Tt + 2 * k + 1)}")
        for k in range(8):
            A(f"v_lshlrev_b32 {v(Tt + 2 * k)}, 16, {v(Xf + k)}")
            A(f"v_and_b32 {v(Tt + 2 * k + 1)}, s{sMASK}, {v(Xf + k)}")
        for r in range(4):
            for c in range(4):
                src = v(vX + 2 * r + (c >> 1))
                if c & 1:
                    A(f"v_and_b32 {v(Xf + 4 * c + r)}, s{sMASK}, {src}")
                else:
                    A(f"v_lshlrev_b32 {v(Xf + 4 * c + r)}, 16, {src}")
        self.stamp("shadow")
        A("s_barrier")
        if i2:
            for l in fl2:
                A(l)
            A("s_waitcnt vmcnt(0)")
            self.poll("flag2", fl2, flchk)
            self.stamp("flag2")
        A("s_barrier")
        self.stamp("b4b")
        for l in xl:
            A(l)
        A("s_waitcnt vmcnt(0)")
        self.poll("x2", xl, chk8)
        self.stamp("x2ld")

        for k in range(8):
            A(f"v_dot2_f32_bf16 {v(Tt + 2 * k)}, {v(vY + k)}, s{sSELLO}, {v(Tt + 2 * k)}")
            A(f"v_dot2_f32_bf16 {v(Tt + 2 * k + 1)}, {v(vY + k)}, s{sSELHI}, {v(Tt + 2 * k + 1)}")
        for k in range(8):
            A(f"v_cvt_pk_bf16_f32 {v(vY + k)}, {v(Tt + 2 * k)}, {v(Tt + 2 * k + 1)}")
        for k in range(8):
            A(f"v_dot2_f32_bf16 {v(Xf + 2 * k)}, {v(vY + k)}, s{sSELLO}, {v(Xf + 2 * k)}")
            A(f"v_dot2_f32_bf16 {v(Xf + 2 * k + 1)}, {v(vY + k)}, s{sSELHI}, {v(Xf + 2 * k + 1)}")
        vH = vX
        for cp in range(2):
            for r in range(4):
                A(f"v_cvt_pk_bf16_f32 {v(vH + 2 * r + cp)}, {v(Xf + 8 * cp + r)}, {v(Xf + 8 * cp + 4 + r)}")
        Rr = [K + 8 + i for i in range(4)]
        for cp in range(2):
            for r in range(4):
                A(f"v_dot2_f32_bf16 {v(V[r])}, {v(vH + 2 * r + cp)}, s{sONES}, {v(V[r]) if cp else 0}")
            for r in range(4):
                A(f"v_dot2_f32_bf16 {v(V[4 + r])}, {v(vH + 2 * r + cp)}, {v(vH + 2 * r + cp)}, {v(V[4 + r]) if cp else 0}")
            for r in range(4):
                A(f"v_dot2_f32_bf16 {v(Rr[r])}, {v(vH + 2 * r + cp)}, {v(vWR + cp)}, {v(Rr[r]) if cp else 0}")
        for i in range(4):
            A(f"v_add_f32_dpp {v(V[i])}, {v(V[i])}, {v(V[i])} row_ror:8 row_mask:0xf bank_mask:0x3")
        for i in range(4):
            A(f"v_add_f32_dpp {v(V[i])}, {v(V[i + 4])}, {v(V[i + 4])} row_ror:8 row_mask:0xf bank_mask:0xc")
        for i in range(2):
            A(f"v_add_f32_dpp {v(Rr[i])}, {v(Rr[i])}, {v(Rr[i])} row_shl:4 row_mask:0xf bank_mask:0x5")
        for i in range(2):
            A(f"v_add_f32_dpp {v(Rr[i])}, {v(Rr[i + 2])}, {v(Rr[i + 2])} row_shr:4 row_mask:0xf bank_mask:0xa")
        for i in range(2):
            A(f"v_add_f32_dpp {v(V[i])}, {v(V[i])}, {v(V[i])} row_shl:4 row_mask:0xf bank_mask:0x5")
        for i in range(2):
            A(f"v_add_f32_dpp {v(V[i])}, {v(V[i + 2])}, {v(V[i + 2])} row_shr:4 row_mask:0xf bank_mask:0xa")
        A(f"v_permlane32_swap_b32 {v(Rr[0])}, {v(Rr[1])}")
        A(f"v_and_b32 {v(K + 13)}, 0xffffff7f, {v(vSW)}")
        A(f"v_permlane32_swap_b32 {v(V[0])}, {v(V[1])}")
        A(f"v_add_f32 {v(Rr[0])}, {v(Rr[0])}, {v(Rr[1])}")
        A(f"v_add_f32 {v(V[0])}, {v(V[0])}, {v(V[1])}")
        A(f"s_mov_b64 vcc, {sp(sODD)}")
        A(f"v_add_f32_dpp {v(Rr[0])}, {v(Rr[0])}, {v(Rr[0])} row_ror:8 row_mask:0xf bank_mask:0xf")
        A(f"v_add_f32_dpp {v(V[0])}, {v(V[0])}, {v(V[0])} quad_perm:[2,3,0,1] row_mask:0xf bank_mask:0xf")
        A(f"v_mov_b32 {v(V[1])}, {v(V[0])}")
        A(f"v_add_f32_dpp {v(Rr[0])}, {v(Rr[0])}, {v(Rr[0])} quad_perm:[2,3,0,1] row_mask:0xf bank_mask:0xf")
        A(f"v_mov_b32 {v(Rr[1])}, {v(Rr[0])}")
        A(f"v_permlane16_swap_b32 {v(V[0])}, {v(V[1])}")
        A(f"v_add_f32 {v(V[0])}, {v(V[0])}, {v(V[1])}")
        A(f"v_permlane16_swap_b32 {v(Rr[0])}, {v(Rr[1])}")
        A(f"v_add_f32 {v(Rr[0])}, {v(Rr[0])}, {v(Rr[1])}")
        A(f"ds_write_b32 {v(vSW)}, {v(V[0])} offset:{L_RED2 - L_RED1}")
        A(f"ds_write_b32 {v(K + 13)}, {v(Rr[0])} offset:{L_RED2 - L_RED1 + 256}")
        A("s_waitcnt lgkmcnt(0)")
        A("s_barrier")
        self.stamp("b5")
        Hf, Dd = Xf, Tt
        self.key_calc(K, vRA, vLANE)
        self.spread(K + 12, vNM, K + 24)
        A(f"v_readfirstlane_b32 s{sBEST}, {v(K + 8)}")
        for r in range(4):
            for cp in range(2):
                A(f"v_lshlrev_b32 {v(Hf + 4 * r + 2 * cp)}, 16, {v(vH + 2 * r + cp)}")
                A(f"v_and_b32 {v(Hf + 4 * r + 2 * cp + 1)}, s{sMASK}, {v(vH + 2 * r + cp)}")
        self.spread(K + 13, vRI, K + 24)
        for k in range(8):
            r = k >> 1
            sel = "op_sel:[1,0] op_sel_hi:[1,1]" if r & 1 else "op_sel_hi:[0,1]"
            A(f"v_pk_add_f32 {v(Dd + 2 * k, 2)}, {v(vNM + (r & 2), 2)}, {v(Hf + 2 * k, 2)} {sel}")
        vX2 = vU
        for k in range(8):
            A(f"v_cvt_pk_bf16_f32 {v(vX2 + k)}, {v(Dd + 2 * k)}, {v(Dd + 2 * k + 1)}")
        for k in range(8):
            A(f"v_lshlrev_b32 {v(Dd + 2 * k)}, 16, {v(vX2 + k)}")
            A(f"v_and_b32 {v(Dd + 2 * k + 1)}, s{sMASK}, {v(vX2 + k)}")
        for k in range(8):
            r = k >> 1
            sel = "op_sel:[1,0] op_sel_hi:[1,1]" if r & 1 else "op_sel_hi:[0,1]"
            A(f"v_pk_mul_f32 {v(Dd + 2 * k, 2)}, {v(vRI + (r & 2), 2)}, {v(Dd + 2 * k, 2)} {sel}")
        for k in range(8):
            A(f"v_cvt_pk_bf16_f32 {v(vX2 + k)}, {v(Dd + 2 * k)}, {v(Dd + 2 * k + 1)}")
        A(f"s_andn2_b32 s{sTMP}, 7, s{sBEST}")
        A(f"s_and_b32 s{sTMP + 1}, s{sTMP}, 3")
        A(f"s_lshl_b32 s{sTMP + 2}, s{sTMP + 1}, 1")
        A(f"s_not_b64 {sp(sE)}, {sp(sODD)}")
        A(f"s_cmp_ge_u32 s{sTMP}, 4")
        A(f"s_cselect_b64 {sp(sE)}, {sp(sODD)}, {sp(sE)}")
        vC = K + 24
        A(f"s_set_gpr_idx_on s{sTMP + 2}, gpr_idx(SRC0)")
        A(f"v_mov_b32 {v(vC)}, {v(vX2)}")
        A(f"v_mov_b32 {v(vC + 1)}, {v(vX2 + 1)}")
        A(f"v_mov_b32 {v(vC + 2)}, {v(vH)}")
        A(f"v_mov_b32 {v(vC + 3)}, {v(vH + 1)}")
        A("s_set_gpr_idx_off")
        A(f"s_add_u32 s{sTMP + 3}, s{sOWN}, {O_SLOT}")
        A(f"v_add_u32 {v(vT)}, s{sTMP + 3}, {v(vT + 2)}")
        A(f"s_mov_b64 exec, {sp(sE)}")
        A(f"global_store_dwordx2 {v(vT)}, {v(vC, 2)}, {sp(sWS)} sc1")
        A(f"global_store_dwordx2 {v(vT)}, {v(vC + 2, 2)}, {sp(sWS)} offset:1024 sc1")
        A("s_mov_b64 exec, -1")
        self.stamp("slot")
        for k in range(8):
            A(f"v_dot2_f32_bf16 {v(Hf + 2 * k)}, {v(vX2 + k)}, s{sSELLO}, {v(Hf + 2 * k)}")
            A(f"v_dot2_f32_bf16 {v(Hf + 2 * k + 1)}, {v(vX2 + k)}, s{sSELHI}, {v(Hf + 2 * k + 1)}")
        vO = vD - 8 if o.get('olate', 0) else vY
        A(f"v_mov_b32 {v(vT + 4)}, {L_REDK}")
        for k in range(8):
            A(f"v_cvt_pk_bf16_f32 {v(vO + k)}, {v(Hf + 2 * k)}, {v(Hf + 2 * k + 1)}")
        osc = " sc1" if o.get("outsc", 1) == 1 else (" nt" if o.get("outsc", 1) == 2 else "")
        olate = o.get("olate", 0)
        if not olate:
            for r in range(4):
                A(f"s_cmp_eq_u32 s{sTMP + 1}, {r}")
                A(f"s_cselect_b64 vcc, {sp(sE)}, 0")
                A("s_not_b64 exec, vcc")
                A(f"global_store_dwordx2 {v(vRD)}, {v(vO + 2 * r, 2)}, {sp(sOUT)} offset:{1024 * r}{osc}")
            A("s_mov_b64 exec, -1")
            A(f"s_set_gpr_idx_on s{sTMP + 2}, gpr_idx(SRC0)")
            A(f"v_mov_b32 {v(vC + 4)}, {v(vO)}")
            A(f"v_mov_b32 {v(vC + 5)}, {v(vO + 1)}")
            A("s_set_gpr_idx_off")
            A(f"s_lshl_b32 s{sTMP + 1}, s{sTMP + 1}, 10")
            A(f"v_add_u32 {v(vRD)}, s{sTMP + 1}, {v(vRD)}")
        else:
            A(f"s_mov_b32 s{sCAND}, s{sTMP + 1}")
        A(f"s_lshr_b32 s{sTMP}, s{sWAVE}, 1")
        A(f"s_lshl_b32 s{sTMP}, s{sTMP}, 9")
        A(f"s_add_u32 s{sTMP}, s{sTMP}, {W_REG + O_SLOT}")
        A(f"v_lshrrev_b32 {v(vT)}, 1, {v(vLANE)}")
        A(f"v_lshl_add_u32 {v(vT)}, {v(vT)}, 4, s{sTMP}")
        A(f"v_lshlrev_b32 {v(vT + 1)}, 6, {v(vT + 1)}")
        A(f"v_and_b32 {v(vT + 2)}, 12, {v(vLANE)}")
        A(f"v_lshl_add_u32 {v(vT + 1)}, {v(vT + 2)}, 2, {v(vT + 1)}")
        A(f"v_lshrrev_b32 {v(vT + 2)}, 5, {v(vLANE)}")
        A(f"v_lshl_add_u32 {v(vT + 1)}, {v(vT + 2)}, 3, {v(vT + 1)}")
        A(f"s_and_b32 s{sTMP}, s{sWAVE}, 1")
        A(f"s_lshl_b32 s{sTMP}, s{sTMP}, 7")
        A(f"s_lshr_b32 s{sTMP + 1}, s{sWAVE}, 1")
        A(f"s_lshl_b32 s{sTMP + 1}, s{sTMP + 1}, 2")
        A(f"s_add_u32 s{sTMP}, s{sTMP}, s{sTMP + 1}")
        A(f"s_add_u32 s{sTMP}, s{sTMP}, {L_REDF}")
        A(f"v_add_u32 {v(vT + 1)}, s{sTMP}, {v(vT + 1)}")
        A(f"v_and_b32 {v(vT + 2)}, 15, {v(vLANE)}")
        A(f"v_lshlrev_b32 {v(vT + 2)}, 3, {v(vT + 2)}")
        A(f"v_add_u32 {v(vT + 2)}, {L_REDF}, {v(vT + 2)}")
        A(f"s_add_u32 s{sTMP}, s{sOWN}, {O_PART}")
        A(f"v_lshl_add_u32 {v(vT + 3)}, v0, 3, s{sTMP}")
        WGp = K + 80
        for kp in range(4):
            for d in range(4):
                lo, hi = vWG + 8 * kp + d, vWG + 8 * kp + 4 + d
                A(f"v_perm_b32 {v(WGp + 8 * kp + 2 * d)}, {v(hi)}, {v(lo)}, s{sRP0}")
                A(f"v_perm_b32 {v(WGp + 8 * kp + 2 * d + 1)}, {v(hi)}, {v(lo)}, s{sRP1}")
        WDp = vWG
        for kp in range(8):
            lo, hi = vWD + 2 * kp, vWD + 2 * kp + 1
            A(f"v_perm_b32 {v(WDp + 2 * kp)}, {v(hi)}, {v(lo)}, s{sRP0}")
            A(f"v_perm_b32 {v(WDp + 2 * kp + 1)}, {v(hi)}, {v(lo)}, s{sRP1}")
        self.stamp("outst")
        A("s_barrier")
        A(f"ds_read_b32 {v(K)}, {v(vT + 4)}")
        A("s_waitcnt lgkmcnt(0)")
        A(f"v_readfirstlane_b32 s{sWIN}, {v(K)}")
        A(f"s_andn2_b32 s{sT0}, 2047, s{sWIN}")
        A(f"s_lshr_b32 s{sT1}, s{sT0}, 3")
        A(f"s_mul_i32 s{sT1}, s{sT1}, {RS}")
        A(f"s_cmp_lt_u32 s{sPOS}, 14")
        A("s_cbranch_scc0 L_noffn")
        A(f"v_add_u32 {v(vT)}, s{sT1}, {v(vT)}")
        sl = [f"global_load_dwordx4 {v(K, 4)}, {v(vT)}, {sp(sWS)} sc1"]
        A(sl[0])
        self.stamp("win")
        A("s_waitcnt vmcnt(0)")
        self.poll("sel", sl, [f"v_max3_u32 {v(vT + 6)}, {v(K)}, {v(K + 1)}, {v(K + 2)}",
                              f"v_max_u32 {v(vT + 6)}, {v(vT + 6)}, {v(K + 3)}",
                              f"v_cmp_eq_u32 vcc, -1, {v(vT + 6)}"])
        self.stamp("sel")
        V2 = [K + 8 + i for i in range(8)]
        for kp in range(4):
            for c in range(8):
                A(f"v_dot2_f32_bf16 {v(V2[c])}, {v(K + kp)}, {v(WGp + 8 * kp + c)}, {v(V2[c]) if kp else 0}")
        self.reduce8(V2, K + 16)
        A(f"ds_write_b32 {v(vT + 1)}, {v(V2[0])}")
        A("s_waitcnt lgkmcnt(0)")
        A("s_barrier")
        A(f"ds_read_b64 {v(K, 2)}, {v(vT + 2)}")
        A(f"ds_read_b64 {v(K + 2, 2)}, {v(vT + 2)} offset:128")
        A("s_waitcnt lgkmcnt(0)")
        A(f"v_add_f32 {v(K)}, {v(K)}, {v(K + 1)}")
        A(f"v_add_f32 {v(K + 2)}, {v(K + 2)}, {v(K + 3)}")
        A(f"v_cvt_pk_bf16_f32 {v(K + 1)}, {v(K)}, {v(K + 2)}")
        A(f"v_lshlrev_b32 {v(K)}, 16, {v(K + 1)}")
        A(f"v_mul_f32 {v(K + 3)}, {hex(f2u(-L2E))}, {v(K)}")
        A(f"v_exp_f32 {v(K + 3)}, {v(K + 3)}")
        A(f"v_and_b32 {v(K + 2)}, s{sMASK}, {v(K + 1)}")
        A(f"v_add_f32 {v(K + 3)}, 1.0, {v(K + 3)}")
        A(f"v_rcp_f32 {v(K + 3)}, {v(K + 3)}")
        A(f"v_mul_f32 {v(K)}, {v(K)}, {v(K + 3)}")
        A(f"v_cvt_pk_bf16_f32 {v(K)}, {v(K)}, {v(K)}")
        A(f"v_and_b32 {v(K)}, s{sMASK}, {v(K)}")
        A(f"v_mul_f32 {v(K)}, {v(K)}, {v(K + 2)}")
        A(f"v_mov_b32_dpp {v(K + 1)}, {v(K)} quad_perm:[1,1,3,3] row_mask:0xf bank_mask:0xf")
        A(f"v_cvt_pk_bf16_f32 {v(K)}, {v(K)}, {v(K + 1)}")
        for kp in range(8):
            A(f"v_readlane_b32 s{sH + kp}, {v(K)}, {2 * kp}")
        for kp in range(8):
            for c in range(2):
                A(f"v_dot2_f32_bf16 {v(K + 4 + c)}, s{sH + kp}, {v(WDp + 2 * kp + c)}, {v(K + 4 + c) if kp else 0}")
        A(f"global_store_dwordx2 {v(vT + 3)}, {v(K + 4, 2)}, {sp(sWS)} sc1")
        self.stamp("part")
        if olate:
            held = [f"s_cmp_eq_u32 s{sWIN}, s{sBEST}",
                    f"s_cselect_b32 s{sCAND}, s{sCAND}, 8"]
            for r in range(4):
                held += [f"s_cmp_eq_u32 s{sCAND}, {r}",
                         f"s_cselect_b64 vcc, {sp(sE)}, 0",
                         "s_not_b64 exec, vcc",
                         f"global_store_dwordx2 {v(vRD)}, {v(vO + 2 * r, 2)}, {sp(sOUT)} offset:{1024 * r}{osc}"]
        else:
            held = [f"s_cmp_eq_u32 s{sWIN}, s{sBEST}",
                    f"s_cselect_b64 exec, 0, {sp(sE)}",
                    f"global_store_dwordx2 {v(vRD)}, {v(vC + 4, 2)}, {sp(sOUT)}{osc}"]
        held += ["s_mov_b64 exec, -1"]
        gen_st = [f"s_lshl_b32 s{sTMP}, s{sL}, 2",
                  f"s_add_u32 s{sTMP}, s{sTMP}, s{sWAVE}",
                  f"s_cmp_eq_u32 s{sTMP}, 3",
                  "s_cselect_b64 exec, 1, 0",
                  f"v_mov_b32 {v(vT + 4)}, s{sG}",
                  f"v_mov_b32 {v(vT + 5)}, 0",
                  f"global_store_dword {v(vT + 5)}, {v(vT + 4)}, {sp(sWS)} sc1"]
        T = self.tail
        T("L_noffn:")
        for l in held + gen_st:
            T(l)
        T("s_branch L_fin")
        A(f"s_cmp_lt_u32 s{sPOS}, 8")
        A("s_cbranch_scc0 L_noffn")
        A(f"s_cmp_lt_u32 s{sWAVE}, 2")
        A("s_cbranch_scc0 L_noffn")
        if not olate:
            for l in held:
                A(l)
        A(f"s_lshl_b32 s{sTMP}, s{sXCD}, 3")
        A(f"s_add_u32 s{sTMP}, s{sTMP}, s{sPOS}")
        A(f"s_lshl_b32 s{sTMP}, s{sTMP}, 1")
        A(f"s_add_u32 s{sTMP}, s{sTMP}, s{sWAVE}")
        A(f"v_lshrrev_b32 {v(vT)}, 5, {v(vLANE)}")
        A(f"v_bfe_u32 {v(vT + 1)}, {v(vLANE)}, 4, 1")
        A(f"v_lshl_add_u32 {v(vT)}, {v(vT + 1)}, 1, {v(vT)}")
        A(f"s_lshl_b32 s{sTMP + 1}, s{sTMP}, 3")
        A(f"v_lshl_add_u32 {v(vT)}, {v(vT)}, 1, s{sTMP + 1}")
        A(f"s_add_u32 s{sT1}, s{sT1}, {W_REG + O_SLOT}")
        A(f"v_add_u32 {v(vT + 1)}, s{sT1}, {v(vT)}")
        xh = [f"global_load_ushort {v(K + 20)}, {v(vT + 1)}, {sp(sWS)} sc1",
              f"global_load_ushort {v(K + 21)}, {v(vT + 1)}, {sp(sWS)} offset:1024 sc1"]
        for l in xh:
            A(l)
        A(f"s_lshl_b32 s{sTMP + 1}, s{sT0}, 10")
        A(f"v_add_u32 {v(vT)}, s{sTMP + 1}, {v(vT)}")
        A(f"v_min_u32 {v(vT + 2)}, 55, {v(vLANE)}")
        A(f"v_mul_u32_u24 {v(vT + 3)}, 4682, {v(vT + 2)}")
        A(f"v_lshrrev_b32 {v(vT + 3)}, 16, {v(vT + 3)}")
        A(f"v_mad_u32_u24 {v(vT + 2)}, {v(vT + 3)}, 18, {v(vT + 2)}")
        A(f"v_mul_u32_u24 {v(vT + 2)}, {RS}, {v(vT + 2)}")
        A(f"s_lshl_b32 s{sTMP + 1}, s{sTMP}, 4")
        A(f"s_add_u32 s{sTMP + 1}, s{sTMP + 1}, {W_REG + O_PART}")
        A(f"v_add_u32 {v(vT + 2)}, s{sTMP + 1}, {v(vT + 2)}")
        A(f"v_add_u32 {v(vT + 3)}, {128 * RS}, {v(vT + 2)}")
        A(f"s_ashr_i32 s{sTMP + 2}, s{sWIN}, 31")
        A(f"s_not_b32 s{sTMP + 2}, s{sTMP + 2}")
        A(f"s_or_b32 s{sTMP + 2}, s{sTMP + 2}, 0x80000000")
        A(f"s_xor_b32 s{sTMP + 2}, s{sTMP + 2}, s{sWIN}")
        A(f"s_and_b32 s{sTMP + 2}, s{sTMP + 2}, 0xfffff800")
        A(f"s_or_b32 s{sTMP + 2}, s{sTMP + 2}, 0x400")
        A(f"v_cvt_pk_bf16_f32 {v(K + 22)}, s{sTMP + 2}, s{sTMP + 2}")
        A(f"v_and_b32 {v(K + 22)}, s{sMASK}, {v(K + 22)}")
        A(f"v_mul_f32 {v(K + 22)}, {hex(f2u(-L2E))}, {v(K + 22)}")
        A(f"v_exp_f32 {v(K + 22)}, {v(K + 22)}")
        A(f"v_add_f32 {v(K + 22)}, 1.0, {v(K + 22)}")
        A(f"v_rcp_f32 {v(K + 22)}, {v(K + 22)}")
        A(f"v_cvt_pk_bf16_f32 {v(K + 22)}, {v(K + 22)}, {v(K + 22)}")
        A(f"v_and_b32 {v(K + 22)}, s{sMASK}, {v(K + 22)}")
        A("s_waitcnt vmcnt(0)")
        self.stamp("partdr")
        pl = [f"global_load_dwordx4 {v(vY, 4)}, {v(vT + 2)}, {sp(sWS)} sc1",
              f"global_load_dwordx4 {v(vY + 4, 4)}, {v(vT + 3)}, {sp(sWS)} sc1"]
        for l in pl:
            A(l)
        if olate:
            for l in held:
                A(l)
        self.poll("xh", xh, [f"v_max_u32 {v(vT + 6)}, {v(K + 20)}, {v(K + 21)}",
                             f"v_cmp_eq_u32 vcc, 0xffff, {v(vT + 6)}"])
        A(f"v_lshlrev_b32 {v(K + 20)}, 16, {v(K + 20)}")
        A(f"v_lshlrev_b32 {v(K + 21)}, 16, {v(K + 21)}")
        A(f"s_waitcnt vmcnt({4 if olate else 0})")
        self.poll("part", pl, chk8)
        self.stamp("partld")
        A(f"v_cmp_gt_u32 vcc, 56, {v(vLANE)}")
        A(f"v_pk_add_f32 {v(vY, 2)}, {v(vY, 2)}, {v(vY + 4, 2)}")
        A(f"v_pk_add_f32 {v(vY + 2, 2)}, {v(vY + 2, 2)}, {v(vY + 6, 2)}")
        for c in range(4):
            A(f"v_cndmask_b32 {v(vY + c)}, 0, {v(vY + c)}, vcc")
        A(f"v_permlane32_swap_b32 {v(vY)}, {v(vY + 1)}")
        A(f"v_permlane32_swap_b32 {v(vY + 2)}, {v(vY + 3)}")
        A(f"v_add_f32 {v(vY)}, {v(vY)}, {v(vY + 1)}")
        A(f"v_add_f32 {v(vY + 2)}, {v(vY + 2)}, {v(vY + 3)}")
        A(f"v_permlane16_swap_b32 {v(vY)}, {v(vY + 2)}")
        A(f"v_add_f32 {v(vY)}, {v(vY)}, {v(vY + 2)}")
        for sh in (8, 4, 2, 1):
            A(f"v_add_f32_dpp {v(vY)}, {v(vY)}, {v(vY)} row_ror:{sh} row_mask:0xf bank_mask:0xf")
        y = vY
        A(f"v_cvt_pk_bf16_f32 {v(y)}, {v(y)}, {v(y)}")
        A(f"v_and_b32 {v(y)}, s{sMASK}, {v(y)}")
        A(f"v_mul_f32 {v(y)}, {v(y)}, {v(K + 22)}")
        A(f"v_cvt_pk_bf16_f32 {v(y)}, {v(y)}, {v(y)}")
        A(f"v_and_b32 {v(y)}, s{sMASK}, {v(y)}")
        A(f"v_add_f32 {v(y)}, {v(y)}, {v(K + 20)}")
        A(f"v_cvt_pk_bf16_f32 {v(y)}, {v(y)}, {v(y)}")
        A(f"v_and_b32 {v(y)}, s{sMASK}, {v(y)}")
        A(f"v_add_f32 {v(y)}, {v(y)}, {v(K + 21)}")
        A(f"v_cvt_pk_bf16_f32 {v(y)}, {v(y)}, {v(y)}")
        A("s_mov_b32 exec_lo, 0x00010001")
        A("s_mov_b32 exec_hi, 0x00010001")
        A(f"global_store_short {v(vT)}, {v(y)}, {sp(sOUT)}")
        A("L_fin:")
        self.finish("R")

    def chans(self):
        A = self.A
        o = self.o
        vLANE = 1
        vAA, vBA, vEW, vER, vRA = 4, 12, 13, 14, 15
        vKA0, vKA1, vKB, vPW0, vPW1 = 16, 17, 18, 19, 20
        vP = 24
        vT = 28
        vACC = 40
        vA0, vA1, vB0, vB1 = 72, 104, 136, 168
        K = 72
        A("L_chan:")
        A("v_and_b32 v0, 0xff, v0")
        A(f"s_sub_u32 s{sWAVE}, s{sWAVE}, 4")
        A(f"s_lshl_b32 s{sT0}, s{sL}, 9")
        A(f"v_lshl_add_u32 {v(vT)}, v0, 1, s{sT0}")
        A(f"s_lshl_b32 s{sT1}, s{sL}, 2")
        A("s_waitcnt lgkmcnt(0)")
        self.stamp("karg")
        for k, s in enumerate((sLA, sAI, sCR, sCI)):
            A(f"global_load_ushort {v(vP + k)}, {v(vT)}, {sp(s)}{' nt' if o.get('ntx', 1) else ''}")
        A(f"s_load_dword s{sDT}, {sp(sLDT)}, s{sT1}")
        ntlb = 0
        if o.get("tlb", 0):
            A("v_mov_b32 v2, 0")
            A("s_mov_b64 exec, 1")
            for sb in (sWG, sWU, sWD, sOUT):
                A(f"global_load_dword v3, v2, {sp(sb)}")
                ntlb += 1
            A("s_mov_b64 exec, -1")
        vJ, vGq = vT + 4, vT + 5
        A(f"v_and_b32 {v(vJ)}, 15, {v(vLANE)}")
        A(f"v_lshrrev_b32 {v(vGq)}, 4, {v(vLANE)}")
        A(f"s_lshr_b32 s{sT0}, s{sWAVE}, 1")
        A(f"s_and_b32 s{sT1}, s{sWAVE}, 1")
        A(f"v_and_b32 {v(vT)}, 7, {v(vLANE)}")
        A(f"v_lshlrev_b32 {v(vRA)}, 4, {v(vT)}")
        A(f"v_add_u32 {v(vRA)}, {L_RED1}, {v(vRA)}")
        A(f"s_mul_i32 s{sTMP}, s{sT0}, {PC}")
        A(f"s_lshl_b32 s{sTMP + 1}, s{sT1}, 7")
        A(f"s_add_u32 s{sTMP}, s{sTMP}, s{sTMP + 1}")
        A(f"s_add_u32 s{sTMP}, s{sTMP}, {L_P + 4 * 26}")
        A(f"v_lshlrev_b32 {v(vT)}, 3, {v(vGq)}")
        A(f"v_sub_u32 {v(vT)}, {v(vJ)}, {v(vT)}")
        A(f"v_lshl_add_u32 {v(vAA)}, {v(vT)}, 2, s{sTMP}")
        for m in range(1, 8):
            A(f"v_add_u32 {v(vAA + m)}, {1024 * m}, {v(vAA)}")
        A(f"s_mul_i32 s{sTMP}, s{sT0}, {UC}")
        A(f"s_lshl_b32 s{sTMP + 1}, s{sT1}, 6")
        A(f"s_sub_u32 s{sTMP}, s{sTMP}, s{sTMP + 1}")
        A(f"s_add_u32 s{sTMP}, s{sTMP}, {L_U + 64}")
        A(f"v_lshl_add_u32 {v(vT)}, {v(vJ)}, 1, {v(vGq)}")
        A(f"v_lshl_add_u32 {v(vBA)}, {v(vT)}, 4, s{sTMP}")
        A(f"v_lshl_add_u32 {v(vT)}, {v(vJ)}, 2, {v(vGq)}")
        A(f"v_lshrrev_b32 {v(vT + 1)}, 3, {v(vT)}")
        A(f"v_add_u32 {v(vT)}, {v(vT)}, {v(vT + 1)}")
        A(f"s_mul_i32 s{sTMP}, s{sWAVE}, {8 * TBS}")
        A(f"v_lshl_add_u32 {v(vEW)}, {v(vT)}, 4, s{sTMP}")
        A(f"v_lshrrev_b32 {v(vT + 1)}, 3, {v(vLANE)}")
        A(f"v_add_u32 {v(vT)}, {v(vLANE)}, {v(vT + 1)}")
        A(f"s_mul_i32 s{sTMP}, s{sWAVE}, {2 * TBS}")
        A(f"v_lshl_add_u32 {v(vER)}, {v(vT)}, 4, s{sTMP}")
        KS = o.get("ks", 5)
        for k in range(4):
            A(f"v_mov_b32 {v(vACC + k)}, -1")
        A(f"s_mul_i32 s{sTMP}, s{sL}, {RS}")
        A(f"s_add_u32 s{sTMP}, s{sTMP}, {W_REG + 4096}")
        A(f"v_lshl_add_u32 {v(vACC + 4)}, v0, 4, s{sTMP}")
        A(f"v_add_u32 {v(vACC + 5)}, 8192, {v(vACC + 4)}")
        A(f"v_add_u32 {v(vACC + 6)}, 12288, {v(vACC + 4)}")
        A(f"s_lshl_b32 s{sTMP}, s{sL}, {KS}")
        A(f"s_add_u32 s{sTMP}, s{sTMP}, {W_KEY}")
        A(f"v_lshl_add_u32 {v(22)}, {v(vLANE)}, 4, s{sTMP}")
        ones = v(vACC, 4)
        inits = [f"s_cmp_eq_u32 s{sWAVE}, 0",
                 f"s_cselect_b64 exec, {(1 << ((1 << KS) // 16)) - 1}, 0",
                 f"global_store_dwordx4 {v(22)}, {ones}, {sp(sWS)} sc1",
                 "s_mov_b64 exec, -1",
                 f"global_store_dwordx4 {v(vACC + 5)}, {ones}, {sp(sWS)} offset:-4096 sc1",
                 f"global_store_dwordx4 {v(vACC + 5)}, {ones}, {sp(sWS)} sc1",
                 f"global_store_dwordx4 {v(vACC + 6)}, {ones}, {sp(sWS)} sc1"]
        ninit = 3
        ilate = o.get("ilate", 0)
        if not ilate:
            for l in inits:
                A(l)
        vg, vr = vT, vT + 1
        A(f"v_lshrrev_b32 {v(vg)}, 2, {v(vJ)}")
        A(f"v_and_b32 {v(vr)}, 3, {v(vJ)}")
        A(f"s_cmp_eq_u32 s{sT1}, 0")
        A("s_cbranch_scc0 L_rows_hi")
        A(f"v_mov_b32 {v(vKA0)}, {v(vJ)}")
        A(f"v_lshl_add_u32 {v(vKA1)}, {v(vg)}, 1, {v(vr)}")
        A(f"v_add_u32 {v(vKA1)}, 16, {v(vKA1)}")
        A(f"v_add_u32 {v(vT + 2)}, -4, {v(vJ)}")
        A(f"v_and_b32 {v(vT + 2)}, 15, {v(vT + 2)}")
        A(f"v_cmp_eq_u32 vcc, 3, {v(vr)}")
        A(f"v_cndmask_b32 {v(vKA1)}, {v(vKA1)}, {v(vT + 2)}, vcc")
        A(f"v_lshl_add_u32 {v(vPW0)}, {v(vJ)}, 2, {v(vGq)}")
        A(f"v_lshlrev_b32 {v(vPW0)}, 4, {v(vPW0)}")
        A(f"v_add_u32 {v(vPW1)}, 1024, {v(vPW0)}")
        A("s_branch L_rows_done")
        A("L_rows_hi:")
        A(f"v_lshrrev_b32 {v(vT + 2)}, 1, {v(vg)}")
        A(f"v_lshl_add_u32 {v(vKA0)}, {v(vg)}, 1, {v(vr)}")
        A(f"v_add3_u32 {v(vKA0)}, {v(vKA0)}, {v(vT + 2)}, 25")
        A(f"v_sub_u32 {v(vKA1)}, {v(vJ)}, {v(vg)}")
        A(f"v_add_u32 {v(vKA1)}, 35, {v(vKA1)}")
        A(f"v_lshrrev_b32 {v(vT + 2)}, 1, {v(vGq)}")
        A(f"v_lshl_add_u32 {v(vPW0)}, {v(vT + 2)}, 4, {v(vJ)}")
        A(f"v_and_b32 {v(vT + 2)}, 1, {v(vGq)}")
        A(f"v_lshl_add_u32 {v(vPW0)}, {v(vPW0)}, 1, {v(vT + 2)}")
        A(f"v_lshlrev_b32 {v(vPW0)}, 5, {v(vPW0)}")
        A(f"v_add_u32 {v(vPW0)}, 2048, {v(vPW0)}")
        A(f"v_lshlrev_b32 {v(vPW1)}, 6, {v(vLANE)}")
        A(f"v_add_u32 {v(vPW1)}, 4096, {v(vPW1)}")
        A("L_rows_done:")
        A(f"s_mul_i32 s{sTMP}, s{sT0}, {PC}")
        A(f"s_add_u32 s{sTMP}, s{sTMP}, {L_P + 64}")
        A(f"v_add_u32 {v(vPW0)}, s{sTMP}, {v(vPW0)}")
        A(f"v_add_u32 {v(vPW1)}, s{sTMP}, {v(vPW1)}")
        A(f"s_mul_i32 s{sTMP}, s{sT0}, {TABC}")
        A(f"v_lshl_add_u32 {v(vT + 2)}, {v(vGq)}, 4, s{sTMP}")
        A(f"s_movk_i32 s{sTMP + 1}, {ROWB}")
        A(f"v_mad_u32_u24 {v(vKA0)}, {v(vKA0)}, s{sTMP + 1}, {v(vT + 2)}")
        A(f"v_mad_u32_u24 {v(vKA1)}, {v(vKA1)}, s{sTMP + 1}, {v(vT + 2)}")
        A(f"v_mad_u32_u24 {v(vKB)}, {v(vJ)}, s{sTMP + 1}, {v(vT + 2)}")
        A(f"s_lshl_b32 s{sTMP + 1}, s{sT1}, 8")
        A(f"s_add_u32 m0, s{sTMP}, s{sTMP + 1}")
        A(f"s_mul_i32 s{sTMP}, s{sXCD}, 448")
        A(f"s_and_b32 s{sTMP}, s{sTMP}, 0xffffff80")
        A(f"s_mul_i32 s{sTMP + 1}, s{sPOS}, {16 * 3584}")
        A(f"s_add_u32 s{sTMP}, s{sTMP}, s{sTMP + 1}")
        A(f"v_lshrrev_b32 {v(vT + 2)}, 2, {v(vLANE)}")
        A(f"v_mul_u32_u24 {v(vT + 2)}, 3584, {v(vT + 2)}")
        A(f"v_and_b32 {v(vT + 3)}, 3, {v(vLANE)}")
        A(f"v_lshl_add_u32 {v(vT + 2)}, {v(vT + 3)}, 7, {v(vT + 2)}")
        A(f"v_add_u32 {v(vT + 2)}, s{sTMP}, {v(vT + 2)}")
        A(f"s_mul_i32 s{sTMP}, s{sL}, 7168")
        A(f"s_mul_i32 s{sTMP + 1}, s{sT1}, 3584")
        A(f"s_add_u32 s{sTMP}, s{sTMP}, s{sTMP + 1}")
        A(f"v_min_u32 {v(vT + 3)}, 27, {v(vLANE)}")
        A(f"v_lshl_add_u32 {v(vT + 3)}, {v(vT + 3)}, 7, s{sTMP}")
        A(f"s_cmp_eq_u32 s{sT1}, 0")
        A(f"s_cselect_b64 {sp(sWSEL)}, {sp(sWG)}, {sp(sWU)}")
        A(f"s_cmp_eq_u32 s{sT0}, 0")
        A(f"s_cselect_b64 {sp(sWSEL)}, {sp(sWSEL)}, {sp(sWD)}")
        A("s_cselect_b64 vcc, -1, 0")
        A(f"v_cndmask_b32 {v(21)}, {v(vT + 3)}, {v(vT + 2)}, vcc")
        wpf = f"global_load_dword v3, v21, {sp(sWSEL)}{' nt' if o.get('ntw', 0) else ''}"
        if o.get("wpf", 2) == 2:
            A(wpf)

        L2E = 1.4426950408889634
        l2e_hi = struct.unpack("<f", struct.pack("<f", L2E))[0]
        l2e_lo = L2E - l2e_hi
        a, b = K, K + 2
        A(f"s_mov_b32 s{sE}, {hex(f2u(l2e_hi))}")
        A(f"s_mov_b32 s{sE + 1}, {hex(f2u(l2e_lo))}")
        if o.get("b1b", 1):
            A("s_barrier")
        A(f"s_waitcnt vmcnt({(1 if o.get('wpf', 2) == 2 else 0) + (0 if ilate else ninit) + ntlb}) lgkmcnt(0)")
        self.stamp("par")
        if ilate:
            for l in inits:
                A(l)
        if o.get("wpf", 2) == 6:
            A(wpf)
        A(f"s_lshl_b32 s{sTMP}, s{sDT}, 16")
        A(f"s_and_b32 s{sTMP + 1}, s{sDT}, s{sMASK}")
        A(f"s_cmp_lt_u32 s{sWAVE}, 2")
        A(f"s_cselect_b32 s{sDT}, s{sTMP}, s{sTMP + 1}")
        A(f"v_lshlrev_b32 {v(a)}, 16, {v(vP)}")
        A(f"v_mov_b32 {v(a + 1)}, s{sDT}")
        A(f"v_pk_mul_f32 {v(b, 2)}, {v(a, 2)}, {sp(sE)} op_sel_hi:[1,0]")
        A(f"v_pk_fma_f32 {v(b + 2, 2)}, {v(a, 2)}, {sp(sE)}, {v(b, 2)} op_sel_hi:[1,0,1] neg_lo:[0,0,1] neg_hi:[0,0,1]")
        A(f"v_exp_f32 {v(b)}, {v(b)}")
        A(f"v_exp_f32 {v(b + 1)}, {v(b + 1)}")
        A(f"v_pk_fma_f32 {v(b + 2, 2)}, {sp(sE)}, {v(a, 2)}, {v(b + 2, 2)} op_sel:[1,0,0] op_sel_hi:[1,1,1]")
        A(f"v_mul_f32 {v(b + 2)}, {hex(f2u(0.6931471805599453))}, {v(b + 2)}")
        A(f"v_mul_f32 {v(b + 3)}, {hex(f2u(0.6931471805599453))}, {v(b + 3)}")
        A(f"v_pk_fma_f32 {v(b, 2)}, {v(b, 2)}, {v(b + 2, 2)}, {v(b, 2)}")
        A(f"v_cvt_pk_bf16_f32 {v(a)}, {v(b)}, {v(b + 1)}")
        vdt, va2, vph = K + 6, K + 7, K + 8
        A(f"v_and_b32 {v(vdt)}, s{sMASK}, {v(a)}")
        A(f"v_lshlrev_b32 {v(va2)}, 16, {v(a)}")
        A(f"v_lshlrev_b32 {v(vph)}, 16, {v(vP + 1)}")
        A(f"v_mul_f32 {v(va2)}, {v(va2)}, {v(vdt)}")
        A(f"v_mul_f32 {v(vph)}, {v(vph)}, {v(vdt)}")
        A(f"v_mul_f32 {v(va2)}, {hex(f2u(-l2e_hi))}, {v(va2)}")
        A(f"v_mul_f32 {v(vph)}, 0.15915494, {v(vph)}")
        Wp = {p: K + 10 + 2 * p for p in range(1, 17)}
        Zp = {p: K + 42 + 2 * p for p in range(1, 8)}
        G = [K + 58, K + 60]
        TT = [K + 62, K + 64, K + 66, K + 68]
        RR = [K + 70, K + 72, K + 74, K + 76]
        CV = K + 80
        A(f"v_mul_f32 {v(vdt)}, {hex(f2u(2.0 ** 69))}, {v(vdt)}")
        A(f"v_lshlrev_b32 {v(G[0])}, 16, {v(vP + 2)}")
        A(f"v_lshlrev_b32 {v(G[0] + 1)}, 16, {v(vP + 3)}")
        A(f"v_mul_f32 {v(G[0])}, {v(G[0])}, {v(vdt)}")
        A(f"v_mul_f32 {v(G[0] + 1)}, {v(G[0] + 1)}, {v(vdt)}")
        for n, (dst, sc) in enumerate(((Wp[1], 1.0), (Wp[16], 16.0), (Zp[1], 256.0))):
            t = TT[n]
            if sc == 1.0:
                A(f"v_exp_f32 {v(t)}, {v(va2)}")
                A(f"v_fract_f32 {v(t + 1)}, {v(vph)}")
            else:
                A(f"v_mul_f32 {v(t)}, {hex(f2u(sc))}, {v(va2)}")
                A(f"v_mul_f32 {v(t + 1)}, {hex(f2u(sc))}, {v(vph)}")
                A(f"v_exp_f32 {v(t)}, {v(t)}")
                A(f"v_fract_f32 {v(t + 1)}, {v(t + 1)}")
            A(f"v_cos_f32 {v(dst)}, {v(t + 1)}")
            A(f"v_sin_f32 {v(dst + 1)}, {v(t + 1)}")
        for n, dst in enumerate((Wp[1], Wp[16], Zp[1])):
            A(f"v_pk_mul_f32 {v(dst, 2)}, {v(dst, 2)}, {v(TT[n], 2)} op_sel_hi:[1,0]")
        jobs = [(1, Wp[1], None, None, 0), (16, Zp[1], None, None, 0), (47, G[0], None, None, 1)]
        wj = []
        for p in range(2, 16):
            hb = 1 << (p.bit_length() - 1)
            x, y = (p // 2, p // 2) if hb == p else (hb, p - hb)
            wj.append((p, Wp[p], Wp[x], Wp[y], 0))
        gj = [(47 + j, G[j & 1], G[(j - 1) & 1], Wp[16], 1) for j in range(1, 16)]
        zrow = {2: 25, 3: 30, 4: 35, 5: 38, 6: 41, 7: 44}
        zj = []
        for p in range(2, 8):
            hb = 1 << (p.bit_length() - 1)
            x, y = (p // 2, p // 2) if hb == p else (hb, p - hb)
            zj.append((zrow[p], Zp[p], Zp[x], Zp[y], 0))
        tj = [(16 + k, None, Zp[1], Wp[2 * k], 0) for k in range(1, 9)]
        for z in (2, 3):
            tj += [(zrow[z] + k, None, Zp[z], Wp[4 * k], 0) for k in range(1, 5)]
        for z in (4, 5, 6, 7):
            tj += [(zrow[z] + k, None, Zp[z], Wp[8 * k], 0) for k in range(1, 3)]
        first = []
        for i in range(max(len(wj), len(gj), len(zj))):
            for q in (wj, gj, zj):
                if i < len(q):
                    first.append(q[i])
        jobs += first + tj
        A(f"v_mov_b32 {v(CV + 15)}, 0x3f80")
        pend = [(0, CV + 15)]
        slot = 0
        nb = 0
        b1_at = o.get("b1_at", 0)
        batch = o.get("batch", 6)

        def do_b1():
            self.stamp("setup")
            A(f"s_waitcnt vmcnt({1 if (o.get('wpf', 2) == 2 and not ilate) or o.get('wpf', 2) == 6 else 0})")
            self.stamp("idr")
            A("s_barrier")
            self.stamp("b1")
            if o.get("wpf", 2) == 1:
                A(wpf)
        if b1_at == 0:
            do_b1()
        for n, (row, dst, x, y, conj) in enumerate(jobs):
            if x is not None:
                if dst is None:
                    dst = RR[n & 3]
                for ins in self.cmul(dst, x, y, TT[n & 3]):
                    A(ins)
            A(f"v_cvt_pk_bf16_f32 {v(CV + slot)}, {v(dst)}, {'-' if conj else ''}{v(dst + 1)}")
            pend.append((row, CV + slot))
            slot = (slot + 1) % 15
            if len(pend) >= batch or n == len(jobs) - 1:
                for row_, reg in pend:
                    A(f"ds_write_addtid_b32 {v(reg)} offset:{row_ * ROWB}")
                pend = []
                nb += 1
                if nb == b1_at:
                    do_b1()
        A("s_waitcnt lgkmcnt(0)")
        self.stamp("kgen1")
        A("s_barrier")
        if o.get("wpf", 2) == 3:
            A(wpf)
        fB, fA0, fA1 = K, K + 32, K + 64
        for s in range(4):
            A(f"ds_read_b128 {v(fB + 4 * s, 4)}, {v(vKB)} offset:{47 * ROWB + 64 * s}")
            A(f"ds_read_b128 {v(fA0 + 4 * s, 4)}, {v(vKA0)} offset:{64 * s}")
            A(f"ds_read_b128 {v(fA1 + 4 * s, 4)}, {v(vKA1)} offset:{64 * s}")
        D0, D1 = vACC, vACC + 4
        for s in range(8):
            s2 = s + 4
            A(f"s_waitcnt lgkmcnt({9 if s2 < 8 else 3 * (7 - s)})")
            c0 = "0" if s == 0 else v(D0, 4)
            c1 = "0" if s == 0 else v(D1, 4)
            A(f"v_mfma_f32_16x16x32_bf16 {v(D0, 4)}, {v(fA0 + 4 * s, 4)}, {v(fB + 4 * s, 4)}, {c0}")
            if s2 < 8:
                A(f"ds_read_b128 {v(fB + 4 * s2, 4)}, {v(vKB)} offset:{47 * ROWB + 64 * s2}")
                A(f"ds_read_b128 {v(fA0 + 4 * s2, 4)}, {v(vKA0)} offset:{64 * s2}")
            A(f"v_mfma_f32_16x16x32_bf16 {v(D1, 4)}, {v(fA1 + 4 * s, 4)}, {v(fB + 4 * s, 4)}, {c1}")
            if s2 < 8:
                A(f"ds_read_b128 {v(fA1 + 4 * s2, 4)}, {v(vKA1)} offset:{64 * s2}")
        E = K + 96
        A(f"s_bitcmp1_b32 s{sWAVE}, 0")
        A(f"v_cmp_eq_u32 vcc, 0, {v(vLANE)}")
        A("s_nop 5")
        A("s_cbranch_scc0 L_exp_lo")
        seq2 = ["aa", "aa", "aa", "ba", "bb", "bb", "cb", "cc"]
        seq3 = ["aa", "aa", "aa", "aa", "aa", "ba", "bb", "bb", "bb", "bb", "cb", "cc", "cc", "cc"]
        ix = {"a": 0, "b": 1, "c": 2}
        for k, s in enumerate(seq3):
            A(f"v_cvt_pk_bf16_f32 {v(E + 8 + k)}, {v(D1 + ix[s[0]])}, {v(D1 + ix[s[1]])}")
        for k, w in enumerate((0, 4, 6, 10)):
            A(f"ds_write_b128 {v(vPW1)}, {v(E + 8 + w, 4)} offset:{16 * k}")
        for k, s in enumerate(seq2):
            A(f"v_cvt_pk_bf16_f32 {v(E + k)}, {v(D0 + ix[s[0]])}, {v(D0 + ix[s[1]])}")
        A(f"ds_write_b128 {v(vPW0)}, {v(E, 4)}")
        A(f"ds_write_b128 {v(vPW0)}, {v(E + 4, 4)} offset:16")
        A("L_exp_done:")
        T = self.tail
        T("L_exp_lo:")
        T(f"v_mov_b32_dpp {v(D1 + 3)}, {v(D1 + 3)} row_ror:1 row_mask:0x1 bank_mask:0xf")
        T(f"v_cvt_pk_bf16_f32 {v(E + 1)}, {v(D0 + 1)}, {v(D0)}")
        T(f"v_cvt_pk_bf16_f32 {v(E + 2)}, {v(D0 + 2)}, {v(D0 + 1)}")
        T(f"v_cvt_pk_bf16_f32 {v(E + 3)}, {v(D0 + 3)}, {v(D0 + 2)}")
        T(f"v_cndmask_b32 {v(E + 8)}, {v(D1 + 3)}, 0, vcc")
        T(f"v_cndmask_b32 {v(E + 9)}, {v(D1)}, {v(D1 + 3)}, vcc")
        T(f"v_cvt_pk_bf16_f32 {v(E)}, {v(D0)}, {v(E + 8)}")
        T(f"v_cvt_pk_bf16_f32 {v(E + 4)}, {v(D1)}, {v(E + 9)}")
        T(f"v_cvt_pk_bf16_f32 {v(E + 5)}, {v(D1)}, {v(D1)}")
        T(f"v_cvt_pk_bf16_f32 {v(E + 6)}, {v(D1 + 1)}, {v(D1)}")
        T(f"v_cvt_pk_bf16_f32 {v(E + 7)}, {v(D1 + 2)}, {v(D1 + 1)}")
        T(f"ds_write_b128 {v(vPW0)}, {v(E, 4)}")
        T(f"ds_write_b128 {v(vPW1)}, {v(E + 4, 4)}")
        T("s_branch L_exp_done")
        A("s_waitcnt lgkmcnt(0)")
        self.stamp("kgen2")
        A("s_barrier")
        if o.get("wpf", 2) == 4:
            A(wpf)

        def rdA(buf, rho, m):
            return [f"ds_read2_b32 {v(buf + 4 * m, 2)}, {v(vAA + m)} offset0:{64 * rho + 6} offset1:{64 * rho + 4}",
                    f"ds_read2_b32 {v(buf + 4 * m + 2, 2)}, {v(vAA + m)} offset0:{64 * rho + 2} offset1:{64 * rho}"]

        def rdB(buf, rho, n):
            return [f"ds_read_b128 {v(buf + 4 * n, 4)}, {v(vBA)} offset:{128 * (3 - rho) + 512 * (7 - n)}"]

        for m in range(8):
            for l in rdA(vA0, 0, m):
                A(l)
        A(f"s_mul_i32 s{sTMP}, s{sL}, {RS}")
        A(f"s_lshl_b32 s{sTMP + 1}, s{sWAVE}, 11")
        A(f"s_add_u32 s{sTMP}, s{sTMP}, s{sTMP + 1}")
        A(f"s_add_u32 s{sTMP}, s{sTMP}, {W_REG + O_X2}")
        A(f"v_lshl_add_u32 {v(vT)}, {v(vLANE)}, 4, s{sTMP}")
        A(f"v_lshlrev_b32 {v(vT + 1)}, {KS}, v0")
        A(f"v_add_u32 {v(vT + 1)}, {W_KEY}, {v(vT + 1)}")
        A(f"s_lshl_b32 s{sTMP}, s{sWAVE}, 2")
        A(f"s_add_u32 s{sTMP}, s{sTMP}, {L_REDK}")
        A(f"v_mov_b32 {v(vT + 3)}, s{sTMP}")
        A("s_waitcnt lgkmcnt(0)")
        self.stamp("apre")
        A("s_barrier")
        self.stamp("b3")
        if o.get("wpf", 2) == 5:
            A(wpf)
        if o.get("prio", 1):
            A("s_setprio 2")

        bufA, bufB = [vA0, vA1], [vB0, vB1]
        for n in range(7, -1, -1):
            for l in rdB(vB0, 0, n):
                A(l)
        started = set()
        for rho in range(4):
            a_, b_ = bufA[rho & 1], bufB[rho & 1]
            order = [(n - 7 + tb, tb, n) for n in range(7, -1, -1) for tb in range(7 - n, 8)]
            if rho == 3:
                order = [(n - 7 + tb, tb, n) for tb in range(8) for n in range(7 - tb, 8)]
            fill = []
            if rho + 1 < 4:
                nb_, na_ = bufB[(rho + 1) & 1], bufA[(rho + 1) & 1]
                for m in range(8):
                    fill += rdB(nb_, rho + 1, 7 - m)
                    fill += rdA(na_, rho + 1, m)
            issued = 0
            seen = set()
            done_at = {}
            for i, (m, tb, n) in enumerate(order):
                done_at[tb] = i
            for i, (m, tb, n) in enumerate(order):
                if rho == 0 and n not in seen:
                    A(f"s_waitcnt lgkmcnt({min(15, n + issued)})")
                    seen.add(n)
                elif i == 0:
                    A("s_waitcnt lgkmcnt(0)")
                acc = v(vACC + 4 * tb, 4)
                c = acc if tb in started else "0"
                started.add(tb)
                A(f"v_mfma_f32_16x16x32_bf16 {acc}, {v(a_ + 4 * m, 4)}, {v(b_ + 4 * n, 4)}, {c}")
                if i >= 1 and fill:
                    A(fill.pop(0))
                    issued += 1
                if rho == 3:
                    for t in range(7):
                        if done_at[t] + 8 == i or (i == len(order) - 1 and done_at[t] + 8 > i):
                            A(f"ds_write_b128 {v(vEW)}, {v(vACC + 4 * t, 4)} offset:{t * TBS}")
            assert not fill
        A(f"ds_write_b128 {v(vEW)}, {v(vACC + 28, 4)} offset:{7 * TBS}")
        self.stamp("conv")
        A("s_waitcnt lgkmcnt(0)")
        A("s_barrier")
        for i in range(2):
            for s in range(4):
                A(f"ds_read_b128 {v(K + 16 * i + 4 * s, 4)}, {v(vER)} offset:{s * 8 * TBS + i * TBS}")
        for i in range(2):
            A(f"s_waitcnt lgkmcnt({4 * (1 - i)})")
            b0 = K + 16 * i
            for c in range(2):
                for h in range(2):
                    A(f"v_pk_add_f32 {v(b0 + 8 * c + 2 * h, 2)}, {v(b0 + 8 * c + 2 * h, 2)}, {v(b0 + 8 * c + 4 + 2 * h, 2)}")
            for c in range(2):
                for h in range(2):
                    A(f"v_cvt_pk_bf16_f32 {v(K + 32 + 4 * i + 2 * c + h)}, {v(b0 + 8 * c + 2 * h)}, {v(b0 + 8 * c + 2 * h + 1)}")
            A(f"global_store_dwordx4 {v(vT)}, {v(K + 32 + 4 * i, 4)}, {sp(sWS)} offset:{1024 * i} sc1")
        self.stamp("x2st")
        A("s_waitcnt vmcnt(0)")
        self.stamp("x2dr")
        A("s_barrier")
        A(f"s_cmp_eq_u32 s{sWAVE}, 0")
        A("s_cbranch_scc0 L_cfin")
        for q in range(1, 4):
            A(f"v_add_u32 {v(vT + 8 + q)}, {(64 * q) << KS}, {v(vT + 1)}")
        A("s_barrier")
        self.key_calc(K, vRA, vLANE)
        A("s_mov_b64 exec, 1")
        A(f"global_store_dword {v(22)}, {v(K + 8)}, {sp(sWS)} sc1")
        A("s_mov_b64 exec, -1")
        self.stamp("key")
        A("s_waitcnt vmcnt(0)")
        self.stamp("keydr")
        k2 = vT + 4
        kl = [f"global_load_dword {v(K + q)}, {v(vT + 8 + q) if q else v(vT + 1)}, {sp(sWS)} sc1" for q in range(4)]
        for l in kl:
            A(l)
        A("s_waitcnt vmcnt(0)")
        self.poll("key", kl, [f"v_max3_u32 {v(k2)}, {v(K)}, {v(K + 1)}, {v(K + 2)}",
                              f"v_max_u32 {v(k2)}, {v(k2)}, {v(K + 3)}",
                              f"v_cmp_eq_u32 vcc, -1, {v(k2)}"])
        self.stamp("keyld")
        A(f"v_max_u32_dpp {v(k2)}, {v(k2)}, {v(k2)} quad_perm:[1,0,3,2] row_mask:0xf bank_mask:0xf")
        A(f"v_max_u32_dpp {v(k2)}, {v(k2)}, {v(k2)} quad_perm:[2,3,0,1] row_mask:0xf bank_mask:0xf")
        A(f"v_max_u32_dpp {v(k2)}, {v(k2)}, {v(k2)} row_half_mirror row_mask:0xf bank_mask:0xf")
        A(f"v_max_u32_dpp {v(k2)}, {v(k2)}, {v(k2)} row_mirror row_mask:0xf bank_mask:0xf")
        A(f"v_max_u32_dpp {v(k2)}, {v(k2)}, {v(k2)} row_bcast:15 row_mask:0xa bank_mask:0xf")
        A(f"v_max_u32_dpp {v(k2)}, {v(k2)}, {v(k2)} row_bcast:31 row_mask:0xc bank_mask:0xf")
        A("s_mov_b32 exec_lo, 0")
        A("s_brev_b32 exec_hi, 1")
        A(f"ds_write_b32 {v(vT + 3)}, {v(k2)}")
        A("s_waitcnt lgkmcnt(0)")
        A("s_barrier")
        A("L_cfin:")
        self.finish("C")

    def text(self):
        lines = self.build()
        src = open("sequential_preLN__ssm_conv_s4d__moe_arch_mod__prompt.s.ref").read()
        head = [l for l in src.split("\n") if l.startswith(";") and "@launch" not in l]
        head = head[:head.index("; Override launch geometry by editing the next line (default: block=256,")]
        out = head + [f"; @launch grid=(256,1,1) block=(512,1,1) lds={LDS_BYTES}",
                      '.amdgcn_target "amdgcn-amd-amdhsa--gfx950"', ".text", f".globl {KNAME}", ".p2align 8",
                      f".type {KNAME},@function"]
        out += [l if l.endswith(":") else "    " + l for l in lines]
        out += [".section .rodata,\"a\"", ".p2align 6", f".amdhsa_kernel {KNAME}",
                "  .amdhsa_next_free_vgpr 224", "  .amdhsa_next_free_sgpr 102", "  .amdhsa_accum_offset 224",
                "  .amdhsa_group_segment_fixed_size 0", "  .amdhsa_kernarg_size 120", "  .amdhsa_user_sgpr_count 2",
                "  .amdhsa_user_sgpr_kernarg_segment_ptr 1", "  .amdhsa_system_sgpr_workgroup_id_x 1",
                ".end_amdhsa_kernel", ""]
        return "\n".join(out)


if __name__ == "__main__":
    out = sys.argv[1]
    opts = {}
    stamp = False
    for a in sys.argv[2:]:
        if a == "stamp":
            stamp = True
        else:
            k, val = a.split("=")
            opts[k] = val if k in ('pr', 'few') else int(val)
    g = Gen(stamp, opts)
    open(out, "w").write(g.text())
    if g.stamp_on:
        open(out + ".names", "w").write(" ".join(g.allnames["R"]) + "\n" + " ".join(g.allnames["C"]))
    print(g.info, "lds", LDS_BYTES)
```

```python
import sys
import struct
from asmlib import Asm, align8

KNAME = "sequential_preLN__ssm_conv_s4d__moe_arch_mod__prompt_kernel"


def f2u(x):
    return struct.unpack("<I", struct.pack("<f", x))[0]


W_FLAG = 0x1000 + (int(__import__('os').environ.get('WOFF', '0')) << 20)
W_KEY = 0x9000 + (int(__import__('os').environ.get('WOFF', '0')) << 20)
W_FLAG2 = 0x11000 + (int(__import__('os').environ.get('WOFF', '0')) << 20)
import os
WOFF = int(os.environ.get('WOFF', '0')) << 20
W_REG = 0x38000 + WOFF
RS = 20608
O_X1, O_X2, O_SLOT, O_PART = 0, 8192, 16384, 18432
W_STAMP = 0x800000
ROWB = 544
TABC = 63 * ROWB
L_TAB = 0
L_P = 68608
PC = 8256
L_U = L_P + 2 * PC
UC = 4608
L_RED1 = (L_U + 2 * UC + 255) // 256 * 256
L_RED2 = L_RED1 + 256
L_SUMW = L_RED2 + 384
L_REDK = L_SUMW + 16
L_REDF = L_REDK + 16
LDS_BYTES = L_REDF + 256
L_EPI = 0
TBS = 1152
L_TILE = 40960
WST = 272
WTILE = 8 * WST
sX, sLA, sAI, sCR, sCI, sLDT, sD = 4, 6, 8, 10, 12, 14, 16
sWR, sWG, sWU, sWD, sOUT, sDBG, sWS = 20, 22, 24, 26, 28, 30, 32
sL, sPOS, sXCD, sWAVE, sG, sDT, sT0, sT1, sSPIN, sF = 34, 35, 36, 37, 38, 39, 40, 41, 42, 43
sODD = 44
sSELLO, sSELHI, sONES, sMASK = 46, 47, 48, 49
sWSEL = 50
sBEST, sWIN, sRP0, sRP1 = 52, 53, 54, 55
sH = 56
sE = 64
sTMP = 66
sOWN = 71
sCAND = 3
sTAG = 56
sSTAMP = 72


def sp(r):
    return f"s[{r}:{r + 1}]"


def v(r, n=1):
    return f"v{r}" if n == 1 else f"v[{r}:{r + n - 1}]"


class Gen:
    def __init__(self, stamp=False, opts=None):
        self.A = Asm()
        self.tail = Asm()
        self.stamp_on = stamp
        self.nstamp = 0
        self.names = []
        self.o = dict(opts or {})
        self.only = None
        self.few = None
        if "few" in self.o:
            self.few = ["start", "end"] + self.o["few"].split(".")
            self.stamp_on = True
        self.role = "R"
        if "pr" in self.o:
            self.only = tuple(self.o["pr"].split("."))
            self.stamp_on = True
            self.o["probe"] = 1 if self.only[0] == "R" else 101

    def stamp(self, name):
        if not self.stamp_on:
            return
        if self.only and name != "start" and (self.role, name) != self.only:
            return
        if self.few and name not in self.few:
            return
        k = self.nstamp
        self.nstamp += 1
        self.names.append(name)
        assert sSTAMP + k < 100
        self.A(f"s_memrealtime s[100:101]")
        self.A("s_waitcnt lgkmcnt(0)")
        self.A(f"s_mov_b32 s{sSTAMP + k}, s100")

    def poll(self, name, loads, check, base_exec="-1"):
        A = self.A
        for c in check:
            A(c)
        A(f"s_cbranch_vccnz L_retry_{name}")
        A(f"L_ok_{name}:")
        T = self.tail
        T(f"L_retry_{name}:")
        T(f"s_mov_b32 s{sSPIN}, 0x40000")
        T(f"L_again_{name}:")
        T(f"s_sub_u32 s{sSPIN}, s{sSPIN}, 1")
        T(f"s_cbranch_scc1 L_ok_{name}")
        T("s_mov_b64 exec, vcc")
        for l in loads:
            T(l)
        T("s_waitcnt vmcnt(0)")
        for c in check:
            T(c)
        T(f"s_mov_b64 exec, {base_exec}")
        T(f"s_cbranch_vccnz L_again_{name}")
        T(f"s_branch L_ok_{name}")

    def cmul(self, d, x, y, t):
        return [f"v_pk_mul_f32 {v(t, 2)}, {v(x, 2)}, {v(y, 2)} op_sel:[0,0] op_sel_hi:[0,1]",
                f"v_pk_fma_f32 {v(d, 2)}, {v(x, 2)}, {v(y, 2)}, {v(t, 2)} op_sel:[1,1,0] op_sel_hi:[1,0,1] neg_lo:[1,0,0]"]

    def reduce8(self, V, t):
        A = self.A
        for i in range(4):
            A(f"v_add_f32_dpp {v(V[i])}, {v(V[i])}, {v(V[i])} row_ror:8 row_mask:0xf bank_mask:0x3")
        for i in range(4):
            A(f"v_add_f32_dpp {v(V[i])}, {v(V[i + 4])}, {v(V[i + 4])} row_ror:8 row_mask:0xf bank_mask:0xc")
        for i in range(2):
            A(f"v_add_f32_dpp {v(V[i])}, {v(V[i])}, {v(V[i])} row_shl:4 row_mask:0xf bank_mask:0x5")
        for i in range(2):
            A(f"v_add_f32_dpp {v(V[i])}, {v(V[i + 2])}, {v(V[i + 2])} row_shr:4 row_mask:0xf bank_mask:0xa")
        A(f"v_permlane32_swap_b32 {v(V[0])}, {v(V[1])}")
        A(f"v_add_f32 {v(V[0])}, {v(V[0])}, {v(V[1])}")
        A(f"v_add_f32_dpp {v(V[0])}, {v(V[0])}, {v(V[0])} quad_perm:[2,3,0,1] row_mask:0xf bank_mask:0xf")
        A(f"v_mov_b32 {v(t)}, {v(V[0])}")
        A(f"v_permlane16_swap_b32 {v(V[0])}, {v(t)}")
        A(f"v_add_f32 {v(V[0])}, {v(V[0])}, {v(t)}")

    def row_stats(self, S, Q, negm, rinv, t, scale=None):
        A = self.A
        A(f"v_pk_add_f32 {v(S, 2)}, {v(S, 2)}, {v(S + 2, 2)}")
        A(f"v_pk_add_f32 {v(Q, 2)}, {v(Q, 2)}, {v(Q + 2, 2)}")
        A(f"v_add_f32 {v(S)}, {v(S)}, {v(S + 1)}")
        A(f"v_add_f32 {v(Q)}, {v(Q)}, {v(Q + 1)}")
        A(f"v_mul_f32 {v(S)}, {hex(f2u(1 / 512))}, {v(S)}")
        A(f"v_mul_f32 {v(Q)}, {hex(f2u(1 / 512))}, {v(Q)}")
        A(f"v_fma_f32 {v(Q)}, -{v(S)}, {v(S)}, {v(Q)}")
        A(f"v_max_f32 {v(Q)}, 0, {v(Q)}")
        A(f"v_cvt_pk_bf16_f32 {v(t)}, -{v(S)}, {v(Q)}")
        A(f"v_and_b32 {v(Q)}, s{sMASK}, {v(t)}")
        A(f"v_add_f32 {v(Q)}, {hex(f2u(1e-5))}, {v(Q)}")
        A(f"v_cvt_pk_bf16_f32 {v(Q)}, {v(Q)}, {v(Q)}")
        A(f"v_and_b32 {v(Q)}, s{sMASK}, {v(Q)}")
        A(f"v_sqrt_f32 {v(Q)}, {v(Q)}")
        A(f"v_lshlrev_b32 {v(negm)}, 16, {v(t)}")
        A(f"v_cvt_pk_bf16_f32 {v(Q)}, {v(Q)}, {v(Q)}")
        A(f"v_and_b32 {v(Q)}, s{sMASK}, {v(Q)}")
        if scale:
            A(f"v_mul_f32 {v(Q)}, {hex(f2u(scale))}, {v(Q)}")
        A(f"v_rcp_f32 {v(rinv)}, {v(Q)}")

    def spread(self, val, dst, t):
        A = self.A
        for r in range(4):
            A(f"v_mov_b32_dpp {v(t + r)}, {v(val)} row_newbcast:{4 + r} row_mask:0xf bank_mask:0xf")
        for r in range(4):
            A(f"v_cndmask_b32_dpp {v(dst + r)}, {v(val)}, {v(t + r)}, vcc row_newbcast:{r} row_mask:0xf bank_mask:0xf")

    def key_calc(self, K, vRA, vLANE):
        A = self.A
        A(f"v_mov_b32 {v(K + 14)}, {L_SUMW}")
        A(f"ds_read_b128 {v(K, 4)}, {v(vRA)} offset:{L_RED2 - L_RED1}")
        A(f"ds_read_b128 {v(K + 4, 4)}, {v(vRA)} offset:{L_RED2 - L_RED1 + 128}")
        A(f"ds_read_b128 {v(K + 8, 4)}, {v(vRA)} offset:{L_RED2 - L_RED1 + 256}")
        A(f"ds_read_b32 {v(K + 15)}, {v(K + 14)}")
        A(f"s_lshl_b32 s{sTMP}, s{sL}, 3")
        A(f"s_sub_u32 s{sTMP}, 2047, s{sTMP}")
        A(f"v_and_b32 {v(K + 14)}, 7, {v(vLANE)}")
        A(f"v_sub_u32 {v(K + 14)}, s{sTMP}, {v(K + 14)}")
        A("s_waitcnt lgkmcnt(2)")
        self.row_stats(K, K + 4, K + 12, K + 13, K + 28)
        A("s_waitcnt lgkmcnt(0)")
        A(f"v_pk_add_f32 {v(K + 8, 2)}, {v(K + 8, 2)}, {v(K + 10, 2)}")
        A(f"v_add_f32 {v(K + 8)}, {v(K + 8)}, {v(K + 9)}")
        A(f"v_fmac_f32 {v(K + 8)}, {v(K + 12)}, {v(K + 15)}")
        A(f"v_mul_f32 {v(K + 8)}, {v(K + 8)}, {v(K + 13)}")
        A(f"v_ashrrev_i32 {v(K + 9)}, 31, {v(K + 8)}")
        A(f"v_or_b32 {v(K + 9)}, 0x80000000, {v(K + 9)}")
        A(f"v_xor_b32 {v(K + 8)}, {v(K + 8)}, {v(K + 9)}")
        A(f"v_and_b32 {v(K + 8)}, 0xfffff800, {v(K + 8)}")
        A(f"v_or_b32 {v(K + 8)}, {v(K + 8)}, {v(K + 14)}")
        A(f"v_min_u32 {v(K + 8)}, -2, {v(K + 8)}")
        A(f"v_max_u32_dpp {v(K + 8)}, {v(K + 8)}, {v(K + 8)} quad_perm:[1,0,3,2] row_mask:0xf bank_mask:0xf")
        A(f"v_max_u32_dpp {v(K + 8)}, {v(K + 8)}, {v(K + 8)} quad_perm:[2,3,0,1] row_mask:0xf bank_mask:0xf")
        A(f"v_max_u32_dpp {v(K + 8)}, {v(K + 8)}, {v(K + 8)} row_half_mirror row_mask:0xf bank_mask:0xf")

    def finish(self, role):
        A = self.A
        o = self.o
        if self.stamp_on:
            self.stamp("end")
            self.allnames[role] = self.names
        if self.stamp_on and "probe" in o:
            k = o["probe"]
            if k == 98 and role == "R":
                A(f"s_getreg_b32 s{sTMP}, hwreg(HW_REG_XCC_ID, 0, 4)")
                A(f"s_sub_u32 s{sTMP}, s{sTMP}, s2")
                A(f"s_and_b32 s{sTMP}, s{sTMP}, 7")
                A(f"s_mul_i32 s{sTMP}, s{sTMP}, 1000")
                A(f"s_add_u32 s{sTMP}, s{sTMP}, 2000")
            elif k == 99 and role == "R":
                A("s_memtime s[96:97]")
                A("s_waitcnt lgkmcnt(0)")
                A("s_sub_u32 s96, s96, s98")
                A(f"s_sub_u32 s97, s{sSTAMP + self.nstamp - 1}, s{sSTAMP}")
                A("s_mov_b64 exec, -1")
                A("v_cvt_f32_u32 v2, s96")
                A("v_cvt_f32_u32 v3, s97")
                A("v_rcp_f32 v3, v3")
                A("s_nop 1")
                A("v_mul_f32 v2, v2, v3")
                A("v_mul_f32 v2, 0x43c80000, v2")
                A("v_cvt_u32_f32 v2, v2")
                A("s_nop 1")
                A(f"v_readfirstlane_b32 s{sTMP}, v2")
                A(f"s_add_u32 s{sTMP}, s{sTMP}, 2000")
            elif k < 0 and role == "R":
                A(f"s_mov_b32 s{sTMP}, {-k}")
            elif k >= 0 and (k >= 100) == (role == "C"):
                A(f"s_sub_u32 s{sTMP}, s{sSTAMP + k % 100}, s{sSTAMP}")
                A(f"s_cmp_lt_u32 s{sTMP}, 3000")
                A(f"s_cselect_b32 s{sTMP}, s{sTMP}, 0")
                A(f"s_mul_i32 s{sTMP}, s{sTMP}, 20")
                A(f"s_add_u32 s{sTMP}, s{sTMP}, 2000")
                if role == "C":
                    A(f"s_cmp_eq_u32 s{sWAVE}, 0")
                    A(f"s_cselect_b32 s{sTMP}, s{sTMP}, 0")
            else:
                A(f"s_mov_b32 s{sTMP}, 0")
            A(f"L_spin{role}:")
            A("s_memrealtime s[100:101]")
            A("s_waitcnt lgkmcnt(0)")
            A(f"s_sub_u32 s100, s100, s{sSTAMP}")
            A(f"s_cmp_lt_u32 s100, s{sTMP}")
            A(f"s_cbranch_scc1 L_spin{role}")
        elif self.stamp_on:
            A("s_mov_b64 exec, 1")
            A(f"s_lshl_b32 s{sTMP}, s2, 3")
            A(f"s_add_u32 s{sTMP}, s{sTMP}, s{sWAVE}")
            if role == "C":
                A(f"s_add_u32 s{sTMP}, s{sTMP}, 4")
            A(f"s_lshl_b32 s{sTMP}, s{sTMP}, 7")
            A(f"s_add_u32 s{sTMP}, s{sTMP}, {W_STAMP}")
            A(f"v_mov_b32 v1, s{sTMP}")
            for k in range(self.nstamp):
                A(f"v_mov_b32 v2, s{sSTAMP + k}")
                A(f"global_store_dword v1, v2, {sp(sWS)} offset:{4 * k}")
        A("s_endpgm")

    def build(self):
        A = self.A
        self.allnames = {}
        A(f"{KNAME}:")
        A("s_cmp_ge_u32 s2, 256")
        A("s_cbranch_scc1 L_end")
        self.stamp("start")
        if self.o.get("probe", 0) == 99:
            A("s_memtime s[98:99]")
        cpf = self.o.get("codepf", 1)
        if cpf == 1:
            A(f"s_getpc_b64 {sp(sE)}")
            A("L_pc:")
            A("v_lshlrev_b32 v2, 5, v0")
            A(f"v_min_u32 v2, L_codeend-L_pc-4, v2")
            A(f"global_load_dword v3, v2, {sp(sE)}")
        elif cpf >= 2:
            A(f"s_getpc_b64 {sp(sE)}")
            A("L_pc:")
            A(f"s_bfe_u32 s3, s2, {3 | ((7 - cpf) << 16)}")
            A(f"s_lshl_b32 s3, s3, {7 + cpf}")
            A("v_lshl_add_u32 v2, v0, 7, s3")
            A(f"v_min_u32 v2, L_codeend-L_pc-4, v2")
            A(f"v_cmp_gt_u32 vcc, {1 << cpf}, v0")
            A("s_mov_b64 exec, vcc")
            A(f"global_load_dword v3, v2, {sp(sE)}")
            A("s_mov_b64 exec, -1")
        A("s_load_dwordx16 s[4:19], s[0:1], 0")
        A("s_load_dwordx8 s[20:27], s[0:1], 64")
        A("s_load_dwordx4 s[28:31], s[0:1], 96")
        A("s_load_dwordx2 s[32:33], s[0:1], 112")
        A("v_lshrrev_b32 v4, 6, v0")
        A(f"s_and_b32 s{sXCD}, s2, 7")
        A(f"v_readfirstlane_b32 s{sWAVE}, v4")
        A(f"s_lshr_b32 s{sPOS}, s2, 3")
        A(f"s_lshl_b32 s{sL}, s{sXCD}, 5")
        A(f"s_add_u32 s{sL}, s{sL}, s{sPOS}")
        A("v_and_b32 v1, 63, v0")
        A(f"s_mov_b32 s{sMASK}, 0xffff0000")
        pre = self.o.get("pre", 0)
        if pre:
            A("s_waitcnt lgkmcnt(0)")
            n = pre % 10
            kind = pre // 10
            A(f"s_mul_i32 s{sT0}, s{sL}, {n * 4096 + 128}")
            A(f"s_add_u32 s{sT0}, s{sT0}, {32 << 20}")
            A("v_and_b32 v5, 0xff, v0")
            A(f"v_lshl_add_u32 v5, v5, 4, s{sT0}")
            A(f"s_cmp_ge_u32 s{sWAVE}, 4")
            A("s_cbranch_scc1 L_pre")
            if kind in (2, 3):
                A("s_mov_b64 exec, 1")
                A(f"global_load_dword v8, v5, {sp(sWS)}")
                A("s_mov_b64 exec, -1")
                A("s_waitcnt vmcnt(0)")
                if kind == 3:
                    self.nstamp = 0
                    self.names = []
                    self.stamp("start")
            if kind in (8, 9, 10, 11):
                A("v_lshrrev_b32 v12, 1, v0")
                A("v_and_b32 v13, 1, v0")
                A("v_lshlrev_b32 v12, 3, v12")
                A(f"s_lshl_b32 s{sT0}, s{sL}, 13")
                A("v_lshl_add_u32 v14, v13, 12, v12")
                A(f"v_add_u32 v14, s{sT0}, v14")
                for r in range(4):
                    A(f"global_load_dwordx2 v[{16 + 2 * r}:{17 + 2 * r}], v14, s[18:19] offset:{1024 * r}{' nt' if kind != 10 else ''}")
                ny = 0
                if kind in (9, 11):
                    A(f"global_load_dwordx2 v[24:25], v12, {sp(sD)}")
                    A(f"global_load_dwordx2 v[26:27], v12, {sp(sWR)}")
                    A("v_lshlrev_b32 v13, 4, v1")
                    A(f"global_load_dwordx4 v[28:31], v13, {sp(sWR)}")
                    ny = 3
                if kind == 11:
                    A(f"s_load_dword s{sG}, {sp(sWS)}, 0")
                for k in range(n):
                    A(f"global_store_dwordx4 v5, v[8:11], {sp(sWS)} sc1")
                    A("v_add_u32 v5, 4096, v5")
                A(f"s_waitcnt vmcnt({n + ny})")
                self.stamp("pre")
                n = 0
            for k in range(n):
                if kind == 1:
                    A(f"global_load_dwordx4 v[8:11], v5, {sp(sWS)}")
                elif kind == 6:
                    if k == 0:
                        A(f"s_lshl_b32 s{sT0}, s{sL}, 7")
                        A(f"v_mov_b32 v6, s{sT0}")
                        A("s_mov_b64 exec, 1")
                    A(f"global_load_dword v{8 + k}, v6, {sp((sX, sLA, sAI, sCR, sCI, sWG, sWU, sWD, sOUT)[k])}")
                    if k == n - 1:
                        A("s_mov_b64 exec, -1")
                elif kind == 7:
                    if k == 0:
                        A(f"v_lshlrev_b32 v6, 3, v1")
                    A(f"global_load_dwordx2 v[{8 + 2 * k}:{9 + 2 * k}], v6, {sp((sD, sWR)[k])}")
                elif kind == 5:
                    A(f"global_load_dwordx4 v[8:11], v5, {sp(sWS)} nt")
                elif kind == 4:
                    A(f"global_store_dwordx4 v5, v[8:11], {sp(sWS)}")
                else:
                    A(f"global_store_dwordx4 v5, v[8:11], {sp(sWS)} sc1")
                A("v_add_u32 v5, 4096, v5")
            A("s_waitcnt vmcnt(0)")
            if kind < 8:
                self.stamp("pre")
            A("L_pre:")
            A("s_barrier")
        A(f"s_cmp_ge_u32 s{sWAVE}, 4")
        A("s_cbranch_scc1 L_chan")
        self.rows()
        self.names = self.names[:1]
        self.nstamp = min(self.nstamp, 1)
        A(".p2align 6")
        self.role = "C"
        self.chans()
        A("L_end:")
        A("s_endpgm")
        for l in self.tail.L:
            A(l)
        A("L_codeend:")
        lines, nops = A.padded()
        lines, nbytes, promoted, missed = align8(lines)
        self.info = dict(nops=nops, bytes=nbytes, promoted=promoted, missed=missed, lines=len(lines))
        return lines

    def rows(self):
        A = self.A
        o = self.o
        vLANE = 1
        vX, vU, vD, vWR = 212, 10, 18, 20
        vREG, vRD, vAUX = 22, 23, 24
        vKEY, vSW, vRA, vFL, vUW = 26, 27, 28, 29, 30
        vT = 32
        vWG, vWD = 40, 72
        vY = 88
        vONE = 96
        K = 100
        L2E = 1.4426950408889634
        A(f"v_lshrrev_b32 {v(vT)}, 1, v0")
        A(f"v_and_b32 {v(vT + 1)}, 1, v0")
        A(f"v_lshlrev_b32 {v(vT + 2)}, 3, {v(vT)}")
        A(f"s_lshl_b32 s{sT0}, s{sL}, 13")
        A(f"v_lshl_add_u32 {v(vRD)}, {v(vT + 1)}, 12, {v(vT + 2)}")
        A(f"v_add_u32 {v(vRD)}, s{sT0}, {v(vRD)}")
        A(f"s_mul_i32 s{sOWN}, s{sL}, {RS}")
        A(f"s_add_u32 s{sOWN}, s{sOWN}, {W_REG}")
        A(f"s_add_u32 s{sT0}, s{sOWN}, 4096")
        A(f"v_lshl_add_u32 {v(vREG)}, v0, 4, s{sT0}")
        A(f"v_lshlrev_b32 {v(vT + 3)}, 4, {v(vLANE)}")
        nt = ' nt' if o.get('ntx', 1) else ''
        A("s_waitcnt lgkmcnt(0)")
        self.stamp("karg")
        for r in range(4):
            A(f"global_load_dwordx2 {v(vX + 2 * r, 2)}, {v(vRD)}, {sp(sX)} offset:{1024 * r}{nt}")
        A(f"s_load_dword s{sG}, {sp(sWS)}, 0")
        A(f"global_load_dwordx2 {v(vD, 2)}, {v(vT + 2)}, {sp(sD)}")
        A(f"global_load_dwordx2 {v(vWR, 2)}, {v(vT + 2)}, {sp(sWR)}")
        A(f"global_load_dwordx4 {v(vONE, 4)}, {v(vT + 3)}, {sp(sWR)}")
        A(f"s_mov_b32 s{sODD}, 0xaaaaaaaa")
        A(f"s_mov_b32 s{sODD + 1}, 0xaaaaaaaa")
        A(f"s_mov_b32 s{sSELLO}, 0x3f80")
        A(f"s_mov_b32 s{sSELHI}, 0x3f800000")
        A(f"s_mov_b32 s{sONES}, 0x3f803f80")
        A(f"s_and_b32 s{sTMP}, s{sL}, 1")
        A(f"s_lshl_b32 s{sTMP}, s{sTMP}, 12")
        A(f"s_lshr_b32 s{sTMP + 1}, s{sL}, 1")
        A(f"s_lshl_b32 s{sTMP + 1}, s{sTMP + 1}, 5")
        A(f"s_add_u32 s{sTMP}, s{sTMP}, s{sTMP + 1}")
        A(f"s_add_u32 s{sTMP}, s{sTMP}, {W_REG + O_X1}")
        A(f"v_mul_u32_u24 {v(vAUX)}, {RS}, {v(vT)}")
        A(f"v_lshl_add_u32 {v(vAUX)}, {v(vT + 1)}, 4, {v(vAUX)}")
        A(f"v_add_u32 {v(vAUX)}, s{sTMP}, {v(vAUX)}")
        A(f"v_add_u32 {v(vAUX + 1)}, {128 * RS}, {v(vAUX)}")
        FS = o.get("fs", 7)
        KS = o.get("ks", 5)
        A(f"v_lshlrev_b32 {v(vSW)}, 6, {v(vT + 1)}")
        A(f"v_and_b32 {v(vT + 3)}, 4, {v(vLANE)}")
        A(f"v_lshl_add_u32 {v(vSW)}, {v(vT + 3)}, 3, {v(vSW)}")
        A(f"v_and_b32 {v(vT + 3)}, 8, {v(vLANE)}")
        A(f"v_lshl_add_u32 {v(vSW)}, {v(vT + 3)}, 4, {v(vSW)}")
        A(f"v_lshrrev_b32 {v(vT + 3)}, 5, {v(vLANE)}")
        A(f"v_lshl_add_u32 {v(vSW)}, {v(vT + 3)}, 4, {v(vSW)}")
        A(f"s_lshl_b32 s{sTMP}, s{sWAVE}, 2")
        A(f"s_add_u32 s{sTMP}, s{sTMP}, {L_RED1}")
        A(f"v_add_u32 {v(vSW)}, s{sTMP}, {v(vSW)}")
        A(f"v_and_b32 {v(vT + 3)}, 7, {v(vLANE)}")
        A(f"v_lshlrev_b32 {v(vRA)}, 4, {v(vT + 3)}")
        A(f"v_add_u32 {v(vRA)}, {L_RED1}, {v(vRA)}")
        A(f"v_lshlrev_b32 {v(vUW)}, 3, v0")
        A(f"v_mov_b32 {v(vFL)}, 0x9fff9fff")
        A(f"v_mov_b32 {v(K)}, 0")
        A(f"v_mov_b32 {v(K + 1)}, 0")
        A(f"v_min_u32 {v(vT + 3)}, 472, {v(vUW)}")
        A(f"v_add_u32 {v(vT + 3)}, {L_U}, {v(vT + 3)}")
        A(f"v_min_u32 {v(vT + 4)}, 56, {v(vUW)}")
        A(f"v_add_u32 {v(vT + 4)}, {L_P}, {v(vT + 4)}")
        A(f"ds_write2st64_b64 {v(vT + 3)}, {v(K, 2)}, {v(K, 2)} offset0:0 offset1:9")
        A(f"ds_write_b64 {v(vT + 4)}, {v(K, 2)}")
        A(f"ds_write_b64 {v(vT + 4)}, {v(K, 2)} offset:{PC}")
        A(f"v_add_u32 {v(vUW)}, {L_U + 480}, {v(vUW)}")

        V = [K + i for i in range(8)]
        A("s_waitcnt vmcnt(3)")
        self.stamp("x")
        for r in range(4):
            A(f"v_dot2_f32_bf16 {v(V[r])}, {v(vX + 2 * r)}, s{sONES}, 0")
        for r in range(4):
            A(f"v_dot2_f32_bf16 {v(V[4 + r])}, {v(vX + 2 * r)}, {v(vX + 2 * r)}, 0")
        for r in range(4):
            A(f"v_dot2_f32_bf16 {v(V[r])}, {v(vX + 2 * r + 1)}, s{sONES}, {v(V[r])}")
        for r in range(4):
            A(f"v_dot2_f32_bf16 {v(V[4 + r])}, {v(vX + 2 * r + 1)}, {v(vX + 2 * r + 1)}, {v(V[4 + r])}")
        self.reduce8(V, K + 8)
        A(f"ds_write_b32 {v(vSW)}, {v(V[0])}")
        A("s_waitcnt lgkmcnt(0)")
        A("s_barrier")
        self.stamp("b1")
        A(f"ds_read_b128 {v(K, 4)}, {v(vRA)}")
        A(f"ds_read_b128 {v(K + 4, 4)}, {v(vRA)} offset:128")
        A(f"s_add_u32 s{sG}, s{sG}, 1")
        for k in range(4):
            A(f"s_add_u32 s{sTAG + k}, s{sG}, {5 * k}")
            A(f"s_and_b32 s{sTAG + k}, s{sTAG + k}, 15")
            A(f"s_mul_i32 s{sTAG + k}, s{sTAG + k}, 0x08002000")
            A(f"s_and_b32 s{sTAG + k}, s{sTAG + k}, 0x60006000")
        A(f"s_mov_b64 vcc, {sp(sODD)}")
        A("s_waitcnt lgkmcnt(0)")
        vNM, vRI = K + 16, K + 20
        self.row_stats(K, K + 4, K + 10, K + 11, K + 12, 2.0 ** 68)
        self.spread(K + 10, vNM, K + 24)
        Dd = K + 32
        for c in range(4):
            for r in range(4):
                A(f"v_dot2_f32_bf16 {v(Dd + 4 * c + r)}, {v(vX + 2 * r + (c >> 1))}, s{sSELHI if c & 1 else sSELLO}, {v(vNM + r)}")
        self.spread(K + 11, vRI, K + 24)
        Pk = K + 48
        for half in range(2):
            ks = range(4 * half, 4 * half + 4)
            for k in ks:
                A(f"v_cvt_pk_bf16_f32 {v(Pk + k)}, {v(Dd + 2 * k)}, {v(Dd + 2 * k + 1)}")
            for k in ks:
                A(f"v_lshlrev_b32 {v(Dd + 2 * k)}, 16, {v(Pk + k)}")
                A(f"v_and_b32 {v(Dd + 2 * k + 1)}, s{sMASK}, {v(Pk + k)}")
            for k in ks:
                A(f"v_pk_mul_f32 {v(Dd + 2 * k, 2)}, {v(Dd + 2 * k, 2)}, {v(vRI + 2 * (k & 1), 2)}")
            for k in ks:
                A(f"v_cvt_pk_bf16_f32 {v(vU + k)}, {v(Dd + 2 * k)}, {v(Dd + 2 * k + 1)}")
            for k in ks:
                A(f"v_and_or_b32 {v(Pk + k)}, {v(vU + k)}, {v(vFL)}, s{sTAG + (k & 3)}")
            if half == 0 and o.get("b1b", 1):
                A("s_barrier")
            A(f"global_store_dwordx4 {v(vREG)}, {v(Pk + 4 * half, 4)}, {sp(sWS)} offset:{-4096 + 4096 * half} sc1")
        self.stamp("x1st")
        A("s_waitcnt vmcnt(0)")
        self.stamp("x1dr")
        xl = [f"global_load_dwordx4 {v(vY, 4)}, {v(vAUX)}, {sp(sWS)} sc1",
              f"global_load_dwordx4 {v(vY + 4, 4)}, {v(vAUX + 1)}, {sp(sWS)} sc1"]
        for l in xl:
            A(l)
        A("s_barrier")
        A(f"s_mul_i32 s{sF}, s{sXCD}, 14")
        A(f"s_add_u32 s{sF}, s{sF}, s{sPOS}")
        A(f"s_bitcmp1_b32 s{sWAVE}, 0")
        A(f"s_cselect_b64 {sp(sWSEL)}, {sp(sWU)}, {sp(sWG)}")
        A(f"s_lshr_b32 s{sTMP + 1}, s{sWAVE}, 1")
        A(f"s_mul_i32 s{sTMP + 1}, s{sTMP + 1}, {256 * 3584}")
        A(f"s_lshl_b32 s{sTMP + 2}, s{sF}, 5")
        A(f"s_add_u32 s{sTMP + 1}, s{sTMP + 1}, s{sTMP + 2}")
        vWA = K + 8
        A(f"v_lshrrev_b32 {v(vWA)}, 1, {v(vLANE)}")
        A(f"v_mul_u32_u24 {v(vWA)}, {8 * 3584}, {v(vWA)}")
        A(f"v_lshl_add_u32 {v(vWA)}, {v(vT + 1)}, 4, {v(vWA)}")
        A(f"v_add_u32 {v(vWA)}, s{sTMP + 1}, {v(vWA)}")
        A(f"v_add_u32 {v(vWA + 2)}, {7 * 3584}, {v(vWA)}")
        A(f"v_add_u32 {v(vWA + 1)}, {4 * 3584}, {v(vWA)}")
        A(f"v_add_u32 {v(vWA)}, 3584, {v(vWA)}")
        A(f"s_lshl_b32 s{sTMP + 1}, s{sF}, 14")
        A(f"s_add_u32 s{sTMP + 1}, s{sTMP + 1}, 4096")
        A(f"v_lshl_add_u32 {v(vWA + 3)}, v0, 2, s{sTMP + 1}")
        A(f"v_add_u32 {v(vWA + 4)}, 8192, {v(vWA + 3)}")
        i2 = o.get("i2", 0)
        if i2:
            A(f"s_lshl_b32 s{sTMP}, s{sWAVE}, 11")
            A(f"s_add_u32 s{sTMP}, s{sTMP}, s{sOWN}")
            A(f"s_add_u32 s{sTMP}, s{sTMP}, {O_X2}")
            A(f"v_lshl_add_u32 {v(vWA + 5)}, {v(vLANE)}, 4, s{sTMP}")
            A(f"v_add_u32 {v(vWA + 6)}, {O_SLOT - 4096}, {v(vREG)}")
            A(f"s_lshl_b32 s{sTMP}, s{sL}, {KS}")
            A(f"s_add_u32 s{sTMP}, s{sTMP}, {W_KEY}")
            A(f"v_lshl_add_u32 {v(vWA + 7)}, {v(vLANE)}, 4, s{sTMP}")
            A(f"s_lshl_b32 s{sTMP}, s{sL}, 2")
            A(f"s_add_u32 s{sTMP}, s{sTMP}, s{sWAVE}")
            A(f"s_lshl_b32 s{sTMP}, s{sTMP}, 7")
            A(f"s_add_u32 s{sTMP}, s{sTMP}, {W_FLAG2}")
            A(f"v_lshl_add_u32 {v(vKEY)}, {v(vLANE)}, 4, s{sTMP}")
            A(f"s_lshr_b32 s{sTMP}, s{sL}, 6")
            A(f"s_lshl_b32 s{sTMP}, s{sTMP}, 7")
            A(f"s_add_u32 s{sTMP}, s{sTMP}, {W_FLAG2}")
            A(f"v_and_b32 {v(vFL)}, 0xfe, v0")
            A(f"v_lshl_add_u32 {v(vFL)}, {v(vFL)}, 9, s{sTMP}")
            for k in range(4):
                A(f"v_mov_b32 {v(K + 32 + k)}, -1")
        A(f"v_dot2_f32_bf16 {v(K + 4)}, {v(vONE)}, s{sONES}, 0")
        for k in range(1, 4):
            A(f"v_dot2_f32_bf16 {v(K + 4)}, {v(vONE + k)}, s{sONES}, {v(K + 4)}")
        A(f"v_mov_b32 {v(K + 5)}, {L_SUMW}")
        A(f"s_mov_b32 s{sRP0}, 0x05040100")
        A(f"s_mov_b32 s{sRP1}, 0x07060302")
        for sh in (8, 4, 2, 1):
            A(f"v_add_f32_dpp {v(K + 4)}, {v(K + 4)}, {v(K + 4)} row_ror:{sh} row_mask:0xf bank_mask:0xf")
        A(f"v_add_f32_dpp {v(K + 4)}, {v(K + 4)}, {v(K + 4)} row_bcast:15 row_mask:0xa bank_mask:0xf")
        A(f"v_add_f32_dpp {v(K + 4)}, {v(K + 4)}, {v(K + 4)} row_bcast:31 row_mask:0xc bank_mask:0xf")
        A("s_mov_b32 exec_lo, 0")
        A("s_brev_b32 exec_hi, 1")
        A(f"ds_write_b32 {v(K + 5)}, {v(K + 4)}")
        A("s_mov_b64 exec, -1")
        A("s_barrier")
        A("s_waitcnt vmcnt(0)")
        chk8 = [f"v_max3_u32 {v(vT + 6)}, {v(vY)}, {v(vY + 1)}, {v(vY + 2)}",
                f"v_max3_u32 {v(vT + 7)}, {v(vY + 3)}, {v(vY + 4)}, {v(vY + 5)}",
                f"v_max3_u32 {v(vT + 6)}, {v(vT + 6)}, {v(vY + 6)}, {v(vY + 7)}",
                f"v_max_u32 {v(vT + 6)}, {v(vT + 6)}, {v(vT + 7)}",
                f"v_cmp_eq_u32 vcc, -1, {v(vT + 6)}"]
        Z = K + 32
        tchk = [f"v_xor_b32 {v(Z + k)}, s{sTAG + (k & 3)}, {v(vY + k)}" for k in range(8)]
        tchk += [f"v_or3_b32 {v(vT + 6)}, {v(Z)}, {v(Z + 1)}, {v(Z + 2)}",
                 f"v_or3_b32 {v(vT + 7)}, {v(Z + 3)}, {v(Z + 4)}, {v(Z + 5)}",
                 f"v_or3_b32 {v(vT + 6)}, {v(vT + 6)}, {v(Z + 6)}, {v(Z + 7)}",
                 f"v_or_b32 {v(vT + 6)}, {v(vT + 6)}, {v(vT + 7)}",
                 f"v_and_b32 {v(vT + 6)}, 0x60006000, {v(vT + 6)}",
                 "s_nop 1",
                 f"v_or_b32_dpp {v(vT + 6)}, {v(vT + 6)}, {v(vT + 6)} quad_perm:[1,0,3,2] row_mask:0xf bank_mask:0xf",
                 f"v_cmp_ne_u32 vcc, 0, {v(vT + 6)}"]
        self.poll("x1", xl, tchk)
        self.stamp("x1ld")
        A(f"ds_write2st64_b64 {v(vUW)}, {v(Z, 2)}, {v(Z + 2, 2)} offset0:0 offset1:9")
        A(f"ds_write2st64_b64 {v(vUW)}, {v(Z + 4, 2)}, {v(Z + 6, 2)} offset0:4 offset1:13")
        A("s_waitcnt lgkmcnt(0)")
        A("s_barrier")

        fl2 = [f"global_load_dword {v(vT + 4)}, {v(vFL)}, {sp(sWS)} sc1",
               f"global_load_dword {v(vT + 5)}, {v(vFL)}, {sp(sWS)} offset:512 sc1"]
        wl = [f"global_load_dwordx4 {v(vWG + 4 * k, 4)}, {v(vWA + k // 3)}, {sp(sWSEL)} offset:{(k % 3 - 1) * 3584}" for k in range(8)]
        wl += [f"global_load_dword {v(vWD + k)}, {v(vWA + 3 + (k >> 3))}, {sp(sWD)} offset:{((k & 7) - 4) * 1024}" for k in range(16)]
        flst = ["s_mov_b64 exec, 0xff",
                f"global_store_dwordx4 {v(vKEY)}, {v(K + 28, 4)}, {sp(sWS)} sc1",
                "s_mov_b64 exec, -1"]
        if i2:
            ones = v(K + 32, 4)
            A(f"s_cmp_eq_u32 s{sWAVE}, 0")
            A(f"s_cselect_b64 exec, {(1 << ((1 << KS) // 16)) - 1}, 0")
            A(f"global_store_dwordx4 {v(vWA + 7)}, {ones}, {sp(sWS)} sc1")
            A("s_mov_b64 exec, -1")
            A(f"global_store_dwordx4 {v(vWA + 5)}, {ones}, {sp(sWS)} sc1")
            A(f"global_store_dwordx4 {v(vWA + 5)}, {ones}, {sp(sWS)} offset:1024 sc1")
            A(f"global_store_dwordx4 {v(vWA + 6)}, {ones}, {sp(sWS)} sc1")
        if i2 == 1:
            A("s_waitcnt vmcnt(0)")
            for l in flst:
                A(l)
            self.stamp("init2")
        A(f"s_cmp_lt_u32 s{sPOS}, 14")
        A("s_cbranch_scc0 L_now")
        for k, l in enumerate(wl):
            A(l)
            if i2 == 2 and k == 3:
                A("s_waitcnt vmcnt(4)")
                for l2 in flst:
                    A(l2)
        self.stamp("wq2")
        if i2 == 2:
            A("s_branch L_now2")
        A("L_now:")
        if i2 == 2:
            A("s_waitcnt vmcnt(0)")
            for l in flst:
                A(l)
            A("L_now2:")
        A(f"v_and_b32 {v(vT + 3)}, 0xfe, v0")
        A(f"v_mul_u32_u24 {v(vAUX)}, {RS}, {v(vT + 3)}")
        A(f"v_lshl_add_u32 {v(vAUX)}, {v(vT + 1)}, 4, {v(vAUX)}")
        A(f"s_lshl_b32 s{sTMP}, s{sL}, 5")
        A(f"s_add_u32 s{sTMP}, s{sTMP}, {W_REG + O_X2}")
        A(f"v_add_u32 {v(vAUX)}, s{sTMP}, {v(vAUX)}")
        A(f"v_add_u32 {v(vAUX + 1)}, {RS}, {v(vAUX)}")
        Tt, Xf = K + 40, K + 56
        Df = K + 72
        for k in range(8):
            A(f"v_lshlrev_b32 {v(Tt + 2 * k)}, 16, {v(vU + k)}")
            A(f"v_and_b32 {v(Tt + 2 * k + 1)}, s{sMASK}, {v(vU + k)}")
        A(f"v_lshlrev_b32 {v(Df)}, 16, {v(vD)}")
        A(f"v_and_b32 {v(Df + 1)}, s{sMASK}, {v(vD)}")
        A(f"v_lshlrev_b32 {v(Df + 2)}, 16, {v(vD + 1)}")
        A(f"v_and_b32 {v(Df + 3)}, s{sMASK}, {v(vD + 1)}")
        for k in range(4):
            A(f"v_mul_f32 {v(Df + k)}, {hex(f2u(2.0 ** 68))}, {v(Df + k)}")
        for k in range(8):
            c = k >> 1
            sel = "op_sel:[1,0] op_sel_hi:[1,1]" if c & 1 else "op_sel_hi:[0,1]"
            A(f"v_pk_mul_f32 {v(Tt + 2 * k, 2)}, {v(Df + (c & 2), 2)}, {v(Tt + 2 * k, 2)} {sel}")
        for k in range(8):
            A(f"v_cvt_pk_bf16_f32 {v(Xf + k)}, {v(Tt + 2 * k)}, {v(Tt + 2 * k + 1)}")
        for k in range(8):
            A(f"v_lshlrev_b32 {v(Tt + 2 * k)}, 16, {v(Xf + k)}")
            A(f"v_and_b32 {v(Tt + 2 * k + 1)}, s{sMASK}, {v(Xf + k)}")
        for r in range(4):
            for c in range(4):
                src = v(vX + 2 * r + (c >> 1))
                if c & 1:
                    A(f"v_and_b32 {v(Xf + 4 * c + r)}, s{sMASK}, {src}")
                else:
                    A(f"v_lshlrev_b32 {v(Xf + 4 * c + r)}, 16, {src}")
        vTW, vTS, vTO, vSL = vUW, vFL, 31, vKEY
        A(f"s_mul_i32 s{sTMP}, s{sWAVE}, {3 * WTILE}")
        A(f"s_add_u32 s{sTMP}, s{sTMP}, {L_TILE}")
        A(f"v_mul_u32_u24 {v(vTW)}, {4 * WST}, {v(vT + 1)}")
        A(f"v_lshrrev_b32 {v(vT + 3)}, 1, {v(vLANE)}")
        A(f"v_lshl_add_u32 {v(vTW)}, {v(vT + 3)}, 3, {v(vTW)}")
        A(f"v_add_u32 {v(vTW)}, s{sTMP}, {v(vTW)}")
        A(f"v_lshrrev_b32 {v(vT + 3)}, 4, {v(vLANE)}")
        A(f"v_and_b32 {v(vT + 4)}, 15, {v(vLANE)}")
        A(f"v_lshl_add_u32 {v(vT + 5)}, {v(vT + 4)}, 4, s{sTMP}")
        A(f"s_movk_i32 s{sTMP}, {WST}")
        A(f"v_mad_u32_u24 {v(vTO)}, {v(vT + 3)}, s{sTMP}, {v(vT + 5)}")
        A(f"s_movk_i32 s{sTMP}, {WTILE}")
        A(f"v_mad_u32_u24 {v(vTS)}, {v(vT + 3)}, s{sTMP}, {v(vT + 5)}")
        A(f"v_lshlrev_b32 {v(vT + 4)}, 4, {v(vT + 4)}")
        A(f"v_lshl_add_u32 {v(vT + 4)}, {v(vT + 3)}, 10, {v(vT + 4)}")
        A(f"s_lshl_b32 s{sTMP}, s{sWAVE}, 8")
        A(f"s_add_u32 s{sTMP + 1}, s{sTMP}, s{sOWN}")
        A(f"s_add_u32 s{sTMP + 1}, s{sTMP + 1}, {O_SLOT}")
        A(f"v_add_u32 {v(vSL)}, s{sTMP + 1}, {v(vT + 4)}")
        A(f"s_lshl_b32 s{sTMP + 1}, s{sL}, 13")
        A(f"s_add_u32 s{sTMP}, s{sTMP}, s{sTMP + 1}")
        A(f"s_add_u32 s{sTMP}, s{sTMP}, 4096")
        A(f"v_add_u32 {v(vRD)}, s{sTMP}, {v(vT + 4)}")
        self.stamp("shadow")
        A("s_barrier")
        if i2:
            for l in fl2:
                A(l)
            A("s_waitcnt vmcnt(0)")
            self.poll("flag2", fl2, flchk)
            self.stamp("flag2")
        A("s_barrier")
        self.stamp("b4b")
        for l in xl:
            A(l)
        A("s_waitcnt vmcnt(0)")
        self.poll("x2", xl, chk8)
        self.stamp("x2ld")

        for k in range(8):
            A(f"v_dot2_f32_bf16 {v(Tt + 2 * k)}, {v(vY + k)}, s{sSELLO}, {v(Tt + 2 * k)}")
            A(f"v_dot2_f32_bf16 {v(Tt + 2 * k + 1)}, {v(vY + k)}, s{sSELHI}, {v(Tt + 2 * k + 1)}")
        for k in range(8):
            A(f"v_cvt_pk_bf16_f32 {v(vY + k)}, {v(Tt + 2 * k)}, {v(Tt + 2 * k + 1)}")
        for k in range(8):
            A(f"v_dot2_f32_bf16 {v(Xf + 2 * k)}, {v(vY + k)}, s{sSELLO}, {v(Xf + 2 * k)}")
            A(f"v_dot2_f32_bf16 {v(Xf + 2 * k + 1)}, {v(vY + k)}, s{sSELHI}, {v(Xf + 2 * k + 1)}")
        vH = vX
        for cp in range(2):
            for r in range(4):
                A(f"v_cvt_pk_bf16_f32 {v(vH + 2 * r + cp)}, {v(Xf + 8 * cp + r)}, {v(Xf + 8 * cp + 4 + r)}")
        Rr = [K + 8 + i for i in range(4)]
        for cp in range(2):
            for r in range(4):
                A(f"v_dot2_f32_bf16 {v(V[r])}, {v(vH + 2 * r + cp)}, s{sONES}, {v(V[r]) if cp else 0}")
            for r in range(4):
                A(f"v_dot2_f32_bf16 {v(V[4 + r])}, {v(vH + 2 * r + cp)}, {v(vH + 2 * r + cp)}, {v(V[4 + r]) if cp else 0}")
            for r in range(4):
                A(f"v_dot2_f32_bf16 {v(Rr[r])}, {v(vH + 2 * r + cp)}, {v(vWR + cp)}, {v(Rr[r]) if cp else 0}")
        for i in range(4):
            A(f"v_add_f32_dpp {v(V[i])}, {v(V[i])}, {v(V[i])} row_ror:8 row_mask:0xf bank_mask:0x3")
        for i in range(4):
            A(f"v_add_f32_dpp {v(V[i])}, {v(V[i + 4])}, {v(V[i + 4])} row_ror:8 row_mask:0xf bank_mask:0xc")
        for i in range(2):
            A(f"v_add_f32_dpp {v(Rr[i])}, {v(Rr[i])}, {v(Rr[i])} row_shl:4 row_mask:0xf bank_mask:0x5")
        for i in range(2):
            A(f"v_add_f32_dpp {v(Rr[i])}, {v(Rr[i + 2])}, {v(Rr[i + 2])} row_shr:4 row_mask:0xf bank_mask:0xa")
        for i in range(2):
            A(f"v_add_f32_dpp {v(V[i])}, {v(V[i])}, {v(V[i])} row_shl:4 row_mask:0xf bank_mask:0x5")
        for i in range(2):
            A(f"v_add_f32_dpp {v(V[i])}, {v(V[i + 2])}, {v(V[i + 2])} row_shr:4 row_mask:0xf bank_mask:0xa")
        A(f"v_permlane32_swap_b32 {v(Rr[0])}, {v(Rr[1])}")
        A(f"v_and_b32 {v(K + 13)}, 0xffffff7f, {v(vSW)}")
        A(f"v_permlane32_swap_b32 {v(V[0])}, {v(V[1])}")
        A(f"v_add_f32 {v(Rr[0])}, {v(Rr[0])}, {v(Rr[1])}")
        A(f"v_add_f32 {v(V[0])}, {v(V[0])}, {v(V[1])}")
        A(f"s_mov_b64 vcc, {sp(sODD)}")
        A(f"v_add_f32_dpp {v(Rr[0])}, {v(Rr[0])}, {v(Rr[0])} row_ror:8 row_mask:0xf bank_mask:0xf")
        A(f"v_add_f32_dpp {v(V[0])}, {v(V[0])}, {v(V[0])} quad_perm:[2,3,0,1] row_mask:0xf bank_mask:0xf")
        A(f"v_mov_b32 {v(V[1])}, {v(V[0])}")
        A(f"v_add_f32_dpp {v(Rr[0])}, {v(Rr[0])}, {v(Rr[0])} quad_perm:[2,3,0,1] row_mask:0xf bank_mask:0xf")
        A(f"v_mov_b32 {v(Rr[1])}, {v(Rr[0])}")
        A(f"v_permlane16_swap_b32 {v(V[0])}, {v(V[1])}")
        A(f"v_add_f32 {v(V[0])}, {v(V[0])}, {v(V[1])}")
        A(f"v_permlane16_swap_b32 {v(Rr[0])}, {v(Rr[1])}")
        A(f"v_add_f32 {v(Rr[0])}, {v(Rr[0])}, {v(Rr[1])}")
        A(f"ds_write_b32 {v(vSW)}, {v(V[0])} offset:{L_RED2 - L_RED1}")
        A(f"ds_write_b32 {v(K + 13)}, {v(Rr[0])} offset:{L_RED2 - L_RED1 + 256}")
        A("s_waitcnt lgkmcnt(0)")
        A("s_barrier")
        self.stamp("b5")
        Hf, Dd = Xf, Tt
        self.key_calc(K, vRA, vLANE)
        for r in range(4):
            A(f"ds_write_b64 {v(vTW)}, {v(vH + 2 * r, 2)} offset:{WTILE + r * WST}")
        self.spread(K + 12, vNM, K + 24)
        A(f"v_readfirstlane_b32 s{sBEST}, {v(K + 8)}")
        for r in range(4):
            for cp in range(2):
                A(f"v_lshlrev_b32 {v(Hf + 4 * r + 2 * cp)}, 16, {v(vH + 2 * r + cp)}")
                A(f"v_and_b32 {v(Hf + 4 * r + 2 * cp + 1)}, s{sMASK}, {v(vH + 2 * r + cp)}")
        self.spread(K + 13, vRI, K + 24)
        for k in range(8):
            r = k >> 1
            sel = "op_sel:[1,0] op_sel_hi:[1,1]" if r & 1 else "op_sel_hi:[0,1]"
            A(f"v_pk_add_f32 {v(Dd + 2 * k, 2)}, {v(vNM + (r & 2), 2)}, {v(Hf + 2 * k, 2)} {sel}")
        vX2 = vU
        for k in range(8):
            A(f"v_cvt_pk_bf16_f32 {v(vX2 + k)}, {v(Dd + 2 * k)}, {v(Dd + 2 * k + 1)}")
        for k in range(8):
            A(f"v_lshlrev_b32 {v(Dd + 2 * k)}, 16, {v(vX2 + k)}")
            A(f"v_and_b32 {v(Dd + 2 * k + 1)}, s{sMASK}, {v(vX2 + k)}")
        for k in range(8):
            r = k >> 1
            sel = "op_sel:[1,0] op_sel_hi:[1,1]" if r & 1 else "op_sel_hi:[0,1]"
            A(f"v_pk_mul_f32 {v(Dd + 2 * k, 2)}, {v(vRI + (r & 2), 2)}, {v(Dd + 2 * k, 2)} {sel}")
        for k in range(8):
            A(f"v_cvt_pk_bf16_f32 {v(vX2 + k)}, {v(Dd + 2 * k)}, {v(Dd + 2 * k + 1)}")
        for r in range(4):
            A(f"ds_write_b64 {v(vTW)}, {v(vX2 + 2 * r, 2)} offset:{r * WST}")
        A(f"s_andn2_b32 s{sTMP}, 7, s{sBEST}")
        A(f"s_mul_i32 s{sTMP + 1}, s{sTMP}, {WST}")
        A(f"v_add_u32 {v(vTS)}, s{sTMP + 1}, {v(vTS)}")
        A(f"ds_read_b128 {v(K + 24, 4)}, {v(vTS)}")
        for k in range(8):
            A(f"v_dot2_f32_bf16 {v(Hf + 2 * k)}, {v(vX2 + k)}, s{sSELLO}, {v(Hf + 2 * k)}")
            A(f"v_dot2_f32_bf16 {v(Hf + 2 * k + 1)}, {v(vX2 + k)}, s{sSELHI}, {v(Hf + 2 * k + 1)}")
        A("s_mov_b32 exec_hi, 0")
        A("s_waitcnt lgkmcnt(0)")
        A(f"global_store_dwordx4 {v(vSL)}, {v(K + 24, 4)}, {sp(sWS)} sc1")
        A("s_mov_b32 exec_hi, -1")
        self.stamp("slot")
        vO = vU
        for k in range(8):
            A(f"v_cvt_pk_bf16_f32 {v(vY + k)}, {v(Hf + 2 * k)}, {v(Hf + 2 * k + 1)}")
        for r in range(4):
            A(f"ds_write_b64 {v(vTW)}, {v(vY + 2 * r, 2)} offset:{2 * WTILE + r * WST}")
        for i in range(2):
            A(f"ds_read_b128 {v(vO + 4 * i, 4)}, {v(vTO)} offset:{2 * WTILE + 4 * i * WST}")
        A(f"v_mov_b32 {v(vT + 4)}, {L_REDK}")
        A(f"s_and_b32 s{sTMP + 1}, s{sTMP}, 3")
        A(f"s_lshl_b32 s{sTMP + 1}, s{sTMP + 1}, 4")
        A(f"s_mov_b64 {sp(sE)}, 0xffff")
        A(f"s_lshl_b64 {sp(sE)}, {sp(sE)}, s{sTMP + 1}")
        A(f"s_lshr_b32 s{sCAND}, s{sTMP}, 2")
        osc = " sc1" if o.get("outsc", 1) == 1 else ""
        olate = o.get("olate", 0)
        ost = [f"global_store_dwordx4 {v(vRD)}, {v(vO + 4 * i, 4)}, {sp(sOUT)} offset:{4096 * i - 4096}{osc}" for i in range(2)]
        A("s_waitcnt lgkmcnt(0)")
        if not olate:
            for i in range(2):
                A(f"s_cmp_eq_u32 s{sCAND}, {i}")
                A(f"s_cselect_b64 vcc, {sp(sE)}, 0")
                A("s_not_b64 exec, vcc")
                A(ost[i])
            A("s_mov_b64 exec, -1")
        A(f"s_lshr_b32 s{sTMP}, s{sWAVE}, 1")
        A(f"s_lshl_b32 s{sTMP}, s{sTMP}, 9")
        A(f"s_add_u32 s{sTMP}, s{sTMP}, {W_REG + O_SLOT}")
        A(f"v_lshrrev_b32 {v(vT)}, 1, {v(vLANE)}")
        A(f"v_lshl_add_u32 {v(vT)}, {v(vT)}, 4, s{sTMP}")
        A(f"v_lshlrev_b32 {v(vT + 1)}, 6, {v(vT + 1)}")
        A(f"v_and_b32 {v(vT + 2)}, 12, {v(vLANE)}")
        A(f"v_lshl_add_u32 {v(vT + 1)}, {v(vT + 2)}, 2, {v(vT + 1)}")
        A(f"v_lshrrev_b32 {v(vT + 2)}, 5, {v(vLANE)}")
        A(f"v_lshl_add_u32 {v(vT + 1)}, {v(vT + 2)}, 3, {v(vT + 1)}")
        A(f"s_and_b32 s{sTMP}, s{sWAVE}, 1")
        A(f"s_lshl_b32 s{sTMP}, s{sTMP}, 7")
        A(f"s_lshr_b32 s{sTMP + 1}, s{sWAVE}, 1")
        A(f"s_lshl_b32 s{sTMP + 1}, s{sTMP + 1}, 2")
        A(f"s_add_u32 s{sTMP}, s{sTMP}, s{sTMP + 1}")
        A(f"s_add_u32 s{sTMP}, s{sTMP}, {L_REDF}")
        A(f"v_add_u32 {v(vT + 1)}, s{sTMP}, {v(vT + 1)}")
        A(f"v_and_b32 {v(vT + 2)}, 15, {v(vLANE)}")
        A(f"v_lshlrev_b32 {v(vT + 2)}, 3, {v(vT + 2)}")
        A(f"v_add_u32 {v(vT + 2)}, {L_REDF}, {v(vT + 2)}")
        A(f"s_add_u32 s{sTMP}, s{sOWN}, {O_PART}")
        A(f"v_lshl_add_u32 {v(vT + 3)}, v0, 3, s{sTMP}")
        WGp = K + 80
        for kp in range(4):
            for d in range(4):
                lo, hi = vWG + 8 * kp + d, vWG + 8 * kp + 4 + d
                A(f"v_perm_b32 {v(WGp + 8 * kp + 2 * d)}, {v(hi)}, {v(lo)}, s{sRP0}")
                A(f"v_perm_b32 {v(WGp + 8 * kp + 2 * d + 1)}, {v(hi)}, {v(lo)}, s{sRP1}")
        WDp = vWG
        for kp in range(8):
            lo, hi = vWD + 2 * kp, vWD + 2 * kp + 1
            A(f"v_perm_b32 {v(WDp + 2 * kp)}, {v(hi)}, {v(lo)}, s{sRP0}")
            A(f"v_perm_b32 {v(WDp + 2 * kp + 1)}, {v(hi)}, {v(lo)}, s{sRP1}")
        self.stamp("outst")
        A("s_barrier")
        A(f"ds_read_b32 {v(K)}, {v(vT + 4)}")
        A("s_waitcnt lgkmcnt(0)")
        A(f"v_readfirstlane_b32 s{sWIN}, {v(K)}")
        A(f"s_andn2_b32 s{sT0}, 2047, s{sWIN}")
        A(f"s_lshr_b32 s{sT1}, s{sT0}, 3")
        A(f"s_mul_i32 s{sT1}, s{sT1}, {RS}")
        A(f"s_cmp_lt_u32 s{sPOS}, 14")
        A("s_cbranch_scc0 L_noffn")
        A(f"v_add_u32 {v(vT)}, s{sT1}, {v(vT)}")
        sl = [f"global_load_dwordx4 {v(K, 4)}, {v(vT)}, {sp(sWS)} sc1"]
        A(sl[0])
        self.stamp("win")
        A("s_waitcnt vmcnt(0)")
        self.poll("sel", sl, [f"v_max3_u32 {v(vT + 6)}, {v(K)}, {v(K + 1)}, {v(K + 2)}",
                              f"v_max_u32 {v(vT + 6)}, {v(vT + 6)}, {v(K + 3)}",
                              f"v_cmp_eq_u32 vcc, -1, {v(vT + 6)}"])
        self.stamp("sel")
        V2 = [K + 8 + i for i in range(8)]
        for kp in range(4):
            for c in range(8):
                A(f"v_dot2_f32_bf16 {v(V2[c])}, {v(K + kp)}, {v(WGp + 8 * kp + c)}, {v(V2[c]) if kp else 0}")
        self.reduce8(V2, K + 16)
        A(f"ds_write_b32 {v(vT + 1)}, {v(V2[0])}")
        A("s_waitcnt lgkmcnt(0)")
        A("s_barrier")
        A(f"ds_read_b64 {v(K, 2)}, {v(vT + 2)}")
        A(f"ds_read_b64 {v(K + 2, 2)}, {v(vT + 2)} offset:128")
        A("s_waitcnt lgkmcnt(0)")
        A(f"v_add_f32 {v(K)}, {v(K)}, {v(K + 1)}")
        A(f"v_add_f32 {v(K + 2)}, {v(K + 2)}, {v(K + 3)}")
        A(f"v_cvt_pk_bf16_f32 {v(K + 1)}, {v(K)}, {v(K + 2)}")
        A(f"v_lshlrev_b32 {v(K)}, 16, {v(K + 1)}")
        A(f"v_mul_f32 {v(K + 3)}, {hex(f2u(-L2E))}, {v(K)}")
        A(f"v_exp_f32 {v(K + 3)}, {v(K + 3)}")
        A(f"v_and_b32 {v(K + 2)}, s{sMASK}, {v(K + 1)}")
        A(f"v_add_f32 {v(K + 3)}, 1.0, {v(K + 3)}")
        A(f"v_rcp_f32 {v(K + 3)}, {v(K + 3)}")
        A(f"v_mul_f32 {v(K)}, {v(K)}, {v(K + 3)}")
        A(f"v_cvt_pk_bf16_f32 {v(K)}, {v(K)}, {v(K)}")
        A(f"v_and_b32 {v(K)}, s{sMASK}, {v(K)}")
        A(f"v_mul_f32 {v(K)}, {v(K)}, {v(K + 2)}")
        A(f"v_mov_b32_dpp {v(K + 1)}, {v(K)} quad_perm:[1,1,3,3] row_mask:0xf bank_mask:0xf")
        A(f"v_cvt_pk_bf16_f32 {v(K)}, {v(K)}, {v(K + 1)}")
        for kp in range(8):
            A(f"v_readlane_b32 s{sH + kp}, {v(K)}, {2 * kp}")
        for kp in range(8):
            for c in range(2):
                A(f"v_dot2_f32_bf16 {v(K + 4 + c)}, s{sH + kp}, {v(WDp + 2 * kp + c)}, {v(K + 4 + c) if kp else 0}")
        A(f"global_store_dwordx2 {v(vT + 3)}, {v(K + 4, 2)}, {sp(sWS)} sc1")
        self.stamp("part")
        held = [f"s_cmp_eq_u32 s{sWIN}, s{sBEST}",
                f"s_cselect_b32 s{sCAND}, s{sCAND}, 8" if olate else f"s_cselect_b32 s{sCAND}, 8, s{sCAND}"]
        for i in range(2):
            held += [f"s_cmp_eq_u32 s{sCAND}, {i}"]
            if olate:
                held += [f"s_cselect_b64 vcc, {sp(sE)}, 0", "s_not_b64 exec, vcc"]
            else:
                held += [f"s_cselect_b64 exec, {sp(sE)}, 0"]
            held += [ost[i]]
        held += ["s_mov_b64 exec, -1"]
        gen_st = [f"s_lshl_b32 s{sTMP}, s{sL}, 2",
                  f"s_add_u32 s{sTMP}, s{sTMP}, s{sWAVE}",
                  f"s_cmp_eq_u32 s{sTMP}, 3",
                  "s_cselect_b64 exec, 1, 0",
                  f"v_mov_b32 {v(vT + 4)}, s{sG}",
                  f"v_mov_b32 {v(vT + 5)}, 0",
                  f"global_store_dword {v(vT + 5)}, {v(vT + 4)}, {sp(sWS)} sc1"]
        T = self.tail
        T("L_noffn:")
        for l in held + gen_st:
            T(l)
        T("s_branch L_fin")
        A(f"s_cmp_lt_u32 s{sPOS}, 8")
        A("s_cbranch_scc0 L_noffn")
        A(f"s_cmp_lt_u32 s{sWAVE}, 2")
        A("s_cbranch_scc0 L_noffn")
        if not olate:
            for l in held:
                A(l)
        A(f"s_lshl_b32 s{sTMP}, s{sXCD}, 3")
        A(f"s_add_u32 s{sTMP}, s{sTMP}, s{sPOS}")
        A(f"s_lshl_b32 s{sTMP}, s{sTMP}, 1")
        A(f"s_add_u32 s{sTMP}, s{sTMP}, s{sWAVE}")
        A(f"v_lshrrev_b32 {v(vT)}, 5, {v(vLANE)}")
        A(f"v_bfe_u32 {v(vT + 1)}, {v(vLANE)}, 4, 1")
        A(f"v_lshl_add_u32 {v(vT)}, {v(vT + 1)}, 1, {v(vT)}")
        A(f"s_lshl_b32 s{sTMP + 1}, s{sTMP}, 3")
        A(f"v_lshl_add_u32 {v(vT)}, {v(vT)}, 1, s{sTMP + 1}")
        A(f"s_add_u32 s{sT1}, s{sT1}, {W_REG + O_SLOT}")
        A(f"v_add_u32 {v(vT + 1)}, s{sT1}, {v(vT)}")
        xh = [f"global_load_ushort {v(K + 20)}, {v(vT + 1)}, {sp(sWS)} sc1",
              f"global_load_ushort {v(K + 21)}, {v(vT + 1)}, {sp(sWS)} offset:1024 sc1"]
        for l in xh:
            A(l)
        A(f"s_lshl_b32 s{sTMP + 1}, s{sT0}, 10")
        A(f"v_add_u32 {v(vT)}, s{sTMP + 1}, {v(vT)}")
        A(f"v_min_u32 {v(vT + 2)}, 55, {v(vLANE)}")
        A(f"v_mul_u32_u24 {v(vT + 3)}, 4682, {v(vT + 2)}")
        A(f"v_lshrrev_b32 {v(vT + 3)}, 16, {v(vT + 3)}")
        A(f"v_mad_u32_u24 {v(vT + 2)}, {v(vT + 3)}, 18, {v(vT + 2)}")
        A(f"v_mul_u32_u24 {v(vT + 2)}, {RS}, {v(vT + 2)}")
        A(f"s_lshl_b32 s{sTMP + 1}, s{sTMP}, 4")
        A(f"s_add_u32 s{sTMP + 1}, s{sTMP + 1}, {W_REG + O_PART}")
        A(f"v_add_u32 {v(vT + 2)}, s{sTMP + 1}, {v(vT + 2)}")
        A(f"v_add_u32 {v(vT + 3)}, {128 * RS}, {v(vT + 2)}")
        A(f"s_ashr_i32 s{sTMP + 2}, s{sWIN}, 31")
        A(f"s_not_b32 s{sTMP + 2}, s{sTMP + 2}")
        A(f"s_or_b32 s{sTMP + 2}, s{sTMP + 2}, 0x80000000")
        A(f"s_xor_b32 s{sTMP + 2}, s{sTMP + 2}, s{sWIN}")
        A(f"s_and_b32 s{sTMP + 2}, s{sTMP + 2}, 0xfffff800")
        A(f"s_or_b32 s{sTMP + 2}, s{sTMP + 2}, 0x400")
        A(f"v_cvt_pk_bf16_f32 {v(K + 22)}, s{sTMP + 2}, s{sTMP + 2}")
        A(f"v_and_b32 {v(K + 22)}, s{sMASK}, {v(K + 22)}")
        A(f"v_mul_f32 {v(K + 22)}, {hex(f2u(-L2E))}, {v(K + 22)}")
        A(f"v_exp_f32 {v(K + 22)}, {v(K + 22)}")
        A(f"v_add_f32 {v(K + 22)}, 1.0, {v(K + 22)}")
        A(f"v_rcp_f32 {v(K + 22)}, {v(K + 22)}")
        A(f"v_cvt_pk_bf16_f32 {v(K + 22)}, {v(K + 22)}, {v(K + 22)}")
        A(f"v_and_b32 {v(K + 22)}, s{sMASK}, {v(K + 22)}")
        A("s_waitcnt vmcnt(0)")
        self.stamp("partdr")
        pl = [f"global_load_dwordx4 {v(vY, 4)}, {v(vT + 2)}, {sp(sWS)} sc1",
              f"global_load_dwordx4 {v(vY + 4, 4)}, {v(vT + 3)}, {sp(sWS)} sc1"]
        for l in pl:
            A(l)
        if olate:
            for l in held:
                A(l)
        self.poll("xh", xh, [f"v_max_u32 {v(vT + 6)}, {v(K + 20)}, {v(K + 21)}",
                             f"v_cmp_eq_u32 vcc, 0xffff, {v(vT + 6)}"])
        A(f"v_lshlrev_b32 {v(K + 20)}, 16, {v(K + 20)}")
        A(f"v_lshlrev_b32 {v(K + 21)}, 16, {v(K + 21)}")
        A(f"s_waitcnt vmcnt({2 if olate else 0})")
        self.poll("part", pl, chk8)
        self.stamp("partld")
        A(f"v_cmp_gt_u32 vcc, 56, {v(vLANE)}")
        A(f"v_pk_add_f32 {v(vY, 2)}, {v(vY, 2)}, {v(vY + 4, 2)}")
        A(f"v_pk_add_f32 {v(vY + 2, 2)}, {v(vY + 2, 2)}, {v(vY + 6, 2)}")
        for c in range(4):
            A(f"v_cndmask_b32 {v(vY + c)}, 0, {v(vY + c)}, vcc")
        A(f"v_permlane32_swap_b32 {v(vY)}, {v(vY + 1)}")
        A(f"v_permlane32_swap_b32 {v(vY + 2)}, {v(vY + 3)}")
        A(f"v_add_f32 {v(vY)}, {v(vY)}, {v(vY + 1)}")
        A(f"v_add_f32 {v(vY + 2)}, {v(vY + 2)}, {v(vY + 3)}")
        A(f"v_permlane16_swap_b32 {v(vY)}, {v(vY + 2)}")
        A(f"v_add_f32 {v(vY)}, {v(vY)}, {v(vY + 2)}")
        for sh in (8, 4, 2, 1):
            A(f"v_add_f32_dpp {v(vY)}, {v(vY)}, {v(vY)} row_ror:{sh} row_mask:0xf bank_mask:0xf")
        y = vY
        A(f"v_cvt_pk_bf16_f32 {v(y)}, {v(y)}, {v(y)}")
        A(f"v_and_b32 {v(y)}, s{sMASK}, {v(y)}")
        A(f"v_mul_f32 {v(y)}, {v(y)}, {v(K + 22)}")
        A(f"v_cvt_pk_bf16_f32 {v(y)}, {v(y)}, {v(y)}")
        A(f"v_and_b32 {v(y)}, s{sMASK}, {v(y)}")
        A(f"v_add_f32 {v(y)}, {v(y)}, {v(K + 20)}")
        A(f"v_cvt_pk_bf16_f32 {v(y)}, {v(y)}, {v(y)}")
        A(f"v_and_b32 {v(y)}, s{sMASK}, {v(y)}")
        A(f"v_add_f32 {v(y)}, {v(y)}, {v(K + 21)}")
        A(f"v_cvt_pk_bf16_f32 {v(y)}, {v(y)}, {v(y)}")
        A("s_mov_b32 exec_lo, 0x00010001")
        A("s_mov_b32 exec_hi, 0x00010001")
        A(f"global_store_short {v(vT)}, {v(y)}, {sp(sOUT)}")
        A("L_fin:")
        self.finish("R")

    def chans(self):
        A = self.A
        o = self.o
        vLANE = 1
        vAA, vBA, vEW, vER, vRA = 4, 12, 13, 14, 15
        vKA0, vKA1, vKB, vPW0, vPW1 = 16, 17, 18, 19, 20
        vP = 24
        vT = 28
        vACC = 40
        vA0, vA1, vB0, vB1 = 72, 104, 136, 168
        K = 72
        A("L_chan:")
        A("v_and_b32 v0, 0xff, v0")
        A(f"s_sub_u32 s{sWAVE}, s{sWAVE}, 4")
        A(f"s_lshl_b32 s{sT0}, s{sL}, 9")
        A(f"v_lshl_add_u32 {v(vT)}, v0, 1, s{sT0}")
        A(f"s_lshl_b32 s{sT1}, s{sL}, 2")
        A("s_waitcnt lgkmcnt(0)")
        self.stamp("karg")
        for k, s in enumerate((sLA, sAI, sCR, sCI)):
            A(f"global_load_ushort {v(vP + k)}, {v(vT)}, {sp(s)}{' nt' if o.get('ntx', 1) else ''}")
        A(f"s_load_dword s{sDT}, {sp(sLDT)}, s{sT1}")
        ntlb = 0
        if o.get("tlb", 0):
            A("v_mov_b32 v2, 0")
            A("s_mov_b64 exec, 1")
            for sb in (sWG, sWU, sWD, sOUT):
                A(f"global_load_dword v3, v2, {sp(sb)}")
                ntlb += 1
            A("s_mov_b64 exec, -1")
        vJ, vGq = vT + 4, vT + 5
        A(f"v_and_b32 {v(vJ)}, 15, {v(vLANE)}")
        A(f"v_lshrrev_b32 {v(vGq)}, 4, {v(vLANE)}")
        A(f"s_lshr_b32 s{sT0}, s{sWAVE}, 1")
        A(f"s_and_b32 s{sT1}, s{sWAVE}, 1")
        A(f"v_and_b32 {v(vT)}, 7, {v(vLANE)}")
        A(f"v_lshlrev_b32 {v(vRA)}, 4, {v(vT)}")
        A(f"v_add_u32 {v(vRA)}, {L_RED1}, {v(vRA)}")
        A(f"s_mul_i32 s{sTMP}, s{sT0}, {PC}")
        A(f"s_lshl_b32 s{sTMP + 1}, s{sT1}, 7")
        A(f"s_add_u32 s{sTMP}, s{sTMP}, s{sTMP + 1}")
        A(f"s_add_u32 s{sTMP}, s{sTMP}, {L_P + 4 * 26}")
        A(f"v_lshlrev_b32 {v(vT)}, 3, {v(vGq)}")
        A(f"v_sub_u32 {v(vT)}, {v(vJ)}, {v(vT)}")
        A(f"v_lshl_add_u32 {v(vAA)}, {v(vT)}, 2, s{sTMP}")
        for m in range(1, 8):
            A(f"v_add_u32 {v(vAA + m)}, {1024 * m}, {v(vAA)}")
        A(f"s_mul_i32 s{sTMP}, s{sT0}, {UC}")
        A(f"s_lshl_b32 s{sTMP + 1}, s{sT1}, 6")
        A(f"s_sub_u32 s{sTMP}, s{sTMP}, s{sTMP + 1}")
        A(f"s_add_u32 s{sTMP}, s{sTMP}, {L_U + 64}")
        A(f"v_lshl_add_u32 {v(vT)}, {v(vJ)}, 1, {v(vGq)}")
        A(f"v_lshl_add_u32 {v(vBA)}, {v(vT)}, 4, s{sTMP}")
        A(f"v_lshl_add_u32 {v(vT)}, {v(vJ)}, 2, {v(vGq)}")
        A(f"v_lshrrev_b32 {v(vT + 1)}, 3, {v(vT)}")
        A(f"v_add_u32 {v(vT)}, {v(vT)}, {v(vT + 1)}")
        A(f"s_mul_i32 s{sTMP}, s{sWAVE}, {8 * TBS}")
        A(f"v_lshl_add_u32 {v(vEW)}, {v(vT)}, 4, s{sTMP}")
        A(f"v_lshrrev_b32 {v(vT + 1)}, 3, {v(vLANE)}")
        A(f"v_add_u32 {v(vT)}, {v(vLANE)}, {v(vT + 1)}")
        A(f"s_mul_i32 s{sTMP}, s{sWAVE}, {2 * TBS}")
        A(f"v_lshl_add_u32 {v(vER)}, {v(vT)}, 4, s{sTMP}")
        KS = o.get("ks", 5)
        for k in range(4):
            A(f"v_mov_b32 {v(vACC + k)}, -1")
        A(f"s_mul_i32 s{sTMP}, s{sL}, {RS}")
        A(f"s_add_u32 s{sTMP}, s{sTMP}, {W_REG + 4096}")
        A(f"v_lshl_add_u32 {v(vACC + 4)}, v0, 4, s{sTMP}")
        A(f"v_add_u32 {v(vACC + 5)}, 8192, {v(vACC + 4)}")
        A(f"v_add_u32 {v(vACC + 6)}, 12288, {v(vACC + 4)}")
        A(f"s_lshl_b32 s{sTMP}, s{sL}, {KS}")
        A(f"s_add_u32 s{sTMP}, s{sTMP}, {W_KEY}")
        A(f"v_lshl_add_u32 {v(22)}, {v(vLANE)}, 4, s{sTMP}")
        ones = v(vACC, 4)
        inits = [f"s_cmp_eq_u32 s{sWAVE}, 0",
                 f"s_cselect_b64 exec, {(1 << ((1 << KS) // 16)) - 1}, 0",
                 f"global_store_dwordx4 {v(22)}, {ones}, {sp(sWS)} sc1",
                 "s_mov_b64 exec, -1",
                 f"global_store_dwordx4 {v(vACC + 5)}, {ones}, {sp(sWS)} offset:-4096 sc1",
                 f"global_store_dwordx4 {v(vACC + 5)}, {ones}, {sp(sWS)} sc1",
                 f"global_store_dwordx4 {v(vACC + 6)}, {ones}, {sp(sWS)} sc1"]
        ninit = 3
        ilate = o.get("ilate", 0)
        if not ilate:
            for l in inits:
                A(l)
        vg, vr = vT, vT + 1
        A(f"v_lshrrev_b32 {v(vg)}, 2, {v(vJ)}")
        A(f"v_and_b32 {v(vr)}, 3, {v(vJ)}")
        A(f"s_cmp_eq_u32 s{sT1}, 0")
        A("s_cbranch_scc0 L_rows_hi")
        A(f"v_mov_b32 {v(vKA0)}, {v(vJ)}")
        A(f"v_lshl_add_u32 {v(vKA1)}, {v(vg)}, 1, {v(vr)}")
        A(f"v_add_u32 {v(vKA1)}, 16, {v(vKA1)}")
        A(f"v_add_u32 {v(vT + 2)}, -4, {v(vJ)}")
        A(f"v_and_b32 {v(vT + 2)}, 15, {v(vT + 2)}")
        A(f"v_cmp_eq_u32 vcc, 3, {v(vr)}")
        A(f"v_cndmask_b32 {v(vKA1)}, {v(vKA1)}, {v(vT + 2)}, vcc")
        A(f"v_lshl_add_u32 {v(vPW0)}, {v(vJ)}, 2, {v(vGq)}")
        A(f"v_lshlrev_b32 {v(vPW0)}, 4, {v(vPW0)}")
        A(f"v_add_u32 {v(vPW1)}, 1024, {v(vPW0)}")
        A("s_branch L_rows_done")
        A("L_rows_hi:")
        A(f"v_lshrrev_b32 {v(vT + 2)}, 1, {v(vg)}")
        A(f"v_lshl_add_u32 {v(vKA0)}, {v(vg)}, 1, {v(vr)}")
        A(f"v_add3_u32 {v(vKA0)}, {v(vKA0)}, {v(vT + 2)}, 25")
        A(f"v_sub_u32 {v(vKA1)}, {v(vJ)}, {v(vg)}")
        A(f"v_add_u32 {v(vKA1)}, 35, {v(vKA1)}")
        A(f"v_lshrrev_b32 {v(vT + 2)}, 1, {v(vGq)}")
        A(f"v_lshl_add_u32 {v(vPW0)}, {v(vT + 2)}, 4, {v(vJ)}")
        A(f"v_and_b32 {v(vT + 2)}, 1, {v(vGq)}")
        A(f"v_lshl_add_u32 {v(vPW0)}, {v(vPW0)}, 1, {v(vT + 2)}")
        A(f"v_lshlrev_b32 {v(vPW0)}, 5, {v(vPW0)}")
        A(f"v_add_u32 {v(vPW0)}, 2048, {v(vPW0)}")
        A(f"v_lshlrev_b32 {v(vPW1)}, 6, {v(vLANE)}")
        A(f"v_add_u32 {v(vPW1)}, 4096, {v(vPW1)}")
        A("L_rows_done:")
        A(f"s_mul_i32 s{sTMP}, s{sT0}, {PC}")
        A(f"s_add_u32 s{sTMP}, s{sTMP}, {L_P + 64}")
        A(f"v_add_u32 {v(vPW0)}, s{sTMP}, {v(vPW0)}")
        A(f"v_add_u32 {v(vPW1)}, s{sTMP}, {v(vPW1)}")
        A(f"s_mul_i32 s{sTMP}, s{sT0}, {TABC}")
        A(f"v_lshl_add_u32 {v(vT + 2)}, {v(vGq)}, 4, s{sTMP}")
        A(f"s_movk_i32 s{sTMP + 1}, {ROWB}")
        A(f"v_mad_u32_u24 {v(vKA0)}, {v(vKA0)}, s{sTMP + 1}, {v(vT + 2)}")
        A(f"v_mad_u32_u24 {v(vKA1)}, {v(vKA1)}, s{sTMP + 1}, {v(vT + 2)}")
        A(f"v_mad_u32_u24 {v(vKB)}, {v(vJ)}, s{sTMP + 1}, {v(vT + 2)}")
        A(f"s_lshl_b32 s{sTMP + 1}, s{sT1}, 8")
        A(f"s_add_u32 m0, s{sTMP}, s{sTMP + 1}")
        A(f"s_mul_i32 s{sTMP}, s{sXCD}, 448")
        A(f"s_and_b32 s{sTMP}, s{sTMP}, 0xffffff80")
        A(f"s_mul_i32 s{sTMP + 1}, s{sPOS}, {16 * 3584}")
        A(f"s_add_u32 s{sTMP}, s{sTMP}, s{sTMP + 1}")
        A(f"v_lshrrev_b32 {v(vT + 2)}, 2, {v(vLANE)}")
        A(f"v_mul_u32_u24 {v(vT + 2)}, 3584, {v(vT + 2)}")
        A(f"v_and_b32 {v(vT + 3)}, 3, {v(vLANE)}")
        A(f"v_lshl_add_u32 {v(vT + 2)}, {v(vT + 3)}, 7, {v(vT + 2)}")
        A(f"v_add_u32 {v(vT + 2)}, s{sTMP}, {v(vT + 2)}")
        A(f"s_mul_i32 s{sTMP}, s{sL}, 7168")
        A(f"s_mul_i32 s{sTMP + 1}, s{sT1}, 3584")
        A(f"s_add_u32 s{sTMP}, s{sTMP}, s{sTMP + 1}")
        A(f"v_min_u32 {v(vT + 3)}, 27, {v(vLANE)}")
        A(f"v_lshl_add_u32 {v(vT + 3)}, {v(vT + 3)}, 7, s{sTMP}")
        A(f"s_cmp_eq_u32 s{sT1}, 0")
        A(f"s_cselect_b64 {sp(sWSEL)}, {sp(sWG)}, {sp(sWU)}")
        A(f"s_cmp_eq_u32 s{sT0}, 0")
        A(f"s_cselect_b64 {sp(sWSEL)}, {sp(sWSEL)}, {sp(sWD)}")
        A("s_cselect_b64 vcc, -1, 0")
        A(f"v_cndmask_b32 {v(21)}, {v(vT + 3)}, {v(vT + 2)}, vcc")
        wpf = f"global_load_dword v3, v21, {sp(sWSEL)}{' nt' if o.get('ntw', 0) else ''}"
        if o.get("wpf", 2) == 2:
            A(wpf)

        L2E = 1.4426950408889634
        l2e_hi = struct.unpack("<f", struct.pack("<f", L2E))[0]
        l2e_lo = L2E - l2e_hi
        a, b = K, K + 2
        A(f"s_mov_b32 s{sE}, {hex(f2u(l2e_hi))}")
        A(f"s_mov_b32 s{sE + 1}, {hex(f2u(l2e_lo))}")
        if o.get("b1b", 1):
            A("s_barrier")
        A(f"s_waitcnt vmcnt({(1 if o.get('wpf', 2) == 2 else 0) + (0 if ilate else ninit) + ntlb}) lgkmcnt(0)")
        self.stamp("par")
        if ilate:
            for l in inits:
                A(l)
        if o.get("wpf", 2) == 6:
            A(wpf)
        A(f"s_lshl_b32 s{sTMP}, s{sDT}, 16")
        A(f"s_and_b32 s{sTMP + 1}, s{sDT}, s{sMASK}")
        A(f"s_cmp_lt_u32 s{sWAVE}, 2")
        A(f"s_cselect_b32 s{sDT}, s{sTMP}, s{sTMP + 1}")
        A(f"v_lshlrev_b32 {v(a)}, 16, {v(vP)}")
        A(f"v_mov_b32 {v(a + 1)}, s{sDT}")
        A(f"v_pk_mul_f32 {v(b, 2)}, {v(a, 2)}, {sp(sE)} op_sel_hi:[1,0]")
        A(f"v_pk_fma_f32 {v(b + 2, 2)}, {v(a, 2)}, {sp(sE)}, {v(b, 2)} op_sel_hi:[1,0,1] neg_lo:[0,0,1] neg_hi:[0,0,1]")
        A(f"v_exp_f32 {v(b)}, {v(b)}")
        A(f"v_exp_f32 {v(b + 1)}, {v(b + 1)}")
        A(f"v_pk_fma_f32 {v(b + 2, 2)}, {sp(sE)}, {v(a, 2)}, {v(b + 2, 2)} op_sel:[1,0,0] op_sel_hi:[1,1,1]")
        A(f"v_mul_f32 {v(b + 2)}, {hex(f2u(0.6931471805599453))}, {v(b + 2)}")
        A(f"v_mul_f32 {v(b + 3)}, {hex(f2u(0.6931471805599453))}, {v(b + 3)}")
        A(f"v_pk_fma_f32 {v(b, 2)}, {v(b, 2)}, {v(b + 2, 2)}, {v(b, 2)}")
        A(f"v_cvt_pk_bf16_f32 {v(a)}, {v(b)}, {v(b + 1)}")
        vdt, va2, vph = K + 6, K + 7, K + 8
        A(f"v_and_b32 {v(vdt)}, s{sMASK}, {v(a)}")
        A(f"v_lshlrev_b32 {v(va2)}, 16, {v(a)}")
        A(f"v_lshlrev_b32 {v(vph)}, 16, {v(vP + 1)}")
        A(f"v_mul_f32 {v(va2)}, {v(va2)}, {v(vdt)}")
        A(f"v_mul_f32 {v(vph)}, {v(vph)}, {v(vdt)}")
        A(f"v_mul_f32 {v(va2)}, {hex(f2u(-l2e_hi))}, {v(va2)}")
        A(f"v_mul_f32 {v(vph)}, 0.15915494, {v(vph)}")
        Wp = {p: K + 10 + 2 * p for p in range(1, 17)}
        Zp = {p: K + 42 + 2 * p for p in range(1, 8)}
        G = [K + 58, K + 60]
        TT = [K + 62, K + 64, K + 66, K + 68]
        RR = [K + 70, K + 72, K + 74, K + 76]
        CV = K + 80
        A(f"v_mul_f32 {v(vdt)}, {hex(f2u(2.0 ** 69))}, {v(vdt)}")
        A(f"v_lshlrev_b32 {v(G[0])}, 16, {v(vP + 2)}")
        A(f"v_lshlrev_b32 {v(G[0] + 1)}, 16, {v(vP + 3)}")
        A(f"v_mul_f32 {v(G[0])}, {v(G[0])}, {v(vdt)}")
        A(f"v_mul_f32 {v(G[0] + 1)}, {v(G[0] + 1)}, {v(vdt)}")
        for n, (dst, sc) in enumerate(((Wp[1], 1.0), (Wp[16], 16.0), (Zp[1], 256.0))):
            t = TT[n]
            if sc == 1.0:
                A(f"v_exp_f32 {v(t)}, {v(va2)}")
                A(f"v_fract_f32 {v(t + 1)}, {v(vph)}")
            else:
                A(f"v_mul_f32 {v(t)}, {hex(f2u(sc))}, {v(va2)}")
                A(f"v_mul_f32 {v(t + 1)}, {hex(f2u(sc))}, {v(vph)}")
                A(f"v_exp_f32 {v(t)}, {v(t)}")
                A(f"v_fract_f32 {v(t + 1)}, {v(t + 1)}")
            A(f"v_cos_f32 {v(dst)}, {v(t + 1)}")
            A(f"v_sin_f32 {v(dst + 1)}, {v(t + 1)}")
        for n, dst in enumerate((Wp[1], Wp[16], Zp[1])):
            A(f"v_pk_mul_f32 {v(dst, 2)}, {v(dst, 2)}, {v(TT[n], 2)} op_sel_hi:[1,0]")
        jobs = [(1, Wp[1], None, None, 0), (16, Zp[1], None, None, 0), (47, G[0], None, None, 1)]
        wj = []
        for p in range(2, 16):
            hb = 1 << (p.bit_length() - 1)
            x, y = (p // 2, p // 2) if hb == p else (hb, p - hb)
            wj.append((p, Wp[p], Wp[x], Wp[y], 0))
        gj = [(47 + j, G[j & 1], G[(j - 1) & 1], Wp[16], 1) for j in range(1, 16)]
        zrow = {2: 25, 3: 30, 4: 35, 5: 38, 6: 41, 7: 44}
        zj = []
        for p in range(2, 8):
            hb = 1 << (p.bit_length() - 1)
            x, y = (p // 2, p // 2) if hb == p else (hb, p - hb)
            zj.append((zrow[p], Zp[p], Zp[x], Zp[y], 0))
        tj = [(16 + k, None, Zp[1], Wp[2 * k], 0) for k in range(1, 9)]
        for z in (2, 3):
            tj += [(zrow[z] + k, None, Zp[z], Wp[4 * k], 0) for k in range(1, 5)]
        for z in (4, 5, 6, 7):
            tj += [(zrow[z] + k, None, Zp[z], Wp[8 * k], 0) for k in range(1, 3)]
        first = []
        for i in range(max(len(wj), len(gj), len(zj))):
            for q in (wj, gj, zj):
                if i < len(q):
                    first.append(q[i])
        jobs += first + tj
        A(f"v_mov_b32 {v(CV + 15)}, 0x3f80")
        pend = [(0, CV + 15)]
        slot = 0
        nb = 0
        b1_at = o.get("b1_at", 2)
        batch = o.get("batch", 6)

        def do_b1():
            self.stamp("setup")
            A(f"s_waitcnt vmcnt({1 if (o.get('wpf', 2) == 2 and not ilate) or o.get('wpf', 2) == 6 else 0})")
            self.stamp("idr")
            A("s_barrier")
            self.stamp("b1")
            if o.get("wpf", 2) == 1:
                A(wpf)
        if b1_at == 0:
            do_b1()
        for n, (row, dst, x, y, conj) in enumerate(jobs):
            if x is not None:
                if dst is None:
                    dst = RR[n & 3]
                for ins in self.cmul(dst, x, y, TT[n & 3]):
                    A(ins)
            A(f"v_cvt_pk_bf16_f32 {v(CV + slot)}, {v(dst)}, {'-' if conj else ''}{v(dst + 1)}")
            pend.append((row, CV + slot))
            slot = (slot + 1) % 15
            if len(pend) >= batch or n == len(jobs) - 1:
                for row_, reg in pend:
                    A(f"ds_write_addtid_b32 {v(reg)} offset:{row_ * ROWB}")
                pend = []
                nb += 1
                if nb == b1_at:
                    do_b1()
        A("s_waitcnt lgkmcnt(0)")
        self.stamp("kgen1")
        A("s_barrier")
        if o.get("wpf", 2) == 3:
            A(wpf)
        fB, fA0, fA1 = K, K + 32, K + 64
        for s in range(4):
            A(f"ds_read_b128 {v(fB + 4 * s, 4)}, {v(vKB)} offset:{47 * ROWB + 64 * s}")
            A(f"ds_read_b128 {v(fA0 + 4 * s, 4)}, {v(vKA0)} offset:{64 * s}")
            A(f"ds_read_b128 {v(fA1 + 4 * s, 4)}, {v(vKA1)} offset:{64 * s}")
        D0, D1 = vACC, vACC + 4
        for s in range(8):
            s2 = s + 4
            A(f"s_waitcnt lgkmcnt({9 if s2 < 8 else 3 * (7 - s)})")
            c0 = "0" if s == 0 else v(D0, 4)
            c1 = "0" if s == 0 else v(D1, 4)
            A(f"v_mfma_f32_16x16x32_bf16 {v(D0, 4)}, {v(fA0 + 4 * s, 4)}, {v(fB + 4 * s, 4)}, {c0}")
            if s2 < 8:
                A(f"ds_read_b128 {v(fB + 4 * s2, 4)}, {v(vKB)} offset:{47 * ROWB + 64 * s2}")
                A(f"ds_read_b128 {v(fA0 + 4 * s2, 4)}, {v(vKA0)} offset:{64 * s2}")
            A(f"v_mfma_f32_16x16x32_bf16 {v(D1, 4)}, {v(fA1 + 4 * s, 4)}, {v(fB + 4 * s, 4)}, {c1}")
            if s2 < 8:
                A(f"ds_read_b128 {v(fA1 + 4 * s2, 4)}, {v(vKA1)} offset:{64 * s2}")
        E = K + 96
        A(f"s_bitcmp1_b32 s{sWAVE}, 0")
        A(f"v_cmp_eq_u32 vcc, 0, {v(vLANE)}")
        A("s_nop 5")
        A("s_cbranch_scc0 L_exp_lo")
        seq2 = ["aa", "aa", "aa", "ba", "bb", "bb", "cb", "cc"]
        seq3 = ["aa", "aa", "aa", "aa", "aa", "ba", "bb", "bb", "bb", "bb", "cb", "cc", "cc", "cc"]
        ix = {"a": 0, "b": 1, "c": 2}
        for k, s in enumerate(seq3):
            A(f"v_cvt_pk_bf16_f32 {v(E + 8 + k)}, {v(D1 + ix[s[0]])}, {v(D1 + ix[s[1]])}")
        for k, w in enumerate((0, 4, 6, 10)):
            A(f"ds_write_b128 {v(vPW1)}, {v(E + 8 + w, 4)} offset:{16 * k}")
        for k, s in enumerate(seq2):
            A(f"v_cvt_pk_bf16_f32 {v(E + k)}, {v(D0 + ix[s[0]])}, {v(D0 + ix[s[1]])}")
        A(f"ds_write_b128 {v(vPW0)}, {v(E, 4)}")
        A(f"ds_write_b128 {v(vPW0)}, {v(E + 4, 4)} offset:16")
        A("L_exp_done:")
        T = self.tail
        T("L_exp_lo:")
        T(f"v_mov_b32_dpp {v(D1 + 3)}, {v(D1 + 3)} row_ror:1 row_mask:0x1 bank_mask:0xf")
        T(f"v_cvt_pk_bf16_f32 {v(E + 1)}, {v(D0 + 1)}, {v(D0)}")
        T(f"v_cvt_pk_bf16_f32 {v(E + 2)}, {v(D0 + 2)}, {v(D0 + 1)}")
        T(f"v_cvt_pk_bf16_f32 {v(E + 3)}, {v(D0 + 3)}, {v(D0 + 2)}")
        T(f"v_cndmask_b32 {v(E + 8)}, {v(D1 + 3)}, 0, vcc")
        T(f"v_cndmask_b32 {v(E + 9)}, {v(D1)}, {v(D1 + 3)}, vcc")
        T(f"v_cvt_pk_bf16_f32 {v(E)}, {v(D0)}, {v(E + 8)}")
        T(f"v_cvt_pk_bf16_f32 {v(E + 4)}, {v(D1)}, {v(E + 9)}")
        T(f"v_cvt_pk_bf16_f32 {v(E + 5)}, {v(D1)}, {v(D1)}")
        T(f"v_cvt_pk_bf16_f32 {v(E + 6)}, {v(D1 + 1)}, {v(D1)}")
        T(f"v_cvt_pk_bf16_f32 {v(E + 7)}, {v(D1 + 2)}, {v(D1 + 1)}")
        T(f"ds_write_b128 {v(vPW0)}, {v(E, 4)}")
        T(f"ds_write_b128 {v(vPW1)}, {v(E + 4, 4)}")
        T("s_branch L_exp_done")
        A("s_waitcnt lgkmcnt(0)")
        self.stamp("kgen2")
        A("s_barrier")
        if o.get("wpf", 2) == 4:
            A(wpf)

        def rdA(buf, rho, m):
            return [f"ds_read2_b32 {v(buf + 4 * m, 2)}, {v(vAA + m)} offset0:{64 * rho + 6} offset1:{64 * rho + 4}",
                    f"ds_read2_b32 {v(buf + 4 * m + 2, 2)}, {v(vAA + m)} offset0:{64 * rho + 2} offset1:{64 * rho}"]

        def rdB(buf, rho, n):
            return [f"ds_read_b128 {v(buf + 4 * n, 4)}, {v(vBA)} offset:{128 * (3 - rho) + 512 * (7 - n)}"]

        for m in range(8):
            for l in rdA(vA0, 0, m):
                A(l)
        A(f"s_mul_i32 s{sTMP}, s{sL}, {RS}")
        A(f"s_lshl_b32 s{sTMP + 1}, s{sWAVE}, 11")
        A(f"s_add_u32 s{sTMP}, s{sTMP}, s{sTMP + 1}")
        A(f"s_add_u32 s{sTMP}, s{sTMP}, {W_REG + O_X2}")
        A(f"v_lshl_add_u32 {v(vT)}, {v(vLANE)}, 4, s{sTMP}")
        A(f"v_lshlrev_b32 {v(vT + 1)}, {KS}, v0")
        A(f"v_add_u32 {v(vT + 1)}, {W_KEY}, {v(vT + 1)}")
        A(f"s_lshl_b32 s{sTMP}, s{sWAVE}, 2")
        A(f"s_add_u32 s{sTMP}, s{sTMP}, {L_REDK}")
        A(f"v_mov_b32 {v(vT + 3)}, s{sTMP}")
        A("s_waitcnt lgkmcnt(0)")
        self.stamp("apre")
        A("s_barrier")
        self.stamp("b3")
        if o.get("wpf", 2) == 5:
            A(wpf)
        if o.get("prio", 1):
            A("s_setprio 2")

        bufA, bufB = [vA0, vA1], [vB0, vB1]
        for n in range(7, -1, -1):
            for l in rdB(vB0, 0, n):
                A(l)
        started = set()
        for rho in range(4):
            a_, b_ = bufA[rho & 1], bufB[rho & 1]
            order = [(n - 7 + tb, tb, n) for n in range(7, -1, -1) for tb in range(7 - n, 8)]
            if rho == 3:
                order = [(n - 7 + tb, tb, n) for tb in range(8) for n in range(7 - tb, 8)]
            fill = []
            if rho + 1 < 4:
                nb_, na_ = bufB[(rho + 1) & 1], bufA[(rho + 1) & 1]
                for m in range(8):
                    fill += rdB(nb_, rho + 1, 7 - m)
                    fill += rdA(na_, rho + 1, m)
            issued = 0
            seen = set()
            done_at = {}
            for i, (m, tb, n) in enumerate(order):
                done_at[tb] = i
            for i, (m, tb, n) in enumerate(order):
                if rho == 0 and n not in seen:
                    A(f"s_waitcnt lgkmcnt({min(15, n + issued)})")
                    seen.add(n)
                elif i == 0:
                    A("s_waitcnt lgkmcnt(0)")
                acc = v(vACC + 4 * tb, 4)
                c = acc if tb in started else "0"
                started.add(tb)
                A(f"v_mfma_f32_16x16x32_bf16 {acc}, {v(a_ + 4 * m, 4)}, {v(b_ + 4 * n, 4)}, {c}")
                if i >= 1 and fill:
                    A(fill.pop(0))
                    issued += 1
                if rho == 3:
                    for t in range(7):
                        if done_at[t] + 8 == i or (i == len(order) - 1 and done_at[t] + 8 > i):
                            A(f"ds_write_b128 {v(vEW)}, {v(vACC + 4 * t, 4)} offset:{t * TBS}")
            assert not fill
        A(f"ds_write_b128 {v(vEW)}, {v(vACC + 28, 4)} offset:{7 * TBS}")
        self.stamp("conv")
        A("s_waitcnt lgkmcnt(0)")
        A("s_barrier")
        for i in range(2):
            for s in range(4):
                A(f"ds_read_b128 {v(K + 16 * i + 4 * s, 4)}, {v(vER)} offset:{s * 8 * TBS + i * TBS}")
        for i in range(2):
            A(f"s_waitcnt lgkmcnt({4 * (1 - i)})")
            b0 = K + 16 * i
            for c in range(2):
                for h in range(2):
                    A(f"v_pk_add_f32 {v(b0 + 8 * c + 2 * h, 2)}, {v(b0 + 8 * c + 2 * h, 2)}, {v(b0 + 8 * c + 4 + 2 * h, 2)}")
            for c in range(2):
                for h in range(2):
                    A(f"v_cvt_pk_bf16_f32 {v(K + 32 + 4 * i + 2 * c + h)}, {v(b0 + 8 * c + 2 * h)}, {v(b0 + 8 * c + 2 * h + 1)}")
            A(f"global_store_dwordx4 {v(vT)}, {v(K + 32 + 4 * i, 4)}, {sp(sWS)} offset:{1024 * i} sc1")
        self.stamp("x2st")
        A("s_waitcnt vmcnt(0)")
        self.stamp("x2dr")
        A("s_barrier")
        A(f"s_cmp_eq_u32 s{sWAVE}, 0")
        A("s_cbranch_scc0 L_cfin")
        for q in range(1, 4):
            A(f"v_add_u32 {v(vT + 8 + q)}, {(64 * q) << KS}, {v(vT + 1)}")
        A("s_barrier")
        self.key_calc(K, vRA, vLANE)
        A("s_mov_b64 exec, 1")
        A(f"global_store_dword {v(22)}, {v(K + 8)}, {sp(sWS)} sc1")
        A("s_mov_b64 exec, -1")
        self.stamp("key")
        A("s_waitcnt vmcnt(0)")
        self.stamp("keydr")
        k2 = vT + 4
        kl = [f"global_load_dword {v(K + q)}, {v(vT + 8 + q) if q else v(vT + 1)}, {sp(sWS)} sc1" for q in range(4)]
        for l in kl:
            A(l)
        A("s_waitcnt vmcnt(0)")
        self.poll("key", kl, [f"v_max3_u32 {v(k2)}, {v(K)}, {v(K + 1)}, {v(K + 2)}",
                              f"v_max_u32 {v(k2)}, {v(k2)}, {v(K + 3)}",
                              f"v_cmp_eq_u32 vcc, -1, {v(k2)}"])
        self.stamp("keyld")
        A(f"v_max_u32_dpp {v(k2)}, {v(k2)}, {v(k2)} quad_perm:[1,0,3,2] row_mask:0xf bank_mask:0xf")
        A(f"v_max_u32_dpp {v(k2)}, {v(k2)}, {v(k2)} quad_perm:[2,3,0,1] row_mask:0xf bank_mask:0xf")
        A(f"v_max_u32_dpp {v(k2)}, {v(k2)}, {v(k2)} row_half_mirror row_mask:0xf bank_mask:0xf")
        A(f"v_max_u32_dpp {v(k2)}, {v(k2)}, {v(k2)} row_mirror row_mask:0xf bank_mask:0xf")
        A(f"v_max_u32_dpp {v(k2)}, {v(k2)}, {v(k2)} row_bcast:15 row_mask:0xa bank_mask:0xf")
        A(f"v_max_u32_dpp {v(k2)}, {v(k2)}, {v(k2)} row_bcast:31 row_mask:0xc bank_mask:0xf")
        A("s_mov_b32 exec_lo, 0")
        A("s_brev_b32 exec_hi, 1")
        A(f"ds_write_b32 {v(vT + 3)}, {v(k2)}")
        A("s_waitcnt lgkmcnt(0)")
        A("s_barrier")
        A("L_cfin:")
        self.finish("C")

    def text(self):
        lines = self.build()
        src = open("sequential_preLN__ssm_conv_s4d__moe_arch_mod__prompt.s.ref").read()
        head = [l for l in src.split("\n") if l.startswith(";") and "@launch" not in l]
        head = head[:head.index("; Override launch geometry by editing the next line (default: block=256,")]
        out = head + [f"; @launch grid=(256,1,1) block=(512,1,1) lds={LDS_BYTES}",
                      '.amdgcn_target "amdgcn-amd-amdhsa--gfx950"', ".text", f".globl {KNAME}", ".p2align 8",
                      f".type {KNAME},@function"]
        out += [l if l.endswith(":") else "    " + l for l in lines]
        out += [".section .rodata,\"a\"", ".p2align 6", f".amdhsa_kernel {KNAME}",
                "  .amdhsa_next_free_vgpr 224", "  .amdhsa_next_free_sgpr 102", "  .amdhsa_accum_offset 224",
                "  .amdhsa_group_segment_fixed_size 0", "  .amdhsa_kernarg_size 120", "  .amdhsa_user_sgpr_count 2",
                "  .amdhsa_user_sgpr_kernarg_segment_ptr 1", "  .amdhsa_system_sgpr_workgroup_id_x 1",
                ".end_amdhsa_kernel", ""]
        return "\n".join(out)


if __name__ == "__main__":
    out = sys.argv[1]
    opts = {}
    stamp = False
    for a in sys.argv[2:]:
        if a == "stamp":
            stamp = True
        else:
            k, val = a.split("=")
            opts[k] = val if k in ('pr', 'few') else int(val)
    g = Gen(stamp, opts)
    open(out, "w").write(g.text())
    if g.stamp_on:
        open(out + ".names", "w").write(" ".join(g.allnames["R"]) + "\n" + " ".join(g.allnames["C"]))
    print(g.info, "lds", LDS_BYTES)
```

```python
import sys
import struct
from asmlib import Asm, align8

KNAME = "sequential_preLN__ssm_conv_s4d__moe_arch_mod__prompt_kernel"


def f2u(x):
    return struct.unpack("<I", struct.pack("<f", x))[0]


W_FLAG = 0x1000 + (int(__import__('os').environ.get('WOFF', '0')) << 20)
W_KEY = 0x9000 + (int(__import__('os').environ.get('WOFF', '0')) << 20)
W_FLAG2 = 0x11000 + (int(__import__('os').environ.get('WOFF', '0')) << 20)
import os
WOFF = int(os.environ.get('WOFF', '0')) << 20
W_REG = 0x38000 + WOFF
RS = 20608
O_X1, O_X2, O_SLOT, O_PART = 0, 8192, 16384, 18432
W_STAMP = 0x800000
ROWB = 544
TABC = 63 * ROWB
L_TAB = 0
L_P = 68608
PC = 8256
L_U = L_P + 2 * PC
UC = 4608
L_RED1 = (L_U + 2 * UC + 255) // 256 * 256
L_RED2 = L_RED1 + 256
L_SUMW = L_RED2 + 384
L_REDK = L_SUMW + 16
L_REDF = L_REDK + 16
LDS_BYTES = L_REDF + 256
L_EPI = 0
TBS = 1152
L_TILE = 40960
WST = 272
WTILE = 8 * WST
sX, sLA, sAI, sCR, sCI, sLDT, sD = 4, 6, 8, 10, 12, 14, 16
sWR, sWG, sWU, sWD, sOUT, sDBG, sWS = 20, 22, 24, 26, 28, 30, 32
sL, sPOS, sXCD, sWAVE, sG, sDT, sT0, sT1, sSPIN, sF = 34, 35, 36, 37, 38, 39, 40, 41, 42, 43
sODD = 44
sSELLO, sSELHI, sONES, sMASK = 46, 47, 48, 49
sWSEL = 50
sBEST, sWIN, sRP0, sRP1 = 52, 53, 54, 55
sH = 56
sE = 64
sTMP = 66
sOWN = 71
sCAND = 3
sOWNM = 56
sTAG = 56
sSTAMP = 72


def sp(r):
    return f"s[{r}:{r + 1}]"


def v(r, n=1):
    return f"v{r}" if n == 1 else f"v[{r}:{r + n - 1}]"


class Gen:
    def __init__(self, stamp=False, opts=None):
        self.A = Asm()
        self.tail = Asm()
        self.stamp_on = stamp
        self.nstamp = 0
        self.names = []
        self.o = dict(opts or {})
        self.only = None
        self.few = None
        if "few" in self.o:
            self.few = ["start", "end"] + self.o["few"].split(".")
            self.stamp_on = True
        self.role = "R"
        if "pr" in self.o:
            self.only = tuple(self.o["pr"].split("."))
            self.stamp_on = True
            self.o["probe"] = 1 if self.only[0] == "R" else 101

    def stamp(self, name):
        if not self.stamp_on:
            return
        if self.only and name != "start" and (self.role, name) != self.only:
            return
        if self.few and name not in self.few:
            return
        k = self.nstamp
        self.nstamp += 1
        self.names.append(name)
        assert sSTAMP + k < 100
        self.A(f"s_memtime s[100:101]" if self.o.get("cyc") else f"s_memrealtime s[100:101]")
        self.A("s_waitcnt lgkmcnt(0)")
        self.A(f"s_mov_b32 s{sSTAMP + k}, s100")

    def poll(self, name, loads, check, base_exec="-1", first=True):
        A = self.A
        for c in (check if first else []):
            A(c)
        A(f"s_cbranch_vccnz L_retry_{name}")
        A(f"L_ok_{name}:")
        T = self.tail
        T(f"L_retry_{name}:")
        T(f"s_mov_b32 s{sSPIN}, 0x40000")
        T(f"L_again_{name}:")
        T(f"s_sub_u32 s{sSPIN}, s{sSPIN}, 1")
        T(f"s_cbranch_scc1 L_ok_{name}")
        T("s_mov_b64 exec, vcc")
        for l in loads:
            T(l)
        T("s_waitcnt vmcnt(0)")
        for c in check:
            T(c)
        T(f"s_mov_b64 exec, {base_exec}")
        T(f"s_cbranch_vccnz L_again_{name}")
        T(f"s_branch L_ok_{name}")

    def cmul(self, d, x, y, t):
        return [f"v_pk_mul_f32 {v(t, 2)}, {v(x, 2)}, {v(y, 2)} op_sel:[0,0] op_sel_hi:[0,1]",
                f"v_pk_fma_f32 {v(d, 2)}, {v(x, 2)}, {v(y, 2)}, {v(t, 2)} op_sel:[1,1,0] op_sel_hi:[1,0,1] neg_lo:[1,0,0]"]

    def reduce8(self, V, t):
        A = self.A
        for i in range(4):
            A(f"v_add_f32_dpp {v(V[i])}, {v(V[i])}, {v(V[i])} row_ror:8 row_mask:0xf bank_mask:0x3")
        for i in range(4):
            A(f"v_add_f32_dpp {v(V[i])}, {v(V[i + 4])}, {v(V[i + 4])} row_ror:8 row_mask:0xf bank_mask:0xc")
        for i in range(2):
            A(f"v_add_f32_dpp {v(V[i])}, {v(V[i])}, {v(V[i])} row_shl:4 row_mask:0xf bank_mask:0x5")
        for i in range(2):
            A(f"v_add_f32_dpp {v(V[i])}, {v(V[i + 2])}, {v(V[i + 2])} row_shr:4 row_mask:0xf bank_mask:0xa")
        A(f"v_permlane32_swap_b32 {v(V[0])}, {v(V[1])}")
        A(f"v_add_f32 {v(V[0])}, {v(V[0])}, {v(V[1])}")
        A(f"v_add_f32_dpp {v(V[0])}, {v(V[0])}, {v(V[0])} quad_perm:[2,3,0,1] row_mask:0xf bank_mask:0xf")
        A(f"v_mov_b32 {v(t)}, {v(V[0])}")
        A(f"v_permlane16_swap_b32 {v(V[0])}, {v(t)}")
        A(f"v_add_f32 {v(V[0])}, {v(V[0])}, {v(t)}")

    def row_stats(self, S, Q, negm, rinv, t, scale=None):
        A = self.A
        A(f"v_pk_add_f32 {v(S, 2)}, {v(S, 2)}, {v(S + 2, 2)}")
        A(f"v_pk_add_f32 {v(Q, 2)}, {v(Q, 2)}, {v(Q + 2, 2)}")
        A(f"v_add_f32 {v(S)}, {v(S)}, {v(S + 1)}")
        A(f"v_add_f32 {v(Q)}, {v(Q)}, {v(Q + 1)}")
        A(f"v_mul_f32 {v(S)}, {hex(f2u(1 / 512))}, {v(S)}")
        A(f"v_mul_f32 {v(Q)}, {hex(f2u(1 / 512))}, {v(Q)}")
        A(f"v_fma_f32 {v(Q)}, -{v(S)}, {v(S)}, {v(Q)}")
        A(f"v_max_f32 {v(Q)}, 0, {v(Q)}")
        A(f"v_cvt_pk_bf16_f32 {v(t)}, -{v(S)}, {v(Q)}")
        A(f"v_and_b32 {v(Q)}, s{sMASK}, {v(t)}")
        A(f"v_add_f32 {v(Q)}, {hex(f2u(1e-5))}, {v(Q)}")
        A(f"v_cvt_pk_bf16_f32 {v(Q)}, {v(Q)}, {v(Q)}")
        A(f"v_and_b32 {v(Q)}, s{sMASK}, {v(Q)}")
        A(f"v_sqrt_f32 {v(Q)}, {v(Q)}")
        A(f"v_lshlrev_b32 {v(negm)}, 16, {v(t)}")
        A(f"v_cvt_pk_bf16_f32 {v(Q)}, {v(Q)}, {v(Q)}")
        A(f"v_and_b32 {v(Q)}, s{sMASK}, {v(Q)}")
        if scale:
            A(f"v_mul_f32 {v(Q)}, {hex(f2u(scale))}, {v(Q)}")
        A(f"v_rcp_f32 {v(rinv)}, {v(Q)}")

    def spread(self, val, dst, t):
        A = self.A
        for r in range(4):
            A(f"v_mov_b32_dpp {v(t + r)}, {v(val)} row_newbcast:{4 + r} row_mask:0xf bank_mask:0xf")
        for r in range(4):
            A(f"v_cndmask_b32_dpp {v(dst + r)}, {v(val)}, {v(t + r)}, vcc row_newbcast:{r} row_mask:0xf bank_mask:0xf")

    def key_calc(self, K, vRA, vLANE):
        A = self.A
        A(f"v_mov_b32 {v(K + 14)}, {L_SUMW}")
        A(f"ds_read_b128 {v(K, 4)}, {v(vRA)} offset:{L_RED2 - L_RED1}")
        A(f"ds_read_b128 {v(K + 4, 4)}, {v(vRA)} offset:{L_RED2 - L_RED1 + 128}")
        A(f"ds_read_b128 {v(K + 8, 4)}, {v(vRA)} offset:{L_RED2 - L_RED1 + 256}")
        A(f"ds_read_b32 {v(K + 15)}, {v(K + 14)}")
        A(f"s_lshl_b32 s{sTMP}, s{sL}, 3")
        A(f"s_sub_u32 s{sTMP}, 2047, s{sTMP}")
        A(f"v_and_b32 {v(K + 14)}, 7, {v(vLANE)}")
        A(f"v_sub_u32 {v(K + 14)}, s{sTMP}, {v(K + 14)}")
        A("s_waitcnt lgkmcnt(2)")
        self.row_stats(K, K + 4, K + 12, K + 13, K + 28)
        A("s_waitcnt lgkmcnt(0)")
        A(f"v_pk_add_f32 {v(K + 8, 2)}, {v(K + 8, 2)}, {v(K + 10, 2)}")
        A(f"v_add_f32 {v(K + 8)}, {v(K + 8)}, {v(K + 9)}")
        A(f"v_fmac_f32 {v(K + 8)}, {v(K + 12)}, {v(K + 15)}")
        A(f"v_mul_f32 {v(K + 8)}, {v(K + 8)}, {v(K + 13)}")
        A(f"v_ashrrev_i32 {v(K + 9)}, 31, {v(K + 8)}")
        A(f"v_or_b32 {v(K + 9)}, 0x80000000, {v(K + 9)}")
        A(f"v_xor_b32 {v(K + 8)}, {v(K + 8)}, {v(K + 9)}")
        A(f"v_and_b32 {v(K + 8)}, 0xfffff800, {v(K + 8)}")
        A(f"v_or_b32 {v(K + 8)}, {v(K + 8)}, {v(K + 14)}")
        A(f"v_min_u32 {v(K + 8)}, -2, {v(K + 8)}")
        A(f"v_max_u32_dpp {v(K + 8)}, {v(K + 8)}, {v(K + 8)} quad_perm:[1,0,3,2] row_mask:0xf bank_mask:0xf")
        A(f"v_max_u32_dpp {v(K + 8)}, {v(K + 8)}, {v(K + 8)} quad_perm:[2,3,0,1] row_mask:0xf bank_mask:0xf")
        A(f"v_max_u32_dpp {v(K + 8)}, {v(K + 8)}, {v(K + 8)} row_half_mirror row_mask:0xf bank_mask:0xf")

    def finish(self, role):
        A = self.A
        o = self.o
        if self.stamp_on:
            self.stamp("end")
            self.allnames[role] = self.names
        if self.stamp_on and "probe" in o:
            k = o["probe"]
            if k == 98 and role == "R":
                A(f"s_getreg_b32 s{sTMP}, hwreg(HW_REG_XCC_ID, 0, 4)")
                A(f"s_sub_u32 s{sTMP}, s{sTMP}, s2")
                A(f"s_and_b32 s{sTMP}, s{sTMP}, 7")
                A(f"s_mul_i32 s{sTMP}, s{sTMP}, 1000")
                A(f"s_add_u32 s{sTMP}, s{sTMP}, 2000")
            elif k == 99 and role == "R":
                A("s_memtime s[96:97]")
                A("s_waitcnt lgkmcnt(0)")
                A("s_sub_u32 s96, s96, s98")
                A(f"s_sub_u32 s97, s{sSTAMP + self.nstamp - 1}, s{sSTAMP}")
                A("s_mov_b64 exec, -1")
                A("v_cvt_f32_u32 v2, s96")
                A("v_cvt_f32_u32 v3, s97")
                A("v_rcp_f32 v3, v3")
                A("s_nop 1")
                A("v_mul_f32 v2, v2, v3")
                A("v_mul_f32 v2, 0x43c80000, v2")
                A("v_cvt_u32_f32 v2, v2")
                A("s_nop 1")
                A(f"v_readfirstlane_b32 s{sTMP}, v2")
                A(f"s_add_u32 s{sTMP}, s{sTMP}, 2000")
            elif k < 0 and role == "R":
                A(f"s_mov_b32 s{sTMP}, {-k}")
            elif k >= 0 and (k >= 100) == (role == "C"):
                A(f"s_sub_u32 s{sTMP}, s{sSTAMP + k % 100}, s{sSTAMP}")
                A(f"s_cmp_lt_u32 s{sTMP}, 3000")
                A(f"s_cselect_b32 s{sTMP}, s{sTMP}, 0")
                A(f"s_mul_i32 s{sTMP}, s{sTMP}, 20")
                A(f"s_add_u32 s{sTMP}, s{sTMP}, 2000")
                if role == "C":
                    A(f"s_cmp_eq_u32 s{sWAVE}, 0")
                    A(f"s_cselect_b32 s{sTMP}, s{sTMP}, 0")
            else:
                A(f"s_mov_b32 s{sTMP}, 0")
            A(f"L_spin{role}:")
            A("s_memrealtime s[100:101]")
            A("s_waitcnt lgkmcnt(0)")
            A(f"s_sub_u32 s100, s100, s{sSTAMP}")
            A(f"s_cmp_lt_u32 s100, s{sTMP}")
            A(f"s_cbranch_scc1 L_spin{role}")
        elif self.stamp_on:
            A("s_mov_b64 exec, 1")
            A(f"s_lshl_b32 s{sTMP}, s2, 3")
            A(f"s_add_u32 s{sTMP}, s{sTMP}, s{sWAVE}")
            if role == "C":
                A(f"s_add_u32 s{sTMP}, s{sTMP}, 4")
            A(f"s_lshl_b32 s{sTMP}, s{sTMP}, 7")
            A(f"s_add_u32 s{sTMP}, s{sTMP}, {W_STAMP}")
            A(f"v_mov_b32 v1, s{sTMP}")
            for k in range(self.nstamp):
                A(f"v_mov_b32 v2, s{sSTAMP + k}")
                A(f"global_store_dword v1, v2, {sp(sWS)} offset:{4 * k}")
        A("s_endpgm")

    def build(self):
        A = self.A
        self.allnames = {}
        A(f"{KNAME}:")
        A("s_cmp_ge_u32 s2, 256")
        A("s_cbranch_scc1 L_end")
        self.stamp("start")
        if self.o.get("probe", 0) == 99:
            A("s_memtime s[98:99]")
        cpf = self.o.get("codepf", 1)
        if cpf == 1:
            A(f"s_getpc_b64 {sp(sE)}")
            A("L_pc:")
            A("v_lshlrev_b32 v2, 5, v0")
            A(f"v_min_u32 v2, L_codeend-L_pc-4, v2")
            A(f"global_load_dword v3, v2, {sp(sE)}")
        elif cpf >= 2:
            A(f"s_getpc_b64 {sp(sE)}")
            A("L_pc:")
            A(f"s_bfe_u32 s3, s2, {3 | ((7 - cpf) << 16)}")
            A(f"s_lshl_b32 s3, s3, {7 + cpf}")
            A("v_lshl_add_u32 v2, v0, 7, s3")
            A(f"v_min_u32 v2, L_codeend-L_pc-4, v2")
            A(f"v_cmp_gt_u32 vcc, {1 << cpf}, v0")
            A("s_mov_b64 exec, vcc")
            A(f"global_load_dword v3, v2, {sp(sE)}")
            A("s_mov_b64 exec, -1")
        A("s_load_dwordx16 s[4:19], s[0:1], 0")
        A("s_load_dwordx8 s[20:27], s[0:1], 64")
        A("s_load_dwordx4 s[28:31], s[0:1], 96")
        A("s_load_dwordx2 s[32:33], s[0:1], 112")
        A("v_lshrrev_b32 v4, 6, v0")
        A(f"s_and_b32 s{sXCD}, s2, 7")
        A(f"v_readfirstlane_b32 s{sWAVE}, v4")
        A(f"s_lshr_b32 s{sPOS}, s2, 3")
        A(f"s_lshl_b32 s{sL}, s{sXCD}, 5")
        A(f"s_add_u32 s{sL}, s{sL}, s{sPOS}")
        A("v_and_b32 v1, 63, v0")
        A(f"s_mov_b32 s{sMASK}, 0xffff0000")
        pre = self.o.get("pre", 0)
        if pre:
            A("s_waitcnt lgkmcnt(0)")
            n = pre % 10
            kind = pre // 10
            A(f"s_mul_i32 s{sT0}, s{sL}, {n * 4096 + 128}")
            A(f"s_add_u32 s{sT0}, s{sT0}, {32 << 20}")
            A("v_and_b32 v5, 0xff, v0")
            A(f"v_lshl_add_u32 v5, v5, 4, s{sT0}")
            A(f"s_cmp_ge_u32 s{sWAVE}, 4")
            A("s_cbranch_scc1 L_pre")
            if kind in (2, 3):
                A("s_mov_b64 exec, 1")
                A(f"global_load_dword v8, v5, {sp(sWS)}")
                A("s_mov_b64 exec, -1")
                A("s_waitcnt vmcnt(0)")
                if kind == 3:
                    self.nstamp = 0
                    self.names = []
                    self.stamp("start")
            if kind in (8, 9, 10, 11):
                A("v_lshrrev_b32 v12, 1, v0")
                A("v_and_b32 v13, 1, v0")
                A("v_lshlrev_b32 v12, 3, v12")
                A(f"s_lshl_b32 s{sT0}, s{sL}, 13")
                A("v_lshl_add_u32 v14, v13, 12, v12")
                A(f"v_add_u32 v14, s{sT0}, v14")
                for r in range(4):
                    A(f"global_load_dwordx2 v[{16 + 2 * r}:{17 + 2 * r}], v14, s[18:19] offset:{1024 * r}{' nt' if kind != 10 else ''}")
                ny = 0
                if kind in (9, 11):
                    A(f"global_load_dwordx2 v[24:25], v12, {sp(sD)}")
                    A(f"global_load_dwordx2 v[26:27], v12, {sp(sWR)}")
                    A("v_lshlrev_b32 v13, 4, v1")
                    A(f"global_load_dwordx4 v[28:31], v13, {sp(sWR)}")
                    ny = 3
                if kind == 11:
                    A(f"s_load_dword s{sG}, {sp(sWS)}, 0")
                for k in range(n):
                    A(f"global_store_dwordx4 v5, v[8:11], {sp(sWS)} sc1")
                    A("v_add_u32 v5, 4096, v5")
                A(f"s_waitcnt vmcnt({n + ny})")
                self.stamp("pre")
                n = 0
            for k in range(n):
                if kind == 1:
                    A(f"global_load_dwordx4 v[8:11], v5, {sp(sWS)}")
                elif kind == 6:
                    if k == 0:
                        A(f"s_lshl_b32 s{sT0}, s{sL}, 7")
                        A(f"v_mov_b32 v6, s{sT0}")
                        A("s_mov_b64 exec, 1")
                    A(f"global_load_dword v{8 + k}, v6, {sp((sX, sLA, sAI, sCR, sCI, sWG, sWU, sWD, sOUT)[k])}")
                    if k == n - 1:
                        A("s_mov_b64 exec, -1")
                elif kind == 7:
                    if k == 0:
                        A(f"v_lshlrev_b32 v6, 3, v1")
                    A(f"global_load_dwordx2 v[{8 + 2 * k}:{9 + 2 * k}], v6, {sp((sD, sWR)[k])}")
                elif kind == 5:
                    A(f"global_load_dwordx4 v[8:11], v5, {sp(sWS)} nt")
                elif kind == 4:
                    A(f"global_store_dwordx4 v5, v[8:11], {sp(sWS)}")
                else:
                    A(f"global_store_dwordx4 v5, v[8:11], {sp(sWS)} sc1")
                A("v_add_u32 v5, 4096, v5")
            A("s_waitcnt vmcnt(0)")
            if kind < 8:
                self.stamp("pre")
            A("L_pre:")
            A("s_barrier")
        A(f"s_cmp_ge_u32 s{sWAVE}, 4")
        A("s_cbranch_scc1 L_chan")
        self.rows()
        self.names = self.names[:1]
        self.nstamp = min(self.nstamp, 1)
        A(".p2align 6")
        self.role = "C"
        self.chans()
        A("L_end:")
        A("s_endpgm")
        for l in self.tail.L:
            A(l)
        A("L_codeend:")
        lines, nops = A.padded()
        lines, nbytes, promoted, missed = align8(lines)
        self.info = dict(nops=nops, bytes=nbytes, promoted=promoted, missed=missed, lines=len(lines))
        return lines

    def rows(self):
        A = self.A
        o = self.o
        vLANE = 1
        vX, vU, vD, vWR = 212, 10, 18, 20
        vREG, vRD, vAUX = 22, 23, 24
        vKEY, vSW, vRA, vFL, vUW = 26, 27, 28, 29, 30
        vT = 32
        vWG, vWD = 40, 72
        vY = 88
        vONE = 96
        K = 100
        L2E = 1.4426950408889634
        A(f"v_lshrrev_b32 {v(vT)}, 1, v0")
        A(f"v_and_b32 {v(vT + 1)}, 1, v0")
        A(f"v_lshlrev_b32 {v(vT + 2)}, 3, {v(vT)}")
        A(f"s_lshl_b32 s{sT0}, s{sL}, 13")
        A(f"v_lshl_add_u32 {v(vRD)}, {v(vT + 1)}, 12, {v(vT + 2)}")
        A(f"v_add_u32 {v(vRD)}, s{sT0}, {v(vRD)}")
        A(f"s_mul_i32 s{sOWN}, s{sL}, {RS}")
        A(f"s_add_u32 s{sOWN}, s{sOWN}, {W_REG}")
        A(f"s_add_u32 s{sT0}, s{sOWN}, 4096")
        A(f"v_lshl_add_u32 {v(vREG)}, v0, 4, s{sT0}")
        A(f"v_lshlrev_b32 {v(vT + 3)}, 4, {v(vLANE)}")
        nt = ' nt' if o.get('ntx', 1) else ''
        A("s_waitcnt lgkmcnt(0)")
        self.stamp("karg")
        for r in range(4):
            A(f"global_load_dwordx2 {v(vX + 2 * r, 2)}, {v(vRD)}, {sp(sX)} offset:{1024 * r}{nt}")
        A(f"s_load_dword s{sG}, {sp(sWS)}, 0")
        A(f"global_load_dwordx2 {v(vD, 2)}, {v(vT + 2)}, {sp(sD)}")
        A(f"global_load_dwordx2 {v(vWR, 2)}, {v(vT + 2)}, {sp(sWR)}")
        A(f"global_load_dwordx4 {v(vONE, 4)}, {v(vT + 3)}, {sp(sWR)}")
        A(f"s_mov_b32 s{sODD}, 0xaaaaaaaa")
        A(f"s_mov_b32 s{sODD + 1}, 0xaaaaaaaa")
        A(f"s_mov_b32 s{sSELLO}, 0x3f80")
        A(f"s_mov_b32 s{sSELHI}, 0x3f800000")
        A(f"s_mov_b32 s{sONES}, 0x3f803f80")
        A(f"s_and_b32 s{sTMP}, s{sL}, 1")
        A(f"s_lshl_b32 s{sTMP}, s{sTMP}, 12")
        A(f"s_lshr_b32 s{sTMP + 1}, s{sL}, 1")
        A(f"s_lshl_b32 s{sTMP + 1}, s{sTMP + 1}, 5")
        A(f"s_add_u32 s{sTMP}, s{sTMP}, s{sTMP + 1}")
        A(f"s_add_u32 s{sTMP}, s{sTMP}, {W_REG + O_X1}")
        A(f"v_mul_u32_u24 {v(vAUX)}, {RS}, {v(vT)}")
        A(f"v_lshl_add_u32 {v(vAUX)}, {v(vT + 1)}, 4, {v(vAUX)}")
        A(f"v_add_u32 {v(vAUX)}, s{sTMP}, {v(vAUX)}")
        A(f"v_add_u32 {v(vAUX + 1)}, {128 * RS}, {v(vAUX)}")
        FS = o.get("fs", 7)
        KS = o.get("ks", 7)
        A(f"v_lshlrev_b32 {v(vSW)}, 6, {v(vT + 1)}")
        A(f"v_and_b32 {v(vT + 3)}, 4, {v(vLANE)}")
        A(f"v_lshl_add_u32 {v(vSW)}, {v(vT + 3)}, 3, {v(vSW)}")
        A(f"v_and_b32 {v(vT + 3)}, 8, {v(vLANE)}")
        A(f"v_lshl_add_u32 {v(vSW)}, {v(vT + 3)}, 4, {v(vSW)}")
        A(f"v_lshrrev_b32 {v(vT + 3)}, 5, {v(vLANE)}")
        A(f"v_lshl_add_u32 {v(vSW)}, {v(vT + 3)}, 4, {v(vSW)}")
        A(f"s_lshl_b32 s{sTMP}, s{sWAVE}, 2")
        A(f"s_add_u32 s{sTMP}, s{sTMP}, {L_RED1}")
        A(f"v_add_u32 {v(vSW)}, s{sTMP}, {v(vSW)}")
        A(f"v_and_b32 {v(vT + 3)}, 7, {v(vLANE)}")
        A(f"v_lshlrev_b32 {v(vRA)}, 4, {v(vT + 3)}")
        A(f"v_add_u32 {v(vRA)}, {L_RED1}, {v(vRA)}")
        A(f"v_lshlrev_b32 {v(vUW)}, 3, v0")
        A(f"v_mov_b32 {v(vFL)}, 0x9fff9fff")
        A(f"v_mov_b32 {v(K)}, 0")
        A(f"v_mov_b32 {v(K + 1)}, 0")
        A(f"v_min_u32 {v(vT + 3)}, 472, {v(vUW)}")
        A(f"v_add_u32 {v(vT + 3)}, {L_U}, {v(vT + 3)}")
        A(f"v_min_u32 {v(vT + 4)}, 56, {v(vUW)}")
        A(f"v_add_u32 {v(vT + 4)}, {L_P}, {v(vT + 4)}")
        A(f"ds_write2st64_b64 {v(vT + 3)}, {v(K, 2)}, {v(K, 2)} offset0:0 offset1:9")
        A(f"ds_write_b64 {v(vT + 4)}, {v(K, 2)}")
        A(f"ds_write_b64 {v(vT + 4)}, {v(K, 2)} offset:{PC}")
        A(f"v_add_u32 {v(vUW)}, {L_U + 480}, {v(vUW)}")

        V = [K + i for i in range(8)]
        A("s_waitcnt vmcnt(3)")
        self.stamp("x")
        for r in range(4):
            A(f"v_dot2_f32_bf16 {v(V[r])}, {v(vX + 2 * r)}, s{sONES}, 0")
        for r in range(4):
            A(f"v_dot2_f32_bf16 {v(V[4 + r])}, {v(vX + 2 * r)}, {v(vX + 2 * r)}, 0")
        for r in range(4):
            A(f"v_dot2_f32_bf16 {v(V[r])}, {v(vX + 2 * r + 1)}, s{sONES}, {v(V[r])}")
        for r in range(4):
            A(f"v_dot2_f32_bf16 {v(V[4 + r])}, {v(vX + 2 * r + 1)}, {v(vX + 2 * r + 1)}, {v(V[4 + r])}")
        self.reduce8(V, K + 8)
        A(f"ds_write_b32 {v(vSW)}, {v(V[0])}")
        A("s_waitcnt lgkmcnt(0)")
        A("s_barrier")
        self.stamp("b1")
        A(f"ds_read_b128 {v(K, 4)}, {v(vRA)}")
        A(f"ds_read_b128 {v(K + 4, 4)}, {v(vRA)} offset:128")
        A(f"s_add_u32 s{sG}, s{sG}, 1")
        for k in range(4):
            A(f"s_add_u32 s{sTAG + k}, s{sG}, {5 * k}")
            A(f"s_and_b32 s{sTAG + k}, s{sTAG + k}, 15")
            A(f"s_mul_i32 s{sTAG + k}, s{sTAG + k}, 0x08002000")
            A(f"s_and_b32 s{sTAG + k}, s{sTAG + k}, 0x60006000")
        A(f"s_mov_b64 vcc, {sp(sODD)}")
        A("s_waitcnt lgkmcnt(0)")
        vNM, vRI = K + 16, K + 20
        self.row_stats(K, K + 4, K + 10, K + 11, K + 12, 2.0 ** 68)
        self.spread(K + 10, vNM, K + 24)
        Dd = K + 32
        for c in range(4):
            for r in range(4):
                A(f"v_dot2_f32_bf16 {v(Dd + 4 * c + r)}, {v(vX + 2 * r + (c >> 1))}, s{sSELHI if c & 1 else sSELLO}, {v(vNM + r)}")
        self.spread(K + 11, vRI, K + 24)
        Pk = K + 48
        for half in range(2):
            ks = range(4 * half, 4 * half + 4)
            for k in ks:
                A(f"v_cvt_pk_bf16_f32 {v(Pk + k)}, {v(Dd + 2 * k)}, {v(Dd + 2 * k + 1)}")
            for k in ks:
                A(f"v_lshlrev_b32 {v(Dd + 2 * k)}, 16, {v(Pk + k)}")
                A(f"v_and_b32 {v(Dd + 2 * k + 1)}, s{sMASK}, {v(Pk + k)}")
            for k in ks:
                A(f"v_pk_mul_f32 {v(Dd + 2 * k, 2)}, {v(Dd + 2 * k, 2)}, {v(vRI + 2 * (k & 1), 2)}")
            for k in ks:
                A(f"v_cvt_pk_bf16_f32 {v(vU + k)}, {v(Dd + 2 * k)}, {v(Dd + 2 * k + 1)}")
            for k in ks:
                A(f"v_and_or_b32 {v(Pk + k)}, {v(vU + k)}, {v(vFL)}, s{sTAG + (k & 3)}")
            if half == 0 and o.get("b1b", 1) == 1:
                A("s_barrier")
            A(f"global_store_dwordx4 {v(vREG)}, {v(Pk + 4 * half, 4)}, {sp(sWS)} offset:{-4096 + 4096 * half} sc1")
        self.stamp("x1st")
        b2pos = o.get("b2pos", 0)
        if b2pos == 0:
            A("s_barrier")
        A("s_waitcnt vmcnt(0)")
        self.stamp("x1dr")
        xl = [f"global_load_dwordx4 {v(vY, 4)}, {v(vAUX)}, {sp(sWS)} sc1",
              f"global_load_dwordx4 {v(vY + 4, 4)}, {v(vAUX + 1)}, {sp(sWS)} sc1"]
        for l in xl:
            A(l)
        if b2pos == 1:
            A("s_barrier")
        A(f"s_mul_i32 s{sF}, s{sXCD}, 14")
        A(f"s_add_u32 s{sF}, s{sF}, s{sPOS}")
        A(f"s_bitcmp1_b32 s{sWAVE}, 0")
        A(f"s_cselect_b64 {sp(sWSEL)}, {sp(sWU)}, {sp(sWG)}")
        A(f"s_lshr_b32 s{sTMP + 1}, s{sWAVE}, 1")
        A(f"s_mul_i32 s{sTMP + 1}, s{sTMP + 1}, {256 * 3584}")
        A(f"s_lshl_b32 s{sTMP + 2}, s{sF}, 5")
        A(f"s_add_u32 s{sTMP + 1}, s{sTMP + 1}, s{sTMP + 2}")
        vWA = K + 8
        A(f"v_lshrrev_b32 {v(vWA)}, 1, {v(vLANE)}")
        A(f"v_mul_u32_u24 {v(vWA)}, {8 * 3584}, {v(vWA)}")
        A(f"v_lshl_add_u32 {v(vWA)}, {v(vT + 1)}, 4, {v(vWA)}")
        A(f"v_add_u32 {v(vWA)}, s{sTMP + 1}, {v(vWA)}")
        A(f"v_add_u32 {v(vWA + 2)}, {7 * 3584}, {v(vWA)}")
        A(f"v_add_u32 {v(vWA + 1)}, {4 * 3584}, {v(vWA)}")
        A(f"v_add_u32 {v(vWA)}, 3584, {v(vWA)}")
        A(f"s_lshl_b32 s{sTMP + 1}, s{sF}, 14")
        A(f"s_add_u32 s{sTMP + 1}, s{sTMP + 1}, 4096")
        A(f"v_lshl_add_u32 {v(220)}, v0, 2, s{sTMP + 1}")
        A(f"v_add_u32 {v(221)}, 8192, {v(220)}")
        f2 = o.get("b1b", 1) == 2
        if f2:
            A(f"v_and_b32 {v(vFL)}, 0xfe, v0")
            A(f"v_lshlrev_b32 {v(vFL)}, 7, {v(vFL)}")
            A(f"v_add_u32 {v(vFL)}, {W_FLAG}, {v(vFL)}")
            A(f"s_mul_i32 s{sT0}, s{sG}, 0x9e3779b1")
        i2 = o.get("i2", 0)
        if i2:
            A(f"s_lshl_b32 s{sTMP}, s{sWAVE}, 11")
            A(f"s_add_u32 s{sTMP}, s{sTMP}, s{sOWN}")
            A(f"s_add_u32 s{sTMP}, s{sTMP}, {O_X2}")
            A(f"v_lshl_add_u32 {v(vWA + 5)}, {v(vLANE)}, 4, s{sTMP}")
            A(f"v_add_u32 {v(vWA + 6)}, {O_SLOT - 4096}, {v(vREG)}")
            A(f"s_lshl_b32 s{sTMP}, s{sL}, {KS}")
            A(f"s_add_u32 s{sTMP}, s{sTMP}, {W_KEY}")
            A(f"v_lshl_add_u32 {v(vWA + 7)}, {v(vLANE)}, 4, s{sTMP}")
            A(f"s_lshl_b32 s{sTMP}, s{sL}, 2")
            A(f"s_add_u32 s{sTMP}, s{sTMP}, s{sWAVE}")
            A(f"s_lshl_b32 s{sTMP}, s{sTMP}, 7")
            A(f"s_add_u32 s{sTMP}, s{sTMP}, {W_FLAG2}")
            A(f"v_lshl_add_u32 {v(vKEY)}, {v(vLANE)}, 4, s{sTMP}")
            A(f"s_lshr_b32 s{sTMP}, s{sL}, 6")
            A(f"s_lshl_b32 s{sTMP}, s{sTMP}, 7")
            A(f"s_add_u32 s{sTMP}, s{sTMP}, {W_FLAG2}")
            A(f"v_and_b32 {v(vFL)}, 0xfe, v0")
            A(f"v_lshl_add_u32 {v(vFL)}, {v(vFL)}, 9, s{sTMP}")
            for k in range(4):
                A(f"v_mov_b32 {v(K + 32 + k)}, -1")
        A(f"v_dot2_f32_bf16 {v(K + 4)}, {v(vONE)}, s{sONES}, 0")
        for k in range(1, 4):
            A(f"v_dot2_f32_bf16 {v(K + 4)}, {v(vONE + k)}, s{sONES}, {v(K + 4)}")
        A(f"v_mov_b32 {v(K + 5)}, {L_SUMW}")
        A(f"s_mov_b32 s{sRP0}, 0x05040100")
        A(f"s_mov_b32 s{sRP1}, 0x07060302")
        for sh in (8, 4, 2, 1):
            A(f"v_add_f32_dpp {v(K + 4)}, {v(K + 4)}, {v(K + 4)} row_ror:{sh} row_mask:0xf bank_mask:0xf")
        A(f"v_add_f32_dpp {v(K + 4)}, {v(K + 4)}, {v(K + 4)} row_bcast:15 row_mask:0xa bank_mask:0xf")
        A(f"v_add_f32_dpp {v(K + 4)}, {v(K + 4)}, {v(K + 4)} row_bcast:31 row_mask:0xc bank_mask:0xf")
        A("s_mov_b32 exec_lo, 0")
        A("s_brev_b32 exec_hi, 1")
        A(f"ds_write_b32 {v(K + 5)}, {v(K + 4)}")
        A("s_mov_b64 exec, -1")
        A("s_barrier")
        A("s_waitcnt vmcnt(0)")
        chk8 = [f"v_max3_u32 {v(vT + 6)}, {v(vY)}, {v(vY + 1)}, {v(vY + 2)}",
                f"v_max3_u32 {v(vT + 7)}, {v(vY + 3)}, {v(vY + 4)}, {v(vY + 5)}",
                f"v_max3_u32 {v(vT + 6)}, {v(vT + 6)}, {v(vY + 6)}, {v(vY + 7)}",
                f"v_max_u32 {v(vT + 6)}, {v(vT + 6)}, {v(vT + 7)}",
                f"v_cmp_eq_u32 vcc, -1, {v(vT + 6)}"]
        Z = K + 32
        tchk = [f"v_xor_b32 {v(Z + k)}, s{sTAG + (k & 3)}, {v(vY + k)}" for k in range(8)]
        tchk += [f"v_or3_b32 {v(vT + 6)}, {v(Z)}, {v(Z + 1)}, {v(Z + 2)}",
                 f"v_or3_b32 {v(vT + 7)}, {v(Z + 3)}, {v(Z + 4)}, {v(Z + 5)}",
                 f"v_or3_b32 {v(vT + 6)}, {v(vT + 6)}, {v(Z + 6)}, {v(Z + 7)}",
                 f"v_or_b32 {v(vT + 6)}, {v(vT + 6)}, {v(vT + 7)}",
                 f"v_and_b32 {v(vT + 6)}, 0x60006000, {v(vT + 6)}",
                 "s_nop 1",
                 f"v_or_b32_dpp {v(vT + 6)}, {v(vT + 6)}, {v(vT + 6)} quad_perm:[1,0,3,2] row_mask:0xf bank_mask:0xf",
                 f"v_cmp_ne_u32 vcc, 0, {v(vT + 6)}"]
        self.poll("x1", xl, tchk)
        self.stamp("x1ld")
        A(f"ds_write2st64_b64 {v(vUW)}, {v(Z, 2)}, {v(Z + 2, 2)} offset0:0 offset1:9")
        A(f"ds_write2st64_b64 {v(vUW)}, {v(Z + 4, 2)}, {v(Z + 6, 2)} offset0:4 offset1:13")
        A("s_waitcnt lgkmcnt(0)")
        A("s_barrier")

        fl2 = [f"global_load_dword {v(vT + 4)}, {v(vFL)}, {sp(sWS)} sc1",
               f"global_load_dword {v(vT + 5)}, {v(vFL)}, {sp(sWS)} offset:512 sc1"]
        wl = [f"global_load_dwordx4 {v(vWG + 4 * k, 4)}, {v(vWA + k // 3)}, {sp(sWSEL)} offset:{(k % 3 - 1) * 3584}" for k in range(8)]
        wdl = [f"global_load_dword {v(vWD + k)}, {v(220 + (k >> 3))}, {sp(sWD)} offset:{((k & 7) - 4) * 1024}" for k in range(16)]
        wdp = o.get("wdp", 0)
        if wdp == 0:
            wl += wdl
        flst = ["s_mov_b64 exec, 0xff",
                f"global_store_dwordx4 {v(vKEY)}, {v(K + 28, 4)}, {sp(sWS)} sc1",
                "s_mov_b64 exec, -1"]
        if i2:
            ones = v(K + 32, 4)
            A(f"s_cmp_eq_u32 s{sWAVE}, 0")
            A(f"s_cselect_b64 exec, {(1 << ((1 << KS) // 16)) - 1}, 0")
            A(f"global_store_dwordx4 {v(vWA + 7)}, {ones}, {sp(sWS)} sc1")
            A("s_mov_b64 exec, -1")
            A(f"global_store_dwordx4 {v(vWA + 5)}, {ones}, {sp(sWS)} sc1")
            A(f"global_store_dwordx4 {v(vWA + 5)}, {ones}, {sp(sWS)} offset:1024 sc1")
            A(f"global_store_dwordx4 {v(vWA + 6)}, {ones}, {sp(sWS)} sc1")
        if i2 == 1:
            A("s_waitcnt vmcnt(0)")
            for l in flst:
                A(l)
            self.stamp("init2")
        fl3 = [f"global_load_dword {v(vT + 4)}, {v(vFL)}, {sp(sWS)} sc1",
               f"global_load_dword {v(vT + 5)}, {v(vFL)}, {sp(sWS)} offset:128 sc1"]
        if f2:
            for l in fl3:
                A(l)
        A(f"s_cmp_lt_u32 s{sPOS}, 14")
        A("s_cbranch_scc0 L_now")
        for l in wl:
            A(l)
        self.stamp("wq2")
        if f2:
            A(f"s_waitcnt vmcnt({len(wl)})")
            A("L_now2:")
            self.tail("L_now:")
            self.tail("s_waitcnt vmcnt(0)")
            self.tail("s_branch L_now2")
            self.poll("flag2", fl3, [f"v_xor_b32 {v(vT + 6)}, s{sT0}, {v(vT + 4)}",
                                     f"v_xor_b32 {v(vT + 7)}, s{sT0}, {v(vT + 5)}",
                                     f"v_or_b32 {v(vT + 6)}, {v(vT + 6)}, {v(vT + 7)}",
                                     f"v_cmp_ne_u32 vcc, 0, {v(vT + 6)}"])
        else:
            A("L_now:")
        shp = o.get("shp", 1)
        if shp == 1:
            A("s_barrier")
        A(f"v_and_b32 {v(vT + 3)}, 0xfe, v0")
        A(f"v_mul_u32_u24 {v(vAUX)}, {RS}, {v(vT + 3)}")
        A(f"v_lshl_add_u32 {v(vAUX)}, {v(vT + 1)}, 4, {v(vAUX)}")
        A(f"s_lshl_b32 s{sTMP}, s{sL}, 5")
        A(f"s_add_u32 s{sTMP}, s{sTMP}, {W_REG + O_X2}")
        A(f"v_add_u32 {v(vAUX)}, s{sTMP}, {v(vAUX)}")
        A(f"v_add_u32 {v(vAUX + 1)}, {RS}, {v(vAUX)}")
        Tt, Xf = K + 40, K + 56
        Df = K + 72
        for k in range(8):
            A(f"v_lshlrev_b32 {v(Tt + 2 * k)}, 16, {v(vU + k)}")
            A(f"v_and_b32 {v(Tt + 2 * k + 1)}, s{sMASK}, {v(vU + k)}")
        A(f"v_lshlrev_b32 {v(Df)}, 16, {v(vD)}")
        A(f"v_and_b32 {v(Df + 1)}, s{sMASK}, {v(vD)}")
        A(f"v_lshlrev_b32 {v(Df + 2)}, 16, {v(vD + 1)}")
        A(f"v_and_b32 {v(Df + 3)}, s{sMASK}, {v(vD + 1)}")
        for k in range(4):
            A(f"v_mul_f32 {v(Df + k)}, {hex(f2u(2.0 ** 68))}, {v(Df + k)}")
        for k in range(8):
            c = k >> 1
            sel = "op_sel:[1,0] op_sel_hi:[1,1]" if c & 1 else "op_sel_hi:[0,1]"
            A(f"v_pk_mul_f32 {v(Tt + 2 * k, 2)}, {v(Df + (c & 2), 2)}, {v(Tt + 2 * k, 2)} {sel}")
        for k in range(8):
            A(f"v_cvt_pk_bf16_f32 {v(Xf + k)}, {v(Tt + 2 * k)}, {v(Tt + 2 * k + 1)}")
        for k in range(8):
            A(f"v_lshlrev_b32 {v(Tt + 2 * k)}, 16, {v(Xf + k)}")
            A(f"v_and_b32 {v(Tt + 2 * k + 1)}, s{sMASK}, {v(Xf + k)}")
        for r in range(4):
            for c in range(4):
                src = v(vX + 2 * r + (c >> 1))
                if c & 1:
                    A(f"v_and_b32 {v(Xf + 4 * c + r)}, s{sMASK}, {src}")
                else:
                    A(f"v_lshlrev_b32 {v(Xf + 4 * c + r)}, 16, {src}")
        vTW, vTS, vTO, vSL = vUW, vFL, 31, vKEY
        A(f"s_mul_i32 s{sTMP}, s{sWAVE}, {3 * WTILE}")
        A(f"s_add_u32 s{sTMP}, s{sTMP}, {L_TILE}")
        A(f"v_mul_u32_u24 {v(vTW)}, {4 * WST}, {v(vT + 1)}")
        A(f"v_lshrrev_b32 {v(vT + 3)}, 1, {v(vLANE)}")
        A(f"v_lshl_add_u32 {v(vTW)}, {v(vT + 3)}, 3, {v(vTW)}")
        A(f"v_add_u32 {v(vTW)}, s{sTMP}, {v(vTW)}")
        A(f"v_lshrrev_b32 {v(vT + 3)}, 4, {v(vLANE)}")
        A(f"v_and_b32 {v(vT + 4)}, 15, {v(vLANE)}")
        A(f"v_lshl_add_u32 {v(vT + 5)}, {v(vT + 4)}, 4, s{sTMP}")
        A(f"s_movk_i32 s{sTMP}, {WST}")
        A(f"v_mad_u32_u24 {v(vTO)}, {v(vT + 3)}, s{sTMP}, {v(vT + 5)}")
        A(f"s_movk_i32 s{sTMP}, {WTILE}")
        A(f"v_mad_u32_u24 {v(vTS)}, {v(vT + 3)}, s{sTMP}, {v(vT + 5)}")
        A(f"v_lshlrev_b32 {v(vT + 4)}, 4, {v(vT + 4)}")
        A(f"v_lshl_add_u32 {v(vT + 4)}, {v(vT + 3)}, 10, {v(vT + 4)}")
        A(f"s_lshl_b32 s{sTMP}, s{sWAVE}, 8")
        A(f"s_add_u32 s{sTMP + 1}, s{sTMP}, s{sOWN}")
        A(f"s_add_u32 s{sTMP + 1}, s{sTMP + 1}, {O_SLOT}")
        A(f"v_add_u32 {v(vSL)}, s{sTMP + 1}, {v(vT + 4)}")
        A(f"s_lshl_b32 s{sTMP + 1}, s{sL}, 13")
        A(f"s_add_u32 s{sTMP}, s{sTMP}, s{sTMP + 1}")
        A(f"s_add_u32 s{sTMP}, s{sTMP}, 4096")
        A(f"v_add_u32 {v(vRD)}, s{sTMP}, {v(vT + 4)}")
        vF = 4
        A(f"s_lshr_b32 s{sTMP}, s{sWAVE}, 1")
        A(f"s_lshl_b32 s{sTMP}, s{sTMP}, 9")
        A(f"s_add_u32 s{sTMP}, s{sTMP}, {W_REG + O_SLOT}")
        A(f"v_lshrrev_b32 {v(vF)}, 1, {v(vLANE)}")
        A(f"v_lshl_add_u32 {v(vF)}, {v(vF)}, 4, s{sTMP}")
        A(f"v_lshlrev_b32 {v(vF + 1)}, 6, {v(vT + 1)}")
        A(f"v_and_b32 {v(vF + 2)}, 12, {v(vLANE)}")
        A(f"v_lshl_add_u32 {v(vF + 1)}, {v(vF + 2)}, 2, {v(vF + 1)}")
        A(f"v_lshrrev_b32 {v(vF + 2)}, 5, {v(vLANE)}")
        A(f"v_lshl_add_u32 {v(vF + 1)}, {v(vF + 2)}, 3, {v(vF + 1)}")
        A(f"s_and_b32 s{sTMP}, s{sWAVE}, 1")
        A(f"s_lshl_b32 s{sTMP}, s{sTMP}, 7")
        A(f"s_lshr_b32 s{sTMP + 1}, s{sWAVE}, 1")
        A(f"s_lshl_b32 s{sTMP + 1}, s{sTMP + 1}, 2")
        A(f"s_add_u32 s{sTMP}, s{sTMP}, s{sTMP + 1}")
        A(f"s_add_u32 s{sTMP}, s{sTMP}, {L_REDF}")
        A(f"v_add_u32 {v(vF + 1)}, s{sTMP}, {v(vF + 1)}")
        A(f"v_and_b32 {v(vF + 2)}, 15, {v(vLANE)}")
        A(f"v_lshlrev_b32 {v(vF + 2)}, 3, {v(vF + 2)}")
        A(f"v_add_u32 {v(vF + 2)}, {L_REDF}, {v(vF + 2)}")
        A(f"s_add_u32 s{sTMP}, s{sOWN}, {O_PART}")
        A(f"v_lshl_add_u32 {v(vF + 3)}, v0, 3, s{sTMP}")
        A(f"v_mov_b32 {v(8)}, {L_REDK}")
        self.stamp("shadow")
        if shp == 0:
            A("s_barrier")
        if i2:
            for l in fl2:
                A(l)
            A("s_waitcnt vmcnt(0)")
            self.poll("flag2", fl2, flchk)
            self.stamp("flag2")
        A("s_barrier")
        self.stamp("b4b")
        for l in xl:
            A(l)
        A("s_waitcnt vmcnt(2)")
        WGp = K + 80
        for kp in range(4):
            for d in range(4):
                lo, hi = vWG + 8 * kp + d, vWG + 8 * kp + 4 + d
                A(f"v_perm_b32 {v(WGp + 8 * kp + 2 * d)}, {v(hi)}, {v(lo)}, s{sRP0}")
                A(f"v_perm_b32 {v(WGp + 8 * kp + 2 * d + 1)}, {v(hi)}, {v(lo)}, s{sRP1}")
        WDp = vWG
        wdperm = []
        for kp in range(8):
            lo, hi = vWD + 2 * kp, vWD + 2 * kp + 1
            wdperm.append(f"v_perm_b32 {v(WDp + 2 * kp)}, {v(hi)}, {v(lo)}, s{sRP0}")
            wdperm.append(f"v_perm_b32 {v(WDp + 2 * kp + 1)}, {v(hi)}, {v(lo)}, s{sRP1}")
        if wdp == 0:
            for l in wdperm:
                A(l)
        A("s_waitcnt vmcnt(0)")
        self.poll("x2", xl, chk8)
        self.stamp("x2ld")

        for k in range(8):
            A(f"v_dot2_f32_bf16 {v(Tt + 2 * k)}, {v(vY + k)}, s{sSELLO}, {v(Tt + 2 * k)}")
            A(f"v_dot2_f32_bf16 {v(Tt + 2 * k + 1)}, {v(vY + k)}, s{sSELHI}, {v(Tt + 2 * k + 1)}")
        for k in range(8):
            A(f"v_cvt_pk_bf16_f32 {v(vY + k)}, {v(Tt + 2 * k)}, {v(Tt + 2 * k + 1)}")
        for k in range(8):
            A(f"v_dot2_f32_bf16 {v(Xf + 2 * k)}, {v(vY + k)}, s{sSELLO}, {v(Xf + 2 * k)}")
            A(f"v_dot2_f32_bf16 {v(Xf + 2 * k + 1)}, {v(vY + k)}, s{sSELHI}, {v(Xf + 2 * k + 1)}")
        vH = vX
        for cp in range(2):
            for r in range(4):
                A(f"v_cvt_pk_bf16_f32 {v(vH + 2 * r + cp)}, {v(Xf + 8 * cp + r)}, {v(Xf + 8 * cp + 4 + r)}")
        Rr = [K + 8 + i for i in range(4)]
        for cp in range(2):
            for r in range(4):
                A(f"v_dot2_f32_bf16 {v(V[r])}, {v(vH + 2 * r + cp)}, s{sONES}, {v(V[r]) if cp else 0}")
            for r in range(4):
                A(f"v_dot2_f32_bf16 {v(V[4 + r])}, {v(vH + 2 * r + cp)}, {v(vH + 2 * r + cp)}, {v(V[4 + r]) if cp else 0}")
            for r in range(4):
                A(f"v_dot2_f32_bf16 {v(Rr[r])}, {v(vH + 2 * r + cp)}, {v(vWR + cp)}, {v(Rr[r]) if cp else 0}")
        for i in range(4):
            A(f"v_add_f32_dpp {v(V[i])}, {v(V[i])}, {v(V[i])} row_ror:8 row_mask:0xf bank_mask:0x3")
        for i in range(4):
            A(f"v_add_f32_dpp {v(V[i])}, {v(V[i + 4])}, {v(V[i + 4])} row_ror:8 row_mask:0xf bank_mask:0xc")
        for i in range(2):
            A(f"v_add_f32_dpp {v(Rr[i])}, {v(Rr[i])}, {v(Rr[i])} row_shl:4 row_mask:0xf bank_mask:0x5")
        for i in range(2):
            A(f"v_add_f32_dpp {v(Rr[i])}, {v(Rr[i + 2])}, {v(Rr[i + 2])} row_shr:4 row_mask:0xf bank_mask:0xa")
        for i in range(2):
            A(f"v_add_f32_dpp {v(V[i])}, {v(V[i])}, {v(V[i])} row_shl:4 row_mask:0xf bank_mask:0x5")
        for i in range(2):
            A(f"v_add_f32_dpp {v(V[i])}, {v(V[i + 2])}, {v(V[i + 2])} row_shr:4 row_mask:0xf bank_mask:0xa")
        A(f"v_permlane32_swap_b32 {v(Rr[0])}, {v(Rr[1])}")
        A(f"v_and_b32 {v(K + 13)}, 0xffffff7f, {v(vSW)}")
        A(f"v_permlane32_swap_b32 {v(V[0])}, {v(V[1])}")
        A(f"v_add_f32 {v(Rr[0])}, {v(Rr[0])}, {v(Rr[1])}")
        A(f"v_add_f32 {v(V[0])}, {v(V[0])}, {v(V[1])}")
        A(f"s_mov_b64 vcc, {sp(sODD)}")
        A(f"v_add_f32_dpp {v(Rr[0])}, {v(Rr[0])}, {v(Rr[0])} row_ror:8 row_mask:0xf bank_mask:0xf")
        A(f"v_add_f32_dpp {v(V[0])}, {v(V[0])}, {v(V[0])} quad_perm:[2,3,0,1] row_mask:0xf bank_mask:0xf")
        A(f"v_mov_b32 {v(V[1])}, {v(V[0])}")
        A(f"v_add_f32_dpp {v(Rr[0])}, {v(Rr[0])}, {v(Rr[0])} quad_perm:[2,3,0,1] row_mask:0xf bank_mask:0xf")
        A(f"v_mov_b32 {v(Rr[1])}, {v(Rr[0])}")
        A(f"v_permlane16_swap_b32 {v(V[0])}, {v(V[1])}")
        A(f"v_add_f32 {v(V[0])}, {v(V[0])}, {v(V[1])}")
        A(f"v_permlane16_swap_b32 {v(Rr[0])}, {v(Rr[1])}")
        A(f"v_add_f32 {v(Rr[0])}, {v(Rr[0])}, {v(Rr[1])}")
        A(f"ds_write_b32 {v(vSW)}, {v(V[0])} offset:{L_RED2 - L_RED1}")
        A(f"ds_write_b32 {v(K + 13)}, {v(Rr[0])} offset:{L_RED2 - L_RED1 + 256}")
        A("s_waitcnt lgkmcnt(0)")
        A("s_barrier")
        self.stamp("b5")
        Hf, Dd = Xf, Tt
        self.key_calc(K, vRA, vLANE)
        for r in range(4):
            A(f"ds_write_b64 {v(vTW)}, {v(vH + 2 * r, 2)} offset:{WTILE + r * WST}")
        self.spread(K + 12, vNM, K + 24)
        A(f"v_readfirstlane_b32 s{sBEST}, {v(K + 8)}")
        for r in range(4):
            for cp in range(2):
                A(f"v_lshlrev_b32 {v(Hf + 4 * r + 2 * cp)}, 16, {v(vH + 2 * r + cp)}")
                A(f"v_and_b32 {v(Hf + 4 * r + 2 * cp + 1)}, s{sMASK}, {v(vH + 2 * r + cp)}")
        self.spread(K + 13, vRI, K + 24)
        for k in range(8):
            r = k >> 1
            sel = "op_sel:[1,0] op_sel_hi:[1,1]" if r & 1 else "op_sel_hi:[0,1]"
            A(f"v_pk_add_f32 {v(Dd + 2 * k, 2)}, {v(vNM + (r & 2), 2)}, {v(Hf + 2 * k, 2)} {sel}")
        vX2 = vU
        if o.get("pace", 3) == 1:
            A("s_barrier")
        for k in range(8):
            A(f"v_cvt_pk_bf16_f32 {v(vX2 + k)}, {v(Dd + 2 * k)}, {v(Dd + 2 * k + 1)}")
        for k in range(8):
            A(f"v_lshlrev_b32 {v(Dd + 2 * k)}, 16, {v(vX2 + k)}")
            A(f"v_and_b32 {v(Dd + 2 * k + 1)}, s{sMASK}, {v(vX2 + k)}")
        for k in range(8):
            r = k >> 1
            sel = "op_sel:[1,0] op_sel_hi:[1,1]" if r & 1 else "op_sel_hi:[0,1]"
            A(f"v_pk_mul_f32 {v(Dd + 2 * k, 2)}, {v(vRI + (r & 2), 2)}, {v(Dd + 2 * k, 2)} {sel}")
        for k in range(8):
            A(f"v_cvt_pk_bf16_f32 {v(vX2 + k)}, {v(Dd + 2 * k)}, {v(Dd + 2 * k + 1)}")
        if o.get("pace", 3) == 2:
            A("s_barrier")
        for r in range(4):
            A(f"ds_write_b64 {v(vTW)}, {v(vX2 + 2 * r, 2)} offset:{r * WST}")
        A(f"s_andn2_b32 s{sTMP}, 7, s{sBEST}")
        A(f"s_mul_i32 s{sTMP + 1}, s{sTMP}, {WST}")
        A(f"v_add_u32 {v(vTS)}, s{sTMP + 1}, {v(vTS)}")
        A(f"ds_read_b128 {v(K + 24, 4)}, {v(vTS)}")
        A(f"s_mov_b32 s{sCAND}, s{sTMP}")
        A("s_mov_b32 exec_hi, 0")
        A("s_waitcnt lgkmcnt(0)")
        A(f"global_store_dwordx4 {v(vSL)}, {v(K + 24, 4)}, {sp(sWS)} sc1")
        A("s_mov_b32 exec_hi, -1")
        self.stamp("slot")
        if o.get("pace", 3) == 3:
            A("s_barrier")
        if wdp == 2:
            A(f"s_cmp_lt_u32 s{sPOS}, 14")
            A("s_cselect_b64 exec, -1, 0")
            for l in wdl:
                A(l)
            A("s_mov_b64 exec, -1")
        A("s_barrier")
        A(f"ds_read_b32 {v(K)}, {v(8)}")
        A(f"s_cmp_lt_u32 s{sPOS}, 14")
        A("s_cselect_b64 vcc, -1, 0")
        A("s_waitcnt lgkmcnt(0)")
        A(f"v_readfirstlane_b32 s{sWIN}, {v(K)}")
        seladdr = [f"s_andn2_b32 s{sT0}, 2047, s{sWIN}",
                   f"s_lshr_b32 s{sT1}, s{sT0}, 3",
                   f"s_mul_i32 s{sT1}, s{sT1}, {RS}",
                   f"v_add_u32 {v(vT)}, s{sT1}, {v(vF)}"]
        for l in seladdr:
            A(l)
        sl = [f"global_load_dwordx4 {v(K, 4)}, {v(vT)}, {sp(sWS)} sc1"]
        A("s_mov_b64 exec, vcc")
        A(sl[0])
        if wdp == 1:
            for l in wdl:
                A(l)
        A("s_mov_b64 exec, -1")
        self.stamp("win")
        for k in range(8):
            A(f"v_dot2_f32_bf16 {v(Hf + 2 * k)}, {v(vX2 + k)}, s{sSELLO}, {v(Hf + 2 * k)}")
            A(f"v_dot2_f32_bf16 {v(Hf + 2 * k + 1)}, {v(vX2 + k)}, s{sSELHI}, {v(Hf + 2 * k + 1)}")
        vO = vU
        for k in range(8):
            A(f"v_cvt_pk_bf16_f32 {v(vY + k)}, {v(Hf + 2 * k)}, {v(Hf + 2 * k + 1)}")
        for r in range(4):
            A(f"ds_write_b64 {v(vTW)}, {v(vY + 2 * r, 2)} offset:{2 * WTILE + r * WST}")
        for i in range(2):
            A(f"ds_read_b128 {v(vO + 4 * i, 4)}, {v(vTO)} offset:{2 * WTILE + 4 * i * WST}")
        A(f"s_and_b32 s{sTMP + 1}, s{sCAND}, 3")
        A(f"s_lshl_b32 s{sTMP + 1}, s{sTMP + 1}, 4")
        A(f"s_mov_b64 {sp(sE)}, 0xffff")
        A(f"s_lshl_b64 {sp(sE)}, {sp(sE)}, s{sTMP + 1}")
        A(f"s_lshr_b32 s{sCAND}, s{sCAND}, 2")
        osc = " sc1" if o.get("outsc", 1) == 1 else ""
        olate = o.get("olate", 0)
        ost = [f"global_store_dwordx4 {v(vRD)}, {v(vO + 4 * i, 4)}, {sp(sOUT)} offset:{4096 * i - 4096}{osc}" for i in range(2)]
        A("s_waitcnt lgkmcnt(0)")
        if not olate:
            for i in range(2):
                A(f"s_cmp_eq_u32 s{sCAND}, {i}")
                A(f"s_cselect_b64 vcc, {sp(sE)}, 0")
                A("s_not_b64 exec, vcc")
                A(ost[i])
            A("s_mov_b64 exec, -1")
        self.stamp("outst")
        A(f"s_cmp_lt_u32 s{sPOS}, 14")
        A("s_cbranch_scc0 L_noffn0")
        A(f"s_waitcnt vmcnt({18 if wdp == 1 else 2})")
        A("L_selwait:")
        self.poll("sel", sl, [f"v_max3_u32 {v(vT + 6)}, {v(K)}, {v(K + 1)}, {v(K + 2)}",
                              f"v_max_u32 {v(vT + 6)}, {v(vT + 6)}, {v(K + 3)}",
                              f"v_cmp_eq_u32 vcc, -1, {v(vT + 6)}"])
        self.stamp("sel")
        V2 = [K + 8 + i for i in range(8)]
        for kp in range(4):
            for c in range(8):
                A(f"v_dot2_f32_bf16 {v(V2[c])}, {v(K + kp)}, {v(WGp + 8 * kp + c)}, {v(V2[c]) if kp else 0}")
        self.reduce8(V2, K + 16)
        A(f"ds_write_b32 {v(vF + 1)}, {v(V2[0])}")
        if wdp:
            A("s_waitcnt vmcnt(2)")
            for l in wdperm:
                A(l)
        A("s_waitcnt lgkmcnt(0)")
        A("s_barrier")
        self.stamp("b7")
        A(f"ds_read_b32 {v(K + 6)}, {v(8)} offset:8")
        A(f"ds_read_b64 {v(K, 2)}, {v(vF + 2)}")
        A(f"ds_read_b64 {v(K + 2, 2)}, {v(vF + 2)} offset:128")
        A("s_waitcnt lgkmcnt(0)")
        A(f"v_cmp_ne_u32 vcc, s{sWIN}, {v(K + 6)}")
        A("s_cbranch_vccnz L_redo")
        T = self.tail
        T("L_redo:")
        T(f"v_readfirstlane_b32 s{sWIN}, {v(K + 6)}")
        for l in seladdr + sl:
            T(l)
        T("s_waitcnt vmcnt(0)")
        T("s_branch L_selwait")
        T("L_noffn0:")
        T("s_barrier")
        T(f"ds_read_b32 {v(K + 6)}, {v(8)} offset:8")
        T("s_waitcnt lgkmcnt(0)")
        T(f"v_readfirstlane_b32 s{sWIN}, {v(K + 6)}")
        T("s_branch L_noffn")
        A(f"v_add_f32 {v(K)}, {v(K)}, {v(K + 1)}")
        A(f"v_add_f32 {v(K + 2)}, {v(K + 2)}, {v(K + 3)}")
        A(f"v_cvt_pk_bf16_f32 {v(K + 1)}, {v(K)}, {v(K + 2)}")
        A(f"v_lshlrev_b32 {v(K)}, 16, {v(K + 1)}")
        A(f"v_mul_f32 {v(K + 3)}, {hex(f2u(-L2E))}, {v(K)}")
        A(f"v_exp_f32 {v(K + 3)}, {v(K + 3)}")
        A(f"v_and_b32 {v(K + 2)}, s{sMASK}, {v(K + 1)}")
        A(f"v_add_f32 {v(K + 3)}, 1.0, {v(K + 3)}")
        A(f"v_rcp_f32 {v(K + 3)}, {v(K + 3)}")
        A(f"v_mul_f32 {v(K)}, {v(K)}, {v(K + 3)}")
        A(f"v_cvt_pk_bf16_f32 {v(K)}, {v(K)}, {v(K)}")
        A(f"v_and_b32 {v(K)}, s{sMASK}, {v(K)}")
        A(f"v_mul_f32 {v(K)}, {v(K)}, {v(K + 2)}")
        A(f"v_mov_b32_dpp {v(K + 1)}, {v(K)} quad_perm:[1,1,3,3] row_mask:0xf bank_mask:0xf")
        A(f"v_cvt_pk_bf16_f32 {v(K)}, {v(K)}, {v(K + 1)}")
        for kp in range(8):
            A(f"v_readlane_b32 s{sH + kp}, {v(K)}, {2 * kp}")
        for kp in range(8):
            for c in range(2):
                A(f"v_dot2_f32_bf16 {v(K + 4 + c)}, s{sH + kp}, {v(WDp + 2 * kp + c)}, {v(K + 4 + c) if kp else 0}")
        A(f"global_store_dwordx2 {v(vF + 3)}, {v(K + 4, 2)}, {sp(sWS)} sc1")
        self.stamp("part")
        held = [f"s_cmp_eq_u32 s{sWIN}, s{sBEST}",
                f"s_cselect_b32 s{sCAND}, s{sCAND}, 8" if olate else f"s_cselect_b32 s{sCAND}, 8, s{sCAND}"]
        for i in range(2):
            held += [f"s_cmp_eq_u32 s{sCAND}, {i}"]
            if olate:
                held += [f"s_cselect_b64 vcc, {sp(sE)}, 0", "s_not_b64 exec, vcc"]
            else:
                held += [f"s_cselect_b64 exec, {sp(sE)}, 0"]
            held += [ost[i]]
        held += ["s_mov_b64 exec, -1"]
        gen_st = [f"s_lshl_b32 s{sTMP}, s{sL}, 2",
                  f"s_add_u32 s{sTMP}, s{sTMP}, s{sWAVE}",
                  f"s_cmp_eq_u32 s{sTMP}, 3",
                  "s_cselect_b64 exec, 1, 0",
                  f"v_mov_b32 {v(vT + 4)}, s{sG}",
                  f"v_mov_b32 {v(vT + 5)}, 0",
                  f"global_store_dword {v(vT + 5)}, {v(vT + 4)}, {sp(sWS)} sc1"]
        T = self.tail
        T("L_noffn:")
        for l in held + gen_st:
            T(l)
        T("s_branch L_fin")
        A(f"s_cmp_lt_u32 s{sPOS}, 8")
        A("s_cbranch_scc0 L_noffn")
        A(f"s_cmp_lt_u32 s{sWAVE}, 2")
        A("s_cbranch_scc0 L_noffn")
        if not olate:
            for l in held:
                A(l)
        A(f"s_lshl_b32 s{sTMP}, s{sXCD}, 3")
        A(f"s_add_u32 s{sTMP}, s{sTMP}, s{sPOS}")
        A(f"s_lshl_b32 s{sTMP}, s{sTMP}, 1")
        A(f"s_add_u32 s{sTMP}, s{sTMP}, s{sWAVE}")
        A(f"v_lshrrev_b32 {v(vT)}, 5, {v(vLANE)}")
        A(f"v_bfe_u32 {v(vT + 1)}, {v(vLANE)}, 4, 1")
        A(f"v_lshl_add_u32 {v(vT)}, {v(vT + 1)}, 1, {v(vT)}")
        A(f"s_lshl_b32 s{sTMP + 1}, s{sTMP}, 3")
        A(f"v_lshl_add_u32 {v(vT)}, {v(vT)}, 1, s{sTMP + 1}")
        A(f"s_add_u32 s{sT1}, s{sT1}, {W_REG + O_SLOT}")
        A(f"v_add_u32 {v(vT + 1)}, s{sT1}, {v(vT)}")
        xh = [f"global_load_ushort {v(K + 20)}, {v(vT + 1)}, {sp(sWS)} sc1",
              f"global_load_ushort {v(K + 21)}, {v(vT + 1)}, {sp(sWS)} offset:1024 sc1"]
        for l in xh:
            A(l)
        A(f"s_lshl_b32 s{sTMP + 1}, s{sT0}, 10")
        A(f"v_add_u32 {v(vT)}, s{sTMP + 1}, {v(vT)}")
        A(f"v_min_u32 {v(vT + 2)}, 55, {v(vLANE)}")
        A(f"v_mul_u32_u24 {v(vT + 3)}, 4682, {v(vT + 2)}")
        A(f"v_lshrrev_b32 {v(vT + 3)}, 16, {v(vT + 3)}")
        A(f"v_mad_u32_u24 {v(vT + 2)}, {v(vT + 3)}, 18, {v(vT + 2)}")
        A(f"v_mul_u32_u24 {v(vT + 2)}, {RS}, {v(vT + 2)}")
        A(f"s_lshl_b32 s{sTMP + 1}, s{sTMP}, 4")
        A(f"s_add_u32 s{sTMP + 1}, s{sTMP + 1}, {W_REG + O_PART}")
        A(f"v_add_u32 {v(vT + 2)}, s{sTMP + 1}, {v(vT + 2)}")
        A(f"v_add_u32 {v(vT + 3)}, {128 * RS}, {v(vT + 2)}")
        A(f"s_ashr_i32 s{sTMP + 2}, s{sWIN}, 31")
        A(f"s_not_b32 s{sTMP + 2}, s{sTMP + 2}")
        A(f"s_or_b32 s{sTMP + 2}, s{sTMP + 2}, 0x80000000")
        A(f"s_xor_b32 s{sTMP + 2}, s{sTMP + 2}, s{sWIN}")
        A(f"s_and_b32 s{sTMP + 2}, s{sTMP + 2}, 0xfffff800")
        A(f"s_or_b32 s{sTMP + 2}, s{sTMP + 2}, 0x400")
        A(f"v_cvt_pk_bf16_f32 {v(K + 22)}, s{sTMP + 2}, s{sTMP + 2}")
        A(f"v_and_b32 {v(K + 22)}, s{sMASK}, {v(K + 22)}")
        A(f"v_mul_f32 {v(K + 22)}, {hex(f2u(-L2E))}, {v(K + 22)}")
        A(f"v_exp_f32 {v(K + 22)}, {v(K + 22)}")
        A(f"v_add_f32 {v(K + 22)}, 1.0, {v(K + 22)}")
        A(f"v_rcp_f32 {v(K + 22)}, {v(K + 22)}")
        A(f"v_cvt_pk_bf16_f32 {v(K + 22)}, {v(K + 22)}, {v(K + 22)}")
        A(f"v_and_b32 {v(K + 22)}, s{sMASK}, {v(K + 22)}")
        A("s_waitcnt vmcnt(0)")
        self.stamp("partdr")
        pl = [f"global_load_dwordx4 {v(vY, 4)}, {v(vT + 2)}, {sp(sWS)} sc1",
              f"global_load_dwordx4 {v(vY + 4, 4)}, {v(vT + 3)}, {sp(sWS)} sc1"]
        for l in pl:
            A(l)
        if olate:
            for l in held:
                A(l)
        self.poll("xh", xh, [f"v_max_u32 {v(vT + 6)}, {v(K + 20)}, {v(K + 21)}",
                             f"v_cmp_eq_u32 vcc, 0xffff, {v(vT + 6)}"])
        A(f"v_lshlrev_b32 {v(K + 20)}, 16, {v(K + 20)}")
        A(f"v_lshlrev_b32 {v(K + 21)}, 16, {v(K + 21)}")
        A(f"s_waitcnt vmcnt({2 if olate else 0})")
        self.poll("part", pl, chk8)
        self.stamp("partld")
        A(f"v_cmp_gt_u32 vcc, 56, {v(vLANE)}")
        A(f"v_pk_add_f32 {v(vY, 2)}, {v(vY, 2)}, {v(vY + 4, 2)}")
        A(f"v_pk_add_f32 {v(vY + 2, 2)}, {v(vY + 2, 2)}, {v(vY + 6, 2)}")
        for c in range(4):
            A(f"v_cndmask_b32 {v(vY + c)}, 0, {v(vY + c)}, vcc")
        A(f"v_permlane32_swap_b32 {v(vY)}, {v(vY + 1)}")
        A(f"v_permlane32_swap_b32 {v(vY + 2)}, {v(vY + 3)}")
        A(f"v_add_f32 {v(vY)}, {v(vY)}, {v(vY + 1)}")
        A(f"v_add_f32 {v(vY + 2)}, {v(vY + 2)}, {v(vY + 3)}")
        A(f"v_permlane16_swap_b32 {v(vY)}, {v(vY + 2)}")
        A(f"v_add_f32 {v(vY)}, {v(vY)}, {v(vY + 2)}")
        for sh in (8, 4, 2, 1):
            A(f"v_add_f32_dpp {v(vY)}, {v(vY)}, {v(vY)} row_ror:{sh} row_mask:0xf bank_mask:0xf")
        y = vY
        A(f"v_cvt_pk_bf16_f32 {v(y)}, {v(y)}, {v(y)}")
        A(f"v_and_b32 {v(y)}, s{sMASK}, {v(y)}")
        A(f"v_mul_f32 {v(y)}, {v(y)}, {v(K + 22)}")
        A(f"v_cvt_pk_bf16_f32 {v(y)}, {v(y)}, {v(y)}")
        A(f"v_and_b32 {v(y)}, s{sMASK}, {v(y)}")
        A(f"v_add_f32 {v(y)}, {v(y)}, {v(K + 20)}")
        A(f"v_cvt_pk_bf16_f32 {v(y)}, {v(y)}, {v(y)}")
        A(f"v_and_b32 {v(y)}, s{sMASK}, {v(y)}")
        A(f"v_add_f32 {v(y)}, {v(y)}, {v(K + 21)}")
        A(f"v_cvt_pk_bf16_f32 {v(y)}, {v(y)}, {v(y)}")
        A("s_mov_b32 exec_lo, 0x00010001")
        A("s_mov_b32 exec_hi, 0x00010001")
        A(f"global_store_short {v(vT)}, {v(y)}, {sp(sOUT)}")
        A("L_fin:")
        self.finish("R")

    def chans(self):
        A = self.A
        o = self.o
        vLANE = 1
        vAA, vBA, vEW, vER, vRA = 4, 12, 13, 14, 15
        vKA0, vKA1, vKB, vPW0, vPW1 = 16, 17, 18, 19, 20
        vP = 24
        vT = 28
        vACC = 40
        vA0, vA1, vB0, vB1 = 72, 104, 136, 168
        K = 72
        A("L_chan:")
        A("v_and_b32 v0, 0xff, v0")
        A(f"s_sub_u32 s{sWAVE}, s{sWAVE}, 4")
        A(f"s_lshl_b32 s{sT0}, s{sL}, 9")
        A(f"v_lshl_add_u32 {v(vT)}, v0, 1, s{sT0}")
        A(f"s_lshl_b32 s{sT1}, s{sL}, 2")
        A("s_waitcnt lgkmcnt(0)")
        self.stamp("karg")
        for k, s in enumerate((sLA, sAI, sCR, sCI)):
            A(f"global_load_ushort {v(vP + k)}, {v(vT)}, {sp(s)}{' nt' if o.get('ntx', 1) else ''}")
        A(f"s_load_dword s{sDT}, {sp(sLDT)}, s{sT1}")
        f2 = o.get("b1b", 1) == 2
        if f2:
            A(f"s_load_dword s{sG}, {sp(sWS)}, 0")
        ntlb = 0
        if o.get("tlb", 0):
            A("v_mov_b32 v2, 0")
            A("s_mov_b64 exec, 1")
            for sb in (sWG, sWU, sWD, sOUT):
                A(f"global_load_dword v3, v2, {sp(sb)}")
                ntlb += 1
            A("s_mov_b64 exec, -1")
        vJ, vGq = vT + 4, vT + 5
        A(f"v_and_b32 {v(vJ)}, 15, {v(vLANE)}")
        A(f"v_lshrrev_b32 {v(vGq)}, 4, {v(vLANE)}")
        A(f"s_lshr_b32 s{sT0}, s{sWAVE}, 1")
        A(f"s_and_b32 s{sT1}, s{sWAVE}, 1")
        A(f"v_and_b32 {v(vT)}, 7, {v(vLANE)}")
        A(f"v_lshlrev_b32 {v(vRA)}, 4, {v(vT)}")
        A(f"v_add_u32 {v(vRA)}, {L_RED1}, {v(vRA)}")
        A(f"s_mul_i32 s{sTMP}, s{sT0}, {PC}")
        A(f"s_lshl_b32 s{sTMP + 1}, s{sT1}, 7")
        A(f"s_add_u32 s{sTMP}, s{sTMP}, s{sTMP + 1}")
        A(f"s_add_u32 s{sTMP}, s{sTMP}, {L_P + 4 * 26}")
        A(f"v_lshlrev_b32 {v(vT)}, 3, {v(vGq)}")
        A(f"v_sub_u32 {v(vT)}, {v(vJ)}, {v(vT)}")
        A(f"v_lshl_add_u32 {v(vAA)}, {v(vT)}, 2, s{sTMP}")
        for m in range(1, 8):
            A(f"v_add_u32 {v(vAA + m)}, {1024 * m}, {v(vAA)}")
        A(f"s_mul_i32 s{sTMP}, s{sT0}, {UC}")
        A(f"s_lshl_b32 s{sTMP + 1}, s{sT1}, 6")
        A(f"s_sub_u32 s{sTMP}, s{sTMP}, s{sTMP + 1}")
        A(f"s_add_u32 s{sTMP}, s{sTMP}, {L_U + 64}")
        A(f"v_lshl_add_u32 {v(vT)}, {v(vJ)}, 1, {v(vGq)}")
        A(f"v_lshl_add_u32 {v(vBA)}, {v(vT)}, 4, s{sTMP}")
        A(f"v_lshl_add_u32 {v(vT)}, {v(vJ)}, 2, {v(vGq)}")
        A(f"v_lshrrev_b32 {v(vT + 1)}, 3, {v(vT)}")
        A(f"v_add_u32 {v(vT)}, {v(vT)}, {v(vT + 1)}")
        A(f"s_mul_i32 s{sTMP}, s{sWAVE}, {8 * TBS}")
        A(f"v_lshl_add_u32 {v(vEW)}, {v(vT)}, 4, s{sTMP}")
        A(f"v_lshrrev_b32 {v(vT + 1)}, 3, {v(vLANE)}")
        A(f"v_add_u32 {v(vT)}, {v(vLANE)}, {v(vT + 1)}")
        A(f"s_mul_i32 s{sTMP}, s{sWAVE}, {2 * TBS}")
        A(f"v_lshl_add_u32 {v(vER)}, {v(vT)}, 4, s{sTMP}")
        KS = o.get("ks", 7)
        for k in range(4):
            A(f"v_mov_b32 {v(vACC + k)}, -1")
        A(f"s_mul_i32 s{sTMP}, s{sL}, {RS}")
        A(f"s_add_u32 s{sTMP}, s{sTMP}, {W_REG + 4096}")
        A(f"v_lshl_add_u32 {v(vACC + 4)}, v0, 4, s{sTMP}")
        A(f"v_add_u32 {v(vACC + 5)}, 8192, {v(vACC + 4)}")
        A(f"v_add_u32 {v(vACC + 6)}, 12288, {v(vACC + 4)}")
        A(f"s_lshl_b32 s{sTMP}, s{sL}, {KS}")
        A(f"s_add_u32 s{sTMP}, s{sTMP}, {W_KEY}")
        A(f"v_lshl_add_u32 {v(22)}, {v(vLANE)}, 4, s{sTMP}")
        ones = v(vACC, 4)
        inits = [f"s_cmp_eq_u32 s{sWAVE}, 0",
                 f"s_cselect_b64 exec, {(1 << ((1 << KS) // 16)) - 1}, 0",
                 f"global_store_dwordx4 {v(22)}, {ones}, {sp(sWS)} sc1",
                 "s_mov_b64 exec, -1",
                 f"global_store_dwordx4 {v(vACC + 5)}, {ones}, {sp(sWS)} offset:-4096 sc1",
                 f"global_store_dwordx4 {v(vACC + 5)}, {ones}, {sp(sWS)} sc1",
                 f"global_store_dwordx4 {v(vACC + 6)}, {ones}, {sp(sWS)} sc1"]
        ninit = 3
        ilate = o.get("ilate", 0)
        if not ilate:
            for l in inits:
                A(l)
        vg, vr = vT, vT + 1
        A(f"v_lshrrev_b32 {v(vg)}, 2, {v(vJ)}")
        A(f"v_and_b32 {v(vr)}, 3, {v(vJ)}")
        A(f"s_cmp_eq_u32 s{sT1}, 0")
        A("s_cbranch_scc0 L_rows_hi")
        A(f"v_mov_b32 {v(vKA0)}, {v(vJ)}")
        A(f"v_lshl_add_u32 {v(vKA1)}, {v(vg)}, 1, {v(vr)}")
        A(f"v_add_u32 {v(vKA1)}, 16, {v(vKA1)}")
        A(f"v_add_u32 {v(vT + 2)}, -4, {v(vJ)}")
        A(f"v_and_b32 {v(vT + 2)}, 15, {v(vT + 2)}")
        A(f"v_cmp_eq_u32 vcc, 3, {v(vr)}")
        A(f"v_cndmask_b32 {v(vKA1)}, {v(vKA1)}, {v(vT + 2)}, vcc")
        A(f"v_lshl_add_u32 {v(vPW0)}, {v(vJ)}, 2, {v(vGq)}")
        A(f"v_lshlrev_b32 {v(vPW0)}, 4, {v(vPW0)}")
        A(f"v_add_u32 {v(vPW1)}, 1024, {v(vPW0)}")
        A("s_branch L_rows_done")
        A("L_rows_hi:")
        A(f"v_lshrrev_b32 {v(vT + 2)}, 1, {v(vg)}")
        A(f"v_lshl_add_u32 {v(vKA0)}, {v(vg)}, 1, {v(vr)}")
        A(f"v_add3_u32 {v(vKA0)}, {v(vKA0)}, {v(vT + 2)}, 25")
        A(f"v_sub_u32 {v(vKA1)}, {v(vJ)}, {v(vg)}")
        A(f"v_add_u32 {v(vKA1)}, 35, {v(vKA1)}")
        A(f"v_lshrrev_b32 {v(vT + 2)}, 1, {v(vGq)}")
        A(f"v_lshl_add_u32 {v(vPW0)}, {v(vT + 2)}, 4, {v(vJ)}")
        A(f"v_and_b32 {v(vT + 2)}, 1, {v(vGq)}")
        A(f"v_lshl_add_u32 {v(vPW0)}, {v(vPW0)}, 1, {v(vT + 2)}")
        A(f"v_lshlrev_b32 {v(vPW0)}, 5, {v(vPW0)}")
        A(f"v_add_u32 {v(vPW0)}, 2048, {v(vPW0)}")
        A(f"v_lshlrev_b32 {v(vPW1)}, 6, {v(vLANE)}")
        A(f"v_add_u32 {v(vPW1)}, 4096, {v(vPW1)}")
        A("L_rows_done:")
        A(f"s_mul_i32 s{sTMP}, s{sT0}, {PC}")
        A(f"s_add_u32 s{sTMP}, s{sTMP}, {L_P + 64}")
        A(f"v_add_u32 {v(vPW0)}, s{sTMP}, {v(vPW0)}")
        A(f"v_add_u32 {v(vPW1)}, s{sTMP}, {v(vPW1)}")
        A(f"s_mul_i32 s{sTMP}, s{sT0}, {TABC}")
        A(f"v_lshl_add_u32 {v(vT + 2)}, {v(vGq)}, 4, s{sTMP}")
        A(f"s_movk_i32 s{sTMP + 1}, {ROWB}")
        A(f"v_mad_u32_u24 {v(vKA0)}, {v(vKA0)}, s{sTMP + 1}, {v(vT + 2)}")
        A(f"v_mad_u32_u24 {v(vKA1)}, {v(vKA1)}, s{sTMP + 1}, {v(vT + 2)}")
        A(f"v_mad_u32_u24 {v(vKB)}, {v(vJ)}, s{sTMP + 1}, {v(vT + 2)}")
        A(f"s_lshl_b32 s{sTMP + 1}, s{sT1}, 8")
        A(f"s_add_u32 m0, s{sTMP}, s{sTMP + 1}")
        A(f"s_mul_i32 s{sTMP}, s{sXCD}, 448")
        A(f"s_and_b32 s{sTMP}, s{sTMP}, 0xffffff80")
        A(f"s_mul_i32 s{sTMP + 1}, s{sPOS}, {16 * 3584}")
        A(f"s_add_u32 s{sTMP}, s{sTMP}, s{sTMP + 1}")
        A(f"v_lshrrev_b32 {v(vT + 2)}, 2, {v(vLANE)}")
        A(f"v_mul_u32_u24 {v(vT + 2)}, 3584, {v(vT + 2)}")
        A(f"v_and_b32 {v(vT + 3)}, 3, {v(vLANE)}")
        A(f"v_lshl_add_u32 {v(vT + 2)}, {v(vT + 3)}, 7, {v(vT + 2)}")
        A(f"v_add_u32 {v(vT + 2)}, s{sTMP}, {v(vT + 2)}")
        A(f"s_mul_i32 s{sTMP}, s{sL}, 7168")
        A(f"s_mul_i32 s{sTMP + 1}, s{sT1}, 3584")
        A(f"s_add_u32 s{sTMP}, s{sTMP}, s{sTMP + 1}")
        A(f"v_min_u32 {v(vT + 3)}, 27, {v(vLANE)}")
        A(f"v_lshl_add_u32 {v(vT + 3)}, {v(vT + 3)}, 7, s{sTMP}")
        A(f"s_cmp_eq_u32 s{sT1}, 0")
        A(f"s_cselect_b64 {sp(sWSEL)}, {sp(sWG)}, {sp(sWU)}")
        A(f"s_cmp_eq_u32 s{sT0}, 0")
        A(f"s_cselect_b64 {sp(sWSEL)}, {sp(sWSEL)}, {sp(sWD)}")
        A("s_cselect_b64 vcc, -1, 0")
        A(f"v_cndmask_b32 {v(21)}, {v(vT + 3)}, {v(vT + 2)}, vcc")
        wpf = f"global_load_dword v3, v21, {sp(sWSEL)}{' nt' if o.get('ntw', 0) else ''}"
        if o.get("wpf", 2) == 2:
            A(wpf)

        L2E = 1.4426950408889634
        l2e_hi = struct.unpack("<f", struct.pack("<f", L2E))[0]
        l2e_lo = L2E - l2e_hi
        a, b = K, K + 2
        A(f"s_mov_b32 s{sE}, {hex(f2u(l2e_hi))}")
        A(f"s_mov_b32 s{sE + 1}, {hex(f2u(l2e_lo))}")
        if o.get("b1b", 1):
            A("s_barrier")
        A(f"s_waitcnt vmcnt({(1 if o.get('wpf', 2) == 2 else 0) + (0 if ilate else ninit) + ntlb}) lgkmcnt(0)")
        self.stamp("par")
        if o.get("prio", 2) == 2:
            A("s_setprio 2")
        if ilate:
            for l in inits:
                A(l)
        if o.get("wpf", 2) == 6:
            A(wpf)
        A(f"s_lshl_b32 s{sTMP}, s{sDT}, 16")
        A(f"s_and_b32 s{sTMP + 1}, s{sDT}, s{sMASK}")
        A(f"s_cmp_lt_u32 s{sWAVE}, 2")
        A(f"s_cselect_b32 s{sDT}, s{sTMP}, s{sTMP + 1}")
        A(f"v_lshlrev_b32 {v(a)}, 16, {v(vP)}")
        A(f"v_mov_b32 {v(a + 1)}, s{sDT}")
        A(f"v_pk_mul_f32 {v(b, 2)}, {v(a, 2)}, {sp(sE)} op_sel_hi:[1,0]")
        A(f"v_pk_fma_f32 {v(b + 2, 2)}, {v(a, 2)}, {sp(sE)}, {v(b, 2)} op_sel_hi:[1,0,1] neg_lo:[0,0,1] neg_hi:[0,0,1]")
        A(f"v_exp_f32 {v(b)}, {v(b)}")
        A(f"v_exp_f32 {v(b + 1)}, {v(b + 1)}")
        A(f"v_pk_fma_f32 {v(b + 2, 2)}, {sp(sE)}, {v(a, 2)}, {v(b + 2, 2)} op_sel:[1,0,0] op_sel_hi:[1,1,1]")
        A(f"v_mul_f32 {v(b + 2)}, {hex(f2u(0.6931471805599453))}, {v(b + 2)}")
        A(f"v_mul_f32 {v(b + 3)}, {hex(f2u(0.6931471805599453))}, {v(b + 3)}")
        A(f"v_pk_fma_f32 {v(b, 2)}, {v(b, 2)}, {v(b + 2, 2)}, {v(b, 2)}")
        A(f"v_cvt_pk_bf16_f32 {v(a)}, {v(b)}, {v(b + 1)}")
        vdt, va2, vph = K + 6, K + 7, K + 8
        A(f"v_and_b32 {v(vdt)}, s{sMASK}, {v(a)}")
        A(f"v_lshlrev_b32 {v(va2)}, 16, {v(a)}")
        A(f"v_lshlrev_b32 {v(vph)}, 16, {v(vP + 1)}")
        A(f"v_mul_f32 {v(va2)}, {v(va2)}, {v(vdt)}")
        A(f"v_mul_f32 {v(vph)}, {v(vph)}, {v(vdt)}")
        A(f"v_mul_f32 {v(va2)}, {hex(f2u(-l2e_hi))}, {v(va2)}")
        A(f"v_mul_f32 {v(vph)}, 0.15915494, {v(vph)}")
        Wp = {p: K + 10 + 2 * p for p in range(1, 17)}
        Zp = {p: K + 42 + 2 * p for p in range(1, 8)}
        G = [K + 58, K + 60]
        TT = [K + 62, K + 64, K + 66, K + 68]
        RR = [K + 70, K + 72, K + 74, K + 76]
        CV = K + 80
        A(f"v_mul_f32 {v(vdt)}, {hex(f2u(2.0 ** 69))}, {v(vdt)}")
        A(f"v_lshlrev_b32 {v(G[0])}, 16, {v(vP + 2)}")
        A(f"v_lshlrev_b32 {v(G[0] + 1)}, 16, {v(vP + 3)}")
        A(f"v_mul_f32 {v(G[0])}, {v(G[0])}, {v(vdt)}")
        A(f"v_mul_f32 {v(G[0] + 1)}, {v(G[0] + 1)}, {v(vdt)}")
        for n, (dst, sc) in enumerate(((Wp[1], 1.0), (Wp[16], 16.0), (Zp[1], 256.0))):
            t = TT[n]
            if sc == 1.0:
                A(f"v_exp_f32 {v(t)}, {v(va2)}")
                A(f"v_fract_f32 {v(t + 1)}, {v(vph)}")
            else:
                A(f"v_mul_f32 {v(t)}, {hex(f2u(sc))}, {v(va2)}")
                A(f"v_mul_f32 {v(t + 1)}, {hex(f2u(sc))}, {v(vph)}")
                A(f"v_exp_f32 {v(t)}, {v(t)}")
                A(f"v_fract_f32 {v(t + 1)}, {v(t + 1)}")
            A(f"v_cos_f32 {v(dst)}, {v(t + 1)}")
            A(f"v_sin_f32 {v(dst + 1)}, {v(t + 1)}")
        for n, dst in enumerate((Wp[1], Wp[16], Zp[1])):
            A(f"v_pk_mul_f32 {v(dst, 2)}, {v(dst, 2)}, {v(TT[n], 2)} op_sel_hi:[1,0]")
        jobs = [(1, Wp[1], None, None, 0), (16, Zp[1], None, None, 0), (47, G[0], None, None, 1)]
        wj = []
        for p in range(2, 16):
            hb = 1 << (p.bit_length() - 1)
            x, y = (p // 2, p // 2) if hb == p else (hb, p - hb)
            wj.append((p, Wp[p], Wp[x], Wp[y], 0))
        gj = [(47 + j, G[j & 1], G[(j - 1) & 1], Wp[16], 1) for j in range(1, 16)]
        zrow = {2: 25, 3: 30, 4: 35, 5: 38, 6: 41, 7: 44}
        zj = []
        for p in range(2, 8):
            hb = 1 << (p.bit_length() - 1)
            x, y = (p // 2, p // 2) if hb == p else (hb, p - hb)
            zj.append((zrow[p], Zp[p], Zp[x], Zp[y], 0))
        tj = [(16 + k, None, Zp[1], Wp[2 * k], 0) for k in range(1, 9)]
        for z in (2, 3):
            tj += [(zrow[z] + k, None, Zp[z], Wp[4 * k], 0) for k in range(1, 5)]
        for z in (4, 5, 6, 7):
            tj += [(zrow[z] + k, None, Zp[z], Wp[8 * k], 0) for k in range(1, 3)]
        first = []
        for i in range(max(len(wj), len(gj), len(zj))):
            for q in (wj, gj, zj):
                if i < len(q):
                    first.append(q[i])
        jobs += first + tj
        A(f"v_mov_b32 {v(CV + 15)}, 0x3f80")
        pend = [(0, CV + 15)]
        slot = 0
        nb = 0
        b1_at = o.get("b1_at", 4)
        batch = o.get("batch", 6)

        def do_b1():
            self.stamp("setup")
            A(f"s_waitcnt vmcnt({1 if (o.get('wpf', 2) == 2 and not ilate) or o.get('wpf', 2) == 6 else 0})")
            self.stamp("idr")
            A("s_barrier")
            self.stamp("b1")
            if o.get("wpf", 2) == 1:
                A(wpf)
        if f2:
            b1_at = -1
            A(f"s_add_u32 s{sG}, s{sG}, 1")
            A(f"s_mul_i32 s{sG}, s{sG}, 0x9e3779b1")
            A(f"s_lshl_b32 s{sTMP}, s{sL}, 7")
            A(f"s_add_u32 s{sTMP}, s{sTMP}, {W_FLAG}")
            A(f"v_lshl_add_u32 {v(23)}, {v(vLANE)}, 4, s{sTMP}")
            for k in range(4):
                A(f"v_mov_b32 {v(vACC + 8 + k)}, s{sG}")
        if b1_at == 0:
            do_b1()
        for n, (row, dst, x, y, conj) in enumerate(jobs):
            if x is not None:
                if dst is None:
                    dst = RR[n & 3]
                for ins in self.cmul(dst, x, y, TT[n & 3]):
                    A(ins)
            A(f"v_cvt_pk_bf16_f32 {v(CV + slot)}, {v(dst)}, {'-' if conj else ''}{v(dst + 1)}")
            pend.append((row, CV + slot))
            slot = (slot + 1) % 15
            if len(pend) >= batch or n == len(jobs) - 1:
                for row_, reg in pend:
                    A(f"ds_write_addtid_b32 {v(reg)} offset:{row_ * ROWB}")
                pend = []
                nb += 1
                if nb == b1_at:
                    do_b1()
        if f2:
            A(f"s_waitcnt vmcnt({1 if (o.get('wpf', 2) == 2 and not ilate) or o.get('wpf', 2) == 6 else 0})")
        A("s_waitcnt lgkmcnt(0)")
        self.stamp("kgen1")
        A("s_barrier")
        if f2:
            A(f"s_cmp_eq_u32 s{sWAVE}, 0")
            A("s_cselect_b64 exec, 0xff, 0")
            A(f"global_store_dwordx4 {v(23)}, {v(vACC + 8, 4)}, {sp(sWS)} sc1")
            A("s_mov_b64 exec, -1")
        if o.get("wpf", 2) == 3:
            A(wpf)
        self.stamp("b2")
        fB, fA0, fA1 = K, K + 32, K + 64
        for s in range(4):
            A(f"ds_read_b128 {v(fB + 4 * s, 4)}, {v(vKB)} offset:{47 * ROWB + 64 * s}")
            A(f"ds_read_b128 {v(fA0 + 4 * s, 4)}, {v(vKA0)} offset:{64 * s}")
            A(f"ds_read_b128 {v(fA1 + 4 * s, 4)}, {v(vKA1)} offset:{64 * s}")
        D0, D1 = vACC, vACC + 4
        for s in range(8):
            s2 = s + 4
            A(f"s_waitcnt lgkmcnt({9 if s2 < 8 else 3 * (7 - s)})")
            c0 = "0" if s == 0 else v(D0, 4)
            c1 = "0" if s == 0 else v(D1, 4)
            A(f"v_mfma_f32_16x16x32_bf16 {v(D0, 4)}, {v(fA0 + 4 * s, 4)}, {v(fB + 4 * s, 4)}, {c0}")
            if s2 < 8:
                A(f"ds_read_b128 {v(fB + 4 * s2, 4)}, {v(vKB)} offset:{47 * ROWB + 64 * s2}")
                A(f"ds_read_b128 {v(fA0 + 4 * s2, 4)}, {v(vKA0)} offset:{64 * s2}")
            A(f"v_mfma_f32_16x16x32_bf16 {v(D1, 4)}, {v(fA1 + 4 * s, 4)}, {v(fB + 4 * s, 4)}, {c1}")
            if s2 < 8:
                A(f"ds_read_b128 {v(fA1 + 4 * s2, 4)}, {v(vKA1)} offset:{64 * s2}")
        E = K + 96
        self.stamp("kmf")
        A(f"s_bitcmp1_b32 s{sWAVE}, 0")
        A(f"v_cmp_eq_u32 vcc, 0, {v(vLANE)}")
        A("s_nop 5")
        A("s_cbranch_scc0 L_exp_lo")
        seq2 = ["aa", "aa", "aa", "ba", "bb", "bb", "cb", "cc"]
        seq3 = ["aa", "aa", "aa", "aa", "aa", "ba", "bb", "bb", "bb", "bb", "cb", "cc", "cc", "cc"]
        ix = {"a": 0, "b": 1, "c": 2}
        for k, s in enumerate(seq3):
            A(f"v_cvt_pk_bf16_f32 {v(E + 8 + k)}, {v(D1 + ix[s[0]])}, {v(D1 + ix[s[1]])}")
        for k, w in enumerate((0, 4, 6, 10)):
            A(f"ds_write_b128 {v(vPW1)}, {v(E + 8 + w, 4)} offset:{16 * k}")
        for k, s in enumerate(seq2):
            A(f"v_cvt_pk_bf16_f32 {v(E + k)}, {v(D0 + ix[s[0]])}, {v(D0 + ix[s[1]])}")
        A(f"ds_write_b128 {v(vPW0)}, {v(E, 4)}")
        A(f"ds_write_b128 {v(vPW0)}, {v(E + 4, 4)} offset:16")
        A("L_exp_done:")
        T = self.tail
        T("L_exp_lo:")
        T(f"v_mov_b32_dpp {v(D1 + 3)}, {v(D1 + 3)} row_ror:1 row_mask:0x1 bank_mask:0xf")
        T(f"v_cvt_pk_bf16_f32 {v(E + 1)}, {v(D0 + 1)}, {v(D0)}")
        T(f"v_cvt_pk_bf16_f32 {v(E + 2)}, {v(D0 + 2)}, {v(D0 + 1)}")
        T(f"v_cvt_pk_bf16_f32 {v(E + 3)}, {v(D0 + 3)}, {v(D0 + 2)}")
        T(f"v_cndmask_b32 {v(E + 8)}, {v(D1 + 3)}, 0, vcc")
        T(f"v_cndmask_b32 {v(E + 9)}, {v(D1)}, {v(D1 + 3)}, vcc")
        T(f"v_cvt_pk_bf16_f32 {v(E)}, {v(D0)}, {v(E + 8)}")
        T(f"v_cvt_pk_bf16_f32 {v(E + 4)}, {v(D1)}, {v(E + 9)}")
        T(f"v_cvt_pk_bf16_f32 {v(E + 5)}, {v(D1)}, {v(D1)}")
        T(f"v_cvt_pk_bf16_f32 {v(E + 6)}, {v(D1 + 1)}, {v(D1)}")
        T(f"v_cvt_pk_bf16_f32 {v(E + 7)}, {v(D1 + 2)}, {v(D1 + 1)}")
        T(f"ds_write_b128 {v(vPW0)}, {v(E, 4)}")
        T(f"ds_write_b128 {v(vPW1)}, {v(E + 4, 4)}")
        T("s_branch L_exp_done")
        A("s_waitcnt lgkmcnt(0)")
        self.stamp("kgen2")
        A("s_barrier")
        self.stamp("b2b")
        if o.get("wpf", 2) == 4:
            A(wpf)

        def rdA(buf, rho, m):
            return [f"ds_read2_b32 {v(buf + 4 * m, 2)}, {v(vAA + m)} offset0:{64 * rho + 6} offset1:{64 * rho + 4}",
                    f"ds_read2_b32 {v(buf + 4 * m + 2, 2)}, {v(vAA + m)} offset0:{64 * rho + 2} offset1:{64 * rho}"]

        def rdB(buf, rho, n):
            return [f"ds_read_b128 {v(buf + 4 * n, 4)}, {v(vBA)} offset:{128 * (3 - rho) + 512 * (7 - n)}"]

        for m in range(8):
            for l in rdA(vA0, 0, m):
                A(l)
        A(f"s_mul_i32 s{sTMP}, s{sL}, {RS}")
        A(f"s_lshl_b32 s{sTMP + 1}, s{sWAVE}, 11")
        A(f"s_add_u32 s{sTMP}, s{sTMP}, s{sTMP + 1}")
        A(f"s_add_u32 s{sTMP}, s{sTMP}, {W_REG + O_X2}")
        A(f"v_lshl_add_u32 {v(vT)}, {v(vLANE)}, 4, s{sTMP}")
        A("s_waitcnt lgkmcnt(0)")
        self.stamp("apre")
        A("s_barrier")
        self.stamp("b3")
        if o.get("wpf", 2) == 5:
            A(wpf)
        if o.get("prio", 2):
            A("s_setprio 2")

        bufA, bufB = [vA0, vA1], [vB0, vB1]
        for n in range(7, -1, -1):
            for l in rdB(vB0, 0, n):
                A(l)
        started = set()
        for rho in range(4):
            a_, b_ = bufA[rho & 1], bufB[rho & 1]
            order = [(n - 7 + tb, tb, n) for n in range(7, -1, -1) for tb in range(7 - n, 8)]
            if rho == 3:
                order = [(n - 7 + tb, tb, n) for tb in range(8) for n in range(7 - tb, 8)]
            fill = []
            if rho + 1 < 4:
                nb_, na_ = bufB[(rho + 1) & 1], bufA[(rho + 1) & 1]
                for m in range(8):
                    fill += rdB(nb_, rho + 1, 7 - m)
                    fill += rdA(na_, rho + 1, m)
            issued = 0
            seen = set()
            done_at = {}
            for i, (m, tb, n) in enumerate(order):
                done_at[tb] = i
            for i, (m, tb, n) in enumerate(order):
                if rho == 0 and n not in seen:
                    A(f"s_waitcnt lgkmcnt({min(15, n + issued)})")
                    seen.add(n)
                elif i == 0:
                    A("s_waitcnt lgkmcnt(0)")
                acc = v(vACC + 4 * tb, 4)
                c = acc if tb in started else "0"
                started.add(tb)
                A(f"v_mfma_f32_16x16x32_bf16 {acc}, {v(a_ + 4 * m, 4)}, {v(b_ + 4 * n, 4)}, {c}")
                if i >= 1 and fill:
                    A(fill.pop(0))
                    issued += 1
                if rho == 3:
                    for t in range(7):
                        if done_at[t] + 8 == i or (i == len(order) - 1 and done_at[t] + 8 > i):
                            A(f"ds_write_b128 {v(vEW)}, {v(vACC + 4 * t, 4)} offset:{t * TBS}")
            assert not fill
        A(f"ds_write_b128 {v(vEW)}, {v(vACC + 28, 4)} offset:{7 * TBS}")
        self.stamp("conv")
        A("s_waitcnt lgkmcnt(0)")
        A("s_barrier")
        for i in range(2):
            for s in range(4):
                A(f"ds_read_b128 {v(K + 16 * i + 4 * s, 4)}, {v(vER)} offset:{s * 8 * TBS + i * TBS}")
        for i in range(2):
            A(f"s_waitcnt lgkmcnt({4 * (1 - i)})")
            b0 = K + 16 * i
            for c in range(2):
                for h in range(2):
                    A(f"v_pk_add_f32 {v(b0 + 8 * c + 2 * h, 2)}, {v(b0 + 8 * c + 2 * h, 2)}, {v(b0 + 8 * c + 4 + 2 * h, 2)}")
            for c in range(2):
                for h in range(2):
                    A(f"v_cvt_pk_bf16_f32 {v(K + 32 + 4 * i + 2 * c + h)}, {v(b0 + 8 * c + 2 * h)}, {v(b0 + 8 * c + 2 * h + 1)}")
            A(f"global_store_dwordx4 {v(vT)}, {v(K + 32 + 4 * i, 4)}, {sp(sWS)} offset:{1024 * i} sc1")
        self.stamp("x2st")
        A("s_waitcnt vmcnt(0)")
        self.stamp("x2dr")
        A("s_barrier")
        A(f"s_cmp_lt_u32 s{sWAVE}, 2")
        A("s_cbranch_scc0 L_cfin")
        A(f"v_lshlrev_b32 {v(vT + 1)}, {KS}, {v(vLANE)}")
        A(f"v_add_u32 {v(vT + 1)}, {W_KEY}, {v(vT + 1)}")
        for q in range(1, 4):
            A(f"v_add_u32 {v(vT + 8 + q)}, {(64 * q) << KS}, {v(vT + 1)}")
        for q in range(4):
            A(f"s_sub_u32 s{sTMP}, s{sL}, {64 * q}")
            A(f"v_cmp_eq_u32 {sp(sOWNM + 2 * q)}, s{sTMP}, {v(vLANE)}")
        A(f"v_mov_b32 {v(vT + 3)}, {L_REDK}")
        A("s_barrier")
        self.key_calc(K, vRA, vLANE)
        A(f"s_cmp_eq_u32 s{sWAVE}, 0")
        A("s_cbranch_scc0 L_poll")
        A("s_mov_b64 exec, 1")
        A(f"global_store_dword {v(22)}, {v(K + 8)}, {sp(sWS)} sc1")
        self.stamp("key")
        if o.get("pace", 3):
            A("s_barrier")
        A("s_barrier")
        A("s_barrier")
        A("s_branch L_cfin")
        A("L_poll:")
        k2, kn = vT + 4, vT + 5
        kl = [f"global_load_dword {v(K + q)}, {v(vT + 8 + q) if q else v(vT + 1)}, {sp(sWS)} sc1" for q in range(4)]
        kchk = [f"v_cndmask_b32 {v(K + q)}, {v(K + q)}, {v(K + 8)}, {sp(sOWNM + 2 * q)}" for q in range(4)]
        kchk += [f"v_add_u32 {v(K + 4 + q)}, 1, {v(K + q)}" for q in range(4)]
        kchk += [f"v_min3_u32 {v(kn)}, {v(K + 4)}, {v(K + 5)}, {v(K + 6)}",
                 f"v_max3_u32 {v(k2)}, {v(K + 4)}, {v(K + 5)}, {v(K + 6)}",
                 f"v_min_u32 {v(kn)}, {v(kn)}, {v(K + 7)}",
                 f"v_max_u32 {v(k2)}, {v(k2)}, {v(K + 7)}",
                 f"v_cmp_eq_u32 vcc, 0, {v(kn)}"]

        def wavemax(off):
            w = K + 10
            A(f"v_max_u32_dpp {v(w)}, {v(k2)}, {v(k2)} quad_perm:[1,0,3,2] row_mask:0xf bank_mask:0xf")
            A(f"v_max_u32_dpp {v(w)}, {v(w)}, {v(w)} quad_perm:[2,3,0,1] row_mask:0xf bank_mask:0xf")
            A(f"v_max_u32_dpp {v(w)}, {v(w)}, {v(w)} row_half_mirror row_mask:0xf bank_mask:0xf")
            A(f"v_max_u32_dpp {v(w)}, {v(w)}, {v(w)} row_mirror row_mask:0xf bank_mask:0xf")
            A(f"v_max_u32_dpp {v(w)}, {v(w)}, {v(w)} row_bcast:15 row_mask:0xa bank_mask:0xf")
            A(f"v_max_u32_dpp {v(w)}, {v(w)}, {v(w)} row_bcast:31 row_mask:0xc bank_mask:0xf")
            A(f"v_add_u32 {v(w)}, -1, {v(w)}")
            A("s_mov_b32 exec_lo, 0")
            A("s_brev_b32 exec_hi, 1")
            A(f"ds_write_b32 {v(vT + 3)}, {v(w)} offset:{off}")
            A("s_mov_b64 exec, -1")
            A("s_waitcnt lgkmcnt(0)")
        TH = o.get("th", 16)
        A(f"s_mov_b32 s{sSPIN}, 0x40000")
        if o.get("pace", 3):
            A("s_barrier")
        A("L_k1:")
        for l in kl:
            A(l)
        A("s_waitcnt vmcnt(0)")
        for l in kchk:
            A(l)
        A("s_mov_b64 exec, -1")
        A(f"s_bcnt1_i32_b64 s{sTMP}, vcc")
        A(f"s_cmp_le_u32 s{sTMP}, {TH}")
        A("s_cbranch_scc1 L_k1d")
        A("s_mov_b64 exec, vcc")
        A(f"s_sub_u32 s{sSPIN}, s{sSPIN}, 1")
        A("s_cbranch_scc0 L_k1")
        A("s_mov_b64 exec, -1")
        A("L_k1d:")
        self.stamp("key1")
        wavemax(0)
        A("s_barrier")
        self.poll("key", kl, kchk, first=False)
        self.stamp("keyld")
        wavemax(8)
        A("s_barrier")
        A("L_cfin:")
        self.finish("C")

    def text(self):
        lines = self.build()
        src = open("sequential_preLN__ssm_conv_s4d__moe_arch_mod__prompt.s.ref").read()
        head = [l for l in src.split("\n") if l.startswith(";") and "@launch" not in l]
        head = head[:head.index("; Override launch geometry by editing the next line (default: block=256,")]
        out = head + [f"; @launch grid=(256,1,1) block=(512,1,1) lds={LDS_BYTES}",
                      '.amdgcn_target "amdgcn-amd-amdhsa--gfx950"', ".text", f".globl {KNAME}", ".p2align 8",
                      f".type {KNAME},@function"]
        out += [l if l.endswith(":") else "    " + l for l in lines]
        out += [".section .rodata,\"a\"", ".p2align 6", f".amdhsa_kernel {KNAME}",
                "  .amdhsa_next_free_vgpr 224", "  .amdhsa_next_free_sgpr 102", "  .amdhsa_accum_offset 224",
                "  .amdhsa_group_segment_fixed_size 0", "  .amdhsa_kernarg_size 120", "  .amdhsa_user_sgpr_count 2",
                "  .amdhsa_user_sgpr_kernarg_segment_ptr 1", "  .amdhsa_system_sgpr_workgroup_id_x 1",
                ".end_amdhsa_kernel", ""]
        return "\n".join(out)


if __name__ == "__main__":
    out = sys.argv[1]
    opts = {}
    stamp = False
    for a in sys.argv[2:]:
        if a == "stamp":
            stamp = True
        else:
            k, val = a.split("=")
            opts[k] = val if k in ('pr', 'few') else int(val)
    g = Gen(stamp, opts)
    open(out, "w").write(g.text())
    if g.stamp_on:
        open(out + ".names", "w").write(" ".join(g.allnames["R"]) + "\n" + " ".join(g.allnames["C"]))
    print(g.info, "lds", LDS_BYTES)
```

```python
import sys
import struct
from asmlib import Asm, align8

KNAME = "sequential_preLN__ssm_conv_s4d__moe_arch_mod__prompt_kernel"


def f2u(x):
    return struct.unpack("<I", struct.pack("<f", x))[0]


W_FLAG = 0x1000 + (int(__import__('os').environ.get('WOFF', '0')) << 20)
W_KEY = 0x9000 + (int(__import__('os').environ.get('WOFF', '0')) << 20)
W_FLAG2 = 0x11000 + (int(__import__('os').environ.get('WOFF', '0')) << 20)
import os
WOFF = int(os.environ.get('WOFF', '0')) << 20
W_REG = 0x38000 + WOFF
RS = 20608
O_X1, O_X2, O_SLOT, O_PART = 0, 8192, 16384, 18432
W_STAMP = 0x800000
ROWB = 544
TABC = 63 * ROWB
L_TAB = 0
L_P = 68608
PC = 8256
L_U = L_P + 2 * PC
UC = 4608
L_RED1 = (L_U + 2 * UC + 255) // 256 * 256
L_RED2 = L_RED1 + 256
L_SUMW = L_RED2 + 384
L_REDK = L_SUMW + 16
L_REDF = L_REDK + 16
LDS_BYTES = L_REDF + 256
L_EPI = 0
TBS = 1152
L_TILE = 40960
WST = 272
WTILE = 8 * WST
sX, sLA, sAI, sCR, sCI, sLDT, sD = 4, 6, 8, 10, 12, 14, 16
sWR, sWG, sWU, sWD, sOUT, sDBG, sWS = 20, 22, 24, 26, 28, 30, 32
sL, sPOS, sXCD, sWAVE, sG, sDT, sT0, sT1, sSPIN, sF = 34, 35, 36, 37, 38, 39, 40, 41, 42, 43
sODD = 44
sSELLO, sSELHI, sONES, sMASK = 46, 47, 48, 49
sWSEL = 50
sBEST, sWIN, sRP0, sRP1 = 52, 53, 54, 55
sH = 56
sE = 64
sTMP = 66
sOWN = 71
sCAND = 3
sOWNM = 56
sTAG = 56
sSTAMP = 72


def sp(r):
    return f"s[{r}:{r + 1}]"


def v(r, n=1):
    return f"v{r}" if n == 1 else f"v[{r}:{r + n - 1}]"


class Gen:
    def __init__(self, stamp=False, opts=None):
        self.A = Asm()
        self.tail = Asm()
        self.stamp_on = stamp
        self.nstamp = 0
        self.names = []
        self.o = dict(opts or {})
        self.only = None
        self.few = None
        if "few" in self.o:
            self.few = ["start", "end"] + self.o["few"].split(".")
            self.stamp_on = True
        self.role = "R"
        if "pr" in self.o:
            self.only = tuple(self.o["pr"].split("."))
            self.stamp_on = True
            self.o["probe"] = 1 if self.only[0] == "R" else 101

    def stamp(self, name):
        if not self.stamp_on:
            return
        if self.only and name != "start" and (self.role, name) != self.only:
            return
        if self.few and name not in self.few:
            return
        k = self.nstamp
        self.nstamp += 1
        self.names.append(name)
        assert sSTAMP + k < 100
        self.A(f"s_memtime s[100:101]" if self.o.get("cyc") else f"s_memrealtime s[100:101]")
        self.A("s_waitcnt lgkmcnt(0)")
        self.A(f"s_mov_b32 s{sSTAMP + k}, s100")

    def poll(self, name, loads, check, base_exec="-1", first=True):
        A = self.A
        for c in (check if first else []):
            A(c)
        A(f"s_cbranch_vccnz L_retry_{name}")
        A(f"L_ok_{name}:")
        T = self.tail
        T(f"L_retry_{name}:")
        T(f"s_mov_b32 s{sSPIN}, 0x40000")
        T(f"L_again_{name}:")
        T(f"s_sub_u32 s{sSPIN}, s{sSPIN}, 1")
        T(f"s_cbranch_scc1 L_ok_{name}")
        T("s_mov_b64 exec, vcc")
        for l in loads:
            T(l)
        T("s_waitcnt vmcnt(0)")
        for c in check:
            T(c)
        T(f"s_mov_b64 exec, {base_exec}")
        T(f"s_cbranch_vccnz L_again_{name}")
        T(f"s_branch L_ok_{name}")

    def cmul(self, d, x, y, t):
        return [f"v_pk_mul_f32 {v(t, 2)}, {v(x, 2)}, {v(y, 2)} op_sel:[0,0] op_sel_hi:[0,1]",
                f"v_pk_fma_f32 {v(d, 2)}, {v(x, 2)}, {v(y, 2)}, {v(t, 2)} op_sel:[1,1,0] op_sel_hi:[1,0,1] neg_lo:[1,0,0]"]

    def reduce8(self, V, t):
        A = self.A
        for i in range(4):
            A(f"v_add_f32_dpp {v(V[i])}, {v(V[i])}, {v(V[i])} row_ror:8 row_mask:0xf bank_mask:0x3")
        for i in range(4):
            A(f"v_add_f32_dpp {v(V[i])}, {v(V[i + 4])}, {v(V[i + 4])} row_ror:8 row_mask:0xf bank_mask:0xc")
        for i in range(2):
            A(f"v_add_f32_dpp {v(V[i])}, {v(V[i])}, {v(V[i])} row_shl:4 row_mask:0xf bank_mask:0x5")
        for i in range(2):
            A(f"v_add_f32_dpp {v(V[i])}, {v(V[i + 2])}, {v(V[i + 2])} row_shr:4 row_mask:0xf bank_mask:0xa")
        A(f"v_permlane32_swap_b32 {v(V[0])}, {v(V[1])}")
        A(f"v_add_f32 {v(V[0])}, {v(V[0])}, {v(V[1])}")
        A(f"v_add_f32_dpp {v(V[0])}, {v(V[0])}, {v(V[0])} quad_perm:[2,3,0,1] row_mask:0xf bank_mask:0xf")
        A(f"v_mov_b32 {v(t)}, {v(V[0])}")
        A(f"v_permlane16_swap_b32 {v(V[0])}, {v(t)}")
        A(f"v_add_f32 {v(V[0])}, {v(V[0])}, {v(t)}")

    def row_stats(self, S, Q, negm, rinv, t, scale=None):
        A = self.A
        A(f"v_pk_add_f32 {v(S, 2)}, {v(S, 2)}, {v(S + 2, 2)}")
        A(f"v_pk_add_f32 {v(Q, 2)}, {v(Q, 2)}, {v(Q + 2, 2)}")
        A(f"v_add_f32 {v(S)}, {v(S)}, {v(S + 1)}")
        A(f"v_add_f32 {v(Q)}, {v(Q)}, {v(Q + 1)}")
        A(f"v_mul_f32 {v(S)}, {hex(f2u(1 / 512))}, {v(S)}")
        A(f"v_mul_f32 {v(Q)}, {hex(f2u(1 / 512))}, {v(Q)}")
        A(f"v_fma_f32 {v(Q)}, -{v(S)}, {v(S)}, {v(Q)}")
        A(f"v_max_f32 {v(Q)}, 0, {v(Q)}")
        A(f"v_cvt_pk_bf16_f32 {v(t)}, -{v(S)}, {v(Q)}")
        A(f"v_and_b32 {v(Q)}, s{sMASK}, {v(t)}")
        A(f"v_add_f32 {v(Q)}, {hex(f2u(1e-5))}, {v(Q)}")
        A(f"v_cvt_pk_bf16_f32 {v(Q)}, {v(Q)}, {v(Q)}")
        A(f"v_and_b32 {v(Q)}, s{sMASK}, {v(Q)}")
        A(f"v_sqrt_f32 {v(Q)}, {v(Q)}")
        A(f"v_lshlrev_b32 {v(negm)}, 16, {v(t)}")
        A(f"v_cvt_pk_bf16_f32 {v(Q)}, {v(Q)}, {v(Q)}")
        A(f"v_and_b32 {v(Q)}, s{sMASK}, {v(Q)}")
        if scale:
            A(f"v_mul_f32 {v(Q)}, {hex(f2u(scale))}, {v(Q)}")
        A(f"v_rcp_f32 {v(rinv)}, {v(Q)}")

    def spread(self, val, dst, t):
        A = self.A
        for r in range(4):
            A(f"v_mov_b32_dpp {v(t + r)}, {v(val)} row_newbcast:{4 + r} row_mask:0xf bank_mask:0xf")
        for r in range(4):
            A(f"v_cndmask_b32_dpp {v(dst + r)}, {v(val)}, {v(t + r)}, vcc row_newbcast:{r} row_mask:0xf bank_mask:0xf")

    def key_calc(self, K, vRA, vLANE):
        A = self.A
        A(f"v_mov_b32 {v(K + 14)}, {L_SUMW}")
        A(f"ds_read_b128 {v(K, 4)}, {v(vRA)} offset:{L_RED2 - L_RED1}")
        A(f"ds_read_b128 {v(K + 4, 4)}, {v(vRA)} offset:{L_RED2 - L_RED1 + 128}")
        A(f"ds_read_b128 {v(K + 8, 4)}, {v(vRA)} offset:{L_RED2 - L_RED1 + 256}")
        A(f"ds_read_b32 {v(K + 15)}, {v(K + 14)}")
        A(f"s_lshl_b32 s{sTMP}, s{sL}, 3")
        A(f"s_sub_u32 s{sTMP}, 2047, s{sTMP}")
        A(f"v_and_b32 {v(K + 14)}, 7, {v(vLANE)}")
        A(f"v_sub_u32 {v(K + 14)}, s{sTMP}, {v(K + 14)}")
        A("s_waitcnt lgkmcnt(2)")
        self.row_stats(K, K + 4, K + 12, K + 13, K + 28)
        A("s_waitcnt lgkmcnt(0)")
        A(f"v_pk_add_f32 {v(K + 8, 2)}, {v(K + 8, 2)}, {v(K + 10, 2)}")
        A(f"v_add_f32 {v(K + 8)}, {v(K + 8)}, {v(K + 9)}")
        A(f"v_fmac_f32 {v(K + 8)}, {v(K + 12)}, {v(K + 15)}")
        A(f"v_mul_f32 {v(K + 8)}, {v(K + 8)}, {v(K + 13)}")
        A(f"v_ashrrev_i32 {v(K + 9)}, 31, {v(K + 8)}")
        A(f"v_or_b32 {v(K + 9)}, 0x80000000, {v(K + 9)}")
        A(f"v_xor_b32 {v(K + 8)}, {v(K + 8)}, {v(K + 9)}")
        A(f"v_and_b32 {v(K + 8)}, 0xfffff800, {v(K + 8)}")
        A(f"v_or_b32 {v(K + 8)}, {v(K + 8)}, {v(K + 14)}")
        A(f"v_min_u32 {v(K + 8)}, -2, {v(K + 8)}")
        A(f"v_max_u32_dpp {v(K + 8)}, {v(K + 8)}, {v(K + 8)} quad_perm:[1,0,3,2] row_mask:0xf bank_mask:0xf")
        A(f"v_max_u32_dpp {v(K + 8)}, {v(K + 8)}, {v(K + 8)} quad_perm:[2,3,0,1] row_mask:0xf bank_mask:0xf")
        A(f"v_max_u32_dpp {v(K + 8)}, {v(K + 8)}, {v(K + 8)} row_half_mirror row_mask:0xf bank_mask:0xf")

    def finish(self, role):
        A = self.A
        o = self.o
        if self.stamp_on:
            self.stamp("end")
            self.allnames[role] = self.names
        if self.stamp_on and "probe" in o:
            k = o["probe"]
            if k == 98 and role == "R":
                A(f"s_getreg_b32 s{sTMP}, hwreg(HW_REG_XCC_ID, 0, 4)")
                A(f"s_sub_u32 s{sTMP}, s{sTMP}, s2")
                A(f"s_and_b32 s{sTMP}, s{sTMP}, 7")
                A(f"s_mul_i32 s{sTMP}, s{sTMP}, 1000")
                A(f"s_add_u32 s{sTMP}, s{sTMP}, 2000")
            elif k == 99 and role == "R":
                A("s_memtime s[96:97]")
                A("s_waitcnt lgkmcnt(0)")
                A("s_sub_u32 s96, s96, s98")
                A(f"s_sub_u32 s97, s{sSTAMP + self.nstamp - 1}, s{sSTAMP}")
                A("s_mov_b64 exec, -1")
                A("v_cvt_f32_u32 v2, s96")
                A("v_cvt_f32_u32 v3, s97")
                A("v_rcp_f32 v3, v3")
                A("s_nop 1")
                A("v_mul_f32 v2, v2, v3")
                A("v_mul_f32 v2, 0x43c80000, v2")
                A("v_cvt_u32_f32 v2, v2")
                A("s_nop 1")
                A(f"v_readfirstlane_b32 s{sTMP}, v2")
                A(f"s_add_u32 s{sTMP}, s{sTMP}, 2000")
            elif k < 0 and role == "R":
                A(f"s_mov_b32 s{sTMP}, {-k}")
            elif k >= 0 and (k >= 100) == (role == "C"):
                A(f"s_sub_u32 s{sTMP}, s{sSTAMP + k % 100}, s{sSTAMP}")
                A(f"s_cmp_lt_u32 s{sTMP}, 3000")
                A(f"s_cselect_b32 s{sTMP}, s{sTMP}, 0")
                A(f"s_mul_i32 s{sTMP}, s{sTMP}, 20")
                A(f"s_add_u32 s{sTMP}, s{sTMP}, 2000")
                if role == "C":
                    A(f"s_cmp_eq_u32 s{sWAVE}, 0")
                    A(f"s_cselect_b32 s{sTMP}, s{sTMP}, 0")
            else:
                A(f"s_mov_b32 s{sTMP}, 0")
            A(f"L_spin{role}:")
            A("s_memrealtime s[100:101]")
            A("s_waitcnt lgkmcnt(0)")
            A(f"s_sub_u32 s100, s100, s{sSTAMP}")
            A(f"s_cmp_lt_u32 s100, s{sTMP}")
            A(f"s_cbranch_scc1 L_spin{role}")
        elif self.stamp_on:
            A("s_mov_b64 exec, 1")
            A(f"s_lshl_b32 s{sTMP}, s2, 3")
            A(f"s_add_u32 s{sTMP}, s{sTMP}, s{sWAVE}")
            if role == "C":
                A(f"s_add_u32 s{sTMP}, s{sTMP}, 4")
            A(f"s_lshl_b32 s{sTMP}, s{sTMP}, 7")
            A(f"s_add_u32 s{sTMP}, s{sTMP}, {W_STAMP}")
            A(f"v_mov_b32 v1, s{sTMP}")
            for k in range(self.nstamp):
                A(f"v_mov_b32 v2, s{sSTAMP + k}")
                A(f"global_store_dword v1, v2, {sp(sWS)} offset:{4 * k}")
        A("s_endpgm")

    def build(self):
        A = self.A
        self.allnames = {}
        A(f"{KNAME}:")
        A("s_cmp_ge_u32 s2, 256")
        A("s_cbranch_scc1 L_end")
        self.stamp("start")
        if self.o.get("probe", 0) == 99:
            A("s_memtime s[98:99]")
        cpf = self.o.get("codepf", 1)
        if cpf == 1:
            A(f"s_getpc_b64 {sp(sE)}")
            A("L_pc:")
            A("v_lshlrev_b32 v2, 5, v0")
            A(f"v_min_u32 v2, L_codeend-L_pc-4, v2")
            A(f"global_load_dword v3, v2, {sp(sE)}")
        elif cpf >= 2:
            A(f"s_getpc_b64 {sp(sE)}")
            A("L_pc:")
            A(f"s_bfe_u32 s3, s2, {3 | ((7 - cpf) << 16)}")
            A(f"s_lshl_b32 s3, s3, {7 + cpf}")
            A("v_lshl_add_u32 v2, v0, 7, s3")
            A(f"v_min_u32 v2, L_codeend-L_pc-4, v2")
            A(f"v_cmp_gt_u32 vcc, {1 << cpf}, v0")
            A("s_mov_b64 exec, vcc")
            A(f"global_load_dword v3, v2, {sp(sE)}")
            A("s_mov_b64 exec, -1")
        A("s_load_dwordx16 s[4:19], s[0:1], 0")
        A("s_load_dwordx8 s[20:27], s[0:1], 64")
        A("s_load_dwordx4 s[28:31], s[0:1], 96")
        A("s_load_dwordx2 s[32:33], s[0:1], 112")
        A("v_lshrrev_b32 v4, 6, v0")
        A(f"s_and_b32 s{sXCD}, s2, 7")
        A(f"v_readfirstlane_b32 s{sWAVE}, v4")
        A(f"s_lshr_b32 s{sPOS}, s2, 3")
        A(f"s_lshl_b32 s{sL}, s{sXCD}, 5")
        A(f"s_add_u32 s{sL}, s{sL}, s{sPOS}")
        A("v_and_b32 v1, 63, v0")
        A(f"s_mov_b32 s{sMASK}, 0xffff0000")
        pre = self.o.get("pre", 0)
        if pre:
            A("s_waitcnt lgkmcnt(0)")
            n = pre % 10
            kind = pre // 10
            A(f"s_mul_i32 s{sT0}, s{sL}, {n * 4096 + 128}")
            A(f"s_add_u32 s{sT0}, s{sT0}, {32 << 20}")
            A("v_and_b32 v5, 0xff, v0")
            A(f"v_lshl_add_u32 v5, v5, 4, s{sT0}")
            A(f"s_cmp_ge_u32 s{sWAVE}, 4")
            A("s_cbranch_scc1 L_pre")
            if kind in (2, 3):
                A("s_mov_b64 exec, 1")
                A(f"global_load_dword v8, v5, {sp(sWS)}")
                A("s_mov_b64 exec, -1")
                A("s_waitcnt vmcnt(0)")
                if kind == 3:
                    self.nstamp = 0
                    self.names = []
                    self.stamp("start")
            if kind in (8, 9, 10, 11):
                A("v_lshrrev_b32 v12, 1, v0")
                A("v_and_b32 v13, 1, v0")
                A("v_lshlrev_b32 v12, 3, v12")
                A(f"s_lshl_b32 s{sT0}, s{sL}, 13")
                A("v_lshl_add_u32 v14, v13, 12, v12")
                A(f"v_add_u32 v14, s{sT0}, v14")
                for r in range(4):
                    A(f"global_load_dwordx2 v[{16 + 2 * r}:{17 + 2 * r}], v14, s[18:19] offset:{1024 * r}{' nt' if kind != 10 else ''}")
                ny = 0
                if kind in (9, 11):
                    A(f"global_load_dwordx2 v[24:25], v12, {sp(sD)}")
                    A(f"global_load_dwordx2 v[26:27], v12, {sp(sWR)}")
                    A("v_lshlrev_b32 v13, 4, v1")
                    A(f"global_load_dwordx4 v[28:31], v13, {sp(sWR)}")
                    ny = 3
                if kind == 11:
                    A(f"s_load_dword s{sG}, {sp(sWS)}, 0")
                for k in range(n):
                    A(f"global_store_dwordx4 v5, v[8:11], {sp(sWS)} sc1")
                    A("v_add_u32 v5, 4096, v5")
                A(f"s_waitcnt vmcnt({n + ny})")
                self.stamp("pre")
                n = 0
            for k in range(n):
                if kind == 1:
                    A(f"global_load_dwordx4 v[8:11], v5, {sp(sWS)}")
                elif kind == 6:
                    if k == 0:
                        A(f"s_lshl_b32 s{sT0}, s{sL}, 7")
                        A(f"v_mov_b32 v6, s{sT0}")
                        A("s_mov_b64 exec, 1")
                    A(f"global_load_dword v{8 + k}, v6, {sp((sX, sLA, sAI, sCR, sCI, sWG, sWU, sWD, sOUT)[k])}")
                    if k == n - 1:
                        A("s_mov_b64 exec, -1")
                elif kind == 7:
                    if k == 0:
                        A(f"v_lshlrev_b32 v6, 3, v1")
                    A(f"global_load_dwordx2 v[{8 + 2 * k}:{9 + 2 * k}], v6, {sp((sD, sWR)[k])}")
                elif kind == 5:
                    A(f"global_load_dwordx4 v[8:11], v5, {sp(sWS)} nt")
                elif kind == 4:
                    A(f"global_store_dwordx4 v5, v[8:11], {sp(sWS)}")
                else:
                    A(f"global_store_dwordx4 v5, v[8:11], {sp(sWS)} sc1")
                A("v_add_u32 v5, 4096, v5")
            A("s_waitcnt vmcnt(0)")
            if kind < 8:
                self.stamp("pre")
            A("L_pre:")
            A("s_barrier")
        A(f"s_cmp_ge_u32 s{sWAVE}, 4")
        A("s_cbranch_scc1 L_chan")
        self.rows()
        self.names = self.names[:1]
        self.nstamp = min(self.nstamp, 1)
        A(".p2align 6")
        self.role = "C"
        self.chans()
        A("L_end:")
        A("s_endpgm")
        for l in self.tail.L:
            A(l)
        A("L_codeend:")
        lines, nops = A.padded()
        lines, nbytes, promoted, missed = align8(lines)
        self.info = dict(nops=nops, bytes=nbytes, promoted=promoted, missed=missed, lines=len(lines))
        return lines

    def rows(self):
        A = self.A
        o = self.o
        vLANE = 1
        vX, vU, vD, vWR = 212, 10, 18, 20
        vREG, vRD, vAUX = 22, 23, 24
        vKEY, vSW, vRA, vFL, vUW = 26, 27, 28, 29, 30
        vT = 32
        vWG, vWD = 40, 72
        vY = 88
        vONE = 96
        K = 100
        L2E = 1.4426950408889634
        A(f"v_lshrrev_b32 {v(vT)}, 1, v0")
        A(f"v_and_b32 {v(vT + 1)}, 1, v0")
        A(f"v_lshlrev_b32 {v(vT + 2)}, 3, {v(vT)}")
        A(f"s_lshl_b32 s{sT0}, s{sL}, 13")
        A(f"v_lshl_add_u32 {v(vRD)}, {v(vT + 1)}, 12, {v(vT + 2)}")
        A(f"v_add_u32 {v(vRD)}, s{sT0}, {v(vRD)}")
        A(f"s_mul_i32 s{sOWN}, s{sL}, {RS}")
        A(f"s_add_u32 s{sOWN}, s{sOWN}, {W_REG}")
        A(f"s_add_u32 s{sT0}, s{sOWN}, 4096")
        A(f"v_lshl_add_u32 {v(vREG)}, v0, 4, s{sT0}")
        A(f"v_lshlrev_b32 {v(vT + 3)}, 4, {v(vLANE)}")
        nt = ' nt' if o.get('ntx', 1) else ''
        A("s_waitcnt lgkmcnt(0)")
        self.stamp("karg")
        for r in range(4):
            A(f"global_load_dwordx2 {v(vX + 2 * r, 2)}, {v(vRD)}, {sp(sX)} offset:{1024 * r}{nt}")
        A(f"s_load_dword s{sG}, {sp(sWS)}, 0")
        A(f"global_load_dwordx2 {v(vD, 2)}, {v(vT + 2)}, {sp(sD)}")
        A(f"global_load_dwordx2 {v(vWR, 2)}, {v(vT + 2)}, {sp(sWR)}")
        A(f"global_load_dwordx4 {v(vONE, 4)}, {v(vT + 3)}, {sp(sWR)}")
        A(f"s_mov_b32 s{sODD}, 0xaaaaaaaa")
        A(f"s_mov_b32 s{sODD + 1}, 0xaaaaaaaa")
        A(f"s_mov_b32 s{sSELLO}, 0x3f80")
        A(f"s_mov_b32 s{sSELHI}, 0x3f800000")
        A(f"s_mov_b32 s{sONES}, 0x3f803f80")
        A(f"s_and_b32 s{sTMP}, s{sL}, 1")
        A(f"s_lshl_b32 s{sTMP}, s{sTMP}, 12")
        A(f"s_lshr_b32 s{sTMP + 1}, s{sL}, 1")
        A(f"s_lshl_b32 s{sTMP + 1}, s{sTMP + 1}, 5")
        A(f"s_add_u32 s{sTMP}, s{sTMP}, s{sTMP + 1}")
        A(f"s_add_u32 s{sTMP}, s{sTMP}, {W_REG + O_X1}")
        A(f"v_mul_u32_u24 {v(vAUX)}, {RS}, {v(vT)}")
        A(f"v_lshl_add_u32 {v(vAUX)}, {v(vT + 1)}, 4, {v(vAUX)}")
        A(f"v_add_u32 {v(vAUX)}, s{sTMP}, {v(vAUX)}")
        A(f"v_add_u32 {v(vAUX + 1)}, {128 * RS}, {v(vAUX)}")
        FS = o.get("fs", 7)
        KS = o.get("ks", 7)
        A(f"v_lshlrev_b32 {v(vSW)}, 6, {v(vT + 1)}")
        A(f"v_and_b32 {v(vT + 3)}, 4, {v(vLANE)}")
        A(f"v_lshl_add_u32 {v(vSW)}, {v(vT + 3)}, 3, {v(vSW)}")
        A(f"v_and_b32 {v(vT + 3)}, 8, {v(vLANE)}")
        A(f"v_lshl_add_u32 {v(vSW)}, {v(vT + 3)}, 4, {v(vSW)}")
        A(f"v_lshrrev_b32 {v(vT + 3)}, 5, {v(vLANE)}")
        A(f"v_lshl_add_u32 {v(vSW)}, {v(vT + 3)}, 4, {v(vSW)}")
        A(f"s_lshl_b32 s{sTMP}, s{sWAVE}, 2")
        A(f"s_add_u32 s{sTMP}, s{sTMP}, {L_RED1}")
        A(f"v_add_u32 {v(vSW)}, s{sTMP}, {v(vSW)}")
        A(f"v_and_b32 {v(vT + 3)}, 7, {v(vLANE)}")
        A(f"v_lshlrev_b32 {v(vRA)}, 4, {v(vT + 3)}")
        A(f"v_add_u32 {v(vRA)}, {L_RED1}, {v(vRA)}")
        A(f"v_lshlrev_b32 {v(vUW)}, 3, v0")
        A(f"v_mov_b32 {v(vFL)}, 0x9fff9fff")
        A(f"v_mov_b32 {v(K)}, 0")
        A(f"v_mov_b32 {v(K + 1)}, 0")
        A(f"v_min_u32 {v(vT + 3)}, 472, {v(vUW)}")
        A(f"v_add_u32 {v(vT + 3)}, {L_U}, {v(vT + 3)}")
        A(f"v_min_u32 {v(vT + 4)}, 56, {v(vUW)}")
        A(f"v_add_u32 {v(vT + 4)}, {L_P}, {v(vT + 4)}")
        A(f"ds_write2st64_b64 {v(vT + 3)}, {v(K, 2)}, {v(K, 2)} offset0:0 offset1:9")
        A(f"ds_write_b64 {v(vT + 4)}, {v(K, 2)}")
        A(f"ds_write_b64 {v(vT + 4)}, {v(K, 2)} offset:{PC}")
        A(f"v_add_u32 {v(vUW)}, {L_U + 480}, {v(vUW)}")

        V = [K + i for i in range(8)]
        A("s_waitcnt vmcnt(3)")
        self.stamp("x")
        for r in range(4):
            A(f"v_dot2_f32_bf16 {v(V[r])}, {v(vX + 2 * r)}, s{sONES}, 0")
        for r in range(4):
            A(f"v_dot2_f32_bf16 {v(V[4 + r])}, {v(vX + 2 * r)}, {v(vX + 2 * r)}, 0")
        for r in range(4):
            A(f"v_dot2_f32_bf16 {v(V[r])}, {v(vX + 2 * r + 1)}, s{sONES}, {v(V[r])}")
        for r in range(4):
            A(f"v_dot2_f32_bf16 {v(V[4 + r])}, {v(vX + 2 * r + 1)}, {v(vX + 2 * r + 1)}, {v(V[4 + r])}")
        self.reduce8(V, K + 8)
        A(f"ds_write_b32 {v(vSW)}, {v(V[0])}")
        A("s_waitcnt lgkmcnt(0)")
        A("s_barrier")
        self.stamp("b1")
        A(f"ds_read_b128 {v(K, 4)}, {v(vRA)}")
        A(f"ds_read_b128 {v(K + 4, 4)}, {v(vRA)} offset:128")
        A(f"s_add_u32 s{sG}, s{sG}, 1")
        for k in range(4):
            A(f"s_add_u32 s{sTAG + k}, s{sG}, {5 * k}")
            A(f"s_and_b32 s{sTAG + k}, s{sTAG + k}, 15")
            A(f"s_mul_i32 s{sTAG + k}, s{sTAG + k}, 0x08002000")
            A(f"s_and_b32 s{sTAG + k}, s{sTAG + k}, 0x60006000")
        A(f"s_mov_b64 vcc, {sp(sODD)}")
        A("s_waitcnt lgkmcnt(0)")
        vNM, vRI = K + 16, K + 20
        self.row_stats(K, K + 4, K + 10, K + 11, K + 12, 2.0 ** 68)
        self.spread(K + 10, vNM, K + 24)
        Dd = K + 32
        for c in range(4):
            for r in range(4):
                A(f"v_dot2_f32_bf16 {v(Dd + 4 * c + r)}, {v(vX + 2 * r + (c >> 1))}, s{sSELHI if c & 1 else sSELLO}, {v(vNM + r)}")
        self.spread(K + 11, vRI, K + 24)
        Pk = K + 48
        for half in range(2):
            ks = range(4 * half, 4 * half + 4)
            if o.get("mid1", 1):
                for k in ks:
                    A(f"v_cvt_pk_bf16_f32 {v(Pk + k)}, {v(Dd + 2 * k)}, {v(Dd + 2 * k + 1)}")
                for k in ks:
                    A(f"v_lshlrev_b32 {v(Dd + 2 * k)}, 16, {v(Pk + k)}")
                    A(f"v_and_b32 {v(Dd + 2 * k + 1)}, s{sMASK}, {v(Pk + k)}")
            for k in ks:
                A(f"v_pk_mul_f32 {v(Dd + 2 * k, 2)}, {v(Dd + 2 * k, 2)}, {v(vRI + 2 * (k & 1), 2)}")
            for k in ks:
                A(f"v_cvt_pk_bf16_f32 {v(vU + k)}, {v(Dd + 2 * k)}, {v(Dd + 2 * k + 1)}")
            for k in ks:
                A(f"v_and_or_b32 {v(Pk + k)}, {v(vU + k)}, {v(vFL)}, s{sTAG + (k & 3)}")
            if half == 0 and o.get("b1b", 1) == 1:
                A("s_barrier")
            A(f"global_store_dwordx4 {v(vREG)}, {v(Pk + 4 * half, 4)}, {sp(sWS)} offset:{-4096 + 4096 * half} sc1")
        self.stamp("x1st")
        b2pos = o.get("b2pos", 0)
        if b2pos == 0:
            A("s_barrier")
        p1 = o.get("p1", 2)
        if p1 == 0:
            A("s_waitcnt vmcnt(0)")
        else:
            A("s_waitcnt vmcnt(2)")
        self.stamp("x1dr")
        xl = [f"global_load_dwordx4 {v(vY, 4)}, {v(vAUX)}, {sp(sWS)} sc1",
              f"global_load_dwordx4 {v(vY + 4, 4)}, {v(vAUX + 1)}, {sp(sWS)} sc1"]
        if p1 < 2:
            for l in xl:
                A(l)
        if b2pos == 1:
            A("s_barrier")
        if o.get("b2b", 1) and p1 < 2:
            A("s_barrier")
        A(f"s_mul_i32 s{sF}, s{sXCD}, 14")
        A(f"s_add_u32 s{sF}, s{sF}, s{sPOS}")
        A(f"s_bitcmp1_b32 s{sWAVE}, 0")
        A(f"s_cselect_b64 {sp(sWSEL)}, {sp(sWU)}, {sp(sWG)}")
        A(f"s_lshr_b32 s{sTMP + 1}, s{sWAVE}, 1")
        A(f"s_mul_i32 s{sTMP + 1}, s{sTMP + 1}, {256 * 3584}")
        A(f"s_lshl_b32 s{sTMP + 2}, s{sF}, 5")
        A(f"s_add_u32 s{sTMP + 1}, s{sTMP + 1}, s{sTMP + 2}")
        vWA = K + 8
        A(f"v_lshrrev_b32 {v(vWA)}, 1, {v(vLANE)}")
        A(f"v_mul_u32_u24 {v(vWA)}, {8 * 3584}, {v(vWA)}")
        A(f"v_lshl_add_u32 {v(vWA)}, {v(vT + 1)}, 4, {v(vWA)}")
        A(f"v_add_u32 {v(vWA)}, s{sTMP + 1}, {v(vWA)}")
        A(f"v_add_u32 {v(vWA + 2)}, {7 * 3584}, {v(vWA)}")
        A(f"v_add_u32 {v(vWA + 1)}, {4 * 3584}, {v(vWA)}")
        A(f"v_add_u32 {v(vWA)}, 3584, {v(vWA)}")
        A(f"s_lshl_b32 s{sTMP + 1}, s{sF}, 14")
        A(f"s_add_u32 s{sTMP + 1}, s{sTMP + 1}, 4096")
        A(f"v_lshl_add_u32 {v(220)}, v0, 2, s{sTMP + 1}")
        A(f"v_add_u32 {v(221)}, 8192, {v(220)}")
        f2 = o.get("b1b", 1) == 2
        if f2:
            A(f"v_and_b32 {v(vFL)}, 0xfe, v0")
            A(f"v_lshlrev_b32 {v(vFL)}, 7, {v(vFL)}")
            A(f"v_add_u32 {v(vFL)}, {W_FLAG}, {v(vFL)}")
            A(f"s_mul_i32 s{sT0}, s{sG}, 0x9e3779b1")
        i2 = o.get("i2", 0)
        if i2:
            A(f"s_lshl_b32 s{sTMP}, s{sWAVE}, 11")
            A(f"s_add_u32 s{sTMP}, s{sTMP}, s{sOWN}")
            A(f"s_add_u32 s{sTMP}, s{sTMP}, {O_X2}")
            A(f"v_lshl_add_u32 {v(vWA + 5)}, {v(vLANE)}, 4, s{sTMP}")
            A(f"v_add_u32 {v(vWA + 6)}, {O_SLOT - 4096}, {v(vREG)}")
            A(f"s_lshl_b32 s{sTMP}, s{sL}, {KS}")
            A(f"s_add_u32 s{sTMP}, s{sTMP}, {W_KEY}")
            A(f"v_lshl_add_u32 {v(vWA + 7)}, {v(vLANE)}, 4, s{sTMP}")
            A(f"s_lshl_b32 s{sTMP}, s{sL}, 2")
            A(f"s_add_u32 s{sTMP}, s{sTMP}, s{sWAVE}")
            A(f"s_lshl_b32 s{sTMP}, s{sTMP}, 7")
            A(f"s_add_u32 s{sTMP}, s{sTMP}, {W_FLAG2}")
            A(f"v_lshl_add_u32 {v(vKEY)}, {v(vLANE)}, 4, s{sTMP}")
            A(f"s_lshr_b32 s{sTMP}, s{sL}, 6")
            A(f"s_lshl_b32 s{sTMP}, s{sTMP}, 7")
            A(f"s_add_u32 s{sTMP}, s{sTMP}, {W_FLAG2}")
            A(f"v_and_b32 {v(vFL)}, 0xfe, v0")
            A(f"v_lshl_add_u32 {v(vFL)}, {v(vFL)}, 9, s{sTMP}")
            for k in range(4):
                A(f"v_mov_b32 {v(K + 32 + k)}, -1")
        A(f"v_dot2_f32_bf16 {v(K + 4)}, {v(vONE)}, s{sONES}, 0")
        for k in range(1, 4):
            A(f"v_dot2_f32_bf16 {v(K + 4)}, {v(vONE + k)}, s{sONES}, {v(K + 4)}")
        A(f"v_mov_b32 {v(K + 5)}, {L_SUMW}")
        A(f"s_mov_b32 s{sRP0}, 0x05040100")
        A(f"s_mov_b32 s{sRP1}, 0x07060302")
        for sh in (8, 4, 2, 1):
            A(f"v_add_f32_dpp {v(K + 4)}, {v(K + 4)}, {v(K + 4)} row_ror:{sh} row_mask:0xf bank_mask:0xf")
        A(f"v_add_f32_dpp {v(K + 4)}, {v(K + 4)}, {v(K + 4)} row_bcast:15 row_mask:0xa bank_mask:0xf")
        A(f"v_add_f32_dpp {v(K + 4)}, {v(K + 4)}, {v(K + 4)} row_bcast:31 row_mask:0xc bank_mask:0xf")
        A("s_mov_b32 exec_lo, 0")
        A("s_brev_b32 exec_hi, 1")
        A(f"ds_write_b32 {v(K + 5)}, {v(K + 4)}")
        A("s_mov_b64 exec, -1")
        if p1 == 2:
            if o.get("d1"):
                A(f"s_sleep {o['d1']}")
            for l in xl:
                A(l)
        if not o.get("b2b", 1) or p1 == 2:
            A("s_barrier")
        A("s_waitcnt vmcnt(0)")
        chk8 = [f"v_max3_u32 {v(vT + 6)}, {v(vY)}, {v(vY + 1)}, {v(vY + 2)}",
                f"v_max3_u32 {v(vT + 7)}, {v(vY + 3)}, {v(vY + 4)}, {v(vY + 5)}",
                f"v_max3_u32 {v(vT + 6)}, {v(vT + 6)}, {v(vY + 6)}, {v(vY + 7)}",
                f"v_max_u32 {v(vT + 6)}, {v(vT + 6)}, {v(vT + 7)}",
                f"v_cmp_eq_u32 vcc, -1, {v(vT + 6)}"]
        Z = K + 32
        tchk = [f"v_xor_b32 {v(Z + k)}, s{sTAG + (k & 3)}, {v(vY + k)}" for k in range(8)]
        tchk += [f"v_or3_b32 {v(vT + 6)}, {v(Z)}, {v(Z + 1)}, {v(Z + 2)}",
                 f"v_or3_b32 {v(vT + 7)}, {v(Z + 3)}, {v(Z + 4)}, {v(Z + 5)}",
                 f"v_or3_b32 {v(vT + 6)}, {v(vT + 6)}, {v(Z + 6)}, {v(Z + 7)}",
                 f"v_or_b32 {v(vT + 6)}, {v(vT + 6)}, {v(vT + 7)}",
                 f"v_and_b32 {v(vT + 6)}, 0x60006000, {v(vT + 6)}",
                 "s_nop 1",
                 f"v_or_b32_dpp {v(vT + 6)}, {v(vT + 6)}, {v(vT + 6)} quad_perm:[1,0,3,2] row_mask:0xf bank_mask:0xf",
                 f"v_cmp_ne_u32 vcc, 0, {v(vT + 6)}"]
        self.poll("x1", xl, tchk)
        self.stamp("x1ld")
        A(f"ds_write2st64_b64 {v(vUW)}, {v(Z, 2)}, {v(Z + 2, 2)} offset0:0 offset1:9")
        A(f"ds_write2st64_b64 {v(vUW)}, {v(Z + 4, 2)}, {v(Z + 6, 2)} offset0:4 offset1:13")
        A("s_waitcnt lgkmcnt(0)")
        A("s_barrier")

        fl2 = [f"global_load_dword {v(vT + 4)}, {v(vFL)}, {sp(sWS)} sc1",
               f"global_load_dword {v(vT + 5)}, {v(vFL)}, {sp(sWS)} offset:512 sc1"]
        wl = [f"global_load_dwordx4 {v(vWG + 4 * k, 4)}, {v(vWA + k // 3)}, {sp(sWSEL)} offset:{(k % 3 - 1) * 3584}" for k in range(8)]
        wdl = [f"global_load_dword {v(vWD + k)}, {v(220 + (k >> 3))}, {sp(sWD)} offset:{((k & 7) - 4) * 1024}" for k in range(16)]
        wdp = o.get("wdp", 0)
        if wdp == 0:
            wl += wdl
        flst = ["s_mov_b64 exec, 0xff",
                f"global_store_dwordx4 {v(vKEY)}, {v(K + 28, 4)}, {sp(sWS)} sc1",
                "s_mov_b64 exec, -1"]
        if i2:
            ones = v(K + 32, 4)
            A(f"s_cmp_eq_u32 s{sWAVE}, 0")
            A(f"s_cselect_b64 exec, {(1 << ((1 << KS) // 16)) - 1}, 0")
            A(f"global_store_dwordx4 {v(vWA + 7)}, {ones}, {sp(sWS)} sc1")
            A("s_mov_b64 exec, -1")
            A(f"global_store_dwordx4 {v(vWA + 5)}, {ones}, {sp(sWS)} sc1")
            A(f"global_store_dwordx4 {v(vWA + 5)}, {ones}, {sp(sWS)} offset:1024 sc1")
            A(f"global_store_dwordx4 {v(vWA + 6)}, {ones}, {sp(sWS)} sc1")
        if i2 == 1:
            A("s_waitcnt vmcnt(0)")
            for l in flst:
                A(l)
            self.stamp("init2")
        fl3 = [f"global_load_dword {v(vT + 4)}, {v(vFL)}, {sp(sWS)} sc1",
               f"global_load_dword {v(vT + 5)}, {v(vFL)}, {sp(sWS)} offset:128 sc1"]
        if f2:
            for l in fl3:
                A(l)
        A(f"s_cmp_lt_u32 s{sPOS}, 14")
        A("s_cbranch_scc0 L_now")
        for l in wl:
            A(l)
        self.stamp("wq2")
        if f2:
            A(f"s_waitcnt vmcnt({len(wl)})")
            A("L_now2:")
            self.tail("L_now:")
            self.tail("s_waitcnt vmcnt(0)")
            self.tail("s_branch L_now2")
            self.poll("flag2", fl3, [f"v_xor_b32 {v(vT + 6)}, s{sT0}, {v(vT + 4)}",
                                     f"v_xor_b32 {v(vT + 7)}, s{sT0}, {v(vT + 5)}",
                                     f"v_or_b32 {v(vT + 6)}, {v(vT + 6)}, {v(vT + 7)}",
                                     f"v_cmp_ne_u32 vcc, 0, {v(vT + 6)}"])
        else:
            A("L_now:")
        shp = o.get("shp", 1)
        if shp == 1:
            A("s_barrier")
        if o.get("p2", 3) == 3:
            A("s_barrier")
        A(f"v_and_b32 {v(vT + 3)}, 0xfe, v0")
        A(f"v_mul_u32_u24 {v(vAUX)}, {RS}, {v(vT + 3)}")
        A(f"v_lshl_add_u32 {v(vAUX)}, {v(vT + 1)}, 4, {v(vAUX)}")
        A(f"s_lshl_b32 s{sTMP}, s{sL}, 5")
        A(f"s_add_u32 s{sTMP}, s{sTMP}, {W_REG + O_X2}")
        A(f"v_add_u32 {v(vAUX)}, s{sTMP}, {v(vAUX)}")
        A(f"v_add_u32 {v(vAUX + 1)}, {RS}, {v(vAUX)}")
        Tt, Xf = K + 40, K + 56
        Df = K + 72
        for k in range(8):
            A(f"v_lshlrev_b32 {v(Tt + 2 * k)}, 16, {v(vU + k)}")
            A(f"v_and_b32 {v(Tt + 2 * k + 1)}, s{sMASK}, {v(vU + k)}")
        A(f"v_lshlrev_b32 {v(Df)}, 16, {v(vD)}")
        A(f"v_and_b32 {v(Df + 1)}, s{sMASK}, {v(vD)}")
        A(f"v_lshlrev_b32 {v(Df + 2)}, 16, {v(vD + 1)}")
        A(f"v_and_b32 {v(Df + 3)}, s{sMASK}, {v(vD + 1)}")
        for k in range(4):
            A(f"v_mul_f32 {v(Df + k)}, {hex(f2u(2.0 ** 68))}, {v(Df + k)}")
        for k in range(8):
            c = k >> 1
            sel = "op_sel:[1,0] op_sel_hi:[1,1]" if c & 1 else "op_sel_hi:[0,1]"
            A(f"v_pk_mul_f32 {v(Tt + 2 * k, 2)}, {v(Df + (c & 2), 2)}, {v(Tt + 2 * k, 2)} {sel}")
        for k in range(8):
            A(f"v_cvt_pk_bf16_f32 {v(Xf + k)}, {v(Tt + 2 * k)}, {v(Tt + 2 * k + 1)}")
        for k in range(8):
            A(f"v_lshlrev_b32 {v(Tt + 2 * k)}, 16, {v(Xf + k)}")
            A(f"v_and_b32 {v(Tt + 2 * k + 1)}, s{sMASK}, {v(Xf + k)}")
        for r in range(4):
            for c in range(4):
                src = v(vX + 2 * r + (c >> 1))
                if c & 1:
                    A(f"v_and_b32 {v(Xf + 4 * c + r)}, s{sMASK}, {src}")
                else:
                    A(f"v_lshlrev_b32 {v(Xf + 4 * c + r)}, 16, {src}")
        if not o.get("mid2", 1):
            for k in range(8):
                A(f"v_pk_add_f32 {v(Xf + 2 * k, 2)}, {v(Xf + 2 * k, 2)}, {v(Tt + 2 * k, 2)}")
        vTW, vTS, vTO, vSL = vUW, vFL, 31, vKEY
        A(f"s_mul_i32 s{sTMP}, s{sWAVE}, {3 * WTILE}")
        A(f"s_add_u32 s{sTMP}, s{sTMP}, {L_TILE}")
        A(f"v_mul_u32_u24 {v(vTW)}, {4 * WST}, {v(vT + 1)}")
        A(f"v_lshrrev_b32 {v(vT + 3)}, 1, {v(vLANE)}")
        A(f"v_lshl_add_u32 {v(vTW)}, {v(vT + 3)}, 3, {v(vTW)}")
        A(f"v_add_u32 {v(vTW)}, s{sTMP}, {v(vTW)}")
        A(f"v_lshrrev_b32 {v(vT + 3)}, 4, {v(vLANE)}")
        A(f"v_and_b32 {v(vT + 4)}, 15, {v(vLANE)}")
        A(f"v_lshl_add_u32 {v(vT + 5)}, {v(vT + 4)}, 4, s{sTMP}")
        A(f"s_movk_i32 s{sTMP}, {WST}")
        A(f"v_mad_u32_u24 {v(vTO)}, {v(vT + 3)}, s{sTMP}, {v(vT + 5)}")
        A(f"s_movk_i32 s{sTMP}, {WTILE}")
        A(f"v_mad_u32_u24 {v(vTS)}, {v(vT + 3)}, s{sTMP}, {v(vT + 5)}")
        A(f"v_lshlrev_b32 {v(vT + 4)}, 4, {v(vT + 4)}")
        A(f"v_lshl_add_u32 {v(vT + 4)}, {v(vT + 3)}, 10, {v(vT + 4)}")
        A(f"s_lshl_b32 s{sTMP}, s{sWAVE}, 8")
        A(f"s_add_u32 s{sTMP + 1}, s{sTMP}, s{sOWN}")
        A(f"s_add_u32 s{sTMP + 1}, s{sTMP + 1}, {O_SLOT}")
        A(f"v_add_u32 {v(vSL)}, s{sTMP + 1}, {v(vT + 4)}")
        A(f"s_lshl_b32 s{sTMP + 1}, s{sL}, 13")
        A(f"s_add_u32 s{sTMP}, s{sTMP}, s{sTMP + 1}")
        A(f"s_add_u32 s{sTMP}, s{sTMP}, 4096")
        A(f"v_add_u32 {v(vRD)}, s{sTMP}, {v(vT + 4)}")
        vF = 4
        A(f"s_lshr_b32 s{sTMP}, s{sWAVE}, 1")
        A(f"s_lshl_b32 s{sTMP}, s{sTMP}, 9")
        A(f"s_add_u32 s{sTMP}, s{sTMP}, {W_REG + O_SLOT}")
        A(f"v_lshrrev_b32 {v(vF)}, 1, {v(vLANE)}")
        A(f"v_lshl_add_u32 {v(vF)}, {v(vF)}, 4, s{sTMP}")
        A(f"v_lshlrev_b32 {v(vF + 1)}, 6, {v(vT + 1)}")
        A(f"v_and_b32 {v(vF + 2)}, 12, {v(vLANE)}")
        A(f"v_lshl_add_u32 {v(vF + 1)}, {v(vF + 2)}, 2, {v(vF + 1)}")
        A(f"v_lshrrev_b32 {v(vF + 2)}, 5, {v(vLANE)}")
        A(f"v_lshl_add_u32 {v(vF + 1)}, {v(vF + 2)}, 3, {v(vF + 1)}")
        A(f"s_and_b32 s{sTMP}, s{sWAVE}, 1")
        A(f"s_lshl_b32 s{sTMP}, s{sTMP}, 7")
        A(f"s_lshr_b32 s{sTMP + 1}, s{sWAVE}, 1")
        A(f"s_lshl_b32 s{sTMP + 1}, s{sTMP + 1}, 2")
        A(f"s_add_u32 s{sTMP}, s{sTMP}, s{sTMP + 1}")
        A(f"s_add_u32 s{sTMP}, s{sTMP}, {L_REDF}")
        A(f"v_add_u32 {v(vF + 1)}, s{sTMP}, {v(vF + 1)}")
        A(f"v_and_b32 {v(vF + 2)}, 15, {v(vLANE)}")
        A(f"v_lshlrev_b32 {v(vF + 2)}, 3, {v(vF + 2)}")
        A(f"v_add_u32 {v(vF + 2)}, {L_REDF}, {v(vF + 2)}")
        A(f"s_add_u32 s{sTMP}, s{sOWN}, {O_PART}")
        A(f"v_lshl_add_u32 {v(vF + 3)}, v0, 3, s{sTMP}")
        A(f"v_mov_b32 {v(8)}, {L_REDK}")
        self.stamp("shadow")
        if shp == 0:
            A("s_barrier")
        if i2:
            for l in fl2:
                A(l)
            A("s_waitcnt vmcnt(0)")
            self.poll("flag2", fl2, flchk)
            self.stamp("flag2")
        p2 = o.get("p2", 3)
        if p2 == 0:
            A("s_barrier")
        self.stamp("b4b")
        if p2 < 2:
            for l in xl:
                A(l)
            A("s_waitcnt vmcnt(2)")
        else:
            A("s_waitcnt vmcnt(0)")
        WGp = K + 80
        for kp in range(4):
            for d in range(4):
                lo, hi = vWG + 8 * kp + d, vWG + 8 * kp + 4 + d
                A(f"v_perm_b32 {v(WGp + 8 * kp + 2 * d)}, {v(hi)}, {v(lo)}, s{sRP0}")
                A(f"v_perm_b32 {v(WGp + 8 * kp + 2 * d + 1)}, {v(hi)}, {v(lo)}, s{sRP1}")
        WDp = vWG
        wdperm = []
        for kp in range(8):
            lo, hi = vWD + 2 * kp, vWD + 2 * kp + 1
            wdperm.append(f"v_perm_b32 {v(WDp + 2 * kp)}, {v(hi)}, {v(lo)}, s{sRP0}")
            wdperm.append(f"v_perm_b32 {v(WDp + 2 * kp + 1)}, {v(hi)}, {v(lo)}, s{sRP1}")
        if wdp == 0:
            for l in wdperm:
                A(l)
        if p2 >= 2:
            if o.get("d2"):
                A(f"s_sleep {o['d2']}")
            for l in xl:
                A(l)
        A("s_waitcnt vmcnt(0)")
        self.poll("x2", xl, chk8)
        self.stamp("x2ld")

        if o.get("mid2", 1):
            for k in range(8):
                A(f"v_dot2_f32_bf16 {v(Tt + 2 * k)}, {v(vY + k)}, s{sSELLO}, {v(Tt + 2 * k)}")
                A(f"v_dot2_f32_bf16 {v(Tt + 2 * k + 1)}, {v(vY + k)}, s{sSELHI}, {v(Tt + 2 * k + 1)}")
            for k in range(8):
                A(f"v_cvt_pk_bf16_f32 {v(vY + k)}, {v(Tt + 2 * k)}, {v(Tt + 2 * k + 1)}")
        for k in range(8):
            A(f"v_dot2_f32_bf16 {v(Xf + 2 * k)}, {v(vY + k)}, s{sSELLO}, {v(Xf + 2 * k)}")
            A(f"v_dot2_f32_bf16 {v(Xf + 2 * k + 1)}, {v(vY + k)}, s{sSELHI}, {v(Xf + 2 * k + 1)}")
        vH = vX
        for cp in range(2):
            for r in range(4):
                A(f"v_cvt_pk_bf16_f32 {v(vH + 2 * r + cp)}, {v(Xf + 8 * cp + r)}, {v(Xf + 8 * cp + 4 + r)}")
        Rr = [K + 8 + i for i in range(4)]
        for cp in range(2):
            for r in range(4):
                A(f"v_dot2_f32_bf16 {v(V[r])}, {v(vH + 2 * r + cp)}, s{sONES}, {v(V[r]) if cp else 0}")
            for r in range(4):
                A(f"v_dot2_f32_bf16 {v(V[4 + r])}, {v(vH + 2 * r + cp)}, {v(vH + 2 * r + cp)}, {v(V[4 + r]) if cp else 0}")
            for r in range(4):
                A(f"v_dot2_f32_bf16 {v(Rr[r])}, {v(vH + 2 * r + cp)}, {v(vWR + cp)}, {v(Rr[r]) if cp else 0}")
        for i in range(4):
            A(f"v_add_f32_dpp {v(V[i])}, {v(V[i])}, {v(V[i])} row_ror:8 row_mask:0xf bank_mask:0x3")
        for i in range(4):
            A(f"v_add_f32_dpp {v(V[i])}, {v(V[i + 4])}, {v(V[i + 4])} row_ror:8 row_mask:0xf bank_mask:0xc")
        for i in range(2):
            A(f"v_add_f32_dpp {v(Rr[i])}, {v(Rr[i])}, {v(Rr[i])} row_shl:4 row_mask:0xf bank_mask:0x5")
        for i in range(2):
            A(f"v_add_f32_dpp {v(Rr[i])}, {v(Rr[i + 2])}, {v(Rr[i + 2])} row_shr:4 row_mask:0xf bank_mask:0xa")
        for i in range(2):
            A(f"v_add_f32_dpp {v(V[i])}, {v(V[i])}, {v(V[i])} row_shl:4 row_mask:0xf bank_mask:0x5")
        for i in range(2):
            A(f"v_add_f32_dpp {v(V[i])}, {v(V[i + 2])}, {v(V[i + 2])} row_shr:4 row_mask:0xf bank_mask:0xa")
        A(f"v_permlane32_swap_b32 {v(Rr[0])}, {v(Rr[1])}")
        A(f"v_and_b32 {v(K + 13)}, 0xffffff7f, {v(vSW)}")
        A(f"v_permlane32_swap_b32 {v(V[0])}, {v(V[1])}")
        A(f"v_add_f32 {v(Rr[0])}, {v(Rr[0])}, {v(Rr[1])}")
        A(f"v_add_f32 {v(V[0])}, {v(V[0])}, {v(V[1])}")
        A(f"s_mov_b64 vcc, {sp(sODD)}")
        A(f"v_add_f32_dpp {v(Rr[0])}, {v(Rr[0])}, {v(Rr[0])} row_ror:8 row_mask:0xf bank_mask:0xf")
        A(f"v_add_f32_dpp {v(V[0])}, {v(V[0])}, {v(V[0])} quad_perm:[2,3,0,1] row_mask:0xf bank_mask:0xf")
        A(f"v_mov_b32 {v(V[1])}, {v(V[0])}")
        A(f"v_add_f32_dpp {v(Rr[0])}, {v(Rr[0])}, {v(Rr[0])} quad_perm:[2,3,0,1] row_mask:0xf bank_mask:0xf")
        A(f"v_mov_b32 {v(Rr[1])}, {v(Rr[0])}")
        A(f"v_permlane16_swap_b32 {v(V[0])}, {v(V[1])}")
        A(f"v_add_f32 {v(V[0])}, {v(V[0])}, {v(V[1])}")
        A(f"v_permlane16_swap_b32 {v(Rr[0])}, {v(Rr[1])}")
        A(f"v_add_f32 {v(Rr[0])}, {v(Rr[0])}, {v(Rr[1])}")
        A(f"ds_write_b32 {v(vSW)}, {v(V[0])} offset:{L_RED2 - L_RED1}")
        A(f"ds_write_b32 {v(K + 13)}, {v(Rr[0])} offset:{L_RED2 - L_RED1 + 256}")
        A("s_waitcnt lgkmcnt(0)")
        A("s_barrier")
        self.stamp("b5")
        Hf, Dd = Xf, Tt
        self.key_calc(K, vRA, vLANE)
        for r in range(4):
            A(f"ds_write_b64 {v(vTW)}, {v(vH + 2 * r, 2)} offset:{WTILE + r * WST}")
        self.spread(K + 12, vNM, K + 24)
        A(f"v_readfirstlane_b32 s{sBEST}, {v(K + 8)}")
        for r in range(4):
            for cp in range(2):
                A(f"v_lshlrev_b32 {v(Hf + 4 * r + 2 * cp)}, 16, {v(vH + 2 * r + cp)}")
                A(f"v_and_b32 {v(Hf + 4 * r + 2 * cp + 1)}, s{sMASK}, {v(vH + 2 * r + cp)}")
        self.spread(K + 13, vRI, K + 24)
        for k in range(8):
            r = k >> 1
            sel = "op_sel:[1,0] op_sel_hi:[1,1]" if r & 1 else "op_sel_hi:[0,1]"
            A(f"v_pk_add_f32 {v(Dd + 2 * k, 2)}, {v(vNM + (r & 2), 2)}, {v(Hf + 2 * k, 2)} {sel}")
        vX2 = vU
        if o.get("pace", 3) == 1:
            A("s_barrier")
        for k in range(8):
            A(f"v_cvt_pk_bf16_f32 {v(vX2 + k)}, {v(Dd + 2 * k)}, {v(Dd + 2 * k + 1)}")
        for k in range(8):
            A(f"v_lshlrev_b32 {v(Dd + 2 * k)}, 16, {v(vX2 + k)}")
            A(f"v_and_b32 {v(Dd + 2 * k + 1)}, s{sMASK}, {v(vX2 + k)}")
        for k in range(8):
            r = k >> 1
            sel = "op_sel:[1,0] op_sel_hi:[1,1]" if r & 1 else "op_sel_hi:[0,1]"
            A(f"v_pk_mul_f32 {v(Dd + 2 * k, 2)}, {v(vRI + (r & 2), 2)}, {v(Dd + 2 * k, 2)} {sel}")
        for k in range(8):
            A(f"v_cvt_pk_bf16_f32 {v(vX2 + k)}, {v(Dd + 2 * k)}, {v(Dd + 2 * k + 1)}")
        if o.get("pace", 3) == 2:
            A("s_barrier")
        for r in range(4):
            A(f"ds_write_b64 {v(vTW)}, {v(vX2 + 2 * r, 2)} offset:{r * WST}")
        A(f"s_andn2_b32 s{sTMP}, 7, s{sBEST}")
        A(f"s_mul_i32 s{sTMP + 1}, s{sTMP}, {WST}")
        A(f"v_add_u32 {v(vTS)}, s{sTMP + 1}, {v(vTS)}")
        A(f"ds_read_b128 {v(K + 24, 4)}, {v(vTS)}")
        A(f"s_mov_b32 s{sCAND}, s{sTMP}")
        A("s_mov_b32 exec_hi, 0")
        A("s_waitcnt lgkmcnt(0)")
        A(f"global_store_dwordx4 {v(vSL)}, {v(K + 24, 4)}, {sp(sWS)} sc1")
        A("s_mov_b32 exec_hi, -1")
        self.stamp("slot")
        if o.get("pace", 3) == 3:
            A("s_barrier")
        if wdp == 2:
            A(f"s_cmp_lt_u32 s{sPOS}, 14")
            A("s_cselect_b64 exec, -1, 0")
            for l in wdl:
                A(l)
            A("s_mov_b64 exec, -1")
        vO = vU
        osc = " sc1" if o.get("outsc", 1) == 1 else ""
        olate = o.get("olate", 0)
        ost = [f"global_store_dwordx4 {v(vRD)}, {v(vO + 4 * i, 4)}, {sp(sOUT)} offset:{4096 * i - 4096}{osc}" for i in range(2)]

        def outcode():
            for k in range(8):
                A(f"v_dot2_f32_bf16 {v(Hf + 2 * k)}, {v(vX2 + k)}, s{sSELLO}, {v(Hf + 2 * k)}")
                A(f"v_dot2_f32_bf16 {v(Hf + 2 * k + 1)}, {v(vX2 + k)}, s{sSELHI}, {v(Hf + 2 * k + 1)}")
            for k in range(8):
                A(f"v_cvt_pk_bf16_f32 {v(vY + k)}, {v(Hf + 2 * k)}, {v(Hf + 2 * k + 1)}")
            if o.get("pace", 3) == 5:
                A("s_barrier")
            for r in range(4):
                A(f"ds_write_b64 {v(vTW)}, {v(vY + 2 * r, 2)} offset:{2 * WTILE + r * WST}")
            for i in range(2):
                A(f"ds_read_b128 {v(vO + 4 * i, 4)}, {v(vTO)} offset:{2 * WTILE + 4 * i * WST}")
            A(f"s_and_b32 s{sTMP + 1}, s{sCAND}, 3")
            A(f"s_lshl_b32 s{sTMP + 1}, s{sTMP + 1}, 4")
            A(f"s_mov_b64 {sp(sE)}, 0xffff")
            A(f"s_lshl_b64 {sp(sE)}, {sp(sE)}, s{sTMP + 1}")
            A(f"s_lshr_b32 s{sCAND}, s{sCAND}, 2")
            A("s_waitcnt lgkmcnt(0)")
            if not olate:
                for i in range(2):
                    A(f"s_cmp_eq_u32 s{sCAND}, {i}")
                    A(f"s_cselect_b64 vcc, {sp(sE)}, 0")
                    A("s_not_b64 exec, vcc")
                    A(ost[i])
                A("s_mov_b64 exec, -1")
        opos = o.get("opos", 0)
        if opos == 0:
            outcode()
        if o.get("pace", 3) == 4:
            A("s_barrier")
        A("s_barrier")
        A(f"ds_read_b32 {v(K)}, {v(8)}")
        A(f"s_cmp_lt_u32 s{sPOS}, 14")
        A("s_cselect_b64 vcc, -1, 0")
        A("s_waitcnt lgkmcnt(0)")
        A(f"v_readfirstlane_b32 s{sWIN}, {v(K)}")
        seladdr = [f"s_andn2_b32 s{sT0}, 2047, s{sWIN}",
                   f"s_lshr_b32 s{sT1}, s{sT0}, 3",
                   f"s_mul_i32 s{sT1}, s{sT1}, {RS}",
                   f"v_add_u32 {v(vT)}, s{sT1}, {v(vF)}"]
        for l in seladdr:
            A(l)
        sl = [f"global_load_dwordx4 {v(K, 4)}, {v(vT)}, {sp(sWS)} sc1"]
        A("s_mov_b64 exec, vcc")
        A(sl[0])
        if wdp == 1:
            for l in wdl:
                A(l)
        A("s_mov_b64 exec, -1")
        self.stamp("win")
        if opos == 1:
            outcode()
        self.stamp("outst")
        A(f"s_cmp_lt_u32 s{sPOS}, 14")
        A("s_cbranch_scc0 L_noffn")
        A(f"s_waitcnt vmcnt({(16 if wdp == 1 else 0) + (2 if opos == 1 else 0)})")
        A("L_selwait:")
        self.poll("sel", sl, [f"v_max3_u32 {v(vT + 6)}, {v(K)}, {v(K + 1)}, {v(K + 2)}",
                              f"v_max_u32 {v(vT + 6)}, {v(vT + 6)}, {v(K + 3)}",
                              f"v_cmp_eq_u32 vcc, -1, {v(vT + 6)}"])
        self.stamp("sel")
        V2 = [K + 8 + i for i in range(8)]
        for kp in range(4):
            for c in range(8):
                A(f"v_dot2_f32_bf16 {v(V2[c])}, {v(K + kp)}, {v(WGp + 8 * kp + c)}, {v(V2[c]) if kp else 0}")
        self.reduce8(V2, K + 16)
        A(f"ds_write_b32 {v(vF + 1)}, {v(V2[0])}")
        if wdp:
            A(f"s_waitcnt vmcnt({2 if opos == 1 else 0})")
            for l in wdperm:
                A(l)
        A("s_waitcnt lgkmcnt(0)")
        A("s_barrier")
        self.stamp("b7")
        A(f"ds_read_b64 {v(K, 2)}, {v(vF + 2)}")
        A(f"ds_read_b64 {v(K + 2, 2)}, {v(vF + 2)} offset:128")
        A("s_waitcnt lgkmcnt(0)")
        A(f"v_add_f32 {v(K)}, {v(K)}, {v(K + 1)}")
        A(f"v_add_f32 {v(K + 2)}, {v(K + 2)}, {v(K + 3)}")
        A(f"v_cvt_pk_bf16_f32 {v(K + 1)}, {v(K)}, {v(K + 2)}")
        A(f"v_lshlrev_b32 {v(K)}, 16, {v(K + 1)}")
        A(f"v_mul_f32 {v(K + 3)}, {hex(f2u(-L2E))}, {v(K)}")
        A(f"v_exp_f32 {v(K + 3)}, {v(K + 3)}")
        A(f"v_and_b32 {v(K + 2)}, s{sMASK}, {v(K + 1)}")
        A(f"v_add_f32 {v(K + 3)}, 1.0, {v(K + 3)}")
        A(f"v_rcp_f32 {v(K + 3)}, {v(K + 3)}")
        A(f"v_mul_f32 {v(K)}, {v(K)}, {v(K + 3)}")
        A(f"v_cvt_pk_bf16_f32 {v(K)}, {v(K)}, {v(K)}")
        A(f"v_and_b32 {v(K)}, s{sMASK}, {v(K)}")
        A(f"v_mul_f32 {v(K)}, {v(K)}, {v(K + 2)}")
        A(f"v_mov_b32_dpp {v(K + 1)}, {v(K)} quad_perm:[1,1,3,3] row_mask:0xf bank_mask:0xf")
        A(f"v_cvt_pk_bf16_f32 {v(K)}, {v(K)}, {v(K + 1)}")
        for kp in range(8):
            A(f"v_readlane_b32 s{sH + kp}, {v(K)}, {2 * kp}")
        for kp in range(8):
            for c in range(2):
                A(f"v_dot2_f32_bf16 {v(K + 4 + c)}, s{sH + kp}, {v(WDp + 2 * kp + c)}, {v(K + 4 + c) if kp else 0}")
        A(f"global_store_dwordx2 {v(vF + 3)}, {v(K + 4, 2)}, {sp(sWS)} sc1")
        self.stamp("part")
        held = [f"s_cmp_eq_u32 s{sWIN}, s{sBEST}",
                f"s_cselect_b32 s{sCAND}, s{sCAND}, 8" if olate else f"s_cselect_b32 s{sCAND}, 8, s{sCAND}"]
        for i in range(2):
            held += [f"s_cmp_eq_u32 s{sCAND}, {i}"]
            if olate:
                held += [f"s_cselect_b64 vcc, {sp(sE)}, 0", "s_not_b64 exec, vcc"]
            else:
                held += [f"s_cselect_b64 exec, {sp(sE)}, 0"]
            held += [ost[i]]
        held += ["s_mov_b64 exec, -1"]
        gen_st = [f"s_lshl_b32 s{sTMP}, s{sL}, 2",
                  f"s_add_u32 s{sTMP}, s{sTMP}, s{sWAVE}",
                  f"s_cmp_eq_u32 s{sTMP}, 3",
                  "s_cselect_b64 exec, 1, 0",
                  f"v_mov_b32 {v(vT + 4)}, s{sG}",
                  f"v_mov_b32 {v(vT + 5)}, 0",
                  f"global_store_dword {v(vT + 5)}, {v(vT + 4)}, {sp(sWS)} sc1"]
        T = self.tail
        if o.get("fc", 0):
            A("L_noffn:")
            for l in held + gen_st:
                A(l)
        else:
            T("L_noffn:")
            for l in held + gen_st:
                T(l)
            T("s_branch L_fin")
            A(f"s_cmp_lt_u32 s{sPOS}, 8")
            A("s_cbranch_scc0 L_noffn")
            A(f"s_cmp_lt_u32 s{sWAVE}, 2")
            A("s_cbranch_scc0 L_noffn")
            if not olate:
                for l in held:
                    A(l)
            A(f"s_lshl_b32 s{sTMP}, s{sXCD}, 3")
            A(f"s_add_u32 s{sTMP}, s{sTMP}, s{sPOS}")
            A(f"s_lshl_b32 s{sTMP}, s{sTMP}, 1")
            A(f"s_add_u32 s{sTMP}, s{sTMP}, s{sWAVE}")
            A(f"v_lshrrev_b32 {v(vT)}, 5, {v(vLANE)}")
            A(f"v_bfe_u32 {v(vT + 1)}, {v(vLANE)}, 4, 1")
            A(f"v_lshl_add_u32 {v(vT)}, {v(vT + 1)}, 1, {v(vT)}")
            A(f"s_lshl_b32 s{sTMP + 1}, s{sTMP}, 3")
            A(f"v_lshl_add_u32 {v(vT)}, {v(vT)}, 1, s{sTMP + 1}")
            A(f"s_add_u32 s{sT1}, s{sT1}, {W_REG + O_SLOT}")
            A(f"v_add_u32 {v(vT + 1)}, s{sT1}, {v(vT)}")
            xh = [f"global_load_ushort {v(K + 20)}, {v(vT + 1)}, {sp(sWS)} sc1",
                  f"global_load_ushort {v(K + 21)}, {v(vT + 1)}, {sp(sWS)} offset:1024 sc1"]
            for l in xh:
                A(l)
            A(f"s_lshl_b32 s{sTMP + 1}, s{sT0}, 10")
            A(f"v_add_u32 {v(vT)}, s{sTMP + 1}, {v(vT)}")
            A(f"v_min_u32 {v(vT + 2)}, 55, {v(vLANE)}")
            A(f"v_mul_u32_u24 {v(vT + 3)}, 4682, {v(vT + 2)}")
            A(f"v_lshrrev_b32 {v(vT + 3)}, 16, {v(vT + 3)}")
            A(f"v_mad_u32_u24 {v(vT + 2)}, {v(vT + 3)}, 18, {v(vT + 2)}")
            A(f"v_mul_u32_u24 {v(vT + 2)}, {RS}, {v(vT + 2)}")
            A(f"s_lshl_b32 s{sTMP + 1}, s{sTMP}, 4")
            A(f"s_add_u32 s{sTMP + 1}, s{sTMP + 1}, {W_REG + O_PART}")
            A(f"v_add_u32 {v(vT + 2)}, s{sTMP + 1}, {v(vT + 2)}")
            A(f"v_add_u32 {v(vT + 3)}, {128 * RS}, {v(vT + 2)}")
            A(f"s_ashr_i32 s{sTMP + 2}, s{sWIN}, 31")
            A(f"s_not_b32 s{sTMP + 2}, s{sTMP + 2}")
            A(f"s_or_b32 s{sTMP + 2}, s{sTMP + 2}, 0x80000000")
            A(f"s_xor_b32 s{sTMP + 2}, s{sTMP + 2}, s{sWIN}")
            A(f"s_and_b32 s{sTMP + 2}, s{sTMP + 2}, 0xfffff800")
            A(f"s_or_b32 s{sTMP + 2}, s{sTMP + 2}, 0x400")
            A(f"v_cvt_pk_bf16_f32 {v(K + 22)}, s{sTMP + 2}, s{sTMP + 2}")
            A(f"v_and_b32 {v(K + 22)}, s{sMASK}, {v(K + 22)}")
            A(f"v_mul_f32 {v(K + 22)}, {hex(f2u(-L2E))}, {v(K + 22)}")
            A(f"v_exp_f32 {v(K + 22)}, {v(K + 22)}")
            A(f"v_add_f32 {v(K + 22)}, 1.0, {v(K + 22)}")
            A(f"v_rcp_f32 {v(K + 22)}, {v(K + 22)}")
            A(f"v_cvt_pk_bf16_f32 {v(K + 22)}, {v(K + 22)}, {v(K + 22)}")
            A(f"v_and_b32 {v(K + 22)}, s{sMASK}, {v(K + 22)}")
            p4 = o.get("p4", 0)
            if p4 == 0:
                A("s_waitcnt vmcnt(0)")
            if o.get("d4"):
                A(f"s_sleep {o['d4']}")
            self.stamp("partdr")
            pl = [f"global_load_dwordx4 {v(vY, 4)}, {v(vT + 2)}, {sp(sWS)} sc1",
                  f"global_load_dwordx4 {v(vY + 4, 4)}, {v(vT + 3)}, {sp(sWS)} sc1"]
            for l in pl:
                A(l)
            if olate:
                for l in held:
                    A(l)
            if p4:
                A(f"s_waitcnt vmcnt({4 if olate else 2})")
            self.poll("xh", xh, [f"v_max_u32 {v(vT + 6)}, {v(K + 20)}, {v(K + 21)}",
                                 f"v_cmp_eq_u32 vcc, 0xffff, {v(vT + 6)}"])
            A(f"v_lshlrev_b32 {v(K + 20)}, 16, {v(K + 20)}")
            A(f"v_lshlrev_b32 {v(K + 21)}, 16, {v(K + 21)}")
            A(f"s_waitcnt vmcnt({2 if olate else 0})")
            self.poll("part", pl, chk8)
            self.stamp("partld")
            A(f"v_cmp_gt_u32 vcc, 56, {v(vLANE)}")
            A(f"v_pk_add_f32 {v(vY, 2)}, {v(vY, 2)}, {v(vY + 4, 2)}")
            A(f"v_pk_add_f32 {v(vY + 2, 2)}, {v(vY + 2, 2)}, {v(vY + 6, 2)}")
            for c in range(4):
                A(f"v_cndmask_b32 {v(vY + c)}, 0, {v(vY + c)}, vcc")
            A(f"v_permlane32_swap_b32 {v(vY)}, {v(vY + 1)}")
            A(f"v_permlane32_swap_b32 {v(vY + 2)}, {v(vY + 3)}")
            A(f"v_add_f32 {v(vY)}, {v(vY)}, {v(vY + 1)}")
            A(f"v_add_f32 {v(vY + 2)}, {v(vY + 2)}, {v(vY + 3)}")
            A(f"v_permlane16_swap_b32 {v(vY)}, {v(vY + 2)}")
            A(f"v_add_f32 {v(vY)}, {v(vY)}, {v(vY + 2)}")
            for sh in (8, 4, 2, 1):
                A(f"v_add_f32_dpp {v(vY)}, {v(vY)}, {v(vY)} row_ror:{sh} row_mask:0xf bank_mask:0xf")
            y = vY
            A(f"v_cvt_pk_bf16_f32 {v(y)}, {v(y)}, {v(y)}")
            A(f"v_and_b32 {v(y)}, s{sMASK}, {v(y)}")
            A(f"v_mul_f32 {v(y)}, {v(y)}, {v(K + 22)}")
            A(f"v_cvt_pk_bf16_f32 {v(y)}, {v(y)}, {v(y)}")
            A(f"v_and_b32 {v(y)}, s{sMASK}, {v(y)}")
            A(f"v_add_f32 {v(y)}, {v(y)}, {v(K + 20)}")
            A(f"v_cvt_pk_bf16_f32 {v(y)}, {v(y)}, {v(y)}")
            A(f"v_and_b32 {v(y)}, s{sMASK}, {v(y)}")
            A(f"v_add_f32 {v(y)}, {v(y)}, {v(K + 21)}")
            A(f"v_cvt_pk_bf16_f32 {v(y)}, {v(y)}, {v(y)}")
            A("s_mov_b32 exec_lo, 0x00010001")
            A("s_mov_b32 exec_hi, 0x00010001")
            A(f"global_store_short {v(vT)}, {v(y)}, {sp(sOUT)}")
        A("L_fin:")
        self.finish("R")

    def chans(self):
        A = self.A
        o = self.o
        vLANE = 1
        vAA, vBA, vEW, vER, vRA = 4, 12, 13, 14, 15
        vKA0, vKA1, vKB, vPW0, vPW1 = 16, 17, 18, 19, 20
        vP = 24
        vT = 28
        vACC = 40
        vA0, vA1, vB0, vB1 = 72, 104, 136, 168
        K = 72
        A("L_chan:")
        A("v_and_b32 v0, 0xff, v0")
        A(f"s_sub_u32 s{sWAVE}, s{sWAVE}, 4")
        A(f"s_lshl_b32 s{sT0}, s{sL}, 9")
        A(f"v_lshl_add_u32 {v(vT)}, v0, 1, s{sT0}")
        A(f"s_lshl_b32 s{sT1}, s{sL}, 2")
        A("s_waitcnt lgkmcnt(0)")
        self.stamp("karg")
        for k, s in enumerate((sLA, sAI, sCR, sCI)):
            A(f"global_load_ushort {v(vP + k)}, {v(vT)}, {sp(s)}{' nt' if o.get('ntx', 1) else ''}")
        A(f"s_load_dword s{sDT}, {sp(sLDT)}, s{sT1}")
        f2 = o.get("b1b", 1) == 2
        if f2:
            A(f"s_load_dword s{sG}, {sp(sWS)}, 0")
        ntlb = 0
        if o.get("tlb", 0):
            A("v_mov_b32 v2, 0")
            A("s_mov_b64 exec, 1")
            for sb in (sWG, sWU, sWD, sOUT):
                A(f"global_load_dword v3, v2, {sp(sb)}")
                ntlb += 1
            A("s_mov_b64 exec, -1")
        vJ, vGq = vT + 4, vT + 5
        A(f"v_and_b32 {v(vJ)}, 15, {v(vLANE)}")
        A(f"v_lshrrev_b32 {v(vGq)}, 4, {v(vLANE)}")
        A(f"s_lshr_b32 s{sT0}, s{sWAVE}, 1")
        A(f"s_and_b32 s{sT1}, s{sWAVE}, 1")
        A(f"v_and_b32 {v(vT)}, 7, {v(vLANE)}")
        A(f"v_lshlrev_b32 {v(vRA)}, 4, {v(vT)}")
        A(f"v_add_u32 {v(vRA)}, {L_RED1}, {v(vRA)}")
        A(f"s_mul_i32 s{sTMP}, s{sT0}, {PC}")
        A(f"s_lshl_b32 s{sTMP + 1}, s{sT1}, 7")
        A(f"s_add_u32 s{sTMP}, s{sTMP}, s{sTMP + 1}")
        A(f"s_add_u32 s{sTMP}, s{sTMP}, {L_P + 4 * 26}")
        A(f"v_lshlrev_b32 {v(vT)}, 3, {v(vGq)}")
        A(f"v_sub_u32 {v(vT)}, {v(vJ)}, {v(vT)}")
        A(f"v_lshl_add_u32 {v(vAA)}, {v(vT)}, 2, s{sTMP}")
        for m in range(1, 8):
            A(f"v_add_u32 {v(vAA + m)}, {1024 * m}, {v(vAA)}")
        A(f"s_mul_i32 s{sTMP}, s{sT0}, {UC}")
        A(f"s_lshl_b32 s{sTMP + 1}, s{sT1}, 6")
        A(f"s_sub_u32 s{sTMP}, s{sTMP}, s{sTMP + 1}")
        A(f"s_add_u32 s{sTMP}, s{sTMP}, {L_U + 64}")
        A(f"v_lshl_add_u32 {v(vT)}, {v(vJ)}, 1, {v(vGq)}")
        A(f"v_lshl_add_u32 {v(vBA)}, {v(vT)}, 4, s{sTMP}")
        A(f"v_lshl_add_u32 {v(vT)}, {v(vJ)}, 2, {v(vGq)}")
        A(f"v_lshrrev_b32 {v(vT + 1)}, 3, {v(vT)}")
        A(f"v_add_u32 {v(vT)}, {v(vT)}, {v(vT + 1)}")
        A(f"s_mul_i32 s{sTMP}, s{sWAVE}, {8 * TBS}")
        A(f"v_lshl_add_u32 {v(vEW)}, {v(vT)}, 4, s{sTMP}")
        A(f"v_lshrrev_b32 {v(vT + 1)}, 3, {v(vLANE)}")
        A(f"v_add_u32 {v(vT)}, {v(vLANE)}, {v(vT + 1)}")
        A(f"s_mul_i32 s{sTMP}, s{sWAVE}, {2 * TBS}")
        A(f"v_lshl_add_u32 {v(vER)}, {v(vT)}, 4, s{sTMP}")
        KS = o.get("ks", 7)
        for k in range(4):
            A(f"v_mov_b32 {v(vACC + k)}, -1")
        A(f"s_mul_i32 s{sTMP}, s{sL}, {RS}")
        A(f"s_add_u32 s{sTMP}, s{sTMP}, {W_REG + 4096}")
        A(f"v_lshl_add_u32 {v(vACC + 4)}, v0, 4, s{sTMP}")
        A(f"v_add_u32 {v(vACC + 5)}, 8192, {v(vACC + 4)}")
        A(f"v_add_u32 {v(vACC + 6)}, 12288, {v(vACC + 4)}")
        A(f"s_lshl_b32 s{sTMP}, s{sL}, {KS}")
        A(f"s_add_u32 s{sTMP}, s{sTMP}, {W_KEY}")
        A(f"v_lshl_add_u32 {v(22)}, {v(vLANE)}, 4, s{sTMP}")
        ones = v(vACC, 4)
        inits = [f"s_cmp_eq_u32 s{sWAVE}, 0",
                 f"s_cselect_b64 exec, {(1 << ((1 << KS) // 16)) - 1}, 0",
                 f"global_store_dwordx4 {v(22)}, {ones}, {sp(sWS)} sc1",
                 "s_mov_b64 exec, -1",
                 f"global_store_dwordx4 {v(vACC + 5)}, {ones}, {sp(sWS)} offset:-4096 sc1",
                 f"global_store_dwordx4 {v(vACC + 5)}, {ones}, {sp(sWS)} sc1",
                 f"global_store_dwordx4 {v(vACC + 6)}, {ones}, {sp(sWS)} sc1"]
        ninit = 3
        ilate = o.get("ilate", 0)
        if not ilate:
            for l in inits:
                A(l)
        vg, vr = vT, vT + 1
        A(f"v_lshrrev_b32 {v(vg)}, 2, {v(vJ)}")
        A(f"v_and_b32 {v(vr)}, 3, {v(vJ)}")
        A(f"s_cmp_eq_u32 s{sT1}, 0")
        A("s_cbranch_scc0 L_rows_hi")
        A(f"v_mov_b32 {v(vKA0)}, {v(vJ)}")
        A(f"v_lshl_add_u32 {v(vKA1)}, {v(vg)}, 1, {v(vr)}")
        A(f"v_add_u32 {v(vKA1)}, 16, {v(vKA1)}")
        A(f"v_add_u32 {v(vT + 2)}, -4, {v(vJ)}")
        A(f"v_and_b32 {v(vT + 2)}, 15, {v(vT + 2)}")
        A(f"v_cmp_eq_u32 vcc, 3, {v(vr)}")
        A(f"v_cndmask_b32 {v(vKA1)}, {v(vKA1)}, {v(vT + 2)}, vcc")
        A(f"v_lshl_add_u32 {v(vPW0)}, {v(vJ)}, 2, {v(vGq)}")
        A(f"v_lshlrev_b32 {v(vPW0)}, 4, {v(vPW0)}")
        A(f"v_add_u32 {v(vPW1)}, 1024, {v(vPW0)}")
        A("s_branch L_rows_done")
        A("L_rows_hi:")
        A(f"v_lshrrev_b32 {v(vT + 2)}, 1, {v(vg)}")
        A(f"v_lshl_add_u32 {v(vKA0)}, {v(vg)}, 1, {v(vr)}")
        A(f"v_add3_u32 {v(vKA0)}, {v(vKA0)}, {v(vT + 2)}, 25")
        A(f"v_sub_u32 {v(vKA1)}, {v(vJ)}, {v(vg)}")
        A(f"v_add_u32 {v(vKA1)}, 35, {v(vKA1)}")
        A(f"v_lshrrev_b32 {v(vT + 2)}, 1, {v(vGq)}")
        A(f"v_lshl_add_u32 {v(vPW0)}, {v(vT + 2)}, 4, {v(vJ)}")
        A(f"v_and_b32 {v(vT + 2)}, 1, {v(vGq)}")
        A(f"v_lshl_add_u32 {v(vPW0)}, {v(vPW0)}, 1, {v(vT + 2)}")
        A(f"v_lshlrev_b32 {v(vPW0)}, 5, {v(vPW0)}")
        A(f"v_add_u32 {v(vPW0)}, 2048, {v(vPW0)}")
        A(f"v_lshlrev_b32 {v(vPW1)}, 6, {v(vLANE)}")
        A(f"v_add_u32 {v(vPW1)}, 4096, {v(vPW1)}")
        A("L_rows_done:")
        A(f"s_mul_i32 s{sTMP}, s{sT0}, {PC}")
        A(f"s_add_u32 s{sTMP}, s{sTMP}, {L_P + 64}")
        A(f"v_add_u32 {v(vPW0)}, s{sTMP}, {v(vPW0)}")
        A(f"v_add_u32 {v(vPW1)}, s{sTMP}, {v(vPW1)}")
        A(f"s_mul_i32 s{sTMP}, s{sT0}, {TABC}")
        A(f"v_lshl_add_u32 {v(vT + 2)}, {v(vGq)}, 4, s{sTMP}")
        A(f"s_movk_i32 s{sTMP + 1}, {ROWB}")
        A(f"v_mad_u32_u24 {v(vKA0)}, {v(vKA0)}, s{sTMP + 1}, {v(vT + 2)}")
        A(f"v_mad_u32_u24 {v(vKA1)}, {v(vKA1)}, s{sTMP + 1}, {v(vT + 2)}")
        A(f"v_mad_u32_u24 {v(vKB)}, {v(vJ)}, s{sTMP + 1}, {v(vT + 2)}")
        A(f"s_lshl_b32 s{sTMP + 1}, s{sT1}, 8")
        A(f"s_add_u32 m0, s{sTMP}, s{sTMP + 1}")
        A(f"s_mul_i32 s{sTMP}, s{sXCD}, 448")
        A(f"s_and_b32 s{sTMP}, s{sTMP}, 0xffffff80")
        A(f"s_mul_i32 s{sTMP + 1}, s{sPOS}, {16 * 3584}")
        A(f"s_add_u32 s{sTMP}, s{sTMP}, s{sTMP + 1}")
        A(f"v_lshrrev_b32 {v(vT + 2)}, 2, {v(vLANE)}")
        A(f"v_mul_u32_u24 {v(vT + 2)}, 3584, {v(vT + 2)}")
        A(f"v_and_b32 {v(vT + 3)}, 3, {v(vLANE)}")
        A(f"v_lshl_add_u32 {v(vT + 2)}, {v(vT + 3)}, 7, {v(vT + 2)}")
        A(f"v_add_u32 {v(vT + 2)}, s{sTMP}, {v(vT + 2)}")
        A(f"s_mul_i32 s{sTMP}, s{sL}, 7168")
        A(f"s_mul_i32 s{sTMP + 1}, s{sT1}, 3584")
        A(f"s_add_u32 s{sTMP}, s{sTMP}, s{sTMP + 1}")
        A(f"v_min_u32 {v(vT + 3)}, 27, {v(vLANE)}")
        A(f"v_lshl_add_u32 {v(vT + 3)}, {v(vT + 3)}, 7, s{sTMP}")
        A(f"s_cmp_eq_u32 s{sT1}, 0")
        A(f"s_cselect_b64 {sp(sWSEL)}, {sp(sWG)}, {sp(sWU)}")
        A(f"s_cmp_eq_u32 s{sT0}, 0")
        A(f"s_cselect_b64 {sp(sWSEL)}, {sp(sWSEL)}, {sp(sWD)}")
        A("s_cselect_b64 vcc, -1, 0")
        A(f"v_cndmask_b32 {v(21)}, {v(vT + 3)}, {v(vT + 2)}, vcc")
        wpf = f"global_load_dword v3, v21, {sp(sWSEL)}{' nt' if o.get('ntw', 0) else ''}"
        if o.get("wpf", 2) == 2:
            A(wpf)

        L2E = 1.4426950408889634
        l2e_hi = struct.unpack("<f", struct.pack("<f", L2E))[0]
        l2e_lo = L2E - l2e_hi
        a, b = K, K + 2
        A(f"s_mov_b32 s{sE}, {hex(f2u(l2e_hi))}")
        A(f"s_mov_b32 s{sE + 1}, {hex(f2u(l2e_lo))}")
        if o.get("b1b", 1):
            A("s_barrier")
        A(f"s_waitcnt vmcnt({(1 if o.get('wpf', 2) == 2 else 0) + (0 if ilate else ninit) + ntlb}) lgkmcnt(0)")
        self.stamp("par")
        if o.get("prio", 2) == 2:
            A("s_setprio 2")
        if ilate:
            for l in inits:
                A(l)
        if o.get("wpf", 2) == 6:
            A(wpf)
        A(f"s_lshl_b32 s{sTMP}, s{sDT}, 16")
        A(f"s_and_b32 s{sTMP + 1}, s{sDT}, s{sMASK}")
        A(f"s_cmp_lt_u32 s{sWAVE}, 2")
        A(f"s_cselect_b32 s{sDT}, s{sTMP}, s{sTMP + 1}")
        A(f"v_lshlrev_b32 {v(a)}, 16, {v(vP)}")
        A(f"v_mov_b32 {v(a + 1)}, s{sDT}")
        A(f"v_pk_mul_f32 {v(b, 2)}, {v(a, 2)}, {sp(sE)} op_sel_hi:[1,0]")
        A(f"v_pk_fma_f32 {v(b + 2, 2)}, {v(a, 2)}, {sp(sE)}, {v(b, 2)} op_sel_hi:[1,0,1] neg_lo:[0,0,1] neg_hi:[0,0,1]")
        A(f"v_exp_f32 {v(b)}, {v(b)}")
        A(f"v_exp_f32 {v(b + 1)}, {v(b + 1)}")
        A(f"v_pk_fma_f32 {v(b + 2, 2)}, {sp(sE)}, {v(a, 2)}, {v(b + 2, 2)} op_sel:[1,0,0] op_sel_hi:[1,1,1]")
        A(f"v_mul_f32 {v(b + 2)}, {hex(f2u(0.6931471805599453))}, {v(b + 2)}")
        A(f"v_mul_f32 {v(b + 3)}, {hex(f2u(0.6931471805599453))}, {v(b + 3)}")
        A(f"v_pk_fma_f32 {v(b, 2)}, {v(b, 2)}, {v(b + 2, 2)}, {v(b, 2)}")
        A(f"v_cvt_pk_bf16_f32 {v(a)}, {v(b)}, {v(b + 1)}")
        vdt, va2, vph = K + 6, K + 7, K + 8
        A(f"v_and_b32 {v(vdt)}, s{sMASK}, {v(a)}")
        A(f"v_lshlrev_b32 {v(va2)}, 16, {v(a)}")
        A(f"v_lshlrev_b32 {v(vph)}, 16, {v(vP + 1)}")
        A(f"v_mul_f32 {v(va2)}, {v(va2)}, {v(vdt)}")
        A(f"v_mul_f32 {v(vph)}, {v(vph)}, {v(vdt)}")
        A(f"v_mul_f32 {v(va2)}, {hex(f2u(-l2e_hi))}, {v(va2)}")
        A(f"v_mul_f32 {v(vph)}, 0.15915494, {v(vph)}")
        Wp = {p: K + 10 + 2 * p for p in range(1, 17)}
        Zp = {p: K + 42 + 2 * p for p in range(1, 8)}
        G = [K + 58, K + 60]
        TT = [K + 62, K + 64, K + 66, K + 68]
        RR = [K + 70, K + 72, K + 74, K + 76]
        CV = K + 80
        A(f"v_mul_f32 {v(vdt)}, {hex(f2u(2.0 ** 69))}, {v(vdt)}")
        A(f"v_lshlrev_b32 {v(G[0])}, 16, {v(vP + 2)}")
        A(f"v_lshlrev_b32 {v(G[0] + 1)}, 16, {v(vP + 3)}")
        A(f"v_mul_f32 {v(G[0])}, {v(G[0])}, {v(vdt)}")
        A(f"v_mul_f32 {v(G[0] + 1)}, {v(G[0] + 1)}, {v(vdt)}")
        for n, (dst, sc) in enumerate(((Wp[1], 1.0), (Wp[16], 16.0), (Zp[1], 256.0))):
            t = TT[n]
            if sc == 1.0:
                A(f"v_exp_f32 {v(t)}, {v(va2)}")
                A(f"v_fract_f32 {v(t + 1)}, {v(vph)}")
            else:
                A(f"v_mul_f32 {v(t)}, {hex(f2u(sc))}, {v(va2)}")
                A(f"v_mul_f32 {v(t + 1)}, {hex(f2u(sc))}, {v(vph)}")
                A(f"v_exp_f32 {v(t)}, {v(t)}")
                A(f"v_fract_f32 {v(t + 1)}, {v(t + 1)}")
            A(f"v_cos_f32 {v(dst)}, {v(t + 1)}")
            A(f"v_sin_f32 {v(dst + 1)}, {v(t + 1)}")
        for n, dst in enumerate((Wp[1], Wp[16], Zp[1])):
            A(f"v_pk_mul_f32 {v(dst, 2)}, {v(dst, 2)}, {v(TT[n], 2)} op_sel_hi:[1,0]")
        jobs = [(1, Wp[1], None, None, 0), (16, Zp[1], None, None, 0), (47, G[0], None, None, 1)]
        wj = []
        for p in range(2, 16):
            hb = 1 << (p.bit_length() - 1)
            x, y = (p // 2, p // 2) if hb == p else (hb, p - hb)
            wj.append((p, Wp[p], Wp[x], Wp[y], 0))
        gj = [(47 + j, G[j & 1], G[(j - 1) & 1], Wp[16], 1) for j in range(1, 16)]
        zrow = {2: 25, 3: 30, 4: 35, 5: 38, 6: 41, 7: 44}
        zj = []
        for p in range(2, 8):
            hb = 1 << (p.bit_length() - 1)
            x, y = (p // 2, p // 2) if hb == p else (hb, p - hb)
            zj.append((zrow[p], Zp[p], Zp[x], Zp[y], 0))
        tj = [(16 + k, None, Zp[1], Wp[2 * k], 0) for k in range(1, 9)]
        for z in (2, 3):
            tj += [(zrow[z] + k, None, Zp[z], Wp[4 * k], 0) for k in range(1, 5)]
        for z in (4, 5, 6, 7):
            tj += [(zrow[z] + k, None, Zp[z], Wp[8 * k], 0) for k in range(1, 3)]
        first = []
        for i in range(max(len(wj), len(gj), len(zj))):
            for q in (wj, gj, zj):
                if i < len(q):
                    first.append(q[i])
        jobs += first + tj
        A(f"v_mov_b32 {v(CV + 15)}, 0x3f80")
        pend = [(0, CV + 15)]
        slot = 0
        nb = 0
        b1_at = o.get("b1_at", 4)
        batch = o.get("batch", 6)

        def do_b1():
            self.stamp("setup")
            A(f"s_waitcnt vmcnt({1 if (o.get('wpf', 2) == 2 and not ilate) or o.get('wpf', 2) == 6 else 0})")
            self.stamp("idr")
            A("s_barrier")
            self.stamp("b1")
            if o.get("wpf", 2) == 1:
                A(wpf)
        if f2:
            b1_at = -1
            A(f"s_add_u32 s{sG}, s{sG}, 1")
            A(f"s_mul_i32 s{sG}, s{sG}, 0x9e3779b1")
            A(f"s_lshl_b32 s{sTMP}, s{sL}, 7")
            A(f"s_add_u32 s{sTMP}, s{sTMP}, {W_FLAG}")
            A(f"v_lshl_add_u32 {v(23)}, {v(vLANE)}, 4, s{sTMP}")
            for k in range(4):
                A(f"v_mov_b32 {v(vACC + 8 + k)}, s{sG}")
        if b1_at == 0:
            do_b1()
        for n, (row, dst, x, y, conj) in enumerate(jobs):
            if x is not None:
                if dst is None:
                    dst = RR[n & 3]
                for ins in self.cmul(dst, x, y, TT[n & 3]):
                    A(ins)
            A(f"v_cvt_pk_bf16_f32 {v(CV + slot)}, {v(dst)}, {'-' if conj else ''}{v(dst + 1)}")
            pend.append((row, CV + slot))
            slot = (slot + 1) % 15
            if len(pend) >= batch or n == len(jobs) - 1:
                for row_, reg in pend:
                    A(f"ds_write_addtid_b32 {v(reg)} offset:{row_ * ROWB}")
                pend = []
                nb += 1
                if nb == b1_at:
                    do_b1()
        if f2:
            A(f"s_waitcnt vmcnt({1 if (o.get('wpf', 2) == 2 and not ilate) or o.get('wpf', 2) == 6 else 0})")
        A("s_waitcnt lgkmcnt(0)")
        self.stamp("kgen1")
        A("s_barrier")
        if f2:
            A(f"s_cmp_eq_u32 s{sWAVE}, 0")
            A("s_cselect_b64 exec, 0xff, 0")
            A(f"global_store_dwordx4 {v(23)}, {v(vACC + 8, 4)}, {sp(sWS)} sc1")
            A("s_mov_b64 exec, -1")
        if o.get("wpf", 2) == 3:
            A(wpf)
        self.stamp("b2")
        fB, fA0, fA1 = K, K + 32, K + 64
        for s in range(4):
            A(f"ds_read_b128 {v(fB + 4 * s, 4)}, {v(vKB)} offset:{47 * ROWB + 64 * s}")
            A(f"ds_read_b128 {v(fA0 + 4 * s, 4)}, {v(vKA0)} offset:{64 * s}")
            A(f"ds_read_b128 {v(fA1 + 4 * s, 4)}, {v(vKA1)} offset:{64 * s}")
        D0, D1 = vACC, vACC + 4
        for s in range(8):
            s2 = s + 4
            A(f"s_waitcnt lgkmcnt({9 if s2 < 8 else 3 * (7 - s)})")
            c0 = "0" if s == 0 else v(D0, 4)
            c1 = "0" if s == 0 else v(D1, 4)
            A(f"v_mfma_f32_16x16x32_bf16 {v(D0, 4)}, {v(fA0 + 4 * s, 4)}, {v(fB + 4 * s, 4)}, {c0}")
            if s2 < 8:
                A(f"ds_read_b128 {v(fB + 4 * s2, 4)}, {v(vKB)} offset:{47 * ROWB + 64 * s2}")
                A(f"ds_read_b128 {v(fA0 + 4 * s2, 4)}, {v(vKA0)} offset:{64 * s2}")
            A(f"v_mfma_f32_16x16x32_bf16 {v(D1, 4)}, {v(fA1 + 4 * s, 4)}, {v(fB + 4 * s, 4)}, {c1}")
            if s2 < 8:
                A(f"ds_read_b128 {v(fA1 + 4 * s2, 4)}, {v(vKA1)} offset:{64 * s2}")
        E = K + 96
        self.stamp("kmf")
        A(f"s_bitcmp1_b32 s{sWAVE}, 0")
        A(f"v_cmp_eq_u32 vcc, 0, {v(vLANE)}")
        A("s_nop 5")
        A("s_cbranch_scc0 L_exp_lo")
        seq2 = ["aa", "aa", "aa", "ba", "bb", "bb", "cb", "cc"]
        seq3 = ["aa", "aa", "aa", "aa", "aa", "ba", "bb", "bb", "bb", "bb", "cb", "cc", "cc", "cc"]
        ix = {"a": 0, "b": 1, "c": 2}
        for k, s in enumerate(seq3):
            A(f"v_cvt_pk_bf16_f32 {v(E + 8 + k)}, {v(D1 + ix[s[0]])}, {v(D1 + ix[s[1]])}")
        for k, w in enumerate((0, 4, 6, 10)):
            A(f"ds_write_b128 {v(vPW1)}, {v(E + 8 + w, 4)} offset:{16 * k}")
        for k, s in enumerate(seq2):
            A(f"v_cvt_pk_bf16_f32 {v(E + k)}, {v(D0 + ix[s[0]])}, {v(D0 + ix[s[1]])}")
        A(f"ds_write_b128 {v(vPW0)}, {v(E, 4)}")
        A(f"ds_write_b128 {v(vPW0)}, {v(E + 4, 4)} offset:16")
        A("s_branch L_exp_done")
        A("L_exp_lo:")
        A(f"v_mov_b32_dpp {v(D1 + 3)}, {v(D1 + 3)} row_ror:1 row_mask:0x1 bank_mask:0xf")
        A(f"v_cvt_pk_bf16_f32 {v(E + 1)}, {v(D0 + 1)}, {v(D0)}")
        A(f"v_cvt_pk_bf16_f32 {v(E + 2)}, {v(D0 + 2)}, {v(D0 + 1)}")
        A(f"v_cvt_pk_bf16_f32 {v(E + 3)}, {v(D0 + 3)}, {v(D0 + 2)}")
        A(f"v_cndmask_b32 {v(E + 8)}, {v(D1 + 3)}, 0, vcc")
        A(f"v_cndmask_b32 {v(E + 9)}, {v(D1)}, {v(D1 + 3)}, vcc")
        A(f"v_cvt_pk_bf16_f32 {v(E)}, {v(D0)}, {v(E + 8)}")
        A(f"v_cvt_pk_bf16_f32 {v(E + 4)}, {v(D1)}, {v(E + 9)}")
        A(f"v_cvt_pk_bf16_f32 {v(E + 5)}, {v(D1)}, {v(D1)}")
        A(f"v_cvt_pk_bf16_f32 {v(E + 6)}, {v(D1 + 1)}, {v(D1)}")
        A(f"v_cvt_pk_bf16_f32 {v(E + 7)}, {v(D1 + 2)}, {v(D1 + 1)}")
        A(f"ds_write_b128 {v(vPW0)}, {v(E, 4)}")
        A(f"ds_write_b128 {v(vPW1)}, {v(E + 4, 4)}")
        A("L_exp_done:")
        T = self.tail
        A("s_waitcnt lgkmcnt(0)")
        self.stamp("kgen2")
        A("s_barrier")
        self.stamp("b2b")
        if o.get("wpf", 2) == 4:
            A(wpf)

        def rdA(buf, rho, m):
            return [f"ds_read2_b32 {v(buf + 4 * m, 2)}, {v(vAA + m)} offset0:{64 * rho + 6} offset1:{64 * rho + 4}",
                    f"ds_read2_b32 {v(buf + 4 * m + 2, 2)}, {v(vAA + m)} offset0:{64 * rho + 2} offset1:{64 * rho}"]

        def rdB(buf, rho, n):
            return [f"ds_read_b128 {v(buf + 4 * n, 4)}, {v(vBA)} offset:{128 * (3 - rho) + 512 * (7 - n)}"]

        for m in range(8):
            for l in rdA(vA0, 0, m):
                A(l)
        A(f"s_mul_i32 s{sTMP}, s{sL}, {RS}")
        A(f"s_lshl_b32 s{sTMP + 1}, s{sWAVE}, 11")
        A(f"s_add_u32 s{sTMP}, s{sTMP}, s{sTMP + 1}")
        A(f"s_add_u32 s{sTMP}, s{sTMP}, {W_REG + O_X2}")
        A(f"v_lshl_add_u32 {v(vT)}, {v(vLANE)}, 4, s{sTMP}")
        A("s_waitcnt lgkmcnt(0)")
        self.stamp("apre")
        A("s_barrier")
        self.stamp("b3")
        if o.get("wpf", 2) == 5:
            A(wpf)
        if o.get("prio", 2):
            A("s_setprio 2")

        bufA, bufB = [vA0, vA1], [vB0, vB1]
        for n in range(7, -1, -1):
            for l in rdB(vB0, 0, n):
                A(l)
        started = set()
        for rho in range(4):
            a_, b_ = bufA[rho & 1], bufB[rho & 1]
            order = [(n - 7 + tb, tb, n) for n in range(7, -1, -1) for tb in range(7 - n, 8)]
            if rho == 3:
                order = [(n - 7 + tb, tb, n) for tb in range(8) for n in range(7 - tb, 8)]
            fill = []
            if rho + 1 < 4:
                nb_, na_ = bufB[(rho + 1) & 1], bufA[(rho + 1) & 1]
                for m in range(8):
                    fill += rdB(nb_, rho + 1, 7 - m)
                    fill += rdA(na_, rho + 1, m)
            issued = 0
            seen = set()
            done_at = {}
            for i, (m, tb, n) in enumerate(order):
                done_at[tb] = i
            for i, (m, tb, n) in enumerate(order):
                if rho == 0 and n not in seen:
                    A(f"s_waitcnt lgkmcnt({min(15, n + issued)})")
                    seen.add(n)
                elif i == 0:
                    A("s_waitcnt lgkmcnt(0)")
                acc = v(vACC + 4 * tb, 4)
                c = acc if tb in started else "0"
                started.add(tb)
                A(f"v_mfma_f32_16x16x32_bf16 {acc}, {v(a_ + 4 * m, 4)}, {v(b_ + 4 * n, 4)}, {c}")
                if i >= 1 and fill:
                    A(fill.pop(0))
                    issued += 1
                if rho == 3:
                    for t in range(7):
                        if done_at[t] + 8 == i or (i == len(order) - 1 and done_at[t] + 8 > i):
                            A(f"ds_write_b128 {v(vEW)}, {v(vACC + 4 * t, 4)} offset:{t * TBS}")
            assert not fill
        A(f"ds_write_b128 {v(vEW)}, {v(vACC + 28, 4)} offset:{7 * TBS}")
        self.stamp("conv")
        A("s_waitcnt lgkmcnt(0)")
        A("s_barrier")
        for i in range(2):
            for s in range(4):
                A(f"ds_read_b128 {v(K + 16 * i + 4 * s, 4)}, {v(vER)} offset:{s * 8 * TBS + i * TBS}")
        for i in range(2):
            A(f"s_waitcnt lgkmcnt({4 * (1 - i)})")
            b0 = K + 16 * i
            for c in range(2):
                for h in range(2):
                    A(f"v_pk_add_f32 {v(b0 + 8 * c + 2 * h, 2)}, {v(b0 + 8 * c + 2 * h, 2)}, {v(b0 + 8 * c + 4 + 2 * h, 2)}")
            for c in range(2):
                for h in range(2):
                    A(f"v_cvt_pk_bf16_f32 {v(K + 32 + 4 * i + 2 * c + h)}, {v(b0 + 8 * c + 2 * h)}, {v(b0 + 8 * c + 2 * h + 1)}")
            A(f"global_store_dwordx4 {v(vT)}, {v(K + 32 + 4 * i, 4)}, {sp(sWS)} offset:{1024 * i} sc1")
        self.stamp("x2st")
        if o.get("p2", 3) == 0:
            A("s_waitcnt vmcnt(0)")
            self.stamp("x2dr")
        if o.get("p2", 3) in (0, 3):
            A("s_barrier")
        A(f"s_cmp_lt_u32 s{sWAVE}, 2")
        A("s_cbranch_scc0 L_cfin")
        A(f"v_lshlrev_b32 {v(vT + 1)}, {KS}, {v(vLANE)}")
        A(f"v_add_u32 {v(vT + 1)}, {W_KEY}, {v(vT + 1)}")
        for q in range(1, 4):
            A(f"v_add_u32 {v(vT + 8 + q)}, {(64 * q) << KS}, {v(vT + 1)}")
        for q in range(4):
            A(f"s_sub_u32 s{sTMP}, s{sL}, {64 * q}")
            A(f"v_cmp_eq_u32 {sp(sOWNM + 2 * q)}, s{sTMP}, {v(vLANE)}")
        A(f"v_mov_b32 {v(vT + 3)}, {L_REDK}")
        A("s_barrier")
        self.key_calc(K, vRA, vLANE)
        A(f"s_cmp_eq_u32 s{sWAVE}, 0")
        A("s_cbranch_scc0 L_poll")
        A("s_mov_b64 exec, 1")
        A(f"global_store_dword {v(22)}, {v(K + 8)}, {sp(sWS)} sc1")
        self.stamp("key")
        A("s_mov_b64 exec, -1")
        if o.get("pace", 3):
            A("s_barrier")
        A("s_branch L_keyed")
        A("L_poll:")
        k2, kn = vT + 4, vT + 5
        kl = [f"global_load_dword {v(K + q)}, {v(vT + 8 + q) if q else v(vT + 1)}, {sp(sWS)} sc1" for q in range(4)]
        kchk = [f"v_cndmask_b32 {v(K + q)}, {v(K + q)}, {v(K + 8)}, {sp(sOWNM + 2 * q)}" for q in range(4)]
        kchk += [f"v_add_u32 {v(K + 4 + q)}, 1, {v(K + q)}" for q in range(4)]
        kchk += [f"v_min3_u32 {v(kn)}, {v(K + 4)}, {v(K + 5)}, {v(K + 6)}",
                 f"v_max3_u32 {v(k2)}, {v(K + 4)}, {v(K + 5)}, {v(K + 6)}",
                 f"v_min_u32 {v(kn)}, {v(kn)}, {v(K + 7)}",
                 f"v_max_u32 {v(k2)}, {v(k2)}, {v(K + 7)}",
                 f"v_cmp_eq_u32 vcc, 0, {v(kn)}"]

        def wavemax(off):
            w = K + 10
            A(f"v_max_u32_dpp {v(w)}, {v(k2)}, {v(k2)} quad_perm:[1,0,3,2] row_mask:0xf bank_mask:0xf")
            A(f"v_max_u32_dpp {v(w)}, {v(w)}, {v(w)} quad_perm:[2,3,0,1] row_mask:0xf bank_mask:0xf")
            A(f"v_max_u32_dpp {v(w)}, {v(w)}, {v(w)} row_half_mirror row_mask:0xf bank_mask:0xf")
            A(f"v_max_u32_dpp {v(w)}, {v(w)}, {v(w)} row_mirror row_mask:0xf bank_mask:0xf")
            A(f"v_max_u32_dpp {v(w)}, {v(w)}, {v(w)} row_bcast:15 row_mask:0xa bank_mask:0xf")
            A(f"v_max_u32_dpp {v(w)}, {v(w)}, {v(w)} row_bcast:31 row_mask:0xc bank_mask:0xf")
            A(f"v_add_u32 {v(w)}, -1, {v(w)}")
            A("s_mov_b32 exec_lo, 0")
            A("s_brev_b32 exec_hi, 1")
            A(f"ds_write_b32 {v(vT + 3)}, {v(w)} offset:{off}")
            A("s_mov_b64 exec, -1")
            A("s_waitcnt lgkmcnt(0)")
        if o.get("pace", 3):
            A("s_barrier")
        if o.get("d3"):
            A(f"s_sleep {o['d3']}")
        for l in kl:
            A(l)
        A("s_waitcnt vmcnt(0)")
        self.poll("key", kl, kchk)
        self.stamp("keyld")
        wavemax(0)
        A("L_keyed:")
        A("s_barrier")
        if o.get("fc", 0):
            A(f"s_cmp_lt_u32 s{sPOS}, 8")
            A("s_cbranch_scc0 L_cfin")
            A(f"ds_read_b32 {v(K)}, {v(vT + 3)}")
            A("s_waitcnt lgkmcnt(0)")
            A(f"v_readfirstlane_b32 s{sWIN}, {v(K)}")
            A(f"s_andn2_b32 s{sT0}, 2047, s{sWIN}")
            A(f"s_lshr_b32 s{sT1}, s{sT0}, 3")
            A(f"s_mul_i32 s{sT1}, s{sT1}, {RS}")
            vY = K + 32
            chk8 = [f"v_max3_u32 {v(vT + 6)}, {v(vY)}, {v(vY + 1)}, {v(vY + 2)}",
                    f"v_max3_u32 {v(vT + 7)}, {v(vY + 3)}, {v(vY + 4)}, {v(vY + 5)}",
                    f"v_max3_u32 {v(vT + 6)}, {v(vT + 6)}, {v(vY + 6)}, {v(vY + 7)}",
                    f"v_max_u32 {v(vT + 6)}, {v(vT + 6)}, {v(vT + 7)}",
                    f"v_cmp_eq_u32 vcc, -1, {v(vT + 6)}"]
            A(f"s_lshl_b32 s{sTMP}, s{sXCD}, 3")
            A(f"s_add_u32 s{sTMP}, s{sTMP}, s{sPOS}")
            A(f"s_lshl_b32 s{sTMP}, s{sTMP}, 1")
            A(f"s_add_u32 s{sTMP}, s{sTMP}, s{sWAVE}")
            A(f"v_lshrrev_b32 {v(vT)}, 5, {v(vLANE)}")
            A(f"v_bfe_u32 {v(vT + 1)}, {v(vLANE)}, 4, 1")
            A(f"v_lshl_add_u32 {v(vT)}, {v(vT + 1)}, 1, {v(vT)}")
            A(f"s_lshl_b32 s{sTMP + 1}, s{sTMP}, 3")
            A(f"v_lshl_add_u32 {v(vT)}, {v(vT)}, 1, s{sTMP + 1}")
            A(f"s_add_u32 s{sT1}, s{sT1}, {W_REG + O_SLOT}")
            A(f"v_add_u32 {v(vT + 1)}, s{sT1}, {v(vT)}")
            xh = [f"global_load_ushort {v(K + 20)}, {v(vT + 1)}, {sp(sWS)} sc1",
                  f"global_load_ushort {v(K + 21)}, {v(vT + 1)}, {sp(sWS)} offset:1024 sc1"]
            A(f"s_lshl_b32 s{sTMP + 1}, s{sT0}, 10")
            A(f"v_add_u32 {v(vT)}, s{sTMP + 1}, {v(vT)}")
            A(f"v_min_u32 {v(vT + 2)}, 55, {v(vLANE)}")
            A(f"v_mul_u32_u24 {v(vT + 3)}, 4682, {v(vT + 2)}")
            A(f"v_lshrrev_b32 {v(vT + 3)}, 16, {v(vT + 3)}")
            A(f"v_mad_u32_u24 {v(vT + 2)}, {v(vT + 3)}, 18, {v(vT + 2)}")
            A(f"v_mul_u32_u24 {v(vT + 2)}, {RS}, {v(vT + 2)}")
            A(f"s_lshl_b32 s{sTMP + 1}, s{sTMP}, 4")
            A(f"s_add_u32 s{sTMP + 1}, s{sTMP + 1}, {W_REG + O_PART}")
            A(f"v_add_u32 {v(vT + 2)}, s{sTMP + 1}, {v(vT + 2)}")
            A(f"v_add_u32 {v(vT + 3)}, {128 * RS}, {v(vT + 2)}")
            A(f"s_ashr_i32 s{sTMP + 2}, s{sWIN}, 31")
            A(f"s_not_b32 s{sTMP + 2}, s{sTMP + 2}")
            A(f"s_or_b32 s{sTMP + 2}, s{sTMP + 2}, 0x80000000")
            A(f"s_xor_b32 s{sTMP + 2}, s{sTMP + 2}, s{sWIN}")
            A(f"s_and_b32 s{sTMP + 2}, s{sTMP + 2}, 0xfffff800")
            A(f"s_or_b32 s{sTMP + 2}, s{sTMP + 2}, 0x400")
            A(f"v_cvt_pk_bf16_f32 {v(K + 22)}, s{sTMP + 2}, s{sTMP + 2}")
            A(f"v_and_b32 {v(K + 22)}, s{sMASK}, {v(K + 22)}")
            A(f"v_mul_f32 {v(K + 22)}, {hex(f2u(-L2E))}, {v(K + 22)}")
            A(f"v_exp_f32 {v(K + 22)}, {v(K + 22)}")
            A(f"v_add_f32 {v(K + 22)}, 1.0, {v(K + 22)}")
            A(f"v_rcp_f32 {v(K + 22)}, {v(K + 22)}")
            A(f"v_cvt_pk_bf16_f32 {v(K + 22)}, {v(K + 22)}, {v(K + 22)}")
            A(f"v_and_b32 {v(K + 22)}, s{sMASK}, {v(K + 22)}")
            A("s_barrier")
            for l in xh:
                A(l)
            A("s_waitcnt vmcnt(0)")
            self.poll("xh", xh, [f"v_max_u32 {v(vT + 6)}, {v(K + 20)}, {v(K + 21)}",
                                 f"v_cmp_eq_u32 vcc, 0xffff, {v(vT + 6)}"])
            A(f"v_lshlrev_b32 {v(K + 20)}, 16, {v(K + 20)}")
            A(f"v_lshlrev_b32 {v(K + 21)}, 16, {v(K + 21)}")
            if o.get("d4"):
                A(f"s_sleep {o['d4']}")
            self.stamp("partdr")
            pl = [f"global_load_dwordx4 {v(vY, 4)}, {v(vT + 2)}, {sp(sWS)} sc1",
                  f"global_load_dwordx4 {v(vY + 4, 4)}, {v(vT + 3)}, {sp(sWS)} sc1"]
            for l in pl:
                A(l)
            A("s_waitcnt vmcnt(0)")
            self.poll("part", pl, chk8)
            self.stamp("partld")
            A(f"v_cmp_gt_u32 vcc, 56, {v(vLANE)}")
            A(f"v_pk_add_f32 {v(vY, 2)}, {v(vY, 2)}, {v(vY + 4, 2)}")
            A(f"v_pk_add_f32 {v(vY + 2, 2)}, {v(vY + 2, 2)}, {v(vY + 6, 2)}")
            for c in range(4):
                A(f"v_cndmask_b32 {v(vY + c)}, 0, {v(vY + c)}, vcc")
            A(f"v_permlane32_swap_b32 {v(vY)}, {v(vY + 1)}")
            A(f"v_permlane32_swap_b32 {v(vY + 2)}, {v(vY + 3)}")
            A(f"v_add_f32 {v(vY)}, {v(vY)}, {v(vY + 1)}")
            A(f"v_add_f32 {v(vY + 2)}, {v(vY + 2)}, {v(vY + 3)}")
            A(f"v_permlane16_swap_b32 {v(vY)}, {v(vY + 2)}")
            A(f"v_add_f32 {v(vY)}, {v(vY)}, {v(vY + 2)}")
            for sh in (8, 4, 2, 1):
                A(f"v_add_f32_dpp {v(vY)}, {v(vY)}, {v(vY)} row_ror:{sh} row_mask:0xf bank_mask:0xf")
            y = vY
            A(f"v_cvt_pk_bf16_f32 {v(y)}, {v(y)}, {v(y)}")
            A(f"v_and_b32 {v(y)}, s{sMASK}, {v(y)}")
            A(f"v_mul_f32 {v(y)}, {v(y)}, {v(K + 22)}")
            A(f"v_cvt_pk_bf16_f32 {v(y)}, {v(y)}, {v(y)}")
            A(f"v_and_b32 {v(y)}, s{sMASK}, {v(y)}")
            A(f"v_add_f32 {v(y)}, {v(y)}, {v(K + 20)}")
            A(f"v_cvt_pk_bf16_f32 {v(y)}, {v(y)}, {v(y)}")
            A(f"v_and_b32 {v(y)}, s{sMASK}, {v(y)}")
            A(f"v_add_f32 {v(y)}, {v(y)}, {v(K + 21)}")
            A(f"v_cvt_pk_bf16_f32 {v(y)}, {v(y)}, {v(y)}")
            A("s_mov_b32 exec_lo, 0x00010001")
            A("s_mov_b32 exec_hi, 0x00010001")
            A(f"global_store_short {v(vT)}, {v(y)}, {sp(sOUT)}")
        A("L_cfin:")
        self.finish("C")

    def text(self):
        lines = self.build()
        src = open("sequential_preLN__ssm_conv_s4d__moe_arch_mod__prompt.s.ref").read()
        head = [l for l in src.split("\n") if l.startswith(";") and "@launch" not in l]
        head = head[:head.index("; Override launch geometry by editing the next line (default: block=256,")]
        out = head + [f"; @launch grid=(256,1,1) block=(512,1,1) lds={LDS_BYTES}",
                      '.amdgcn_target "amdgcn-amd-amdhsa--gfx950"', ".text", f".globl {KNAME}", ".p2align 8",
                      f".type {KNAME},@function"]
        out += [l if l.endswith(":") else "    " + l for l in lines]
        out += [".section .rodata,\"a\"", ".p2align 6", f".amdhsa_kernel {KNAME}",
                "  .amdhsa_next_free_vgpr 224", "  .amdhsa_next_free_sgpr 102", "  .amdhsa_accum_offset 224",
                "  .amdhsa_group_segment_fixed_size 0", "  .amdhsa_kernarg_size 120", "  .amdhsa_user_sgpr_count 2",
                "  .amdhsa_user_sgpr_kernarg_segment_ptr 1", "  .amdhsa_system_sgpr_workgroup_id_x 1",
                ".end_amdhsa_kernel", ""]
        return "\n".join(out)


if __name__ == "__main__":
    out = sys.argv[1]
    opts = {}
    stamp = False
    for a in sys.argv[2:]:
        if a == "stamp":
            stamp = True
        else:
            k, val = a.split("=")
            opts[k] = val if k in ('pr', 'few') else int(val)
    g = Gen(stamp, opts)
    open(out, "w").write(g.text())
    if g.stamp_on:
        open(out + ".names", "w").write(" ".join(g.allnames["R"]) + "\n" + " ".join(g.allnames["C"]))
    print(g.info, "lds", LDS_BYTES)
```

```python
import sys
import struct
from asmlib import Asm, align8

KNAME = "sequential_preLN__ssm_conv_s4d__moe_arch_mod__prompt_kernel"


def f2u(x):
    return struct.unpack("<I", struct.pack("<f", x))[0]


W_FLAG = 0x1000 + (int(__import__('os').environ.get('WOFF', '0')) << 20)
W_KEY = 0x9000 + (int(__import__('os').environ.get('WOFF', '0')) << 20)
W_FLAG2 = 0x11000 + (int(__import__('os').environ.get('WOFF', '0')) << 20)
import os
WOFF = int(os.environ.get('WOFF', '0')) << 20
W_REG = 0x38000 + WOFF
RS = 20608
O_X1, O_X2, O_SLOT, O_PART = 0, 8192, 16384, 18432
W_STAMP = 0x800000
ROWB = 544
TABC = 63 * ROWB
L_TAB = 0
L_P = 68608
PC = 8256
L_U = L_P + 2 * PC
UC = 4608
L_RED1 = (L_U + 2 * UC + 255) // 256 * 256
L_RED2 = L_RED1 + 256
L_SUMW = L_RED2 + 384
L_REDK = L_SUMW + 16
L_REDF = L_REDK + 16
LDS_BYTES = L_REDF + 256
L_EPI = 0
TBS = 1152
L_TILE = 40960
WST = 272
WTILE = 8 * WST
sX, sLA, sAI, sCR, sCI, sLDT, sD = 4, 6, 8, 10, 12, 14, 16
sWR, sWG, sWU, sWD, sOUT, sDBG, sWS = 20, 22, 24, 26, 28, 30, 32
sL, sPOS, sXCD, sWAVE, sG, sDT, sT0, sT1, sSPIN, sF = 34, 35, 36, 37, 38, 39, 40, 41, 42, 43
sODD = 44
sSELLO, sSELHI, sONES, sMASK = 46, 47, 48, 49
sWSEL = 50
sBEST, sWIN, sRP0, sRP1 = 52, 53, 54, 55
sH = 56
sE = 64
sTMP = 66
sOWN = 71
sCAND = 3
sOWNM = 56
sTAG = 56
sSTAMP = 72


def sp(r):
    return f"s[{r}:{r + 1}]"


def v(r, n=1):
    return f"v{r}" if n == 1 else f"v[{r}:{r + n - 1}]"


class Gen:
    def __init__(self, stamp=False, opts=None):
        self.A = Asm()
        self.tail = Asm()
        self.stamp_on = stamp
        self.nstamp = 0
        self.names = []
        self.o = dict(opts or {})
        self.only = None
        self.few = None
        if "few" in self.o:
            self.few = ["start", "end"] + self.o["few"].split(".")
            self.stamp_on = True
        self.role = "R"
        if "pr" in self.o:
            self.only = tuple(self.o["pr"].split("."))
            self.stamp_on = True
            self.o["probe"] = 1 if self.only[0] == "R" else 101

    def stamp(self, name):
        if not self.stamp_on:
            return
        if self.only and name != "start" and (self.role, name) != self.only:
            return
        if self.few and name not in self.few:
            return
        k = self.nstamp
        self.nstamp += 1
        self.names.append(name)
        assert sSTAMP + k < 100
        self.A(f"s_memtime s[100:101]" if self.o.get("cyc") else f"s_memrealtime s[100:101]")
        self.A("s_waitcnt lgkmcnt(0)")
        self.A(f"s_mov_b32 s{sSTAMP + k}, s100")

    def poll(self, name, loads, check, base_exec="-1", first=True):
        A = self.A
        for c in (check if first else []):
            A(c)
        A(f"s_cbranch_vccnz L_retry_{name}")
        A(f"L_ok_{name}:")
        T = self.tail
        T(f"L_retry_{name}:")
        T(f"s_mov_b32 s{sSPIN}, 0x40000")
        T(f"L_again_{name}:")
        T(f"s_sub_u32 s{sSPIN}, s{sSPIN}, 1")
        T(f"s_cbranch_scc1 L_ok_{name}")
        T("s_mov_b64 exec, vcc")
        for l in loads:
            T(l)
        T("s_waitcnt vmcnt(0)")
        for c in check:
            T(c)
        T(f"s_mov_b64 exec, {base_exec}")
        T(f"s_cbranch_vccnz L_again_{name}")
        T(f"s_branch L_ok_{name}")

    def cmul(self, d, x, y, t):
        return [f"v_pk_mul_f32 {v(t, 2)}, {v(x, 2)}, {v(y, 2)} op_sel:[0,0] op_sel_hi:[0,1]",
                f"v_pk_fma_f32 {v(d, 2)}, {v(x, 2)}, {v(y, 2)}, {v(t, 2)} op_sel:[1,1,0] op_sel_hi:[1,0,1] neg_lo:[1,0,0]"]

    def reduce8(self, V, t):
        A = self.A
        for i in range(4):
            A(f"v_add_f32_dpp {v(V[i])}, {v(V[i])}, {v(V[i])} row_ror:8 row_mask:0xf bank_mask:0x3")
        for i in range(4):
            A(f"v_add_f32_dpp {v(V[i])}, {v(V[i + 4])}, {v(V[i + 4])} row_ror:8 row_mask:0xf bank_mask:0xc")
        for i in range(2):
            A(f"v_add_f32_dpp {v(V[i])}, {v(V[i])}, {v(V[i])} row_shl:4 row_mask:0xf bank_mask:0x5")
        for i in range(2):
            A(f"v_add_f32_dpp {v(V[i])}, {v(V[i + 2])}, {v(V[i + 2])} row_shr:4 row_mask:0xf bank_mask:0xa")
        A(f"v_permlane32_swap_b32 {v(V[0])}, {v(V[1])}")
        A(f"v_add_f32 {v(V[0])}, {v(V[0])}, {v(V[1])}")
        A(f"v_add_f32_dpp {v(V[0])}, {v(V[0])}, {v(V[0])} quad_perm:[2,3,0,1] row_mask:0xf bank_mask:0xf")
        A(f"v_mov_b32 {v(t)}, {v(V[0])}")
        A(f"v_permlane16_swap_b32 {v(V[0])}, {v(t)}")
        A(f"v_add_f32 {v(V[0])}, {v(V[0])}, {v(t)}")

    def row_stats(self, S, Q, negm, rinv, t, scale=None):
        A = self.A
        A(f"v_pk_add_f32 {v(S, 2)}, {v(S, 2)}, {v(S + 2, 2)}")
        A(f"v_pk_add_f32 {v(Q, 2)}, {v(Q, 2)}, {v(Q + 2, 2)}")
        A(f"v_add_f32 {v(S)}, {v(S)}, {v(S + 1)}")
        A(f"v_add_f32 {v(Q)}, {v(Q)}, {v(Q + 1)}")
        A(f"v_mul_f32 {v(S)}, {hex(f2u(1 / 512))}, {v(S)}")
        A(f"v_mul_f32 {v(Q)}, {hex(f2u(1 / 512))}, {v(Q)}")
        A(f"v_fma_f32 {v(Q)}, -{v(S)}, {v(S)}, {v(Q)}")
        A(f"v_max_f32 {v(Q)}, 0, {v(Q)}")
        A(f"v_cvt_pk_bf16_f32 {v(t)}, -{v(S)}, {v(Q)}")
        A(f"v_and_b32 {v(Q)}, s{sMASK}, {v(t)}")
        A(f"v_add_f32 {v(Q)}, {hex(f2u(1e-5))}, {v(Q)}")
        A(f"v_cvt_pk_bf16_f32 {v(Q)}, {v(Q)}, {v(Q)}")
        A(f"v_and_b32 {v(Q)}, s{sMASK}, {v(Q)}")
        A(f"v_sqrt_f32 {v(Q)}, {v(Q)}")
        A(f"v_lshlrev_b32 {v(negm)}, 16, {v(t)}")
        A(f"v_cvt_pk_bf16_f32 {v(Q)}, {v(Q)}, {v(Q)}")
        A(f"v_and_b32 {v(Q)}, s{sMASK}, {v(Q)}")
        if scale:
            A(f"v_mul_f32 {v(Q)}, {hex(f2u(scale))}, {v(Q)}")
        A(f"v_rcp_f32 {v(rinv)}, {v(Q)}")

    def spread(self, val, dst, t):
        A = self.A
        for r in range(4):
            A(f"v_mov_b32_dpp {v(t + r)}, {v(val)} row_newbcast:{4 + r} row_mask:0xf bank_mask:0xf")
        for r in range(4):
            A(f"v_cndmask_b32_dpp {v(dst + r)}, {v(val)}, {v(t + r)}, vcc row_newbcast:{r} row_mask:0xf bank_mask:0xf")

    def key_calc(self, K, vRA, vLANE):
        A = self.A
        A(f"v_mov_b32 {v(K + 14)}, {L_SUMW}")
        A(f"ds_read_b128 {v(K, 4)}, {v(vRA)} offset:{L_RED2 - L_RED1}")
        A(f"ds_read_b128 {v(K + 4, 4)}, {v(vRA)} offset:{L_RED2 - L_RED1 + 128}")
        A(f"ds_read_b128 {v(K + 8, 4)}, {v(vRA)} offset:{L_RED2 - L_RED1 + 256}")
        A(f"ds_read_b32 {v(K + 15)}, {v(K + 14)}")
        A(f"s_lshl_b32 s{sTMP}, s{sL}, 3")
        A(f"s_sub_u32 s{sTMP}, 2047, s{sTMP}")
        A(f"v_and_b32 {v(K + 14)}, 7, {v(vLANE)}")
        A(f"v_sub_u32 {v(K + 14)}, s{sTMP}, {v(K + 14)}")
        A("s_waitcnt lgkmcnt(2)")
        self.row_stats(K, K + 4, K + 12, K + 13, K + 28)
        A("s_waitcnt lgkmcnt(0)")
        A(f"v_pk_add_f32 {v(K + 8, 2)}, {v(K + 8, 2)}, {v(K + 10, 2)}")
        A(f"v_add_f32 {v(K + 8)}, {v(K + 8)}, {v(K + 9)}")
        A(f"v_fmac_f32 {v(K + 8)}, {v(K + 12)}, {v(K + 15)}")
        A(f"v_mul_f32 {v(K + 8)}, {v(K + 8)}, {v(K + 13)}")
        A(f"v_ashrrev_i32 {v(K + 9)}, 31, {v(K + 8)}")
        A(f"v_or_b32 {v(K + 9)}, 0x80000000, {v(K + 9)}")
        A(f"v_xor_b32 {v(K + 8)}, {v(K + 8)}, {v(K + 9)}")
        A(f"v_and_b32 {v(K + 8)}, 0xfffff800, {v(K + 8)}")
        A(f"v_or_b32 {v(K + 8)}, {v(K + 8)}, {v(K + 14)}")
        A(f"v_min_u32 {v(K + 8)}, -2, {v(K + 8)}")
        A(f"v_max_u32_dpp {v(K + 8)}, {v(K + 8)}, {v(K + 8)} quad_perm:[1,0,3,2] row_mask:0xf bank_mask:0xf")
        A(f"v_max_u32_dpp {v(K + 8)}, {v(K + 8)}, {v(K + 8)} quad_perm:[2,3,0,1] row_mask:0xf bank_mask:0xf")
        A(f"v_max_u32_dpp {v(K + 8)}, {v(K + 8)}, {v(K + 8)} row_half_mirror row_mask:0xf bank_mask:0xf")

    def finish(self, role):
        A = self.A
        o = self.o
        if self.stamp_on:
            self.stamp("end")
            self.allnames[role] = self.names
        if self.stamp_on and "probe" in o:
            k = o["probe"]
            if k == 98 and role == "R":
                A(f"s_getreg_b32 s{sTMP}, hwreg(HW_REG_XCC_ID, 0, 4)")
                A(f"s_sub_u32 s{sTMP}, s{sTMP}, s2")
                A(f"s_and_b32 s{sTMP}, s{sTMP}, 7")
                A(f"s_mul_i32 s{sTMP}, s{sTMP}, 1000")
                A(f"s_add_u32 s{sTMP}, s{sTMP}, 2000")
            elif k == 99 and role == "R":
                A("s_memtime s[96:97]")
                A("s_waitcnt lgkmcnt(0)")
                A("s_sub_u32 s96, s96, s98")
                A(f"s_sub_u32 s97, s{sSTAMP + self.nstamp - 1}, s{sSTAMP}")
                A("s_mov_b64 exec, -1")
                A("v_cvt_f32_u32 v2, s96")
                A("v_cvt_f32_u32 v3, s97")
                A("v_rcp_f32 v3, v3")
                A("s_nop 1")
                A("v_mul_f32 v2, v2, v3")
                A("v_mul_f32 v2, 0x43c80000, v2")
                A("v_cvt_u32_f32 v2, v2")
                A("s_nop 1")
                A(f"v_readfirstlane_b32 s{sTMP}, v2")
                A(f"s_add_u32 s{sTMP}, s{sTMP}, 2000")
            elif k < 0 and role == "R":
                A(f"s_mov_b32 s{sTMP}, {-k}")
            elif k >= 0 and (k >= 100) == (role == "C"):
                A(f"s_sub_u32 s{sTMP}, s{sSTAMP + k % 100}, s{sSTAMP}")
                A(f"s_cmp_lt_u32 s{sTMP}, 3000")
                A(f"s_cselect_b32 s{sTMP}, s{sTMP}, 0")
                A(f"s_mul_i32 s{sTMP}, s{sTMP}, 20")
                A(f"s_add_u32 s{sTMP}, s{sTMP}, 2000")
                if role == "C":
                    A(f"s_cmp_eq_u32 s{sWAVE}, 0")
                    A(f"s_cselect_b32 s{sTMP}, s{sTMP}, 0")
            else:
                A(f"s_mov_b32 s{sTMP}, 0")
            A(f"L_spin{role}:")
            A("s_memrealtime s[100:101]")
            A("s_waitcnt lgkmcnt(0)")
            A(f"s_sub_u32 s100, s100, s{sSTAMP}")
            A(f"s_cmp_lt_u32 s100, s{sTMP}")
            A(f"s_cbranch_scc1 L_spin{role}")
        elif self.stamp_on:
            A("s_mov_b64 exec, 1")
            A(f"s_lshl_b32 s{sTMP}, s2, 3")
            A(f"s_add_u32 s{sTMP}, s{sTMP}, s{sWAVE}")
            if role == "C":
                A(f"s_add_u32 s{sTMP}, s{sTMP}, 4")
            A(f"s_lshl_b32 s{sTMP}, s{sTMP}, 7")
            A(f"s_add_u32 s{sTMP}, s{sTMP}, {W_STAMP}")
            A(f"v_mov_b32 v1, s{sTMP}")
            for k in range(self.nstamp):
                A(f"v_mov_b32 v2, s{sSTAMP + k}")
                A(f"global_store_dword v1, v2, {sp(sWS)} offset:{4 * k}")
        A("s_endpgm")

    def build(self):
        A = self.A
        self.allnames = {}
        A(f"{KNAME}:")
        A("s_cmp_ge_u32 s2, 256")
        A("s_cbranch_scc1 L_end")
        self.stamp("start")
        if self.o.get("probe", 0) == 99:
            A("s_memtime s[98:99]")
        cpf = self.o.get("codepf", 1)
        if cpf == 1:
            A(f"s_getpc_b64 {sp(sE)}")
            A("L_pc:")
            A("v_lshlrev_b32 v2, 5, v0")
            A(f"v_min_u32 v2, L_codeend-L_pc-4, v2")
            A(f"global_load_dword v3, v2, {sp(sE)}")
        elif cpf >= 2:
            A(f"s_getpc_b64 {sp(sE)}")
            A("L_pc:")
            A(f"s_bfe_u32 s3, s2, {3 | ((7 - cpf) << 16)}")
            A(f"s_lshl_b32 s3, s3, {7 + cpf}")
            A("v_lshl_add_u32 v2, v0, 7, s3")
            A(f"v_min_u32 v2, L_codeend-L_pc-4, v2")
            A(f"v_cmp_gt_u32 vcc, {1 << cpf}, v0")
            A("s_mov_b64 exec, vcc")
            A(f"global_load_dword v3, v2, {sp(sE)}")
            A("s_mov_b64 exec, -1")
        A("s_load_dwordx16 s[4:19], s[0:1], 0")
        A("s_load_dwordx8 s[20:27], s[0:1], 64")
        A("s_load_dwordx4 s[28:31], s[0:1], 96")
        A("s_load_dwordx2 s[32:33], s[0:1], 112")
        A("v_lshrrev_b32 v4, 6, v0")
        A(f"s_and_b32 s{sXCD}, s2, 7")
        A(f"v_readfirstlane_b32 s{sWAVE}, v4")
        A(f"s_lshr_b32 s{sPOS}, s2, 3")
        A(f"s_lshl_b32 s{sL}, s{sXCD}, 5")
        A(f"s_add_u32 s{sL}, s{sL}, s{sPOS}")
        A("v_and_b32 v1, 63, v0")
        A(f"s_mov_b32 s{sMASK}, 0xffff0000")
        pre = self.o.get("pre", 0)
        if pre:
            A("s_waitcnt lgkmcnt(0)")
            n = pre % 10
            kind = pre // 10
            A(f"s_mul_i32 s{sT0}, s{sL}, {n * 4096 + 128}")
            A(f"s_add_u32 s{sT0}, s{sT0}, {32 << 20}")
            A("v_and_b32 v5, 0xff, v0")
            A(f"v_lshl_add_u32 v5, v5, 4, s{sT0}")
            A(f"s_cmp_ge_u32 s{sWAVE}, 4")
            A("s_cbranch_scc1 L_pre")
            if kind in (2, 3):
                A("s_mov_b64 exec, 1")
                A(f"global_load_dword v8, v5, {sp(sWS)}")
                A("s_mov_b64 exec, -1")
                A("s_waitcnt vmcnt(0)")
                if kind == 3:
                    self.nstamp = 0
                    self.names = []
                    self.stamp("start")
            if kind in (8, 9, 10, 11):
                A("v_lshrrev_b32 v12, 1, v0")
                A("v_and_b32 v13, 1, v0")
                A("v_lshlrev_b32 v12, 3, v12")
                A(f"s_lshl_b32 s{sT0}, s{sL}, 13")
                A("v_lshl_add_u32 v14, v13, 12, v12")
                A(f"v_add_u32 v14, s{sT0}, v14")
                for r in range(4):
                    A(f"global_load_dwordx2 v[{16 + 2 * r}:{17 + 2 * r}], v14, s[18:19] offset:{1024 * r}{' nt' if kind != 10 else ''}")
                ny = 0
                if kind in (9, 11):
                    A(f"global_load_dwordx2 v[24:25], v12, {sp(sD)}")
                    A(f"global_load_dwordx2 v[26:27], v12, {sp(sWR)}")
                    A("v_lshlrev_b32 v13, 4, v1")
                    A(f"global_load_dwordx4 v[28:31], v13, {sp(sWR)}")
                    ny = 3
                if kind == 11:
                    A(f"s_load_dword s{sG}, {sp(sWS)}, 0")
                for k in range(n):
                    A(f"global_store_dwordx4 v5, v[8:11], {sp(sWS)} sc1")
                    A("v_add_u32 v5, 4096, v5")
                A(f"s_waitcnt vmcnt({n + ny})")
                self.stamp("pre")
                n = 0
            for k in range(n):
                if kind == 1:
                    A(f"global_load_dwordx4 v[8:11], v5, {sp(sWS)}")
                elif kind == 6:
                    if k == 0:
                        A(f"s_lshl_b32 s{sT0}, s{sL}, 7")
                        A(f"v_mov_b32 v6, s{sT0}")
                        A("s_mov_b64 exec, 1")
                    A(f"global_load_dword v{8 + k}, v6, {sp((sX, sLA, sAI, sCR, sCI, sWG, sWU, sWD, sOUT)[k])}")
                    if k == n - 1:
                        A("s_mov_b64 exec, -1")
                elif kind == 7:
                    if k == 0:
                        A(f"v_lshlrev_b32 v6, 3, v1")
                    A(f"global_load_dwordx2 v[{8 + 2 * k}:{9 + 2 * k}], v6, {sp((sD, sWR)[k])}")
                elif kind == 5:
                    A(f"global_load_dwordx4 v[8:11], v5, {sp(sWS)} nt")
                elif kind == 4:
                    A(f"global_store_dwordx4 v5, v[8:11], {sp(sWS)}")
                else:
                    A(f"global_store_dwordx4 v5, v[8:11], {sp(sWS)} sc1")
                A("v_add_u32 v5, 4096, v5")
            A("s_waitcnt vmcnt(0)")
            if kind < 8:
                self.stamp("pre")
            A("L_pre:")
            A("s_barrier")
        A(f"s_cmp_ge_u32 s{sWAVE}, 4")
        A("s_cbranch_scc1 L_chan")
        self.rows()
        self.names = self.names[:1]
        self.nstamp = min(self.nstamp, 1)
        A(".p2align 6")
        self.role = "C"
        self.chans()
        A("L_end:")
        A("s_endpgm")
        for l in self.tail.L:
            A(l)
        A("L_codeend:")
        lines, nops = A.padded()
        lines, nbytes, promoted, missed = align8(lines)
        self.info = dict(nops=nops, bytes=nbytes, promoted=promoted, missed=missed, lines=len(lines))
        return lines

    def rows(self):
        A = self.A
        o = self.o
        vLANE = 1
        vX, vU, vD, vWR = 212, 10, 18, 20
        vREG, vRD, vAUX = 22, 23, 24
        vKEY, vSW, vRA, vFL, vUW = 26, 27, 28, 29, 30
        vT = 32
        vWG, vWD = 40, 72
        vY = 88
        vONE = 96
        K = 100
        L2E = 1.4426950408889634
        A(f"v_lshrrev_b32 {v(vT)}, 1, v0")
        A(f"v_and_b32 {v(vT + 1)}, 1, v0")
        A(f"v_lshlrev_b32 {v(vT + 2)}, 3, {v(vT)}")
        A(f"s_lshl_b32 s{sT0}, s{sL}, 13")
        A(f"v_lshl_add_u32 {v(vRD)}, {v(vT + 1)}, 12, {v(vT + 2)}")
        A(f"v_add_u32 {v(vRD)}, s{sT0}, {v(vRD)}")
        A(f"s_mul_i32 s{sOWN}, s{sL}, {RS}")
        A(f"s_add_u32 s{sOWN}, s{sOWN}, {W_REG}")
        A(f"s_add_u32 s{sT0}, s{sOWN}, 4096")
        A(f"v_lshl_add_u32 {v(vREG)}, v0, 4, s{sT0}")
        A(f"v_lshlrev_b32 {v(vT + 3)}, 4, {v(vLANE)}")
        nt = ' nt' if o.get('ntx', 1) else ''
        A("s_waitcnt lgkmcnt(0)")
        self.stamp("karg")
        for r in range(4):
            A(f"global_load_dwordx2 {v(vX + 2 * r, 2)}, {v(vRD)}, {sp(sX)} offset:{1024 * r}{nt}")
        A(f"s_load_dword s{sG}, {sp(sWS)}, 0")
        A(f"global_load_dwordx2 {v(vD, 2)}, {v(vT + 2)}, {sp(sD)}")
        A(f"global_load_dwordx2 {v(vWR, 2)}, {v(vT + 2)}, {sp(sWR)}")
        A(f"global_load_dwordx4 {v(vONE, 4)}, {v(vT + 3)}, {sp(sWR)}")
        A(f"s_mov_b32 s{sODD}, 0xaaaaaaaa")
        A(f"s_mov_b32 s{sODD + 1}, 0xaaaaaaaa")
        A(f"s_mov_b32 s{sSELLO}, 0x3f80")
        A(f"s_mov_b32 s{sSELHI}, 0x3f800000")
        A(f"s_mov_b32 s{sONES}, 0x3f803f80")
        A(f"s_and_b32 s{sTMP}, s{sL}, 1")
        A(f"s_lshl_b32 s{sTMP}, s{sTMP}, 12")
        A(f"s_lshr_b32 s{sTMP + 1}, s{sL}, 1")
        A(f"s_lshl_b32 s{sTMP + 1}, s{sTMP + 1}, 5")
        A(f"s_add_u32 s{sTMP}, s{sTMP}, s{sTMP + 1}")
        A(f"s_add_u32 s{sTMP}, s{sTMP}, {W_REG + O_X1}")
        A(f"v_mul_u32_u24 {v(vAUX)}, {RS}, {v(vT)}")
        A(f"v_lshl_add_u32 {v(vAUX)}, {v(vT + 1)}, 4, {v(vAUX)}")
        A(f"v_add_u32 {v(vAUX)}, s{sTMP}, {v(vAUX)}")
        A(f"v_add_u32 {v(vAUX + 1)}, {128 * RS}, {v(vAUX)}")
        FS = o.get("fs", 7)
        KS = o.get("ks", 7)
        A(f"v_lshlrev_b32 {v(vSW)}, 6, {v(vT + 1)}")
        A(f"v_and_b32 {v(vT + 3)}, 4, {v(vLANE)}")
        A(f"v_lshl_add_u32 {v(vSW)}, {v(vT + 3)}, 3, {v(vSW)}")
        A(f"v_and_b32 {v(vT + 3)}, 8, {v(vLANE)}")
        A(f"v_lshl_add_u32 {v(vSW)}, {v(vT + 3)}, 4, {v(vSW)}")
        A(f"v_lshrrev_b32 {v(vT + 3)}, 5, {v(vLANE)}")
        A(f"v_lshl_add_u32 {v(vSW)}, {v(vT + 3)}, 4, {v(vSW)}")
        A(f"s_lshl_b32 s{sTMP}, s{sWAVE}, 2")
        A(f"s_add_u32 s{sTMP}, s{sTMP}, {L_RED1}")
        A(f"v_add_u32 {v(vSW)}, s{sTMP}, {v(vSW)}")
        A(f"v_and_b32 {v(vT + 3)}, 7, {v(vLANE)}")
        A(f"v_lshlrev_b32 {v(vRA)}, 4, {v(vT + 3)}")
        A(f"v_add_u32 {v(vRA)}, {L_RED1}, {v(vRA)}")
        A(f"v_lshlrev_b32 {v(vUW)}, 3, v0")
        A(f"v_mov_b32 {v(vFL)}, 0x9fff9fff")
        A(f"v_mov_b32 {v(K)}, 0")
        A(f"v_mov_b32 {v(K + 1)}, 0")
        A(f"v_min_u32 {v(vT + 3)}, 472, {v(vUW)}")
        A(f"v_add_u32 {v(vT + 3)}, {L_U}, {v(vT + 3)}")
        A(f"v_min_u32 {v(vT + 4)}, 56, {v(vUW)}")
        A(f"v_add_u32 {v(vT + 4)}, {L_P}, {v(vT + 4)}")
        A(f"ds_write2st64_b64 {v(vT + 3)}, {v(K, 2)}, {v(K, 2)} offset0:0 offset1:9")
        A(f"ds_write_b64 {v(vT + 4)}, {v(K, 2)}")
        A(f"ds_write_b64 {v(vT + 4)}, {v(K, 2)} offset:{PC}")
        A(f"v_add_u32 {v(vUW)}, {L_U + 480}, {v(vUW)}")

        V = [K + i for i in range(8)]
        A("s_waitcnt vmcnt(3)")
        self.stamp("x")
        for r in range(4):
            A(f"v_dot2_f32_bf16 {v(V[r])}, {v(vX + 2 * r)}, s{sONES}, 0")
        for r in range(4):
            A(f"v_dot2_f32_bf16 {v(V[4 + r])}, {v(vX + 2 * r)}, {v(vX + 2 * r)}, 0")
        for r in range(4):
            A(f"v_dot2_f32_bf16 {v(V[r])}, {v(vX + 2 * r + 1)}, s{sONES}, {v(V[r])}")
        for r in range(4):
            A(f"v_dot2_f32_bf16 {v(V[4 + r])}, {v(vX + 2 * r + 1)}, {v(vX + 2 * r + 1)}, {v(V[4 + r])}")
        self.reduce8(V, K + 8)
        A(f"ds_write_b32 {v(vSW)}, {v(V[0])}")
        A("s_waitcnt lgkmcnt(0)")
        A("s_barrier")
        self.stamp("b1")
        A(f"ds_read_b128 {v(K, 4)}, {v(vRA)}")
        A(f"ds_read_b128 {v(K + 4, 4)}, {v(vRA)} offset:128")
        A(f"s_add_u32 s{sG}, s{sG}, 1")
        for k in range(4):
            A(f"s_add_u32 s{sTAG + k}, s{sG}, {5 * k}")
            A(f"s_and_b32 s{sTAG + k}, s{sTAG + k}, 15")
            A(f"s_mul_i32 s{sTAG + k}, s{sTAG + k}, 0x08002000")
            A(f"s_and_b32 s{sTAG + k}, s{sTAG + k}, 0x60006000")
        A(f"s_mov_b64 vcc, {sp(sODD)}")
        A("s_waitcnt lgkmcnt(0)")
        vNM, vRI = K + 16, K + 20
        self.row_stats(K, K + 4, K + 10, K + 11, K + 12, 2.0 ** 68)
        self.spread(K + 10, vNM, K + 24)
        Dd = K + 32
        for c in range(4):
            for r in range(4):
                A(f"v_dot2_f32_bf16 {v(Dd + 4 * c + r)}, {v(vX + 2 * r + (c >> 1))}, s{sSELHI if c & 1 else sSELLO}, {v(vNM + r)}")
        self.spread(K + 11, vRI, K + 24)
        Pk = K + 48
        for half in range(2):
            ks = range(4 * half, 4 * half + 4)
            if o.get("mid1", 1):
                for k in ks:
                    A(f"v_cvt_pk_bf16_f32 {v(Pk + k)}, {v(Dd + 2 * k)}, {v(Dd + 2 * k + 1)}")
                for k in ks:
                    A(f"v_lshlrev_b32 {v(Dd + 2 * k)}, 16, {v(Pk + k)}")
                    A(f"v_and_b32 {v(Dd + 2 * k + 1)}, s{sMASK}, {v(Pk + k)}")
            for k in ks:
                A(f"v_pk_mul_f32 {v(Dd + 2 * k, 2)}, {v(Dd + 2 * k, 2)}, {v(vRI + 2 * (k & 1), 2)}")
            for k in ks:
                A(f"v_cvt_pk_bf16_f32 {v(vU + k)}, {v(Dd + 2 * k)}, {v(Dd + 2 * k + 1)}")
            for k in ks:
                A(f"v_and_or_b32 {v(Pk + k)}, {v(vU + k)}, {v(vFL)}, s{sTAG + (k & 3)}")
            if half == 0 and o.get("b1b", 1) == 1:
                A("s_barrier")
            A(f"global_store_dwordx4 {v(vREG)}, {v(Pk + 4 * half, 4)}, {sp(sWS)} offset:{-4096 + 4096 * half} sc1")
        self.stamp("x1st")
        b2pos = o.get("b2pos", 0)
        if b2pos == 0:
            A("s_barrier")
        p1 = o.get("p1", 2)
        if p1 == 0:
            A("s_waitcnt vmcnt(0)")
        else:
            A("s_waitcnt vmcnt(2)")
        self.stamp("x1dr")
        xl = [f"global_load_dwordx4 {v(vY, 4)}, {v(vAUX)}, {sp(sWS)} sc1",
              f"global_load_dwordx4 {v(vY + 4, 4)}, {v(vAUX + 1)}, {sp(sWS)} sc1"]
        if p1 < 2:
            for l in xl:
                A(l)
        if b2pos == 1:
            A("s_barrier")
        if o.get("b2b", 1) and p1 < 2:
            A("s_barrier")
        A(f"s_mul_i32 s{sF}, s{sXCD}, 14")
        A(f"s_add_u32 s{sF}, s{sF}, s{sPOS}")
        A(f"s_bitcmp1_b32 s{sWAVE}, 0")
        A(f"s_cselect_b64 {sp(sWSEL)}, {sp(sWU)}, {sp(sWG)}")
        A(f"s_lshr_b32 s{sTMP + 1}, s{sWAVE}, 1")
        A(f"s_mul_i32 s{sTMP + 1}, s{sTMP + 1}, {256 * 3584}")
        A(f"s_lshl_b32 s{sTMP + 2}, s{sF}, 5")
        A(f"s_add_u32 s{sTMP + 1}, s{sTMP + 1}, s{sTMP + 2}")
        vWA = K + 8
        A(f"v_lshrrev_b32 {v(vWA)}, 1, {v(vLANE)}")
        A(f"v_mul_u32_u24 {v(vWA)}, {8 * 3584}, {v(vWA)}")
        A(f"v_lshl_add_u32 {v(vWA)}, {v(vT + 1)}, 4, {v(vWA)}")
        A(f"v_add_u32 {v(vWA)}, s{sTMP + 1}, {v(vWA)}")
        A(f"v_add_u32 {v(vWA + 2)}, {7 * 3584}, {v(vWA)}")
        A(f"v_add_u32 {v(vWA + 1)}, {4 * 3584}, {v(vWA)}")
        A(f"v_add_u32 {v(vWA)}, 3584, {v(vWA)}")
        A(f"s_lshl_b32 s{sTMP + 1}, s{sF}, 14")
        A(f"s_add_u32 s{sTMP + 1}, s{sTMP + 1}, 4096")
        if o.get("wdp", 0) == 3:
            A(f"s_cmp_lt_u32 s{sPOS}, 14")
            A(f"s_cselect_b32 s{sTMP + 1}, s{sTMP + 1}, 4096")
            A(f"s_cselect_b32 s{sTMP + 2}, 4, 0")
            A(f"v_mul_u32_u24 {v(220)}, s{sTMP + 2}, v0")
            A(f"v_add_u32 {v(220)}, s{sTMP + 1}, {v(220)}")
        else:
            A(f"v_lshl_add_u32 {v(220)}, v0, 2, s{sTMP + 1}")
        A(f"v_add_u32 {v(221)}, 8192, {v(220)}")
        f2 = o.get("b1b", 1) == 2
        if f2:
            A(f"v_and_b32 {v(vFL)}, 0xfe, v0")
            A(f"v_lshlrev_b32 {v(vFL)}, 7, {v(vFL)}")
            A(f"v_add_u32 {v(vFL)}, {W_FLAG}, {v(vFL)}")
            A(f"s_mul_i32 s{sT0}, s{sG}, 0x9e3779b1")
        i2 = o.get("i2", 0)
        if i2:
            A(f"s_lshl_b32 s{sTMP}, s{sWAVE}, 11")
            A(f"s_add_u32 s{sTMP}, s{sTMP}, s{sOWN}")
            A(f"s_add_u32 s{sTMP}, s{sTMP}, {O_X2}")
            A(f"v_lshl_add_u32 {v(vWA + 5)}, {v(vLANE)}, 4, s{sTMP}")
            A(f"v_add_u32 {v(vWA + 6)}, {O_SLOT - 4096}, {v(vREG)}")
            A(f"s_lshl_b32 s{sTMP}, s{sL}, {KS}")
            A(f"s_add_u32 s{sTMP}, s{sTMP}, {W_KEY}")
            A(f"v_lshl_add_u32 {v(vWA + 7)}, {v(vLANE)}, 4, s{sTMP}")
            A(f"s_lshl_b32 s{sTMP}, s{sL}, 2")
            A(f"s_add_u32 s{sTMP}, s{sTMP}, s{sWAVE}")
            A(f"s_lshl_b32 s{sTMP}, s{sTMP}, 7")
            A(f"s_add_u32 s{sTMP}, s{sTMP}, {W_FLAG2}")
            A(f"v_lshl_add_u32 {v(vKEY)}, {v(vLANE)}, 4, s{sTMP}")
            A(f"s_lshr_b32 s{sTMP}, s{sL}, 6")
            A(f"s_lshl_b32 s{sTMP}, s{sTMP}, 7")
            A(f"s_add_u32 s{sTMP}, s{sTMP}, {W_FLAG2}")
            A(f"v_and_b32 {v(vFL)}, 0xfe, v0")
            A(f"v_lshl_add_u32 {v(vFL)}, {v(vFL)}, 9, s{sTMP}")
            for k in range(4):
                A(f"v_mov_b32 {v(K + 32 + k)}, -1")
        A(f"v_dot2_f32_bf16 {v(K + 4)}, {v(vONE)}, s{sONES}, 0")
        for k in range(1, 4):
            A(f"v_dot2_f32_bf16 {v(K + 4)}, {v(vONE + k)}, s{sONES}, {v(K + 4)}")
        A(f"v_mov_b32 {v(K + 5)}, {L_SUMW}")
        A(f"s_mov_b32 s{sRP0}, 0x05040100")
        A(f"s_mov_b32 s{sRP1}, 0x07060302")
        for sh in (8, 4, 2, 1):
            A(f"v_add_f32_dpp {v(K + 4)}, {v(K + 4)}, {v(K + 4)} row_ror:{sh} row_mask:0xf bank_mask:0xf")
        A(f"v_add_f32_dpp {v(K + 4)}, {v(K + 4)}, {v(K + 4)} row_bcast:15 row_mask:0xa bank_mask:0xf")
        A(f"v_add_f32_dpp {v(K + 4)}, {v(K + 4)}, {v(K + 4)} row_bcast:31 row_mask:0xc bank_mask:0xf")
        A("s_mov_b32 exec_lo, 0")
        A("s_brev_b32 exec_hi, 1")
        A(f"ds_write_b32 {v(K + 5)}, {v(K + 4)}")
        A("s_mov_b64 exec, -1")
        if p1 == 2:
            if o.get("d1"):
                A(f"s_sleep {o['d1']}")
            for l in xl:
                A(l)
        if not o.get("b2b", 1) or p1 == 2:
            A("s_barrier")
        A("s_waitcnt vmcnt(0)")
        chk8 = [f"v_max3_u32 {v(vT + 6)}, {v(vY)}, {v(vY + 1)}, {v(vY + 2)}",
                f"v_max3_u32 {v(vT + 7)}, {v(vY + 3)}, {v(vY + 4)}, {v(vY + 5)}",
                f"v_max3_u32 {v(vT + 6)}, {v(vT + 6)}, {v(vY + 6)}, {v(vY + 7)}",
                f"v_max_u32 {v(vT + 6)}, {v(vT + 6)}, {v(vT + 7)}",
                f"v_cmp_eq_u32 vcc, -1, {v(vT + 6)}"]
        Z = K + 32
        tchk = [f"v_xor_b32 {v(Z + k)}, s{sTAG + (k & 3)}, {v(vY + k)}" for k in range(8)]
        tchk += [f"v_or3_b32 {v(vT + 6)}, {v(Z)}, {v(Z + 1)}, {v(Z + 2)}",
                 f"v_or3_b32 {v(vT + 7)}, {v(Z + 3)}, {v(Z + 4)}, {v(Z + 5)}",
                 f"v_or3_b32 {v(vT + 6)}, {v(vT + 6)}, {v(Z + 6)}, {v(Z + 7)}",
                 f"v_or_b32 {v(vT + 6)}, {v(vT + 6)}, {v(vT + 7)}",
                 f"v_and_b32 {v(vT + 6)}, 0x60006000, {v(vT + 6)}",
                 "s_nop 1",
                 f"v_or_b32_dpp {v(vT + 6)}, {v(vT + 6)}, {v(vT + 6)} quad_perm:[1,0,3,2] row_mask:0xf bank_mask:0xf",
                 f"v_cmp_ne_u32 vcc, 0, {v(vT + 6)}"]
        self.poll("x1", xl, tchk)
        self.stamp("x1ld")
        A(f"ds_write2st64_b64 {v(vUW)}, {v(Z, 2)}, {v(Z + 2, 2)} offset0:0 offset1:9")
        A(f"ds_write2st64_b64 {v(vUW)}, {v(Z + 4, 2)}, {v(Z + 6, 2)} offset0:4 offset1:13")
        A("s_waitcnt lgkmcnt(0)")
        A("s_barrier")

        fl2 = [f"global_load_dword {v(vT + 4)}, {v(vFL)}, {sp(sWS)} sc1",
               f"global_load_dword {v(vT + 5)}, {v(vFL)}, {sp(sWS)} offset:512 sc1"]
        wl = [f"global_load_dwordx4 {v(vWG + 4 * k, 4)}, {v(vWA + k // 3)}, {sp(sWSEL)} offset:{(k % 3 - 1) * 3584}" for k in range(8)]
        wdl = [f"global_load_dword {v(vWD + k)}, {v(220 + (k >> 3))}, {sp(sWD)} offset:{((k & 7) - 4) * 1024}" for k in range(16)]
        wdp = o.get("wdp", 0)
        if wdp == 0:
            wl = wl + wdl if o.get("wdpf", 0) != 2 else wdl + wl
        flst = ["s_mov_b64 exec, 0xff",
                f"global_store_dwordx4 {v(vKEY)}, {v(K + 28, 4)}, {sp(sWS)} sc1",
                "s_mov_b64 exec, -1"]
        if i2:
            ones = v(K + 32, 4)
            A(f"s_cmp_eq_u32 s{sWAVE}, 0")
            A(f"s_cselect_b64 exec, {(1 << ((1 << KS) // 16)) - 1}, 0")
            A(f"global_store_dwordx4 {v(vWA + 7)}, {ones}, {sp(sWS)} sc1")
            A("s_mov_b64 exec, -1")
            A(f"global_store_dwordx4 {v(vWA + 5)}, {ones}, {sp(sWS)} sc1")
            A(f"global_store_dwordx4 {v(vWA + 5)}, {ones}, {sp(sWS)} offset:1024 sc1")
            A(f"global_store_dwordx4 {v(vWA + 6)}, {ones}, {sp(sWS)} sc1")
        if i2 == 1:
            A("s_waitcnt vmcnt(0)")
            for l in flst:
                A(l)
            self.stamp("init2")
        fl3 = [f"global_load_dword {v(vT + 4)}, {v(vFL)}, {sp(sWS)} sc1",
               f"global_load_dword {v(vT + 5)}, {v(vFL)}, {sp(sWS)} offset:128 sc1"]
        if f2:
            for l in fl3:
                A(l)
        A(f"s_cmp_lt_u32 s{sPOS}, 14")
        A("s_cbranch_scc0 L_now")
        for l in wl:
            A(l)
        self.stamp("wq2")
        if f2:
            A(f"s_waitcnt vmcnt({len(wl)})")
            A("L_now2:")
            self.tail("L_now:")
            self.tail("s_waitcnt vmcnt(0)")
            self.tail("s_branch L_now2")
            self.poll("flag2", fl3, [f"v_xor_b32 {v(vT + 6)}, s{sT0}, {v(vT + 4)}",
                                     f"v_xor_b32 {v(vT + 7)}, s{sT0}, {v(vT + 5)}",
                                     f"v_or_b32 {v(vT + 6)}, {v(vT + 6)}, {v(vT + 7)}",
                                     f"v_cmp_ne_u32 vcc, 0, {v(vT + 6)}"])
        else:
            A("L_now:")
        if o.get("wdpf", 0) == 3:
            A(f"s_mul_i32 s{sTMP}, s{sL}, 7168")
            A(f"s_mul_i32 s{sTMP + 1}, s{sWAVE}, 1792")
            A(f"s_add_u32 s{sTMP}, s{sTMP}, s{sTMP + 1}")
            A(f"v_min_u32 {v(vT + 4)}, 13, {v(vLANE)}")
            A(f"v_lshl_add_u32 {v(vT + 4)}, {v(vT + 4)}, 7, s{sTMP}")
            A("s_mov_b64 exec, 0xffff")
            A(f"global_load_dword v3, {v(vT + 4)}, {sp(sWD)}")
            A("s_mov_b64 exec, -1")
        shp = o.get("shp", 1)
        if shp == 1:
            A("s_barrier")
        if o.get("p2", 3) == 3:
            A("s_barrier")
        A(f"v_and_b32 {v(vT + 3)}, 0xfe, v0")
        A(f"v_mul_u32_u24 {v(vAUX)}, {RS}, {v(vT + 3)}")
        A(f"v_lshl_add_u32 {v(vAUX)}, {v(vT + 1)}, 4, {v(vAUX)}")
        A(f"s_lshl_b32 s{sTMP}, s{sL}, 5")
        A(f"s_add_u32 s{sTMP}, s{sTMP}, {W_REG + O_X2}")
        A(f"v_add_u32 {v(vAUX)}, s{sTMP}, {v(vAUX)}")
        A(f"v_add_u32 {v(vAUX + 1)}, {RS}, {v(vAUX)}")
        Tt, Xf = K + 40, K + 56
        Df = K + 72
        for k in range(8):
            A(f"v_lshlrev_b32 {v(Tt + 2 * k)}, 16, {v(vU + k)}")
            A(f"v_and_b32 {v(Tt + 2 * k + 1)}, s{sMASK}, {v(vU + k)}")
        A(f"v_lshlrev_b32 {v(Df)}, 16, {v(vD)}")
        A(f"v_and_b32 {v(Df + 1)}, s{sMASK}, {v(vD)}")
        A(f"v_lshlrev_b32 {v(Df + 2)}, 16, {v(vD + 1)}")
        A(f"v_and_b32 {v(Df + 3)}, s{sMASK}, {v(vD + 1)}")
        for k in range(4):
            A(f"v_mul_f32 {v(Df + k)}, {hex(f2u(2.0 ** 68))}, {v(Df + k)}")
        for k in range(8):
            c = k >> 1
            sel = "op_sel:[1,0] op_sel_hi:[1,1]" if c & 1 else "op_sel_hi:[0,1]"
            A(f"v_pk_mul_f32 {v(Tt + 2 * k, 2)}, {v(Df + (c & 2), 2)}, {v(Tt + 2 * k, 2)} {sel}")
        for k in range(8):
            A(f"v_cvt_pk_bf16_f32 {v(Xf + k)}, {v(Tt + 2 * k)}, {v(Tt + 2 * k + 1)}")
        for k in range(8):
            A(f"v_lshlrev_b32 {v(Tt + 2 * k)}, 16, {v(Xf + k)}")
            A(f"v_and_b32 {v(Tt + 2 * k + 1)}, s{sMASK}, {v(Xf + k)}")
        for r in range(4):
            for c in range(4):
                src = v(vX + 2 * r + (c >> 1))
                if c & 1:
                    A(f"v_and_b32 {v(Xf + 4 * c + r)}, s{sMASK}, {src}")
                else:
                    A(f"v_lshlrev_b32 {v(Xf + 4 * c + r)}, 16, {src}")
        if not o.get("mid2", 1):
            for k in range(8):
                A(f"v_pk_add_f32 {v(Xf + 2 * k, 2)}, {v(Xf + 2 * k, 2)}, {v(Tt + 2 * k, 2)}")
        vTW, vTS, vTO, vSL = vUW, vFL, 31, vKEY
        A(f"s_mul_i32 s{sTMP}, s{sWAVE}, {3 * WTILE}")
        A(f"s_add_u32 s{sTMP}, s{sTMP}, {L_TILE}")
        A(f"v_mul_u32_u24 {v(vTW)}, {4 * WST}, {v(vT + 1)}")
        A(f"v_lshrrev_b32 {v(vT + 3)}, 1, {v(vLANE)}")
        A(f"v_lshl_add_u32 {v(vTW)}, {v(vT + 3)}, 3, {v(vTW)}")
        A(f"v_add_u32 {v(vTW)}, s{sTMP}, {v(vTW)}")
        A(f"v_lshrrev_b32 {v(vT + 3)}, 4, {v(vLANE)}")
        A(f"v_and_b32 {v(vT + 4)}, 15, {v(vLANE)}")
        A(f"v_lshl_add_u32 {v(vT + 5)}, {v(vT + 4)}, 4, s{sTMP}")
        A(f"s_movk_i32 s{sTMP}, {WST}")
        A(f"v_mad_u32_u24 {v(vTO)}, {v(vT + 3)}, s{sTMP}, {v(vT + 5)}")
        A(f"s_movk_i32 s{sTMP}, {WTILE}")
        A(f"v_mad_u32_u24 {v(vTS)}, {v(vT + 3)}, s{sTMP}, {v(vT + 5)}")
        A(f"v_lshlrev_b32 {v(vT + 4)}, 4, {v(vT + 4)}")
        A(f"v_lshl_add_u32 {v(vT + 4)}, {v(vT + 3)}, 10, {v(vT + 4)}")
        A(f"s_lshl_b32 s{sTMP}, s{sWAVE}, 8")
        A(f"s_add_u32 s{sTMP + 1}, s{sTMP}, s{sOWN}")
        A(f"s_add_u32 s{sTMP + 1}, s{sTMP + 1}, {O_SLOT}")
        A(f"v_add_u32 {v(vSL)}, s{sTMP + 1}, {v(vT + 4)}")
        A(f"s_lshl_b32 s{sTMP + 1}, s{sL}, 13")
        A(f"s_add_u32 s{sTMP}, s{sTMP}, s{sTMP + 1}")
        A(f"s_add_u32 s{sTMP}, s{sTMP}, 4096")
        A(f"v_add_u32 {v(vRD)}, s{sTMP}, {v(vT + 4)}")
        vF = 4
        A(f"s_lshr_b32 s{sTMP}, s{sWAVE}, 1")
        A(f"s_lshl_b32 s{sTMP}, s{sTMP}, 9")
        A(f"s_add_u32 s{sTMP}, s{sTMP}, {W_REG + O_SLOT}")
        A(f"v_lshrrev_b32 {v(vF)}, 1, {v(vLANE)}")
        A(f"v_lshl_add_u32 {v(vF)}, {v(vF)}, 4, s{sTMP}")
        A(f"v_lshlrev_b32 {v(vF + 1)}, 6, {v(vT + 1)}")
        A(f"v_and_b32 {v(vF + 2)}, 12, {v(vLANE)}")
        A(f"v_lshl_add_u32 {v(vF + 1)}, {v(vF + 2)}, 2, {v(vF + 1)}")
        A(f"v_lshrrev_b32 {v(vF + 2)}, 5, {v(vLANE)}")
        A(f"v_lshl_add_u32 {v(vF + 1)}, {v(vF + 2)}, 3, {v(vF + 1)}")
        A(f"s_and_b32 s{sTMP}, s{sWAVE}, 1")
        A(f"s_lshl_b32 s{sTMP}, s{sTMP}, 7")
        A(f"s_lshr_b32 s{sTMP + 1}, s{sWAVE}, 1")
        A(f"s_lshl_b32 s{sTMP + 1}, s{sTMP + 1}, 2")
        A(f"s_add_u32 s{sTMP}, s{sTMP}, s{sTMP + 1}")
        A(f"s_add_u32 s{sTMP}, s{sTMP}, {L_REDF}")
        A(f"v_add_u32 {v(vF + 1)}, s{sTMP}, {v(vF + 1)}")
        A(f"v_and_b32 {v(vF + 2)}, 15, {v(vLANE)}")
        A(f"v_lshlrev_b32 {v(vF + 2)}, 3, {v(vF + 2)}")
        A(f"v_add_u32 {v(vF + 2)}, {L_REDF}, {v(vF + 2)}")
        A(f"s_add_u32 s{sTMP}, s{sOWN}, {O_PART}")
        A(f"v_lshl_add_u32 {v(vF + 3)}, v0, 3, s{sTMP}")
        A(f"v_mov_b32 {v(8)}, {L_REDK}")
        self.stamp("shadow")
        if shp == 0:
            A("s_barrier")
        if i2:
            for l in fl2:
                A(l)
            A("s_waitcnt vmcnt(0)")
            self.poll("flag2", fl2, flchk)
            self.stamp("flag2")
        p2 = o.get("p2", 3)
        if p2 == 0:
            A("s_barrier")
        self.stamp("b4b")
        if p2 < 2:
            for l in xl:
                A(l)
            A("s_waitcnt vmcnt(2)")
        else:
            A(f"s_waitcnt vmcnt({1 if o.get('wdpf', 0) == 3 else 0})")
        WGp = K + 80
        for kp in range(4):
            for d in range(4):
                lo, hi = vWG + 8 * kp + d, vWG + 8 * kp + 4 + d
                A(f"v_perm_b32 {v(WGp + 8 * kp + 2 * d)}, {v(hi)}, {v(lo)}, s{sRP0}")
                A(f"v_perm_b32 {v(WGp + 8 * kp + 2 * d + 1)}, {v(hi)}, {v(lo)}, s{sRP1}")
        WDp = vWG
        wdperm = []
        for kp in range(8):
            lo, hi = vWD + 2 * kp, vWD + 2 * kp + 1
            wdperm.append(f"v_perm_b32 {v(WDp + 2 * kp)}, {v(hi)}, {v(lo)}, s{sRP0}")
            wdperm.append(f"v_perm_b32 {v(WDp + 2 * kp + 1)}, {v(hi)}, {v(lo)}, s{sRP1}")
        if wdp == 0:
            for l in wdperm:
                A(l)
        if p2 >= 2:
            if o.get("d2"):
                A(f"s_sleep {o['d2']}")
            for l in xl:
                A(l)
        if wdp == 3:
            for l in wdl:
                A(l)
        A(f"s_waitcnt vmcnt({16 if wdp == 3 else 0})")
        self.poll("x2", xl, chk8)
        self.stamp("x2ld")

        if o.get("mid2", 1):
            for k in range(8):
                A(f"v_dot2_f32_bf16 {v(Tt + 2 * k)}, {v(vY + k)}, s{sSELLO}, {v(Tt + 2 * k)}")
                A(f"v_dot2_f32_bf16 {v(Tt + 2 * k + 1)}, {v(vY + k)}, s{sSELHI}, {v(Tt + 2 * k + 1)}")
            for k in range(8):
                A(f"v_cvt_pk_bf16_f32 {v(vY + k)}, {v(Tt + 2 * k)}, {v(Tt + 2 * k + 1)}")
        for k in range(8):
            A(f"v_dot2_f32_bf16 {v(Xf + 2 * k)}, {v(vY + k)}, s{sSELLO}, {v(Xf + 2 * k)}")
            A(f"v_dot2_f32_bf16 {v(Xf + 2 * k + 1)}, {v(vY + k)}, s{sSELHI}, {v(Xf + 2 * k + 1)}")
        vH = vX
        for cp in range(2):
            for r in range(4):
                A(f"v_cvt_pk_bf16_f32 {v(vH + 2 * r + cp)}, {v(Xf + 8 * cp + r)}, {v(Xf + 8 * cp + 4 + r)}")
        Rr = [K + 8 + i for i in range(4)]
        for cp in range(2):
            for r in range(4):
                A(f"v_dot2_f32_bf16 {v(V[r])}, {v(vH + 2 * r + cp)}, s{sONES}, {v(V[r]) if cp else 0}")
            for r in range(4):
                A(f"v_dot2_f32_bf16 {v(V[4 + r])}, {v(vH + 2 * r + cp)}, {v(vH + 2 * r + cp)}, {v(V[4 + r]) if cp else 0}")
            for r in range(4):
                A(f"v_dot2_f32_bf16 {v(Rr[r])}, {v(vH + 2 * r + cp)}, {v(vWR + cp)}, {v(Rr[r]) if cp else 0}")
        for i in range(4):
            A(f"v_add_f32_dpp {v(V[i])}, {v(V[i])}, {v(V[i])} row_ror:8 row_mask:0xf bank_mask:0x3")
        for i in range(4):
            A(f"v_add_f32_dpp {v(V[i])}, {v(V[i + 4])}, {v(V[i + 4])} row_ror:8 row_mask:0xf bank_mask:0xc")
        for i in range(2):
            A(f"v_add_f32_dpp {v(Rr[i])}, {v(Rr[i])}, {v(Rr[i])} row_shl:4 row_mask:0xf bank_mask:0x5")
        for i in range(2):
            A(f"v_add_f32_dpp {v(Rr[i])}, {v(Rr[i + 2])}, {v(Rr[i + 2])} row_shr:4 row_mask:0xf bank_mask:0xa")
        for i in range(2):
            A(f"v_add_f32_dpp {v(V[i])}, {v(V[i])}, {v(V[i])} row_shl:4 row_mask:0xf bank_mask:0x5")
        for i in range(2):
            A(f"v_add_f32_dpp {v(V[i])}, {v(V[i + 2])}, {v(V[i + 2])} row_shr:4 row_mask:0xf bank_mask:0xa")
        A(f"v_permlane32_swap_b32 {v(Rr[0])}, {v(Rr[1])}")
        A(f"v_and_b32 {v(K + 13)}, 0xffffff7f, {v(vSW)}")
        A(f"v_permlane32_swap_b32 {v(V[0])}, {v(V[1])}")
        A(f"v_add_f32 {v(Rr[0])}, {v(Rr[0])}, {v(Rr[1])}")
        A(f"v_add_f32 {v(V[0])}, {v(V[0])}, {v(V[1])}")
        A(f"s_mov_b64 vcc, {sp(sODD)}")
        A(f"v_add_f32_dpp {v(Rr[0])}, {v(Rr[0])}, {v(Rr[0])} row_ror:8 row_mask:0xf bank_mask:0xf")
        A(f"v_add_f32_dpp {v(V[0])}, {v(V[0])}, {v(V[0])} quad_perm:[2,3,0,1] row_mask:0xf bank_mask:0xf")
        A(f"v_mov_b32 {v(V[1])}, {v(V[0])}")
        A(f"v_add_f32_dpp {v(Rr[0])}, {v(Rr[0])}, {v(Rr[0])} quad_perm:[2,3,0,1] row_mask:0xf bank_mask:0xf")
        A(f"v_mov_b32 {v(Rr[1])}, {v(Rr[0])}")
        A(f"v_permlane16_swap_b32 {v(V[0])}, {v(V[1])}")
        A(f"v_add_f32 {v(V[0])}, {v(V[0])}, {v(V[1])}")
        A(f"v_permlane16_swap_b32 {v(Rr[0])}, {v(Rr[1])}")
        A(f"v_add_f32 {v(Rr[0])}, {v(Rr[0])}, {v(Rr[1])}")
        A(f"ds_write_b32 {v(vSW)}, {v(V[0])} offset:{L_RED2 - L_RED1}")
        A(f"ds_write_b32 {v(K + 13)}, {v(Rr[0])} offset:{L_RED2 - L_RED1 + 256}")
        A("s_waitcnt lgkmcnt(0)")
        A("s_barrier")
        self.stamp("b5")
        Hf, Dd = Xf, Tt
        self.key_calc(K, vRA, vLANE)
        for r in range(4):
            A(f"ds_write_b64 {v(vTW)}, {v(vH + 2 * r, 2)} offset:{WTILE + r * WST}")
        self.spread(K + 12, vNM, K + 24)
        A(f"v_readfirstlane_b32 s{sBEST}, {v(K + 8)}")
        for r in range(4):
            for cp in range(2):
                A(f"v_lshlrev_b32 {v(Hf + 4 * r + 2 * cp)}, 16, {v(vH + 2 * r + cp)}")
                A(f"v_and_b32 {v(Hf + 4 * r + 2 * cp + 1)}, s{sMASK}, {v(vH + 2 * r + cp)}")
        self.spread(K + 13, vRI, K + 24)
        for k in range(8):
            r = k >> 1
            sel = "op_sel:[1,0] op_sel_hi:[1,1]" if r & 1 else "op_sel_hi:[0,1]"
            A(f"v_pk_add_f32 {v(Dd + 2 * k, 2)}, {v(vNM + (r & 2), 2)}, {v(Hf + 2 * k, 2)} {sel}")
        vX2 = vU
        if o.get("pace", 3) == 1:
            A("s_barrier")
        for k in range(8):
            A(f"v_cvt_pk_bf16_f32 {v(vX2 + k)}, {v(Dd + 2 * k)}, {v(Dd + 2 * k + 1)}")
        for k in range(8):
            A(f"v_lshlrev_b32 {v(Dd + 2 * k)}, 16, {v(vX2 + k)}")
            A(f"v_and_b32 {v(Dd + 2 * k + 1)}, s{sMASK}, {v(vX2 + k)}")
        for k in range(8):
            r = k >> 1
            sel = "op_sel:[1,0] op_sel_hi:[1,1]" if r & 1 else "op_sel_hi:[0,1]"
            A(f"v_pk_mul_f32 {v(Dd + 2 * k, 2)}, {v(vRI + (r & 2), 2)}, {v(Dd + 2 * k, 2)} {sel}")
        for k in range(8):
            A(f"v_cvt_pk_bf16_f32 {v(vX2 + k)}, {v(Dd + 2 * k)}, {v(Dd + 2 * k + 1)}")
        if o.get("pace", 3) == 2:
            A("s_barrier")
        for r in range(4):
            A(f"ds_write_b64 {v(vTW)}, {v(vX2 + 2 * r, 2)} offset:{r * WST}")
        A(f"s_andn2_b32 s{sTMP}, 7, s{sBEST}")
        A(f"s_mul_i32 s{sTMP + 1}, s{sTMP}, {WST}")
        A(f"v_add_u32 {v(vTS)}, s{sTMP + 1}, {v(vTS)}")
        A(f"ds_read_b128 {v(K + 24, 4)}, {v(vTS)}")
        A(f"s_mov_b32 s{sCAND}, s{sTMP}")
        A("s_mov_b32 exec_hi, 0")
        A("s_waitcnt lgkmcnt(0)")
        A(f"global_store_dwordx4 {v(vSL)}, {v(K + 24, 4)}, {sp(sWS)} sc1")
        A("s_mov_b32 exec_hi, -1")
        self.stamp("slot")
        if o.get("pace", 3) == 3:
            A("s_barrier")
        if wdp == 2:
            A(f"s_cmp_lt_u32 s{sPOS}, 14")
            A("s_cselect_b64 exec, -1, 0")
            for l in wdl:
                A(l)
            A("s_mov_b64 exec, -1")
        vO = vU
        osc = " sc1" if o.get("outsc", 1) == 1 else ""
        olate = o.get("olate", 0)
        ost = [f"global_store_dwordx4 {v(vRD)}, {v(vO + 4 * i, 4)}, {sp(sOUT)} offset:{4096 * i - 4096}{osc}" for i in range(2)]

        def outcode():
            for k in range(8):
                A(f"v_dot2_f32_bf16 {v(Hf + 2 * k)}, {v(vX2 + k)}, s{sSELLO}, {v(Hf + 2 * k)}")
                A(f"v_dot2_f32_bf16 {v(Hf + 2 * k + 1)}, {v(vX2 + k)}, s{sSELHI}, {v(Hf + 2 * k + 1)}")
            for k in range(8):
                A(f"v_cvt_pk_bf16_f32 {v(vY + k)}, {v(Hf + 2 * k)}, {v(Hf + 2 * k + 1)}")
            if o.get("pace", 3) == 5:
                A("s_barrier")
            for r in range(4):
                A(f"ds_write_b64 {v(vTW)}, {v(vY + 2 * r, 2)} offset:{2 * WTILE + r * WST}")
            for i in range(2):
                A(f"ds_read_b128 {v(vO + 4 * i, 4)}, {v(vTO)} offset:{2 * WTILE + 4 * i * WST}")
            A(f"s_and_b32 s{sTMP + 1}, s{sCAND}, 3")
            A(f"s_lshl_b32 s{sTMP + 1}, s{sTMP + 1}, 4")
            A(f"s_mov_b64 {sp(sE)}, 0xffff")
            A(f"s_lshl_b64 {sp(sE)}, {sp(sE)}, s{sTMP + 1}")
            A(f"s_lshr_b32 s{sCAND}, s{sCAND}, 2")
            A("s_waitcnt lgkmcnt(0)")
            if not olate:
                for i in range(2):
                    A(f"s_cmp_eq_u32 s{sCAND}, {i}")
                    A(f"s_cselect_b64 vcc, {sp(sE)}, 0")
                    A("s_not_b64 exec, vcc")
                    A(ost[i])
                A("s_mov_b64 exec, -1")
        opos = o.get("opos", 0)
        if opos == 0:
            outcode()
        if wdp == 3:
            A("s_waitcnt vmcnt(3)")
            for l in wdperm:
                A(l)
        if o.get("pace", 3) == 4:
            A("s_barrier")
        A("s_barrier")
        A(f"ds_read_b32 {v(K)}, {v(8)}")
        A(f"s_cmp_lt_u32 s{sPOS}, 14")
        A("s_cselect_b64 vcc, -1, 0")
        A("s_waitcnt lgkmcnt(0)")
        A(f"v_readfirstlane_b32 s{sWIN}, {v(K)}")
        seladdr = [f"s_andn2_b32 s{sT0}, 2047, s{sWIN}",
                   f"s_lshr_b32 s{sT1}, s{sT0}, 3",
                   f"s_mul_i32 s{sT1}, s{sT1}, {RS}",
                   f"v_add_u32 {v(vT)}, s{sT1}, {v(vF)}"]
        for l in seladdr:
            A(l)
        sl = [f"global_load_dwordx4 {v(K, 4)}, {v(vT)}, {sp(sWS)} sc1"]
        A("s_mov_b64 exec, vcc")
        A(sl[0])
        if wdp == 1:
            for l in wdl:
                A(l)
        A("s_mov_b64 exec, -1")
        self.stamp("win")
        if opos == 1:
            outcode()
        self.stamp("outst")
        A(f"s_cmp_lt_u32 s{sPOS}, 14")
        A("s_cbranch_scc0 L_noffn")
        A(f"s_waitcnt vmcnt({(16 if wdp == 1 else 0) + (2 if opos == 1 else 0)})")
        A("L_selwait:")
        self.poll("sel", sl, [f"v_max3_u32 {v(vT + 6)}, {v(K)}, {v(K + 1)}, {v(K + 2)}",
                              f"v_max_u32 {v(vT + 6)}, {v(vT + 6)}, {v(K + 3)}",
                              f"v_cmp_eq_u32 vcc, -1, {v(vT + 6)}"])
        self.stamp("sel")
        V2 = [K + 8 + i for i in range(8)]
        for kp in range(4):
            for c in range(8):
                A(f"v_dot2_f32_bf16 {v(V2[c])}, {v(K + kp)}, {v(WGp + 8 * kp + c)}, {v(V2[c]) if kp else 0}")
        self.reduce8(V2, K + 16)
        A(f"ds_write_b32 {v(vF + 1)}, {v(V2[0])}")
        if wdp in (1, 2):
            A(f"s_waitcnt vmcnt({2 if opos == 1 else 0})")
            for l in wdperm:
                A(l)
        A("s_waitcnt lgkmcnt(0)")
        A("s_barrier")
        self.stamp("b7")
        A(f"ds_read_b64 {v(K, 2)}, {v(vF + 2)}")
        A(f"ds_read_b64 {v(K + 2, 2)}, {v(vF + 2)} offset:128")
        A("s_waitcnt lgkmcnt(0)")
        A(f"v_add_f32 {v(K)}, {v(K)}, {v(K + 1)}")
        A(f"v_add_f32 {v(K + 2)}, {v(K + 2)}, {v(K + 3)}")
        A(f"v_cvt_pk_bf16_f32 {v(K + 1)}, {v(K)}, {v(K + 2)}")
        A(f"v_lshlrev_b32 {v(K)}, 16, {v(K + 1)}")
        A(f"v_mul_f32 {v(K + 3)}, {hex(f2u(-L2E))}, {v(K)}")
        A(f"v_exp_f32 {v(K + 3)}, {v(K + 3)}")
        A(f"v_and_b32 {v(K + 2)}, s{sMASK}, {v(K + 1)}")
        A(f"v_add_f32 {v(K + 3)}, 1.0, {v(K + 3)}")
        A(f"v_rcp_f32 {v(K + 3)}, {v(K + 3)}")
        A(f"v_mul_f32 {v(K)}, {v(K)}, {v(K + 3)}")
        A(f"v_cvt_pk_bf16_f32 {v(K)}, {v(K)}, {v(K)}")
        A(f"v_and_b32 {v(K)}, s{sMASK}, {v(K)}")
        A(f"v_mul_f32 {v(K)}, {v(K)}, {v(K + 2)}")
        A(f"v_mov_b32_dpp {v(K + 1)}, {v(K)} quad_perm:[1,1,3,3] row_mask:0xf bank_mask:0xf")
        A(f"v_cvt_pk_bf16_f32 {v(K)}, {v(K)}, {v(K + 1)}")
        for kp in range(8):
            A(f"v_readlane_b32 s{sH + kp}, {v(K)}, {2 * kp}")
        for kp in range(8):
            for c in range(2):
                A(f"v_dot2_f32_bf16 {v(K + 4 + c)}, s{sH + kp}, {v(WDp + 2 * kp + c)}, {v(K + 4 + c) if kp else 0}")
        A(f"global_store_dwordx2 {v(vF + 3)}, {v(K + 4, 2)}, {sp(sWS)} sc1")
        self.stamp("part")
        held = [f"s_cmp_eq_u32 s{sWIN}, s{sBEST}",
                f"s_cselect_b32 s{sCAND}, s{sCAND}, 8" if olate else f"s_cselect_b32 s{sCAND}, 8, s{sCAND}"]
        for i in range(2):
            held += [f"s_cmp_eq_u32 s{sCAND}, {i}"]
            if olate:
                held += [f"s_cselect_b64 vcc, {sp(sE)}, 0", "s_not_b64 exec, vcc"]
            else:
                held += [f"s_cselect_b64 exec, {sp(sE)}, 0"]
            held += [ost[i]]
        held += ["s_mov_b64 exec, -1"]
        gen_st = [f"s_lshl_b32 s{sTMP}, s{sL}, 2",
                  f"s_add_u32 s{sTMP}, s{sTMP}, s{sWAVE}",
                  f"s_cmp_eq_u32 s{sTMP}, 3",
                  "s_cselect_b64 exec, 1, 0",
                  f"v_mov_b32 {v(vT + 4)}, s{sG}",
                  f"v_mov_b32 {v(vT + 5)}, 0",
                  f"global_store_dword {v(vT + 5)}, {v(vT + 4)}, {sp(sWS)} sc1"]
        T = self.tail
        if o.get("fc", 0):
            A("L_noffn:")
            for l in held + gen_st:
                A(l)
        else:
            T("L_noffn:")
            for l in held + gen_st:
                T(l)
            T("s_branch L_fin")
            A(f"s_cmp_lt_u32 s{sPOS}, 8")
            A("s_cbranch_scc0 L_noffn")
            A(f"s_cmp_lt_u32 s{sWAVE}, 2")
            A("s_cbranch_scc0 L_noffn")
            if not olate:
                for l in held:
                    A(l)
            A(f"s_lshl_b32 s{sTMP}, s{sXCD}, 3")
            A(f"s_add_u32 s{sTMP}, s{sTMP}, s{sPOS}")
            A(f"s_lshl_b32 s{sTMP}, s{sTMP}, 1")
            A(f"s_add_u32 s{sTMP}, s{sTMP}, s{sWAVE}")
            A(f"v_lshrrev_b32 {v(vT)}, 5, {v(vLANE)}")
            A(f"v_bfe_u32 {v(vT + 1)}, {v(vLANE)}, 4, 1")
            A(f"v_lshl_add_u32 {v(vT)}, {v(vT + 1)}, 1, {v(vT)}")
            A(f"s_lshl_b32 s{sTMP + 1}, s{sTMP}, 3")
            A(f"v_lshl_add_u32 {v(vT)}, {v(vT)}, 1, s{sTMP + 1}")
            A(f"s_add_u32 s{sT1}, s{sT1}, {W_REG + O_SLOT}")
            A(f"v_add_u32 {v(vT + 1)}, s{sT1}, {v(vT)}")
            xh = [f"global_load_ushort {v(K + 20)}, {v(vT + 1)}, {sp(sWS)} sc1",
                  f"global_load_ushort {v(K + 21)}, {v(vT + 1)}, {sp(sWS)} offset:1024 sc1"]
            for l in xh:
                A(l)
            A(f"s_lshl_b32 s{sTMP + 1}, s{sT0}, 10")
            A(f"v_add_u32 {v(vT)}, s{sTMP + 1}, {v(vT)}")
            A(f"v_min_u32 {v(vT + 2)}, 55, {v(vLANE)}")
            A(f"v_mul_u32_u24 {v(vT + 3)}, 4682, {v(vT + 2)}")
            A(f"v_lshrrev_b32 {v(vT + 3)}, 16, {v(vT + 3)}")
            A(f"v_mad_u32_u24 {v(vT + 2)}, {v(vT + 3)}, 18, {v(vT + 2)}")
            A(f"v_mul_u32_u24 {v(vT + 2)}, {RS}, {v(vT + 2)}")
            A(f"s_lshl_b32 s{sTMP + 1}, s{sTMP}, 4")
            A(f"s_add_u32 s{sTMP + 1}, s{sTMP + 1}, {W_REG + O_PART}")
            A(f"v_add_u32 {v(vT + 2)}, s{sTMP + 1}, {v(vT + 2)}")
            A(f"v_add_u32 {v(vT + 3)}, {128 * RS}, {v(vT + 2)}")
            A(f"s_ashr_i32 s{sTMP + 2}, s{sWIN}, 31")
            A(f"s_not_b32 s{sTMP + 2}, s{sTMP + 2}")
            A(f"s_or_b32 s{sTMP + 2}, s{sTMP + 2}, 0x80000000")
            A(f"s_xor_b32 s{sTMP + 2}, s{sTMP + 2}, s{sWIN}")
            A(f"s_and_b32 s{sTMP + 2}, s{sTMP + 2}, 0xfffff800")
            A(f"s_or_b32 s{sTMP + 2}, s{sTMP + 2}, 0x400")
            A(f"v_cvt_pk_bf16_f32 {v(K + 22)}, s{sTMP + 2}, s{sTMP + 2}")
            A(f"v_and_b32 {v(K + 22)}, s{sMASK}, {v(K + 22)}")
            A(f"v_mul_f32 {v(K + 22)}, {hex(f2u(-L2E))}, {v(K + 22)}")
            A(f"v_exp_f32 {v(K + 22)}, {v(K + 22)}")
            A(f"v_add_f32 {v(K + 22)}, 1.0, {v(K + 22)}")
            A(f"v_rcp_f32 {v(K + 22)}, {v(K + 22)}")
            A(f"v_cvt_pk_bf16_f32 {v(K + 22)}, {v(K + 22)}, {v(K + 22)}")
            A(f"v_and_b32 {v(K + 22)}, s{sMASK}, {v(K + 22)}")
            p4 = o.get("p4", 0)
            if p4 == 0:
                A("s_waitcnt vmcnt(0)")
            if o.get("d4"):
                A(f"s_sleep {o['d4']}")
            self.stamp("partdr")
            pl = [f"global_load_dwordx4 {v(vY, 4)}, {v(vT + 2)}, {sp(sWS)} sc1",
                  f"global_load_dwordx4 {v(vY + 4, 4)}, {v(vT + 3)}, {sp(sWS)} sc1"]
            for l in pl:
                A(l)
            if olate:
                for l in held:
                    A(l)
            if p4:
                A(f"s_waitcnt vmcnt({4 if olate else 2})")
            self.poll("xh", xh, [f"v_max_u32 {v(vT + 6)}, {v(K + 20)}, {v(K + 21)}",
                                 f"v_cmp_eq_u32 vcc, 0xffff, {v(vT + 6)}"])
            A(f"v_lshlrev_b32 {v(K + 20)}, 16, {v(K + 20)}")
            A(f"v_lshlrev_b32 {v(K + 21)}, 16, {v(K + 21)}")
            A(f"s_waitcnt vmcnt({2 if olate else 0})")
            self.poll("part", pl, chk8)
            self.stamp("partld")
            A(f"v_cmp_gt_u32 vcc, 56, {v(vLANE)}")
            A(f"v_pk_add_f32 {v(vY, 2)}, {v(vY, 2)}, {v(vY + 4, 2)}")
            A(f"v_pk_add_f32 {v(vY + 2, 2)}, {v(vY + 2, 2)}, {v(vY + 6, 2)}")
            for c in range(4):
                A(f"v_cndmask_b32 {v(vY + c)}, 0, {v(vY + c)}, vcc")
            A(f"v_permlane32_swap_b32 {v(vY)}, {v(vY + 1)}")
            A(f"v_permlane32_swap_b32 {v(vY + 2)}, {v(vY + 3)}")
            A(f"v_add_f32 {v(vY)}, {v(vY)}, {v(vY + 1)}")
            A(f"v_add_f32 {v(vY + 2)}, {v(vY + 2)}, {v(vY + 3)}")
            A(f"v_permlane16_swap_b32 {v(vY)}, {v(vY + 2)}")
            A(f"v_add_f32 {v(vY)}, {v(vY)}, {v(vY + 2)}")
            for sh in (8, 4, 2, 1):
                A(f"v_add_f32_dpp {v(vY)}, {v(vY)}, {v(vY)} row_ror:{sh} row_mask:0xf bank_mask:0xf")
            y = vY
            A(f"v_cvt_pk_bf16_f32 {v(y)}, {v(y)}, {v(y)}")
            A(f"v_and_b32 {v(y)}, s{sMASK}, {v(y)}")
            A(f"v_mul_f32 {v(y)}, {v(y)}, {v(K + 22)}")
            A(f"v_cvt_pk_bf16_f32 {v(y)}, {v(y)}, {v(y)}")
            A(f"v_and_b32 {v(y)}, s{sMASK}, {v(y)}")
            A(f"v_add_f32 {v(y)}, {v(y)}, {v(K + 20)}")
            A(f"v_cvt_pk_bf16_f32 {v(y)}, {v(y)}, {v(y)}")
            A(f"v_and_b32 {v(y)}, s{sMASK}, {v(y)}")
            A(f"v_add_f32 {v(y)}, {v(y)}, {v(K + 21)}")
            A(f"v_cvt_pk_bf16_f32 {v(y)}, {v(y)}, {v(y)}")
            A("s_mov_b32 exec_lo, 0x00010001")
            A("s_mov_b32 exec_hi, 0x00010001")
            A(f"global_store_short {v(vT)}, {v(y)}, {sp(sOUT)}")
        A("L_fin:")
        self.finish("R")

    def chans(self):
        A = self.A
        o = self.o
        vLANE = 1
        vAA, vBA, vEW, vER, vRA = 4, 12, 13, 14, 15
        vKA0, vKA1, vKB, vPW0, vPW1 = 16, 17, 18, 19, 20
        vP = 24
        vT = 28
        vACC = 40
        vA0, vA1, vB0, vB1 = 72, 104, 136, 168
        K = 72
        A("L_chan:")
        A("v_and_b32 v0, 0xff, v0")
        A(f"s_sub_u32 s{sWAVE}, s{sWAVE}, 4")
        A(f"s_lshl_b32 s{sT0}, s{sL}, 9")
        A(f"v_lshl_add_u32 {v(vT)}, v0, 1, s{sT0}")
        A(f"s_lshl_b32 s{sT1}, s{sL}, 2")
        A("s_waitcnt lgkmcnt(0)")
        self.stamp("karg")
        for k, s in enumerate((sLA, sAI, sCR, sCI)):
            A(f"global_load_ushort {v(vP + k)}, {v(vT)}, {sp(s)}{' nt' if o.get('ntx', 1) else ''}")
        A(f"s_load_dword s{sDT}, {sp(sLDT)}, s{sT1}")
        f2 = o.get("b1b", 1) == 2
        if f2:
            A(f"s_load_dword s{sG}, {sp(sWS)}, 0")
        ntlb = 0
        if o.get("tlb", 0):
            A("v_mov_b32 v2, 0")
            A("s_mov_b64 exec, 1")
            for sb in (sWG, sWU, sWD, sOUT):
                A(f"global_load_dword v3, v2, {sp(sb)}")
                ntlb += 1
            A("s_mov_b64 exec, -1")
        vJ, vGq = vT + 4, vT + 5
        A(f"v_and_b32 {v(vJ)}, 15, {v(vLANE)}")
        A(f"v_lshrrev_b32 {v(vGq)}, 4, {v(vLANE)}")
        A(f"s_lshr_b32 s{sT0}, s{sWAVE}, 1")
        A(f"s_and_b32 s{sT1}, s{sWAVE}, 1")
        A(f"v_and_b32 {v(vT)}, 7, {v(vLANE)}")
        A(f"v_lshlrev_b32 {v(vRA)}, 4, {v(vT)}")
        A(f"v_add_u32 {v(vRA)}, {L_RED1}, {v(vRA)}")
        A(f"s_mul_i32 s{sTMP}, s{sT0}, {PC}")
        A(f"s_lshl_b32 s{sTMP + 1}, s{sT1}, 7")
        A(f"s_add_u32 s{sTMP}, s{sTMP}, s{sTMP + 1}")
        A(f"s_add_u32 s{sTMP}, s{sTMP}, {L_P + 4 * 26}")
        A(f"v_lshlrev_b32 {v(vT)}, 3, {v(vGq)}")
        A(f"v_sub_u32 {v(vT)}, {v(vJ)}, {v(vT)}")
        A(f"v_lshl_add_u32 {v(vAA)}, {v(vT)}, 2, s{sTMP}")
        for m in range(1, 8):
            A(f"v_add_u32 {v(vAA + m)}, {1024 * m}, {v(vAA)}")
        A(f"s_mul_i32 s{sTMP}, s{sT0}, {UC}")
        A(f"s_lshl_b32 s{sTMP + 1}, s{sT1}, 6")
        A(f"s_sub_u32 s{sTMP}, s{sTMP}, s{sTMP + 1}")
        A(f"s_add_u32 s{sTMP}, s{sTMP}, {L_U + 64}")
        A(f"v_lshl_add_u32 {v(vT)}, {v(vJ)}, 1, {v(vGq)}")
        A(f"v_lshl_add_u32 {v(vBA)}, {v(vT)}, 4, s{sTMP}")
        A(f"v_lshl_add_u32 {v(vT)}, {v(vJ)}, 2, {v(vGq)}")
        A(f"v_lshrrev_b32 {v(vT + 1)}, 3, {v(vT)}")
        A(f"v_add_u32 {v(vT)}, {v(vT)}, {v(vT + 1)}")
        A(f"s_mul_i32 s{sTMP}, s{sWAVE}, {8 * TBS}")
        A(f"v_lshl_add_u32 {v(vEW)}, {v(vT)}, 4, s{sTMP}")
        A(f"v_lshrrev_b32 {v(vT + 1)}, 3, {v(vLANE)}")
        A(f"v_add_u32 {v(vT)}, {v(vLANE)}, {v(vT + 1)}")
        A(f"s_mul_i32 s{sTMP}, s{sWAVE}, {2 * TBS}")
        A(f"v_lshl_add_u32 {v(vER)}, {v(vT)}, 4, s{sTMP}")
        KS = o.get("ks", 7)
        for k in range(4):
            A(f"v_mov_b32 {v(vACC + k)}, -1")
        A(f"s_mul_i32 s{sTMP}, s{sL}, {RS}")
        A(f"s_add_u32 s{sTMP}, s{sTMP}, {W_REG + 4096}")
        A(f"v_lshl_add_u32 {v(vACC + 4)}, v0, 4, s{sTMP}")
        A(f"v_add_u32 {v(vACC + 5)}, 8192, {v(vACC + 4)}")
        A(f"v_add_u32 {v(vACC + 6)}, 12288, {v(vACC + 4)}")
        A(f"s_lshl_b32 s{sTMP}, s{sL}, {KS}")
        A(f"s_add_u32 s{sTMP}, s{sTMP}, {W_KEY}")
        A(f"v_lshl_add_u32 {v(22)}, {v(vLANE)}, 4, s{sTMP}")
        ones = v(vACC, 4)
        inits = [f"s_cmp_eq_u32 s{sWAVE}, 0",
                 f"s_cselect_b64 exec, {(1 << ((1 << KS) // 16)) - 1}, 0",
                 f"global_store_dwordx4 {v(22)}, {ones}, {sp(sWS)} sc1",
                 "s_mov_b64 exec, -1",
                 f"global_store_dwordx4 {v(vACC + 5)}, {ones}, {sp(sWS)} offset:-4096 sc1",
                 f"global_store_dwordx4 {v(vACC + 5)}, {ones}, {sp(sWS)} sc1",
                 f"global_store_dwordx4 {v(vACC + 6)}, {ones}, {sp(sWS)} sc1"]
        ninit = 3
        ilate = o.get("ilate", 0)
        if not ilate:
            for l in inits:
                A(l)
        vg, vr = vT, vT + 1
        A(f"v_lshrrev_b32 {v(vg)}, 2, {v(vJ)}")
        A(f"v_and_b32 {v(vr)}, 3, {v(vJ)}")
        A(f"s_cmp_eq_u32 s{sT1}, 0")
        A("s_cbranch_scc0 L_rows_hi")
        A(f"v_mov_b32 {v(vKA0)}, {v(vJ)}")
        A(f"v_lshl_add_u32 {v(vKA1)}, {v(vg)}, 1, {v(vr)}")
        A(f"v_add_u32 {v(vKA1)}, 16, {v(vKA1)}")
        A(f"v_add_u32 {v(vT + 2)}, -4, {v(vJ)}")
        A(f"v_and_b32 {v(vT + 2)}, 15, {v(vT + 2)}")
        A(f"v_cmp_eq_u32 vcc, 3, {v(vr)}")
        A(f"v_cndmask_b32 {v(vKA1)}, {v(vKA1)}, {v(vT + 2)}, vcc")
        A(f"v_lshl_add_u32 {v(vPW0)}, {v(vJ)}, 2, {v(vGq)}")
        A(f"v_lshlrev_b32 {v(vPW0)}, 4, {v(vPW0)}")
        A(f"v_add_u32 {v(vPW1)}, 1024, {v(vPW0)}")
        A("s_branch L_rows_done")
        A("L_rows_hi:")
        A(f"v_lshrrev_b32 {v(vT + 2)}, 1, {v(vg)}")
        A(f"v_lshl_add_u32 {v(vKA0)}, {v(vg)}, 1, {v(vr)}")
        A(f"v_add3_u32 {v(vKA0)}, {v(vKA0)}, {v(vT + 2)}, 25")
        A(f"v_sub_u32 {v(vKA1)}, {v(vJ)}, {v(vg)}")
        A(f"v_add_u32 {v(vKA1)}, 35, {v(vKA1)}")
        A(f"v_lshrrev_b32 {v(vT + 2)}, 1, {v(vGq)}")
        A(f"v_lshl_add_u32 {v(vPW0)}, {v(vT + 2)}, 4, {v(vJ)}")
        A(f"v_and_b32 {v(vT + 2)}, 1, {v(vGq)}")
        A(f"v_lshl_add_u32 {v(vPW0)}, {v(vPW0)}, 1, {v(vT + 2)}")
        A(f"v_lshlrev_b32 {v(vPW0)}, 5, {v(vPW0)}")
        A(f"v_add_u32 {v(vPW0)}, 2048, {v(vPW0)}")
        A(f"v_lshlrev_b32 {v(vPW1)}, 6, {v(vLANE)}")
        A(f"v_add_u32 {v(vPW1)}, 4096, {v(vPW1)}")
        A("L_rows_done:")
        A(f"s_mul_i32 s{sTMP}, s{sT0}, {PC}")
        A(f"s_add_u32 s{sTMP}, s{sTMP}, {L_P + 64}")
        A(f"v_add_u32 {v(vPW0)}, s{sTMP}, {v(vPW0)}")
        A(f"v_add_u32 {v(vPW1)}, s{sTMP}, {v(vPW1)}")
        A(f"s_mul_i32 s{sTMP}, s{sT0}, {TABC}")
        A(f"v_lshl_add_u32 {v(vT + 2)}, {v(vGq)}, 4, s{sTMP}")
        A(f"s_movk_i32 s{sTMP + 1}, {ROWB}")
        A(f"v_mad_u32_u24 {v(vKA0)}, {v(vKA0)}, s{sTMP + 1}, {v(vT + 2)}")
        A(f"v_mad_u32_u24 {v(vKA1)}, {v(vKA1)}, s{sTMP + 1}, {v(vT + 2)}")
        A(f"v_mad_u32_u24 {v(vKB)}, {v(vJ)}, s{sTMP + 1}, {v(vT + 2)}")
        A(f"s_lshl_b32 s{sTMP + 1}, s{sT1}, 8")
        A(f"s_add_u32 m0, s{sTMP}, s{sTMP + 1}")
        A(f"s_mul_i32 s{sTMP}, s{sXCD}, 448")
        A(f"s_and_b32 s{sTMP}, s{sTMP}, 0xffffff80")
        A(f"s_mul_i32 s{sTMP + 1}, s{sPOS}, {16 * 3584}")
        A(f"s_add_u32 s{sTMP}, s{sTMP}, s{sTMP + 1}")
        A(f"v_lshrrev_b32 {v(vT + 2)}, 2, {v(vLANE)}")
        A(f"v_mul_u32_u24 {v(vT + 2)}, 3584, {v(vT + 2)}")
        A(f"v_and_b32 {v(vT + 3)}, 3, {v(vLANE)}")
        A(f"v_lshl_add_u32 {v(vT + 2)}, {v(vT + 3)}, 7, {v(vT + 2)}")
        A(f"v_add_u32 {v(vT + 2)}, s{sTMP}, {v(vT + 2)}")
        A(f"s_mul_i32 s{sTMP}, s{sL}, 7168")
        A(f"s_mul_i32 s{sTMP + 1}, s{sT1}, 3584")
        A(f"s_add_u32 s{sTMP}, s{sTMP}, s{sTMP + 1}")
        A(f"v_min_u32 {v(vT + 3)}, 27, {v(vLANE)}")
        A(f"v_lshl_add_u32 {v(vT + 3)}, {v(vT + 3)}, 7, s{sTMP}")
        A(f"s_cmp_eq_u32 s{sT1}, 0")
        A(f"s_cselect_b64 {sp(sWSEL)}, {sp(sWG)}, {sp(sWU)}")
        A(f"s_cmp_eq_u32 s{sT0}, 0")
        A(f"s_cselect_b64 {sp(sWSEL)}, {sp(sWSEL)}, {sp(sWD)}")
        A("s_cselect_b64 vcc, -1, 0")
        A(f"v_cndmask_b32 {v(21)}, {v(vT + 3)}, {v(vT + 2)}, vcc")
        if o.get("wdpf", 0):
            A(f"s_cmp_eq_u32 s{sT1}, 0")
            A(f"s_cselect_b64 {sp(sWSEL)}, {sp(sWG)}, {sp(sWU)}")
            A(f"s_mul_i32 s{sTMP}, s{sT0}, {8 * 3584}")
            A(f"v_add_u32 {v(21)}, s{sTMP}, {v(vT + 2)}")
            A(f"v_cmp_gt_u32 vcc, 32, {v(vLANE)}")
            A(f"v_cndmask_b32 {v(21)}, 0, {v(21)}, vcc")
        wpf = f"global_load_dword v3, v21, {sp(sWSEL)}{' nt' if o.get('ntw', 0) else ''}"
        if o.get("wpf", 2) == 2:
            A(wpf)

        L2E = 1.4426950408889634
        l2e_hi = struct.unpack("<f", struct.pack("<f", L2E))[0]
        l2e_lo = L2E - l2e_hi
        a, b = K, K + 2
        A(f"s_mov_b32 s{sE}, {hex(f2u(l2e_hi))}")
        A(f"s_mov_b32 s{sE + 1}, {hex(f2u(l2e_lo))}")
        if o.get("b1b", 1):
            A("s_barrier")
        A(f"s_waitcnt vmcnt({(1 if o.get('wpf', 2) == 2 else 0) + (0 if ilate else ninit) + ntlb}) lgkmcnt(0)")
        self.stamp("par")
        if o.get("prio", 2) == 2:
            A("s_setprio 2")
        if ilate:
            for l in inits:
                A(l)
        if o.get("wpf", 2) == 6:
            A(wpf)
        A(f"s_lshl_b32 s{sTMP}, s{sDT}, 16")
        A(f"s_and_b32 s{sTMP + 1}, s{sDT}, s{sMASK}")
        A(f"s_cmp_lt_u32 s{sWAVE}, 2")
        A(f"s_cselect_b32 s{sDT}, s{sTMP}, s{sTMP + 1}")
        A(f"v_lshlrev_b32 {v(a)}, 16, {v(vP)}")
        A(f"v_mov_b32 {v(a + 1)}, s{sDT}")
        A(f"v_pk_mul_f32 {v(b, 2)}, {v(a, 2)}, {sp(sE)} op_sel_hi:[1,0]")
        A(f"v_pk_fma_f32 {v(b + 2, 2)}, {v(a, 2)}, {sp(sE)}, {v(b, 2)} op_sel_hi:[1,0,1] neg_lo:[0,0,1] neg_hi:[0,0,1]")
        A(f"v_exp_f32 {v(b)}, {v(b)}")
        A(f"v_exp_f32 {v(b + 1)}, {v(b + 1)}")
        A(f"v_pk_fma_f32 {v(b + 2, 2)}, {sp(sE)}, {v(a, 2)}, {v(b + 2, 2)} op_sel:[1,0,0] op_sel_hi:[1,1,1]")
        A(f"v_mul_f32 {v(b + 2)}, {hex(f2u(0.6931471805599453))}, {v(b + 2)}")
        A(f"v_mul_f32 {v(b + 3)}, {hex(f2u(0.6931471805599453))}, {v(b + 3)}")
        A(f"v_pk_fma_f32 {v(b, 2)}, {v(b, 2)}, {v(b + 2, 2)}, {v(b, 2)}")
        A(f"v_cvt_pk_bf16_f32 {v(a)}, {v(b)}, {v(b + 1)}")
        vdt, va2, vph = K + 6, K + 7, K + 8
        A(f"v_and_b32 {v(vdt)}, s{sMASK}, {v(a)}")
        A(f"v_lshlrev_b32 {v(va2)}, 16, {v(a)}")
        A(f"v_lshlrev_b32 {v(vph)}, 16, {v(vP + 1)}")
        A(f"v_mul_f32 {v(va2)}, {v(va2)}, {v(vdt)}")
        A(f"v_mul_f32 {v(vph)}, {v(vph)}, {v(vdt)}")
        A(f"v_mul_f32 {v(va2)}, {hex(f2u(-l2e_hi))}, {v(va2)}")
        A(f"v_mul_f32 {v(vph)}, 0.15915494, {v(vph)}")
        Wp = {p: K + 10 + 2 * p for p in range(1, 17)}
        Zp = {p: K + 42 + 2 * p for p in range(1, 8)}
        G = [K + 58, K + 60]
        TT = [K + 62, K + 64, K + 66, K + 68]
        RR = [K + 70, K + 72, K + 74, K + 76]
        CV = K + 80
        A(f"v_mul_f32 {v(vdt)}, {hex(f2u(2.0 ** 69))}, {v(vdt)}")
        A(f"v_lshlrev_b32 {v(G[0])}, 16, {v(vP + 2)}")
        A(f"v_lshlrev_b32 {v(G[0] + 1)}, 16, {v(vP + 3)}")
        A(f"v_mul_f32 {v(G[0])}, {v(G[0])}, {v(vdt)}")
        A(f"v_mul_f32 {v(G[0] + 1)}, {v(G[0] + 1)}, {v(vdt)}")
        for n, (dst, sc) in enumerate(((Wp[1], 1.0), (Wp[16], 16.0), (Zp[1], 256.0))):
            t = TT[n]
            if sc == 1.0:
                A(f"v_exp_f32 {v(t)}, {v(va2)}")
                A(f"v_fract_f32 {v(t + 1)}, {v(vph)}")
            else:
                A(f"v_mul_f32 {v(t)}, {hex(f2u(sc))}, {v(va2)}")
                A(f"v_mul_f32 {v(t + 1)}, {hex(f2u(sc))}, {v(vph)}")
                A(f"v_exp_f32 {v(t)}, {v(t)}")
                A(f"v_fract_f32 {v(t + 1)}, {v(t + 1)}")
            A(f"v_cos_f32 {v(dst)}, {v(t + 1)}")
            A(f"v_sin_f32 {v(dst + 1)}, {v(t + 1)}")
        for n, dst in enumerate((Wp[1], Wp[16], Zp[1])):
            A(f"v_pk_mul_f32 {v(dst, 2)}, {v(dst, 2)}, {v(TT[n], 2)} op_sel_hi:[1,0]")
        jobs = [(1, Wp[1], None, None, 0), (16, Zp[1], None, None, 0), (47, G[0], None, None, 1)]
        wj = []
        for p in range(2, 16):
            hb = 1 << (p.bit_length() - 1)
            x, y = (p // 2, p // 2) if hb == p else (hb, p - hb)
            wj.append((p, Wp[p], Wp[x], Wp[y], 0))
        gj = [(47 + j, G[j & 1], G[(j - 1) & 1], Wp[16], 1) for j in range(1, 16)]
        zrow = {2: 25, 3: 30, 4: 35, 5: 38, 6: 41, 7: 44}
        zj = []
        for p in range(2, 8):
            hb = 1 << (p.bit_length() - 1)
            x, y = (p // 2, p // 2) if hb == p else (hb, p - hb)
            zj.append((zrow[p], Zp[p], Zp[x], Zp[y], 0))
        tj = [(16 + k, None, Zp[1], Wp[2 * k], 0) for k in range(1, 9)]
        for z in (2, 3):
            tj += [(zrow[z] + k, None, Zp[z], Wp[4 * k], 0) for k in range(1, 5)]
        for z in (4, 5, 6, 7):
            tj += [(zrow[z] + k, None, Zp[z], Wp[8 * k], 0) for k in range(1, 3)]
        first = []
        for i in range(max(len(wj), len(gj), len(zj))):
            for q in (wj, gj, zj):
                if i < len(q):
                    first.append(q[i])
        jobs += first + tj
        A(f"v_mov_b32 {v(CV + 15)}, 0x3f80")
        pend = [(0, CV + 15)]
        slot = 0
        nb = 0
        b1_at = o.get("b1_at", 4)
        batch = o.get("batch", 6)

        def do_b1():
            self.stamp("setup")
            A(f"s_waitcnt vmcnt({1 if (o.get('wpf', 2) == 2 and not ilate) or o.get('wpf', 2) == 6 else 0})")
            self.stamp("idr")
            A("s_barrier")
            self.stamp("b1")
            if o.get("wpf", 2) == 1:
                A(wpf)
        if f2:
            b1_at = -1
            A(f"s_add_u32 s{sG}, s{sG}, 1")
            A(f"s_mul_i32 s{sG}, s{sG}, 0x9e3779b1")
            A(f"s_lshl_b32 s{sTMP}, s{sL}, 7")
            A(f"s_add_u32 s{sTMP}, s{sTMP}, {W_FLAG}")
            A(f"v_lshl_add_u32 {v(23)}, {v(vLANE)}, 4, s{sTMP}")
            for k in range(4):
                A(f"v_mov_b32 {v(vACC + 8 + k)}, s{sG}")
        if b1_at == 0:
            do_b1()
        for n, (row, dst, x, y, conj) in enumerate(jobs):
            if x is not None:
                if dst is None:
                    dst = RR[n & 3]
                for ins in self.cmul(dst, x, y, TT[n & 3]):
                    A(ins)
            A(f"v_cvt_pk_bf16_f32 {v(CV + slot)}, {v(dst)}, {'-' if conj else ''}{v(dst + 1)}")
            pend.append((row, CV + slot))
            slot = (slot + 1) % 15
            if len(pend) >= batch or n == len(jobs) - 1:
                for row_, reg in pend:
                    A(f"ds_write_addtid_b32 {v(reg)} offset:{row_ * ROWB}")
                pend = []
                nb += 1
                if nb == b1_at:
                    do_b1()
        if f2:
            A(f"s_waitcnt vmcnt({1 if (o.get('wpf', 2) == 2 and not ilate) or o.get('wpf', 2) == 6 else 0})")
        A("s_waitcnt lgkmcnt(0)")
        self.stamp("kgen1")
        A("s_barrier")
        if f2:
            A(f"s_cmp_eq_u32 s{sWAVE}, 0")
            A("s_cselect_b64 exec, 0xff, 0")
            A(f"global_store_dwordx4 {v(23)}, {v(vACC + 8, 4)}, {sp(sWS)} sc1")
            A("s_mov_b64 exec, -1")
        if o.get("wpf", 2) == 3:
            A(wpf)
        self.stamp("b2")
        fB, fA0, fA1 = K, K + 32, K + 64
        for s in range(4):
            A(f"ds_read_b128 {v(fB + 4 * s, 4)}, {v(vKB)} offset:{47 * ROWB + 64 * s}")
            A(f"ds_read_b128 {v(fA0 + 4 * s, 4)}, {v(vKA0)} offset:{64 * s}")
            A(f"ds_read_b128 {v(fA1 + 4 * s, 4)}, {v(vKA1)} offset:{64 * s}")
        D0, D1 = vACC, vACC + 4
        for s in range(8):
            s2 = s + 4
            A(f"s_waitcnt lgkmcnt({9 if s2 < 8 else 3 * (7 - s)})")
            c0 = "0" if s == 0 else v(D0, 4)
            c1 = "0" if s == 0 else v(D1, 4)
            A(f"v_mfma_f32_16x16x32_bf16 {v(D0, 4)}, {v(fA0 + 4 * s, 4)}, {v(fB + 4 * s, 4)}, {c0}")
            if s2 < 8:
                A(f"ds_read_b128 {v(fB + 4 * s2, 4)}, {v(vKB)} offset:{47 * ROWB + 64 * s2}")
                A(f"ds_read_b128 {v(fA0 + 4 * s2, 4)}, {v(vKA0)} offset:{64 * s2}")
            A(f"v_mfma_f32_16x16x32_bf16 {v(D1, 4)}, {v(fA1 + 4 * s, 4)}, {v(fB + 4 * s, 4)}, {c1}")
            if s2 < 8:
                A(f"ds_read_b128 {v(fA1 + 4 * s2, 4)}, {v(vKA1)} offset:{64 * s2}")
        E = K + 96
        self.stamp("kmf")
        A(f"s_bitcmp1_b32 s{sWAVE}, 0")
        A(f"v_cmp_eq_u32 vcc, 0, {v(vLANE)}")
        A("s_nop 5")
        A("s_cbranch_scc0 L_exp_lo")
        seq2 = ["aa", "aa", "aa", "ba", "bb", "bb", "cb", "cc"]
        seq3 = ["aa", "aa", "aa", "aa", "aa", "ba", "bb", "bb", "bb", "bb", "cb", "cc", "cc", "cc"]
        ix = {"a": 0, "b": 1, "c": 2}
        for k, s in enumerate(seq3):
            A(f"v_cvt_pk_bf16_f32 {v(E + 8 + k)}, {v(D1 + ix[s[0]])}, {v(D1 + ix[s[1]])}")
        for k, w in enumerate((0, 4, 6, 10)):
            A(f"ds_write_b128 {v(vPW1)}, {v(E + 8 + w, 4)} offset:{16 * k}")
        for k, s in enumerate(seq2):
            A(f"v_cvt_pk_bf16_f32 {v(E + k)}, {v(D0 + ix[s[0]])}, {v(D0 + ix[s[1]])}")
        A(f"ds_write_b128 {v(vPW0)}, {v(E, 4)}")
        A(f"ds_write_b128 {v(vPW0)}, {v(E + 4, 4)} offset:16")
        A("s_branch L_exp_done")
        A("L_exp_lo:")
        A(f"v_mov_b32_dpp {v(D1 + 3)}, {v(D1 + 3)} row_ror:1 row_mask:0x1 bank_mask:0xf")
        A(f"v_cvt_pk_bf16_f32 {v(E + 1)}, {v(D0 + 1)}, {v(D0)}")
        A(f"v_cvt_pk_bf16_f32 {v(E + 2)}, {v(D0 + 2)}, {v(D0 + 1)}")
        A(f"v_cvt_pk_bf16_f32 {v(E + 3)}, {v(D0 + 3)}, {v(D0 + 2)}")
        A(f"v_cndmask_b32 {v(E + 8)}, {v(D1 + 3)}, 0, vcc")
        A(f"v_cndmask_b32 {v(E + 9)}, {v(D1)}, {v(D1 + 3)}, vcc")
        A(f"v_cvt_pk_bf16_f32 {v(E)}, {v(D0)}, {v(E + 8)}")
        A(f"v_cvt_pk_bf16_f32 {v(E + 4)}, {v(D1)}, {v(E + 9)}")
        A(f"v_cvt_pk_bf16_f32 {v(E + 5)}, {v(D1)}, {v(D1)}")
        A(f"v_cvt_pk_bf16_f32 {v(E + 6)}, {v(D1 + 1)}, {v(D1)}")
        A(f"v_cvt_pk_bf16_f32 {v(E + 7)}, {v(D1 + 2)}, {v(D1 + 1)}")
        A(f"ds_write_b128 {v(vPW0)}, {v(E, 4)}")
        A(f"ds_write_b128 {v(vPW1)}, {v(E + 4, 4)}")
        A("L_exp_done:")
        T = self.tail
        A("s_waitcnt lgkmcnt(0)")
        self.stamp("kgen2")
        A("s_barrier")
        self.stamp("b2b")
        if o.get("wpf", 2) == 4:
            A(wpf)

        def rdA(buf, rho, m):
            return [f"ds_read2_b32 {v(buf + 4 * m, 2)}, {v(vAA + m)} offset0:{64 * rho + 6} offset1:{64 * rho + 4}",
                    f"ds_read2_b32 {v(buf + 4 * m + 2, 2)}, {v(vAA + m)} offset0:{64 * rho + 2} offset1:{64 * rho}"]

        def rdB(buf, rho, n):
            return [f"ds_read_b128 {v(buf + 4 * n, 4)}, {v(vBA)} offset:{128 * (3 - rho) + 512 * (7 - n)}"]

        for m in range(8):
            for l in rdA(vA0, 0, m):
                A(l)
        A(f"s_mul_i32 s{sTMP}, s{sL}, {RS}")
        A(f"s_lshl_b32 s{sTMP + 1}, s{sWAVE}, 11")
        A(f"s_add_u32 s{sTMP}, s{sTMP}, s{sTMP + 1}")
        A(f"s_add_u32 s{sTMP}, s{sTMP}, {W_REG + O_X2}")
        A(f"v_lshl_add_u32 {v(vT)}, {v(vLANE)}, 4, s{sTMP}")
        A("s_waitcnt lgkmcnt(0)")
        self.stamp("apre")
        A("s_barrier")
        self.stamp("b3")
        if o.get("wpf", 2) == 5:
            A(wpf)
        if o.get("prio", 2):
            A("s_setprio 2")

        bufA, bufB = [vA0, vA1], [vB0, vB1]
        for n in range(7, -1, -1):
            for l in rdB(vB0, 0, n):
                A(l)
        started = set()
        for rho in range(4):
            a_, b_ = bufA[rho & 1], bufB[rho & 1]
            order = [(n - 7 + tb, tb, n) for n in range(7, -1, -1) for tb in range(7 - n, 8)]
            if rho == 3:
                order = [(n - 7 + tb, tb, n) for tb in range(8) for n in range(7 - tb, 8)]
            fill = []
            if rho + 1 < 4:
                nb_, na_ = bufB[(rho + 1) & 1], bufA[(rho + 1) & 1]
                for m in range(8):
                    fill += rdB(nb_, rho + 1, 7 - m)
                    fill += rdA(na_, rho + 1, m)
            issued = 0
            seen = set()
            done_at = {}
            for i, (m, tb, n) in enumerate(order):
                done_at[tb] = i
            for i, (m, tb, n) in enumerate(order):
                if rho == 0 and n not in seen:
                    A(f"s_waitcnt lgkmcnt({min(15, n + issued)})")
                    seen.add(n)
                elif i == 0:
                    A("s_waitcnt lgkmcnt(0)")
                acc = v(vACC + 4 * tb, 4)
                c = acc if tb in started else "0"
                started.add(tb)
                A(f"v_mfma_f32_16x16x32_bf16 {acc}, {v(a_ + 4 * m, 4)}, {v(b_ + 4 * n, 4)}, {c}")
                if i >= 1 and fill:
                    A(fill.pop(0))
                    issued += 1
                if rho == 3:
                    for t in range(7):
                        if done_at[t] + 8 == i or (i == len(order) - 1 and done_at[t] + 8 > i):
                            A(f"ds_write_b128 {v(vEW)}, {v(vACC + 4 * t, 4)} offset:{t * TBS}")
            assert not fill
        A(f"ds_write_b128 {v(vEW)}, {v(vACC + 28, 4)} offset:{7 * TBS}")
        self.stamp("conv")
        A("s_waitcnt lgkmcnt(0)")
        A("s_barrier")
        for i in range(2):
            for s in range(4):
                A(f"ds_read_b128 {v(K + 16 * i + 4 * s, 4)}, {v(vER)} offset:{s * 8 * TBS + i * TBS}")
        for i in range(2):
            A(f"s_waitcnt lgkmcnt({4 * (1 - i)})")
            b0 = K + 16 * i
            for c in range(2):
                for h in range(2):
                    A(f"v_pk_add_f32 {v(b0 + 8 * c + 2 * h, 2)}, {v(b0 + 8 * c + 2 * h, 2)}, {v(b0 + 8 * c + 4 + 2 * h, 2)}")
            for c in range(2):
                for h in range(2):
                    A(f"v_cvt_pk_bf16_f32 {v(K + 32 + 4 * i + 2 * c + h)}, {v(b0 + 8 * c + 2 * h)}, {v(b0 + 8 * c + 2 * h + 1)}")
            A(f"global_store_dwordx4 {v(vT)}, {v(K + 32 + 4 * i, 4)}, {sp(sWS)} offset:{1024 * i} sc1")
        self.stamp("x2st")
        if o.get("p2", 3) == 0:
            A("s_waitcnt vmcnt(0)")
            self.stamp("x2dr")
        if o.get("p2", 3) in (0, 3):
            A("s_barrier")
        A(f"s_cmp_lt_u32 s{sWAVE}, 2")
        A("s_cbranch_scc0 L_cfin")
        A(f"v_lshlrev_b32 {v(vT + 1)}, {KS}, {v(vLANE)}")
        A(f"v_add_u32 {v(vT + 1)}, {W_KEY}, {v(vT + 1)}")
        for q in range(1, 4):
            A(f"v_add_u32 {v(vT + 8 + q)}, {(64 * q) << KS}, {v(vT + 1)}")
        for q in range(4):
            A(f"s_sub_u32 s{sTMP}, s{sL}, {64 * q}")
            A(f"v_cmp_eq_u32 {sp(sOWNM + 2 * q)}, s{sTMP}, {v(vLANE)}")
        A(f"v_mov_b32 {v(vT + 3)}, {L_REDK}")
        A("s_barrier")
        self.key_calc(K, vRA, vLANE)
        A(f"s_cmp_eq_u32 s{sWAVE}, 0")
        A("s_cbranch_scc0 L_poll")
        A("s_mov_b64 exec, 1")
        A(f"global_store_dword {v(22)}, {v(K + 8)}, {sp(sWS)} sc1")
        self.stamp("key")
        A("s_mov_b64 exec, -1")
        if o.get("pace", 3):
            A("s_barrier")
        A("s_branch L_keyed")
        A("L_poll:")
        k2, kn = vT + 4, vT + 5
        kl = [f"global_load_dword {v(K + q)}, {v(vT + 8 + q) if q else v(vT + 1)}, {sp(sWS)} sc1" for q in range(4)]
        kchk = [f"v_cndmask_b32 {v(K + q)}, {v(K + q)}, {v(K + 8)}, {sp(sOWNM + 2 * q)}" for q in range(4)]
        kchk += [f"v_add_u32 {v(K + 4 + q)}, 1, {v(K + q)}" for q in range(4)]
        kchk += [f"v_min3_u32 {v(kn)}, {v(K + 4)}, {v(K + 5)}, {v(K + 6)}",
                 f"v_max3_u32 {v(k2)}, {v(K + 4)}, {v(K + 5)}, {v(K + 6)}",
                 f"v_min_u32 {v(kn)}, {v(kn)}, {v(K + 7)}",
                 f"v_max_u32 {v(k2)}, {v(k2)}, {v(K + 7)}",
                 f"v_cmp_eq_u32 vcc, 0, {v(kn)}"]

        def wavemax(off):
            w = K + 10
            A(f"v_max_u32_dpp {v(w)}, {v(k2)}, {v(k2)} quad_perm:[1,0,3,2] row_mask:0xf bank_mask:0xf")
            A(f"v_max_u32_dpp {v(w)}, {v(w)}, {v(w)} quad_perm:[2,3,0,1] row_mask:0xf bank_mask:0xf")
            A(f"v_max_u32_dpp {v(w)}, {v(w)}, {v(w)} row_half_mirror row_mask:0xf bank_mask:0xf")
            A(f"v_max_u32_dpp {v(w)}, {v(w)}, {v(w)} row_mirror row_mask:0xf bank_mask:0xf")
            A(f"v_max_u32_dpp {v(w)}, {v(w)}, {v(w)} row_bcast:15 row_mask:0xa bank_mask:0xf")
            A(f"v_max_u32_dpp {v(w)}, {v(w)}, {v(w)} row_bcast:31 row_mask:0xc bank_mask:0xf")
            A(f"v_add_u32 {v(w)}, -1, {v(w)}")
            A("s_mov_b32 exec_lo, 0")
            A("s_brev_b32 exec_hi, 1")
            A(f"ds_write_b32 {v(vT + 3)}, {v(w)} offset:{off}")
            A("s_mov_b64 exec, -1")
            A("s_waitcnt lgkmcnt(0)")
        if o.get("pace", 3):
            A("s_barrier")
        if o.get("d3"):
            A(f"s_sleep {o['d3']}")
        for l in kl:
            A(l)
        A("s_waitcnt vmcnt(0)")
        self.poll("key", kl, kchk)
        self.stamp("keyld")
        wavemax(0)
        A("L_keyed:")
        A("s_barrier")
        if o.get("fc", 0):
            A(f"s_cmp_lt_u32 s{sPOS}, 8")
            A("s_cbranch_scc0 L_cfin")
            A(f"ds_read_b32 {v(K)}, {v(vT + 3)}")
            A("s_waitcnt lgkmcnt(0)")
            A(f"v_readfirstlane_b32 s{sWIN}, {v(K)}")
            A(f"s_andn2_b32 s{sT0}, 2047, s{sWIN}")
            A(f"s_lshr_b32 s{sT1}, s{sT0}, 3")
            A(f"s_mul_i32 s{sT1}, s{sT1}, {RS}")
            vY = K + 32
            chk8 = [f"v_max3_u32 {v(vT + 6)}, {v(vY)}, {v(vY + 1)}, {v(vY + 2)}",
                    f"v_max3_u32 {v(vT + 7)}, {v(vY + 3)}, {v(vY + 4)}, {v(vY + 5)}",
                    f"v_max3_u32 {v(vT + 6)}, {v(vT + 6)}, {v(vY + 6)}, {v(vY + 7)}",
                    f"v_max_u32 {v(vT + 6)}, {v(vT + 6)}, {v(vT + 7)}",
                    f"v_cmp_eq_u32 vcc, -1, {v(vT + 6)}"]
            A(f"s_lshl_b32 s{sTMP}, s{sXCD}, 3")
            A(f"s_add_u32 s{sTMP}, s{sTMP}, s{sPOS}")
            A(f"s_lshl_b32 s{sTMP}, s{sTMP}, 1")
            A(f"s_add_u32 s{sTMP}, s{sTMP}, s{sWAVE}")
            A(f"v_lshrrev_b32 {v(vT)}, 5, {v(vLANE)}")
            A(f"v_bfe_u32 {v(vT + 1)}, {v(vLANE)}, 4, 1")
            A(f"v_lshl_add_u32 {v(vT)}, {v(vT + 1)}, 1, {v(vT)}")
            A(f"s_lshl_b32 s{sTMP + 1}, s{sTMP}, 3")
            A(f"v_lshl_add_u32 {v(vT)}, {v(vT)}, 1, s{sTMP + 1}")
            A(f"s_add_u32 s{sT1}, s{sT1}, {W_REG + O_SLOT}")
            A(f"v_add_u32 {v(vT + 1)}, s{sT1}, {v(vT)}")
            xh = [f"global_load_ushort {v(K + 20)}, {v(vT + 1)}, {sp(sWS)} sc1",
                  f"global_load_ushort {v(K + 21)}, {v(vT + 1)}, {sp(sWS)} offset:1024 sc1"]
            A(f"s_lshl_b32 s{sTMP + 1}, s{sT0}, 10")
            A(f"v_add_u32 {v(vT)}, s{sTMP + 1}, {v(vT)}")
            A(f"v_min_u32 {v(vT + 2)}, 55, {v(vLANE)}")
            A(f"v_mul_u32_u24 {v(vT + 3)}, 4682, {v(vT + 2)}")
            A(f"v_lshrrev_b32 {v(vT + 3)}, 16, {v(vT + 3)}")
            A(f"v_mad_u32_u24 {v(vT + 2)}, {v(vT + 3)}, 18, {v(vT + 2)}")
            A(f"v_mul_u32_u24 {v(vT + 2)}, {RS}, {v(vT + 2)}")
            A(f"s_lshl_b32 s{sTMP + 1}, s{sTMP}, 4")
            A(f"s_add_u32 s{sTMP + 1}, s{sTMP + 1}, {W_REG + O_PART}")
            A(f"v_add_u32 {v(vT + 2)}, s{sTMP + 1}, {v(vT + 2)}")
            A(f"v_add_u32 {v(vT + 3)}, {128 * RS}, {v(vT + 2)}")
            A(f"s_ashr_i32 s{sTMP + 2}, s{sWIN}, 31")
            A(f"s_not_b32 s{sTMP + 2}, s{sTMP + 2}")
            A(f"s_or_b32 s{sTMP + 2}, s{sTMP + 2}, 0x80000000")
            A(f"s_xor_b32 s{sTMP + 2}, s{sTMP + 2}, s{sWIN}")
            A(f"s_and_b32 s{sTMP + 2}, s{sTMP + 2}, 0xfffff800")
            A(f"s_or_b32 s{sTMP + 2}, s{sTMP + 2}, 0x400")
            A(f"v_cvt_pk_bf16_f32 {v(K + 22)}, s{sTMP + 2}, s{sTMP + 2}")
            A(f"v_and_b32 {v(K + 22)}, s{sMASK}, {v(K + 22)}")
            A(f"v_mul_f32 {v(K + 22)}, {hex(f2u(-L2E))}, {v(K + 22)}")
            A(f"v_exp_f32 {v(K + 22)}, {v(K + 22)}")
            A(f"v_add_f32 {v(K + 22)}, 1.0, {v(K + 22)}")
            A(f"v_rcp_f32 {v(K + 22)}, {v(K + 22)}")
            A(f"v_cvt_pk_bf16_f32 {v(K + 22)}, {v(K + 22)}, {v(K + 22)}")
            A(f"v_and_b32 {v(K + 22)}, s{sMASK}, {v(K + 22)}")
            A("s_barrier")
            for l in xh:
                A(l)
            A("s_waitcnt vmcnt(0)")
            self.poll("xh", xh, [f"v_max_u32 {v(vT + 6)}, {v(K + 20)}, {v(K + 21)}",
                                 f"v_cmp_eq_u32 vcc, 0xffff, {v(vT + 6)}"])
            A(f"v_lshlrev_b32 {v(K + 20)}, 16, {v(K + 20)}")
            A(f"v_lshlrev_b32 {v(K + 21)}, 16, {v(K + 21)}")
            if o.get("d4"):
                A(f"s_sleep {o['d4']}")
            self.stamp("partdr")
            pl = [f"global_load_dwordx4 {v(vY, 4)}, {v(vT + 2)}, {sp(sWS)} sc1",
                  f"global_load_dwordx4 {v(vY + 4, 4)}, {v(vT + 3)}, {sp(sWS)} sc1"]
            for l in pl:
                A(l)
            A("s_waitcnt vmcnt(0)")
            self.poll("part", pl, chk8)
            self.stamp("partld")
            A(f"v_cmp_gt_u32 vcc, 56, {v(vLANE)}")
            A(f"v_pk_add_f32 {v(vY, 2)}, {v(vY, 2)}, {v(vY + 4, 2)}")
            A(f"v_pk_add_f32 {v(vY + 2, 2)}, {v(vY + 2, 2)}, {v(vY + 6, 2)}")
            for c in range(4):
                A(f"v_cndmask_b32 {v(vY + c)}, 0, {v(vY + c)}, vcc")
            A(f"v_permlane32_swap_b32 {v(vY)}, {v(vY + 1)}")
            A(f"v_permlane32_swap_b32 {v(vY + 2)}, {v(vY + 3)}")
            A(f"v_add_f32 {v(vY)}, {v(vY)}, {v(vY + 1)}")
            A(f"v_add_f32 {v(vY + 2)}, {v(vY + 2)}, {v(vY + 3)}")
            A(f"v_permlane16_swap_b32 {v(vY)}, {v(vY + 2)}")
            A(f"v_add_f32 {v(vY)}, {v(vY)}, {v(vY + 2)}")
            for sh in (8, 4, 2, 1):
                A(f"v_add_f32_dpp {v(vY)}, {v(vY)}, {v(vY)} row_ror:{sh} row_mask:0xf bank_mask:0xf")
            y = vY
            A(f"v_cvt_pk_bf16_f32 {v(y)}, {v(y)}, {v(y)}")
            A(f"v_and_b32 {v(y)}, s{sMASK}, {v(y)}")
            A(f"v_mul_f32 {v(y)}, {v(y)}, {v(K + 22)}")
            A(f"v_cvt_pk_bf16_f32 {v(y)}, {v(y)}, {v(y)}")
            A(f"v_and_b32 {v(y)}, s{sMASK}, {v(y)}")
            A(f"v_add_f32 {v(y)}, {v(y)}, {v(K + 20)}")
            A(f"v_cvt_pk_bf16_f32 {v(y)}, {v(y)}, {v(y)}")
            A(f"v_and_b32 {v(y)}, s{sMASK}, {v(y)}")
            A(f"v_add_f32 {v(y)}, {v(y)}, {v(K + 21)}")
            A(f"v_cvt_pk_bf16_f32 {v(y)}, {v(y)}, {v(y)}")
            A("s_mov_b32 exec_lo, 0x00010001")
            A("s_mov_b32 exec_hi, 0x00010001")
            A(f"global_store_short {v(vT)}, {v(y)}, {sp(sOUT)}")
        A("L_cfin:")
        self.finish("C")

    def text(self):
        lines = self.build()
        src = open("sequential_preLN__ssm_conv_s4d__moe_arch_mod__prompt.s.ref").read()
        head = [l for l in src.split("\n") if l.startswith(";") and "@launch" not in l]
        head = head[:head.index("; Override launch geometry by editing the next line (default: block=256,")]
        out = head + [f"; @launch grid=(256,1,1) block=(512,1,1) lds={LDS_BYTES}",
                      '.amdgcn_target "amdgcn-amd-amdhsa--gfx950"', ".text", f".globl {KNAME}", ".p2align 8",
                      f".type {KNAME},@function"]
        out += [l if l.endswith(":") else "    " + l for l in lines]
        out += [".section .rodata,\"a\"", ".p2align 6", f".amdhsa_kernel {KNAME}",
                "  .amdhsa_next_free_vgpr 224", "  .amdhsa_next_free_sgpr 102", "  .amdhsa_accum_offset 224",
                "  .amdhsa_group_segment_fixed_size 0", "  .amdhsa_kernarg_size 120", "  .amdhsa_user_sgpr_count 2",
                "  .amdhsa_user_sgpr_kernarg_segment_ptr 1", "  .amdhsa_system_sgpr_workgroup_id_x 1",
                ".end_amdhsa_kernel", ""]
        return "\n".join(out)


if __name__ == "__main__":
    out = sys.argv[1]
    opts = {}
    stamp = False
    for a in sys.argv[2:]:
        if a == "stamp":
            stamp = True
        else:
            k, val = a.split("=")
            opts[k] = val if k in ('pr', 'few') else int(val)
    g = Gen(stamp, opts)
    open(out, "w").write(g.text())
    if g.stamp_on:
        open(out + ".names", "w").write(" ".join(g.allnames["R"]) + "\n" + " ".join(g.allnames["C"]))
    print(g.info, "lds", LDS_BYTES)
```

```python
import sys
import struct
from asmlib import Asm, align8

KNAME = "sequential_preLN__ssm_conv_s4d__moe_arch_mod__prompt_kernel"


def f2u(x):
    return struct.unpack("<I", struct.pack("<f", x))[0]


W_FLAG = 0x1000 + (int(__import__('os').environ.get('WOFF', '0')) << 20)
W_KEY = 0x9000 + (int(__import__('os').environ.get('WOFF', '0')) << 20)
W_FLAG2 = 0x11000 + (int(__import__('os').environ.get('WOFF', '0')) << 20)
import os
WOFF = int(os.environ.get('WOFF', '0')) << 20
W_REG = 0x38000 + WOFF
RS = 20608
O_X1, O_X2, O_SLOT, O_PART = 0, 8192, 16384, 18432
W_STAMP = 0x800000
ROWB = 544
TABC = 63 * ROWB
L_TAB = 0
L_P = 68608
PC = 4416
L_Q = L_P + 2 * PC
QC = 400
L_U = L_Q + 4 * QC
UC = 4608
L_RED1 = (L_U + 2 * UC + 255) // 256 * 256
L_RED2 = L_RED1 + 256
L_SUMW = L_RED2 + 384
L_REDK = L_SUMW + 16
L_REDF = L_REDK + 16
LDS_BYTES = L_REDF + 256
L_EPI = 0
TBS = 1152
L_TILE = 40960
WST = 272
WTILE = 8 * WST
sX, sLA, sAI, sCR, sCI, sLDT, sD = 4, 6, 8, 10, 12, 14, 16
sWR, sWG, sWU, sWD, sOUT, sDBG, sWS = 20, 22, 24, 26, 28, 30, 32
sL, sPOS, sXCD, sWAVE, sG, sDT, sT0, sT1, sSPIN, sF = 34, 35, 36, 37, 38, 39, 40, 41, 42, 43
sODD = 44
sSELLO, sSELHI, sONES, sMASK = 46, 47, 48, 49
sWSEL = 50
sBEST, sWIN, sRP0, sRP1 = 52, 53, 54, 55
sH = 56
sE = 64
sTMP = 66
sOWN = 71
sCAND = 3
sOWNM = 56
sTAG = 56
sSTAMP = 72


def sp(r):
    return f"s[{r}:{r + 1}]"


def v(r, n=1):
    return f"v{r}" if n == 1 else f"v[{r}:{r + n - 1}]"


class Gen:
    def __init__(self, stamp=False, opts=None):
        self.A = Asm()
        self.tail = Asm()
        self.stamp_on = stamp
        self.nstamp = 0
        self.names = []
        self.o = dict(opts or {})
        self.only = None
        self.few = None
        if "few" in self.o:
            self.few = ["start", "end"] + self.o["few"].split(".")
            self.stamp_on = True
        self.role = "R"
        if "pr" in self.o:
            self.only = tuple(self.o["pr"].split("."))
            self.stamp_on = True
            self.o["probe"] = 1 if self.only[0] == "R" else 101

    def stamp(self, name):
        if not self.stamp_on:
            return
        if self.only and name != "start" and (self.role, name) != self.only:
            return
        if self.few and name not in self.few:
            return
        k = self.nstamp
        self.nstamp += 1
        self.names.append(name)
        assert sSTAMP + k < 100
        self.A(f"s_memtime s[100:101]" if self.o.get("cyc") else f"s_memrealtime s[100:101]")
        self.A("s_waitcnt lgkmcnt(0)")
        self.A(f"s_mov_b32 s{sSTAMP + k}, s100")

    def poll(self, name, loads, check, base_exec="-1", first=True):
        A = self.A
        for c in (check if first else []):
            A(c)
        A(f"s_cbranch_vccnz L_retry_{name}")
        A(f"L_ok_{name}:")
        T = self.tail
        T(f"L_retry_{name}:")
        T(f"s_mov_b32 s{sSPIN}, 0x40000")
        T(f"L_again_{name}:")
        T(f"s_sub_u32 s{sSPIN}, s{sSPIN}, 1")
        T(f"s_cbranch_scc1 L_ok_{name}")
        T("s_mov_b64 exec, vcc")
        for l in loads:
            T(l)
        T("s_waitcnt vmcnt(0)")
        for c in check:
            T(c)
        T(f"s_mov_b64 exec, {base_exec}")
        T(f"s_cbranch_vccnz L_again_{name}")
        T(f"s_branch L_ok_{name}")

    def cmul(self, d, x, y, t):
        return [f"v_pk_mul_f32 {v(t, 2)}, {v(x, 2)}, {v(y, 2)} op_sel:[0,0] op_sel_hi:[0,1]",
                f"v_pk_fma_f32 {v(d, 2)}, {v(x, 2)}, {v(y, 2)}, {v(t, 2)} op_sel:[1,1,0] op_sel_hi:[1,0,1] neg_lo:[1,0,0]"]

    def reduce8(self, V, t):
        A = self.A
        for i in range(4):
            A(f"v_add_f32_dpp {v(V[i])}, {v(V[i])}, {v(V[i])} row_ror:8 row_mask:0xf bank_mask:0x3")
        for i in range(4):
            A(f"v_add_f32_dpp {v(V[i])}, {v(V[i + 4])}, {v(V[i + 4])} row_ror:8 row_mask:0xf bank_mask:0xc")
        for i in range(2):
            A(f"v_add_f32_dpp {v(V[i])}, {v(V[i])}, {v(V[i])} row_shl:4 row_mask:0xf bank_mask:0x5")
        for i in range(2):
            A(f"v_add_f32_dpp {v(V[i])}, {v(V[i + 2])}, {v(V[i + 2])} row_shr:4 row_mask:0xf bank_mask:0xa")
        A(f"v_permlane32_swap_b32 {v(V[0])}, {v(V[1])}")
        A(f"v_add_f32 {v(V[0])}, {v(V[0])}, {v(V[1])}")
        A(f"v_add_f32_dpp {v(V[0])}, {v(V[0])}, {v(V[0])} quad_perm:[2,3,0,1] row_mask:0xf bank_mask:0xf")
        A(f"v_mov_b32 {v(t)}, {v(V[0])}")
        A(f"v_permlane16_swap_b32 {v(V[0])}, {v(t)}")
        A(f"v_add_f32 {v(V[0])}, {v(V[0])}, {v(t)}")

    def row_stats(self, S, Q, negm, rinv, t, scale=None):
        A = self.A
        A(f"v_pk_add_f32 {v(S, 2)}, {v(S, 2)}, {v(S + 2, 2)}")
        A(f"v_pk_add_f32 {v(Q, 2)}, {v(Q, 2)}, {v(Q + 2, 2)}")
        A(f"v_add_f32 {v(S)}, {v(S)}, {v(S + 1)}")
        A(f"v_add_f32 {v(Q)}, {v(Q)}, {v(Q + 1)}")
        A(f"v_mul_f32 {v(S)}, {hex(f2u(1 / 512))}, {v(S)}")
        A(f"v_mul_f32 {v(Q)}, {hex(f2u(1 / 512))}, {v(Q)}")
        A(f"v_fma_f32 {v(Q)}, -{v(S)}, {v(S)}, {v(Q)}")
        A(f"v_max_f32 {v(Q)}, 0, {v(Q)}")
        A(f"v_cvt_pk_bf16_f32 {v(t)}, -{v(S)}, {v(Q)}")
        A(f"v_and_b32 {v(Q)}, s{sMASK}, {v(t)}")
        A(f"v_add_f32 {v(Q)}, {hex(f2u(1e-5))}, {v(Q)}")
        A(f"v_cvt_pk_bf16_f32 {v(Q)}, {v(Q)}, {v(Q)}")
        A(f"v_and_b32 {v(Q)}, s{sMASK}, {v(Q)}")
        A(f"v_sqrt_f32 {v(Q)}, {v(Q)}")
        A(f"v_lshlrev_b32 {v(negm)}, 16, {v(t)}")
        A(f"v_cvt_pk_bf16_f32 {v(Q)}, {v(Q)}, {v(Q)}")
        A(f"v_and_b32 {v(Q)}, s{sMASK}, {v(Q)}")
        if scale:
            A(f"v_mul_f32 {v(Q)}, {hex(f2u(scale))}, {v(Q)}")
        A(f"v_rcp_f32 {v(rinv)}, {v(Q)}")

    def spread(self, val, dst, t):
        A = self.A
        for r in range(4):
            A(f"v_mov_b32_dpp {v(t + r)}, {v(val)} row_newbcast:{4 + r} row_mask:0xf bank_mask:0xf")
        for r in range(4):
            A(f"v_cndmask_b32_dpp {v(dst + r)}, {v(val)}, {v(t + r)}, vcc row_newbcast:{r} row_mask:0xf bank_mask:0xf")

    def key_calc(self, K, vRA, vLANE):
        A = self.A
        A(f"v_mov_b32 {v(K + 14)}, {L_SUMW}")
        A(f"ds_read_b128 {v(K, 4)}, {v(vRA)} offset:{L_RED2 - L_RED1}")
        A(f"ds_read_b128 {v(K + 4, 4)}, {v(vRA)} offset:{L_RED2 - L_RED1 + 128}")
        A(f"ds_read_b128 {v(K + 8, 4)}, {v(vRA)} offset:{L_RED2 - L_RED1 + 256}")
        A(f"ds_read_b32 {v(K + 15)}, {v(K + 14)}")
        A(f"s_lshl_b32 s{sTMP}, s{sL}, 3")
        A(f"s_sub_u32 s{sTMP}, 2047, s{sTMP}")
        A(f"v_and_b32 {v(K + 14)}, 7, {v(vLANE)}")
        A(f"v_sub_u32 {v(K + 14)}, s{sTMP}, {v(K + 14)}")
        A("s_waitcnt lgkmcnt(2)")
        self.row_stats(K, K + 4, K + 12, K + 13, K + 28)
        A("s_waitcnt lgkmcnt(0)")
        A(f"v_pk_add_f32 {v(K + 8, 2)}, {v(K + 8, 2)}, {v(K + 10, 2)}")
        A(f"v_add_f32 {v(K + 8)}, {v(K + 8)}, {v(K + 9)}")
        A(f"v_fmac_f32 {v(K + 8)}, {v(K + 12)}, {v(K + 15)}")
        A(f"v_mul_f32 {v(K + 8)}, {v(K + 8)}, {v(K + 13)}")
        A(f"v_ashrrev_i32 {v(K + 9)}, 31, {v(K + 8)}")
        A(f"v_or_b32 {v(K + 9)}, 0x80000000, {v(K + 9)}")
        A(f"v_xor_b32 {v(K + 8)}, {v(K + 8)}, {v(K + 9)}")
        A(f"v_and_b32 {v(K + 8)}, 0xfffff800, {v(K + 8)}")
        A(f"v_or_b32 {v(K + 8)}, {v(K + 8)}, {v(K + 14)}")
        A(f"v_min_u32 {v(K + 8)}, -2, {v(K + 8)}")
        A(f"v_max_u32_dpp {v(K + 8)}, {v(K + 8)}, {v(K + 8)} quad_perm:[1,0,3,2] row_mask:0xf bank_mask:0xf")
        A(f"v_max_u32_dpp {v(K + 8)}, {v(K + 8)}, {v(K + 8)} quad_perm:[2,3,0,1] row_mask:0xf bank_mask:0xf")
        A(f"v_max_u32_dpp {v(K + 8)}, {v(K + 8)}, {v(K + 8)} row_half_mirror row_mask:0xf bank_mask:0xf")

    def finish(self, role):
        A = self.A
        o = self.o
        if self.stamp_on:
            self.stamp("end")
            self.allnames[role] = self.names
        if self.stamp_on and "probe" in o:
            k = o["probe"]
            if k == 98 and role == "R":
                A(f"s_getreg_b32 s{sTMP}, hwreg(HW_REG_XCC_ID, 0, 4)")
                A(f"s_sub_u32 s{sTMP}, s{sTMP}, s2")
                A(f"s_and_b32 s{sTMP}, s{sTMP}, 7")
                A(f"s_mul_i32 s{sTMP}, s{sTMP}, 1000")
                A(f"s_add_u32 s{sTMP}, s{sTMP}, 2000")
            elif k == 99 and role == "R":
                A("s_memtime s[96:97]")
                A("s_waitcnt lgkmcnt(0)")
                A("s_sub_u32 s96, s96, s98")
                A(f"s_sub_u32 s97, s{sSTAMP + self.nstamp - 1}, s{sSTAMP}")
                A("s_mov_b64 exec, -1")
                A("v_cvt_f32_u32 v2, s96")
                A("v_cvt_f32_u32 v3, s97")
                A("v_rcp_f32 v3, v3")
                A("s_nop 1")
                A("v_mul_f32 v2, v2, v3")
                A("v_mul_f32 v2, 0x43c80000, v2")
                A("v_cvt_u32_f32 v2, v2")
                A("s_nop 1")
                A(f"v_readfirstlane_b32 s{sTMP}, v2")
                A(f"s_add_u32 s{sTMP}, s{sTMP}, 2000")
            elif k < 0 and role == "R":
                A(f"s_mov_b32 s{sTMP}, {-k}")
            elif k >= 0 and (k >= 100) == (role == "C"):
                A(f"s_sub_u32 s{sTMP}, s{sSTAMP + k % 100}, s{sSTAMP}")
                A(f"s_cmp_lt_u32 s{sTMP}, 3000")
                A(f"s_cselect_b32 s{sTMP}, s{sTMP}, 0")
                A(f"s_mul_i32 s{sTMP}, s{sTMP}, 20")
                A(f"s_add_u32 s{sTMP}, s{sTMP}, 2000")
                if role == "C":
                    A(f"s_cmp_eq_u32 s{sWAVE}, 0")
                    A(f"s_cselect_b32 s{sTMP}, s{sTMP}, 0")
            else:
                A(f"s_mov_b32 s{sTMP}, 0")
            A(f"L_spin{role}:")
            A("s_memrealtime s[100:101]")
            A("s_waitcnt lgkmcnt(0)")
            A(f"s_sub_u32 s100, s100, s{sSTAMP}")
            A(f"s_cmp_lt_u32 s100, s{sTMP}")
            A(f"s_cbranch_scc1 L_spin{role}")
        elif self.stamp_on:
            A("s_mov_b64 exec, 1")
            A(f"s_lshl_b32 s{sTMP}, s2, 3")
            A(f"s_add_u32 s{sTMP}, s{sTMP}, s{sWAVE}")
            if role == "C":
                A(f"s_add_u32 s{sTMP}, s{sTMP}, 4")
            A(f"s_lshl_b32 s{sTMP}, s{sTMP}, 7")
            A(f"s_add_u32 s{sTMP}, s{sTMP}, {W_STAMP}")
            A(f"v_mov_b32 v1, s{sTMP}")
            for k in range(self.nstamp):
                A(f"v_mov_b32 v2, s{sSTAMP + k}")
                A(f"global_store_dword v1, v2, {sp(sWS)} offset:{4 * k}")
        A("s_endpgm")

    def build(self):
        A = self.A
        self.allnames = {}
        A(f"{KNAME}:")
        A("s_cmp_ge_u32 s2, 256")
        A("s_cbranch_scc1 L_end")
        self.stamp("start")
        if self.o.get("probe", 0) == 99:
            A("s_memtime s[98:99]")
        cpf = self.o.get("codepf", 1)
        if cpf == 1:
            A(f"s_getpc_b64 {sp(sE)}")
            A("L_pc:")
            A("v_lshlrev_b32 v2, 5, v0")
            A(f"v_min_u32 v2, L_codeend-L_pc-4, v2")
            A(f"global_load_dword v3, v2, {sp(sE)}")
        elif cpf >= 2:
            A(f"s_getpc_b64 {sp(sE)}")
            A("L_pc:")
            A(f"s_bfe_u32 s3, s2, {3 | ((7 - cpf) << 16)}")
            A(f"s_lshl_b32 s3, s3, {7 + cpf}")
            A("v_lshl_add_u32 v2, v0, 7, s3")
            A(f"v_min_u32 v2, L_codeend-L_pc-4, v2")
            A(f"v_cmp_gt_u32 vcc, {1 << cpf}, v0")
            A("s_mov_b64 exec, vcc")
            A(f"global_load_dword v3, v2, {sp(sE)}")
            A("s_mov_b64 exec, -1")
        A("s_load_dwordx16 s[4:19], s[0:1], 0")
        A("s_load_dwordx8 s[20:27], s[0:1], 64")
        A("s_load_dwordx4 s[28:31], s[0:1], 96")
        A("s_load_dwordx2 s[32:33], s[0:1], 112")
        A("v_lshrrev_b32 v4, 6, v0")
        A(f"s_and_b32 s{sXCD}, s2, 7")
        A(f"v_readfirstlane_b32 s{sWAVE}, v4")
        A(f"s_lshr_b32 s{sPOS}, s2, 3")
        A(f"s_lshl_b32 s{sL}, s{sXCD}, 5")
        A(f"s_add_u32 s{sL}, s{sL}, s{sPOS}")
        A("v_and_b32 v1, 63, v0")
        A(f"s_mov_b32 s{sMASK}, 0xffff0000")
        pre = self.o.get("pre", 0)
        if pre:
            A("s_waitcnt lgkmcnt(0)")
            n = pre % 10
            kind = pre // 10
            A(f"s_mul_i32 s{sT0}, s{sL}, {n * 4096 + 128}")
            A(f"s_add_u32 s{sT0}, s{sT0}, {32 << 20}")
            A("v_and_b32 v5, 0xff, v0")
            A(f"v_lshl_add_u32 v5, v5, 4, s{sT0}")
            A(f"s_cmp_ge_u32 s{sWAVE}, 4")
            A("s_cbranch_scc1 L_pre")
            if kind in (2, 3):
                A("s_mov_b64 exec, 1")
                A(f"global_load_dword v8, v5, {sp(sWS)}")
                A("s_mov_b64 exec, -1")
                A("s_waitcnt vmcnt(0)")
                if kind == 3:
                    self.nstamp = 0
                    self.names = []
                    self.stamp("start")
            if kind in (8, 9, 10, 11):
                A("v_lshrrev_b32 v12, 1, v0")
                A("v_and_b32 v13, 1, v0")
                A("v_lshlrev_b32 v12, 3, v12")
                A(f"s_lshl_b32 s{sT0}, s{sL}, 13")
                A("v_lshl_add_u32 v14, v13, 12, v12")
                A(f"v_add_u32 v14, s{sT0}, v14")
                for r in range(4):
                    A(f"global_load_dwordx2 v[{16 + 2 * r}:{17 + 2 * r}], v14, s[18:19] offset:{1024 * r}{' nt' if kind != 10 else ''}")
                ny = 0
                if kind in (9, 11):
                    A(f"global_load_dwordx2 v[24:25], v12, {sp(sD)}")
                    A(f"global_load_dwordx2 v[26:27], v12, {sp(sWR)}")
                    A("v_lshlrev_b32 v13, 4, v1")
                    A(f"global_load_dwordx4 v[28:31], v13, {sp(sWR)}")
                    ny = 3
                if kind == 11:
                    A(f"s_load_dword s{sG}, {sp(sWS)}, 0")
                for k in range(n):
                    A(f"global_store_dwordx4 v5, v[8:11], {sp(sWS)} sc1")
                    A("v_add_u32 v5, 4096, v5")
                A(f"s_waitcnt vmcnt({n + ny})")
                self.stamp("pre")
                n = 0
            for k in range(n):
                if kind == 1:
                    A(f"global_load_dwordx4 v[8:11], v5, {sp(sWS)}")
                elif kind == 6:
                    if k == 0:
                        A(f"s_lshl_b32 s{sT0}, s{sL}, 7")
                        A(f"v_mov_b32 v6, s{sT0}")
                        A("s_mov_b64 exec, 1")
                    A(f"global_load_dword v{8 + k}, v6, {sp((sX, sLA, sAI, sCR, sCI, sWG, sWU, sWD, sOUT)[k])}")
                    if k == n - 1:
                        A("s_mov_b64 exec, -1")
                elif kind == 7:
                    if k == 0:
                        A(f"v_lshlrev_b32 v6, 3, v1")
                    A(f"global_load_dwordx2 v[{8 + 2 * k}:{9 + 2 * k}], v6, {sp((sD, sWR)[k])}")
                elif kind == 5:
                    A(f"global_load_dwordx4 v[8:11], v5, {sp(sWS)} nt")
                elif kind == 4:
                    A(f"global_store_dwordx4 v5, v[8:11], {sp(sWS)}")
                else:
                    A(f"global_store_dwordx4 v5, v[8:11], {sp(sWS)} sc1")
                A("v_add_u32 v5, 4096, v5")
            A("s_waitcnt vmcnt(0)")
            if kind < 8:
                self.stamp("pre")
            A("L_pre:")
            A("s_barrier")
        A(f"s_cmp_ge_u32 s{sWAVE}, 4")
        A("s_cbranch_scc1 L_chan")
        self.rows()
        self.names = self.names[:1]
        self.nstamp = min(self.nstamp, 1)
        A(".p2align 6")
        self.role = "C"
        self.chans()
        A("L_end:")
        A("s_endpgm")
        for l in self.tail.L:
            A(l)
        A("L_codeend:")
        lines, nops = A.padded()
        lines, nbytes, promoted, missed = align8(lines)
        self.info = dict(nops=nops, bytes=nbytes, promoted=promoted, missed=missed, lines=len(lines))
        return lines

    def rows(self):
        A = self.A
        o = self.o
        vLANE = 1
        vX, vU, vD, vWR = 212, 10, 18, 20
        vREG, vRD, vAUX = 22, 23, 24
        vKEY, vSW, vRA, vFL, vUW = 26, 27, 28, 29, 30
        vT = 32
        vWG, vWD = 40, 72
        vY = 88
        vONE = 96
        K = 100
        L2E = 1.4426950408889634
        A(f"v_lshrrev_b32 {v(vT)}, 1, v0")
        A(f"v_and_b32 {v(vT + 1)}, 1, v0")
        A(f"v_lshlrev_b32 {v(vT + 2)}, 3, {v(vT)}")
        A(f"s_lshl_b32 s{sT0}, s{sL}, 13")
        A(f"v_lshl_add_u32 {v(vRD)}, {v(vT + 1)}, 12, {v(vT + 2)}")
        A(f"v_add_u32 {v(vRD)}, s{sT0}, {v(vRD)}")
        A(f"s_mul_i32 s{sOWN}, s{sL}, {RS}")
        A(f"s_add_u32 s{sOWN}, s{sOWN}, {W_REG}")
        A(f"s_add_u32 s{sT0}, s{sOWN}, 4096")
        A(f"v_lshl_add_u32 {v(vREG)}, v0, 4, s{sT0}")
        A(f"v_lshlrev_b32 {v(vT + 3)}, 4, {v(vLANE)}")
        nt = ' nt' if o.get('ntx', 1) else ''
        A("s_waitcnt lgkmcnt(0)")
        self.stamp("karg")
        for r in range(4):
            A(f"global_load_dwordx2 {v(vX + 2 * r, 2)}, {v(vRD)}, {sp(sX)} offset:{1024 * r}{nt}")
        A(f"s_load_dword s{sG}, {sp(sWS)}, 0")
        A(f"global_load_dwordx2 {v(vD, 2)}, {v(vT + 2)}, {sp(sD)}")
        A(f"global_load_dwordx2 {v(vWR, 2)}, {v(vT + 2)}, {sp(sWR)}")
        A(f"global_load_dwordx4 {v(vONE, 4)}, {v(vT + 3)}, {sp(sWR)}")
        A(f"s_mov_b32 s{sODD}, 0xaaaaaaaa")
        A(f"s_mov_b32 s{sODD + 1}, 0xaaaaaaaa")
        A(f"s_mov_b32 s{sSELLO}, 0x3f80")
        A(f"s_mov_b32 s{sSELHI}, 0x3f800000")
        A(f"s_mov_b32 s{sONES}, 0x3f803f80")
        A(f"s_and_b32 s{sTMP}, s{sL}, 1")
        A(f"s_lshl_b32 s{sTMP}, s{sTMP}, 12")
        A(f"s_lshr_b32 s{sTMP + 1}, s{sL}, 1")
        A(f"s_lshl_b32 s{sTMP + 1}, s{sTMP + 1}, 5")
        A(f"s_add_u32 s{sTMP}, s{sTMP}, s{sTMP + 1}")
        A(f"s_add_u32 s{sTMP}, s{sTMP}, {W_REG + O_X1}")
        A(f"v_mul_u32_u24 {v(vAUX)}, {RS}, {v(vT)}")
        A(f"v_lshl_add_u32 {v(vAUX)}, {v(vT + 1)}, 4, {v(vAUX)}")
        A(f"v_add_u32 {v(vAUX)}, s{sTMP}, {v(vAUX)}")
        A(f"v_add_u32 {v(vAUX + 1)}, {128 * RS}, {v(vAUX)}")
        FS = o.get("fs", 7)
        KS = o.get("ks", 6)
        A(f"v_lshlrev_b32 {v(vSW)}, 6, {v(vT + 1)}")
        A(f"v_and_b32 {v(vT + 3)}, 4, {v(vLANE)}")
        A(f"v_lshl_add_u32 {v(vSW)}, {v(vT + 3)}, 3, {v(vSW)}")
        A(f"v_and_b32 {v(vT + 3)}, 8, {v(vLANE)}")
        A(f"v_lshl_add_u32 {v(vSW)}, {v(vT + 3)}, 4, {v(vSW)}")
        A(f"v_lshrrev_b32 {v(vT + 3)}, 5, {v(vLANE)}")
        A(f"v_lshl_add_u32 {v(vSW)}, {v(vT + 3)}, 4, {v(vSW)}")
        A(f"s_lshl_b32 s{sTMP}, s{sWAVE}, 2")
        A(f"s_add_u32 s{sTMP}, s{sTMP}, {L_RED1}")
        A(f"v_add_u32 {v(vSW)}, s{sTMP}, {v(vSW)}")
        A(f"v_and_b32 {v(vT + 3)}, 7, {v(vLANE)}")
        A(f"v_lshlrev_b32 {v(vRA)}, 4, {v(vT + 3)}")
        A(f"v_add_u32 {v(vRA)}, {L_RED1}, {v(vRA)}")
        A(f"v_lshlrev_b32 {v(vUW)}, 3, v0")
        A(f"v_mov_b32 {v(vFL)}, 0x9fff9fff")
        A(f"v_mov_b32 {v(K)}, 0")
        A(f"v_mov_b32 {v(K + 1)}, 0")
        A(f"v_min_u32 {v(vT + 3)}, 472, {v(vUW)}")
        A(f"v_add_u32 {v(vT + 3)}, {L_U}, {v(vT + 3)}")
        A(f"v_min_u32 {v(vT + 4)}, 56, {v(vUW)}")
        A(f"v_add_u32 {v(vT + 4)}, {L_P}, {v(vT + 4)}")
        A(f"ds_write2st64_b64 {v(vT + 3)}, {v(K, 2)}, {v(K, 2)} offset0:0 offset1:9")
        A(f"ds_write_b64 {v(vT + 4)}, {v(K, 2)}")
        A(f"ds_write_b64 {v(vT + 4)}, {v(K, 2)} offset:{PC}")
        A(f"v_min_u32 {v(vT + 4)}, 232, {v(vUW)}")
        A(f"v_add_u32 {v(vT + 4)}, {L_P + 64 + 4 * 1028}, {v(vT + 4)}")
        A(f"ds_write_b64 {v(vT + 4)}, {v(K, 2)}")
        A(f"ds_write_b64 {v(vT + 4)}, {v(K, 2)} offset:{PC}")
        A(f"v_min_u32 {v(vT + 4)}, {4 * QC - 8}, {v(vUW)}")
        A(f"v_add_u32 {v(vT + 4)}, {L_Q}, {v(vT + 4)}")
        A(f"ds_write_b64 {v(vT + 4)}, {v(K, 2)}")
        A(f"v_add_u32 {v(vUW)}, {L_U + 480}, {v(vUW)}")

        V = [K + i for i in range(8)]
        A("s_waitcnt vmcnt(3)")
        self.stamp("x")
        for r in range(4):
            A(f"v_dot2_f32_bf16 {v(V[r])}, {v(vX + 2 * r)}, s{sONES}, 0")
        for r in range(4):
            A(f"v_dot2_f32_bf16 {v(V[4 + r])}, {v(vX + 2 * r)}, {v(vX + 2 * r)}, 0")
        for r in range(4):
            A(f"v_dot2_f32_bf16 {v(V[r])}, {v(vX + 2 * r + 1)}, s{sONES}, {v(V[r])}")
        for r in range(4):
            A(f"v_dot2_f32_bf16 {v(V[4 + r])}, {v(vX + 2 * r + 1)}, {v(vX + 2 * r + 1)}, {v(V[4 + r])}")
        self.reduce8(V, K + 8)
        A(f"ds_write_b32 {v(vSW)}, {v(V[0])}")
        A("s_waitcnt lgkmcnt(0)")
        A("s_barrier")
        self.stamp("b1")
        A(f"ds_read_b128 {v(K, 4)}, {v(vRA)}")
        A(f"ds_read_b128 {v(K + 4, 4)}, {v(vRA)} offset:128")
        A(f"s_add_u32 s{sG}, s{sG}, 1")
        for k in range(4):
            A(f"s_add_u32 s{sTAG + k}, s{sG}, {5 * k}")
            A(f"s_and_b32 s{sTAG + k}, s{sTAG + k}, 15")
            A(f"s_mul_i32 s{sTAG + k}, s{sTAG + k}, 0x08002000")
            A(f"s_and_b32 s{sTAG + k}, s{sTAG + k}, 0x60006000")
        A(f"s_mov_b64 vcc, {sp(sODD)}")
        A("s_waitcnt lgkmcnt(0)")
        vNM, vRI = K + 16, K + 20
        self.row_stats(K, K + 4, K + 10, K + 11, K + 12, 2.0 ** 68)
        self.spread(K + 10, vNM, K + 24)
        Dd = K + 32
        for c in range(4):
            for r in range(4):
                A(f"v_dot2_f32_bf16 {v(Dd + 4 * c + r)}, {v(vX + 2 * r + (c >> 1))}, s{sSELHI if c & 1 else sSELLO}, {v(vNM + r)}")
        self.spread(K + 11, vRI, K + 24)
        Pk = K + 48
        for half in range(2):
            ks = range(4 * half, 4 * half + 4)
            if o.get("mid1", 1):
                for k in ks:
                    A(f"v_cvt_pk_bf16_f32 {v(Pk + k)}, {v(Dd + 2 * k)}, {v(Dd + 2 * k + 1)}")
                for k in ks:
                    A(f"v_lshlrev_b32 {v(Dd + 2 * k)}, 16, {v(Pk + k)}")
                    A(f"v_and_b32 {v(Dd + 2 * k + 1)}, s{sMASK}, {v(Pk + k)}")
            for k in ks:
                A(f"v_pk_mul_f32 {v(Dd + 2 * k, 2)}, {v(Dd + 2 * k, 2)}, {v(vRI + 2 * (k & 1), 2)}")
            for k in ks:
                A(f"v_cvt_pk_bf16_f32 {v(vU + k)}, {v(Dd + 2 * k)}, {v(Dd + 2 * k + 1)}")
            for k in ks:
                A(f"v_and_or_b32 {v(Pk + k)}, {v(vU + k)}, {v(vFL)}, s{sTAG + (k & 3)}")
            if half == 0 and o.get("b1b", 1) == 1:
                A("s_barrier")
            A(f"global_store_dwordx4 {v(vREG)}, {v(Pk + 4 * half, 4)}, {sp(sWS)} offset:{-4096 + 4096 * half} sc1")
        self.stamp("x1st")
        b2pos = o.get("b2pos", 0)
        if b2pos == 0:
            A("s_barrier")
        p1 = o.get("p1", 2)
        if p1 == 0:
            A("s_waitcnt vmcnt(0)")
        else:
            A("s_waitcnt vmcnt(2)")
        self.stamp("x1dr")
        xl = [f"global_load_dwordx4 {v(vY, 4)}, {v(vAUX)}, {sp(sWS)} sc1",
              f"global_load_dwordx4 {v(vY + 4, 4)}, {v(vAUX + 1)}, {sp(sWS)} sc1"]
        if p1 < 2:
            for l in xl:
                A(l)
        if b2pos == 1:
            A("s_barrier")
        if o.get("b2b", 1) and p1 < 2:
            A("s_barrier")
        A(f"s_mul_i32 s{sF}, s{sXCD}, 14")
        A(f"s_add_u32 s{sF}, s{sF}, s{sPOS}")
        A(f"s_bitcmp1_b32 s{sWAVE}, 0")
        A(f"s_cselect_b64 {sp(sWSEL)}, {sp(sWU)}, {sp(sWG)}")
        A(f"s_lshr_b32 s{sTMP + 1}, s{sWAVE}, 1")
        A(f"s_mul_i32 s{sTMP + 1}, s{sTMP + 1}, {256 * 3584}")
        A(f"s_lshl_b32 s{sTMP + 2}, s{sF}, 5")
        A(f"s_add_u32 s{sTMP + 1}, s{sTMP + 1}, s{sTMP + 2}")
        vWA = K + 8
        A(f"v_lshrrev_b32 {v(vWA)}, 1, {v(vLANE)}")
        A(f"v_mul_u32_u24 {v(vWA)}, {8 * 3584}, {v(vWA)}")
        A(f"v_lshl_add_u32 {v(vWA)}, {v(vT + 1)}, 4, {v(vWA)}")
        A(f"v_add_u32 {v(vWA)}, s{sTMP + 1}, {v(vWA)}")
        A(f"v_add_u32 {v(vWA + 2)}, {7 * 3584}, {v(vWA)}")
        A(f"v_add_u32 {v(vWA + 1)}, {4 * 3584}, {v(vWA)}")
        A(f"v_add_u32 {v(vWA)}, 3584, {v(vWA)}")
        A(f"s_lshl_b32 s{sTMP + 1}, s{sF}, 14")
        A(f"s_add_u32 s{sTMP + 1}, s{sTMP + 1}, 4096")
        if o.get("wdp", 0) == 3:
            A(f"s_cmp_lt_u32 s{sPOS}, 14")
            A(f"s_cselect_b32 s{sTMP + 1}, s{sTMP + 1}, 4096")
            A(f"s_cselect_b32 s{sTMP + 2}, 4, 0")
            A(f"v_mul_u32_u24 {v(220)}, s{sTMP + 2}, v0")
            A(f"v_add_u32 {v(220)}, s{sTMP + 1}, {v(220)}")
        else:
            A(f"v_lshl_add_u32 {v(220)}, v0, 2, s{sTMP + 1}")
        A(f"v_add_u32 {v(221)}, 8192, {v(220)}")
        f2 = o.get("b1b", 1) == 2
        if f2:
            A(f"v_and_b32 {v(vFL)}, 0xfe, v0")
            A(f"v_lshlrev_b32 {v(vFL)}, 7, {v(vFL)}")
            A(f"v_add_u32 {v(vFL)}, {W_FLAG}, {v(vFL)}")
            A(f"s_mul_i32 s{sT0}, s{sG}, 0x9e3779b1")
        i2 = o.get("i2", 0)
        if i2:
            A(f"s_lshl_b32 s{sTMP}, s{sWAVE}, 11")
            A(f"s_add_u32 s{sTMP}, s{sTMP}, s{sOWN}")
            A(f"s_add_u32 s{sTMP}, s{sTMP}, {O_X2}")
            A(f"v_lshl_add_u32 {v(vWA + 5)}, {v(vLANE)}, 4, s{sTMP}")
            A(f"v_add_u32 {v(vWA + 6)}, {O_SLOT - 4096}, {v(vREG)}")
            A(f"s_lshl_b32 s{sTMP}, s{sL}, {KS}")
            A(f"s_add_u32 s{sTMP}, s{sTMP}, {W_KEY}")
            A(f"v_lshl_add_u32 {v(vWA + 7)}, {v(vLANE)}, 4, s{sTMP}")
            A(f"s_lshl_b32 s{sTMP}, s{sL}, 2")
            A(f"s_add_u32 s{sTMP}, s{sTMP}, s{sWAVE}")
            A(f"s_lshl_b32 s{sTMP}, s{sTMP}, 7")
            A(f"s_add_u32 s{sTMP}, s{sTMP}, {W_FLAG2}")
            A(f"v_lshl_add_u32 {v(vKEY)}, {v(vLANE)}, 4, s{sTMP}")
            A(f"s_lshr_b32 s{sTMP}, s{sL}, 6")
            A(f"s_lshl_b32 s{sTMP}, s{sTMP}, 7")
            A(f"s_add_u32 s{sTMP}, s{sTMP}, {W_FLAG2}")
            A(f"v_and_b32 {v(vFL)}, 0xfe, v0")
            A(f"v_lshl_add_u32 {v(vFL)}, {v(vFL)}, 9, s{sTMP}")
            for k in range(4):
                A(f"v_mov_b32 {v(K + 32 + k)}, -1")
        A(f"v_dot2_f32_bf16 {v(K + 4)}, {v(vONE)}, s{sONES}, 0")
        for k in range(1, 4):
            A(f"v_dot2_f32_bf16 {v(K + 4)}, {v(vONE + k)}, s{sONES}, {v(K + 4)}")
        A(f"v_mov_b32 {v(K + 5)}, {L_SUMW}")
        A(f"s_mov_b32 s{sRP0}, 0x05040100")
        A(f"s_mov_b32 s{sRP1}, 0x07060302")
        for sh in (8, 4, 2, 1):
            A(f"v_add_f32_dpp {v(K + 4)}, {v(K + 4)}, {v(K + 4)} row_ror:{sh} row_mask:0xf bank_mask:0xf")
        A(f"v_add_f32_dpp {v(K + 4)}, {v(K + 4)}, {v(K + 4)} row_bcast:15 row_mask:0xa bank_mask:0xf")
        A(f"v_add_f32_dpp {v(K + 4)}, {v(K + 4)}, {v(K + 4)} row_bcast:31 row_mask:0xc bank_mask:0xf")
        A("s_mov_b32 exec_lo, 0")
        A("s_brev_b32 exec_hi, 1")
        A(f"ds_write_b32 {v(K + 5)}, {v(K + 4)}")
        A("s_mov_b64 exec, -1")
        if p1 == 2:
            if o.get("d1"):
                A(f"s_sleep {o['d1']}")
            for l in xl:
                A(l)
        if not o.get("b2b", 1) or p1 == 2:
            A("s_barrier")
        A("s_waitcnt vmcnt(0)")
        chk8 = [f"v_max3_u32 {v(vT + 6)}, {v(vY)}, {v(vY + 1)}, {v(vY + 2)}",
                f"v_max3_u32 {v(vT + 7)}, {v(vY + 3)}, {v(vY + 4)}, {v(vY + 5)}",
                f"v_max3_u32 {v(vT + 6)}, {v(vT + 6)}, {v(vY + 6)}, {v(vY + 7)}",
                f"v_max_u32 {v(vT + 6)}, {v(vT + 6)}, {v(vT + 7)}",
                f"v_cmp_eq_u32 vcc, -1, {v(vT + 6)}"]
        Z = K + 32
        tchk = [f"v_xor_b32 {v(Z + k)}, s{sTAG + (k & 3)}, {v(vY + k)}" for k in range(8)]
        tchk += [f"v_or3_b32 {v(vT + 6)}, {v(Z)}, {v(Z + 1)}, {v(Z + 2)}",
                 f"v_or3_b32 {v(vT + 7)}, {v(Z + 3)}, {v(Z + 4)}, {v(Z + 5)}",
                 f"v_or3_b32 {v(vT + 6)}, {v(vT + 6)}, {v(Z + 6)}, {v(Z + 7)}",
                 f"v_or_b32 {v(vT + 6)}, {v(vT + 6)}, {v(vT + 7)}",
                 f"v_and_b32 {v(vT + 6)}, 0x60006000, {v(vT + 6)}",
                 "s_nop 1",
                 f"v_or_b32_dpp {v(vT + 6)}, {v(vT + 6)}, {v(vT + 6)} quad_perm:[1,0,3,2] row_mask:0xf bank_mask:0xf",
                 f"v_cmp_ne_u32 vcc, 0, {v(vT + 6)}"]
        self.poll("x1", xl, tchk)
        self.stamp("x1ld")
        A(f"ds_write2st64_b64 {v(vUW)}, {v(Z, 2)}, {v(Z + 2, 2)} offset0:0 offset1:9")
        A(f"ds_write2st64_b64 {v(vUW)}, {v(Z + 4, 2)}, {v(Z + 6, 2)} offset0:4 offset1:13")
        A("s_waitcnt lgkmcnt(0)")
        A("s_barrier")

        fl2 = [f"global_load_dword {v(vT + 4)}, {v(vFL)}, {sp(sWS)} sc1",
               f"global_load_dword {v(vT + 5)}, {v(vFL)}, {sp(sWS)} offset:512 sc1"]
        wl = [f"global_load_dwordx4 {v(vWG + 4 * k, 4)}, {v(vWA + k // 3)}, {sp(sWSEL)} offset:{(k % 3 - 1) * 3584}" for k in range(8)]
        wdl = [f"global_load_dword {v(vWD + k)}, {v(220 + (k >> 3))}, {sp(sWD)} offset:{((k & 7) - 4) * 1024}" for k in range(16)]
        wdp = o.get("wdp", 0)
        if wdp == 0:
            wl = wl + wdl if o.get("wdpf", 0) != 2 else wdl + wl
        flst = ["s_mov_b64 exec, 0xff",
                f"global_store_dwordx4 {v(vKEY)}, {v(K + 28, 4)}, {sp(sWS)} sc1",
                "s_mov_b64 exec, -1"]
        if i2:
            ones = v(K + 32, 4)
            A(f"s_cmp_eq_u32 s{sWAVE}, 0")
            A(f"s_cselect_b64 exec, {(1 << ((1 << KS) // 16)) - 1}, 0")
            A(f"global_store_dwordx4 {v(vWA + 7)}, {ones}, {sp(sWS)} sc1")
            A("s_mov_b64 exec, -1")
            A(f"global_store_dwordx4 {v(vWA + 5)}, {ones}, {sp(sWS)} sc1")
            A(f"global_store_dwordx4 {v(vWA + 5)}, {ones}, {sp(sWS)} offset:1024 sc1")
            A(f"global_store_dwordx4 {v(vWA + 6)}, {ones}, {sp(sWS)} sc1")
        if i2 == 1:
            A("s_waitcnt vmcnt(0)")
            for l in flst:
                A(l)
            self.stamp("init2")
        fl3 = [f"global_load_dword {v(vT + 4)}, {v(vFL)}, {sp(sWS)} sc1",
               f"global_load_dword {v(vT + 5)}, {v(vFL)}, {sp(sWS)} offset:128 sc1"]
        if f2:
            for l in fl3:
                A(l)
        A(f"s_cmp_lt_u32 s{sPOS}, 14")
        A("s_cbranch_scc0 L_now")
        for l in wl:
            A(l)
        self.stamp("wq2")
        if f2:
            A(f"s_waitcnt vmcnt({len(wl)})")
            A("L_now2:")
            self.tail("L_now:")
            self.tail("s_waitcnt vmcnt(0)")
            self.tail("s_branch L_now2")
            self.poll("flag2", fl3, [f"v_xor_b32 {v(vT + 6)}, s{sT0}, {v(vT + 4)}",
                                     f"v_xor_b32 {v(vT + 7)}, s{sT0}, {v(vT + 5)}",
                                     f"v_or_b32 {v(vT + 6)}, {v(vT + 6)}, {v(vT + 7)}",
                                     f"v_cmp_ne_u32 vcc, 0, {v(vT + 6)}"])
        else:
            A("L_now:")
        if o.get("wdpf", 0) == 3:
            A(f"s_mul_i32 s{sTMP}, s{sL}, 7168")
            A(f"s_mul_i32 s{sTMP + 1}, s{sWAVE}, 1792")
            A(f"s_add_u32 s{sTMP}, s{sTMP}, s{sTMP + 1}")
            A(f"v_min_u32 {v(vT + 4)}, 13, {v(vLANE)}")
            A(f"v_lshl_add_u32 {v(vT + 4)}, {v(vT + 4)}, 7, s{sTMP}")
            A("s_mov_b64 exec, 0xffff")
            A(f"global_load_dword v3, {v(vT + 4)}, {sp(sWD)}")
            A("s_mov_b64 exec, -1")
        shp = o.get("shp", 1)
        if shp == 1:
            A("s_barrier")
        if o.get("p2", 3) == 3:
            A("s_barrier")
        A(f"v_and_b32 {v(vT + 3)}, 0xfe, v0")
        A(f"v_mul_u32_u24 {v(vAUX)}, {RS}, {v(vT + 3)}")
        A(f"v_lshl_add_u32 {v(vAUX)}, {v(vT + 1)}, 4, {v(vAUX)}")
        A(f"s_lshl_b32 s{sTMP}, s{sL}, 5")
        A(f"s_add_u32 s{sTMP}, s{sTMP}, {W_REG + O_X2}")
        A(f"v_add_u32 {v(vAUX)}, s{sTMP}, {v(vAUX)}")
        A(f"v_add_u32 {v(vAUX + 1)}, {RS}, {v(vAUX)}")
        Tt, Xf = K + 40, K + 56
        Df = K + 72
        for k in range(8):
            A(f"v_lshlrev_b32 {v(Tt + 2 * k)}, 16, {v(vU + k)}")
            A(f"v_and_b32 {v(Tt + 2 * k + 1)}, s{sMASK}, {v(vU + k)}")
        A(f"v_lshlrev_b32 {v(Df)}, 16, {v(vD)}")
        A(f"v_and_b32 {v(Df + 1)}, s{sMASK}, {v(vD)}")
        A(f"v_lshlrev_b32 {v(Df + 2)}, 16, {v(vD + 1)}")
        A(f"v_and_b32 {v(Df + 3)}, s{sMASK}, {v(vD + 1)}")
        for k in range(4):
            A(f"v_mul_f32 {v(Df + k)}, {hex(f2u(2.0 ** 68))}, {v(Df + k)}")
        for k in range(8):
            c = k >> 1
            sel = "op_sel:[1,0] op_sel_hi:[1,1]" if c & 1 else "op_sel_hi:[0,1]"
            A(f"v_pk_mul_f32 {v(Tt + 2 * k, 2)}, {v(Df + (c & 2), 2)}, {v(Tt + 2 * k, 2)} {sel}")
        for k in range(8):
            A(f"v_cvt_pk_bf16_f32 {v(Xf + k)}, {v(Tt + 2 * k)}, {v(Tt + 2 * k + 1)}")
        for k in range(8):
            A(f"v_lshlrev_b32 {v(Tt + 2 * k)}, 16, {v(Xf + k)}")
            A(f"v_and_b32 {v(Tt + 2 * k + 1)}, s{sMASK}, {v(Xf + k)}")
        for r in range(4):
            for c in range(4):
                src = v(vX + 2 * r + (c >> 1))
                if c & 1:
                    A(f"v_and_b32 {v(Xf + 4 * c + r)}, s{sMASK}, {src}")
                else:
                    A(f"v_lshlrev_b32 {v(Xf + 4 * c + r)}, 16, {src}")
        if not o.get("mid2", 1):
            for k in range(8):
                A(f"v_pk_add_f32 {v(Xf + 2 * k, 2)}, {v(Xf + 2 * k, 2)}, {v(Tt + 2 * k, 2)}")
        vTW, vTS, vTO, vSL = vUW, vFL, 31, vKEY
        A(f"s_mul_i32 s{sTMP}, s{sWAVE}, {3 * WTILE}")
        A(f"s_add_u32 s{sTMP}, s{sTMP}, {L_TILE}")
        A(f"v_mul_u32_u24 {v(vTW)}, {4 * WST}, {v(vT + 1)}")
        A(f"v_lshrrev_b32 {v(vT + 3)}, 1, {v(vLANE)}")
        A(f"v_lshl_add_u32 {v(vTW)}, {v(vT + 3)}, 3, {v(vTW)}")
        A(f"v_add_u32 {v(vTW)}, s{sTMP}, {v(vTW)}")
        A(f"v_lshrrev_b32 {v(vT + 3)}, 4, {v(vLANE)}")
        A(f"v_and_b32 {v(vT + 4)}, 15, {v(vLANE)}")
        A(f"v_lshl_add_u32 {v(vT + 5)}, {v(vT + 4)}, 4, s{sTMP}")
        A(f"s_movk_i32 s{sTMP}, {WST}")
        A(f"v_mad_u32_u24 {v(vTO)}, {v(vT + 3)}, s{sTMP}, {v(vT + 5)}")
        A(f"s_movk_i32 s{sTMP}, {WTILE}")
        A(f"v_mad_u32_u24 {v(vTS)}, {v(vT + 3)}, s{sTMP}, {v(vT + 5)}")
        A(f"v_lshlrev_b32 {v(vT + 4)}, 4, {v(vT + 4)}")
        A(f"v_lshl_add_u32 {v(vT + 4)}, {v(vT + 3)}, 10, {v(vT + 4)}")
        A(f"s_lshl_b32 s{sTMP}, s{sWAVE}, 8")
        A(f"s_add_u32 s{sTMP + 1}, s{sTMP}, s{sOWN}")
        A(f"s_add_u32 s{sTMP + 1}, s{sTMP + 1}, {O_SLOT}")
        A(f"v_add_u32 {v(vSL)}, s{sTMP + 1}, {v(vT + 4)}")
        A(f"s_lshl_b32 s{sTMP + 1}, s{sL}, 13")
        A(f"s_add_u32 s{sTMP}, s{sTMP}, s{sTMP + 1}")
        A(f"s_add_u32 s{sTMP}, s{sTMP}, 4096")
        A(f"v_add_u32 {v(vRD)}, s{sTMP}, {v(vT + 4)}")
        vF = 4
        A(f"s_lshr_b32 s{sTMP}, s{sWAVE}, 1")
        A(f"s_lshl_b32 s{sTMP}, s{sTMP}, 9")
        A(f"s_add_u32 s{sTMP}, s{sTMP}, {W_REG + O_SLOT}")
        A(f"v_lshrrev_b32 {v(vF)}, 1, {v(vLANE)}")
        A(f"v_lshl_add_u32 {v(vF)}, {v(vF)}, 4, s{sTMP}")
        A(f"v_lshlrev_b32 {v(vF + 1)}, 6, {v(vT + 1)}")
        A(f"v_and_b32 {v(vF + 2)}, 12, {v(vLANE)}")
        A(f"v_lshl_add_u32 {v(vF + 1)}, {v(vF + 2)}, 2, {v(vF + 1)}")
        A(f"v_lshrrev_b32 {v(vF + 2)}, 5, {v(vLANE)}")
        A(f"v_lshl_add_u32 {v(vF + 1)}, {v(vF + 2)}, 3, {v(vF + 1)}")
        A(f"s_and_b32 s{sTMP}, s{sWAVE}, 1")
        A(f"s_lshl_b32 s{sTMP}, s{sTMP}, 7")
        A(f"s_lshr_b32 s{sTMP + 1}, s{sWAVE}, 1")
        A(f"s_lshl_b32 s{sTMP + 1}, s{sTMP + 1}, 2")
        A(f"s_add_u32 s{sTMP}, s{sTMP}, s{sTMP + 1}")
        A(f"s_add_u32 s{sTMP}, s{sTMP}, {L_REDF}")
        A(f"v_add_u32 {v(vF + 1)}, s{sTMP}, {v(vF + 1)}")
        A(f"v_and_b32 {v(vF + 2)}, 15, {v(vLANE)}")
        A(f"v_lshlrev_b32 {v(vF + 2)}, 3, {v(vF + 2)}")
        A(f"v_add_u32 {v(vF + 2)}, {L_REDF}, {v(vF + 2)}")
        A(f"s_add_u32 s{sTMP}, s{sOWN}, {O_PART}")
        A(f"v_lshl_add_u32 {v(vF + 3)}, v0, 3, s{sTMP}")
        A(f"v_mov_b32 {v(8)}, {L_REDK}")
        self.stamp("shadow")
        if shp == 0:
            A("s_barrier")
        if i2:
            for l in fl2:
                A(l)
            A("s_waitcnt vmcnt(0)")
            self.poll("flag2", fl2, flchk)
            self.stamp("flag2")
        p2 = o.get("p2", 3)
        if p2 == 0:
            A("s_barrier")
        self.stamp("b4b")
        if p2 < 2:
            for l in xl:
                A(l)
            A("s_waitcnt vmcnt(2)")
        else:
            A(f"s_waitcnt vmcnt({1 if o.get('wdpf', 0) == 3 else 0})")
        WGp = K + 80
        for kp in range(4):
            for d in range(4):
                lo, hi = vWG + 8 * kp + d, vWG + 8 * kp + 4 + d
                A(f"v_perm_b32 {v(WGp + 8 * kp + 2 * d)}, {v(hi)}, {v(lo)}, s{sRP0}")
                A(f"v_perm_b32 {v(WGp + 8 * kp + 2 * d + 1)}, {v(hi)}, {v(lo)}, s{sRP1}")
        WDp = vWG
        wdperm = []
        for kp in range(8):
            lo, hi = vWD + 2 * kp, vWD + 2 * kp + 1
            wdperm.append(f"v_perm_b32 {v(WDp + 2 * kp)}, {v(hi)}, {v(lo)}, s{sRP0}")
            wdperm.append(f"v_perm_b32 {v(WDp + 2 * kp + 1)}, {v(hi)}, {v(lo)}, s{sRP1}")
        if wdp == 0:
            for l in wdperm:
                A(l)
        if p2 >= 2:
            if o.get("d2"):
                A(f"s_sleep {o['d2']}")
            for l in xl:
                A(l)
        if wdp == 3:
            for l in wdl:
                A(l)
        A(f"s_waitcnt vmcnt({16 if wdp == 3 else 0})")
        self.poll("x2", xl, chk8)
        self.stamp("x2ld")

        if o.get("mid2", 1):
            for k in range(8):
                A(f"v_dot2_f32_bf16 {v(Tt + 2 * k)}, {v(vY + k)}, s{sSELLO}, {v(Tt + 2 * k)}")
                A(f"v_dot2_f32_bf16 {v(Tt + 2 * k + 1)}, {v(vY + k)}, s{sSELHI}, {v(Tt + 2 * k + 1)}")
            for k in range(8):
                A(f"v_cvt_pk_bf16_f32 {v(vY + k)}, {v(Tt + 2 * k)}, {v(Tt + 2 * k + 1)}")
        for k in range(8):
            A(f"v_dot2_f32_bf16 {v(Xf + 2 * k)}, {v(vY + k)}, s{sSELLO}, {v(Xf + 2 * k)}")
            A(f"v_dot2_f32_bf16 {v(Xf + 2 * k + 1)}, {v(vY + k)}, s{sSELHI}, {v(Xf + 2 * k + 1)}")
        vH = vX
        for cp in range(2):
            for r in range(4):
                A(f"v_cvt_pk_bf16_f32 {v(vH + 2 * r + cp)}, {v(Xf + 8 * cp + r)}, {v(Xf + 8 * cp + 4 + r)}")
        Rr = [K + 8 + i for i in range(4)]
        for cp in range(2):
            for r in range(4):
                A(f"v_dot2_f32_bf16 {v(V[r])}, {v(vH + 2 * r + cp)}, s{sONES}, {v(V[r]) if cp else 0}")
            for r in range(4):
                A(f"v_dot2_f32_bf16 {v(V[4 + r])}, {v(vH + 2 * r + cp)}, {v(vH + 2 * r + cp)}, {v(V[4 + r]) if cp else 0}")
            for r in range(4):
                A(f"v_dot2_f32_bf16 {v(Rr[r])}, {v(vH + 2 * r + cp)}, {v(vWR + cp)}, {v(Rr[r]) if cp else 0}")
        for i in range(4):
            A(f"v_add_f32_dpp {v(V[i])}, {v(V[i])}, {v(V[i])} row_ror:8 row_mask:0xf bank_mask:0x3")
        for i in range(4):
            A(f"v_add_f32_dpp {v(V[i])}, {v(V[i + 4])}, {v(V[i + 4])} row_ror:8 row_mask:0xf bank_mask:0xc")
        for i in range(2):
            A(f"v_add_f32_dpp {v(Rr[i])}, {v(Rr[i])}, {v(Rr[i])} row_shl:4 row_mask:0xf bank_mask:0x5")
        for i in range(2):
            A(f"v_add_f32_dpp {v(Rr[i])}, {v(Rr[i + 2])}, {v(Rr[i + 2])} row_shr:4 row_mask:0xf bank_mask:0xa")
        for i in range(2):
            A(f"v_add_f32_dpp {v(V[i])}, {v(V[i])}, {v(V[i])} row_shl:4 row_mask:0xf bank_mask:0x5")
        for i in range(2):
            A(f"v_add_f32_dpp {v(V[i])}, {v(V[i + 2])}, {v(V[i + 2])} row_shr:4 row_mask:0xf bank_mask:0xa")
        A(f"v_permlane32_swap_b32 {v(Rr[0])}, {v(Rr[1])}")
        A(f"v_and_b32 {v(K + 13)}, 0xffffff7f, {v(vSW)}")
        A(f"v_permlane32_swap_b32 {v(V[0])}, {v(V[1])}")
        A(f"v_add_f32 {v(Rr[0])}, {v(Rr[0])}, {v(Rr[1])}")
        A(f"v_add_f32 {v(V[0])}, {v(V[0])}, {v(V[1])}")
        A(f"s_mov_b64 vcc, {sp(sODD)}")
        A(f"v_add_f32_dpp {v(Rr[0])}, {v(Rr[0])}, {v(Rr[0])} row_ror:8 row_mask:0xf bank_mask:0xf")
        A(f"v_add_f32_dpp {v(V[0])}, {v(V[0])}, {v(V[0])} quad_perm:[2,3,0,1] row_mask:0xf bank_mask:0xf")
        A(f"v_mov_b32 {v(V[1])}, {v(V[0])}")
        A(f"v_add_f32_dpp {v(Rr[0])}, {v(Rr[0])}, {v(Rr[0])} quad_perm:[2,3,0,1] row_mask:0xf bank_mask:0xf")
        A(f"v_mov_b32 {v(Rr[1])}, {v(Rr[0])}")
        A(f"v_permlane16_swap_b32 {v(V[0])}, {v(V[1])}")
        A(f"v_add_f32 {v(V[0])}, {v(V[0])}, {v(V[1])}")
        A(f"v_permlane16_swap_b32 {v(Rr[0])}, {v(Rr[1])}")
        A(f"v_add_f32 {v(Rr[0])}, {v(Rr[0])}, {v(Rr[1])}")
        A(f"ds_write_b32 {v(vSW)}, {v(V[0])} offset:{L_RED2 - L_RED1}")
        A(f"ds_write_b32 {v(K + 13)}, {v(Rr[0])} offset:{L_RED2 - L_RED1 + 256}")
        A("s_waitcnt lgkmcnt(0)")
        A("s_barrier")
        self.stamp("b5")
        Hf, Dd = Xf, Tt
        self.key_calc(K, vRA, vLANE)
        for r in range(4):
            A(f"ds_write_b64 {v(vTW)}, {v(vH + 2 * r, 2)} offset:{WTILE + r * WST}")
        self.spread(K + 12, vNM, K + 24)
        A(f"v_readfirstlane_b32 s{sBEST}, {v(K + 8)}")
        for r in range(4):
            for cp in range(2):
                A(f"v_lshlrev_b32 {v(Hf + 4 * r + 2 * cp)}, 16, {v(vH + 2 * r + cp)}")
                A(f"v_and_b32 {v(Hf + 4 * r + 2 * cp + 1)}, s{sMASK}, {v(vH + 2 * r + cp)}")
        self.spread(K + 13, vRI, K + 24)
        for k in range(8):
            r = k >> 1
            sel = "op_sel:[1,0] op_sel_hi:[1,1]" if r & 1 else "op_sel_hi:[0,1]"
            A(f"v_pk_add_f32 {v(Dd + 2 * k, 2)}, {v(vNM + (r & 2), 2)}, {v(Hf + 2 * k, 2)} {sel}")
        vX2 = vU
        if o.get("pace", 5) == 1:
            A("s_barrier")
        for k in range(8):
            A(f"v_cvt_pk_bf16_f32 {v(vX2 + k)}, {v(Dd + 2 * k)}, {v(Dd + 2 * k + 1)}")
        for k in range(8):
            A(f"v_lshlrev_b32 {v(Dd + 2 * k)}, 16, {v(vX2 + k)}")
            A(f"v_and_b32 {v(Dd + 2 * k + 1)}, s{sMASK}, {v(vX2 + k)}")
        for k in range(8):
            r = k >> 1
            sel = "op_sel:[1,0] op_sel_hi:[1,1]" if r & 1 else "op_sel_hi:[0,1]"
            A(f"v_pk_mul_f32 {v(Dd + 2 * k, 2)}, {v(vRI + (r & 2), 2)}, {v(Dd + 2 * k, 2)} {sel}")
        for k in range(8):
            A(f"v_cvt_pk_bf16_f32 {v(vX2 + k)}, {v(Dd + 2 * k)}, {v(Dd + 2 * k + 1)}")
        if o.get("pace", 5) == 2:
            A("s_barrier")
        for r in range(4):
            A(f"ds_write_b64 {v(vTW)}, {v(vX2 + 2 * r, 2)} offset:{r * WST}")
        A(f"s_andn2_b32 s{sTMP}, 7, s{sBEST}")
        A(f"s_mul_i32 s{sTMP + 1}, s{sTMP}, {WST}")
        A(f"v_add_u32 {v(vTS)}, s{sTMP + 1}, {v(vTS)}")
        A(f"ds_read_b128 {v(K + 24, 4)}, {v(vTS)}")
        A(f"s_mov_b32 s{sCAND}, s{sTMP}")
        A("s_mov_b32 exec_hi, 0")
        A("s_waitcnt lgkmcnt(0)")
        A(f"global_store_dwordx4 {v(vSL)}, {v(K + 24, 4)}, {sp(sWS)} sc1")
        A("s_mov_b32 exec_hi, -1")
        self.stamp("slot")
        if o.get("pace", 5) == 3:
            A("s_barrier")
        if wdp == 2:
            A(f"s_cmp_lt_u32 s{sPOS}, 14")
            A("s_cselect_b64 exec, -1, 0")
            for l in wdl:
                A(l)
            A("s_mov_b64 exec, -1")
        vO = vU
        osc = " sc1" if o.get("outsc", 1) == 1 else ""
        olate = o.get("olate", 0)
        ost = [f"global_store_dwordx4 {v(vRD)}, {v(vO + 4 * i, 4)}, {sp(sOUT)} offset:{4096 * i - 4096}{osc}" for i in range(2)]

        def outcode():
            for k in range(8):
                A(f"v_dot2_f32_bf16 {v(Hf + 2 * k)}, {v(vX2 + k)}, s{sSELLO}, {v(Hf + 2 * k)}")
                A(f"v_dot2_f32_bf16 {v(Hf + 2 * k + 1)}, {v(vX2 + k)}, s{sSELHI}, {v(Hf + 2 * k + 1)}")
            for k in range(8):
                A(f"v_cvt_pk_bf16_f32 {v(vY + k)}, {v(Hf + 2 * k)}, {v(Hf + 2 * k + 1)}")
            if o.get("pace", 5) == 5:
                A("s_barrier")
            for r in range(4):
                A(f"ds_write_b64 {v(vTW)}, {v(vY + 2 * r, 2)} offset:{2 * WTILE + r * WST}")
            for i in range(2):
                A(f"ds_read_b128 {v(vO + 4 * i, 4)}, {v(vTO)} offset:{2 * WTILE + 4 * i * WST}")
            A(f"s_and_b32 s{sTMP + 1}, s{sCAND}, 3")
            A(f"s_lshl_b32 s{sTMP + 1}, s{sTMP + 1}, 4")
            A(f"s_mov_b64 {sp(sE)}, 0xffff")
            A(f"s_lshl_b64 {sp(sE)}, {sp(sE)}, s{sTMP + 1}")
            A(f"s_lshr_b32 s{sCAND}, s{sCAND}, 2")
            A("s_waitcnt lgkmcnt(0)")
            if not olate:
                for i in range(2):
                    A(f"s_cmp_eq_u32 s{sCAND}, {i}")
                    A(f"s_cselect_b64 vcc, {sp(sE)}, 0")
                    A("s_not_b64 exec, vcc")
                    A(ost[i])
                A("s_mov_b64 exec, -1")
        opos = o.get("opos", 0)
        if opos == 0:
            outcode()
        if wdp == 3:
            A("s_waitcnt vmcnt(3)")
            for l in wdperm:
                A(l)
        if o.get("pace", 5) == 4:
            A("s_barrier")
        A("s_barrier")
        A(f"ds_read_b32 {v(K)}, {v(8)}")
        A(f"s_cmp_lt_u32 s{sPOS}, 14")
        A("s_cselect_b64 vcc, -1, 0")
        A("s_waitcnt lgkmcnt(0)")
        A(f"v_readfirstlane_b32 s{sWIN}, {v(K)}")
        seladdr = [f"s_andn2_b32 s{sT0}, 2047, s{sWIN}",
                   f"s_lshr_b32 s{sT1}, s{sT0}, 3",
                   f"s_mul_i32 s{sT1}, s{sT1}, {RS}",
                   f"v_add_u32 {v(vT)}, s{sT1}, {v(vF)}"]
        for l in seladdr:
            A(l)
        sl = [f"global_load_dwordx4 {v(K, 4)}, {v(vT)}, {sp(sWS)} sc1"]
        A("s_mov_b64 exec, vcc")
        A(sl[0])
        if wdp == 1:
            for l in wdl:
                A(l)
        A("s_mov_b64 exec, -1")
        self.stamp("win")
        if opos == 1:
            outcode()
        self.stamp("outst")
        A(f"s_cmp_lt_u32 s{sPOS}, 14")
        A("s_cbranch_scc0 L_noffn")
        A(f"s_waitcnt vmcnt({(16 if wdp == 1 else 0) + (2 if opos == 1 else 0)})")
        A("L_selwait:")
        self.poll("sel", sl, [f"v_max3_u32 {v(vT + 6)}, {v(K)}, {v(K + 1)}, {v(K + 2)}",
                              f"v_max_u32 {v(vT + 6)}, {v(vT + 6)}, {v(K + 3)}",
                              f"v_cmp_eq_u32 vcc, -1, {v(vT + 6)}"])
        self.stamp("sel")
        V2 = [K + 8 + i for i in range(8)]
        for kp in range(4):
            for c in range(8):
                A(f"v_dot2_f32_bf16 {v(V2[c])}, {v(K + kp)}, {v(WGp + 8 * kp + c)}, {v(V2[c]) if kp else 0}")
        self.reduce8(V2, K + 16)
        A(f"ds_write_b32 {v(vF + 1)}, {v(V2[0])}")
        if wdp in (1, 2):
            A(f"s_waitcnt vmcnt({2 if opos == 1 else 0})")
            for l in wdperm:
                A(l)
        A("s_waitcnt lgkmcnt(0)")
        A("s_barrier")
        self.stamp("b7")
        A(f"ds_read_b64 {v(K, 2)}, {v(vF + 2)}")
        A(f"ds_read_b64 {v(K + 2, 2)}, {v(vF + 2)} offset:128")
        A("s_waitcnt lgkmcnt(0)")
        A(f"v_add_f32 {v(K)}, {v(K)}, {v(K + 1)}")
        A(f"v_add_f32 {v(K + 2)}, {v(K + 2)}, {v(K + 3)}")
        A(f"v_cvt_pk_bf16_f32 {v(K + 1)}, {v(K)}, {v(K + 2)}")
        A(f"v_lshlrev_b32 {v(K)}, 16, {v(K + 1)}")
        A(f"v_mul_f32 {v(K + 3)}, {hex(f2u(-L2E))}, {v(K)}")
        A(f"v_exp_f32 {v(K + 3)}, {v(K + 3)}")
        A(f"v_and_b32 {v(K + 2)}, s{sMASK}, {v(K + 1)}")
        A(f"v_add_f32 {v(K + 3)}, 1.0, {v(K + 3)}")
        A(f"v_rcp_f32 {v(K + 3)}, {v(K + 3)}")
        A(f"v_mul_f32 {v(K)}, {v(K)}, {v(K + 3)}")
        A(f"v_cvt_pk_bf16_f32 {v(K)}, {v(K)}, {v(K)}")
        A(f"v_and_b32 {v(K)}, s{sMASK}, {v(K)}")
        A(f"v_mul_f32 {v(K)}, {v(K)}, {v(K + 2)}")
        A(f"v_mov_b32_dpp {v(K + 1)}, {v(K)} quad_perm:[1,1,3,3] row_mask:0xf bank_mask:0xf")
        A(f"v_cvt_pk_bf16_f32 {v(K)}, {v(K)}, {v(K + 1)}")
        for kp in range(8):
            A(f"v_readlane_b32 s{sH + kp}, {v(K)}, {2 * kp}")
        for kp in range(8):
            for c in range(2):
                A(f"v_dot2_f32_bf16 {v(K + 4 + c)}, s{sH + kp}, {v(WDp + 2 * kp + c)}, {v(K + 4 + c) if kp else 0}")
        A(f"global_store_dwordx2 {v(vF + 3)}, {v(K + 4, 2)}, {sp(sWS)} sc1")
        self.stamp("part")
        held = [f"s_cmp_eq_u32 s{sWIN}, s{sBEST}",
                f"s_cselect_b32 s{sCAND}, s{sCAND}, 8" if olate else f"s_cselect_b32 s{sCAND}, 8, s{sCAND}"]
        for i in range(2):
            held += [f"s_cmp_eq_u32 s{sCAND}, {i}"]
            if olate:
                held += [f"s_cselect_b64 vcc, {sp(sE)}, 0", "s_not_b64 exec, vcc"]
            else:
                held += [f"s_cselect_b64 exec, {sp(sE)}, 0"]
            held += [ost[i]]
        held += ["s_mov_b64 exec, -1"]
        gen_st = [f"s_lshl_b32 s{sTMP}, s{sL}, 2",
                  f"s_add_u32 s{sTMP}, s{sTMP}, s{sWAVE}",
                  f"s_cmp_eq_u32 s{sTMP}, 3",
                  "s_cselect_b64 exec, 1, 0",
                  f"v_mov_b32 {v(vT + 4)}, s{sG}",
                  f"v_mov_b32 {v(vT + 5)}, 0",
                  f"global_store_dword {v(vT + 5)}, {v(vT + 4)}, {sp(sWS)} sc1"]
        T = self.tail
        if o.get("fc", 0):
            A("L_noffn:")
            for l in held + gen_st:
                A(l)
        else:
            T("L_noffn:")
            for l in held + gen_st:
                T(l)
            T("s_branch L_fin")
            A(f"s_cmp_lt_u32 s{sPOS}, 8")
            A("s_cbranch_scc0 L_noffn")
            A(f"s_cmp_lt_u32 s{sWAVE}, 2")
            A("s_cbranch_scc0 L_noffn")
            if not olate:
                for l in held:
                    A(l)
            A(f"s_lshl_b32 s{sTMP}, s{sXCD}, 3")
            A(f"s_add_u32 s{sTMP}, s{sTMP}, s{sPOS}")
            A(f"s_lshl_b32 s{sTMP}, s{sTMP}, 1")
            A(f"s_add_u32 s{sTMP}, s{sTMP}, s{sWAVE}")
            A(f"v_lshrrev_b32 {v(vT)}, 5, {v(vLANE)}")
            A(f"v_bfe_u32 {v(vT + 1)}, {v(vLANE)}, 4, 1")
            A(f"v_lshl_add_u32 {v(vT)}, {v(vT + 1)}, 1, {v(vT)}")
            A(f"s_lshl_b32 s{sTMP + 1}, s{sTMP}, 3")
            A(f"v_lshl_add_u32 {v(vT)}, {v(vT)}, 1, s{sTMP + 1}")
            A(f"s_add_u32 s{sT1}, s{sT1}, {W_REG + O_SLOT}")
            A(f"v_add_u32 {v(vT + 1)}, s{sT1}, {v(vT)}")
            xh = [f"global_load_ushort {v(K + 20)}, {v(vT + 1)}, {sp(sWS)} sc1",
                  f"global_load_ushort {v(K + 21)}, {v(vT + 1)}, {sp(sWS)} offset:1024 sc1"]
            for l in xh:
                A(l)
            A(f"s_lshl_b32 s{sTMP + 1}, s{sT0}, 10")
            A(f"v_add_u32 {v(vT)}, s{sTMP + 1}, {v(vT)}")
            A(f"v_min_u32 {v(vT + 2)}, 55, {v(vLANE)}")
            A(f"v_mul_u32_u24 {v(vT + 3)}, 4682, {v(vT + 2)}")
            A(f"v_lshrrev_b32 {v(vT + 3)}, 16, {v(vT + 3)}")
            A(f"v_mad_u32_u24 {v(vT + 2)}, {v(vT + 3)}, 18, {v(vT + 2)}")
            A(f"v_mul_u32_u24 {v(vT + 2)}, {RS}, {v(vT + 2)}")
            A(f"s_lshl_b32 s{sTMP + 1}, s{sTMP}, 4")
            A(f"s_add_u32 s{sTMP + 1}, s{sTMP + 1}, {W_REG + O_PART}")
            A(f"v_add_u32 {v(vT + 2)}, s{sTMP + 1}, {v(vT + 2)}")
            A(f"v_add_u32 {v(vT + 3)}, {128 * RS}, {v(vT + 2)}")
            A(f"s_ashr_i32 s{sTMP + 2}, s{sWIN}, 31")
            A(f"s_not_b32 s{sTMP + 2}, s{sTMP + 2}")
            A(f"s_or_b32 s{sTMP + 2}, s{sTMP + 2}, 0x80000000")
            A(f"s_xor_b32 s{sTMP + 2}, s{sTMP + 2}, s{sWIN}")
            A(f"s_and_b32 s{sTMP + 2}, s{sTMP + 2}, 0xfffff800")
            A(f"s_or_b32 s{sTMP + 2}, s{sTMP + 2}, 0x400")
            A(f"v_cvt_pk_bf16_f32 {v(K + 22)}, s{sTMP + 2}, s{sTMP + 2}")
            A(f"v_and_b32 {v(K + 22)}, s{sMASK}, {v(K + 22)}")
            A(f"v_mul_f32 {v(K + 22)}, {hex(f2u(-L2E))}, {v(K + 22)}")
            A(f"v_exp_f32 {v(K + 22)}, {v(K + 22)}")
            A(f"v_add_f32 {v(K + 22)}, 1.0, {v(K + 22)}")
            A(f"v_rcp_f32 {v(K + 22)}, {v(K + 22)}")
            A(f"v_cvt_pk_bf16_f32 {v(K + 22)}, {v(K + 22)}, {v(K + 22)}")
            A(f"v_and_b32 {v(K + 22)}, s{sMASK}, {v(K + 22)}")
            p4 = o.get("p4", 0)
            if p4 == 0:
                A("s_waitcnt vmcnt(0)")
            if o.get("d4"):
                A(f"s_sleep {o['d4']}")
            self.stamp("partdr")
            pl = [f"global_load_dwordx4 {v(vY, 4)}, {v(vT + 2)}, {sp(sWS)} sc1",
                  f"global_load_dwordx4 {v(vY + 4, 4)}, {v(vT + 3)}, {sp(sWS)} sc1"]
            for l in pl:
                A(l)
            if olate:
                for l in held:
                    A(l)
            if p4:
                A(f"s_waitcnt vmcnt({4 if olate else 2})")
            self.poll("xh", xh, [f"v_max_u32 {v(vT + 6)}, {v(K + 20)}, {v(K + 21)}",
                                 f"v_cmp_eq_u32 vcc, 0xffff, {v(vT + 6)}"])
            A(f"v_lshlrev_b32 {v(K + 20)}, 16, {v(K + 20)}")
            A(f"v_lshlrev_b32 {v(K + 21)}, 16, {v(K + 21)}")
            A(f"s_waitcnt vmcnt({2 if olate else 0})")
            self.poll("part", pl, chk8)
            self.stamp("partld")
            A(f"v_cmp_gt_u32 vcc, 56, {v(vLANE)}")
            A(f"v_pk_add_f32 {v(vY, 2)}, {v(vY, 2)}, {v(vY + 4, 2)}")
            A(f"v_pk_add_f32 {v(vY + 2, 2)}, {v(vY + 2, 2)}, {v(vY + 6, 2)}")
            for c in range(4):
                A(f"v_cndmask_b32 {v(vY + c)}, 0, {v(vY + c)}, vcc")
            A(f"v_permlane32_swap_b32 {v(vY)}, {v(vY + 1)}")
            A(f"v_permlane32_swap_b32 {v(vY + 2)}, {v(vY + 3)}")
            A(f"v_add_f32 {v(vY)}, {v(vY)}, {v(vY + 1)}")
            A(f"v_add_f32 {v(vY + 2)}, {v(vY + 2)}, {v(vY + 3)}")
            A(f"v_permlane16_swap_b32 {v(vY)}, {v(vY + 2)}")
            A(f"v_add_f32 {v(vY)}, {v(vY)}, {v(vY + 2)}")
            for sh in (8, 4, 2, 1):
                A(f"v_add_f32_dpp {v(vY)}, {v(vY)}, {v(vY)} row_ror:{sh} row_mask:0xf bank_mask:0xf")
            y = vY
            A(f"v_cvt_pk_bf16_f32 {v(y)}, {v(y)}, {v(y)}")
            A(f"v_and_b32 {v(y)}, s{sMASK}, {v(y)}")
            A(f"v_mul_f32 {v(y)}, {v(y)}, {v(K + 22)}")
            A(f"v_cvt_pk_bf16_f32 {v(y)}, {v(y)}, {v(y)}")
            A(f"v_and_b32 {v(y)}, s{sMASK}, {v(y)}")
            A(f"v_add_f32 {v(y)}, {v(y)}, {v(K + 20)}")
            A(f"v_cvt_pk_bf16_f32 {v(y)}, {v(y)}, {v(y)}")
            A(f"v_and_b32 {v(y)}, s{sMASK}, {v(y)}")
            A(f"v_add_f32 {v(y)}, {v(y)}, {v(K + 21)}")
            A(f"v_cvt_pk_bf16_f32 {v(y)}, {v(y)}, {v(y)}")
            A("s_mov_b32 exec_lo, 0x00010001")
            A("s_mov_b32 exec_hi, 0x00010001")
            A(f"global_store_short {v(vT)}, {v(y)}, {sp(sOUT)}")
        A("L_fin:")
        self.finish("R")

    def chans(self):
        A = self.A
        o = self.o
        vLANE = 1
        vAA, vBA, vEW, vER, vRA = 4, 12, 13, 14, 15
        vKA0, vKA1, vKB, vPW0, vPW1 = 16, 17, 18, 19, 20
        vP = 24
        vT = 28
        vACC = 40
        vA0, vA1, vB0, vB1 = 72, 104, 136, 168
        K = 72
        A("L_chan:")
        A("v_and_b32 v0, 0xff, v0")
        A(f"s_sub_u32 s{sWAVE}, s{sWAVE}, 4")
        A(f"s_lshl_b32 s{sT0}, s{sL}, 9")
        A(f"v_lshl_add_u32 {v(vT)}, v0, 1, s{sT0}")
        A(f"s_lshl_b32 s{sT1}, s{sL}, 2")
        A("s_waitcnt lgkmcnt(0)")
        self.stamp("karg")
        for k, s in enumerate((sLA, sAI, sCR, sCI)):
            A(f"global_load_ushort {v(vP + k)}, {v(vT)}, {sp(s)}{' nt' if o.get('ntx', 1) else ''}")
        A(f"s_load_dword s{sDT}, {sp(sLDT)}, s{sT1}")
        f2 = o.get("b1b", 1) == 2
        if f2:
            A(f"s_load_dword s{sG}, {sp(sWS)}, 0")
        ntlb = 0
        if o.get("tlb", 0):
            A("v_mov_b32 v2, 0")
            A("s_mov_b64 exec, 1")
            for sb in (sWG, sWU, sWD, sOUT):
                A(f"global_load_dword v3, v2, {sp(sb)}")
                ntlb += 1
            A("s_mov_b64 exec, -1")
        vJ, vGq = vT + 4, vT + 5
        A(f"v_and_b32 {v(vJ)}, 15, {v(vLANE)}")
        A(f"v_lshrrev_b32 {v(vGq)}, 4, {v(vLANE)}")
        A(f"s_lshr_b32 s{sT0}, s{sWAVE}, 1")
        A(f"s_and_b32 s{sT1}, s{sWAVE}, 1")
        A(f"v_and_b32 {v(vT)}, 7, {v(vLANE)}")
        A(f"v_lshlrev_b32 {v(vRA)}, 4, {v(vT)}")
        A(f"v_add_u32 {v(vRA)}, {L_RED1}, {v(vRA)}")
        A(f"s_mul_i32 s{sTMP}, s{sT0}, {PC}")
        A(f"s_lshl_b32 s{sTMP + 1}, s{sT1}, 7")
        A(f"s_add_u32 s{sTMP}, s{sTMP}, s{sTMP + 1}")
        A(f"s_add_u32 s{sTMP}, s{sTMP}, {L_P + 4 * 26}")
        A(f"v_lshlrev_b32 {v(vT)}, 3, {v(vGq)}")
        A(f"v_sub_u32 {v(vT)}, {v(vJ)}, {v(vT)}")
        A(f"v_lshl_add_u32 {v(vAA)}, {v(vT)}, 2, s{sTMP}")
        for m in range(1, 5):
            A(f"v_add_u32 {v(vAA + m)}, {1024 * m}, {v(vAA)}")
        KS = o.get("ks", 6)
        for k in range(4):
            A(f"v_mov_b32 {v(vACC + k)}, -1")
        A(f"s_mul_i32 s{sTMP}, s{sL}, {RS}")
        A(f"s_add_u32 s{sTMP}, s{sTMP}, {W_REG + 4096}")
        A(f"v_lshl_add_u32 {v(vACC + 4)}, v0, 4, s{sTMP}")
        A(f"v_add_u32 {v(vACC + 5)}, 8192, {v(vACC + 4)}")
        A(f"v_add_u32 {v(vACC + 6)}, 12288, {v(vACC + 4)}")
        A(f"s_lshl_b32 s{sTMP}, s{sL}, {KS}")
        A(f"s_add_u32 s{sTMP}, s{sTMP}, {W_KEY}")
        A(f"v_lshl_add_u32 {v(22)}, {v(vLANE)}, 4, s{sTMP}")
        ones = v(vACC, 4)
        inits = [f"s_cmp_eq_u32 s{sWAVE}, 0",
                 f"s_cselect_b64 exec, {(1 << ((1 << KS) // 16)) - 1}, 0",
                 f"global_store_dwordx4 {v(22)}, {ones}, {sp(sWS)} sc1",
                 "s_mov_b64 exec, -1",
                 f"global_store_dwordx4 {v(vACC + 5)}, {ones}, {sp(sWS)} offset:-4096 sc1",
                 f"global_store_dwordx4 {v(vACC + 5)}, {ones}, {sp(sWS)} sc1",
                 f"global_store_dwordx4 {v(vACC + 6)}, {ones}, {sp(sWS)} sc1"]
        ninit = 3
        ilate = o.get("ilate", 0)
        if not ilate:
            for l in inits:
                A(l)
        vg, vr = vT, vT + 1
        A(f"v_lshrrev_b32 {v(vg)}, 2, {v(vJ)}")
        A(f"v_and_b32 {v(vr)}, 3, {v(vJ)}")
        A(f"s_cmp_eq_u32 s{sT1}, 0")
        A("s_cbranch_scc0 L_rows_hi")
        A(f"v_mov_b32 {v(vKA0)}, {v(vJ)}")
        A(f"v_lshl_add_u32 {v(vKA1)}, {v(vg)}, 1, {v(vr)}")
        A(f"v_add_u32 {v(vKA1)}, 16, {v(vKA1)}")
        A(f"v_add_u32 {v(vT + 2)}, -4, {v(vJ)}")
        A(f"v_and_b32 {v(vT + 2)}, 15, {v(vT + 2)}")
        A(f"v_cmp_eq_u32 vcc, 3, {v(vr)}")
        A(f"v_cndmask_b32 {v(vKA1)}, {v(vKA1)}, {v(vT + 2)}, vcc")
        A(f"v_lshl_add_u32 {v(vPW0)}, {v(vJ)}, 2, {v(vGq)}")
        A(f"v_lshlrev_b32 {v(vPW0)}, 4, {v(vPW0)}")
        A(f"v_add_u32 {v(vPW1)}, 1024, {v(vPW0)}")
        A("s_branch L_rows_done")
        A("L_rows_hi:")
        A(f"v_lshrrev_b32 {v(vT + 2)}, 1, {v(vg)}")
        A(f"v_lshl_add_u32 {v(vKA0)}, {v(vg)}, 1, {v(vr)}")
        A(f"v_add3_u32 {v(vKA0)}, {v(vKA0)}, {v(vT + 2)}, 25")
        A(f"v_sub_u32 {v(vKA1)}, {v(vJ)}, {v(vg)}")
        A(f"v_add_u32 {v(vKA1)}, 35, {v(vKA1)}")
        A(f"v_lshrrev_b32 {v(vT + 2)}, 1, {v(vGq)}")
        A(f"v_lshl_add_u32 {v(vPW0)}, {v(vT + 2)}, 4, {v(vJ)}")
        A(f"v_and_b32 {v(vT + 2)}, 1, {v(vGq)}")
        A(f"v_lshl_add_u32 {v(vPW0)}, {v(vPW0)}, 1, {v(vT + 2)}")
        A(f"v_lshlrev_b32 {v(vPW0)}, 5, {v(vPW0)}")
        A(f"v_add_u32 {v(vPW0)}, 2048, {v(vPW0)}")
        A(f"s_mul_i32 s{sTMP}, s{sT0}, {2 * QC - PC}")
        A(f"s_add_u32 s{sTMP}, s{sTMP}, {L_Q + 4 * 32 - L_P - 64}")
        A(f"v_lshl_add_u32 {v(vPW1)}, {v(vLANE)}, 2, s{sTMP}")
        A("L_rows_done:")
        A(f"s_mul_i32 s{sTMP}, s{sT0}, {PC}")
        A(f"s_add_u32 s{sTMP}, s{sTMP}, {L_P + 64}")
        A(f"v_add_u32 {v(vPW0)}, s{sTMP}, {v(vPW0)}")
        A(f"v_add_u32 {v(vPW1)}, s{sTMP}, {v(vPW1)}")
        A(f"s_mul_i32 s{sTMP}, s{sT0}, {TABC}")
        A(f"v_lshl_add_u32 {v(vT + 2)}, {v(vGq)}, 4, s{sTMP}")
        A(f"s_movk_i32 s{sTMP + 1}, {ROWB}")
        A(f"v_mad_u32_u24 {v(vKA0)}, {v(vKA0)}, s{sTMP + 1}, {v(vT + 2)}")
        A(f"v_mad_u32_u24 {v(vKA1)}, {v(vKA1)}, s{sTMP + 1}, {v(vT + 2)}")
        A(f"v_mad_u32_u24 {v(vKB)}, {v(vJ)}, s{sTMP + 1}, {v(vT + 2)}")
        A(f"s_lshl_b32 s{sTMP + 1}, s{sT1}, 8")
        A(f"s_add_u32 m0, s{sTMP}, s{sTMP + 1}")
        A(f"s_mul_i32 s{sTMP}, s{sXCD}, 448")
        A(f"s_and_b32 s{sTMP}, s{sTMP}, 0xffffff80")
        A(f"s_mul_i32 s{sTMP + 1}, s{sPOS}, {16 * 3584}")
        A(f"s_add_u32 s{sTMP}, s{sTMP}, s{sTMP + 1}")
        A(f"v_lshrrev_b32 {v(vT + 2)}, 2, {v(vLANE)}")
        A(f"v_mul_u32_u24 {v(vT + 2)}, 3584, {v(vT + 2)}")
        A(f"v_and_b32 {v(vT + 3)}, 3, {v(vLANE)}")
        A(f"v_lshl_add_u32 {v(vT + 2)}, {v(vT + 3)}, 7, {v(vT + 2)}")
        A(f"v_add_u32 {v(vT + 2)}, s{sTMP}, {v(vT + 2)}")
        A(f"s_mul_i32 s{sTMP}, s{sL}, 7168")
        A(f"s_mul_i32 s{sTMP + 1}, s{sT1}, 3584")
        A(f"s_add_u32 s{sTMP}, s{sTMP}, s{sTMP + 1}")
        A(f"v_min_u32 {v(vT + 3)}, 27, {v(vLANE)}")
        A(f"v_lshl_add_u32 {v(vT + 3)}, {v(vT + 3)}, 7, s{sTMP}")
        A(f"s_cmp_eq_u32 s{sT1}, 0")
        A(f"s_cselect_b64 {sp(sWSEL)}, {sp(sWG)}, {sp(sWU)}")
        A(f"s_cmp_eq_u32 s{sT0}, 0")
        A(f"s_cselect_b64 {sp(sWSEL)}, {sp(sWSEL)}, {sp(sWD)}")
        A("s_cselect_b64 vcc, -1, 0")
        A(f"v_cndmask_b32 {v(21)}, {v(vT + 3)}, {v(vT + 2)}, vcc")
        if o.get("wdpf", 0):
            A(f"s_cmp_eq_u32 s{sT1}, 0")
            A(f"s_cselect_b64 {sp(sWSEL)}, {sp(sWG)}, {sp(sWU)}")
            A(f"s_mul_i32 s{sTMP}, s{sT0}, {8 * 3584}")
            A(f"v_add_u32 {v(21)}, s{sTMP}, {v(vT + 2)}")
            A(f"v_cmp_gt_u32 vcc, 32, {v(vLANE)}")
            A(f"v_cndmask_b32 {v(21)}, 0, {v(21)}, vcc")
        wpf = f"global_load_dword v3, v21, {sp(sWSEL)}{' nt' if o.get('ntw', 0) else ''}"
        if o.get("wpf", 2) == 2:
            A(wpf)

        L2E = 1.4426950408889634
        l2e_hi = struct.unpack("<f", struct.pack("<f", L2E))[0]
        l2e_lo = L2E - l2e_hi
        a, b = K, K + 2
        A(f"s_mov_b32 s{sE}, {hex(f2u(l2e_hi))}")
        A(f"s_mov_b32 s{sE + 1}, {hex(f2u(l2e_lo))}")
        if o.get("b1b", 1):
            A("s_barrier")
        A(f"s_waitcnt vmcnt({(1 if o.get('wpf', 2) == 2 else 0) + (0 if ilate else ninit) + ntlb}) lgkmcnt(0)")
        self.stamp("par")
        if o.get("prio", 2) == 2:
            A("s_setprio 2")
        if ilate:
            for l in inits:
                A(l)
        if o.get("wpf", 2) == 6:
            A(wpf)
        A(f"s_lshl_b32 s{sTMP}, s{sDT}, 16")
        A(f"s_and_b32 s{sTMP + 1}, s{sDT}, s{sMASK}")
        A(f"s_cmp_lt_u32 s{sWAVE}, 2")
        A(f"s_cselect_b32 s{sDT}, s{sTMP}, s{sTMP + 1}")
        A(f"v_lshlrev_b32 {v(a)}, 16, {v(vP)}")
        A(f"v_mov_b32 {v(a + 1)}, s{sDT}")
        A(f"v_pk_mul_f32 {v(b, 2)}, {v(a, 2)}, {sp(sE)} op_sel_hi:[1,0]")
        A(f"v_pk_fma_f32 {v(b + 2, 2)}, {v(a, 2)}, {sp(sE)}, {v(b, 2)} op_sel_hi:[1,0,1] neg_lo:[0,0,1] neg_hi:[0,0,1]")
        A(f"v_exp_f32 {v(b)}, {v(b)}")
        A(f"v_exp_f32 {v(b + 1)}, {v(b + 1)}")
        A(f"v_pk_fma_f32 {v(b + 2, 2)}, {sp(sE)}, {v(a, 2)}, {v(b + 2, 2)} op_sel:[1,0,0] op_sel_hi:[1,1,1]")
        A(f"v_mul_f32 {v(b + 2)}, {hex(f2u(0.6931471805599453))}, {v(b + 2)}")
        A(f"v_mul_f32 {v(b + 3)}, {hex(f2u(0.6931471805599453))}, {v(b + 3)}")
        A(f"v_pk_fma_f32 {v(b, 2)}, {v(b, 2)}, {v(b + 2, 2)}, {v(b, 2)}")
        A(f"v_cvt_pk_bf16_f32 {v(a)}, {v(b)}, {v(b + 1)}")
        vdt, va2, vph = K + 6, K + 7, K + 8
        A(f"v_and_b32 {v(vdt)}, s{sMASK}, {v(a)}")
        A(f"v_lshlrev_b32 {v(va2)}, 16, {v(a)}")
        A(f"v_lshlrev_b32 {v(vph)}, 16, {v(vP + 1)}")
        A(f"v_mul_f32 {v(va2)}, {v(va2)}, {v(vdt)}")
        A(f"v_mul_f32 {v(vph)}, {v(vph)}, {v(vdt)}")
        A(f"v_mul_f32 {v(va2)}, {hex(f2u(-l2e_hi))}, {v(va2)}")
        A(f"v_mul_f32 {v(vph)}, 0.15915494, {v(vph)}")
        Wp = {p: K + 10 + 2 * p for p in range(1, 17)}
        Zp = {p: K + 42 + 2 * p for p in range(1, 8)}
        G = [K + 58, K + 60]
        TT = [K + 62, K + 64, K + 66, K + 68]
        RR = [K + 70, K + 72, K + 74, K + 76]
        CV = K + 80
        A(f"v_mul_f32 {v(vdt)}, {hex(f2u(2.0 ** 69))}, {v(vdt)}")
        A(f"v_lshlrev_b32 {v(G[0])}, 16, {v(vP + 2)}")
        A(f"v_lshlrev_b32 {v(G[0] + 1)}, 16, {v(vP + 3)}")
        A(f"v_mul_f32 {v(G[0])}, {v(G[0])}, {v(vdt)}")
        A(f"v_mul_f32 {v(G[0] + 1)}, {v(G[0] + 1)}, {v(vdt)}")
        for n, (dst, sc) in enumerate(((Wp[1], 1.0), (Wp[16], 16.0), (Zp[1], 256.0))):
            t = TT[n]
            if sc == 1.0:
                A(f"v_exp_f32 {v(t)}, {v(va2)}")
                A(f"v_fract_f32 {v(t + 1)}, {v(vph)}")
            else:
                A(f"v_mul_f32 {v(t)}, {hex(f2u(sc))}, {v(va2)}")
                A(f"v_mul_f32 {v(t + 1)}, {hex(f2u(sc))}, {v(vph)}")
                A(f"v_exp_f32 {v(t)}, {v(t)}")
                A(f"v_fract_f32 {v(t + 1)}, {v(t + 1)}")
            A(f"v_cos_f32 {v(dst)}, {v(t + 1)}")
            A(f"v_sin_f32 {v(dst + 1)}, {v(t + 1)}")
        for n, dst in enumerate((Wp[1], Wp[16], Zp[1])):
            A(f"v_pk_mul_f32 {v(dst, 2)}, {v(dst, 2)}, {v(TT[n], 2)} op_sel_hi:[1,0]")
        jobs = [(1, Wp[1], None, None, 0), (16, Zp[1], None, None, 0), (47, G[0], None, None, 1)]
        wj = []
        for p in range(2, 16):
            hb = 1 << (p.bit_length() - 1)
            x, y = (p // 2, p // 2) if hb == p else (hb, p - hb)
            wj.append((p, Wp[p], Wp[x], Wp[y], 0))
        gj = [(47 + j, G[j & 1], G[(j - 1) & 1], Wp[16], 1) for j in range(1, 16)]
        zrow = {2: 25, 3: 30, 4: 35, 5: 38, 6: 41, 7: 44}
        zj = []
        for p in range(2, 8):
            hb = 1 << (p.bit_length() - 1)
            x, y = (p // 2, p // 2) if hb == p else (hb, p - hb)
            zj.append((zrow[p], Zp[p], Zp[x], Zp[y], 0))
        tj = [(16 + k, None, Zp[1], Wp[2 * k], 0) for k in range(1, 9)]
        for z in (2, 3):
            tj += [(zrow[z] + k, None, Zp[z], Wp[4 * k], 0) for k in range(1, 5)]
        for z in (4, 5, 6, 7):
            tj += [(zrow[z] + k, None, Zp[z], Wp[8 * k], 0) for k in range(1, 3)]
        first = []
        for i in range(max(len(wj), len(gj), len(zj))):
            for q in (wj, gj, zj):
                if i < len(q):
                    first.append(q[i])
        jobs += first + tj
        A(f"v_mov_b32 {v(CV + 15)}, 0x3f80")
        pend = [(0, CV + 15)]
        slot = 0
        nb = 0
        b1_at = o.get("b1_at", 4)
        batch = o.get("batch", 6)

        def do_b1():
            self.stamp("setup")
            A(f"s_waitcnt vmcnt({1 if (o.get('wpf', 2) == 2 and not ilate) or o.get('wpf', 2) == 6 else 0})")
            self.stamp("idr")
            A("s_barrier")
            self.stamp("b1")
            if o.get("wpf", 2) == 1:
                A(wpf)
        if f2:
            b1_at = -1
            A(f"s_add_u32 s{sG}, s{sG}, 1")
            A(f"s_mul_i32 s{sG}, s{sG}, 0x9e3779b1")
            A(f"s_lshl_b32 s{sTMP}, s{sL}, 7")
            A(f"s_add_u32 s{sTMP}, s{sTMP}, {W_FLAG}")
            A(f"v_lshl_add_u32 {v(23)}, {v(vLANE)}, 4, s{sTMP}")
            for k in range(4):
                A(f"v_mov_b32 {v(vACC + 8 + k)}, s{sG}")
        if b1_at == 0:
            do_b1()
        for n, (row, dst, x, y, conj) in enumerate(jobs):
            if x is not None:
                if dst is None:
                    dst = RR[n & 3]
                for ins in self.cmul(dst, x, y, TT[n & 3]):
                    A(ins)
            A(f"v_cvt_pk_bf16_f32 {v(CV + slot)}, {v(dst)}, {'-' if conj else ''}{v(dst + 1)}")
            pend.append((row, CV + slot))
            slot = (slot + 1) % 15
            if len(pend) >= batch or n == len(jobs) - 1:
                for row_, reg in pend:
                    A(f"ds_write_addtid_b32 {v(reg)} offset:{row_ * ROWB}")
                pend = []
                nb += 1
                if nb == b1_at:
                    do_b1()
        if f2:
            A(f"s_waitcnt vmcnt({1 if (o.get('wpf', 2) == 2 and not ilate) or o.get('wpf', 2) == 6 else 0})")
        A("s_waitcnt lgkmcnt(0)")
        self.stamp("kgen1")
        A("s_barrier")
        if f2:
            A(f"s_cmp_eq_u32 s{sWAVE}, 0")
            A("s_cselect_b64 exec, 0xff, 0")
            A(f"global_store_dwordx4 {v(23)}, {v(vACC + 8, 4)}, {sp(sWS)} sc1")
            A("s_mov_b64 exec, -1")
        if o.get("wpf", 2) == 3:
            A(wpf)
        self.stamp("b2")
        fB, fA0, fA1 = K, K + 32, K + 64
        for s in range(4):
            A(f"ds_read_b128 {v(fB + 4 * s, 4)}, {v(vKB)} offset:{47 * ROWB + 64 * s}")
            A(f"ds_read_b128 {v(fA0 + 4 * s, 4)}, {v(vKA0)} offset:{64 * s}")
            A(f"ds_read_b128 {v(fA1 + 4 * s, 4)}, {v(vKA1)} offset:{64 * s}")
        D0, D1 = vACC, vACC + 4
        for s in range(8):
            s2 = s + 4
            A(f"s_waitcnt lgkmcnt({9 if s2 < 8 else 3 * (7 - s)})")
            c0 = "0" if s == 0 else v(D0, 4)
            c1 = "0" if s == 0 else v(D1, 4)
            A(f"v_mfma_f32_16x16x32_bf16 {v(D0, 4)}, {v(fA0 + 4 * s, 4)}, {v(fB + 4 * s, 4)}, {c0}")
            if s2 < 8:
                A(f"ds_read_b128 {v(fB + 4 * s2, 4)}, {v(vKB)} offset:{47 * ROWB + 64 * s2}")
                A(f"ds_read_b128 {v(fA0 + 4 * s2, 4)}, {v(vKA0)} offset:{64 * s2}")
            A(f"v_mfma_f32_16x16x32_bf16 {v(D1, 4)}, {v(fA1 + 4 * s, 4)}, {v(fB + 4 * s, 4)}, {c1}")
            if s2 < 8:
                A(f"ds_read_b128 {v(fA1 + 4 * s2, 4)}, {v(vKA1)} offset:{64 * s2}")
        E = K + 96
        self.stamp("kmf")
        A(f"s_bitcmp1_b32 s{sWAVE}, 0")
        A(f"v_cmp_eq_u32 vcc, 0, {v(vLANE)}")
        A("s_nop 5")
        A("s_cbranch_scc0 L_exp_lo")
        seq2 = ["aa", "aa", "aa", "ba", "bb", "bb", "cb", "cc"]
        seq3 = ["aa", "aa", "aa", "aa", "aa", "ba", "bb", "bb", "bb", "bb", "cb", "cc", "cc", "cc"]
        ix = {"a": 0, "b": 1, "c": 2}
        A(f"v_mov_b32_dpp {v(E + 10)}, {v(D1 + 1)} wave_shr:1 row_mask:0xf bank_mask:0xf bound_ctrl:0")
        A(f"v_cndmask_b32 {v(E + 11)}, {v(D1)}, 0, vcc")
        for k in range(5):
            A(f"v_cvt_pk_bf16_f32 {v(E + 12 + k)}, {v(D1)}, {v(D1)}")
        A(f"v_cvt_pk_bf16_f32 {v(E + 17)}, 0, {v(D1)}")
        A(f"v_cvt_pk_bf16_f32 {v(E + 8)}, {v(D1 + 2)}, {v(E + 11)}")
        A(f"v_cvt_pk_bf16_f32 {v(E + 9)}, {v(D1 + 1)}, {v(E + 10)}")
        for k, s in enumerate(seq2):
            A(f"v_cvt_pk_bf16_f32 {v(E + k)}, {v(D0 + ix[s[0]])}, {v(D0 + ix[s[1]])}")
        A(f"ds_write2_b32 {v(vPW1)}, {v(E + 8)}, {v(E + 9)} offset0:0 offset1:{QC // 4}")
        A(f"ds_write_b128 {v(vPW0)}, {v(E, 4)}")
        A(f"ds_write_b128 {v(vPW0)}, {v(E + 4, 4)} offset:16")
        A("s_mov_b64 exec, 1")
        A(f"ds_write_b128 {v(vPW0)}, {v(E + 12, 4)} offset:2048")
        A(f"ds_write_b64 {v(vPW0)}, {v(E + 16, 2)} offset:2064")
        A("s_mov_b64 exec, -1")
        A("s_branch L_exp_done")
        A("L_exp_lo:")
        A(f"v_mov_b32_dpp {v(D1 + 3)}, {v(D1 + 3)} row_ror:1 row_mask:0x1 bank_mask:0xf")
        A(f"v_cvt_pk_bf16_f32 {v(E + 1)}, {v(D0 + 1)}, {v(D0)}")
        A(f"v_cvt_pk_bf16_f32 {v(E + 2)}, {v(D0 + 2)}, {v(D0 + 1)}")
        A(f"v_cvt_pk_bf16_f32 {v(E + 3)}, {v(D0 + 3)}, {v(D0 + 2)}")
        A(f"v_cndmask_b32 {v(E + 8)}, {v(D1 + 3)}, 0, vcc")
        A(f"v_cndmask_b32 {v(E + 9)}, {v(D1)}, {v(D1 + 3)}, vcc")
        A(f"v_cvt_pk_bf16_f32 {v(E)}, {v(D0)}, {v(E + 8)}")
        A(f"v_cvt_pk_bf16_f32 {v(E + 4)}, {v(D1)}, {v(E + 9)}")
        A(f"v_cvt_pk_bf16_f32 {v(E + 5)}, {v(D1)}, {v(D1)}")
        A(f"v_cvt_pk_bf16_f32 {v(E + 6)}, {v(D1 + 1)}, {v(D1)}")
        A(f"v_cvt_pk_bf16_f32 {v(E + 7)}, {v(D1 + 2)}, {v(D1 + 1)}")
        A(f"ds_write_b128 {v(vPW0)}, {v(E, 4)}")
        A(f"ds_write_b128 {v(vPW1)}, {v(E + 4, 4)}")
        A("L_exp_done:")
        T = self.tail
        A("s_waitcnt lgkmcnt(0)")
        self.stamp("kgen2")
        A("s_barrier")
        self.stamp("b2b")
        if o.get("wpf", 2) == 4:
            A(wpf)

        def rdA(buf, rho, m):
            return [f"ds_read2_b32 {v(buf + 4 * m, 2)}, {v(vAA + m)} offset0:{64 * rho + 6} offset1:{64 * rho + 4}",
                    f"ds_read2_b32 {v(buf + 4 * m + 2, 2)}, {v(vAA + m)} offset0:{64 * rho + 2} offset1:{64 * rho}"]

        def rdB(buf, rho, n):
            return [f"ds_read_b128 {v(buf + 4 * n, 4)}, {v(vBA)} offset:{128 * (3 - rho) + 512 * (7 - n)}"]

        for m in range(5):
            for l in rdA(vA0, 0, m):
                A(l)
        vFA, vQA, vBOX = vAA + 5, vAA + 6, 200
        A(f"s_mul_i32 s{sTMP}, s{sT0}, {UC}")
        A(f"s_lshl_b32 s{sTMP + 1}, s{sT1}, 4")
        A(f"s_add_u32 s{sTMP}, s{sTMP}, s{sTMP + 1}")
        A(f"s_add_u32 s{sTMP}, s{sTMP}, {L_U + 480 - 48}")
        A(f"v_lshl_add_u32 {v(vT + 1)}, {v(vJ)}, 1, {v(vGq)}")
        A(f"v_lshl_add_u32 {v(vFA)}, {v(vT + 1)}, 4, s{sTMP}")
        A(f"s_mul_i32 s{sTMP}, s{sWAVE}, {QC}")
        A(f"s_add_u32 s{sTMP}, s{sTMP}, {L_Q + 4 * (64 - 18 - 32)}")
        A(f"v_lshlrev_b32 {v(vT + 1)}, 2, {v(vGq)}")
        A(f"v_sub_u32 {v(vT + 1)}, {v(vJ)}, {v(vT + 1)}")
        A(f"v_lshl_add_u32 {v(vQA)}, {v(vT + 1)}, 2, s{sTMP}")
        A(f"s_lshr_b32 s{sTMP}, 0x1ff, s{sT1}")
        A(f"s_andn2_b32 s{sTMP}, s{sTMP}, s{sT1}")
        A(f"s_lshl_b32 s{sTMP}, s{sTMP}, 4")
        A(f"v_lshlrev_b32 {v(vT + 1)}, {v(vJ)}, s{sTMP}")
        A(f"v_lshlrev_b32 {v(vT + 2)}, 3, {v(vGq)}")
        A(f"v_lshrrev_b32 {v(vT + 1)}, {v(vT + 2)}, {v(vT + 1)}")
        for d in range(4):
            A(f"v_bfe_u32 {v(vT + 2)}, {v(vT + 1)}, {2 * d}, 1")
            A(f"v_bfe_u32 {v(vT + 3)}, {v(vT + 1)}, {2 * d + 1}, 1")
            A(f"v_lshl_add_u32 {v(vT + 2)}, {v(vT + 3)}, 16, {v(vT + 2)}")
            A(f"v_mul_u32_u24 {v(vBOX + d)}, 0x3f80, {v(vT + 2)}")
        A(f"s_mul_i32 s{sTMP}, s{sT0}, {UC}")
        A(f"s_lshl_b32 s{sTMP + 1}, s{sT1}, 6")
        A(f"s_sub_u32 s{sTMP}, s{sTMP}, s{sTMP + 1}")
        A(f"s_add_u32 s{sTMP}, s{sTMP}, {L_U + 64}")
        A(f"v_lshl_add_u32 {v(vT + 6)}, {v(vJ)}, 1, {v(vGq)}")
        A(f"v_lshl_add_u32 {v(vBA)}, {v(vT + 6)}, 4, s{sTMP}")
        A(f"v_lshl_add_u32 {v(vT + 6)}, {v(vJ)}, 2, {v(vGq)}")
        A(f"v_lshrrev_b32 {v(vT + 1)}, 3, {v(vT + 6)}")
        A(f"v_add_u32 {v(vT + 6)}, {v(vT + 6)}, {v(vT + 1)}")
        A(f"s_mul_i32 s{sTMP}, s{sWAVE}, {8 * TBS}")
        A(f"v_lshl_add_u32 {v(vEW)}, {v(vT + 6)}, 4, s{sTMP}")
        A(f"v_lshrrev_b32 {v(vT + 1)}, 3, {v(vLANE)}")
        A(f"v_add_u32 {v(vT + 6)}, {v(vLANE)}, {v(vT + 1)}")
        A(f"s_mul_i32 s{sTMP}, s{sWAVE}, {2 * TBS}")
        A(f"v_lshl_add_u32 {v(vER)}, {v(vT + 6)}, 4, s{sTMP}")
        A(f"s_mul_i32 s{sTMP}, s{sL}, {RS}")
        A(f"s_lshl_b32 s{sTMP + 1}, s{sWAVE}, 11")
        A(f"s_add_u32 s{sTMP}, s{sTMP}, s{sTMP + 1}")
        A(f"s_add_u32 s{sTMP}, s{sTMP}, {W_REG + O_X2}")
        A(f"v_lshl_add_u32 {v(vT)}, {v(vLANE)}, 4, s{sTMP}")
        A("s_waitcnt lgkmcnt(0)")
        self.stamp("apre")
        A("s_barrier")
        self.stamp("b3")
        if o.get("wpf", 2) == 5:
            A(wpf)
        if o.get("prio", 2):
            A("s_setprio 2")

        bufA, bufB = [vA0, vA1], [vB0, vB1]
        for n in range(7, -1, -1):
            for l in rdB(vB0, 0, n):
                A(l)
        started = set()
        vFF, vDP, vQF = vA1 + 16, 204, [vA0 + 20, vA0 + 24, vA0 + 28, 220]
        vSF = vFF
        for rho in range(4):
            a_, b_ = bufA[rho & 1], bufB[rho & 1]
            mmax = 4 if rho == 0 else 3
            order = [(n - 7 + tb, tb, n) for n in range(7, -1, -1) for tb in range(7 - n, 8) if n - 7 + tb <= mmax]
            if rho == 3:
                order = [(n - 7 + tb, tb, n) for tb in range(8) for n in range(7 - tb, 8) if n - 7 + tb <= mmax]
            ops = [("d", m, tb, n) for (m, tb, n) in order]
            fill = []
            valu = []
            if rho + 1 < 4:
                nb_, na_ = bufB[(rho + 1) & 1], bufA[(rho + 1) & 1]
                for m in range(8):
                    fill += rdB(nb_, rho + 1, 7 - m)
                    if m < 4:
                        fill += rdA(na_, rho + 1, m)
            if rho == 0:
                fill += [f"ds_read_b128 {v(vFF + 4 * b, 4)}, {v(vFA)} offset:{512 * b}" for b in range(4)]
            if rho == 1:
                ops = [("b", b) for b in range(4)] + ops
                for q in range(4):
                    fill += [f"ds_read2_b32 {v(vQF[q], 2)}, {v(vQA)} offset0:{16 * q + 18} offset1:{16 * q + 16}",
                             f"ds_read2_b32 {v(vQF[q] + 2, 2)}, {v(vQA)} offset0:{16 * q + 2} offset1:{16 * q}"]
                valu = [f"v_cvt_pk_bf16_f32 {v(vSF + k)}, {v(vDP + 2 * k)}, {v(vDP + 2 * k + 1)}" for k in range(8)]
            if rho == 2:
                ops = [("f", 4, 0, 0), ("f", 5, 0, 1), ("f", 6, 0, 2), ("f", 7, 0, 3), ("f", 6, 1, 0), ("f", 7, 1, 1)] + ops
            issued = 0
            seen = set()
            done_at = {}
            for i, op in enumerate(ops):
                if op[0] == "d":
                    done_at[op[2]] = i
            for i, op in enumerate(ops):
                if rho == 0 and op[3] not in seen:
                    A(f"s_waitcnt lgkmcnt({min(15, op[3] + issued)})")
                    seen.add(op[3])
                elif i == 0:
                    A("s_waitcnt lgkmcnt(0)")
                if op[0] == "d":
                    _, m, tb, n = op
                    acc = v(vACC + 4 * tb, 4)
                    c = acc if tb in started else "0"
                    started.add(tb)
                    A(f"v_mfma_f32_16x16x32_bf16 {acc}, {v(a_ + 4 * m, 4)}, {v(b_ + 4 * n, 4)}, {c}")
                elif op[0] == "b":
                    A(f"v_mfma_f32_16x16x32_bf16 {v(vDP + 4 * op[1], 4)}, {v(vFF + 4 * op[1], 4)}, {v(vBOX, 4)}, 0")
                else:
                    _, tb, ks, q = op
                    acc = v(vACC + 4 * tb, 4)
                    A(f"v_mfma_f32_16x16x32_bf16 {acc}, {v(vSF + 4 * ks, 4)}, {v(vQF[q], 4)}, {acc}")
                if i >= 1 and fill:
                    A(fill.pop(0))
                    issued += 1
                if i >= 12 and valu:
                    A(valu.pop(0))
                if rho == 3:
                    for t in range(7):
                        if done_at[t] + 8 == i or (i == len(ops) - 1 and done_at[t] + 8 > i):
                            A(f"ds_write_b128 {v(vEW)}, {v(vACC + 4 * t, 4)} offset:{t * TBS}")
            assert not fill and not valu, (rho, len(fill), len(valu))
        A(f"ds_write_b128 {v(vEW)}, {v(vACC + 28, 4)} offset:{7 * TBS}")
        self.stamp("conv")
        A("s_waitcnt lgkmcnt(0)")
        A("s_barrier")
        for i in range(2):
            for s in range(4):
                A(f"ds_read_b128 {v(K + 16 * i + 4 * s, 4)}, {v(vER)} offset:{s * 8 * TBS + i * TBS}")
        for i in range(2):
            A(f"s_waitcnt lgkmcnt({4 * (1 - i)})")
            b0 = K + 16 * i
            for c in range(2):
                for h in range(2):
                    A(f"v_pk_add_f32 {v(b0 + 8 * c + 2 * h, 2)}, {v(b0 + 8 * c + 2 * h, 2)}, {v(b0 + 8 * c + 4 + 2 * h, 2)}")
            for c in range(2):
                for h in range(2):
                    A(f"v_cvt_pk_bf16_f32 {v(K + 32 + 4 * i + 2 * c + h)}, {v(b0 + 8 * c + 2 * h)}, {v(b0 + 8 * c + 2 * h + 1)}")
            A(f"global_store_dwordx4 {v(vT)}, {v(K + 32 + 4 * i, 4)}, {sp(sWS)} offset:{1024 * i} sc1")
        self.stamp("x2st")
        if o.get("p2", 3) == 0:
            A("s_waitcnt vmcnt(0)")
            self.stamp("x2dr")
        if o.get("p2", 3) in (0, 3):
            A("s_barrier")
        A(f"s_cmp_lt_u32 s{sWAVE}, 2")
        A("s_cbranch_scc0 L_cfin")
        A(f"v_lshlrev_b32 {v(vT + 1)}, {KS}, {v(vLANE)}")
        A(f"v_add_u32 {v(vT + 1)}, {W_KEY}, {v(vT + 1)}")
        for q in range(1, 4):
            A(f"v_add_u32 {v(vT + 8 + q)}, {(64 * q) << KS}, {v(vT + 1)}")
        for q in range(4):
            A(f"s_sub_u32 s{sTMP}, s{sL}, {64 * q}")
            A(f"v_cmp_eq_u32 {sp(sOWNM + 2 * q)}, s{sTMP}, {v(vLANE)}")
        A(f"v_mov_b32 {v(vT + 3)}, {L_REDK}")
        A("s_barrier")
        self.key_calc(K, vRA, vLANE)
        A(f"s_cmp_eq_u32 s{sWAVE}, 0")
        A("s_cbranch_scc0 L_poll")
        A("s_mov_b64 exec, 1")
        A(f"global_store_dword {v(22)}, {v(K + 8)}, {sp(sWS)} sc1")
        self.stamp("key")
        A("s_mov_b64 exec, -1")
        if o.get("pace", 5):
            A("s_barrier")
        A("s_branch L_keyed")
        A("L_poll:")
        k2, kn = vT + 4, vT + 5
        kl = [f"global_load_dword {v(K + q)}, {v(vT + 8 + q) if q else v(vT + 1)}, {sp(sWS)} sc1" for q in range(4)]
        kchk = [f"v_cndmask_b32 {v(K + q)}, {v(K + q)}, {v(K + 8)}, {sp(sOWNM + 2 * q)}" for q in range(4)]
        kchk += [f"v_add_u32 {v(K + 4 + q)}, 1, {v(K + q)}" for q in range(4)]
        kchk += [f"v_min3_u32 {v(kn)}, {v(K + 4)}, {v(K + 5)}, {v(K + 6)}",
                 f"v_max3_u32 {v(k2)}, {v(K + 4)}, {v(K + 5)}, {v(K + 6)}",
                 f"v_min_u32 {v(kn)}, {v(kn)}, {v(K + 7)}",
                 f"v_max_u32 {v(k2)}, {v(k2)}, {v(K + 7)}",
                 f"v_cmp_eq_u32 vcc, 0, {v(kn)}"]

        def wavemax(off):
            w = K + 10
            A(f"v_max_u32_dpp {v(w)}, {v(k2)}, {v(k2)} quad_perm:[1,0,3,2] row_mask:0xf bank_mask:0xf")
            A(f"v_max_u32_dpp {v(w)}, {v(w)}, {v(w)} quad_perm:[2,3,0,1] row_mask:0xf bank_mask:0xf")
            A(f"v_max_u32_dpp {v(w)}, {v(w)}, {v(w)} row_half_mirror row_mask:0xf bank_mask:0xf")
            A(f"v_max_u32_dpp {v(w)}, {v(w)}, {v(w)} row_mirror row_mask:0xf bank_mask:0xf")
            A(f"v_max_u32_dpp {v(w)}, {v(w)}, {v(w)} row_bcast:15 row_mask:0xa bank_mask:0xf")
            A(f"v_max_u32_dpp {v(w)}, {v(w)}, {v(w)} row_bcast:31 row_mask:0xc bank_mask:0xf")
            A(f"v_add_u32 {v(w)}, -1, {v(w)}")
            A("s_mov_b32 exec_lo, 0")
            A("s_brev_b32 exec_hi, 1")
            A(f"ds_write_b32 {v(vT + 3)}, {v(w)} offset:{off}")
            A("s_mov_b64 exec, -1")
            A("s_waitcnt lgkmcnt(0)")
        if o.get("pace", 5):
            A("s_barrier")
        if o.get("d3"):
            A(f"s_sleep {o['d3']}")
        for l in kl:
            A(l)
        A("s_waitcnt vmcnt(0)")
        self.poll("key", kl, kchk)
        self.stamp("keyld")
        wavemax(0)
        A("L_keyed:")
        A("s_barrier")
        if o.get("fc", 0):
            A(f"s_cmp_lt_u32 s{sPOS}, 8")
            A("s_cbranch_scc0 L_cfin")
            A(f"ds_read_b32 {v(K)}, {v(vT + 3)}")
            A("s_waitcnt lgkmcnt(0)")
            A(f"v_readfirstlane_b32 s{sWIN}, {v(K)}")
            A(f"s_andn2_b32 s{sT0}, 2047, s{sWIN}")
            A(f"s_lshr_b32 s{sT1}, s{sT0}, 3")
            A(f"s_mul_i32 s{sT1}, s{sT1}, {RS}")
            vY = K + 32
            chk8 = [f"v_max3_u32 {v(vT + 6)}, {v(vY)}, {v(vY + 1)}, {v(vY + 2)}",
                    f"v_max3_u32 {v(vT + 7)}, {v(vY + 3)}, {v(vY + 4)}, {v(vY + 5)}",
                    f"v_max3_u32 {v(vT + 6)}, {v(vT + 6)}, {v(vY + 6)}, {v(vY + 7)}",
                    f"v_max_u32 {v(vT + 6)}, {v(vT + 6)}, {v(vT + 7)}",
                    f"v_cmp_eq_u32 vcc, -1, {v(vT + 6)}"]
            A(f"s_lshl_b32 s{sTMP}, s{sXCD}, 3")
            A(f"s_add_u32 s{sTMP}, s{sTMP}, s{sPOS}")
            A(f"s_lshl_b32 s{sTMP}, s{sTMP}, 1")
            A(f"s_add_u32 s{sTMP}, s{sTMP}, s{sWAVE}")
            A(f"v_lshrrev_b32 {v(vT)}, 5, {v(vLANE)}")
            A(f"v_bfe_u32 {v(vT + 1)}, {v(vLANE)}, 4, 1")
            A(f"v_lshl_add_u32 {v(vT)}, {v(vT + 1)}, 1, {v(vT)}")
            A(f"s_lshl_b32 s{sTMP + 1}, s{sTMP}, 3")
            A(f"v_lshl_add_u32 {v(vT)}, {v(vT)}, 1, s{sTMP + 1}")
            A(f"s_add_u32 s{sT1}, s{sT1}, {W_REG + O_SLOT}")
            A(f"v_add_u32 {v(vT + 1)}, s{sT1}, {v(vT)}")
            xh = [f"global_load_ushort {v(K + 20)}, {v(vT + 1)}, {sp(sWS)} sc1",
                  f"global_load_ushort {v(K + 21)}, {v(vT + 1)}, {sp(sWS)} offset:1024 sc1"]
            A(f"s_lshl_b32 s{sTMP + 1}, s{sT0}, 10")
            A(f"v_add_u32 {v(vT)}, s{sTMP + 1}, {v(vT)}")
            A(f"v_min_u32 {v(vT + 2)}, 55, {v(vLANE)}")
            A(f"v_mul_u32_u24 {v(vT + 3)}, 4682, {v(vT + 2)}")
            A(f"v_lshrrev_b32 {v(vT + 3)}, 16, {v(vT + 3)}")
            A(f"v_mad_u32_u24 {v(vT + 2)}, {v(vT + 3)}, 18, {v(vT + 2)}")
            A(f"v_mul_u32_u24 {v(vT + 2)}, {RS}, {v(vT + 2)}")
            A(f"s_lshl_b32 s{sTMP + 1}, s{sTMP}, 4")
            A(f"s_add_u32 s{sTMP + 1}, s{sTMP + 1}, {W_REG + O_PART}")
            A(f"v_add_u32 {v(vT + 2)}, s{sTMP + 1}, {v(vT + 2)}")
            A(f"v_add_u32 {v(vT + 3)}, {128 * RS}, {v(vT + 2)}")
            A(f"s_ashr_i32 s{sTMP + 2}, s{sWIN}, 31")
            A(f"s_not_b32 s{sTMP + 2}, s{sTMP + 2}")
            A(f"s_or_b32 s{sTMP + 2}, s{sTMP + 2}, 0x80000000")
            A(f"s_xor_b32 s{sTMP + 2}, s{sTMP + 2}, s{sWIN}")
            A(f"s_and_b32 s{sTMP + 2}, s{sTMP + 2}, 0xfffff800")
            A(f"s_or_b32 s{sTMP + 2}, s{sTMP + 2}, 0x400")
            A(f"v_cvt_pk_bf16_f32 {v(K + 22)}, s{sTMP + 2}, s{sTMP + 2}")
            A(f"v_and_b32 {v(K + 22)}, s{sMASK}, {v(K + 22)}")
            A(f"v_mul_f32 {v(K + 22)}, {hex(f2u(-L2E))}, {v(K + 22)}")
            A(f"v_exp_f32 {v(K + 22)}, {v(K + 22)}")
            A(f"v_add_f32 {v(K + 22)}, 1.0, {v(K + 22)}")
            A(f"v_rcp_f32 {v(K + 22)}, {v(K + 22)}")
            A(f"v_cvt_pk_bf16_f32 {v(K + 22)}, {v(K + 22)}, {v(K + 22)}")
            A(f"v_and_b32 {v(K + 22)}, s{sMASK}, {v(K + 22)}")
            A("s_barrier")
            for l in xh:
                A(l)
            A("s_waitcnt vmcnt(0)")
            self.poll("xh", xh, [f"v_max_u32 {v(vT + 6)}, {v(K + 20)}, {v(K + 21)}",
                                 f"v_cmp_eq_u32 vcc, 0xffff, {v(vT + 6)}"])
            A(f"v_lshlrev_b32 {v(K + 20)}, 16, {v(K + 20)}")
            A(f"v_lshlrev_b32 {v(K + 21)}, 16, {v(K + 21)}")
            if o.get("d4"):
                A(f"s_sleep {o['d4']}")
            self.stamp("partdr")
            pl = [f"global_load_dwordx4 {v(vY, 4)}, {v(vT + 2)}, {sp(sWS)} sc1",
                  f"global_load_dwordx4 {v(vY + 4, 4)}, {v(vT + 3)}, {sp(sWS)} sc1"]
            for l in pl:
                A(l)
            A("s_waitcnt vmcnt(0)")
            self.poll("part", pl, chk8)
            self.stamp("partld")
            A(f"v_cmp_gt_u32 vcc, 56, {v(vLANE)}")
            A(f"v_pk_add_f32 {v(vY, 2)}, {v(vY, 2)}, {v(vY + 4, 2)}")
            A(f"v_pk_add_f32 {v(vY + 2, 2)}, {v(vY + 2, 2)}, {v(vY + 6, 2)}")
            for c in range(4):
                A(f"v_cndmask_b32 {v(vY + c)}, 0, {v(vY + c)}, vcc")
            A(f"v_permlane32_swap_b32 {v(vY)}, {v(vY + 1)}")
            A(f"v_permlane32_swap_b32 {v(vY + 2)}, {v(vY + 3)}")
            A(f"v_add_f32 {v(vY)}, {v(vY)}, {v(vY + 1)}")
            A(f"v_add_f32 {v(vY + 2)}, {v(vY + 2)}, {v(vY + 3)}")
            A(f"v_permlane16_swap_b32 {v(vY)}, {v(vY + 2)}")
            A(f"v_add_f32 {v(vY)}, {v(vY)}, {v(vY + 2)}")
            for sh in (8, 4, 2, 1):
                A(f"v_add_f32_dpp {v(vY)}, {v(vY)}, {v(vY)} row_ror:{sh} row_mask:0xf bank_mask:0xf")
            y = vY
            A(f"v_cvt_pk_bf16_f32 {v(y)}, {v(y)}, {v(y)}")
            A(f"v_and_b32 {v(y)}, s{sMASK}, {v(y)}")
            A(f"v_mul_f32 {v(y)}, {v(y)}, {v(K + 22)}")
            A(f"v_cvt_pk_bf16_f32 {v(y)}, {v(y)}, {v(y)}")
            A(f"v_and_b32 {v(y)}, s{sMASK}, {v(y)}")
            A(f"v_add_f32 {v(y)}, {v(y)}, {v(K + 20)}")
            A(f"v_cvt_pk_bf16_f32 {v(y)}, {v(y)}, {v(y)}")
            A(f"v_and_b32 {v(y)}, s{sMASK}, {v(y)}")
            A(f"v_add_f32 {v(y)}, {v(y)}, {v(K + 21)}")
            A(f"v_cvt_pk_bf16_f32 {v(y)}, {v(y)}, {v(y)}")
            A("s_mov_b32 exec_lo, 0x00010001")
            A("s_mov_b32 exec_hi, 0x00010001")
            A(f"global_store_short {v(vT)}, {v(y)}, {sp(sOUT)}")
        A("L_cfin:")
        self.finish("C")

    def text(self):
        lines = self.build()
        src = open("sequential_preLN__ssm_conv_s4d__moe_arch_mod__prompt.s.ref").read()
        head = [l for l in src.split("\n") if l.startswith(";") and "@launch" not in l]
        head = head[:head.index("; Override launch geometry by editing the next line (default: block=256,")]
        out = head + [f"; @launch grid=(256,1,1) block=(512,1,1) lds={LDS_BYTES}",
                      '.amdgcn_target "amdgcn-amd-amdhsa--gfx950"', ".text", f".globl {KNAME}", ".p2align 8",
                      f".type {KNAME},@function"]
        out += [l if l.endswith(":") else "    " + l for l in lines]
        out += [".section .rodata,\"a\"", ".p2align 6", f".amdhsa_kernel {KNAME}",
                "  .amdhsa_next_free_vgpr 224", "  .amdhsa_next_free_sgpr 102", "  .amdhsa_accum_offset 224",
                "  .amdhsa_group_segment_fixed_size 0", "  .amdhsa_kernarg_size 120", "  .amdhsa_user_sgpr_count 2",
                "  .amdhsa_user_sgpr_kernarg_segment_ptr 1", "  .amdhsa_system_sgpr_workgroup_id_x 1",
                ".end_amdhsa_kernel", ""]
        return "\n".join(out)


if __name__ == "__main__":
    out = sys.argv[1]
    opts = {}
    stamp = False
    for a in sys.argv[2:]:
        if a == "stamp":
            stamp = True
        else:
            k, val = a.split("=")
            opts[k] = val if k in ('pr', 'few') else int(val)
    g = Gen(stamp, opts)
    open(out, "w").write(g.text())
    if g.stamp_on:
        open(out + ".names", "w").write(" ".join(g.allnames["R"]) + "\n" + " ".join(g.allnames["C"]))
    print(g.info, "lds", LDS_BYTES)
```

```python
import sys
import struct
from asmlib import Asm, align8

KNAME = "sequential_preLN__ssm_conv_s4d__moe_arch_mod__prompt_kernel"


def f2u(x):
    return struct.unpack("<I", struct.pack("<f", x))[0]


W_FLAG = 0x1000 + (int(__import__('os').environ.get('WOFF', '0')) << 20)
W_KEY = 0x9000 + (int(__import__('os').environ.get('WOFF', '0')) << 20)
W_FLAG2 = 0x11000 + (int(__import__('os').environ.get('WOFF', '0')) << 20)
import os
WOFF = int(os.environ.get('WOFF', '0')) << 20
W_REG = 0x38000 + WOFF
RS = 20608
O_X1, O_X2, O_SLOT, O_PART = 0, 8192, 16384, 18432
W_STAMP = 0x800000
ROWB = 544
TABC = 63 * ROWB
L_TAB = 0
L_P = 68608
PC = 4416
L_Q = L_P + 2 * PC
QC = 400
L_U = L_Q + 4 * QC
UC = 4608
L_RED1 = (L_U + 2 * UC + 255) // 256 * 256
L_RED2 = L_RED1 + 256
L_SUMW = L_RED2 + 384
L_REDK = L_SUMW + 16
L_REDF = L_REDK + 16
LDS_BYTES = L_REDF + 256
L_EPI = 0
TBS = 1152
L_TILE = 40960
WST = 272
WTILE = 8 * WST
sX, sLA, sAI, sCR, sCI, sLDT, sD = 4, 6, 8, 10, 12, 14, 16
sWR, sWG, sWU, sWD, sOUT, sDBG, sWS = 20, 22, 24, 26, 28, 30, 32
sL, sPOS, sXCD, sWAVE, sG, sDT, sT0, sT1, sSPIN, sF = 34, 35, 36, 37, 38, 39, 40, 41, 42, 43
sODD = 44
sSELLO, sSELHI, sONES, sMASK = 46, 47, 48, 49
sWSEL = 50
sBEST, sWIN, sRP0, sRP1 = 52, 53, 54, 55
sH = 56
sE = 64
sTMP = 66
sOWN = 71
sCAND = 3
sOWNM = 56
sTAG = 56
sSTAMP = 72


def sp(r):
    return f"s[{r}:{r + 1}]"


def v(r, n=1):
    return f"v{r}" if n == 1 else f"v[{r}:{r + n - 1}]"


class Gen:
    def __init__(self, stamp=False, opts=None):
        self.A = Asm()
        self.tail = Asm()
        self.stamp_on = stamp
        self.nstamp = 0
        self.names = []
        self.o = dict(opts or {})
        self.only = None
        self.few = None
        if "few" in self.o:
            self.few = ["start", "end"] + self.o["few"].split(".")
            self.stamp_on = True
        self.role = "R"
        if "pr" in self.o:
            self.only = tuple(self.o["pr"].split("."))
            self.stamp_on = True
            self.o["probe"] = 1 if self.only[0] == "R" else 101

    def stamp(self, name):
        if not self.stamp_on:
            return
        if self.only and name != "start" and (self.role, name) != self.only:
            return
        if self.few and name not in self.few:
            return
        k = self.nstamp
        self.nstamp += 1
        self.names.append(name)
        assert sSTAMP + k < 100
        self.A(f"s_memtime s[100:101]" if self.o.get("cyc") else f"s_memrealtime s[100:101]")
        self.A("s_waitcnt lgkmcnt(0)")
        self.A(f"s_mov_b32 s{sSTAMP + k}, s100")

    def poll(self, name, loads, check, base_exec="-1", first=True):
        A = self.A
        for c in (check if first else []):
            A(c)
        A(f"s_cbranch_vccnz L_retry_{name}")
        A(f"L_ok_{name}:")
        T = self.tail
        T(f"L_retry_{name}:")
        T(f"s_mov_b32 s{sSPIN}, 0x40000")
        T(f"L_again_{name}:")
        T(f"s_sub_u32 s{sSPIN}, s{sSPIN}, 1")
        T(f"s_cbranch_scc1 L_ok_{name}")
        T("s_mov_b64 exec, vcc")
        for l in loads:
            T(l)
        T("s_waitcnt vmcnt(0)")
        for c in check:
            T(c)
        T(f"s_mov_b64 exec, {base_exec}")
        T(f"s_cbranch_vccnz L_again_{name}")
        T(f"s_branch L_ok_{name}")

    def cmul(self, d, x, y, t):
        return [f"v_pk_mul_f32 {v(t, 2)}, {v(x, 2)}, {v(y, 2)} op_sel:[0,0] op_sel_hi:[0,1]",
                f"v_pk_fma_f32 {v(d, 2)}, {v(x, 2)}, {v(y, 2)}, {v(t, 2)} op_sel:[1,1,0] op_sel_hi:[1,0,1] neg_lo:[1,0,0]"]

    def reduce8(self, V, t):
        A = self.A
        for i in range(4):
            A(f"v_add_f32_dpp {v(V[i])}, {v(V[i])}, {v(V[i])} row_ror:8 row_mask:0xf bank_mask:0x3")
        for i in range(4):
            A(f"v_add_f32_dpp {v(V[i])}, {v(V[i + 4])}, {v(V[i + 4])} row_ror:8 row_mask:0xf bank_mask:0xc")
        for i in range(2):
            A(f"v_add_f32_dpp {v(V[i])}, {v(V[i])}, {v(V[i])} row_shl:4 row_mask:0xf bank_mask:0x5")
        for i in range(2):
            A(f"v_add_f32_dpp {v(V[i])}, {v(V[i + 2])}, {v(V[i + 2])} row_shr:4 row_mask:0xf bank_mask:0xa")
        A(f"v_permlane32_swap_b32 {v(V[0])}, {v(V[1])}")
        A(f"v_add_f32 {v(V[0])}, {v(V[0])}, {v(V[1])}")
        A(f"v_add_f32_dpp {v(V[0])}, {v(V[0])}, {v(V[0])} quad_perm:[2,3,0,1] row_mask:0xf bank_mask:0xf")
        A(f"v_mov_b32 {v(t)}, {v(V[0])}")
        A(f"v_permlane16_swap_b32 {v(V[0])}, {v(t)}")
        A(f"v_add_f32 {v(V[0])}, {v(V[0])}, {v(t)}")

    def row_stats(self, S, Q, negm, rinv, t, scale=None):
        A = self.A
        A(f"v_pk_add_f32 {v(S, 2)}, {v(S, 2)}, {v(S + 2, 2)}")
        A(f"v_pk_add_f32 {v(Q, 2)}, {v(Q, 2)}, {v(Q + 2, 2)}")
        A(f"v_add_f32 {v(S)}, {v(S)}, {v(S + 1)}")
        A(f"v_add_f32 {v(Q)}, {v(Q)}, {v(Q + 1)}")
        A(f"v_mul_f32 {v(S)}, {hex(f2u(1 / 512))}, {v(S)}")
        A(f"v_mul_f32 {v(Q)}, {hex(f2u(1 / 512))}, {v(Q)}")
        A(f"v_fma_f32 {v(Q)}, -{v(S)}, {v(S)}, {v(Q)}")
        A(f"v_max_f32 {v(Q)}, 0, {v(Q)}")
        A(f"v_cvt_pk_bf16_f32 {v(t)}, -{v(S)}, {v(Q)}")
        A(f"v_and_b32 {v(Q)}, s{sMASK}, {v(t)}")
        A(f"v_add_f32 {v(Q)}, {hex(f2u(1e-5))}, {v(Q)}")
        A(f"v_cvt_pk_bf16_f32 {v(Q)}, {v(Q)}, {v(Q)}")
        A(f"v_and_b32 {v(Q)}, s{sMASK}, {v(Q)}")
        A(f"v_sqrt_f32 {v(Q)}, {v(Q)}")
        A(f"v_lshlrev_b32 {v(negm)}, 16, {v(t)}")
        A(f"v_cvt_pk_bf16_f32 {v(Q)}, {v(Q)}, {v(Q)}")
        A(f"v_and_b32 {v(Q)}, s{sMASK}, {v(Q)}")
        if scale:
            A(f"v_mul_f32 {v(Q)}, {hex(f2u(scale))}, {v(Q)}")
        A(f"v_rcp_f32 {v(rinv)}, {v(Q)}")

    def spread(self, val, dst, t):
        A = self.A
        for r in range(4):
            A(f"v_mov_b32_dpp {v(t + r)}, {v(val)} row_newbcast:{4 + r} row_mask:0xf bank_mask:0xf")
        for r in range(4):
            A(f"v_cndmask_b32_dpp {v(dst + r)}, {v(val)}, {v(t + r)}, vcc row_newbcast:{r} row_mask:0xf bank_mask:0xf")

    def epilogue(self, K, vER, vST):
        A = self.A
        for s in range(4):
            A(f"ds_read_b128 {v(K + 4 * s, 4)}, {v(vER)} offset:{s * 8 * TBS}")
        for c in range(2):
            A(f"s_waitcnt lgkmcnt({2 * (1 - c)})")
            for h in range(2):
                A(f"v_pk_add_f32 {v(K + 8 * c + 2 * h, 2)}, {v(K + 8 * c + 2 * h, 2)}, {v(K + 8 * c + 4 + 2 * h, 2)}")
            for h in range(2):
                A(f"v_cvt_pk_bf16_f32 {v(K + 16 + 2 * c + h)}, {v(K + 8 * c + 2 * h)}, {v(K + 8 * c + 2 * h + 1)}")
        A(f"global_store_dwordx4 {v(vST)}, {v(K + 16, 4)}, {sp(sWS)} sc1")

    def key_calc(self, K, vRA, vLANE):
        A = self.A
        A(f"v_mov_b32 {v(K + 14)}, {L_SUMW}")
        A(f"ds_read_b128 {v(K, 4)}, {v(vRA)} offset:{L_RED2 - L_RED1}")
        A(f"ds_read_b128 {v(K + 4, 4)}, {v(vRA)} offset:{L_RED2 - L_RED1 + 128}")
        A(f"ds_read_b128 {v(K + 8, 4)}, {v(vRA)} offset:{L_RED2 - L_RED1 + 256}")
        A(f"ds_read_b32 {v(K + 15)}, {v(K + 14)}")
        A(f"s_lshl_b32 s{sTMP}, s{sL}, 3")
        A(f"s_sub_u32 s{sTMP}, 2047, s{sTMP}")
        A(f"v_and_b32 {v(K + 14)}, 7, {v(vLANE)}")
        A(f"v_sub_u32 {v(K + 14)}, s{sTMP}, {v(K + 14)}")
        A("s_waitcnt lgkmcnt(2)")
        self.row_stats(K, K + 4, K + 12, K + 13, K + 28)
        A("s_waitcnt lgkmcnt(0)")
        A(f"v_pk_add_f32 {v(K + 8, 2)}, {v(K + 8, 2)}, {v(K + 10, 2)}")
        A(f"v_add_f32 {v(K + 8)}, {v(K + 8)}, {v(K + 9)}")
        A(f"v_fmac_f32 {v(K + 8)}, {v(K + 12)}, {v(K + 15)}")
        A(f"v_mul_f32 {v(K + 8)}, {v(K + 8)}, {v(K + 13)}")
        A(f"v_ashrrev_i32 {v(K + 9)}, 31, {v(K + 8)}")
        A(f"v_or_b32 {v(K + 9)}, 0x80000000, {v(K + 9)}")
        A(f"v_xor_b32 {v(K + 8)}, {v(K + 8)}, {v(K + 9)}")
        A(f"v_and_b32 {v(K + 8)}, 0xfffff800, {v(K + 8)}")
        A(f"v_or_b32 {v(K + 8)}, {v(K + 8)}, {v(K + 14)}")
        A(f"v_min_u32 {v(K + 8)}, -2, {v(K + 8)}")
        A(f"v_max_u32_dpp {v(K + 8)}, {v(K + 8)}, {v(K + 8)} quad_perm:[1,0,3,2] row_mask:0xf bank_mask:0xf")
        A(f"v_max_u32_dpp {v(K + 8)}, {v(K + 8)}, {v(K + 8)} quad_perm:[2,3,0,1] row_mask:0xf bank_mask:0xf")
        A(f"v_max_u32_dpp {v(K + 8)}, {v(K + 8)}, {v(K + 8)} row_half_mirror row_mask:0xf bank_mask:0xf")

    def finish(self, role):
        A = self.A
        o = self.o
        if self.stamp_on:
            self.stamp("end")
            self.allnames[role] = self.names
        if self.stamp_on and "probe" in o:
            k = o["probe"]
            if k == 98 and role == "R":
                A(f"s_getreg_b32 s{sTMP}, hwreg(HW_REG_XCC_ID, 0, 4)")
                A(f"s_sub_u32 s{sTMP}, s{sTMP}, s2")
                A(f"s_and_b32 s{sTMP}, s{sTMP}, 7")
                A(f"s_mul_i32 s{sTMP}, s{sTMP}, 1000")
                A(f"s_add_u32 s{sTMP}, s{sTMP}, 2000")
            elif k == 99 and role == "R":
                A("s_memtime s[96:97]")
                A("s_waitcnt lgkmcnt(0)")
                A("s_sub_u32 s96, s96, s98")
                A(f"s_sub_u32 s97, s{sSTAMP + self.nstamp - 1}, s{sSTAMP}")
                A("s_mov_b64 exec, -1")
                A("v_cvt_f32_u32 v2, s96")
                A("v_cvt_f32_u32 v3, s97")
                A("v_rcp_f32 v3, v3")
                A("s_nop 1")
                A("v_mul_f32 v2, v2, v3")
                A("v_mul_f32 v2, 0x43c80000, v2")
                A("v_cvt_u32_f32 v2, v2")
                A("s_nop 1")
                A(f"v_readfirstlane_b32 s{sTMP}, v2")
                A(f"s_add_u32 s{sTMP}, s{sTMP}, 2000")
            elif k < 0 and role == "R":
                A(f"s_mov_b32 s{sTMP}, {-k}")
            elif k >= 0 and (k >= 100) == (role == "C"):
                A(f"s_sub_u32 s{sTMP}, s{sSTAMP + k % 100}, s{sSTAMP}")
                A(f"s_cmp_lt_u32 s{sTMP}, 3000")
                A(f"s_cselect_b32 s{sTMP}, s{sTMP}, 0")
                A(f"s_mul_i32 s{sTMP}, s{sTMP}, 20")
                A(f"s_add_u32 s{sTMP}, s{sTMP}, 2000")
                if role == "C":
                    A(f"s_cmp_eq_u32 s{sWAVE}, 0")
                    A(f"s_cselect_b32 s{sTMP}, s{sTMP}, 0")
            else:
                A(f"s_mov_b32 s{sTMP}, 0")
            A(f"L_spin{role}:")
            A("s_memrealtime s[100:101]")
            A("s_waitcnt lgkmcnt(0)")
            A(f"s_sub_u32 s100, s100, s{sSTAMP}")
            A(f"s_cmp_lt_u32 s100, s{sTMP}")
            A(f"s_cbranch_scc1 L_spin{role}")
        elif self.stamp_on:
            A("s_mov_b64 exec, 1")
            A(f"s_lshl_b32 s{sTMP}, s2, 3")
            A(f"s_add_u32 s{sTMP}, s{sTMP}, s{sWAVE}")
            if role == "C":
                A(f"s_add_u32 s{sTMP}, s{sTMP}, 4")
            A(f"s_lshl_b32 s{sTMP}, s{sTMP}, 7")
            A(f"s_add_u32 s{sTMP}, s{sTMP}, {W_STAMP}")
            A(f"v_mov_b32 v1, s{sTMP}")
            for k in range(self.nstamp):
                A(f"v_mov_b32 v2, s{sSTAMP + k}")
                A(f"global_store_dword v1, v2, {sp(sWS)} offset:{4 * k}")
        A("s_endpgm")

    def build(self):
        A = self.A
        self.allnames = {}
        A(f"{KNAME}:")
        A("s_cmp_ge_u32 s2, 256")
        A("s_cbranch_scc1 L_end")
        self.stamp("start")
        if self.o.get("probe", 0) == 99:
            A("s_memtime s[98:99]")
        cpf = self.o.get("codepf", 1)
        if cpf == 1:
            A(f"s_getpc_b64 {sp(sE)}")
            A("L_pc:")
            A("v_lshlrev_b32 v2, 5, v0")
            A(f"v_min_u32 v2, L_codeend-L_pc-4, v2")
            A(f"global_load_dword v3, v2, {sp(sE)}")
        elif cpf >= 2:
            A(f"s_getpc_b64 {sp(sE)}")
            A("L_pc:")
            A(f"s_bfe_u32 s3, s2, {3 | ((7 - cpf) << 16)}")
            A(f"s_lshl_b32 s3, s3, {7 + cpf}")
            A("v_lshl_add_u32 v2, v0, 7, s3")
            A(f"v_min_u32 v2, L_codeend-L_pc-4, v2")
            A(f"v_cmp_gt_u32 vcc, {1 << cpf}, v0")
            A("s_mov_b64 exec, vcc")
            A(f"global_load_dword v3, v2, {sp(sE)}")
            A("s_mov_b64 exec, -1")
        A("s_load_dwordx16 s[4:19], s[0:1], 0")
        A("s_load_dwordx8 s[20:27], s[0:1], 64")
        A("s_load_dwordx4 s[28:31], s[0:1], 96")
        A("s_load_dwordx2 s[32:33], s[0:1], 112")
        A("v_lshrrev_b32 v4, 6, v0")
        A(f"s_and_b32 s{sXCD}, s2, 7")
        A(f"v_readfirstlane_b32 s{sWAVE}, v4")
        A(f"s_lshr_b32 s{sPOS}, s2, 3")
        A(f"s_lshl_b32 s{sL}, s{sXCD}, 5")
        A(f"s_add_u32 s{sL}, s{sL}, s{sPOS}")
        A("v_and_b32 v1, 63, v0")
        A(f"s_mov_b32 s{sMASK}, 0xffff0000")
        pre = self.o.get("pre", 0)
        if pre:
            A("s_waitcnt lgkmcnt(0)")
            n = pre % 10
            kind = pre // 10
            A(f"s_mul_i32 s{sT0}, s{sL}, {n * 4096 + 128}")
            A(f"s_add_u32 s{sT0}, s{sT0}, {32 << 20}")
            A("v_and_b32 v5, 0xff, v0")
            A(f"v_lshl_add_u32 v5, v5, 4, s{sT0}")
            A(f"s_cmp_ge_u32 s{sWAVE}, 4")
            A("s_cbranch_scc1 L_pre")
            if kind in (2, 3):
                A("s_mov_b64 exec, 1")
                A(f"global_load_dword v8, v5, {sp(sWS)}")
                A("s_mov_b64 exec, -1")
                A("s_waitcnt vmcnt(0)")
                if kind == 3:
                    self.nstamp = 0
                    self.names = []
                    self.stamp("start")
            if kind in (8, 9, 10, 11):
                A("v_lshrrev_b32 v12, 1, v0")
                A("v_and_b32 v13, 1, v0")
                A("v_lshlrev_b32 v12, 3, v12")
                A(f"s_lshl_b32 s{sT0}, s{sL}, 13")
                A("v_lshl_add_u32 v14, v13, 12, v12")
                A(f"v_add_u32 v14, s{sT0}, v14")
                for r in range(4):
                    A(f"global_load_dwordx2 v[{16 + 2 * r}:{17 + 2 * r}], v14, s[18:19] offset:{1024 * r}{' nt' if kind != 10 else ''}")
                ny = 0
                if kind in (9, 11):
                    A(f"global_load_dwordx2 v[24:25], v12, {sp(sD)}")
                    A(f"global_load_dwordx2 v[26:27], v12, {sp(sWR)}")
                    A("v_lshlrev_b32 v13, 4, v1")
                    A(f"global_load_dwordx4 v[28:31], v13, {sp(sWR)}")
                    ny = 3
                if kind == 11:
                    A(f"s_load_dword s{sG}, {sp(sWS)}, 0")
                for k in range(n):
                    A(f"global_store_dwordx4 v5, v[8:11], {sp(sWS)} sc1")
                    A("v_add_u32 v5, 4096, v5")
                A(f"s_waitcnt vmcnt({n + ny})")
                self.stamp("pre")
                n = 0
            for k in range(n):
                if kind == 1:
                    A(f"global_load_dwordx4 v[8:11], v5, {sp(sWS)}")
                elif kind == 6:
                    if k == 0:
                        A(f"s_lshl_b32 s{sT0}, s{sL}, 7")
                        A(f"v_mov_b32 v6, s{sT0}")
                        A("s_mov_b64 exec, 1")
                    A(f"global_load_dword v{8 + k}, v6, {sp((sX, sLA, sAI, sCR, sCI, sWG, sWU, sWD, sOUT)[k])}")
                    if k == n - 1:
                        A("s_mov_b64 exec, -1")
                elif kind == 7:
                    if k == 0:
                        A(f"v_lshlrev_b32 v6, 3, v1")
                    A(f"global_load_dwordx2 v[{8 + 2 * k}:{9 + 2 * k}], v6, {sp((sD, sWR)[k])}")
                elif kind == 5:
                    A(f"global_load_dwordx4 v[8:11], v5, {sp(sWS)} nt")
                elif kind == 4:
                    A(f"global_store_dwordx4 v5, v[8:11], {sp(sWS)}")
                else:
                    A(f"global_store_dwordx4 v5, v[8:11], {sp(sWS)} sc1")
                A("v_add_u32 v5, 4096, v5")
            A("s_waitcnt vmcnt(0)")
            if kind < 8:
                self.stamp("pre")
            A("L_pre:")
            A("s_barrier")
        A(f"s_cmp_ge_u32 s{sWAVE}, 4")
        A("s_cbranch_scc1 L_chan")
        self.rows()
        self.names = self.names[:1]
        self.nstamp = min(self.nstamp, 1)
        A(".p2align 6")
        self.role = "C"
        self.chans()
        A("L_end:")
        A("s_endpgm")
        for l in self.tail.L:
            A(l)
        A("L_codeend:")
        lines, nops = A.padded()
        lines, nbytes, promoted, missed = align8(lines)
        self.info = dict(nops=nops, bytes=nbytes, promoted=promoted, missed=missed, lines=len(lines))
        return lines

    def rows(self):
        A = self.A
        o = self.o
        vLANE = 1
        vX, vU, vD, vWR = 212, 10, 18, 20
        vREG, vRD, vAUX = 22, 23, 24
        vKEY, vSW, vRA, vFL, vUW = 26, 27, 28, 29, 30
        vT = 32
        vWG, vWD = 40, 72
        vY = 88
        vONE = 96
        K = 100
        L2E = 1.4426950408889634
        A(f"v_lshrrev_b32 {v(vT)}, 1, v0")
        A(f"v_and_b32 {v(vT + 1)}, 1, v0")
        A(f"v_lshlrev_b32 {v(vT + 2)}, 3, {v(vT)}")
        A(f"s_lshl_b32 s{sT0}, s{sL}, 13")
        A(f"v_lshl_add_u32 {v(vRD)}, {v(vT + 1)}, 12, {v(vT + 2)}")
        A(f"v_add_u32 {v(vRD)}, s{sT0}, {v(vRD)}")
        A(f"s_mul_i32 s{sOWN}, s{sL}, {RS}")
        A(f"s_add_u32 s{sOWN}, s{sOWN}, {W_REG}")
        A(f"s_add_u32 s{sT0}, s{sOWN}, 4096")
        A(f"v_lshl_add_u32 {v(vREG)}, v0, 4, s{sT0}")
        A(f"v_lshlrev_b32 {v(vT + 3)}, 4, {v(vLANE)}")
        nt = ' nt' if o.get('ntx', 1) else ''
        A("s_waitcnt lgkmcnt(0)")
        self.stamp("karg")
        for r in range(4):
            A(f"global_load_dwordx2 {v(vX + 2 * r, 2)}, {v(vRD)}, {sp(sX)} offset:{1024 * r}{nt}")
        A(f"s_load_dword s{sG}, {sp(sWS)}, 0")
        A(f"global_load_dwordx2 {v(vD, 2)}, {v(vT + 2)}, {sp(sD)}")
        A(f"global_load_dwordx2 {v(vWR, 2)}, {v(vT + 2)}, {sp(sWR)}")
        A(f"global_load_dwordx4 {v(vONE, 4)}, {v(vT + 3)}, {sp(sWR)}")
        A(f"s_mov_b32 s{sODD}, 0xaaaaaaaa")
        A(f"s_mov_b32 s{sODD + 1}, 0xaaaaaaaa")
        A(f"s_mov_b32 s{sSELLO}, 0x3f80")
        A(f"s_mov_b32 s{sSELHI}, 0x3f800000")
        A(f"s_mov_b32 s{sONES}, 0x3f803f80")
        A(f"s_and_b32 s{sTMP}, s{sL}, 1")
        A(f"s_lshl_b32 s{sTMP}, s{sTMP}, 12")
        A(f"s_lshr_b32 s{sTMP + 1}, s{sL}, 1")
        A(f"s_lshl_b32 s{sTMP + 1}, s{sTMP + 1}, 5")
        A(f"s_add_u32 s{sTMP}, s{sTMP}, s{sTMP + 1}")
        A(f"s_add_u32 s{sTMP}, s{sTMP}, {W_REG + O_X1}")
        A(f"v_mul_u32_u24 {v(vAUX)}, {RS}, {v(vT)}")
        A(f"v_lshl_add_u32 {v(vAUX)}, {v(vT + 1)}, 4, {v(vAUX)}")
        A(f"v_add_u32 {v(vAUX)}, s{sTMP}, {v(vAUX)}")
        A(f"v_add_u32 {v(vAUX + 1)}, {128 * RS}, {v(vAUX)}")
        FS = o.get("fs", 7)
        KS = o.get("ks", 6)
        A(f"v_lshlrev_b32 {v(vSW)}, 6, {v(vT + 1)}")
        A(f"v_and_b32 {v(vT + 3)}, 4, {v(vLANE)}")
        A(f"v_lshl_add_u32 {v(vSW)}, {v(vT + 3)}, 3, {v(vSW)}")
        A(f"v_and_b32 {v(vT + 3)}, 8, {v(vLANE)}")
        A(f"v_lshl_add_u32 {v(vSW)}, {v(vT + 3)}, 4, {v(vSW)}")
        A(f"v_lshrrev_b32 {v(vT + 3)}, 5, {v(vLANE)}")
        A(f"v_lshl_add_u32 {v(vSW)}, {v(vT + 3)}, 4, {v(vSW)}")
        A(f"s_lshl_b32 s{sTMP}, s{sWAVE}, 2")
        A(f"s_add_u32 s{sTMP}, s{sTMP}, {L_RED1}")
        A(f"v_add_u32 {v(vSW)}, s{sTMP}, {v(vSW)}")
        A(f"v_and_b32 {v(vT + 3)}, 7, {v(vLANE)}")
        A(f"v_lshlrev_b32 {v(vRA)}, 4, {v(vT + 3)}")
        A(f"v_add_u32 {v(vRA)}, {L_RED1}, {v(vRA)}")
        A(f"v_lshlrev_b32 {v(vUW)}, 3, v0")
        A(f"v_mov_b32 {v(vFL)}, 0x9fff9fff")
        A(f"v_mov_b32 {v(K)}, 0")
        A(f"v_mov_b32 {v(K + 1)}, 0")
        A(f"v_min_u32 {v(vT + 3)}, 472, {v(vUW)}")
        A(f"v_add_u32 {v(vT + 3)}, {L_U}, {v(vT + 3)}")
        A(f"v_min_u32 {v(vT + 4)}, 56, {v(vUW)}")
        A(f"v_add_u32 {v(vT + 4)}, {L_P}, {v(vT + 4)}")
        A(f"ds_write2st64_b64 {v(vT + 3)}, {v(K, 2)}, {v(K, 2)} offset0:0 offset1:9")
        A(f"ds_write_b64 {v(vT + 4)}, {v(K, 2)}")
        A(f"ds_write_b64 {v(vT + 4)}, {v(K, 2)} offset:{PC}")
        A(f"v_min_u32 {v(vT + 4)}, 232, {v(vUW)}")
        A(f"v_add_u32 {v(vT + 4)}, {L_P + 64 + 4 * 1028}, {v(vT + 4)}")
        A(f"ds_write_b64 {v(vT + 4)}, {v(K, 2)}")
        A(f"ds_write_b64 {v(vT + 4)}, {v(K, 2)} offset:{PC}")
        A(f"v_min_u32 {v(vT + 4)}, {4 * QC - 8}, {v(vUW)}")
        A(f"v_add_u32 {v(vT + 4)}, {L_Q}, {v(vT + 4)}")
        A(f"ds_write_b64 {v(vT + 4)}, {v(K, 2)}")
        A(f"v_add_u32 {v(vUW)}, {L_U + 480}, {v(vUW)}")

        V = [K + i for i in range(8)]
        A("s_waitcnt lgkmcnt(0)")
        A(f"s_add_u32 s{sG}, s{sG}, 1")
        for k in range(4):
            A(f"s_add_u32 s{sTAG + k}, s{sG}, {5 * k}")
            A(f"s_and_b32 s{sTAG + k}, s{sTAG + k}, 15")
            A(f"s_mul_i32 s{sTAG + k}, s{sTAG + k}, 0x08002000")
            A(f"s_and_b32 s{sTAG + k}, s{sTAG + k}, 0x60006000")
        A("s_waitcnt vmcnt(3)")
        self.stamp("x")
        for r in range(4):
            A(f"v_dot2_f32_bf16 {v(V[r])}, {v(vX + 2 * r)}, s{sONES}, 0")
        for r in range(4):
            A(f"v_dot2_f32_bf16 {v(V[4 + r])}, {v(vX + 2 * r)}, {v(vX + 2 * r)}, 0")
        for r in range(4):
            A(f"v_dot2_f32_bf16 {v(V[r])}, {v(vX + 2 * r + 1)}, s{sONES}, {v(V[r])}")
        for r in range(4):
            A(f"v_dot2_f32_bf16 {v(V[4 + r])}, {v(vX + 2 * r + 1)}, {v(vX + 2 * r + 1)}, {v(V[4 + r])}")
        self.reduce8(V, K + 8)
        A(f"ds_write_b32 {v(vSW)}, {v(V[0])}")
        A("s_waitcnt lgkmcnt(0)")
        A("s_barrier")
        self.stamp("b1")
        A(f"ds_read_b128 {v(K, 4)}, {v(vRA)}")
        A(f"ds_read_b128 {v(K + 4, 4)}, {v(vRA)} offset:128")
        A(f"s_mov_b64 vcc, {sp(sODD)}")
        A("s_waitcnt lgkmcnt(0)")
        vNM, vRI = K + 16, K + 20
        self.row_stats(K, K + 4, K + 10, K + 11, K + 12, 2.0 ** 68)
        self.spread(K + 10, vNM, K + 24)
        Dd = K + 32
        for c in range(4):
            for r in range(4):
                A(f"v_dot2_f32_bf16 {v(Dd + 4 * c + r)}, {v(vX + 2 * r + (c >> 1))}, s{sSELHI if c & 1 else sSELLO}, {v(vNM + r)}")
        self.spread(K + 11, vRI, K + 24)
        Pk = K + 48
        for half in range(2):
            ks = range(4 * half, 4 * half + 4)
            if o.get("mid1", 1):
                for k in ks:
                    A(f"v_cvt_pk_bf16_f32 {v(Pk + k)}, {v(Dd + 2 * k)}, {v(Dd + 2 * k + 1)}")
                for k in ks:
                    A(f"v_lshlrev_b32 {v(Dd + 2 * k)}, 16, {v(Pk + k)}")
                    A(f"v_and_b32 {v(Dd + 2 * k + 1)}, s{sMASK}, {v(Pk + k)}")
            for k in ks:
                A(f"v_pk_mul_f32 {v(Dd + 2 * k, 2)}, {v(Dd + 2 * k, 2)}, {v(vRI + 2 * (k & 1), 2)}")
            for k in ks:
                A(f"v_cvt_pk_bf16_f32 {v(vU + k)}, {v(Dd + 2 * k)}, {v(Dd + 2 * k + 1)}")
            for k in ks:
                A(f"v_and_or_b32 {v(Pk + k)}, {v(vU + k)}, {v(vFL)}, s{sTAG + (k & 3)}")
            if o.get("spos", 0) == 0:
                if half == 0 and o.get("b1b", 1) == 1:
                    A("s_barrier")
                A(f"global_store_dwordx4 {v(vREG)}, {v(Pk + 4 * half, 4)}, {sp(sWS)} offset:{-4096 + 4096 * half} sc1")
        if o.get("spos", 0) == 1:
            if o.get("b1b", 1) == 1:
                A("s_barrier")
            for half in range(2):
                A(f"global_store_dwordx4 {v(vREG)}, {v(Pk + 4 * half, 4)}, {sp(sWS)} offset:{-4096 + 4096 * half} sc1")
        self.stamp("x1st")
        b2pos = o.get("b2pos", 0)
        if b2pos == 0:
            A("s_barrier")
        p1 = o.get("p1", 2)
        if p1 == 0:
            A("s_waitcnt vmcnt(0)")
        else:
            A("s_waitcnt vmcnt(2)")
        self.stamp("x1dr")
        xl = [f"global_load_dwordx4 {v(vY, 4)}, {v(vAUX)}, {sp(sWS)} sc1",
              f"global_load_dwordx4 {v(vY + 4, 4)}, {v(vAUX + 1)}, {sp(sWS)} sc1"]
        if p1 < 2:
            for l in xl:
                A(l)
        if b2pos == 1:
            A("s_barrier")
        if o.get("b2b", 1) and p1 < 2:
            A("s_barrier")
        A(f"s_mul_i32 s{sF}, s{sXCD}, 14")
        A(f"s_add_u32 s{sF}, s{sF}, s{sPOS}")
        A(f"s_bitcmp1_b32 s{sWAVE}, 0")
        A(f"s_cselect_b64 {sp(sWSEL)}, {sp(sWU)}, {sp(sWG)}")
        A(f"s_lshr_b32 s{sTMP + 1}, s{sWAVE}, 1")
        A(f"s_mul_i32 s{sTMP + 1}, s{sTMP + 1}, {256 * 3584}")
        A(f"s_lshl_b32 s{sTMP + 2}, s{sF}, 5")
        A(f"s_add_u32 s{sTMP + 1}, s{sTMP + 1}, s{sTMP + 2}")
        vWA = K + 8
        A(f"v_lshrrev_b32 {v(vWA)}, 1, {v(vLANE)}")
        A(f"v_mul_u32_u24 {v(vWA)}, {8 * 3584}, {v(vWA)}")
        A(f"v_lshl_add_u32 {v(vWA)}, {v(vT + 1)}, 4, {v(vWA)}")
        A(f"v_add_u32 {v(vWA)}, s{sTMP + 1}, {v(vWA)}")
        A(f"v_add_u32 {v(vWA + 2)}, {7 * 3584}, {v(vWA)}")
        A(f"v_add_u32 {v(vWA + 1)}, {4 * 3584}, {v(vWA)}")
        A(f"v_add_u32 {v(vWA)}, 3584, {v(vWA)}")
        A(f"s_lshl_b32 s{sTMP + 1}, s{sF}, 14")
        A(f"s_add_u32 s{sTMP + 1}, s{sTMP + 1}, 4096")
        if o.get("wdp", 3) == 3:
            A(f"s_cmp_lt_u32 s{sPOS}, 14")
            A(f"s_cselect_b32 s{sTMP + 1}, s{sTMP + 1}, 4096")
            A(f"s_cselect_b32 s{sTMP + 2}, 4, 0")
            A(f"v_mul_u32_u24 {v(220)}, s{sTMP + 2}, v0")
            A(f"v_add_u32 {v(220)}, s{sTMP + 1}, {v(220)}")
        else:
            A(f"v_lshl_add_u32 {v(220)}, v0, 2, s{sTMP + 1}")
        A(f"v_add_u32 {v(221)}, 8192, {v(220)}")
        f2 = o.get("b1b", 1) == 2
        if f2:
            A(f"v_and_b32 {v(vFL)}, 0xfe, v0")
            A(f"v_lshlrev_b32 {v(vFL)}, 7, {v(vFL)}")
            A(f"v_add_u32 {v(vFL)}, {W_FLAG}, {v(vFL)}")
            A(f"s_mul_i32 s{sT0}, s{sG}, 0x9e3779b1")
        i2 = o.get("i2", 0)
        if i2:
            A(f"s_lshl_b32 s{sTMP}, s{sWAVE}, 11")
            A(f"s_add_u32 s{sTMP}, s{sTMP}, s{sOWN}")
            A(f"s_add_u32 s{sTMP}, s{sTMP}, {O_X2}")
            A(f"v_lshl_add_u32 {v(vWA + 5)}, {v(vLANE)}, 4, s{sTMP}")
            A(f"v_add_u32 {v(vWA + 6)}, {O_SLOT - 4096}, {v(vREG)}")
            A(f"s_lshl_b32 s{sTMP}, s{sL}, {KS}")
            A(f"s_add_u32 s{sTMP}, s{sTMP}, {W_KEY}")
            A(f"v_lshl_add_u32 {v(vWA + 7)}, {v(vLANE)}, 4, s{sTMP}")
            A(f"s_lshl_b32 s{sTMP}, s{sL}, 2")
            A(f"s_add_u32 s{sTMP}, s{sTMP}, s{sWAVE}")
            A(f"s_lshl_b32 s{sTMP}, s{sTMP}, 7")
            A(f"s_add_u32 s{sTMP}, s{sTMP}, {W_FLAG2}")
            A(f"v_lshl_add_u32 {v(vKEY)}, {v(vLANE)}, 4, s{sTMP}")
            A(f"s_lshr_b32 s{sTMP}, s{sL}, 6")
            A(f"s_lshl_b32 s{sTMP}, s{sTMP}, 7")
            A(f"s_add_u32 s{sTMP}, s{sTMP}, {W_FLAG2}")
            A(f"v_and_b32 {v(vFL)}, 0xfe, v0")
            A(f"v_lshl_add_u32 {v(vFL)}, {v(vFL)}, 9, s{sTMP}")
            for k in range(4):
                A(f"v_mov_b32 {v(K + 32 + k)}, -1")
        A(f"v_dot2_f32_bf16 {v(K + 4)}, {v(vONE)}, s{sONES}, 0")
        for k in range(1, 4):
            A(f"v_dot2_f32_bf16 {v(K + 4)}, {v(vONE + k)}, s{sONES}, {v(K + 4)}")
        A(f"v_mov_b32 {v(K + 5)}, {L_SUMW}")
        A(f"s_mov_b32 s{sRP0}, 0x05040100")
        A(f"s_mov_b32 s{sRP1}, 0x07060302")
        for sh in (8, 4, 2, 1):
            A(f"v_add_f32_dpp {v(K + 4)}, {v(K + 4)}, {v(K + 4)} row_ror:{sh} row_mask:0xf bank_mask:0xf")
        A(f"v_add_f32_dpp {v(K + 4)}, {v(K + 4)}, {v(K + 4)} row_bcast:15 row_mask:0xa bank_mask:0xf")
        A(f"v_add_f32_dpp {v(K + 4)}, {v(K + 4)}, {v(K + 4)} row_bcast:31 row_mask:0xc bank_mask:0xf")
        A("s_mov_b32 exec_lo, 0")
        A("s_brev_b32 exec_hi, 1")
        A(f"ds_write_b32 {v(K + 5)}, {v(K + 4)}")
        A("s_mov_b64 exec, -1")
        if p1 == 2:
            if o.get("d1"):
                A(f"s_sleep {o['d1']}")
            for l in xl:
                A(l)
        if not o.get("b2b", 1) or p1 == 2:
            A("s_barrier")
        A("s_waitcnt vmcnt(0)")
        chk8 = [f"v_max3_u32 {v(vT + 6)}, {v(vY)}, {v(vY + 1)}, {v(vY + 2)}",
                f"v_max3_u32 {v(vT + 7)}, {v(vY + 3)}, {v(vY + 4)}, {v(vY + 5)}",
                f"v_max3_u32 {v(vT + 6)}, {v(vT + 6)}, {v(vY + 6)}, {v(vY + 7)}",
                f"v_max_u32 {v(vT + 6)}, {v(vT + 6)}, {v(vT + 7)}",
                f"v_cmp_eq_u32 vcc, -1, {v(vT + 6)}"]
        Z = K + 32
        tchk = [f"v_xor_b32 {v(Z + k)}, s{sTAG + (k & 3)}, {v(vY + k)}" for k in range(8)]
        tchk += [f"ds_write2st64_b64 {v(vUW)}, {v(Z, 2)}, {v(Z + 2, 2)} offset0:0 offset1:9",
                 f"ds_write2st64_b64 {v(vUW)}, {v(Z + 4, 2)}, {v(Z + 6, 2)} offset0:4 offset1:13"]
        tchk += [f"v_or3_b32 {v(vT + 6)}, {v(Z)}, {v(Z + 1)}, {v(Z + 2)}",
                 f"v_or3_b32 {v(vT + 7)}, {v(Z + 3)}, {v(Z + 4)}, {v(Z + 5)}",
                 f"v_or3_b32 {v(vT + 6)}, {v(vT + 6)}, {v(Z + 6)}, {v(Z + 7)}",
                 f"v_or_b32 {v(vT + 6)}, {v(vT + 6)}, {v(vT + 7)}",
                 f"v_and_b32 {v(vT + 6)}, 0x60006000, {v(vT + 6)}",
                 "s_nop 1",
                 f"v_or_b32_dpp {v(vT + 6)}, {v(vT + 6)}, {v(vT + 6)} quad_perm:[1,0,3,2] row_mask:0xf bank_mask:0xf",
                 f"v_cmp_ne_u32 vcc, 0, {v(vT + 6)}"]
        self.poll("x1", xl, tchk)
        self.stamp("x1ld")
        A("s_waitcnt lgkmcnt(0)")
        A("s_barrier")

        fl2 = [f"global_load_dword {v(vT + 4)}, {v(vFL)}, {sp(sWS)} sc1",
               f"global_load_dword {v(vT + 5)}, {v(vFL)}, {sp(sWS)} offset:512 sc1"]
        wl = [f"global_load_dwordx4 {v(vWG + 4 * k, 4)}, {v(vWA + k // 3)}, {sp(sWSEL)} offset:{(k % 3 - 1) * 3584}" for k in range(8)]
        wdl = [f"global_load_dword {v(vWD + k)}, {v(220 + (k >> 3))}, {sp(sWD)} offset:{((k & 7) - 4) * 1024}" for k in range(16)]
        wdp = o.get("wdp", 3)
        if wdp == 0:
            wl = wl + wdl if o.get("wdpf", 3) != 2 else wdl + wl
        flst = ["s_mov_b64 exec, 0xff",
                f"global_store_dwordx4 {v(vKEY)}, {v(K + 28, 4)}, {sp(sWS)} sc1",
                "s_mov_b64 exec, -1"]
        if i2:
            ones = v(K + 32, 4)
            A(f"s_cmp_eq_u32 s{sWAVE}, 0")
            A(f"s_cselect_b64 exec, {(1 << ((1 << KS) // 16)) - 1}, 0")
            A(f"global_store_dwordx4 {v(vWA + 7)}, {ones}, {sp(sWS)} sc1")
            A("s_mov_b64 exec, -1")
            A(f"global_store_dwordx4 {v(vWA + 5)}, {ones}, {sp(sWS)} sc1")
            A(f"global_store_dwordx4 {v(vWA + 5)}, {ones}, {sp(sWS)} offset:1024 sc1")
            A(f"global_store_dwordx4 {v(vWA + 6)}, {ones}, {sp(sWS)} sc1")
        if i2 == 1:
            A("s_waitcnt vmcnt(0)")
            for l in flst:
                A(l)
            self.stamp("init2")
        fl3 = [f"global_load_dword {v(vT + 4)}, {v(vFL)}, {sp(sWS)} sc1",
               f"global_load_dword {v(vT + 5)}, {v(vFL)}, {sp(sWS)} offset:128 sc1"]
        if f2:
            for l in fl3:
                A(l)
        A(f"s_cmp_lt_u32 s{sPOS}, 14")
        A("s_cbranch_scc0 L_now")
        for l in wl:
            A(l)
        self.stamp("wq2")
        if f2:
            A(f"s_waitcnt vmcnt({len(wl)})")
            A("L_now2:")
            self.tail("L_now:")
            self.tail("s_waitcnt vmcnt(0)")
            self.tail("s_branch L_now2")
            self.poll("flag2", fl3, [f"v_xor_b32 {v(vT + 6)}, s{sT0}, {v(vT + 4)}",
                                     f"v_xor_b32 {v(vT + 7)}, s{sT0}, {v(vT + 5)}",
                                     f"v_or_b32 {v(vT + 6)}, {v(vT + 6)}, {v(vT + 7)}",
                                     f"v_cmp_ne_u32 vcc, 0, {v(vT + 6)}"])
        else:
            A("L_now:")
        if o.get("wdpf", 3) == 3:
            A(f"s_mul_i32 s{sTMP}, s{sL}, 7168")
            A(f"s_mul_i32 s{sTMP + 1}, s{sWAVE}, 1792")
            A(f"s_add_u32 s{sTMP}, s{sTMP}, s{sTMP + 1}")
            A(f"v_min_u32 {v(vT + 4)}, 13, {v(vLANE)}")
            A(f"v_lshl_add_u32 {v(vT + 4)}, {v(vT + 4)}, 7, s{sTMP}")
            A("s_mov_b64 exec, 0xffff")
            A(f"global_load_dword v3, {v(vT + 4)}, {sp(sWD)}")
            A("s_mov_b64 exec, -1")
        shp = o.get("shp", 1)
        epi = o.get("epi", 1)
        if epi:
            A(f"v_lshrrev_b32 {v(vT + 4)}, 3, {v(vLANE)}")
            A(f"v_add_u32 {v(vT + 4)}, {v(vLANE)}, {v(vT + 4)}")
            A(f"s_mul_i32 s{sTMP}, s{sWAVE}, {TBS}")
            A(f"v_lshl_add_u32 {v(vT + 4)}, {v(vT + 4)}, 4, s{sTMP}")
            A(f"s_lshl_b32 s{sTMP}, s{sWAVE}, 10")
            A(f"s_add_u32 s{sTMP}, s{sTMP}, s{sOWN}")
            A(f"s_add_u32 s{sTMP}, s{sTMP}, {O_X2}")
            A(f"v_lshl_add_u32 {v(vT + 5)}, {v(vLANE)}, 4, s{sTMP}")
        if shp == 1:
            A("s_barrier")
        if epi:
            self.epilogue(K + 16, vT + 4, vT + 5)
        if o.get("p2", 3) == 3 and not epi:
            A("s_barrier")
        A(f"v_and_b32 {v(vT + 3)}, 0xfe, v0")
        A(f"v_mul_u32_u24 {v(vAUX)}, {RS}, {v(vT + 3)}")
        A(f"v_lshl_add_u32 {v(vAUX)}, {v(vT + 1)}, 4, {v(vAUX)}")
        A(f"s_lshl_b32 s{sTMP}, s{sL}, 5")
        A(f"s_add_u32 s{sTMP}, s{sTMP}, {W_REG + O_X2}")
        A(f"v_add_u32 {v(vAUX)}, s{sTMP}, {v(vAUX)}")
        A(f"v_add_u32 {v(vAUX + 1)}, {RS}, {v(vAUX)}")
        Tt, Xf = K + 40, K + 56
        Df = K + 72
        for k in range(8):
            A(f"v_lshlrev_b32 {v(Tt + 2 * k)}, 16, {v(vU + k)}")
            A(f"v_and_b32 {v(Tt + 2 * k + 1)}, s{sMASK}, {v(vU + k)}")
        A(f"v_lshlrev_b32 {v(Df)}, 16, {v(vD)}")
        A(f"v_and_b32 {v(Df + 1)}, s{sMASK}, {v(vD)}")
        A(f"v_lshlrev_b32 {v(Df + 2)}, 16, {v(vD + 1)}")
        A(f"v_and_b32 {v(Df + 3)}, s{sMASK}, {v(vD + 1)}")
        for k in range(4):
            A(f"v_mul_f32 {v(Df + k)}, {hex(f2u(2.0 ** 68))}, {v(Df + k)}")
        for k in range(8):
            c = k >> 1
            sel = "op_sel:[1,0] op_sel_hi:[1,1]" if c & 1 else "op_sel_hi:[0,1]"
            A(f"v_pk_mul_f32 {v(Tt + 2 * k, 2)}, {v(Df + (c & 2), 2)}, {v(Tt + 2 * k, 2)} {sel}")
        for k in range(8):
            A(f"v_cvt_pk_bf16_f32 {v(Xf + k)}, {v(Tt + 2 * k)}, {v(Tt + 2 * k + 1)}")
        for k in range(8):
            A(f"v_lshlrev_b32 {v(Tt + 2 * k)}, 16, {v(Xf + k)}")
            A(f"v_and_b32 {v(Tt + 2 * k + 1)}, s{sMASK}, {v(Xf + k)}")
        for r in range(4):
            for c in range(4):
                src = v(vX + 2 * r + (c >> 1))
                if c & 1:
                    A(f"v_and_b32 {v(Xf + 4 * c + r)}, s{sMASK}, {src}")
                else:
                    A(f"v_lshlrev_b32 {v(Xf + 4 * c + r)}, 16, {src}")
        if not o.get("mid2", 1):
            for k in range(8):
                A(f"v_pk_add_f32 {v(Xf + 2 * k, 2)}, {v(Xf + 2 * k, 2)}, {v(Tt + 2 * k, 2)}")
        vTW, vTS, vTO, vSL = vUW, vFL, 31, vKEY
        A(f"s_mul_i32 s{sTMP}, s{sWAVE}, {3 * WTILE}")
        A(f"s_add_u32 s{sTMP}, s{sTMP}, {L_TILE}")
        A(f"v_mul_u32_u24 {v(vTW)}, {4 * WST}, {v(vT + 1)}")
        A(f"v_lshrrev_b32 {v(vT + 3)}, 1, {v(vLANE)}")
        A(f"v_lshl_add_u32 {v(vTW)}, {v(vT + 3)}, 3, {v(vTW)}")
        A(f"v_add_u32 {v(vTW)}, s{sTMP}, {v(vTW)}")
        A(f"v_lshrrev_b32 {v(vT + 3)}, 4, {v(vLANE)}")
        A(f"v_and_b32 {v(vT + 4)}, 15, {v(vLANE)}")
        A(f"v_lshl_add_u32 {v(vT + 5)}, {v(vT + 4)}, 4, s{sTMP}")
        A(f"s_movk_i32 s{sTMP}, {WST}")
        A(f"v_mad_u32_u24 {v(vTO)}, {v(vT + 3)}, s{sTMP}, {v(vT + 5)}")
        A(f"s_movk_i32 s{sTMP}, {WTILE}")
        A(f"v_mad_u32_u24 {v(vTS)}, {v(vT + 3)}, s{sTMP}, {v(vT + 5)}")
        A(f"v_lshlrev_b32 {v(vT + 4)}, 4, {v(vT + 4)}")
        A(f"v_lshl_add_u32 {v(vT + 4)}, {v(vT + 3)}, 10, {v(vT + 4)}")
        A(f"s_lshl_b32 s{sTMP}, s{sWAVE}, 8")
        A(f"s_add_u32 s{sTMP + 1}, s{sTMP}, s{sOWN}")
        A(f"s_add_u32 s{sTMP + 1}, s{sTMP + 1}, {O_SLOT}")
        A(f"v_add_u32 {v(vSL)}, s{sTMP + 1}, {v(vT + 4)}")
        A(f"s_lshl_b32 s{sTMP + 1}, s{sL}, 13")
        A(f"s_add_u32 s{sTMP}, s{sTMP}, s{sTMP + 1}")
        A(f"s_add_u32 s{sTMP}, s{sTMP}, 4096")
        A(f"v_add_u32 {v(vRD)}, s{sTMP}, {v(vT + 4)}")
        vF = 4
        A(f"s_lshr_b32 s{sTMP}, s{sWAVE}, 1")
        A(f"s_lshl_b32 s{sTMP}, s{sTMP}, 9")
        A(f"s_add_u32 s{sTMP}, s{sTMP}, {W_REG + O_SLOT}")
        A(f"v_lshrrev_b32 {v(vF)}, 1, {v(vLANE)}")
        A(f"v_lshl_add_u32 {v(vF)}, {v(vF)}, 4, s{sTMP}")
        A(f"v_lshlrev_b32 {v(vF + 1)}, 6, {v(vT + 1)}")
        A(f"v_and_b32 {v(vF + 2)}, 12, {v(vLANE)}")
        A(f"v_lshl_add_u32 {v(vF + 1)}, {v(vF + 2)}, 2, {v(vF + 1)}")
        A(f"v_lshrrev_b32 {v(vF + 2)}, 5, {v(vLANE)}")
        A(f"v_lshl_add_u32 {v(vF + 1)}, {v(vF + 2)}, 3, {v(vF + 1)}")
        A(f"s_and_b32 s{sTMP}, s{sWAVE}, 1")
        A(f"s_lshl_b32 s{sTMP}, s{sTMP}, 7")
        A(f"s_lshr_b32 s{sTMP + 1}, s{sWAVE}, 1")
        A(f"s_lshl_b32 s{sTMP + 1}, s{sTMP + 1}, 2")
        A(f"s_add_u32 s{sTMP}, s{sTMP}, s{sTMP + 1}")
        A(f"s_add_u32 s{sTMP}, s{sTMP}, {L_REDF}")
        A(f"v_add_u32 {v(vF + 1)}, s{sTMP}, {v(vF + 1)}")
        A(f"v_and_b32 {v(vF + 2)}, 15, {v(vLANE)}")
        A(f"v_lshlrev_b32 {v(vF + 2)}, 3, {v(vF + 2)}")
        A(f"v_add_u32 {v(vF + 2)}, {L_REDF}, {v(vF + 2)}")
        A(f"s_add_u32 s{sTMP}, s{sOWN}, {O_PART}")
        A(f"v_lshl_add_u32 {v(vF + 3)}, v0, 3, s{sTMP}")
        A(f"v_mov_b32 {v(8)}, {L_REDK}")
        self.stamp("shadow")
        if shp == 0:
            A("s_barrier")
        if i2:
            for l in fl2:
                A(l)
            A("s_waitcnt vmcnt(0)")
            self.poll("flag2", fl2, flchk)
            self.stamp("flag2")
        p2 = o.get("p2", 3)
        if p2 == 0:
            A("s_barrier")
        self.stamp("b4b")
        if p2 < 2:
            for l in xl:
                A(l)
            A("s_waitcnt vmcnt(2)")
        else:
            A(f"s_waitcnt vmcnt({(1 if o.get('wdpf', 3) == 3 else 0) + epi})")
        WGp = K + 80
        for kp in range(4):
            for d in range(4):
                lo, hi = vWG + 8 * kp + d, vWG + 8 * kp + 4 + d
                A(f"v_perm_b32 {v(WGp + 8 * kp + 2 * d)}, {v(hi)}, {v(lo)}, s{sRP0}")
                A(f"v_perm_b32 {v(WGp + 8 * kp + 2 * d + 1)}, {v(hi)}, {v(lo)}, s{sRP1}")
        WDp = vWG
        wdperm = []
        for kp in range(8):
            lo, hi = vWD + 2 * kp, vWD + 2 * kp + 1
            wdperm.append(f"v_perm_b32 {v(WDp + 2 * kp)}, {v(hi)}, {v(lo)}, s{sRP0}")
            wdperm.append(f"v_perm_b32 {v(WDp + 2 * kp + 1)}, {v(hi)}, {v(lo)}, s{sRP1}")
        if wdp == 0:
            for l in wdperm:
                A(l)
        if p2 >= 2:
            if o.get("d2"):
                A(f"s_sleep {o['d2']}")
            for l in xl:
                A(l)
        if wdp == 3:
            for l in wdl:
                A(l)
        A(f"s_waitcnt vmcnt({16 if wdp == 3 else 0})")
        self.poll("x2", xl, chk8)
        self.stamp("x2ld")

        if o.get("mid2", 1):
            for k in range(8):
                A(f"v_dot2_f32_bf16 {v(Tt + 2 * k)}, {v(vY + k)}, s{sSELLO}, {v(Tt + 2 * k)}")
                A(f"v_dot2_f32_bf16 {v(Tt + 2 * k + 1)}, {v(vY + k)}, s{sSELHI}, {v(Tt + 2 * k + 1)}")
            for k in range(8):
                A(f"v_cvt_pk_bf16_f32 {v(vY + k)}, {v(Tt + 2 * k)}, {v(Tt + 2 * k + 1)}")
        for k in range(8):
            A(f"v_dot2_f32_bf16 {v(Xf + 2 * k)}, {v(vY + k)}, s{sSELLO}, {v(Xf + 2 * k)}")
            A(f"v_dot2_f32_bf16 {v(Xf + 2 * k + 1)}, {v(vY + k)}, s{sSELHI}, {v(Xf + 2 * k + 1)}")
        vH = vX
        for cp in range(2):
            for r in range(4):
                A(f"v_cvt_pk_bf16_f32 {v(vH + 2 * r + cp)}, {v(Xf + 8 * cp + r)}, {v(Xf + 8 * cp + 4 + r)}")
        Rr = [K + 8 + i for i in range(4)]
        for cp in range(2):
            for r in range(4):
                A(f"v_dot2_f32_bf16 {v(V[r])}, {v(vH + 2 * r + cp)}, s{sONES}, {v(V[r]) if cp else 0}")
            for r in range(4):
                A(f"v_dot2_f32_bf16 {v(V[4 + r])}, {v(vH + 2 * r + cp)}, {v(vH + 2 * r + cp)}, {v(V[4 + r]) if cp else 0}")
            for r in range(4):
                A(f"v_dot2_f32_bf16 {v(Rr[r])}, {v(vH + 2 * r + cp)}, {v(vWR + cp)}, {v(Rr[r]) if cp else 0}")
        for i in range(4):
            A(f"v_add_f32_dpp {v(V[i])}, {v(V[i])}, {v(V[i])} row_ror:8 row_mask:0xf bank_mask:0x3")
        for i in range(4):
            A(f"v_add_f32_dpp {v(V[i])}, {v(V[i + 4])}, {v(V[i + 4])} row_ror:8 row_mask:0xf bank_mask:0xc")
        for i in range(2):
            A(f"v_add_f32_dpp {v(Rr[i])}, {v(Rr[i])}, {v(Rr[i])} row_shl:4 row_mask:0xf bank_mask:0x5")
        for i in range(2):
            A(f"v_add_f32_dpp {v(Rr[i])}, {v(Rr[i + 2])}, {v(Rr[i + 2])} row_shr:4 row_mask:0xf bank_mask:0xa")
        for i in range(2):
            A(f"v_add_f32_dpp {v(V[i])}, {v(V[i])}, {v(V[i])} row_shl:4 row_mask:0xf bank_mask:0x5")
        for i in range(2):
            A(f"v_add_f32_dpp {v(V[i])}, {v(V[i + 2])}, {v(V[i + 2])} row_shr:4 row_mask:0xf bank_mask:0xa")
        A(f"v_permlane32_swap_b32 {v(Rr[0])}, {v(Rr[1])}")
        A(f"v_and_b32 {v(K + 13)}, 0xffffff7f, {v(vSW)}")
        A(f"v_permlane32_swap_b32 {v(V[0])}, {v(V[1])}")
        A(f"v_add_f32 {v(Rr[0])}, {v(Rr[0])}, {v(Rr[1])}")
        A(f"v_add_f32 {v(V[0])}, {v(V[0])}, {v(V[1])}")
        A(f"s_mov_b64 vcc, {sp(sODD)}")
        A(f"v_add_f32_dpp {v(Rr[0])}, {v(Rr[0])}, {v(Rr[0])} row_ror:8 row_mask:0xf bank_mask:0xf")
        A(f"v_add_f32_dpp {v(V[0])}, {v(V[0])}, {v(V[0])} quad_perm:[2,3,0,1] row_mask:0xf bank_mask:0xf")
        A(f"v_mov_b32 {v(V[1])}, {v(V[0])}")
        A(f"v_add_f32_dpp {v(Rr[0])}, {v(Rr[0])}, {v(Rr[0])} quad_perm:[2,3,0,1] row_mask:0xf bank_mask:0xf")
        A(f"v_mov_b32 {v(Rr[1])}, {v(Rr[0])}")
        A(f"v_permlane16_swap_b32 {v(V[0])}, {v(V[1])}")
        A(f"v_add_f32 {v(V[0])}, {v(V[0])}, {v(V[1])}")
        A(f"v_permlane16_swap_b32 {v(Rr[0])}, {v(Rr[1])}")
        A(f"v_add_f32 {v(Rr[0])}, {v(Rr[0])}, {v(Rr[1])}")
        A(f"ds_write_b32 {v(vSW)}, {v(V[0])} offset:{L_RED2 - L_RED1}")
        A(f"ds_write_b32 {v(K + 13)}, {v(Rr[0])} offset:{L_RED2 - L_RED1 + 256}")
        A("s_waitcnt lgkmcnt(0)")
        A("s_barrier")
        self.stamp("b5")
        Hf, Dd = Xf, Tt
        self.key_calc(K, vRA, vLANE)
        for r in range(4):
            A(f"ds_write_b64 {v(vTW)}, {v(vH + 2 * r, 2)} offset:{WTILE + r * WST}")
        self.spread(K + 12, vNM, K + 24)
        A(f"v_readfirstlane_b32 s{sBEST}, {v(K + 8)}")
        for r in range(4):
            for cp in range(2):
                A(f"v_lshlrev_b32 {v(Hf + 4 * r + 2 * cp)}, 16, {v(vH + 2 * r + cp)}")
                A(f"v_and_b32 {v(Hf + 4 * r + 2 * cp + 1)}, s{sMASK}, {v(vH + 2 * r + cp)}")
        self.spread(K + 13, vRI, K + 24)
        for k in range(8):
            r = k >> 1
            sel = "op_sel:[1,0] op_sel_hi:[1,1]" if r & 1 else "op_sel_hi:[0,1]"
            A(f"v_pk_add_f32 {v(Dd + 2 * k, 2)}, {v(vNM + (r & 2), 2)}, {v(Hf + 2 * k, 2)} {sel}")
        vX2 = vU
        if o.get("pace", 5) == 1:
            A("s_barrier")
        for k in range(8):
            A(f"v_cvt_pk_bf16_f32 {v(vX2 + k)}, {v(Dd + 2 * k)}, {v(Dd + 2 * k + 1)}")
        for k in range(8):
            A(f"v_lshlrev_b32 {v(Dd + 2 * k)}, 16, {v(vX2 + k)}")
            A(f"v_and_b32 {v(Dd + 2 * k + 1)}, s{sMASK}, {v(vX2 + k)}")
        for k in range(8):
            r = k >> 1
            sel = "op_sel:[1,0] op_sel_hi:[1,1]" if r & 1 else "op_sel_hi:[0,1]"
            A(f"v_pk_mul_f32 {v(Dd + 2 * k, 2)}, {v(vRI + (r & 2), 2)}, {v(Dd + 2 * k, 2)} {sel}")
        for k in range(8):
            A(f"v_cvt_pk_bf16_f32 {v(vX2 + k)}, {v(Dd + 2 * k)}, {v(Dd + 2 * k + 1)}")
        if o.get("pace", 5) == 2:
            A("s_barrier")
        for r in range(4):
            A(f"ds_write_b64 {v(vTW)}, {v(vX2 + 2 * r, 2)} offset:{r * WST}")
        A(f"s_andn2_b32 s{sTMP}, 7, s{sBEST}")
        A(f"s_mul_i32 s{sTMP + 1}, s{sTMP}, {WST}")
        A(f"v_add_u32 {v(vTS)}, s{sTMP + 1}, {v(vTS)}")
        A(f"ds_read_b128 {v(K + 24, 4)}, {v(vTS)}")
        A(f"s_mov_b32 s{sCAND}, s{sTMP}")
        A("s_mov_b32 exec_hi, 0")
        A("s_waitcnt lgkmcnt(0)")
        A(f"global_store_dwordx4 {v(vSL)}, {v(K + 24, 4)}, {sp(sWS)} sc1")
        A("s_mov_b32 exec_hi, -1")
        self.stamp("slot")
        if o.get("pace", 5) == 3:
            A("s_barrier")
        if wdp == 2:
            A(f"s_cmp_lt_u32 s{sPOS}, 14")
            A("s_cselect_b64 exec, -1, 0")
            for l in wdl:
                A(l)
            A("s_mov_b64 exec, -1")
        vO = vU
        osc = " sc1" if o.get("outsc", 1) == 1 else ""
        olate = o.get("olate", 0)
        ost = [f"global_store_dwordx4 {v(vRD)}, {v(vO + 4 * i, 4)}, {sp(sOUT)} offset:{4096 * i - 4096}{osc}" for i in range(2)]

        def outcode():
            for k in range(8):
                A(f"v_dot2_f32_bf16 {v(Hf + 2 * k)}, {v(vX2 + k)}, s{sSELLO}, {v(Hf + 2 * k)}")
                A(f"v_dot2_f32_bf16 {v(Hf + 2 * k + 1)}, {v(vX2 + k)}, s{sSELHI}, {v(Hf + 2 * k + 1)}")
            for k in range(8):
                A(f"v_cvt_pk_bf16_f32 {v(vY + k)}, {v(Hf + 2 * k)}, {v(Hf + 2 * k + 1)}")
            if o.get("pace", 5) == 5:
                A("s_barrier")
            for r in range(4):
                A(f"ds_write_b64 {v(vTW)}, {v(vY + 2 * r, 2)} offset:{2 * WTILE + r * WST}")
            for i in range(2):
                A(f"ds_read_b128 {v(vO + 4 * i, 4)}, {v(vTO)} offset:{2 * WTILE + 4 * i * WST}")
            A(f"s_and_b32 s{sTMP + 1}, s{sCAND}, 3")
            A(f"s_lshl_b32 s{sTMP + 1}, s{sTMP + 1}, 4")
            A(f"s_mov_b64 {sp(sE)}, 0xffff")
            A(f"s_lshl_b64 {sp(sE)}, {sp(sE)}, s{sTMP + 1}")
            A(f"s_lshr_b32 s{sCAND}, s{sCAND}, 2")
            A("s_waitcnt lgkmcnt(0)")
            if not olate:
                for i in range(2):
                    A(f"s_cmp_eq_u32 s{sCAND}, {i}")
                    A(f"s_cselect_b64 vcc, {sp(sE)}, 0")
                    A("s_not_b64 exec, vcc")
                    A(ost[i])
                A("s_mov_b64 exec, -1")
        opos = o.get("opos", 0)
        if opos == 0:
            outcode()
        if wdp == 3:
            A("s_waitcnt vmcnt(3)")
            for l in wdperm:
                A(l)
        if o.get("pace", 5) == 4:
            A("s_barrier")
        A("s_barrier")
        A(f"ds_read_b32 {v(K)}, {v(8)}")
        A(f"s_cmp_lt_u32 s{sPOS}, 14")
        A("s_cselect_b64 vcc, -1, 0")
        A("s_waitcnt lgkmcnt(0)")
        A(f"v_readfirstlane_b32 s{sWIN}, {v(K)}")
        seladdr = [f"s_andn2_b32 s{sT0}, 2047, s{sWIN}",
                   f"s_lshr_b32 s{sT1}, s{sT0}, 3",
                   f"s_mul_i32 s{sT1}, s{sT1}, {RS}",
                   f"v_add_u32 {v(vT)}, s{sT1}, {v(vF)}"]
        for l in seladdr:
            A(l)
        sl = [f"global_load_dwordx4 {v(K, 4)}, {v(vT)}, {sp(sWS)} sc1"]
        A("s_mov_b64 exec, vcc")
        A(sl[0])
        if wdp == 1:
            for l in wdl:
                A(l)
        A("s_mov_b64 exec, -1")
        self.stamp("win")
        if opos == 1:
            outcode()
        self.stamp("outst")
        A(f"s_cmp_lt_u32 s{sPOS}, 14")
        A("s_cbranch_scc0 L_noffn")
        A(f"s_waitcnt vmcnt({(16 if wdp == 1 else 0) + (2 if opos == 1 else 0)})")
        A("L_selwait:")
        self.poll("sel", sl, [f"v_max3_u32 {v(vT + 6)}, {v(K)}, {v(K + 1)}, {v(K + 2)}",
                              f"v_max_u32 {v(vT + 6)}, {v(vT + 6)}, {v(K + 3)}",
                              f"v_cmp_eq_u32 vcc, -1, {v(vT + 6)}"])
        self.stamp("sel")
        V2 = [K + 8 + i for i in range(8)]
        for kp in range(4):
            for c in range(8):
                A(f"v_dot2_f32_bf16 {v(V2[c])}, {v(K + kp)}, {v(WGp + 8 * kp + c)}, {v(V2[c]) if kp else 0}")
        self.reduce8(V2, K + 16)
        A(f"ds_write_b32 {v(vF + 1)}, {v(V2[0])}")
        held = [f"s_cmp_eq_u32 s{sWIN}, s{sBEST}",
                f"s_cselect_b32 s{sCAND}, s{sCAND}, 8" if olate else f"s_cselect_b32 s{sCAND}, 8, s{sCAND}"]
        for i in range(2):
            held += [f"s_cmp_eq_u32 s{sCAND}, {i}"]
            if olate:
                held += [f"s_cselect_b64 vcc, {sp(sE)}, 0", "s_not_b64 exec, vcc"]
            else:
                held += [f"s_cselect_b64 exec, {sp(sE)}, 0"]
            held += [ost[i]]
        held += ["s_mov_b64 exec, -1"]
        for l in held:
            A(l)
        if wdp in (1, 2):
            A(f"s_waitcnt vmcnt({2 if opos == 1 else 0})")
            for l in wdperm:
                A(l)
        A("s_waitcnt lgkmcnt(0)")
        A("s_barrier")
        self.stamp("b7")
        A(f"ds_read_b64 {v(K, 2)}, {v(vF + 2)}")
        A(f"ds_read_b64 {v(K + 2, 2)}, {v(vF + 2)} offset:128")
        A(f"v_mov_b32 {v(K + 4)}, 0")
        A(f"v_mov_b32 {v(K + 5)}, 0")
        A("s_waitcnt lgkmcnt(0)")
        A(f"v_add_f32 {v(K)}, {v(K)}, {v(K + 1)}")
        A(f"v_add_f32 {v(K + 2)}, {v(K + 2)}, {v(K + 3)}")
        A(f"v_cvt_pk_bf16_f32 {v(K + 1)}, {v(K)}, {v(K + 2)}")
        A(f"v_lshlrev_b32 {v(K)}, 16, {v(K + 1)}")
        A(f"v_mul_f32 {v(K + 3)}, {hex(f2u(-L2E))}, {v(K)}")
        A(f"v_exp_f32 {v(K + 3)}, {v(K + 3)}")
        A(f"v_and_b32 {v(K + 2)}, s{sMASK}, {v(K + 1)}")
        A(f"v_add_f32 {v(K + 3)}, 1.0, {v(K + 3)}")
        A(f"v_rcp_f32 {v(K + 3)}, {v(K + 3)}")
        A(f"v_mul_f32 {v(K)}, {v(K)}, {v(K + 3)}")
        A(f"v_cvt_pk_bf16_f32 {v(K)}, {v(K)}, {v(K)}")
        A(f"v_and_b32 {v(K)}, s{sMASK}, {v(K)}")
        A(f"v_mul_f32 {v(K)}, {v(K)}, {v(K + 2)}")
        A(f"v_mov_b32_dpp {v(K + 1)}, {v(K)} quad_perm:[1,1,3,3] row_mask:0xf bank_mask:0xf")
        A(f"v_cvt_pk_bf16_f32 {v(K)}, {v(K)}, {v(K + 1)}")
        for kp in range(8):
            for c in range(2):
                A(f"v_dot2c_f32_bf16_dpp {v(K + 4 + c)}, {v(K)}, {v(WDp + 2 * kp + c)} row_newbcast:{2 * kp} row_mask:0xf bank_mask:0xf")
        A(f"global_store_dwordx2 {v(vF + 3)}, {v(K + 4, 2)}, {sp(sWS)} sc1")
        self.stamp("part")
        gen_st = [f"s_lshl_b32 s{sTMP}, s{sL}, 2",
                  f"s_add_u32 s{sTMP}, s{sTMP}, s{sWAVE}",
                  f"s_cmp_eq_u32 s{sTMP}, 3",
                  "s_cselect_b64 exec, 1, 0",
                  f"v_mov_b32 {v(vT + 4)}, s{sG}",
                  f"v_mov_b32 {v(vT + 5)}, 0",
                  f"global_store_dword {v(vT + 5)}, {v(vT + 4)}, {sp(sWS)} sc1"]
        T = self.tail
        if o.get("fc", 0):
            A("L_noffn:")
            for l in held + gen_st:
                A(l)
        else:
            T("L_noffn:")
            for l in held:
                T(l)
            T("L_nofinal:")
            for l in gen_st:
                T(l)
            T("s_branch L_fin")
            A(f"s_cmp_lt_u32 s{sPOS}, 8")
            A("s_cbranch_scc0 L_nofinal")
            A(f"s_cmp_lt_u32 s{sWAVE}, 2")
            A("s_cbranch_scc0 L_nofinal")
            A(f"s_lshl_b32 s{sTMP}, s{sXCD}, 3")
            A(f"s_add_u32 s{sTMP}, s{sTMP}, s{sPOS}")
            A(f"s_lshl_b32 s{sTMP}, s{sTMP}, 1")
            A(f"s_add_u32 s{sTMP}, s{sTMP}, s{sWAVE}")
            A(f"v_lshrrev_b32 {v(vT)}, 5, {v(vLANE)}")
            A(f"v_bfe_u32 {v(vT + 1)}, {v(vLANE)}, 4, 1")
            A(f"v_lshl_add_u32 {v(vT)}, {v(vT + 1)}, 1, {v(vT)}")
            A(f"s_lshl_b32 s{sTMP + 1}, s{sTMP}, 3")
            A(f"v_lshl_add_u32 {v(vT)}, {v(vT)}, 1, s{sTMP + 1}")
            A(f"s_add_u32 s{sT1}, s{sT1}, {W_REG + O_SLOT}")
            A(f"v_add_u32 {v(vT + 1)}, s{sT1}, {v(vT)}")
            xh = [f"global_load_ushort {v(K + 20)}, {v(vT + 1)}, {sp(sWS)} sc1",
                  f"global_load_ushort {v(K + 21)}, {v(vT + 1)}, {sp(sWS)} offset:1024 sc1"]
            for l in xh:
                A(l)
            A(f"s_lshl_b32 s{sTMP + 1}, s{sT0}, 10")
            A(f"v_add_u32 {v(vT)}, s{sTMP + 1}, {v(vT)}")
            A(f"v_min_u32 {v(vT + 2)}, 55, {v(vLANE)}")
            A(f"v_mul_u32_u24 {v(vT + 3)}, 4682, {v(vT + 2)}")
            A(f"v_lshrrev_b32 {v(vT + 3)}, 16, {v(vT + 3)}")
            A(f"v_mad_u32_u24 {v(vT + 2)}, {v(vT + 3)}, 18, {v(vT + 2)}")
            A(f"v_mul_u32_u24 {v(vT + 2)}, {RS}, {v(vT + 2)}")
            A(f"s_lshl_b32 s{sTMP + 1}, s{sTMP}, 4")
            A(f"s_add_u32 s{sTMP + 1}, s{sTMP + 1}, {W_REG + O_PART}")
            A(f"v_add_u32 {v(vT + 2)}, s{sTMP + 1}, {v(vT + 2)}")
            A(f"v_add_u32 {v(vT + 3)}, {128 * RS}, {v(vT + 2)}")
            A(f"s_ashr_i32 s{sTMP + 2}, s{sWIN}, 31")
            A(f"s_not_b32 s{sTMP + 2}, s{sTMP + 2}")
            A(f"s_or_b32 s{sTMP + 2}, s{sTMP + 2}, 0x80000000")
            A(f"s_xor_b32 s{sTMP + 2}, s{sTMP + 2}, s{sWIN}")
            A(f"s_and_b32 s{sTMP + 2}, s{sTMP + 2}, 0xfffff800")
            A(f"s_or_b32 s{sTMP + 2}, s{sTMP + 2}, 0x400")
            A(f"v_cvt_pk_bf16_f32 {v(K + 22)}, s{sTMP + 2}, s{sTMP + 2}")
            A(f"v_and_b32 {v(K + 22)}, s{sMASK}, {v(K + 22)}")
            A(f"v_mul_f32 {v(K + 22)}, {hex(f2u(-L2E))}, {v(K + 22)}")
            A(f"v_exp_f32 {v(K + 22)}, {v(K + 22)}")
            A(f"v_add_f32 {v(K + 22)}, 1.0, {v(K + 22)}")
            A(f"v_rcp_f32 {v(K + 22)}, {v(K + 22)}")
            A(f"v_cvt_pk_bf16_f32 {v(K + 22)}, {v(K + 22)}, {v(K + 22)}")
            A(f"v_and_b32 {v(K + 22)}, s{sMASK}, {v(K + 22)}")
            for k in range(8):
                A(f"v_mov_b32 {v(vY + k)}, 0")
            p4 = o.get("p4", 0)
            if p4 == 0:
                A("s_waitcnt vmcnt(0)")
            if o.get("d4"):
                A(f"s_sleep {o['d4']}")
            self.stamp("partdr")
            pl = [f"global_load_dwordx4 {v(vY, 4)}, {v(vT + 2)}, {sp(sWS)} sc1",
                  f"global_load_dwordx4 {v(vY + 4, 4)}, {v(vT + 3)}, {sp(sWS)} sc1"]
            A("s_mov_b32 exec_hi, 0x00ffffff")
            for l in pl:
                A(l)
            A("s_mov_b32 exec_hi, -1")
            if p4:
                A(f"s_waitcnt vmcnt({4 if olate else 2})")
            self.poll("xh", xh, [f"v_max_u32 {v(vT + 6)}, {v(K + 20)}, {v(K + 21)}",
                                 f"v_cmp_eq_u32 vcc, 0xffff, {v(vT + 6)}"])
            A(f"v_lshlrev_b32 {v(K + 20)}, 16, {v(K + 20)}")
            A(f"v_lshlrev_b32 {v(K + 21)}, 16, {v(K + 21)}")
            A(f"s_waitcnt vmcnt({2 if olate else 0})")
            self.poll("part", pl, chk8)
            self.stamp("partld")
            A(f"v_pk_add_f32 {v(vY, 2)}, {v(vY, 2)}, {v(vY + 4, 2)}")
            A(f"v_pk_add_f32 {v(vY + 2, 2)}, {v(vY + 2, 2)}, {v(vY + 6, 2)}")
            A(f"v_permlane32_swap_b32 {v(vY)}, {v(vY + 1)}")
            A(f"v_permlane32_swap_b32 {v(vY + 2)}, {v(vY + 3)}")
            A(f"v_add_f32 {v(vY)}, {v(vY)}, {v(vY + 1)}")
            A(f"v_add_f32 {v(vY + 2)}, {v(vY + 2)}, {v(vY + 3)}")
            A(f"v_permlane16_swap_b32 {v(vY)}, {v(vY + 2)}")
            A(f"v_add_f32 {v(vY)}, {v(vY)}, {v(vY + 2)}")
            for sh in (8, 4, 2, 1):
                A(f"v_add_f32_dpp {v(vY)}, {v(vY)}, {v(vY)} row_ror:{sh} row_mask:0xf bank_mask:0xf")
            y = vY
            A(f"v_cvt_pk_bf16_f32 {v(y)}, {v(y)}, {v(y)}")
            A(f"v_and_b32 {v(y)}, s{sMASK}, {v(y)}")
            A(f"v_mul_f32 {v(y)}, {v(y)}, {v(K + 22)}")
            A(f"v_cvt_pk_bf16_f32 {v(y)}, {v(y)}, {v(y)}")
            A(f"v_and_b32 {v(y)}, s{sMASK}, {v(y)}")
            A(f"v_add_f32 {v(y)}, {v(y)}, {v(K + 20)}")
            A(f"v_cvt_pk_bf16_f32 {v(y)}, {v(y)}, {v(y)}")
            A(f"v_and_b32 {v(y)}, s{sMASK}, {v(y)}")
            A(f"v_add_f32 {v(y)}, {v(y)}, {v(K + 21)}")
            A(f"v_cvt_pk_bf16_f32 {v(y)}, {v(y)}, {v(y)}")
            A("s_mov_b32 exec_lo, 0x00010001")
            A("s_mov_b32 exec_hi, 0x00010001")
            A(f"global_store_short {v(vT)}, {v(y)}, {sp(sOUT)}")
        A("L_fin:")
        self.finish("R")

    def chans(self):
        A = self.A
        o = self.o
        vLANE = 1
        vAA, vBA, vEW, vER, vRA = 4, 12, 13, 14, 15
        vKA0, vKA1, vKB, vPW0, vPW1 = 16, 17, 18, 19, 20
        vP = 24
        vT = 28
        vACC = 40
        vA0, vA1, vB0, vB1 = 72, 104, 136, 168
        K = 72
        A("L_chan:")
        A("v_and_b32 v0, 0xff, v0")
        A(f"s_sub_u32 s{sWAVE}, s{sWAVE}, 4")
        A(f"s_lshl_b32 s{sT0}, s{sL}, 9")
        A(f"v_lshl_add_u32 {v(vT)}, v0, 1, s{sT0}")
        A(f"s_lshl_b32 s{sT1}, s{sL}, 2")
        A("s_waitcnt lgkmcnt(0)")
        self.stamp("karg")
        for k, s in enumerate((sLA, sAI, sCR, sCI)):
            A(f"global_load_ushort {v(vP + k)}, {v(vT)}, {sp(s)}{' nt' if o.get('ntx', 1) else ''}")
        A(f"s_load_dword s{sDT}, {sp(sLDT)}, s{sT1}")
        f2 = o.get("b1b", 1) == 2
        if f2:
            A(f"s_load_dword s{sG}, {sp(sWS)}, 0")
        ntlb = 0
        if o.get("tlb", 0):
            A("v_mov_b32 v2, 0")
            A("s_mov_b64 exec, 1")
            for sb in (sWG, sWU, sWD, sOUT):
                A(f"global_load_dword v3, v2, {sp(sb)}")
                ntlb += 1
            A("s_mov_b64 exec, -1")
        vJ, vGq = vT + 4, vT + 5
        A(f"v_and_b32 {v(vJ)}, 15, {v(vLANE)}")
        A(f"v_lshrrev_b32 {v(vGq)}, 4, {v(vLANE)}")
        A(f"s_lshr_b32 s{sT0}, s{sWAVE}, 1")
        A(f"s_and_b32 s{sT1}, s{sWAVE}, 1")
        A(f"v_and_b32 {v(vT)}, 7, {v(vLANE)}")
        A(f"v_lshlrev_b32 {v(vRA)}, 4, {v(vT)}")
        A(f"v_add_u32 {v(vRA)}, {L_RED1}, {v(vRA)}")
        A(f"s_mul_i32 s{sTMP}, s{sT0}, {PC}")
        A(f"s_lshl_b32 s{sTMP + 1}, s{sT1}, 7")
        A(f"s_add_u32 s{sTMP}, s{sTMP}, s{sTMP + 1}")
        A(f"s_add_u32 s{sTMP}, s{sTMP}, {L_P + 4 * 26}")
        A(f"v_lshlrev_b32 {v(vT)}, 3, {v(vGq)}")
        A(f"v_sub_u32 {v(vT)}, {v(vJ)}, {v(vT)}")
        A(f"v_lshl_add_u32 {v(vAA)}, {v(vT)}, 2, s{sTMP}")
        for m in range(1, 5):
            A(f"v_add_u32 {v(vAA + m)}, {1024 * m}, {v(vAA)}")
        KS = o.get("ks", 6)
        for k in range(4):
            A(f"v_mov_b32 {v(vACC + k)}, -1")
        A(f"s_mul_i32 s{sTMP}, s{sL}, {RS}")
        A(f"s_add_u32 s{sTMP}, s{sTMP}, {W_REG + 4096}")
        A(f"v_lshl_add_u32 {v(vACC + 4)}, v0, 4, s{sTMP}")
        A(f"v_add_u32 {v(vACC + 5)}, 8192, {v(vACC + 4)}")
        A(f"v_add_u32 {v(vACC + 6)}, 12288, {v(vACC + 4)}")
        A(f"s_lshl_b32 s{sTMP}, s{sL}, {KS}")
        A(f"s_add_u32 s{sTMP}, s{sTMP}, {W_KEY}")
        A(f"v_lshl_add_u32 {v(22)}, {v(vLANE)}, 4, s{sTMP}")
        ones = v(vACC, 4)
        inits = [f"s_cmp_eq_u32 s{sWAVE}, 0",
                 f"s_cselect_b64 exec, {(1 << ((1 << KS) // 16)) - 1}, 0",
                 f"global_store_dwordx4 {v(22)}, {ones}, {sp(sWS)} sc1",
                 "s_mov_b64 exec, -1",
                 f"global_store_dwordx4 {v(vACC + 5)}, {ones}, {sp(sWS)} offset:-4096 sc1",
                 f"global_store_dwordx4 {v(vACC + 5)}, {ones}, {sp(sWS)} sc1",
                 f"s_cmp_lt_u32 s{sPOS}, 14",
                 f"s_cselect_b32 s{sTMP}, 4, 2",
                 f"s_cmp_lt_u32 s{sWAVE}, s{sTMP}",
                 "s_cselect_b64 exec, -1, 1",
                 f"global_store_dwordx4 {v(vACC + 6)}, {ones}, {sp(sWS)} sc1",
                 "s_mov_b64 exec, -1"]
        ninit = 3
        ilate = o.get("ilate", 0)
        if not ilate:
            for l in inits:
                A(l)
        vg, vr = vT, vT + 1
        A(f"v_lshrrev_b32 {v(vg)}, 2, {v(vJ)}")
        A(f"v_and_b32 {v(vr)}, 3, {v(vJ)}")
        A(f"s_cmp_eq_u32 s{sT1}, 0")
        A("s_cbranch_scc0 L_rows_hi")
        A(f"v_mov_b32 {v(vKA0)}, {v(vJ)}")
        A(f"v_lshl_add_u32 {v(vKA1)}, {v(vg)}, 1, {v(vr)}")
        A(f"v_add_u32 {v(vKA1)}, 16, {v(vKA1)}")
        A(f"v_add_u32 {v(vT + 2)}, -4, {v(vJ)}")
        A(f"v_and_b32 {v(vT + 2)}, 15, {v(vT + 2)}")
        A(f"v_cmp_eq_u32 vcc, 3, {v(vr)}")
        A(f"v_cndmask_b32 {v(vKA1)}, {v(vKA1)}, {v(vT + 2)}, vcc")
        A(f"v_lshl_add_u32 {v(vPW0)}, {v(vJ)}, 2, {v(vGq)}")
        A(f"v_lshlrev_b32 {v(vPW0)}, 4, {v(vPW0)}")
        A(f"v_add_u32 {v(vPW1)}, 1024, {v(vPW0)}")
        A("s_branch L_rows_done")
        A("L_rows_hi:")
        A(f"v_lshrrev_b32 {v(vT + 2)}, 1, {v(vg)}")
        A(f"v_lshl_add_u32 {v(vKA0)}, {v(vg)}, 1, {v(vr)}")
        A(f"v_add3_u32 {v(vKA0)}, {v(vKA0)}, {v(vT + 2)}, 25")
        A(f"v_sub_u32 {v(vKA1)}, {v(vJ)}, {v(vg)}")
        A(f"v_add_u32 {v(vKA1)}, 35, {v(vKA1)}")
        A(f"v_lshrrev_b32 {v(vT + 2)}, 1, {v(vGq)}")
        A(f"v_lshl_add_u32 {v(vPW0)}, {v(vT + 2)}, 4, {v(vJ)}")
        A(f"v_and_b32 {v(vT + 2)}, 1, {v(vGq)}")
        A(f"v_lshl_add_u32 {v(vPW0)}, {v(vPW0)}, 1, {v(vT + 2)}")
        A(f"v_lshlrev_b32 {v(vPW0)}, 5, {v(vPW0)}")
        A(f"v_add_u32 {v(vPW0)}, 2048, {v(vPW0)}")
        A(f"s_mul_i32 s{sTMP}, s{sT0}, {2 * QC - PC}")
        A(f"s_add_u32 s{sTMP}, s{sTMP}, {L_Q + 4 * 32 - L_P - 64}")
        A(f"v_lshl_add_u32 {v(vPW1)}, {v(vLANE)}, 2, s{sTMP}")
        A("L_rows_done:")
        A(f"s_mul_i32 s{sTMP}, s{sT0}, {PC}")
        A(f"s_add_u32 s{sTMP}, s{sTMP}, {L_P + 64}")
        A(f"v_add_u32 {v(vPW0)}, s{sTMP}, {v(vPW0)}")
        A(f"v_add_u32 {v(vPW1)}, s{sTMP}, {v(vPW1)}")
        A(f"s_mul_i32 s{sTMP}, s{sT0}, {TABC}")
        A(f"v_lshl_add_u32 {v(vT + 2)}, {v(vGq)}, 4, s{sTMP}")
        A(f"s_movk_i32 s{sTMP + 1}, {ROWB}")
        A(f"v_mad_u32_u24 {v(vKA0)}, {v(vKA0)}, s{sTMP + 1}, {v(vT + 2)}")
        A(f"v_mad_u32_u24 {v(vKA1)}, {v(vKA1)}, s{sTMP + 1}, {v(vT + 2)}")
        A(f"v_mad_u32_u24 {v(vKB)}, {v(vJ)}, s{sTMP + 1}, {v(vT + 2)}")
        A(f"s_lshl_b32 s{sTMP + 1}, s{sT1}, 8")
        A(f"s_add_u32 m0, s{sTMP}, s{sTMP + 1}")
        A(f"s_mul_i32 s{sTMP}, s{sXCD}, 448")
        A(f"s_and_b32 s{sTMP}, s{sTMP}, 0xffffff80")
        A(f"s_mul_i32 s{sTMP + 1}, s{sPOS}, {16 * 3584}")
        A(f"s_add_u32 s{sTMP}, s{sTMP}, s{sTMP + 1}")
        A(f"v_lshrrev_b32 {v(vT + 2)}, 2, {v(vLANE)}")
        A(f"v_mul_u32_u24 {v(vT + 2)}, 3584, {v(vT + 2)}")
        A(f"v_and_b32 {v(vT + 3)}, 3, {v(vLANE)}")
        A(f"v_lshl_add_u32 {v(vT + 2)}, {v(vT + 3)}, 7, {v(vT + 2)}")
        A(f"v_add_u32 {v(vT + 2)}, s{sTMP}, {v(vT + 2)}")
        A(f"s_mul_i32 s{sTMP}, s{sL}, 7168")
        A(f"s_mul_i32 s{sTMP + 1}, s{sT1}, 3584")
        A(f"s_add_u32 s{sTMP}, s{sTMP}, s{sTMP + 1}")
        A(f"v_min_u32 {v(vT + 3)}, 27, {v(vLANE)}")
        A(f"v_lshl_add_u32 {v(vT + 3)}, {v(vT + 3)}, 7, s{sTMP}")
        A(f"s_cmp_eq_u32 s{sT1}, 0")
        A(f"s_cselect_b64 {sp(sWSEL)}, {sp(sWG)}, {sp(sWU)}")
        A(f"s_cmp_eq_u32 s{sT0}, 0")
        A(f"s_cselect_b64 {sp(sWSEL)}, {sp(sWSEL)}, {sp(sWD)}")
        A("s_cselect_b64 vcc, -1, 0")
        A(f"v_cndmask_b32 {v(21)}, {v(vT + 3)}, {v(vT + 2)}, vcc")
        if o.get("wdpf", 3):
            A(f"s_cmp_eq_u32 s{sT1}, 0")
            A(f"s_cselect_b64 {sp(sWSEL)}, {sp(sWG)}, {sp(sWU)}")
            A(f"s_mul_i32 s{sTMP}, s{sT0}, {8 * 3584}")
            A(f"v_add_u32 {v(21)}, s{sTMP}, {v(vT + 2)}")
            A(f"v_cmp_gt_u32 vcc, 32, {v(vLANE)}")
            A(f"v_cndmask_b32 {v(21)}, 0, {v(21)}, vcc")
        wpf = f"global_load_dword v3, v21, {sp(sWSEL)}{' nt' if o.get('ntw', 0) else ''}"
        if o.get("wpf", 2) == 2:
            A(wpf)

        vFA, vQA, vBOX = vAA + 5, vAA + 6, 200

        def late_block():
            A(f"s_mul_i32 s{sTMP}, s{sT0}, {UC}")
            A(f"s_lshl_b32 s{sTMP + 1}, s{sT1}, 4")
            A(f"s_add_u32 s{sTMP}, s{sTMP}, s{sTMP + 1}")
            A(f"s_add_u32 s{sTMP}, s{sTMP}, {L_U + 480 - 48}")
            A(f"v_lshl_add_u32 {v(vT + 1)}, {v(vJ)}, 1, {v(vGq)}")
            A(f"v_lshl_add_u32 {v(vFA)}, {v(vT + 1)}, 4, s{sTMP}")
            A(f"s_mul_i32 s{sTMP}, s{sWAVE}, {QC}")
            A(f"s_add_u32 s{sTMP}, s{sTMP}, {L_Q + 4 * (64 - 18 - 32)}")
            A(f"v_lshlrev_b32 {v(vT + 1)}, 2, {v(vGq)}")
            A(f"v_sub_u32 {v(vT + 1)}, {v(vJ)}, {v(vT + 1)}")
            A(f"v_lshl_add_u32 {v(vQA)}, {v(vT + 1)}, 2, s{sTMP}")
            A(f"s_lshr_b32 s{sTMP}, 0x1ff, s{sT1}")
            A(f"s_andn2_b32 s{sTMP}, s{sTMP}, s{sT1}")
            A(f"s_lshl_b32 s{sTMP}, s{sTMP}, 4")
            A(f"v_lshlrev_b32 {v(vT + 1)}, {v(vJ)}, s{sTMP}")
            A(f"v_lshlrev_b32 {v(vT + 2)}, 3, {v(vGq)}")
            A(f"v_lshrrev_b32 {v(vT + 1)}, {v(vT + 2)}, {v(vT + 1)}")
            for d in range(4):
                A(f"v_bfe_u32 {v(vT + 2)}, {v(vT + 1)}, {2 * d}, 1")
                A(f"v_bfe_u32 {v(vT + 3)}, {v(vT + 1)}, {2 * d + 1}, 1")
                A(f"v_lshl_add_u32 {v(vT + 2)}, {v(vT + 3)}, 16, {v(vT + 2)}")
                A(f"v_mul_u32_u24 {v(vBOX + d)}, 0x3f80, {v(vT + 2)}")
            A(f"s_mul_i32 s{sTMP}, s{sT0}, {UC}")
            A(f"s_lshl_b32 s{sTMP + 1}, s{sT1}, 6")
            A(f"s_sub_u32 s{sTMP}, s{sTMP}, s{sTMP + 1}")
            A(f"s_add_u32 s{sTMP}, s{sTMP}, {L_U + 64}")
            A(f"v_lshl_add_u32 {v(vT + 6)}, {v(vJ)}, 1, {v(vGq)}")
            A(f"v_lshl_add_u32 {v(vBA)}, {v(vT + 6)}, 4, s{sTMP}")
            A(f"v_lshl_add_u32 {v(vT + 6)}, {v(vJ)}, 2, {v(vGq)}")
            A(f"v_lshrrev_b32 {v(vT + 1)}, 3, {v(vT + 6)}")
            A(f"v_add_u32 {v(vT + 6)}, {v(vT + 6)}, {v(vT + 1)}")
            A(f"s_mul_i32 s{sTMP}, s{sWAVE}, {8 * TBS}")
            A(f"v_lshl_add_u32 {v(vEW)}, {v(vT + 6)}, 4, s{sTMP}")
            A(f"v_lshrrev_b32 {v(vT + 1)}, 3, {v(vLANE)}")
            A(f"v_add_u32 {v(vT + 6)}, {v(vLANE)}, {v(vT + 1)}")
            if o.get("epi", 1):
                A(f"s_mul_i32 s{sTMP}, s{sWAVE}, {TBS}")
                A(f"s_add_u32 s{sTMP}, s{sTMP}, {4 * TBS}")
            else:
                A(f"s_mul_i32 s{sTMP}, s{sWAVE}, {2 * TBS}")
            A(f"v_lshl_add_u32 {v(vER)}, {v(vT + 6)}, 4, s{sTMP}")
            A(f"s_mul_i32 s{sTMP}, s{sL}, {RS}")
            A(f"s_lshl_b32 s{sTMP + 1}, s{sWAVE}, {10 if o.get('epi', 1) else 11}")
            A(f"s_add_u32 s{sTMP}, s{sTMP}, s{sTMP + 1}")
            A(f"s_add_u32 s{sTMP}, s{sTMP}, {W_REG + O_X2 + (4096 if o.get('epi', 1) else 0)}")
            A(f"v_lshl_add_u32 {v(23)}, {v(vLANE)}, 4, s{sTMP}")
        if o.get("lpos", 1) == 1:
            late_block()

        L2E = 1.4426950408889634
        l2e_hi = struct.unpack("<f", struct.pack("<f", L2E))[0]
        l2e_lo = L2E - l2e_hi
        a, b = K, K + 2
        A(f"s_mov_b32 s{sE}, {hex(f2u(l2e_hi))}")
        A(f"s_mov_b32 s{sE + 1}, {hex(f2u(l2e_lo))}")
        if o.get("b1b", 1):
            A("s_barrier")
        A(f"s_waitcnt vmcnt({(1 if o.get('wpf', 2) == 2 else 0) + (0 if ilate else ninit) + ntlb}) lgkmcnt(0)")
        self.stamp("par")
        if o.get("prio", 2) == 2:
            A("s_setprio 2")
        if ilate:
            for l in inits:
                A(l)
        if o.get("wpf", 2) == 6:
            A(wpf)
        A(f"s_lshl_b32 s{sTMP}, s{sDT}, 16")
        A(f"s_and_b32 s{sTMP + 1}, s{sDT}, s{sMASK}")
        A(f"s_cmp_lt_u32 s{sWAVE}, 2")
        A(f"s_cselect_b32 s{sDT}, s{sTMP}, s{sTMP + 1}")
        A(f"v_lshlrev_b32 {v(a)}, 16, {v(vP)}")
        A(f"v_mov_b32 {v(a + 1)}, s{sDT}")
        A(f"v_pk_mul_f32 {v(b, 2)}, {v(a, 2)}, {sp(sE)} op_sel_hi:[1,0]")
        A(f"v_pk_fma_f32 {v(b + 2, 2)}, {v(a, 2)}, {sp(sE)}, {v(b, 2)} op_sel_hi:[1,0,1] neg_lo:[0,0,1] neg_hi:[0,0,1]")
        A(f"v_exp_f32 {v(b)}, {v(b)}")
        A(f"v_exp_f32 {v(b + 1)}, {v(b + 1)}")
        A(f"v_pk_fma_f32 {v(b + 2, 2)}, {sp(sE)}, {v(a, 2)}, {v(b + 2, 2)} op_sel:[1,0,0] op_sel_hi:[1,1,1]")
        A(f"v_mul_f32 {v(b + 2)}, {hex(f2u(0.6931471805599453))}, {v(b + 2)}")
        A(f"v_mul_f32 {v(b + 3)}, {hex(f2u(0.6931471805599453))}, {v(b + 3)}")
        A(f"v_pk_fma_f32 {v(b, 2)}, {v(b, 2)}, {v(b + 2, 2)}, {v(b, 2)}")
        A(f"v_cvt_pk_bf16_f32 {v(a)}, {v(b)}, {v(b + 1)}")
        vdt, va2, vph = K + 6, K + 7, K + 8
        A(f"v_and_b32 {v(vdt)}, s{sMASK}, {v(a)}")
        A(f"v_lshlrev_b32 {v(va2)}, 16, {v(a)}")
        A(f"v_lshlrev_b32 {v(vph)}, 16, {v(vP + 1)}")
        A(f"v_mul_f32 {v(va2)}, {v(va2)}, {v(vdt)}")
        A(f"v_mul_f32 {v(vph)}, {v(vph)}, {v(vdt)}")
        A(f"v_mul_f32 {v(va2)}, {hex(f2u(-l2e_hi))}, {v(va2)}")
        A(f"v_mul_f32 {v(vph)}, 0.15915494, {v(vph)}")
        Wp = {p: K + 10 + 2 * p for p in range(1, 17)}
        Zp = {p: K + 42 + 2 * p for p in range(1, 8)}
        G = [K + 58, K + 60]
        TT = [K + 62, K + 64, K + 66, K + 68]
        RR = [K + 70, K + 72, K + 74, K + 76]
        CV = K + 80
        A(f"v_mul_f32 {v(vdt)}, {hex(f2u(2.0 ** 69))}, {v(vdt)}")
        A(f"v_lshlrev_b32 {v(G[0])}, 16, {v(vP + 2)}")
        A(f"v_lshlrev_b32 {v(G[0] + 1)}, 16, {v(vP + 3)}")
        A(f"v_mul_f32 {v(G[0])}, {v(G[0])}, {v(vdt)}")
        A(f"v_mul_f32 {v(G[0] + 1)}, {v(G[0] + 1)}, {v(vdt)}")
        for n, (dst, sc) in enumerate(((Wp[1], 1.0), (Wp[16], 16.0), (Zp[1], 256.0))):
            t = TT[n]
            if sc == 1.0:
                A(f"v_exp_f32 {v(t)}, {v(va2)}")
                A(f"v_fract_f32 {v(t + 1)}, {v(vph)}")
            else:
                A(f"v_mul_f32 {v(t)}, {hex(f2u(sc))}, {v(va2)}")
                A(f"v_mul_f32 {v(t + 1)}, {hex(f2u(sc))}, {v(vph)}")
                A(f"v_exp_f32 {v(t)}, {v(t)}")
                A(f"v_fract_f32 {v(t + 1)}, {v(t + 1)}")
            A(f"v_cos_f32 {v(dst)}, {v(t + 1)}")
            A(f"v_sin_f32 {v(dst + 1)}, {v(t + 1)}")
        for n, dst in enumerate((Wp[1], Wp[16], Zp[1])):
            A(f"v_pk_mul_f32 {v(dst, 2)}, {v(dst, 2)}, {v(TT[n], 2)} op_sel_hi:[1,0]")
        jobs = [(1, Wp[1], None, None, 0), (16, Zp[1], None, None, 0), (47, G[0], None, None, 1)]
        wj = []
        for p in range(2, 16):
            hb = 1 << (p.bit_length() - 1)
            x, y = (p // 2, p // 2) if hb == p else (hb, p - hb)
            wj.append((p, Wp[p], Wp[x], Wp[y], 0))
        gj = [(47 + j, G[j & 1], G[(j - 1) & 1], Wp[16], 1) for j in range(1, 16)]
        zrow = {2: 25, 3: 30, 4: 35, 5: 38, 6: 41, 7: 44}
        zj = []
        for p in range(2, 8):
            hb = 1 << (p.bit_length() - 1)
            x, y = (p // 2, p // 2) if hb == p else (hb, p - hb)
            zj.append((zrow[p], Zp[p], Zp[x], Zp[y], 0))
        tj = [(16 + k, None, Zp[1], Wp[2 * k], 0) for k in range(1, 9)]
        for z in (2, 3):
            tj += [(zrow[z] + k, None, Zp[z], Wp[4 * k], 0) for k in range(1, 5)]
        for z in (4, 5, 6, 7):
            tj += [(zrow[z] + k, None, Zp[z], Wp[8 * k], 0) for k in range(1, 3)]
        first = []
        for i in range(max(len(wj), len(gj), len(zj))):
            for q in (wj, gj, zj):
                if i < len(q):
                    first.append(q[i])
        jobs += first + tj
        A(f"v_mov_b32 {v(CV + 15)}, 0x3f80")
        pend = [(0, CV + 15)]
        slot = 0
        nb = 0
        b1_at = o.get("b1_at", 4)
        batch = o.get("batch", 6)

        def do_b1():
            self.stamp("setup")
            A(f"s_waitcnt vmcnt({1 if (o.get('wpf', 2) == 2 and not ilate) or o.get('wpf', 2) == 6 else 0})")
            self.stamp("idr")
            A("s_barrier")
            self.stamp("b1")
            if o.get("wpf", 2) == 1:
                A(wpf)
        if f2:
            b1_at = -1
            A(f"s_add_u32 s{sG}, s{sG}, 1")
            A(f"s_mul_i32 s{sG}, s{sG}, 0x9e3779b1")
            A(f"s_lshl_b32 s{sTMP}, s{sL}, 7")
            A(f"s_add_u32 s{sTMP}, s{sTMP}, {W_FLAG}")
            A(f"v_lshl_add_u32 {v(23)}, {v(vLANE)}, 4, s{sTMP}")
            for k in range(4):
                A(f"v_mov_b32 {v(vACC + 8 + k)}, s{sG}")
        if b1_at == 0:
            do_b1()
        for n, (row, dst, x, y, conj) in enumerate(jobs):
            if x is not None:
                if dst is None:
                    dst = RR[n & 3]
                for ins in self.cmul(dst, x, y, TT[n & 3]):
                    A(ins)
            A(f"v_cvt_pk_bf16_f32 {v(CV + slot)}, {v(dst)}, {'-' if conj else ''}{v(dst + 1)}")
            pend.append((row, CV + slot))
            slot = (slot + 1) % 15
            if len(pend) >= batch or n == len(jobs) - 1:
                for row_, reg in pend:
                    A(f"ds_write_addtid_b32 {v(reg)} offset:{row_ * ROWB}")
                pend = []
                nb += 1
                if nb == b1_at:
                    do_b1()
        if f2:
            A(f"s_waitcnt vmcnt({1 if (o.get('wpf', 2) == 2 and not ilate) or o.get('wpf', 2) == 6 else 0})")
        A("s_waitcnt lgkmcnt(0)")
        self.stamp("kgen1")
        A("s_barrier")
        if f2:
            A(f"s_cmp_eq_u32 s{sWAVE}, 0")
            A("s_cselect_b64 exec, 0xff, 0")
            A(f"global_store_dwordx4 {v(23)}, {v(vACC + 8, 4)}, {sp(sWS)} sc1")
            A("s_mov_b64 exec, -1")
        if o.get("wpf", 2) == 3:
            A(wpf)
        self.stamp("b2")
        fB, fA0, fA1 = K, K + 32, K + 64
        for s in range(4):
            A(f"ds_read_b128 {v(fB + 4 * s, 4)}, {v(vKB)} offset:{47 * ROWB + 64 * s}")
            A(f"ds_read_b128 {v(fA0 + 4 * s, 4)}, {v(vKA0)} offset:{64 * s}")
            A(f"ds_read_b128 {v(fA1 + 4 * s, 4)}, {v(vKA1)} offset:{64 * s}")
        D0, D1 = vACC, vACC + 4
        for s in range(8):
            s2 = s + 4
            A(f"s_waitcnt lgkmcnt({9 if s2 < 8 else 3 * (7 - s)})")
            c0 = "0" if s == 0 else v(D0, 4)
            c1 = "0" if s == 0 else v(D1, 4)
            A(f"v_mfma_f32_16x16x32_bf16 {v(D0, 4)}, {v(fA0 + 4 * s, 4)}, {v(fB + 4 * s, 4)}, {c0}")
            if s2 < 8:
                A(f"ds_read_b128 {v(fB + 4 * s2, 4)}, {v(vKB)} offset:{47 * ROWB + 64 * s2}")
                A(f"ds_read_b128 {v(fA0 + 4 * s2, 4)}, {v(vKA0)} offset:{64 * s2}")
            A(f"v_mfma_f32_16x16x32_bf16 {v(D1, 4)}, {v(fA1 + 4 * s, 4)}, {v(fB + 4 * s, 4)}, {c1}")
            if s2 < 8:
                A(f"ds_read_b128 {v(fA1 + 4 * s2, 4)}, {v(vKA1)} offset:{64 * s2}")
        E = K + 96
        self.stamp("kmf")
        A(f"s_bitcmp1_b32 s{sWAVE}, 0")
        A(f"v_cmp_eq_u32 vcc, 0, {v(vLANE)}")
        A("s_nop 5")
        A("s_cbranch_scc0 L_exp_lo")
        seq2 = ["aa", "aa", "aa", "ba", "bb", "bb", "cb", "cc"]
        seq3 = ["aa", "aa", "aa", "aa", "aa", "ba", "bb", "bb", "bb", "bb", "cb", "cc", "cc", "cc"]
        ix = {"a": 0, "b": 1, "c": 2}
        A(f"v_mov_b32_dpp {v(E + 10)}, {v(D1 + 1)} wave_shr:1 row_mask:0xf bank_mask:0xf bound_ctrl:0")
        A(f"v_cndmask_b32 {v(E + 11)}, {v(D1)}, 0, vcc")
        for k in range(5):
            A(f"v_cvt_pk_bf16_f32 {v(E + 12 + k)}, {v(D1)}, {v(D1)}")
        A(f"v_cvt_pk_bf16_f32 {v(E + 17)}, 0, {v(D1)}")
        A(f"v_cvt_pk_bf16_f32 {v(E + 8)}, {v(D1 + 2)}, {v(E + 11)}")
        A(f"v_cvt_pk_bf16_f32 {v(E + 9)}, {v(D1 + 1)}, {v(E + 10)}")
        for k, s in enumerate(seq2):
            A(f"v_cvt_pk_bf16_f32 {v(E + k)}, {v(D0 + ix[s[0]])}, {v(D0 + ix[s[1]])}")
        A(f"ds_write2_b32 {v(vPW1)}, {v(E + 8)}, {v(E + 9)} offset0:0 offset1:{QC // 4}")
        A(f"ds_write_b128 {v(vPW0)}, {v(E, 4)}")
        A(f"ds_write_b128 {v(vPW0)}, {v(E + 4, 4)} offset:16")
        A("s_mov_b64 exec, 1")
        A(f"ds_write_b128 {v(vPW0)}, {v(E + 12, 4)} offset:2048")
        A(f"ds_write_b64 {v(vPW0)}, {v(E + 16, 2)} offset:2064")
        A("s_mov_b64 exec, -1")
        A("s_branch L_exp_done")
        A("L_exp_lo:")
        A(f"v_mov_b32_dpp {v(D1 + 3)}, {v(D1 + 3)} row_ror:1 row_mask:0x1 bank_mask:0xf")
        A(f"v_cvt_pk_bf16_f32 {v(E + 1)}, {v(D0 + 1)}, {v(D0)}")
        A(f"v_cvt_pk_bf16_f32 {v(E + 2)}, {v(D0 + 2)}, {v(D0 + 1)}")
        A(f"v_cvt_pk_bf16_f32 {v(E + 3)}, {v(D0 + 3)}, {v(D0 + 2)}")
        A(f"v_cndmask_b32 {v(E + 8)}, {v(D1 + 3)}, 0, vcc")
        A(f"v_cndmask_b32 {v(E + 9)}, {v(D1)}, {v(D1 + 3)}, vcc")
        A(f"v_cvt_pk_bf16_f32 {v(E)}, {v(D0)}, {v(E + 8)}")
        A(f"v_cvt_pk_bf16_f32 {v(E + 4)}, {v(D1)}, {v(E + 9)}")
        A(f"v_cvt_pk_bf16_f32 {v(E + 5)}, {v(D1)}, {v(D1)}")
        A(f"v_cvt_pk_bf16_f32 {v(E + 6)}, {v(D1 + 1)}, {v(D1)}")
        A(f"v_cvt_pk_bf16_f32 {v(E + 7)}, {v(D1 + 2)}, {v(D1 + 1)}")
        A(f"ds_write_b128 {v(vPW0)}, {v(E, 4)}")
        A(f"ds_write_b128 {v(vPW1)}, {v(E + 4, 4)}")
        A("L_exp_done:")
        T = self.tail
        A("s_waitcnt lgkmcnt(0)")
        self.stamp("kgen2")
        A("s_barrier")
        self.stamp("b2b")
        if o.get("wpf", 2) == 4:
            A(wpf)

        def rdA(buf, rho, m):
            return [f"ds_read2_b32 {v(buf + 4 * m, 2)}, {v(vAA + m)} offset0:{64 * rho + 6} offset1:{64 * rho + 4}",
                    f"ds_read2_b32 {v(buf + 4 * m + 2, 2)}, {v(vAA + m)} offset0:{64 * rho + 2} offset1:{64 * rho}"]

        def rdB(buf, rho, n):
            return [f"ds_read_b128 {v(buf + 4 * n, 4)}, {v(vBA)} offset:{128 * (3 - rho) + 512 * (7 - n)}"]

        for m in range(5):
            for l in rdA(vA0, 0, m):
                A(l)
        if o.get("lpos", 1) == 0:
            late_block()
        A("s_waitcnt lgkmcnt(0)")
        self.stamp("apre")
        A("s_barrier")
        self.stamp("b3")
        if o.get("wpf", 2) == 5:
            A(wpf)
        if o.get("prio", 2):
            A("s_setprio 2")

        bufA, bufB = [vA0, vA1], [vB0, vB1]
        for n in range(7, -1, -1):
            for l in rdB(vB0, 0, n):
                A(l)
        started = set()
        vFF, vDP, vQF = vA1 + 16, 204, [vA0 + 20, vA0 + 24, vA0 + 28, 220]
        vSF = vFF
        for rho in range(4):
            a_, b_ = bufA[rho & 1], bufB[rho & 1]
            mmax = 4 if rho == 0 else 3
            order = [(n - 7 + tb, tb, n) for n in range(7, -1, -1) for tb in range(7 - n, 8) if n - 7 + tb <= mmax]
            if rho == 3:
                order = [(n - 7 + tb, tb, n) for tb in range(8) for n in range(7 - tb, 8) if n - 7 + tb <= mmax]
            ops = [("d", m, tb, n) for (m, tb, n) in order]
            fill = []
            valu = []
            if rho + 1 < 4:
                nb_, na_ = bufB[(rho + 1) & 1], bufA[(rho + 1) & 1]
                for m in range(8):
                    fill += rdB(nb_, rho + 1, 7 - m)
                    if m < 4:
                        fill += rdA(na_, rho + 1, m)
            if rho == 0:
                fill += [f"ds_read_b128 {v(vFF + 4 * b, 4)}, {v(vFA)} offset:{512 * b}" for b in range(4)]
            if rho == 1:
                ops = [("b", b) for b in range(4)] + ops
                for q in range(4):
                    fill += [f"ds_read2_b32 {v(vQF[q], 2)}, {v(vQA)} offset0:{16 * q + 18} offset1:{16 * q + 16}",
                             f"ds_read2_b32 {v(vQF[q] + 2, 2)}, {v(vQA)} offset0:{16 * q + 2} offset1:{16 * q}"]
                valu = [f"v_cvt_pk_bf16_f32 {v(vSF + k)}, {v(vDP + 2 * k)}, {v(vDP + 2 * k + 1)}" for k in range(8)]
            if rho == 2:
                ops = [("f", 4, 0, 0), ("f", 5, 0, 1), ("f", 6, 0, 2), ("f", 7, 0, 3), ("f", 6, 1, 0), ("f", 7, 1, 1)] + ops
            issued = 0
            seen = set()
            done_at = {}
            for i, op in enumerate(ops):
                if op[0] == "d":
                    done_at[op[2]] = i
            for i, op in enumerate(ops):
                if rho == 0 and op[3] not in seen:
                    A(f"s_waitcnt lgkmcnt({min(15, op[3] + issued)})")
                    seen.add(op[3])
                elif i == 0:
                    A("s_waitcnt lgkmcnt(0)")
                if op[0] == "d":
                    _, m, tb, n = op
                    acc = v(vACC + 4 * tb, 4)
                    c = acc if tb in started else "0"
                    started.add(tb)
                    A(f"v_mfma_f32_16x16x32_bf16 {acc}, {v(a_ + 4 * m, 4)}, {v(b_ + 4 * n, 4)}, {c}")
                elif op[0] == "b":
                    A(f"v_mfma_f32_16x16x32_bf16 {v(vDP + 4 * op[1], 4)}, {v(vFF + 4 * op[1], 4)}, {v(vBOX, 4)}, 0")
                else:
                    _, tb, ks, q = op
                    acc = v(vACC + 4 * tb, 4)
                    A(f"v_mfma_f32_16x16x32_bf16 {acc}, {v(vSF + 4 * ks, 4)}, {v(vQF[q], 4)}, {acc}")
                if i >= 1 and fill:
                    A(fill.pop(0))
                    issued += 1
                if i >= 12 and valu:
                    A(valu.pop(0))
                if rho == 3:
                    for t in range(7):
                        if done_at[t] + 8 == i or (i == len(ops) - 1 and done_at[t] + 8 > i):
                            A(f"ds_write_b128 {v(vEW)}, {v(vACC + 4 * t, 4)} offset:{t * TBS}")
            assert not fill and not valu, (rho, len(fill), len(valu))
        A(f"ds_write_b128 {v(vEW)}, {v(vACC + 28, 4)} offset:{7 * TBS}")
        self.stamp("conv")
        A("s_waitcnt lgkmcnt(0)")
        A("s_barrier")
        if o.get("epi", 1):
            self.epilogue(K, vER, 23)
        else:
            for i in range(2):
                for s in range(4):
                    A(f"ds_read_b128 {v(K + 16 * i + 4 * s, 4)}, {v(vER)} offset:{s * 8 * TBS + i * TBS}")
            for i in range(2):
                A(f"s_waitcnt lgkmcnt({4 * (1 - i)})")
                b0 = K + 16 * i
                for c in range(2):
                    for h in range(2):
                        A(f"v_pk_add_f32 {v(b0 + 8 * c + 2 * h, 2)}, {v(b0 + 8 * c + 2 * h, 2)}, {v(b0 + 8 * c + 4 + 2 * h, 2)}")
                for c in range(2):
                    for h in range(2):
                        A(f"v_cvt_pk_bf16_f32 {v(K + 32 + 4 * i + 2 * c + h)}, {v(b0 + 8 * c + 2 * h)}, {v(b0 + 8 * c + 2 * h + 1)}")
                A(f"global_store_dwordx4 {v(23)}, {v(K + 32 + 4 * i, 4)}, {sp(sWS)} offset:{1024 * i} sc1")
        self.stamp("x2st")
        if o.get("p2", 3) == 0:
            A("s_waitcnt vmcnt(0)")
            self.stamp("x2dr")
        if o.get("p2", 3) == 0 or (o.get("p2", 3) == 3 and not o.get("epi", 1)):
            A("s_barrier")
        A(f"s_cmp_lt_u32 s{sWAVE}, 2")
        A("s_cbranch_scc0 L_cfin")
        A(f"v_lshlrev_b32 {v(vT + 1)}, {KS}, {v(vLANE)}")
        A(f"v_add_u32 {v(vT + 1)}, {W_KEY}, {v(vT + 1)}")
        for q in range(1, 4):
            A(f"v_add_u32 {v(vT + 8 + q)}, {(64 * q) << KS}, {v(vT + 1)}")
        for q in range(4):
            A(f"s_sub_u32 s{sTMP}, s{sL}, {64 * q}")
            A(f"v_cmp_eq_u32 {sp(sOWNM + 2 * q)}, s{sTMP}, {v(vLANE)}")
        A(f"v_mov_b32 {v(vT + 3)}, {L_REDK}")
        A("s_barrier")
        self.key_calc(K, vRA, vLANE)
        A(f"s_cmp_eq_u32 s{sWAVE}, 0")
        A("s_cbranch_scc0 L_poll")
        A("s_mov_b64 exec, 1")
        A(f"global_store_dword {v(22)}, {v(K + 8)}, {sp(sWS)} sc1")
        self.stamp("key")
        A("s_mov_b64 exec, -1")
        if o.get("pace", 5):
            A("s_barrier")
        A("s_branch L_keyed")
        A("L_poll:")
        k2, kn = vT + 4, vT + 5
        kl = [f"global_load_dword {v(K + q)}, {v(vT + 8 + q) if q else v(vT + 1)}, {sp(sWS)} sc1" for q in range(4)]
        kchk = [f"v_cndmask_b32 {v(K + q)}, {v(K + q)}, {v(K + 8)}, {sp(sOWNM + 2 * q)}" for q in range(4)]
        kchk += [f"v_add_u32 {v(K + 4 + q)}, 1, {v(K + q)}" for q in range(4)]
        kchk += [f"v_min3_u32 {v(kn)}, {v(K + 4)}, {v(K + 5)}, {v(K + 6)}",
                 f"v_max3_u32 {v(k2)}, {v(K + 4)}, {v(K + 5)}, {v(K + 6)}",
                 f"v_min_u32 {v(kn)}, {v(kn)}, {v(K + 7)}",
                 f"v_max_u32 {v(k2)}, {v(k2)}, {v(K + 7)}",
                 f"v_cmp_eq_u32 vcc, 0, {v(kn)}"]

        def wavemax(off):
            w = K + 10
            A(f"v_max_u32_dpp {v(w)}, {v(k2)}, {v(k2)} quad_perm:[1,0,3,2] row_mask:0xf bank_mask:0xf")
            A(f"v_max_u32_dpp {v(w)}, {v(w)}, {v(w)} quad_perm:[2,3,0,1] row_mask:0xf bank_mask:0xf")
            A(f"v_max_u32_dpp {v(w)}, {v(w)}, {v(w)} row_half_mirror row_mask:0xf bank_mask:0xf")
            A(f"v_max_u32_dpp {v(w)}, {v(w)}, {v(w)} row_mirror row_mask:0xf bank_mask:0xf")
            A(f"v_max_u32_dpp {v(w)}, {v(w)}, {v(w)} row_bcast:15 row_mask:0xa bank_mask:0xf")
            A(f"v_max_u32_dpp {v(w)}, {v(w)}, {v(w)} row_bcast:31 row_mask:0xc bank_mask:0xf")
            A(f"v_add_u32 {v(w)}, -1, {v(w)}")
            A("s_mov_b32 exec_lo, 0")
            A("s_brev_b32 exec_hi, 1")
            A(f"ds_write_b32 {v(vT + 3)}, {v(w)} offset:{off}")
            A("s_mov_b64 exec, -1")
            A("s_waitcnt lgkmcnt(0)")
        if o.get("pace", 5):
            A("s_barrier")
        if o.get("d3"):
            A(f"s_sleep {o['d3']}")
        for l in kl:
            A(l)
        A("s_waitcnt vmcnt(0)")
        self.poll("key", kl, kchk)
        self.stamp("keyld")
        wavemax(0)
        A("L_keyed:")
        A("s_barrier")
        if o.get("fc", 0):
            A(f"s_cmp_lt_u32 s{sPOS}, 8")
            A("s_cbranch_scc0 L_cfin")
            A(f"ds_read_b32 {v(K)}, {v(vT + 3)}")
            A("s_waitcnt lgkmcnt(0)")
            A(f"v_readfirstlane_b32 s{sWIN}, {v(K)}")
            A(f"s_andn2_b32 s{sT0}, 2047, s{sWIN}")
            A(f"s_lshr_b32 s{sT1}, s{sT0}, 3")
            A(f"s_mul_i32 s{sT1}, s{sT1}, {RS}")
            vY = K + 32
            chk8 = [f"v_max3_u32 {v(vT + 6)}, {v(vY)}, {v(vY + 1)}, {v(vY + 2)}",
                    f"v_max3_u32 {v(vT + 7)}, {v(vY + 3)}, {v(vY + 4)}, {v(vY + 5)}",
                    f"v_max3_u32 {v(vT + 6)}, {v(vT + 6)}, {v(vY + 6)}, {v(vY + 7)}",
                    f"v_max_u32 {v(vT + 6)}, {v(vT + 6)}, {v(vT + 7)}",
                    f"v_cmp_eq_u32 vcc, -1, {v(vT + 6)}"]
            A(f"s_lshl_b32 s{sTMP}, s{sXCD}, 3")
            A(f"s_add_u32 s{sTMP}, s{sTMP}, s{sPOS}")
            A(f"s_lshl_b32 s{sTMP}, s{sTMP}, 1")
            A(f"s_add_u32 s{sTMP}, s{sTMP}, s{sWAVE}")
            A(f"v_lshrrev_b32 {v(vT)}, 5, {v(vLANE)}")
            A(f"v_bfe_u32 {v(vT + 1)}, {v(vLANE)}, 4, 1")
            A(f"v_lshl_add_u32 {v(vT)}, {v(vT + 1)}, 1, {v(vT)}")
            A(f"s_lshl_b32 s{sTMP + 1}, s{sTMP}, 3")
            A(f"v_lshl_add_u32 {v(vT)}, {v(vT)}, 1, s{sTMP + 1}")
            A(f"s_add_u32 s{sT1}, s{sT1}, {W_REG + O_SLOT}")
            A(f"v_add_u32 {v(vT + 1)}, s{sT1}, {v(vT)}")
            xh = [f"global_load_ushort {v(K + 20)}, {v(vT + 1)}, {sp(sWS)} sc1",
                  f"global_load_ushort {v(K + 21)}, {v(vT + 1)}, {sp(sWS)} offset:1024 sc1"]
            A(f"s_lshl_b32 s{sTMP + 1}, s{sT0}, 10")
            A(f"v_add_u32 {v(vT)}, s{sTMP + 1}, {v(vT)}")
            A(f"v_min_u32 {v(vT + 2)}, 55, {v(vLANE)}")
            A(f"v_mul_u32_u24 {v(vT + 3)}, 4682, {v(vT + 2)}")
            A(f"v_lshrrev_b32 {v(vT + 3)}, 16, {v(vT + 3)}")
            A(f"v_mad_u32_u24 {v(vT + 2)}, {v(vT + 3)}, 18, {v(vT + 2)}")
            A(f"v_mul_u32_u24 {v(vT + 2)}, {RS}, {v(vT + 2)}")
            A(f"s_lshl_b32 s{sTMP + 1}, s{sTMP}, 4")
            A(f"s_add_u32 s{sTMP + 1}, s{sTMP + 1}, {W_REG + O_PART}")
            A(f"v_add_u32 {v(vT + 2)}, s{sTMP + 1}, {v(vT + 2)}")
            A(f"v_add_u32 {v(vT + 3)}, {128 * RS}, {v(vT + 2)}")
            A(f"s_ashr_i32 s{sTMP + 2}, s{sWIN}, 31")
            A(f"s_not_b32 s{sTMP + 2}, s{sTMP + 2}")
            A(f"s_or_b32 s{sTMP + 2}, s{sTMP + 2}, 0x80000000")
            A(f"s_xor_b32 s{sTMP + 2}, s{sTMP + 2}, s{sWIN}")
            A(f"s_and_b32 s{sTMP + 2}, s{sTMP + 2}, 0xfffff800")
            A(f"s_or_b32 s{sTMP + 2}, s{sTMP + 2}, 0x400")
            A(f"v_cvt_pk_bf16_f32 {v(K + 22)}, s{sTMP + 2}, s{sTMP + 2}")
            A(f"v_and_b32 {v(K + 22)}, s{sMASK}, {v(K + 22)}")
            A(f"v_mul_f32 {v(K + 22)}, {hex(f2u(-L2E))}, {v(K + 22)}")
            A(f"v_exp_f32 {v(K + 22)}, {v(K + 22)}")
            A(f"v_add_f32 {v(K + 22)}, 1.0, {v(K + 22)}")
            A(f"v_rcp_f32 {v(K + 22)}, {v(K + 22)}")
            A(f"v_cvt_pk_bf16_f32 {v(K + 22)}, {v(K + 22)}, {v(K + 22)}")
            A(f"v_and_b32 {v(K + 22)}, s{sMASK}, {v(K + 22)}")
            A("s_barrier")
            for l in xh:
                A(l)
            A("s_waitcnt vmcnt(0)")
            self.poll("xh", xh, [f"v_max_u32 {v(vT + 6)}, {v(K + 20)}, {v(K + 21)}",
                                 f"v_cmp_eq_u32 vcc, 0xffff, {v(vT + 6)}"])
            A(f"v_lshlrev_b32 {v(K + 20)}, 16, {v(K + 20)}")
            A(f"v_lshlrev_b32 {v(K + 21)}, 16, {v(K + 21)}")
            if o.get("d4"):
                A(f"s_sleep {o['d4']}")
            self.stamp("partdr")
            pl = [f"global_load_dwordx4 {v(vY, 4)}, {v(vT + 2)}, {sp(sWS)} sc1",
                  f"global_load_dwordx4 {v(vY + 4, 4)}, {v(vT + 3)}, {sp(sWS)} sc1"]
            for l in pl:
                A(l)
            A("s_waitcnt vmcnt(0)")
            self.poll("part", pl, chk8)
            self.stamp("partld")
            A(f"v_cmp_gt_u32 vcc, 56, {v(vLANE)}")
            A(f"v_pk_add_f32 {v(vY, 2)}, {v(vY, 2)}, {v(vY + 4, 2)}")
            A(f"v_pk_add_f32 {v(vY + 2, 2)}, {v(vY + 2, 2)}, {v(vY + 6, 2)}")
            for c in range(4):
                A(f"v_cndmask_b32 {v(vY + c)}, 0, {v(vY + c)}, vcc")
            A(f"v_permlane32_swap_b32 {v(vY)}, {v(vY + 1)}")
            A(f"v_permlane32_swap_b32 {v(vY + 2)}, {v(vY + 3)}")
            A(f"v_add_f32 {v(vY)}, {v(vY)}, {v(vY + 1)}")
            A(f"v_add_f32 {v(vY + 2)}, {v(vY + 2)}, {v(vY + 3)}")
            A(f"v_permlane16_swap_b32 {v(vY)}, {v(vY + 2)}")
            A(f"v_add_f32 {v(vY)}, {v(vY)}, {v(vY + 2)}")
            for sh in (8, 4, 2, 1):
                A(f"v_add_f32_dpp {v(vY)}, {v(vY)}, {v(vY)} row_ror:{sh} row_mask:0xf bank_mask:0xf")
            y = vY
            A(f"v_cvt_pk_bf16_f32 {v(y)}, {v(y)}, {v(y)}")
            A(f"v_and_b32 {v(y)}, s{sMASK}, {v(y)}")
            A(f"v_mul_f32 {v(y)}, {v(y)}, {v(K + 22)}")
            A(f"v_cvt_pk_bf16_f32 {v(y)}, {v(y)}, {v(y)}")
            A(f"v_and_b32 {v(y)}, s{sMASK}, {v(y)}")
            A(f"v_add_f32 {v(y)}, {v(y)}, {v(K + 20)}")
            A(f"v_cvt_pk_bf16_f32 {v(y)}, {v(y)}, {v(y)}")
            A(f"v_and_b32 {v(y)}, s{sMASK}, {v(y)}")
            A(f"v_add_f32 {v(y)}, {v(y)}, {v(K + 21)}")
            A(f"v_cvt_pk_bf16_f32 {v(y)}, {v(y)}, {v(y)}")
            A("s_mov_b32 exec_lo, 0x00010001")
            A("s_mov_b32 exec_hi, 0x00010001")
            A(f"global_store_short {v(vT)}, {v(y)}, {sp(sOUT)}")
        A("L_cfin:")
        self.finish("C")

    def text(self):
        lines = self.build()
        src = open("sequential_preLN__ssm_conv_s4d__moe_arch_mod__prompt.s.ref").read()
        head = [l for l in src.split("\n") if l.startswith(";") and "@launch" not in l]
        head = head[:head.index("; Override launch geometry by editing the next line (default: block=256,")]
        out = head + [f"; @launch grid=(256,1,1) block=(512,1,1) lds={LDS_BYTES}",
                      '.amdgcn_target "amdgcn-amd-amdhsa--gfx950"', ".text", f".globl {KNAME}", ".p2align 8",
                      f".type {KNAME},@function"]
        out += [l if l.endswith(":") else "    " + l for l in lines]
        out += [".section .rodata,\"a\"", ".p2align 6", f".amdhsa_kernel {KNAME}",
                "  .amdhsa_next_free_vgpr 224", "  .amdhsa_next_free_sgpr 102", "  .amdhsa_accum_offset 224",
                "  .amdhsa_group_segment_fixed_size 0", "  .amdhsa_kernarg_size 120", "  .amdhsa_user_sgpr_count 2",
                "  .amdhsa_user_sgpr_kernarg_segment_ptr 1", "  .amdhsa_system_sgpr_workgroup_id_x 1",
                ".end_amdhsa_kernel", ""]
        return "\n".join(out)


if __name__ == "__main__":
    out = sys.argv[1]
    opts = {}
    stamp = False
    for a in sys.argv[2:]:
        if a == "stamp":
            stamp = True
        else:
            k, val = a.split("=")
            opts[k] = val if k in ('pr', 'few') else int(val)
    g = Gen(stamp, opts)
    open(out, "w").write(g.text())
    if g.stamp_on:
        open(out + ".names", "w").write(" ".join(g.allnames["R"]) + "\n" + " ".join(g.allnames["C"]))
    print(g.info, "lds", LDS_BYTES)
```
